```python
import torch

def _softmax(x, axis=-1):
    return torch.softmax(x, dim=axis)

def _gelu(x):
    return torch.nn.functional.gelu(x, approximate='tanh')

def _silu(x):
    return torch.nn.functional.silu(x)

def _sigmoid(x):
    return torch.sigmoid(x)

def _layernorm(x, axis=-1, eps=1e-05):
    m = x.mean(dim=axis, keepdim=True)
    v = x.var(dim=axis, keepdim=True, unbiased=False)
    return (x - m) / torch.sqrt(v + eps)

def _scatter_add(tgt, idx, src, axis=0):
    return tgt.clone().index_add_(axis, idx, src)

def _segment_sum(src, seg, n):
    out = torch.zeros((n,) + src.shape[1:], dtype=src.dtype)
    return out.index_add_(0, seg, src)

def _pad(x, pw):
    flat = tuple((v for pair in reversed(pw) for v in pair))
    return torch.nn.functional.pad(x, flat)
kernel_name = 'adaLN_cond__ssm_conv_h3__geglu_ffn__prompt'

def setup_inputs():

    _w = lambda a: (lambda t: t.to(torch.bfloat16) if t.is_floating_point() else t)(torch.as_tensor(a))

    def _A_setup():
        B, S, D = (1, 2048, 512)
        ks = 4
        return {'q': _w((lambda *s: torch.randn(*s, dtype=torch.bfloat16) * 0.05)(B, S, D)), 'k': _w((lambda *s: torch.randn(*s, dtype=torch.bfloat16) * 0.8)(B, S, D)), 'v': _w((lambda *s: torch.randn(*s, dtype=torch.bfloat16) * 0.8)(B, S, D)), 'shift_k': _w((lambda *s: torch.randn(*s, dtype=torch.bfloat16) * 0.8)(D, ks) * 0.5), 'ssm_k': _w((lambda *s: torch.randn(*s, dtype=torch.bfloat16) * 0.8)(D, S) * (1.0 / S ** 0.5)), 'ssm_D': _w((lambda *s: torch.randn(*s, dtype=torch.bfloat16) * 0.8)(D))}
    _A_in = _A_setup()

    def _B_setup():
        B, S, D, F = (1, 2048, 512, 1792)
        return {'x': _w((lambda *s: torch.randn(*s, dtype=torch.bfloat16) * 0.05)(B, S, D)), 'w_gate': _w((lambda *s: torch.randn(*s, dtype=torch.bfloat16) * 0.05)(D, F)), 'w_up': _w((lambda *s: torch.randn(*s, dtype=torch.bfloat16) * 0.05)(D, F)), 'w_down': _w((lambda *s: torch.randn(*s, dtype=torch.bfloat16) * 0.05)(F, D))}
    _B_in = _B_setup()
    return {'A_q': _A_in['q'], 'A_k': _A_in['k'], 'A_v': _A_in['v'], 'A_shift_k': _A_in['shift_k'], 'A_ssm_k': _A_in['ssm_k'], 'A_ssm_D': _A_in['ssm_D'], 'B_x': _B_in['x'], 'B_w_gate': _B_in['w_gate'], 'B_w_up': _B_in['w_up'], 'B_w_down': _B_in['w_down'], 'c': _w((lambda *s: torch.randn(*s, dtype=torch.bfloat16) * 0.1)(1, 512) * 8.0), 'w_mod': _w((lambda *s: torch.randn(*s, dtype=torch.bfloat16) * 0.1)(512, 6 * 512) * 512 ** (-0.5) * 8.0)}

def reference(A_q, A_k, A_v, A_shift_k, A_ssm_k, A_ssm_D, B_x, B_w_gate, B_w_up, B_w_down, c, w_mod):

    def _A_ref(q, k, v, shift_k, ssm_k, ssm_D):
        B, S, D = q.shape
        ks = shift_k.shape[-1]
        k_pad = _pad(k, ((0, 0), (ks - 1, 0), (0, 0)))
        k_shift = torch.zeros_like(k)
        for t in range(ks):
            k_shift = k_shift + k_pad[:, t:t + S, :] * shift_k[:, ks - 1 - t][None, None, :]
        kv = k_shift * v
        L = 2 * S
        kv_pad = _pad(kv, ((0, 0), (0, S), (0, 0)))
        kf_pad = _pad(ssm_k, ((0, 0), (0, S)))
        kv_f = (lambda x, axes=(-2, -1): torch.fft.rfft2(x.float(), dim=axes))(kv_pad[:, None, :, :], axes=(1, 2))
        kf_f = (lambda x, axes=(-2, -1): torch.fft.rfft2(x.float(), dim=axes))(kf_pad[:, None, :], axes=(1, 2))
        kf_f = (lambda x, *d: x.permute(*d))(kf_f, 1, 2, 0)
        y_f = kv_f * kf_f[None, :, :, :]
        y = (lambda x, s, axes=(-2, -1): torch.fft.irfft2(x, s=s, dim=axes).to(torch.bfloat16))(y_f, (1, L), axes=(1, 2))[:, 0, :S, :]
        y = y + kv * ssm_D[None, None, :]
        return q * y

    def _B_ref(x, w_gate, w_up, w_down):
        return _gelu(x @ w_gate) * (x @ w_up) @ w_down
    x = A_q
    mod = (_silu(c) @ w_mod).reshape(c.shape[0], 6, 1, -1)
    sa, ca, ga, sb, cb, gb = (mod[:, 0].clone(), mod[:, 1].clone(), mod[:, 2].clone(), mod[:, 3].clone(), mod[:, 4].clone(), mod[:, 5].clone())
    h = _layernorm(x, axis=-1) * (1 + ca) + sa
    x = x + ga * _A_ref(h, A_k, A_v, A_shift_k, A_ssm_k, A_ssm_D)
    h = _layernorm(x, axis=-1) * (1 + cb) + sb
    x = x + gb * _B_ref(h, B_w_gate, B_w_up, B_w_down)
    return x
```

```python
import re

class Asm:
    def __init__(self):
        self.lines = []
    def __call__(self, s):
        for ln in s.split('\n'):
            ln = ln.strip()
            if ln:
                self.lines.append(ln)
    def label(self, name):
        self.lines.append(name + ':')
    def nop(self, n):
        while n > 0:
            k = min(n, 16)
            self.lines.append(f's_nop {k-1}')
            n -= k
    def text(self):
        out = []
        for ln in self.lines:
            if ln.endswith(':') or ln.startswith('.') or ln.startswith(';'):
                out.append(ln)
            else:
                out.append('    ' + ln)
        return '\n'.join(out) + '\n'

def vr(base, n=1, kind='v'):
    if n == 1:
        return f'{kind}{base}'
    return f'{kind}[{base}:{base+n-1}]'
def ar(base, n=1):
    return vr(base, n, 'a')
def sr(base, n=1):
    return vr(base, n, 's')

_REG = re.compile(r'^(-|abs\()?([vas])(\d+)\)?$')
_RNG = re.compile(r'^(-|abs\()?([vas])\[(\d+):(\d+)\]\)?$')
def regs_of(op):
    op = op.strip()
    if op.startswith('|') and op.endswith('|'):
        op = op[1:-1]
    if op.startswith('-|'):
        op = op[2:-1]
    m = _REG.match(op)
    if m:
        return {(m.group(2), int(m.group(3)))}
    m = _RNG.match(op)
    if m:
        return {(m.group(2), i) for i in range(int(m.group(3)), int(m.group(4)) + 1)}
    if op == 'vcc':
        return {('s', 'vcc_lo'), ('s', 'vcc_hi')}
    if op in ('vcc_lo', 'vcc_hi', 'm0'):
        return {('s', op)}
    if op == 'exec':
        return {('s', 'exec_lo'), ('s', 'exec_hi')}
    if op in ('exec_lo', 'exec_hi'):
        return {('s', op)}
    return set()

TRANS = ('v_exp_f32', 'v_log_f32', 'v_rcp_f32', 'v_rsq_f32', 'v_sqrt_f32', 'v_sin_f32', 'v_cos_f32', 'v_rcp_iflag_f32')

class Ins:
    def __init__(self, line):
        self.line = line
        body = line.split(';')[0].strip()
        parts = body.split(None, 1)
        self.mn = parts[0]
        rest = parts[1] if len(parts) > 1 else ''
        ops, depth, cur = [], 0, ''
        for ch in rest:
            if ch in '[(':
                depth += 1
            if ch in '])':
                depth -= 1
            if ch == ',' and depth == 0:
                ops.append(cur.strip()); cur = ''
            else:
                cur += ch
        if cur.strip():
            ops.append(cur.strip())
        self.mods = ''
        if ops:
            sp = ops[-1].split(None, 1)
            if len(sp) > 1:
                ops[-1] = sp[0]; self.mods = sp[1]
        self.ops = ops
        mn = self.mn
        self.is_mfma = mn.startswith('v_mfma')
        self.is_valu = mn.startswith('v_') and not self.is_mfma
        self.is_salu = mn.startswith('s_')
        self.is_ds = mn.startswith('ds_')
        self.is_vmem = mn.startswith(('buffer_', 'global_', 'flat_'))
        self.is_trans = any(mn.startswith(t) for t in TRANS)
        self.is_dpp = '_dpp' in mn or 'quad_perm' in self.mods or 'row_' in self.mods
        self.is_perml = mn.startswith('v_permlane')
        self.is_rdlane = mn.startswith(('v_readlane', 'v_readfirstlane'))
        self.is_dot = mn.startswith('v_dot')
        self.lds_dma = self.is_vmem and (' lds' in ' ' + self.mods or 'load_lds' in mn)
        self.defs, self.uses = set(), set()
        self.srcA = self.srcB = self.srcC = set()
        self.store_data = set()
        R = [regs_of(o) for o in ops]
        if self.is_mfma:
            self.defs = R[0]; self.srcA, self.srcB = R[1], R[2]; self.srcC = R[3]
            self.uses = R[1] | R[2] | R[3]
            self.passes = 8 if '32x32x16' in mn else 4
            assert '32x32x16' in mn or '16x16x32' in mn, mn
        elif self.is_valu:
            if self.is_perml and 'swap' in mn:
                self.defs = R[0] | R[1]; self.uses = R[0] | R[1]
            elif mn.startswith('v_cmp'):
                self.defs = R[0]; self.uses = set().union(*R[1:])
                if mn.startswith('v_cmpx'):
                    self.defs |= regs_of('exec')
            elif '_co_' in mn or mn.startswith('v_mad_u64'):
                self.defs = R[0] | R[1]; self.uses = set().union(*R[2:])
            else:
                self.defs = R[0]; self.uses = set().union(*R[1:]) if len(R) > 1 else set()
                if mn.startswith(('v_fmac', 'v_dot2c', 'v_pk_fmac', 'v_writelane')) or self.is_dpp or 'sdwa' in mn or 'op_sel' in self.mods and not mn.startswith('v_pk'):
                    self.uses |= R[0]
                if mn.startswith('v_cndmask') and len(ops) == 3:
                    self.uses |= regs_of('vcc')
        elif self.is_ds:
            if mn.startswith(('ds_read', 'ds_bpermute', 'ds_permute', 'ds_swizzle')) or '_rtn' in mn:
                self.defs = R[0]; self.uses = set().union(*R[1:])
            else:
                self.uses = set().union(*R)
        elif self.is_vmem:
            if mn in ('buffer_wbl2', 'buffer_inv'):
                pass
            elif self.lds_dma:
                self.uses = set().union(*R) | {('s', 'm0')}
            elif '_load' in mn:
                self.defs = R[0]; self.uses = set().union(*R[1:])
            elif 'atomic' in mn and 'sc0' in self.mods:
                if mn.startswith('buffer'):
                    self.defs = R[0]; self.uses = set().union(*R)
                else:
                    self.defs = R[0]; self.uses = set().union(*R[1:])
            else:
                self.uses = set().union(*R)
                if 'x4' in mn or 'x3' in mn:
                    self.store_data = R[0] if mn.startswith('buffer') else R[1]
        elif self.is_salu:
            if mn.startswith(('s_cmp', 's_cbranch', 's_branch', 's_waitcnt', 's_barrier', 's_nop', 's_endpgm', 's_sleep', 's_setprio', 's_bitcmp', 's_setreg')):
                self.uses = set().union(*R) if R else set()
            elif 'saveexec' in mn:
                self.defs = R[0] | regs_of('exec'); self.uses = set().union(*R[1:]) | regs_of('exec')
            else:
                self.defs = R[0] if R else set(); self.uses = set().union(*R[1:]) if len(R) > 1 else set()
        else:
            raise ValueError('unknown instruction class: ' + line)
        self.ws = 1
        if mn == 's_nop':
            self.ws = int(ops[0], 0) + 1

def _vec(s):
    return {r for r in s if r[0] in 'va'}
def _sca(s):
    return {r for r in s if r[0] == 's'}

def required(p, c):
    need = 0
    if p.is_valu:
        vd, sd = _vec(p.defs), _sca(p.defs)
        if c.is_mfma and vd & c.uses:
            need = max(need, 2)
        if c.is_valu and c.is_dpp and vd & c.uses:
            need = max(need, 2)
        if c.is_perml and vd & c.uses:
            need = max(need, 2)
        if c.is_rdlane and vd & c.uses:
            need = max(need, 1)
        if p.is_trans and (c.is_valu or c.is_mfma) and vd & c.uses:
            need = max(need, 1)
        if p.is_dot and (c.is_valu or c.is_mfma or c.is_vmem or c.is_ds) and vd & (c.uses | c.defs):
            if not (c.mn == p.mn and c.mn.startswith('v_dot2c') and not (vd & (c.uses - c.defs))):
                need = max(need, 3)
        if ('sdwa' in p.mn or ('op_sel' in p.mods and not p.mn.startswith('v_pk'))) and c.is_valu and vd & (c.uses | c.defs):
            need = max(need, 1)
        if sd:
            if c.is_valu and sd & c.uses:
                need = max(need, 4 if c.is_rdlane else 2)
            if c.is_vmem and sd & c.uses:
                need = max(need, 5)
            if c.is_salu and sd & c.uses:
                need = max(need, 1)
            if ('s', 'exec_lo') in sd:
                if c.is_dpp: need = max(need, 5)
                if c.is_mfma or c.is_rdlane or c.is_perml: need = max(need, 4)
    if p.is_mfma:
        big = 12 if p.passes == 8 else 8
        if c.is_mfma:
            if p.defs & (c.srcA | c.srcB):
                need = max(need, big)
            if p.defs & c.srcC and not (p.defs == c.srcC and p.passes == c.passes):
                need = max(need, big - 2)
            if p.defs & c.defs and not (p.defs & c.srcC):
                need = max(need, big)
        elif c.is_valu or c.is_vmem or c.is_ds:
            if p.defs & (c.uses | c.defs):
                need = max(need, big)
        if c.is_valu and p.srcC & c.defs:
            need = max(need, 7 if p.passes == 8 else 3)
    if p.store_data:
        if c.is_valu and p.store_data & c.defs:
            need = max(need, 2)
        elif (c.is_vmem or c.is_ds or c.is_mfma) and p.store_data & c.defs:
            need = max(need, 1)
    if p.is_salu and ('s', 'm0') in p.defs and c.lds_dma:
        need = max(need, 1)
    return need

def check(lines, fix=True, window=24):
    out, hist, nfix = [], [], 0
    for ln in lines:
        if ln.endswith(':') or ln.startswith('.') or ln.startswith(';'):
            out.append(ln); continue
        c = Ins(ln)
        dist, pad = 0, 0
        for p in reversed(hist[-window:]):
            need = required(p, c)
            if need > dist:
                pad = max(pad, need - dist)
            dist += p.ws
            if dist >= 20:
                break
        if pad:
            if not fix:
                raise RuntimeError('hazard before: ' + ln)
            nfix += 1
            n = Ins(f's_nop {pad-1}')
            out.append(n.line + '   ; hz'); hist.append(n)
        out.append(ln); hist.append(c)
    return out, nfix

def check_loops(lines):
    idx = {ln[:-1]: i for i, ln in enumerate(lines) if ln.endswith(':')}
    isins = lambda l: not (l.endswith(':') or l.startswith('.') or l.startswith(';'))
    probs = []
    for i, ln in enumerate(lines):
        if ln.startswith(('s_cbranch', 's_branch')):
            tgt = ln.split(';')[0].split()[1]
            if tgt not in idx:
                continue
            before = [Ins(l) for l in lines[max(0, i - 30):i + 1] if isins(l)]
            after = [Ins(l) for l in lines[idx[tgt]:idx[tgt] + 30] if isins(l)]
            for j, c in enumerate(after):
                base = sum(x.ws for x in after[:j])
                dist = base
                for p in reversed(before):
                    need = required(p, c)
                    if need > dist:
                        probs.append((p.line, c.line, need, dist))
                    dist += p.ws
                    if dist >= 20: break
                if base >= 20: break
    return probs
```

```python
from asmlib import *
import struct
def f2u(x): return struct.unpack('<I', struct.pack('<f', x))[0]
def fh(x): return hex(f2u(x))

A_Q, A_K, A_V, A_SH, A_SK, A_SD, A_BX, A_WG, A_WU, A_WD, A_C, A_WM, A_OUT, A_DBG, A_WS = [8*i for i in range(15)]
UT, YT, X1, H2, ACT, MOD = 0x000000, 0x200000, 0x400000, 0x600000, 0x800000, 0xF00000
TS = 0x1000000

def srd(a, d, base, nbytes, off=0):
    if off:
        a(f's_add_u32 s{d}, s{base}, {hex(off)}')
        a(f's_addc_u32 s{d+1}, s{base+1}, 0')
    else:
        a(f's_mov_b32 s{d}, s{base}')
        a(f's_mov_b32 s{d+1}, s{base+1}')
    a(f's_mov_b32 s{d+2}, {hex(nbytes)}')
    a(f's_mov_b32 s{d+3}, 0x20000')

def lo(a, dst, src): a(f'v_lshlrev_b32 v{dst}, 16, v{src}')
def hi(a, dst, src, smask): a(f'v_and_b32 v{dst}, s{smask}, v{src}')

def stamp(a, kid, slot, P):
    if not P.get('stamps'): return
    a('s_memrealtime s[90:91]')
    a(f's_load_dwordx2 s[92:93], s[0:1], {A_WS}')
    a('s_waitcnt lgkmcnt(0)')
    a(f's_lshl_b32 s94, s2, 7')
    a(f's_add_u32 s94, s94, {hex(TS + kid*0x10000 + slot*8)}')
    a('s_add_u32 s92, s92, s94')
    a('s_addc_u32 s93, s93, 0')
    a('v_mov_b32 v250, s90')
    a('v_mov_b32 v251, s91')
    a('v_mov_b32 v252, 0')
    a('s_mov_b64 s[96:97], exec')
    a('v_cmp_eq_u32 vcc, 0, v253')
    a('s_and_b64 exec, exec, vcc')
    a(f's_cbranch_execz L_st{kid}_{slot}')
    a('global_store_dwordx2 v252, v[250:251], s[92:93]')
    a.label(f'L_st{kid}_{slot}')
    a('s_mov_b64 exec, s[96:97]')

def k1(a, P):
    a('s_cmp_ge_u32 s2, 256')
    a('s_cbranch_scc1 L_k1_end')
    if P.get('stamps'): a('v_mov_b32 v253, v0')
    stamp(a, 0, 0, P)
    a('v_lshrrev_b32 v1, 6, v0')
    a(f's_load_dwordx2 s[10:11], s[0:1], {A_WS}')
    a('v_readfirstlane_b32 s3, v1')
    a('s_mov_b32 s40, 0xffff0000')
    a('s_cmp_ge_u32 s3, 4')
    a('s_cbranch_scc1 L_k1_mod')
    a(f's_load_dwordx4 s[4:7], s[0:1], {A_K}')
    a(f's_load_dwordx2 s[8:9], s[0:1], {A_SH}')
    a('s_and_b32 s30, s2, 7')
    a('s_lshr_b32 s31, s2, 3')
    a('v_and_b32 v1, 31, v0')
    a('v_lshrrev_b32 v2, 5, v0')
    a('s_lshl_b32 s32, s31, 6')
    a('v_lshl_add_u32 v2, v2, 3, s32')
    a('s_lshl_b32 s33, s30, 7')
    a('v_lshl_add_u32 v3, v1, 2, s33')
    a('v_lshl_add_u32 v3, v2, 10, v3')
    a('v_subrev_u32 v4, 0xc00, v3')
    a('s_lshl_b32 s34, s30, 9')
    a('v_lshl_add_u32 v5, v1, 4, s34')
    a('s_movk_i32 s35, 0x1000')
    a('s_waitcnt lgkmcnt(0)')
    srd(a, 12, 4, 0x200000); srd(a, 16, 6, 0x200000); srd(a, 20, 8, 4096); srd(a, 24, 10, 0x200000, UT)
    a('buffer_load_dwordx4 v[28:31], v5, s[20:23], 0 offen')
    for i in range(3):
        a(f'buffer_load_dword v{8+i}, v4, s[12:15], 0 offen offset:{1024*i}')
    for i in range(8):
        so = 's35' if i >= 4 else '0'
        a(f'buffer_load_dword v{11+i}, v3, s[12:15], {so} offen offset:{1024*(i&3)}')
        a(f'buffer_load_dword v{20+i}, v3, s[16:19], {so} offen offset:{1024*(i&3)}')
    a('s_lshl_b32 s36, s30, 18')
    a('v_lshl_add_u32 v6, v1, 13, s36')
    a('v_sub_u32 v7, 0x7f8, v2')
    a('v_lshl_add_u32 v6, v7, 1, v6')
    a('s_waitcnt vmcnt(19)')
    lo(a, 32, 28); hi(a, 34, 28, 40); lo(a, 36, 29); hi(a, 38, 29, 40)
    lo(a, 33, 30); hi(a, 35, 30, 40); lo(a, 37, 31); hi(a, 39, 31, 40)
    a('s_waitcnt vmcnt(16)')
    for r in range(3):
        lo(a, 40+2*r, 8+r); hi(a, 41+2*r, 8+r, 40)
    for r in range(8):
        a(f's_waitcnt vmcnt({14-2*r})')
        lo(a, 46+2*r, 11+r); hi(a, 47+2*r, 11+r, 40)
        lo(a, 64+2*r, 20+r); hi(a, 65+2*r, 20+r, 40)
        d = 80+2*r
        a(f'v_pk_mul_f32 v[{d}:{d+1}], v[{40+2*r}:{41+2*r}], v[38:39]')
        a(f'v_pk_fma_f32 v[{d}:{d+1}], v[{42+2*r}:{43+2*r}], v[36:37], v[{d}:{d+1}]')
        a(f'v_pk_fma_f32 v[{d}:{d+1}], v[{44+2*r}:{45+2*r}], v[34:35], v[{d}:{d+1}]')
        a(f'v_pk_fma_f32 v[{d}:{d+1}], v[{46+2*r}:{47+2*r}], v[32:33], v[{d}:{d+1}]')
        a(f'v_pk_mul_f32 v[{d}:{d+1}], v[{d}:{d+1}], v[{64+2*r}:{65+2*r}]')
    for c in range(2):
        for jj in range(4):
            a(f'v_cvt_pk_bf16_f32 v{8+4*c+jj}, v{80+2*(7-2*jj)+c}, v{80+2*(6-2*jj)+c}')
    a('buffer_store_dwordx4 v[8:11], v6, s[24:27], 0 offen')
    a('buffer_store_dwordx4 v[12:15], v6, s[24:27], s35 offen')
    if P.get('stamps'): a('s_waitcnt vmcnt(0)')
    stamp(a, 0, 1, P)
    a('s_endpgm')
    a.label('L_k1_mod')
    a('s_cmp_ge_u32 s2, 192')
    a('s_cbranch_scc1 L_k1_end')
    a(f's_load_dwordx4 s[4:7], s[0:1], {A_C}')
    a('s_lshr_b32 s30, s2, 5')
    a('s_lshl_b32 s30, s30, 3')
    a('s_and_b32 s31, s2, 7')
    a('s_or_b32 s30, s30, s31')
    a('s_lshr_b32 s31, s2, 3')
    a('s_and_b32 s31, s31, 3')
    a('s_lshl_b32 s30, s30, 7')
    a('s_lshl_b32 s31, s31, 5')
    a('s_or_b32 s30, s30, s31')
    a('v_and_b32 v0, 0xff, v0')
    a('v_and_b32 v1, 1, v0')
    a('v_lshrrev_b32 v2, 1, v0')
    a('v_mul_u32_u24 v3, 0x6000, v2')
    a('v_lshl_add_u32 v3, v1, 4, v3')
    a('v_add_u32 v3, s30, v3')
    a('v_lshlrev_b32 v4, 3, v2')
    a('s_movk_i32 s33, 0x1800')
    a('s_movk_i32 s34, 0x3000')
    a('s_movk_i32 s35, 0x4800')
    a('s_waitcnt lgkmcnt(0)')
    srd(a, 12, 4, 1024); srd(a, 16, 6, 512*6144); srd(a, 24, 10, 6144, MOD)
    a('buffer_load_dwordx2 v[6:7], v4, s[12:15], 0 offen')
    for r, so in enumerate(('0', 's33', 's34', 's35')):
        a(f'buffer_load_dwordx4 v[{8+4*r}:{11+4*r}], v3, s[16:19], {so} offen')
    a('s_waitcnt vmcnt(4)')
    lo(a, 24, 6); hi(a, 25, 6, 40); lo(a, 26, 7); hi(a, 27, 7, 40)
    for r in range(4): a(f'v_mul_f32 v{28+r}, {fh(-1.4426950408889634)}, v{24+r}')
    for r in range(4): a(f'v_exp_f32 v{28+r}, v{28+r}')
    for r in range(4): a(f'v_add_f32 v{28+r}, 1.0, v{28+r}')
    for r in range(4): a(f'v_rcp_f32 v{28+r}, v{28+r}')
    for r in range(4): a(f'v_mul_f32 v{24+r}, v{24+r}, v{28+r}')
    a('v_cvt_pk_bf16_f32 v6, v24, v25')
    a('v_cvt_pk_bf16_f32 v7, v26, v27')
    lo(a, 24, 6); hi(a, 25, 6, 40); lo(a, 26, 7); hi(a, 27, 7, 40)
    for r in range(4):
        a(f's_waitcnt vmcnt({3-r})')
        for j in range(4):
            lo(a, 32+2*j, 8+4*r+j); hi(a, 33+2*j, 8+4*r+j, 40)
        sel = 'op_sel:[0,0,0] op_sel_hi:[1,0,1]' if r % 2 == 0 else 'op_sel:[0,1,0] op_sel_hi:[1,1,1]'
        sp = 24 + (r & 2)
        for j in range(4):
            if r == 0:
                a(f'v_pk_mul_f32 v[{40+2*j}:{41+2*j}], v[{32+2*j}:{33+2*j}], v[{sp}:{sp+1}] op_sel:[0,0] op_sel_hi:[1,0]')
            else:
                a(f'v_pk_fma_f32 v[{40+2*j}:{41+2*j}], v[{32+2*j}:{33+2*j}], v[{sp}:{sp+1}], v[{40+2*j}:{41+2*j}] {sel}')
    for ctl in ('quad_perm:[2,3,0,1]', 'row_ror:4', 'row_ror:8'):
        for j in range(8):
            a(f'v_add_f32_dpp v{40+j}, v{40+j}, v{40+j} {ctl} row_mask:0xf bank_mask:0xf')
    a('v_lshrrev_b32 v2, 4, v0')
    a('v_lshlrev_b32 v2, 6, v2')
    a('v_lshl_add_u32 v2, v1, 5, v2')
    a('v_and_b32 v3, 14, v0')
    a('v_cmp_eq_u32 vcc, 0, v3')
    a('s_and_saveexec_b64 s[36:37], vcc')
    a('ds_write_b128 v2, v[40:43]')
    a('ds_write_b128 v2, v[44:47] offset:16')
    a('s_mov_b64 exec, s[36:37]')
    a('s_waitcnt lgkmcnt(0)')
    a('s_barrier')
    a('s_cmp_lg_u32 s3, 4')
    a('s_cbranch_scc1 L_k1_end')
    a('v_and_b32 v1, 15, v0')
    a('v_lshrrev_b32 v2, 4, v0')
    a('v_lshlrev_b32 v3, 8, v2')
    a('v_lshl_add_u32 v3, v1, 2, v3')
    for i in range(4): a(f'ds_read_b32 v{8+i}, v3 offset:{64*i}')
    a('s_lshr_b32 s31, s30, 10')
    a('s_cmp_eq_u32 s31, 1')
    a('s_cselect_b32 s32, 1.0, 0')
    a('s_cmp_eq_u32 s31, 4')
    a('s_cselect_b32 s32, 1.0, s32')
    a('s_waitcnt lgkmcnt(0)')
    a('v_add_f32 v8, v8, v9'); a('v_add_f32 v10, v10, v11'); a('v_add_f32 v8, v8, v10')
    a('v_mov_b32 v9, v8')
    a('v_permlane16_swap_b32 v8, v9')
    a('v_add_f32 v8, v8, v9')
    a('v_mov_b32 v9, v8')
    a('v_permlane32_swap_b32 v8, v9')
    a('v_add_f32 v8, v8, v9')
    a('v_cvt_pk_bf16_f32 v8, v8, v8')
    lo(a, 8, 8)
    a('v_add_f32 v8, s32, v8')
    a('v_cvt_pk_bf16_f32 v8, v8, v8')
    a('v_lshl_add_u32 v1, v1, 1, s30')
    a('v_cmp_gt_u32 vcc, 16, v0')
    a('s_and_saveexec_b64 s[36:37], vcc')
    a('buffer_store_short v8, v1, s[24:27], 0 offen')
    a.label('L_k1_end')
    a('s_endpgm')
    return dict(grid=256, block=512, lds=1024, vgpr=(256 if P.get('stamps') else 96), accum=(256 if P.get('stamps') else 96))

class LdsPipe:
    def __init__(self, a):
        self.a = a; self.issued = 0; self.done = 0
    def issue(self, line):
        self.a(line); self.issued += 1
        return self.issued
    def need(self, tok):
        if tok > self.done:
            n = self.issued - tok
            assert n <= 15, n
            self.a(f's_waitcnt lgkmcnt({n})')
            self.done = tok
    def outstanding(self): return self.issued - self.done

CHS, KB, U0, U1, PB = 12928, 512, 4608, 8768, 25856
def k2(a, P):
    a('s_cmp_ge_u32 s2, 256')
    a('s_cbranch_scc1 L_k2_end')
    if P.get('stamps'): a('v_mov_b32 v253, v0')
    stamp(a, 1, 0, P)
    a(f's_load_dwordx4 s[4:7], s[0:1], {A_SK}')
    a(f's_load_dwordx2 s[10:11], s[0:1], {A_WS}')
    a('s_and_b32 s30, s2, 7')
    a('s_lshl_b32 s30, s30, 5')
    a('s_lshr_b32 s31, s2, 3')
    a('s_or_b32 s30, s30, s31')
    a('s_lshl_b32 s31, s30, 13')
    a('s_add_u32 s32, s31, 0x1000')
    a('s_lshl_b32 s33, s30, 2')
    a('v_lshlrev_b32 v1, 4, v0')
    a('v_lshrrev_b32 v2, 6, v0')
    a('s_waitcnt lgkmcnt(0)')
    a('s_add_u32 s6, s6, s33')
    a('s_addc_u32 s7, s7, 0')
    a('s_load_dword s34, s[6:7], 0')
    srd(a, 12, 4, 0x200000); srd(a, 16, 10, 0x200000, UT); srd(a, 20, 10, 0x200000, YT)
    a('v_readfirstlane_b32 s3, v2')
    for c, so in enumerate(('s31', 's32')):
        a(f'buffer_load_dwordx4 v[{8+4*c}:{11+4*c}], v1, s[16:19], {so} offen')
        a(f'buffer_load_dword v{24+c}, v1, s[16:19], {so} offen offset:16')
        a(f'buffer_load_dwordx4 v[{16+4*c}:{19+4*c}], v1, s[12:15], {so} offen')
    for i in range(4): a(f'v_mov_b32 v{28+i}, 0')
    a('v_cmp_gt_u32 vcc, 32, v0')
    a('s_and_saveexec_b64 s[36:37], vcc')
    a('s_cbranch_execz L_k2_nz')
    a('ds_write_b128 v1, v[28:31]')
    a(f'ds_write_b128 v1, v[28:31] offset:{CHS}')
    a('v_cmp_gt_u32 vcc, 2, v0')
    a('s_and_b64 exec, exec, vcc')
    for c in range(2):
        a(f'ds_write_b128 v1, v[28:31] offset:{c*CHS+U0+4096}')
        a(f'ds_write_b128 v1, v[28:31] offset:{c*CHS+U1+4096}')
    a.label('L_k2_nz')
    a('s_mov_b64 exec, s[36:37]')
    a('s_lshr_b32 s35, s3, 1')
    a('s_and_b32 s38, s3, 1')
    a(f's_mul_i32 s35, s35, {CHS}')
    a('s_xor_b32 s38, s38, 1')
    a('s_lshl_b32 s38, s38, 6')
    a('s_add_u32 s35, s35, s38')
    a('v_and_b32 v3, 15, v0')
    a('v_bfe_u32 v4, v0, 4, 2')
    a('v_lshlrev_b32 v5, 4, v4')
    a('v_lshl_add_u32 v6, v3, 5, v5')
    a(f's_add_u32 s39, s35, {KB-480}')
    a('v_add_u32 v6, s39, v6')
    a('v_and_b32 v7, 14, v3')
    a('v_lshlrev_b32 v7, 1, v7')
    a('v_sub_u32 v7, v5, v7')
    a('v_and_b32 v32, 1, v3')
    a(f'v_mul_u32_u24 v32, {U1-U0}, v32')
    a('v_sub_u32 v7, v7, v32')
    a(f's_add_u32 s39, s35, {U1+28}')
    a('v_add_u32 v36, s39, v7')
    for i in range(1, 4): a(f'v_add_u32 v{36+i}, {1024*i}, v36')
    a('v_bfe_u32 v32, v3, 1, 2')
    a('v_xor_b32 v32, v32, v4')
    a('v_lshl_add_u32 v32, v3, 2, v32')
    a('s_lshl_b32 s39, s3, 13')
    a(f's_add_u32 s39, s39, {PB}')
    a('v_lshl_add_u32 v35, v32, 4, s39')
    a('v_cmp_eq_u32 s[36:37], 0, v0')
    a('s_movk_i32 s39, 0xff')
    a('v_cmp_ne_u32 vcc, s39, v0')
    a('s_waitcnt lgkmcnt(0)')
    a('s_lshl_b32 s41, s34, 16')
    a('s_and_b32 s42, s34, 0xffff0000')
    a('s_mov_b32 s43, 0xffff')
    for c in range(2):
        a(f's_waitcnt vmcnt({4-3*c})')
        u = 8+4*c
        a(f'v_cndmask_b32 v{24+c}, 0, v{24+c}, vcc')
        a(f'ds_write_b128 v1, v[{u}:{u+3}] offset:{c*CHS+U0}')
        for j in range(3): a(f'v_alignbit_b32 v{28+j}, v{u+j+1}, v{u+j}, 16')
        a(f'v_alignbit_b32 v31, v{24+c}, v{u+3}, 16')
        a(f'ds_write_b128 v1, v[28:31] offset:{c*CHS+U1}')
        a(f's_waitcnt vmcnt({3-3*c})')
        kx = 16+4*c
        lo(a, 32, kx)
        a(f'v_add_f32 v32, s{41+c}, v32')
        a('v_cvt_pk_bf16_f32 v32, v32, v32')
        a(f'v_bfi_b32 v32, s43, v32, v{kx}')
        a(f'v_cndmask_b32 v{kx}, v{kx}, v32, s[36:37]')
        a(f'ds_write_b128 v1, v[{kx}:{kx+3}] offset:{c*CHS+KB}')
    a('s_waitcnt lgkmcnt(0)')
    a('s_barrier')
    stamp(a, 1, 1, P)
    ACC, AR, BR = 40, 72, 104
    pipe = LdsPipe(a)
    reads = []
    for i in range(32):
        o = 32*((31-i) & 7); b = 36 + ((31-i) >> 3); d = AR + 4*(i & 7)
        reads.append((('A', i, 0), f'ds_read2_b32 v[{d}:{d+1}], v{b} offset0:{o} offset1:{o+1}'))
        reads.append((('A', i, 1), f'ds_read2_b32 v[{d+2}:{d+3}], v{b} offset0:{o+2} offset1:{o+3}'))
        if i < 4:
            for t in range(8):
                j = 4*t+3-i
                reads.append((('B', j), f'ds_read_b128 v[{BR+4*j}:{BR+4*j+3}], v6 offset:{128*j}'))
    tok = {}; nxt = [0]
    def pump(cur_step, maxn):
        n = 0
        while n < maxn and nxt[0] < len(reads) and pipe.outstanding() < 13:
            key, line = reads[nxt[0]]
            if key[0] == 'A' and key[1] >= cur_step + 8: break
            tok[key] = pipe.issue(line); nxt[0] += 1; n += 1
    pump(0, 12)
    pending = []
    for i in range(32):
        for t in range(i >> 2, 8):
            j = 4*t+3-i
            while ('B', j) not in tok or ('A', i, 1) not in tok:
                pipe.need(pipe.done + 2); pump(i, 2)
            pipe.need(max(tok[('A', i, 1)], tok[('B', j)]))
            d = ACC+4*t; c = '0' if i == 0 else f'v[{d}:{d+3}]'
            s = AR+4*(i & 7)
            a(f'v_mfma_f32_16x16x32_bf16 v[{d}:{d+3}], v[{s}:{s+3}], v[{BR+4*j}:{BR+4*j+3}], {c}')
            pump(i, 2 if i < 4 else 1)
        if pending and pipe.outstanding() < 14:
            t = pending.pop()
            pipe.issue(f'ds_write_b128 v35, v[{ACC+4*t}:{ACC+4*t+3}] offset:{1024*t}')
        if (i & 3) == 3: pending.append(i >> 2)
    for t in pending:
        pipe.issue(f'ds_write_b128 v35, v[{ACC+4*t}:{ACC+4*t+3}] offset:{1024*t}')
    a('v_lshrrev_b32 v2, 3, v0')
    a('v_and_b32 v2, 3, v2')
    a('v_xor_b32 v2, v2, v0')
    a('v_lshlrev_b32 v2, 4, v2')
    a(f'v_add_u32 v2, {PB}, v2')
    a('v_lshrrev_b32 v3, 1, v0')
    a('v_lshlrev_b32 v3, 13, v3')
    a('v_and_b32 v4, 1, v0')
    a('v_lshl_add_u32 v3, v4, 4, v3')
    a('s_lshl_b32 s31, s30, 5')
    a('s_add_u32 s32, s31, 0x100000')
    a('s_waitcnt lgkmcnt(0)')
    a('s_barrier')
    stamp(a, 1, 2, P)
    for h in range(2):
        for w in range(4):
            a(f'ds_read_b128 v[{72+16*h+4*w}:{75+16*h+4*w}], v2 offset:{8192*w+4096*h}')
    for h in range(2):
        b = 72+16*h
        a(f's_waitcnt lgkmcnt({4-4*h})')
        for c in range(2):
            for p in range(2):
                a(f'v_pk_add_f32 v[{b+8*c+2*p}:{b+8*c+2*p+1}], v[{b+8*c+2*p}:{b+8*c+2*p+1}], v[{b+8*c+4+2*p}:{b+8*c+5+2*p}]')
        for r in range(4):
            a(f'v_cvt_pk_bf16_f32 v{8+4*h+r}, v{b+r}, v{b+8+r}')
        a(f'buffer_store_dwordx4 v[{8+4*h}:{11+4*h}], v3, s[20:23], s{31+h} offen')
    if P.get('stamps'): a('s_waitcnt vmcnt(0)')
    stamp(a, 1, 3, P)
    a.label('L_k2_end')
    a('s_endpgm')
    return dict(grid=256, block=256, lds=PB+32768, vgpr=256, accum=256)

def wave_sum(a, v, sdst):
    for ctl in ('row_shr:1', 'row_shr:2', 'row_shr:4', 'row_shr:8'):
        a(f'v_add_f32_dpp v{v}, v{v}, v{v} {ctl} row_mask:0xf bank_mask:0xf bound_ctrl:1')
    a(f'v_add_f32_dpp v{v}, v{v}, v{v} row_bcast:15 row_mask:0xa bank_mask:0xf')
    a(f'v_add_f32_dpp v{v}, v{v}, v{v} row_bcast:31 row_mask:0xc bank_mask:0xf')
    a(f'v_readlane_b32 s{sdst}, v{v}, 63')

def ln_stats(a, X, D, T, s0):
    a(f'v_pk_add_f32 v[{T}:{T+1}], v[{X}:{X+1}], v[{X+2}:{X+3}]')
    a(f'v_pk_add_f32 v[{T+2}:{T+3}], v[{X+4}:{X+5}], v[{X+6}:{X+7}]')
    a(f'v_pk_add_f32 v[{T}:{T+1}], v[{T}:{T+1}], v[{T+2}:{T+3}]')
    a(f'v_add_f32 v{T}, v{T}, v{T+1}')
    wave_sum(a, T, s0)
    a(f'v_mov_b32 v{T}, {fh(-1.0/512)}')
    a(f'v_mul_f32 v{T}, s{s0}, v{T}')
    for p in range(4):
        a(f'v_pk_add_f32 v[{D+2*p}:{D+2*p+1}], v[{X+2*p}:{X+2*p+1}], v[{T}:{T+1}] op_sel:[0,0] op_sel_hi:[1,0]')
    a(f'v_pk_mul_f32 v[{T}:{T+1}], v[{D}:{D+1}], v[{D}:{D+1}]')
    for p in range(1, 4):
        a(f'v_pk_fma_f32 v[{T}:{T+1}], v[{D+2*p}:{D+2*p+1}], v[{D+2*p}:{D+2*p+1}], v[{T}:{T+1}]')
    a(f'v_add_f32 v{T}, v{T}, v{T+1}')
    wave_sum(a, T, s0)
    a(f'v_mov_b32 v{T}, {fh(1.0/512)}')
    a(f'v_mov_b32 v{T+1}, {fh(1e-5)}')
    a(f'v_fmac_f32 v{T+1}, s{s0}, v{T}')
    a(f'v_rsq_f32 v{T}, v{T+1}')

def unpack8(a, dst, src, smask):
    for j in range(4):
        lo(a, dst+2*j, src+j); hi(a, dst+2*j+1, src+j, smask)

YS, MB = 1040, 8448
def k3(a, P):
    a('s_cmp_ge_u32 s2, 256')
    a('s_cbranch_scc1 L_k3_end')
    if P.get('stamps'): a('v_mov_b32 v253, v0')
    stamp(a, 2, 0, P)
    a(f's_load_dwordx2 s[4:5], s[0:1], {A_Q}')
    a(f's_load_dwordx2 s[10:11], s[0:1], {A_WS}')
    a('s_mov_b32 s40, 0xffff0000')
    a('s_lshl_b32 s30, s2, 13')
    a('v_lshlrev_b32 v1, 4, v0')
    a('v_lshrrev_b32 v2, 6, v0')
    a('v_readfirstlane_b32 s3, v2')
    a('s_waitcnt lgkmcnt(0)')
    srd(a, 12, 4, 0x200000); srd(a, 16, 10, 0x200000, YT); srd(a, 20, 10, 5120, MOD)
    srd(a, 24, 10, 0x200000, X1); srd(a, 28+4, 10, 0x200000, H2)
    a('buffer_load_dwordx4 v[8:11], v1, s[12:15], s30 offen')
    a('buffer_load_dwordx4 v[12:15], v1, s[16:19], s30 offen')
    a('buffer_load_dwordx4 v[16:19], v1, s[20:23], 0 offen')
    a('v_and_b32 v3, 1, v0')
    a(f'v_mul_u32_u24 v3, {4*YS}, v3')
    a('v_lshrrev_b32 v4, 1, v0')
    a('v_lshl_add_u32 v3, v4, 2, v3')
    a('v_and_b32 v5, 63, v0')
    a(f's_mul_i32 s31, s3, {YS}')
    a('v_lshl_add_u32 v6, v5, 4, s31')
    a('v_lshlrev_b32 v7, 4, v5')
    a('s_lshl_b32 s36, s2, 3')
    a('s_add_u32 s36, s36, s3')
    a('s_lshr_b32 s37, s36, 5')
    a('s_lshl_b32 s37, s37, 15')
    a('s_and_b32 s36, s36, 31')
    a('s_lshl_b32 s36, s36, 4')
    a('s_add_u32 s36, s36, s37')
    a('v_lshlrev_b32 v5, 9, v5')
    a('s_waitcnt vmcnt(2)')
    unpack8(a, 20, 8, 40)
    ln_stats(a, 20, 28, 36, 41)
    a('s_waitcnt vmcnt(1)')
    for r in range(4): a(f'ds_write_b32 v3, v{12+r} offset:{r*YS}')
    a('s_waitcnt vmcnt(0)')
    a(f'ds_write_b128 v1, v[16:19] offset:{MB}')
    for p in range(4):
        a(f'v_pk_mul_f32 v[{28+2*p}:{29+2*p}], v[{28+2*p}:{29+2*p}], v[36:37] op_sel:[0,0] op_sel_hi:[1,0]')
    a('s_waitcnt lgkmcnt(0)')
    a('s_barrier')
    stamp(a, 2, 1, P)
    a(f'ds_read_b128 v[8:11], v7 offset:{MB+1024}')
    a(f'ds_read_b128 v[12:15], v7 offset:{MB}')
    a(f'ds_read_b128 v[16:19], v7 offset:{MB+2048}')
    a('ds_read_b128 v[40:43], v6')
    a(f'ds_read_b128 v[44:47], v7 offset:{MB+4096}')
    a(f'ds_read_b128 v[48:51], v7 offset:{MB+3072}')
    a('s_waitcnt lgkmcnt(4)')
    unpack8(a, 52, 8, 40); unpack8(a, 60, 12, 40)
    for p in range(4):
        a(f'v_pk_fma_f32 v[{28+2*p}:{29+2*p}], v[{28+2*p}:{29+2*p}], v[{52+2*p}:{53+2*p}], v[{60+2*p}:{61+2*p}]')
    a('s_waitcnt lgkmcnt(2)')
    unpack8(a, 52, 16, 40); unpack8(a, 60, 40, 40)
    for p in range(4):
        a(f'v_pk_mul_f32 v[{52+2*p}:{53+2*p}], v[{52+2*p}:{53+2*p}], v[{60+2*p}:{61+2*p}]')
    for p in range(4):
        a(f'v_pk_fma_f32 v[{20+2*p}:{21+2*p}], v[{28+2*p}:{29+2*p}], v[{52+2*p}:{53+2*p}], v[{20+2*p}:{21+2*p}]')
    for j in range(4): a(f'v_cvt_pk_bf16_f32 v{8+j}, v{20+2*j}, v{21+2*j}')
    a('buffer_store_dwordx4 v[8:11], v1, s[24:27], s30 offen')
    unpack8(a, 20, 8, 40)
    ln_stats(a, 20, 28, 36, 41)
    a('s_waitcnt lgkmcnt(0)')
    unpack8(a, 52, 44, 40); unpack8(a, 60, 48, 40)
    for p in range(4):
        a(f'v_pk_mul_f32 v[{28+2*p}:{29+2*p}], v[{28+2*p}:{29+2*p}], v[36:37] op_sel:[0,0] op_sel_hi:[1,0]')
    for p in range(4):
        a(f'v_pk_fma_f32 v[{28+2*p}:{29+2*p}], v[{28+2*p}:{29+2*p}], v[{52+2*p}:{53+2*p}], v[{60+2*p}:{61+2*p}]')
    for j in range(4): a(f'v_cvt_pk_bf16_f32 v{12+j}, v{28+2*j}, v{29+2*j}')
    a('buffer_store_dwordx4 v[12:15], v5, s[32:35], s36 offen')
    if P.get('stamps'): a('s_waitcnt vmcnt(0)')
    stamp(a, 2, 2, P)
    a.label('L_k3_end')
    a('s_endpgm')
    return dict(grid=256, block=512, lds=MB+8192, vgpr=(256 if P.get('stamps') else 72), accum=(256 if P.get('stamps') else 72))
```

```python
from asmlib import *
from k123 import *

class VmPipe:
    def __init__(self, a):
        self.a = a; self.issued = 0; self.done = 0
    def issue(self, line):
        self.a(line); self.issued += 1
        assert self.issued - self.done <= 63
        return self.issued
    def need(self, tok):
        if tok > self.done:
            self.a(f's_waitcnt vmcnt({self.issued - tok})')
            self.done = tok

SLOT, UPO, NSLOT = 28800, 14464, 5
GC1 = -2.0 * 0.7978845608028654 * 1.4426950408889634
GC2 = GC1 * 0.044715
def geglu(a, A, T, O):
    for p in range(4): a(f'v_pk_mul_f32 v[{T+2*p}:{T+2*p+1}], v[{A+2*p}:{A+2*p+1}], v[{A+2*p}:{A+2*p+1}]')
    for p in range(4): a(f'v_pk_fma_f32 v[{T+2*p}:{T+2*p+1}], v[{T+2*p}:{T+2*p+1}], s[44:45], v[2:3]')
    for p in range(4): a(f'v_pk_mul_f32 v[{T+2*p}:{T+2*p+1}], v[{T+2*p}:{T+2*p+1}], v[{A+2*p}:{A+2*p+1}]')
    for j in range(8): a(f'v_exp_f32 v{T+j}, v{T+j}')
    for p in range(4): a(f'v_pk_mul_f32 v[{A+2*p}:{A+2*p+1}], v[{A+2*p}:{A+2*p+1}], v[{A+8+2*p}:{A+8+2*p+1}]')
    for p in range(4): a(f'v_pk_add_f32 v[{T+2*p}:{T+2*p+1}], v[{T+2*p}:{T+2*p+1}], s[46:47]')
    for j in range(8): a(f'v_rcp_f32 v{T+j}, v{T+j}')
    for p in range(4): a(f'v_pk_mul_f32 v[{A+2*p}:{A+2*p+1}], v[{A+2*p}:{A+2*p+1}], v[{T+2*p}:{T+2*p+1}]')
    for p in range(4): a(f'v_cvt_pk_bf16_f32 v{O+p}, v{A+2*p}, v{A+2*p+1}')

def k4(a, P):
    a('s_cmp_ge_u32 s2, 256')
    a('s_cbranch_scc1 L_k4_end')
    if P.get('stamps'): a('v_mov_b32 v253, v0')
    stamp(a, 3, 0, P)
    a(f's_load_dwordx4 s[4:7], s[0:1], {A_WG}')
    a(f's_load_dwordx2 s[10:11], s[0:1], {A_WS}')
    a('v_lshrrev_b32 v2, 6, v0')
    a('v_and_b32 v1, 63, v0')
    a('v_readfirstlane_b32 s3, v2')
    a('s_and_b32 s30, s2, 1')
    a('s_lshl_b32 s30, s30, 3')
    a('s_bfe_u32 s31, s2, 0x30003')
    a('s_or_b32 s30, s30, s31')
    a('s_bfe_u32 s31, s2, 0x20001')
    a('s_lshl_b32 s31, s31, 2')
    a('s_lshr_b32 s32, s2, 6')
    a('s_or_b32 s31, s31, s32')
    a('s_lshl_b32 s33, s30, 2')
    a('s_add_u32 s33, s33, s3')
    a('s_lshl_b32 s34, s33, 15')
    a('s_mul_i32 s35, s33, 112')
    a('s_mul_i32 s36, s31, 7')
    a('s_add_u32 s35, s35, s36')
    a('s_lshl_b32 s35, s35, 10')
    a('s_mul_i32 s36, s31, 224')
    a('s_and_b32 s37, s3, 1')
    a(f's_mul_i32 s38, s37, {32*3584}')
    a('s_add_u32 s36, s36, s38')
    a('s_mul_i32 s37, s37, 7168')
    a('s_lshr_b32 s38, s3, 1')
    a(f's_mul_i32 s39, s38, {UPO}')
    a('s_add_u32 s37, s37, s39')
    for i in range(7):
        a(f'v_add_u32 v4, {64*i}, v1')
        a('v_mul_u32_u24 v5, 0x124a, v4')
        a('v_lshrrev_b32 v5, 16, v5')
        a(f'v_mul_u32_u24 v5, {3584-224}, v5')
        a(f'v_lshl_add_u32 v{8+i}, v4, 4, v5')
        if i & 3: a(f'v_subrev_u32 v{8+i}, {1024*(i&3)}, v{8+i}')
    a('v_lshlrev_b32 v15, 4, v1')
    a('s_waitcnt lgkmcnt(0)')
    a('s_cmp_eq_u32 s38, 0')
    a('s_cselect_b32 s12, s4, s6')
    a('s_cselect_b32 s13, s5, s7')
    a(f's_mov_b32 s14, {512*3584}')
    a('s_mov_b32 s15, 0x20000')
    srd(a, 16, 10, 0x200000, H2); srd(a, 20, 10, 0x700000, ACT)
    vm = VmPipe(a)
    wtok, htok = {}, {}
    def issue_stage(s):
        sl = s % NSLOT
        for i in range(7):
            if i in (0, 4):
                a(f's_add_u32 m0, s37, {sl*SLOT + 1024*i}')
            wtok[s] = vm.issue(f'buffer_load_dwordx4 v{8+i}, s[12:15], s36 offen offset:{1024*(i&3)} lds')
        a(f's_add_u32 s36, s36, {64*3584}')
        for k in range(4):
            ks = 4*s+k
            htok[s] = vm.issue(f'buffer_load_dwordx4 a[{4*ks}:{4*ks+3}], v15, s[16:19], s34 offen offset:{1024*k}')
        a('s_add_u32 s34, s34, 0x1000')
    for s in range(5): issue_stage(s)
    a('v_bfe_u32 v4, v1, 4, 1')
    a(f'v_mul_u32_u24 v4, {UPO}, v4')
    a('v_lshrrev_b32 v5, 5, v1')
    a('v_lshlrev_b32 v5, 3, v5')
    a('v_bfe_u32 v6, v1, 2, 2')
    a('v_add_u32 v5, v5, v6')
    a('v_mul_u32_u24 v5, 0xe0, v5')
    a('v_and_b32 v6, 3, v1')
    a('v_lshl_add_u32 v5, v6, 3, v5')
    a('v_add_u32 v16, v4, v5')
    a(f'v_add_u32 v17, {2*SLOT}, v16')
    a(f'v_add_u32 v18, {4*SLOT}, v16')
    a(f's_mov_b32 s44, {fh(GC2)}'); a(f's_mov_b32 s45, {fh(GC2)}')
    a('s_mov_b32 s46, 1.0'); a('s_mov_b32 s47, 1.0')
    a(f'v_mov_b32 v2, {fh(GC1)}'); a(f'v_mov_b32 v3, {fh(GC1)}')
    ACC, AR, NA = 128, 24, 6
    pipe = LdsPipe(a)
    steps = [(s, k, ct) for s in range(8) for k in range(4) for ct in range(7)]
    tok = {}; nxt = [0]; avail = [0]
    def rd(n):
        s, k, ct = steps[n]; sl = s % NSLOT
        d = AR + 4*(n % NA)
        for jj in range(2):
            off = (sl & 1)*SLOT + (16*k + 4*jj)*224 + 32*ct
            tok[n] = pipe.issue(f'ds_read_b64_tr_b16 v[{d+2*jj}:{d+2*jj+1}], v{16+(sl>>1)} offset:{off}')
    def pump(cur):
        while nxt[0] < len(steps) and nxt[0] < cur + NA and steps[nxt[0]][0] <= avail[0] and pipe.outstanding() <= 12:
            rd(nxt[0]); nxt[0] += 1
            if nxt[0] > cur + 2: break
    vm.need(htok[0])
    a('s_barrier')
    stamp(a, 3, 1, P) if False else None
    for n in range(NA-1): rd(n)
    nxt[0] = NA-1
    for n, (s, k, ct) in enumerate(steps):
        if k == 3 and ct == 7-NA and s < 7:
            vm.need(htok[s+1])
            a('s_barrier')
            avail[0] = s+1
            if 1 <= s and s+4 < 8: issue_stage(s+4)
        pipe.need(tok[n])
        d = ACC+16*ct; c = '0' if (s == 0 and k == 0) else f'v[{d}:{d+15}]'
        sa = AR+4*(n % NA); ks = 4*s+k
        a(f'v_mfma_f32_32x32x16_bf16 v[{d}:{d+15}], v[{sa}:{sa+3}], a[{4*ks}:{4*ks+3}], {c}')
        pump(n+1)
    stamp(a, 3, 2, P)
    for ct in range(7):
        o = 64 + 4*(ct & 1)
        geglu(a, ACC+16*ct, 48, o)
        so = 's35' if ct < 4 else 's38'
        if ct == 0: a('s_add_u32 s38, s35, 0x1000')
        a(f'buffer_store_dwordx4 v[{o}:{o+3}], v15, s[20:23], {so} offen offset:{1024*(ct&3)}')
    if P.get('stamps'): a('s_waitcnt vmcnt(0)')
    stamp(a, 3, 3, P)
    a.label('L_k4_end')
    a('s_endpgm')
    return dict(grid=256, block=256, lds=NSLOT*SLOT, vgpr=256+128, accum=256)

PS = 272
def k5(a, P):
    a('s_cmp_ge_u32 s2, 256')
    a('s_cbranch_scc1 L_k5_end')
    if P.get('stamps'): a('v_mov_b32 v253, v0')
    stamp(a, 4, 0, P)
    a(f's_load_dwordx2 s[4:5], s[0:1], {A_WD}')
    a(f's_load_dwordx2 s[6:7], s[0:1], {A_OUT}')
    a(f's_load_dwordx2 s[10:11], s[0:1], {A_WS}')
    a('v_lshrrev_b32 v2, 6, v0')
    a('v_and_b32 v1, 63, v0')
    a('v_readfirstlane_b32 s3, v2')
    a('s_mov_b32 s40, 0xffff0000')
    a('s_bfe_u32 s30, s2, 0x20001')
    a('s_lshl_b32 s30, s30, 3')
    a('s_bfe_u32 s31, s2, 0x30003')
    a('s_or_b32 s30, s30, s31')
    a('s_and_b32 s31, s2, 1')
    a('s_lshl_b32 s31, s31, 2')
    a('s_lshr_b32 s32, s2, 6')
    a('s_or_b32 s31, s31, s32')
    a('s_mul_i32 s33, s30, 224')
    a('s_mul_i32 s34, s3, 28')
    a('s_add_u32 s33, s33, s34')
    a('s_lshl_b32 s33, s33, 10')
    a(f's_add_u32 s35, s33, {112*1024}')
    a('s_lshl_b32 s34, s34, 14')
    a('s_lshl_b32 s36, s31, 7')
    a('s_add_u32 s34, s34, s36')
    a('s_lshl_b32 s37, s3, 15')
    a('v_lshrrev_b32 v4, 3, v1')
    a('v_bfe_u32 v5, v1, 4, 1')
    a('v_lshlrev_b32 v5, 2, v5')
    a('v_and_b32 v6, 7, v1')
    a('v_xor_b32 v5, v5, v6')
    a('v_lshlrev_b32 v5, 4, v5')
    a('v_lshl_add_u32 v8, v4, 10, v5')
    a(f'v_add_u32 v9, {8192-1024}, v8')
    a('v_lshlrev_b32 v15, 4, v1')
    a('v_lshrrev_b32 v4, 3, v0')
    a('v_lshlrev_b32 v10, 10, v4')
    a('v_lshl_add_u32 v10, v6, 4, v10')
    a('s_lshl_b32 s38, s30, 16')
    a('s_add_u32 s38, s38, s36')
    a('s_add_u32 s39, s38, 0x8000')
    a('v_lshlrev_b32 v11, 4, v6')
    a('s_waitcnt lgkmcnt(0)')
    srd(a, 12, 4, 1792*1024); srd(a, 16, 10, 0x700000, ACT); srd(a, 20, 10, 0x200000, X1)
    srd(a, 24, 6, 0x200000); srd(a, 44, 10, 1024, MOD + 5*1024)
    vm = VmPipe(a)
    vm.issue('buffer_load_dwordx4 v[112:115], v10, s[20:23], s38 offen')
    vm.issue('buffer_load_dwordx4 v[116:119], v10, s[20:23], s39 offen')
    vm.issue('buffer_load_dwordx4 v[120:123], v11, s[44:47], s36 offen')
    vtok = {}
    def issue_step(i):
        a(f's_add_u32 m0, s37, {2048*(i & 15)}')
        vm.issue('buffer_load_dwordx4 v8, s[12:15], s34 offen lds')
        vm.issue('buffer_load_dwordx4 v9, s[12:15], s34 offen offset:1024 lds')
        a('s_add_u32 s34, s34, 0x4000')
        vm.issue(f'buffer_load_dwordx4 a[{8*i}:{8*i+3}], v15, s[16:19], s33 offen offset:{1024*(i&3)}')
        vtok[i] = vm.issue(f'buffer_load_dwordx4 a[{8*i+4}:{8*i+7}], v15, s[16:19], s35 offen offset:{1024*(i&3)}')
        if (i & 3) == 3:
            a('s_add_u32 s33, s33, 0x1000'); a('s_add_u32 s35, s35, 0x1000')
    DEPTH = 14
    for i in range(DEPTH): issue_step(i)
    a('v_lshrrev_b32 v4, 5, v1')
    a('v_lshlrev_b32 v4, 2, v4')
    a('v_bfe_u32 v5, v1, 2, 2')
    a('v_add_u32 v4, v4, v5')
    a('v_lshlrev_b32 v4, 7, v4')
    a('v_bfe_u32 v5, v1, 3, 1')
    a('v_lshl_add_u32 v4, v5, 6, v4')
    a('v_bfe_u32 v5, v1, 4, 1')
    a('v_lshl_add_u32 v4, v5, 5, v4')
    a('v_and_b32 v5, 3, v1')
    a('v_lshl_add_u32 v4, v5, 3, v4')
    a('v_add_u32 v16, s37, v4')
    a('v_xor_b32 v17, 64, v16')
    a('v_and_b32 v4, 31, v1')
    a(f'v_mul_u32_u24 v4, {PS}, v4')
    a('v_lshrrev_b32 v5, 5, v1')
    a('v_lshl_add_u32 v4, v5, 4, v4')
    a('v_add_u32 v18, s37, v4')
    a('v_lshrrev_b32 v4, 3, v0')
    a(f'v_mul_u32_u24 v4, {PS}, v4')
    a('v_lshl_add_u32 v19, v6, 5, v4')
    a('v_add_u32 v20, 0x10000, v19')
    ACC, AR = 48, 24
    pipe = LdsPipe(a); tok = {}
    def rd(i):
        d = AR + 8*(i % 3)
        for mt in range(2):
            for jj in range(2):
                tok[(i, mt)] = pipe.issue(f'ds_read_b64_tr_b16 v[{d+4*mt+2*jj}:{d+4*mt+2*jj+1}], v{16+mt} offset:{2048*(i&15)+1024*jj}')
    vm.need(vtok[0]); rd(0)
    vm.need(vtok[1]); rd(1)
    for i in range(28):
        d0 = AR + 8*(i % 3)
        for mt in range(2):
            pipe.need(tok[(i, mt)])
            for nt in range(2):
                d = ACC + 32*mt + 16*nt; c = '0' if i == 0 else f'v[{d}:{d+15}]'
                a(f'v_mfma_f32_32x32x16_bf16 v[{d}:{d+15}], v[{d0+4*mt}:{d0+4*mt+3}], a[{8*i+4*nt}:{8*i+4*nt+3}], {c}')
                if mt == 0 and nt == 0 and i+2 < 28:
                    vm.need(vtok[i+2]); rd(i+2)
                if mt == 1 and nt == 0 and i+DEPTH < 28:
                    issue_step(i+DEPTH)
    stamp(a, 4, 1, P)
    for mt in range(2):
        for nt in range(2):
            for g in range(4):
                d = ACC + 32*mt + 16*nt + 4*g
                a(f'ds_write_b128 v18, v[{d}:{d+3}] offset:{nt*32*PS + mt*128 + g*32}')
    unpack8(a, 124, 120, 40)
    a('s_waitcnt lgkmcnt(0)')
    a('s_barrier')
    for jj in range(2):
        for w in range(4):
            for e in range(2):
                d = 48 + 32*jj + 8*w + 4*e
                a(f'ds_read_b128 v[{d}:{d+3}], v{19+(w>>1)} offset:{(w&1)*32768 + jj*32*PS + 16*e}')
        if jj == 0: unpack8(a, 24, 112, 40)
        else: unpack8(a, 32, 116, 40)
    for jj in range(2):
        b = 48 + 32*jj
        a(f's_waitcnt lgkmcnt({8-8*jj})')
        for p in range(4): a(f'v_pk_add_f32 v[{b+2*p}:{b+2*p+1}], v[{b+2*p}:{b+2*p+1}], v[{b+8+2*p}:{b+9+2*p}]')
        for p in range(4): a(f'v_pk_add_f32 v[{b+16+2*p}:{b+17+2*p}], v[{b+16+2*p}:{b+17+2*p}], v[{b+24+2*p}:{b+25+2*p}]')
        for p in range(4): a(f'v_pk_add_f32 v[{b+2*p}:{b+2*p+1}], v[{b+2*p}:{b+2*p+1}], v[{b+16+2*p}:{b+17+2*p}]')
        x = 24 + 8*jj
        for p in range(4): a(f'v_pk_fma_f32 v[{b+2*p}:{b+2*p+1}], v[{b+2*p}:{b+2*p+1}], v[{124+2*p}:{125+2*p}], v[{x+2*p}:{x+2*p+1}]')
        for p in range(4): a(f'v_cvt_pk_bf16_f32 v{40+4*jj+p}, v{b+2*p}, v{b+2*p+1}')
        a(f'buffer_store_dwordx4 v[{40+4*jj}:{43+4*jj}], v10, s[24:27], s{38+jj} offen')
    if P.get('stamps'): a('s_waitcnt vmcnt(0)')
    stamp(a, 4, 2, P)
    a.label('L_k5_end')
    a('s_endpgm')
    return dict(grid=256, block=256, lds=131072, vgpr=256+224, accum=256)
```

```python
import sys
from asmlib import *
from k123 import *
from k45 import *
NAME = 'adaLN_cond__ssm_conv_h3__geglu_ffn__prompt'
def empty(a, P, n):
    a('s_endpgm')
    return dict(grid=256, block=64, lds=0, vgpr=8, accum=8)
def build(kernels, P):
    hdr = open('cdna_kernels/' + NAME + '.s.ref').read().split('\n')
    head = [l for l in hdr if l.startswith(';') and '@launch' not in l and 'Override launch' not in l and 'grid=ceil' not in l]
    body, kds, launches = [], [], []
    seen = {}
    for name, fn in kernels:
        if name not in seen:
            a = Asm()
            info = fn(a, P)
            lines, nfix = check(a.lines)
            probs = check_loops(lines)
            assert not probs, probs
            a.lines = lines
            lab = name + '_kernel'
            body.append(f'.globl {lab}\n.p2align 8\n.type {lab},@function\n{lab}:\n' + a.text())
            kds.append(f'.p2align 6\n.amdhsa_kernel {lab}\n  .amdhsa_next_free_vgpr {info["vgpr"]}\n  .amdhsa_next_free_sgpr 102\n'
                       f'  .amdhsa_accum_offset {info["accum"]}\n  .amdhsa_group_segment_fixed_size 0\n  .amdhsa_kernarg_size 120\n'
                       '  .amdhsa_user_sgpr_count 2\n  .amdhsa_user_sgpr_kernarg_segment_ptr 1\n  .amdhsa_system_sgpr_workgroup_id_x 1\n'
                       '.end_amdhsa_kernel\n')
            seen[name] = info
            print(name, 'instr', sum(1 for l in lines if not l.endswith(':')), 'hazard pads', nfix, file=sys.stderr)
        info = seen[name]
        launches.append(f'; @launch kernel={name}_kernel grid=({info["grid"]},1,1) block=({info["block"]},1,1) lds={info["lds"]}')
    txt = '\n'.join(head) + '\n' + '\n'.join(launches) + '\n.amdgcn_target "amdgcn-amd-amdhsa--gfx950"\n.text\n' + ''.join(body)
    txt += '.section .rodata,"a"\n' + ''.join(kds)
    return txt
if __name__ == '__main__':
    out = sys.argv[1]
    P = {}
    extra = 0
    for o in sys.argv[2:]:
        k, _, v = o.partition('=')
        P[k] = int(v) if v else 1
    ks = [('kvt', k1), ('conv', k2), ('norm', k3), ('ffn1', k4), ('ffn2', k5)]
    for i in range(P.get('empty', 0)):
        ks.append((f'empty{i}', lambda a, P, i=i: empty(a, P, i)))
    open(out, 'w').write(build(ks, P))
```

```python
from collections import deque
from asmlib import *
from k123 import *
from k45 import VmPipe, GC1, GC2, geglu

FLG = 0xF10000
EPOCH = 0xF08000
P1U = 49280
SEG = [(0, 98432, 129152), (15, 0, 49280), (27, 24576, 73856)]
XG = 129152 + 112*128
PS = 272
SPIN = 1 << 15
WBL = [5, 11, 12, 13, 16, 14, 15, 17, 18, 19, 0, 1, 6, 7, 2, 3, 4, 8, 9, 10]
WAV = [2, 5, 10, 14, 20]
def seg_of(k): return SEG[0] if k < 15 else SEG[1] if k < 27 else SEG[2]

def zipl(a, *subs, extra=None, every=3):
    n = max(len(s.lines) for s in subs)
    for i in range(n):
        for s in subs:
            if i < len(s.lines): a(s.lines[i])
        if extra and i % every == every-1: extra.popleft()()

def poll(a, vm, name, vaddr, soff, vtmp, pre=None):
    a(f's_mov_b32 s51, {SPIN}')
    if pre is not None:
        vm.need(pre)
        a(f's_branch L_{name}_chk')
    a.label(f'L_{name}')
    a(f'buffer_load_dword v{vtmp}, v{vaddr}, s[52:55], {soff} offen sc1')
    a('s_waitcnt vmcnt(0)')
    a.label(f'L_{name}_chk')
    a(f'v_cmp_ne_u32 vcc, s50, v{vtmp}')
    a('s_sub_u32 s51, s51, 1')
    a(f's_cbranch_vccz L_{name}_ok')
    a('s_cmp_lg_u32 s51, 0')
    a(f's_cbranch_scc1 L_{name}')
    a.label(f'L_{name}_ok')
    if pre is None: vm.done = vm.issued

def gelu_ops(A, T, O):
    L = []
    for h in range(2):
        J = range(4*h, 4*h+4)
        L += [f'v_mul_f32 v{T+j}, v{A+j}, v{A+j}' for j in J]
        L += [f'v_fma_f32 v{T+j}, v{T+j}, s44, v2' for j in J]
        L += [f'v_mul_f32 v{T+j}, v{T+j}, v{A+j}' for j in J]
        for j in J:
            L += [f'v_exp_f32 v{T+j}, v{T+j}', f'v_mul_f32 v{A+j}, v{A+j}, v{A+8+j}']
        j0 = 4*h
        add = lambda j: f'v_add_f32 v{T+j}, 1.0, v{T+j}'
        rcp = lambda j: f'v_rcp_f32 v{T+j}, v{T+j}'
        mul = lambda j: f'v_mul_f32 v{A+j}, v{A+j}, v{T+j}'
        L += [add(j0), add(j0+1), add(j0+2), rcp(j0), add(j0+3), rcp(j0+1), mul(j0), rcp(j0+2), mul(j0+1), rcp(j0+3), mul(j0+2), mul(j0+3)]
        L += [f'v_cvt_pk_bf16_f32 v{O+2*h+p}, v{A+4*h+2*p}, v{A+4*h+2*p+1}' for p in range(2)]
    return L
def cost(line):
    return 2 if line.startswith(('v_exp', 'v_rcp')) else 1

def cde(a, P):
    K = 2
    a('s_cmp_ge_u32 s2, 256')
    a('s_cbranch_scc1 L_cde_end')
    if P.get('stamps'): a('v_mov_b32 v253, v0')
    stamp(a, K, 0, P)
    a(f's_load_dwordx2 s[4:5], s[0:1], {A_Q}')
    a(f's_load_dwordx4 s[8:11], s[0:1], {A_WG}')
    a(f's_load_dwordx2 s[6:7], s[0:1], {A_WD}')
    a(f's_load_dwordx2 s[56:57], s[0:1], {A_OUT}')
    a(f's_load_dwordx2 s[58:59], s[0:1], {A_WS}')
    a('v_lshrrev_b32 v2, 6, v0')
    a('v_and_b32 v1, 63, v0')
    a('v_readfirstlane_b32 s3, v2')
    a('s_mov_b32 s40, 0xffff0000')
    a('s_and_b32 s30, s2, 1')
    a('s_lshl_b32 s30, s30, 3')
    a('s_bfe_u32 s31, s2, 0x30003')
    a('s_or_b32 s30, s30, s31')
    a('s_bfe_u32 s31, s2, 0x20001')
    a('s_lshl_b32 s31, s31, 2')
    a('s_lshr_b32 s32, s2, 6')
    a('s_or_b32 s31, s31, s32')
    a('s_and_b32 s32, s2, 7')
    a('s_lshl_b32 s32, s32, 5')
    a('s_lshr_b32 s33, s2, 3')
    a('s_or_b32 s32, s32, s33')
    a('s_lshl_b32 s33, s32, 13')
    a('v_lshlrev_b32 v15, 4, v1')
    a('v_lshlrev_b32 v14, 5, v0')
    a('s_lshl_b32 s34, s3, 11')
    a('s_add_u32 s34, s34, s33')
    a('s_waitcnt lgkmcnt(0)')
    a(f's_add_u32 s48, s58, {hex(EPOCH)}')
    a('s_addc_u32 s49, s59, 0')
    a('s_load_dword s50, s[48:49], 0')
    srd(a, 12, 4, 0x200000)
    srd(a, 16, 58, 0x1000000)
    srd(a, 52, 58, 0x3000, FLG)
    vm = VmPipe(a)
    a(f's_add_u32 s35, s33, {hex(YT)}')
    a(f's_mov_b32 s36, {hex(MOD)}')
    a(f's_mov_b32 s37, {hex(MOD+4096)}')
    tx0 = vm.issue('buffer_load_dwordx4 v[24:27], v15, s[12:15], s34 offen')
    tx1 = vm.issue('buffer_load_dwordx4 v[28:31], v15, s[12:15], s34 offen offset:1024')
    vm.issue('buffer_load_dwordx4 v[32:35], v14, s[16:19], s35 offen')
    ty = vm.issue('buffer_load_dwordx4 v[36:39], v14, s[16:19], s35 offen offset:16')
    vm.issue('buffer_load_dwordx4 v[40:43], v15, s[16:19], s36 offen offset:1024')
    vm.issue('buffer_load_dwordx4 v[44:47], v15, s[16:19], s36 offen')
    tm = vm.issue('buffer_load_dwordx4 v[48:51], v15, s[16:19], s36 offen offset:2048')
    vm.issue('buffer_load_dwordx4 v[52:55], v15, s[16:19], s37 offen')
    tm2 = vm.issue('buffer_load_dwordx4 v[56:59], v15, s[16:19], s36 offen offset:3072')
    a('s_waitcnt lgkmcnt(0)')
    a('s_lshr_b32 s38, s3, 1')
    a('s_and_b32 s39, s3, 1')
    a('s_cmp_eq_u32 s38, 0')
    a('s_cselect_b32 s20, s8, s10')
    a('s_cselect_b32 s21, s9, s11')
    a(f's_mov_b32 s22, {512*3584}')
    a('s_mov_b32 s23, 0x20000')
    a('v_lshrrev_b32 v4, 3, v1')
    a('v_bfe_u32 v5, v1, 4, 1')
    a('v_lshlrev_b32 v5, 2, v5')
    a('v_and_b32 v6, 7, v1')
    a('v_xor_b32 v5, v5, v6')
    a('v_lshlrev_b32 v5, 4, v5')
    a('v_lshl_add_u32 v8, v4, 10, v5')
    a(f'v_add_u32 v9, {8192-1024}, v8')
    a('s_lshl_b32 s43, s38, 5')
    a('v_xor_b32 v5, s43, v5')
    a('v_mul_u32_u24 v7, 0xe00, v4')
    a('v_add_u32 v7, v7, v5')
    for i in range(3):
        a(f'v_add_u32 v4, {64*i}, v1')
        a('v_mul_u32_u24 v5, 0x2aab, v4')
        a('v_lshrrev_b32 v5, 16, v5')
        a(f'v_mul_u32_u24 v5, {3584-96}, v5')
        a(f'v_lshl_add_u32 v{10+i}, v4, 4, v5')
        if i: a(f'v_subrev_u32 v{10+i}, {1024*i}, v{10+i}')
    a(f's_mul_i32 s41, s39, {32*3584}')
    a('s_mul_i32 s43, s31, 96')
    a('s_add_u32 s41, s41, s43')
    a('s_add_u32 s41, s41, 0x800')
    a('s_mul_i32 s43, s39, 3072')
    a(f's_mul_i32 s42, s38, {P1U}')
    a('s_add_u32 s42, s42, s43')
    a(f's_mul_i32 s48, s39, {8*3584}')
    a('s_lshl_b32 s43, s31, 7')
    a('s_add_u32 s48, s48, s43')
    a('s_lshl_b32 s43, s39, 10')
    a(f's_mul_i32 s49, s38, {SEG[0][2]-SEG[0][1]}')
    a('s_add_u32 s49, s49, s43')
    a(f's_mul_i32 s38, s38, {P1U}')
    a('s_add_u32 s43, s43, s38')
    early = deque()
    def p1dma(m, i):
        if i == 0: a(f's_add_u32 m0, s42, {6144*m}')
        if i == 0 and m: a(f's_add_u32 s41, s41, {64*3584}')
        vm.issue(f'buffer_load_dwordx4 v{10+i}, s[20:23], s41 offen offset:{1024*i} lds')
    ptok = {}
    def p2dma(k):
        k0, gb, ub = seg_of(k)
        a(f's_add_u32 m0, {"s49" if k < 15 else "s43"}, {gb + 2048*(k-k0)}')
        if k: a(f's_add_u32 s48, s48, {16*3584}')
        ptok[k] = vm.issue('buffer_load_dwordx4 v7, s[20:23], s48 offen lds')
    for m in range(8):
        for i in range(3): early.append(lambda m=m, i=i: p1dma(m, i))
    for k in range(7): early.append(lambda k=k: p2dma(k))
    for _ in range(P.get('e0', 6)): early.popleft()()
    a('v_lshlrev_b32 v3, 2, v0')
    a(f'v_add_u32 v3, {XG}, v3')
    a('s_lshl_b32 s46, s3, 11')
    a(f's_add_u32 s46, s46, {XG}')
    a('v_add_u32 v4, s46, v15')
    XH = XG + 8192
    a('s_lshl_b32 s46, s3, 1')
    a('v_xor_b32 v5, s46, v6')
    a('v_lshlrev_b32 v5, 4, v5')
    a('v_lshl_add_u32 v5, v1, 7, v5')
    a(f'v_add_u32 v5, {XH}, v5')
    a('v_xor_b32 v16, 16, v5')
    a('v_lshrrev_b32 v17, 3, v1')
    a('v_xor_b32 v18, v17, v6')
    a('v_lshlrev_b32 v18, 4, v18')
    a('v_lshl_add_u32 v18, v17, 7, v18')
    a('s_lshl_b32 s46, s3, 11')
    a(f's_add_u32 s46, s46, {XH}')
    a('v_add_u32 v18, s46, v18')
    a('v_lshlrev_b32 v17, 9, v17')
    a('v_lshl_add_u32 v17, v6, 4, v17')
    a('s_lshr_b32 s46, s32, 2')
    a('s_lshl_b32 s46, s46, 15')
    a('s_and_b32 s47, s32, 3')
    a('s_lshl_b32 s47, s47, 7')
    a('s_add_u32 s46, s46, s47')
    a('s_lshl_b32 s47, s3, 13')
    a('s_add_u32 s46, s46, s47')
    a(f's_add_u32 s46, s46, {hex(H2)}')
    a('s_add_u32 s47, s46, 0x1000')
    a(f's_add_u32 s34, s34, {hex(X1)}')
    X = (64, 96)
    vm.need(tx1)
    subs = []
    for t in range(2):
        s = Asm(); unpack8(s, X[t], 24+4*t, 40); ln_stats(s, X[t], X[t]+8, X[t]+16, 24+t)
        for p in range(4):
            s(f'v_pk_mul_f32 v[{X[t]+8+2*p}:{X[t]+9+2*p}], v[{X[t]+8+2*p}:{X[t]+9+2*p}], v[{X[t]+16}:{X[t]+17}] op_sel:[0,0] op_sel_hi:[1,0]')
        subs.append(s)
    zipl(a, *subs, extra=early, every=P.get('ev', 2))
    while early: early.popleft()()
    vm.need(ty)
    for r in range(8): a(f'ds_write_b32 v3, v{32+r} offset:{1024*r}')
    vm.need(tm)
    unpack8(a, 128, 40, 40); unpack8(a, 136, 44, 40); unpack8(a, 144, 48, 40)
    for t in range(2):
        for p in range(4):
            d = X[t]+8+2*p
            a(f'v_pk_fma_f32 v[{d}:{d+1}], v[{d}:{d+1}], v[{128+2*p}:{129+2*p}], v[{136+2*p}:{137+2*p}]')
        for p in range(4):
            d = X[t]+8+2*p
            a(f'v_pk_mul_f32 v[{d}:{d+1}], v[{d}:{d+1}], v[{144+2*p}:{145+2*p}]')
    a('s_waitcnt lgkmcnt(0)')
    a('s_barrier')
    stamp(a, K, 1, P)
    a('ds_read_b128 v[24:27], v4')
    a('ds_read_b128 v[28:31], v4 offset:1024')
    vm.need(tm2)
    unpack8(a, 128, 52, 40); unpack8(a, 136, 56, 40)
    a('s_waitcnt lgkmcnt(0)')
    subs = []
    for t in range(2):
        s = Asm(); x = X[t]
        unpack8(s, x+20, 24+4*t, 40)
        for p in range(4):
            s(f'v_pk_fma_f32 v[{x+2*p}:{x+2*p+1}], v[{x+8+2*p}:{x+9+2*p}], v[{x+20+2*p}:{x+21+2*p}], v[{x+2*p}:{x+2*p+1}]')
        for j in range(4): s(f'v_cvt_pk_bf16_f32 v{32+4*t+j}, v{x+2*j}, v{x+2*j+1}')
        s(f'buffer_store_dwordx4 v[{32+4*t}:{35+4*t}], v15, s[16:19], s34 offen offset:{1024*t} sc1')
        unpack8(s, x, 32+4*t, 40)
        ln_stats(s, x, x+8, x+16, 24+t)
        for p in range(4):
            s(f'v_pk_mul_f32 v[{x+8+2*p}:{x+9+2*p}], v[{x+8+2*p}:{x+9+2*p}], v[{x+16}:{x+17}] op_sel:[0,0] op_sel_hi:[1,0]')
        for p in range(4):
            s(f'v_pk_fma_f32 v[{x+8+2*p}:{x+9+2*p}], v[{x+8+2*p}:{x+9+2*p}], v[{128+2*p}:{129+2*p}], v[{136+2*p}:{137+2*p}]')
        for j in range(4): s(f'v_cvt_pk_bf16_f32 v{40+4*t+j}, v{x+8+2*j}, v{x+9+2*j}')
        s(f'ds_write_b128 v{(5, 16)[t]}, v[{40+4*t}:{43+4*t}]')
        subs.append(s)
    zipl(a, *subs)
    vm.issued += 2
    a('s_waitcnt lgkmcnt(0)')
    a('s_barrier')
    a('ds_read_b128 v[24:27], v18')
    a('ds_read_b128 v[28:31], v18 offset:1024')
    a('s_lshl_b32 s24, s32, 4')
    a('s_lshl_b32 s25, s3, 2')
    a('s_add_u32 s24, s24, s25')
    a('s_lshl_b32 s29, s30, 4')
    a('s_or_b32 s29, s29, s31')
    a('s_lshl_b32 s29, s29, 4')
    a('s_add_u32 s29, s29, s25')
    a('s_add_u32 s33, s29, 0x1000')
    a('s_lshl_b32 s25, s30, 8')
    a('s_lshl_b32 s26, s3, 6')
    a('s_add_u32 s25, s25, s26')
    a('v_and_b32 v19, 15, v1')
    a('v_lshlrev_b32 v19, 2, v19')
    a('v_mov_b32 v20, s50')
    a('v_mov_b32 v21, 0')
    a('s_waitcnt lgkmcnt(1)')
    vm.issue('buffer_store_dwordx4 v[24:27], v17, s[16:19], s46 offen sc1')
    a('s_waitcnt lgkmcnt(0)')
    vm.issue('buffer_store_dwordx4 v[28:31], v17, s[16:19], s47 offen sc1')
    a('v_bfe_u32 v4, v1, 4, 1')
    a('v_lshrrev_b32 v5, 5, v1')
    a('v_bfe_u32 v22, v1, 2, 2')
    a('v_and_b32 v23, 3, v1')
    a('v_lshlrev_b32 v23, 3, v23')
    a('v_lshl_add_u32 v3, v5, 3, v22')
    a('v_bfe_u32 v13, v1, 3, 1')
    a('v_lshlrev_b32 v16, 7, v3')
    a('v_add_u32 v16, v16, v23')
    a('v_lshl_add_u32 v16, v13, 6, v16')
    a('v_lshl_add_u32 v16, v4, 5, v16')
    a(f'v_mul_u32_u24 v17, {SEG[0][2]-SEG[0][1]}, v4')
    a(f'v_add_u32 v17, {SEG[0][1]}, v17')
    a(f'v_mul_u32_u24 v18, {P1U}, v4')
    for ct in range(4):
        a(f'v_xor_b32 v14, {32*ct}, v16')
        a(f'v_add_u32 v{246+ct}, v14, v17')
        a(f'v_add_u32 v{120+ct}, v14, v18')
    a('v_mul_u32_u24 v3, 0x60, v3')
    a('v_add_u32 v3, v3, v23')
    a('v_add_u32 v18, v18, v3')
    a('v_lshl_add_u32 v3, v5, 2, v22')
    a('v_lshlrev_b32 v3, 7, v3')
    a('v_lshl_add_u32 v3, v13, 6, v3')
    a('v_lshl_add_u32 v3, v4, 5, v3')
    a('v_add_u32 v3, v3, v23')
    a('s_lshl_b32 s26, s3, 11')
    a('v_add_u32 v240, s26, v3')
    a('v_xor_b32 v241, 64, v240')
    for i in range(1, 3):
        a(f'v_add_u32 v{240+2*i}, {65536*i}, v240')
        a(f'v_add_u32 v{241+2*i}, {65536*i}, v241')
    a(f's_mov_b32 s44, {fh(GC2)}'); a(f's_mov_b32 s45, {fh(GC2)}')
    a(f'v_mov_b32 v2, {fh(GC1)}'); a(f'v_mov_b32 v3, {fh(GC1)}')
    a('s_lshl_b32 s27, s30, 2')
    a('s_add_u32 s27, s27, s3')
    a('s_lshl_b32 s28, s27, 15')
    a(f's_add_u32 s28, s28, {hex(H2)}')
    a('s_waitcnt vmcnt(0)'); vm.done = vm.issued
    stamp(a, K, 2, P)
    vm.issue('buffer_store_dword v20, v21, s[52:55], s24 offen sc1')
    poll(a, vm, 'f1', 19, 's25', 22)
    stamp(a, K, 3, P)
    htok = {}
    def h2load(ks):
        htok[ks] = vm.issue(f'buffer_load_dwordx4 a[{4*ks}:{4*ks+3}], v15, s[16:19], s28 offen offset:{1024*(ks&3)} sc1')
        if (ks & 3) == 3: a('s_add_u32 s28, s28, 0x1000')
    NH0 = P.get('nh0', 8)
    for ks in range(NH0): h2load(ks)
    a('s_mul_i32 s29, s27, 112')
    a('s_lshl_b32 s47, s31, 2')
    a('s_add_u32 s47, s47, s29')
    a('s_lshl_b32 s47, s47, 10')
    a(f's_add_u32 s47, s47, {hex(ACT)}')
    a('s_mul_i32 s46, s31, 3')
    a('s_add_u32 s46, s46, s29')
    a('s_lshl_b32 s46, s46, 10')
    a(f's_add_u32 s46, s46, {hex(ACT + 64*1024)}')
    a('s_lshr_b32 s39, s32, 3')
    a('s_and_b32 s35, s39, 1')
    a('s_and_b32 s36, s32, 7')
    a('s_lshl_b32 s36, s36, 7')
    a(f's_mul_i32 s37, s3, {192*1024}')
    a('s_add_u32 s37, s37, s36')
    a(f's_add_u32 s37, s37, {1024*1024}')
    a('s_lshl_b32 s38, s3, 18')
    a('s_add_u32 s38, s38, s36')
    srd(a, 8, 6, 1792*1024)
    a(f's_mul_i32 s4, s39, {224*1024}')
    a(f's_add_u32 s4, s4, {hex(ACT)}')
    a('s_lshl_b32 s6, s3, 14')
    a('s_add_u32 s6, s6, s4')
    a(f's_mul_i32 s5, s3, {12*1024}')
    a('s_add_u32 s5, s5, s4')
    a(f's_add_u32 s5, s5, {64*1024}')
    a('s_lshr_b32 s25, s39, 1')
    a('s_lshl_b32 s25, s25, 8')
    a('s_lshl_b32 s29, s3, 6')
    a('s_add_u32 s25, s25, s29')
    a('s_add_u32 s25, s25, 0x1000')
    a('s_lshl_b32 s39, s39, 16')
    a('s_add_u32 s39, s39, s36')
    a('s_bfe_u32 s34, s32, 0x20003')
    a('s_lshl_b32 s34, s34, 2')
    a('s_add_u32 s34, s34, s3')
    a(f's_mul_i32 s34, s34, {112*1024}')
    a('s_add_u32 s34, s34, s36')
    a('v_lshlrev_b32 v126, 10, v1')
    a('v_bfe_u32 v4, v1, 1, 2')
    a('v_and_b32 v5, 1, v1')
    a('v_lshlrev_b32 v5, 2, v5')
    a('v_lshl_add_u32 v4, v4, 4, v5')
    a('s_lshl_b32 s35, s35, 3')
    a('v_add_u32 v19, s35, v4')
    a(f's_add_u32 s35, s34, {48*1024}')
    a('s_barrier')
    fill = deque()
    wtok = {}
    def wdslot(i):
        s = i % 20
        so = 's37' if i < 12 else 's38'
        def f0():
            a(f's_add_u32 m0, s26, {8192*WBL[s]}')
            vm.issue(f'buffer_load_dwordx4 v8, s[8:11], {so} offen lds')
        def f1():
            wtok[i] = vm.issue(f'buffer_load_dwordx4 v9, s[8:11], {so} offen offset:1024 lds')
            a(f's_add_u32 {so}, {so}, 0x4000')
        return [f0, f1]
    for ks in range(NH0, 32): fill.append(lambda ks=ks: h2load(ks))
    for k in range(7, 15): fill.append(lambda k=k: p2dma(k))
    valu = deque()
    AR, NA = 24, 6
    ACC1, ACC2 = 192, 128
    pipe = LdsPipe(a)
    steps = [(0, k, ct) for k in range(32) for ct in range(3)] + [(1, k, ct) for k in range(32) for ct in range(4)]
    tok = {}; nxt = [0]
    def rd(n):
        ps, k, ct = steps[n]; d = AR + 4*(n % NA)
        for jj in range(2):
            if ps == 0: b, off = 18, (16*k + 4*jj)*96 + 32*ct
            else:
                k0, gb, ub = seg_of(k)
                b, off = (246+ct, 2048*k + 512*jj) if k < 15 else (120+ct, gb + 2048*(k-k0) + 512*jj)
            tok[n] = pipe.issue(f'ds_read_b64_tr_b16 v[{d+2*jj}:{d+2*jj+1}], v{b} offset:{off}')
    for n in range(NA-1): rd(n)
    nxt[0] = NA-1
    VB = P.get('vb', 3)
    stok = {}
    LAND = {3: 14, 4: 26, 5: 31}
    for n, (ps, k, ct) in enumerate(steps):
        if ps == 0 and ct == 0:
            while k not in htok: fill.popleft()()
            vm.need(htok[k])
        pipe.need(tok[n])
        d = (ACC1, ACC2)[ps] + 16*ct; c = '0' if k == 0 else f'v[{d}:{d+15}]'
        sa = AR + 4*(n % NA)
        a(f'v_mfma_f32_32x32x16_bf16 v[{d}:{d+15}], v[{sa}:{sa+3}], a[{4*k}:{4*k+3}], {c}')
        if nxt[0] < len(steps): rd(nxt[0]); nxt[0] += 1
        last = ct == (2, 3)[ps]
        credit = VB
        if last and (k & 7) == 7:
            q = 4*ps + (k >> 3) + 1
            if q > 1:
                if q in LAND:
                    while LAND[q] not in ptok: fill.popleft()()
                    vm.need(ptok[LAND[q]])
                a('s_barrier')
            if q != 2: stamp(a, K, 3+q, P)
            if q == 2:
                for kk in range(15, 27): fill.append(lambda kk=kk: p2dma(kk))
            if q == 3:
                for kk in range(27, 32): fill.append(lambda kk=kk: p2dma(kk))
            if 4 <= q < 8:
                for i in range(([0] + WAV)[q-4], WAV[q-4]): fill.extend(wdslot(i))
            if q == 4:
                for t in range(2):
                    vm.issue(f'buffer_load_dword v{124+t}, v126, s[8:11], s{34+t} offen')
                for t in range(3):
                    o = 64 + 4*(t & 1)
                    valu.extend(gelu_ops(ACC1+16*t, 48 + 8*(t & 1), o))
                    valu.append(('store', t, o))
        if fill and not valu:
            fill.popleft()()
        while valu and credit >= (cost(valu[0]) if isinstance(valu[0], str) else 1):
            x = valu.popleft()
            if isinstance(x, tuple):
                stok[x[1]] = vm.issue(f'buffer_store_dwordx4 v[{x[2]}:{x[2]+3}], v15, s[16:19], s46 offen offset:{1024*x[1]} sc1')
                if x[1] == 2: flag_at = n + P.get('fdel', 20); print('pass-1 act stored at', n)
            else:
                a(x); credit -= cost(x)
        if 2 in stok and 'f2' not in stok and (n >= flag_at or n == len(steps)-1):
            vm.need(stok[2])
            stok['f2'] = vm.issue('buffer_store_dword v20, v21, s[52:55], s33 offen sc1')
    assert not valu and 'f2' in stok
    while fill: fill.popleft()()
    tp = vm.issue('buffer_load_dword v22, v19, s[52:55], s25 offen sc1')
    for i in range(14, 20):
        for f in wdslot(i): f()
    a('s_mov_b32 s34, 1.0'); a('s_mov_b32 s35, 1.0')
    def geglu2(t):
        s = Asm(); geglu(s, ACC2+16*t, 48, 64 + 4*(t & 1))
        for l in s.lines: a(l.replace('s[46:47]', 's[34:35]'))
        return vm.issue(f'buffer_store_dwordx4 v[{64+4*(t&1)}:{67+4*(t&1)}], v15, s[16:19], s47 offen offset:{1024*t} sc1')
    geglu2(0)
    geglu2(1)
    poll(a, vm, 'f2', 19, 's25', 22, pre=tp)
    stamp(a, K, 12, P)
    atok = {}
    def abase(i): return 128 + 8*i if i < 12 else 8*(i-12)
    def actload(i):
        base = abase(i)
        so = 's5' if i < 12 else 's6'
        j = i & 3
        vm.issue(f'buffer_load_dwordx4 a[{base}:{base+3}], v15, s[16:19], {so} offen offset:{1024*j} sc1')
        if j == 0: a(f's_add_u32 s7, {so}, {112*1024}')
        atok[i] = vm.issue(f'buffer_load_dwordx4 a[{base+4}:{base+7}], v15, s[16:19], s7 offen offset:{1024*j} sc1')
        if j == 3: a(f's_add_u32 {so}, {so}, 0x1000')
    for i in range(4): actload(i)
    geglu2(2)
    ts3 = geglu2(3)
    for i in range(4, 12): actload(i)
    a('v_lshrrev_b32 v4, 3, v0')
    a('v_lshlrev_b32 v10, 10, v4')
    a('v_lshl_add_u32 v10, v6, 4, v10')
    a('v_lshlrev_b32 v11, 4, v6')
    a(f's_add_u32 s46, s39, {hex(X1)}')
    a('s_add_u32 s47, s46, 0x8000')
    a(f's_add_u32 s36, s36, {hex(MOD+5*1024)}')
    a('s_add_u32 s29, s33, 0x1000')
    a('s_add_u32 s25, s25, 0x1000')
    vm.need(ts3)
    vm.issue('buffer_store_dword v20, v21, s[52:55], s29 offen sc1')
    stamp(a, K, 13, P)
    pipe = LdsPipe(a); tok = {}
    def rd2(i):
        d = AR + 8*(i % 3); s = i % 20
        ad = 8192*WBL[s]
        for mt in range(2):
            for jj in range(2):
                tok[(i, mt)] = pipe.issue(f'ds_read_b64_tr_b16 v[{d+4*mt+2*jj}:{d+4*mt+2*jj+1}], v{240+2*(ad>>16)+mt} offset:{(ad & 0xffff)+1024*jj}')
    vm.need(wtok[1]); rd2(0); rd2(1)
    for i in range(28):
        if i == 12:
            poll(a, vm, 'f3', 19, 's25', 22)
            stamp(a, K, 14, P)
            for ii in range(12, 28): actload(ii)
            vm.issue('buffer_load_dwordx4 v[72:75], v10, s[16:19], s46 offen sc1')
            vm.issue('buffer_load_dwordx4 v[76:79], v10, s[16:19], s47 offen sc1')
            tx = vm.issue('buffer_load_dwordx4 v[80:83], v11, s[16:19], s36 offen')
        d0 = AR + 8*(i % 3); base = abase(i)
        vm.need(atok[i])
        for mt in range(2):
            pipe.need(tok[(i, mt)])
            for nt in range(2):
                d = ACC2 + 32*mt + 16*nt; c = '0' if i == 0 else f'v[{d}:{d+15}]'
                a(f'v_mfma_f32_32x32x16_bf16 v[{d}:{d+15}], v[{d0+4*mt}:{d0+4*mt+3}], a[{base+4*nt}:{base+4*nt+3}], {c}')
                if mt == 0 and nt == 0 and i+2 < 28:
                    vm.need(wtok[i+2]); rd2(i+2)
                if mt == 1 and i < 8:
                    wdslot(20+i)[nt]()
    a('v_and_b32 v4, 31, v1')
    a(f'v_mul_u32_u24 v4, {PS}, v4')
    a('v_lshrrev_b32 v5, 5, v1')
    a('v_lshl_add_u32 v4, v5, 4, v4')
    a(f's_mul_i32 s26, s3, {64*PS}')
    a('v_add_u32 v18, s26, v4')
    a('v_lshrrev_b32 v4, 3, v0')
    a(f'v_mul_u32_u24 v4, {PS}, v4')
    a('v_lshl_add_u32 v19, v6, 5, v4')
    srd(a, 12, 56, 0x200000)
    a('s_add_u32 s38, s39, 0x8000')
    a('s_barrier')
    stamp(a, K, 15, P)
    for mt in range(2):
        for nt in range(2):
            for g in range(4):
                d = ACC2 + 32*mt + 16*nt + 4*g
                a(f'ds_write_b128 v18, v[{d}:{d+3}] offset:{nt*32*PS + mt*128 + g*32}')
    vm.need(tx)
    unpack8(a, 84, 80, 40); unpack8(a, 24, 72, 40); unpack8(a, 32, 76, 40)
    a('s_waitcnt lgkmcnt(0)')
    a('s_barrier')
    for jj in range(2):
        for w in range(4):
            for e in range(2):
                d = 128 + 32*jj + 8*w + 4*e
                a(f'ds_read_b128 v[{d}:{d+3}], v19 offset:{w*64*PS + jj*32*PS + 16*e}')
    for jj in range(2):
        b = 128 + 32*jj
        a(f's_waitcnt lgkmcnt({8-8*jj})')
        for p in range(4): a(f'v_pk_add_f32 v[{b+2*p}:{b+2*p+1}], v[{b+2*p}:{b+2*p+1}], v[{b+8+2*p}:{b+9+2*p}]')
        for p in range(4): a(f'v_pk_add_f32 v[{b+16+2*p}:{b+17+2*p}], v[{b+16+2*p}:{b+17+2*p}], v[{b+24+2*p}:{b+25+2*p}]')
        for p in range(4): a(f'v_pk_add_f32 v[{b+2*p}:{b+2*p+1}], v[{b+2*p}:{b+2*p+1}], v[{b+16+2*p}:{b+17+2*p}]')
        x = 24 + 8*jj
        for p in range(4): a(f'v_pk_fma_f32 v[{b+2*p}:{b+2*p+1}], v[{b+2*p}:{b+2*p+1}], v[{84+2*p}:{85+2*p}], v[{x+2*p}:{x+2*p+1}]')
        for p in range(4): a(f'v_cvt_pk_bf16_f32 v{40+4*jj+p}, v{b+2*p}, v{b+2*p+1}')
        a(f'buffer_store_dwordx4 v[{40+4*jj}:{43+4*jj}], v10, s[12:15], s{39-jj} offen')
    if P.get('stamps'):
        a('s_waitcnt vmcnt(0)')
        stamp(a, K, 5, P)
    flush(a, K, P)
    a.label('L_cde_end')
    a('s_endpgm')
    return dict(grid=256, block=256, lds=163840, vgpr=512, accum=256)
```

```python
from asmlib import *
import struct
def f2u(x): return struct.unpack('<I', struct.pack('<f', x))[0]
def fh(x): return hex(f2u(x))

A_Q, A_K, A_V, A_SH, A_SK, A_SD, A_BX, A_WG, A_WU, A_WD, A_C, A_WM, A_OUT, A_DBG, A_WS = [8*i for i in range(15)]
UT, YT, X1, H2, ACT, MOD = 0x000000, 0x200000, 0x400000, 0x600000, 0x800000, 0xF00000
TS = 0x1000000

def srd(a, d, base, nbytes, off=0):
    if off:
        a(f's_add_u32 s{d}, s{base}, {hex(off)}')
        a(f's_addc_u32 s{d+1}, s{base+1}, 0')
    else:
        a(f's_mov_b32 s{d}, s{base}')
        a(f's_mov_b32 s{d+1}, s{base+1}')
    a(f's_mov_b32 s{d+2}, {hex(nbytes)}')
    a(f's_mov_b32 s{d+3}, 0x20000')

def lo(a, dst, src): a(f'v_lshlrev_b32 v{dst}, 16, v{src}')
def hi(a, dst, src, smask): a(f'v_and_b32 v{dst}, s{smask}, v{src}')

def stamp(a, kid, slot, P):
    if not P.get('stamps'): return
    a(f's_memrealtime s[{60+2*slot}:{61+2*slot}]')
    P.setdefault('_marks', set()).add(slot)

def flush(a, kid, P):
    if not P.get('stamps'): return
    marks = sorted(P.pop('_marks'))
    a(f's_load_dwordx2 s[92:93], s[0:1], {A_WS}')
    a('s_waitcnt lgkmcnt(0)')
    a(f's_lshl_b32 s94, s2, 7')
    a(f's_add_u32 s94, s94, {hex(TS + kid*0x10000)}')
    a('s_add_u32 s92, s92, s94')
    a('s_addc_u32 s93, s93, 0')
    a('v_mov_b32 v252, 0')
    a('v_cmp_eq_u32 vcc, 0, v253')
    a('s_and_b64 exec, exec, vcc')
    a(f's_cbranch_execz L_st{kid}')
    for m in marks:
        a(f'v_mov_b32 v250, s{60+2*m}')
        a(f'v_mov_b32 v251, s{61+2*m}')
        a(f'global_store_dwordx2 v252, v[250:251], s[92:93] offset:{8*m}')
        a('s_nop 1')
    a.label(f'L_st{kid}')

def k1(a, P):
    a('s_cmp_ge_u32 s2, 256')
    a('s_cbranch_scc1 L_k1_end')
    if P.get('stamps'): a('v_mov_b32 v253, v0')
    stamp(a, 0, 0, P)
    a('v_lshrrev_b32 v1, 6, v0')
    a(f's_load_dwordx2 s[10:11], s[0:1], {A_WS}')
    a('v_readfirstlane_b32 s3, v1')
    a('s_mov_b32 s40, 0xffff0000')
    a('s_cmp_ge_u32 s3, 4')
    a('s_cbranch_scc1 L_k1_mod')
    a(f's_load_dwordx4 s[4:7], s[0:1], {A_K}')
    a(f's_load_dwordx2 s[8:9], s[0:1], {A_SH}')
    a('s_and_b32 s30, s2, 7')
    a('s_lshr_b32 s31, s2, 3')
    a('v_and_b32 v1, 31, v0')
    a('v_lshrrev_b32 v2, 5, v0')
    a('s_lshl_b32 s32, s31, 6')
    a('v_lshl_add_u32 v2, v2, 3, s32')
    a('s_lshl_b32 s33, s30, 7')
    a('v_lshl_add_u32 v3, v1, 2, s33')
    a('v_lshl_add_u32 v3, v2, 10, v3')
    a('v_subrev_u32 v4, 0xc00, v3')
    a('s_lshl_b32 s34, s30, 9')
    a('v_lshl_add_u32 v5, v1, 4, s34')
    a('s_movk_i32 s35, 0x1000')
    a('s_waitcnt lgkmcnt(0)')
    srd(a, 12, 4, 0x200000); srd(a, 16, 6, 0x200000); srd(a, 20, 8, 4096); srd(a, 24, 10, 0x200000, UT)
    a('buffer_load_dwordx4 v[28:31], v5, s[20:23], 0 offen')
    for i in range(3):
        a(f'buffer_load_dword v{8+i}, v4, s[12:15], 0 offen offset:{1024*i}')
    for i in range(8):
        so = 's35' if i >= 4 else '0'
        a(f'buffer_load_dword v{11+i}, v3, s[12:15], {so} offen offset:{1024*(i&3)}')
        a(f'buffer_load_dword v{20+i}, v3, s[16:19], {so} offen offset:{1024*(i&3)}')
    if P.get('epoch'):
        a('s_cmp_lg_u32 s2, 0')
        a('s_cbranch_scc1 L_k1_noep')
        a('s_add_u32 s42, s10, 0xF08000')
        a('s_addc_u32 s43, s11, 0')
        a('s_load_dword s44, s[42:43], 0')
        a('s_waitcnt lgkmcnt(0)')
        a('s_mul_i32 s44, s44, 1664525')
        a('s_add_u32 s44, s44, 1013904223')
        a('s_cmp_lg_u32 s3, 0')
        a('s_cbranch_scc1 L_k1_noep')
        a('v_mov_b32 v6, s44')
        a('v_mov_b32 v7, 0')
        a('global_store_dword v7, v6, s[42:43]')
        a('s_waitcnt vmcnt(0)')
        a.label('L_k1_noep')
    a('s_lshl_b32 s36, s30, 18')
    a('v_lshl_add_u32 v6, v1, 13, s36')
    a('v_sub_u32 v7, 0x7f8, v2')
    a('v_lshl_add_u32 v6, v7, 1, v6')
    a('s_waitcnt vmcnt(19)')
    lo(a, 32, 28); hi(a, 34, 28, 40); lo(a, 36, 29); hi(a, 38, 29, 40)
    lo(a, 33, 30); hi(a, 35, 30, 40); lo(a, 37, 31); hi(a, 39, 31, 40)
    a('s_waitcnt vmcnt(16)')
    for r in range(3):
        lo(a, 40+2*r, 8+r); hi(a, 41+2*r, 8+r, 40)
    for r in range(8):
        a(f's_waitcnt vmcnt({14-2*r})')
        lo(a, 46+2*r, 11+r); hi(a, 47+2*r, 11+r, 40)
        lo(a, 64+2*r, 20+r); hi(a, 65+2*r, 20+r, 40)
        d = 80+2*r
        a(f'v_pk_mul_f32 v[{d}:{d+1}], v[{40+2*r}:{41+2*r}], v[38:39]')
        a(f'v_pk_fma_f32 v[{d}:{d+1}], v[{42+2*r}:{43+2*r}], v[36:37], v[{d}:{d+1}]')
        a(f'v_pk_fma_f32 v[{d}:{d+1}], v[{44+2*r}:{45+2*r}], v[34:35], v[{d}:{d+1}]')
        a(f'v_pk_fma_f32 v[{d}:{d+1}], v[{46+2*r}:{47+2*r}], v[32:33], v[{d}:{d+1}]')
        a(f'v_pk_mul_f32 v[{d}:{d+1}], v[{d}:{d+1}], v[{64+2*r}:{65+2*r}]')
    for c in range(2):
        for jj in range(4):
            a(f'v_cvt_pk_bf16_f32 v{8+4*c+jj}, v{80+2*(7-2*jj)+c}, v{80+2*(6-2*jj)+c}')
    a('buffer_store_dwordx4 v[8:11], v6, s[24:27], 0 offen')
    a('buffer_store_dwordx4 v[12:15], v6, s[24:27], s35 offen')
    if P.get('stamps'): a('s_waitcnt vmcnt(0)')
    stamp(a, 0, 1, P)
    flush(a, 0, P)
    a('s_endpgm')
    a.label('L_k1_mod')
    a('s_cmp_ge_u32 s2, 192')
    a('s_cbranch_scc1 L_k1_end')
    a(f's_load_dwordx4 s[4:7], s[0:1], {A_C}')
    a('s_lshr_b32 s30, s2, 5')
    a('s_lshl_b32 s30, s30, 3')
    a('s_and_b32 s31, s2, 7')
    a('s_or_b32 s30, s30, s31')
    a('s_lshr_b32 s31, s2, 3')
    a('s_and_b32 s31, s31, 3')
    a('s_lshl_b32 s30, s30, 7')
    a('s_lshl_b32 s31, s31, 5')
    a('s_or_b32 s30, s30, s31')
    a('v_and_b32 v0, 0xff, v0')
    a('v_and_b32 v1, 1, v0')
    a('v_lshrrev_b32 v2, 1, v0')
    a('v_mul_u32_u24 v3, 0x6000, v2')
    a('v_lshl_add_u32 v3, v1, 4, v3')
    a('v_add_u32 v3, s30, v3')
    a('v_lshlrev_b32 v4, 3, v2')
    a('s_movk_i32 s33, 0x1800')
    a('s_movk_i32 s34, 0x3000')
    a('s_movk_i32 s35, 0x4800')
    a('s_waitcnt lgkmcnt(0)')
    srd(a, 12, 4, 1024); srd(a, 16, 6, 512*6144); srd(a, 24, 10, 6144, MOD)
    a('buffer_load_dwordx2 v[6:7], v4, s[12:15], 0 offen')
    for r, so in enumerate(('0', 's33', 's34', 's35')):
        a(f'buffer_load_dwordx4 v[{8+4*r}:{11+4*r}], v3, s[16:19], {so} offen')
    a('s_waitcnt vmcnt(4)')
    lo(a, 24, 6); hi(a, 25, 6, 40); lo(a, 26, 7); hi(a, 27, 7, 40)
    for r in range(4): a(f'v_mul_f32 v{28+r}, {fh(-1.4426950408889634)}, v{24+r}')
    for r in range(4): a(f'v_exp_f32 v{28+r}, v{28+r}')
    for r in range(4): a(f'v_add_f32 v{28+r}, 1.0, v{28+r}')
    for r in range(4): a(f'v_rcp_f32 v{28+r}, v{28+r}')
    for r in range(4): a(f'v_mul_f32 v{24+r}, v{24+r}, v{28+r}')
    a('v_cvt_pk_bf16_f32 v6, v24, v25')
    a('v_cvt_pk_bf16_f32 v7, v26, v27')
    lo(a, 24, 6); hi(a, 25, 6, 40); lo(a, 26, 7); hi(a, 27, 7, 40)
    for r in range(4):
        a(f's_waitcnt vmcnt({3-r})')
        for j in range(4):
            lo(a, 32+2*j, 8+4*r+j); hi(a, 33+2*j, 8+4*r+j, 40)
        sel = 'op_sel:[0,0,0] op_sel_hi:[1,0,1]' if r % 2 == 0 else 'op_sel:[0,1,0] op_sel_hi:[1,1,1]'
        sp = 24 + (r & 2)
        for j in range(4):
            if r == 0:
                a(f'v_pk_mul_f32 v[{40+2*j}:{41+2*j}], v[{32+2*j}:{33+2*j}], v[{sp}:{sp+1}] op_sel:[0,0] op_sel_hi:[1,0]')
            else:
                a(f'v_pk_fma_f32 v[{40+2*j}:{41+2*j}], v[{32+2*j}:{33+2*j}], v[{sp}:{sp+1}], v[{40+2*j}:{41+2*j}] {sel}')
    for ctl in ('quad_perm:[2,3,0,1]', 'row_ror:4', 'row_ror:8'):
        for j in range(8):
            a(f'v_add_f32_dpp v{40+j}, v{40+j}, v{40+j} {ctl} row_mask:0xf bank_mask:0xf')
    a('v_lshrrev_b32 v2, 4, v0')
    a('v_lshlrev_b32 v2, 6, v2')
    a('v_lshl_add_u32 v2, v1, 5, v2')
    a('v_and_b32 v3, 14, v0')
    a('v_cmp_eq_u32 vcc, 0, v3')
    a('s_and_saveexec_b64 s[36:37], vcc')
    a('ds_write_b128 v2, v[40:43]')
    a('ds_write_b128 v2, v[44:47] offset:16')
    a('s_mov_b64 exec, s[36:37]')
    a('s_waitcnt lgkmcnt(0)')
    a('s_barrier')
    a('s_cmp_lg_u32 s3, 4')
    a('s_cbranch_scc1 L_k1_end')
    a('v_and_b32 v1, 15, v0')
    a('v_lshrrev_b32 v2, 4, v0')
    a('v_lshlrev_b32 v3, 8, v2')
    a('v_lshl_add_u32 v3, v1, 2, v3')
    for i in range(4): a(f'ds_read_b32 v{8+i}, v3 offset:{64*i}')
    a('s_lshr_b32 s31, s30, 10')
    a('s_cmp_eq_u32 s31, 1')
    a('s_cselect_b32 s32, 1.0, 0')
    a('s_cmp_eq_u32 s31, 4')
    a('s_cselect_b32 s32, 1.0, s32')
    a('s_waitcnt lgkmcnt(0)')
    a('v_add_f32 v8, v8, v9'); a('v_add_f32 v10, v10, v11'); a('v_add_f32 v8, v8, v10')
    a('v_mov_b32 v9, v8')
    a('v_permlane16_swap_b32 v8, v9')
    a('v_add_f32 v8, v8, v9')
    a('v_mov_b32 v9, v8')
    a('v_permlane32_swap_b32 v8, v9')
    a('v_add_f32 v8, v8, v9')
    a('v_cvt_pk_bf16_f32 v8, v8, v8')
    lo(a, 8, 8)
    a('v_add_f32 v8, s32, v8')
    a('v_cvt_pk_bf16_f32 v8, v8, v8')
    a('v_lshl_add_u32 v1, v1, 1, s30')
    a('v_cmp_gt_u32 vcc, 16, v0')
    a('s_and_saveexec_b64 s[36:37], vcc')
    a('buffer_store_short v8, v1, s[24:27], 0 offen')
    a.label('L_k1_end')
    a('s_endpgm')
    return dict(grid=256, block=512, lds=1024, vgpr=(256 if P.get('stamps') else 96), accum=(256 if P.get('stamps') else 96))

class LdsPipe:
    def __init__(self, a):
        self.a = a; self.issued = 0; self.done = 0
    def issue(self, line):
        self.a(line); self.issued += 1
        return self.issued
    def need(self, tok):
        if tok > self.done:
            n = self.issued - tok
            assert n <= 15, n
            self.a(f's_waitcnt lgkmcnt({n})')
            self.done = tok
    def outstanding(self): return self.issued - self.done

CHS, KB, U0, U1, PB = 12928, 512, 4608, 8768, 25856
def k2(a, P):
    a('s_cmp_ge_u32 s2, 256')
    a('s_cbranch_scc1 L_k2_end')
    if P.get('stamps'): a('v_mov_b32 v253, v0')
    stamp(a, 1, 0, P)
    a(f's_load_dwordx4 s[4:7], s[0:1], {A_SK}')
    a(f's_load_dwordx2 s[10:11], s[0:1], {A_WS}')
    a('s_and_b32 s30, s2, 7')
    a('s_lshl_b32 s30, s30, 5')
    a('s_lshr_b32 s31, s2, 3')
    a('s_or_b32 s30, s30, s31')
    a('s_lshl_b32 s31, s30, 13')
    a('s_add_u32 s32, s31, 0x1000')
    a('s_lshl_b32 s33, s30, 2')
    a('v_lshlrev_b32 v1, 4, v0')
    a('v_lshrrev_b32 v2, 6, v0')
    a('s_waitcnt lgkmcnt(0)')
    a('s_add_u32 s6, s6, s33')
    a('s_addc_u32 s7, s7, 0')
    a('s_load_dword s34, s[6:7], 0')
    srd(a, 12, 4, 0x200000); srd(a, 16, 10, 0x200000, UT); srd(a, 20, 10, 0x200000, YT)
    a('v_readfirstlane_b32 s3, v2')
    for c, so in enumerate(('s31', 's32')):
        a(f'buffer_load_dwordx4 v[{8+4*c}:{11+4*c}], v1, s[16:19], {so} offen')
        a(f'buffer_load_dword v{24+c}, v1, s[16:19], {so} offen offset:16')
        a(f'buffer_load_dwordx4 v[{16+4*c}:{19+4*c}], v1, s[12:15], {so} offen')
    for i in range(4): a(f'v_mov_b32 v{28+i}, 0')
    a('v_cmp_gt_u32 vcc, 32, v0')
    a('s_and_saveexec_b64 s[36:37], vcc')
    a('s_cbranch_execz L_k2_nz')
    a('ds_write_b128 v1, v[28:31]')
    a(f'ds_write_b128 v1, v[28:31] offset:{CHS}')
    a('v_cmp_gt_u32 vcc, 2, v0')
    a('s_and_b64 exec, exec, vcc')
    for c in range(2):
        a(f'ds_write_b128 v1, v[28:31] offset:{c*CHS+U0+4096}')
        a(f'ds_write_b128 v1, v[28:31] offset:{c*CHS+U1+4096}')
    a.label('L_k2_nz')
    a('s_mov_b64 exec, s[36:37]')
    a('s_lshr_b32 s35, s3, 1')
    a('s_and_b32 s38, s3, 1')
    a(f's_mul_i32 s35, s35, {CHS}')
    a('s_xor_b32 s38, s38, 1')
    a('s_lshl_b32 s38, s38, 6')
    a('s_add_u32 s35, s35, s38')
    a('v_and_b32 v3, 15, v0')
    a('v_bfe_u32 v4, v0, 4, 2')
    a('v_lshlrev_b32 v5, 4, v4')
    a('v_lshl_add_u32 v6, v3, 5, v5')
    a(f's_add_u32 s39, s35, {KB-480}')
    a('v_add_u32 v6, s39, v6')
    a('v_and_b32 v7, 14, v3')
    a('v_lshlrev_b32 v7, 1, v7')
    a('v_sub_u32 v7, v5, v7')
    a('v_and_b32 v32, 1, v3')
    a(f'v_mul_u32_u24 v32, {U1-U0}, v32')
    a('v_sub_u32 v7, v7, v32')
    a(f's_add_u32 s39, s35, {U1+28}')
    a('v_add_u32 v36, s39, v7')
    for i in range(1, 4): a(f'v_add_u32 v{36+i}, {1024*i}, v36')
    a('v_bfe_u32 v32, v3, 1, 2')
    a('v_xor_b32 v32, v32, v4')
    a('v_lshl_add_u32 v32, v3, 2, v32')
    a('s_lshl_b32 s39, s3, 13')
    a(f's_add_u32 s39, s39, {PB}')
    a('v_lshl_add_u32 v35, v32, 4, s39')
    a('v_cmp_eq_u32 s[36:37], 0, v0')
    a('s_movk_i32 s39, 0xff')
    a('v_cmp_ne_u32 vcc, s39, v0')
    a('s_waitcnt lgkmcnt(0)')
    a('s_lshl_b32 s41, s34, 16')
    a('s_and_b32 s42, s34, 0xffff0000')
    a('s_mov_b32 s43, 0xffff')
    for c in range(2):
        a(f's_waitcnt vmcnt({4-3*c})')
        u = 8+4*c
        a(f'v_cndmask_b32 v{24+c}, 0, v{24+c}, vcc')
        a(f'ds_write_b128 v1, v[{u}:{u+3}] offset:{c*CHS+U0}')
        for j in range(3): a(f'v_alignbit_b32 v{28+j}, v{u+j+1}, v{u+j}, 16')
        a(f'v_alignbit_b32 v31, v{24+c}, v{u+3}, 16')
        a(f'ds_write_b128 v1, v[28:31] offset:{c*CHS+U1}')
        a(f's_waitcnt vmcnt({3-3*c})')
        kx = 16+4*c
        lo(a, 32, kx)
        a(f'v_add_f32 v32, s{41+c}, v32')
        a('v_cvt_pk_bf16_f32 v32, v32, v32')
        a(f'v_bfi_b32 v32, s43, v32, v{kx}')
        a(f'v_cndmask_b32 v{kx}, v{kx}, v32, s[36:37]')
        a(f'ds_write_b128 v1, v[{kx}:{kx+3}] offset:{c*CHS+KB}')
    a('s_waitcnt lgkmcnt(0)')
    a('s_barrier')
    stamp(a, 1, 1, P)
    ACC, AR, BR = 40, 72, 104
    pipe = LdsPipe(a)
    reads = []
    for i in range(32):
        o = 32*((31-i) & 7); b = 36 + ((31-i) >> 3); d = AR + 4*(i & 7)
        reads.append((('A', i, 0), f'ds_read2_b32 v[{d}:{d+1}], v{b} offset0:{o} offset1:{o+1}'))
        reads.append((('A', i, 1), f'ds_read2_b32 v[{d+2}:{d+3}], v{b} offset0:{o+2} offset1:{o+3}'))
        if i < 4:
            for t in range(8):
                j = 4*t+3-i
                reads.append((('B', j), f'ds_read_b128 v[{BR+4*j}:{BR+4*j+3}], v6 offset:{128*j}'))
    tok = {}; nxt = [0]
    def pump(cur_step, maxn):
        n = 0
        while n < maxn and nxt[0] < len(reads) and pipe.outstanding() < 13:
            key, line = reads[nxt[0]]
            if key[0] == 'A' and key[1] >= cur_step + 8: break
            tok[key] = pipe.issue(line); nxt[0] += 1; n += 1
    pump(0, 12)
    pending = []
    for i in range(32):
        for t in range(i >> 2, 8):
            j = 4*t+3-i
            while ('B', j) not in tok or ('A', i, 1) not in tok:
                pipe.need(pipe.done + 2); pump(i, 2)
            pipe.need(max(tok[('A', i, 1)], tok[('B', j)]))
            d = ACC+4*t; c = '0' if i == 0 else f'v[{d}:{d+3}]'
            s = AR+4*(i & 7)
            a(f'v_mfma_f32_16x16x32_bf16 v[{d}:{d+3}], v[{s}:{s+3}], v[{BR+4*j}:{BR+4*j+3}], {c}')
            pump(i, 2 if i < 4 else 1)
        if pending and pipe.outstanding() < 14:
            t = pending.pop()
            pipe.issue(f'ds_write_b128 v35, v[{ACC+4*t}:{ACC+4*t+3}] offset:{1024*t}')
        if (i & 3) == 3: pending.append(i >> 2)
    for t in pending:
        pipe.issue(f'ds_write_b128 v35, v[{ACC+4*t}:{ACC+4*t+3}] offset:{1024*t}')
    a('v_lshrrev_b32 v2, 3, v0')
    a('v_and_b32 v2, 3, v2')
    a('v_xor_b32 v2, v2, v0')
    a('v_lshlrev_b32 v2, 4, v2')
    a(f'v_add_u32 v2, {PB}, v2')
    a('v_lshrrev_b32 v3, 1, v0')
    a('v_lshlrev_b32 v3, 13, v3')
    a('v_and_b32 v4, 1, v0')
    a('v_lshl_add_u32 v3, v4, 4, v3')
    a('s_lshl_b32 s31, s30, 5')
    a('s_add_u32 s32, s31, 0x100000')
    a('s_waitcnt lgkmcnt(0)')
    a('s_barrier')
    stamp(a, 1, 2, P)
    for h in range(2):
        for w in range(4):
            a(f'ds_read_b128 v[{72+16*h+4*w}:{75+16*h+4*w}], v2 offset:{8192*w+4096*h}')
    for h in range(2):
        b = 72+16*h
        a(f's_waitcnt lgkmcnt({4-4*h})')
        for c in range(2):
            for p in range(2):
                a(f'v_pk_add_f32 v[{b+8*c+2*p}:{b+8*c+2*p+1}], v[{b+8*c+2*p}:{b+8*c+2*p+1}], v[{b+8*c+4+2*p}:{b+8*c+5+2*p}]')
        for r in range(4):
            a(f'v_cvt_pk_bf16_f32 v{8+4*h+r}, v{b+r}, v{b+8+r}')
        a(f'buffer_store_dwordx4 v[{8+4*h}:{11+4*h}], v3, s[20:23], s{31+h} offen')
    if P.get('stamps'): a('s_waitcnt vmcnt(0)')
    stamp(a, 1, 3, P)
    flush(a, 1, P)
    a.label('L_k2_end')
    a('s_endpgm')
    return dict(grid=256, block=256, lds=PB+32768, vgpr=256, accum=256)

def wave_sum(a, v, sdst):
    for ctl in ('row_shr:1', 'row_shr:2', 'row_shr:4', 'row_shr:8'):
        a(f'v_add_f32_dpp v{v}, v{v}, v{v} {ctl} row_mask:0xf bank_mask:0xf bound_ctrl:1')
    a(f'v_add_f32_dpp v{v}, v{v}, v{v} row_bcast:15 row_mask:0xa bank_mask:0xf')
    a(f'v_add_f32_dpp v{v}, v{v}, v{v} row_bcast:31 row_mask:0xc bank_mask:0xf')
    a(f'v_readlane_b32 s{sdst}, v{v}, 63')

def ln_stats(a, X, D, T, s0):
    a(f'v_pk_add_f32 v[{T}:{T+1}], v[{X}:{X+1}], v[{X+2}:{X+3}]')
    a(f'v_pk_add_f32 v[{T+2}:{T+3}], v[{X+4}:{X+5}], v[{X+6}:{X+7}]')
    a(f'v_pk_add_f32 v[{T}:{T+1}], v[{T}:{T+1}], v[{T+2}:{T+3}]')
    a(f'v_add_f32 v{T}, v{T}, v{T+1}')
    wave_sum(a, T, s0)
    a(f'v_mov_b32 v{T}, {fh(-1.0/512)}')
    a(f'v_mul_f32 v{T}, s{s0}, v{T}')
    for p in range(4):
        a(f'v_pk_add_f32 v[{D+2*p}:{D+2*p+1}], v[{X+2*p}:{X+2*p+1}], v[{T}:{T+1}] op_sel:[0,0] op_sel_hi:[1,0]')
    a(f'v_pk_mul_f32 v[{T}:{T+1}], v[{D}:{D+1}], v[{D}:{D+1}]')
    for p in range(1, 4):
        a(f'v_pk_fma_f32 v[{T}:{T+1}], v[{D+2*p}:{D+2*p+1}], v[{D+2*p}:{D+2*p+1}], v[{T}:{T+1}]')
    a(f'v_add_f32 v{T}, v{T}, v{T+1}')
    wave_sum(a, T, s0)
    a(f'v_mov_b32 v{T}, {fh(1.0/512)}')
    a(f'v_mov_b32 v{T+1}, {fh(1e-5)}')
    a(f'v_fmac_f32 v{T+1}, s{s0}, v{T}')
    a(f'v_rsq_f32 v{T}, v{T+1}')

def unpack8(a, dst, src, smask):
    for j in range(4):
        lo(a, dst+2*j, src+j); hi(a, dst+2*j+1, src+j, smask)

YS, MB = 1040, 8448
def k3(a, P):
    a('s_cmp_ge_u32 s2, 256')
    a('s_cbranch_scc1 L_k3_end')
    if P.get('stamps'): a('v_mov_b32 v253, v0')
    stamp(a, 2, 0, P)
    a(f's_load_dwordx2 s[4:5], s[0:1], {A_Q}')
    a(f's_load_dwordx2 s[10:11], s[0:1], {A_WS}')
    a('s_mov_b32 s40, 0xffff0000')
    a('s_lshl_b32 s30, s2, 13')
    a('v_lshlrev_b32 v1, 4, v0')
    a('v_lshrrev_b32 v2, 6, v0')
    a('v_readfirstlane_b32 s3, v2')
    a('s_waitcnt lgkmcnt(0)')
    srd(a, 12, 4, 0x200000); srd(a, 16, 10, 0x200000, YT); srd(a, 20, 10, 5120, MOD)
    srd(a, 24, 10, 0x200000, X1); srd(a, 28+4, 10, 0x200000, H2)
    a('buffer_load_dwordx4 v[8:11], v1, s[12:15], s30 offen')
    a('buffer_load_dwordx4 v[12:15], v1, s[16:19], s30 offen')
    a('buffer_load_dwordx4 v[16:19], v1, s[20:23], 0 offen')
    a('v_and_b32 v3, 1, v0')
    a(f'v_mul_u32_u24 v3, {4*YS}, v3')
    a('v_lshrrev_b32 v4, 1, v0')
    a('v_lshl_add_u32 v3, v4, 2, v3')
    a('v_and_b32 v5, 63, v0')
    a(f's_mul_i32 s31, s3, {YS}')
    a('v_lshl_add_u32 v6, v5, 4, s31')
    a('v_lshlrev_b32 v7, 4, v5')
    a('s_lshl_b32 s36, s2, 3')
    a('s_add_u32 s36, s36, s3')
    a('s_lshr_b32 s37, s36, 5')
    a('s_lshl_b32 s37, s37, 15')
    a('s_and_b32 s36, s36, 31')
    a('s_lshl_b32 s36, s36, 4')
    a('s_add_u32 s36, s36, s37')
    a('v_lshlrev_b32 v5, 9, v5')
    a('s_waitcnt vmcnt(2)')
    unpack8(a, 20, 8, 40)
    ln_stats(a, 20, 28, 36, 41)
    a('s_waitcnt vmcnt(1)')
    for r in range(4): a(f'ds_write_b32 v3, v{12+r} offset:{r*YS}')
    a('s_waitcnt vmcnt(0)')
    a(f'ds_write_b128 v1, v[16:19] offset:{MB}')
    for p in range(4):
        a(f'v_pk_mul_f32 v[{28+2*p}:{29+2*p}], v[{28+2*p}:{29+2*p}], v[36:37] op_sel:[0,0] op_sel_hi:[1,0]')
    a('s_waitcnt lgkmcnt(0)')
    a('s_barrier')
    stamp(a, 2, 1, P)
    a(f'ds_read_b128 v[8:11], v7 offset:{MB+1024}')
    a(f'ds_read_b128 v[12:15], v7 offset:{MB}')
    a(f'ds_read_b128 v[16:19], v7 offset:{MB+2048}')
    a('ds_read_b128 v[40:43], v6')
    a(f'ds_read_b128 v[44:47], v7 offset:{MB+4096}')
    a(f'ds_read_b128 v[48:51], v7 offset:{MB+3072}')
    a('s_waitcnt lgkmcnt(4)')
    unpack8(a, 52, 8, 40); unpack8(a, 60, 12, 40)
    for p in range(4):
        a(f'v_pk_fma_f32 v[{28+2*p}:{29+2*p}], v[{28+2*p}:{29+2*p}], v[{52+2*p}:{53+2*p}], v[{60+2*p}:{61+2*p}]')
    a('s_waitcnt lgkmcnt(2)')
    unpack8(a, 52, 16, 40); unpack8(a, 60, 40, 40)
    for p in range(4):
        a(f'v_pk_mul_f32 v[{52+2*p}:{53+2*p}], v[{52+2*p}:{53+2*p}], v[{60+2*p}:{61+2*p}]')
    for p in range(4):
        a(f'v_pk_fma_f32 v[{20+2*p}:{21+2*p}], v[{28+2*p}:{29+2*p}], v[{52+2*p}:{53+2*p}], v[{20+2*p}:{21+2*p}]')
    for j in range(4): a(f'v_cvt_pk_bf16_f32 v{8+j}, v{20+2*j}, v{21+2*j}')
    a('buffer_store_dwordx4 v[8:11], v1, s[24:27], s30 offen')
    unpack8(a, 20, 8, 40)
    ln_stats(a, 20, 28, 36, 41)
    a('s_waitcnt lgkmcnt(0)')
    unpack8(a, 52, 44, 40); unpack8(a, 60, 48, 40)
    for p in range(4):
        a(f'v_pk_mul_f32 v[{28+2*p}:{29+2*p}], v[{28+2*p}:{29+2*p}], v[36:37] op_sel:[0,0] op_sel_hi:[1,0]')
    for p in range(4):
        a(f'v_pk_fma_f32 v[{28+2*p}:{29+2*p}], v[{28+2*p}:{29+2*p}], v[{52+2*p}:{53+2*p}], v[{60+2*p}:{61+2*p}]')
    for j in range(4): a(f'v_cvt_pk_bf16_f32 v{12+j}, v{28+2*j}, v{29+2*j}')
    a('buffer_store_dwordx4 v[12:15], v5, s[32:35], s36 offen')
    if P.get('stamps'): a('s_waitcnt vmcnt(0)')
    stamp(a, 2, 2, P)
    flush(a, 2, P)
    a.label('L_k3_end')
    a('s_endpgm')
    return dict(grid=256, block=512, lds=MB+8192, vgpr=(256 if P.get('stamps') else 72), accum=(256 if P.get('stamps') else 72))
```

```python
from asmlib import *
from k123 import *

class VmPipe:
    def __init__(self, a):
        self.a = a; self.issued = 0; self.done = 0
    def issue(self, line):
        self.a(line); self.issued += 1
        assert self.issued - self.done <= 63
        return self.issued
    def need(self, tok):
        if tok > self.done:
            self.a(f's_waitcnt vmcnt({self.issued - tok})')
            self.done = tok

SLOT, UPO, NSLOT = 28800, 14464, 5
GC1 = -2.0 * 0.7978845608028654 * 1.4426950408889634
GC2 = GC1 * 0.044715
def geglu(a, A, T, O):
    for p in range(4): a(f'v_pk_mul_f32 v[{T+2*p}:{T+2*p+1}], v[{A+2*p}:{A+2*p+1}], v[{A+2*p}:{A+2*p+1}]')
    for p in range(4): a(f'v_pk_fma_f32 v[{T+2*p}:{T+2*p+1}], v[{T+2*p}:{T+2*p+1}], s[44:45], v[2:3]')
    for p in range(4): a(f'v_pk_mul_f32 v[{T+2*p}:{T+2*p+1}], v[{T+2*p}:{T+2*p+1}], v[{A+2*p}:{A+2*p+1}]')
    for j in range(8): a(f'v_exp_f32 v{T+j}, v{T+j}')
    for p in range(4): a(f'v_pk_mul_f32 v[{A+2*p}:{A+2*p+1}], v[{A+2*p}:{A+2*p+1}], v[{A+8+2*p}:{A+8+2*p+1}]')
    for p in range(4): a(f'v_pk_add_f32 v[{T+2*p}:{T+2*p+1}], v[{T+2*p}:{T+2*p+1}], s[46:47]')
    for j in range(8): a(f'v_rcp_f32 v{T+j}, v{T+j}')
    for p in range(4): a(f'v_pk_mul_f32 v[{A+2*p}:{A+2*p+1}], v[{A+2*p}:{A+2*p+1}], v[{T+2*p}:{T+2*p+1}]')
    for p in range(4): a(f'v_cvt_pk_bf16_f32 v{O+p}, v{A+2*p}, v{A+2*p+1}')

def k4(a, P):
    a('s_cmp_ge_u32 s2, 256')
    a('s_cbranch_scc1 L_k4_end')
    if P.get('stamps'): a('v_mov_b32 v253, v0')
    stamp(a, 3, 0, P)
    a(f's_load_dwordx4 s[4:7], s[0:1], {A_WG}')
    a(f's_load_dwordx2 s[10:11], s[0:1], {A_WS}')
    a('v_lshrrev_b32 v2, 6, v0')
    a('v_and_b32 v1, 63, v0')
    a('v_readfirstlane_b32 s3, v2')
    a('s_and_b32 s30, s2, 1')
    a('s_lshl_b32 s30, s30, 3')
    a('s_bfe_u32 s31, s2, 0x30003')
    a('s_or_b32 s30, s30, s31')
    a('s_bfe_u32 s31, s2, 0x20001')
    a('s_lshl_b32 s31, s31, 2')
    a('s_lshr_b32 s32, s2, 6')
    a('s_or_b32 s31, s31, s32')
    a('s_lshl_b32 s33, s30, 2')
    a('s_add_u32 s33, s33, s3')
    a('s_lshl_b32 s34, s33, 15')
    a('s_mul_i32 s35, s33, 112')
    a('s_mul_i32 s36, s31, 7')
    a('s_add_u32 s35, s35, s36')
    a('s_lshl_b32 s35, s35, 10')
    a('s_mul_i32 s36, s31, 224')
    a('s_and_b32 s37, s3, 1')
    a(f's_mul_i32 s38, s37, {32*3584}')
    a('s_add_u32 s36, s36, s38')
    a('s_mul_i32 s37, s37, 7168')
    a('s_lshr_b32 s38, s3, 1')
    a(f's_mul_i32 s39, s38, {UPO}')
    a('s_add_u32 s37, s37, s39')
    for i in range(7):
        a(f'v_add_u32 v4, {64*i}, v1')
        a('v_mul_u32_u24 v5, 0x124a, v4')
        a('v_lshrrev_b32 v5, 16, v5')
        a(f'v_mul_u32_u24 v5, {3584-224}, v5')
        a(f'v_lshl_add_u32 v{8+i}, v4, 4, v5')
        if i & 3: a(f'v_subrev_u32 v{8+i}, {1024*(i&3)}, v{8+i}')
    a('v_lshlrev_b32 v15, 4, v1')
    a('s_waitcnt lgkmcnt(0)')
    a('s_cmp_eq_u32 s38, 0')
    a('s_cselect_b32 s12, s4, s6')
    a('s_cselect_b32 s13, s5, s7')
    a(f's_mov_b32 s14, {512*3584}')
    a('s_mov_b32 s15, 0x20000')
    srd(a, 16, 10, 0x200000, H2); srd(a, 20, 10, 0x700000, ACT)
    vm = VmPipe(a)
    wtok, htok = {}, {}
    def issue_stage(s):
        sl = s % NSLOT
        for i in range(7):
            if i in (0, 4):
                a(f's_add_u32 m0, s37, {sl*SLOT + 1024*i}')
            wtok[s] = vm.issue(f'buffer_load_dwordx4 v{8+i}, s[12:15], s36 offen offset:{1024*(i&3)} lds')
        a(f's_add_u32 s36, s36, {64*3584}')
        for k in range(4):
            ks = 4*s+k
            htok[s] = vm.issue(f'buffer_load_dwordx4 a[{4*ks}:{4*ks+3}], v15, s[16:19], s34 offen offset:{1024*k}')
        a('s_add_u32 s34, s34, 0x1000')
    for s in range(5): issue_stage(s)
    a('v_bfe_u32 v4, v1, 4, 1')
    a(f'v_mul_u32_u24 v4, {UPO}, v4')
    a('v_lshrrev_b32 v5, 5, v1')
    a('v_lshlrev_b32 v5, 3, v5')
    a('v_bfe_u32 v6, v1, 2, 2')
    a('v_add_u32 v5, v5, v6')
    a('v_mul_u32_u24 v5, 0xe0, v5')
    a('v_and_b32 v6, 3, v1')
    a('v_lshl_add_u32 v5, v6, 3, v5')
    a('v_add_u32 v16, v4, v5')
    a(f'v_add_u32 v17, {2*SLOT}, v16')
    a(f'v_add_u32 v18, {4*SLOT}, v16')
    a(f's_mov_b32 s44, {fh(GC2)}'); a(f's_mov_b32 s45, {fh(GC2)}')
    a('s_mov_b32 s46, 1.0'); a('s_mov_b32 s47, 1.0')
    a(f'v_mov_b32 v2, {fh(GC1)}'); a(f'v_mov_b32 v3, {fh(GC1)}')
    ACC, AR, NA = 128, 24, 6
    pipe = LdsPipe(a)
    steps = [(s, k, ct) for s in range(8) for k in range(4) for ct in range(7)]
    tok = {}; nxt = [0]; avail = [0]
    def rd(n):
        s, k, ct = steps[n]; sl = s % NSLOT
        d = AR + 4*(n % NA)
        for jj in range(2):
            off = (sl & 1)*SLOT + (16*k + 4*jj)*224 + 32*ct
            tok[n] = pipe.issue(f'ds_read_b64_tr_b16 v[{d+2*jj}:{d+2*jj+1}], v{16+(sl>>1)} offset:{off}')
    def pump(cur):
        while nxt[0] < len(steps) and nxt[0] < cur + NA and steps[nxt[0]][0] <= avail[0] and pipe.outstanding() <= 12:
            rd(nxt[0]); nxt[0] += 1
            if nxt[0] > cur + 2: break
    vm.need(htok[0])
    a('s_barrier')
    stamp(a, 3, 1, P)
    for n in range(NA-1): rd(n)
    nxt[0] = NA-1
    for n, (s, k, ct) in enumerate(steps):
        if k == 3 and ct == 7-NA and s < 7:
            vm.need(htok[s+1])
            a('s_barrier')
            avail[0] = s+1
            stamp(a, 3, 2+s, P)
            if 1 <= s and s+4 < 8: issue_stage(s+4)
        pipe.need(tok[n])
        d = ACC+16*ct; c = '0' if (s == 0 and k == 0) else f'v[{d}:{d+15}]'
        sa = AR+4*(n % NA); ks = 4*s+k
        a(f'v_mfma_f32_32x32x16_bf16 v[{d}:{d+15}], v[{sa}:{sa+3}], a[{4*ks}:{4*ks+3}], {c}')
        pump(n+1)
    stamp(a, 3, 9, P)
    for ct in range(7):
        o = 64 + 4*(ct & 1)
        geglu(a, ACC+16*ct, 48, o)
        so = 's35' if ct < 4 else 's38'
        if ct == 0: a('s_add_u32 s38, s35, 0x1000')
        a(f'buffer_store_dwordx4 v[{o}:{o+3}], v15, s[20:23], {so} offen offset:{1024*(ct&3)}')
    if P.get('stamps'): a('s_waitcnt vmcnt(0)')
    stamp(a, 3, 10, P)
    flush(a, 3, P)
    a.label('L_k4_end')
    a('s_endpgm')
    return dict(grid=256, block=256, lds=NSLOT*SLOT, vgpr=256+128, accum=256)

PS = 272
def k5(a, P):
    a('s_cmp_ge_u32 s2, 256')
    a('s_cbranch_scc1 L_k5_end')
    if P.get('stamps'): a('v_mov_b32 v253, v0')
    stamp(a, 4, 0, P)
    a(f's_load_dwordx2 s[4:5], s[0:1], {A_WD}')
    a(f's_load_dwordx2 s[6:7], s[0:1], {A_OUT}')
    a(f's_load_dwordx2 s[10:11], s[0:1], {A_WS}')
    a('v_lshrrev_b32 v2, 6, v0')
    a('v_and_b32 v1, 63, v0')
    a('v_readfirstlane_b32 s3, v2')
    a('s_mov_b32 s40, 0xffff0000')
    a('s_bfe_u32 s30, s2, 0x20001')
    a('s_lshl_b32 s30, s30, 3')
    a('s_bfe_u32 s31, s2, 0x30003')
    a('s_or_b32 s30, s30, s31')
    a('s_and_b32 s31, s2, 1')
    a('s_lshl_b32 s31, s31, 2')
    a('s_lshr_b32 s32, s2, 6')
    a('s_or_b32 s31, s31, s32')
    a('s_mul_i32 s33, s30, 224')
    a('s_mul_i32 s34, s3, 28')
    a('s_add_u32 s33, s33, s34')
    a('s_lshl_b32 s33, s33, 10')
    a(f's_add_u32 s35, s33, {112*1024}')
    a('s_lshl_b32 s34, s34, 14')
    a('s_lshl_b32 s36, s31, 7')
    a('s_add_u32 s34, s34, s36')
    a('s_lshl_b32 s37, s3, 15')
    a('v_lshrrev_b32 v4, 3, v1')
    a('v_bfe_u32 v5, v1, 4, 1')
    a('v_lshlrev_b32 v5, 2, v5')
    a('v_and_b32 v6, 7, v1')
    a('v_xor_b32 v5, v5, v6')
    a('v_lshlrev_b32 v5, 4, v5')
    a('v_lshl_add_u32 v8, v4, 10, v5')
    a(f'v_add_u32 v9, {8192-1024}, v8')
    a('v_lshlrev_b32 v15, 4, v1')
    a('v_lshrrev_b32 v4, 3, v0')
    a('v_lshlrev_b32 v10, 10, v4')
    a('v_lshl_add_u32 v10, v6, 4, v10')
    a('s_lshl_b32 s38, s30, 16')
    a('s_add_u32 s38, s38, s36')
    a('s_add_u32 s39, s38, 0x8000')
    a('v_lshlrev_b32 v11, 4, v6')
    a('s_waitcnt lgkmcnt(0)')
    srd(a, 12, 4, 1792*1024); srd(a, 16, 10, 0x700000, ACT); srd(a, 20, 10, 0x200000, X1)
    srd(a, 24, 6, 0x200000); srd(a, 44, 10, 1024, MOD + 5*1024)
    vm = VmPipe(a)
    vm.issue('buffer_load_dwordx4 v[112:115], v10, s[20:23], s38 offen')
    vm.issue('buffer_load_dwordx4 v[116:119], v10, s[20:23], s39 offen')
    vm.issue('buffer_load_dwordx4 v[120:123], v11, s[44:47], s36 offen')
    vtok = {}
    def issue_step(i):
        a(f's_add_u32 m0, s37, {2048*(i & 15)}')
        vm.issue('buffer_load_dwordx4 v8, s[12:15], s34 offen lds')
        vm.issue('buffer_load_dwordx4 v9, s[12:15], s34 offen offset:1024 lds')
        a('s_add_u32 s34, s34, 0x4000')
        vm.issue(f'buffer_load_dwordx4 a[{8*i}:{8*i+3}], v15, s[16:19], s33 offen offset:{1024*(i&3)}')
        vtok[i] = vm.issue(f'buffer_load_dwordx4 a[{8*i+4}:{8*i+7}], v15, s[16:19], s35 offen offset:{1024*(i&3)}')
        if (i & 3) == 3:
            a('s_add_u32 s33, s33, 0x1000'); a('s_add_u32 s35, s35, 0x1000')
    DEPTH = 14
    for i in range(DEPTH): issue_step(i)
    a('v_lshrrev_b32 v4, 5, v1')
    a('v_lshlrev_b32 v4, 2, v4')
    a('v_bfe_u32 v5, v1, 2, 2')
    a('v_add_u32 v4, v4, v5')
    a('v_lshlrev_b32 v4, 7, v4')
    a('v_bfe_u32 v5, v1, 3, 1')
    a('v_lshl_add_u32 v4, v5, 6, v4')
    a('v_bfe_u32 v5, v1, 4, 1')
    a('v_lshl_add_u32 v4, v5, 5, v4')
    a('v_and_b32 v5, 3, v1')
    a('v_lshl_add_u32 v4, v5, 3, v4')
    a('v_add_u32 v16, s37, v4')
    a('v_xor_b32 v17, 64, v16')
    a('v_and_b32 v4, 31, v1')
    a(f'v_mul_u32_u24 v4, {PS}, v4')
    a('v_lshrrev_b32 v5, 5, v1')
    a('v_lshl_add_u32 v4, v5, 4, v4')
    a('v_add_u32 v18, s37, v4')
    a('v_lshrrev_b32 v4, 3, v0')
    a(f'v_mul_u32_u24 v4, {PS}, v4')
    a('v_lshl_add_u32 v19, v6, 5, v4')
    a('v_add_u32 v20, 0x10000, v19')
    ACC, AR = 48, 24
    pipe = LdsPipe(a); tok = {}
    def rd(i):
        d = AR + 8*(i % 3)
        for mt in range(2):
            for jj in range(2):
                tok[(i, mt)] = pipe.issue(f'ds_read_b64_tr_b16 v[{d+4*mt+2*jj}:{d+4*mt+2*jj+1}], v{16+mt} offset:{2048*(i&15)+1024*jj}')
    vm.need(vtok[0]); rd(0)
    vm.need(vtok[1]); rd(1)
    for i in range(28):
        if i % 4 == 0: stamp(a, 4, 1 + i//4, P)
        d0 = AR + 8*(i % 3)
        for mt in range(2):
            pipe.need(tok[(i, mt)])
            for nt in range(2):
                d = ACC + 32*mt + 16*nt; c = '0' if i == 0 else f'v[{d}:{d+15}]'
                a(f'v_mfma_f32_32x32x16_bf16 v[{d}:{d+15}], v[{d0+4*mt}:{d0+4*mt+3}], a[{8*i+4*nt}:{8*i+4*nt+3}], {c}')
                if mt == 0 and nt == 0 and i+2 < 28:
                    vm.need(vtok[i+2]); rd(i+2)
                if mt == 1 and nt == 0 and i+DEPTH < 28:
                    issue_step(i+DEPTH)
    stamp(a, 4, 8, P)
    for mt in range(2):
        for nt in range(2):
            for g in range(4):
                d = ACC + 32*mt + 16*nt + 4*g
                a(f'ds_write_b128 v18, v[{d}:{d+3}] offset:{nt*32*PS + mt*128 + g*32}')
    unpack8(a, 124, 120, 40)
    a('s_waitcnt lgkmcnt(0)')
    a('s_barrier')
    for jj in range(2):
        for w in range(4):
            for e in range(2):
                d = 48 + 32*jj + 8*w + 4*e
                a(f'ds_read_b128 v[{d}:{d+3}], v{19+(w>>1)} offset:{(w&1)*32768 + jj*32*PS + 16*e}')
        if jj == 0: unpack8(a, 24, 112, 40)
        else: unpack8(a, 32, 116, 40)
    for jj in range(2):
        b = 48 + 32*jj
        a(f's_waitcnt lgkmcnt({8-8*jj})')
        for p in range(4): a(f'v_pk_add_f32 v[{b+2*p}:{b+2*p+1}], v[{b+2*p}:{b+2*p+1}], v[{b+8+2*p}:{b+9+2*p}]')
        for p in range(4): a(f'v_pk_add_f32 v[{b+16+2*p}:{b+17+2*p}], v[{b+16+2*p}:{b+17+2*p}], v[{b+24+2*p}:{b+25+2*p}]')
        for p in range(4): a(f'v_pk_add_f32 v[{b+2*p}:{b+2*p+1}], v[{b+2*p}:{b+2*p+1}], v[{b+16+2*p}:{b+17+2*p}]')
        x = 24 + 8*jj
        for p in range(4): a(f'v_pk_fma_f32 v[{b+2*p}:{b+2*p+1}], v[{b+2*p}:{b+2*p+1}], v[{124+2*p}:{125+2*p}], v[{x+2*p}:{x+2*p+1}]')
        for p in range(4): a(f'v_cvt_pk_bf16_f32 v{40+4*jj+p}, v{b+2*p}, v{b+2*p+1}')
        a(f'buffer_store_dwordx4 v[{40+4*jj}:{43+4*jj}], v10, s[24:27], s{38+jj} offen')
    if P.get('stamps'): a('s_waitcnt vmcnt(0)')
    stamp(a, 4, 9, P)
    flush(a, 4, P)
    a.label('L_k5_end')
    a('s_endpgm')
    return dict(grid=256, block=256, lds=131072, vgpr=256+224, accum=256)
```

```python
from collections import deque
from asmlib import *
from k123 import fh, lo, hi, unpack8, ln_stats, LdsPipe, A_OUT, A_WS
from k45 import VmPipe, GC1, GC2, geglu
from cde import zipl, gelu_ops, cost

UT, YT, X1, H2, ACT, MODT, EPOCH, FLG, TS = 0, 0x400000, 0x800000, 0xA00000, 0xC00000, 0x1300000, 0x1308000, 0x1310000, 0x1400000
P1U = 49280
SEG = [(0, 98432, 129152), (15, 0, 49280), (27, 24576, 73856)]
CB, CHS, KB, U0, U1 = 98432, 12992, 512, 4608, 8768
PB = CB + 2*CHS
PRM = PB + 32768
MPART = PRM + 6144
XG = 129152 + 112*128
YS = 1040
XH = XG + 8*YS
PS = 272
SPIN = 1 << 15
WBL = [5, 11, 12, 13, 16, 14, 15, 17, 18, 19, 0, 1, 6, 7, 2, 3, 4, 8, 9, 10]
WAV = [2, 5, 10, 14, 20]
assert MPART + 512 <= 163840 and XH + 8192 <= 163840
def seg_of(k): return SEG[0] if k < 15 else SEG[1] if k < 27 else SEG[2]

def base(a, d, p, n):
    a(f's_mov_b32 s{d}, s{p}'); a(f's_mov_b32 s{d+1}, s{p+1}'); a(f's_mov_b32 s{d+2}, {hex(n)}')

def mega(a, P):
    marks = set()
    def stamp(slot):
        if P.get('stamps'):
            a(f's_memrealtime s[{60+2*slot}:{61+2*slot}]'); marks.add(slot)
    vm = VmPipe(a)
    def poll(name, loads, tags, pre=None):
        a(f's_mov_b32 s51, {SPIN}')
        if pre is not None:
            vm.need(pre)
            a(f's_branch L_{name}_chk')
        a.label(f'L_{name}')
        for l in loads: a(l)
        a('s_waitcnt vmcnt(0)')
        a.label(f'L_{name}_chk')
        a(f'v_cmp_ne_u32 vcc, s50, v{tags[0]}')
        for i, t in enumerate(tags[1:]): a(f'v_cmp_ne_u32 s[{92+2*i}:{93+2*i}], s50, v{t}')
        a('s_sub_u32 s51, s51, 1')
        a(f's_cbranch_scc1 L_{name}_ok')
        for i in range(len(tags)-1): a(f's_or_b64 vcc, vcc, s[{92+2*i}:{93+2*i}]')
        a(f's_cbranch_vccnz L_{name}')
        a.label(f'L_{name}_ok')
        if pre is None: vm.done = vm.issued

    a('s_cmp_ge_u32 s2, 256')
    a('s_cbranch_scc1 L_end')
    stamp(0)
    a('s_load_dwordx16 s[64:79], s[0:1], 0')
    a(f's_load_dwordx2 s[58:59], s[0:1], {A_WS}')
    a('s_load_dwordx8 s[80:87], s[0:1], 64')
    a(f's_load_dwordx2 s[56:57], s[0:1], {A_OUT}')
    a('v_lshrrev_b32 v2, 6, v0')
    a('v_and_b32 v1, 63, v0')
    a('v_readfirstlane_b32 s3, v2')
    a('s_mov_b32 s40, 0xffff0000')
    a('s_and_b32 s28, s2, 7')
    a('s_lshr_b32 s29, s2, 3')
    a('s_lshl_b32 s32, s28, 5')
    a('s_or_b32 s32, s32, s29')
    a('v_and_b32 v3, 31, v0')
    a('v_lshrrev_b32 v2, 5, v0')
    a('s_lshl_b32 s33, s29, 6')
    a('v_lshl_add_u32 v4, v2, 3, s33')
    a('s_lshl_b32 s33, s28, 7')
    a('v_lshl_add_u32 v5, v3, 2, s33')
    a('v_lshl_add_u32 v5, v4, 10, v5')
    a('v_subrev_u32 v4, 0x1000, v5')
    a('s_lshl_b32 s33, s28, 9')
    a('v_lshl_add_u32 v13, v3, 4, s33')
    a('s_movk_i32 s35, 0x1000')
    a('s_mov_b32 s15, 0x20000'); a('s_mov_b32 s27, 0x20000'); a('s_mov_b32 s19, 0x20000')
    a('s_mov_b32 s23, 0x20000'); a('s_mov_b32 s11, 0x20000'); a('s_mov_b32 s55, 0x20000')
    a('v_lshlrev_b32 v15, 4, v1')
    a('v_lshlrev_b32 v14, 4, v0')
    a('s_waitcnt lgkmcnt(0)')
    base(a, 12, 70, 4096)
    base(a, 24, 68, 0x200000)
    tsh = vm.issue('buffer_load_dwordx4 v[48:51], v13, s[12:15], 0 offen')
    base(a, 12, 66, 0x200000)
    for i in range(4): vm.issue(f'buffer_load_dword v{24+i}, v4, s[12:15], 0 offen offset:{1024*i}')
    tk = {0: vm.issue('buffer_load_dword v36, v4, s[24:27], 0 offen offset:3072')}
    for i in range(8):
        so = 's35' if i >= 4 else '0'
        vm.issue(f'buffer_load_dword v{28+i}, v5, s[12:15], {so} offen offset:{1024*(i&3)}')
        tk[i+1] = vm.issue(f'buffer_load_dword v{37+i}, v5, s[24:27], {so} offen offset:{1024*(i&3)}')
    a(f's_add_u32 s4, s58, {hex(EPOCH)}')
    a('s_addc_u32 s5, s59, 0')
    a('s_load_dword s50, s[4:5], 0')
    a('s_lshl_b32 s33, s32, 2')
    a('s_add_u32 s6, s74, s33')
    a('s_addc_u32 s7, s75, 0')
    a('s_load_dword s34, s[6:7], 0')
    base(a, 12, 72, 0x200000)
    a('s_lshl_b32 s33, s32, 13')
    a('s_add_u32 s36, s33, 0x1000')
    vm.issue('buffer_load_dwordx4 v[146:149], v14, s[12:15], s33 offen')
    tsk = vm.issue('buffer_load_dwordx4 v[150:153], v14, s[12:15], s36 offen')
    a('s_lshr_b32 s30, s2, 5')
    a('s_lshl_b32 s30, s30, 3')
    a('s_or_b32 s30, s30, s28')
    a('s_lshl_b32 s30, s30, 2')
    a('s_and_b32 s31, s29, 3')
    a('s_or_b32 s46, s30, s31')
    a('s_lshl_b32 s30, s46, 5')
    a('v_and_b32 v16, 1, v0')
    a('v_lshrrev_b32 v17, 1, v0')
    a('v_mul_u32_u24 v18, 0x6000, v17')
    a('v_lshl_add_u32 v18, v16, 4, v18')
    a('v_lshlrev_b32 v17, 3, v17')
    base(a, 12, 84, 1024)
    tc = vm.issue('buffer_load_dwordx2 v[144:145], v17, s[12:15], 0 offen')
    base(a, 12, 86, 512*6144)
    a('s_cmp_lt_u32 s2, 192')
    a('s_cselect_b32 s14, s14, 0')
    twm = []
    for r in range(4):
        twm.append(vm.issue(f'buffer_load_dwordx4 v[{128+4*r}:{131+4*r}], v18, s[12:15], s30 offen'))
        if r < 3: a('s_add_u32 s30, s30, 0x1800')
    base(a, 12, 64, 0x200000)
    a('s_lshl_b32 s36, s3, 11')
    a('s_add_u32 s33, s33, s36')
    vm.issue('buffer_load_dwordx4 v[232:235], v15, s[12:15], s33 offen')
    tx = vm.issue('buffer_load_dwordx4 v[236:239], v15, s[12:15], s33 offen offset:1024')
    a('s_and_b32 s30, s2, 1')
    a('s_lshl_b32 s30, s30, 3')
    a('s_and_b32 s47, s29, 7')
    a('s_or_b32 s30, s30, s47')
    a('s_bfe_u32 s31, s2, 0x20001')
    a('s_lshl_b32 s31, s31, 2')
    a('s_lshr_b32 s36, s2, 6')
    a('s_or_b32 s31, s31, s36')
    a('s_lshr_b32 s38, s3, 1')
    a('s_and_b32 s39, s3, 1')
    a('s_cmp_eq_u32 s38, 0')
    a('s_cselect_b32 s20, s78, s80')
    a('s_cselect_b32 s21, s79, s81')
    a(f's_mov_b32 s22, {512*3584}')
    base(a, 8, 82, 1792*1024)
    base(a, 16, 58, TS)
    a(f's_add_u32 s52, s58, {hex(FLG)}')
    a('s_addc_u32 s53, s59, 0')
    a('s_movk_i32 s54, 0x3000')
    for i in range(3):
        a(f'v_add_u32 v4, {64*i}, v1')
        a('v_mul_u32_u24 v5, 0x2aab, v4')
        a('v_lshrrev_b32 v5, 16, v5')
        a(f'v_mul_u32_u24 v5, {3584-96}, v5')
        a(f'v_lshl_add_u32 v{10+i}, v4, 4, v5')
        if i: a(f'v_subrev_u32 v{10+i}, {1024*i}, v{10+i}')
    a(f's_mul_i32 s41, s39, {32*3584}')
    a('s_mul_i32 s43, s31, 96')
    a('s_add_u32 s41, s41, s43')
    a('s_add_u32 s41, s41, 0x800')
    a('s_mul_i32 s43, s39, 3072')
    a(f's_mul_i32 s42, s38, {P1U}')
    a('s_add_u32 s42, s42, s43')
    early = deque()
    def p1dma(i):
        if i == 0:
            a('s_mul_i32 s36, s47, 6144')
            a(f's_mul_i32 s37, s47, {64*3584}')
            a('s_add_u32 m0, s36, s42')
            a('s_add_u32 s37, s37, s41')
        vm.issue(f'buffer_load_dwordx4 v{10+i}, s[20:23], s37 offen offset:{1024*i} lds')
        if i == 2:
            a('s_add_u32 s47, s47, 1'); a('s_and_b32 s47, s47, 7')
    for m in range(8):
        for i in range(3): early.append(lambda i=i: p1dma(i))
    for _ in range(P.get('e0', 9)): early.popleft()()
    a('v_lshrrev_b32 v4, 3, v1')
    a('v_bfe_u32 v5, v1, 4, 1')
    a('v_lshlrev_b32 v5, 2, v5')
    a('v_and_b32 v6, 7, v1')
    a('v_xor_b32 v5, v5, v6')
    a('v_lshlrev_b32 v5, 4, v5')
    a('v_lshl_add_u32 v8, v4, 10, v5')
    a(f'v_add_u32 v9, {8192-1024}, v8')
    a('s_lshl_b32 s43, s38, 5')
    a('v_xor_b32 v5, s43, v5')
    a('v_mul_u32_u24 v7, 0xe00, v4')
    a('v_add_u32 v7, v7, v5')
    a(f's_mul_i32 s48, s39, {8*3584}')
    a('s_lshl_b32 s43, s31, 7')
    a('s_add_u32 s48, s48, s43')
    a('s_lshl_b32 s43, s39, 10')
    a(f's_mul_i32 s49, s38, {SEG[0][2]-SEG[0][1]}')
    a('s_add_u32 s49, s49, s43')
    a(f's_mul_i32 s38, s38, {P1U}')
    a('s_add_u32 s43, s43, s38')
    a('v_sub_u32 v4, 7, v2')
    a('v_lshlrev_b32 v4, 2, v4')
    a('v_lshl_add_u32 v4, v3, 5, v4')
    a('v_xor_b32 v4, v4, v6')
    for g in range(4):
        a(f'v_xor_b32 v5, {g}, v4')
        a(f'v_lshlrev_b32 v5, 4, v5')
        a(f'v_add_u32 v{120+g}, {PB}, v5')
    a('v_lshrrev_b32 v4, 5, v1')
    a('v_xor_b32 v5, v4, v1')
    a('s_lshl_b32 s36, s3, 12')
    a(f's_add_u32 s36, s36, {PB}')
    for j in range(4):
        a(f'v_xor_b32 v13, {2*j}, v5')
        a(f'v_lshl_add_u32 v{124+j}, v13, 4, s36')
    a('v_and_b32 v5, 31, v1')
    a('v_lshlrev_b32 v5, 4, v5')
    a('v_lshl_add_u32 v13, v4, 14, v5')
    a('s_lshl_b32 s36, s28, 5')
    a('s_lshl_b32 s35, s3, 3')
    a('s_add_u32 s36, s36, s35')
    a('s_lshl_b32 s36, s36, 14')
    a('s_sub_u32 s35, 31, s29')
    a('s_lshl_b32 s35, s35, 9')
    a('s_add_u32 s35, s35, s36')
    a('s_waitcnt lgkmcnt(0)')
    a('s_mul_i32 s50, s50, 1664525')
    a('s_add_u32 s50, s50, 1013904223')
    a('v_mov_b32 v21, 0')
    a('v_mov_b32 v20, s50')
    vm.need(tsh)
    lo(a, 52, 48); hi(a, 54, 48, 40); lo(a, 56, 49); hi(a, 58, 49, 40)
    lo(a, 53, 50); hi(a, 55, 50, 40); lo(a, 57, 51); hi(a, 59, 51, 40)
    vm.need(tk[0])
    stamp(1)
    for q in range(3):
        lo(a, 60+2*q, 24+q); hi(a, 61+2*q, 24+q, 40)
    for r in range(9):
        vm.need(tk[r])
        lo(a, 66+2*r, 27+r); hi(a, 67+2*r, 27+r, 40)
        lo(a, 84+2*r, 36+r); hi(a, 85+2*r, 36+r, 40)
        d = 102+2*r
        a(f'v_pk_mul_f32 v[{d}:{d+1}], v[{60+2*r}:{61+2*r}], v[58:59]')
        a(f'v_pk_fma_f32 v[{d}:{d+1}], v[{62+2*r}:{63+2*r}], v[56:57], v[{d}:{d+1}]')
        a(f'v_pk_fma_f32 v[{d}:{d+1}], v[{64+2*r}:{65+2*r}], v[54:55], v[{d}:{d+1}]')
        a(f'v_pk_fma_f32 v[{d}:{d+1}], v[{66+2*r}:{67+2*r}], v[52:53], v[{d}:{d+1}]')
        a(f'v_pk_mul_f32 v[{d}:{d+1}], v[{d}:{d+1}], v[{84+2*r}:{85+2*r}]')
    for c in range(2):
        R = lambda r: 102+2*max(r, 0)+c
        for h in range(2):
            q = 24+8*c+4*h; r = 8-4*h
            a(f'v_cvt_pk_bf16_f32 v{q}, v{R(r)}, v{R(r-1)}')
            a(f'v_cvt_pk_bf16_f32 v{q+1}, v{R(r-2)}, v{R(r-3)}')
            a(f'v_mov_b32 v{q+2}, s50')
            a(f'v_cvt_pk_bf16_f32 v{q+3}, v{R(r-4)}, v{R(r-5)}')
            a(f'ds_write_b128 v{120+2*c+h}, v[{q}:{q+3}]')
    a('s_waitcnt lgkmcnt(0)')
    a('s_barrier')
    for j in range(4): a(f'ds_read_b128 v[{24+4*j}:{27+4*j}], v{124+j} offset:{1024*j}')
    for j in range(4):
        a(f's_waitcnt lgkmcnt({3-j})')
        vm.issue(f'buffer_store_dwordx4 v[{24+4*j}:{27+4*j}], v13, s[16:19], s35 offen sc1')
        if j < 3: a('s_add_u32 s35, s35, 0x8000')
    stamp(2)
    for i in range(4): a(f'v_mov_b32 v{40+i}, 0')
    a(f'v_add_u32 v14, {CB}, v14')
    a('v_cmp_gt_u32 vcc, 32, v0')
    a('s_and_saveexec_b64 s[36:37], vcc')
    a('s_cbranch_execz L_nz')
    a('ds_write_b128 v14, v[40:43]')
    a(f'ds_write_b128 v14, v[40:43] offset:{CHS}')
    a('v_cmp_gt_u32 vcc, 2, v0')
    a('s_and_b64 exec, exec, vcc')
    for c in range(2):
        a(f'ds_write_b128 v14, v[40:43] offset:{c*CHS+U0+4096}')
        a(f'ds_write_b128 v14, v[40:43] offset:{c*CHS+U1+4096}')
    a.label('L_nz')
    a('s_mov_b64 exec, s[36:37]')
    a('v_cmp_eq_u32 s[36:37], 0, v0')
    a('s_lshl_b32 s4, s34, 16')
    a('s_and_b32 s5, s34, 0xffff0000')
    a('s_mov_b32 s6, 0xffff')
    vm.need(tsk)
    for c in range(2):
        kx = 146+4*c
        lo(a, 44, kx)
        a(f'v_add_f32 v44, s{4+c}, v44')
        a('v_cvt_pk_bf16_f32 v44, v44, v44')
        a(f'v_bfi_b32 v44, s6, v44, v{kx}')
        a(f'v_cndmask_b32 v{kx}, v{kx}, v44, s[36:37]')
        a(f'ds_write_b128 v14, v[{kx}:{kx+3}] offset:{c*CHS+KB}')
    vm.need(tc)
    lo(a, 44, 144); hi(a, 45, 144, 40); lo(a, 46, 145); hi(a, 47, 145, 40)
    for r in range(4): a(f'v_mul_f32 v{48+r}, {fh(-1.4426950408889634)}, v{44+r}')
    for r in range(4): a(f'v_exp_f32 v{48+r}, v{48+r}')
    for r in range(4): a(f'v_add_f32 v{48+r}, 1.0, v{48+r}')
    for r in range(4): a(f'v_rcp_f32 v{48+r}, v{48+r}')
    for r in range(4): a(f'v_mul_f32 v{44+r}, v{44+r}, v{48+r}')
    a('v_cvt_pk_bf16_f32 v48, v44, v45')
    a('v_cvt_pk_bf16_f32 v49, v46, v47')
    lo(a, 44, 48); hi(a, 45, 48, 40); lo(a, 46, 49); hi(a, 47, 49, 40)
    for r in range(4):
        vm.need(twm[r])
        unpack8(a, 52, 128+4*r, 40)
        sel = 'op_sel:[0,0,0] op_sel_hi:[1,0,1]' if r % 2 == 0 else 'op_sel:[0,1,0] op_sel_hi:[1,1,1]'
        sp = 44 + (r & 2)
        for j in range(4):
            if r == 0:
                a(f'v_pk_mul_f32 v[{60+2*j}:{61+2*j}], v[{52+2*j}:{53+2*j}], v[{sp}:{sp+1}] op_sel:[0,0] op_sel_hi:[1,0]')
            else:
                a(f'v_pk_fma_f32 v[{60+2*j}:{61+2*j}], v[{52+2*j}:{53+2*j}], v[{sp}:{sp+1}], v[{60+2*j}:{61+2*j}] {sel}')
    a('s_lshl_b32 s35, s32, 14')
    a('s_lshl_b32 s36, s3, 12')
    a('s_add_u32 s35, s35, s36')
    uloads = [f'buffer_load_dwordx4 v[{24+4*j}:{27+4*j}], v15, s[16:19], s35 offen offset:{1024*j} sc1' for j in range(4)]
    for l in uloads: tu = vm.issue(l)
    for ctl in ('quad_perm:[2,3,0,1]', 'row_ror:4', 'row_ror:8'):
        for j in range(8):
            a(f'v_add_f32_dpp v{60+j}, v{60+j}, v{60+j} {ctl} row_mask:0xf bank_mask:0xf')
    for j in range(4): a(f'v_permlane32_swap_b32 v{60+j}, v{64+j}')
    for j in range(4): a(f'v_add_f32 v{60+j}, v{60+j}, v{64+j}')
    a('v_bfe_u32 v4, v1, 4, 1')
    a('v_lshlrev_b32 v4, 6, v4')
    a('v_lshl_add_u32 v4, v16, 5, v4')
    a('v_lshrrev_b32 v5, 5, v1')
    a('v_lshl_add_u32 v4, v5, 4, v4')
    a('s_lshl_b32 s36, s3, 7')
    a(f's_add_u32 s36, s36, {MPART}')
    a('v_add_u32 v4, s36, v4')
    a('v_and_b32 v5, 14, v1')
    a('v_cmp_eq_u32 vcc, 0, v5')
    a('s_and_saveexec_b64 s[36:37], vcc')
    a('ds_write_b128 v4, v[60:63]')
    a('s_mov_b64 exec, s[36:37]')
    a('v_bfe_u32 v4, v1, 1, 1')
    a(f'v_mul_u32_u24 v4, {CHS}, v4')
    a('v_lshrrev_b32 v5, 2, v1')
    a('v_lshl_add_u32 v4, v5, 4, v4')
    a('v_lshl_add_u32 v4, v16, 3, v4')
    a('s_lshl_b32 s36, s3, 10')
    a(f's_add_u32 s36, s36, {CB}')
    a('v_add_u32 v14, s36, v4')
    a('s_lshr_b32 s36, s3, 1')
    a(f's_mul_i32 s36, s36, {CHS}')
    a('s_xor_b32 s38, s39, 1')
    a('s_lshl_b32 s38, s38, 6')
    a('s_add_u32 s36, s36, s38')
    a(f's_add_u32 s36, s36, {CB}')
    a('v_and_b32 v3, 15, v0')
    a('v_bfe_u32 v4, v0, 4, 2')
    a('v_lshlrev_b32 v5, 4, v4')
    a('v_lshl_add_u32 v22, v3, 5, v5')
    a(f's_add_u32 s38, s36, {KB-480}')
    a('v_add_u32 v22, s38, v22')
    a('v_and_b32 v23, 14, v3')
    a('v_lshlrev_b32 v23, 1, v23')
    a('v_sub_u32 v23, v5, v23')
    a(f'v_mul_u32_u24 v5, {U1-U0}, v16')
    a('v_sub_u32 v23, v23, v5')
    a(f's_add_u32 s38, s36, {U1+28}')
    a('v_add_u32 v16, s38, v23')
    for i in range(1, 4): a(f'v_add_u32 v{16+i}, {1024*i}, v16')
    a('v_bfe_u32 v5, v3, 1, 2')
    a('v_xor_b32 v5, v5, v4')
    a('v_lshl_add_u32 v5, v3, 2, v5')
    a('s_lshl_b32 s38, s3, 13')
    a(f's_add_u32 s38, s38, {PB}')
    a('v_lshl_add_u32 v23, v5, 4, s38')
    poll('ut', uloads, [26, 30, 34, 38], pre=tu)
    stamp(3)
    for j in range(4):
        q = 24+4*j
        a(f'ds_write_b64 v14, v[{q}:{q+1}] offset:{U0+256*j}')
        a(f'v_alignbit_b32 v{40+2*j}, v{q+1}, v{q}, 16')
        a(f'v_alignbit_b32 v{41+2*j}, v{q+3}, v{q+1}, 16')
        a(f'ds_write_b64 v14, v[{40+2*j}:{41+2*j}] offset:{U1+256*j}')
    a('s_waitcnt lgkmcnt(0)')
    a('s_barrier')
    stamp(4)
    a('s_cmp_lg_u32 s3, 0')
    a('s_cbranch_scc1 L_nomod')
    a('s_cmp_ge_u32 s2, 192')
    a('s_cbranch_scc1 L_nomod')
    a('v_lshlrev_b32 v5, 7, v4')
    a('v_lshl_add_u32 v5, v3, 2, v5')
    a(f'v_add_u32 v5, {MPART}, v5')
    a('ds_read2_b32 v[24:25], v5 offset0:0 offset1:16')
    a('s_lshr_b32 s36, s46, 5')
    a('s_cmp_eq_u32 s36, 1')
    a('s_cselect_b32 s38, 1.0, 0')
    a('s_cmp_eq_u32 s36, 4')
    a('s_cselect_b32 s38, 1.0, s38')
    a('s_lshl_b32 s36, s46, 6')
    a(f's_add_u32 s36, s36, {hex(MODT)}')
    a('s_waitcnt lgkmcnt(0)')
    a('v_add_f32 v24, v24, v25')
    a('v_mov_b32 v25, v24')
    a('v_permlane16_swap_b32 v24, v25')
    a('v_add_f32 v24, v24, v25')
    a('v_mov_b32 v25, v24')
    a('v_permlane32_swap_b32 v24, v25')
    a('v_add_f32 v24, v24, v25')
    a('v_cvt_pk_bf16_f32 v24, v24, v24')
    lo(a, 24, 24)
    a('v_add_f32 v24, s38, v24')
    for i in range(4): a(f'v_mov_b32_dpp v{26+i}, v24 quad_perm:[{i},{i},{i},{i}] row_mask:0xf bank_mask:0xf')
    a('v_cvt_pk_bf16_f32 v32, v26, v27')
    a('v_cvt_pk_bf16_f32 v33, v28, v29')
    a('v_mov_b32 v34, s50')
    a('v_mov_b32 v35, s50')
    a('v_lshlrev_b32 v5, 2, v1')
    a('s_mov_b64 exec, 0x1111')
    a('buffer_store_dwordx4 v[32:35], v5, s[16:19], s36 offen sc1')
    a('s_mov_b64 exec, -1')
    a.label('L_nomod')
    ACC, AR, BR = 40, 72, 104
    pipe = LdsPipe(a)
    reads = []
    for i in range(32):
        o = 32*((31-i) & 7); b = 16 + ((31-i) >> 3); d = AR + 4*(i & 7)
        reads.append((('A', i, 0), f'ds_read2_b32 v[{d}:{d+1}], v{b} offset0:{o} offset1:{o+1}'))
        reads.append((('A', i, 1), f'ds_read2_b32 v[{d+2}:{d+3}], v{b} offset0:{o+2} offset1:{o+3}'))
        if i < 4:
            for t in range(8):
                j = 4*t+3-i
                reads.append((('B', j), f'ds_read_b128 v[{BR+4*j}:{BR+4*j+3}], v22 offset:{128*j}'))
    tok = {}; nxt = [0]
    def pump(cur_step, maxn):
        n = 0
        while n < maxn and nxt[0] < len(reads) and pipe.outstanding() < 13:
            key, line = reads[nxt[0]]
            if key[0] == 'A' and key[1] >= cur_step + 8: break
            tok[key] = pipe.issue(line); nxt[0] += 1; n += 1
    pump(0, 12)
    a('s_lshl_b32 s35, s3, 10')
    a(f's_add_u32 s35, s35, {hex(MODT)}')
    a('s_add_u32 s34, s35, 0x1000')
    a('s_add_u32 s36, s35, 0x2000')
    a('s_mov_b32 s4, s36')
    mloads = [f'buffer_load_dwordx4 v[{24+4*r}:{27+4*r}], v15, s[16:19], s{(35, 34, 4)[r]} offen sc1' for r in range(3)]
    pending = []; nm = 0
    NB = P.get('e1', 15); EV = P.get('ev', 6)
    for i in range(32):
        for t in range(i >> 2, 8):
            j = 4*t+3-i
            while ('B', j) not in tok or ('A', i, 1) not in tok:
                pipe.need(pipe.done + 2); pump(i, 2)
            pipe.need(max(tok[('A', i, 1)], tok[('B', j)]))
            d = ACC+4*t; c = '0' if i == 0 else f'v[{d}:{d+3}]'
            s = AR+4*(i & 7)
            a(f'v_mfma_f32_16x16x32_bf16 v[{d}:{d+3}], v[{s}:{s+3}], v[{BR+4*j}:{BR+4*j+3}], {c}')
            pump(i, 2 if i < 4 else 1)
            nm += 1
            if nm >= 24 and nm % EV == 0 and NB > 0 and early:
                early.popleft()(); NB -= 1
        if pending and pipe.outstanding() < 14:
            t = pending.pop()
            pipe.issue(f'ds_write_b128 v23, v[{ACC+4*t}:{ACC+4*t+3}] offset:{1024*t}')
        if (i & 3) == 3: pending.append(i >> 2)
        if i == P.get('mpre', 24):
            for l in mloads: tm = vm.issue(l)
    for t in pending:
        pipe.issue(f'ds_write_b128 v23, v[{ACC+4*t}:{ACC+4*t+3}] offset:{1024*t}')
    stamp(6)
    a('v_lshlrev_b32 v4, 3, v0')
    a(f'v_add_u32 v4, {PRM}, v4')
    a('v_lshrrev_b32 v2, 1, v0')
    a('v_bfe_u32 v3, v0, 4, 2')
    a('v_xor_b32 v2, v2, v3')
    a('v_lshlrev_b32 v2, 4, v2')
    a('v_and_b32 v3, 1, v0')
    a('v_lshl_add_u32 v2, v3, 3, v2')
    a(f'v_add_u32 v2, {PB}, v2')
    a('v_lshrrev_b32 v3, 2, v0')
    a('v_lshlrev_b32 v3, 14, v3')
    a('v_and_b32 v5, 3, v0')
    a('v_lshl_add_u32 v3, v5, 4, v3')
    a('s_lshl_b32 s38, s32, 6')
    a(f's_add_u32 s38, s38, {hex(YT)}')
    a(f'v_add_u32 v13, {PRM}, v15')
    a('s_and_b32 s36, s32, 7')
    a('s_lshl_b32 s36, s36, 7')
    a(f's_add_u32 s6, s36, {PRM+5120}')
    a('v_lshl_add_u32 v14, v6, 4, s6')
    poll('md', mloads, [26, 30, 34], pre=tm)
    for r in range(3): a(f'ds_write_b64 v4, v[{24+4*r}:{25+4*r}] offset:{2048*r}')
    a('s_waitcnt lgkmcnt(0)')
    a('s_barrier')
    for j in range(4):
        for w in range(4):
            a(f'ds_read_b64 v[{72+8*j+2*w}:{73+8*j+2*w}], v2 offset:{8192*w+2048*j}')
        if j == 2: a('s_waitcnt lgkmcnt(8)')
    for j in range(4):
        b = 72+8*j; q = 24+4*j
        if j: a(f's_waitcnt lgkmcnt({12-4*j})')
        a(f'v_pk_add_f32 v[{b}:{b+1}], v[{b}:{b+1}], v[{b+2}:{b+3}]')
        a(f'v_pk_add_f32 v[{b+4}:{b+5}], v[{b+4}:{b+5}], v[{b+6}:{b+7}]')
        a(f'v_mov_b32 v{q+2}, s50')
        a(f'v_mov_b32 v{q+3}, s50')
        a(f'v_cvt_pk_bf16_f32 v{q}, v{b}, v{b+4}')
        a(f'v_cvt_pk_bf16_f32 v{q+1}, v{b+1}, v{b+5}')
        vm.issue(f'buffer_store_dwordx4 v[{q}:{q+3}], v3, s[16:19], s38 offen sc1')
        if j < 3: a('s_add_u32 s38, s38, 0x100000')
    stamp(7)
    for i, off in enumerate((1024, 0, 2048, 4096, 3072)):
        a(f'ds_read_b128 v[{40+4*i}:{43+4*i}], v13 offset:{off}')
    a('ds_read_b128 v[124:127], v14')
    while early: early.popleft()()
    a('v_lshrrev_b32 v4, 2, v0')
    a(f'v_mul_u32_u24 v3, {2*YS}, v5')
    a('v_lshl_add_u32 v3, v4, 2, v3')
    a(f'v_add_u32 v3, {XG}, v3')
    a(f's_mul_i32 s46, s3, {2*YS}')
    a(f's_add_u32 s46, s46, {XG}')
    a('v_add_u32 v4, s46, v15')
    a('s_lshl_b32 s46, s3, 1')
    a('v_xor_b32 v5, s46, v6')
    a('v_lshlrev_b32 v5, 4, v5')
    a('v_lshl_add_u32 v5, v1, 7, v5')
    a(f'v_add_u32 v5, {XH}, v5')
    a('v_xor_b32 v16, 16, v5')
    a('v_lshrrev_b32 v17, 3, v1')
    a('v_xor_b32 v18, v17, v6')
    a('v_lshlrev_b32 v18, 4, v18')
    a('v_lshl_add_u32 v18, v17, 7, v18')
    a('s_lshl_b32 s46, s3, 11')
    a(f's_add_u32 s46, s46, {XH}')
    a('v_add_u32 v18, s46, v18')
    a('v_lshlrev_b32 v17, 9, v17')
    a('v_lshl_add_u32 v17, v6, 4, v17')
    a('s_lshr_b32 s46, s32, 2')
    a('s_lshl_b32 s46, s46, 15')
    a('s_and_b32 s47, s32, 3')
    a('s_lshl_b32 s47, s47, 7')
    a('s_add_u32 s46, s46, s47')
    a('s_lshl_b32 s47, s3, 13')
    a('s_add_u32 s46, s46, s47')
    a(f's_add_u32 s46, s46, {hex(H2)}')
    a('s_add_u32 s47, s46, 0x1000')
    a(f's_add_u32 s34, s33, {hex(X1)}')
    a('v_lshlrev_b32 v14, 4, v0')
    a('s_lshl_b32 s35, s32, 14')
    a(f's_add_u32 s35, s35, {hex(YT)}')
    for j in range(1, 4): a(f's_add_u32 s{3+j}, s35, {0x1000*j}')
    X = (64, 96)
    subs = []
    for t in range(2):
        s = Asm(); unpack8(s, X[t], 232+4*t, 40); ln_stats(s, X[t], X[t]+8, X[t]+16, 24+t)
        for p in range(4):
            s(f'v_pk_mul_f32 v[{X[t]+8+2*p}:{X[t]+9+2*p}], v[{X[t]+8+2*p}:{X[t]+9+2*p}], v[{X[t]+16}:{X[t]+17}] op_sel:[0,0] op_sel_hi:[1,0]')
        subs.append(s)
    zipl(a, *subs)
    yloads = [f'buffer_load_dwordx4 v[{24+4*j}:{27+4*j}], v14, s[16:19], s{(35, 4, 5, 6)[j]} offen sc1' for j in range(4)]
    for l in yloads: ty = vm.issue(l)
    a('s_waitcnt lgkmcnt(0)')
    unpack8(a, 128, 40, 40); unpack8(a, 136, 44, 40); unpack8(a, 144, 48, 40)
    for t in range(2):
        for p in range(4):
            d = X[t]+8+2*p
            a(f'v_pk_fma_f32 v[{d}:{d+1}], v[{d}:{d+1}], v[{128+2*p}:{129+2*p}], v[{136+2*p}:{137+2*p}]')
        for p in range(4):
            d = X[t]+8+2*p
            a(f'v_pk_mul_f32 v[{d}:{d+1}], v[{d}:{d+1}], v[{144+2*p}:{145+2*p}]')
    unpack8(a, 128, 52, 40); unpack8(a, 136, 56, 40)
    poll('yt', yloads, [26, 30, 34, 38], pre=ty)
    stamp(8)
    for j in range(4):
        a(f'ds_write_b32 v3, v{24+4*j} offset:{256*j}')
        a(f'ds_write_b32 v3, v{25+4*j} offset:{256*j+YS}')
    a('s_waitcnt lgkmcnt(0)')
    a('s_barrier')
    a('ds_read_b128 v[24:27], v4')
    a(f'ds_read_b128 v[28:31], v4 offset:{YS}')
    a('s_waitcnt lgkmcnt(0)')
    subs = []
    for t in range(2):
        s = Asm(); x = X[t]
        unpack8(s, x+20, 24+4*t, 40)
        for p in range(4):
            s(f'v_pk_fma_f32 v[{x+2*p}:{x+2*p+1}], v[{x+8+2*p}:{x+9+2*p}], v[{x+20+2*p}:{x+21+2*p}], v[{x+2*p}:{x+2*p+1}]')
        for j in range(4): s(f'v_cvt_pk_bf16_f32 v{32+4*t+j}, v{x+2*j}, v{x+2*j+1}')
        s(f'buffer_store_dwordx4 v[{32+4*t}:{35+4*t}], v15, s[16:19], s34 offen offset:{1024*t} sc1')
        unpack8(s, x, 32+4*t, 40)
        ln_stats(s, x, x+8, x+16, 24+t)
        for p in range(4):
            s(f'v_pk_mul_f32 v[{x+8+2*p}:{x+9+2*p}], v[{x+8+2*p}:{x+9+2*p}], v[{x+16}:{x+17}] op_sel:[0,0] op_sel_hi:[1,0]')
        for p in range(4):
            s(f'v_pk_fma_f32 v[{x+8+2*p}:{x+9+2*p}], v[{x+8+2*p}:{x+9+2*p}], v[{128+2*p}:{129+2*p}], v[{136+2*p}:{137+2*p}]')
        for j in range(4): s(f'v_cvt_pk_bf16_f32 v{40+4*t+j}, v{x+8+2*j}, v{x+9+2*j}')
        s(f'ds_write_b128 v{(5, 16)[t]}, v[{40+4*t}:{43+4*t}]')
        subs.append(s)
    zipl(a, *subs)
    vm.issued += 2
    a('s_waitcnt lgkmcnt(0)')
    a('s_barrier')
    a('ds_read_b128 v[24:27], v18')
    a('ds_read_b128 v[28:31], v18 offset:1024')
    a('s_lshl_b32 s24, s32, 4')
    a('s_lshl_b32 s25, s3, 2')
    a('s_add_u32 s24, s24, s25')
    a('s_lshl_b32 s29, s30, 4')
    a('s_or_b32 s29, s29, s31')
    a('s_lshl_b32 s29, s29, 4')
    a('s_add_u32 s29, s29, s25')
    a('s_add_u32 s33, s29, 0x1000')
    a('s_lshl_b32 s25, s30, 8')
    a('s_lshl_b32 s26, s3, 6')
    a('s_add_u32 s25, s25, s26')
    a('v_and_b32 v19, 15, v1')
    a('v_lshlrev_b32 v19, 2, v19')
    a('s_waitcnt lgkmcnt(1)')
    vm.issue('buffer_store_dwordx4 v[24:27], v17, s[16:19], s46 offen sc1')
    a('s_waitcnt lgkmcnt(0)')
    vm.issue('buffer_store_dwordx4 v[28:31], v17, s[16:19], s47 offen sc1')
    a('v_bfe_u32 v4, v1, 4, 1')
    a('v_lshrrev_b32 v5, 5, v1')
    a('v_bfe_u32 v22, v1, 2, 2')
    a('v_and_b32 v23, 3, v1')
    a('v_lshlrev_b32 v23, 3, v23')
    a('v_lshl_add_u32 v3, v5, 3, v22')
    a('v_bfe_u32 v13, v1, 3, 1')
    a('v_lshlrev_b32 v16, 7, v3')
    a('v_add_u32 v16, v16, v23')
    a('v_lshl_add_u32 v16, v13, 6, v16')
    a('v_lshl_add_u32 v16, v4, 5, v16')
    a(f'v_mul_u32_u24 v17, {SEG[0][2]-SEG[0][1]}, v4')
    a(f'v_add_u32 v17, {SEG[0][1]}, v17')
    a(f'v_mul_u32_u24 v18, {P1U}, v4')
    for ct in range(4):
        a(f'v_xor_b32 v14, {32*ct}, v16')
        a(f'v_add_u32 v{246+ct}, v14, v17')
        a(f'v_add_u32 v{120+ct}, v14, v18')
    a('v_mul_u32_u24 v3, 0x60, v3')
    a('v_add_u32 v3, v3, v23')
    a('v_add_u32 v18, v18, v3')
    a('v_lshl_add_u32 v3, v5, 2, v22')
    a('v_lshlrev_b32 v3, 7, v3')
    a('v_lshl_add_u32 v3, v13, 6, v3')
    a('v_lshl_add_u32 v3, v4, 5, v3')
    a('v_add_u32 v3, v3, v23')
    a('s_lshl_b32 s26, s3, 11')
    a('v_add_u32 v240, s26, v3')
    a('v_xor_b32 v241, 64, v240')
    for i in range(1, 3):
        a(f'v_add_u32 v{240+2*i}, {65536*i}, v240')
        a(f'v_add_u32 v{241+2*i}, {65536*i}, v241')
    a(f's_mov_b32 s44, {fh(GC2)}'); a(f's_mov_b32 s45, {fh(GC2)}')
    a(f'v_mov_b32 v2, {fh(GC1)}'); a(f'v_mov_b32 v3, {fh(GC1)}')
    a('s_lshl_b32 s27, s30, 2')
    a('s_add_u32 s27, s27, s3')
    a('s_lshl_b32 s28, s27, 15')
    a(f's_add_u32 s28, s28, {hex(H2)}')
    a('s_waitcnt vmcnt(0)'); vm.done = vm.issued
    stamp(9)
    vm.issue('buffer_store_dword v20, v21, s[52:55], s24 offen sc1')
    ptok = {}
    def p2dma(k):
        k0, gb, ub = seg_of(k)
        a(f's_add_u32 m0, {"s49" if k < 15 else "s43"}, {gb + 2048*(k-k0)}')
        if k: a(f's_add_u32 s48, s48, {16*3584}')
        ptok[k] = vm.issue('buffer_load_dwordx4 v7, s[20:23], s48 offen lds')
    for k in range(7): p2dma(k)
    a('s_mul_i32 s29, s27, 112')
    a('s_lshl_b32 s47, s31, 2')
    a('s_add_u32 s47, s47, s29')
    a('s_lshl_b32 s47, s47, 10')
    a(f's_add_u32 s47, s47, {hex(ACT)}')
    a('s_mul_i32 s46, s31, 3')
    a('s_add_u32 s46, s46, s29')
    a('s_lshl_b32 s46, s46, 10')
    a(f's_add_u32 s46, s46, {hex(ACT + 64*1024)}')
    a('s_lshr_b32 s39, s32, 3')
    a('s_and_b32 s35, s39, 1')
    a('s_and_b32 s36, s32, 7')
    a('s_lshl_b32 s36, s36, 7')
    a(f's_mul_i32 s37, s3, {192*1024}')
    a('s_add_u32 s37, s37, s36')
    a(f's_add_u32 s37, s37, {1024*1024}')
    a('s_lshl_b32 s38, s3, 18')
    a('s_add_u32 s38, s38, s36')
    a(f's_mul_i32 s4, s39, {224*1024}')
    a(f's_add_u32 s4, s4, {hex(ACT)}')
    a('s_lshl_b32 s6, s3, 14')
    a('s_add_u32 s6, s6, s4')
    a(f's_mul_i32 s5, s3, {12*1024}')
    a('s_add_u32 s5, s5, s4')
    a(f's_add_u32 s5, s5, {64*1024}')
    a('s_lshr_b32 s34, s39, 1')
    a('s_lshl_b32 s34, s34, 8')
    a('s_lshl_b32 s29, s3, 6')
    a('s_add_u32 s34, s34, s29')
    a('s_add_u32 s24, s34, 0x1000')
    a('s_lshl_b32 s39, s39, 16')
    a('s_add_u32 s39, s39, s36')
    a('v_bfe_u32 v4, v1, 1, 2')
    a('v_and_b32 v5, 1, v1')
    a('v_lshlrev_b32 v5, 2, v5')
    a('v_lshl_add_u32 v4, v4, 4, v5')
    a('s_lshl_b32 s35, s35, 3')
    a('v_add_u32 v13, s35, v4')
    poll('f1', ['buffer_load_dword v22, v19, s[52:55], s25 offen sc1'], [22])
    htok = {}
    def h2load(ks):
        htok[ks] = vm.issue(f'buffer_load_dwordx4 a[{4*ks}:{4*ks+3}], v15, s[16:19], s28 offen offset:{1024*(ks&3)} sc1')
        if (ks & 3) == 3: a('s_add_u32 s28, s28, 0x1000')
    NH0 = P.get('nh0', 8)
    for ks in range(NH0): h2load(ks)
    a('s_barrier')
    stamp(10)
    fill = deque()
    wtok = {}
    def wdslot(i):
        s = i % 20
        so = 's37' if i < 12 else 's38'
        def f0():
            a(f's_add_u32 m0, s26, {8192*WBL[s]}')
            vm.issue(f'buffer_load_dwordx4 v8, s[8:11], {so} offen lds')
        def f1():
            wtok[i] = vm.issue(f'buffer_load_dwordx4 v9, s[8:11], {so} offen offset:1024 lds')
            a(f's_add_u32 {so}, {so}, 0x4000')
        return [f0, f1]
    for ks in range(NH0, 32): fill.append(lambda ks=ks: h2load(ks))
    for k in range(7, 15): fill.append(lambda k=k: p2dma(k))
    valu = deque()
    AR, NA = 24, 6
    ACC1, ACC2 = 192, 128
    pipe = LdsPipe(a)
    steps = [(0, k, ct) for k in range(32) for ct in range(3)] + [(1, k, ct) for k in range(32) for ct in range(4)]
    tok = {}; nxt = [0]
    def rd(n):
        ps, k, ct = steps[n]; d = AR + 4*(n % NA)
        for jj in range(2):
            if ps == 0: b, off = 18, (16*k + 4*jj)*96 + 32*ct
            else:
                k0, gb, ub = seg_of(k)
                b, off = (246+ct, 2048*k + 512*jj) if k < 15 else (120+ct, gb + 2048*(k-k0) + 512*jj)
            tok[n] = pipe.issue(f'ds_read_b64_tr_b16 v[{d+2*jj}:{d+2*jj+1}], v{b} offset:{off}')
    for n in range(NA-1): rd(n)
    nxt[0] = NA-1
    VB = P.get('vb', 3); FE = P.get('fe', 2)
    stok = {}
    LAND = {3: 14, 5: 26, 6: 31}
    for n, (ps, k, ct) in enumerate(steps):
        if ps == 0 and ct == 0:
            while k not in htok: fill.popleft()()
            vm.need(htok[k])
        pipe.need(tok[n])
        d = (ACC1, ACC2)[ps] + 16*ct; c = '0' if k == 0 else f'v[{d}:{d+15}]'
        sa = AR + 4*(n % NA)
        a(f'v_mfma_f32_32x32x16_bf16 v[{d}:{d+15}], v[{sa}:{sa+3}], a[{4*k}:{4*k+3}], {c}')
        if nxt[0] < len(steps): rd(nxt[0]); nxt[0] += 1
        last = ct == (2, 3)[ps]
        credit = VB
        if last and (k & 7) == 7:
            q = 4*ps + (k >> 3) + 1
            if q > 1:
                if q in LAND:
                    while LAND[q] not in ptok: fill.popleft()()
                    vm.need(ptok[LAND[q]])
                a('s_barrier')
            if q == 4: stamp(11)
            if q == 8: stamp(12)
            if q == 2:
                for kk in range(15, 27): fill.append(lambda kk=kk: p2dma(kk))
            if q == 3:
                for kk in range(27, 32): fill.append(lambda kk=kk: p2dma(kk))
            if 4 <= q < 8:
                for i in range(([0] + WAV)[q-4], WAV[q-4]): fill.extend(wdslot(i))
            if q == 4:
                for t in range(3):
                    o = 64 + 4*(t & 1)
                    valu.extend(gelu_ops(ACC1+16*t, 48 + 8*(t & 1), o))
                    valu.append(('store', t, o))
        if fill and not valu and (ps == 1 or n % FE == 0):
            fill.popleft()()
        while valu and credit >= (cost(valu[0]) if isinstance(valu[0], str) else 1):
            x = valu.popleft()
            if isinstance(x, tuple):
                stok[x[1]] = vm.issue(f'buffer_store_dwordx4 v[{x[2]}:{x[2]+3}], v15, s[16:19], s46 offen offset:{1024*x[1]} sc1')
                if x[1] == 2: flag_at = n + P.get('fdel', 20)
            else:
                a(x); credit -= cost(x)
        if 2 in stok and 'f2' not in stok and (n >= flag_at or n == len(steps)-1):
            vm.need(stok[2])
            stok['f2'] = vm.issue('buffer_store_dword v20, v21, s[52:55], s33 offen sc1')
    assert not valu and 'f2' in stok
    while fill: fill.popleft()()
    fload = ['buffer_load_dword v22, v13, s[52:55], s24 offen sc1']
    tp = vm.issue(fload[0])
    for i in range(14, 20):
        for f in wdslot(i): f()
    a('s_mov_b32 s34, 1.0'); a('s_mov_b32 s35, 1.0')
    def geglu2(t):
        s = Asm(); geglu(s, ACC2+16*t, 48, 64 + 4*(t & 1))
        for l in s.lines: a(l.replace('s[46:47]', 's[34:35]'))
        return vm.issue(f'buffer_store_dwordx4 v[{64+4*(t&1)}:{67+4*(t&1)}], v15, s[16:19], s47 offen offset:{1024*t} sc1')
    geglu2(0)
    geglu2(1)
    poll('f2', fload, [22], pre=tp)
    atok = {}
    def abase(i): return 128 + 8*i if i < 12 else 8*(i-12)
    def actload(i):
        b = abase(i)
        so = 's5' if i < 12 else 's6'
        j = i & 3
        vm.issue(f'buffer_load_dwordx4 a[{b}:{b+3}], v15, s[16:19], {so} offen offset:{1024*j} sc1')
        if j == 0: a(f's_add_u32 s7, {so}, {112*1024}')
        atok[i] = vm.issue(f'buffer_load_dwordx4 a[{b+4}:{b+7}], v15, s[16:19], s7 offen offset:{1024*j} sc1')
        if j == 3: a(f's_add_u32 {so}, {so}, 0x1000')
    geglu2(2)
    ts3 = geglu2(3)
    for i in range(12): actload(i)
    a('v_lshrrev_b32 v4, 3, v0')
    a('v_lshlrev_b32 v10, 10, v4')
    a('v_lshl_add_u32 v10, v6, 4, v10')
    a(f's_add_u32 s46, s39, {hex(X1)}')
    a('s_add_u32 s47, s46, 0x8000')
    a('s_add_u32 s29, s33, 0x1000')
    a('s_add_u32 s24, s24, 0x1000')
    vm.need(ts3)
    vm.issue('buffer_store_dword v20, v21, s[52:55], s29 offen sc1')
    stamp(13)
    pipe = LdsPipe(a); tok = {}
    def rd2(i):
        d = AR + 8*(i % 3); ad = 8192*WBL[i % 20]
        for mt in range(2):
            for jj in range(2):
                tok[(i, mt)] = pipe.issue(f'ds_read_b64_tr_b16 v[{d+4*mt+2*jj}:{d+4*mt+2*jj+1}], v{240+2*(ad>>16)+mt} offset:{(ad & 0xffff)+1024*jj}')
    vm.need(wtok[1]); rd2(0); rd2(1)
    for i in range(28):
        if i == 12:
            poll('f3', fload, [22])
            stamp(14)
            for ii in range(12, 28): actload(ii)
            vm.issue('buffer_load_dwordx4 v[72:75], v10, s[16:19], s46 offen sc1')
            tx = vm.issue('buffer_load_dwordx4 v[76:79], v10, s[16:19], s47 offen sc1')
        d0 = AR + 8*(i % 3); b = abase(i)
        vm.need(atok[i])
        for mt in range(2):
            pipe.need(tok[(i, mt)])
            for nt in range(2):
                d = ACC2 + 32*mt + 16*nt; c = '0' if i == 0 else f'v[{d}:{d+15}]'
                a(f'v_mfma_f32_32x32x16_bf16 v[{d}:{d+15}], v[{d0+4*mt}:{d0+4*mt+3}], a[{b+4*nt}:{b+4*nt+3}], {c}')
                if mt == 0 and nt == 0 and i+2 < 28:
                    vm.need(wtok[i+2]); rd2(i+2)
                if mt == 1 and i < 8:
                    wdslot(20+i)[nt]()
    a('v_and_b32 v4, 31, v1')
    a(f'v_mul_u32_u24 v4, {PS}, v4')
    a('v_lshrrev_b32 v5, 5, v1')
    a('v_lshl_add_u32 v4, v5, 4, v4')
    a(f's_mul_i32 s26, s3, {64*PS}')
    a('v_add_u32 v18, s26, v4')
    a('v_lshrrev_b32 v4, 3, v0')
    a(f'v_mul_u32_u24 v4, {PS}, v4')
    a('v_lshl_add_u32 v19, v6, 5, v4')
    base(a, 12, 56, 0x200000)
    a('s_add_u32 s38, s39, 0x8000')
    a('s_barrier')
    stamp(15)
    for mt in range(2):
        for nt in range(2):
            for g in range(4):
                d = ACC2 + 32*mt + 16*nt + 4*g
                a(f'ds_write_b128 v18, v[{d}:{d+3}] offset:{nt*32*PS + mt*128 + g*32}')
    vm.need(tx)
    unpack8(a, 84, 124, 40); unpack8(a, 24, 72, 40); unpack8(a, 32, 76, 40)
    a('s_waitcnt lgkmcnt(0)')
    a('s_barrier')
    for jj in range(2):
        for w in range(4):
            for e in range(2):
                d = 128 + 32*jj + 8*w + 4*e
                a(f'ds_read_b128 v[{d}:{d+3}], v19 offset:{w*64*PS + jj*32*PS + 16*e}')
    for jj in range(2):
        b = 128 + 32*jj
        a(f's_waitcnt lgkmcnt({8-8*jj})')
        for p in range(4): a(f'v_pk_add_f32 v[{b+2*p}:{b+2*p+1}], v[{b+2*p}:{b+2*p+1}], v[{b+8+2*p}:{b+9+2*p}]')
        for p in range(4): a(f'v_pk_add_f32 v[{b+16+2*p}:{b+17+2*p}], v[{b+16+2*p}:{b+17+2*p}], v[{b+24+2*p}:{b+25+2*p}]')
        for p in range(4): a(f'v_pk_add_f32 v[{b+2*p}:{b+2*p+1}], v[{b+2*p}:{b+2*p+1}], v[{b+16+2*p}:{b+17+2*p}]')
        x = 24 + 8*jj
        for p in range(4): a(f'v_pk_fma_f32 v[{b+2*p}:{b+2*p+1}], v[{b+2*p}:{b+2*p+1}], v[{84+2*p}:{85+2*p}], v[{x+2*p}:{x+2*p+1}]')
        for p in range(4): a(f'v_cvt_pk_bf16_f32 v{40+4*jj+p}, v{b+2*p}, v{b+2*p+1}')
        a(f'buffer_store_dwordx4 v[{40+4*jj}:{43+4*jj}], v10, s[12:15], s{39-jj} offen')
    a('s_or_b32 s4, s2, s3')
    a('s_cmp_lg_u32 s4, 0')
    a('s_cbranch_scc1 L_noep')
    a(f's_mov_b32 s4, {hex(EPOCH)}')
    a('buffer_store_dword v20, v21, s[16:19], s4 offen')
    a.label('L_noep')
    if P.get('stamps'):
        a('s_waitcnt vmcnt(0)')
        stamp(5)
        a('s_cmp_lg_u32 s3, 0')
        a('s_cbranch_scc1 L_end')
        a('s_lshl_b32 s94, s2, 7')
        a(f's_add_u32 s94, s94, {hex(TS)}')
        a('s_add_u32 s92, s58, s94')
        a('s_addc_u32 s93, s59, 0')
        a('s_mov_b64 exec, 1')
        a('s_waitcnt lgkmcnt(0)')
        for m in sorted(marks):
            a(f'v_mov_b32 v250, s{60+2*m}')
            a(f'v_mov_b32 v251, s{61+2*m}')
            a(f'global_store_dwordx2 v21, v[250:251], s[92:93] offset:{8*m}')
            a('s_nop 1')
    a.label('L_end')
    a('s_endpgm')
    return dict(grid=256, block=256, lds=163840, vgpr=512, accum=256)
```

```python
import sys
from asmlib import *
from k123 import *
from k45 import *
from cde import cde
from mega import mega
NAME = 'adaLN_cond__ssm_conv_h3__geglu_ffn__prompt'
def empty(a, P, n):
    a('s_endpgm')
    return dict(grid=256, block=64, lds=0, vgpr=8, accum=8)
def build(kernels, P):
    hdr = open('cdna_kernels/' + NAME + '.s.ref').read().split('\n')
    head = [l for l in hdr if l.startswith(';') and '@launch' not in l and 'Override launch' not in l and 'grid=ceil' not in l]
    body, kds, launches = [], [], []
    seen = {}
    for name, fn in kernels:
        if name not in seen:
            a = Asm()
            info = fn(a, P)
            lines, nfix = check(a.lines)
            probs = check_loops(lines)
            assert not probs, probs
            a.lines = lines
            lab = name + '_kernel'
            body.append(f'.globl {lab}\n.p2align 8\n.type {lab},@function\n{lab}:\n' + a.text())
            kds.append(f'.p2align 6\n.amdhsa_kernel {lab}\n  .amdhsa_next_free_vgpr {info["vgpr"]}\n  .amdhsa_next_free_sgpr 102\n'
                       f'  .amdhsa_accum_offset {info["accum"]}\n  .amdhsa_group_segment_fixed_size 0\n  .amdhsa_kernarg_size 120\n'
                       '  .amdhsa_user_sgpr_count 2\n  .amdhsa_user_sgpr_kernarg_segment_ptr 1\n  .amdhsa_system_sgpr_workgroup_id_x 1\n'
                       '.end_amdhsa_kernel\n')
            seen[name] = info
            print(name, 'instr', sum(1 for l in lines if not l.endswith(':')), 'hazard pads', nfix, file=sys.stderr)
        info = seen[name]
        launches.append(f'; @launch kernel={name}_kernel grid=({info["grid"]},1,1) block=({info["block"]},1,1) lds={info["lds"]}')
    if len(launches) == 1:
        launches = [launches[0].replace('kernel=' + NAME + '_kernel ', '')]
    txt = '\n'.join(head) + '\n' + '\n'.join(launches) + '\n.amdgcn_target "amdgcn-amd-amdhsa--gfx950"\n.text\n' + ''.join(body)
    txt += '.section .rodata,"a"\n' + ''.join(kds)
    return txt
if __name__ == '__main__':
    out = sys.argv[1]
    P = {}
    extra = 0
    for o in sys.argv[2:]:
        k, _, v = o.partition('=')
        P[k] = int(v) if v else 1
    ks = [('kvt', k1), ('conv', k2), ('norm', k3), ('ffn1', k4), ('ffn2', k5)]
    if P.get('cde'):
        P['epoch'] = 1
        ks = [('kvt', k1), ('conv', k2), ('cde', cde)]
    if P.get('mega'):
        ks = [(NAME, __import__('mega_v%d' % P['gen']).mega if 'gen' in P else mega)]
    if P.get('probe') == 300: import mega as M; ks = [('big', mega), ('tiny', lambda a, P: M.tinyk(a, P, False))]
    if P.get('probe') == 301: import mega as M; ks = [('tiny', lambda a, P: M.tinyk(a, P, True)), ('big', mega)]
    for i in range(P.get('empty', 0)):
        ks.append((f'empty{i}', lambda a, P, i=i: empty(a, P, i)))
    open(out, 'w').write(build(ks, P))
```

```python
from collections import deque
from asmlib import *
from k123 import fh, lo, hi, unpack8, ln_stats, LdsPipe, A_OUT, A_WS
from k45 import VmPipe, GC1, GC2, geglu
from cde import zipl, gelu_ops, cost

UT, YT, X1, H2, ACT, MODT, EPOCH, FLG, TS = 0, 0x400000, 0x800000, 0xA00000, 0xC00000, 0x1300000, 0x1308000, 0x1310000, 0x1400000
P1U = 49280
SEG = [(0, 98432, 129152), (15, 0, 49280), (27, 24576, 73856)]
CB, CHS, KB, U0, U1 = 98432, 12992, 512, 4608, 8768
PB = CB + 2*CHS
PRM = PB + 32768
MPART = PRM + 6144
XG = 129152 + 112*128
YS = 1040
XH = XG + 8*YS
PS = 272
SPIN = 1 << 15
WBL = [5, 11, 12, 13, 16, 14, 15, 17, 18, 19, 0, 1, 6, 7, 2, 3, 4, 8, 9, 10]
WAV = [2, 5, 10, 14, 20]
assert MPART + 512 <= 163840 and XH + 8192 <= 163840
def seg_of(k): return SEG[0] if k < 15 else SEG[1] if k < 27 else SEG[2]

def base(a, d, p, n):
    a(f's_mov_b32 s{d}, s{p}'); a(f's_mov_b32 s{d+1}, s{p+1}'); a(f's_mov_b32 s{d+2}, {hex(n)}')

def mega(a, P):
    marks = set()
    def stamp(slot):
        if P.get('stamps'):
            a(f's_memrealtime s[{60+2*slot}:{61+2*slot}]'); marks.add(slot)
    vm = VmPipe(a)
    def poll(name, loads, tags, pre=None):
        a(f's_mov_b32 s51, {SPIN}')
        if pre is not None:
            vm.need(pre)
            a(f's_branch L_{name}_chk')
        a.label(f'L_{name}')
        for l in loads: a(l)
        a('s_waitcnt vmcnt(0)')
        a.label(f'L_{name}_chk')
        a(f'v_cmp_ne_u32 vcc, s50, v{tags[0]}')
        for i, t in enumerate(tags[1:]): a(f'v_cmp_ne_u32 s[{92+2*i}:{93+2*i}], s50, v{t}')
        a('s_sub_u32 s51, s51, 1')
        a(f's_cbranch_scc1 L_{name}_ok')
        for i in range(len(tags)-1): a(f's_or_b64 vcc, vcc, s[{92+2*i}:{93+2*i}]')
        a(f's_cbranch_vccnz L_{name}')
        a.label(f'L_{name}_ok')
        if pre is None: vm.done = vm.issued

    a('s_cmp_ge_u32 s2, 256')
    a('s_cbranch_scc1 L_end')
    stamp(0)
    a('s_load_dwordx16 s[64:79], s[0:1], 0')
    a(f's_load_dwordx2 s[58:59], s[0:1], {A_WS}')
    a('s_load_dwordx8 s[80:87], s[0:1], 64')
    a(f's_load_dwordx2 s[56:57], s[0:1], {A_OUT}')
    a('v_lshrrev_b32 v2, 6, v0')
    a('v_and_b32 v1, 63, v0')
    a('v_readfirstlane_b32 s3, v2')
    a('s_mov_b32 s40, 0xffff0000')
    a('s_and_b32 s28, s2, 7')
    a('s_lshr_b32 s29, s2, 3')
    a('s_lshl_b32 s32, s28, 5')
    a('s_or_b32 s32, s32, s29')
    a('v_and_b32 v3, 31, v0')
    a('v_lshrrev_b32 v2, 5, v0')
    a('s_lshl_b32 s33, s29, 6')
    a('v_lshl_add_u32 v4, v2, 3, s33')
    a('s_lshl_b32 s33, s28, 7')
    a('v_lshl_add_u32 v5, v3, 2, s33')
    a('v_lshl_add_u32 v5, v4, 10, v5')
    a('v_subrev_u32 v4, 0x1000, v5')
    a('s_lshl_b32 s33, s28, 9')
    a('v_lshl_add_u32 v13, v3, 4, s33')
    a('s_movk_i32 s35, 0x1000')
    a('s_mov_b32 s15, 0x20000'); a('s_mov_b32 s27, 0x20000'); a('s_mov_b32 s19, 0x20000')
    a('s_mov_b32 s23, 0x20000'); a('s_mov_b32 s11, 0x20000'); a('s_mov_b32 s55, 0x20000')
    a('v_lshlrev_b32 v15, 4, v1')
    a('v_lshlrev_b32 v14, 4, v0')
    a('s_waitcnt lgkmcnt(0)')
    base(a, 12, 70, 4096)
    base(a, 24, 68, 0x200000)
    tsh = vm.issue('buffer_load_dwordx4 v[48:51], v13, s[12:15], 0 offen')
    base(a, 12, 66, 0x200000)
    for i in range(4): vm.issue(f'buffer_load_dword v{24+i}, v4, s[12:15], 0 offen offset:{1024*i}')
    tk = {0: vm.issue('buffer_load_dword v36, v4, s[24:27], 0 offen offset:3072')}
    for i in range(8):
        so = 's35' if i >= 4 else '0'
        vm.issue(f'buffer_load_dword v{28+i}, v5, s[12:15], {so} offen offset:{1024*(i&3)}')
        tk[i+1] = vm.issue(f'buffer_load_dword v{37+i}, v5, s[24:27], {so} offen offset:{1024*(i&3)}')
    a(f's_add_u32 s4, s58, {hex(EPOCH)}')
    a('s_addc_u32 s5, s59, 0')
    a('s_load_dword s50, s[4:5], 0')
    a('s_lshl_b32 s33, s32, 2')
    a('s_add_u32 s6, s74, s33')
    a('s_addc_u32 s7, s75, 0')
    a('s_load_dword s34, s[6:7], 0')
    base(a, 12, 72, 0x200000)
    a('s_lshl_b32 s33, s32, 13')
    a('s_add_u32 s36, s33, 0x1000')
    vm.issue('buffer_load_dwordx4 v[146:149], v14, s[12:15], s33 offen')
    tsk = vm.issue('buffer_load_dwordx4 v[150:153], v14, s[12:15], s36 offen')
    a('s_lshr_b32 s30, s2, 5')
    a('s_lshl_b32 s30, s30, 3')
    a('s_or_b32 s30, s30, s28')
    a('s_lshl_b32 s30, s30, 2')
    a('s_and_b32 s31, s29, 3')
    a('s_or_b32 s46, s30, s31')
    a('s_lshl_b32 s30, s46, 5')
    a('v_and_b32 v16, 1, v0')
    a('v_lshrrev_b32 v17, 1, v0')
    a('v_mul_u32_u24 v18, 0x6000, v17')
    a('v_lshl_add_u32 v18, v16, 4, v18')
    a('v_lshlrev_b32 v17, 3, v17')
    base(a, 12, 84, 1024)
    tc = vm.issue('buffer_load_dwordx2 v[144:145], v17, s[12:15], 0 offen')
    base(a, 12, 86, 512*6144)
    a('s_cmp_lt_u32 s2, 192')
    a('s_cselect_b32 s14, s14, 0')
    twm = []
    for r in range(4):
        twm.append(vm.issue(f'buffer_load_dwordx4 v[{128+4*r}:{131+4*r}], v18, s[12:15], s30 offen'))
        if r < 3: a('s_add_u32 s30, s30, 0x1800')
    base(a, 12, 64, 0x200000)
    a('s_lshl_b32 s36, s3, 11')
    a('s_add_u32 s33, s33, s36')
    vm.issue('buffer_load_dwordx4 v[232:235], v15, s[12:15], s33 offen')
    tx = vm.issue('buffer_load_dwordx4 v[236:239], v15, s[12:15], s33 offen offset:1024')
    a('s_and_b32 s30, s2, 1')
    a('s_lshl_b32 s30, s30, 3')
    a('s_and_b32 s47, s29, 7')
    a('s_or_b32 s30, s30, s47')
    a('s_bfe_u32 s31, s2, 0x20001')
    a('s_lshl_b32 s31, s31, 2')
    a('s_lshr_b32 s36, s2, 6')
    a('s_or_b32 s31, s31, s36')
    a('s_lshr_b32 s38, s3, 1')
    a('s_and_b32 s39, s3, 1')
    a('s_cmp_eq_u32 s38, 0')
    a('s_cselect_b32 s20, s78, s80')
    a('s_cselect_b32 s21, s79, s81')
    a(f's_mov_b32 s22, {512*3584}')
    base(a, 8, 82, 1792*1024)
    base(a, 16, 58, TS)
    a(f's_add_u32 s52, s58, {hex(FLG)}')
    a('s_addc_u32 s53, s59, 0')
    a('s_movk_i32 s54, 0x3000')
    for i in range(3):
        a(f'v_add_u32 v4, {64*i}, v1')
        a('v_mul_u32_u24 v5, 0x2aab, v4')
        a('v_lshrrev_b32 v5, 16, v5')
        a(f'v_mul_u32_u24 v5, {3584-96}, v5')
        a(f'v_lshl_add_u32 v{10+i}, v4, 4, v5')
        if i: a(f'v_subrev_u32 v{10+i}, {1024*i}, v{10+i}')
    a(f's_mul_i32 s41, s39, {32*3584}')
    a('s_mul_i32 s43, s31, 96')
    a('s_add_u32 s41, s41, s43')
    a('s_add_u32 s41, s41, 0x800')
    a('s_mul_i32 s43, s39, 3072')
    a(f's_mul_i32 s42, s38, {P1U}')
    a('s_add_u32 s42, s42, s43')
    early = deque()
    def p1dma(i):
        if i == 0:
            a('s_mul_i32 s36, s47, 6144')
            a(f's_mul_i32 s37, s47, {64*3584}')
            a('s_add_u32 m0, s36, s42')
            a('s_add_u32 s37, s37, s41')
        vm.issue(f'buffer_load_dwordx4 v{10+i}, s[20:23], s37 offen offset:{1024*i} lds')
        if i == 2:
            a('s_add_u32 s47, s47, 1'); a('s_and_b32 s47, s47, 7')
    for m in range(8):
        for i in range(3): early.append(lambda i=i: p1dma(i))
    for _ in range(P.get('e0', 9)): early.popleft()()
    a('v_lshrrev_b32 v4, 3, v1')
    a('v_bfe_u32 v5, v1, 4, 1')
    a('v_lshlrev_b32 v5, 2, v5')
    a('v_and_b32 v6, 7, v1')
    a('v_xor_b32 v5, v5, v6')
    a('v_lshlrev_b32 v5, 4, v5')
    a('v_lshl_add_u32 v8, v4, 10, v5')
    a(f'v_add_u32 v9, {8192-1024}, v8')
    a('s_lshl_b32 s43, s38, 5')
    a('v_xor_b32 v5, s43, v5')
    a('v_mul_u32_u24 v7, 0xe00, v4')
    a('v_add_u32 v7, v7, v5')
    a(f's_mul_i32 s48, s39, {8*3584}')
    a('s_lshl_b32 s43, s31, 7')
    a('s_add_u32 s48, s48, s43')
    a('s_lshl_b32 s43, s39, 10')
    a(f's_mul_i32 s49, s38, {SEG[0][2]-SEG[0][1]}')
    a('s_add_u32 s49, s49, s43')
    a(f's_mul_i32 s38, s38, {P1U}')
    a('s_add_u32 s43, s43, s38')
    a('v_sub_u32 v4, 7, v2')
    a('v_lshlrev_b32 v4, 2, v4')
    a('v_lshl_add_u32 v4, v3, 5, v4')
    a('v_xor_b32 v4, v4, v6')
    for g in range(4):
        a(f'v_xor_b32 v5, {g}, v4')
        a(f'v_lshlrev_b32 v5, 4, v5')
        a(f'v_add_u32 v{120+g}, {PB}, v5')
    a('v_lshrrev_b32 v4, 5, v1')
    a('v_xor_b32 v5, v4, v1')
    a('s_lshl_b32 s36, s3, 12')
    a(f's_add_u32 s36, s36, {PB}')
    for j in range(4):
        a(f'v_xor_b32 v13, {2*j}, v5')
        a(f'v_lshl_add_u32 v{124+j}, v13, 4, s36')
    a('v_and_b32 v5, 31, v1')
    a('v_lshlrev_b32 v5, 4, v5')
    a('v_lshl_add_u32 v13, v4, 14, v5')
    a('s_lshl_b32 s36, s28, 5')
    a('s_lshl_b32 s35, s3, 3')
    a('s_add_u32 s36, s36, s35')
    a('s_lshl_b32 s36, s36, 14')
    a('s_sub_u32 s35, 31, s29')
    a('s_lshl_b32 s35, s35, 9')
    a('s_add_u32 s35, s35, s36')
    a('s_waitcnt lgkmcnt(0)')
    a('s_mul_i32 s50, s50, 1664525')
    a('s_add_u32 s50, s50, 1013904223')
    a('v_mov_b32 v21, 0')
    a('v_mov_b32 v20, s50')
    vm.need(tsh)
    lo(a, 52, 48); hi(a, 54, 48, 40); lo(a, 56, 49); hi(a, 58, 49, 40)
    lo(a, 53, 50); hi(a, 55, 50, 40); lo(a, 57, 51); hi(a, 59, 51, 40)
    vm.need(tk[0])
    stamp(1)
    for q in range(3):
        lo(a, 60+2*q, 24+q); hi(a, 61+2*q, 24+q, 40)
    for r in range(9):
        vm.need(tk[r])
        lo(a, 66+2*r, 27+r); hi(a, 67+2*r, 27+r, 40)
        lo(a, 84+2*r, 36+r); hi(a, 85+2*r, 36+r, 40)
        d = 102+2*r
        a(f'v_pk_mul_f32 v[{d}:{d+1}], v[{60+2*r}:{61+2*r}], v[58:59]')
        a(f'v_pk_fma_f32 v[{d}:{d+1}], v[{62+2*r}:{63+2*r}], v[56:57], v[{d}:{d+1}]')
        a(f'v_pk_fma_f32 v[{d}:{d+1}], v[{64+2*r}:{65+2*r}], v[54:55], v[{d}:{d+1}]')
        a(f'v_pk_fma_f32 v[{d}:{d+1}], v[{66+2*r}:{67+2*r}], v[52:53], v[{d}:{d+1}]')
        a(f'v_pk_mul_f32 v[{d}:{d+1}], v[{d}:{d+1}], v[{84+2*r}:{85+2*r}]')
    for c in range(2):
        R = lambda r: 102+2*max(r, 0)+c
        for h in range(2):
            q = 24+8*c+4*h; r = 8-4*h
            a(f'v_cvt_pk_bf16_f32 v{q}, v{R(r)}, v{R(r-1)}')
            a(f'v_cvt_pk_bf16_f32 v{q+1}, v{R(r-2)}, v{R(r-3)}')
            a(f'v_mov_b32 v{q+2}, s50')
            a(f'v_cvt_pk_bf16_f32 v{q+3}, v{R(r-4)}, v{R(r-5)}')
            a(f'ds_write_b128 v{120+2*c+h}, v[{q}:{q+3}]')
    a('s_waitcnt lgkmcnt(0)')
    a('s_barrier')
    for j in range(4): a(f'ds_read_b128 v[{24+4*j}:{27+4*j}], v{124+j} offset:{1024*j}')
    for j in range(4):
        a(f's_waitcnt lgkmcnt({3-j})')
        vm.issue(f'buffer_store_dwordx4 v[{24+4*j}:{27+4*j}], v13, s[16:19], s35 offen sc1')
        if j < 3: a('s_add_u32 s35, s35, 0x8000')
    stamp(2)
    for i in range(4): a(f'v_mov_b32 v{40+i}, 0')
    a(f'v_add_u32 v14, {CB}, v14')
    a('v_cmp_gt_u32 vcc, 32, v0')
    a('s_and_saveexec_b64 s[36:37], vcc')
    a('s_cbranch_execz L_nz')
    a('ds_write_b128 v14, v[40:43]')
    a(f'ds_write_b128 v14, v[40:43] offset:{CHS}')
    a('v_cmp_gt_u32 vcc, 2, v0')
    a('s_and_b64 exec, exec, vcc')
    for c in range(2):
        a(f'ds_write_b128 v14, v[40:43] offset:{c*CHS+U0+4096}')
        a(f'ds_write_b128 v14, v[40:43] offset:{c*CHS+U1+4096}')
    a.label('L_nz')
    a('s_mov_b64 exec, s[36:37]')
    a('v_cmp_eq_u32 s[36:37], 0, v0')
    a('s_lshl_b32 s4, s34, 16')
    a('s_and_b32 s5, s34, 0xffff0000')
    a('s_mov_b32 s6, 0xffff')
    vm.need(tsk)
    for c in range(2):
        kx = 146+4*c
        lo(a, 44, kx)
        a(f'v_add_f32 v44, s{4+c}, v44')
        a('v_cvt_pk_bf16_f32 v44, v44, v44')
        a(f'v_bfi_b32 v44, s6, v44, v{kx}')
        a(f'v_cndmask_b32 v{kx}, v{kx}, v44, s[36:37]')
        a(f'ds_write_b128 v14, v[{kx}:{kx+3}] offset:{c*CHS+KB}')
    vm.need(tc)
    lo(a, 44, 144); hi(a, 45, 144, 40); lo(a, 46, 145); hi(a, 47, 145, 40)
    for r in range(4): a(f'v_mul_f32 v{48+r}, {fh(-1.4426950408889634)}, v{44+r}')
    for r in range(4): a(f'v_exp_f32 v{48+r}, v{48+r}')
    for r in range(4): a(f'v_add_f32 v{48+r}, 1.0, v{48+r}')
    for r in range(4): a(f'v_rcp_f32 v{48+r}, v{48+r}')
    for r in range(4): a(f'v_mul_f32 v{44+r}, v{44+r}, v{48+r}')
    a('v_cvt_pk_bf16_f32 v48, v44, v45')
    a('v_cvt_pk_bf16_f32 v49, v46, v47')
    lo(a, 44, 48); hi(a, 45, 48, 40); lo(a, 46, 49); hi(a, 47, 49, 40)
    for r in range(4):
        vm.need(twm[r])
        unpack8(a, 52, 128+4*r, 40)
        sel = 'op_sel:[0,0,0] op_sel_hi:[1,0,1]' if r % 2 == 0 else 'op_sel:[0,1,0] op_sel_hi:[1,1,1]'
        sp = 44 + (r & 2)
        for j in range(4):
            if r == 0:
                a(f'v_pk_mul_f32 v[{60+2*j}:{61+2*j}], v[{52+2*j}:{53+2*j}], v[{sp}:{sp+1}] op_sel:[0,0] op_sel_hi:[1,0]')
            else:
                a(f'v_pk_fma_f32 v[{60+2*j}:{61+2*j}], v[{52+2*j}:{53+2*j}], v[{sp}:{sp+1}], v[{60+2*j}:{61+2*j}] {sel}')
    a('s_lshl_b32 s35, s32, 14')
    a('s_lshl_b32 s36, s3, 12')
    a('s_add_u32 s35, s35, s36')
    uloads = [f'buffer_load_dwordx4 v[{24+4*j}:{27+4*j}], v15, s[16:19], s35 offen offset:{1024*j} sc1' for j in range(4)]
    for l in uloads: tu = vm.issue(l)
    for ctl in ('quad_perm:[2,3,0,1]', 'row_ror:4', 'row_ror:8'):
        for j in range(8):
            a(f'v_add_f32_dpp v{60+j}, v{60+j}, v{60+j} {ctl} row_mask:0xf bank_mask:0xf')
    for j in range(4): a(f'v_permlane32_swap_b32 v{60+j}, v{64+j}')
    for j in range(4): a(f'v_add_f32 v{60+j}, v{60+j}, v{64+j}')
    a('v_bfe_u32 v4, v1, 4, 1')
    a('v_lshlrev_b32 v4, 6, v4')
    a('v_lshl_add_u32 v4, v16, 5, v4')
    a('v_lshrrev_b32 v5, 5, v1')
    a('v_lshl_add_u32 v4, v5, 4, v4')
    a('s_lshl_b32 s36, s3, 7')
    a(f's_add_u32 s36, s36, {MPART}')
    a('v_add_u32 v4, s36, v4')
    a('v_and_b32 v5, 14, v1')
    a('v_cmp_eq_u32 vcc, 0, v5')
    a('s_and_saveexec_b64 s[36:37], vcc')
    a('ds_write_b128 v4, v[60:63]')
    a('s_mov_b64 exec, s[36:37]')
    a('v_bfe_u32 v4, v1, 1, 1')
    a(f'v_mul_u32_u24 v4, {CHS}, v4')
    a('v_lshrrev_b32 v5, 2, v1')
    a('v_lshl_add_u32 v4, v5, 4, v4')
    a('v_lshl_add_u32 v4, v16, 3, v4')
    a('s_lshl_b32 s36, s3, 10')
    a(f's_add_u32 s36, s36, {CB}')
    a('v_add_u32 v14, s36, v4')
    a('s_lshr_b32 s36, s3, 1')
    a(f's_mul_i32 s36, s36, {CHS}')
    a('s_xor_b32 s38, s39, 1')
    a('s_lshl_b32 s38, s38, 6')
    a('s_add_u32 s36, s36, s38')
    a(f's_add_u32 s36, s36, {CB}')
    a('v_and_b32 v3, 15, v0')
    a('v_bfe_u32 v4, v0, 4, 2')
    a('v_lshlrev_b32 v5, 4, v4')
    a('v_lshl_add_u32 v22, v3, 5, v5')
    a(f's_add_u32 s38, s36, {KB-480}')
    a('v_add_u32 v22, s38, v22')
    a('v_and_b32 v23, 14, v3')
    a('v_lshlrev_b32 v23, 1, v23')
    a('v_sub_u32 v23, v5, v23')
    a(f'v_mul_u32_u24 v5, {U1-U0}, v16')
    a('v_sub_u32 v23, v23, v5')
    a(f's_add_u32 s38, s36, {U1+28}')
    a('v_add_u32 v16, s38, v23')
    for i in range(1, 4): a(f'v_add_u32 v{16+i}, {1024*i}, v16')
    a('v_bfe_u32 v5, v3, 1, 2')
    a('v_xor_b32 v5, v5, v4')
    a('v_lshl_add_u32 v5, v3, 2, v5')
    a('s_lshl_b32 s38, s3, 13')
    a(f's_add_u32 s38, s38, {PB}')
    a('v_lshl_add_u32 v23, v5, 4, s38')
    poll('ut', uloads, [26, 30, 34, 38], pre=tu)
    stamp(3)
    for j in range(4):
        q = 24+4*j
        a(f'ds_write_b64 v14, v[{q}:{q+1}] offset:{U0+256*j}')
        a(f'v_alignbit_b32 v{40+2*j}, v{q+1}, v{q}, 16')
        a(f'v_alignbit_b32 v{41+2*j}, v{q+3}, v{q+1}, 16')
        a(f'ds_write_b64 v14, v[{40+2*j}:{41+2*j}] offset:{U1+256*j}')
    a('s_waitcnt lgkmcnt(0)')
    a('s_barrier')
    stamp(4)
    a('s_cmp_lg_u32 s3, 0')
    a('s_cbranch_scc1 L_nomod')
    a('s_cmp_ge_u32 s2, 192')
    a('s_cbranch_scc1 L_nomod')
    a('v_lshlrev_b32 v5, 7, v4')
    a('v_lshl_add_u32 v5, v3, 2, v5')
    a(f'v_add_u32 v5, {MPART}, v5')
    a('ds_read2_b32 v[24:25], v5 offset0:0 offset1:16')
    a('s_lshr_b32 s36, s46, 5')
    a('s_cmp_eq_u32 s36, 1')
    a('s_cselect_b32 s38, 1.0, 0')
    a('s_cmp_eq_u32 s36, 4')
    a('s_cselect_b32 s38, 1.0, s38')
    a('s_lshl_b32 s36, s46, 6')
    a(f's_add_u32 s36, s36, {hex(MODT)}')
    a('s_waitcnt lgkmcnt(0)')
    a('v_add_f32 v24, v24, v25')
    a('v_mov_b32 v25, v24')
    a('v_permlane16_swap_b32 v24, v25')
    a('v_add_f32 v24, v24, v25')
    a('v_mov_b32 v25, v24')
    a('v_permlane32_swap_b32 v24, v25')
    a('v_add_f32 v24, v24, v25')
    a('v_cvt_pk_bf16_f32 v24, v24, v24')
    lo(a, 24, 24)
    a('v_add_f32 v24, s38, v24')
    for i in range(4): a(f'v_mov_b32_dpp v{26+i}, v24 quad_perm:[{i},{i},{i},{i}] row_mask:0xf bank_mask:0xf')
    a('v_cvt_pk_bf16_f32 v32, v26, v27')
    a('v_cvt_pk_bf16_f32 v33, v28, v29')
    a('v_mov_b32 v34, s50')
    a('v_mov_b32 v35, s50')
    a('v_lshlrev_b32 v5, 2, v1')
    a('s_mov_b64 exec, 0x1111')
    a('buffer_store_dwordx4 v[32:35], v5, s[16:19], s36 offen sc1')
    a('s_mov_b64 exec, -1')
    a.label('L_nomod')
    ACC, AR, BR = 40, 72, 104
    pipe = LdsPipe(a)
    reads = []
    for i in range(32):
        o = 32*((31-i) & 7); b = 16 + ((31-i) >> 3); d = AR + 4*(i & 7)
        reads.append((('A', i, 0), f'ds_read2_b32 v[{d}:{d+1}], v{b} offset0:{o} offset1:{o+1}'))
        reads.append((('A', i, 1), f'ds_read2_b32 v[{d+2}:{d+3}], v{b} offset0:{o+2} offset1:{o+3}'))
        if i < 4:
            for t in range(8):
                j = 4*t+3-i
                reads.append((('B', j), f'ds_read_b128 v[{BR+4*j}:{BR+4*j+3}], v22 offset:{128*j}'))
    tok = {}; nxt = [0]
    def pump(cur_step, maxn):
        n = 0
        while n < maxn and nxt[0] < len(reads) and pipe.outstanding() < 13:
            key, line = reads[nxt[0]]
            if key[0] == 'A' and key[1] >= cur_step + 8: break
            tok[key] = pipe.issue(line); nxt[0] += 1; n += 1
    pump(0, 12)
    a('s_lshl_b32 s35, s3, 10')
    a(f's_add_u32 s35, s35, {hex(MODT)}')
    a('s_add_u32 s34, s35, 0x1000')
    a('s_add_u32 s36, s35, 0x2000')
    a('s_mov_b32 s4, s36')
    mloads = [f'buffer_load_dwordx4 v[{24+4*r}:{27+4*r}], v15, s[16:19], s{(35, 34, 4)[r]} offen sc1' for r in range(3)]
    pending = []; nm = 0
    NB = P.get('e1', 15); EV = P.get('ev', 6)
    for i in range(32):
        for t in range(i >> 2, 8):
            j = 4*t+3-i
            while ('B', j) not in tok or ('A', i, 1) not in tok:
                pipe.need(pipe.done + 2); pump(i, 2)
            pipe.need(max(tok[('A', i, 1)], tok[('B', j)]))
            d = ACC+4*t; c = '0' if i == 0 else f'v[{d}:{d+3}]'
            s = AR+4*(i & 7)
            a(f'v_mfma_f32_16x16x32_bf16 v[{d}:{d+3}], v[{s}:{s+3}], v[{BR+4*j}:{BR+4*j+3}], {c}')
            pump(i, 2 if i < 4 else 1)
            nm += 1
            if nm >= 24 and nm % EV == 0 and NB > 0 and early:
                early.popleft()(); NB -= 1
        if pending and pipe.outstanding() < 14:
            t = pending.pop()
            pipe.issue(f'ds_write_b128 v23, v[{ACC+4*t}:{ACC+4*t+3}] offset:{1024*t}')
        if (i & 3) == 3: pending.append(i >> 2)
        if i == P.get('mpre', 24):
            for l in mloads: tm = vm.issue(l)
    for t in pending:
        pipe.issue(f'ds_write_b128 v23, v[{ACC+4*t}:{ACC+4*t+3}] offset:{1024*t}')
    stamp(6)
    a('v_lshlrev_b32 v4, 3, v0')
    a(f'v_add_u32 v4, {PRM}, v4')
    a('v_lshrrev_b32 v2, 1, v0')
    a('v_bfe_u32 v3, v0, 4, 2')
    a('v_xor_b32 v2, v2, v3')
    a('v_lshlrev_b32 v2, 4, v2')
    a('v_and_b32 v3, 1, v0')
    a('v_lshl_add_u32 v2, v3, 3, v2')
    a(f'v_add_u32 v2, {PB}, v2')
    a('v_lshrrev_b32 v3, 2, v0')
    a('v_lshlrev_b32 v3, 14, v3')
    a('v_and_b32 v5, 3, v0')
    a('v_lshl_add_u32 v3, v5, 4, v3')
    a('s_lshl_b32 s38, s32, 6')
    a(f's_add_u32 s38, s38, {hex(YT)}')
    a(f'v_add_u32 v13, {PRM}, v15')
    a('s_and_b32 s36, s32, 7')
    a('s_lshl_b32 s36, s36, 7')
    a(f's_add_u32 s6, s36, {PRM+5120}')
    a('v_lshl_add_u32 v14, v6, 4, s6')
    poll('md', mloads, [26, 30, 34], pre=tm)
    for r in range(3): a(f'ds_write_b64 v4, v[{24+4*r}:{25+4*r}] offset:{2048*r}')
    a('s_waitcnt lgkmcnt(0)')
    a('s_barrier')
    for j in range(4):
        for w in range(4):
            a(f'ds_read_b64 v[{72+8*j+2*w}:{73+8*j+2*w}], v2 offset:{8192*w+2048*j}')
        if j == 2: a('s_waitcnt lgkmcnt(8)')
    for j in range(4):
        b = 72+8*j; q = 24+4*j
        if j: a(f's_waitcnt lgkmcnt({12-4*j})')
        a(f'v_pk_add_f32 v[{b}:{b+1}], v[{b}:{b+1}], v[{b+2}:{b+3}]')
        a(f'v_pk_add_f32 v[{b+4}:{b+5}], v[{b+4}:{b+5}], v[{b+6}:{b+7}]')
        a(f'v_mov_b32 v{q+2}, s50')
        a(f'v_mov_b32 v{q+3}, s50')
        a(f'v_cvt_pk_bf16_f32 v{q}, v{b}, v{b+4}')
        a(f'v_cvt_pk_bf16_f32 v{q+1}, v{b+1}, v{b+5}')
        vm.issue(f'buffer_store_dwordx4 v[{q}:{q+3}], v3, s[16:19], s38 offen sc1')
        if j < 3: a('s_add_u32 s38, s38, 0x100000')
    stamp(7)
    for i, off in enumerate((1024, 0, 2048, 4096, 3072)):
        a(f'ds_read_b128 v[{40+4*i}:{43+4*i}], v13 offset:{off}')
    a('ds_read_b128 v[124:127], v14')
    while early: early.popleft()()
    a('v_lshrrev_b32 v4, 2, v0')
    a(f'v_mul_u32_u24 v3, {2*YS}, v5')
    a('v_lshl_add_u32 v3, v4, 2, v3')
    a(f'v_add_u32 v3, {XG}, v3')
    a(f's_mul_i32 s46, s3, {2*YS}')
    a(f's_add_u32 s46, s46, {XG}')
    a('v_add_u32 v4, s46, v15')
    a('s_lshl_b32 s46, s3, 1')
    a('v_xor_b32 v5, s46, v6')
    a('v_lshlrev_b32 v5, 4, v5')
    a('v_lshl_add_u32 v5, v1, 7, v5')
    a(f'v_add_u32 v5, {XH}, v5')
    a('v_xor_b32 v16, 16, v5')
    a('v_lshrrev_b32 v17, 3, v1')
    a('v_xor_b32 v18, v17, v6')
    a('v_lshlrev_b32 v18, 4, v18')
    a('v_lshl_add_u32 v18, v17, 7, v18')
    a('s_lshl_b32 s46, s3, 11')
    a(f's_add_u32 s46, s46, {XH}')
    a('v_add_u32 v18, s46, v18')
    a('v_lshlrev_b32 v17, 9, v17')
    a('v_lshl_add_u32 v17, v6, 4, v17')
    a('s_lshr_b32 s46, s32, 2')
    a('s_lshl_b32 s46, s46, 15')
    a('s_and_b32 s47, s32, 3')
    a('s_lshl_b32 s47, s47, 7')
    a('s_add_u32 s46, s46, s47')
    a('s_lshl_b32 s47, s3, 13')
    a('s_add_u32 s46, s46, s47')
    a(f's_add_u32 s46, s46, {hex(H2)}')
    a('s_add_u32 s47, s46, 0x1000')
    a(f's_add_u32 s34, s33, {hex(X1)}')
    a('v_lshlrev_b32 v14, 4, v0')
    a('s_lshl_b32 s35, s32, 14')
    a(f's_add_u32 s35, s35, {hex(YT)}')
    for j in range(1, 4): a(f's_add_u32 s{3+j}, s35, {0x1000*j}')
    X = (64, 96)
    subs = []
    for t in range(2):
        s = Asm(); unpack8(s, X[t], 232+4*t, 40); ln_stats(s, X[t], X[t]+8, X[t]+16, 24+t)
        for p in range(4):
            s(f'v_pk_mul_f32 v[{X[t]+8+2*p}:{X[t]+9+2*p}], v[{X[t]+8+2*p}:{X[t]+9+2*p}], v[{X[t]+16}:{X[t]+17}] op_sel:[0,0] op_sel_hi:[1,0]')
        subs.append(s)
    zipl(a, *subs)
    yloads = [f'buffer_load_dwordx4 v[{24+4*j}:{27+4*j}], v14, s[16:19], s{(35, 4, 5, 6)[j]} offen sc1' for j in range(4)]
    for l in yloads: ty = vm.issue(l)
    a('s_waitcnt lgkmcnt(0)')
    unpack8(a, 128, 40, 40); unpack8(a, 136, 44, 40); unpack8(a, 144, 48, 40)
    for t in range(2):
        for p in range(4):
            d = X[t]+8+2*p
            a(f'v_pk_fma_f32 v[{d}:{d+1}], v[{d}:{d+1}], v[{128+2*p}:{129+2*p}], v[{136+2*p}:{137+2*p}]')
        for p in range(4):
            d = X[t]+8+2*p
            a(f'v_pk_mul_f32 v[{d}:{d+1}], v[{d}:{d+1}], v[{144+2*p}:{145+2*p}]')
    unpack8(a, 128, 52, 40); unpack8(a, 136, 56, 40)
    poll('yt', yloads, [26, 30, 34, 38], pre=ty)
    stamp(8)
    for j in range(4):
        a(f'ds_write_b32 v3, v{24+4*j} offset:{256*j}')
        a(f'ds_write_b32 v3, v{25+4*j} offset:{256*j+YS}')
    a('s_waitcnt lgkmcnt(0)')
    a('s_barrier')
    a('ds_read_b128 v[24:27], v4')
    a(f'ds_read_b128 v[28:31], v4 offset:{YS}')
    a('s_waitcnt lgkmcnt(0)')
    subs = []
    for t in range(2):
        s = Asm(); x = X[t]
        unpack8(s, x+20, 24+4*t, 40)
        for p in range(4):
            s(f'v_pk_fma_f32 v[{x+2*p}:{x+2*p+1}], v[{x+8+2*p}:{x+9+2*p}], v[{x+20+2*p}:{x+21+2*p}], v[{x+2*p}:{x+2*p+1}]')
        for j in range(4): s(f'v_cvt_pk_bf16_f32 v{32+4*t+j}, v{x+2*j}, v{x+2*j+1}')
        s(f'buffer_store_dwordx4 v[{32+4*t}:{35+4*t}], v15, s[16:19], s34 offen offset:{1024*t} sc1')
        unpack8(s, x, 32+4*t, 40)
        ln_stats(s, x, x+8, x+16, 24+t)
        for p in range(4):
            s(f'v_pk_mul_f32 v[{x+8+2*p}:{x+9+2*p}], v[{x+8+2*p}:{x+9+2*p}], v[{x+16}:{x+17}] op_sel:[0,0] op_sel_hi:[1,0]')
        for p in range(4):
            s(f'v_pk_fma_f32 v[{x+8+2*p}:{x+9+2*p}], v[{x+8+2*p}:{x+9+2*p}], v[{128+2*p}:{129+2*p}], v[{136+2*p}:{137+2*p}]')
        for j in range(4): s(f'v_cvt_pk_bf16_f32 v{40+4*t+j}, v{x+8+2*j}, v{x+9+2*j}')
        s(f'ds_write_b128 v{(5, 16)[t]}, v[{40+4*t}:{43+4*t}]')
        subs.append(s)
    zipl(a, *subs)
    vm.issued += 2
    a('s_waitcnt lgkmcnt(0)')
    a('s_barrier')
    a('ds_read_b128 v[24:27], v18')
    a('ds_read_b128 v[28:31], v18 offset:1024')
    a('s_lshl_b32 s24, s32, 4')
    a('s_lshl_b32 s25, s3, 2')
    a('s_add_u32 s24, s24, s25')
    a('s_lshl_b32 s29, s30, 4')
    a('s_or_b32 s29, s29, s31')
    a('s_lshl_b32 s29, s29, 4')
    a('s_add_u32 s29, s29, s25')
    a('s_add_u32 s33, s29, 0x1000')
    a('s_lshl_b32 s25, s30, 8')
    a('s_lshl_b32 s26, s3, 6')
    a('s_add_u32 s25, s25, s26')
    a('v_and_b32 v19, 15, v1')
    a('v_lshlrev_b32 v19, 2, v19')
    a('s_waitcnt lgkmcnt(1)')
    vm.issue('buffer_store_dwordx4 v[24:27], v17, s[16:19], s46 offen sc1')
    a('s_waitcnt lgkmcnt(0)')
    vm.issue('buffer_store_dwordx4 v[28:31], v17, s[16:19], s47 offen sc1')
    a('v_bfe_u32 v4, v1, 4, 1')
    a('v_lshrrev_b32 v5, 5, v1')
    a('v_bfe_u32 v22, v1, 2, 2')
    a('v_and_b32 v23, 3, v1')
    a('v_lshlrev_b32 v23, 3, v23')
    a('v_lshl_add_u32 v3, v5, 3, v22')
    a('v_bfe_u32 v13, v1, 3, 1')
    a('v_lshlrev_b32 v16, 7, v3')
    a('v_add_u32 v16, v16, v23')
    a('v_lshl_add_u32 v16, v13, 6, v16')
    a('v_lshl_add_u32 v16, v4, 5, v16')
    a(f'v_mul_u32_u24 v17, {SEG[0][2]-SEG[0][1]}, v4')
    a(f'v_add_u32 v17, {SEG[0][1]}, v17')
    a(f'v_mul_u32_u24 v18, {P1U}, v4')
    for ct in range(4):
        a(f'v_xor_b32 v14, {32*ct}, v16')
        a(f'v_add_u32 v{246+ct}, v14, v17')
        a(f'v_add_u32 v{120+ct}, v14, v18')
    a('v_mul_u32_u24 v3, 0x60, v3')
    a('v_add_u32 v3, v3, v23')
    a('v_add_u32 v18, v18, v3')
    a('v_lshl_add_u32 v3, v5, 2, v22')
    a('v_lshlrev_b32 v3, 7, v3')
    a('v_lshl_add_u32 v3, v13, 6, v3')
    a('v_lshl_add_u32 v3, v4, 5, v3')
    a('v_add_u32 v3, v3, v23')
    a('s_lshl_b32 s26, s3, 11')
    a('v_add_u32 v240, s26, v3')
    a('v_xor_b32 v241, 64, v240')
    for i in range(1, 3):
        a(f'v_add_u32 v{240+2*i}, {65536*i}, v240')
        a(f'v_add_u32 v{241+2*i}, {65536*i}, v241')
    a(f's_mov_b32 s44, {fh(GC2)}'); a(f's_mov_b32 s45, {fh(GC2)}')
    a(f'v_mov_b32 v2, {fh(GC1)}'); a(f'v_mov_b32 v3, {fh(GC1)}')
    a('s_lshl_b32 s27, s30, 2')
    a('s_add_u32 s27, s27, s3')
    a('s_lshl_b32 s28, s27, 15')
    a(f's_add_u32 s28, s28, {hex(H2)}')
    a('s_waitcnt vmcnt(0)'); vm.done = vm.issued
    stamp(9)
    vm.issue('buffer_store_dword v20, v21, s[52:55], s24 offen sc1')
    ptok = {}
    def p2dma(k):
        k0, gb, ub = seg_of(k)
        a(f's_add_u32 m0, {"s49" if k < 15 else "s43"}, {gb + 2048*(k-k0)}')
        if k: a(f's_add_u32 s48, s48, {16*3584}')
        ptok[k] = vm.issue('buffer_load_dwordx4 v7, s[20:23], s48 offen lds')
    for k in range(7): p2dma(k)
    a('s_mul_i32 s29, s27, 112')
    a('s_lshl_b32 s47, s31, 2')
    a('s_add_u32 s47, s47, s29')
    a('s_lshl_b32 s47, s47, 10')
    a(f's_add_u32 s47, s47, {hex(ACT)}')
    a('s_mul_i32 s46, s31, 3')
    a('s_add_u32 s46, s46, s29')
    a('s_lshl_b32 s46, s46, 10')
    a(f's_add_u32 s46, s46, {hex(ACT + 64*1024)}')
    a('s_lshr_b32 s39, s32, 3')
    a('s_and_b32 s35, s39, 1')
    a('s_and_b32 s36, s32, 7')
    a('s_lshl_b32 s36, s36, 7')
    a(f's_mul_i32 s37, s3, {192*1024}')
    a('s_add_u32 s37, s37, s36')
    a(f's_add_u32 s37, s37, {1024*1024}')
    a('s_lshl_b32 s38, s3, 18')
    a('s_add_u32 s38, s38, s36')
    a(f's_mul_i32 s4, s39, {224*1024}')
    a(f's_add_u32 s4, s4, {hex(ACT)}')
    a('s_lshl_b32 s6, s3, 14')
    a('s_add_u32 s6, s6, s4')
    a(f's_mul_i32 s5, s3, {12*1024}')
    a('s_add_u32 s5, s5, s4')
    a(f's_add_u32 s5, s5, {64*1024}')
    a('s_lshr_b32 s34, s39, 1')
    a('s_lshl_b32 s34, s34, 8')
    a('s_lshl_b32 s29, s3, 6')
    a('s_add_u32 s34, s34, s29')
    a('s_add_u32 s24, s34, 0x1000')
    a('s_lshl_b32 s39, s39, 16')
    a('s_add_u32 s39, s39, s36')
    a('v_bfe_u32 v4, v1, 1, 2')
    a('v_and_b32 v5, 1, v1')
    a('v_lshlrev_b32 v5, 2, v5')
    a('v_lshl_add_u32 v4, v4, 4, v5')
    a('s_lshl_b32 s35, s35, 3')
    a('v_add_u32 v13, s35, v4')
    poll('f1', ['buffer_load_dword v22, v19, s[52:55], s25 offen sc1'], [22])
    htok = {}
    def h2load(ks):
        htok[ks] = vm.issue(f'buffer_load_dwordx4 a[{4*ks}:{4*ks+3}], v15, s[16:19], s28 offen offset:{1024*(ks&3)} sc1')
        if (ks & 3) == 3: a('s_add_u32 s28, s28, 0x1000')
    NH0 = P.get('nh0', 8)
    for ks in range(NH0): h2load(ks)
    a('s_barrier')
    stamp(10)
    fill = deque()
    wtok = {}
    def wdslot(i):
        s = i % 20
        so = 's37' if i < 12 else 's38'
        def f0():
            a(f's_add_u32 m0, s26, {8192*WBL[s]}')
            vm.issue(f'buffer_load_dwordx4 v8, s[8:11], {so} offen lds')
        def f1():
            wtok[i] = vm.issue(f'buffer_load_dwordx4 v9, s[8:11], {so} offen offset:1024 lds')
            a(f's_add_u32 {so}, {so}, 0x4000')
        return [f0, f1]
    for ks in range(NH0, 32): fill.append(lambda ks=ks: h2load(ks))
    for k in range(7, 15): fill.append(lambda k=k: p2dma(k))
    valu = deque()
    AR, NA = 24, 6
    ACC1, ACC2 = 192, 128
    pipe = LdsPipe(a)
    steps = [(0, k, ct) for k in range(32) for ct in range(3)] + [(1, k, ct) for k in range(32) for ct in range(4)]
    tok = {}; nxt = [0]
    def rd(n):
        ps, k, ct = steps[n]; d = AR + 4*(n % NA)
        for jj in range(2):
            if ps == 0: b, off = 18, (16*k + 4*jj)*96 + 32*ct
            else:
                k0, gb, ub = seg_of(k)
                b, off = (246+ct, 2048*k + 512*jj) if k < 15 else (120+ct, gb + 2048*(k-k0) + 512*jj)
            tok[n] = pipe.issue(f'ds_read_b64_tr_b16 v[{d+2*jj}:{d+2*jj+1}], v{b} offset:{off}')
    for n in range(NA-1): rd(n)
    nxt[0] = NA-1
    VB = P.get('vb', 3); FE = P.get('fe', 2)
    stok = {}
    LAND = {3: 14, 5: 26, 6: 31}
    for n, (ps, k, ct) in enumerate(steps):
        if ps == 0 and ct == 0:
            while k not in htok: fill.popleft()()
            vm.need(htok[k])
        pipe.need(tok[n])
        d = (ACC1, ACC2)[ps] + 16*ct; c = '0' if k == 0 else f'v[{d}:{d+15}]'
        sa = AR + 4*(n % NA)
        a(f'v_mfma_f32_32x32x16_bf16 v[{d}:{d+15}], v[{sa}:{sa+3}], a[{4*k}:{4*k+3}], {c}')
        if nxt[0] < len(steps): rd(nxt[0]); nxt[0] += 1
        last = ct == (2, 3)[ps]
        credit = VB
        if last and (k & 7) == 7:
            q = 4*ps + (k >> 3) + 1
            if q > 1:
                if q in LAND:
                    while LAND[q] not in ptok: fill.popleft()()
                    vm.need(ptok[LAND[q]])
                a('s_barrier')
            if q == 4: stamp(11)
            if q == 8: stamp(12)
            if q == 2:
                for kk in range(15, 27): fill.append(lambda kk=kk: p2dma(kk))
            if q == 3:
                for kk in range(27, 32): fill.append(lambda kk=kk: p2dma(kk))
            if 4 <= q < 8:
                for i in range(([0] + WAV)[q-4], WAV[q-4]): fill.extend(wdslot(i))
            if q == 4:
                for t in range(3):
                    o = 64 + 4*(t & 1)
                    valu.extend(gelu_ops(ACC1+16*t, 48 + 8*(t & 1), o))
                    valu.append(('store', t, o))
        if fill and not valu and (ps == 1 or n % FE == 0):
            fill.popleft()()
        while valu and credit >= (cost(valu[0]) if isinstance(valu[0], str) else 1):
            x = valu.popleft()
            if isinstance(x, tuple):
                stok[x[1]] = vm.issue(f'buffer_store_dwordx4 v[{x[2]}:{x[2]+3}], v15, s[16:19], s46 offen offset:{1024*x[1]} sc1')
                if x[1] == 2: flag_at = n + P.get('fdel', 20)
            else:
                a(x); credit -= cost(x)
        if 2 in stok and 'f2' not in stok and (n >= flag_at or n == len(steps)-1):
            vm.need(stok[2])
            stok['f2'] = vm.issue('buffer_store_dword v20, v21, s[52:55], s33 offen sc1')
    assert not valu and 'f2' in stok
    while fill: fill.popleft()()
    fload = ['buffer_load_dword v22, v13, s[52:55], s24 offen sc1']
    tp = vm.issue(fload[0])
    for i in range(14, 20):
        for f in wdslot(i): f()
    a('s_mov_b32 s34, 1.0'); a('s_mov_b32 s35, 1.0')
    def geglu2(t):
        s = Asm(); geglu(s, ACC2+16*t, 48, 64 + 4*(t & 1))
        for l in s.lines: a(l.replace('s[46:47]', 's[34:35]'))
        return vm.issue(f'buffer_store_dwordx4 v[{64+4*(t&1)}:{67+4*(t&1)}], v15, s[16:19], s47 offen offset:{1024*t} sc1')
    geglu2(0)
    geglu2(1)
    poll('f2', fload, [22], pre=tp)
    atok = {}
    def abase(i): return 128 + 8*i if i < 12 else 8*(i-12)
    def actload(i):
        b = abase(i)
        so = 's5' if i < 12 else 's6'
        j = i & 3
        vm.issue(f'buffer_load_dwordx4 a[{b}:{b+3}], v15, s[16:19], {so} offen offset:{1024*j} sc1')
        if j == 0: a(f's_add_u32 s7, {so}, {112*1024}')
        atok[i] = vm.issue(f'buffer_load_dwordx4 a[{b+4}:{b+7}], v15, s[16:19], s7 offen offset:{1024*j} sc1')
        if j == 3: a(f's_add_u32 {so}, {so}, 0x1000')
    geglu2(2)
    ts3 = geglu2(3)
    for i in range(12): actload(i)
    a('v_lshrrev_b32 v4, 3, v0')
    a('v_lshlrev_b32 v10, 10, v4')
    a('v_lshl_add_u32 v10, v6, 4, v10')
    a(f's_add_u32 s46, s39, {hex(X1)}')
    a('s_add_u32 s47, s46, 0x8000')
    a('s_add_u32 s29, s33, 0x1000')
    a('s_add_u32 s24, s24, 0x1000')
    vm.need(ts3)
    vm.issue('buffer_store_dword v20, v21, s[52:55], s29 offen sc1')
    stamp(13)
    pipe = LdsPipe(a); tok = {}
    def rd2(i):
        d = AR + 8*(i % 3); ad = 8192*WBL[i % 20]
        for mt in range(2):
            for jj in range(2):
                tok[(i, mt)] = pipe.issue(f'ds_read_b64_tr_b16 v[{d+4*mt+2*jj}:{d+4*mt+2*jj+1}], v{240+2*(ad>>16)+mt} offset:{(ad & 0xffff)+1024*jj}')
    vm.need(wtok[1]); rd2(0); rd2(1)
    for i in range(28):
        if i == 12:
            poll('f3', fload, [22])
            stamp(14)
            for ii in range(12, 28): actload(ii)
            vm.issue('buffer_load_dwordx4 v[72:75], v10, s[16:19], s46 offen sc1')
            tx = vm.issue('buffer_load_dwordx4 v[76:79], v10, s[16:19], s47 offen sc1')
        d0 = AR + 8*(i % 3); b = abase(i)
        vm.need(atok[i])
        for mt in range(2):
            pipe.need(tok[(i, mt)])
            for nt in range(2):
                d = ACC2 + 32*mt + 16*nt; c = '0' if i == 0 else f'v[{d}:{d+15}]'
                a(f'v_mfma_f32_32x32x16_bf16 v[{d}:{d+15}], v[{d0+4*mt}:{d0+4*mt+3}], a[{b+4*nt}:{b+4*nt+3}], {c}')
                if mt == 0 and nt == 0 and i+2 < 28:
                    vm.need(wtok[i+2]); rd2(i+2)
                if mt == 1 and i < 8:
                    wdslot(20+i)[nt]()
    a('v_and_b32 v4, 31, v1')
    a(f'v_mul_u32_u24 v4, {PS}, v4')
    a('v_lshrrev_b32 v5, 5, v1')
    a('v_lshl_add_u32 v4, v5, 4, v4')
    a(f's_mul_i32 s26, s3, {64*PS}')
    a('v_add_u32 v18, s26, v4')
    a('v_lshrrev_b32 v4, 3, v0')
    a(f'v_mul_u32_u24 v4, {PS}, v4')
    a('v_lshl_add_u32 v19, v6, 5, v4')
    base(a, 12, 56, 0x200000)
    a('s_add_u32 s38, s39, 0x8000')
    a('s_barrier')
    stamp(15)
    for mt in range(2):
        for nt in range(2):
            for g in range(4):
                d = ACC2 + 32*mt + 16*nt + 4*g
                a(f'ds_write_b128 v18, v[{d}:{d+3}] offset:{nt*32*PS + mt*128 + g*32}')
    vm.need(tx)
    unpack8(a, 84, 124, 40); unpack8(a, 24, 72, 40); unpack8(a, 32, 76, 40)
    a('s_waitcnt lgkmcnt(0)')
    a('s_barrier')
    for jj in range(2):
        for w in range(4):
            for e in range(2):
                d = 128 + 32*jj + 8*w + 4*e
                a(f'ds_read_b128 v[{d}:{d+3}], v19 offset:{w*64*PS + jj*32*PS + 16*e}')
    for jj in range(2):
        b = 128 + 32*jj
        a(f's_waitcnt lgkmcnt({8-8*jj})')
        for p in range(4): a(f'v_pk_add_f32 v[{b+2*p}:{b+2*p+1}], v[{b+2*p}:{b+2*p+1}], v[{b+8+2*p}:{b+9+2*p}]')
        for p in range(4): a(f'v_pk_add_f32 v[{b+16+2*p}:{b+17+2*p}], v[{b+16+2*p}:{b+17+2*p}], v[{b+24+2*p}:{b+25+2*p}]')
        for p in range(4): a(f'v_pk_add_f32 v[{b+2*p}:{b+2*p+1}], v[{b+2*p}:{b+2*p+1}], v[{b+16+2*p}:{b+17+2*p}]')
        x = 24 + 8*jj
        for p in range(4): a(f'v_pk_fma_f32 v[{b+2*p}:{b+2*p+1}], v[{b+2*p}:{b+2*p+1}], v[{84+2*p}:{85+2*p}], v[{x+2*p}:{x+2*p+1}]')
        for p in range(4): a(f'v_cvt_pk_bf16_f32 v{40+4*jj+p}, v{b+2*p}, v{b+2*p+1}')
        a(f'buffer_store_dwordx4 v[{40+4*jj}:{43+4*jj}], v10, s[12:15], s{39-jj} offen')
    a('s_or_b32 s4, s2, s3')
    a('s_cmp_lg_u32 s4, 0')
    a('s_cbranch_scc1 L_noep')
    a(f's_mov_b32 s4, {hex(EPOCH)}')
    a('buffer_store_dword v20, v21, s[16:19], s4 offen')
    a.label('L_noep')
    if P.get('stamps'):
        a('s_waitcnt vmcnt(0)')
        stamp(5)
        a('s_cmp_lg_u32 s3, 0')
        a('s_cbranch_scc1 L_end')
        a('s_lshl_b32 s94, s2, 7')
        a(f's_add_u32 s94, s94, {hex(TS)}')
        a('s_add_u32 s92, s58, s94')
        a('s_addc_u32 s93, s59, 0')
        a('s_mov_b64 exec, 1')
        if P.get('dbg'):
            a('s_load_dwordx2 s[94:95], s[0:1], 104')
        a('s_waitcnt lgkmcnt(0)')
        if P.get('dbg'):
            a('s_not_b32 s60, s60')
            for m in sorted(marks):
                a(f'v_mov_b32 v250, s{60+2*m}')
                a(f'global_atomic_umax v21, v250, s[94:95] offset:{4*m}')
                a('s_nop 1')
            a('s_not_b32 s60, s60')
        for m in sorted(marks):
            a(f'v_mov_b32 v250, s{60+2*m}')
            a(f'v_mov_b32 v251, s{61+2*m}')
            a(f'global_store_dwordx2 v21, v[250:251], s[92:93] offset:{8*m}')
            a('s_nop 1')
    a.label('L_end')
    a('s_endpgm')
    return dict(grid=256, block=256, lds=163840, vgpr=512, accum=256)
```

```python
from collections import deque
from asmlib import *
from k123 import fh, lo, hi, unpack8, ln_stats, LdsPipe, A_OUT, A_WS
from k45 import VmPipe, GC1, GC2, geglu
from cde import zipl, gelu_ops, cost

UT, YT, X1, H2, ACT = 0, 0x400000, 0x900000, 0, 0xD00000
MODT, EPOCH, GRP, MP, TS = 0x1400000, 0x1408000, 0x1410000, 0x1480000, 0x1500000
YP = 16384 + 128
XID, UH, F1, F2, F3 = 0, 128, 1024, 1536, 2048
P1U = 49280
SEG = [(0, 98432, 129152), (15, 0, 49280), (27, 24576, 73856)]
CB, CHS, KB, U0, U1 = 98432, 12992, 512, 4608, 8768
PB = CB + 2*CHS
PRM = PB + 32768
MPART = PRM + 6144
XG = 129152 + 112*128
YS = 1040
XH = XG + 8*YS
PS = 272
SPIN = 1 << 15
WBL = [5, 11, 12, 13, 16, 14, 15, 17, 18, 19, 0, 1, 6, 7, 2, 3, 4, 8, 9, 10]
WAV = [2, 5, 10, 14, 20]
assert MPART + 512 <= 163840 and XH + 8192 <= 163840
def seg_of(k): return SEG[0] if k < 15 else SEG[1] if k < 27 else SEG[2]

def base(a, d, p, n):
    a(f's_mov_b32 s{d}, s{p}'); a(f's_mov_b32 s{d+1}, s{p+1}'); a(f's_mov_b32 s{d+2}, {hex(n)}')

def mega(a, P):
    marks = set()
    SETS = {1: 'start kv0 utst utok bbar end bend ytst ytok h2dr b0 b4 b8 estart f3ok eend',
            2: 'start kv0 kvN abar utst end ut1st uhok utok bbar bend pbar ytst ytack ytok mdok',
            3: 'start ytst ln1 ytack ytok end ybar hbar h2st h2dr f1ok b0 b1 b2 b3 b4',
            4: 'start b4 b5 b6 b7 end b8 g1 f2ok g3 estart e4 e12 f3ok e20 eend'}
    names = SETS[P.get('stamps', 1)].split()
    def stamp(name):
        if P.get('stamps') and name in names:
            slot = names.index(name)
            a(f's_memrealtime s[{60+2*slot}:{61+2*slot}]'); marks.add(slot)
    def raw(i, sreg):
        if P.get('stamps'): a(f'v_writelane_b32 v254, {sreg}, {i}')
    vm = VmPipe(a)
    nst = [0]
    def lstore(lines, emit=None):
        n = nst[0]; nst[0] += 1
        a('s_cmp_eq_u32 s101, 0')
        a(f's_cbranch_scc1 L_ls{n}a')
        for l in lines: a(l + ' sc1')
        a(f's_branch L_ls{n}b')
        a.label(f'L_ls{n}a')
        for l in lines: t = vm.issue(l)
        a.label(f'L_ls{n}b')
        return t
    def poll(name, loads, tags, pre=None):
        a(f's_mov_b32 s51, {SPIN}')
        if pre is not None:
            vm.need(pre)
            stamp(name + '1st')
            a(f's_branch L_{name}_chk')
        a.label(f'L_{name}')
        for l in loads: a(l)
        a('s_waitcnt vmcnt(0)')
        a.label(f'L_{name}_chk')
        a(f'v_cmp_ne_u32 vcc, s50, v{tags[0]}')
        for i, t in enumerate(tags[1:]): a(f'v_cmp_ne_u32 s[{92+2*i}:{93+2*i}], s50, v{t}')
        a('s_sub_u32 s51, s51, 1')
        a(f's_cbranch_scc1 L_{name}_ok')
        for i in range(len(tags)-1): a(f's_or_b64 vcc, vcc, s[{92+2*i}:{93+2*i}]')
        a(f's_cbranch_vccnz L_{name}')
        a.label(f'L_{name}_ok')
        if pre is None: vm.done = vm.issued

    a('s_cmp_ge_u32 s2, 256')
    a('s_cbranch_scc1 L_end')
    stamp('start')
    if P.get('stamps'): a('v_mov_b32 v254, 0')
    a('s_load_dwordx16 s[64:79], s[0:1], 0')
    a(f's_load_dwordx2 s[58:59], s[0:1], {A_WS}')
    a('s_load_dwordx8 s[80:87], s[0:1], 64')
    a(f's_load_dwordx2 s[56:57], s[0:1], {A_OUT}')
    a('v_lshrrev_b32 v2, 6, v0')
    a('v_and_b32 v1, 63, v0')
    a('v_readfirstlane_b32 s3, v2')
    a('s_mov_b32 s40, 0xffff0000')
    a('s_and_b32 s28, s2, 7')
    a('s_lshr_b32 s29, s2, 3')
    a('s_lshl_b32 s32, s28, 5')
    a('s_or_b32 s32, s32, s29')
    a('v_and_b32 v3, 31, v0')
    a('v_lshrrev_b32 v2, 5, v0')
    a('s_lshl_b32 s33, s29, 6')
    a('v_lshl_add_u32 v4, v2, 3, s33')
    a('s_lshl_b32 s33, s28, 7')
    a('v_lshl_add_u32 v5, v3, 2, s33')
    a('v_lshl_add_u32 v5, v4, 10, v5')
    a('v_subrev_u32 v4, 0xc00, v5')
    a('s_lshl_b32 s33, s28, 9')
    a('v_lshl_add_u32 v13, v3, 4, s33')
    a('s_movk_i32 s35, 0x1000')
    a('s_mov_b32 s15, 0x20000'); a('s_mov_b32 s27, 0x20000'); a('s_mov_b32 s19, 0x20000')
    a('s_mov_b32 s23, 0x20000'); a('s_mov_b32 s11, 0x20000'); a('s_mov_b32 s55, 0x20000')
    a('v_lshlrev_b32 v15, 4, v1')
    a('v_mov_b32 v21, 0')
    a('v_lshlrev_b32 v14, 4, v0')
    a('s_waitcnt lgkmcnt(0)')
    base(a, 12, 70, 4096)
    base(a, 24, 68, 0x200000)
    tsh = vm.issue('buffer_load_dwordx4 v[48:51], v13, s[12:15], 0 offen')
    base(a, 12, 66, 0x200000)
    for i in range(3): vm.issue(f'buffer_load_dword v{24+i}, v4, s[12:15], 0 offen offset:{1024*i}')
    tk = {}
    for i in range(8):
        so = 's35' if i >= 4 else '0'
        vm.issue(f'buffer_load_dword v{27+i}, v5, s[12:15], {so} offen offset:{1024*(i&3)}')
        tk[i] = vm.issue(f'buffer_load_dword v{36+i}, v5, s[24:27], {so} offen offset:{1024*(i&3)}')
    a(f's_add_u32 s4, s58, {hex(EPOCH)}')
    a('s_addc_u32 s5, s59, 0')
    a('s_load_dword s50, s[4:5], 0')
    if P.get('kvbar', 1): a('s_barrier')
    a('s_lshl_b32 s33, s32, 2')
    a('s_add_u32 s6, s74, s33')
    a('s_addc_u32 s7, s75, 0')
    a('s_load_dword s34, s[6:7], 0')
    base(a, 12, 72, 0x200000)
    a('s_lshl_b32 s33, s32, 13')
    a('s_add_u32 s36, s33, 0x1000')
    vm.issue('buffer_load_dwordx4 v[146:149], v14, s[12:15], s33 offen')
    tsk = vm.issue('buffer_load_dwordx4 v[150:153], v14, s[12:15], s36 offen')
    a('s_mul_i32 s30, s28, 6')
    a('s_lshr_b32 s31, s29, 2')
    a('s_add_u32 s30, s30, s31')
    a('s_and_b32 s31, s29, 3')
    a('s_lshl_b32 s46, s30, 2')
    a('s_or_b32 s46, s46, s31')
    a('s_lshl_b32 s47, s31, 2')
    a('s_or_b32 s47, s47, s3')
    a('v_and_b32 v16, 1, v0')
    a('v_lshrrev_b32 v17, 3, v1')
    a('v_and_b32 v6, 7, v1')
    a('v_mul_u32_u24 v242, 0x6000, v17')
    a('v_lshl_add_u32 v242, v6, 4, v242')
    a('v_lshlrev_b32 v243, 3, v17')
    a('s_lshl_b32 s36, s3, 11')
    a('s_add_u32 s33, s33, s36')
    a('s_lshr_b32 s30, s32, 4')
    a('s_and_b32 s31, s32, 15')
    a('s_mov_b32 s98, s28')
    a('s_lshr_b32 s38, s3, 1')
    a('s_and_b32 s39, s3, 1')
    a('s_cmp_eq_u32 s38, 0')
    a('s_cselect_b32 s20, s78, s80')
    a('s_cselect_b32 s21, s79, s81')
    a(f's_mov_b32 s22, {512*3584}')
    base(a, 8, 82, 1792*1024)
    base(a, 16, 58, TS)
    a('s_lshl_b32 s36, s28, 12')
    a(f's_add_u32 s36, s36, {hex(GRP)}')
    a('s_add_u32 s52, s58, s36')
    a('s_addc_u32 s53, s59, 0')
    a('s_movk_i32 s54, 0x1000')
    a('s_cmp_eq_u32 s3, 3')
    a('s_cselect_b32 s37, 0, 0x70000000')
    a('v_mov_b32 v22, s37')
    a('s_lshl_b32 s36, s29, 7')
    vm.issue('buffer_load_dword v158, v22, s[52:55], s36 offen')
    a('s_lshl_b32 s36, s46, 6')
    a(f's_add_u32 s36, s36, {hex(MODT)}')
    vm.issue('buffer_load_dword v159, v22, s[16:19], s36 offen')
    a('s_lshl_b32 s36, s32, 13')
    a('s_lshl_b32 s37, s46, 11')
    a(f's_add_u32 s37, s37, {hex(MP)}')
    a('s_cmp_eq_u32 s3, 1')
    a(f's_cselect_b32 s37, s37, {hex(TS)}')
    a('s_cselect_b32 s44, 15, 63')
    a('s_cmp_eq_u32 s3, 2')
    a('s_cselect_b32 s37, s36, s37')
    a('v_and_b32 v4, s44, v1')
    a('v_lshlrev_b32 v4, 7, v4')
    if P.get('utt', 1): vm.issue('buffer_load_dword v157, v4, s[16:19], s37 offen')
    if P.get('tlb', 1):
        a('v_lshl_add_u32 v4, v1, 20, v22')
        for i, (p, n) in enumerate(((86, 512*6144), (84, 1024), (64, 0x200000), (78, 512*3584), (80, 512*3584), (82, 1792*1024), (56, 0x200000))):
            base(a, 12, p, n)
            vm.issue(f'buffer_load_dword v{160+i}, v4, s[12:15], 0 offen')
        vm.issue('buffer_load_dword v154, v4, s[16:19], 0 offen')
    for i in range(3):
        a(f'v_add_u32 v4, {64*i}, v1')
        a('v_mul_u32_u24 v5, 0x2aab, v4')
        a('v_lshrrev_b32 v5, 16, v5')
        a(f'v_mul_u32_u24 v5, {3584-96}, v5')
        a(f'v_lshl_add_u32 v{10+i}, v4, 4, v5')
        if i: a(f'v_subrev_u32 v{10+i}, {1024*i}, v{10+i}')
    a(f's_mul_i32 s41, s39, {32*3584}')
    a('s_mul_i32 s43, s31, 96')
    a('s_add_u32 s41, s41, s43')
    a('s_add_u32 s41, s41, 0x800')
    a('s_mul_i32 s43, s39, 3072')
    a(f's_mul_i32 s42, s38, {P1U}')
    a('s_add_u32 s42, s42, s43')
    early = deque()
    def p1dma(i):
        if i == 0:
            a('s_mul_i32 s99, s98, 6144')
            a('s_add_u32 m0, s99, s42')
            a(f's_mul_i32 s99, s98, {64*3584}')
            a('s_add_u32 s99, s99, s41')
        vm.issue(f'buffer_load_dwordx4 v{10+i}, s[20:23], s99 offen offset:{1024*i} lds')
        if i == 2:
            a('s_add_u32 s98, s98, 1'); a('s_and_b32 s98, s98, 7')
    for m in range(8):
        for i in range(3): early.append(lambda i=i: p1dma(i))
    for _ in range(P.get('e0', 0)): early.popleft()()
    a('v_lshrrev_b32 v4, 3, v1')
    a('v_bfe_u32 v5, v1, 4, 1')
    a('v_lshlrev_b32 v5, 2, v5')
    a('v_xor_b32 v5, v5, v6')
    a('v_lshlrev_b32 v5, 4, v5')
    a('v_lshl_add_u32 v8, v4, 10, v5')
    a(f'v_add_u32 v9, {8192-1024}, v8')
    a('s_lshl_b32 s43, s38, 5')
    a('v_xor_b32 v5, s43, v5')
    a('v_mul_u32_u24 v7, 0xe00, v4')
    a('v_add_u32 v7, v7, v5')
    a(f's_mul_i32 s48, s39, {8*3584}')
    a('s_lshl_b32 s43, s31, 7')
    a('s_add_u32 s48, s48, s43')
    a('s_lshl_b32 s43, s39, 10')
    a(f's_mul_i32 s49, s38, {SEG[0][2]-SEG[0][1]}')
    a('s_add_u32 s49, s49, s43')
    a(f's_mul_i32 s38, s38, {P1U}')
    a('s_add_u32 s43, s43, s38')
    a('v_sub_u32 v4, 7, v2')
    a('v_xor_b32 v4, v4, v6')
    a('v_lshl_add_u32 v4, v3, 4, v4')
    a(f'v_lshlrev_b32 v4, 4, v4')
    a(f'v_add_u32 v120, {PB}, v4')
    a('v_lshrrev_b32 v4, 4, v1')
    a('v_xor_b32 v5, v4, v1')
    a('s_lshl_b32 s36, s3, 11')
    a(f's_add_u32 s36, s36, {PB}')
    a('v_lshl_add_u32 v124, v5, 4, s36')
    a('v_xor_b32 v125, 64, v124')
    a('v_lshrrev_b32 v4, 3, v1')
    a('v_lshlrev_b32 v5, 4, v6')
    a('v_lshl_add_u32 v13, v4, 12, v5')
    a('s_lshl_b32 s36, s28, 2')
    a('s_add_u32 s36, s36, s3')
    a('s_lshl_b32 s36, s36, 16')
    a('s_sub_u32 s35, 31, s29')
    a('s_lshl_b32 s35, s35, 7')
    a('s_add_u32 s35, s35, s36')
    a('s_waitcnt lgkmcnt(0)')
    a('s_mul_i32 s50, s50, 1664525')
    a('s_add_u32 s50, s50, 1013904223')
    a('v_mov_b32 v20, s50')
    a('s_getreg_b32 s100, hwreg(HW_REG_XCC_ID, 0, 4)')
    if P.get('slow'): a('s_and_b32 s100, s29, 1')
    a('s_add_u32 s100, s100, s50')
    a('s_add_u32 s100, s100, 1')
    a('s_cmp_lg_u32 s3, 0')
    a('s_cbranch_scc1 L_noid')
    a('v_mov_b32 v22, s100')
    a('s_lshl_b32 s36, s29, 2')
    a(f'buffer_store_dword v22, v21, s[52:55], s36 offen offset:{XID} sc1')
    a.label('L_noid')
    vm.need(tsh)
    lo(a, 52, 48); hi(a, 54, 48, 40); lo(a, 56, 49); hi(a, 58, 49, 40)
    lo(a, 53, 50); hi(a, 55, 50, 40); lo(a, 57, 51); hi(a, 59, 51, 40)
    vm.need(tk[0])
    stamp('kv0')
    for q in range(3):
        lo(a, 60+2*q, 24+q); hi(a, 61+2*q, 24+q, 40)
    for r in range(8):
        vm.need(tk[r])
        lo(a, 66+2*r, 27+r); hi(a, 67+2*r, 27+r, 40)
        lo(a, 84+2*r, 36+r); hi(a, 85+2*r, 36+r, 40)
        d = 102+2*r
        a(f'v_pk_mul_f32 v[{d}:{d+1}], v[{60+2*r}:{61+2*r}], v[58:59]')
        a(f'v_pk_fma_f32 v[{d}:{d+1}], v[{62+2*r}:{63+2*r}], v[56:57], v[{d}:{d+1}]')
        a(f'v_pk_fma_f32 v[{d}:{d+1}], v[{64+2*r}:{65+2*r}], v[54:55], v[{d}:{d+1}]')
        a(f'v_pk_fma_f32 v[{d}:{d+1}], v[{66+2*r}:{67+2*r}], v[52:53], v[{d}:{d+1}]')
        a(f'v_pk_mul_f32 v[{d}:{d+1}], v[{d}:{d+1}], v[{84+2*r}:{85+2*r}]')
    stamp('kvN')
    for c in range(2):
        for jj in range(4):
            a(f'v_cvt_pk_bf16_f32 v{24+4*c+jj}, v{102+2*(7-2*jj)+c}, v{102+2*(6-2*jj)+c}')
        a(f'ds_write_b128 v120, v[{24+4*c}:{27+4*c}] offset:{128*c}')
    a('s_waitcnt lgkmcnt(0)')
    a('s_barrier')
    stamp('abar')
    for j in range(2): a(f'ds_read_b128 v[{104+4*j}:{107+4*j}], v{124+j} offset:{1024*j}')
    a('s_mov_b32 s24, s35')
    a('s_add_u32 s25, s35, 0x8000')
    ustores = [f'buffer_store_dwordx4 v[{104+4*j}:{107+4*j}], v13, s[16:19], s{24+j} offen' for j in range(2)]
    for j in range(2):
        a(f's_waitcnt lgkmcnt({1-j})')
        tus = vm.issue(ustores[j])
    a('s_load_dwordx2 s[44:45], s[0:1], 0')
    a('s_load_dwordx2 s[94:95], s[0:1], 80')
    a('s_load_dwordx2 s[96:97], s[0:1], 88')
    a('s_lshl_b32 s7, s3, 7')
    a('s_lshl_b32 s36, s29, 2')
    a('s_add_u32 s7, s7, s36')
    a('v_mov_b32 v123, s100')
    stamp('utst')
    for i in range(4): a(f'v_mov_b32 v{40+i}, 0')
    a(f'v_add_u32 v14, {CB}, v14')
    a('v_cmp_gt_u32 vcc, 32, v0')
    a('s_and_saveexec_b64 s[36:37], vcc')
    a('s_cbranch_execz L_nz')
    a('ds_write_b128 v14, v[40:43]')
    a(f'ds_write_b128 v14, v[40:43] offset:{CHS}')
    a('v_cmp_gt_u32 vcc, 2, v0')
    a('s_and_b64 exec, exec, vcc')
    for c in range(2):
        a(f'ds_write_b128 v14, v[40:43] offset:{c*CHS+U0+4096}')
        a(f'ds_write_b128 v14, v[40:43] offset:{c*CHS+U1+4096}')
    a.label('L_nz')
    a('s_mov_b64 exec, s[36:37]')
    a('v_cmp_eq_u32 s[36:37], 0, v0')
    a('s_lshl_b32 s4, s34, 16')
    a('s_and_b32 s5, s34, 0xffff0000')
    a('s_mov_b32 s6, 0xffff')
    vm.need(tsk)
    stamp('skok')
    for c in range(2):
        kx = 146+4*c
        lo(a, 44, kx)
        a(f'v_add_f32 v44, s{4+c}, v44')
        a('v_cvt_pk_bf16_f32 v44, v44, v44')
        a(f'v_bfi_b32 v44, s6, v44, v{kx}')
        a(f'v_cndmask_b32 v{kx}, v{kx}, v44, s[36:37]')
        a(f'ds_write_b128 v14, v[{kx}:{kx+3}] offset:{c*CHS+KB}')
    vm.need(tus)
    vm.issue(f'buffer_store_dword v123, v21, s[52:55], s7 offen offset:{UH}')
    a('v_and_b32 v120, 31, v1')
    a('v_lshlrev_b32 v120, 2, v120')
    a('s_lshr_b32 s5, s29, 3')
    a('s_lshl_b32 s5, s5, 7')
    hloads = [f'buffer_load_dword v121, v120, s[52:55], 0 offen offset:{XID} sc1', f'buffer_load_dword v124, v120, s[52:55], s5 offen offset:{UH} sc1']
    for l in hloads: tu = vm.issue(l)
    a('v_lshrrev_b32 v4, 1, v6')
    a('v_lshlrev_b32 v4, 11, v4')
    a('v_lshl_add_u32 v4, v16, 6, v4')
    a('v_lshrrev_b32 v5, 5, v1')
    a('v_lshl_add_u32 v4, v5, 5, v4')
    a('v_bfe_u32 v5, v1, 4, 1')
    a('v_lshl_add_u32 v244, v5, 4, v4')
    a('s_lshl_b32 s35, s32, 13')
    a('s_add_u32 s34, s35, 0x1000')
    a('v_lshlrev_b32 v125, 4, v0')
    a('s_lshr_b32 s36, s3, 1')
    a(f's_mul_i32 s36, s36, {CHS}')
    a('s_xor_b32 s38, s39, 1')
    a('s_lshl_b32 s38, s38, 6')
    a('s_add_u32 s36, s36, s38')
    a(f's_add_u32 s36, s36, {CB}')
    a('v_and_b32 v3, 15, v0')
    a('v_bfe_u32 v4, v0, 4, 2')
    a('v_lshlrev_b32 v5, 4, v4')
    a('v_lshl_add_u32 v22, v3, 5, v5')
    a(f's_add_u32 s38, s36, {KB-480}')
    a('v_add_u32 v22, s38, v22')
    a('v_and_b32 v23, 14, v3')
    a('v_lshlrev_b32 v23, 1, v23')
    a('v_sub_u32 v23, v5, v23')
    a(f'v_mul_u32_u24 v5, {U1-U0}, v16')
    a('v_sub_u32 v23, v23, v5')
    a(f's_add_u32 s38, s36, {U1+28}')
    a('v_add_u32 v16, s38, v23')
    for i in range(1, 4): a(f'v_add_u32 v{16+i}, {1024*i}, v16')
    a('v_bfe_u32 v5, v3, 1, 2')
    a('v_xor_b32 v5, v5, v4')
    a('v_lshl_add_u32 v5, v3, 2, v5')
    a('s_lshl_b32 s38, s3, 13')
    a(f's_add_u32 s38, s38, {PB}')
    a('v_lshl_add_u32 v23, v5, 4, s38')
    a(f's_mov_b32 s51, {SPIN}')
    a('s_mov_b32 s101, 0')
    vm.need(tu)
    stamp('ut1st')
    a('s_branch L_uh_chk')
    a.label('L_uh')
    for l in hloads: a(l)
    a('s_waitcnt vmcnt(0)')
    a.label('L_uh_chk')
    a('v_subrev_u32 v122, s50, v121')
    a('v_subrev_u32 v122, 1, v122')
    a('v_cmp_lt_u32 vcc, 15, v122')
    a('v_cmp_ne_u32 s[92:93], s100, v121')
    a('s_sub_u32 s51, s51, 1')
    a('s_cbranch_scc1 L_uh_ok')
    a('s_cbranch_vccnz L_uh')
    a('s_cmp_eq_u64 s[92:93], 0')
    a('s_cbranch_scc1 L_uh_same')
    a('s_cmp_lg_u32 s101, 0')
    a('s_cbranch_scc1 L_uh_same')
    a('s_mov_b32 s101, 1')
    for l in ustores: a(l + ' sc1')
    a('s_waitcnt vmcnt(0)')
    a(f'buffer_store_dword v20, v21, s[52:55], s7 offen offset:{UH} sc1')
    a.label('L_uh_same')
    a('v_cmp_ne_u32 vcc, s50, v124')
    a('v_cmp_ne_u32 s[92:93], s100, v124')
    a('s_nop 0')
    a('s_and_b64 vcc, vcc, s[92:93]')
    a('s_cbranch_vccnz L_uh')
    a.label('L_uh_ok')
    raw(6, 's51')
    stamp('uhok')
    tu = []
    for c in range(2):
        vm.issue(f'buffer_load_dwordx4 v[{72+4*c}:{75+4*c}], v125, s[16:19], s{35-c} offen sc1')
        tu.append(vm.issue(f'buffer_load_dword v{80+c}, v125, s[16:19], s{35-c} offen offset:16 sc1'))
    a('s_waitcnt lgkmcnt(0)')
    base(a, 12, 94, 1024)
    a('s_lshl_b32 s36, s47, 6')
    tc = vm.issue('buffer_load_dwordx2 v[240:241], v243, s[12:15], s36 offen')
    base(a, 12, 96, 512*6144)
    a('s_cmp_lt_u32 s29, 24')
    a('s_cselect_b32 s14, s14, 0')
    a('s_lshr_b32 s36, s46, 2')
    a('s_lshl_b32 s36, s36, 7')
    a(f's_mul_i32 s37, s47, {32*6144}')
    a('s_add_u32 s36, s36, s37')
    twm = []
    for r in range(4):
        twm.append(vm.issue(f'buffer_load_dwordx4 v[{24+4*r}:{27+4*r}], v242, s[12:15], s36 offen'))
        if r < 3: a('s_add_u32 s36, s36, 0x1800')
    base(a, 12, 44, 0x200000)
    vm.issue('buffer_load_dwordx4 v[232:235], v15, s[12:15], s33 offen')
    tx = vm.issue('buffer_load_dwordx4 v[236:239], v15, s[12:15], s33 offen offset:1024')
    for _ in range(P.get('e0b', 3)): early.popleft()()
    a('s_movk_i32 s36, 0xff')
    a('v_cmp_ne_u32 vcc, s36, v0')
    for c in range(2):
        u = 72+4*c
        vm.need(tu[c])
        if c == 0: stamp('utok')
        a(f'v_cndmask_b32 v{80+c}, 0, v{80+c}, vcc')
        a(f'ds_write_b128 v14, v[{u}:{u+3}] offset:{c*CHS+U0}')
        for j in range(3): a(f'v_alignbit_b32 v{40+4*c+j}, v{u+j+1}, v{u+j}, 16')
        a(f'v_alignbit_b32 v{43+4*c}, v{80+c}, v{u+3}, 16')
        a(f'ds_write_b128 v14, v[{40+4*c}:{43+4*c}] offset:{c*CHS+U1}')
    a('s_waitcnt lgkmcnt(0)')
    a('s_barrier')
    stamp('bbar')
    st1 = deque()
    T0, T1, AC = 200, 208, 216
    st1.append(('wait', tc))
    st1.extend([f'v_lshlrev_b32 v{T0}, 16, v240', f'v_and_b32 v{T0+1}, s40, v240', f'v_lshlrev_b32 v{T0+2}, 16, v241', f'v_and_b32 v{T0+3}, s40, v241'])
    st1.extend(f'v_mul_f32 v{T0+4+r}, {fh(-1.4426950408889634)}, v{T0+r}' for r in range(4))
    st1.extend(f'v_exp_f32 v{T0+4+r}, v{T0+4+r}' for r in range(4))
    st1.extend(f'v_add_f32 v{T0+4+r}, 1.0, v{T0+4+r}' for r in range(4))
    st1.extend(f'v_rcp_f32 v{T0+4+r}, v{T0+4+r}' for r in range(4))
    st1.extend(f'v_mul_f32 v{T0+r}, v{T0+r}, v{T0+4+r}' for r in range(4))
    st1.extend([f'v_cvt_pk_bf16_f32 v240, v{T0}, v{T0+1}', f'v_cvt_pk_bf16_f32 v241, v{T0+2}, v{T0+3}'])
    st1.extend([f'v_lshlrev_b32 v{T0}, 16, v240', f'v_and_b32 v{T0+1}, s40, v240', f'v_lshlrev_b32 v{T0+2}, 16, v241', f'v_and_b32 v{T0+3}, s40, v241'])
    for r in range(4):
        st1.append(('wait', twm[r]))
        for j in range(4):
            st1.extend([f'v_lshlrev_b32 v{T1+2*j}, 16, v{24+4*r+j}', f'v_and_b32 v{T1+2*j+1}, s40, v{24+4*r+j}'])
        st1.extend((f'v_mul_f32 v{AC+j}, v{T1+j}, v{T0}' if r == 0 else f'v_fmac_f32 v{AC+j}, v{T1+j}, v{T0+r}') for j in range(8))
    st1.extend(f'v_permlane32_swap_b32 v{AC+j}, v{AC+4+j}' for j in range(4))
    st1.extend(f'v_add_f32 v{AC+j}, v{AC+j}, v{AC+4+j}' for j in range(4))
    st1.extend([f'v_mov_b32 v{T0+2}, s50', f'v_mov_b32 v{T0+3}, s50'])
    st1.extend(f'v_permlane16_swap_b32 v{AC+j}, v{AC+2+j}' for j in range(2))
    st1.extend(f'v_add_f32 v{T0+j}, v{AC+j}, v{AC+2+j}' for j in range(2))
    st1.extend(['s_nop 0'] + [f'v_add_f32_dpp v{T0+j}, v{T0+j}, v{T0+j} row_ror:8 row_mask:0xf bank_mask:0xf' for j in range(2)])
    def st1_step(credit):
        while st1 and credit > 0:
            x = st1.popleft()
            if isinstance(x, tuple): vm.need(x[1])
            else: a(x); credit -= cost(x)
    a('s_lshr_b32 s5, s46, 2')
    a('s_lshl_b32 s5, s5, 13')
    a('s_lshl_b32 s36, s47, 7')
    a('s_add_u32 s5, s5, s36')
    a(f's_add_u32 s5, s5, {hex(MP)}')
    a('s_lshl_b32 s6, s46, 11')
    a(f's_add_u32 s6, s6, {hex(MP)}')
    a('s_cmp_lt_u32 s29, 24')
    a(f's_cselect_b32 s5, s5, {hex(TS)}')
    a(f's_cselect_b32 s7, s3, 1')
    ploads = [f'buffer_load_dwordx4 v[{104+4*j}:{107+4*j}], v15, s[16:19], s6 offen offset:{1024*j} sc1' for j in range(2)]
    tmi = []
    def mod_issue():
        a('s_cmp_lg_u32 s7, 0')
        a('s_cbranch_scc1 L_nomi')
        for l in ploads: a(l)
        a.label('L_nomi')
        tmi.append(vm.issued)
    def mod_final():
        a('s_cmp_lg_u32 s7, 0')
        a('s_cbranch_scc1 L_nomod')
        done = vm.done
        a(f's_waitcnt vmcnt({vm.issued - tmi[0]})')
        poll('mp', ploads, [106, 110], pre=0)
        vm.done = done
        a('v_pk_add_f32 v[104:105], v[104:105], v[108:109]')
        a('s_lshr_b32 s36, s46, 5')
        a('s_cmp_eq_u32 s36, 1')
        for j in range(2): a(f'v_add_f32_dpp v{104+j}, v{104+j}, v{104+j} row_ror:8 row_mask:0xf bank_mask:0xf')
        a('s_cselect_b32 s38, 1.0, 0')
        a('s_cmp_eq_u32 s36, 4')
        for op in ('v_permlane16_swap_b32', 'v_permlane32_swap_b32'):
            for j in range(2): a(f'v_mov_b32 v{106+j}, v{104+j}')
            for j in range(2): a(f'{op} v{104+j}, v{106+j}')
            a('v_pk_add_f32 v[104:105], v[104:105], v[106:107]')
        a('s_cselect_b32 s38, 1.0, s38')
        a('s_lshl_b32 s36, s46, 6')
        a('v_cvt_pk_bf16_f32 v106, v104, v105')
        a(f's_add_u32 s36, s36, {hex(MODT)}')
        lo(a, 104, 106); hi(a, 105, 106, 40)
        for j in range(2): a(f'v_add_f32 v{104+j}, s38, v{104+j}')
        a('v_cvt_pk_bf16_f32 v108, v104, v105')
        a('v_mov_b32 v110, s50')
        a('v_mov_b32 v111, s50')
        a('v_mov_b32_dpp v109, v108 quad_perm:[1,1,3,3] row_mask:0xf bank_mask:0xf')
        a('v_lshlrev_b32 v104, 3, v1')
        a('s_mov_b64 exec, 0x55')
        a('buffer_store_dwordx4 v[108:111], v104, s[16:19], s36 offen sc1')
        a('s_mov_b64 exec, -1')
        a.label('L_nomod')
    ACC, AR, BR = 40, 72, 104
    pipe = LdsPipe(a)
    reads = []
    for i in range(32):
        o = 32*((31-i) & 7); b = 16 + ((31-i) >> 3); d = AR + 4*(i & 7)
        reads.append((('A', i, 0), f'ds_read2_b32 v[{d}:{d+1}], v{b} offset0:{o} offset1:{o+1}'))
        reads.append((('A', i, 1), f'ds_read2_b32 v[{d+2}:{d+3}], v{b} offset0:{o+2} offset1:{o+3}'))
        if i < 4:
            for t in range(8):
                j = 4*t+3-i
                reads.append((('B', j), f'ds_read_b128 v[{BR+4*j}:{BR+4*j+3}], v22 offset:{128*j}'))
    tok = {}; nxt = [0]
    def pump(cur_step, maxn):
        n = 0
        while n < maxn and nxt[0] < len(reads) and pipe.outstanding() < 13:
            key, line = reads[nxt[0]]
            if key[0] == 'A' and key[1] >= cur_step + 8: break
            tok[key] = pipe.issue(line); nxt[0] += 1; n += 1
    pump(0, 12)
    pending = []; nm = 0
    NB = P.get('e1', 3); EV = P.get('ev', 6)
    for i in range(32):
        for t in range(i >> 2, 8):
            j = 4*t+3-i
            while ('B', j) not in tok or ('A', i, 1) not in tok:
                pipe.need(pipe.done + 2); pump(i, 2)
            pipe.need(max(tok[('A', i, 1)], tok[('B', j)]))
            d = ACC+4*t; c = '0' if i == 0 else f'v[{d}:{d+3}]'
            s = AR+4*(i & 7)
            a(f'v_mfma_f32_16x16x32_bf16 v[{d}:{d+3}], v[{s}:{s+3}], v[{BR+4*j}:{BR+4*j+3}], {c}')
            pump(i, 2 if i < 4 else 1)
            nm += 1
            if nm >= P.get('e1s', 8) and nm % EV == 0 and NB > 0 and early:
                early.popleft()(); NB -= 1
            if i >= P.get('s1', 14): st1_step(2)
        if pending and pipe.outstanding() < 14:
            t = pending.pop()
            pipe.issue(f'ds_write_b128 v23, v[{ACC+4*t}:{ACC+4*t+3}] offset:{1024*t}')
        if (i & 3) == 3: pending.append(i >> 2)
    for t in pending:
        pipe.issue(f'ds_write_b128 v23, v[{ACC+4*t}:{ACC+4*t+3}] offset:{1024*t}')
    st1_step(1000)
    lstore([f'buffer_store_dwordx4 v[{T0}:{T0+3}], v244, s[16:19], s5 offen'])
    stamp('bend')
    a('v_lshlrev_b32 v4, 3, v0')
    a(f'v_add_u32 v4, {PRM}, v4')
    a('v_lshrrev_b32 v2, 1, v0')
    a('v_bfe_u32 v3, v0, 4, 2')
    a('v_xor_b32 v2, v2, v3')
    a('v_lshlrev_b32 v2, 4, v2')
    a('v_and_b32 v3, 1, v0')
    a('v_lshl_add_u32 v2, v3, 3, v2')
    a(f'v_add_u32 v2, {PB}, v2')
    a('v_lshlrev_b32 v3, 4, v0')
    a('v_and_b32 v5, 3, v0')
    a(f's_mul_i32 s38, s32, {YP}')
    a(f's_add_u32 s38, s38, {hex(YT)}')
    a(f'v_add_u32 v13, {PRM}, v15')
    a('s_and_b32 s36, s32, 7')
    a('s_lshl_b32 s36, s36, 7')
    a(f's_add_u32 s36, s36, {PRM+5120}')
    a('v_lshl_add_u32 v14, v6, 4, s36')
    a('s_waitcnt lgkmcnt(0)')
    a('s_barrier')
    stamp('pbar')
    for j in range(4):
        for w in range(4):
            a(f'ds_read_b64 v[{72+8*j+2*w}:{73+8*j+2*w}], v2 offset:{8192*w+2048*j}')
        if j == 2: a('s_waitcnt lgkmcnt(8)')
    mod_issue()
    for j in range(4):
        b = 72+8*j; q = 24+4*j
        if j: a(f's_waitcnt lgkmcnt({12-4*j})')
        a(f'v_pk_add_f32 v[{b}:{b+1}], v[{b}:{b+1}], v[{b+2}:{b+3}]')
        a(f'v_pk_add_f32 v[{b+4}:{b+5}], v[{b+4}:{b+5}], v[{b+6}:{b+7}]')
        a(f'v_mov_b32 v{q+2}, s50')
        a(f'v_mov_b32 v{q+3}, s50')
        a(f'v_cvt_pk_bf16_f32 v{q}, v{b}, v{b+4}')
        a(f'v_cvt_pk_bf16_f32 v{q+1}, v{b+1}, v{b+5}')
        tys = vm.issue(f'buffer_store_dwordx4 v[{q}:{q+3}], v3, s[16:19], s38 offen sc1')
        if j < 3: a('s_add_u32 s38, s38, 0x1000')
    stamp('ytst')
    a('v_mov_b32 v22, v4')
    a('v_mov_b32 v23, v14')
    mod_final(); raw(7, 's51')
    if P.get('mbar', 1): a('s_barrier')
    for _ in range(P.get('e2', 12)): early.popleft()()
    a('s_lshl_b32 s35, s3, 10')
    a(f's_add_u32 s35, s35, {hex(MODT)}')
    a('s_add_u32 s34, s35, 0x1000')
    a('s_add_u32 s4, s35, 0x2000')
    mloads = [f'buffer_load_dwordx4 v[{104+4*r}:{107+4*r}], v15, s[16:19], s{(35, 34, 4)[r]} offen sc1' for r in range(3)]
    a('v_lshrrev_b32 v4, 2, v0')
    a(f'v_mul_u32_u24 v3, {2*YS}, v5')
    a('v_lshl_add_u32 v3, v4, 2, v3')
    a(f'v_add_u32 v3, {XG}, v3')
    a(f's_mul_i32 s46, s3, {2*YS}')
    a(f's_add_u32 s46, s46, {XG}')
    a('v_add_u32 v4, s46, v15')
    a('s_lshl_b32 s46, s3, 1')
    a('v_xor_b32 v5, s46, v6')
    a('v_lshlrev_b32 v5, 4, v5')
    a('v_lshl_add_u32 v5, v1, 7, v5')
    a(f'v_add_u32 v5, {XH}, v5')
    a('v_xor_b32 v16, 16, v5')
    a('v_lshrrev_b32 v17, 3, v1')
    a('v_xor_b32 v18, v17, v6')
    a('v_lshlrev_b32 v18, 4, v18')
    a('v_lshl_add_u32 v18, v17, 7, v18')
    a('s_lshl_b32 s46, s3, 11')
    a(f's_add_u32 s46, s46, {XH}')
    a('v_add_u32 v18, s46, v18')
    a('v_lshlrev_b32 v17, 9, v17')
    a('v_lshl_add_u32 v17, v6, 4, v17')
    a('s_lshr_b32 s46, s32, 2')
    a('s_lshl_b32 s46, s46, 15')
    a('s_and_b32 s47, s32, 3')
    a('s_lshl_b32 s47, s47, 7')
    a('s_add_u32 s46, s46, s47')
    a('s_lshl_b32 s47, s3, 13')
    a('s_add_u32 s46, s46, s47')
    a(f's_add_u32 s46, s46, {hex(H2)}')
    a('s_add_u32 s47, s46, 0x1000')
    a(f's_add_u32 s37, s33, {hex(X1)}')
    a('v_lshrrev_b32 v14, 2, v0')
    a(f'v_mul_u32_u24 v14, {YP}, v14')
    a('v_and_b32 v19, 3, v0')
    a('v_lshl_add_u32 v14, v19, 4, v14')
    a('s_lshl_b32 s24, s32, 6')
    a(f's_add_u32 s26, s24, {hex(YT)}')
    a(f's_add_u32 s27, s26, {64*YP}')
    a(f's_add_u32 s5, s26, {128*YP}')
    a(f's_add_u32 s6, s26, {192*YP}')
    X = (64, 160)
    vm.need(tx)
    subs = []
    for t in range(2):
        s = Asm(); unpack8(s, X[t], 232+4*t, 40); ln_stats(s, X[t], X[t]+8, X[t]+16, 24+t)
        for p in range(4):
            s(f'v_pk_mul_f32 v[{X[t]+8+2*p}:{X[t]+9+2*p}], v[{X[t]+8+2*p}:{X[t]+9+2*p}], v[{X[t]+16}:{X[t]+17}] op_sel:[0,0] op_sel_hi:[1,0]')
        subs.append(s)
    zipl(a, *subs)
    stamp('ln1')
    yloads = [f'buffer_load_dwordx4 v[{24+4*j}:{27+4*j}], v14, s[16:19], s{(26, 27, 5, 6)[j]} offen sc1' for j in range(4)]
    vm.need(tys)
    stamp('ytack')
    for l in yloads: ty = vm.issue(l)
    for l in mloads: tm = vm.issue(l)
    poll('yt', yloads, [26, 30, 34, 38], pre=ty)
    stamp('ytok'); raw(2, 's51')
    for j in range(4):
        a(f'ds_write_b32 v3, v{24+4*j} offset:{256*j}')
        a(f'ds_write_b32 v3, v{25+4*j} offset:{256*j+YS}')
    poll('md', mloads, [106, 110, 114], pre=tm)
    stamp('mdok'); raw(1, 's51')
    for r in range(3): a(f'ds_write_b64 v22, v[{104+4*r}:{105+4*r}] offset:{2048*r}')
    a('s_waitcnt lgkmcnt(0)')
    a('s_barrier')
    stamp('ybar')
    for i, off in enumerate((1024, 0, 2048)):
        a(f'ds_read_b128 v[{40+4*i}:{43+4*i}], v13 offset:{off}')
    a('ds_read_b128 v[24:27], v4')
    a(f'ds_read_b128 v[28:31], v4 offset:{YS}')
    for i, off in enumerate((4096, 3072)):
        a(f'ds_read_b128 v[{52+4*i}:{55+4*i}], v13 offset:{off}')
    a('ds_read_b128 v[124:127], v23')
    a('s_waitcnt lgkmcnt(6)')
    unpack8(a, 128, 40, 40); unpack8(a, 136, 44, 40)
    for t in range(2):
        for p in range(4):
            d = X[t]+8+2*p
            a(f'v_pk_fma_f32 v[{d}:{d+1}], v[{d}:{d+1}], v[{128+2*p}:{129+2*p}], v[{136+2*p}:{137+2*p}]')
    a('s_waitcnt lgkmcnt(5)')
    unpack8(a, 144, 48, 40)
    for t in range(2):
        for p in range(4):
            d = X[t]+8+2*p
            a(f'v_pk_mul_f32 v[{d}:{d+1}], v[{d}:{d+1}], v[{144+2*p}:{145+2*p}]')
    a('s_waitcnt lgkmcnt(0)')
    unpack8(a, 128, 52, 40); unpack8(a, 136, 56, 40)
    subs = []
    for t in range(2):
        s = Asm(); x = X[t]
        unpack8(s, x+20, 24+4*t, 40)
        for p in range(4):
            s(f'v_pk_fma_f32 v[{x+2*p}:{x+2*p+1}], v[{x+8+2*p}:{x+9+2*p}], v[{x+20+2*p}:{x+21+2*p}], v[{x+2*p}:{x+2*p+1}]')
        for j in range(4): s(f'v_cvt_pk_bf16_f32 v{32+4*t+j}, v{x+2*j}, v{x+2*j+1}')
        s(f'buffer_store_dwordx4 v[{32+4*t}:{35+4*t}], v15, s[16:19], s37 offen offset:{1024*t} sc1')
        unpack8(s, x, 32+4*t, 40)
        ln_stats(s, x, x+8, x+16, 24+t)
        for p in range(4):
            s(f'v_pk_mul_f32 v[{x+8+2*p}:{x+9+2*p}], v[{x+8+2*p}:{x+9+2*p}], v[{x+16}:{x+17}] op_sel:[0,0] op_sel_hi:[1,0]')
        for p in range(4):
            s(f'v_pk_fma_f32 v[{x+8+2*p}:{x+9+2*p}], v[{x+8+2*p}:{x+9+2*p}], v[{128+2*p}:{129+2*p}], v[{136+2*p}:{137+2*p}]')
        for j in range(4): s(f'v_cvt_pk_bf16_f32 v{40+4*t+j}, v{x+8+2*j}, v{x+9+2*j}')
        s(f'ds_write_b128 v{(5, 16)[t]}, v[{40+4*t}:{43+4*t}]')
        subs.append(s)
    zipl(a, *subs)
    vm.issued += 2
    a('s_waitcnt lgkmcnt(0)')
    a('s_barrier')
    stamp('hbar')
    a('ds_read_b128 v[24:27], v18')
    a('ds_read_b128 v[28:31], v18 offset:1024')
    a('s_and_b32 s24, s32, 31')
    a('s_lshl_b32 s24, s24, 4')
    a('s_lshl_b32 s25, s3, 2')
    a('s_add_u32 s33, s24, s25')
    a('s_and_b32 s25, s30, 1')
    a('s_lshl_b32 s25, s25, 8')
    a('s_lshl_b32 s26, s3, 6')
    a('s_add_u32 s25, s25, s26')
    a('v_and_b32 v19, 15, v1')
    a('v_lshlrev_b32 v19, 2, v19')
    a('s_waitcnt lgkmcnt(0)')
    lstore(['buffer_store_dwordx4 v[24:27], v17, s[16:19], s46 offen', 'buffer_store_dwordx4 v[28:31], v17, s[16:19], s47 offen'])
    stamp('h2st')
    a('v_bfe_u32 v4, v1, 4, 1')
    a('v_lshrrev_b32 v5, 5, v1')
    a('v_bfe_u32 v22, v1, 2, 2')
    a('v_and_b32 v23, 3, v1')
    a('v_lshlrev_b32 v23, 3, v23')
    a('v_lshl_add_u32 v3, v5, 3, v22')
    a('v_bfe_u32 v13, v1, 3, 1')
    a('v_lshlrev_b32 v16, 7, v3')
    a('v_add_u32 v16, v16, v23')
    a('v_lshl_add_u32 v16, v13, 6, v16')
    a('v_lshl_add_u32 v16, v4, 5, v16')
    a(f'v_mul_u32_u24 v17, {SEG[0][2]-SEG[0][1]}, v4')
    a(f'v_add_u32 v17, {SEG[0][1]}, v17')
    a(f'v_mul_u32_u24 v18, {P1U}, v4')
    for ct in range(4):
        a(f'v_xor_b32 v14, {32*ct}, v16')
        a(f'v_add_u32 v{246+ct}, v14, v17')
        a(f'v_add_u32 v{120+ct}, v14, v18')
    a('v_mul_u32_u24 v3, 0x60, v3')
    a('v_add_u32 v3, v3, v23')
    a('v_add_u32 v18, v18, v3')
    a('v_lshl_add_u32 v3, v5, 2, v22')
    a('v_lshlrev_b32 v3, 7, v3')
    a('v_lshl_add_u32 v3, v13, 6, v3')
    a('v_lshl_add_u32 v3, v4, 5, v3')
    a('v_add_u32 v3, v3, v23')
    a('s_lshl_b32 s26, s3, 11')
    a('v_add_u32 v240, s26, v3')
    a('v_xor_b32 v241, 64, v240')
    for i in range(1, 3):
        a(f'v_add_u32 v{240+2*i}, {65536*i}, v240')
        a(f'v_add_u32 v{241+2*i}, {65536*i}, v241')
    a(f's_mov_b32 s44, {fh(GC2)}'); a(f's_mov_b32 s45, {fh(GC2)}')
    a(f'v_mov_b32 v2, {fh(GC1)}'); a(f'v_mov_b32 v3, {fh(GC1)}')
    a('s_lshl_b32 s27, s30, 2')
    a('s_add_u32 s27, s27, s3')
    a('s_lshl_b32 s28, s27, 15')
    a(f's_add_u32 s28, s28, {hex(H2)}')
    a('s_waitcnt vmcnt(0)'); vm.done = vm.issued
    stamp('h2dr')
    lstore([f'buffer_store_dword v20, v21, s[52:55], s33 offen offset:{F1}'])
    ptok = {}
    def p2dma(k):
        k0, gb, ub = seg_of(k)
        a(f's_add_u32 m0, {"s49" if k < 15 else "s43"}, {gb + 2048*(k-k0)}')
        if k: a(f's_add_u32 s48, s48, {16*3584}')
        ptok[k] = vm.issue('buffer_load_dwordx4 v7, s[20:23], s48 offen lds')
    while early: early.popleft()()
    for k in range(7): p2dma(k)
    a('s_mul_i32 s29, s27, 112')
    a('s_lshl_b32 s47, s3, 4')
    a('s_add_u32 s47, s47, s31')
    a(f's_mul_i32 s47, s47, {4*YP}')
    a('s_lshl_b32 s4, s30, 10')
    a(f's_add_u32 s4, s4, {hex(YT)}')
    a('s_add_u32 s47, s47, s4')
    a('s_mul_i32 s46, s31, 3')
    a('s_add_u32 s46, s46, s29')
    a('s_lshl_b32 s46, s46, 10')
    a(f's_add_u32 s46, s46, {hex(ACT + 64*1024)}')
    a('s_lshr_b32 s39, s32, 3')
    a('s_and_b32 s35, s39, 1')
    a('s_and_b32 s36, s32, 7')
    a('s_lshl_b32 s36, s36, 7')
    a(f's_mul_i32 s37, s3, {192*1024}')
    a('s_add_u32 s37, s37, s36')
    a(f's_add_u32 s37, s37, {1024*1024}')
    a('s_lshl_b32 s38, s3, 18')
    a('s_add_u32 s38, s38, s36')
    a('s_lshl_b32 s6, s35, 3')
    a('s_add_u32 s6, s6, s3')
    a(f's_mul_i32 s6, s6, {16*YP}')
    a('s_add_u32 s6, s6, s4')
    a(f's_mul_i32 s4, s39, {224*1024}')
    a(f's_add_u32 s4, s4, {hex(ACT)}')
    a(f's_mul_i32 s5, s3, {12*1024}')
    a('s_add_u32 s5, s5, s4')
    a(f's_add_u32 s5, s5, {64*1024}')
    a('s_lshl_b32 s39, s39, 16')
    a('s_add_u32 s39, s39, s36')
    a('v_bfe_u32 v4, v1, 1, 2')
    a('v_and_b32 v5, 1, v1')
    a('v_lshlrev_b32 v5, 2, v5')
    a('v_lshl_add_u32 v4, v4, 4, v5')
    a('s_lshl_b32 s35, s35, 3')
    a('v_add_u32 v13, s35, v4')
    a('v_lshlrev_b32 v73, 7, v1')
    a('s_lshl_b32 s34, s2, 2')
    a('s_add_u32 s34, s34, s3')
    a(f's_mul_i32 s34, s34, {14*128}')
    poll('f1', [f'buffer_load_dword v22, v19, s[52:55], s25 offen offset:{F1} sc1'], [22])
    stamp('f1ok'); raw(3, 's51')
    htok = {}
    def h2load(ks):
        htok[ks] = vm.issue(f'buffer_load_dwordx4 a[{4*ks}:{4*ks+3}], v15, s[16:19], s28 offen offset:{1024*(ks&3)} sc1')
        if (ks & 3) == 3: a('s_add_u32 s28, s28, 0x1000')
    NH0 = P.get('nh0', 8)
    for ks in range(NH0): h2load(ks)
    a('s_barrier')
    stamp('b0')
    fill = deque()
    wtok = {}
    def wdslot(i):
        s = i % 20
        so = 's37' if i < 12 else 's38'
        def f0():
            a(f's_add_u32 m0, s26, {8192*WBL[s]}')
            vm.issue(f'buffer_load_dwordx4 v8, s[8:11], {so} offen lds')
        def f1():
            wtok[i] = vm.issue(f'buffer_load_dwordx4 v9, s[8:11], {so} offen offset:1024 lds')
            a(f's_add_u32 {so}, {so}, 0x4000')
        return [f0, f1]
    for ks in range(NH0, 32): fill.append(lambda ks=ks: h2load(ks))
    for k in range(7, 15): fill.append(lambda k=k: p2dma(k))
    valu = deque()
    AR, NA = 24, 6
    ACC1, ACC2 = 192, 128
    pipe = LdsPipe(a)
    steps = [(0, k, ct) for k in range(32) for ct in range(3)] + [(1, k, ct) for k in range(32) for ct in range(4)]
    tok = {}; nxt = [0]
    def rd(n):
        ps, k, ct = steps[n]; d = AR + 4*(n % NA)
        for jj in range(2):
            if ps == 0: b, off = 18, (16*k + 4*jj)*96 + 32*ct
            else:
                k0, gb, ub = seg_of(k)
                b, off = (246+ct, 2048*k + 512*jj) if k < 15 else (120+ct, gb + 2048*(k-k0) + 512*jj)
            tok[n] = pipe.issue(f'ds_read_b64_tr_b16 v[{d+2*jj}:{d+2*jj+1}], v{b} offset:{off}')
    for n in range(NA-1): rd(n)
    nxt[0] = NA-1
    VB = P.get('vb', 2); FE = P.get('fe', 2); FE2 = P.get('fe2', 3)
    stok = {}
    LAND = {3: 14, 5: 26, 6: 31}
    for n, (ps, k, ct) in enumerate(steps):
        if ps == 0 and ct == 0:
            while k not in htok: fill.popleft()()
            vm.need(htok[k])
        pipe.need(tok[n])
        d = (ACC1, ACC2)[ps] + 16*ct; c = '0' if k == 0 else f'v[{d}:{d+15}]'
        sa = AR + 4*(n % NA)
        a(f'v_mfma_f32_32x32x16_bf16 v[{d}:{d+15}], v[{sa}:{sa+3}], a[{4*k}:{4*k+3}], {c}')
        if nxt[0] < len(steps): rd(nxt[0]); nxt[0] += 1
        last = ct == (2, 3)[ps]
        credit = VB
        if last and (k & 7) == 7:
            q = 4*ps + (k >> 3) + 1
            if q > 1:
                if q in LAND:
                    while LAND[q] not in ptok: fill.popleft()()
                    vm.need(ptok[LAND[q]])
                a('s_barrier')
            stamp(f'b{q}')
            if q == 2:
                for kk in range(15, 27): fill.append(lambda kk=kk: p2dma(kk))
            if q == 3:
                for kk in range(27, 32): fill.append(lambda kk=kk: p2dma(kk))
            if 4 <= q < 8:
                for i in range(([0] + WAV)[q-4], WAV[q-4]): fill.extend(wdslot(i))
            if q == P.get('wt', 2):
                a('s_mov_b64 exec, 0x3fff')
                vm.issue('buffer_load_dword v72, v73, s[8:11], s34 offen')
                a('s_mov_b64 exec, -1')
            if q == 4:
                for t in range(3):
                    o = 64 + 4*(t & 1)
                    valu.extend(gelu_ops(ACC1+16*t, 48 + 8*(t & 1), o))
                    valu.append(('store', t, o))
        if fill and n % (FE, FE2)[ps] == 0:
            fill.popleft()()
        while valu and credit >= (cost(valu[0]) if isinstance(valu[0], str) else 1):
            x = valu.popleft()
            if isinstance(x, tuple):
                stok[x[1]] = vm.issue(f'buffer_store_dwordx4 v[{x[2]}:{x[2]+3}], v15, s[16:19], s46 offen offset:{1024*x[1]} sc1')
                if x[1] == 2: flag_at = n + P.get('fdel', 20)
            else:
                a(x); credit -= cost(x)
        if 2 in stok and 'f2' not in stok and (n >= flag_at or n == len(steps)-1):
            vm.need(stok[2])
            stok['f2'] = lstore([f'buffer_store_dword v20, v21, s[52:55], s33 offen offset:{F2}'])
    while valu:
        x = valu.popleft()
        if isinstance(x, tuple):
            stok[x[1]] = vm.issue(f'buffer_store_dwordx4 v[{x[2]}:{x[2]+3}], v15, s[16:19], s46 offen offset:{1024*x[1]} sc1')
        else: a(x)
    if 'f2' not in stok:
        vm.need(stok[2])
        stok['f2'] = lstore([f'buffer_store_dword v20, v21, s[52:55], s33 offen offset:{F2}'])
    while fill: fill.popleft()()
    fload = [f'buffer_load_dword v22, v13, s[52:55], s25 offen offset:{F2} sc1']
    tp = vm.issue(fload[0])
    a('s_mov_b32 s34, 1.0'); a('s_mov_b32 s35, 1.0')
    def geglu2(t):
        s = Asm(); geglu(s, ACC2+16*t, 48, 64 + 4*(t & 1))
        for l in s.lines: a(l.replace('s[46:47]', 's[34:35]'))
        if t: a(f's_add_u32 s47, s47, {YP}')
        return lstore([f'buffer_store_dwordx4 v[{64+4*(t&1)}:{67+4*(t&1)}], v15, s[16:19], s47 offen'])
    geglu2(0)
    geglu2(1)
    stamp('g1')
    poll('f2', fload, [22], pre=tp)
    stamp('f2ok'); raw(4, 's51')
    atok = {}
    def abase(i): return 128 + 8*i if i < 12 else 8*(i-12)
    def actload(i):
        b = abase(i)
        if i < 12:
            j = i & 3
            vm.issue(f'buffer_load_dwordx4 a[{b}:{b+3}], v15, s[16:19], s5 offen offset:{1024*j} sc1')
            if j == 0: a(f's_add_u32 s7, s5, {112*1024}')
            atok[i] = vm.issue(f'buffer_load_dwordx4 a[{b+4}:{b+7}], v15, s[16:19], s7 offen offset:{1024*j} sc1')
            if j == 3: a('s_add_u32 s5, s5, 0x1000')
        else:
            a(f's_add_u32 s7, s6, {64*YP}')
            vm.issue(f'buffer_load_dwordx4 a[{b}:{b+3}], v15, s[16:19], s6 offen sc1')
            a(f's_add_u32 s6, s6, {YP}')
            atok[i] = vm.issue(f'buffer_load_dwordx4 a[{b+4}:{b+7}], v15, s[16:19], s7 offen sc1')
    geglu2(2)
    ts3 = geglu2(3)
    stamp('g3')
    for i in range(12): actload(i)
    a('v_lshrrev_b32 v4, 3, v0')
    a('v_lshlrev_b32 v10, 10, v4')
    a('v_lshl_add_u32 v10, v6, 4, v10')
    a(f's_add_u32 s46, s39, {hex(X1)}')
    a('s_add_u32 s47, s46, 0x8000')
    vm.need(ts3)
    lstore([f'buffer_store_dword v20, v21, s[52:55], s33 offen offset:{F3}'])
    for i in range(14, 20):
        for f in wdslot(i): f()
    stamp('estart')
    pipe = LdsPipe(a); tok = {}
    def rd2(i):
        d = AR + 8*(i % 3); ad = 8192*WBL[i % 20]
        for mt in range(2):
            for jj in range(2):
                tok[(i, mt)] = pipe.issue(f'ds_read_b64_tr_b16 v[{d+4*mt+2*jj}:{d+4*mt+2*jj+1}], v{240+2*(ad>>16)+mt} offset:{(ad & 0xffff)+1024*jj}')
    vm.need(wtok[1]); rd2(0); rd2(1)
    for i in range(28):
        stamp(f'e{i}')
        if i == 12:
            poll('f3', [f'buffer_load_dword v22, v13, s[52:55], s25 offen offset:{F3} sc1'], [22])
            stamp('f3ok'); raw(5, 's51')
            for ii in range(12, 28): actload(ii)
            vm.issue('buffer_load_dwordx4 v[72:75], v10, s[16:19], s46 offen sc1')
            tx = vm.issue('buffer_load_dwordx4 v[76:79], v10, s[16:19], s47 offen sc1')
        d0 = AR + 8*(i % 3); b = abase(i)
        vm.need(atok[i])
        for mt in range(2):
            pipe.need(tok[(i, mt)])
            for nt in range(2):
                d = ACC2 + 32*mt + 16*nt; c = '0' if i == 0 else f'v[{d}:{d+15}]'
                a(f'v_mfma_f32_32x32x16_bf16 v[{d}:{d+15}], v[{d0+4*mt}:{d0+4*mt+3}], a[{b+4*nt}:{b+4*nt+3}], {c}')
                if mt == 0 and nt == 0 and i+2 < 28:
                    vm.need(wtok[i+2]); rd2(i+2)
                if mt == 1 and i < 8:
                    wdslot(20+i)[nt]()
    a('v_and_b32 v4, 31, v1')
    a(f'v_mul_u32_u24 v4, {PS}, v4')
    a('v_lshrrev_b32 v5, 5, v1')
    a('v_lshl_add_u32 v4, v5, 4, v4')
    a(f's_mul_i32 s26, s3, {64*PS}')
    a('v_add_u32 v18, s26, v4')
    a('v_lshrrev_b32 v4, 3, v0')
    a(f'v_mul_u32_u24 v4, {PS}, v4')
    a('v_lshl_add_u32 v19, v6, 5, v4')
    base(a, 12, 56, 0x200000)
    a('s_add_u32 s38, s39, 0x8000')
    a('s_barrier')
    stamp('eend')
    for mt in range(2):
        for nt in range(2):
            for g in range(4):
                d = ACC2 + 32*mt + 16*nt + 4*g
                a(f'ds_write_b128 v18, v[{d}:{d+3}] offset:{nt*32*PS + mt*128 + g*32}')
    vm.need(tx)
    unpack8(a, 84, 124, 40); unpack8(a, 24, 72, 40); unpack8(a, 32, 76, 40)
    a('s_waitcnt lgkmcnt(0)')
    a('s_barrier')
    for jj in range(2):
        for w in range(4):
            for e in range(2):
                d = 128 + 32*jj + 8*w + 4*e
                a(f'ds_read_b128 v[{d}:{d+3}], v19 offset:{w*64*PS + jj*32*PS + 16*e}')
    for jj in range(2):
        b = 128 + 32*jj
        a(f's_waitcnt lgkmcnt({8-8*jj})')
        for p in range(4): a(f'v_pk_add_f32 v[{b+2*p}:{b+2*p+1}], v[{b+2*p}:{b+2*p+1}], v[{b+8+2*p}:{b+9+2*p}]')
        for p in range(4): a(f'v_pk_add_f32 v[{b+16+2*p}:{b+17+2*p}], v[{b+16+2*p}:{b+17+2*p}], v[{b+24+2*p}:{b+25+2*p}]')
        for p in range(4): a(f'v_pk_add_f32 v[{b+2*p}:{b+2*p+1}], v[{b+2*p}:{b+2*p+1}], v[{b+16+2*p}:{b+17+2*p}]')
        x = 24 + 8*jj
        for p in range(4): a(f'v_pk_fma_f32 v[{b+2*p}:{b+2*p+1}], v[{b+2*p}:{b+2*p+1}], v[{84+2*p}:{85+2*p}], v[{x+2*p}:{x+2*p+1}]')
        for p in range(4): a(f'v_cvt_pk_bf16_f32 v{40+4*jj+p}, v{b+2*p}, v{b+2*p+1}')
        a(f'buffer_store_dwordx4 v[{40+4*jj}:{43+4*jj}], v10, s[12:15], s{39-jj} offen')
    a('s_or_b32 s4, s2, s3')
    a('s_cmp_lg_u32 s4, 0')
    a('s_cbranch_scc1 L_noep')
    a(f's_mov_b32 s4, {hex(EPOCH)}')
    a('buffer_store_dword v20, v21, s[16:19], s4 offen')
    a.label('L_noep')
    if P.get('stamps'):
        a('s_waitcnt vmcnt(0)')
        stamp('end')
        a('s_cmp_lg_u32 s3, 0')
        a('s_cbranch_scc1 L_end')
        a('s_lshl_b32 s94, s2, 7')
        a(f's_add_u32 s94, s94, {hex(TS)}')
        a('s_add_u32 s92, s58, s94')
        a('s_addc_u32 s93, s59, 0')
        a('v_lshlrev_b32 v250, 2, v1')
        a('s_lshl_b32 s94, s2, 8')
        a(f's_add_u32 s94, s94, {hex(TS + 0x80000)}')
        a('s_add_u32 s94, s58, s94')
        a('s_addc_u32 s95, s59, 0')
        a('global_store_dword v250, v254, s[94:95]')
        a('s_mov_b64 exec, 1')
        if P.get('dbg'):
            a('s_load_dwordx2 s[94:95], s[0:1], 104')
        a('s_waitcnt lgkmcnt(0)')
        if P.get('dbg'):
            a('s_not_b32 s60, s60')
            for m in sorted(marks):
                a(f'v_mov_b32 v250, s{60+2*m}')
                a(f'global_atomic_umax v21, v250, s[94:95] offset:{4*m}')
                a('s_nop 1')
            a('s_not_b32 s60, s60')
        for m in sorted(marks):
            a(f'v_mov_b32 v250, s{60+2*m}')
            a(f'v_mov_b32 v251, s{61+2*m}')
            a(f'global_store_dwordx2 v21, v[250:251], s[92:93] offset:{8*m}')
            a('s_nop 1')
    a.label('L_end')
    a('s_endpgm')
    return dict(grid=256, block=256, lds=163840, vgpr=512, accum=256)
```

```python
from collections import deque
from asmlib import *
from k123 import fh, lo, hi, unpack8, ln_stats, LdsPipe, A_OUT, A_WS
from k45 import VmPipe, GC1, GC2, geglu
from cde import zipl, gelu_ops, cost

UT, YT, X1, H2, ACT = 0, 0x400000, 0x900000, 0, 0xD00000
MODT, EPOCH, GRP, MP, TS = 0x1400000, 0x1408000, 0x1410000, 0x1480000, 0x1500000
YP = 16384 + 128
XID, UH, F1, F2, F3 = 0, 128, 1024, 1536, 2048
P1U = 49280
SEG = [(0, 98432, 129152), (15, 0, 49280), (27, 24576, 73856)]
CB, CHS, KB, U0, U1 = 98432, 12992, 512, 4608, 8768
PB = CB + 2*CHS
PRM = PB + 32768
MPART = PRM + 6144
XG = 129152 + 112*128
YS = 1040
XH = XG + 8*YS
PS = 272
SPIN = 1 << 15
WBL = [5, 11, 12, 13, 16, 14, 15, 17, 18, 19, 0, 1, 6, 7, 2, 3, 4, 8, 9, 10]
WAV = [2, 5, 10, 14, 20]
assert MPART + 512 <= 163840 and XH + 8192 <= 163840
def seg_of(k): return SEG[0] if k < 15 else SEG[1] if k < 27 else SEG[2]

def base(a, d, p, n):
    a(f's_mov_b32 s{d}, s{p}'); a(f's_mov_b32 s{d+1}, s{p+1}'); a(f's_mov_b32 s{d+2}, {hex(n)}')

def mega(a, P):
    marks = set()
    SETS = {1: 'start kv0 utst utok bbar end bend ytst ytok h2dr b0 b4 b8 estart f3ok eend',
            2: 'start kv0 kvN abar utst end ut1st uhok utok bbar bend pbar ytst ytack ytok mdok',
            3: 'start ytst ln1 ytack ytok end ybar hbar h2st h2dr f1ok b0 b1 b2 b3 b4',
            5: 'start karg x2 x3 x4 end x6 x7 x8 x9 x10 x11 x12 kv0 issued pre',
            4: 'start b4 b5 b6 b7 end b8 g1 f2ok g3 estart e4 e12 f3ok e20 eend'}
    names = SETS[P.get('stamps', 1)].split()
    def stamp(name):
        if P.get('stamps') and name in names:
            slot = names.index(name)
            a(f's_memrealtime s[{60+2*slot}:{61+2*slot}]'); marks.add(slot)
    def raw(i, sreg):
        if P.get('stamps'): a(f'v_writelane_b32 v254, {sreg}, {i}')
    vm = VmPipe(a)
    nst = [0]
    def lstore(lines, emit=None):
        n = nst[0]; nst[0] += 1
        a('s_cmp_eq_u32 s101, 0')
        a(f's_cbranch_scc1 L_ls{n}a')
        for l in lines: a(l + ' sc1')
        a(f's_branch L_ls{n}b')
        a.label(f'L_ls{n}a')
        for l in lines: t = vm.issue(l)
        a.label(f'L_ls{n}b')
        return t
    def poll(name, loads, tags, pre=None):
        a(f's_mov_b32 s51, {SPIN}')
        if pre is not None:
            vm.need(pre)
            stamp(name + '1st')
            a(f's_branch L_{name}_chk')
        a.label(f'L_{name}')
        for l in loads: a(l)
        a('s_waitcnt vmcnt(0)')
        a.label(f'L_{name}_chk')
        a(f'v_cmp_ne_u32 vcc, s50, v{tags[0]}')
        for i, t in enumerate(tags[1:]): a(f'v_cmp_ne_u32 s[{92+2*i}:{93+2*i}], s50, v{t}')
        a('s_sub_u32 s51, s51, 1')
        a(f's_cbranch_scc1 L_{name}_ok')
        for i in range(len(tags)-1): a(f's_or_b64 vcc, vcc, s[{92+2*i}:{93+2*i}]')
        a(f's_cbranch_vccnz L_{name}')
        a.label(f'L_{name}_ok')
        if pre is None: vm.done = vm.issued

    a('s_cmp_ge_u32 s2, 256')
    a('s_cbranch_scc1 L_end')
    stamp('start')
    if P.get('stamps'): a('v_mov_b32 v254, 0')
    a('s_load_dwordx16 s[64:79], s[0:1], 0')
    if P.get('cpf', 1):
        a('s_getpc_b64 s[4:5]')
        a.label('L_pc')
        a('v_lshlrev_b32 v3, 7, v0')
        a('v_mov_b32 v5, s5')
        a('v_add_co_u32 v4, vcc, s4, v3')
        a(f'v_cmp_gt_u32 s[6:7], {P.get("cpn", 16)}, v0')
        a('v_and_b32 v1, 63, v0')
        a('v_addc_co_u32 v5, vcc, 0, v5, vcc')
        a('s_and_b64 exec, exec, s[6:7]')
        a('s_cbranch_execz L_nopf')
        a('global_load_dword v169, v[4:5], off')
        a.label('L_nopf')
        a('s_mov_b64 exec, -1')
    else: a('v_and_b32 v1, 63, v0')
    a(f's_load_dwordx2 s[58:59], s[0:1], {A_WS}')
    a('s_load_dwordx8 s[80:87], s[0:1], 64')
    a(f's_load_dwordx2 s[56:57], s[0:1], {A_OUT}')
    a('v_lshrrev_b32 v2, 6, v0')
    a('v_readfirstlane_b32 s3, v2')
    a('s_mov_b32 s40, 0xffff0000')
    a('s_and_b32 s28, s2, 7')
    a('s_lshr_b32 s29, s2, 3')
    a('s_lshl_b32 s32, s28, 5')
    a('s_or_b32 s32, s32, s29')
    a('v_and_b32 v3, 31, v0')
    a('v_lshrrev_b32 v2, 5, v0')
    a('s_lshl_b32 s33, s29, 6')
    a('v_lshl_add_u32 v4, v2, 3, s33')
    a('s_lshl_b32 s33, s28, 7')
    a('v_lshl_add_u32 v5, v3, 2, s33')
    a('v_lshl_add_u32 v5, v4, 10, v5')
    a('v_subrev_u32 v4, 0xc00, v5')
    a('s_lshl_b32 s33, s28, 9')
    a('v_lshl_add_u32 v13, v3, 4, s33')
    a('s_movk_i32 s35, 0x1000')
    a('s_mov_b32 s15, 0x20000'); a('s_mov_b32 s27, 0x20000'); a('s_mov_b32 s19, 0x20000')
    a('s_mov_b32 s23, 0x20000'); a('s_mov_b32 s11, 0x20000'); a('s_mov_b32 s55, 0x20000')
    a('v_lshlrev_b32 v15, 4, v1')
    a('v_mov_b32 v21, 0')
    a('v_lshlrev_b32 v14, 4, v0')
    a('s_waitcnt lgkmcnt(0)')
    stamp('karg')
    base(a, 12, 70, 4096)
    base(a, 24, 68, 0x200000)
    tsh = vm.issue('buffer_load_dwordx4 v[48:51], v13, s[12:15], 0 offen')
    base(a, 12, 66, 0x200000)
    for i in range(3): vm.issue(f'buffer_load_dword v{24+i}, v4, s[12:15], 0 offen offset:{1024*i}')
    tk = {}
    for i in range(8):
        so = 's35' if i >= 4 else '0'
        vm.issue(f'buffer_load_dword v{27+i}, v5, s[12:15], {so} offen offset:{1024*(i&3)}')
        tk[i] = vm.issue(f'buffer_load_dword v{36+i}, v5, s[24:27], {so} offen offset:{1024*(i&3)}')
    stamp('issued')
    a(f's_add_u32 s4, s58, {hex(EPOCH)}')
    a('s_addc_u32 s5, s59, 0')
    a('s_load_dword s50, s[4:5], 0')
    if P.get('cpf', 1):
        a('s_getpc_b64 s[6:7]')
        a.label('L_pc2')
        a('s_lshl_b32 s36, s29, 2')
        a('s_add_u32 s36, s36, s3')
        a('v_and_b32 v4, 1, v0')
        a('v_lshl_add_u32 v4, s36, 1, v4')
        a('v_min_u32 v4, (L_last-L_pc2)/128, v4')
        a('v_lshlrev_b32 v4, 7, v4')
        a('v_mov_b32 v5, s7')
        a('v_add_co_u32 v4, vcc, s6, v4')
        a('v_addc_co_u32 v5, vcc, 0, v5, vcc')
        a('s_mov_b64 exec, 3')
        vm.issue('global_load_dword v168, v[4:5], off')
        a('s_mov_b64 exec, -1')
    if P.get('kvbar', 1): a('s_barrier')
    a('s_lshl_b32 s33, s32, 2')
    a('s_add_u32 s6, s74, s33')
    a('s_addc_u32 s7, s75, 0')
    a('s_load_dword s34, s[6:7], 0')
    base(a, 12, 72, 0x200000)
    a('s_lshl_b32 s33, s32, 13')
    a('s_add_u32 s36, s33, 0x1000')
    vm.issue('buffer_load_dwordx4 v[146:149], v14, s[12:15], s33 offen')
    tsk = vm.issue('buffer_load_dwordx4 v[150:153], v14, s[12:15], s36 offen')
    a('s_mul_i32 s30, s28, 6')
    a('s_lshr_b32 s31, s29, 2')
    a('s_add_u32 s30, s30, s31')
    a('s_and_b32 s31, s29, 3')
    a('s_lshl_b32 s46, s30, 2')
    a('s_or_b32 s46, s46, s31')
    a('s_lshl_b32 s47, s31, 2')
    a('s_or_b32 s47, s47, s3')
    a('v_and_b32 v16, 1, v0')
    a('v_lshrrev_b32 v17, 3, v1')
    a('v_and_b32 v6, 7, v1')
    a('v_mul_u32_u24 v242, 0x6000, v17')
    a('v_lshl_add_u32 v242, v6, 4, v242')
    a('v_lshlrev_b32 v243, 3, v17')
    a('s_lshl_b32 s36, s3, 11')
    a('s_add_u32 s33, s33, s36')
    a('s_lshr_b32 s30, s32, 4')
    a('s_and_b32 s31, s32, 15')
    a('s_mov_b32 s98, s28')
    a('s_lshr_b32 s38, s3, 1')
    a('s_and_b32 s39, s3, 1')
    a('s_cmp_eq_u32 s38, 0')
    a('s_cselect_b32 s20, s78, s80')
    a('s_cselect_b32 s21, s79, s81')
    a(f's_mov_b32 s22, {512*3584}')
    base(a, 8, 82, 1792*1024)
    base(a, 16, 58, TS)
    a('s_lshl_b32 s36, s28, 12')
    a(f's_add_u32 s36, s36, {hex(GRP)}')
    a('s_add_u32 s52, s58, s36')
    a('s_addc_u32 s53, s59, 0')
    a('s_movk_i32 s54, 0x1000')
    a('s_cmp_eq_u32 s3, 3')
    a('s_cselect_b32 s37, 0, 0x70000000')
    a('v_mov_b32 v22, s37')
    a('s_lshl_b32 s36, s29, 7')
    vm.issue('buffer_load_dword v158, v22, s[52:55], s36 offen')
    a('s_lshl_b32 s36, s46, 6')
    a(f's_add_u32 s36, s36, {hex(MODT)}')
    vm.issue('buffer_load_dword v159, v22, s[16:19], s36 offen')
    a('s_lshl_b32 s36, s32, 13')
    a('s_lshl_b32 s37, s46, 11')
    a(f's_add_u32 s37, s37, {hex(MP)}')
    a('s_cmp_eq_u32 s3, 1')
    a(f's_cselect_b32 s37, s37, {hex(TS)}')
    a('s_cselect_b32 s44, 15, 63')
    a('s_cmp_eq_u32 s3, 2')
    a('s_cselect_b32 s37, s36, s37')
    a('v_and_b32 v4, s44, v1')
    a('v_lshlrev_b32 v4, 7, v4')
    if P.get('utt', 1): vm.issue('buffer_load_dword v157, v4, s[16:19], s37 offen')
    if P.get('tlb', 0) == 1:
        a('v_lshl_add_u32 v4, v1, 20, v22')
        for i, (p, n) in enumerate(((86, 512*6144), (84, 1024), (64, 0x200000), (78, 512*3584), (80, 512*3584), (82, 1792*1024), (56, 0x200000))):
            base(a, 12, p, n)
            vm.issue(f'buffer_load_dword v{160+i}, v4, s[12:15], 0 offen')
        vm.issue('buffer_load_dword v154, v4, s[16:19], 0 offen')
    for i in range(3):
        a(f'v_add_u32 v4, {64*i}, v1')
        a('v_mul_u32_u24 v5, 0x2aab, v4')
        a('v_lshrrev_b32 v5, 16, v5')
        a(f'v_mul_u32_u24 v5, {3584-96}, v5')
        a(f'v_lshl_add_u32 v{10+i}, v4, 4, v5')
        if i: a(f'v_subrev_u32 v{10+i}, {1024*i}, v{10+i}')
    a(f's_mul_i32 s41, s39, {32*3584}')
    a('s_mul_i32 s43, s31, 96')
    a('s_add_u32 s41, s41, s43')
    a('s_add_u32 s41, s41, 0x800')
    a('s_mul_i32 s43, s39, 3072')
    a(f's_mul_i32 s42, s38, {P1U}')
    a('s_add_u32 s42, s42, s43')
    early = deque()
    def p1dma(i):
        if i == 0:
            a('s_mul_i32 s99, s98, 6144')
            a('s_add_u32 m0, s99, s42')
            a(f's_mul_i32 s99, s98, {64*3584}')
            a('s_add_u32 s99, s99, s41')
        vm.issue(f'buffer_load_dwordx4 v{10+i}, s[20:23], s99 offen offset:{1024*i} lds')
        if i == 2:
            a('s_add_u32 s98, s98, 1'); a('s_and_b32 s98, s98, 7')
    for m in range(8):
        for i in range(3): early.append(lambda i=i: p1dma(i))
    for _ in range(P.get('e0', 0)): early.popleft()()
    a('v_lshrrev_b32 v4, 3, v1')
    a('v_bfe_u32 v5, v1, 4, 1')
    a('v_lshlrev_b32 v5, 2, v5')
    a('v_xor_b32 v5, v5, v6')
    a('v_lshlrev_b32 v5, 4, v5')
    a('v_lshl_add_u32 v8, v4, 10, v5')
    a(f'v_add_u32 v9, {8192-1024}, v8')
    a('s_lshl_b32 s43, s38, 5')
    a('v_xor_b32 v5, s43, v5')
    a('v_mul_u32_u24 v7, 0xe00, v4')
    a('v_add_u32 v7, v7, v5')
    a(f's_mul_i32 s48, s39, {8*3584}')
    a('s_lshl_b32 s43, s31, 7')
    a('s_add_u32 s48, s48, s43')
    a('s_lshl_b32 s43, s39, 10')
    a(f's_mul_i32 s49, s38, {SEG[0][2]-SEG[0][1]}')
    a('s_add_u32 s49, s49, s43')
    a(f's_mul_i32 s38, s38, {P1U}')
    a('s_add_u32 s43, s43, s38')
    a('v_sub_u32 v4, 7, v2')
    a('v_xor_b32 v4, v4, v6')
    a('v_lshl_add_u32 v4, v3, 4, v4')
    a(f'v_lshlrev_b32 v4, 4, v4')
    a(f'v_add_u32 v120, {PB}, v4')
    a('v_lshrrev_b32 v4, 4, v1')
    a('v_xor_b32 v5, v4, v1')
    a('s_lshl_b32 s36, s3, 11')
    a(f's_add_u32 s36, s36, {PB}')
    a('v_lshl_add_u32 v124, v5, 4, s36')
    a('v_xor_b32 v125, 64, v124')
    a('v_lshrrev_b32 v4, 3, v1')
    a('v_lshlrev_b32 v5, 4, v6')
    a('v_lshl_add_u32 v13, v4, 12, v5')
    a('s_lshl_b32 s36, s28, 2')
    a('s_add_u32 s36, s36, s3')
    a('s_lshl_b32 s36, s36, 16')
    a('s_sub_u32 s35, 31, s29')
    a('s_lshl_b32 s35, s35, 7')
    a('s_add_u32 s35, s35, s36')
    a('s_waitcnt lgkmcnt(0)')
    a('s_mul_i32 s50, s50, 1664525')
    a('s_add_u32 s50, s50, 1013904223')
    a('v_mov_b32 v20, s50')
    a('s_getreg_b32 s100, hwreg(HW_REG_XCC_ID, 0, 4)')
    if P.get('slow'): a('s_and_b32 s100, s29, 1')
    a('s_add_u32 s100, s100, s50')
    a('s_add_u32 s100, s100, 1')
    a('s_cmp_lg_u32 s3, 0')
    a('s_cbranch_scc1 L_noid')
    a('v_mov_b32 v22, s100')
    a('s_lshl_b32 s36, s29, 2')
    a(f'buffer_store_dword v22, v21, s[52:55], s36 offen offset:{XID} sc1')
    a.label('L_noid')
    stamp('pre')
    vm.need(tsh)
    lo(a, 52, 48); hi(a, 54, 48, 40); lo(a, 56, 49); hi(a, 58, 49, 40)
    lo(a, 53, 50); hi(a, 55, 50, 40); lo(a, 57, 51); hi(a, 59, 51, 40)
    vm.need(tk[0])
    stamp('kv0')
    for q in range(3):
        lo(a, 60+2*q, 24+q); hi(a, 61+2*q, 24+q, 40)
    for r in range(8):
        vm.need(tk[r])
        lo(a, 66+2*r, 27+r); hi(a, 67+2*r, 27+r, 40)
        lo(a, 84+2*r, 36+r); hi(a, 85+2*r, 36+r, 40)
        d = 102+2*r
        a(f'v_pk_mul_f32 v[{d}:{d+1}], v[{60+2*r}:{61+2*r}], v[58:59]')
        a(f'v_pk_fma_f32 v[{d}:{d+1}], v[{62+2*r}:{63+2*r}], v[56:57], v[{d}:{d+1}]')
        a(f'v_pk_fma_f32 v[{d}:{d+1}], v[{64+2*r}:{65+2*r}], v[54:55], v[{d}:{d+1}]')
        a(f'v_pk_fma_f32 v[{d}:{d+1}], v[{66+2*r}:{67+2*r}], v[52:53], v[{d}:{d+1}]')
        a(f'v_pk_mul_f32 v[{d}:{d+1}], v[{d}:{d+1}], v[{84+2*r}:{85+2*r}]')
    stamp('kvN')
    for c in range(2):
        for jj in range(4):
            a(f'v_cvt_pk_bf16_f32 v{24+4*c+jj}, v{102+2*(7-2*jj)+c}, v{102+2*(6-2*jj)+c}')
        a(f'ds_write_b128 v120, v[{24+4*c}:{27+4*c}] offset:{128*c}')
    a('s_waitcnt lgkmcnt(0)')
    a('s_barrier')
    stamp('abar')
    for j in range(2): a(f'ds_read_b128 v[{104+4*j}:{107+4*j}], v{124+j} offset:{1024*j}')
    a('s_mov_b32 s24, s35')
    a('s_add_u32 s25, s35, 0x8000')
    ustores = [f'buffer_store_dwordx4 v[{104+4*j}:{107+4*j}], v13, s[16:19], s{24+j} offen' for j in range(2)]
    for j in range(2):
        a(f's_waitcnt lgkmcnt({1-j})')
        tus = vm.issue(ustores[j])
    a('s_load_dwordx2 s[44:45], s[0:1], 0')
    a('s_load_dwordx2 s[94:95], s[0:1], 80')
    a('s_load_dwordx2 s[96:97], s[0:1], 88')
    a('s_lshl_b32 s7, s3, 7')
    a('s_lshl_b32 s36, s29, 2')
    a('s_add_u32 s7, s7, s36')
    a('v_mov_b32 v123, s100')
    stamp('utst')
    for i in range(4): a(f'v_mov_b32 v{40+i}, 0')
    a(f'v_add_u32 v14, {CB}, v14')
    a('v_cmp_gt_u32 vcc, 32, v0')
    a('s_and_saveexec_b64 s[36:37], vcc')
    a('s_cbranch_execz L_nz')
    a('ds_write_b128 v14, v[40:43]')
    a(f'ds_write_b128 v14, v[40:43] offset:{CHS}')
    a('v_cmp_gt_u32 vcc, 2, v0')
    a('s_and_b64 exec, exec, vcc')
    for c in range(2):
        a(f'ds_write_b128 v14, v[40:43] offset:{c*CHS+U0+4096}')
        a(f'ds_write_b128 v14, v[40:43] offset:{c*CHS+U1+4096}')
    a.label('L_nz')
    a('s_mov_b64 exec, s[36:37]')
    a('v_cmp_eq_u32 s[36:37], 0, v0')
    a('s_lshl_b32 s4, s34, 16')
    a('s_and_b32 s5, s34, 0xffff0000')
    a('s_mov_b32 s6, 0xffff')
    vm.need(tsk)
    stamp('skok')
    for c in range(2):
        kx = 146+4*c
        lo(a, 44, kx)
        a(f'v_add_f32 v44, s{4+c}, v44')
        a('v_cvt_pk_bf16_f32 v44, v44, v44')
        a(f'v_bfi_b32 v44, s6, v44, v{kx}')
        a(f'v_cndmask_b32 v{kx}, v{kx}, v44, s[36:37]')
        a(f'ds_write_b128 v14, v[{kx}:{kx+3}] offset:{c*CHS+KB}')
    vm.need(tus)
    vm.issue(f'buffer_store_dword v123, v21, s[52:55], s7 offen offset:{UH}')
    a('v_and_b32 v120, 31, v1')
    a('v_lshlrev_b32 v120, 2, v120')
    a('s_lshr_b32 s5, s29, 3')
    a('s_lshl_b32 s5, s5, 7')
    hloads = [f'buffer_load_dword v121, v120, s[52:55], 0 offen offset:{XID} sc1', f'buffer_load_dword v124, v120, s[52:55], s5 offen offset:{UH} sc1']
    for l in hloads: tu = vm.issue(l)
    a('v_lshrrev_b32 v4, 1, v6')
    a('v_lshlrev_b32 v4, 11, v4')
    a('v_lshl_add_u32 v4, v16, 6, v4')
    a('v_lshrrev_b32 v5, 5, v1')
    a('v_lshl_add_u32 v4, v5, 5, v4')
    a('v_bfe_u32 v5, v1, 4, 1')
    a('v_lshl_add_u32 v244, v5, 4, v4')
    a('s_lshl_b32 s35, s32, 13')
    a('s_add_u32 s34, s35, 0x1000')
    a('v_lshlrev_b32 v125, 4, v0')
    a('s_lshr_b32 s36, s3, 1')
    a(f's_mul_i32 s36, s36, {CHS}')
    a('s_xor_b32 s38, s39, 1')
    a('s_lshl_b32 s38, s38, 6')
    a('s_add_u32 s36, s36, s38')
    a(f's_add_u32 s36, s36, {CB}')
    a('v_and_b32 v3, 15, v0')
    a('v_bfe_u32 v4, v0, 4, 2')
    a('v_lshlrev_b32 v5, 4, v4')
    a('v_lshl_add_u32 v22, v3, 5, v5')
    a(f's_add_u32 s38, s36, {KB-480}')
    a('v_add_u32 v22, s38, v22')
    a('v_and_b32 v23, 14, v3')
    a('v_lshlrev_b32 v23, 1, v23')
    a('v_sub_u32 v23, v5, v23')
    a(f'v_mul_u32_u24 v5, {U1-U0}, v16')
    a('v_sub_u32 v23, v23, v5')
    a(f's_add_u32 s38, s36, {U1+28}')
    a('v_add_u32 v16, s38, v23')
    for i in range(1, 4): a(f'v_add_u32 v{16+i}, {1024*i}, v16')
    a('v_bfe_u32 v5, v3, 1, 2')
    a('v_xor_b32 v5, v5, v4')
    a('v_lshl_add_u32 v5, v3, 2, v5')
    a('s_lshl_b32 s38, s3, 13')
    a(f's_add_u32 s38, s38, {PB}')
    a('v_lshl_add_u32 v23, v5, 4, s38')
    a(f's_mov_b32 s51, {SPIN}')
    a('s_mov_b32 s101, 0')
    vm.need(tu)
    stamp('ut1st')
    a('s_branch L_uh_chk')
    a.label('L_uh')
    for l in hloads: a(l)
    a('s_waitcnt vmcnt(0)')
    a.label('L_uh_chk')
    a('v_subrev_u32 v122, s50, v121')
    a('v_subrev_u32 v122, 1, v122')
    a('v_cmp_lt_u32 vcc, 15, v122')
    a('v_cmp_ne_u32 s[92:93], s100, v121')
    a('s_sub_u32 s51, s51, 1')
    a('s_cbranch_scc1 L_uh_ok')
    a('s_cbranch_vccnz L_uh')
    a('s_cmp_eq_u64 s[92:93], 0')
    a('s_cbranch_scc1 L_uh_same')
    a('s_cmp_lg_u32 s101, 0')
    a('s_cbranch_scc1 L_uh_same')
    a('s_mov_b32 s101, 1')
    for l in ustores: a(l + ' sc1')
    a('s_waitcnt vmcnt(0)')
    a(f'buffer_store_dword v20, v21, s[52:55], s7 offen offset:{UH} sc1')
    a.label('L_uh_same')
    a('v_cmp_ne_u32 vcc, s50, v124')
    a('v_cmp_ne_u32 s[92:93], s100, v124')
    a('s_nop 0')
    a('s_and_b64 vcc, vcc, s[92:93]')
    a('s_cbranch_vccnz L_uh')
    a.label('L_uh_ok')
    raw(6, 's51')
    stamp('uhok')
    tu = []
    for c in range(2):
        vm.issue(f'buffer_load_dwordx4 v[{72+4*c}:{75+4*c}], v125, s[16:19], s{35-c} offen sc1')
        tu.append(vm.issue(f'buffer_load_dword v{80+c}, v125, s[16:19], s{35-c} offen offset:16 sc1'))
    a('s_waitcnt lgkmcnt(0)')
    base(a, 12, 94, 1024)
    a('s_lshl_b32 s36, s47, 6')
    tc = vm.issue('buffer_load_dwordx2 v[240:241], v243, s[12:15], s36 offen')
    base(a, 12, 96, 512*6144)
    a('s_cmp_lt_u32 s29, 24')
    a('s_cselect_b32 s14, s14, 0')
    a('s_lshr_b32 s36, s46, 2')
    a('s_lshl_b32 s36, s36, 7')
    a(f's_mul_i32 s37, s47, {32*6144}')
    a('s_add_u32 s36, s36, s37')
    twm = []
    for r in range(4):
        twm.append(vm.issue(f'buffer_load_dwordx4 v[{24+4*r}:{27+4*r}], v242, s[12:15], s36 offen'))
        if r < 3: a('s_add_u32 s36, s36, 0x1800')
    base(a, 12, 44, 0x200000)
    vm.issue('buffer_load_dwordx4 v[232:235], v15, s[12:15], s33 offen')
    tx = vm.issue('buffer_load_dwordx4 v[236:239], v15, s[12:15], s33 offen offset:1024')
    for _ in range(P.get('e0b', 3)): early.popleft()()
    if P.get('tlb', 0) == 2:
        a('s_cmp_eq_u32 s3, 3')
        a('s_cselect_b32 s37, 0, 0x70000000')
        a('v_lshl_add_u32 v4, v1, 20, s37')
        base(a, 12, 56, 0x200000)
        vm.issue('buffer_load_dword v245, v4, s[16:19], 0 offen')
        vm.issue('buffer_load_dword v246, v4, s[8:11], 0 offen')
        vm.issue('buffer_load_dword v247, v4, s[12:15], 0 offen')
    a('s_movk_i32 s36, 0xff')
    a('v_cmp_ne_u32 vcc, s36, v0')
    for c in range(2):
        u = 72+4*c
        vm.need(tu[c])
        if c == 0: stamp('utok')
        a(f'v_cndmask_b32 v{80+c}, 0, v{80+c}, vcc')
        a(f'ds_write_b128 v14, v[{u}:{u+3}] offset:{c*CHS+U0}')
        for j in range(3): a(f'v_alignbit_b32 v{40+4*c+j}, v{u+j+1}, v{u+j}, 16')
        a(f'v_alignbit_b32 v{43+4*c}, v{80+c}, v{u+3}, 16')
        a(f'ds_write_b128 v14, v[{40+4*c}:{43+4*c}] offset:{c*CHS+U1}')
    a('s_waitcnt lgkmcnt(0)')
    a('s_barrier')
    stamp('bbar')
    st1 = deque()
    T0, T1, AC = 200, 208, 216
    st1.append(('wait', tc))
    st1.extend([f'v_lshlrev_b32 v{T0}, 16, v240', f'v_and_b32 v{T0+1}, s40, v240', f'v_lshlrev_b32 v{T0+2}, 16, v241', f'v_and_b32 v{T0+3}, s40, v241'])
    st1.extend(f'v_mul_f32 v{T0+4+r}, {fh(-1.4426950408889634)}, v{T0+r}' for r in range(4))
    st1.extend(f'v_exp_f32 v{T0+4+r}, v{T0+4+r}' for r in range(4))
    st1.extend(f'v_add_f32 v{T0+4+r}, 1.0, v{T0+4+r}' for r in range(4))
    st1.extend(f'v_rcp_f32 v{T0+4+r}, v{T0+4+r}' for r in range(4))
    st1.extend(f'v_mul_f32 v{T0+r}, v{T0+r}, v{T0+4+r}' for r in range(4))
    st1.extend([f'v_cvt_pk_bf16_f32 v240, v{T0}, v{T0+1}', f'v_cvt_pk_bf16_f32 v241, v{T0+2}, v{T0+3}'])
    st1.extend([f'v_lshlrev_b32 v{T0}, 16, v240', f'v_and_b32 v{T0+1}, s40, v240', f'v_lshlrev_b32 v{T0+2}, 16, v241', f'v_and_b32 v{T0+3}, s40, v241'])
    for r in range(4):
        st1.append(('wait', twm[r]))
        for j in range(4):
            st1.extend([f'v_lshlrev_b32 v{T1+2*j}, 16, v{24+4*r+j}', f'v_and_b32 v{T1+2*j+1}, s40, v{24+4*r+j}'])
        st1.extend((f'v_mul_f32 v{AC+j}, v{T1+j}, v{T0}' if r == 0 else f'v_fmac_f32 v{AC+j}, v{T1+j}, v{T0+r}') for j in range(8))
    st1.extend(f'v_permlane32_swap_b32 v{AC+j}, v{AC+4+j}' for j in range(4))
    st1.extend(f'v_add_f32 v{AC+j}, v{AC+j}, v{AC+4+j}' for j in range(4))
    st1.extend([f'v_mov_b32 v{T0+2}, s50', f'v_mov_b32 v{T0+3}, s50'])
    st1.extend(f'v_permlane16_swap_b32 v{AC+j}, v{AC+2+j}' for j in range(2))
    st1.extend(f'v_add_f32 v{T0+j}, v{AC+j}, v{AC+2+j}' for j in range(2))
    st1.extend(['s_nop 0'] + [f'v_add_f32_dpp v{T0+j}, v{T0+j}, v{T0+j} row_ror:8 row_mask:0xf bank_mask:0xf' for j in range(2)])
    def st1_step(credit):
        while st1 and credit > 0:
            x = st1.popleft()
            if isinstance(x, tuple): vm.need(x[1])
            else: a(x); credit -= cost(x)
    a('s_lshr_b32 s5, s46, 2')
    a('s_lshl_b32 s5, s5, 13')
    a('s_lshl_b32 s36, s47, 7')
    a('s_add_u32 s5, s5, s36')
    a(f's_add_u32 s5, s5, {hex(MP)}')
    a('s_lshl_b32 s6, s46, 11')
    a(f's_add_u32 s6, s6, {hex(MP)}')
    a('s_cmp_lt_u32 s29, 24')
    a(f's_cselect_b32 s5, s5, {hex(TS)}')
    a(f's_cselect_b32 s7, s3, 1')
    ploads = [f'buffer_load_dwordx4 v[{104+4*j}:{107+4*j}], v15, s[16:19], s6 offen offset:{1024*j} sc1' for j in range(2)]
    tmi = []
    def mod_issue():
        a('s_cmp_lg_u32 s7, 0')
        a('s_cbranch_scc1 L_nomi')
        for l in ploads: a(l)
        a.label('L_nomi')
        tmi.append(vm.issued)
    def mod_final():
        a('s_cmp_lg_u32 s7, 0')
        a('s_cbranch_scc1 L_nomod')
        done = vm.done
        a(f's_waitcnt vmcnt({vm.issued - tmi[0]})')
        poll('mp', ploads, [106, 110], pre=0)
        vm.done = done
        a('v_pk_add_f32 v[104:105], v[104:105], v[108:109]')
        a('s_lshr_b32 s36, s46, 5')
        a('s_cmp_eq_u32 s36, 1')
        for j in range(2): a(f'v_add_f32_dpp v{104+j}, v{104+j}, v{104+j} row_ror:8 row_mask:0xf bank_mask:0xf')
        a('s_cselect_b32 s38, 1.0, 0')
        a('s_cmp_eq_u32 s36, 4')
        for op in ('v_permlane16_swap_b32', 'v_permlane32_swap_b32'):
            for j in range(2): a(f'v_mov_b32 v{106+j}, v{104+j}')
            for j in range(2): a(f'{op} v{104+j}, v{106+j}')
            a('v_pk_add_f32 v[104:105], v[104:105], v[106:107]')
        a('s_cselect_b32 s38, 1.0, s38')
        a('s_lshl_b32 s36, s46, 6')
        a('v_cvt_pk_bf16_f32 v106, v104, v105')
        a(f's_add_u32 s36, s36, {hex(MODT)}')
        lo(a, 104, 106); hi(a, 105, 106, 40)
        for j in range(2): a(f'v_add_f32 v{104+j}, s38, v{104+j}')
        a('v_cvt_pk_bf16_f32 v108, v104, v105')
        a('v_mov_b32 v110, s50')
        a('v_mov_b32 v111, s50')
        a('v_mov_b32_dpp v109, v108 quad_perm:[1,1,3,3] row_mask:0xf bank_mask:0xf')
        a('v_lshlrev_b32 v104, 3, v1')
        a('s_mov_b64 exec, 0x55')
        a('buffer_store_dwordx4 v[108:111], v104, s[16:19], s36 offen sc1')
        a('s_mov_b64 exec, -1')
        a.label('L_nomod')
    ACC, AR, BR = 40, 72, 104
    pipe = LdsPipe(a)
    reads = []
    for i in range(32):
        o = 32*((31-i) & 7); b = 16 + ((31-i) >> 3); d = AR + 4*(i & 7)
        reads.append((('A', i, 0), f'ds_read2_b32 v[{d}:{d+1}], v{b} offset0:{o} offset1:{o+1}'))
        reads.append((('A', i, 1), f'ds_read2_b32 v[{d+2}:{d+3}], v{b} offset0:{o+2} offset1:{o+3}'))
        if i < 4:
            for t in range(8):
                j = 4*t+3-i
                reads.append((('B', j), f'ds_read_b128 v[{BR+4*j}:{BR+4*j+3}], v22 offset:{128*j}'))
    tok = {}; nxt = [0]
    def pump(cur_step, maxn):
        n = 0
        while n < maxn and nxt[0] < len(reads) and pipe.outstanding() < 13:
            key, line = reads[nxt[0]]
            if key[0] == 'A' and key[1] >= cur_step + 8: break
            tok[key] = pipe.issue(line); nxt[0] += 1; n += 1
    pump(0, 12)
    pending = []; nm = 0
    NB = P.get('e1', 3); EV = P.get('ev', 6)
    for i in range(32):
        for t in range(i >> 2, 8):
            j = 4*t+3-i
            while ('B', j) not in tok or ('A', i, 1) not in tok:
                pipe.need(pipe.done + 2); pump(i, 2)
            pipe.need(max(tok[('A', i, 1)], tok[('B', j)]))
            d = ACC+4*t; c = '0' if i == 0 else f'v[{d}:{d+3}]'
            s = AR+4*(i & 7)
            a(f'v_mfma_f32_16x16x32_bf16 v[{d}:{d+3}], v[{s}:{s+3}], v[{BR+4*j}:{BR+4*j+3}], {c}')
            pump(i, 2 if i < 4 else 1)
            nm += 1
            if nm >= P.get('e1s', 8) and nm % EV == 0 and NB > 0 and early:
                early.popleft()(); NB -= 1
            if i >= P.get('s1', 14): st1_step(2)
        if pending and pipe.outstanding() < 14:
            t = pending.pop()
            pipe.issue(f'ds_write_b128 v23, v[{ACC+4*t}:{ACC+4*t+3}] offset:{1024*t}')
        if (i & 3) == 3: pending.append(i >> 2)
    for t in pending:
        pipe.issue(f'ds_write_b128 v23, v[{ACC+4*t}:{ACC+4*t+3}] offset:{1024*t}')
    st1_step(1000)
    lstore([f'buffer_store_dwordx4 v[{T0}:{T0+3}], v244, s[16:19], s5 offen'])
    stamp('bend')
    a('v_lshlrev_b32 v4, 3, v0')
    a(f'v_add_u32 v4, {PRM}, v4')
    a('v_lshrrev_b32 v2, 1, v0')
    a('v_bfe_u32 v3, v0, 4, 2')
    a('v_xor_b32 v2, v2, v3')
    a('v_lshlrev_b32 v2, 4, v2')
    a('v_and_b32 v3, 1, v0')
    a('v_lshl_add_u32 v2, v3, 3, v2')
    a(f'v_add_u32 v2, {PB}, v2')
    a('v_lshlrev_b32 v3, 4, v0')
    a('v_and_b32 v5, 3, v0')
    a(f's_mul_i32 s38, s32, {YP}')
    a(f's_add_u32 s38, s38, {hex(YT)}')
    a(f'v_add_u32 v13, {PRM}, v15')
    a('s_and_b32 s36, s32, 7')
    a('s_lshl_b32 s36, s36, 7')
    a(f's_add_u32 s36, s36, {PRM+5120}')
    a('v_lshl_add_u32 v14, v6, 4, s36')
    a('s_waitcnt lgkmcnt(0)')
    a('s_barrier')
    stamp('pbar')
    for j in range(4):
        for w in range(4):
            a(f'ds_read_b64 v[{72+8*j+2*w}:{73+8*j+2*w}], v2 offset:{8192*w+2048*j}')
        if j == 2: a('s_waitcnt lgkmcnt(8)')
    mod_issue()
    for j in range(4):
        b = 72+8*j; q = 24+4*j
        if j: a(f's_waitcnt lgkmcnt({12-4*j})')
        a(f'v_pk_add_f32 v[{b}:{b+1}], v[{b}:{b+1}], v[{b+2}:{b+3}]')
        a(f'v_pk_add_f32 v[{b+4}:{b+5}], v[{b+4}:{b+5}], v[{b+6}:{b+7}]')
        a(f'v_mov_b32 v{q+2}, s50')
        a(f'v_mov_b32 v{q+3}, s50')
        a(f'v_cvt_pk_bf16_f32 v{q}, v{b}, v{b+4}')
        a(f'v_cvt_pk_bf16_f32 v{q+1}, v{b+1}, v{b+5}')
        tys = vm.issue(f'buffer_store_dwordx4 v[{q}:{q+3}], v3, s[16:19], s38 offen sc1')
        if j < 3: a('s_add_u32 s38, s38, 0x1000')
    stamp('ytst')
    a('v_mov_b32 v22, v4')
    a('v_mov_b32 v23, v14')
    mod_final(); raw(7, 's51')
    if P.get('mbar', 1): a('s_barrier')
    for _ in range(P.get('e2', 12)): early.popleft()()
    a('s_lshl_b32 s35, s3, 10')
    a(f's_add_u32 s35, s35, {hex(MODT)}')
    a('s_add_u32 s34, s35, 0x1000')
    a('s_add_u32 s4, s35, 0x2000')
    mloads = [f'buffer_load_dwordx4 v[{104+4*r}:{107+4*r}], v15, s[16:19], s{(35, 34, 4)[r]} offen sc1' for r in range(3)]
    a('v_lshrrev_b32 v4, 2, v0')
    a(f'v_mul_u32_u24 v3, {2*YS}, v5')
    a('v_lshl_add_u32 v3, v4, 2, v3')
    a(f'v_add_u32 v3, {XG}, v3')
    a(f's_mul_i32 s46, s3, {2*YS}')
    a(f's_add_u32 s46, s46, {XG}')
    a('v_add_u32 v4, s46, v15')
    a('s_lshl_b32 s46, s3, 1')
    a('v_xor_b32 v5, s46, v6')
    a('v_lshlrev_b32 v5, 4, v5')
    a('v_lshl_add_u32 v5, v1, 7, v5')
    a(f'v_add_u32 v5, {XH}, v5')
    a('v_xor_b32 v16, 16, v5')
    a('v_lshrrev_b32 v17, 3, v1')
    a('v_xor_b32 v18, v17, v6')
    a('v_lshlrev_b32 v18, 4, v18')
    a('v_lshl_add_u32 v18, v17, 7, v18')
    a('s_lshl_b32 s46, s3, 11')
    a(f's_add_u32 s46, s46, {XH}')
    a('v_add_u32 v18, s46, v18')
    a('v_lshlrev_b32 v17, 9, v17')
    a('v_lshl_add_u32 v17, v6, 4, v17')
    a('s_lshr_b32 s46, s32, 2')
    a('s_lshl_b32 s46, s46, 15')
    a('s_and_b32 s47, s32, 3')
    a('s_lshl_b32 s47, s47, 7')
    a('s_add_u32 s46, s46, s47')
    a('s_lshl_b32 s47, s3, 13')
    a('s_add_u32 s46, s46, s47')
    a(f's_add_u32 s46, s46, {hex(H2)}')
    a('s_add_u32 s47, s46, 0x1000')
    a(f's_add_u32 s37, s33, {hex(X1)}')
    a('v_lshrrev_b32 v14, 2, v0')
    a(f'v_mul_u32_u24 v14, {YP}, v14')
    a('v_and_b32 v19, 3, v0')
    a('v_lshl_add_u32 v14, v19, 4, v14')
    a('s_lshl_b32 s24, s32, 6')
    a(f's_add_u32 s26, s24, {hex(YT)}')
    a(f's_add_u32 s27, s26, {64*YP}')
    a(f's_add_u32 s5, s26, {128*YP}')
    a(f's_add_u32 s6, s26, {192*YP}')
    X = (64, 160)
    vm.need(tx)
    subs = []
    for t in range(2):
        s = Asm(); unpack8(s, X[t], 232+4*t, 40); ln_stats(s, X[t], X[t]+8, X[t]+16, 24+t)
        for p in range(4):
            s(f'v_pk_mul_f32 v[{X[t]+8+2*p}:{X[t]+9+2*p}], v[{X[t]+8+2*p}:{X[t]+9+2*p}], v[{X[t]+16}:{X[t]+17}] op_sel:[0,0] op_sel_hi:[1,0]')
        subs.append(s)
    zipl(a, *subs)
    stamp('ln1')
    yloads = [f'buffer_load_dwordx4 v[{24+4*j}:{27+4*j}], v14, s[16:19], s{(26, 27, 5, 6)[j]} offen sc1' for j in range(4)]
    vm.need(tys)
    stamp('ytack')
    for l in yloads: ty = vm.issue(l)
    for l in mloads: tm = vm.issue(l)
    poll('yt', yloads, [26, 30, 34, 38], pre=ty)
    stamp('ytok'); raw(2, 's51')
    for j in range(4):
        a(f'ds_write_b32 v3, v{24+4*j} offset:{256*j}')
        a(f'ds_write_b32 v3, v{25+4*j} offset:{256*j+YS}')
    poll('md', mloads, [106, 110, 114], pre=tm)
    stamp('mdok'); raw(1, 's51')
    for r in range(3): a(f'ds_write_b64 v22, v[{104+4*r}:{105+4*r}] offset:{2048*r}')
    a('s_waitcnt lgkmcnt(0)')
    a('s_barrier')
    stamp('ybar')
    for i, off in enumerate((1024, 0, 2048)):
        a(f'ds_read_b128 v[{40+4*i}:{43+4*i}], v13 offset:{off}')
    a('ds_read_b128 v[24:27], v4')
    a(f'ds_read_b128 v[28:31], v4 offset:{YS}')
    for i, off in enumerate((4096, 3072)):
        a(f'ds_read_b128 v[{52+4*i}:{55+4*i}], v13 offset:{off}')
    a('ds_read_b128 v[124:127], v23')
    a('s_waitcnt lgkmcnt(6)')
    unpack8(a, 128, 40, 40); unpack8(a, 136, 44, 40)
    for t in range(2):
        for p in range(4):
            d = X[t]+8+2*p
            a(f'v_pk_fma_f32 v[{d}:{d+1}], v[{d}:{d+1}], v[{128+2*p}:{129+2*p}], v[{136+2*p}:{137+2*p}]')
    a('s_waitcnt lgkmcnt(5)')
    unpack8(a, 144, 48, 40)
    for t in range(2):
        for p in range(4):
            d = X[t]+8+2*p
            a(f'v_pk_mul_f32 v[{d}:{d+1}], v[{d}:{d+1}], v[{144+2*p}:{145+2*p}]')
    a('s_waitcnt lgkmcnt(0)')
    unpack8(a, 128, 52, 40); unpack8(a, 136, 56, 40)
    subs = []
    for t in range(2):
        s = Asm(); x = X[t]
        unpack8(s, x+20, 24+4*t, 40)
        for p in range(4):
            s(f'v_pk_fma_f32 v[{x+2*p}:{x+2*p+1}], v[{x+8+2*p}:{x+9+2*p}], v[{x+20+2*p}:{x+21+2*p}], v[{x+2*p}:{x+2*p+1}]')
        for j in range(4): s(f'v_cvt_pk_bf16_f32 v{32+4*t+j}, v{x+2*j}, v{x+2*j+1}')
        s(f'buffer_store_dwordx4 v[{32+4*t}:{35+4*t}], v15, s[16:19], s37 offen offset:{1024*t} sc1')
        unpack8(s, x, 32+4*t, 40)
        ln_stats(s, x, x+8, x+16, 24+t)
        for p in range(4):
            s(f'v_pk_mul_f32 v[{x+8+2*p}:{x+9+2*p}], v[{x+8+2*p}:{x+9+2*p}], v[{x+16}:{x+17}] op_sel:[0,0] op_sel_hi:[1,0]')
        for p in range(4):
            s(f'v_pk_fma_f32 v[{x+8+2*p}:{x+9+2*p}], v[{x+8+2*p}:{x+9+2*p}], v[{128+2*p}:{129+2*p}], v[{136+2*p}:{137+2*p}]')
        for j in range(4): s(f'v_cvt_pk_bf16_f32 v{40+4*t+j}, v{x+8+2*j}, v{x+9+2*j}')
        s(f'ds_write_b128 v{(5, 16)[t]}, v[{40+4*t}:{43+4*t}]')
        subs.append(s)
    zipl(a, *subs)
    vm.issued += 2
    a('s_waitcnt lgkmcnt(0)')
    a('s_barrier')
    stamp('hbar')
    a('ds_read_b128 v[24:27], v18')
    a('ds_read_b128 v[28:31], v18 offset:1024')
    a('s_and_b32 s24, s32, 31')
    a('s_lshl_b32 s24, s24, 4')
    a('s_lshl_b32 s25, s3, 2')
    a('s_add_u32 s33, s24, s25')
    a('s_and_b32 s25, s30, 1')
    a('s_lshl_b32 s25, s25, 8')
    a('s_lshl_b32 s26, s3, 6')
    a('s_add_u32 s25, s25, s26')
    a('v_and_b32 v19, 15, v1')
    a('v_lshlrev_b32 v19, 2, v19')
    a('s_waitcnt lgkmcnt(0)')
    lstore(['buffer_store_dwordx4 v[24:27], v17, s[16:19], s46 offen', 'buffer_store_dwordx4 v[28:31], v17, s[16:19], s47 offen'])
    stamp('h2st')
    a('v_bfe_u32 v4, v1, 4, 1')
    a('v_lshrrev_b32 v5, 5, v1')
    a('v_bfe_u32 v22, v1, 2, 2')
    a('v_and_b32 v23, 3, v1')
    a('v_lshlrev_b32 v23, 3, v23')
    a('v_lshl_add_u32 v3, v5, 3, v22')
    a('v_bfe_u32 v13, v1, 3, 1')
    a('v_lshlrev_b32 v16, 7, v3')
    a('v_add_u32 v16, v16, v23')
    a('v_lshl_add_u32 v16, v13, 6, v16')
    a('v_lshl_add_u32 v16, v4, 5, v16')
    a(f'v_mul_u32_u24 v17, {SEG[0][2]-SEG[0][1]}, v4')
    a(f'v_add_u32 v17, {SEG[0][1]}, v17')
    a(f'v_mul_u32_u24 v18, {P1U}, v4')
    for ct in range(4):
        a(f'v_xor_b32 v14, {32*ct}, v16')
        a(f'v_add_u32 v{246+ct}, v14, v17')
        a(f'v_add_u32 v{120+ct}, v14, v18')
    a('v_mul_u32_u24 v3, 0x60, v3')
    a('v_add_u32 v3, v3, v23')
    a('v_add_u32 v18, v18, v3')
    a('v_lshl_add_u32 v3, v5, 2, v22')
    a('v_lshlrev_b32 v3, 7, v3')
    a('v_lshl_add_u32 v3, v13, 6, v3')
    a('v_lshl_add_u32 v3, v4, 5, v3')
    a('v_add_u32 v3, v3, v23')
    a('s_lshl_b32 s26, s3, 11')
    a('v_add_u32 v240, s26, v3')
    a('v_xor_b32 v241, 64, v240')
    for i in range(1, 3):
        a(f'v_add_u32 v{240+2*i}, {65536*i}, v240')
        a(f'v_add_u32 v{241+2*i}, {65536*i}, v241')
    a(f's_mov_b32 s44, {fh(GC2)}'); a(f's_mov_b32 s45, {fh(GC2)}')
    a(f'v_mov_b32 v2, {fh(GC1)}'); a(f'v_mov_b32 v3, {fh(GC1)}')
    a('s_lshl_b32 s27, s30, 2')
    a('s_add_u32 s27, s27, s3')
    a('s_lshl_b32 s28, s27, 15')
    a(f's_add_u32 s28, s28, {hex(H2)}')
    a('s_waitcnt vmcnt(0)'); vm.done = vm.issued
    stamp('h2dr')
    lstore([f'buffer_store_dword v20, v21, s[52:55], s33 offen offset:{F1}'])
    ptok = {}
    def p2dma(k):
        k0, gb, ub = seg_of(k)
        a(f's_add_u32 m0, {"s49" if k < 15 else "s43"}, {gb + 2048*(k-k0)}')
        if k: a(f's_add_u32 s48, s48, {16*3584}')
        ptok[k] = vm.issue('buffer_load_dwordx4 v7, s[20:23], s48 offen lds')
    while early: early.popleft()()
    for k in range(7): p2dma(k)
    a('s_mul_i32 s29, s27, 112')
    a('s_lshl_b32 s47, s3, 4')
    a('s_add_u32 s47, s47, s31')
    a(f's_mul_i32 s47, s47, {4*YP}')
    a('s_lshl_b32 s4, s30, 10')
    a(f's_add_u32 s4, s4, {hex(YT)}')
    a('s_add_u32 s47, s47, s4')
    a('s_mul_i32 s46, s31, 3')
    a('s_add_u32 s46, s46, s29')
    a('s_lshl_b32 s46, s46, 10')
    a(f's_add_u32 s46, s46, {hex(ACT + 64*1024)}')
    a('s_lshr_b32 s39, s32, 3')
    a('s_and_b32 s35, s39, 1')
    a('s_and_b32 s36, s32, 7')
    a('s_lshl_b32 s36, s36, 7')
    a(f's_mul_i32 s37, s3, {192*1024}')
    a('s_add_u32 s37, s37, s36')
    a(f's_add_u32 s37, s37, {1024*1024}')
    a('s_lshl_b32 s38, s3, 18')
    a('s_add_u32 s38, s38, s36')
    a('s_lshl_b32 s6, s35, 3')
    a('s_add_u32 s6, s6, s3')
    a(f's_mul_i32 s6, s6, {16*YP}')
    a('s_add_u32 s6, s6, s4')
    a(f's_mul_i32 s4, s39, {224*1024}')
    a(f's_add_u32 s4, s4, {hex(ACT)}')
    a(f's_mul_i32 s5, s3, {12*1024}')
    a('s_add_u32 s5, s5, s4')
    a(f's_add_u32 s5, s5, {64*1024}')
    a('s_lshl_b32 s39, s39, 16')
    a('s_add_u32 s39, s39, s36')
    a('v_bfe_u32 v4, v1, 1, 2')
    a('v_and_b32 v5, 1, v1')
    a('v_lshlrev_b32 v5, 2, v5')
    a('v_lshl_add_u32 v4, v4, 4, v5')
    a('s_lshl_b32 s35, s35, 3')
    a('v_add_u32 v13, s35, v4')
    a('v_lshlrev_b32 v73, 7, v1')
    a('s_lshl_b32 s34, s2, 2')
    a('s_add_u32 s34, s34, s3')
    a(f's_mul_i32 s34, s34, {14*128}')
    poll('f1', [f'buffer_load_dword v22, v19, s[52:55], s25 offen offset:{F1} sc1'], [22])
    stamp('f1ok'); raw(3, 's51')
    htok = {}
    def h2load(ks):
        htok[ks] = vm.issue(f'buffer_load_dwordx4 a[{4*ks}:{4*ks+3}], v15, s[16:19], s28 offen offset:{1024*(ks&3)} sc1')
        if (ks & 3) == 3: a('s_add_u32 s28, s28, 0x1000')
    NH0 = P.get('nh0', 8)
    for ks in range(NH0): h2load(ks)
    a('s_barrier')
    stamp('b0')
    fill = deque()
    wtok = {}
    def wdslot(i):
        s = i % 20
        so = 's37' if i < 12 else 's38'
        def f0():
            a(f's_add_u32 m0, s26, {8192*WBL[s]}')
            vm.issue(f'buffer_load_dwordx4 v8, s[8:11], {so} offen lds')
        def f1():
            wtok[i] = vm.issue(f'buffer_load_dwordx4 v9, s[8:11], {so} offen offset:1024 lds')
            a(f's_add_u32 {so}, {so}, 0x4000')
        return [f0, f1]
    for ks in range(NH0, 32): fill.append(lambda ks=ks: h2load(ks))
    for k in range(7, 15): fill.append(lambda k=k: p2dma(k))
    valu = deque()
    AR, NA = 24, 6
    ACC1, ACC2 = 192, 128
    pipe = LdsPipe(a)
    steps = [(0, k, ct) for k in range(32) for ct in range(3)] + [(1, k, ct) for k in range(32) for ct in range(4)]
    tok = {}; nxt = [0]
    def rd(n):
        ps, k, ct = steps[n]; d = AR + 4*(n % NA)
        for jj in range(2):
            if ps == 0: b, off = 18, (16*k + 4*jj)*96 + 32*ct
            else:
                k0, gb, ub = seg_of(k)
                b, off = (246+ct, 2048*k + 512*jj) if k < 15 else (120+ct, gb + 2048*(k-k0) + 512*jj)
            tok[n] = pipe.issue(f'ds_read_b64_tr_b16 v[{d+2*jj}:{d+2*jj+1}], v{b} offset:{off}')
    for n in range(NA-1): rd(n)
    nxt[0] = NA-1
    VB = P.get('vb', 2); FE = P.get('fe', 2); FE2 = P.get('fe2', 3)
    stok = {}
    LAND = {3: 14, 5: 26, 6: 31}
    for n, (ps, k, ct) in enumerate(steps):
        if ps == 0 and ct == 0:
            while k not in htok: fill.popleft()()
            vm.need(htok[k])
        pipe.need(tok[n])
        d = (ACC1, ACC2)[ps] + 16*ct; c = '0' if k == 0 else f'v[{d}:{d+15}]'
        sa = AR + 4*(n % NA)
        a(f'v_mfma_f32_32x32x16_bf16 v[{d}:{d+15}], v[{sa}:{sa+3}], a[{4*k}:{4*k+3}], {c}')
        if nxt[0] < len(steps): rd(nxt[0]); nxt[0] += 1
        last = ct == (2, 3)[ps]
        credit = VB
        if last and (k & 7) == 7:
            q = 4*ps + (k >> 3) + 1
            if q > 1:
                if q in LAND:
                    while LAND[q] not in ptok: fill.popleft()()
                    vm.need(ptok[LAND[q]])
                a('s_barrier')
            stamp(f'b{q}')
            if q == 2:
                for kk in range(15, 27): fill.append(lambda kk=kk: p2dma(kk))
            if q == 3:
                for kk in range(27, 32): fill.append(lambda kk=kk: p2dma(kk))
            if 4 <= q < 8:
                for i in range(([0] + WAV)[q-4], WAV[q-4]): fill.extend(wdslot(i))
            if q == P.get('wt', 2):
                a('s_mov_b64 exec, 0x3fff')
                vm.issue('buffer_load_dword v72, v73, s[8:11], s34 offen')
                a('s_mov_b64 exec, -1')
            if q == 4:
                for t in range(3):
                    o = 64 + 4*(t & 1)
                    valu.extend(gelu_ops(ACC1+16*t, 48 + 8*(t & 1), o))
                    valu.append(('store', t, o))
        if fill and n % (FE, FE2)[ps] == 0:
            fill.popleft()()
        while valu and credit >= (cost(valu[0]) if isinstance(valu[0], str) else 1):
            x = valu.popleft()
            if isinstance(x, tuple):
                stok[x[1]] = vm.issue(f'buffer_store_dwordx4 v[{x[2]}:{x[2]+3}], v15, s[16:19], s46 offen offset:{1024*x[1]} sc1')
                if x[1] == 2: flag_at = n + P.get('fdel', 20)
            else:
                a(x); credit -= cost(x)
        if 2 in stok and 'f2' not in stok and (n >= flag_at or n == len(steps)-1):
            vm.need(stok[2])
            stok['f2'] = lstore([f'buffer_store_dword v20, v21, s[52:55], s33 offen offset:{F2}'])
    while valu:
        x = valu.popleft()
        if isinstance(x, tuple):
            stok[x[1]] = vm.issue(f'buffer_store_dwordx4 v[{x[2]}:{x[2]+3}], v15, s[16:19], s46 offen offset:{1024*x[1]} sc1')
        else: a(x)
    if 'f2' not in stok:
        vm.need(stok[2])
        stok['f2'] = lstore([f'buffer_store_dword v20, v21, s[52:55], s33 offen offset:{F2}'])
    while fill: fill.popleft()()
    fload = [f'buffer_load_dword v22, v13, s[52:55], s25 offen offset:{F2} sc1']
    tp = vm.issue(fload[0])
    a('s_mov_b32 s34, 1.0'); a('s_mov_b32 s35, 1.0')
    def geglu2(t):
        s = Asm(); geglu(s, ACC2+16*t, 48, 64 + 4*(t & 1))
        for l in s.lines: a(l.replace('s[46:47]', 's[34:35]'))
        if t: a(f's_add_u32 s47, s47, {YP}')
        return lstore([f'buffer_store_dwordx4 v[{64+4*(t&1)}:{67+4*(t&1)}], v15, s[16:19], s47 offen'])
    geglu2(0)
    geglu2(1)
    stamp('g1')
    poll('f2', fload, [22], pre=tp)
    stamp('f2ok'); raw(4, 's51')
    atok = {}
    def abase(i): return 128 + 8*i if i < 12 else 8*(i-12)
    def actload(i):
        b = abase(i)
        if i < 12:
            j = i & 3
            vm.issue(f'buffer_load_dwordx4 a[{b}:{b+3}], v15, s[16:19], s5 offen offset:{1024*j} sc1')
            if j == 0: a(f's_add_u32 s7, s5, {112*1024}')
            atok[i] = vm.issue(f'buffer_load_dwordx4 a[{b+4}:{b+7}], v15, s[16:19], s7 offen offset:{1024*j} sc1')
            if j == 3: a('s_add_u32 s5, s5, 0x1000')
        else:
            a(f's_add_u32 s7, s6, {64*YP}')
            vm.issue(f'buffer_load_dwordx4 a[{b}:{b+3}], v15, s[16:19], s6 offen sc1')
            a(f's_add_u32 s6, s6, {YP}')
            atok[i] = vm.issue(f'buffer_load_dwordx4 a[{b+4}:{b+7}], v15, s[16:19], s7 offen sc1')
    geglu2(2)
    ts3 = geglu2(3)
    stamp('g3')
    for i in range(12): actload(i)
    a('v_lshrrev_b32 v4, 3, v0')
    a('v_lshlrev_b32 v10, 10, v4')
    a('v_lshl_add_u32 v10, v6, 4, v10')
    a(f's_add_u32 s46, s39, {hex(X1)}')
    a('s_add_u32 s47, s46, 0x8000')
    vm.need(ts3)
    lstore([f'buffer_store_dword v20, v21, s[52:55], s33 offen offset:{F3}'])
    for i in range(14, 20):
        for f in wdslot(i): f()
    stamp('estart')
    pipe = LdsPipe(a); tok = {}
    def rd2(i):
        d = AR + 8*(i % 3); ad = 8192*WBL[i % 20]
        for mt in range(2):
            for jj in range(2):
                tok[(i, mt)] = pipe.issue(f'ds_read_b64_tr_b16 v[{d+4*mt+2*jj}:{d+4*mt+2*jj+1}], v{240+2*(ad>>16)+mt} offset:{(ad & 0xffff)+1024*jj}')
    vm.need(wtok[1]); rd2(0); rd2(1)
    for i in range(28):
        stamp(f'e{i}')
        if i == 12:
            poll('f3', [f'buffer_load_dword v22, v13, s[52:55], s25 offen offset:{F3} sc1'], [22])
            stamp('f3ok'); raw(5, 's51')
            for ii in range(12, 28): actload(ii)
            vm.issue('buffer_load_dwordx4 v[72:75], v10, s[16:19], s46 offen sc1')
            tx = vm.issue('buffer_load_dwordx4 v[76:79], v10, s[16:19], s47 offen sc1')
        d0 = AR + 8*(i % 3); b = abase(i)
        vm.need(atok[i])
        for mt in range(2):
            pipe.need(tok[(i, mt)])
            for nt in range(2):
                d = ACC2 + 32*mt + 16*nt; c = '0' if i == 0 else f'v[{d}:{d+15}]'
                a(f'v_mfma_f32_32x32x16_bf16 v[{d}:{d+15}], v[{d0+4*mt}:{d0+4*mt+3}], a[{b+4*nt}:{b+4*nt+3}], {c}')
                if mt == 0 and nt == 0 and i+2 < 28:
                    vm.need(wtok[i+2]); rd2(i+2)
                if mt == 1 and i < 8:
                    wdslot(20+i)[nt]()
    a('v_and_b32 v4, 31, v1')
    a(f'v_mul_u32_u24 v4, {PS}, v4')
    a('v_lshrrev_b32 v5, 5, v1')
    a('v_lshl_add_u32 v4, v5, 4, v4')
    a(f's_mul_i32 s26, s3, {64*PS}')
    a('v_add_u32 v18, s26, v4')
    a('v_lshrrev_b32 v4, 3, v0')
    a(f'v_mul_u32_u24 v4, {PS}, v4')
    a('v_lshl_add_u32 v19, v6, 5, v4')
    base(a, 12, 56, 0x200000)
    a('s_add_u32 s38, s39, 0x8000')
    a('s_barrier')
    stamp('eend')
    for mt in range(2):
        for nt in range(2):
            for g in range(4):
                d = ACC2 + 32*mt + 16*nt + 4*g
                a(f'ds_write_b128 v18, v[{d}:{d+3}] offset:{nt*32*PS + mt*128 + g*32}')
    vm.need(tx)
    unpack8(a, 84, 124, 40); unpack8(a, 24, 72, 40); unpack8(a, 32, 76, 40)
    a('s_waitcnt lgkmcnt(0)')
    a('s_barrier')
    for jj in range(2):
        for w in range(4):
            for e in range(2):
                d = 128 + 32*jj + 8*w + 4*e
                a(f'ds_read_b128 v[{d}:{d+3}], v19 offset:{w*64*PS + jj*32*PS + 16*e}')
    for jj in range(2):
        b = 128 + 32*jj
        a(f's_waitcnt lgkmcnt({8-8*jj})')
        for p in range(4): a(f'v_pk_add_f32 v[{b+2*p}:{b+2*p+1}], v[{b+2*p}:{b+2*p+1}], v[{b+8+2*p}:{b+9+2*p}]')
        for p in range(4): a(f'v_pk_add_f32 v[{b+16+2*p}:{b+17+2*p}], v[{b+16+2*p}:{b+17+2*p}], v[{b+24+2*p}:{b+25+2*p}]')
        for p in range(4): a(f'v_pk_add_f32 v[{b+2*p}:{b+2*p+1}], v[{b+2*p}:{b+2*p+1}], v[{b+16+2*p}:{b+17+2*p}]')
        x = 24 + 8*jj
        for p in range(4): a(f'v_pk_fma_f32 v[{b+2*p}:{b+2*p+1}], v[{b+2*p}:{b+2*p+1}], v[{84+2*p}:{85+2*p}], v[{x+2*p}:{x+2*p+1}]')
        for p in range(4): a(f'v_cvt_pk_bf16_f32 v{40+4*jj+p}, v{b+2*p}, v{b+2*p+1}')
        a(f'buffer_store_dwordx4 v[{40+4*jj}:{43+4*jj}], v10, s[12:15], s{39-jj} offen')
    a('s_or_b32 s4, s2, s3')
    a('s_cmp_lg_u32 s4, 0')
    a('s_cbranch_scc1 L_noep')
    a(f's_mov_b32 s4, {hex(EPOCH)}')
    a('buffer_store_dword v20, v21, s[16:19], s4 offen')
    a.label('L_noep')
    if P.get('stamps'):
        a('s_waitcnt vmcnt(0)')
        stamp('end')
        a('s_cmp_lg_u32 s3, 0')
        a('s_cbranch_scc1 L_end')
        a('s_lshl_b32 s94, s2, 7')
        a(f's_add_u32 s94, s94, {hex(TS)}')
        a('s_add_u32 s92, s58, s94')
        a('s_addc_u32 s93, s59, 0')
        a('v_lshlrev_b32 v250, 2, v1')
        a('s_lshl_b32 s94, s2, 8')
        a(f's_add_u32 s94, s94, {hex(TS + 0x80000)}')
        a('s_add_u32 s94, s58, s94')
        a('s_addc_u32 s95, s59, 0')
        a('global_store_dword v250, v254, s[94:95]')
        a('s_mov_b64 exec, 1')
        if P.get('dbg'):
            a('s_load_dwordx2 s[94:95], s[0:1], 104')
        a('s_waitcnt lgkmcnt(0)')
        if P.get('dbg'):
            a('s_not_b32 s60, s60')
            for m in sorted(marks):
                a(f'v_mov_b32 v250, s{60+2*m}')
                a(f'global_atomic_umax v21, v250, s[94:95] offset:{4*m}')
                a('s_nop 1')
            a('s_not_b32 s60, s60')
        for m in sorted(marks):
            a(f'v_mov_b32 v250, s{60+2*m}')
            a(f'v_mov_b32 v251, s{61+2*m}')
            a(f'global_store_dwordx2 v21, v[250:251], s[92:93] offset:{8*m}')
            a('s_nop 1')
    a.label('L_end')
    a.label('L_last')
    a('s_endpgm')
    return dict(grid=256, block=256, lds=163840, vgpr=512, accum=256)
```

```python
from collections import deque
from asmlib import *
from k123 import fh, lo, hi, unpack8, ln_stats, LdsPipe, A_OUT, A_WS
from k45 import VmPipe, GC1, GC2, geglu
from cde import zipl, gelu_ops, cost

UT, YT, X1, H2, ACT = 0, 0x400000, 0x900000, 0, 0xD00000
MODT, EPOCH, GRP, MP, TS = 0x1400000, 0x1408000, 0x1410000, 0x1480000, 0x1500000
YP = 16384 + 128
XID, UH, F1, F2, F3 = 0, 128, 1024, 1536, 2048
P1U = 49280
SEG = [(0, 98432, 129152), (15, 0, 49280), (27, 24576, 73856)]
CB, CHS, KB, U0, U1 = 98432, 12992, 512, 4608, 8768
PB = CB + 2*CHS
PRM = PB + 32768
MPART = PRM + 6144
XG = 129152 + 112*128
YS = 1040
XH = XG + 8*YS
PS = 272
SPIN = 1 << 15
WBL = [5, 11, 12, 13, 14, 16, 17, 18, 15, 19, 0, 6, 1, 2, 7, 8, 3, 4, 9, 10]
BARS = {(0, 15): (None, 0), (0, 23): (None, 0), (0, 29): (6, 0), (1, 4): (14, 2), (1, 12): (22, 8), (1, 20): (31, 12), (1, 27): (None, 16), (1, 31): (None, 20)}
assert MPART + 512 <= 163840 and XH + 8192 <= 163840
def seg_of(k): return SEG[0] if k < 15 else SEG[1] if k < 27 else SEG[2]

def base(a, d, p, n):
    a(f's_mov_b32 s{d}, s{p}'); a(f's_mov_b32 s{d+1}, s{p+1}'); a(f's_mov_b32 s{d+2}, {hex(n)}')

def mega(a, P):
    marks = set()
    SETS = {1: 'start kv0 utst utok bbar end bend ytst ytok h2dr b0 p1end b8 estart f3ok eend',
            2: 'start kv0 kvN abar utst end ut1st uhok utok bbar bend pbar ytst ytack ytok mdok',
            3: 'start ytst ln1 ytack ytok end ybar hbar h2st h2dr f1ok b0 b1 b2 b3 p1end',
            5: 'start karg x2 x3 x4 end x6 x7 x8 x9 x10 x11 x12 kv0 issued pre',
            4: 'start p1end b5 b6 b7 end b8 g1 f2ok g3 estart e12 f3ok e20 eend ebar'}
    names = SETS[P.get('stamps', 1)].split()
    def stamp(name):
        if P.get('stamps') and name in names:
            slot = names.index(name)
            a(f's_memrealtime s[{60+2*slot}:{61+2*slot}]'); marks.add(slot)
    def raw(i, sreg):
        if P.get('stamps'): a(f'v_writelane_b32 v254, {sreg}, {i}')
    vm = VmPipe(a)
    NT = ' nt' if P.get('nt', 1) else ''
    nst = [0]
    def lstore(lines, emit=None):
        n = nst[0]; nst[0] += 1
        a('s_cmp_eq_u32 s101, 0')
        a(f's_cbranch_scc1 L_ls{n}a')
        for l in lines: a(l + ' sc1')
        a(f's_branch L_ls{n}b')
        a.label(f'L_ls{n}a')
        for l in lines: t = vm.issue(l)
        a.label(f'L_ls{n}b')
        return t
    def poll(name, loads, tags, pre=None):
        a(f's_mov_b32 s51, {SPIN}')
        if pre is not None:
            vm.need(pre)
            stamp(name + '1st')
            a(f's_branch L_{name}_chk')
        a.label(f'L_{name}')
        for l in loads: a(l)
        a('s_waitcnt vmcnt(0)')
        a.label(f'L_{name}_chk')
        a(f'v_cmp_ne_u32 vcc, s50, v{tags[0]}')
        for i, t in enumerate(tags[1:]): a(f'v_cmp_ne_u32 s[{92+2*i}:{93+2*i}], s50, v{t}')
        a('s_sub_u32 s51, s51, 1')
        a(f's_cbranch_scc1 L_{name}_ok')
        for i in range(len(tags)-1): a(f's_or_b64 vcc, vcc, s[{92+2*i}:{93+2*i}]')
        a(f's_cbranch_vccnz L_{name}')
        a.label(f'L_{name}_ok')
        if pre is None: vm.done = vm.issued

    a('s_cmp_ge_u32 s2, 256')
    a('s_cbranch_scc1 L_end')
    stamp('start')
    if P.get('stamps'): a('v_mov_b32 v254, 0')
    a('s_load_dwordx16 s[64:79], s[0:1], 0')
    if P.get('cpf', 1):
        a('s_getpc_b64 s[4:5]')
        a.label('L_pc')
        a('v_lshlrev_b32 v3, 7, v0')
        a('v_mov_b32 v5, s5')
        a('v_add_co_u32 v4, vcc, s4, v3')
        a(f'v_cmp_gt_u32 s[6:7], {P.get("cpn", 16)}, v0')
        a('v_and_b32 v1, 63, v0')
        a('v_addc_co_u32 v5, vcc, 0, v5, vcc')
        a('s_and_b64 exec, exec, s[6:7]')
        a('s_cbranch_execz L_nopf')
        a('global_load_dword v169, v[4:5], off')
        a.label('L_nopf')
        a('s_mov_b64 exec, -1')
    else: a('v_and_b32 v1, 63, v0')
    a(f's_load_dwordx2 s[58:59], s[0:1], {A_WS}')
    a('s_load_dwordx8 s[80:87], s[0:1], 64')
    a(f's_load_dwordx2 s[56:57], s[0:1], {A_OUT}')
    a('v_lshrrev_b32 v2, 6, v0')
    a('v_readfirstlane_b32 s3, v2')
    a('s_mov_b32 s40, 0xffff0000')
    a('s_and_b32 s28, s2, 7')
    a('s_lshr_b32 s29, s2, 3')
    a('s_lshl_b32 s32, s28, 5')
    a('s_or_b32 s32, s32, s29')
    a('v_and_b32 v3, 31, v0')
    a('v_lshrrev_b32 v2, 5, v0')
    a('s_lshl_b32 s33, s29, 6')
    a('v_lshl_add_u32 v4, v2, 3, s33')
    a('s_lshl_b32 s33, s28, 7')
    a('v_lshl_add_u32 v5, v3, 2, s33')
    a('v_lshl_add_u32 v5, v4, 10, v5')
    a('v_subrev_u32 v4, 0xc00, v5')
    a('s_lshl_b32 s33, s28, 9')
    a('v_lshl_add_u32 v13, v3, 4, s33')
    a('s_movk_i32 s35, 0x1000')
    a('s_mov_b32 s15, 0x20000'); a('s_mov_b32 s27, 0x20000'); a('s_mov_b32 s19, 0x20000')
    a('s_mov_b32 s23, 0x20000'); a('s_mov_b32 s11, 0x20000'); a('s_mov_b32 s55, 0x20000')
    a('v_lshlrev_b32 v15, 4, v1')
    a('v_mov_b32 v21, 0')
    a('v_lshlrev_b32 v14, 4, v0')
    a('s_waitcnt lgkmcnt(0)')
    stamp('karg')
    base(a, 12, 70, 4096)
    base(a, 24, 68, 0x200000)
    tsh = vm.issue('buffer_load_dwordx4 v[48:51], v13, s[12:15], 0 offen' + NT)
    base(a, 12, 66, 0x200000)
    for i in range(3): vm.issue(f'buffer_load_dword v{24+i}, v4, s[12:15], 0 offen offset:{1024*i}' + NT)
    tk = {}
    for i in range(8):
        so = 's35' if i >= 4 else '0'
        vm.issue(f'buffer_load_dword v{27+i}, v5, s[12:15], {so} offen offset:{1024*(i&3)}' + NT)
        tk[i] = vm.issue(f'buffer_load_dword v{36+i}, v5, s[24:27], {so} offen offset:{1024*(i&3)}' + NT)
    stamp('issued')
    a(f's_add_u32 s4, s58, {hex(EPOCH)}')
    a('s_addc_u32 s5, s59, 0')
    a('s_load_dword s50, s[4:5], 0')
    if P.get('cpf', 1):
        a('s_getpc_b64 s[6:7]')
        a.label('L_pc2')
        a('s_lshl_b32 s36, s29, 2')
        a('s_add_u32 s36, s36, s3')
        a('v_and_b32 v4, 1, v0')
        a('v_lshl_add_u32 v4, s36, 1, v4')
        a('v_min_u32 v4, (L_last-L_pc2)/128, v4')
        a('v_lshlrev_b32 v4, 7, v4')
        a('v_mov_b32 v5, s7')
        a('v_add_co_u32 v4, vcc, s6, v4')
        a('v_addc_co_u32 v5, vcc, 0, v5, vcc')
        a('s_mov_b64 exec, 3')
        vm.issue('global_load_dword v168, v[4:5], off')
        a('s_mov_b64 exec, -1')
    if P.get('kvbar', 1): a('s_barrier')
    a('s_lshl_b32 s33, s32, 2')
    a('s_add_u32 s6, s74, s33')
    a('s_addc_u32 s7, s75, 0')
    a('s_load_dword s34, s[6:7], 0')
    base(a, 12, 72, 0x200000)
    a('s_lshl_b32 s33, s32, 13')
    a('s_add_u32 s36, s33, 0x1000')
    vm.issue('buffer_load_dwordx4 v[146:149], v14, s[12:15], s33 offen' + NT)
    tsk = vm.issue('buffer_load_dwordx4 v[150:153], v14, s[12:15], s36 offen' + NT)
    a('s_mul_i32 s30, s28, 6')
    a('s_lshr_b32 s31, s29, 2')
    a('s_add_u32 s30, s30, s31')
    a('s_and_b32 s31, s29, 3')
    a('s_lshl_b32 s46, s30, 2')
    a('s_or_b32 s46, s46, s31')
    a('s_lshl_b32 s47, s31, 2')
    a('s_or_b32 s47, s47, s3')
    a('v_and_b32 v16, 1, v0')
    a('v_lshrrev_b32 v17, 3, v1')
    a('v_and_b32 v6, 7, v1')
    a('v_mul_u32_u24 v242, 0x6000, v17')
    a('v_lshl_add_u32 v242, v6, 4, v242')
    a('v_lshlrev_b32 v243, 3, v17')
    a('s_lshl_b32 s36, s3, 11')
    a('s_add_u32 s33, s33, s36')
    a('s_lshr_b32 s30, s32, 4')
    a('s_and_b32 s31, s32, 15')
    a('s_and_b32 s98, s30, 1')
    a('s_lshl_b32 s98, s98, 2')
    a('s_add_u32 s98, s98, s28')
    a('s_and_b32 s98, s98, 7')
    a('s_lshr_b32 s38, s3, 1')
    a('s_and_b32 s39, s3, 1')
    a('s_cmp_eq_u32 s38, 0')
    a('s_cselect_b32 s20, s78, s80')
    a('s_cselect_b32 s21, s79, s81')
    a(f's_mov_b32 s22, {512*3584}')
    base(a, 8, 82, 1792*1024)
    base(a, 16, 58, TS)
    a('s_lshl_b32 s36, s28, 12')
    a(f's_add_u32 s36, s36, {hex(GRP)}')
    a('s_add_u32 s52, s58, s36')
    a('s_addc_u32 s53, s59, 0')
    a('s_movk_i32 s54, 0x1000')
    a('s_cmp_eq_u32 s3, 3')
    a('s_cselect_b32 s37, 0, 0x70000000')
    a('v_mov_b32 v22, s37')
    a('s_lshl_b32 s36, s29, 7')
    vm.issue('buffer_load_dword v158, v22, s[52:55], s36 offen')
    a('s_lshl_b32 s36, s46, 6')
    a(f's_add_u32 s36, s36, {hex(MODT)}')
    vm.issue('buffer_load_dword v159, v22, s[16:19], s36 offen')
    a('s_lshl_b32 s36, s32, 13')
    a('s_lshl_b32 s37, s46, 11')
    a(f's_add_u32 s37, s37, {hex(MP)}')
    a('s_cmp_eq_u32 s3, 1')
    a(f's_cselect_b32 s37, s37, {hex(TS)}')
    a('s_cselect_b32 s44, 15, 63')
    a('s_cmp_eq_u32 s3, 2')
    a('s_cselect_b32 s37, s36, s37')
    a('v_and_b32 v4, s44, v1')
    a('v_lshlrev_b32 v4, 7, v4')
    if P.get('utt', 1): vm.issue('buffer_load_dword v157, v4, s[16:19], s37 offen' + (NT if P.get('ntu', 1) else ''))
    if P.get('tlb', 0) == 1:
        a('v_lshl_add_u32 v4, v1, 20, v22')
        for i, (p, n) in enumerate(((86, 512*6144), (84, 1024), (64, 0x200000), (78, 512*3584), (80, 512*3584), (82, 1792*1024), (56, 0x200000))):
            base(a, 12, p, n)
            vm.issue(f'buffer_load_dword v{160+i}, v4, s[12:15], 0 offen')
        vm.issue('buffer_load_dword v154, v4, s[16:19], 0 offen')
    for i in range(3):
        a(f'v_add_u32 v4, {64*i}, v1')
        a('v_mul_u32_u24 v5, 0x2aab, v4')
        a('v_lshrrev_b32 v5, 16, v5')
        a(f'v_mul_u32_u24 v5, {3584-96}, v5')
        a(f'v_lshl_add_u32 v{10+i}, v4, 4, v5')
        if i: a(f'v_subrev_u32 v{10+i}, {1024*i}, v{10+i}')
    a(f's_mul_i32 s41, s39, {32*3584}')
    a('s_mul_i32 s43, s31, 96')
    a('s_add_u32 s41, s41, s43')
    a('s_add_u32 s41, s41, 0x800')
    a('s_mul_i32 s43, s39, 3072')
    a(f's_mul_i32 s42, s38, {P1U}')
    a('s_add_u32 s42, s42, s43')
    a(f's_add_u32 s99, s41, {512*3584}')
    a(f's_mul_i32 s36, s98, {64*3584}')
    a('s_add_u32 s41, s41, s36')
    def step(reg, inc, lim, span):
        a(f's_add_u32 {reg}, {reg}, {inc}')
        a(f's_cmp_eq_u32 {reg}, {lim}')
        a(f's_cselect_b32 s36, {span}, 0')
        a(f's_sub_u32 {reg}, {reg}, s36')
    early = deque()
    def p1dma(m, i):
        if i == 0: a(f's_add_u32 m0, s42, {6144*m}')
        vm.issue(f'buffer_load_dwordx4 v{10+i}, s[20:23], s41 offen offset:{1024*i} lds')
        if i == 2 and m < 7: step('s41', 64*3584, 's99', 512*3584)
    for m in range(8):
        for i in range(3): early.append(lambda m=m, i=i: p1dma(m, i))
    for _ in range(P.get('e0', 0)): early.popleft()()
    a('v_lshrrev_b32 v4, 3, v1')
    a('v_bfe_u32 v5, v1, 4, 1')
    a('v_lshlrev_b32 v5, 2, v5')
    a('v_xor_b32 v5, v5, v6')
    a('v_lshlrev_b32 v5, 4, v5')
    a('v_lshl_add_u32 v8, v4, 10, v5')
    a(f'v_add_u32 v9, {8192-1024}, v8')
    a('s_lshl_b32 s43, s38, 5')
    a('v_xor_b32 v5, s43, v5')
    a('v_mul_u32_u24 v7, 0xe00, v4')
    a('v_add_u32 v7, v7, v5')
    a(f's_mul_i32 s48, s39, {8*3584}')
    a('s_lshl_b32 s43, s31, 7')
    a('s_add_u32 s48, s48, s43')
    a('s_lshl_b32 s43, s39, 10')
    a(f's_mul_i32 s49, s38, {SEG[0][2]-SEG[0][1]}')
    a('s_add_u32 s49, s49, s43')
    a(f's_mul_i32 s38, s38, {P1U}')
    a('s_add_u32 s43, s43, s38')
    a('v_sub_u32 v4, 7, v2')
    a('v_xor_b32 v4, v4, v6')
    a('v_lshl_add_u32 v4, v3, 4, v4')
    a(f'v_lshlrev_b32 v4, 4, v4')
    a(f'v_add_u32 v120, {PB}, v4')
    a('v_lshrrev_b32 v4, 4, v1')
    a('v_xor_b32 v5, v4, v1')
    a('s_lshl_b32 s36, s3, 11')
    a(f's_add_u32 s36, s36, {PB}')
    a('v_lshl_add_u32 v124, v5, 4, s36')
    a('v_xor_b32 v125, 64, v124')
    a('v_lshrrev_b32 v4, 3, v1')
    a('v_lshlrev_b32 v5, 4, v6')
    a('v_lshl_add_u32 v13, v4, 12, v5')
    a('s_lshl_b32 s36, s28, 2')
    a('s_add_u32 s36, s36, s3')
    a('s_lshl_b32 s36, s36, 16')
    a('s_sub_u32 s35, 31, s29')
    a('s_lshl_b32 s35, s35, 7')
    a('s_add_u32 s35, s35, s36')
    a('s_waitcnt lgkmcnt(0)')
    a('s_mul_i32 s50, s50, 1664525')
    a('s_add_u32 s50, s50, 1013904223')
    a('v_mov_b32 v20, s50')
    a('s_getreg_b32 s100, hwreg(HW_REG_XCC_ID, 0, 4)')
    if P.get('slow'): a('s_and_b32 s100, s29, 1')
    a('s_add_u32 s100, s100, s50')
    a('s_add_u32 s100, s100, 1')
    a('s_cmp_lg_u32 s3, 0')
    a('s_cbranch_scc1 L_noid')
    a('v_mov_b32 v22, s100')
    a('s_lshl_b32 s36, s29, 2')
    a(f'buffer_store_dword v22, v21, s[52:55], s36 offen offset:{XID} sc1')
    a.label('L_noid')
    stamp('pre')
    vm.need(tsh)
    lo(a, 52, 48); hi(a, 54, 48, 40); lo(a, 56, 49); hi(a, 58, 49, 40)
    lo(a, 53, 50); hi(a, 55, 50, 40); lo(a, 57, 51); hi(a, 59, 51, 40)
    vm.need(tk[0])
    stamp('kv0')
    for q in range(3):
        lo(a, 60+2*q, 24+q); hi(a, 61+2*q, 24+q, 40)
    for r in range(8):
        vm.need(tk[r])
        lo(a, 66+2*r, 27+r); hi(a, 67+2*r, 27+r, 40)
        lo(a, 84+2*r, 36+r); hi(a, 85+2*r, 36+r, 40)
        d = 102+2*r
        a(f'v_pk_mul_f32 v[{d}:{d+1}], v[{60+2*r}:{61+2*r}], v[58:59]')
        a(f'v_pk_fma_f32 v[{d}:{d+1}], v[{62+2*r}:{63+2*r}], v[56:57], v[{d}:{d+1}]')
        a(f'v_pk_fma_f32 v[{d}:{d+1}], v[{64+2*r}:{65+2*r}], v[54:55], v[{d}:{d+1}]')
        a(f'v_pk_fma_f32 v[{d}:{d+1}], v[{66+2*r}:{67+2*r}], v[52:53], v[{d}:{d+1}]')
        a(f'v_pk_mul_f32 v[{d}:{d+1}], v[{d}:{d+1}], v[{84+2*r}:{85+2*r}]')
    stamp('kvN')
    for c in range(2):
        for jj in range(4):
            a(f'v_cvt_pk_bf16_f32 v{24+4*c+jj}, v{102+2*(7-2*jj)+c}, v{102+2*(6-2*jj)+c}')
        a(f'ds_write_b128 v120, v[{24+4*c}:{27+4*c}] offset:{128*c}')
    a('s_waitcnt lgkmcnt(0)')
    a('s_barrier')
    stamp('abar')
    for j in range(2): a(f'ds_read_b128 v[{104+4*j}:{107+4*j}], v{124+j} offset:{1024*j}')
    a('s_mov_b32 s24, s35')
    a('s_add_u32 s25, s35, 0x8000')
    ustores = [f'buffer_store_dwordx4 v[{104+4*j}:{107+4*j}], v13, s[16:19], s{24+j} offen' for j in range(2)]
    for j in range(2):
        a(f's_waitcnt lgkmcnt({1-j})')
        tus = vm.issue(ustores[j])
    a('s_load_dwordx2 s[44:45], s[0:1], 0')
    a('s_load_dwordx2 s[94:95], s[0:1], 80')
    a('s_load_dwordx2 s[96:97], s[0:1], 88')
    a('s_lshl_b32 s7, s3, 7')
    a('s_lshl_b32 s36, s29, 2')
    a('s_add_u32 s7, s7, s36')
    a('v_mov_b32 v123, s100')
    stamp('utst')
    for i in range(4): a(f'v_mov_b32 v{40+i}, 0')
    a(f'v_add_u32 v14, {CB}, v14')
    a('v_cmp_gt_u32 vcc, 32, v0')
    a('s_and_saveexec_b64 s[36:37], vcc')
    a('s_cbranch_execz L_nz')
    a('ds_write_b128 v14, v[40:43]')
    a(f'ds_write_b128 v14, v[40:43] offset:{CHS}')
    a('v_cmp_gt_u32 vcc, 2, v0')
    a('s_and_b64 exec, exec, vcc')
    for c in range(2):
        a(f'ds_write_b128 v14, v[40:43] offset:{c*CHS+U0+4096}')
        a(f'ds_write_b128 v14, v[40:43] offset:{c*CHS+U1+4096}')
    a.label('L_nz')
    a('s_mov_b64 exec, s[36:37]')
    a('v_cmp_eq_u32 s[36:37], 0, v0')
    a('s_lshl_b32 s4, s34, 16')
    a('s_and_b32 s5, s34, 0xffff0000')
    a('s_mov_b32 s6, 0xffff')
    vm.need(tsk)
    stamp('skok')
    for c in range(2):
        kx = 146+4*c
        lo(a, 44, kx)
        a(f'v_add_f32 v44, s{4+c}, v44')
        a('v_cvt_pk_bf16_f32 v44, v44, v44')
        a(f'v_bfi_b32 v44, s6, v44, v{kx}')
        a(f'v_cndmask_b32 v{kx}, v{kx}, v44, s[36:37]')
        a(f'ds_write_b128 v14, v[{kx}:{kx+3}] offset:{c*CHS+KB}')
    vm.need(tus)
    vm.issue(f'buffer_store_dword v123, v21, s[52:55], s7 offen offset:{UH}')
    a('v_and_b32 v120, 31, v1')
    a('v_lshlrev_b32 v120, 2, v120')
    a('s_lshr_b32 s5, s29, 3')
    a('s_lshl_b32 s5, s5, 7')
    hloads = [f'buffer_load_dword v121, v120, s[52:55], 0 offen offset:{XID} sc1', f'buffer_load_dword v124, v120, s[52:55], s5 offen offset:{UH} sc1']
    for l in hloads: tu = vm.issue(l)
    a('v_lshrrev_b32 v4, 1, v6')
    a('v_lshlrev_b32 v4, 11, v4')
    a('v_lshl_add_u32 v4, v16, 6, v4')
    a('v_lshrrev_b32 v5, 5, v1')
    a('v_lshl_add_u32 v4, v5, 5, v4')
    a('v_bfe_u32 v5, v1, 4, 1')
    a('v_lshl_add_u32 v244, v5, 4, v4')
    a('s_lshl_b32 s35, s32, 13')
    a('s_add_u32 s34, s35, 0x1000')
    a('v_lshlrev_b32 v125, 4, v0')
    a('s_lshr_b32 s36, s3, 1')
    a(f's_mul_i32 s36, s36, {CHS}')
    a('s_xor_b32 s38, s39, 1')
    a('s_lshl_b32 s38, s38, 6')
    a('s_add_u32 s36, s36, s38')
    a(f's_add_u32 s36, s36, {CB}')
    a('v_and_b32 v3, 15, v0')
    a('v_bfe_u32 v4, v0, 4, 2')
    a('v_lshlrev_b32 v5, 4, v4')
    a('v_lshl_add_u32 v22, v3, 5, v5')
    a(f's_add_u32 s38, s36, {KB-480}')
    a('v_add_u32 v22, s38, v22')
    a('v_and_b32 v23, 14, v3')
    a('v_lshlrev_b32 v23, 1, v23')
    a('v_sub_u32 v23, v5, v23')
    a(f'v_mul_u32_u24 v5, {U1-U0}, v16')
    a('v_sub_u32 v23, v23, v5')
    a(f's_add_u32 s38, s36, {U1+28}')
    a('v_add_u32 v16, s38, v23')
    for i in range(1, 4): a(f'v_add_u32 v{16+i}, {1024*i}, v16')
    a('v_bfe_u32 v5, v3, 1, 2')
    a('v_xor_b32 v5, v5, v4')
    a('v_lshl_add_u32 v5, v3, 2, v5')
    a('s_lshl_b32 s38, s3, 13')
    a(f's_add_u32 s38, s38, {PB}')
    a('v_lshl_add_u32 v23, v5, 4, s38')
    a(f's_mov_b32 s51, {SPIN}')
    a('s_mov_b32 s101, 0')
    vm.need(tu)
    stamp('ut1st')
    a('s_branch L_uh_chk')
    a.label('L_uh')
    for l in hloads: a(l)
    a('s_waitcnt vmcnt(0)')
    a.label('L_uh_chk')
    a('v_subrev_u32 v122, s50, v121')
    a('v_subrev_u32 v122, 1, v122')
    a('v_cmp_lt_u32 vcc, 15, v122')
    a('v_cmp_ne_u32 s[92:93], s100, v121')
    a('s_sub_u32 s51, s51, 1')
    a('s_cbranch_scc1 L_uh_ok')
    a('s_cbranch_vccnz L_uh')
    a('s_cmp_eq_u64 s[92:93], 0')
    a('s_cbranch_scc1 L_uh_same')
    a('s_cmp_lg_u32 s101, 0')
    a('s_cbranch_scc1 L_uh_same')
    a('s_mov_b32 s101, 1')
    for l in ustores: a(l + ' sc1')
    a('s_waitcnt vmcnt(0)')
    a(f'buffer_store_dword v20, v21, s[52:55], s7 offen offset:{UH} sc1')
    a.label('L_uh_same')
    a('v_cmp_ne_u32 vcc, s50, v124')
    a('v_cmp_ne_u32 s[92:93], s100, v124')
    a('s_nop 0')
    a('s_and_b64 vcc, vcc, s[92:93]')
    a('s_cbranch_vccnz L_uh')
    a.label('L_uh_ok')
    raw(6, 's51')
    stamp('uhok')
    tu = []
    for c in range(2):
        vm.issue(f'buffer_load_dwordx4 v[{72+4*c}:{75+4*c}], v125, s[16:19], s{35-c} offen sc1')
        tu.append(vm.issue(f'buffer_load_dword v{80+c}, v125, s[16:19], s{35-c} offen offset:16 sc1'))
    a('s_waitcnt lgkmcnt(0)')
    base(a, 12, 94, 1024)
    a('s_lshl_b32 s36, s47, 6')
    tc = vm.issue('buffer_load_dwordx2 v[240:241], v243, s[12:15], s36 offen')
    base(a, 12, 96, 512*6144)
    a('s_cmp_lt_u32 s29, 24')
    a('s_cselect_b32 s14, s14, 0')
    a('s_lshr_b32 s36, s46, 2')
    a('s_lshl_b32 s36, s36, 7')
    a(f's_mul_i32 s37, s47, {32*6144}')
    a('s_add_u32 s36, s36, s37')
    twm = []
    for r in range(4):
        twm.append(vm.issue(f'buffer_load_dwordx4 v[{24+4*r}:{27+4*r}], v242, s[12:15], s36 offen' + NT))
        if r < 3: a('s_add_u32 s36, s36, 0x1800')
    base(a, 12, 44, 0x200000)
    vm.issue('buffer_load_dwordx4 v[232:235], v15, s[12:15], s33 offen' + NT)
    tx = vm.issue('buffer_load_dwordx4 v[236:239], v15, s[12:15], s33 offen offset:1024' + NT)
    for _ in range(P.get('e0b', 6)): early.popleft()()
    if P.get('tlb', 0) == 2:
        a('s_cmp_eq_u32 s3, 3')
        a('s_cselect_b32 s37, 0, 0x70000000')
        a('v_lshl_add_u32 v4, v1, 20, s37')
        base(a, 12, 56, 0x200000)
        vm.issue('buffer_load_dword v245, v4, s[16:19], 0 offen')
        vm.issue('buffer_load_dword v246, v4, s[8:11], 0 offen')
        vm.issue('buffer_load_dword v247, v4, s[12:15], 0 offen')
    a('s_movk_i32 s36, 0xff')
    a('v_cmp_ne_u32 vcc, s36, v0')
    for c in range(2):
        u = 72+4*c
        vm.need(tu[c])
        if c == 0: stamp('utok')
        a(f'v_cndmask_b32 v{80+c}, 0, v{80+c}, vcc')
        a(f'ds_write_b128 v14, v[{u}:{u+3}] offset:{c*CHS+U0}')
        for j in range(3): a(f'v_alignbit_b32 v{40+4*c+j}, v{u+j+1}, v{u+j}, 16')
        a(f'v_alignbit_b32 v{43+4*c}, v{80+c}, v{u+3}, 16')
        a(f'ds_write_b128 v14, v[{40+4*c}:{43+4*c}] offset:{c*CHS+U1}')
    a('s_waitcnt lgkmcnt(0)')
    a('s_barrier')
    stamp('bbar')
    st1 = deque()
    T0, T1, AC = 200, 208, 216
    st1.append(('wait', tc))
    st1.extend([f'v_lshlrev_b32 v{T0}, 16, v240', f'v_and_b32 v{T0+1}, s40, v240', f'v_lshlrev_b32 v{T0+2}, 16, v241', f'v_and_b32 v{T0+3}, s40, v241'])
    st1.extend(f'v_mul_f32 v{T0+4+r}, {fh(-1.4426950408889634)}, v{T0+r}' for r in range(4))
    st1.extend(f'v_exp_f32 v{T0+4+r}, v{T0+4+r}' for r in range(4))
    st1.extend(f'v_add_f32 v{T0+4+r}, 1.0, v{T0+4+r}' for r in range(4))
    st1.extend(f'v_rcp_f32 v{T0+4+r}, v{T0+4+r}' for r in range(4))
    st1.extend(f'v_mul_f32 v{T0+r}, v{T0+r}, v{T0+4+r}' for r in range(4))
    st1.extend([f'v_cvt_pk_bf16_f32 v240, v{T0}, v{T0+1}', f'v_cvt_pk_bf16_f32 v241, v{T0+2}, v{T0+3}'])
    st1.extend([f'v_lshlrev_b32 v{T0}, 16, v240', f'v_and_b32 v{T0+1}, s40, v240', f'v_lshlrev_b32 v{T0+2}, 16, v241', f'v_and_b32 v{T0+3}, s40, v241'])
    for r in range(4):
        st1.append(('wait', twm[r]))
        for j in range(4):
            st1.extend([f'v_lshlrev_b32 v{T1+2*j}, 16, v{24+4*r+j}', f'v_and_b32 v{T1+2*j+1}, s40, v{24+4*r+j}'])
        st1.extend((f'v_mul_f32 v{AC+j}, v{T1+j}, v{T0}' if r == 0 else f'v_fmac_f32 v{AC+j}, v{T1+j}, v{T0+r}') for j in range(8))
    st1.extend(f'v_permlane32_swap_b32 v{AC+j}, v{AC+4+j}' for j in range(4))
    st1.extend(f'v_add_f32 v{AC+j}, v{AC+j}, v{AC+4+j}' for j in range(4))
    st1.extend([f'v_mov_b32 v{T0+2}, s50', f'v_mov_b32 v{T0+3}, s50'])
    st1.extend(f'v_permlane16_swap_b32 v{AC+j}, v{AC+2+j}' for j in range(2))
    st1.extend(f'v_add_f32 v{T0+j}, v{AC+j}, v{AC+2+j}' for j in range(2))
    st1.extend(['s_nop 0'] + [f'v_add_f32_dpp v{T0+j}, v{T0+j}, v{T0+j} row_ror:8 row_mask:0xf bank_mask:0xf' for j in range(2)])
    def st1_step(credit):
        while st1 and credit > 0:
            x = st1.popleft()
            if isinstance(x, tuple): vm.need(x[1])
            else: a(x); credit -= cost(x)
    a('s_lshr_b32 s5, s46, 2')
    a('s_lshl_b32 s5, s5, 13')
    a('s_lshl_b32 s36, s47, 7')
    a('s_add_u32 s5, s5, s36')
    a(f's_add_u32 s5, s5, {hex(MP)}')
    a('s_lshl_b32 s6, s46, 11')
    a(f's_add_u32 s6, s6, {hex(MP)}')
    a('s_cmp_lt_u32 s29, 24')
    a(f's_cselect_b32 s5, s5, {hex(TS)}')
    a(f's_cselect_b32 s7, s3, 1')
    ploads = [f'buffer_load_dwordx4 v[{104+4*j}:{107+4*j}], v15, s[16:19], s6 offen offset:{1024*j} sc1' for j in range(2)]
    tmi = []
    def mod_issue():
        a('s_cmp_lg_u32 s7, 0')
        a('s_cbranch_scc1 L_nomi')
        for l in ploads: a(l)
        a.label('L_nomi')
        tmi.append(vm.issued)
    def mod_final():
        a('s_cmp_lg_u32 s7, 0')
        a('s_cbranch_scc1 L_nomod')
        done = vm.done
        a(f's_waitcnt vmcnt({vm.issued - tmi[0]})')
        poll('mp', ploads, [106, 110], pre=0)
        vm.done = done
        a('v_pk_add_f32 v[104:105], v[104:105], v[108:109]')
        a('s_lshr_b32 s36, s46, 5')
        a('s_cmp_eq_u32 s36, 1')
        for j in range(2): a(f'v_add_f32_dpp v{104+j}, v{104+j}, v{104+j} row_ror:8 row_mask:0xf bank_mask:0xf')
        a('s_cselect_b32 s38, 1.0, 0')
        a('s_cmp_eq_u32 s36, 4')
        for op in ('v_permlane16_swap_b32', 'v_permlane32_swap_b32'):
            for j in range(2): a(f'v_mov_b32 v{106+j}, v{104+j}')
            for j in range(2): a(f'{op} v{104+j}, v{106+j}')
            a('v_pk_add_f32 v[104:105], v[104:105], v[106:107]')
        a('s_cselect_b32 s38, 1.0, s38')
        a('s_lshl_b32 s36, s46, 6')
        a('v_cvt_pk_bf16_f32 v106, v104, v105')
        a(f's_add_u32 s36, s36, {hex(MODT)}')
        lo(a, 104, 106); hi(a, 105, 106, 40)
        for j in range(2): a(f'v_add_f32 v{104+j}, s38, v{104+j}')
        a('v_cvt_pk_bf16_f32 v108, v104, v105')
        a('v_mov_b32 v110, s50')
        a('v_mov_b32 v111, s50')
        a('v_mov_b32_dpp v109, v108 quad_perm:[1,1,3,3] row_mask:0xf bank_mask:0xf')
        a('v_lshlrev_b32 v104, 3, v1')
        a('s_mov_b64 exec, 0x55')
        a('buffer_store_dwordx4 v[108:111], v104, s[16:19], s36 offen sc1')
        a('s_mov_b64 exec, -1')
        a.label('L_nomod')
    ACC, AR, BR = 40, 72, 104
    pipe = LdsPipe(a)
    reads = []
    for i in range(32):
        o = 32*((31-i) & 7); b = 16 + ((31-i) >> 3); d = AR + 4*(i & 7)
        reads.append((('A', i, 0), f'ds_read2_b32 v[{d}:{d+1}], v{b} offset0:{o} offset1:{o+1}'))
        reads.append((('A', i, 1), f'ds_read2_b32 v[{d+2}:{d+3}], v{b} offset0:{o+2} offset1:{o+3}'))
        if i < 4:
            for t in range(8):
                j = 4*t+3-i
                reads.append((('B', j), f'ds_read_b128 v[{BR+4*j}:{BR+4*j+3}], v22 offset:{128*j}'))
    tok = {}; nxt = [0]
    def pump(cur_step, maxn):
        n = 0
        while n < maxn and nxt[0] < len(reads) and pipe.outstanding() < 13:
            key, line = reads[nxt[0]]
            if key[0] == 'A' and key[1] >= cur_step + 8: break
            tok[key] = pipe.issue(line); nxt[0] += 1; n += 1
    pump(0, 12)
    pending = []; nm = 0
    NB = P.get('e1', 6); EV = P.get('ev', 6)
    for i in range(32):
        for t in range(i >> 2, 8):
            j = 4*t+3-i
            while ('B', j) not in tok or ('A', i, 1) not in tok:
                pipe.need(pipe.done + 2); pump(i, 2)
            pipe.need(max(tok[('A', i, 1)], tok[('B', j)]))
            d = ACC+4*t; c = '0' if i == 0 else f'v[{d}:{d+3}]'
            s = AR+4*(i & 7)
            a(f'v_mfma_f32_16x16x32_bf16 v[{d}:{d+3}], v[{s}:{s+3}], v[{BR+4*j}:{BR+4*j+3}], {c}')
            pump(i, 2 if i < 4 else 1)
            nm += 1
            if nm >= P.get('e1s', 90) and nm % EV == 0 and NB > 0 and early:
                early.popleft()(); NB -= 1
            if i >= P.get('s1', 14): st1_step(2)
        if pending and pipe.outstanding() < 14:
            t = pending.pop()
            pipe.issue(f'ds_write_b128 v23, v[{ACC+4*t}:{ACC+4*t+3}] offset:{1024*t}')
        if (i & 3) == 3: pending.append(i >> 2)
    for t in pending:
        pipe.issue(f'ds_write_b128 v23, v[{ACC+4*t}:{ACC+4*t+3}] offset:{1024*t}')
    st1_step(1000)
    lstore([f'buffer_store_dwordx4 v[{T0}:{T0+3}], v244, s[16:19], s5 offen'])
    stamp('bend')
    a('v_lshlrev_b32 v4, 3, v0')
    a(f'v_add_u32 v4, {PRM}, v4')
    a('v_lshrrev_b32 v2, 1, v0')
    a('v_bfe_u32 v3, v0, 4, 2')
    a('v_xor_b32 v2, v2, v3')
    a('v_lshlrev_b32 v2, 4, v2')
    a('v_and_b32 v3, 1, v0')
    a('v_lshl_add_u32 v2, v3, 3, v2')
    a(f'v_add_u32 v2, {PB}, v2')
    a('v_lshlrev_b32 v3, 4, v0')
    a('v_and_b32 v5, 3, v0')
    a(f's_mul_i32 s38, s32, {YP}')
    a(f's_add_u32 s38, s38, {hex(YT)}')
    a(f'v_add_u32 v13, {PRM}, v15')
    a('s_and_b32 s36, s32, 7')
    a('s_lshl_b32 s36, s36, 1')
    a('s_and_b32 s37, s3, 1')
    a('s_or_b32 s36, s36, s37')
    a('s_lshl_b32 s36, s36, 6')
    a(f's_add_u32 s36, s36, {PRM+5120}')
    a('v_lshrrev_b32 v14, 5, v1')
    a('v_lshl_add_u32 v14, v14, 4, s36')
    a('s_waitcnt lgkmcnt(0)')
    a('s_barrier')
    stamp('pbar')
    for j in range(4):
        for w in range(4):
            a(f'ds_read_b64 v[{72+8*j+2*w}:{73+8*j+2*w}], v2 offset:{8192*w+2048*j}')
        if j == 2: a('s_waitcnt lgkmcnt(8)')
    mod_issue()
    for j in range(4):
        b = 72+8*j; q = 24+4*j
        if j: a(f's_waitcnt lgkmcnt({12-4*j})')
        a(f'v_pk_add_f32 v[{b}:{b+1}], v[{b}:{b+1}], v[{b+2}:{b+3}]')
        a(f'v_pk_add_f32 v[{b+4}:{b+5}], v[{b+4}:{b+5}], v[{b+6}:{b+7}]')
        a(f'v_mov_b32 v{q+2}, s50')
        a(f'v_mov_b32 v{q+3}, s50')
        a(f'v_cvt_pk_bf16_f32 v{q}, v{b}, v{b+4}')
        a(f'v_cvt_pk_bf16_f32 v{q+1}, v{b+1}, v{b+5}')
        tys = vm.issue(f'buffer_store_dwordx4 v[{q}:{q+3}], v3, s[16:19], s38 offen sc1')
        if j < 3: a('s_add_u32 s38, s38, 0x1000')
    stamp('ytst')
    a('v_mov_b32 v22, v4')
    a('v_mov_b32 v23, v14')
    mod_final(); raw(7, 's51')
    if P.get('mbar', 1): a('s_barrier')
    for _ in range(P.get('e2', 12)): early.popleft()()
    a('s_lshl_b32 s35, s3, 10')
    a(f's_add_u32 s35, s35, {hex(MODT)}')
    a('s_add_u32 s34, s35, 0x1000')
    a('s_add_u32 s4, s35, 0x2000')
    mloads = [f'buffer_load_dwordx4 v[{104+4*r}:{107+4*r}], v15, s[16:19], s{(35, 34, 4)[r]} offen sc1' for r in range(3)]
    a('v_lshrrev_b32 v4, 2, v0')
    a(f'v_mul_u32_u24 v3, {2*YS}, v5')
    a('v_lshl_add_u32 v3, v4, 2, v3')
    a(f'v_add_u32 v3, {XG}, v3')
    a(f's_mul_i32 s46, s3, {2*YS}')
    a(f's_add_u32 s46, s46, {XG}')
    a('v_add_u32 v4, s46, v15')
    a('s_lshl_b32 s46, s3, 1')
    a('v_xor_b32 v5, s46, v6')
    a('v_lshlrev_b32 v5, 4, v5')
    a('v_lshl_add_u32 v5, v1, 7, v5')
    a(f'v_add_u32 v5, {XH}, v5')
    a('v_xor_b32 v16, 16, v5')
    a('v_lshrrev_b32 v17, 3, v1')
    a('v_xor_b32 v18, v17, v6')
    a('v_lshlrev_b32 v18, 4, v18')
    a('v_lshl_add_u32 v18, v17, 7, v18')
    a('s_lshl_b32 s46, s3, 11')
    a(f's_add_u32 s46, s46, {XH}')
    a('v_add_u32 v18, s46, v18')
    a('v_lshlrev_b32 v17, 9, v17')
    a('v_lshl_add_u32 v17, v6, 4, v17')
    a('s_lshr_b32 s46, s32, 2')
    a('s_lshl_b32 s46, s46, 15')
    a('s_and_b32 s47, s32, 3')
    a('s_lshl_b32 s47, s47, 7')
    a('s_add_u32 s46, s46, s47')
    a('s_lshl_b32 s47, s3, 13')
    a('s_add_u32 s46, s46, s47')
    a(f's_add_u32 s46, s46, {hex(H2)}')
    a('s_add_u32 s47, s46, 0x1000')
    a(f's_add_u32 s37, s33, {hex(X1)}')
    a('v_lshrrev_b32 v14, 2, v0')
    a(f'v_mul_u32_u24 v14, {YP}, v14')
    a('v_and_b32 v19, 3, v0')
    a('v_lshl_add_u32 v14, v19, 4, v14')
    a('s_lshl_b32 s24, s32, 6')
    a(f's_add_u32 s26, s24, {hex(YT)}')
    a(f's_add_u32 s27, s26, {64*YP}')
    a(f's_add_u32 s5, s26, {128*YP}')
    a(f's_add_u32 s6, s26, {192*YP}')
    X = (64, 160)
    vm.need(tx)
    subs = []
    for t in range(2):
        s = Asm(); unpack8(s, X[t], 232+4*t, 40); ln_stats(s, X[t], X[t]+8, X[t]+16, 24+t)
        for p in range(4):
            s(f'v_pk_mul_f32 v[{X[t]+8+2*p}:{X[t]+9+2*p}], v[{X[t]+8+2*p}:{X[t]+9+2*p}], v[{X[t]+16}:{X[t]+17}] op_sel:[0,0] op_sel_hi:[1,0]')
        subs.append(s)
    zipl(a, *subs)
    stamp('ln1')
    yloads = [f'buffer_load_dwordx4 v[{24+4*j}:{27+4*j}], v14, s[16:19], s{(26, 27, 5, 6)[j]} offen sc1' for j in range(4)]
    vm.need(tys)
    stamp('ytack')
    for l in yloads: ty = vm.issue(l)
    for l in mloads: tm = vm.issue(l)
    poll('yt', yloads, [26, 30, 34, 38], pre=ty)
    stamp('ytok'); raw(2, 's51')
    for j in range(4):
        a(f'ds_write_b32 v3, v{24+4*j} offset:{256*j}')
        a(f'ds_write_b32 v3, v{25+4*j} offset:{256*j+YS}')
    poll('md', mloads, [106, 110, 114], pre=tm)
    stamp('mdok'); raw(1, 's51')
    for r in range(3): a(f'ds_write_b64 v22, v[{104+4*r}:{105+4*r}] offset:{2048*r}')
    a('s_waitcnt lgkmcnt(0)')
    a('s_barrier')
    stamp('ybar')
    for i, off in enumerate((1024, 0, 2048)):
        a(f'ds_read_b128 v[{40+4*i}:{43+4*i}], v13 offset:{off}')
    a('ds_read_b128 v[24:27], v4')
    a(f'ds_read_b128 v[28:31], v4 offset:{YS}')
    for i, off in enumerate((4096, 3072)):
        a(f'ds_read_b128 v[{52+4*i}:{55+4*i}], v13 offset:{off}')
    a('ds_read_b128 v[124:127], v23')
    a('ds_read_b128 v[116:119], v23 offset:32')
    a('s_waitcnt lgkmcnt(7)')
    unpack8(a, 128, 40, 40); unpack8(a, 136, 44, 40)
    for t in range(2):
        for p in range(4):
            d = X[t]+8+2*p
            a(f'v_pk_fma_f32 v[{d}:{d+1}], v[{d}:{d+1}], v[{128+2*p}:{129+2*p}], v[{136+2*p}:{137+2*p}]')
    a('s_waitcnt lgkmcnt(6)')
    unpack8(a, 144, 48, 40)
    for t in range(2):
        for p in range(4):
            d = X[t]+8+2*p
            a(f'v_pk_mul_f32 v[{d}:{d+1}], v[{d}:{d+1}], v[{144+2*p}:{145+2*p}]')
    a('s_waitcnt lgkmcnt(0)')
    unpack8(a, 128, 52, 40); unpack8(a, 136, 56, 40)
    subs = []
    for t in range(2):
        s = Asm(); x = X[t]
        unpack8(s, x+20, 24+4*t, 40)
        for p in range(4):
            s(f'v_pk_fma_f32 v[{x+2*p}:{x+2*p+1}], v[{x+8+2*p}:{x+9+2*p}], v[{x+20+2*p}:{x+21+2*p}], v[{x+2*p}:{x+2*p+1}]')
        for j in range(4): s(f'v_cvt_pk_bf16_f32 v{32+4*t+j}, v{x+2*j}, v{x+2*j+1}')
        s(f'buffer_store_dwordx4 v[{32+4*t}:{35+4*t}], v15, s[16:19], s37 offen offset:{1024*t} sc1')
        unpack8(s, x, 32+4*t, 40)
        ln_stats(s, x, x+8, x+16, 24+t)
        for p in range(4):
            s(f'v_pk_mul_f32 v[{x+8+2*p}:{x+9+2*p}], v[{x+8+2*p}:{x+9+2*p}], v[{x+16}:{x+17}] op_sel:[0,0] op_sel_hi:[1,0]')
        for p in range(4):
            s(f'v_pk_fma_f32 v[{x+8+2*p}:{x+9+2*p}], v[{x+8+2*p}:{x+9+2*p}], v[{128+2*p}:{129+2*p}], v[{136+2*p}:{137+2*p}]')
        for j in range(4): s(f'v_cvt_pk_bf16_f32 v{40+4*t+j}, v{x+8+2*j}, v{x+9+2*j}')
        s(f'ds_write_b128 v{(5, 16)[t]}, v[{40+4*t}:{43+4*t}]')
        subs.append(s)
    zipl(a, *subs)
    vm.issued += 2
    a('s_waitcnt lgkmcnt(0)')
    a('s_barrier')
    stamp('hbar')
    a('ds_read_b128 v[24:27], v18')
    a('ds_read_b128 v[28:31], v18 offset:1024')
    a('s_and_b32 s24, s32, 31')
    a('s_lshl_b32 s24, s24, 4')
    a('s_lshl_b32 s25, s3, 2')
    a('s_add_u32 s33, s24, s25')
    a('s_and_b32 s25, s30, 1')
    a('s_lshl_b32 s25, s25, 8')
    a('s_lshl_b32 s26, s3, 6')
    a('s_add_u32 s25, s25, s26')
    a('v_and_b32 v19, 15, v1')
    a('v_lshlrev_b32 v19, 2, v19')
    a('s_waitcnt lgkmcnt(0)')
    lstore(['buffer_store_dwordx4 v[24:27], v17, s[16:19], s46 offen', 'buffer_store_dwordx4 v[28:31], v17, s[16:19], s47 offen'])
    stamp('h2st')
    a('v_bfe_u32 v4, v1, 4, 1')
    a('v_lshrrev_b32 v5, 5, v1')
    a('v_bfe_u32 v22, v1, 2, 2')
    a('v_and_b32 v23, 3, v1')
    a('v_lshlrev_b32 v23, 3, v23')
    a('v_lshl_add_u32 v3, v5, 3, v22')
    a('v_bfe_u32 v13, v1, 3, 1')
    a('v_lshlrev_b32 v16, 7, v3')
    a('v_add_u32 v16, v16, v23')
    a('v_lshl_add_u32 v16, v13, 6, v16')
    a('v_lshl_add_u32 v16, v4, 5, v16')
    a(f'v_mul_u32_u24 v17, {SEG[0][2]-SEG[0][1]}, v4')
    a(f'v_add_u32 v17, {SEG[0][1]}, v17')
    a(f'v_mul_u32_u24 v18, {P1U}, v4')
    for ct in range(4):
        a(f'v_xor_b32 v14, {32*ct}, v16')
        a(f'v_add_u32 v{246+ct}, v14, v17')
        a(f'v_add_u32 v{120+ct}, v14, v18')
    a('v_mul_u32_u24 v3, 0x60, v3')
    a('v_add_u32 v3, v3, v23')
    a('v_add_u32 v18, v18, v3')
    a('v_lshl_add_u32 v3, v5, 2, v22')
    a('v_lshlrev_b32 v3, 7, v3')
    a('v_lshl_add_u32 v3, v13, 6, v3')
    a('v_lshl_add_u32 v3, v4, 5, v3')
    a('v_add_u32 v3, v3, v23')
    a('s_lshl_b32 s26, s3, 11')
    a('v_add_u32 v240, s26, v3')
    a('v_xor_b32 v241, 64, v240')
    for i in range(1, 3):
        a(f'v_add_u32 v{240+2*i}, {65536*i}, v240')
        a(f'v_add_u32 v{241+2*i}, {65536*i}, v241')
    a(f's_mov_b32 s44, {fh(GC2)}'); a(f's_mov_b32 s45, {fh(GC2)}')
    a(f'v_mov_b32 v2, {fh(GC1)}'); a(f'v_mov_b32 v3, {fh(GC1)}')
    a('s_lshl_b32 s27, s30, 2')
    a('s_add_u32 s27, s27, s3')
    a('s_lshl_b32 s28, s27, 15')
    a(f's_add_u32 s28, s28, {hex(H2)}')
    a('v_add_u32 v14, s28, v15')
    a('s_lshl_b32 s28, s98, 12')
    a('s_waitcnt vmcnt(0)'); vm.done = vm.issued
    stamp('h2dr')
    lstore([f'buffer_store_dword v20, v21, s[52:55], s33 offen offset:{F1}'])
    while early: early.popleft()()
    a(f's_add_u32 s99, s48, {512*3584}')
    a(f's_mul_i32 s36, s98, {64*3584}')
    a('s_add_u32 s48, s48, s36')
    ptok = {}
    def p2dma(k):
        k0, gb, ub = seg_of(k)
        a(f's_add_u32 m0, {"s49" if k < 15 else "s43"}, {gb + 2048*(k-k0)}')
        if k and k % 4: a(f's_add_u32 s48, s48, {16*3584}')
        elif k: step('s48', 16*3584, 's99', 512*3584)
        ptok[k] = vm.issue('buffer_load_dwordx4 v7, s[20:23], s48 offen lds')
    NS0 = P.get('ns0', 0)
    for k in range(NS0): p2dma(k)
    a('s_mul_i32 s29, s27, 112')
    a('s_lshl_b32 s47, s3, 4')
    a('s_add_u32 s47, s47, s31')
    a(f's_mul_i32 s47, s47, {4*YP}')
    a('s_lshl_b32 s4, s30, 10')
    a(f's_add_u32 s4, s4, {hex(YT)}')
    a('s_add_u32 s47, s47, s4')
    a('s_mul_i32 s46, s31, 3')
    a('s_add_u32 s46, s46, s29')
    a('s_lshl_b32 s46, s46, 10')
    a(f's_add_u32 s46, s46, {hex(ACT + 64*1024)}')
    a('s_lshr_b32 s39, s32, 3')
    a('s_and_b32 s35, s39, 1')
    a('s_and_b32 s34, s39, 3')
    a('s_and_b32 s24, s32, 7')
    a('s_lshl_b32 s24, s24, 7')
    a(f's_mul_i32 s37, s3, {192*1024}')
    a('s_add_u32 s37, s37, s24')
    a(f's_add_u32 s30, s37, {1024*1024 + 12*16384}')
    a(f's_mul_i32 s36, s34, {3*16384}')
    a('s_add_u32 s37, s37, s36')
    a(f's_add_u32 s37, s37, {1024*1024}')
    a('s_lshl_b32 s38, s3, 18')
    a('s_add_u32 s38, s38, s24')
    a(f's_add_u32 s31, s38, {16*16384}')
    a('s_lshl_b32 s36, s34, 16')
    a('s_add_u32 s38, s38, s36')
    a('s_lshl_b32 s6, s35, 3')
    a('s_add_u32 s6, s6, s3')
    a(f's_mul_i32 s6, s6, {16*YP}')
    a('s_add_u32 s6, s6, s4')
    a(f's_add_u32 s42, s6, {16*YP}')
    a(f's_mul_i32 s36, s34, {4*YP}')
    a('s_add_u32 s6, s6, s36')
    a(f's_mul_i32 s4, s39, {224*1024}')
    a(f's_mul_i32 s5, s3, {12*1024}')
    a('s_add_u32 s5, s5, s4')
    a(f's_add_u32 s5, s5, {hex(ACT + 64*1024)}')
    a(f's_add_u32 s41, s5, {12*1024}')
    a(f's_mul_i32 s36, s34, {3*1024}')
    a('s_add_u32 s5, s5, s36')
    a('s_lshl_b32 s39, s39, 16')
    a('s_add_u32 s39, s39, s24')
    a('v_bfe_u32 v4, v1, 1, 2')
    a('v_and_b32 v5, 1, v1')
    a('v_lshlrev_b32 v5, 2, v5')
    a('v_lshl_add_u32 v4, v4, 4, v5')
    a('s_lshl_b32 s35, s35, 3')
    a('v_add_u32 v13, s35, v4')
    a(f'v_add_u32 v16, {112*1024}, v15')
    a(f'v_add_u32 v17, {64*YP}, v15')
    a('v_lshlrev_b32 v73, 7, v1')
    a('s_lshl_b32 s34, s2, 2')
    a('s_add_u32 s34, s34, s3')
    a(f's_mul_i32 s34, s34, {14*128}')
    poll('f1', [f'buffer_load_dword v22, v19, s[52:55], s25 offen offset:{F1} sc1'], [22])
    stamp('f1ok'); raw(3, 's51')
    htok = {}
    def h2load(ks):
        htok[ks] = vm.issue(f'buffer_load_dwordx4 a[{4*ks}:{4*ks+3}], v14, s[16:19], s28 offen offset:{1024*(ks&3)} sc1')
        if (ks & 3) == 3:
            a('s_add_u32 s28, s28, 0x1000'); a('s_and_b32 s28, s28, 0x7fff')
    NH0 = P.get('nh0', 8)
    for ks in range(NH0): h2load(ks)
    a('s_barrier')
    stamp('b0')
    hq, pq, wq = deque(), deque(), deque()
    wtok = {}; m0ok = [False]
    def wdslot(i):
        s = i % 20
        so, lim, n, i0 = ('s37', 's30', 12, 0) if i < 12 else ('s38', 's31', 16, 12)
        def f0():
            a(f's_add_u32 m0, s26, {8192*WBL[s]}')
            vm.issue(f'buffer_load_dwordx4 v8, s[8:11], {so} offen lds')
        def f1():
            if pq or len(ptok) < 32: a(f's_add_u32 m0, s26, {8192*WBL[s]}')
            elif not m0ok[0]: a(f's_add_u32 m0, s26, {8192*WBL[s]}'); m0ok[0] = True
            wtok[i] = vm.issue(f'buffer_load_dwordx4 v9, s[8:11], {so} offen offset:1024 lds')
            if (i - i0 + 1) % (n // 4): a(f's_add_u32 {so}, {so}, 0x4000')
            else: step(so, 0x4000, lim, n*0x4000)
        return [f0, f1]
    for ks in range(NH0, 32): hq.append(lambda ks=ks: h2load(ks))
    for k in range(NS0, 15): pq.append(lambda k=k: p2dma(k))
    valu = deque()
    AR, NA = 24, 6
    ACC1, ACC2 = 192, 128
    pipe = LdsPipe(a)
    steps = [(0, k, ct) for k in range(32) for ct in range(3)] + [(1, k, ct) for k in range(32) for ct in range(4)]
    tok = {}; nxt = [0]
    def rd(n):
        ps, k, ct = steps[n]; d = AR + 4*(n % NA)
        for jj in range(2):
            if ps == 0: b, off = 18, (16*k + 4*jj)*96 + 32*ct
            else:
                k0, gb, ub = seg_of(k)
                b, off = (246+ct, 2048*k + 512*jj) if k < 15 else (120+ct, gb + 2048*(k-k0) + 512*jj)
            tok[n] = pipe.issue(f'ds_read_b64_tr_b16 v[{d+2*jj}:{d+2*jj+1}], v{b} offset:{off}')
    for n in range(NA-1): rd(n)
    nxt[0] = NA-1
    VB = P.get('vb', 25); PE = P.get('pe', 3); WE = P.get('we', 3)
    stok = {}; nw = 0; credit = 0; nb = 0; fload = [f'buffer_load_dword v22, v13, s[52:55], s25 offen offset:{F2} sc1']; tp = None
    for n, (ps, k, ct) in enumerate(steps):
        if ps == 0 and ct == 0:
            while k not in htok: hq.popleft()()
            vm.need(htok[k])
        pipe.need(tok[n])
        d = (ACC1, ACC2)[ps] + 16*ct; c = '0' if k == 0 else f'v[{d}:{d+15}]'
        sa = AR + 4*(n % NA)
        a(f'v_mfma_f32_32x32x16_bf16 v[{d}:{d+15}], v[{sa}:{sa+3}], a[{4*k}:{4*k+3}], {c}')
        if nxt[0] < len(steps): rd(nxt[0]); nxt[0] += 1
        if ct == (2, 3)[ps] and (ps, k) in BARS:
            land, free = BARS[(ps, k)]
            if land is not None:
                while land not in ptok: pq.popleft()()
                vm.need(ptok[land])
            a('s_barrier')
            nb += 1; stamp(f'b{nb}')
            if (ps, k) == (0, 15):
                for kk in range(15, 27): pq.append(lambda kk=kk: p2dma(kk))
            if (ps, k) == (0, 23):
                for kk in range(27, 32): pq.append(lambda kk=kk: p2dma(kk))
            while nw < min(free, 16):
                wq.extend(wdslot(nw)); nw += 1
        if n == P.get('wt', 60):
            a('s_mov_b64 exec, 0x3fff')
            vm.issue('buffer_load_dword v72, v73, s[8:11], s34 offen')
            a('s_mov_b64 exec, -1')
        if n == 95:
            stamp('p1end')
            for t in range(3):
                o = 64 + 4*(t & 1)
                valu.extend(gelu_ops(ACC1+16*t, 48 + 8*(t & 1), o))
                valu.append(('store', t, o))
        if hq: hq.popleft()()
        elif pq and n % PE == 0: pq.popleft()()
        elif wq and n % WE == (1 % WE): wq.popleft()()
        credit = min(credit + VB, 30)
        while n > 97 and valu and credit >= 10*(cost(valu[0]) if isinstance(valu[0], str) else 1):
            x = valu.popleft()
            if isinstance(x, tuple):
                stok[x[1]] = vm.issue(f'buffer_store_dwordx4 v[{x[2]}:{x[2]+3}], v15, s[16:19], s46 offen offset:{1024*x[1]} sc1')
                if x[1] == 2: flag_at = n + P.get('fdel', 20); print('pass-1 act stored at', n)
            else:
                a(x); credit -= 10*cost(x)
        if 2 in stok and 'f2' not in stok and n >= flag_at:
            vm.need(stok[2])
            stok['f2'] = lstore([f'buffer_store_dword v20, v21, s[52:55], s33 offen offset:{F2}'])
    while valu:
        x = valu.popleft()
        if isinstance(x, tuple):
            stok[x[1]] = vm.issue(f'buffer_store_dwordx4 v[{x[2]}:{x[2]+3}], v15, s[16:19], s46 offen offset:{1024*x[1]} sc1')
        else: a(x)
    if 'f2' not in stok:
        vm.need(stok[2])
        stok['f2'] = lstore([f'buffer_store_dword v20, v21, s[52:55], s33 offen offset:{F2}'])
    assert not pq and not hq
    tp = vm.issue(fload[0])
    a('s_mov_b32 s34, 1.0'); a('s_mov_b32 s35, 1.0')
    def geglu2(t):
        s = Asm(); geglu(s, ACC2+16*t, 48, 64 + 4*(t & 1))
        for l in s.lines: a(l.replace('s[46:47]', 's[34:35]'))
        if t: a(f's_add_u32 s47, s47, {YP}')
        return lstore([f'buffer_store_dwordx4 v[{64+4*(t&1)}:{67+4*(t&1)}], v15, s[16:19], s47 offen'])
    atok = {}
    def abase(i): return 128 + 8*i if i < 12 else 8*(i-12)
    def actload(i):
        b = abase(i)
        so, v2, inc, lim, n, i0 = ('s5', 16, 1024, 's41', 12, 0) if i < 12 else ('s6', 17, YP, 's42', 16, 12)
        vm.issue(f'buffer_load_dwordx4 a[{b}:{b+3}], v15, s[16:19], {so} offen sc1')
        atok[i] = vm.issue(f'buffer_load_dwordx4 a[{b+4}:{b+7}], v{v2}, s[16:19], {so} offen sc1')
        if (i - i0 + 1) % (n // 4): a(f's_add_u32 {so}, {so}, {inc}')
        else: step(so, inc, lim, n*inc)
    FP = P.get('fp', 1)
    for t in range(FP): geglu2(t)
    stamp('g1')
    poll('f2', fload, [22], pre=tp)
    stamp('f2ok'); raw(4, 's51')
    NA1 = P.get('na1', 6)
    for i in range(NA1): actload(i)
    for t in range(FP, 4): ts3 = geglu2(t)
    stamp('g3')
    for i in range(NA1, 12): actload(i)
    a('v_and_b32 v4, 31, v1')
    a('v_lshrrev_b32 v5, 5, v1')
    a('v_lshlrev_b32 v10, 10, v4')
    a('v_lshl_add_u32 v10, v5, 4, v10')
    a('s_lshr_b32 s46, s3, 1')
    a('s_lshl_b32 s46, s46, 15')
    a('s_and_b32 s47, s3, 1')
    a('s_lshl_b32 s47, s47, 6')
    a('s_add_u32 s39, s39, s46')
    a('s_add_u32 s39, s39, s47')
    a(f's_add_u32 s46, s39, {hex(X1)}')
    vm.need(ts3)
    lstore([f'buffer_store_dword v20, v21, s[52:55], s33 offen offset:{F3}'])
    stamp('estart')
    for i in range(16, 20): wq.extend(wdslot(i))
    pipe = LdsPipe(a); tok = {}
    def rd2(i):
        d = AR + 8*(i % 3); ad = 8192*WBL[i % 20]
        while i not in wtok: wq.popleft()()
        vm.need(wtok[i])
        for mt in range(2):
            for jj in range(2):
                tok[(i, mt)] = pipe.issue(f'ds_read_b64_tr_b16 v[{d+4*mt+2*jj}:{d+4*mt+2*jj+1}], v{240+2*(ad>>16)+mt} offset:{(ad & 0xffff)+1024*jj}')
    rd2(0); rd2(1)
    f3load = [f'buffer_load_dword v22, v13, s[52:55], s25 offen offset:{F3} sc1']
    F3P = P.get('f3p', 10)
    for i in range(28):
        stamp(f'e{i}')
        if i == F3P:
            while wq: wq.popleft()()
            tp = vm.issue(f3load[0])
        if i == 12:
            poll('f3', f3load, [22], pre=tp)
            stamp('f3ok'); raw(5, 's51')
            for ii in range(12, 28): actload(ii)
            vm.issue('buffer_load_dwordx4 v[72:75], v10, s[16:19], s46 offen sc1')
            tx = vm.issue('buffer_load_dwordx4 v[76:79], v10, s[16:19], s46 offen offset:32 sc1')
        d0 = AR + 8*(i % 3); b = abase(i)
        vm.need(atok[i])
        for mt in range(2):
            pipe.need(tok[(i, mt)])
            if mt == 1 and i < 8: wq.extend(wdslot(20+i))
            for nt in range(2):
                d = ACC2 + 32*mt + 16*nt; c = '0' if i == 0 else f'v[{d}:{d+15}]'
                a(f'v_mfma_f32_32x32x16_bf16 v[{d}:{d+15}], v[{d0+4*mt}:{d0+4*mt+3}], a[{b+4*nt}:{b+4*nt+3}], {c}')
                if mt == 0 and nt == 0 and i+2 < 28: rd2(i+2)
                elif wq: wq.popleft()()
    stamp('eend')
    PBL = [(WBL[8], WBL[9]), (WBL[10], WBL[11]), (WBL[12], WBL[13]), (WBL[14], WBL[15])]
    a('v_add_u32 v4, s26, v15')
    a('v_add_u32 v5, 0x10000, v4')
    a('v_add_u32 v18, 0x20000, v4')
    base(a, 12, 56, 0x200000)
    for o in range(4):
        a(f's_cmp_eq_u32 s3, {o}')
        a(f's_cbranch_scc1 L_own{o}')
        d = ACC2 + 32*(o & 1) + 16*(o >> 1)
        for g in range(4):
            ad = 8192*PBL[o][g >> 1] + 1024*(g & 1)
            a(f'ds_write_b128 v{(4, 5, 18)[ad >> 16]}, v[{d+4*g}:{d+4*g+3}] offset:{ad & 0xffff}')
        a(f's_branch L_nown{o}')
        a.label(f'L_own{o}')
        for g in range(16): a(f'v_mov_b32 v{24+g}, v{d+g}')
        a(f's_mov_b32 s4, {8192*PBL[o][0]}')
        a(f's_mov_b32 s5, {8192*PBL[o][1]}')
        a.label(f'L_nown{o}')
    for i in range(1, 4):
        a(f's_add_u32 s6, s26, {2048*i}')
        a('s_and_b32 s6, s6, 0x1fff')
        a('s_add_u32 s7, s6, s5')
        a('s_add_u32 s6, s6, s4')
        a(f'v_add_u32 v{88+2*i}, s6, v15')
        a(f'v_add_u32 v{89+2*i}, s7, v15')
    vm.need(tx)
    unpack8(a, 96, 124, 40); unpack8(a, 104, 116, 40); unpack8(a, 48, 72, 40); unpack8(a, 56, 76, 40)
    a('s_waitcnt lgkmcnt(0)')
    a('s_barrier')
    stamp('ebar')
    for i in range(1, 4):
        for g in range(4):
            a(f'ds_read_b128 v[{112+16*i+4*g}:{115+16*i+4*g}], v{88+2*i+(g >> 1)} offset:{1024*(g & 1)}')
    for i in range(1, 4):
        a(f's_waitcnt lgkmcnt({12-4*i})')
        for p in range(8): a(f'v_pk_add_f32 v[{24+2*p}:{25+2*p}], v[{24+2*p}:{25+2*p}], v[{112+16*i+2*p}:{113+16*i+2*p}]')
    for g in range(2):
        b = 24 + 8*g
        for r in range(4): a(f'v_permlane32_swap_b32 v{b+r}, v{b+4+r}')
        for p in range(4): a(f'v_pk_fma_f32 v[{b+2*p}:{b+2*p+1}], v[{b+2*p}:{b+2*p+1}], v[{96+8*g+2*p}:{97+8*g+2*p}], v[{48+8*g+2*p}:{49+8*g+2*p}]')
        for p in range(4): a(f'v_cvt_pk_bf16_f32 v{40+4*g+p}, v{b+2*p}, v{b+2*p+1}')
        a(f'buffer_store_dwordx4 v[{40+4*g}:{43+4*g}], v10, s[12:15], s39 offen offset:{32*g}' + ('', ' sc1', ' nt')[P.get('ost', 0)])
    a('s_or_b32 s4, s2, s3')
    a('s_cmp_lg_u32 s4, 0')
    a('s_cbranch_scc1 L_noep')
    a(f's_mov_b32 s4, {hex(EPOCH)}')
    a('buffer_store_dword v20, v21, s[16:19], s4 offen')
    a.label('L_noep')
    if P.get('stamps'):
        a('s_waitcnt vmcnt(0)')
        stamp('end')
        a('s_cmp_lg_u32 s3, 0')
        a('s_cbranch_scc1 L_end')
        a('s_lshl_b32 s94, s2, 7')
        a(f's_add_u32 s94, s94, {hex(TS)}')
        a('s_add_u32 s92, s58, s94')
        a('s_addc_u32 s93, s59, 0')
        a('v_lshlrev_b32 v250, 2, v1')
        a('s_lshl_b32 s94, s2, 8')
        a(f's_add_u32 s94, s94, {hex(TS + 0x80000)}')
        a('s_add_u32 s94, s58, s94')
        a('s_addc_u32 s95, s59, 0')
        a('global_store_dword v250, v254, s[94:95]')
        a('s_mov_b64 exec, 1')
        if P.get('dbg'):
            a('s_load_dwordx2 s[94:95], s[0:1], 104')
        a('s_waitcnt lgkmcnt(0)')
        if P.get('dbg'):
            a('s_not_b32 s60, s60')
            for m in sorted(marks):
                a(f'v_mov_b32 v250, s{60+2*m}')
                a(f'global_atomic_umax v21, v250, s[94:95] offset:{4*m}')
                a('s_nop 1')
            a('s_not_b32 s60, s60')
        for m in sorted(marks):
            a(f'v_mov_b32 v250, s{60+2*m}')
            a(f'v_mov_b32 v251, s{61+2*m}')
            a(f'global_store_dwordx2 v21, v[250:251], s[92:93] offset:{8*m}')
            a('s_nop 1')
    a.label('L_end')
    a.label('L_last')
    a('s_endpgm')
    return dict(grid=256, block=256, lds=163840, vgpr=512, accum=256)
```

```python
from collections import deque
from asmlib import *
from k123 import fh, lo, hi, unpack8, ln_stats, LdsPipe, A_OUT, A_WS
from k45 import VmPipe, GC1, GC2, geglu
from cde import zipl, gelu_ops, cost

UT, YT, X1, H2, ACT = 0, 0x400000, 0x900000, 0, 0xD00000
MODT, EPOCH, GRP, MP, TS = 0x1400000, 0x1408000, 0x1410000, 0x1480000, 0x1500000
YP = 16384 + 128
XID, UH, F1, F2, F3 = 0, 128, 1024, 1536, 2048
P1U = 49280
SEG = [(0, 98432, 129152), (15, 0, 49280), (27, 24576, 73856)]
CB, CHS, KB, U0, U1 = 98432, 12992, 512, 4608, 8768
PB = CB + 2*CHS
PRM = PB + 32768
MPART = PRM + 6144
XG = 129152 + 112*128
YS = 1040
XH = XG + 8*YS
PS = 272
SPIN = 1 << 15
WBL = [5, 11, 12, 13, 14, 16, 17, 18, 15, 19, 0, 6, 1, 2, 7, 8, 3, 4, 9, 10]
BARS = {(0, 15): (None, 0), (0, 23): (None, 0), (0, 29): (6, 0), (1, 4): (14, 2), (1, 12): (22, 8), (1, 20): (31, 12), (1, 27): (None, 16), (1, 31): (None, 20)}
assert MPART + 512 <= 163840 and XH + 8192 <= 163840
def seg_of(k): return SEG[0] if k < 15 else SEG[1] if k < 27 else SEG[2]

def base(a, d, p, n):
    a(f's_mov_b32 s{d}, s{p}'); a(f's_mov_b32 s{d+1}, s{p+1}'); a(f's_mov_b32 s{d+2}, {hex(n)}')

def mega(a, P):
    marks = set()
    SETS = {1: 'start kv0 utst utok bbar end bend ytst ytok h2dr b0 p1end b8 estart f3ok eend',
            2: 'start kv0 kvN abar utst end ut1st uhok utok bbar bend pbar ytst ytack ytok mdok',
            3: 'start ytst ln1 ytack ytok end ybar hbar h2st h2dr f1ok b0 b1 b2 b3 p1end',
            5: 'start karg x2 x3 x4 end x6 x7 x8 x9 x10 x11 x12 kv0 issued pre',
            4: 'start p1end b5 b6 b7 end b8 g1 f2ok g3 estart e12 f3ok e20 eend ebar'}
    names = SETS[P.get('stamps', 1)].split()
    def stamp(name):
        if P.get('stamps') and name in names:
            slot = names.index(name)
            a(f's_memrealtime s[{60+2*slot}:{61+2*slot}]'); marks.add(slot)
    def raw(i, sreg):
        if P.get('stamps'): a(f'v_writelane_b32 v254, {sreg}, {i}')
    vm = VmPipe(a)
    NT = ' nt' if P.get('nt', 1) else ''
    nst = [0]
    def lstore(lines, emit=None):
        n = nst[0]; nst[0] += 1
        a('s_cmp_eq_u32 s101, 0')
        a(f's_cbranch_scc1 L_ls{n}a')
        for l in lines: a(l + ' sc1')
        a(f's_branch L_ls{n}b')
        a.label(f'L_ls{n}a')
        for l in lines: t = vm.issue(l)
        a.label(f'L_ls{n}b')
        return t
    def poll(name, loads, tags, pre=None):
        a(f's_mov_b32 s51, {SPIN}')
        if pre is not None:
            vm.need(pre)
            stamp(name + '1st')
            a(f's_branch L_{name}_chk')
        a.label(f'L_{name}')
        for l in loads: a(l)
        a('s_waitcnt vmcnt(0)')
        a.label(f'L_{name}_chk')
        a(f'v_cmp_ne_u32 vcc, s50, v{tags[0]}')
        for i, t in enumerate(tags[1:]): a(f'v_cmp_ne_u32 s[{92+2*i}:{93+2*i}], s50, v{t}')
        a('s_sub_u32 s51, s51, 1')
        a(f's_cbranch_scc1 L_{name}_ok')
        for i in range(len(tags)-1): a(f's_or_b64 vcc, vcc, s[{92+2*i}:{93+2*i}]')
        a(f's_cbranch_vccnz L_{name}')
        a.label(f'L_{name}_ok')
        if pre is None: vm.done = vm.issued

    a('s_cmp_ge_u32 s2, 256')
    a('s_cbranch_scc1 L_end')
    stamp('start')
    if P.get('stamps'): a('v_mov_b32 v254, 0')
    a('s_load_dwordx16 s[64:79], s[0:1], 0')
    if P.get('cpf', 1):
        a('s_getpc_b64 s[4:5]')
        a.label('L_pc')
        a('v_lshlrev_b32 v3, 7, v0')
        a('v_mov_b32 v5, s5')
        a('v_add_co_u32 v4, vcc, s4, v3')
        a(f'v_cmp_gt_u32 s[6:7], {P.get("cpn", 16)}, v0')
        a('v_and_b32 v1, 63, v0')
        a('v_addc_co_u32 v5, vcc, 0, v5, vcc')
        a('s_and_b64 exec, exec, s[6:7]')
        a('s_cbranch_execz L_nopf')
        a('global_load_dword v169, v[4:5], off')
        a.label('L_nopf')
        a('s_mov_b64 exec, -1')
    else: a('v_and_b32 v1, 63, v0')
    a(f's_load_dwordx2 s[58:59], s[0:1], {A_WS}')
    a('s_load_dwordx8 s[80:87], s[0:1], 64')
    a(f's_load_dwordx2 s[56:57], s[0:1], {A_OUT}')
    a('v_lshrrev_b32 v2, 6, v0')
    a('v_readfirstlane_b32 s3, v2')
    a('s_mov_b32 s40, 0xffff0000')
    a('s_and_b32 s28, s2, 7')
    a('s_lshr_b32 s29, s2, 3')
    a('s_lshl_b32 s32, s28, 5')
    a('s_or_b32 s32, s32, s29')
    a('v_and_b32 v3, 31, v0')
    a('v_lshrrev_b32 v2, 5, v0')
    a('s_lshl_b32 s33, s29, 6')
    a('v_lshl_add_u32 v4, v2, 3, s33')
    a('s_lshl_b32 s33, s28, 7')
    a('v_lshl_add_u32 v5, v3, 2, s33')
    a('v_lshl_add_u32 v5, v4, 10, v5')
    a('v_subrev_u32 v4, 0xc00, v5')
    a('s_lshl_b32 s33, s28, 9')
    a('v_lshl_add_u32 v13, v3, 4, s33')
    a('s_movk_i32 s35, 0x1000')
    a('s_mov_b32 s15, 0x20000'); a('s_mov_b32 s27, 0x20000'); a('s_mov_b32 s19, 0x20000')
    a('s_mov_b32 s23, 0x20000'); a('s_mov_b32 s11, 0x20000'); a('s_mov_b32 s55, 0x20000')
    a('v_lshlrev_b32 v15, 4, v1')
    a('v_mov_b32 v21, 0')
    a('v_lshlrev_b32 v14, 4, v0')
    a('s_waitcnt lgkmcnt(0)')
    stamp('karg')
    base(a, 12, 70, 4096)
    base(a, 24, 68, 0x200000)
    tsh = vm.issue('buffer_load_dwordx4 v[48:51], v13, s[12:15], 0 offen' + NT)
    base(a, 12, 66, 0x200000)
    for i in range(3): vm.issue(f'buffer_load_dword v{24+i}, v4, s[12:15], 0 offen offset:{1024*i}' + NT)
    tk = {}
    for i in range(8):
        so = 's35' if i >= 4 else '0'
        vm.issue(f'buffer_load_dword v{27+i}, v5, s[12:15], {so} offen offset:{1024*(i&3)}' + NT)
        tk[i] = vm.issue(f'buffer_load_dword v{36+i}, v5, s[24:27], {so} offen offset:{1024*(i&3)}' + NT)
    stamp('issued')
    a(f's_add_u32 s4, s58, {hex(EPOCH)}')
    a('s_addc_u32 s5, s59, 0')
    a('s_load_dword s50, s[4:5], 0')
    if P.get('cpf', 1):
        a('s_getpc_b64 s[6:7]')
        a.label('L_pc2')
        a('s_lshl_b32 s36, s29, 2')
        a('s_add_u32 s36, s36, s3')
        a('v_and_b32 v4, 1, v0')
        a('v_lshl_add_u32 v4, s36, 1, v4')
        a('v_min_u32 v4, (L_last-L_pc2)/128, v4')
        a('v_lshlrev_b32 v4, 7, v4')
        a('v_mov_b32 v5, s7')
        a('v_add_co_u32 v4, vcc, s6, v4')
        a('v_addc_co_u32 v5, vcc, 0, v5, vcc')
        a('s_mov_b64 exec, 3')
        vm.issue('global_load_dword v168, v[4:5], off')
        a('s_mov_b64 exec, -1')
    if P.get('kvbar', 1): a('s_barrier')
    a('s_lshl_b32 s33, s32, 2')
    a('s_add_u32 s6, s74, s33')
    a('s_addc_u32 s7, s75, 0')
    a('s_load_dword s34, s[6:7], 0')
    base(a, 12, 72, 0x200000)
    a('s_lshl_b32 s33, s32, 13')
    a('s_add_u32 s36, s33, 0x1000')
    vm.issue('buffer_load_dwordx4 v[146:149], v14, s[12:15], s33 offen' + NT)
    tsk = vm.issue('buffer_load_dwordx4 v[150:153], v14, s[12:15], s36 offen' + NT)
    a('s_mul_i32 s30, s28, 6')
    a('s_lshr_b32 s31, s29, 2')
    a('s_add_u32 s30, s30, s31')
    a('s_and_b32 s31, s29, 3')
    a('s_lshl_b32 s46, s30, 2')
    a('s_or_b32 s46, s46, s31')
    a('s_lshl_b32 s47, s31, 2')
    a('s_or_b32 s47, s47, s3')
    a('v_and_b32 v16, 1, v0')
    a('v_lshrrev_b32 v17, 3, v1')
    a('v_and_b32 v6, 7, v1')
    a('v_mul_u32_u24 v242, 0x6000, v17')
    a('v_lshl_add_u32 v242, v6, 4, v242')
    a('v_lshlrev_b32 v243, 3, v17')
    a('s_lshl_b32 s36, s3, 11')
    a('s_add_u32 s33, s33, s36')
    a('s_lshr_b32 s30, s32, 4')
    a('s_and_b32 s31, s32, 15')
    a('s_and_b32 s98, s30, 1')
    a('s_lshl_b32 s98, s98, 2')
    a('s_add_u32 s98, s98, s28')
    a('s_and_b32 s98, s98, 7')
    a('s_lshr_b32 s38, s3, 1')
    a('s_and_b32 s39, s3, 1')
    a('s_cmp_eq_u32 s38, 0')
    a('s_cselect_b32 s20, s78, s80')
    a('s_cselect_b32 s21, s79, s81')
    a(f's_mov_b32 s22, {512*3584}')
    base(a, 8, 82, 1792*1024)
    base(a, 16, 58, TS)
    a('s_lshl_b32 s36, s28, 12')
    a(f's_add_u32 s36, s36, {hex(GRP)}')
    a('s_add_u32 s52, s58, s36')
    a('s_addc_u32 s53, s59, 0')
    a('s_movk_i32 s54, 0x1000')
    a('s_cmp_eq_u32 s3, 3')
    a('s_cselect_b32 s37, 0, 0x70000000')
    a('v_mov_b32 v22, s37')
    a('s_lshl_b32 s36, s29, 7')
    vm.issue('buffer_load_dword v158, v22, s[52:55], s36 offen')
    a('s_lshl_b32 s36, s46, 6')
    a(f's_add_u32 s36, s36, {hex(MODT)}')
    vm.issue('buffer_load_dword v159, v22, s[16:19], s36 offen')
    a('s_lshl_b32 s36, s32, 13')
    a('s_lshl_b32 s37, s46, 11')
    a(f's_add_u32 s37, s37, {hex(MP)}')
    a('s_cmp_eq_u32 s3, 1')
    a(f's_cselect_b32 s37, s37, {hex(TS)}')
    a('s_cselect_b32 s44, 15, 63')
    a('s_cmp_eq_u32 s3, 2')
    a('s_cselect_b32 s37, s36, s37')
    a('v_and_b32 v4, s44, v1')
    a('v_lshlrev_b32 v4, 7, v4')
    if P.get('utt', 1): vm.issue('buffer_load_dword v157, v4, s[16:19], s37 offen' + (NT if P.get('ntu', 1) else ''))
    if P.get('tlb', 0) == 1:
        a('v_lshl_add_u32 v4, v1, 20, v22')
        for i, (p, n) in enumerate(((86, 512*6144), (84, 1024), (64, 0x200000), (78, 512*3584), (80, 512*3584), (82, 1792*1024), (56, 0x200000))):
            base(a, 12, p, n)
            vm.issue(f'buffer_load_dword v{160+i}, v4, s[12:15], 0 offen')
        vm.issue('buffer_load_dword v154, v4, s[16:19], 0 offen')
    for i in range(3):
        a(f'v_add_u32 v4, {64*i}, v1')
        a('v_mul_u32_u24 v5, 0x2aab, v4')
        a('v_lshrrev_b32 v5, 16, v5')
        a(f'v_mul_u32_u24 v5, {3584-96}, v5')
        a(f'v_lshl_add_u32 v{10+i}, v4, 4, v5')
        if i: a(f'v_subrev_u32 v{10+i}, {1024*i}, v{10+i}')
    a(f's_mul_i32 s41, s39, {32*3584}')
    a('s_mul_i32 s43, s31, 96')
    a('s_add_u32 s41, s41, s43')
    a('s_add_u32 s41, s41, 0x800')
    a('s_mul_i32 s43, s39, 3072')
    a(f's_mul_i32 s42, s38, {P1U}')
    a('s_add_u32 s42, s42, s43')
    a(f's_add_u32 s99, s41, {512*3584}')
    a(f's_mul_i32 s36, s98, {64*3584}')
    a('s_add_u32 s41, s41, s36')
    def step(reg, inc, lim, span):
        a(f's_add_u32 {reg}, {reg}, {inc}')
        a(f's_cmp_eq_u32 {reg}, {lim}')
        a(f's_cselect_b32 s36, {span}, 0')
        a(f's_sub_u32 {reg}, {reg}, s36')
    early = deque()
    def p1dma(m, i):
        if i == 0: a(f's_add_u32 m0, s42, {6144*m}')
        vm.issue(f'buffer_load_dwordx4 v{10+i}, s[20:23], s41 offen offset:{1024*i} lds')
        if i == 2 and m < 7: step('s41', 64*3584, 's99', 512*3584)
    for m in range(8):
        for i in range(3): early.append(lambda m=m, i=i: p1dma(m, i))
    for _ in range(P.get('e0', 0)): early.popleft()()
    a('v_lshrrev_b32 v4, 3, v1')
    a('v_bfe_u32 v5, v1, 4, 1')
    a('v_lshlrev_b32 v5, 2, v5')
    a('v_xor_b32 v5, v5, v6')
    a('v_lshlrev_b32 v5, 4, v5')
    a('v_lshl_add_u32 v8, v4, 10, v5')
    a(f'v_add_u32 v9, {8192-1024}, v8')
    a('s_lshl_b32 s43, s38, 5')
    a('v_xor_b32 v5, s43, v5')
    a('v_mul_u32_u24 v7, 0xe00, v4')
    a('v_add_u32 v7, v7, v5')
    a(f's_mul_i32 s48, s39, {8*3584}')
    a('s_lshl_b32 s43, s31, 7')
    a('s_add_u32 s48, s48, s43')
    a('s_lshl_b32 s43, s39, 10')
    a(f's_mul_i32 s49, s38, {SEG[0][2]-SEG[0][1]}')
    a('s_add_u32 s49, s49, s43')
    a(f's_mul_i32 s38, s38, {P1U}')
    a('s_add_u32 s43, s43, s38')
    a('v_sub_u32 v4, 7, v2')
    a('v_xor_b32 v4, v4, v6')
    a('v_lshl_add_u32 v4, v3, 4, v4')
    a(f'v_lshlrev_b32 v4, 4, v4')
    a(f'v_add_u32 v120, {PB}, v4')
    a('v_lshrrev_b32 v4, 4, v1')
    a('v_xor_b32 v5, v4, v1')
    a('s_lshl_b32 s36, s3, 11')
    a(f's_add_u32 s36, s36, {PB}')
    a('v_lshl_add_u32 v124, v5, 4, s36')
    a('v_xor_b32 v125, 64, v124')
    a('v_lshrrev_b32 v4, 3, v1')
    a('v_lshlrev_b32 v5, 4, v6')
    a('v_lshl_add_u32 v13, v4, 12, v5')
    a('s_lshl_b32 s36, s28, 2')
    a('s_add_u32 s36, s36, s3')
    a('s_lshl_b32 s36, s36, 16')
    a('s_sub_u32 s35, 31, s29')
    a('s_lshl_b32 s35, s35, 7')
    a('s_add_u32 s35, s35, s36')
    a('s_waitcnt lgkmcnt(0)')
    a('s_mul_i32 s50, s50, 1664525')
    a('s_add_u32 s50, s50, 1013904223')
    a('v_mov_b32 v20, s50')
    a('s_getreg_b32 s100, hwreg(HW_REG_XCC_ID, 0, 4)')
    if P.get('slow'): a('s_and_b32 s100, s29, 1')
    a('s_add_u32 s100, s100, s50')
    a('s_add_u32 s100, s100, 1')
    a('s_cmp_lg_u32 s3, 0')
    a('s_cbranch_scc1 L_noid')
    a('v_mov_b32 v22, s100')
    a('s_lshl_b32 s36, s29, 2')
    a(f'buffer_store_dword v22, v21, s[52:55], s36 offen offset:{XID} sc1')
    a.label('L_noid')
    stamp('pre')
    vm.need(tsh)
    lo(a, 52, 48); hi(a, 54, 48, 40); lo(a, 56, 49); hi(a, 58, 49, 40)
    lo(a, 53, 50); hi(a, 55, 50, 40); lo(a, 57, 51); hi(a, 59, 51, 40)
    vm.need(tk[0])
    stamp('kv0')
    for q in range(3):
        lo(a, 60+2*q, 24+q); hi(a, 61+2*q, 24+q, 40)
    for r in range(8):
        vm.need(tk[r])
        lo(a, 66+2*r, 27+r); hi(a, 67+2*r, 27+r, 40)
        lo(a, 84+2*r, 36+r); hi(a, 85+2*r, 36+r, 40)
        d = 102+2*r
        a(f'v_pk_mul_f32 v[{d}:{d+1}], v[{60+2*r}:{61+2*r}], v[58:59]')
        a(f'v_pk_fma_f32 v[{d}:{d+1}], v[{62+2*r}:{63+2*r}], v[56:57], v[{d}:{d+1}]')
        a(f'v_pk_fma_f32 v[{d}:{d+1}], v[{64+2*r}:{65+2*r}], v[54:55], v[{d}:{d+1}]')
        a(f'v_pk_fma_f32 v[{d}:{d+1}], v[{66+2*r}:{67+2*r}], v[52:53], v[{d}:{d+1}]')
        a(f'v_pk_mul_f32 v[{d}:{d+1}], v[{d}:{d+1}], v[{84+2*r}:{85+2*r}]')
    stamp('kvN')
    for c in range(2):
        for jj in range(4):
            a(f'v_cvt_pk_bf16_f32 v{24+4*c+jj}, v{102+2*(7-2*jj)+c}, v{102+2*(6-2*jj)+c}')
        a(f'ds_write_b128 v120, v[{24+4*c}:{27+4*c}] offset:{128*c}')
    a('s_waitcnt lgkmcnt(0)')
    a('s_barrier')
    stamp('abar')
    for j in range(2): a(f'ds_read_b128 v[{104+4*j}:{107+4*j}], v{124+j} offset:{1024*j}')
    a('s_mov_b32 s24, s35')
    a('s_add_u32 s25, s35, 0x8000')
    ustores = [f'buffer_store_dwordx4 v[{104+4*j}:{107+4*j}], v13, s[16:19], s{24+j} offen' for j in range(2)]
    for j in range(2):
        a(f's_waitcnt lgkmcnt({1-j})')
        tus = vm.issue(ustores[j])
    a('s_load_dwordx2 s[44:45], s[0:1], 0')
    a('s_load_dwordx2 s[94:95], s[0:1], 80')
    a('s_load_dwordx2 s[96:97], s[0:1], 88')
    a('s_lshl_b32 s7, s3, 7')
    a('s_lshl_b32 s36, s29, 2')
    a('s_add_u32 s7, s7, s36')
    a('v_mov_b32 v123, s100')
    stamp('utst')
    for i in range(4): a(f'v_mov_b32 v{40+i}, 0')
    a(f'v_add_u32 v14, {CB}, v14')
    a('v_cmp_gt_u32 vcc, 32, v0')
    a('s_and_saveexec_b64 s[36:37], vcc')
    a('s_cbranch_execz L_nz')
    a('ds_write_b128 v14, v[40:43]')
    a(f'ds_write_b128 v14, v[40:43] offset:{CHS}')
    a('v_cmp_gt_u32 vcc, 2, v0')
    a('s_and_b64 exec, exec, vcc')
    for c in range(2):
        a(f'ds_write_b128 v14, v[40:43] offset:{c*CHS+U0+4096}')
        a(f'ds_write_b128 v14, v[40:43] offset:{c*CHS+U1+4096}')
    a.label('L_nz')
    a('s_mov_b64 exec, s[36:37]')
    a('v_cmp_eq_u32 s[36:37], 0, v0')
    a('s_lshl_b32 s4, s34, 16')
    a('s_and_b32 s5, s34, 0xffff0000')
    a('s_mov_b32 s6, 0xffff')
    vm.need(tsk)
    stamp('skok')
    for c in range(2):
        kx = 146+4*c
        lo(a, 44, kx)
        a(f'v_add_f32 v44, s{4+c}, v44')
        a('v_cvt_pk_bf16_f32 v44, v44, v44')
        a(f'v_bfi_b32 v44, s6, v44, v{kx}')
        a(f'v_cndmask_b32 v{kx}, v{kx}, v44, s[36:37]')
        a(f'ds_write_b128 v14, v[{kx}:{kx+3}] offset:{c*CHS+KB}')
    vm.need(tus)
    vm.issue(f'buffer_store_dword v123, v21, s[52:55], s7 offen offset:{UH}')
    a('v_and_b32 v120, 31, v1')
    a('v_lshlrev_b32 v120, 2, v120')
    a('s_lshr_b32 s5, s29, 3')
    a('s_lshl_b32 s5, s5, 7')
    hloads = [f'buffer_load_dword v121, v120, s[52:55], 0 offen offset:{XID} sc1', f'buffer_load_dword v124, v120, s[52:55], s5 offen offset:{UH} sc1']
    for l in hloads: tu = vm.issue(l)
    a('v_lshrrev_b32 v4, 1, v6')
    a('v_lshlrev_b32 v4, 11, v4')
    a('v_lshl_add_u32 v4, v16, 6, v4')
    a('v_lshrrev_b32 v5, 5, v1')
    a('v_lshl_add_u32 v4, v5, 5, v4')
    a('v_bfe_u32 v5, v1, 4, 1')
    a('v_lshl_add_u32 v244, v5, 4, v4')
    a('s_lshl_b32 s35, s32, 13')
    a('s_add_u32 s34, s35, 0x1000')
    a('v_lshlrev_b32 v125, 4, v0')
    a('s_lshr_b32 s36, s3, 1')
    a(f's_mul_i32 s36, s36, {CHS}')
    a('s_xor_b32 s38, s39, 1')
    a('s_lshl_b32 s38, s38, 6')
    a('s_add_u32 s36, s36, s38')
    a(f's_add_u32 s36, s36, {CB}')
    a('v_and_b32 v3, 15, v0')
    a('v_bfe_u32 v4, v0, 4, 2')
    a('v_lshlrev_b32 v5, 4, v4')
    a('v_lshl_add_u32 v22, v3, 5, v5')
    a(f's_add_u32 s38, s36, {KB-480}')
    a('v_add_u32 v22, s38, v22')
    a('v_and_b32 v23, 14, v3')
    a('v_lshlrev_b32 v23, 1, v23')
    a('v_sub_u32 v23, v5, v23')
    a(f'v_mul_u32_u24 v5, {U1-U0}, v16')
    a('v_sub_u32 v23, v23, v5')
    a(f's_add_u32 s38, s36, {U1+28}')
    a('v_add_u32 v16, s38, v23')
    for i in range(1, 4): a(f'v_add_u32 v{16+i}, {1024*i}, v16')
    a('v_bfe_u32 v5, v3, 1, 2')
    a('v_xor_b32 v5, v5, v4')
    a('v_lshl_add_u32 v5, v3, 2, v5')
    a('s_lshl_b32 s38, s3, 13')
    a(f's_add_u32 s38, s38, {PB}')
    a('v_lshl_add_u32 v23, v5, 4, s38')
    a(f's_mov_b32 s51, {SPIN}')
    a('s_mov_b32 s101, 0')
    vm.need(tu)
    stamp('ut1st')
    a('s_branch L_uh_chk')
    a.label('L_uh')
    for l in hloads: a(l)
    a('s_waitcnt vmcnt(0)')
    a.label('L_uh_chk')
    a('v_subrev_u32 v122, s50, v121')
    a('v_subrev_u32 v122, 1, v122')
    a('v_cmp_lt_u32 vcc, 15, v122')
    a('v_cmp_ne_u32 s[92:93], s100, v121')
    a('s_sub_u32 s51, s51, 1')
    a('s_cbranch_scc1 L_uh_ok')
    a('s_cbranch_vccnz L_uh')
    a('s_cmp_eq_u64 s[92:93], 0')
    a('s_cbranch_scc1 L_uh_same')
    a('s_cmp_lg_u32 s101, 0')
    a('s_cbranch_scc1 L_uh_same')
    a('s_mov_b32 s101, 1')
    for l in ustores: a(l + ' sc1')
    a('s_waitcnt vmcnt(0)')
    a(f'buffer_store_dword v20, v21, s[52:55], s7 offen offset:{UH} sc1')
    a.label('L_uh_same')
    a('v_cmp_ne_u32 vcc, s50, v124')
    a('v_cmp_ne_u32 s[92:93], s100, v124')
    a('s_nop 0')
    a('s_and_b64 vcc, vcc, s[92:93]')
    a('s_cbranch_vccnz L_uh')
    a.label('L_uh_ok')
    raw(6, 's51')
    stamp('uhok')
    tu = []
    for c in range(2):
        vm.issue(f'buffer_load_dwordx4 v[{72+4*c}:{75+4*c}], v125, s[16:19], s{35-c} offen sc1')
        tu.append(vm.issue(f'buffer_load_dword v{80+c}, v125, s[16:19], s{35-c} offen offset:16 sc1'))
    a('s_waitcnt lgkmcnt(0)')
    base(a, 12, 94, 1024)
    a('s_lshl_b32 s36, s47, 6')
    tc = vm.issue('buffer_load_dwordx2 v[240:241], v243, s[12:15], s36 offen')
    base(a, 12, 96, 512*6144)
    a('s_cmp_lt_u32 s29, 24')
    a('s_cselect_b32 s14, s14, 0')
    a('s_lshr_b32 s36, s46, 2')
    a('s_lshl_b32 s36, s36, 7')
    a(f's_mul_i32 s37, s47, {32*6144}')
    a('s_add_u32 s36, s36, s37')
    twm = []
    for r in range(4):
        twm.append(vm.issue(f'buffer_load_dwordx4 v[{24+4*r}:{27+4*r}], v242, s[12:15], s36 offen' + NT))
        if r < 3: a('s_add_u32 s36, s36, 0x1800')
    base(a, 12, 44, 0x200000)
    vm.issue('buffer_load_dwordx4 v[232:235], v15, s[12:15], s33 offen' + NT)
    tx = vm.issue('buffer_load_dwordx4 v[236:239], v15, s[12:15], s33 offen offset:1024' + NT)
    for _ in range(P.get('e0b', 6)): early.popleft()()
    if P.get('tlb', 0) == 2:
        a('s_cmp_eq_u32 s3, 3')
        a('s_cselect_b32 s37, 0, 0x70000000')
        a('v_lshl_add_u32 v4, v1, 20, s37')
        base(a, 12, 56, 0x200000)
        vm.issue('buffer_load_dword v245, v4, s[16:19], 0 offen')
        vm.issue('buffer_load_dword v246, v4, s[8:11], 0 offen')
        vm.issue('buffer_load_dword v247, v4, s[12:15], 0 offen')
    a('s_movk_i32 s36, 0xff')
    a('v_cmp_ne_u32 vcc, s36, v0')
    for c in range(2):
        u = 72+4*c
        vm.need(tu[c])
        if c == 0: stamp('utok')
        a(f'v_cndmask_b32 v{80+c}, 0, v{80+c}, vcc')
        a(f'ds_write_b128 v14, v[{u}:{u+3}] offset:{c*CHS+U0}')
        for j in range(3): a(f'v_alignbit_b32 v{40+4*c+j}, v{u+j+1}, v{u+j}, 16')
        a(f'v_alignbit_b32 v{43+4*c}, v{80+c}, v{u+3}, 16')
        a(f'ds_write_b128 v14, v[{40+4*c}:{43+4*c}] offset:{c*CHS+U1}')
    a('s_waitcnt lgkmcnt(0)')
    a('s_barrier')
    stamp('bbar')
    st1 = deque()
    T0, T1, AC = 200, 208, 216
    st1.append(('wait', tc))
    st1.extend([f'v_lshlrev_b32 v{T0}, 16, v240', f'v_and_b32 v{T0+1}, s40, v240', f'v_lshlrev_b32 v{T0+2}, 16, v241', f'v_and_b32 v{T0+3}, s40, v241'])
    st1.extend(f'v_mul_f32 v{T0+4+r}, {fh(-1.4426950408889634)}, v{T0+r}' for r in range(4))
    st1.extend(f'v_exp_f32 v{T0+4+r}, v{T0+4+r}' for r in range(4))
    st1.extend(f'v_add_f32 v{T0+4+r}, 1.0, v{T0+4+r}' for r in range(4))
    st1.extend(f'v_rcp_f32 v{T0+4+r}, v{T0+4+r}' for r in range(4))
    st1.extend(f'v_mul_f32 v{T0+r}, v{T0+r}, v{T0+4+r}' for r in range(4))
    st1.extend([f'v_cvt_pk_bf16_f32 v240, v{T0}, v{T0+1}', f'v_cvt_pk_bf16_f32 v241, v{T0+2}, v{T0+3}'])
    st1.extend([f'v_lshlrev_b32 v{T0}, 16, v240', f'v_and_b32 v{T0+1}, s40, v240', f'v_lshlrev_b32 v{T0+2}, 16, v241', f'v_and_b32 v{T0+3}, s40, v241'])
    for r in range(4):
        st1.append(('wait', twm[r]))
        for j in range(4):
            st1.extend([f'v_lshlrev_b32 v{T1+2*j}, 16, v{24+4*r+j}', f'v_and_b32 v{T1+2*j+1}, s40, v{24+4*r+j}'])
        st1.extend((f'v_mul_f32 v{AC+j}, v{T1+j}, v{T0}' if r == 0 else f'v_fmac_f32 v{AC+j}, v{T1+j}, v{T0+r}') for j in range(8))
    st1.extend(f'v_permlane32_swap_b32 v{AC+j}, v{AC+4+j}' for j in range(4))
    st1.extend(f'v_add_f32 v{AC+j}, v{AC+j}, v{AC+4+j}' for j in range(4))
    st1.extend([f'v_mov_b32 v{T0+2}, s50', f'v_mov_b32 v{T0+3}, s50'])
    st1.extend(f'v_permlane16_swap_b32 v{AC+j}, v{AC+2+j}' for j in range(2))
    st1.extend(f'v_add_f32 v{T0+j}, v{AC+j}, v{AC+2+j}' for j in range(2))
    st1.extend(['s_nop 0'] + [f'v_add_f32_dpp v{T0+j}, v{T0+j}, v{T0+j} row_ror:8 row_mask:0xf bank_mask:0xf' for j in range(2)])
    def st1_step(credit):
        while st1 and credit > 0:
            x = st1.popleft()
            if isinstance(x, tuple): vm.need(x[1])
            else: a(x); credit -= cost(x)
    a('s_lshr_b32 s5, s46, 2')
    a('s_lshl_b32 s5, s5, 13')
    a('s_lshl_b32 s36, s47, 7')
    a('s_add_u32 s5, s5, s36')
    a(f's_add_u32 s5, s5, {hex(MP)}')
    a('s_lshl_b32 s6, s46, 11')
    a(f's_add_u32 s6, s6, {hex(MP)}')
    a('s_cmp_lt_u32 s29, 24')
    a(f's_cselect_b32 s5, s5, {hex(TS)}')
    a(f's_cselect_b32 s7, s3, 1')
    ploads = [f'buffer_load_dwordx4 v[{104+4*j}:{107+4*j}], v15, s[16:19], s6 offen offset:{1024*j} sc1' for j in range(2)]
    tmi = []
    def mod_issue():
        a('s_cmp_lg_u32 s7, 0')
        a('s_cbranch_scc1 L_nomi')
        for l in ploads: a(l)
        a.label('L_nomi')
        tmi.append(vm.issued)
    def mod_final():
        a('s_cmp_lg_u32 s7, 0')
        a('s_cbranch_scc1 L_nomod')
        done = vm.done
        a(f's_waitcnt vmcnt({vm.issued - tmi[0]})')
        poll('mp', ploads, [106, 110], pre=0)
        vm.done = done
        a('v_pk_add_f32 v[104:105], v[104:105], v[108:109]')
        a('s_lshr_b32 s36, s46, 5')
        a('s_cmp_eq_u32 s36, 1')
        for j in range(2): a(f'v_add_f32_dpp v{104+j}, v{104+j}, v{104+j} row_ror:8 row_mask:0xf bank_mask:0xf')
        a('s_cselect_b32 s38, 1.0, 0')
        a('s_cmp_eq_u32 s36, 4')
        for op in ('v_permlane16_swap_b32', 'v_permlane32_swap_b32'):
            for j in range(2): a(f'v_mov_b32 v{106+j}, v{104+j}')
            for j in range(2): a(f'{op} v{104+j}, v{106+j}')
            a('v_pk_add_f32 v[104:105], v[104:105], v[106:107]')
        a('s_cselect_b32 s38, 1.0, s38')
        a('s_lshl_b32 s36, s46, 6')
        a('v_cvt_pk_bf16_f32 v106, v104, v105')
        a(f's_add_u32 s36, s36, {hex(MODT)}')
        lo(a, 104, 106); hi(a, 105, 106, 40)
        for j in range(2): a(f'v_add_f32 v{104+j}, s38, v{104+j}')
        a('v_cvt_pk_bf16_f32 v108, v104, v105')
        a('v_mov_b32 v110, s50')
        a('v_mov_b32 v111, s50')
        a('v_mov_b32_dpp v109, v108 quad_perm:[1,1,3,3] row_mask:0xf bank_mask:0xf')
        a('v_lshlrev_b32 v104, 3, v1')
        a('s_mov_b64 exec, 0x55')
        a('buffer_store_dwordx4 v[108:111], v104, s[16:19], s36 offen sc1')
        a('s_mov_b64 exec, -1')
        a.label('L_nomod')
    ACC, AR, BR = 40, 72, 104
    pipe = LdsPipe(a)
    reads = []
    for i in range(32):
        o = 32*((31-i) & 7); b = 16 + ((31-i) >> 3); d = AR + 4*(i & 7)
        reads.append((('A', i, 0), f'ds_read2_b32 v[{d}:{d+1}], v{b} offset0:{o} offset1:{o+1}'))
        reads.append((('A', i, 1), f'ds_read2_b32 v[{d+2}:{d+3}], v{b} offset0:{o+2} offset1:{o+3}'))
        if i < 4:
            for t in range(8):
                j = 4*t+3-i
                reads.append((('B', j), f'ds_read_b128 v[{BR+4*j}:{BR+4*j+3}], v22 offset:{128*j}'))
    tok = {}; nxt = [0]
    def pump(cur_step, maxn):
        n = 0
        while n < maxn and nxt[0] < len(reads) and pipe.outstanding() < 13:
            key, line = reads[nxt[0]]
            if key[0] == 'A' and key[1] >= cur_step + 8: break
            tok[key] = pipe.issue(line); nxt[0] += 1; n += 1
    pump(0, 12)
    pending = []; nm = 0
    NB = P.get('e1', 6); EV = P.get('ev', 6)
    for i in range(32):
        for t in range(i >> 2, 8):
            j = 4*t+3-i
            while ('B', j) not in tok or ('A', i, 1) not in tok:
                pipe.need(pipe.done + 2); pump(i, 2)
            pipe.need(max(tok[('A', i, 1)], tok[('B', j)]))
            d = ACC+4*t; c = '0' if i == 0 else f'v[{d}:{d+3}]'
            s = AR+4*(i & 7)
            a(f'v_mfma_f32_16x16x32_bf16 v[{d}:{d+3}], v[{s}:{s+3}], v[{BR+4*j}:{BR+4*j+3}], {c}')
            pump(i, 2 if i < 4 else 1)
            nm += 1
            if nm >= P.get('e1s', 90) and nm % EV == 0 and NB > 0 and early:
                early.popleft()(); NB -= 1
            if i >= P.get('s1', 14): st1_step(2)
        if pending and pipe.outstanding() < 14:
            t = pending.pop()
            pipe.issue(f'ds_write_b128 v23, v[{ACC+4*t}:{ACC+4*t+3}] offset:{1024*t}')
        if (i & 3) == 3: pending.append(i >> 2)
    for t in pending:
        pipe.issue(f'ds_write_b128 v23, v[{ACC+4*t}:{ACC+4*t+3}] offset:{1024*t}')
    st1_step(1000)
    lstore([f'buffer_store_dwordx4 v[{T0}:{T0+3}], v244, s[16:19], s5 offen'])
    stamp('bend')
    a('v_lshlrev_b32 v4, 3, v0')
    a(f'v_add_u32 v4, {PRM}, v4')
    a('v_lshrrev_b32 v2, 1, v0')
    a('v_bfe_u32 v3, v0, 4, 2')
    a('v_xor_b32 v2, v2, v3')
    a('v_lshlrev_b32 v2, 4, v2')
    a('v_and_b32 v3, 1, v0')
    a('v_lshl_add_u32 v2, v3, 3, v2')
    a(f'v_add_u32 v2, {PB}, v2')
    a('v_lshlrev_b32 v3, 4, v0')
    a('v_and_b32 v5, 3, v0')
    a(f's_mul_i32 s38, s32, {YP}')
    a(f's_add_u32 s38, s38, {hex(YT)}')
    a(f'v_add_u32 v13, {PRM}, v15')
    a('s_and_b32 s36, s32, 7')
    a('s_lshl_b32 s36, s36, 1')
    a('s_and_b32 s37, s3, 1')
    a('s_or_b32 s36, s36, s37')
    a('s_lshl_b32 s36, s36, 6')
    a(f's_add_u32 s36, s36, {PRM+5120}')
    a('v_lshrrev_b32 v14, 5, v1')
    a('v_lshl_add_u32 v14, v14, 4, s36')
    a('s_waitcnt lgkmcnt(0)')
    a('s_barrier')
    stamp('pbar')
    for j in range(4):
        for w in range(4):
            a(f'ds_read_b64 v[{72+8*j+2*w}:{73+8*j+2*w}], v2 offset:{8192*w+2048*j}')
        if j == 2: a('s_waitcnt lgkmcnt(8)')
    mod_issue()
    for j in range(4):
        b = 72+8*j; q = 24+4*j
        if j: a(f's_waitcnt lgkmcnt({12-4*j})')
        a(f'v_pk_add_f32 v[{b}:{b+1}], v[{b}:{b+1}], v[{b+2}:{b+3}]')
        a(f'v_pk_add_f32 v[{b+4}:{b+5}], v[{b+4}:{b+5}], v[{b+6}:{b+7}]')
        a(f'v_mov_b32 v{q+2}, s50')
        a(f'v_mov_b32 v{q+3}, s50')
        a(f'v_cvt_pk_bf16_f32 v{q}, v{b}, v{b+4}')
        a(f'v_cvt_pk_bf16_f32 v{q+1}, v{b+1}, v{b+5}')
        tys = vm.issue(f'buffer_store_dwordx4 v[{q}:{q+3}], v3, s[16:19], s38 offen sc1')
        if j < 3: a('s_add_u32 s38, s38, 0x1000')
    stamp('ytst')
    a('v_mov_b32 v22, v4')
    a('v_mov_b32 v23, v14')
    mod_final(); raw(7, 's51')
    if P.get('mbar', 1): a('s_barrier')
    for _ in range(P.get('e2', 12)): early.popleft()()
    a('s_lshl_b32 s35, s3, 10')
    a(f's_add_u32 s35, s35, {hex(MODT)}')
    a('s_add_u32 s34, s35, 0x1000')
    a('s_add_u32 s4, s35, 0x2000')
    mloads = [f'buffer_load_dwordx4 v[{104+4*r}:{107+4*r}], v15, s[16:19], s{(35, 34, 4)[r]} offen sc1' for r in range(3)]
    a('v_lshrrev_b32 v4, 2, v0')
    a(f'v_mul_u32_u24 v3, {2*YS}, v5')
    a('v_lshl_add_u32 v3, v4, 2, v3')
    a(f'v_add_u32 v3, {XG}, v3')
    a(f's_mul_i32 s46, s3, {2*YS}')
    a(f's_add_u32 s46, s46, {XG}')
    a('v_add_u32 v4, s46, v15')
    a('s_lshl_b32 s46, s3, 1')
    a('v_xor_b32 v5, s46, v6')
    a('v_lshlrev_b32 v5, 4, v5')
    a('v_lshl_add_u32 v5, v1, 7, v5')
    a(f'v_add_u32 v5, {XH}, v5')
    a('v_xor_b32 v16, 16, v5')
    a('v_lshrrev_b32 v17, 3, v1')
    a('v_xor_b32 v18, v17, v6')
    a('v_lshlrev_b32 v18, 4, v18')
    a('v_lshl_add_u32 v18, v17, 7, v18')
    a('s_lshl_b32 s46, s3, 11')
    a(f's_add_u32 s46, s46, {XH}')
    a('v_add_u32 v18, s46, v18')
    a('v_lshlrev_b32 v17, 9, v17')
    a('v_lshl_add_u32 v17, v6, 4, v17')
    a('s_lshr_b32 s46, s32, 2')
    a('s_lshl_b32 s46, s46, 15')
    a('s_and_b32 s47, s32, 3')
    a('s_lshl_b32 s47, s47, 7')
    a('s_add_u32 s46, s46, s47')
    a('s_lshl_b32 s47, s3, 13')
    a('s_add_u32 s46, s46, s47')
    a(f's_add_u32 s46, s46, {hex(H2)}')
    a('s_add_u32 s47, s46, 0x1000')
    a(f's_add_u32 s37, s33, {hex(X1)}')
    a('v_lshrrev_b32 v14, 2, v0')
    a(f'v_mul_u32_u24 v14, {YP}, v14')
    a('v_and_b32 v19, 3, v0')
    a('v_lshl_add_u32 v14, v19, 4, v14')
    a('s_lshl_b32 s24, s32, 6')
    a(f's_add_u32 s26, s24, {hex(YT)}')
    a(f's_add_u32 s27, s26, {64*YP}')
    a(f's_add_u32 s5, s26, {128*YP}')
    a(f's_add_u32 s6, s26, {192*YP}')
    X = (64, 160)
    vm.need(tx)
    subs = []
    for t in range(2):
        s = Asm(); unpack8(s, X[t], 232+4*t, 40); ln_stats(s, X[t], X[t]+8, X[t]+16, 24+t)
        for p in range(4):
            s(f'v_pk_mul_f32 v[{X[t]+8+2*p}:{X[t]+9+2*p}], v[{X[t]+8+2*p}:{X[t]+9+2*p}], v[{X[t]+16}:{X[t]+17}] op_sel:[0,0] op_sel_hi:[1,0]')
        subs.append(s)
    zipl(a, *subs)
    stamp('ln1')
    yloads = [f'buffer_load_dwordx4 v[{24+4*j}:{27+4*j}], v14, s[16:19], s{(26, 27, 5, 6)[j]} offen sc1' for j in range(4)]
    vm.need(tys)
    stamp('ytack')
    for l in yloads: ty = vm.issue(l)
    for l in mloads: tm = vm.issue(l)
    poll('yt', yloads, [26, 30, 34, 38], pre=ty)
    stamp('ytok'); raw(2, 's51')
    for j in range(4):
        a(f'ds_write_b32 v3, v{24+4*j} offset:{256*j}')
        a(f'ds_write_b32 v3, v{25+4*j} offset:{256*j+YS}')
    poll('md', mloads, [106, 110, 114], pre=tm)
    stamp('mdok'); raw(1, 's51')
    for r in range(3): a(f'ds_write_b64 v22, v[{104+4*r}:{105+4*r}] offset:{2048*r}')
    a('s_waitcnt lgkmcnt(0)')
    a('s_barrier')
    stamp('ybar')
    for i, off in enumerate((1024, 0, 2048)):
        a(f'ds_read_b128 v[{40+4*i}:{43+4*i}], v13 offset:{off}')
    a('ds_read_b128 v[24:27], v4')
    a(f'ds_read_b128 v[28:31], v4 offset:{YS}')
    for i, off in enumerate((4096, 3072)):
        a(f'ds_read_b128 v[{52+4*i}:{55+4*i}], v13 offset:{off}')
    a('ds_read_b128 v[124:127], v23')
    a('ds_read_b128 v[116:119], v23 offset:32')
    a('s_waitcnt lgkmcnt(7)')
    unpack8(a, 128, 40, 40); unpack8(a, 136, 44, 40)
    for t in range(2):
        for p in range(4):
            d = X[t]+8+2*p
            a(f'v_pk_fma_f32 v[{d}:{d+1}], v[{d}:{d+1}], v[{128+2*p}:{129+2*p}], v[{136+2*p}:{137+2*p}]')
    a('s_waitcnt lgkmcnt(6)')
    unpack8(a, 144, 48, 40)
    for t in range(2):
        for p in range(4):
            d = X[t]+8+2*p
            a(f'v_pk_mul_f32 v[{d}:{d+1}], v[{d}:{d+1}], v[{144+2*p}:{145+2*p}]')
    a('s_waitcnt lgkmcnt(0)')
    unpack8(a, 128, 52, 40); unpack8(a, 136, 56, 40)
    subs = []
    for t in range(2):
        s = Asm(); x = X[t]
        unpack8(s, x+20, 24+4*t, 40)
        for p in range(4):
            s(f'v_pk_fma_f32 v[{x+2*p}:{x+2*p+1}], v[{x+8+2*p}:{x+9+2*p}], v[{x+20+2*p}:{x+21+2*p}], v[{x+2*p}:{x+2*p+1}]')
        for j in range(4): s(f'v_cvt_pk_bf16_f32 v{32+4*t+j}, v{x+2*j}, v{x+2*j+1}')
        s(f'buffer_store_dwordx4 v[{32+4*t}:{35+4*t}], v15, s[16:19], s37 offen offset:{1024*t} sc1')
        unpack8(s, x, 32+4*t, 40)
        ln_stats(s, x, x+8, x+16, 24+t)
        for p in range(4):
            s(f'v_pk_mul_f32 v[{x+8+2*p}:{x+9+2*p}], v[{x+8+2*p}:{x+9+2*p}], v[{x+16}:{x+17}] op_sel:[0,0] op_sel_hi:[1,0]')
        for p in range(4):
            s(f'v_pk_fma_f32 v[{x+8+2*p}:{x+9+2*p}], v[{x+8+2*p}:{x+9+2*p}], v[{128+2*p}:{129+2*p}], v[{136+2*p}:{137+2*p}]')
        for j in range(4): s(f'v_cvt_pk_bf16_f32 v{40+4*t+j}, v{x+8+2*j}, v{x+9+2*j}')
        s(f'ds_write_b128 v{(5, 16)[t]}, v[{40+4*t}:{43+4*t}]')
        subs.append(s)
    zipl(a, *subs)
    vm.issued += 2
    a('s_waitcnt lgkmcnt(0)')
    a('s_barrier')
    stamp('hbar')
    a('ds_read_b128 v[24:27], v18')
    a('ds_read_b128 v[28:31], v18 offset:1024')
    a('s_and_b32 s24, s32, 31')
    a('s_lshl_b32 s24, s24, 4')
    a('s_lshl_b32 s25, s3, 2')
    a('s_add_u32 s33, s24, s25')
    a('s_and_b32 s25, s30, 1')
    a('s_lshl_b32 s25, s25, 8')
    a('s_lshl_b32 s26, s3, 6')
    a('s_add_u32 s25, s25, s26')
    a('v_and_b32 v19, 15, v1')
    a('v_lshlrev_b32 v19, 2, v19')
    a('s_waitcnt lgkmcnt(0)')
    lstore(['buffer_store_dwordx4 v[24:27], v17, s[16:19], s46 offen', 'buffer_store_dwordx4 v[28:31], v17, s[16:19], s47 offen'])
    stamp('h2st')
    a('v_bfe_u32 v4, v1, 4, 1')
    a('v_lshrrev_b32 v5, 5, v1')
    a('v_bfe_u32 v22, v1, 2, 2')
    a('v_and_b32 v23, 3, v1')
    a('v_lshlrev_b32 v23, 3, v23')
    a('v_lshl_add_u32 v3, v5, 3, v22')
    a('v_bfe_u32 v13, v1, 3, 1')
    a('v_lshlrev_b32 v16, 7, v3')
    a('v_add_u32 v16, v16, v23')
    a('v_lshl_add_u32 v16, v13, 6, v16')
    a('v_lshl_add_u32 v16, v4, 5, v16')
    a(f'v_mul_u32_u24 v17, {SEG[0][2]-SEG[0][1]}, v4')
    a(f'v_add_u32 v17, {SEG[0][1]}, v17')
    a(f'v_mul_u32_u24 v18, {P1U}, v4')
    for ct in range(4):
        a(f'v_xor_b32 v14, {32*ct}, v16')
        a(f'v_add_u32 v{246+ct}, v14, v17')
        a(f'v_add_u32 v{120+ct}, v14, v18')
    a('v_mul_u32_u24 v3, 0x60, v3')
    a('v_add_u32 v3, v3, v23')
    a('v_add_u32 v18, v18, v3')
    a('v_lshl_add_u32 v3, v5, 2, v22')
    a('v_lshlrev_b32 v3, 7, v3')
    a('v_lshl_add_u32 v3, v13, 6, v3')
    a('v_lshl_add_u32 v3, v4, 5, v3')
    a('v_add_u32 v3, v3, v23')
    a('s_lshl_b32 s26, s3, 11')
    a('v_add_u32 v240, s26, v3')
    a('v_xor_b32 v241, 64, v240')
    for i in range(1, 3):
        a(f'v_add_u32 v{240+2*i}, {65536*i}, v240')
        a(f'v_add_u32 v{241+2*i}, {65536*i}, v241')
    a(f's_mov_b32 s44, {fh(GC2)}'); a(f's_mov_b32 s45, {fh(GC2)}')
    a(f'v_mov_b32 v2, {fh(GC1)}'); a(f'v_mov_b32 v3, {fh(GC1)}')
    a('s_lshl_b32 s27, s30, 2')
    a('s_add_u32 s27, s27, s3')
    a('s_lshl_b32 s28, s27, 15')
    a(f's_add_u32 s28, s28, {hex(H2)}')
    a('v_add_u32 v14, s28, v15')
    a('s_lshl_b32 s28, s98, 12')
    a('s_waitcnt vmcnt(0)'); vm.done = vm.issued
    stamp('h2dr')
    lstore([f'buffer_store_dword v20, v21, s[52:55], s33 offen offset:{F1}'])
    while early: early.popleft()()
    a(f's_add_u32 s99, s48, {512*3584}')
    a(f's_mul_i32 s36, s98, {64*3584}')
    a('s_add_u32 s48, s48, s36')
    ptok = {}
    def p2dma(k):
        k0, gb, ub = seg_of(k)
        a(f's_add_u32 m0, {"s49" if k < 15 else "s43"}, {gb + 2048*(k-k0)}')
        if k and k % 4: a(f's_add_u32 s48, s48, {16*3584}')
        elif k: step('s48', 16*3584, 's99', 512*3584)
        ptok[k] = vm.issue('buffer_load_dwordx4 v7, s[20:23], s48 offen lds')
    NS0 = P.get('ns0', 0)
    for k in range(NS0): p2dma(k)
    a('s_mul_i32 s29, s27, 112')
    a('s_lshl_b32 s47, s3, 4')
    a('s_add_u32 s47, s47, s31')
    a(f's_mul_i32 s47, s47, {4*YP}')
    a('s_lshl_b32 s4, s30, 10')
    a(f's_add_u32 s4, s4, {hex(YT)}')
    a('s_add_u32 s47, s47, s4')
    a('s_mul_i32 s46, s31, 3')
    a('s_add_u32 s46, s46, s29')
    a('s_lshl_b32 s46, s46, 10')
    a(f's_add_u32 s46, s46, {hex(ACT + 64*1024)}')
    a('s_lshr_b32 s39, s32, 3')
    a('s_and_b32 s35, s39, 1')
    a('s_and_b32 s34, s39, 3')
    a('s_and_b32 s24, s32, 7')
    a('s_lshl_b32 s24, s24, 7')
    a(f's_mul_i32 s37, s3, {192*1024}')
    a('s_add_u32 s37, s37, s24')
    a(f's_add_u32 s30, s37, {1024*1024 + 12*16384}')
    a(f's_mul_i32 s36, s34, {3*16384}')
    a('s_add_u32 s37, s37, s36')
    a(f's_add_u32 s37, s37, {1024*1024}')
    a('s_lshl_b32 s38, s3, 18')
    a('s_add_u32 s38, s38, s24')
    a(f's_add_u32 s31, s38, {16*16384}')
    a('s_lshl_b32 s36, s34, 16')
    a('s_add_u32 s38, s38, s36')
    a('s_lshl_b32 s6, s35, 3')
    a('s_add_u32 s6, s6, s3')
    a(f's_mul_i32 s6, s6, {16*YP}')
    a('s_add_u32 s6, s6, s4')
    a(f's_add_u32 s42, s6, {16*YP}')
    a(f's_mul_i32 s36, s34, {4*YP}')
    a('s_add_u32 s6, s6, s36')
    a(f's_mul_i32 s4, s39, {224*1024}')
    a(f's_mul_i32 s5, s3, {12*1024}')
    a('s_add_u32 s5, s5, s4')
    a(f's_add_u32 s5, s5, {hex(ACT + 64*1024)}')
    a(f's_add_u32 s41, s5, {12*1024}')
    a(f's_mul_i32 s36, s34, {3*1024}')
    a('s_add_u32 s5, s5, s36')
    a('s_lshl_b32 s39, s39, 16')
    a('s_add_u32 s39, s39, s24')
    a('v_bfe_u32 v4, v1, 1, 2')
    a('v_and_b32 v5, 1, v1')
    a('v_lshlrev_b32 v5, 2, v5')
    a('v_lshl_add_u32 v4, v4, 4, v5')
    a('s_lshl_b32 s35, s35, 3')
    a('v_add_u32 v13, s35, v4')
    a(f'v_add_u32 v16, {112*1024}, v15')
    a(f'v_add_u32 v17, {64*YP}, v15')
    a('v_lshlrev_b32 v73, 7, v1')
    a('s_lshl_b32 s34, s2, 2')
    a('s_add_u32 s34, s34, s3')
    a(f's_mul_i32 s34, s34, {14*128}')
    poll('f1', [f'buffer_load_dword v22, v19, s[52:55], s25 offen offset:{F1} sc1'], [22])
    stamp('f1ok'); raw(3, 's51')
    htok = {}
    def h2load(ks):
        htok[ks] = vm.issue(f'buffer_load_dwordx4 a[{4*ks}:{4*ks+3}], v14, s[16:19], s28 offen offset:{1024*(ks&3)} sc1')
        if (ks & 3) == 3:
            a('s_add_u32 s28, s28, 0x1000'); a('s_and_b32 s28, s28, 0x7fff')
    NH0 = P.get('nh0', 8)
    for ks in range(NH0): h2load(ks)
    a('s_barrier')
    stamp('b0')
    hq, pq, wq = deque(), deque(), deque()
    wtok = {}; m0ok = [False]
    def wdslot(i):
        s = i % 20
        so, lim, n, i0 = ('s37', 's30', 12, 0) if i < 12 else ('s38', 's31', 16, 12)
        def f0():
            a(f's_add_u32 m0, s26, {8192*WBL[s]}')
            vm.issue(f'buffer_load_dwordx4 v8, s[8:11], {so} offen lds')
        def f1():
            if pq or len(ptok) < 32: a(f's_add_u32 m0, s26, {8192*WBL[s]}')
            elif not m0ok[0]: a(f's_add_u32 m0, s26, {8192*WBL[s]}'); m0ok[0] = True
            wtok[i] = vm.issue(f'buffer_load_dwordx4 v9, s[8:11], {so} offen offset:1024 lds')
            if (i - i0 + 1) % (n // 4): a(f's_add_u32 {so}, {so}, 0x4000')
            else: step(so, 0x4000, lim, n*0x4000)
        return [f0, f1]
    for ks in range(NH0, 32): hq.append(lambda ks=ks: h2load(ks))
    for k in range(NS0, 15): pq.append(lambda k=k: p2dma(k))
    valu = deque()
    AR, NA = 24, 6
    ACC1, ACC2 = 192, 128
    pipe = LdsPipe(a)
    steps = [(0, k, ct) for k in range(32) for ct in range(3)] + [(1, k, ct) for k in range(32) for ct in range(4)]
    tok = {}; nxt = [0]
    def rd(n):
        ps, k, ct = steps[n]; d = AR + 4*(n % NA)
        for jj in range(2):
            if ps == 0: b, off = 18, (16*k + 4*jj)*96 + 32*ct
            else:
                k0, gb, ub = seg_of(k)
                b, off = (246+ct, 2048*k + 512*jj) if k < 15 else (120+ct, gb + 2048*(k-k0) + 512*jj)
            tok[n] = pipe.issue(f'ds_read_b64_tr_b16 v[{d+2*jj}:{d+2*jj+1}], v{b} offset:{off}')
    for n in range(NA-1): rd(n)
    nxt[0] = NA-1
    VB = P.get('vb', 25); PE = P.get('pe', 3); WE = P.get('we', 3)
    stok = {}; nw = 0; credit = 0; nb = 0; fload = [f'buffer_load_dword v22, v13, s[52:55], s25 offen offset:{F2} sc1']; tp = None
    for n, (ps, k, ct) in enumerate(steps):
        if ps == 0 and ct == 0:
            while k not in htok: hq.popleft()()
            vm.need(htok[k])
        pipe.need(tok[n])
        d = (ACC1, ACC2)[ps] + 16*ct; c = '0' if k == 0 else f'v[{d}:{d+15}]'
        sa = AR + 4*(n % NA)
        a(f'v_mfma_f32_32x32x16_bf16 v[{d}:{d+15}], v[{sa}:{sa+3}], a[{4*k}:{4*k+3}], {c}')
        if nxt[0] < len(steps): rd(nxt[0]); nxt[0] += 1
        if ct == (2, 3)[ps] and (ps, k) in BARS:
            land, free = BARS[(ps, k)]
            if land is not None:
                while land not in ptok: pq.popleft()()
                vm.need(ptok[land])
            a('s_barrier')
            nb += 1; stamp(f'b{nb}')
            if (ps, k) == (0, 15):
                for kk in range(15, 27): pq.append(lambda kk=kk: p2dma(kk))
            if (ps, k) == (0, 23):
                for kk in range(27, 32): pq.append(lambda kk=kk: p2dma(kk))
            while nw < min(free, 16):
                wq.extend(wdslot(nw)); nw += 1
        if n == P.get('wt', 60):
            a('s_mov_b64 exec, 0x3fff')
            vm.issue('buffer_load_dword v72, v73, s[8:11], s34 offen')
            a('s_mov_b64 exec, -1')
        if n == 95:
            stamp('p1end')
            for t in range(3):
                o = 64 + 4*(t & 1)
                valu.extend(gelu_ops(ACC1+16*t, 48 + 8*(t & 1), o))
                valu.append(('store', t, o))
        if hq: hq.popleft()()
        elif pq and n % PE == 0: pq.popleft()()
        elif wq and n % WE == (1 % WE): wq.popleft()()
        credit = min(credit + VB, 30)
        while n > 97 and valu and credit >= 10*(cost(valu[0]) if isinstance(valu[0], str) else 1):
            x = valu.popleft()
            if isinstance(x, tuple):
                stok[x[1]] = vm.issue(f'buffer_store_dwordx4 v[{x[2]}:{x[2]+3}], v15, s[16:19], s46 offen offset:{1024*x[1]} sc1')
                if x[1] == 2: flag_at = n + P.get('fdel', 20); print('pass-1 act stored at', n)
            else:
                a(x); credit -= 10*cost(x)
        if 2 in stok and 'f2' not in stok and n >= flag_at:
            vm.need(stok[2])
            stok['f2'] = lstore([f'buffer_store_dword v20, v21, s[52:55], s33 offen offset:{F2}'])
    while valu:
        x = valu.popleft()
        if isinstance(x, tuple):
            stok[x[1]] = vm.issue(f'buffer_store_dwordx4 v[{x[2]}:{x[2]+3}], v15, s[16:19], s46 offen offset:{1024*x[1]} sc1')
        else: a(x)
    if 'f2' not in stok:
        vm.need(stok[2])
        stok['f2'] = lstore([f'buffer_store_dword v20, v21, s[52:55], s33 offen offset:{F2}'])
    assert not pq and not hq
    tp = vm.issue(fload[0])
    a('s_mov_b32 s34, 1.0'); a('s_mov_b32 s35, 1.0')
    def geglu2(t):
        s = Asm(); geglu(s, ACC2+16*t, 48, 64 + 4*(t & 1))
        for l in s.lines: a(l.replace('s[46:47]', 's[34:35]'))
        if t: a(f's_add_u32 s47, s47, {YP}')
        return lstore([f'buffer_store_dwordx4 v[{64+4*(t&1)}:{67+4*(t&1)}], v15, s[16:19], s47 offen'])
    atok = {}
    def abase(i): return 128 + 8*i if i < 12 else 8*(i-12)
    def actload(i):
        b = abase(i)
        so, v2, inc, lim, n, i0 = ('s5', 16, 1024, 's41', 12, 0) if i < 12 else ('s6', 17, YP, 's42', 16, 12)
        vm.issue(f'buffer_load_dwordx4 a[{b}:{b+3}], v15, s[16:19], {so} offen sc1')
        atok[i] = vm.issue(f'buffer_load_dwordx4 a[{b+4}:{b+7}], v{v2}, s[16:19], {so} offen sc1')
        if (i - i0 + 1) % (n // 4): a(f's_add_u32 {so}, {so}, {inc}')
        else: step(so, inc, lim, n*inc)
    FP = P.get('fp', 1)
    for t in range(FP): geglu2(t)
    stamp('g1')
    poll('f2', fload, [22], pre=tp)
    stamp('f2ok'); raw(4, 's51')
    NA1 = P.get('na1', 6)
    for i in range(NA1): actload(i)
    for t in range(FP, 4): ts3 = geglu2(t)
    stamp('g3')
    for i in range(NA1, 12): actload(i)
    a('v_and_b32 v4, 31, v1')
    a('v_lshrrev_b32 v5, 5, v1')
    a('v_lshlrev_b32 v10, 10, v4')
    a('v_lshl_add_u32 v10, v5, 4, v10')
    a('s_lshr_b32 s46, s3, 1')
    a('s_lshl_b32 s46, s46, 15')
    a('s_and_b32 s47, s3, 1')
    a('s_lshl_b32 s47, s47, 6')
    a('s_add_u32 s39, s39, s46')
    a('s_add_u32 s39, s39, s47')
    a(f's_add_u32 s46, s39, {hex(X1)}')
    vm.need(ts3)
    lstore([f'buffer_store_dword v20, v21, s[52:55], s33 offen offset:{F3}'])
    stamp('estart')
    for i in range(16, 20): wq.extend(wdslot(i))
    pipe = LdsPipe(a); tok = {}
    def rd2(i):
        d = AR + 8*(i % 3); ad = 8192*WBL[i % 20]
        while i not in wtok: wq.popleft()()
        vm.need(wtok[i])
        for mt in range(2):
            for jj in range(2):
                tok[(i, mt)] = pipe.issue(f'ds_read_b64_tr_b16 v[{d+4*mt+2*jj}:{d+4*mt+2*jj+1}], v{240+2*(ad>>16)+mt} offset:{(ad & 0xffff)+1024*jj}')
    rd2(0); rd2(1)
    f3load = [f'buffer_load_dword v22, v13, s[52:55], s25 offen offset:{F3} sc1']
    F3P = P.get('f3p', 10)
    for i in range(28):
        stamp(f'e{i}')
        if i == F3P:
            while wq: wq.popleft()()
            tp = vm.issue(f3load[0])
        if i == 12:
            poll('f3', f3load, [22], pre=tp)
            stamp('f3ok'); raw(5, 's51')
            for ii in range(12, 28): actload(ii)
            vm.issue('buffer_load_dwordx4 v[72:75], v10, s[16:19], s46 offen sc1')
            tx = vm.issue('buffer_load_dwordx4 v[76:79], v10, s[16:19], s46 offen offset:32 sc1')
        d0 = AR + 8*(i % 3); b = abase(i)
        vm.need(atok[i])
        for mt in range(2):
            pipe.need(tok[(i, mt)])
            if mt == 1 and i < 8: wq.extend(wdslot(20+i))
            for nt in range(2):
                d = ACC2 + 32*mt + 16*nt; c = '0' if i == 0 else f'v[{d}:{d+15}]'
                a(f'v_mfma_f32_32x32x16_bf16 v[{d}:{d+15}], v[{d0+4*mt}:{d0+4*mt+3}], a[{b+4*nt}:{b+4*nt+3}], {c}')
                if mt == 0 and nt == 0 and i+2 < 28: rd2(i+2)
                elif wq: wq.popleft()()
    stamp('eend')
    PBL = [(WBL[8], WBL[9]), (WBL[10], WBL[11]), (WBL[12], WBL[13]), (WBL[14], WBL[15])]
    a('v_add_u32 v4, s26, v15')
    a('v_add_u32 v5, 0x10000, v4')
    a('v_add_u32 v18, 0x20000, v4')
    base(a, 12, 56, 0x200000)
    for o in range(4):
        a(f's_cmp_eq_u32 s3, {o}')
        a(f's_cbranch_scc1 L_own{o}')
        d = ACC2 + 32*(o & 1) + 16*(o >> 1)
        for g in range(4):
            ad = 8192*PBL[o][g >> 1] + 1024*(g & 1)
            a(f'ds_write_b128 v{(4, 5, 18)[ad >> 16]}, v[{d+4*g}:{d+4*g+3}] offset:{ad & 0xffff}')
        a(f's_branch L_nown{o}')
        a.label(f'L_own{o}')
        for g in range(16): a(f'v_mov_b32 v{24+g}, v{d+g}')
        a(f's_mov_b32 s4, {8192*PBL[o][0]}')
        a(f's_mov_b32 s5, {8192*PBL[o][1]}')
        a.label(f'L_nown{o}')
    for i in range(1, 4):
        a(f's_add_u32 s6, s26, {2048*i}')
        a('s_and_b32 s6, s6, 0x1fff')
        a('s_add_u32 s7, s6, s5')
        a('s_add_u32 s6, s6, s4')
        a(f'v_add_u32 v{88+2*i}, s6, v15')
        a(f'v_add_u32 v{89+2*i}, s7, v15')
    vm.need(tx)
    unpack8(a, 96, 124, 40); unpack8(a, 104, 116, 40); unpack8(a, 48, 72, 40); unpack8(a, 56, 76, 40)
    a('s_waitcnt lgkmcnt(0)')
    a('s_barrier')
    stamp('ebar')
    for i in range(1, 4):
        for g in range(4):
            a(f'ds_read_b128 v[{112+16*i+4*g}:{115+16*i+4*g}], v{88+2*i+(g >> 1)} offset:{1024*(g & 1)}')
    for i in range(1, 4):
        a(f's_waitcnt lgkmcnt({12-4*i})')
        for p in range(8): a(f'v_pk_add_f32 v[{24+2*p}:{25+2*p}], v[{24+2*p}:{25+2*p}], v[{112+16*i+2*p}:{113+16*i+2*p}]')
    for g in range(2):
        b = 24 + 8*g
        for r in range(4): a(f'v_permlane32_swap_b32 v{b+r}, v{b+4+r}')
        for p in range(4): a(f'v_pk_fma_f32 v[{b+2*p}:{b+2*p+1}], v[{b+2*p}:{b+2*p+1}], v[{96+8*g+2*p}:{97+8*g+2*p}], v[{48+8*g+2*p}:{49+8*g+2*p}]')
        for p in range(4): a(f'v_cvt_pk_bf16_f32 v{40+4*g+p}, v{b+2*p}, v{b+2*p+1}')
        a(f'buffer_store_dwordx4 v[{40+4*g}:{43+4*g}], v10, s[12:15], s39 offen offset:{32*g}' + ('', ' sc1', ' nt')[P.get('ost', 0)])
    a('s_or_b32 s4, s2, s3')
    a('s_cmp_lg_u32 s4, 0')
    a('s_cbranch_scc1 L_noep')
    a(f's_mov_b32 s4, {hex(EPOCH)}')
    a('buffer_store_dword v20, v21, s[16:19], s4 offen')
    a.label('L_noep')
    if P.get('probe') is not None:
        a('s_waitcnt vmcnt(0)')
        stamp('end')
        a('s_waitcnt lgkmcnt(0)')
        k = P['probe']
        if k == 0:
            a('s_add_u32 s92, s60, 6000')
        else:
            a(f's_sub_u32 s92, s{60+2*k}, s60')
            a('s_lshl_b32 s92, s92, 2')
            a('s_add_u32 s92, s92, s60')
            a('s_add_u32 s92, s92, 4000')
        a.label('L_probe')
        a('s_memrealtime s[94:95]')
        a('s_waitcnt lgkmcnt(0)')
        a('s_sub_u32 s94, s94, s92')
        a('s_cmp_lt_i32 s94, 0')
        a('s_cbranch_scc1 L_probe')
    elif P.get('stamps'):
        a('s_waitcnt vmcnt(0)')
        stamp('end')
        a('s_cmp_lg_u32 s3, 0')
        a('s_cbranch_scc1 L_end')
        a('s_lshl_b32 s94, s2, 7')
        a(f's_add_u32 s94, s94, {hex(TS)}')
        a('s_add_u32 s92, s58, s94')
        a('s_addc_u32 s93, s59, 0')
        a('v_lshlrev_b32 v250, 2, v1')
        a('s_lshl_b32 s94, s2, 8')
        a(f's_add_u32 s94, s94, {hex(TS + 0x80000)}')
        a('s_add_u32 s94, s58, s94')
        a('s_addc_u32 s95, s59, 0')
        a('global_store_dword v250, v254, s[94:95]')
        a('s_mov_b64 exec, 1')
        if P.get('dbg'):
            a('s_load_dwordx2 s[94:95], s[0:1], 104')
        a('s_waitcnt lgkmcnt(0)')
        if P.get('dbg'):
            a('s_not_b32 s60, s60')
            for m in sorted(marks):
                a(f'v_mov_b32 v250, s{60+2*m}')
                a(f'global_atomic_umax v21, v250, s[94:95] offset:{4*m}')
                a('s_nop 1')
            a('s_not_b32 s60, s60')
        for m in sorted(marks):
            a(f'v_mov_b32 v250, s{60+2*m}')
            a(f'v_mov_b32 v251, s{61+2*m}')
            a(f'global_store_dwordx2 v21, v[250:251], s[92:93] offset:{8*m}')
            a('s_nop 1')
    a.label('L_end')
    a.label('L_last')
    a('s_endpgm')
    return dict(grid=256, block=256, lds=163840, vgpr=512, accum=256)
```

```python
from collections import deque
from asmlib import *
from k123 import fh, lo, hi, unpack8, ln_stats, LdsPipe, A_OUT, A_WS
from k45 import VmPipe, GC1, GC2, geglu
from cde import zipl, gelu_ops, cost

UT, YT, X1, H2, ACT = 0, 0x400000, 0x900000, 0, 0xD00000
MODT, EPOCH, GRP, MP, TS = 0x1400000, 0x1408000, 0x1410000, 0x1480000, 0x1500000
YP = 16384 + 128
XID, UH, F1, F2, F3 = 0, 128, 1024, 1536, 2048
P1U = 49280
SEG = [(0, 98432, 129152), (15, 0, 49280), (27, 24576, 73856)]
CB, CHS, KB, U0, U1 = 98432, 12992, 512, 4608, 8768
PB = CB + 2*CHS
PRM = PB + 32768
MPART = PRM + 6144
XG = 129152 + 112*128
YS = 1040
XH = XG + 8*YS
PS = 272
SPIN = 1 << 15
WBL = [5, 11, 12, 13, 14, 16, 17, 18, 15, 19, 0, 6, 1, 2, 7, 8, 3, 4, 9, 10]
BARS = {(0, 15): (None, 0), (0, 23): (None, 0), (0, 29): (6, 0), (1, 4): (14, 2), (1, 12): (22, 8), (1, 20): (31, 12), (1, 27): (None, 16), (1, 31): (None, 20)}
assert MPART + 512 <= 163840 and XH + 8192 <= 163840
def seg_of(k): return SEG[0] if k < 15 else SEG[1] if k < 27 else SEG[2]

def base(a, d, p, n):
    a(f's_mov_b32 s{d}, s{p}'); a(f's_mov_b32 s{d+1}, s{p+1}'); a(f's_mov_b32 s{d+2}, {hex(n)}')

def mega(a, P):
    marks = set()
    SETS = {1: 'start kv0 utst utok bbar end bend ytst ytok h2dr b0 p1end b8 estart f3ok eend',
            2: 'start kv0 kvN abar utst end ut1st uhok utok bbar bend pbar ytst ytack ytok mdok',
            3: 'start ytst ln1 ytack ytok end ybar hbar h2st h2dr f1ok b0 b1 b2 b3 p1end',
            5: 'start karg x2 x3 x4 end x6 x7 x8 x9 x10 x11 x12 kv0 issued pre',
            4: 'start p1end b5 b6 b7 end b8 g1 f2ok g3 estart e12 f3ok e20 eend ebar'}
    names = SETS[P.get('stamps', 1)].split()
    def stamp(name):
        if P.get('stamps') and name in names:
            slot = names.index(name)
            a(f's_memrealtime s[{60+2*slot}:{61+2*slot}]'); marks.add(slot)
    def raw(i, sreg):
        if P.get('stamps'): a(f'v_writelane_b32 v254, {sreg}, {i}')
    vm = VmPipe(a)
    NT = ' nt' if P.get('nt', 1) else ''
    nst = [0]
    def lstore(lines, through=False):
        if through:
            for l in lines: t = vm.issue(l + ' sc1')
            return t
        return lstore2(lines)
    def lstore2(lines):
        n = nst[0]; nst[0] += 1
        a('s_cmp_eq_u32 s101, 0')
        a(f's_cbranch_scc1 L_ls{n}a')
        for l in lines: a(l + ' sc1')
        a(f's_branch L_ls{n}b')
        a.label(f'L_ls{n}a')
        for l in lines: t = vm.issue(l)
        a.label(f'L_ls{n}b')
        return t
    def poll(name, loads, tags, pre=None):
        a(f's_mov_b32 s51, {SPIN}')
        if pre is not None:
            vm.need(pre)
            stamp(name + '1st')
            a(f's_branch L_{name}_chk')
        a.label(f'L_{name}')
        for l in loads: a(l)
        a('s_waitcnt vmcnt(0)')
        a.label(f'L_{name}_chk')
        a(f'v_cmp_ne_u32 vcc, s50, v{tags[0]}')
        for i, t in enumerate(tags[1:]): a(f'v_cmp_ne_u32 s[{92+2*i}:{93+2*i}], s50, v{t}')
        a('s_sub_u32 s51, s51, 1')
        a(f's_cbranch_scc1 L_{name}_ok')
        for i in range(len(tags)-1): a(f's_or_b64 vcc, vcc, s[{92+2*i}:{93+2*i}]')
        a(f's_cbranch_vccnz L_{name}')
        a.label(f'L_{name}_ok')
        if pre is None: vm.done = vm.issued

    a('s_cmp_ge_u32 s2, 256')
    a('s_cbranch_scc1 L_end')
    stamp('start')
    if P.get('stamps'): a('v_mov_b32 v254, 0')
    a('s_load_dwordx16 s[64:79], s[0:1], 0')
    if P.get('cpf', 1):
        a('s_getpc_b64 s[4:5]')
        a.label('L_pc')
        a('v_lshlrev_b32 v3, 7, v0')
        a('v_mov_b32 v5, s5')
        a('v_add_co_u32 v4, vcc, s4, v3')
        a(f'v_cmp_gt_u32 s[6:7], {P.get("cpn", 16)}, v0')
        a('v_and_b32 v1, 63, v0')
        a('v_addc_co_u32 v5, vcc, 0, v5, vcc')
        a('s_and_b64 exec, exec, s[6:7]')
        a('s_cbranch_execz L_nopf')
        a('global_load_dword v169, v[4:5], off')
        a.label('L_nopf')
        a('s_mov_b64 exec, -1')
    else: a('v_and_b32 v1, 63, v0')
    a(f's_load_dwordx2 s[58:59], s[0:1], {A_WS}')
    a('s_load_dwordx8 s[80:87], s[0:1], 64')
    a(f's_load_dwordx2 s[56:57], s[0:1], {A_OUT}')
    a('v_lshrrev_b32 v2, 6, v0')
    a('v_readfirstlane_b32 s3, v2')
    a('s_mov_b32 s40, 0xffff0000')
    a('s_and_b32 s28, s2, 7')
    a('s_lshr_b32 s29, s2, 3')
    a('s_lshl_b32 s32, s28, 5')
    a('s_or_b32 s32, s32, s29')
    a('v_and_b32 v3, 31, v0')
    a('v_lshrrev_b32 v2, 5, v0')
    a('s_lshl_b32 s33, s29, 6')
    a('v_lshl_add_u32 v4, v2, 3, s33')
    a('s_lshl_b32 s33, s28, 7')
    a('v_lshl_add_u32 v5, v3, 2, s33')
    a('v_lshl_add_u32 v5, v4, 10, v5')
    a('v_subrev_u32 v4, 0xc00, v5')
    a('s_lshl_b32 s33, s28, 9')
    a('v_lshl_add_u32 v13, v3, 4, s33')
    a('s_movk_i32 s35, 0x1000')
    a('s_mov_b32 s15, 0x20000'); a('s_mov_b32 s27, 0x20000'); a('s_mov_b32 s19, 0x20000')
    a('s_mov_b32 s23, 0x20000'); a('s_mov_b32 s11, 0x20000'); a('s_mov_b32 s55, 0x20000')
    a('v_lshlrev_b32 v15, 4, v1')
    a('v_mov_b32 v21, 0')
    a('v_lshlrev_b32 v14, 4, v0')
    a('s_waitcnt lgkmcnt(0)')
    stamp('karg')
    base(a, 12, 70, 4096)
    base(a, 24, 68, 0x200000)
    tsh = vm.issue('buffer_load_dwordx4 v[48:51], v13, s[12:15], 0 offen' + NT)
    base(a, 12, 66, 0x200000)
    for i in range(3): vm.issue(f'buffer_load_dword v{24+i}, v4, s[12:15], 0 offen offset:{1024*i}' + NT)
    tk = {}
    for i in range(8):
        so = 's35' if i >= 4 else '0'
        vm.issue(f'buffer_load_dword v{27+i}, v5, s[12:15], {so} offen offset:{1024*(i&3)}' + NT)
        tk[i] = vm.issue(f'buffer_load_dword v{36+i}, v5, s[24:27], {so} offen offset:{1024*(i&3)}' + NT)
    stamp('issued')
    a(f's_add_u32 s4, s58, {hex(EPOCH)}')
    a('s_addc_u32 s5, s59, 0')
    a('s_load_dword s50, s[4:5], 0')
    if P.get('cpf', 1):
        a('s_getpc_b64 s[6:7]')
        a.label('L_pc2')
        a('s_lshl_b32 s36, s29, 2')
        a('s_add_u32 s36, s36, s3')
        a('v_and_b32 v4, 1, v0')
        a('v_lshl_add_u32 v4, s36, 1, v4')
        a('v_min_u32 v4, (L_last-L_pc2)/128, v4')
        a('v_lshlrev_b32 v4, 7, v4')
        a('v_mov_b32 v5, s7')
        a('v_add_co_u32 v4, vcc, s6, v4')
        a('v_addc_co_u32 v5, vcc, 0, v5, vcc')
        a('s_mov_b64 exec, 3')
        vm.issue('global_load_dword v168, v[4:5], off')
        a('s_mov_b64 exec, -1')
    if P.get('kvbar', 1): a('s_barrier')
    a('s_lshl_b32 s33, s32, 2')
    a('s_add_u32 s6, s74, s33')
    a('s_addc_u32 s7, s75, 0')
    a('s_load_dword s34, s[6:7], 0')
    base(a, 12, 72, 0x200000)
    a('s_lshl_b32 s33, s32, 13')
    a('s_add_u32 s36, s33, 0x1000')
    vm.issue('buffer_load_dwordx4 v[146:149], v14, s[12:15], s33 offen' + NT)
    tsk = vm.issue('buffer_load_dwordx4 v[150:153], v14, s[12:15], s36 offen' + NT)
    a('s_mul_i32 s30, s28, 6')
    a('s_lshr_b32 s31, s29, 2')
    a('s_add_u32 s30, s30, s31')
    a('s_and_b32 s31, s29, 3')
    a('s_lshl_b32 s46, s30, 2')
    a('s_or_b32 s46, s46, s31')
    a('s_lshl_b32 s47, s31, 2')
    a('s_or_b32 s47, s47, s3')
    a('v_and_b32 v16, 1, v0')
    a('v_lshrrev_b32 v17, 3, v1')
    a('v_and_b32 v6, 7, v1')
    a('v_mul_u32_u24 v242, 0x6000, v17')
    a('v_lshl_add_u32 v242, v6, 4, v242')
    a('v_lshlrev_b32 v243, 3, v17')
    a('s_lshl_b32 s36, s3, 11')
    a('s_add_u32 s33, s33, s36')
    a('s_lshr_b32 s30, s32, 4')
    a('s_and_b32 s31, s32, 15')
    a('s_and_b32 s98, s30, 1')
    a('s_lshl_b32 s98, s98, 2')
    a('s_add_u32 s98, s98, s28')
    a('s_and_b32 s98, s98, 7')
    a('s_lshr_b32 s38, s3, 1')
    a('s_and_b32 s39, s3, 1')
    a('s_cmp_eq_u32 s38, 0')
    a('s_cselect_b32 s20, s78, s80')
    a('s_cselect_b32 s21, s79, s81')
    a(f's_mov_b32 s22, {512*3584}')
    base(a, 8, 82, 1792*1024)
    base(a, 16, 58, TS)
    a('s_lshl_b32 s36, s28, 12')
    a(f's_add_u32 s36, s36, {hex(GRP)}')
    a('s_add_u32 s52, s58, s36')
    a('s_addc_u32 s53, s59, 0')
    a('s_movk_i32 s54, 0x1000')
    a('s_cmp_eq_u32 s3, 3')
    a('s_cselect_b32 s37, 0, 0x70000000')
    a('v_mov_b32 v22, s37')
    a('s_lshl_b32 s36, s29, 7')
    vm.issue('buffer_load_dword v158, v22, s[52:55], s36 offen')
    a('s_lshl_b32 s36, s46, 6')
    a(f's_add_u32 s36, s36, {hex(MODT)}')
    vm.issue('buffer_load_dword v159, v22, s[16:19], s36 offen')
    a('s_lshl_b32 s36, s32, 13')
    a('s_lshl_b32 s37, s46, 11')
    a(f's_add_u32 s37, s37, {hex(MP)}')
    a('s_cmp_eq_u32 s3, 1')
    a(f's_cselect_b32 s37, s37, {hex(TS)}')
    a('s_cselect_b32 s44, 15, 63')
    a('s_cmp_eq_u32 s3, 2')
    a('s_cselect_b32 s37, s36, s37')
    a('v_and_b32 v4, s44, v1')
    a('v_lshlrev_b32 v4, 7, v4')
    if P.get('utt', 1): vm.issue('buffer_load_dword v157, v4, s[16:19], s37 offen' + (NT if P.get('ntu', 1) else ''))
    if P.get('tlb', 0) == 1:
        a('v_lshl_add_u32 v4, v1, 20, v22')
        for i, (p, n) in enumerate(((86, 512*6144), (84, 1024), (64, 0x200000), (78, 512*3584), (80, 512*3584), (82, 1792*1024), (56, 0x200000))):
            base(a, 12, p, n)
            vm.issue(f'buffer_load_dword v{160+i}, v4, s[12:15], 0 offen')
        vm.issue('buffer_load_dword v154, v4, s[16:19], 0 offen')
    for i in range(3):
        a(f'v_add_u32 v4, {64*i}, v1')
        a('v_mul_u32_u24 v5, 0x2aab, v4')
        a('v_lshrrev_b32 v5, 16, v5')
        a(f'v_mul_u32_u24 v5, {3584-96}, v5')
        a(f'v_lshl_add_u32 v{10+i}, v4, 4, v5')
        if i: a(f'v_subrev_u32 v{10+i}, {1024*i}, v{10+i}')
    a(f's_mul_i32 s41, s39, {32*3584}')
    a('s_mul_i32 s43, s31, 96')
    a('s_add_u32 s41, s41, s43')
    a('s_add_u32 s41, s41, 0x800')
    a('s_mul_i32 s43, s39, 3072')
    a(f's_mul_i32 s42, s38, {P1U}')
    a('s_add_u32 s42, s42, s43')
    a(f's_add_u32 s99, s41, {512*3584}')
    a(f's_mul_i32 s36, s98, {64*3584}')
    a('s_add_u32 s41, s41, s36')
    def step(reg, inc, lim, span):
        a(f's_add_u32 {reg}, {reg}, {inc}')
        a(f's_cmp_eq_u32 {reg}, {lim}')
        a(f's_cselect_b32 s36, {span}, 0')
        a(f's_sub_u32 {reg}, {reg}, s36')
    early = deque()
    def p1dma(m, i):
        if i == 0: a(f's_add_u32 m0, s42, {6144*m}')
        vm.issue(f'buffer_load_dwordx4 v{10+i}, s[20:23], s41 offen offset:{1024*i} lds')
        if i == 2 and m < 7: step('s41', 64*3584, 's99', 512*3584)
    for m in range(8):
        for i in range(3): early.append(lambda m=m, i=i: p1dma(m, i))
    for _ in range(P.get('e0', 0)): early.popleft()()
    a('v_lshrrev_b32 v4, 3, v1')
    a('v_bfe_u32 v5, v1, 4, 1')
    a('v_lshlrev_b32 v5, 2, v5')
    a('v_xor_b32 v5, v5, v6')
    a('v_lshlrev_b32 v5, 4, v5')
    a('v_lshl_add_u32 v8, v4, 10, v5')
    a(f'v_add_u32 v9, {8192-1024}, v8')
    a('s_lshl_b32 s43, s38, 5')
    a('v_xor_b32 v5, s43, v5')
    a('v_mul_u32_u24 v7, 0xe00, v4')
    a('v_add_u32 v7, v7, v5')
    a(f's_mul_i32 s48, s39, {8*3584}')
    a('s_lshl_b32 s43, s31, 7')
    a('s_add_u32 s48, s48, s43')
    a('s_lshl_b32 s43, s39, 10')
    a(f's_mul_i32 s49, s38, {SEG[0][2]-SEG[0][1]}')
    a('s_add_u32 s49, s49, s43')
    a(f's_mul_i32 s38, s38, {P1U}')
    a('s_add_u32 s43, s43, s38')
    a('v_sub_u32 v4, 7, v2')
    a('v_xor_b32 v4, v4, v6')
    a('v_lshl_add_u32 v4, v3, 4, v4')
    a(f'v_lshlrev_b32 v4, 4, v4')
    a(f'v_add_u32 v120, {PB}, v4')
    a('v_lshrrev_b32 v4, 4, v1')
    a('v_xor_b32 v5, v4, v1')
    a('s_lshl_b32 s36, s3, 11')
    a(f's_add_u32 s36, s36, {PB}')
    a('v_lshl_add_u32 v124, v5, 4, s36')
    a('v_xor_b32 v125, 64, v124')
    a('v_lshrrev_b32 v4, 3, v1')
    a('v_lshlrev_b32 v5, 4, v6')
    a('v_lshl_add_u32 v13, v4, 12, v5')
    a('s_lshl_b32 s36, s28, 2')
    a('s_add_u32 s36, s36, s3')
    a('s_lshl_b32 s36, s36, 16')
    a('s_sub_u32 s35, 31, s29')
    a('s_lshl_b32 s35, s35, 7')
    a('s_add_u32 s35, s35, s36')
    a('s_waitcnt lgkmcnt(0)')
    a('s_mul_i32 s50, s50, 1664525')
    a('s_add_u32 s50, s50, 1013904223')
    a('v_mov_b32 v20, s50')
    a('s_getreg_b32 s100, hwreg(HW_REG_XCC_ID, 0, 4)')
    if P.get('slow'): a('s_and_b32 s100, s29, 1')
    a('s_add_u32 s100, s100, s50')
    a('s_add_u32 s100, s100, 1')
    a('s_cmp_lg_u32 s3, 0')
    a('s_cbranch_scc1 L_noid')
    a('v_mov_b32 v22, s100')
    a('s_lshl_b32 s36, s29, 2')
    a(f'buffer_store_dword v22, v21, s[52:55], s36 offen offset:{XID} sc1')
    a.label('L_noid')
    stamp('pre')
    vm.need(tsh)
    lo(a, 52, 48); hi(a, 54, 48, 40); lo(a, 56, 49); hi(a, 58, 49, 40)
    lo(a, 53, 50); hi(a, 55, 50, 40); lo(a, 57, 51); hi(a, 59, 51, 40)
    vm.need(tk[0])
    stamp('kv0')
    for q in range(3):
        lo(a, 60+2*q, 24+q); hi(a, 61+2*q, 24+q, 40)
    for r in range(8):
        vm.need(tk[r])
        lo(a, 66+2*r, 27+r); hi(a, 67+2*r, 27+r, 40)
        lo(a, 84+2*r, 36+r); hi(a, 85+2*r, 36+r, 40)
        d = 102+2*r
        a(f'v_pk_mul_f32 v[{d}:{d+1}], v[{60+2*r}:{61+2*r}], v[58:59]')
        a(f'v_pk_fma_f32 v[{d}:{d+1}], v[{62+2*r}:{63+2*r}], v[56:57], v[{d}:{d+1}]')
        a(f'v_pk_fma_f32 v[{d}:{d+1}], v[{64+2*r}:{65+2*r}], v[54:55], v[{d}:{d+1}]')
        a(f'v_pk_fma_f32 v[{d}:{d+1}], v[{66+2*r}:{67+2*r}], v[52:53], v[{d}:{d+1}]')
        a(f'v_pk_mul_f32 v[{d}:{d+1}], v[{d}:{d+1}], v[{84+2*r}:{85+2*r}]')
    stamp('kvN')
    for c in range(2):
        for jj in range(4):
            a(f'v_cvt_pk_bf16_f32 v{24+4*c+jj}, v{102+2*(7-2*jj)+c}, v{102+2*(6-2*jj)+c}')
        a(f'ds_write_b128 v120, v[{24+4*c}:{27+4*c}] offset:{128*c}')
    a('s_waitcnt lgkmcnt(0)')
    a('s_barrier')
    stamp('abar')
    for j in range(2): a(f'ds_read_b128 v[{104+4*j}:{107+4*j}], v{124+j} offset:{1024*j}')
    a('s_mov_b32 s24, s35')
    a('s_add_u32 s25, s35, 0x8000')
    ustores = [f'buffer_store_dwordx4 v[{104+4*j}:{107+4*j}], v13, s[16:19], s{24+j} offen' for j in range(2)]
    for j in range(2):
        a(f's_waitcnt lgkmcnt({1-j})')
        tus = vm.issue(ustores[j] + (' sc1' if P.get('uts', 0) else ''))
    a('s_load_dwordx2 s[44:45], s[0:1], 0')
    a('s_load_dwordx2 s[94:95], s[0:1], 80')
    a('s_load_dwordx2 s[96:97], s[0:1], 88')
    a('s_lshl_b32 s7, s3, 7')
    a('s_lshl_b32 s36, s29, 2')
    a('s_add_u32 s7, s7, s36')
    a('v_mov_b32 v123, s100')
    stamp('utst')
    for i in range(4): a(f'v_mov_b32 v{40+i}, 0')
    a(f'v_add_u32 v14, {CB}, v14')
    a('v_cmp_gt_u32 vcc, 32, v0')
    a('s_and_saveexec_b64 s[36:37], vcc')
    a('s_cbranch_execz L_nz')
    a('ds_write_b128 v14, v[40:43]')
    a(f'ds_write_b128 v14, v[40:43] offset:{CHS}')
    a('v_cmp_gt_u32 vcc, 2, v0')
    a('s_and_b64 exec, exec, vcc')
    for c in range(2):
        a(f'ds_write_b128 v14, v[40:43] offset:{c*CHS+U0+4096}')
        a(f'ds_write_b128 v14, v[40:43] offset:{c*CHS+U1+4096}')
    a.label('L_nz')
    a('s_mov_b64 exec, s[36:37]')
    a('v_cmp_eq_u32 s[36:37], 0, v0')
    a('s_lshl_b32 s4, s34, 16')
    a('s_and_b32 s5, s34, 0xffff0000')
    a('s_mov_b32 s6, 0xffff')
    vm.need(tsk)
    stamp('skok')
    for c in range(2):
        kx = 146+4*c
        lo(a, 44, kx)
        a(f'v_add_f32 v44, s{4+c}, v44')
        a('v_cvt_pk_bf16_f32 v44, v44, v44')
        a(f'v_bfi_b32 v44, s6, v44, v{kx}')
        a(f'v_cndmask_b32 v{kx}, v{kx}, v44, s[36:37]')
        a(f'ds_write_b128 v14, v[{kx}:{kx+3}] offset:{c*CHS+KB}')
    vm.need(tus)
    vm.issue(f'buffer_store_dword v123, v21, s[52:55], s7 offen offset:{UH}')
    a('v_and_b32 v120, 31, v1')
    a('v_lshlrev_b32 v120, 2, v120')
    a('s_lshr_b32 s5, s29, 3')
    a('s_lshl_b32 s5, s5, 7')
    hloads = [f'buffer_load_dword v121, v120, s[52:55], 0 offen offset:{XID} sc1', f'buffer_load_dword v124, v120, s[52:55], s5 offen offset:{UH} sc1']
    for l in hloads: tu = vm.issue(l)
    a('v_lshrrev_b32 v4, 1, v6')
    a('v_lshlrev_b32 v4, 11, v4')
    a('v_lshl_add_u32 v4, v16, 6, v4')
    a('v_lshrrev_b32 v5, 5, v1')
    a('v_lshl_add_u32 v4, v5, 5, v4')
    a('v_bfe_u32 v5, v1, 4, 1')
    a('v_lshl_add_u32 v244, v5, 4, v4')
    a('s_lshl_b32 s35, s32, 13')
    a('s_add_u32 s34, s35, 0x1000')
    a('v_lshlrev_b32 v125, 4, v0')
    a('s_lshr_b32 s36, s3, 1')
    a(f's_mul_i32 s36, s36, {CHS}')
    a('s_xor_b32 s38, s39, 1')
    a('s_lshl_b32 s38, s38, 6')
    a('s_add_u32 s36, s36, s38')
    a(f's_add_u32 s36, s36, {CB}')
    a('v_and_b32 v3, 15, v0')
    a('v_bfe_u32 v4, v0, 4, 2')
    a('v_lshlrev_b32 v5, 4, v4')
    a('v_lshl_add_u32 v22, v3, 5, v5')
    a(f's_add_u32 s38, s36, {KB-480}')
    a('v_add_u32 v22, s38, v22')
    a('v_and_b32 v23, 14, v3')
    a('v_lshlrev_b32 v23, 1, v23')
    a('v_sub_u32 v23, v5, v23')
    a(f'v_mul_u32_u24 v5, {U1-U0}, v16')
    a('v_sub_u32 v23, v23, v5')
    a(f's_add_u32 s38, s36, {U1+28}')
    a('v_add_u32 v16, s38, v23')
    for i in range(1, 4): a(f'v_add_u32 v{16+i}, {1024*i}, v16')
    a('v_bfe_u32 v5, v3, 1, 2')
    a('v_xor_b32 v5, v5, v4')
    a('v_lshl_add_u32 v5, v3, 2, v5')
    a('s_lshl_b32 s38, s3, 13')
    a(f's_add_u32 s38, s38, {PB}')
    a('v_lshl_add_u32 v23, v5, 4, s38')
    a(f's_mov_b32 s51, {SPIN}')
    a('s_mov_b32 s101, 0')
    vm.need(tu)
    stamp('ut1st')
    a('s_branch L_uh_chk')
    a.label('L_uh')
    for l in hloads: a(l)
    a('s_waitcnt vmcnt(0)')
    a.label('L_uh_chk')
    a('v_subrev_u32 v122, s50, v121')
    a('v_subrev_u32 v122, 1, v122')
    a('v_cmp_lt_u32 vcc, 15, v122')
    a('v_cmp_ne_u32 s[92:93], s100, v121')
    a('s_sub_u32 s51, s51, 1')
    a('s_cbranch_scc1 L_uh_ok')
    a('s_cbranch_vccnz L_uh')
    a('s_cmp_eq_u64 s[92:93], 0')
    a('s_cbranch_scc1 L_uh_same')
    a('s_cmp_lg_u32 s101, 0')
    a('s_cbranch_scc1 L_uh_same')
    a('s_mov_b32 s101, 1')
    for l in ustores: a(l + ' sc1')
    a('s_waitcnt vmcnt(0)')
    a(f'buffer_store_dword v20, v21, s[52:55], s7 offen offset:{UH} sc1')
    a.label('L_uh_same')
    a('v_cmp_ne_u32 vcc, s50, v124')
    a('v_cmp_ne_u32 s[92:93], s100, v124')
    a('s_nop 0')
    a('s_and_b64 vcc, vcc, s[92:93]')
    a('s_cbranch_vccnz L_uh')
    a.label('L_uh_ok')
    raw(6, 's51')
    stamp('uhok')
    tu = []
    for c in range(2):
        vm.issue(f'buffer_load_dwordx4 v[{72+4*c}:{75+4*c}], v125, s[16:19], s{35-c} offen sc1')
        tu.append(vm.issue(f'buffer_load_dword v{80+c}, v125, s[16:19], s{35-c} offen offset:16 sc1'))
    a('s_waitcnt lgkmcnt(0)')
    base(a, 12, 94, 1024)
    a('s_lshl_b32 s36, s47, 6')
    tc = vm.issue('buffer_load_dwordx2 v[240:241], v243, s[12:15], s36 offen')
    base(a, 12, 96, 512*6144)
    a('s_cmp_lt_u32 s29, 24')
    a('s_cselect_b32 s14, s14, 0')
    a('s_lshr_b32 s36, s46, 2')
    a('s_lshl_b32 s36, s36, 7')
    a(f's_mul_i32 s37, s47, {32*6144}')
    a('s_add_u32 s36, s36, s37')
    twm = []
    for r in range(4):
        twm.append(vm.issue(f'buffer_load_dwordx4 v[{24+4*r}:{27+4*r}], v242, s[12:15], s36 offen' + NT))
        if r < 3: a('s_add_u32 s36, s36, 0x1800')
    base(a, 12, 44, 0x200000)
    vm.issue('buffer_load_dwordx4 v[232:235], v15, s[12:15], s33 offen' + NT)
    tx = vm.issue('buffer_load_dwordx4 v[236:239], v15, s[12:15], s33 offen offset:1024' + NT)
    for _ in range(P.get('e0b', 6)): early.popleft()()
    if P.get('tlb', 0) == 2:
        a('s_cmp_eq_u32 s3, 3')
        a('s_cselect_b32 s37, 0, 0x70000000')
        a('v_lshl_add_u32 v4, v1, 20, s37')
        base(a, 12, 56, 0x200000)
        vm.issue('buffer_load_dword v245, v4, s[16:19], 0 offen')
        vm.issue('buffer_load_dword v246, v4, s[8:11], 0 offen')
        vm.issue('buffer_load_dword v247, v4, s[12:15], 0 offen')
    a('s_movk_i32 s36, 0xff')
    a('v_cmp_ne_u32 vcc, s36, v0')
    for c in range(2):
        u = 72+4*c
        vm.need(tu[c])
        if c == 0: stamp('utok')
        a(f'v_cndmask_b32 v{80+c}, 0, v{80+c}, vcc')
        a(f'ds_write_b128 v14, v[{u}:{u+3}] offset:{c*CHS+U0}')
        for j in range(3): a(f'v_alignbit_b32 v{40+4*c+j}, v{u+j+1}, v{u+j}, 16')
        a(f'v_alignbit_b32 v{43+4*c}, v{80+c}, v{u+3}, 16')
        a(f'ds_write_b128 v14, v[{40+4*c}:{43+4*c}] offset:{c*CHS+U1}')
    a('s_waitcnt lgkmcnt(0)')
    a('s_barrier')
    stamp('bbar')
    st1 = deque()
    T0, T1, AC = 200, 208, 216
    st1.append(('wait', tc))
    st1.extend([f'v_lshlrev_b32 v{T0}, 16, v240', f'v_and_b32 v{T0+1}, s40, v240', f'v_lshlrev_b32 v{T0+2}, 16, v241', f'v_and_b32 v{T0+3}, s40, v241'])
    st1.extend(f'v_mul_f32 v{T0+4+r}, {fh(-1.4426950408889634)}, v{T0+r}' for r in range(4))
    st1.extend(f'v_exp_f32 v{T0+4+r}, v{T0+4+r}' for r in range(4))
    st1.extend(f'v_add_f32 v{T0+4+r}, 1.0, v{T0+4+r}' for r in range(4))
    st1.extend(f'v_rcp_f32 v{T0+4+r}, v{T0+4+r}' for r in range(4))
    st1.extend(f'v_mul_f32 v{T0+r}, v{T0+r}, v{T0+4+r}' for r in range(4))
    st1.extend([f'v_cvt_pk_bf16_f32 v240, v{T0}, v{T0+1}', f'v_cvt_pk_bf16_f32 v241, v{T0+2}, v{T0+3}'])
    st1.extend([f'v_lshlrev_b32 v{T0}, 16, v240', f'v_and_b32 v{T0+1}, s40, v240', f'v_lshlrev_b32 v{T0+2}, 16, v241', f'v_and_b32 v{T0+3}, s40, v241'])
    for r in range(4):
        st1.append(('wait', twm[r]))
        for j in range(4):
            st1.extend([f'v_lshlrev_b32 v{T1+2*j}, 16, v{24+4*r+j}', f'v_and_b32 v{T1+2*j+1}, s40, v{24+4*r+j}'])
        st1.extend((f'v_mul_f32 v{AC+j}, v{T1+j}, v{T0}' if r == 0 else f'v_fmac_f32 v{AC+j}, v{T1+j}, v{T0+r}') for j in range(8))
    st1.extend(f'v_permlane32_swap_b32 v{AC+j}, v{AC+4+j}' for j in range(4))
    st1.extend(f'v_add_f32 v{AC+j}, v{AC+j}, v{AC+4+j}' for j in range(4))
    st1.extend([f'v_mov_b32 v{T0+2}, s50', f'v_mov_b32 v{T0+3}, s50'])
    st1.extend(f'v_permlane16_swap_b32 v{AC+j}, v{AC+2+j}' for j in range(2))
    st1.extend(f'v_add_f32 v{T0+j}, v{AC+j}, v{AC+2+j}' for j in range(2))
    st1.extend(['s_nop 0'] + [f'v_add_f32_dpp v{T0+j}, v{T0+j}, v{T0+j} row_ror:8 row_mask:0xf bank_mask:0xf' for j in range(2)])
    def st1_step(credit):
        while st1 and credit > 0:
            x = st1.popleft()
            if isinstance(x, tuple): vm.need(x[1])
            else: a(x); credit -= cost(x)
    a('s_lshr_b32 s5, s46, 2')
    a('s_lshl_b32 s5, s5, 13')
    a('s_lshl_b32 s36, s47, 7')
    a('s_add_u32 s5, s5, s36')
    a(f's_add_u32 s5, s5, {hex(MP)}')
    a('s_lshl_b32 s6, s46, 11')
    a(f's_add_u32 s6, s6, {hex(MP)}')
    a('s_cmp_lt_u32 s29, 24')
    a(f's_cselect_b32 s5, s5, {hex(TS)}')
    a(f's_cselect_b32 s7, s3, 1')
    ploads = [f'buffer_load_dwordx4 v[{104+4*j}:{107+4*j}], v15, s[16:19], s6 offen offset:{1024*j} sc1' for j in range(2)]
    tmi = []
    def mod_issue():
        a('s_cmp_lg_u32 s7, 0')
        a('s_cbranch_scc1 L_nomi')
        for l in ploads: a(l)
        a.label('L_nomi')
        tmi.append(vm.issued)
    def mod_final():
        a('s_cmp_lg_u32 s7, 0')
        a('s_cbranch_scc1 L_nomod')
        done = vm.done
        a(f's_waitcnt vmcnt({vm.issued - tmi[0]})')
        poll('mp', ploads, [106, 110], pre=0)
        vm.done = done
        a('v_pk_add_f32 v[104:105], v[104:105], v[108:109]')
        a('s_lshr_b32 s36, s46, 5')
        a('s_cmp_eq_u32 s36, 1')
        for j in range(2): a(f'v_add_f32_dpp v{104+j}, v{104+j}, v{104+j} row_ror:8 row_mask:0xf bank_mask:0xf')
        a('s_cselect_b32 s38, 1.0, 0')
        a('s_cmp_eq_u32 s36, 4')
        for op in ('v_permlane16_swap_b32', 'v_permlane32_swap_b32'):
            for j in range(2): a(f'v_mov_b32 v{106+j}, v{104+j}')
            for j in range(2): a(f'{op} v{104+j}, v{106+j}')
            a('v_pk_add_f32 v[104:105], v[104:105], v[106:107]')
        a('s_cselect_b32 s38, 1.0, s38')
        a('s_lshl_b32 s36, s46, 6')
        a('v_cvt_pk_bf16_f32 v106, v104, v105')
        a(f's_add_u32 s36, s36, {hex(MODT)}')
        lo(a, 104, 106); hi(a, 105, 106, 40)
        for j in range(2): a(f'v_add_f32 v{104+j}, s38, v{104+j}')
        a('v_cvt_pk_bf16_f32 v108, v104, v105')
        a('v_mov_b32 v110, s50')
        a('v_mov_b32 v111, s50')
        a('v_mov_b32_dpp v109, v108 quad_perm:[1,1,3,3] row_mask:0xf bank_mask:0xf')
        a('v_lshlrev_b32 v104, 3, v1')
        a('s_mov_b64 exec, 0x55')
        a('buffer_store_dwordx4 v[108:111], v104, s[16:19], s36 offen sc1')
        a('s_mov_b64 exec, -1')
        a.label('L_nomod')
    ACC, AR, BR = 40, 72, 104
    pipe = LdsPipe(a)
    reads = []
    for i in range(32):
        o = 32*((31-i) & 7); b = 16 + ((31-i) >> 3); d = AR + 4*(i & 7)
        reads.append((('A', i, 0), f'ds_read2_b32 v[{d}:{d+1}], v{b} offset0:{o} offset1:{o+1}'))
        reads.append((('A', i, 1), f'ds_read2_b32 v[{d+2}:{d+3}], v{b} offset0:{o+2} offset1:{o+3}'))
        if i < 4:
            for t in range(8):
                j = 4*t+3-i
                reads.append((('B', j), f'ds_read_b128 v[{BR+4*j}:{BR+4*j+3}], v22 offset:{128*j}'))
    tok = {}; nxt = [0]
    def pump(cur_step, maxn):
        n = 0
        while n < maxn and nxt[0] < len(reads) and pipe.outstanding() < 13:
            key, line = reads[nxt[0]]
            if key[0] == 'A' and key[1] >= cur_step + 8: break
            tok[key] = pipe.issue(line); nxt[0] += 1; n += 1
    pump(0, 12)
    pending = []; nm = 0
    NB = P.get('e1', 6); EV = P.get('ev', 6)
    for i in range(32):
        for t in range(i >> 2, 8):
            j = 4*t+3-i
            while ('B', j) not in tok or ('A', i, 1) not in tok:
                pipe.need(pipe.done + 2); pump(i, 2)
            pipe.need(max(tok[('A', i, 1)], tok[('B', j)]))
            d = ACC+4*t; c = '0' if i == 0 else f'v[{d}:{d+3}]'
            s = AR+4*(i & 7)
            a(f'v_mfma_f32_16x16x32_bf16 v[{d}:{d+3}], v[{s}:{s+3}], v[{BR+4*j}:{BR+4*j+3}], {c}')
            pump(i, 2 if i < 4 else 1)
            nm += 1
            if nm >= P.get('e1s', 90) and nm % EV == 0 and NB > 0 and early:
                early.popleft()(); NB -= 1
            if i >= P.get('s1', 14): st1_step(2)
        if pending and pipe.outstanding() < 14:
            t = pending.pop()
            pipe.issue(f'ds_write_b128 v23, v[{ACC+4*t}:{ACC+4*t+3}] offset:{1024*t}')
        if (i & 3) == 3: pending.append(i >> 2)
    for t in pending:
        pipe.issue(f'ds_write_b128 v23, v[{ACC+4*t}:{ACC+4*t+3}] offset:{1024*t}')
    st1_step(1000)
    lstore([f'buffer_store_dwordx4 v[{T0}:{T0+3}], v244, s[16:19], s5 offen'])
    stamp('bend')
    a('v_lshlrev_b32 v4, 3, v0')
    a(f'v_add_u32 v4, {PRM}, v4')
    a('v_lshrrev_b32 v2, 1, v0')
    a('v_bfe_u32 v3, v0, 4, 2')
    a('v_xor_b32 v2, v2, v3')
    a('v_lshlrev_b32 v2, 4, v2')
    a('v_and_b32 v3, 1, v0')
    a('v_lshl_add_u32 v2, v3, 3, v2')
    a(f'v_add_u32 v2, {PB}, v2')
    a('v_lshlrev_b32 v3, 4, v0')
    a('v_and_b32 v5, 3, v0')
    a(f's_mul_i32 s38, s32, {YP}')
    a(f's_add_u32 s38, s38, {hex(YT)}')
    a(f'v_add_u32 v13, {PRM}, v15')
    a('s_and_b32 s36, s32, 7')
    a('s_lshl_b32 s36, s36, 1')
    a('s_and_b32 s37, s3, 1')
    a('s_or_b32 s36, s36, s37')
    a('s_lshl_b32 s36, s36, 6')
    a(f's_add_u32 s36, s36, {PRM+5120}')
    a('v_lshrrev_b32 v14, 5, v1')
    a('v_lshl_add_u32 v14, v14, 4, s36')
    a('s_waitcnt lgkmcnt(0)')
    a('s_barrier')
    stamp('pbar')
    for j in range(4):
        for w in range(4):
            a(f'ds_read_b64 v[{72+8*j+2*w}:{73+8*j+2*w}], v2 offset:{8192*w+2048*j}')
        if j == 2: a('s_waitcnt lgkmcnt(8)')
    mod_issue()
    for j in range(4):
        b = 72+8*j; q = 24+4*j
        if j: a(f's_waitcnt lgkmcnt({12-4*j})')
        a(f'v_pk_add_f32 v[{b}:{b+1}], v[{b}:{b+1}], v[{b+2}:{b+3}]')
        a(f'v_pk_add_f32 v[{b+4}:{b+5}], v[{b+4}:{b+5}], v[{b+6}:{b+7}]')
        a(f'v_mov_b32 v{q+2}, s50')
        a(f'v_mov_b32 v{q+3}, s50')
        a(f'v_cvt_pk_bf16_f32 v{q}, v{b}, v{b+4}')
        a(f'v_cvt_pk_bf16_f32 v{q+1}, v{b+1}, v{b+5}')
        tys = vm.issue(f'buffer_store_dwordx4 v[{q}:{q+3}], v3, s[16:19], s38 offen sc1')
        if j < 3: a('s_add_u32 s38, s38, 0x1000')
    stamp('ytst')
    a('v_mov_b32 v22, v4')
    a('v_mov_b32 v23, v14')
    mod_final(); raw(7, 's51')
    if P.get('mbar', 1): a('s_barrier')
    for _ in range(P.get('e2', 12)): early.popleft()()
    a('s_lshl_b32 s35, s3, 10')
    a(f's_add_u32 s35, s35, {hex(MODT)}')
    a('s_add_u32 s34, s35, 0x1000')
    a('s_add_u32 s4, s35, 0x2000')
    mloads = [f'buffer_load_dwordx4 v[{104+4*r}:{107+4*r}], v15, s[16:19], s{(35, 34, 4)[r]} offen sc1' for r in range(3)]
    a('v_lshrrev_b32 v4, 2, v0')
    a(f'v_mul_u32_u24 v3, {2*YS}, v5')
    a('v_lshl_add_u32 v3, v4, 2, v3')
    a(f'v_add_u32 v3, {XG}, v3')
    a(f's_mul_i32 s46, s3, {2*YS}')
    a(f's_add_u32 s46, s46, {XG}')
    a('v_add_u32 v4, s46, v15')
    a('s_lshl_b32 s46, s3, 1')
    a('v_xor_b32 v5, s46, v6')
    a('v_lshlrev_b32 v5, 4, v5')
    a('v_lshl_add_u32 v5, v1, 7, v5')
    a(f'v_add_u32 v5, {XH}, v5')
    a('v_xor_b32 v16, 16, v5')
    a('v_lshrrev_b32 v17, 3, v1')
    a('v_xor_b32 v18, v17, v6')
    a('v_lshlrev_b32 v18, 4, v18')
    a('v_lshl_add_u32 v18, v17, 7, v18')
    a('s_lshl_b32 s46, s3, 11')
    a(f's_add_u32 s46, s46, {XH}')
    a('v_add_u32 v18, s46, v18')
    a('v_lshlrev_b32 v17, 9, v17')
    a('v_lshl_add_u32 v17, v6, 4, v17')
    a('s_lshr_b32 s46, s32, 2')
    a('s_lshl_b32 s46, s46, 15')
    a('s_and_b32 s47, s32, 3')
    a('s_lshl_b32 s47, s47, 7')
    a('s_add_u32 s46, s46, s47')
    a('s_lshl_b32 s47, s3, 13')
    a('s_add_u32 s46, s46, s47')
    a(f's_add_u32 s46, s46, {hex(H2)}')
    a('s_add_u32 s47, s46, 0x1000')
    a(f's_add_u32 s37, s33, {hex(X1)}')
    a('v_lshrrev_b32 v14, 2, v0')
    a(f'v_mul_u32_u24 v14, {YP}, v14')
    a('v_and_b32 v19, 3, v0')
    a('v_lshl_add_u32 v14, v19, 4, v14')
    a('s_lshl_b32 s24, s32, 6')
    a(f's_add_u32 s26, s24, {hex(YT)}')
    a(f's_add_u32 s27, s26, {64*YP}')
    a(f's_add_u32 s5, s26, {128*YP}')
    a(f's_add_u32 s6, s26, {192*YP}')
    X = (64, 160)
    vm.need(tx)
    subs = []
    for t in range(2):
        s = Asm(); unpack8(s, X[t], 232+4*t, 40); ln_stats(s, X[t], X[t]+8, X[t]+16, 24+t)
        for p in range(4):
            s(f'v_pk_mul_f32 v[{X[t]+8+2*p}:{X[t]+9+2*p}], v[{X[t]+8+2*p}:{X[t]+9+2*p}], v[{X[t]+16}:{X[t]+17}] op_sel:[0,0] op_sel_hi:[1,0]')
        subs.append(s)
    zipl(a, *subs)
    stamp('ln1')
    yloads = [f'buffer_load_dwordx4 v[{24+4*j}:{27+4*j}], v14, s[16:19], s{(26, 27, 5, 6)[j]} offen sc1' for j in range(4)]
    vm.need(tys)
    stamp('ytack')
    for l in yloads: ty = vm.issue(l)
    for l in mloads: tm = vm.issue(l)
    poll('yt', yloads, [26, 30, 34, 38], pre=ty)
    stamp('ytok'); raw(2, 's51')
    for j in range(4):
        a(f'ds_write_b32 v3, v{24+4*j} offset:{256*j}')
        a(f'ds_write_b32 v3, v{25+4*j} offset:{256*j+YS}')
    poll('md', mloads, [106, 110, 114], pre=tm)
    stamp('mdok'); raw(1, 's51')
    for r in range(3): a(f'ds_write_b64 v22, v[{104+4*r}:{105+4*r}] offset:{2048*r}')
    a('s_waitcnt lgkmcnt(0)')
    a('s_barrier')
    stamp('ybar')
    for i, off in enumerate((1024, 0, 2048)):
        a(f'ds_read_b128 v[{40+4*i}:{43+4*i}], v13 offset:{off}')
    a('ds_read_b128 v[24:27], v4')
    a(f'ds_read_b128 v[28:31], v4 offset:{YS}')
    for i, off in enumerate((4096, 3072)):
        a(f'ds_read_b128 v[{52+4*i}:{55+4*i}], v13 offset:{off}')
    a('ds_read_b128 v[124:127], v23')
    a('ds_read_b128 v[116:119], v23 offset:32')
    a('s_waitcnt lgkmcnt(7)')
    unpack8(a, 128, 40, 40); unpack8(a, 136, 44, 40)
    for t in range(2):
        for p in range(4):
            d = X[t]+8+2*p
            a(f'v_pk_fma_f32 v[{d}:{d+1}], v[{d}:{d+1}], v[{128+2*p}:{129+2*p}], v[{136+2*p}:{137+2*p}]')
    a('s_waitcnt lgkmcnt(6)')
    unpack8(a, 144, 48, 40)
    for t in range(2):
        for p in range(4):
            d = X[t]+8+2*p
            a(f'v_pk_mul_f32 v[{d}:{d+1}], v[{d}:{d+1}], v[{144+2*p}:{145+2*p}]')
    a('s_waitcnt lgkmcnt(0)')
    unpack8(a, 128, 52, 40); unpack8(a, 136, 56, 40)
    subs = []
    for t in range(2):
        s = Asm(); x = X[t]
        unpack8(s, x+20, 24+4*t, 40)
        for p in range(4):
            s(f'v_pk_fma_f32 v[{x+2*p}:{x+2*p+1}], v[{x+8+2*p}:{x+9+2*p}], v[{x+20+2*p}:{x+21+2*p}], v[{x+2*p}:{x+2*p+1}]')
        for j in range(4): s(f'v_cvt_pk_bf16_f32 v{32+4*t+j}, v{x+2*j}, v{x+2*j+1}')
        s(f'buffer_store_dwordx4 v[{32+4*t}:{35+4*t}], v15, s[16:19], s37 offen offset:{1024*t} sc1')
        unpack8(s, x, 32+4*t, 40)
        ln_stats(s, x, x+8, x+16, 24+t)
        for p in range(4):
            s(f'v_pk_mul_f32 v[{x+8+2*p}:{x+9+2*p}], v[{x+8+2*p}:{x+9+2*p}], v[{x+16}:{x+17}] op_sel:[0,0] op_sel_hi:[1,0]')
        for p in range(4):
            s(f'v_pk_fma_f32 v[{x+8+2*p}:{x+9+2*p}], v[{x+8+2*p}:{x+9+2*p}], v[{128+2*p}:{129+2*p}], v[{136+2*p}:{137+2*p}]')
        for j in range(4): s(f'v_cvt_pk_bf16_f32 v{40+4*t+j}, v{x+8+2*j}, v{x+9+2*j}')
        s(f'ds_write_b128 v{(5, 16)[t]}, v[{40+4*t}:{43+4*t}]')
        subs.append(s)
    zipl(a, *subs)
    vm.issued += 2
    a('s_waitcnt lgkmcnt(0)')
    a('s_barrier')
    stamp('hbar')
    a('ds_read_b128 v[24:27], v18')
    a('ds_read_b128 v[28:31], v18 offset:1024')
    a('s_and_b32 s24, s32, 31')
    a('s_lshl_b32 s24, s24, 4')
    a('s_lshl_b32 s25, s3, 2')
    a('s_add_u32 s33, s24, s25')
    a('s_and_b32 s25, s30, 1')
    a('s_lshl_b32 s25, s25, 8')
    a('s_lshl_b32 s26, s3, 6')
    a('s_add_u32 s25, s25, s26')
    a('v_and_b32 v19, 15, v1')
    a('v_lshlrev_b32 v19, 2, v19')
    a('s_waitcnt lgkmcnt(0)')
    lstore(['buffer_store_dwordx4 v[24:27], v17, s[16:19], s46 offen', 'buffer_store_dwordx4 v[28:31], v17, s[16:19], s47 offen'], P.get('h2s', 0))
    stamp('h2st')
    a('v_bfe_u32 v4, v1, 4, 1')
    a('v_lshrrev_b32 v5, 5, v1')
    a('v_bfe_u32 v22, v1, 2, 2')
    a('v_and_b32 v23, 3, v1')
    a('v_lshlrev_b32 v23, 3, v23')
    a('v_lshl_add_u32 v3, v5, 3, v22')
    a('v_bfe_u32 v13, v1, 3, 1')
    a('v_lshlrev_b32 v16, 7, v3')
    a('v_add_u32 v16, v16, v23')
    a('v_lshl_add_u32 v16, v13, 6, v16')
    a('v_lshl_add_u32 v16, v4, 5, v16')
    a(f'v_mul_u32_u24 v17, {SEG[0][2]-SEG[0][1]}, v4')
    a(f'v_add_u32 v17, {SEG[0][1]}, v17')
    a(f'v_mul_u32_u24 v18, {P1U}, v4')
    for ct in range(4):
        a(f'v_xor_b32 v14, {32*ct}, v16')
        a(f'v_add_u32 v{246+ct}, v14, v17')
        a(f'v_add_u32 v{120+ct}, v14, v18')
    a('v_mul_u32_u24 v3, 0x60, v3')
    a('v_add_u32 v3, v3, v23')
    a('v_add_u32 v18, v18, v3')
    a('v_lshl_add_u32 v3, v5, 2, v22')
    a('v_lshlrev_b32 v3, 7, v3')
    a('v_lshl_add_u32 v3, v13, 6, v3')
    a('v_lshl_add_u32 v3, v4, 5, v3')
    a('v_add_u32 v3, v3, v23')
    a('s_lshl_b32 s26, s3, 11')
    a('v_add_u32 v240, s26, v3')
    a('v_xor_b32 v241, 64, v240')
    for i in range(1, 3):
        a(f'v_add_u32 v{240+2*i}, {65536*i}, v240')
        a(f'v_add_u32 v{241+2*i}, {65536*i}, v241')
    a(f's_mov_b32 s44, {fh(GC2)}'); a(f's_mov_b32 s45, {fh(GC2)}')
    a(f'v_mov_b32 v2, {fh(GC1)}'); a(f'v_mov_b32 v3, {fh(GC1)}')
    a('s_lshl_b32 s27, s30, 2')
    a('s_add_u32 s27, s27, s3')
    a('s_lshl_b32 s28, s27, 15')
    a(f's_add_u32 s28, s28, {hex(H2)}')
    a('v_add_u32 v14, s28, v15')
    a('s_lshl_b32 s28, s98, 12')
    a('s_waitcnt vmcnt(0)'); vm.done = vm.issued
    stamp('h2dr')
    lstore([f'buffer_store_dword v20, v21, s[52:55], s33 offen offset:{F1}'])
    while early: early.popleft()()
    a(f's_add_u32 s99, s48, {512*3584}')
    a(f's_mul_i32 s36, s98, {64*3584}')
    a('s_add_u32 s48, s48, s36')
    ptok = {}
    def p2dma(k):
        k0, gb, ub = seg_of(k)
        a(f's_add_u32 m0, {"s49" if k < 15 else "s43"}, {gb + 2048*(k-k0)}')
        if k and k % 4: a(f's_add_u32 s48, s48, {16*3584}')
        elif k: step('s48', 16*3584, 's99', 512*3584)
        ptok[k] = vm.issue('buffer_load_dwordx4 v7, s[20:23], s48 offen lds')
    NS0 = P.get('ns0', 0)
    for k in range(NS0): p2dma(k)
    a('s_mul_i32 s29, s27, 112')
    a('s_lshl_b32 s47, s3, 4')
    a('s_add_u32 s47, s47, s31')
    a(f's_mul_i32 s47, s47, {4*YP}')
    a('s_lshl_b32 s4, s30, 10')
    a(f's_add_u32 s4, s4, {hex(YT)}')
    a('s_add_u32 s47, s47, s4')
    a('s_mul_i32 s46, s31, 3')
    a('s_add_u32 s46, s46, s29')
    a('s_lshl_b32 s46, s46, 10')
    a(f's_add_u32 s46, s46, {hex(ACT + 64*1024)}')
    a('s_lshr_b32 s39, s32, 3')
    a('s_and_b32 s35, s39, 1')
    a('s_and_b32 s34, s39, 3')
    a('s_and_b32 s24, s32, 7')
    a('s_lshl_b32 s24, s24, 7')
    a(f's_mul_i32 s37, s3, {192*1024}')
    a('s_add_u32 s37, s37, s24')
    a(f's_add_u32 s30, s37, {1024*1024 + 12*16384}')
    a(f's_mul_i32 s36, s34, {3*16384}')
    a('s_add_u32 s37, s37, s36')
    a(f's_add_u32 s37, s37, {1024*1024}')
    a('s_lshl_b32 s38, s3, 18')
    a('s_add_u32 s38, s38, s24')
    a(f's_add_u32 s31, s38, {16*16384}')
    a('s_lshl_b32 s36, s34, 16')
    a('s_add_u32 s38, s38, s36')
    a('s_lshl_b32 s6, s35, 3')
    a('s_add_u32 s6, s6, s3')
    a(f's_mul_i32 s6, s6, {16*YP}')
    a('s_add_u32 s6, s6, s4')
    a(f's_add_u32 s42, s6, {16*YP}')
    a(f's_mul_i32 s36, s34, {4*YP}')
    a('s_add_u32 s6, s6, s36')
    a(f's_mul_i32 s4, s39, {224*1024}')
    a(f's_mul_i32 s5, s3, {12*1024}')
    a('s_add_u32 s5, s5, s4')
    a(f's_add_u32 s5, s5, {hex(ACT + 64*1024)}')
    a(f's_add_u32 s41, s5, {12*1024}')
    a(f's_mul_i32 s36, s34, {3*1024}')
    a('s_add_u32 s5, s5, s36')
    a('s_lshl_b32 s39, s39, 16')
    a('s_add_u32 s39, s39, s24')
    a('v_bfe_u32 v4, v1, 1, 2')
    a('v_and_b32 v5, 1, v1')
    a('v_lshlrev_b32 v5, 2, v5')
    a('v_lshl_add_u32 v4, v4, 4, v5')
    a('s_lshl_b32 s35, s35, 3')
    a('v_add_u32 v13, s35, v4')
    a(f'v_add_u32 v16, {112*1024}, v15')
    a(f'v_add_u32 v17, {64*YP}, v15')
    a('v_lshlrev_b32 v73, 7, v1')
    a('s_lshl_b32 s34, s2, 2')
    a('s_add_u32 s34, s34, s3')
    a(f's_mul_i32 s34, s34, {14*128}')
    poll('f1', [f'buffer_load_dword v22, v19, s[52:55], s25 offen offset:{F1} sc1'], [22])
    stamp('f1ok'); raw(3, 's51')
    htok = {}
    def h2load(ks):
        htok[ks] = vm.issue(f'buffer_load_dwordx4 a[{4*ks}:{4*ks+3}], v14, s[16:19], s28 offen offset:{1024*(ks&3)} sc1')
        if (ks & 3) == 3:
            a('s_add_u32 s28, s28, 0x1000'); a('s_and_b32 s28, s28, 0x7fff')
    NH0 = P.get('nh0', 8)
    for ks in range(NH0): h2load(ks)
    a('s_barrier')
    stamp('b0')
    hq, pq, wq = deque(), deque(), deque()
    wtok = {}; m0ok = [False]
    def wdslot(i):
        s = i % 20
        so, lim, n, i0 = ('s37', 's30', 12, 0) if i < 12 else ('s38', 's31', 16, 12)
        def f0():
            a(f's_add_u32 m0, s26, {8192*WBL[s]}')
            vm.issue(f'buffer_load_dwordx4 v8, s[8:11], {so} offen lds')
        def f1():
            if pq or len(ptok) < 32: a(f's_add_u32 m0, s26, {8192*WBL[s]}')
            elif not m0ok[0]: a(f's_add_u32 m0, s26, {8192*WBL[s]}'); m0ok[0] = True
            wtok[i] = vm.issue(f'buffer_load_dwordx4 v9, s[8:11], {so} offen offset:1024 lds')
            if (i - i0 + 1) % (n // 4): a(f's_add_u32 {so}, {so}, 0x4000')
            else: step(so, 0x4000, lim, n*0x4000)
        return [f0, f1]
    for ks in range(NH0, 32): hq.append(lambda ks=ks: h2load(ks))
    for k in range(NS0, 15): pq.append(lambda k=k: p2dma(k))
    valu = deque()
    AR, NA = 24, 6
    ACC1, ACC2 = 192, 128
    pipe = LdsPipe(a)
    steps = [(0, k, ct) for k in range(32) for ct in range(3)] + [(1, k, ct) for k in range(32) for ct in range(4)]
    tok = {}; nxt = [0]
    def rd(n):
        ps, k, ct = steps[n]; d = AR + 4*(n % NA)
        for jj in range(2):
            if ps == 0: b, off = 18, (16*k + 4*jj)*96 + 32*ct
            else:
                k0, gb, ub = seg_of(k)
                b, off = (246+ct, 2048*k + 512*jj) if k < 15 else (120+ct, gb + 2048*(k-k0) + 512*jj)
            tok[n] = pipe.issue(f'ds_read_b64_tr_b16 v[{d+2*jj}:{d+2*jj+1}], v{b} offset:{off}')
    for n in range(NA-1): rd(n)
    nxt[0] = NA-1
    VB = P.get('vb', 25); PE = P.get('pe', 3); WE = P.get('we', 3)
    stok = {}; nw = 0; credit = 0; nb = 0; fload = [f'buffer_load_dword v22, v13, s[52:55], s25 offen offset:{F2} sc1']; tp = None
    for n, (ps, k, ct) in enumerate(steps):
        if ps == 0 and ct == 0:
            while k not in htok: hq.popleft()()
            vm.need(htok[k])
        pipe.need(tok[n])
        d = (ACC1, ACC2)[ps] + 16*ct; c = '0' if k == 0 else f'v[{d}:{d+15}]'
        sa = AR + 4*(n % NA)
        a(f'v_mfma_f32_32x32x16_bf16 v[{d}:{d+15}], v[{sa}:{sa+3}], a[{4*k}:{4*k+3}], {c}')
        if nxt[0] < len(steps): rd(nxt[0]); nxt[0] += 1
        if ct == (2, 3)[ps] and (ps, k) in BARS:
            land, free = BARS[(ps, k)]
            if land is not None:
                while land not in ptok: pq.popleft()()
                vm.need(ptok[land])
            a('s_barrier')
            nb += 1; stamp(f'b{nb}')
            if (ps, k) == (0, 15):
                for kk in range(15, 27): pq.append(lambda kk=kk: p2dma(kk))
            if (ps, k) == (0, 23):
                for kk in range(27, 32): pq.append(lambda kk=kk: p2dma(kk))
            while nw < min(free, 16):
                wq.extend(wdslot(nw)); nw += 1
        if n == P.get('wt', 60):
            a('s_mov_b64 exec, 0x3fff')
            vm.issue('buffer_load_dword v72, v73, s[8:11], s34 offen')
            a('s_mov_b64 exec, -1')
        if n == 95:
            stamp('p1end')
            for t in range(3):
                o = 64 + 4*(t & 1)
                valu.extend(gelu_ops(ACC1+16*t, 48 + 8*(t & 1), o))
                valu.append(('store', t, o))
        if hq: hq.popleft()()
        elif pq and n % PE == 0: pq.popleft()()
        elif wq and n % WE == (1 % WE): wq.popleft()()
        credit = min(credit + VB, 30)
        while n > 97 and valu and credit >= 10*(cost(valu[0]) if isinstance(valu[0], str) else 1):
            x = valu.popleft()
            if isinstance(x, tuple):
                stok[x[1]] = vm.issue(f'buffer_store_dwordx4 v[{x[2]}:{x[2]+3}], v15, s[16:19], s46 offen offset:{1024*x[1]} sc1')
                if x[1] == 2: flag_at = n + P.get('fdel', 20); print('pass-1 act stored at', n)
            else:
                a(x); credit -= 10*cost(x)
        if 2 in stok and 'f2' not in stok and n >= flag_at:
            vm.need(stok[2])
            stok['f2'] = lstore([f'buffer_store_dword v20, v21, s[52:55], s33 offen offset:{F2}'])
    while valu:
        x = valu.popleft()
        if isinstance(x, tuple):
            stok[x[1]] = vm.issue(f'buffer_store_dwordx4 v[{x[2]}:{x[2]+3}], v15, s[16:19], s46 offen offset:{1024*x[1]} sc1')
        else: a(x)
    if 'f2' not in stok:
        vm.need(stok[2])
        stok['f2'] = lstore([f'buffer_store_dword v20, v21, s[52:55], s33 offen offset:{F2}'])
    assert not pq and not hq
    tp = vm.issue(fload[0])
    a('s_mov_b32 s34, 1.0'); a('s_mov_b32 s35, 1.0')
    def geglu2(t):
        s = Asm(); geglu(s, ACC2+16*t, 48, 64 + 4*(t & 1))
        for l in s.lines: a(l.replace('s[46:47]', 's[34:35]'))
        if t: a(f's_add_u32 s47, s47, {YP}')
        return lstore([f'buffer_store_dwordx4 v[{64+4*(t&1)}:{67+4*(t&1)}], v15, s[16:19], s47 offen'], P.get('a2s', 0))
    atok = {}
    def abase(i): return 128 + 8*i if i < 12 else 8*(i-12)
    def actload(i):
        b = abase(i)
        so, v2, inc, lim, n, i0 = ('s5', 16, 1024, 's41', 12, 0) if i < 12 else ('s6', 17, YP, 's42', 16, 12)
        vm.issue(f'buffer_load_dwordx4 a[{b}:{b+3}], v15, s[16:19], {so} offen sc1')
        atok[i] = vm.issue(f'buffer_load_dwordx4 a[{b+4}:{b+7}], v{v2}, s[16:19], {so} offen sc1')
        if (i - i0 + 1) % (n // 4): a(f's_add_u32 {so}, {so}, {inc}')
        else: step(so, inc, lim, n*inc)
    FP = P.get('fp', 1)
    for t in range(FP): geglu2(t)
    stamp('g1')
    poll('f2', fload, [22], pre=tp)
    stamp('f2ok'); raw(4, 's51')
    NA1 = P.get('na1', 6)
    for i in range(NA1): actload(i)
    for t in range(FP, 4): ts3 = geglu2(t)
    stamp('g3')
    for i in range(NA1, 12): actload(i)
    a('v_and_b32 v4, 31, v1')
    a('v_lshrrev_b32 v5, 5, v1')
    a('v_lshlrev_b32 v10, 10, v4')
    a('v_lshl_add_u32 v10, v5, 4, v10')
    a('s_lshr_b32 s46, s3, 1')
    a('s_lshl_b32 s46, s46, 15')
    a('s_and_b32 s47, s3, 1')
    a('s_lshl_b32 s47, s47, 6')
    a('s_add_u32 s39, s39, s46')
    a('s_add_u32 s39, s39, s47')
    a(f's_add_u32 s46, s39, {hex(X1)}')
    vm.need(ts3)
    lstore([f'buffer_store_dword v20, v21, s[52:55], s33 offen offset:{F3}'])
    stamp('estart')
    for i in range(16, 20): wq.extend(wdslot(i))
    pipe = LdsPipe(a); tok = {}
    def rd2(i):
        d = AR + 8*(i % 3); ad = 8192*WBL[i % 20]
        while i not in wtok: wq.popleft()()
        vm.need(wtok[i])
        for mt in range(2):
            for jj in range(2):
                tok[(i, mt)] = pipe.issue(f'ds_read_b64_tr_b16 v[{d+4*mt+2*jj}:{d+4*mt+2*jj+1}], v{240+2*(ad>>16)+mt} offset:{(ad & 0xffff)+1024*jj}')
    rd2(0); rd2(1)
    f3load = [f'buffer_load_dword v22, v13, s[52:55], s25 offen offset:{F3} sc1']
    F3P = P.get('f3p', 10)
    for i in range(28):
        stamp(f'e{i}')
        if i == F3P:
            while wq: wq.popleft()()
            tp = vm.issue(f3load[0])
        if i == 12:
            poll('f3', f3load, [22], pre=tp)
            stamp('f3ok'); raw(5, 's51')
            for ii in range(12, 28): actload(ii)
            vm.issue('buffer_load_dwordx4 v[72:75], v10, s[16:19], s46 offen sc1')
            tx = vm.issue('buffer_load_dwordx4 v[76:79], v10, s[16:19], s46 offen offset:32 sc1')
        d0 = AR + 8*(i % 3); b = abase(i)
        vm.need(atok[i])
        for mt in range(2):
            pipe.need(tok[(i, mt)])
            if mt == 1 and i < 8: wq.extend(wdslot(20+i))
            for nt in range(2):
                d = ACC2 + 32*mt + 16*nt; c = '0' if i == 0 else f'v[{d}:{d+15}]'
                a(f'v_mfma_f32_32x32x16_bf16 v[{d}:{d+15}], v[{d0+4*mt}:{d0+4*mt+3}], a[{b+4*nt}:{b+4*nt+3}], {c}')
                if mt == 0 and nt == 0 and i+2 < 28: rd2(i+2)
                elif wq: wq.popleft()()
    stamp('eend')
    PBL = [(WBL[8], WBL[9]), (WBL[10], WBL[11]), (WBL[12], WBL[13]), (WBL[14], WBL[15])]
    a('v_add_u32 v4, s26, v15')
    a('v_add_u32 v5, 0x10000, v4')
    a('v_add_u32 v18, 0x20000, v4')
    base(a, 12, 56, 0x200000)
    for o in range(4):
        a(f's_cmp_eq_u32 s3, {o}')
        a(f's_cbranch_scc1 L_own{o}')
        d = ACC2 + 32*(o & 1) + 16*(o >> 1)
        for g in range(4):
            ad = 8192*PBL[o][g >> 1] + 1024*(g & 1)
            a(f'ds_write_b128 v{(4, 5, 18)[ad >> 16]}, v[{d+4*g}:{d+4*g+3}] offset:{ad & 0xffff}')
        a(f's_branch L_nown{o}')
        a.label(f'L_own{o}')
        for g in range(16): a(f'v_mov_b32 v{24+g}, v{d+g}')
        a(f's_mov_b32 s4, {8192*PBL[o][0]}')
        a(f's_mov_b32 s5, {8192*PBL[o][1]}')
        a.label(f'L_nown{o}')
    for i in range(1, 4):
        a(f's_add_u32 s6, s26, {2048*i}')
        a('s_and_b32 s6, s6, 0x1fff')
        a('s_add_u32 s7, s6, s5')
        a('s_add_u32 s6, s6, s4')
        a(f'v_add_u32 v{88+2*i}, s6, v15')
        a(f'v_add_u32 v{89+2*i}, s7, v15')
    vm.need(tx)
    unpack8(a, 96, 124, 40); unpack8(a, 104, 116, 40); unpack8(a, 48, 72, 40); unpack8(a, 56, 76, 40)
    a('s_waitcnt lgkmcnt(0)')
    a('s_barrier')
    stamp('ebar')
    for i in range(1, 4):
        for g in range(4):
            a(f'ds_read_b128 v[{112+16*i+4*g}:{115+16*i+4*g}], v{88+2*i+(g >> 1)} offset:{1024*(g & 1)}')
    for i in range(1, 4):
        a(f's_waitcnt lgkmcnt({12-4*i})')
        for p in range(8): a(f'v_pk_add_f32 v[{24+2*p}:{25+2*p}], v[{24+2*p}:{25+2*p}], v[{112+16*i+2*p}:{113+16*i+2*p}]')
    for g in range(2):
        b = 24 + 8*g
        for r in range(4): a(f'v_permlane32_swap_b32 v{b+r}, v{b+4+r}')
        for p in range(4): a(f'v_pk_fma_f32 v[{b+2*p}:{b+2*p+1}], v[{b+2*p}:{b+2*p+1}], v[{96+8*g+2*p}:{97+8*g+2*p}], v[{48+8*g+2*p}:{49+8*g+2*p}]')
        for p in range(4): a(f'v_cvt_pk_bf16_f32 v{40+4*g+p}, v{b+2*p}, v{b+2*p+1}')
        a(f'buffer_store_dwordx4 v[{40+4*g}:{43+4*g}], v10, s[12:15], s39 offen offset:{32*g}' + ('', ' sc1', ' nt')[P.get('ost', 0)])
    a('s_or_b32 s4, s2, s3')
    a('s_cmp_lg_u32 s4, 0')
    a('s_cbranch_scc1 L_noep')
    a(f's_mov_b32 s4, {hex(EPOCH)}')
    a('buffer_store_dword v20, v21, s[16:19], s4 offen')
    a.label('L_noep')
    if P.get('probe') is not None:
        a('s_waitcnt vmcnt(0)')
        stamp('end')
        a('s_waitcnt lgkmcnt(0)')
        k = P['probe']
        if k == 0:
            a('s_add_u32 s92, s60, 6000')
        else:
            a(f's_sub_u32 s92, s{60+2*k}, s60')
            a('s_lshl_b32 s92, s92, 2')
            a('s_add_u32 s92, s92, s60')
            a('s_add_u32 s92, s92, 4000')
        a.label('L_probe')
        a('s_memrealtime s[94:95]')
        a('s_waitcnt lgkmcnt(0)')
        a('s_sub_u32 s94, s94, s92')
        a('s_cmp_lt_i32 s94, 0')
        a('s_cbranch_scc1 L_probe')
    elif P.get('stamps'):
        a('s_waitcnt vmcnt(0)')
        stamp('end')
        a('s_cmp_lg_u32 s3, 0')
        a('s_cbranch_scc1 L_end')
        a('s_lshl_b32 s94, s2, 7')
        a(f's_add_u32 s94, s94, {hex(TS)}')
        a('s_add_u32 s92, s58, s94')
        a('s_addc_u32 s93, s59, 0')
        a('v_lshlrev_b32 v250, 2, v1')
        a('s_lshl_b32 s94, s2, 8')
        a(f's_add_u32 s94, s94, {hex(TS + 0x80000)}')
        a('s_add_u32 s94, s58, s94')
        a('s_addc_u32 s95, s59, 0')
        a('global_store_dword v250, v254, s[94:95]')
        a('s_mov_b64 exec, 1')
        if P.get('dbg'):
            a('s_load_dwordx2 s[94:95], s[0:1], 104')
        a('s_waitcnt lgkmcnt(0)')
        if P.get('dbg'):
            a('s_not_b32 s60, s60')
            for m in sorted(marks):
                a(f'v_mov_b32 v250, s{60+2*m}')
                a(f'global_atomic_umax v21, v250, s[94:95] offset:{4*m}')
                a('s_nop 1')
            a('s_not_b32 s60, s60')
        for m in sorted(marks):
            a(f'v_mov_b32 v250, s{60+2*m}')
            a(f'v_mov_b32 v251, s{61+2*m}')
            a(f'global_store_dwordx2 v21, v[250:251], s[92:93] offset:{8*m}')
            a('s_nop 1')
    a.label('L_end')
    a.label('L_last')
    a('s_endpgm')
    return dict(grid=256, block=256, lds=163840, vgpr=512, accum=256)
```

```python
from collections import deque
from asmlib import *
from k123 import fh, lo, hi, unpack8, ln_stats, LdsPipe, A_OUT, A_WS
from k45 import VmPipe, GC1, GC2, geglu
from cde import zipl, gelu_ops, cost

UT, YT, X1, H2, ACT = 0, 0x400000, 0x900000, 0, 0xD00000
MODT, EPOCH, GRP, MP, TS = 0x1400000, 0x1408000, 0x1410000, 0x1480000, 0x1500000
YP = 16384 + 128
XID, UH, F1, F2, F3 = 0, 128, 1024, 1536, 2048
P1U = 49280
SEG = [(0, 98432, 129152), (15, 0, 49280), (27, 24576, 73856)]
CB, CHS, KB, U0, U1 = 98432, 12992, 512, 4608, 8768
PB = CB + 2*CHS
PRM = PB + 32768
MPART = PRM + 6144
XG = 129152 + 112*128
YS = 1040
XH = XG + 8*YS
PS = 272
SPIN = 1 << 15
WBL = [5, 11, 12, 13, 14, 16, 17, 18, 15, 19, 0, 6, 1, 2, 7, 8, 3, 4, 9, 10]
BARS = {(0, 15): (None, 0), (0, 23): (None, 0), (0, 29): (6, 0), (1, 4): (14, 2), (1, 12): (22, 8), (1, 20): (31, 12), (1, 27): (None, 16), (1, 31): (None, 20)}
assert MPART + 512 <= 163840 and XH + 8192 <= 163840
def seg_of(k): return SEG[0] if k < 15 else SEG[1] if k < 27 else SEG[2]

def base(a, d, p, n):
    a(f's_mov_b32 s{d}, s{p}'); a(f's_mov_b32 s{d+1}, s{p+1}'); a(f's_mov_b32 s{d+2}, {hex(n)}')

def mega(a, P):
    marks = set()
    SETS = {1: 'start kv0 utst utok bbar end bend ytst ytok h2dr b0 p1end b8 estart f3ok eend',
            2: 'start kv0 kvN abar utst end ut1st uhok utok bbar bend pbar ytst ytack ytok mdok',
            3: 'start ytst ln1 ytack ytok end ybar hbar h2st h2dr f1ok b0 b1 b2 b3 p1end',
            5: 'start karg x2 x3 x4 end x6 x7 x8 x9 x10 x11 x12 kv0 issued pre',
            4: 'start p1end b5 b6 b7 end b8 g1 f2ok g3 estart e12 f3ok e20 eend ebar'}
    names = SETS[P.get('stamps', 1)].split()
    def stamp(name):
        if P.get('stamps') and name in names:
            slot = names.index(name)
            a(f's_memrealtime s[{60+2*slot}:{61+2*slot}]'); marks.add(slot)
    def raw(i, sreg):
        if P.get('stamps'): a(f'v_writelane_b32 v254, {sreg}, {i}')
    vm = VmPipe(a)
    NT = ' nt' if P.get('nt', 1) else ''
    nst = [0]
    def lstore(lines, through=False):
        if through:
            for l in lines: t = vm.issue(l + ' sc1')
            return t
        return lstore2(lines)
    def lstore2(lines):
        n = nst[0]; nst[0] += 1
        a('s_cmp_eq_u32 s101, 0')
        a(f's_cbranch_scc1 L_ls{n}a')
        for l in lines: a(l + ' sc1')
        a(f's_branch L_ls{n}b')
        a.label(f'L_ls{n}a')
        for l in lines: t = vm.issue(l)
        a.label(f'L_ls{n}b')
        return t
    def poll(name, loads, tags, pre=None):
        a(f's_mov_b32 s51, {SPIN}')
        if pre is not None:
            vm.need(pre)
            stamp(name + '1st')
            a(f's_branch L_{name}_chk')
        a.label(f'L_{name}')
        for l in loads: a(l)
        a('s_waitcnt vmcnt(0)')
        a.label(f'L_{name}_chk')
        a(f'v_cmp_ne_u32 vcc, s50, v{tags[0]}')
        for i, t in enumerate(tags[1:]): a(f'v_cmp_ne_u32 s[{92+2*i}:{93+2*i}], s50, v{t}')
        a('s_sub_u32 s51, s51, 1')
        a(f's_cbranch_scc1 L_{name}_ok')
        for i in range(len(tags)-1): a(f's_or_b64 vcc, vcc, s[{92+2*i}:{93+2*i}]')
        a(f's_cbranch_vccnz L_{name}')
        a.label(f'L_{name}_ok')
        if pre is None: vm.done = vm.issued

    a('s_cmp_ge_u32 s2, 256')
    a('s_cbranch_scc1 L_end')
    stamp('start')
    if P.get('stamps'): a('v_mov_b32 v254, 0')
    a('s_load_dwordx16 s[64:79], s[0:1], 0')
    if P.get('cpf', 1):
        a('s_getpc_b64 s[4:5]')
        a.label('L_pc')
        a('v_lshlrev_b32 v3, 7, v0')
        a('v_mov_b32 v5, s5')
        a('v_add_co_u32 v4, vcc, s4, v3')
        a(f'v_cmp_gt_u32 s[6:7], {P.get("cpn", 16)}, v0')
        a('v_and_b32 v1, 63, v0')
        a('v_addc_co_u32 v5, vcc, 0, v5, vcc')
        a('s_and_b64 exec, exec, s[6:7]')
        a('s_cbranch_execz L_nopf')
        a('global_load_dword v169, v[4:5], off')
        a.label('L_nopf')
        a('s_mov_b64 exec, -1')
    else: a('v_and_b32 v1, 63, v0')
    a(f's_load_dwordx2 s[58:59], s[0:1], {A_WS}')
    a('s_load_dwordx8 s[80:87], s[0:1], 64')
    a(f's_load_dwordx2 s[56:57], s[0:1], {A_OUT}')
    a('v_lshrrev_b32 v2, 6, v0')
    a('v_readfirstlane_b32 s3, v2')
    a('s_mov_b32 s40, 0xffff0000')
    a('s_and_b32 s28, s2, 7')
    a('s_lshr_b32 s29, s2, 3')
    a('s_lshl_b32 s32, s28, 5')
    a('s_or_b32 s32, s32, s29')
    a('v_and_b32 v3, 31, v0')
    a('v_lshrrev_b32 v2, 5, v0')
    a('s_lshl_b32 s33, s29, 6')
    a('v_lshl_add_u32 v4, v2, 3, s33')
    a('s_lshl_b32 s33, s28, 7')
    a('v_lshl_add_u32 v5, v3, 2, s33')
    a('v_lshl_add_u32 v5, v4, 10, v5')
    a('v_subrev_u32 v4, 0xc00, v5')
    a('s_lshl_b32 s33, s28, 9')
    a('v_lshl_add_u32 v13, v3, 4, s33')
    a('s_movk_i32 s35, 0x1000')
    a('s_mov_b32 s15, 0x20000'); a('s_mov_b32 s27, 0x20000'); a('s_mov_b32 s19, 0x20000')
    a('s_mov_b32 s23, 0x20000'); a('s_mov_b32 s11, 0x20000'); a('s_mov_b32 s55, 0x20000')
    a('v_lshlrev_b32 v15, 4, v1')
    a('v_mov_b32 v21, 0')
    a('v_lshlrev_b32 v14, 4, v0')
    a('s_waitcnt lgkmcnt(0)')
    stamp('karg')
    base(a, 12, 70, 4096)
    base(a, 24, 68, 0x200000)
    tsh = vm.issue('buffer_load_dwordx4 v[48:51], v13, s[12:15], 0 offen' + NT)
    base(a, 12, 66, 0x200000)
    for i in range(3): vm.issue(f'buffer_load_dword v{24+i}, v4, s[12:15], 0 offen offset:{1024*i}' + NT)
    tk = {}
    for i in range(8):
        so = 's35' if i >= 4 else '0'
        vm.issue(f'buffer_load_dword v{27+i}, v5, s[12:15], {so} offen offset:{1024*(i&3)}' + NT)
        tk[i] = vm.issue(f'buffer_load_dword v{36+i}, v5, s[24:27], {so} offen offset:{1024*(i&3)}' + NT)
    stamp('issued')
    a(f's_add_u32 s4, s58, {hex(EPOCH)}')
    a('s_addc_u32 s5, s59, 0')
    a('s_load_dword s50, s[4:5], 0')
    if P.get('cpf', 1):
        a('s_getpc_b64 s[6:7]')
        a.label('L_pc2')
        a('s_lshl_b32 s36, s29, 2')
        a('s_add_u32 s36, s36, s3')
        a('v_and_b32 v4, 1, v0')
        a('v_lshl_add_u32 v4, s36, 1, v4')
        a('v_min_u32 v4, (L_last-L_pc2)/128, v4')
        a('v_lshlrev_b32 v4, 7, v4')
        a('v_mov_b32 v5, s7')
        a('v_add_co_u32 v4, vcc, s6, v4')
        a('v_addc_co_u32 v5, vcc, 0, v5, vcc')
        a('s_mov_b64 exec, 3')
        vm.issue('global_load_dword v168, v[4:5], off')
        a('s_mov_b64 exec, -1')
    if P.get('kvbar', 1): a('s_barrier')
    a('s_lshl_b32 s33, s32, 2')
    a('s_add_u32 s6, s74, s33')
    a('s_addc_u32 s7, s75, 0')
    a('s_load_dword s34, s[6:7], 0')
    base(a, 12, 72, 0x200000)
    a('s_lshl_b32 s33, s32, 13')
    a('s_add_u32 s36, s33, 0x1000')
    vm.issue('buffer_load_dwordx4 v[146:149], v14, s[12:15], s33 offen' + NT)
    tsk = vm.issue('buffer_load_dwordx4 v[150:153], v14, s[12:15], s36 offen' + NT)
    a('s_mul_i32 s30, s28, 6')
    a('s_lshr_b32 s31, s29, 2')
    a('s_add_u32 s30, s30, s31')
    a('s_and_b32 s31, s29, 3')
    a('s_lshl_b32 s46, s30, 2')
    a('s_or_b32 s46, s46, s31')
    a('s_lshl_b32 s47, s31, 2')
    a('s_or_b32 s47, s47, s3')
    a('v_and_b32 v16, 1, v0')
    a('v_lshrrev_b32 v17, 3, v1')
    a('v_and_b32 v6, 7, v1')
    a('v_mul_u32_u24 v242, 0x6000, v17')
    a('v_lshl_add_u32 v242, v6, 4, v242')
    a('v_lshlrev_b32 v243, 3, v17')
    a('s_lshl_b32 s36, s3, 11')
    a('s_add_u32 s33, s33, s36')
    a('s_lshr_b32 s30, s32, 4')
    a('s_and_b32 s31, s32, 15')
    a('s_and_b32 s98, s30, 1')
    a('s_lshl_b32 s98, s98, 2')
    a('s_add_u32 s98, s98, s28')
    a('s_and_b32 s98, s98, 7')
    a('s_lshr_b32 s38, s3, 1')
    a('s_and_b32 s39, s3, 1')
    a('s_cmp_eq_u32 s38, 0')
    a('s_cselect_b32 s20, s78, s80')
    a('s_cselect_b32 s21, s79, s81')
    a(f's_mov_b32 s22, {512*3584}')
    base(a, 8, 82, 1792*1024)
    base(a, 16, 58, TS)
    a('s_lshl_b32 s36, s28, 12')
    a(f's_add_u32 s36, s36, {hex(GRP)}')
    a('s_add_u32 s52, s58, s36')
    a('s_addc_u32 s53, s59, 0')
    a('s_movk_i32 s54, 0x1000')
    a('s_cmp_eq_u32 s3, 3')
    a('s_cselect_b32 s37, 0, 0x70000000')
    a('v_mov_b32 v22, s37')
    a('s_lshl_b32 s36, s29, 7')
    vm.issue('buffer_load_dword v158, v22, s[52:55], s36 offen')
    a('s_lshl_b32 s36, s46, 6')
    a(f's_add_u32 s36, s36, {hex(MODT)}')
    vm.issue('buffer_load_dword v159, v22, s[16:19], s36 offen')
    a('s_lshl_b32 s36, s32, 13')
    a('s_lshl_b32 s37, s46, 11')
    a(f's_add_u32 s37, s37, {hex(MP)}')
    a('s_cmp_eq_u32 s3, 1')
    a(f's_cselect_b32 s37, s37, {hex(TS)}')
    a('s_cselect_b32 s44, 15, 63')
    a('s_cmp_eq_u32 s3, 2')
    a('s_cselect_b32 s37, s36, s37')
    a('v_and_b32 v4, s44, v1')
    a('v_lshlrev_b32 v4, 7, v4')
    if P.get('utt', 1): vm.issue('buffer_load_dword v157, v4, s[16:19], s37 offen' + (NT if P.get('ntu', 1) else ''))
    if P.get('tlb', 0) == 1:
        a('v_lshl_add_u32 v4, v1, 20, v22')
        for i, (p, n) in enumerate(((86, 512*6144), (84, 1024), (64, 0x200000), (78, 512*3584), (80, 512*3584), (82, 1792*1024), (56, 0x200000))):
            base(a, 12, p, n)
            vm.issue(f'buffer_load_dword v{160+i}, v4, s[12:15], 0 offen')
        vm.issue('buffer_load_dword v154, v4, s[16:19], 0 offen')
    for i in range(3):
        a(f'v_add_u32 v4, {64*i}, v1')
        a('v_mul_u32_u24 v5, 0x2aab, v4')
        a('v_lshrrev_b32 v5, 16, v5')
        a(f'v_mul_u32_u24 v5, {3584-96}, v5')
        a(f'v_lshl_add_u32 v{10+i}, v4, 4, v5')
        if i: a(f'v_subrev_u32 v{10+i}, {1024*i}, v{10+i}')
    a(f's_mul_i32 s41, s39, {32*3584}')
    a('s_mul_i32 s43, s31, 96')
    a('s_add_u32 s41, s41, s43')
    a('s_add_u32 s41, s41, 0x800')
    a('s_mul_i32 s43, s39, 3072')
    a(f's_mul_i32 s42, s38, {P1U}')
    a('s_add_u32 s42, s42, s43')
    a(f's_add_u32 s99, s41, {512*3584}')
    a(f's_mul_i32 s36, s98, {64*3584}')
    a('s_add_u32 s41, s41, s36')
    def step(reg, inc, lim, span):
        a(f's_add_u32 {reg}, {reg}, {inc}')
        a(f's_cmp_eq_u32 {reg}, {lim}')
        a(f's_cselect_b32 s36, {span}, 0')
        a(f's_sub_u32 {reg}, {reg}, s36')
    early = deque()
    def p1dma(m, i):
        if i == 0: a(f's_add_u32 m0, s42, {6144*m}')
        vm.issue(f'buffer_load_dwordx4 v{10+i}, s[20:23], s41 offen offset:{1024*i} lds')
        if i == 2 and m < 7: step('s41', 64*3584, 's99', 512*3584)
    for m in range(8):
        for i in range(3): early.append(lambda m=m, i=i: p1dma(m, i))
    for _ in range(P.get('e0', 0)): early.popleft()()
    a('v_lshrrev_b32 v4, 3, v1')
    a('v_bfe_u32 v5, v1, 4, 1')
    a('v_lshlrev_b32 v5, 2, v5')
    a('v_xor_b32 v5, v5, v6')
    a('v_lshlrev_b32 v5, 4, v5')
    a('v_lshl_add_u32 v8, v4, 10, v5')
    a(f'v_add_u32 v9, {8192-1024}, v8')
    a('s_lshl_b32 s43, s38, 5')
    a('v_xor_b32 v5, s43, v5')
    a('v_mul_u32_u24 v7, 0xe00, v4')
    a('v_add_u32 v7, v7, v5')
    a(f's_mul_i32 s48, s39, {8*3584}')
    a('s_lshl_b32 s43, s31, 7')
    a('s_add_u32 s48, s48, s43')
    a('s_lshl_b32 s43, s39, 10')
    a(f's_mul_i32 s49, s38, {SEG[0][2]-SEG[0][1]}')
    a('s_add_u32 s49, s49, s43')
    a(f's_mul_i32 s38, s38, {P1U}')
    a('s_add_u32 s43, s43, s38')
    a('v_sub_u32 v4, 7, v2')
    a('v_xor_b32 v4, v4, v6')
    a('v_lshl_add_u32 v4, v3, 4, v4')
    a(f'v_lshlrev_b32 v4, 4, v4')
    a(f'v_add_u32 v120, {PB}, v4')
    a('v_lshrrev_b32 v4, 4, v1')
    a('v_xor_b32 v5, v4, v1')
    a('s_lshl_b32 s36, s3, 11')
    a(f's_add_u32 s36, s36, {PB}')
    a('v_lshl_add_u32 v124, v5, 4, s36')
    a('v_xor_b32 v125, 64, v124')
    a('v_lshrrev_b32 v4, 3, v1')
    a('v_lshlrev_b32 v5, 4, v6')
    a('v_lshl_add_u32 v13, v4, 12, v5')
    a('s_lshl_b32 s36, s28, 2')
    a('s_add_u32 s36, s36, s3')
    a('s_lshl_b32 s36, s36, 16')
    a('s_sub_u32 s35, 31, s29')
    a('s_lshl_b32 s35, s35, 7')
    a('s_add_u32 s35, s35, s36')
    a('s_waitcnt lgkmcnt(0)')
    a('s_mul_i32 s50, s50, 1664525')
    a('s_add_u32 s50, s50, 1013904223')
    a('v_mov_b32 v20, s50')
    a('s_getreg_b32 s100, hwreg(HW_REG_XCC_ID, 0, 4)')
    if P.get('slow'): a('s_and_b32 s100, s29, 1')
    a('s_add_u32 s100, s100, s50')
    a('s_add_u32 s100, s100, 1')
    a('s_cmp_lg_u32 s3, 0')
    a('s_cbranch_scc1 L_noid')
    a('v_mov_b32 v22, s100')
    a('s_lshl_b32 s36, s29, 2')
    a(f'buffer_store_dword v22, v21, s[52:55], s36 offen offset:{XID} sc1')
    a.label('L_noid')
    if P.get('probe', 0) >= 100:
        a('v_mov_b32 v22, s60')
        a('s_lshl_b32 s36, s2, 2')
        a(f's_add_u32 s36, s36, {hex(0x140A000)}')
        vm.issue('buffer_store_dword v22, v21, s[16:19], s36 offen sc1')
    stamp('pre')
    vm.need(tsh)
    lo(a, 52, 48); hi(a, 54, 48, 40); lo(a, 56, 49); hi(a, 58, 49, 40)
    lo(a, 53, 50); hi(a, 55, 50, 40); lo(a, 57, 51); hi(a, 59, 51, 40)
    vm.need(tk[0])
    stamp('kv0')
    for q in range(3):
        lo(a, 60+2*q, 24+q); hi(a, 61+2*q, 24+q, 40)
    for r in range(8):
        vm.need(tk[r])
        lo(a, 66+2*r, 27+r); hi(a, 67+2*r, 27+r, 40)
        lo(a, 84+2*r, 36+r); hi(a, 85+2*r, 36+r, 40)
        d = 102+2*r
        a(f'v_pk_mul_f32 v[{d}:{d+1}], v[{60+2*r}:{61+2*r}], v[58:59]')
        a(f'v_pk_fma_f32 v[{d}:{d+1}], v[{62+2*r}:{63+2*r}], v[56:57], v[{d}:{d+1}]')
        a(f'v_pk_fma_f32 v[{d}:{d+1}], v[{64+2*r}:{65+2*r}], v[54:55], v[{d}:{d+1}]')
        a(f'v_pk_fma_f32 v[{d}:{d+1}], v[{66+2*r}:{67+2*r}], v[52:53], v[{d}:{d+1}]')
        a(f'v_pk_mul_f32 v[{d}:{d+1}], v[{d}:{d+1}], v[{84+2*r}:{85+2*r}]')
    stamp('kvN')
    for c in range(2):
        for jj in range(4):
            a(f'v_cvt_pk_bf16_f32 v{24+4*c+jj}, v{102+2*(7-2*jj)+c}, v{102+2*(6-2*jj)+c}')
        a(f'ds_write_b128 v120, v[{24+4*c}:{27+4*c}] offset:{128*c}')
    a('s_waitcnt lgkmcnt(0)')
    a('s_barrier')
    stamp('abar')
    for j in range(2): a(f'ds_read_b128 v[{104+4*j}:{107+4*j}], v{124+j} offset:{1024*j}')
    a('s_mov_b32 s24, s35')
    a('s_add_u32 s25, s35, 0x8000')
    ustores = [f'buffer_store_dwordx4 v[{104+4*j}:{107+4*j}], v13, s[16:19], s{24+j} offen' for j in range(2)]
    for j in range(2):
        a(f's_waitcnt lgkmcnt({1-j})')
        tus = vm.issue(ustores[j] + (' sc1' if P.get('uts', 0) else ''))
    a('s_load_dwordx2 s[44:45], s[0:1], 0')
    a('s_load_dwordx2 s[94:95], s[0:1], 80')
    a('s_load_dwordx2 s[96:97], s[0:1], 88')
    a('s_lshl_b32 s7, s3, 7')
    a('s_lshl_b32 s36, s29, 2')
    a('s_add_u32 s7, s7, s36')
    a('v_mov_b32 v123, s100')
    stamp('utst')
    for i in range(4): a(f'v_mov_b32 v{40+i}, 0')
    a(f'v_add_u32 v14, {CB}, v14')
    a('v_cmp_gt_u32 vcc, 32, v0')
    a('s_and_saveexec_b64 s[36:37], vcc')
    a('s_cbranch_execz L_nz')
    a('ds_write_b128 v14, v[40:43]')
    a(f'ds_write_b128 v14, v[40:43] offset:{CHS}')
    a('v_cmp_gt_u32 vcc, 2, v0')
    a('s_and_b64 exec, exec, vcc')
    for c in range(2):
        a(f'ds_write_b128 v14, v[40:43] offset:{c*CHS+U0+4096}')
        a(f'ds_write_b128 v14, v[40:43] offset:{c*CHS+U1+4096}')
    a.label('L_nz')
    a('s_mov_b64 exec, s[36:37]')
    a('v_cmp_eq_u32 s[36:37], 0, v0')
    a('s_lshl_b32 s4, s34, 16')
    a('s_and_b32 s5, s34, 0xffff0000')
    a('s_mov_b32 s6, 0xffff')
    vm.need(tsk)
    stamp('skok')
    for c in range(2):
        kx = 146+4*c
        lo(a, 44, kx)
        a(f'v_add_f32 v44, s{4+c}, v44')
        a('v_cvt_pk_bf16_f32 v44, v44, v44')
        a(f'v_bfi_b32 v44, s6, v44, v{kx}')
        a(f'v_cndmask_b32 v{kx}, v{kx}, v44, s[36:37]')
        a(f'ds_write_b128 v14, v[{kx}:{kx+3}] offset:{c*CHS+KB}')
    vm.need(tus)
    vm.issue(f'buffer_store_dword v123, v21, s[52:55], s7 offen offset:{UH}')
    a('v_and_b32 v120, 31, v1')
    a('v_lshlrev_b32 v120, 2, v120')
    a('s_lshr_b32 s5, s29, 3')
    a('s_lshl_b32 s5, s5, 7')
    hloads = [f'buffer_load_dword v121, v120, s[52:55], 0 offen offset:{XID} sc1', f'buffer_load_dword v124, v120, s[52:55], s5 offen offset:{UH} sc1']
    for l in hloads: tu = vm.issue(l)
    a('v_lshrrev_b32 v4, 1, v6')
    a('v_lshlrev_b32 v4, 11, v4')
    a('v_lshl_add_u32 v4, v16, 6, v4')
    a('v_lshrrev_b32 v5, 5, v1')
    a('v_lshl_add_u32 v4, v5, 5, v4')
    a('v_bfe_u32 v5, v1, 4, 1')
    a('v_lshl_add_u32 v244, v5, 4, v4')
    a('s_lshl_b32 s35, s32, 13')
    a('s_add_u32 s34, s35, 0x1000')
    a('v_lshlrev_b32 v125, 4, v0')
    a('s_lshr_b32 s36, s3, 1')
    a(f's_mul_i32 s36, s36, {CHS}')
    a('s_xor_b32 s38, s39, 1')
    a('s_lshl_b32 s38, s38, 6')
    a('s_add_u32 s36, s36, s38')
    a(f's_add_u32 s36, s36, {CB}')
    a('v_and_b32 v3, 15, v0')
    a('v_bfe_u32 v4, v0, 4, 2')
    a('v_lshlrev_b32 v5, 4, v4')
    a('v_lshl_add_u32 v22, v3, 5, v5')
    a(f's_add_u32 s38, s36, {KB-480}')
    a('v_add_u32 v22, s38, v22')
    a('v_and_b32 v23, 14, v3')
    a('v_lshlrev_b32 v23, 1, v23')
    a('v_sub_u32 v23, v5, v23')
    a(f'v_mul_u32_u24 v5, {U1-U0}, v16')
    a('v_sub_u32 v23, v23, v5')
    a(f's_add_u32 s38, s36, {U1+28}')
    a('v_add_u32 v16, s38, v23')
    for i in range(1, 4): a(f'v_add_u32 v{16+i}, {1024*i}, v16')
    a('v_bfe_u32 v5, v3, 1, 2')
    a('v_xor_b32 v5, v5, v4')
    a('v_lshl_add_u32 v5, v3, 2, v5')
    a('s_lshl_b32 s38, s3, 13')
    a(f's_add_u32 s38, s38, {PB}')
    a('v_lshl_add_u32 v23, v5, 4, s38')
    a(f's_mov_b32 s51, {SPIN}')
    a('s_mov_b32 s101, 0')
    vm.need(tu)
    stamp('ut1st')
    a('s_branch L_uh_chk')
    a.label('L_uh')
    for l in hloads: a(l)
    a('s_waitcnt vmcnt(0)')
    a.label('L_uh_chk')
    a('v_subrev_u32 v122, s50, v121')
    a('v_subrev_u32 v122, 1, v122')
    a('v_cmp_lt_u32 vcc, 15, v122')
    a('v_cmp_ne_u32 s[92:93], s100, v121')
    a('s_sub_u32 s51, s51, 1')
    a('s_cbranch_scc1 L_uh_ok')
    a('s_cbranch_vccnz L_uh')
    a('s_cmp_eq_u64 s[92:93], 0')
    a('s_cbranch_scc1 L_uh_same')
    a('s_cmp_lg_u32 s101, 0')
    a('s_cbranch_scc1 L_uh_same')
    a('s_mov_b32 s101, 1')
    for l in ustores: a(l + ' sc1')
    a('s_waitcnt vmcnt(0)')
    a(f'buffer_store_dword v20, v21, s[52:55], s7 offen offset:{UH} sc1')
    a.label('L_uh_same')
    a('v_cmp_ne_u32 vcc, s50, v124')
    a('v_cmp_ne_u32 s[92:93], s100, v124')
    a('s_nop 0')
    a('s_and_b64 vcc, vcc, s[92:93]')
    a('s_cbranch_vccnz L_uh')
    a.label('L_uh_ok')
    raw(6, 's51')
    stamp('uhok')
    tu = []
    for c in range(2):
        vm.issue(f'buffer_load_dwordx4 v[{72+4*c}:{75+4*c}], v125, s[16:19], s{35-c} offen sc1')
        tu.append(vm.issue(f'buffer_load_dword v{80+c}, v125, s[16:19], s{35-c} offen offset:16 sc1'))
    a('s_waitcnt lgkmcnt(0)')
    base(a, 12, 94, 1024)
    a('s_lshl_b32 s36, s47, 6')
    tc = vm.issue('buffer_load_dwordx2 v[240:241], v243, s[12:15], s36 offen')
    base(a, 12, 96, 512*6144)
    a('s_cmp_lt_u32 s29, 24')
    a('s_cselect_b32 s14, s14, 0')
    a('s_lshr_b32 s36, s46, 2')
    a('s_lshl_b32 s36, s36, 7')
    a(f's_mul_i32 s37, s47, {32*6144}')
    a('s_add_u32 s36, s36, s37')
    twm = []
    for r in range(4):
        twm.append(vm.issue(f'buffer_load_dwordx4 v[{24+4*r}:{27+4*r}], v242, s[12:15], s36 offen' + NT))
        if r < 3: a('s_add_u32 s36, s36, 0x1800')
    base(a, 12, 44, 0x200000)
    vm.issue('buffer_load_dwordx4 v[232:235], v15, s[12:15], s33 offen' + NT)
    tx = vm.issue('buffer_load_dwordx4 v[236:239], v15, s[12:15], s33 offen offset:1024' + NT)
    for _ in range(P.get('e0b', 6)): early.popleft()()
    if P.get('tlb', 0) == 2:
        a('s_cmp_eq_u32 s3, 3')
        a('s_cselect_b32 s37, 0, 0x70000000')
        a('v_lshl_add_u32 v4, v1, 20, s37')
        base(a, 12, 56, 0x200000)
        vm.issue('buffer_load_dword v245, v4, s[16:19], 0 offen')
        vm.issue('buffer_load_dword v246, v4, s[8:11], 0 offen')
        vm.issue('buffer_load_dword v247, v4, s[12:15], 0 offen')
    a('s_movk_i32 s36, 0xff')
    a('v_cmp_ne_u32 vcc, s36, v0')
    for c in range(2):
        u = 72+4*c
        vm.need(tu[c])
        if c == 0: stamp('utok')
        a(f'v_cndmask_b32 v{80+c}, 0, v{80+c}, vcc')
        a(f'ds_write_b128 v14, v[{u}:{u+3}] offset:{c*CHS+U0}')
        for j in range(3): a(f'v_alignbit_b32 v{40+4*c+j}, v{u+j+1}, v{u+j}, 16')
        a(f'v_alignbit_b32 v{43+4*c}, v{80+c}, v{u+3}, 16')
        a(f'ds_write_b128 v14, v[{40+4*c}:{43+4*c}] offset:{c*CHS+U1}')
    a('s_waitcnt lgkmcnt(0)')
    a('s_barrier')
    stamp('bbar')
    st1 = deque()
    T0, T1, AC = 200, 208, 216
    st1.append(('wait', tc))
    st1.extend([f'v_lshlrev_b32 v{T0}, 16, v240', f'v_and_b32 v{T0+1}, s40, v240', f'v_lshlrev_b32 v{T0+2}, 16, v241', f'v_and_b32 v{T0+3}, s40, v241'])
    st1.extend(f'v_mul_f32 v{T0+4+r}, {fh(-1.4426950408889634)}, v{T0+r}' for r in range(4))
    st1.extend(f'v_exp_f32 v{T0+4+r}, v{T0+4+r}' for r in range(4))
    st1.extend(f'v_add_f32 v{T0+4+r}, 1.0, v{T0+4+r}' for r in range(4))
    st1.extend(f'v_rcp_f32 v{T0+4+r}, v{T0+4+r}' for r in range(4))
    st1.extend(f'v_mul_f32 v{T0+r}, v{T0+r}, v{T0+4+r}' for r in range(4))
    st1.extend([f'v_cvt_pk_bf16_f32 v240, v{T0}, v{T0+1}', f'v_cvt_pk_bf16_f32 v241, v{T0+2}, v{T0+3}'])
    st1.extend([f'v_lshlrev_b32 v{T0}, 16, v240', f'v_and_b32 v{T0+1}, s40, v240', f'v_lshlrev_b32 v{T0+2}, 16, v241', f'v_and_b32 v{T0+3}, s40, v241'])
    for r in range(4):
        st1.append(('wait', twm[r]))
        for j in range(4):
            st1.extend([f'v_lshlrev_b32 v{T1+2*j}, 16, v{24+4*r+j}', f'v_and_b32 v{T1+2*j+1}, s40, v{24+4*r+j}'])
        st1.extend((f'v_mul_f32 v{AC+j}, v{T1+j}, v{T0}' if r == 0 else f'v_fmac_f32 v{AC+j}, v{T1+j}, v{T0+r}') for j in range(8))
    st1.extend(f'v_permlane32_swap_b32 v{AC+j}, v{AC+4+j}' for j in range(4))
    st1.extend(f'v_add_f32 v{AC+j}, v{AC+j}, v{AC+4+j}' for j in range(4))
    st1.extend([f'v_mov_b32 v{T0+2}, s50', f'v_mov_b32 v{T0+3}, s50'])
    st1.extend(f'v_permlane16_swap_b32 v{AC+j}, v{AC+2+j}' for j in range(2))
    st1.extend(f'v_add_f32 v{T0+j}, v{AC+j}, v{AC+2+j}' for j in range(2))
    st1.extend(['s_nop 0'] + [f'v_add_f32_dpp v{T0+j}, v{T0+j}, v{T0+j} row_ror:8 row_mask:0xf bank_mask:0xf' for j in range(2)])
    def st1_step(credit):
        while st1 and credit > 0:
            x = st1.popleft()
            if isinstance(x, tuple): vm.need(x[1])
            else: a(x); credit -= cost(x)
    a('s_lshr_b32 s5, s46, 2')
    a('s_lshl_b32 s5, s5, 13')
    a('s_lshl_b32 s36, s47, 7')
    a('s_add_u32 s5, s5, s36')
    a(f's_add_u32 s5, s5, {hex(MP)}')
    a('s_lshl_b32 s6, s46, 11')
    a(f's_add_u32 s6, s6, {hex(MP)}')
    a('s_cmp_lt_u32 s29, 24')
    a(f's_cselect_b32 s5, s5, {hex(TS)}')
    a(f's_cselect_b32 s7, s3, 1')
    ploads = [f'buffer_load_dwordx4 v[{104+4*j}:{107+4*j}], v15, s[16:19], s6 offen offset:{1024*j} sc1' for j in range(2)]
    tmi = []
    def mod_issue():
        a('s_cmp_lg_u32 s7, 0')
        a('s_cbranch_scc1 L_nomi')
        for l in ploads: a(l)
        a.label('L_nomi')
        tmi.append(vm.issued)
    def mod_final():
        a('s_cmp_lg_u32 s7, 0')
        a('s_cbranch_scc1 L_nomod')
        done = vm.done
        a(f's_waitcnt vmcnt({vm.issued - tmi[0]})')
        poll('mp', ploads, [106, 110], pre=0)
        vm.done = done
        a('v_pk_add_f32 v[104:105], v[104:105], v[108:109]')
        a('s_lshr_b32 s36, s46, 5')
        a('s_cmp_eq_u32 s36, 1')
        for j in range(2): a(f'v_add_f32_dpp v{104+j}, v{104+j}, v{104+j} row_ror:8 row_mask:0xf bank_mask:0xf')
        a('s_cselect_b32 s38, 1.0, 0')
        a('s_cmp_eq_u32 s36, 4')
        for op in ('v_permlane16_swap_b32', 'v_permlane32_swap_b32'):
            for j in range(2): a(f'v_mov_b32 v{106+j}, v{104+j}')
            for j in range(2): a(f'{op} v{104+j}, v{106+j}')
            a('v_pk_add_f32 v[104:105], v[104:105], v[106:107]')
        a('s_cselect_b32 s38, 1.0, s38')
        a('s_lshl_b32 s36, s46, 6')
        a('v_cvt_pk_bf16_f32 v106, v104, v105')
        a(f's_add_u32 s36, s36, {hex(MODT)}')
        lo(a, 104, 106); hi(a, 105, 106, 40)
        for j in range(2): a(f'v_add_f32 v{104+j}, s38, v{104+j}')
        a('v_cvt_pk_bf16_f32 v108, v104, v105')
        a('v_mov_b32 v110, s50')
        a('v_mov_b32 v111, s50')
        a('v_mov_b32_dpp v109, v108 quad_perm:[1,1,3,3] row_mask:0xf bank_mask:0xf')
        a('v_lshlrev_b32 v104, 3, v1')
        a('s_mov_b64 exec, 0x55')
        a('buffer_store_dwordx4 v[108:111], v104, s[16:19], s36 offen sc1')
        a('s_mov_b64 exec, -1')
        a.label('L_nomod')
    ACC, AR, BR = 40, 72, 104
    pipe = LdsPipe(a)
    reads = []
    for i in range(32):
        o = 32*((31-i) & 7); b = 16 + ((31-i) >> 3); d = AR + 4*(i & 7)
        reads.append((('A', i, 0), f'ds_read2_b32 v[{d}:{d+1}], v{b} offset0:{o} offset1:{o+1}'))
        reads.append((('A', i, 1), f'ds_read2_b32 v[{d+2}:{d+3}], v{b} offset0:{o+2} offset1:{o+3}'))
        if i < 4:
            for t in range(8):
                j = 4*t+3-i
                reads.append((('B', j), f'ds_read_b128 v[{BR+4*j}:{BR+4*j+3}], v22 offset:{128*j}'))
    tok = {}; nxt = [0]
    def pump(cur_step, maxn):
        n = 0
        while n < maxn and nxt[0] < len(reads) and pipe.outstanding() < 13:
            key, line = reads[nxt[0]]
            if key[0] == 'A' and key[1] >= cur_step + 8: break
            tok[key] = pipe.issue(line); nxt[0] += 1; n += 1
    pump(0, 12)
    pending = []; nm = 0
    NB = P.get('e1', 6); EV = P.get('ev', 6)
    for i in range(32):
        for t in range(i >> 2, 8):
            j = 4*t+3-i
            while ('B', j) not in tok or ('A', i, 1) not in tok:
                pipe.need(pipe.done + 2); pump(i, 2)
            pipe.need(max(tok[('A', i, 1)], tok[('B', j)]))
            d = ACC+4*t; c = '0' if i == 0 else f'v[{d}:{d+3}]'
            s = AR+4*(i & 7)
            a(f'v_mfma_f32_16x16x32_bf16 v[{d}:{d+3}], v[{s}:{s+3}], v[{BR+4*j}:{BR+4*j+3}], {c}')
            pump(i, 2 if i < 4 else 1)
            nm += 1
            if nm >= P.get('e1s', 90) and nm % EV == 0 and NB > 0 and early:
                early.popleft()(); NB -= 1
            if i >= P.get('s1', 14): st1_step(2)
        if pending and pipe.outstanding() < 14:
            t = pending.pop()
            pipe.issue(f'ds_write_b128 v23, v[{ACC+4*t}:{ACC+4*t+3}] offset:{1024*t}')
        if (i & 3) == 3: pending.append(i >> 2)
    for t in pending:
        pipe.issue(f'ds_write_b128 v23, v[{ACC+4*t}:{ACC+4*t+3}] offset:{1024*t}')
    st1_step(1000)
    lstore([f'buffer_store_dwordx4 v[{T0}:{T0+3}], v244, s[16:19], s5 offen'])
    stamp('bend')
    a('v_lshlrev_b32 v4, 3, v0')
    a(f'v_add_u32 v4, {PRM}, v4')
    a('v_lshrrev_b32 v2, 1, v0')
    a('v_bfe_u32 v3, v0, 4, 2')
    a('v_xor_b32 v2, v2, v3')
    a('v_lshlrev_b32 v2, 4, v2')
    a('v_and_b32 v3, 1, v0')
    a('v_lshl_add_u32 v2, v3, 3, v2')
    a(f'v_add_u32 v2, {PB}, v2')
    a('v_lshlrev_b32 v3, 4, v0')
    a('v_and_b32 v5, 3, v0')
    a(f's_mul_i32 s38, s32, {YP}')
    a(f's_add_u32 s38, s38, {hex(YT)}')
    a(f'v_add_u32 v13, {PRM}, v15')
    a('s_and_b32 s36, s32, 7')
    a('s_lshl_b32 s36, s36, 1')
    a('s_and_b32 s37, s3, 1')
    a('s_or_b32 s36, s36, s37')
    a('s_lshl_b32 s36, s36, 6')
    a(f's_add_u32 s36, s36, {PRM+5120}')
    a('v_lshrrev_b32 v14, 5, v1')
    a('v_lshl_add_u32 v14, v14, 4, s36')
    a('s_waitcnt lgkmcnt(0)')
    a('s_barrier')
    stamp('pbar')
    for j in range(4):
        for w in range(4):
            a(f'ds_read_b64 v[{72+8*j+2*w}:{73+8*j+2*w}], v2 offset:{8192*w+2048*j}')
        if j == 2: a('s_waitcnt lgkmcnt(8)')
    mod_issue()
    for j in range(4):
        b = 72+8*j; q = 24+4*j
        if j: a(f's_waitcnt lgkmcnt({12-4*j})')
        a(f'v_pk_add_f32 v[{b}:{b+1}], v[{b}:{b+1}], v[{b+2}:{b+3}]')
        a(f'v_pk_add_f32 v[{b+4}:{b+5}], v[{b+4}:{b+5}], v[{b+6}:{b+7}]')
        a(f'v_mov_b32 v{q+2}, s50')
        a(f'v_mov_b32 v{q+3}, s50')
        a(f'v_cvt_pk_bf16_f32 v{q}, v{b}, v{b+4}')
        a(f'v_cvt_pk_bf16_f32 v{q+1}, v{b+1}, v{b+5}')
        tys = vm.issue(f'buffer_store_dwordx4 v[{q}:{q+3}], v3, s[16:19], s38 offen sc1')
        if j < 3: a('s_add_u32 s38, s38, 0x1000')
    stamp('ytst')
    a('v_mov_b32 v22, v4')
    a('v_mov_b32 v23, v14')
    mod_final(); raw(7, 's51')
    if P.get('mbar', 1): a('s_barrier')
    for _ in range(P.get('e2', 12)): early.popleft()()
    a('s_lshl_b32 s35, s3, 10')
    a(f's_add_u32 s35, s35, {hex(MODT)}')
    a('s_add_u32 s34, s35, 0x1000')
    a('s_add_u32 s4, s35, 0x2000')
    mloads = [f'buffer_load_dwordx4 v[{104+4*r}:{107+4*r}], v15, s[16:19], s{(35, 34, 4)[r]} offen sc1' for r in range(3)]
    a('v_lshrrev_b32 v4, 2, v0')
    a(f'v_mul_u32_u24 v3, {2*YS}, v5')
    a('v_lshl_add_u32 v3, v4, 2, v3')
    a(f'v_add_u32 v3, {XG}, v3')
    a(f's_mul_i32 s46, s3, {2*YS}')
    a(f's_add_u32 s46, s46, {XG}')
    a('v_add_u32 v4, s46, v15')
    a('s_lshl_b32 s46, s3, 1')
    a('v_xor_b32 v5, s46, v6')
    a('v_lshlrev_b32 v5, 4, v5')
    a('v_lshl_add_u32 v5, v1, 7, v5')
    a(f'v_add_u32 v5, {XH}, v5')
    a('v_xor_b32 v16, 16, v5')
    a('v_lshrrev_b32 v17, 3, v1')
    a('v_xor_b32 v18, v17, v6')
    a('v_lshlrev_b32 v18, 4, v18')
    a('v_lshl_add_u32 v18, v17, 7, v18')
    a('s_lshl_b32 s46, s3, 11')
    a(f's_add_u32 s46, s46, {XH}')
    a('v_add_u32 v18, s46, v18')
    a('v_lshlrev_b32 v17, 9, v17')
    a('v_lshl_add_u32 v17, v6, 4, v17')
    a('s_lshr_b32 s46, s32, 2')
    a('s_lshl_b32 s46, s46, 15')
    a('s_and_b32 s47, s32, 3')
    a('s_lshl_b32 s47, s47, 7')
    a('s_add_u32 s46, s46, s47')
    a('s_lshl_b32 s47, s3, 13')
    a('s_add_u32 s46, s46, s47')
    a(f's_add_u32 s46, s46, {hex(H2)}')
    a('s_add_u32 s47, s46, 0x1000')
    a(f's_add_u32 s37, s33, {hex(X1)}')
    a('v_lshrrev_b32 v14, 2, v0')
    a(f'v_mul_u32_u24 v14, {YP}, v14')
    a('v_and_b32 v19, 3, v0')
    a('v_lshl_add_u32 v14, v19, 4, v14')
    a('s_lshl_b32 s24, s32, 6')
    a(f's_add_u32 s26, s24, {hex(YT)}')
    a(f's_add_u32 s27, s26, {64*YP}')
    a(f's_add_u32 s5, s26, {128*YP}')
    a(f's_add_u32 s6, s26, {192*YP}')
    X = (64, 160)
    vm.need(tx)
    subs = []
    for t in range(2):
        s = Asm(); unpack8(s, X[t], 232+4*t, 40); ln_stats(s, X[t], X[t]+8, X[t]+16, 24+t)
        for p in range(4):
            s(f'v_pk_mul_f32 v[{X[t]+8+2*p}:{X[t]+9+2*p}], v[{X[t]+8+2*p}:{X[t]+9+2*p}], v[{X[t]+16}:{X[t]+17}] op_sel:[0,0] op_sel_hi:[1,0]')
        subs.append(s)
    zipl(a, *subs)
    stamp('ln1')
    yloads = [f'buffer_load_dwordx4 v[{24+4*j}:{27+4*j}], v14, s[16:19], s{(26, 27, 5, 6)[j]} offen sc1' for j in range(4)]
    vm.need(tys)
    stamp('ytack')
    for l in yloads: ty = vm.issue(l)
    for l in mloads: tm = vm.issue(l)
    poll('yt', yloads, [26, 30, 34, 38], pre=ty)
    stamp('ytok'); raw(2, 's51')
    for j in range(4):
        a(f'ds_write_b32 v3, v{24+4*j} offset:{256*j}')
        a(f'ds_write_b32 v3, v{25+4*j} offset:{256*j+YS}')
    poll('md', mloads, [106, 110, 114], pre=tm)
    stamp('mdok'); raw(1, 's51')
    for r in range(3): a(f'ds_write_b64 v22, v[{104+4*r}:{105+4*r}] offset:{2048*r}')
    a('s_waitcnt lgkmcnt(0)')
    a('s_barrier')
    stamp('ybar')
    for i, off in enumerate((1024, 0, 2048)):
        a(f'ds_read_b128 v[{40+4*i}:{43+4*i}], v13 offset:{off}')
    a('ds_read_b128 v[24:27], v4')
    a(f'ds_read_b128 v[28:31], v4 offset:{YS}')
    for i, off in enumerate((4096, 3072)):
        a(f'ds_read_b128 v[{52+4*i}:{55+4*i}], v13 offset:{off}')
    a('ds_read_b128 v[124:127], v23')
    a('ds_read_b128 v[116:119], v23 offset:32')
    a('s_waitcnt lgkmcnt(7)')
    unpack8(a, 128, 40, 40); unpack8(a, 136, 44, 40)
    for t in range(2):
        for p in range(4):
            d = X[t]+8+2*p
            a(f'v_pk_fma_f32 v[{d}:{d+1}], v[{d}:{d+1}], v[{128+2*p}:{129+2*p}], v[{136+2*p}:{137+2*p}]')
    a('s_waitcnt lgkmcnt(6)')
    unpack8(a, 144, 48, 40)
    for t in range(2):
        for p in range(4):
            d = X[t]+8+2*p
            a(f'v_pk_mul_f32 v[{d}:{d+1}], v[{d}:{d+1}], v[{144+2*p}:{145+2*p}]')
    a('s_waitcnt lgkmcnt(0)')
    unpack8(a, 128, 52, 40); unpack8(a, 136, 56, 40)
    subs = []
    for t in range(2):
        s = Asm(); x = X[t]
        unpack8(s, x+20, 24+4*t, 40)
        for p in range(4):
            s(f'v_pk_fma_f32 v[{x+2*p}:{x+2*p+1}], v[{x+8+2*p}:{x+9+2*p}], v[{x+20+2*p}:{x+21+2*p}], v[{x+2*p}:{x+2*p+1}]')
        for j in range(4): s(f'v_cvt_pk_bf16_f32 v{32+4*t+j}, v{x+2*j}, v{x+2*j+1}')
        s(f'buffer_store_dwordx4 v[{32+4*t}:{35+4*t}], v15, s[16:19], s37 offen offset:{1024*t} sc1')
        unpack8(s, x, 32+4*t, 40)
        ln_stats(s, x, x+8, x+16, 24+t)
        for p in range(4):
            s(f'v_pk_mul_f32 v[{x+8+2*p}:{x+9+2*p}], v[{x+8+2*p}:{x+9+2*p}], v[{x+16}:{x+17}] op_sel:[0,0] op_sel_hi:[1,0]')
        for p in range(4):
            s(f'v_pk_fma_f32 v[{x+8+2*p}:{x+9+2*p}], v[{x+8+2*p}:{x+9+2*p}], v[{128+2*p}:{129+2*p}], v[{136+2*p}:{137+2*p}]')
        for j in range(4): s(f'v_cvt_pk_bf16_f32 v{40+4*t+j}, v{x+8+2*j}, v{x+9+2*j}')
        s(f'ds_write_b128 v{(5, 16)[t]}, v[{40+4*t}:{43+4*t}]')
        subs.append(s)
    zipl(a, *subs)
    vm.issued += 2
    a('s_waitcnt lgkmcnt(0)')
    a('s_barrier')
    stamp('hbar')
    a('ds_read_b128 v[24:27], v18')
    a('ds_read_b128 v[28:31], v18 offset:1024')
    a('s_and_b32 s24, s32, 31')
    a('s_lshl_b32 s24, s24, 4')
    a('s_lshl_b32 s25, s3, 2')
    a('s_add_u32 s33, s24, s25')
    a('s_and_b32 s25, s30, 1')
    a('s_lshl_b32 s25, s25, 8')
    a('s_lshl_b32 s26, s3, 6')
    a('s_add_u32 s25, s25, s26')
    a('v_and_b32 v19, 15, v1')
    a('v_lshlrev_b32 v19, 2, v19')
    a('s_waitcnt lgkmcnt(0)')
    lstore(['buffer_store_dwordx4 v[24:27], v17, s[16:19], s46 offen', 'buffer_store_dwordx4 v[28:31], v17, s[16:19], s47 offen'], P.get('h2s', 0))
    stamp('h2st')
    a('v_bfe_u32 v4, v1, 4, 1')
    a('v_lshrrev_b32 v5, 5, v1')
    a('v_bfe_u32 v22, v1, 2, 2')
    a('v_and_b32 v23, 3, v1')
    a('v_lshlrev_b32 v23, 3, v23')
    a('v_lshl_add_u32 v3, v5, 3, v22')
    a('v_bfe_u32 v13, v1, 3, 1')
    a('v_lshlrev_b32 v16, 7, v3')
    a('v_add_u32 v16, v16, v23')
    a('v_lshl_add_u32 v16, v13, 6, v16')
    a('v_lshl_add_u32 v16, v4, 5, v16')
    a(f'v_mul_u32_u24 v17, {SEG[0][2]-SEG[0][1]}, v4')
    a(f'v_add_u32 v17, {SEG[0][1]}, v17')
    a(f'v_mul_u32_u24 v18, {P1U}, v4')
    for ct in range(4):
        a(f'v_xor_b32 v14, {32*ct}, v16')
        a(f'v_add_u32 v{246+ct}, v14, v17')
        a(f'v_add_u32 v{120+ct}, v14, v18')
    a('v_mul_u32_u24 v3, 0x60, v3')
    a('v_add_u32 v3, v3, v23')
    a('v_add_u32 v18, v18, v3')
    a('v_lshl_add_u32 v3, v5, 2, v22')
    a('v_lshlrev_b32 v3, 7, v3')
    a('v_lshl_add_u32 v3, v13, 6, v3')
    a('v_lshl_add_u32 v3, v4, 5, v3')
    a('v_add_u32 v3, v3, v23')
    a('s_lshl_b32 s26, s3, 11')
    a('v_add_u32 v240, s26, v3')
    a('v_xor_b32 v241, 64, v240')
    for i in range(1, 3):
        a(f'v_add_u32 v{240+2*i}, {65536*i}, v240')
        a(f'v_add_u32 v{241+2*i}, {65536*i}, v241')
    a(f's_mov_b32 s44, {fh(GC2)}'); a(f's_mov_b32 s45, {fh(GC2)}')
    a(f'v_mov_b32 v2, {fh(GC1)}'); a(f'v_mov_b32 v3, {fh(GC1)}')
    a('s_lshl_b32 s27, s30, 2')
    a('s_add_u32 s27, s27, s3')
    a('s_lshl_b32 s28, s27, 15')
    a(f's_add_u32 s28, s28, {hex(H2)}')
    a('v_add_u32 v14, s28, v15')
    a('s_lshl_b32 s28, s98, 12')
    a('s_waitcnt vmcnt(0)'); vm.done = vm.issued
    stamp('h2dr')
    lstore([f'buffer_store_dword v20, v21, s[52:55], s33 offen offset:{F1}'])
    while early: early.popleft()()
    a(f's_add_u32 s99, s48, {512*3584}')
    a(f's_mul_i32 s36, s98, {64*3584}')
    a('s_add_u32 s48, s48, s36')
    ptok = {}
    def p2dma(k):
        k0, gb, ub = seg_of(k)
        a(f's_add_u32 m0, {"s49" if k < 15 else "s43"}, {gb + 2048*(k-k0)}')
        if k and k % 4: a(f's_add_u32 s48, s48, {16*3584}')
        elif k: step('s48', 16*3584, 's99', 512*3584)
        ptok[k] = vm.issue('buffer_load_dwordx4 v7, s[20:23], s48 offen lds')
    NS0 = P.get('ns0', 0)
    for k in range(NS0): p2dma(k)
    a('s_mul_i32 s29, s27, 112')
    a('s_lshl_b32 s47, s3, 4')
    a('s_add_u32 s47, s47, s31')
    a(f's_mul_i32 s47, s47, {4*YP}')
    a('s_lshl_b32 s4, s30, 10')
    a(f's_add_u32 s4, s4, {hex(YT)}')
    a('s_add_u32 s47, s47, s4')
    a('s_mul_i32 s46, s31, 3')
    a('s_add_u32 s46, s46, s29')
    a('s_lshl_b32 s46, s46, 10')
    a(f's_add_u32 s46, s46, {hex(ACT + 64*1024)}')
    a('s_lshr_b32 s39, s32, 3')
    a('s_and_b32 s35, s39, 1')
    a('s_and_b32 s34, s39, 3')
    a('s_and_b32 s24, s32, 7')
    a('s_lshl_b32 s24, s24, 7')
    a(f's_mul_i32 s37, s3, {192*1024}')
    a('s_add_u32 s37, s37, s24')
    a(f's_add_u32 s30, s37, {1024*1024 + 12*16384}')
    a(f's_mul_i32 s36, s34, {3*16384}')
    a('s_add_u32 s37, s37, s36')
    a(f's_add_u32 s37, s37, {1024*1024}')
    a('s_lshl_b32 s38, s3, 18')
    a('s_add_u32 s38, s38, s24')
    a(f's_add_u32 s31, s38, {16*16384}')
    a('s_lshl_b32 s36, s34, 16')
    a('s_add_u32 s38, s38, s36')
    a('s_lshl_b32 s6, s35, 3')
    a('s_add_u32 s6, s6, s3')
    a(f's_mul_i32 s6, s6, {16*YP}')
    a('s_add_u32 s6, s6, s4')
    a(f's_add_u32 s42, s6, {16*YP}')
    a(f's_mul_i32 s36, s34, {4*YP}')
    a('s_add_u32 s6, s6, s36')
    a(f's_mul_i32 s4, s39, {224*1024}')
    a(f's_mul_i32 s5, s3, {12*1024}')
    a('s_add_u32 s5, s5, s4')
    a(f's_add_u32 s5, s5, {hex(ACT + 64*1024)}')
    a(f's_add_u32 s41, s5, {12*1024}')
    a(f's_mul_i32 s36, s34, {3*1024}')
    a('s_add_u32 s5, s5, s36')
    a('s_lshl_b32 s39, s39, 16')
    a('s_add_u32 s39, s39, s24')
    a('v_bfe_u32 v4, v1, 1, 2')
    a('v_and_b32 v5, 1, v1')
    a('v_lshlrev_b32 v5, 2, v5')
    a('v_lshl_add_u32 v4, v4, 4, v5')
    a('s_lshl_b32 s35, s35, 3')
    a('v_add_u32 v13, s35, v4')
    a(f'v_add_u32 v16, {112*1024}, v15')
    a(f'v_add_u32 v17, {64*YP}, v15')
    a('v_lshlrev_b32 v73, 7, v1')
    a('s_lshl_b32 s34, s2, 2')
    a('s_add_u32 s34, s34, s3')
    a(f's_mul_i32 s34, s34, {14*128}')
    poll('f1', [f'buffer_load_dword v22, v19, s[52:55], s25 offen offset:{F1} sc1'], [22])
    stamp('f1ok'); raw(3, 's51')
    htok = {}
    def h2load(ks):
        htok[ks] = vm.issue(f'buffer_load_dwordx4 a[{4*ks}:{4*ks+3}], v14, s[16:19], s28 offen offset:{1024*(ks&3)} sc1')
        if (ks & 3) == 3:
            a('s_add_u32 s28, s28, 0x1000'); a('s_and_b32 s28, s28, 0x7fff')
    NH0 = P.get('nh0', 8)
    for ks in range(NH0): h2load(ks)
    a('s_barrier')
    stamp('b0')
    hq, pq, wq = deque(), deque(), deque()
    wtok = {}; m0ok = [False]
    def wdslot(i):
        s = i % 20
        so, lim, n, i0 = ('s37', 's30', 12, 0) if i < 12 else ('s38', 's31', 16, 12)
        def f0():
            a(f's_add_u32 m0, s26, {8192*WBL[s]}')
            vm.issue(f'buffer_load_dwordx4 v8, s[8:11], {so} offen lds')
        def f1():
            if pq or len(ptok) < 32: a(f's_add_u32 m0, s26, {8192*WBL[s]}')
            elif not m0ok[0]: a(f's_add_u32 m0, s26, {8192*WBL[s]}'); m0ok[0] = True
            wtok[i] = vm.issue(f'buffer_load_dwordx4 v9, s[8:11], {so} offen offset:1024 lds')
            if (i - i0 + 1) % (n // 4): a(f's_add_u32 {so}, {so}, 0x4000')
            else: step(so, 0x4000, lim, n*0x4000)
        return [f0, f1]
    for ks in range(NH0, 32): hq.append(lambda ks=ks: h2load(ks))
    for k in range(NS0, 15): pq.append(lambda k=k: p2dma(k))
    valu = deque()
    AR, NA = 24, 6
    ACC1, ACC2 = 192, 128
    pipe = LdsPipe(a)
    steps = [(0, k, ct) for k in range(32) for ct in range(3)] + [(1, k, ct) for k in range(32) for ct in range(4)]
    tok = {}; nxt = [0]
    def rd(n):
        ps, k, ct = steps[n]; d = AR + 4*(n % NA)
        for jj in range(2):
            if ps == 0: b, off = 18, (16*k + 4*jj)*96 + 32*ct
            else:
                k0, gb, ub = seg_of(k)
                b, off = (246+ct, 2048*k + 512*jj) if k < 15 else (120+ct, gb + 2048*(k-k0) + 512*jj)
            tok[n] = pipe.issue(f'ds_read_b64_tr_b16 v[{d+2*jj}:{d+2*jj+1}], v{b} offset:{off}')
    for n in range(NA-1): rd(n)
    nxt[0] = NA-1
    VB = P.get('vb', 25); PE = P.get('pe', 3); WE = P.get('we', 3)
    stok = {}; nw = 0; credit = 0; nb = 0; fload = [f'buffer_load_dword v22, v13, s[52:55], s25 offen offset:{F2} sc1']; tp = None
    for n, (ps, k, ct) in enumerate(steps):
        if ps == 0 and ct == 0:
            while k not in htok: hq.popleft()()
            vm.need(htok[k])
        pipe.need(tok[n])
        d = (ACC1, ACC2)[ps] + 16*ct; c = '0' if k == 0 else f'v[{d}:{d+15}]'
        sa = AR + 4*(n % NA)
        a(f'v_mfma_f32_32x32x16_bf16 v[{d}:{d+15}], v[{sa}:{sa+3}], a[{4*k}:{4*k+3}], {c}')
        if nxt[0] < len(steps): rd(nxt[0]); nxt[0] += 1
        if ct == (2, 3)[ps] and (ps, k) in BARS:
            land, free = BARS[(ps, k)]
            if land is not None:
                while land not in ptok: pq.popleft()()
                vm.need(ptok[land])
            a('s_barrier')
            nb += 1; stamp(f'b{nb}')
            if (ps, k) == (0, 15):
                for kk in range(15, 27): pq.append(lambda kk=kk: p2dma(kk))
            if (ps, k) == (0, 23):
                for kk in range(27, 32): pq.append(lambda kk=kk: p2dma(kk))
            while nw < min(free, 16):
                wq.extend(wdslot(nw)); nw += 1
        if n == P.get('wt', 60):
            a('s_mov_b64 exec, 0x3fff')
            vm.issue('buffer_load_dword v72, v73, s[8:11], s34 offen')
            a('s_mov_b64 exec, -1')
        if n == 95:
            stamp('p1end')
            for t in range(3):
                o = 64 + 4*(t & 1)
                valu.extend(gelu_ops(ACC1+16*t, 48 + 8*(t & 1), o))
                valu.append(('store', t, o))
        if hq: hq.popleft()()
        elif pq and n % PE == 0: pq.popleft()()
        elif wq and n % WE == (1 % WE): wq.popleft()()
        credit = min(credit + VB, 30)
        while n > 97 and valu and credit >= 10*(cost(valu[0]) if isinstance(valu[0], str) else 1):
            x = valu.popleft()
            if isinstance(x, tuple):
                stok[x[1]] = vm.issue(f'buffer_store_dwordx4 v[{x[2]}:{x[2]+3}], v15, s[16:19], s46 offen offset:{1024*x[1]} sc1')
                if x[1] == 2: flag_at = n + P.get('fdel', 20); print('pass-1 act stored at', n)
            else:
                a(x); credit -= 10*cost(x)
        if 2 in stok and 'f2' not in stok and n >= flag_at:
            vm.need(stok[2])
            stok['f2'] = lstore([f'buffer_store_dword v20, v21, s[52:55], s33 offen offset:{F2}'])
    while valu:
        x = valu.popleft()
        if isinstance(x, tuple):
            stok[x[1]] = vm.issue(f'buffer_store_dwordx4 v[{x[2]}:{x[2]+3}], v15, s[16:19], s46 offen offset:{1024*x[1]} sc1')
        else: a(x)
    if 'f2' not in stok:
        vm.need(stok[2])
        stok['f2'] = lstore([f'buffer_store_dword v20, v21, s[52:55], s33 offen offset:{F2}'])
    assert not pq and not hq
    tp = vm.issue(fload[0])
    a('s_mov_b32 s34, 1.0'); a('s_mov_b32 s35, 1.0')
    def geglu2(t):
        s = Asm(); geglu(s, ACC2+16*t, 48, 64 + 4*(t & 1))
        for l in s.lines: a(l.replace('s[46:47]', 's[34:35]'))
        if t: a(f's_add_u32 s47, s47, {YP}')
        return lstore([f'buffer_store_dwordx4 v[{64+4*(t&1)}:{67+4*(t&1)}], v15, s[16:19], s47 offen'], P.get('a2s', 0))
    atok = {}
    def abase(i): return 128 + 8*i if i < 12 else 8*(i-12)
    def actload(i):
        b = abase(i)
        so, v2, inc, lim, n, i0 = ('s5', 16, 1024, 's41', 12, 0) if i < 12 else ('s6', 17, YP, 's42', 16, 12)
        vm.issue(f'buffer_load_dwordx4 a[{b}:{b+3}], v15, s[16:19], {so} offen sc1')
        atok[i] = vm.issue(f'buffer_load_dwordx4 a[{b+4}:{b+7}], v{v2}, s[16:19], {so} offen sc1')
        if (i - i0 + 1) % (n // 4): a(f's_add_u32 {so}, {so}, {inc}')
        else: step(so, inc, lim, n*inc)
    FP = P.get('fp', 1)
    for t in range(FP): geglu2(t)
    stamp('g1')
    poll('f2', fload, [22], pre=tp)
    stamp('f2ok'); raw(4, 's51')
    NA1 = P.get('na1', 6)
    for i in range(NA1): actload(i)
    for t in range(FP, 4): ts3 = geglu2(t)
    stamp('g3')
    for i in range(NA1, 12): actload(i)
    a('v_and_b32 v4, 31, v1')
    a('v_lshrrev_b32 v5, 5, v1')
    a('v_lshlrev_b32 v10, 10, v4')
    a('v_lshl_add_u32 v10, v5, 4, v10')
    a('s_lshr_b32 s46, s3, 1')
    a('s_lshl_b32 s46, s46, 15')
    a('s_and_b32 s47, s3, 1')
    a('s_lshl_b32 s47, s47, 6')
    a('s_add_u32 s39, s39, s46')
    a('s_add_u32 s39, s39, s47')
    a(f's_add_u32 s46, s39, {hex(X1)}')
    vm.need(ts3)
    lstore([f'buffer_store_dword v20, v21, s[52:55], s33 offen offset:{F3}'])
    stamp('estart')
    for i in range(16, 20): wq.extend(wdslot(i))
    pipe = LdsPipe(a); tok = {}
    def rd2(i):
        d = AR + 8*(i % 3); ad = 8192*WBL[i % 20]
        while i not in wtok: wq.popleft()()
        vm.need(wtok[i])
        for mt in range(2):
            for jj in range(2):
                tok[(i, mt)] = pipe.issue(f'ds_read_b64_tr_b16 v[{d+4*mt+2*jj}:{d+4*mt+2*jj+1}], v{240+2*(ad>>16)+mt} offset:{(ad & 0xffff)+1024*jj}')
    rd2(0); rd2(1)
    f3load = [f'buffer_load_dword v22, v13, s[52:55], s25 offen offset:{F3} sc1']
    F3P = P.get('f3p', 10)
    for i in range(28):
        stamp(f'e{i}')
        if i == F3P:
            while wq: wq.popleft()()
            tp = vm.issue(f3load[0])
        if i == 12:
            poll('f3', f3load, [22], pre=tp)
            stamp('f3ok'); raw(5, 's51')
            for ii in range(12, 28): actload(ii)
            vm.issue('buffer_load_dwordx4 v[72:75], v10, s[16:19], s46 offen sc1')
            tx = vm.issue('buffer_load_dwordx4 v[76:79], v10, s[16:19], s46 offen offset:32 sc1')
        d0 = AR + 8*(i % 3); b = abase(i)
        vm.need(atok[i])
        for mt in range(2):
            pipe.need(tok[(i, mt)])
            if mt == 1 and i < 8: wq.extend(wdslot(20+i))
            for nt in range(2):
                d = ACC2 + 32*mt + 16*nt; c = '0' if i == 0 else f'v[{d}:{d+15}]'
                a(f'v_mfma_f32_32x32x16_bf16 v[{d}:{d+15}], v[{d0+4*mt}:{d0+4*mt+3}], a[{b+4*nt}:{b+4*nt+3}], {c}')
                if mt == 0 and nt == 0 and i+2 < 28: rd2(i+2)
                elif wq: wq.popleft()()
    stamp('eend')
    PBL = [(WBL[8], WBL[9]), (WBL[10], WBL[11]), (WBL[12], WBL[13]), (WBL[14], WBL[15])]
    a('v_add_u32 v4, s26, v15')
    a('v_add_u32 v5, 0x10000, v4')
    a('v_add_u32 v18, 0x20000, v4')
    base(a, 12, 56, 0x200000)
    for o in range(4):
        a(f's_cmp_eq_u32 s3, {o}')
        a(f's_cbranch_scc1 L_own{o}')
        d = ACC2 + 32*(o & 1) + 16*(o >> 1)
        for g in range(4):
            ad = 8192*PBL[o][g >> 1] + 1024*(g & 1)
            a(f'ds_write_b128 v{(4, 5, 18)[ad >> 16]}, v[{d+4*g}:{d+4*g+3}] offset:{ad & 0xffff}')
        a(f's_branch L_nown{o}')
        a.label(f'L_own{o}')
        for g in range(16): a(f'v_mov_b32 v{24+g}, v{d+g}')
        a(f's_mov_b32 s4, {8192*PBL[o][0]}')
        a(f's_mov_b32 s5, {8192*PBL[o][1]}')
        a.label(f'L_nown{o}')
    for i in range(1, 4):
        a(f's_add_u32 s6, s26, {2048*i}')
        a('s_and_b32 s6, s6, 0x1fff')
        a('s_add_u32 s7, s6, s5')
        a('s_add_u32 s6, s6, s4')
        a(f'v_add_u32 v{88+2*i}, s6, v15')
        a(f'v_add_u32 v{89+2*i}, s7, v15')
    vm.need(tx)
    unpack8(a, 96, 124, 40); unpack8(a, 104, 116, 40); unpack8(a, 48, 72, 40); unpack8(a, 56, 76, 40)
    a('s_waitcnt lgkmcnt(0)')
    a('s_barrier')
    stamp('ebar')
    for i in range(1, 4):
        for g in range(4):
            a(f'ds_read_b128 v[{112+16*i+4*g}:{115+16*i+4*g}], v{88+2*i+(g >> 1)} offset:{1024*(g & 1)}')
    for i in range(1, 4):
        a(f's_waitcnt lgkmcnt({12-4*i})')
        for p in range(8): a(f'v_pk_add_f32 v[{24+2*p}:{25+2*p}], v[{24+2*p}:{25+2*p}], v[{112+16*i+2*p}:{113+16*i+2*p}]')
    for g in range(2):
        b = 24 + 8*g
        for r in range(4): a(f'v_permlane32_swap_b32 v{b+r}, v{b+4+r}')
        for p in range(4): a(f'v_pk_fma_f32 v[{b+2*p}:{b+2*p+1}], v[{b+2*p}:{b+2*p+1}], v[{96+8*g+2*p}:{97+8*g+2*p}], v[{48+8*g+2*p}:{49+8*g+2*p}]')
        for p in range(4): a(f'v_cvt_pk_bf16_f32 v{40+4*g+p}, v{b+2*p}, v{b+2*p+1}')
        a(f'buffer_store_dwordx4 v[{40+4*g}:{43+4*g}], v10, s[12:15], s39 offen offset:{32*g}' + ('', ' sc1', ' nt')[P.get('ost', 0)])
    a('s_or_b32 s4, s2, s3')
    a('s_cmp_lg_u32 s4, 0')
    a('s_cbranch_scc1 L_noep')
    a(f's_mov_b32 s4, {hex(EPOCH)}')
    a('buffer_store_dword v20, v21, s[16:19], s4 offen')
    a.label('L_noep')
    if P.get('probe') is not None:
        a('s_waitcnt vmcnt(0)')
        stamp('end')
        a('s_waitcnt lgkmcnt(0)')
        k = P['probe']
        if k >= 100:
            a(f's_mov_b32 s36, {hex(0x140A000)}')
            a('buffer_load_dwordx4 v[24:27], v15, s[16:19], s36 offen sc1')
            a('s_waitcnt vmcnt(0)')
            for r, op in ((28, 'min'), (29, 'max')):
                a(f'v_{op}_u32 v{r}, v24, v25')
                a(f'v_{op}3_u32 v{r}, v{r}, v26, v27')
                for ctl in ('row_ror:1', 'row_ror:2', 'row_ror:4', 'row_ror:8'):
                    a(f'v_{op}_u32_dpp v{r}, v{r}, v{r} {ctl} row_mask:0xf bank_mask:0xf')
                for i in range(4): a(f'v_readlane_b32 s{4+i}, v{r}, {16*i}')
                a(f's_{op}_u32 s4, s4, s5'); a(f's_{op}_u32 s6, s6, s7'); a(f's_{op}_u32 s{r+62}, s4, s6')
            if k == 100: a('s_add_u32 s92, s90, 6000')
            elif k == 101:
                a('s_sub_u32 s92, s91, s90'); a('s_lshl_b32 s92, s92, 2'); a('s_add_u32 s92, s92, s90'); a('s_add_u32 s92, s92, 4000')
            else:
                a(f's_sub_u32 s92, s{60+2*(k-110)}, s90'); a('s_lshl_b32 s92, s92, 2'); a('s_add_u32 s92, s92, s90'); a('s_add_u32 s92, s92, 4000')
        elif k == 0:
            a('s_add_u32 s92, s60, 6000')
        else:
            a(f's_sub_u32 s92, s{60+2*k}, s60')
            a('s_lshl_b32 s92, s92, 2')
            a('s_add_u32 s92, s92, s60')
            a('s_add_u32 s92, s92, 4000')
        a.label('L_probe')
        a('s_memrealtime s[94:95]')
        a('s_waitcnt lgkmcnt(0)')
        a('s_sub_u32 s94, s94, s92')
        a('s_cmp_lt_i32 s94, 0')
        a('s_cbranch_scc1 L_probe')
    elif P.get('stamps'):
        a('s_waitcnt vmcnt(0)')
        stamp('end')
        a('s_cmp_lg_u32 s3, 0')
        a('s_cbranch_scc1 L_end')
        a('s_lshl_b32 s94, s2, 7')
        a(f's_add_u32 s94, s94, {hex(TS)}')
        a('s_add_u32 s92, s58, s94')
        a('s_addc_u32 s93, s59, 0')
        a('v_lshlrev_b32 v250, 2, v1')
        a('s_lshl_b32 s94, s2, 8')
        a(f's_add_u32 s94, s94, {hex(TS + 0x80000)}')
        a('s_add_u32 s94, s58, s94')
        a('s_addc_u32 s95, s59, 0')
        a('global_store_dword v250, v254, s[94:95]')
        a('s_mov_b64 exec, 1')
        if P.get('dbg'):
            a('s_load_dwordx2 s[94:95], s[0:1], 104')
        a('s_waitcnt lgkmcnt(0)')
        if P.get('dbg'):
            a('s_not_b32 s60, s60')
            for m in sorted(marks):
                a(f'v_mov_b32 v250, s{60+2*m}')
                a(f'global_atomic_umax v21, v250, s[94:95] offset:{4*m}')
                a('s_nop 1')
            a('s_not_b32 s60, s60')
        for m in sorted(marks):
            a(f'v_mov_b32 v250, s{60+2*m}')
            a(f'v_mov_b32 v251, s{61+2*m}')
            a(f'global_store_dwordx2 v21, v[250:251], s[92:93] offset:{8*m}')
            a('s_nop 1')
    a.label('L_end')
    a.label('L_last')
    a('s_endpgm')
    return dict(grid=256, block=256, lds=163840, vgpr=512, accum=256)
```

```python
from collections import deque
from asmlib import *
from k123 import fh, lo, hi, unpack8, ln_stats, LdsPipe, A_OUT, A_WS
from k45 import VmPipe, GC1, GC2, geglu
from cde import zipl, gelu_ops, cost

UT, YT, X1, H2, ACT = 0, 0x400000, 0x900000, 0, 0xD00000
MODT, EPOCH, GRP, MP, TS = 0x1400000, 0x1408000, 0x1410000, 0x1480000, 0x1500000
YP = 16384 + 128
XID, UH, F1, F2, F3 = 0, 128, 1024, 1536, 2048
P1U = 49280
SEG = [(0, 98432, 129152), (15, 0, 49280), (27, 24576, 73856)]
CB, CHS, KB, U0, U1 = 98432, 12992, 512, 4608, 8768
PB = CB + 2*CHS
PRM = PB + 32768
MPART = PRM + 6144
XG = 129152 + 112*128
YS = 1040
XH = XG + 8*YS
PS = 272
SPIN = 1 << 15
WBL = [5, 11, 12, 13, 14, 16, 17, 18, 15, 19, 0, 6, 1, 2, 7, 8, 3, 4, 9, 10]
BARS = {(0, 15): (None, 0), (0, 23): (None, 0), (0, 29): (6, 0), (1, 4): (14, 2), (1, 12): (22, 8), (1, 20): (31, 12), (1, 27): (None, 16), (1, 31): (None, 20)}
assert MPART + 512 <= 163840 and XH + 8192 <= 163840
def seg_of(k): return SEG[0] if k < 15 else SEG[1] if k < 27 else SEG[2]

def base(a, d, p, n):
    a(f's_mov_b32 s{d}, s{p}'); a(f's_mov_b32 s{d+1}, s{p+1}'); a(f's_mov_b32 s{d+2}, {hex(n)}')

FL1, FL2, FL3 = 0x1420000, 0x1428000, 0x1430000
def mega(a, P):
    M2 = P.get('m2', 0)
    H2 = 0xB00000 if M2 else 0
    marks = set()
    SETS = {1: 'start kv0 utst utok bbar end bend ytst ytok h2dr b0 p1end b8 estart f3ok eend',
            2: 'start kv0 kvN abar utst end ut1st uhok utok bbar bend pbar ytst ytack ytok mdok',
            3: 'start ytst ln1 ytack ytok end ybar hbar h2st h2dr f1ok b0 b1 b2 b3 p1end',
            6: 'start b0 b1 b2 b3 end p1end b4 b5 b6 b7 b8 g1 f2ok g3 estart',
            7: 'start estart e2 e4 e6 end f3ok e8 e10 e12 e14 e16 e20 e24 eend ebar',
            5: 'start karg x2 x3 x4 end x6 x7 x8 x9 x10 x11 x12 kv0 issued pre',
            4: 'start p1end b5 b6 b7 end b8 g1 f2ok g3 estart e12 f3ok e20 eend ebar'}
    names = SETS[P.get('stamps', 1)].split()
    def stamp(name):
        if P.get('stamps') and name in names:
            slot = names.index(name)
            a(f's_memrealtime s[{60+2*slot}:{61+2*slot}]'); marks.add(slot)
    def raw(i, sreg):
        if P.get('stamps'): a(f'v_writelane_b32 v254, {sreg}, {i}')
    vm = VmPipe(a)
    NT = ' nt' if P.get('nt', 1) else ''
    nst = [0]
    def lstore(lines, through=False):
        if through:
            for l in lines: t = vm.issue(l + ' sc1')
            return t
        return lstore2(lines)
    def lstore2(lines):
        n = nst[0]; nst[0] += 1
        a('s_cmp_eq_u32 s101, 0')
        a(f's_cbranch_scc1 L_ls{n}a')
        for l in lines: a(l + ' sc1')
        a(f's_branch L_ls{n}b')
        a.label(f'L_ls{n}a')
        for l in lines: t = vm.issue(l)
        a.label(f'L_ls{n}b')
        return t
    def poll(name, loads, tags, pre=None):
        a(f's_mov_b32 s51, {SPIN}')
        if pre is not None:
            vm.need(pre)
            stamp(name + '1st')
            a(f's_branch L_{name}_chk')
        a.label(f'L_{name}')
        for l in loads: a(l)
        a('s_waitcnt vmcnt(0)')
        a.label(f'L_{name}_chk')
        a(f'v_cmp_ne_u32 vcc, s50, v{tags[0]}')
        for i, t in enumerate(tags[1:]): a(f'v_cmp_ne_u32 s[{92+2*i}:{93+2*i}], s50, v{t}')
        a('s_sub_u32 s51, s51, 1')
        a(f's_cbranch_scc1 L_{name}_ok')
        for i in range(len(tags)-1): a(f's_or_b64 vcc, vcc, s[{92+2*i}:{93+2*i}]')
        a(f's_cbranch_vccnz L_{name}')
        a.label(f'L_{name}_ok')
        if pre is None: vm.done = vm.issued

    a('s_cmp_ge_u32 s2, 256')
    a('s_cbranch_scc1 L_end')
    stamp('start')
    if P.get('stamps'): a('v_mov_b32 v254, 0')
    a('s_load_dwordx16 s[64:79], s[0:1], 0')
    if P.get('cpf', 1):
        a('s_getpc_b64 s[4:5]')
        a.label('L_pc')
        a('v_lshlrev_b32 v3, 7, v0')
        a('v_mov_b32 v5, s5')
        a('v_add_co_u32 v4, vcc, s4, v3')
        a(f'v_cmp_gt_u32 s[6:7], {P.get("cpn", 16)}, v0')
        a('v_and_b32 v1, 63, v0')
        a('v_addc_co_u32 v5, vcc, 0, v5, vcc')
        a('s_and_b64 exec, exec, s[6:7]')
        a('s_cbranch_execz L_nopf')
        a('global_load_dword v169, v[4:5], off')
        a.label('L_nopf')
        a('s_mov_b64 exec, -1')
    else: a('v_and_b32 v1, 63, v0')
    a(f's_load_dwordx2 s[58:59], s[0:1], {A_WS}')
    a('s_load_dwordx8 s[80:87], s[0:1], 64')
    a(f's_load_dwordx2 s[56:57], s[0:1], {A_OUT}')
    a('v_lshrrev_b32 v2, 6, v0')
    a('v_readfirstlane_b32 s3, v2')
    a('s_mov_b32 s40, 0xffff0000')
    a('s_and_b32 s28, s2, 7')
    a('s_lshr_b32 s29, s2, 3')
    a('s_lshl_b32 s32, s28, 5')
    a('s_or_b32 s32, s32, s29')
    a('v_and_b32 v3, 31, v0')
    a('v_lshrrev_b32 v2, 5, v0')
    a('s_lshl_b32 s33, s29, 6')
    a('v_lshl_add_u32 v4, v2, 3, s33')
    a('s_lshl_b32 s33, s28, 7')
    a('v_lshl_add_u32 v5, v3, 2, s33')
    a('v_lshl_add_u32 v5, v4, 10, v5')
    a('v_subrev_u32 v4, 0xc00, v5')
    a('s_lshl_b32 s33, s28, 9')
    a('v_lshl_add_u32 v13, v3, 4, s33')
    a('s_movk_i32 s35, 0x1000')
    a('s_mov_b32 s15, 0x20000'); a('s_mov_b32 s27, 0x20000'); a('s_mov_b32 s19, 0x20000')
    a('s_mov_b32 s23, 0x20000'); a('s_mov_b32 s11, 0x20000'); a('s_mov_b32 s55, 0x20000')
    a('v_lshlrev_b32 v15, 4, v1')
    a('v_mov_b32 v21, 0')
    a('v_lshlrev_b32 v14, 4, v0')
    a('s_waitcnt lgkmcnt(0)')
    stamp('karg')
    base(a, 12, 70, 4096)
    base(a, 24, 68, 0x200000)
    tsh = vm.issue('buffer_load_dwordx4 v[48:51], v13, s[12:15], 0 offen' + NT)
    base(a, 12, 66, 0x200000)
    for i in range(3): vm.issue(f'buffer_load_dword v{24+i}, v4, s[12:15], 0 offen offset:{1024*i}' + NT)
    tk = {}
    for i in range(8):
        so = 's35' if i >= 4 else '0'
        vm.issue(f'buffer_load_dword v{27+i}, v5, s[12:15], {so} offen offset:{1024*(i&3)}' + NT)
        tk[i] = vm.issue(f'buffer_load_dword v{36+i}, v5, s[24:27], {so} offen offset:{1024*(i&3)}' + NT)
    stamp('issued')
    a(f's_add_u32 s4, s58, {hex(EPOCH)}')
    a('s_addc_u32 s5, s59, 0')
    a('s_load_dword s50, s[4:5], 0')
    if P.get('cpf', 1):
        a('s_getpc_b64 s[6:7]')
        a.label('L_pc2')
        a('s_lshl_b32 s36, s29, 2')
        a('s_add_u32 s36, s36, s3')
        a('v_and_b32 v4, 1, v0')
        a('v_lshl_add_u32 v4, s36, 1, v4')
        a('v_min_u32 v4, (L_last-L_pc2)/128, v4')
        a('v_lshlrev_b32 v4, 7, v4')
        a('v_mov_b32 v5, s7')
        a('v_add_co_u32 v4, vcc, s6, v4')
        a('v_addc_co_u32 v5, vcc, 0, v5, vcc')
        a('s_mov_b64 exec, 3')
        vm.issue('global_load_dword v168, v[4:5], off')
        a('s_mov_b64 exec, -1')
    if P.get('kvbar', 1): a('s_barrier')
    a('s_lshl_b32 s33, s32, 2')
    a('s_add_u32 s6, s74, s33')
    a('s_addc_u32 s7, s75, 0')
    a('s_load_dword s34, s[6:7], 0')
    base(a, 12, 72, 0x200000)
    a('s_lshl_b32 s33, s32, 13')
    a('s_add_u32 s36, s33, 0x1000')
    vm.issue('buffer_load_dwordx4 v[146:149], v14, s[12:15], s33 offen' + NT)
    tsk = vm.issue('buffer_load_dwordx4 v[150:153], v14, s[12:15], s36 offen' + NT)
    a('s_mul_i32 s30, s28, 6')
    a('s_lshr_b32 s31, s29, 2')
    a('s_add_u32 s30, s30, s31')
    a('s_and_b32 s31, s29, 3')
    a('s_lshl_b32 s46, s30, 2')
    a('s_or_b32 s46, s46, s31')
    a('s_lshl_b32 s47, s31, 2')
    a('s_or_b32 s47, s47, s3')
    a('v_and_b32 v16, 1, v0')
    a('v_lshrrev_b32 v17, 3, v1')
    a('v_and_b32 v6, 7, v1')
    a('v_mul_u32_u24 v242, 0x6000, v17')
    a('v_lshl_add_u32 v242, v6, 4, v242')
    a('v_lshlrev_b32 v243, 3, v17')
    a('s_lshl_b32 s36, s3, 11')
    a('s_add_u32 s33, s33, s36')
    if M2:
        a('s_and_b32 s30, s2, 1')
        a('s_lshl_b32 s30, s30, 3')
        a('s_and_b32 s98, s29, 7')
        a('s_or_b32 s30, s30, s98')
        a('s_bfe_u32 s31, s2, 0x20001')
        a('s_lshl_b32 s31, s31, 2')
        a('s_lshr_b32 s36, s2, 6')
        a('s_or_b32 s31, s31, s36')
        a('s_lshl_b32 s36, s36, 1')
        a('s_add_u32 s98, s98, s36')
    else:
        a('s_lshr_b32 s30, s32, 4')
        a('s_and_b32 s31, s32, 15')
        a(f's_and_b32 s98, s30, {P.get("prot", 0)}')
        a('s_lshl_b32 s98, s98, 2')
        if P.get('xrot', 1): a('s_add_u32 s98, s98, s28')
    a('s_and_b32 s98, s98, 7')
    a('s_lshr_b32 s38, s3, 1')
    a('s_and_b32 s39, s3, 1')
    a('s_cmp_eq_u32 s38, 0')
    a('s_cselect_b32 s20, s78, s80')
    a('s_cselect_b32 s21, s79, s81')
    a(f's_mov_b32 s22, {512*3584 if not P.get("now") else 0}')
    base(a, 8, 82, 1792*1024 if not P.get('now') else 0)
    base(a, 16, 58, TS)
    a('s_lshl_b32 s36, s28, 12')
    a(f's_add_u32 s36, s36, {hex(GRP)}')
    a('s_add_u32 s52, s58, s36')
    a('s_addc_u32 s53, s59, 0')
    a('s_movk_i32 s54, 0x1000')
    a('s_cmp_eq_u32 s3, 3')
    a('s_cselect_b32 s37, 0, 0x70000000')
    a('v_mov_b32 v22, s37')
    a('s_lshl_b32 s36, s29, 7')
    vm.issue('buffer_load_dword v158, v22, s[52:55], s36 offen')
    a('s_lshl_b32 s36, s46, 6')
    a(f's_add_u32 s36, s36, {hex(MODT)}')
    vm.issue('buffer_load_dword v159, v22, s[16:19], s36 offen')
    if M2 and P.get('ft', 1):
        a('s_lshl_b32 s36, s30, 4')
        a('s_lshr_b32 s37, s32, 4')
        a('s_lshl_b32 s37, s37, 4')
        a('s_sub_u32 s37, s37, s36')
        a('s_add_u32 s37, s37, 0x100')
        a('v_lshrrev_b32 v4, 2, v1')
        a('v_min_u32 v5, 1, v4')
        a('v_mul_lo_u32 v5, v5, s37')
        a('v_max_u32 v4, 1, v4')
        a('v_subrev_u32 v4, 1, v4')
        a('v_lshl_add_u32 v5, v4, 8, v5')
        a('v_and_b32 v4, 3, v1')
        a('v_add_u32 v5, v5, v4')
        a('s_lshl_b32 s37, s3, 2')
        a('s_add_u32 s36, s36, s37')
        a('v_add_lshl_u32 v5, v5, s36, 7')
        a(f's_mov_b32 s36, {hex(FL1)}')
        a('s_mov_b64 exec, 0xfff')
        vm.issue('buffer_load_dword v156, v5, s[16:19], s36 offen')
        a('s_mov_b64 exec, -1')
    a('s_lshl_b32 s36, s32, 13')
    a('s_lshl_b32 s37, s46, 11')
    a(f's_add_u32 s37, s37, {hex(MP)}')
    a('s_cmp_eq_u32 s3, 1')
    a(f's_cselect_b32 s37, s37, {hex(TS)}')
    a('s_cselect_b32 s44, 15, 63')
    a('s_cmp_eq_u32 s3, 2')
    a('s_cselect_b32 s37, s36, s37')
    a('v_and_b32 v4, s44, v1')
    a('v_lshlrev_b32 v4, 7, v4')
    if P.get('utt', 1): vm.issue('buffer_load_dword v157, v4, s[16:19], s37 offen' + (NT if P.get('ntu', 1) else ''))
    if P.get('tlb', 0) == 1:
        a('v_lshl_add_u32 v4, v1, 20, v22')
        for i, (p, n) in enumerate(((86, 512*6144), (84, 1024), (64, 0x200000), (78, 512*3584), (80, 512*3584), (82, 1792*1024), (56, 0x200000))):
            base(a, 12, p, n)
            vm.issue(f'buffer_load_dword v{160+i}, v4, s[12:15], 0 offen')
        vm.issue('buffer_load_dword v154, v4, s[16:19], 0 offen')
    for i in range(3):
        a(f'v_add_u32 v4, {64*i}, v1')
        a('v_mul_u32_u24 v5, 0x2aab, v4')
        a('v_lshrrev_b32 v5, 16, v5')
        a(f'v_mul_u32_u24 v5, {3584-96}, v5')
        a(f'v_lshl_add_u32 v{10+i}, v4, 4, v5')
        if i: a(f'v_subrev_u32 v{10+i}, {1024*i}, v{10+i}')
    a(f's_mul_i32 s41, s39, {32*3584}')
    a('s_mul_i32 s43, s31, 96')
    a('s_add_u32 s41, s41, s43')
    a('s_add_u32 s41, s41, 0x800')
    a('s_mul_i32 s43, s39, 3072')
    a(f's_mul_i32 s42, s38, {P1U}')
    a('s_add_u32 s42, s42, s43')
    a(f's_add_u32 s99, s41, {512*3584}')
    a(f's_mul_i32 s36, s98, {64*3584}')
    a('s_add_u32 s41, s41, s36')
    def step(reg, inc, lim, span):
        a(f's_add_u32 {reg}, {reg}, {inc}')
        a(f's_cmp_eq_u32 {reg}, {lim}')
        a(f's_cselect_b32 s36, {span}, 0')
        a(f's_sub_u32 {reg}, {reg}, s36')
    early = deque()
    def p1dma(m, i):
        if i == 0: a(f's_add_u32 m0, s42, {6144*m}')
        vm.issue(f'buffer_load_dwordx4 v{10+i}, s[20:23], s41 offen offset:{1024*i} lds')
        if i == 2 and m < 7: step('s41', 64*3584, 's99', 512*3584)
    for m in range(8):
        for i in range(3): early.append(lambda m=m, i=i: p1dma(m, i))
    for _ in range(P.get('e0', 0)): early.popleft()()
    a('v_lshrrev_b32 v4, 3, v1')
    a('v_bfe_u32 v5, v1, 4, 1')
    a('v_lshlrev_b32 v5, 2, v5')
    a('v_xor_b32 v5, v5, v6')
    a('v_lshlrev_b32 v5, 4, v5')
    a('v_lshl_add_u32 v8, v4, 10, v5')
    a(f'v_add_u32 v9, {8192-1024}, v8')
    a('s_lshl_b32 s43, s38, 5')
    a('v_xor_b32 v5, s43, v5')
    a('v_mul_u32_u24 v7, 0xe00, v4')
    a('v_add_u32 v7, v7, v5')
    a(f's_mul_i32 s48, s39, {8*3584}')
    a('s_lshl_b32 s43, s31, 7')
    a('s_add_u32 s48, s48, s43')
    a('s_lshl_b32 s43, s39, 10')
    a(f's_mul_i32 s49, s38, {SEG[0][2]-SEG[0][1]}')
    a('s_add_u32 s49, s49, s43')
    a(f's_mul_i32 s38, s38, {P1U}')
    a('s_add_u32 s43, s43, s38')
    a('v_sub_u32 v4, 7, v2')
    a('v_xor_b32 v4, v4, v6')
    a('v_lshl_add_u32 v4, v3, 4, v4')
    a(f'v_lshlrev_b32 v4, 4, v4')
    a(f'v_add_u32 v120, {PB}, v4')
    a('v_lshrrev_b32 v4, 4, v1')
    a('v_xor_b32 v5, v4, v1')
    a('s_lshl_b32 s36, s3, 11')
    a(f's_add_u32 s36, s36, {PB}')
    a('v_lshl_add_u32 v124, v5, 4, s36')
    a('v_xor_b32 v125, 64, v124')
    a('v_lshrrev_b32 v4, 3, v1')
    a('v_lshlrev_b32 v5, 4, v6')
    a('v_lshl_add_u32 v13, v4, 12, v5')
    a('s_lshl_b32 s36, s28, 2')
    a('s_add_u32 s36, s36, s3')
    a('s_lshl_b32 s36, s36, 16')
    a('s_sub_u32 s35, 31, s29')
    a('s_lshl_b32 s35, s35, 7')
    a('s_add_u32 s35, s35, s36')
    a('s_waitcnt lgkmcnt(0)')
    a('s_mul_i32 s50, s50, 1664525')
    a('s_add_u32 s50, s50, 1013904223')
    a('v_mov_b32 v20, s50')
    a('s_getreg_b32 s100, hwreg(HW_REG_XCC_ID, 0, 4)')
    if P.get('slow'): a('s_and_b32 s100, s29, 1')
    a('s_add_u32 s100, s100, s50')
    a('s_add_u32 s100, s100, 1')
    a('s_cmp_lg_u32 s3, 0')
    a('s_cbranch_scc1 L_noid')
    a('v_mov_b32 v22, s100')
    a('s_lshl_b32 s36, s29, 2')
    a(f'buffer_store_dword v22, v21, s[52:55], s36 offen offset:{XID} sc1')
    a.label('L_noid')
    if P.get('probe', 0) >= 100:
        a('v_mov_b32 v22, s60')
        a('s_lshl_b32 s36, s2, 2')
        a(f's_add_u32 s36, s36, {hex(0x140A000)}')
        vm.issue('buffer_store_dword v22, v21, s[16:19], s36 offen sc1')
    stamp('pre')
    vm.need(tsh)
    lo(a, 52, 48); hi(a, 54, 48, 40); lo(a, 56, 49); hi(a, 58, 49, 40)
    lo(a, 53, 50); hi(a, 55, 50, 40); lo(a, 57, 51); hi(a, 59, 51, 40)
    vm.need(tk[0])
    stamp('kv0')
    base(a, 12, 84, 1024)
    a('s_lshl_b32 s36, s47, 6')
    tc = vm.issue('buffer_load_dwordx2 v[144:145], v243, s[12:15], s36 offen')
    base(a, 12, 86, 512*6144)
    a('s_cmp_lt_u32 s29, 24')
    a('s_cselect_b32 s14, s14, 0')
    a('s_lshr_b32 s36, s46, 2')
    a('s_lshl_b32 s36, s36, 7')
    a(f's_mul_i32 s37, s47, {32*6144}')
    a('s_add_u32 s36, s36, s37')
    twm = []
    for r in range(4):
        twm.append(vm.issue(f'buffer_load_dwordx4 v[{128+4*r}:{131+4*r}], v242, s[12:15], s36 offen' + NT))
        if r < 3: a('s_add_u32 s36, s36, 0x1800')
    base(a, 12, 64, 0x200000)
    def xload():
        vm.issue('buffer_load_dwordx4 v[232:235], v15, s[12:15], s33 offen' + NT)
        return vm.issue('buffer_load_dwordx4 v[236:239], v15, s[12:15], s33 offen offset:1024' + NT)
    if P.get('xat', 1) == 0: tx = xload()
    for q in range(3):
        lo(a, 60+2*q, 24+q); hi(a, 61+2*q, 24+q, 40)
    for r in range(8):
        vm.need(tk[r])
        lo(a, 66+2*r, 27+r); hi(a, 67+2*r, 27+r, 40)
        lo(a, 84+2*r, 36+r); hi(a, 85+2*r, 36+r, 40)
        d = 102+2*r
        a(f'v_pk_mul_f32 v[{d}:{d+1}], v[{60+2*r}:{61+2*r}], v[58:59]')
        a(f'v_pk_fma_f32 v[{d}:{d+1}], v[{62+2*r}:{63+2*r}], v[56:57], v[{d}:{d+1}]')
        a(f'v_pk_fma_f32 v[{d}:{d+1}], v[{64+2*r}:{65+2*r}], v[54:55], v[{d}:{d+1}]')
        a(f'v_pk_fma_f32 v[{d}:{d+1}], v[{66+2*r}:{67+2*r}], v[52:53], v[{d}:{d+1}]')
        a(f'v_pk_mul_f32 v[{d}:{d+1}], v[{d}:{d+1}], v[{84+2*r}:{85+2*r}]')
    stamp('kvN')
    for c in range(2):
        for jj in range(4):
            a(f'v_cvt_pk_bf16_f32 v{24+4*c+jj}, v{102+2*(7-2*jj)+c}, v{102+2*(6-2*jj)+c}')
        a(f'ds_write_b128 v120, v[{24+4*c}:{27+4*c}] offset:{128*c}')
    a('s_waitcnt lgkmcnt(0)')
    a('s_barrier')
    stamp('abar')
    for j in range(2): a(f'ds_read_b128 v[{104+4*j}:{107+4*j}], v{124+j} offset:{1024*j}')
    a('s_mov_b32 s24, s35')
    a('s_add_u32 s25, s35, 0x8000')
    ustores = [f'buffer_store_dwordx4 v[{104+4*j}:{107+4*j}], v13, s[16:19], s{24+j} offen' for j in range(2)]
    for j in range(2):
        a(f's_waitcnt lgkmcnt({1-j})')
        tus = vm.issue(ustores[j] + (' sc1' if P.get('uts', 0) else ''))
    a('s_lshl_b32 s7, s3, 7')
    a('s_lshl_b32 s36, s29, 2')
    a('s_add_u32 s7, s7, s36')
    a('v_mov_b32 v123, s100')
    stamp('utst')
    for i in range(4): a(f'v_mov_b32 v{40+i}, 0')
    a(f'v_add_u32 v14, {CB}, v14')
    a('v_cmp_gt_u32 vcc, 32, v0')
    a('s_and_saveexec_b64 s[36:37], vcc')
    a('s_cbranch_execz L_nz')
    a('ds_write_b128 v14, v[40:43]')
    a(f'ds_write_b128 v14, v[40:43] offset:{CHS}')
    a('v_cmp_gt_u32 vcc, 2, v0')
    a('s_and_b64 exec, exec, vcc')
    for c in range(2):
        a(f'ds_write_b128 v14, v[40:43] offset:{c*CHS+U0+4096}')
        a(f'ds_write_b128 v14, v[40:43] offset:{c*CHS+U1+4096}')
    a.label('L_nz')
    a('s_mov_b64 exec, s[36:37]')
    a('v_cmp_eq_u32 s[36:37], 0, v0')
    a('s_lshl_b32 s4, s34, 16')
    a('s_and_b32 s5, s34, 0xffff0000')
    a('s_mov_b32 s6, 0xffff')
    vm.need(tsk)
    stamp('skok')
    for c in range(2):
        kx = 146+4*c
        lo(a, 44, kx)
        a(f'v_add_f32 v44, s{4+c}, v44')
        a('v_cvt_pk_bf16_f32 v44, v44, v44')
        a(f'v_bfi_b32 v44, s6, v44, v{kx}')
        a(f'v_cndmask_b32 v{kx}, v{kx}, v44, s[36:37]')
        a(f'ds_write_b128 v14, v[{kx}:{kx+3}] offset:{c*CHS+KB}')
    vm.need(tus)
    vm.issue(f'buffer_store_dword v123, v21, s[52:55], s7 offen offset:{UH}')
    a('v_and_b32 v120, 31, v1')
    a('v_lshlrev_b32 v120, 2, v120')
    a('s_lshr_b32 s5, s29, 3')
    a('s_lshl_b32 s5, s5, 7')
    hloads = [f'buffer_load_dword v121, v120, s[52:55], 0 offen offset:{XID} sc1', f'buffer_load_dword v124, v120, s[52:55], s5 offen offset:{UH} sc1']
    for l in hloads: tu = vm.issue(l)
    a('v_lshrrev_b32 v4, 1, v6')
    a('v_lshlrev_b32 v4, 11, v4')
    a('v_lshl_add_u32 v4, v16, 6, v4')
    a('v_lshrrev_b32 v5, 5, v1')
    a('v_lshl_add_u32 v4, v5, 5, v4')
    a('v_bfe_u32 v5, v1, 4, 1')
    a('v_lshl_add_u32 v244, v5, 4, v4')
    a('s_lshl_b32 s35, s32, 13')
    a('s_add_u32 s34, s35, 0x1000')
    a('v_lshlrev_b32 v125, 4, v0')
    vm.need(tc)
    lo(a, 44, 144); hi(a, 45, 144, 40); lo(a, 46, 145); hi(a, 47, 145, 40)
    for r in range(4): a(f'v_mul_f32 v{48+r}, {fh(-1.4426950408889634)}, v{44+r}')
    for r in range(4): a(f'v_exp_f32 v{48+r}, v{48+r}')
    for r in range(4): a(f'v_add_f32 v{48+r}, 1.0, v{48+r}')
    for r in range(4): a(f'v_rcp_f32 v{48+r}, v{48+r}')
    for r in range(4): a(f'v_mul_f32 v{44+r}, v{44+r}, v{48+r}')
    a('v_cvt_pk_bf16_f32 v48, v44, v45')
    a('v_cvt_pk_bf16_f32 v49, v46, v47')
    lo(a, 44, 48); hi(a, 45, 48, 40); lo(a, 46, 49); hi(a, 47, 49, 40)
    def stage1():
        for r in range(4):
            vm.need(twm[r])
            unpack8(a, 52, 128+4*r, 40)
            sel = 'op_sel:[0,0,0] op_sel_hi:[1,0,1]' if r % 2 == 0 else 'op_sel:[0,1,0] op_sel_hi:[1,1,1]'
            sp = 44 + (r & 2)
            for j in range(4):
                if r == 0:
                    a(f'v_pk_mul_f32 v[{60+2*j}:{61+2*j}], v[{52+2*j}:{53+2*j}], v[{sp}:{sp+1}] op_sel:[0,0] op_sel_hi:[1,0]')
                else:
                    a(f'v_pk_fma_f32 v[{60+2*j}:{61+2*j}], v[{52+2*j}:{53+2*j}], v[{sp}:{sp+1}], v[{60+2*j}:{61+2*j}] {sel}')
        for j in range(4): a(f'v_permlane32_swap_b32 v{60+j}, v{64+j}')
        for j in range(4): a(f'v_add_f32 v{60+j}, v{60+j}, v{64+j}')
        a('s_lshr_b32 s6, s46, 2')
        a('s_lshl_b32 s6, s6, 13')
        for j in range(2): a(f'v_permlane16_swap_b32 v{60+j}, v{62+j}')
        a('s_lshl_b32 s36, s47, 7')
        for j in range(2): a(f'v_add_f32 v{100+j}, v{60+j}, v{62+j}')
        a('v_mov_b32 v102, s50')
        a('v_mov_b32 v103, s50')
        for j in range(2): a(f'v_add_f32_dpp v{100+j}, v{100+j}, v{100+j} row_ror:8 row_mask:0xf bank_mask:0xf')
        a('s_add_u32 s6, s6, s36')
        a(f's_add_u32 s6, s6, {hex(MP)}')
        a('s_cmp_lt_u32 s29, 24')
        a(f's_cselect_b32 s6, s6, {hex(TS)}')
    if P.get('s1at', 1) == 0: stage1()
    a('s_lshr_b32 s36, s3, 1')
    a(f's_mul_i32 s36, s36, {CHS}')
    a('s_xor_b32 s38, s39, 1')
    a('s_lshl_b32 s38, s38, 6')
    a('s_add_u32 s36, s36, s38')
    a(f's_add_u32 s36, s36, {CB}')
    a('v_and_b32 v3, 15, v0')
    a('v_bfe_u32 v4, v0, 4, 2')
    a('v_lshlrev_b32 v5, 4, v4')
    a('v_lshl_add_u32 v22, v3, 5, v5')
    a(f's_add_u32 s38, s36, {KB-480}')
    a('v_add_u32 v22, s38, v22')
    a('v_and_b32 v23, 14, v3')
    a('v_lshlrev_b32 v23, 1, v23')
    a('v_sub_u32 v23, v5, v23')
    a(f'v_mul_u32_u24 v5, {U1-U0}, v16')
    a('v_sub_u32 v23, v23, v5')
    a(f's_add_u32 s38, s36, {U1+28}')
    a('v_add_u32 v16, s38, v23')
    for i in range(1, 4): a(f'v_add_u32 v{16+i}, {1024*i}, v16')
    a('v_bfe_u32 v5, v3, 1, 2')
    a('v_xor_b32 v5, v5, v4')
    a('v_lshl_add_u32 v5, v3, 2, v5')
    a('s_lshl_b32 s38, s3, 13')
    a(f's_add_u32 s38, s38, {PB}')
    a('v_lshl_add_u32 v23, v5, 4, s38')
    a(f's_mov_b32 s51, {SPIN}')
    a('s_mov_b32 s101, 0')
    vm.need(tu)
    stamp('ut1st')
    a('s_branch L_uh_chk')
    a.label('L_uh')
    for l in hloads: a(l)
    a('s_waitcnt vmcnt(0)')
    a.label('L_uh_chk')
    a('v_subrev_u32 v122, s50, v121')
    a('v_subrev_u32 v122, 1, v122')
    a('v_cmp_lt_u32 vcc, 15, v122')
    a('v_cmp_ne_u32 s[92:93], s100, v121')
    a('s_sub_u32 s51, s51, 1')
    a('s_cbranch_scc1 L_uh_ok')
    a('s_cbranch_vccnz L_uh')
    a('s_cmp_eq_u64 s[92:93], 0')
    a('s_cbranch_scc1 L_uh_same')
    a('s_cmp_lg_u32 s101, 0')
    a('s_cbranch_scc1 L_uh_same')
    a('s_mov_b32 s101, 1')
    for l in ustores: a(l + ' sc1')
    a('s_waitcnt vmcnt(0)')
    a(f'buffer_store_dword v20, v21, s[52:55], s7 offen offset:{UH} sc1')
    a.label('L_uh_same')
    a('v_cmp_ne_u32 vcc, s50, v124')
    a('v_cmp_ne_u32 s[92:93], s100, v124')
    a('s_nop 0')
    a('s_and_b64 vcc, vcc, s[92:93]')
    a('s_cbranch_vccnz L_uh')
    a.label('L_uh_ok')
    raw(6, 's51')
    stamp('uhok')
    tu = []
    for c in range(2):
        vm.issue(f'buffer_load_dwordx4 v[{72+4*c}:{75+4*c}], v125, s[16:19], s{35-c} offen sc1')
        tu.append(vm.issue(f'buffer_load_dword v{80+c}, v125, s[16:19], s{35-c} offen offset:16 sc1'))
    if P.get('s1at', 1) == 1: stage1()
    lstore(['buffer_store_dwordx4 v[100:103], v244, s[16:19], s6 offen'])
    if P.get('xat', 1) == 1: tx = xload()
    a('s_movk_i32 s36, 0xff')
    a('v_cmp_ne_u32 vcc, s36, v0')
    for c in range(2):
        u = 72+4*c
        vm.need(tu[c])
        if c == 0: stamp('utok')
        a(f'v_cndmask_b32 v{80+c}, 0, v{80+c}, vcc')
        a(f'ds_write_b128 v14, v[{u}:{u+3}] offset:{c*CHS+U0}')
        for j in range(3): a(f'v_alignbit_b32 v{40+4*c+j}, v{u+j+1}, v{u+j}, 16')
        a(f'v_alignbit_b32 v{43+4*c}, v{80+c}, v{u+3}, 16')
        a(f'ds_write_b128 v14, v[{40+4*c}:{43+4*c}] offset:{c*CHS+U1}')
    for _ in range(P.get('e0b', 3)): early.popleft()()
    a('s_waitcnt lgkmcnt(0)')
    a('s_barrier')
    stamp('bbar')
    a('s_lshl_b32 s6, s46, 11')
    a(f's_add_u32 s6, s6, {hex(MP)}')
    a('s_cmp_lt_u32 s29, 24')
    a(f's_cselect_b32 s7, s3, 1')
    ploads = [f'buffer_load_dwordx4 v[{24+4*j}:{27+4*j}], v15, s[16:19], s6 offen offset:{1024*j} sc1' for j in range(2)]
    tmi = []
    def mod_issue():
        a('s_cmp_lg_u32 s7, 0')
        a('s_cbranch_scc1 L_nomi')
        for l in ploads: a(l)
        a.label('L_nomi')
        tmi.append(vm.issued)
    def mod_final():
        a('s_cmp_lg_u32 s7, 0')
        a('s_cbranch_scc1 L_nomod')
        done = vm.done
        a(f's_waitcnt vmcnt({vm.issued - tmi[0]})')
        poll('mp', ploads, [26, 30], pre=0)
        vm.done = done
        a('v_pk_add_f32 v[24:25], v[24:25], v[28:29]')
        a('s_lshr_b32 s36, s46, 5')
        a('s_cmp_eq_u32 s36, 1')
        for j in range(2): a(f'v_add_f32_dpp v{24+j}, v{24+j}, v{24+j} row_ror:8 row_mask:0xf bank_mask:0xf')
        a('s_cselect_b32 s38, 1.0, 0')
        a('s_cmp_eq_u32 s36, 4')
        for op in ('v_permlane16_swap_b32', 'v_permlane32_swap_b32'):
            for j in range(2): a(f'v_mov_b32 v{26+j}, v{24+j}')
            for j in range(2): a(f'{op} v{24+j}, v{26+j}')
            a('v_pk_add_f32 v[24:25], v[24:25], v[26:27]')
        a('s_cselect_b32 s38, 1.0, s38')
        a('s_lshl_b32 s36, s46, 6')
        a('v_cvt_pk_bf16_f32 v26, v24, v25')
        a(f's_add_u32 s36, s36, {hex(MODT)}')
        lo(a, 24, 26); hi(a, 25, 26, 40)
        for j in range(2): a(f'v_add_f32 v{24+j}, s38, v{24+j}')
        a('v_cvt_pk_bf16_f32 v28, v24, v25')
        a('v_mov_b32 v30, s50')
        a('v_mov_b32 v31, s50')
        a('v_mov_b32_dpp v29, v28 quad_perm:[1,1,3,3] row_mask:0xf bank_mask:0xf')
        a('v_lshlrev_b32 v24, 3, v1')
        a('s_mov_b64 exec, 0x55')
        a('buffer_store_dwordx4 v[28:31], v24, s[16:19], s36 offen sc1')
        a('s_mov_b64 exec, -1')
        a.label('L_nomod')
    ACC, AR, BR = 40, 72, 104
    pipe = LdsPipe(a)
    reads = []
    for i in range(32):
        o = 32*((31-i) & 7); b = 16 + ((31-i) >> 3); d = AR + 4*(i & 7)
        reads.append((('A', i, 0), f'ds_read2_b32 v[{d}:{d+1}], v{b} offset0:{o} offset1:{o+1}'))
        reads.append((('A', i, 1), f'ds_read2_b32 v[{d+2}:{d+3}], v{b} offset0:{o+2} offset1:{o+3}'))
        if i < 4:
            for t in range(8):
                j = 4*t+3-i
                reads.append((('B', j), f'ds_read_b128 v[{BR+4*j}:{BR+4*j+3}], v22 offset:{128*j}'))
    tok = {}; nxt = [0]
    def pump(cur_step, maxn):
        n = 0
        while n < maxn and nxt[0] < len(reads) and pipe.outstanding() < 13:
            key, line = reads[nxt[0]]
            if key[0] == 'A' and key[1] >= cur_step + 8: break
            tok[key] = pipe.issue(line); nxt[0] += 1; n += 1
    pump(0, 12)
    pending = []; nm = 0
    NB = P.get('e1', 6); EV = P.get('ev', 10)
    for i in range(32):
        for t in range(i >> 2, 8):
            j = 4*t+3-i
            while ('B', j) not in tok or ('A', i, 1) not in tok:
                pipe.need(pipe.done + 2); pump(i, 2)
            pipe.need(max(tok[('A', i, 1)], tok[('B', j)]))
            d = ACC+4*t; c = '0' if i == 0 else f'v[{d}:{d+3}]'
            s = AR+4*(i & 7)
            a(f'v_mfma_f32_16x16x32_bf16 v[{d}:{d+3}], v[{s}:{s+3}], v[{BR+4*j}:{BR+4*j+3}], {c}')
            pump(i, 2 if i < 4 else 1)
            nm += 1
            if nm >= P.get('e1s', 60) and nm % EV == 0 and NB > 0 and early:
                early.popleft()(); NB -= 1
        if pending and pipe.outstanding() < 14:
            t = pending.pop()
            pipe.issue(f'ds_write_b128 v23, v[{ACC+4*t}:{ACC+4*t+3}] offset:{1024*t}')
        if (i & 3) == 3: pending.append(i >> 2)
        if i == P.get('mpi', 2): mod_issue()
        if i == P.get('mfin', 7): mod_final(); raw(7, 's51')
    for t in pending:
        pipe.issue(f'ds_write_b128 v23, v[{ACC+4*t}:{ACC+4*t+3}] offset:{1024*t}')
    stamp('bend')
    a('v_lshlrev_b32 v4, 3, v0')
    a(f'v_add_u32 v4, {PRM}, v4')
    a('v_lshrrev_b32 v2, 1, v0')
    a('v_bfe_u32 v3, v0, 4, 2')
    a('v_xor_b32 v2, v2, v3')
    a('v_lshlrev_b32 v2, 4, v2')
    a('v_and_b32 v3, 1, v0')
    a('v_lshl_add_u32 v2, v3, 3, v2')
    a(f'v_add_u32 v2, {PB}, v2')
    a('v_lshlrev_b32 v3, 4, v0')
    a('v_and_b32 v5, 3, v0')
    a(f's_mul_i32 s38, s32, {YP}')
    a(f's_add_u32 s38, s38, {hex(YT)}')
    a(f'v_add_u32 v13, {PRM}, v15')
    a('s_and_b32 s36, s32, 7')
    a('s_lshl_b32 s36, s36, 1')
    a('s_and_b32 s37, s3, 1')
    a('s_or_b32 s36, s36, s37')
    a('s_lshl_b32 s36, s36, 6')
    a(f's_add_u32 s36, s36, {PRM+5120}')
    a('v_lshrrev_b32 v14, 5, v1')
    a('v_lshl_add_u32 v14, v14, 4, s36')
    a('s_waitcnt lgkmcnt(0)')
    a('s_barrier')
    stamp('pbar')
    for j in range(4):
        for w in range(4):
            a(f'ds_read_b64 v[{72+8*j+2*w}:{73+8*j+2*w}], v2 offset:{8192*w+2048*j}')
        if j == 2: a('s_waitcnt lgkmcnt(8)')
    for j in range(4):
        b = 72+8*j; q = 24+4*j
        if j: a(f's_waitcnt lgkmcnt({12-4*j})')
        a(f'v_pk_add_f32 v[{b}:{b+1}], v[{b}:{b+1}], v[{b+2}:{b+3}]')
        a(f'v_pk_add_f32 v[{b+4}:{b+5}], v[{b+4}:{b+5}], v[{b+6}:{b+7}]')
        a(f'v_mov_b32 v{q+2}, s50')
        a(f'v_mov_b32 v{q+3}, s50')
        a(f'v_cvt_pk_bf16_f32 v{q}, v{b}, v{b+4}')
        a(f'v_cvt_pk_bf16_f32 v{q+1}, v{b+1}, v{b+5}')
        tys = vm.issue(f'buffer_store_dwordx4 v[{q}:{q+3}], v3, s[16:19], s38 offen sc1')
        if j < 3: a('s_add_u32 s38, s38, 0x1000')
    stamp('ytst')
    a('v_mov_b32 v22, v4')
    a('v_mov_b32 v23, v14')
    for _ in range(P.get('e2', 9)): early.popleft()()
    a('s_lshl_b32 s35, s3, 10')
    a(f's_add_u32 s35, s35, {hex(MODT)}')
    a('s_add_u32 s34, s35, 0x1000')
    a('s_add_u32 s4, s35, 0x2000')
    mloads = [f'buffer_load_dwordx4 v[{104+4*r}:{107+4*r}], v15, s[16:19], s{(35, 34, 4)[r]} offen sc1' for r in range(3)]
    a('v_lshrrev_b32 v4, 2, v0')
    a(f'v_mul_u32_u24 v3, {2*YS}, v5')
    a('v_lshl_add_u32 v3, v4, 2, v3')
    a(f'v_add_u32 v3, {XG}, v3')
    a(f's_mul_i32 s46, s3, {2*YS}')
    a(f's_add_u32 s46, s46, {XG}')
    a('v_add_u32 v4, s46, v15')
    a('s_lshl_b32 s46, s3, 1')
    a('v_xor_b32 v5, s46, v6')
    a('v_lshlrev_b32 v5, 4, v5')
    a('v_lshl_add_u32 v5, v1, 7, v5')
    a(f'v_add_u32 v5, {XH}, v5')
    a('v_xor_b32 v16, 16, v5')
    a('v_lshrrev_b32 v17, 3, v1')
    a('v_xor_b32 v18, v17, v6')
    a('v_lshlrev_b32 v18, 4, v18')
    a('v_lshl_add_u32 v18, v17, 7, v18')
    a('s_lshl_b32 s46, s3, 11')
    a(f's_add_u32 s46, s46, {XH}')
    a('v_add_u32 v18, s46, v18')
    a('v_lshlrev_b32 v17, 9, v17')
    a('v_lshl_add_u32 v17, v6, 4, v17')
    a('s_lshr_b32 s46, s32, 2')
    a('s_lshl_b32 s46, s46, 15')
    a('s_and_b32 s47, s32, 3')
    a('s_lshl_b32 s47, s47, 7')
    a('s_add_u32 s46, s46, s47')
    a('s_lshl_b32 s47, s3, 13')
    a('s_add_u32 s46, s46, s47')
    a(f's_add_u32 s46, s46, {hex(H2)}')
    a('s_add_u32 s47, s46, 0x1000')
    a(f's_add_u32 s37, s33, {hex(X1)}')
    a('v_lshrrev_b32 v14, 2, v0')
    a(f'v_mul_u32_u24 v14, {YP}, v14')
    a('v_and_b32 v19, 3, v0')
    a('v_lshl_add_u32 v14, v19, 4, v14')
    a('s_lshl_b32 s24, s32, 6')
    a(f's_add_u32 s26, s24, {hex(YT)}')
    a(f's_add_u32 s27, s26, {64*YP}')
    a(f's_add_u32 s5, s26, {128*YP}')
    a(f's_add_u32 s6, s26, {192*YP}')
    X = (64, 160)
    vm.need(tx)
    subs = []
    for t in range(2):
        s = Asm(); unpack8(s, X[t], 232+4*t, 40); ln_stats(s, X[t], X[t]+8, X[t]+16, 24+t)
        for p in range(4):
            s(f'v_pk_mul_f32 v[{X[t]+8+2*p}:{X[t]+9+2*p}], v[{X[t]+8+2*p}:{X[t]+9+2*p}], v[{X[t]+16}:{X[t]+17}] op_sel:[0,0] op_sel_hi:[1,0]')
        subs.append(s)
    zipl(a, *subs)
    stamp('ln1')
    yloads = [f'buffer_load_dwordx4 v[{24+4*j}:{27+4*j}], v14, s[16:19], s{(26, 27, 5, 6)[j]} offen sc1' for j in range(4)]
    vm.need(tys)
    stamp('ytack')
    for l in yloads: ty = vm.issue(l)
    for l in mloads: tm = vm.issue(l)
    poll('yt', yloads, [26, 30, 34, 38], pre=ty)
    stamp('ytok'); raw(2, 's51')
    for j in range(4):
        a(f'ds_write_b32 v3, v{24+4*j} offset:{256*j}')
        a(f'ds_write_b32 v3, v{25+4*j} offset:{256*j+YS}')
    poll('md', mloads, [106, 110, 114], pre=tm)
    stamp('mdok'); raw(1, 's51')
    for r in range(3): a(f'ds_write_b64 v22, v[{104+4*r}:{105+4*r}] offset:{2048*r}')
    a('s_waitcnt lgkmcnt(0)')
    a('s_barrier')
    stamp('ybar')
    ptok = {}
    def p2dma(k):
        k0, gb, ub = seg_of(k)
        a(f's_add_u32 m0, {"s49" if k < 15 else "s43"}, {gb + 2048*(k-k0)}')
        if k and k % 4: a(f's_add_u32 s48, s48, {16*3584}')
        elif k: step('s48', 16*3584, 's100', 512*3584)
        ptok[k] = vm.issue('buffer_load_dwordx4 v7, s[20:23], s48 offen lds')
    a(f's_add_u32 s100, s48, {512*3584}')
    a(f's_mul_i32 s36, s98, {64*3584}')
    a('s_add_u32 s48, s48, s36')
    for _ in range(P.get('e3', 0)): early.popleft()()
    NSY = P.get('nsy', 0)
    for k in range(NSY): p2dma(k)
    for i, off in enumerate((1024, 0, 2048)):
        a(f'ds_read_b128 v[{40+4*i}:{43+4*i}], v13 offset:{off}')
    a('ds_read_b128 v[24:27], v4')
    a(f'ds_read_b128 v[28:31], v4 offset:{YS}')
    for i, off in enumerate((4096, 3072)):
        a(f'ds_read_b128 v[{52+4*i}:{55+4*i}], v13 offset:{off}')
    a('ds_read_b128 v[124:127], v23')
    a('ds_read_b128 v[116:119], v23 offset:32')
    a('s_waitcnt lgkmcnt(7)')
    unpack8(a, 128, 40, 40); unpack8(a, 136, 44, 40)
    for t in range(2):
        for p in range(4):
            d = X[t]+8+2*p
            a(f'v_pk_fma_f32 v[{d}:{d+1}], v[{d}:{d+1}], v[{128+2*p}:{129+2*p}], v[{136+2*p}:{137+2*p}]')
    a('s_waitcnt lgkmcnt(6)')
    unpack8(a, 144, 48, 40)
    for t in range(2):
        for p in range(4):
            d = X[t]+8+2*p
            a(f'v_pk_mul_f32 v[{d}:{d+1}], v[{d}:{d+1}], v[{144+2*p}:{145+2*p}]')
    a('s_waitcnt lgkmcnt(0)')
    unpack8(a, 128, 52, 40); unpack8(a, 136, 56, 40)
    subs = []
    for t in range(2):
        s = Asm(); x = X[t]
        unpack8(s, x+20, 24+4*t, 40)
        for p in range(4):
            s(f'v_pk_fma_f32 v[{x+2*p}:{x+2*p+1}], v[{x+8+2*p}:{x+9+2*p}], v[{x+20+2*p}:{x+21+2*p}], v[{x+2*p}:{x+2*p+1}]')
        for j in range(4): s(f'v_cvt_pk_bf16_f32 v{32+4*t+j}, v{x+2*j}, v{x+2*j+1}')
        s(f'buffer_store_dwordx4 v[{32+4*t}:{35+4*t}], v15, s[16:19], s37 offen offset:{1024*t} sc1')
        unpack8(s, x, 32+4*t, 40)
        ln_stats(s, x, x+8, x+16, 24+t)
        for p in range(4):
            s(f'v_pk_mul_f32 v[{x+8+2*p}:{x+9+2*p}], v[{x+8+2*p}:{x+9+2*p}], v[{x+16}:{x+17}] op_sel:[0,0] op_sel_hi:[1,0]')
        for p in range(4):
            s(f'v_pk_fma_f32 v[{x+8+2*p}:{x+9+2*p}], v[{x+8+2*p}:{x+9+2*p}], v[{128+2*p}:{129+2*p}], v[{136+2*p}:{137+2*p}]')
        for j in range(4): s(f'v_cvt_pk_bf16_f32 v{40+4*t+j}, v{x+8+2*j}, v{x+9+2*j}')
        s(f'ds_write_b128 v{(5, 16)[t]}, v[{40+4*t}:{43+4*t}]')
        subs.append(s)
    zipl(a, *subs)
    vm.issued += 2
    a('s_waitcnt lgkmcnt(0)')
    a('s_barrier')
    stamp('hbar')
    a('ds_read_b128 v[24:27], v18')
    a('ds_read_b128 v[28:31], v18 offset:1024')
    a('s_and_b32 s24, s32, 31')
    a('s_lshl_b32 s24, s24, 4')
    a('s_lshl_b32 s25, s3, 2')
    a('s_add_u32 s33, s24, s25')
    a('s_and_b32 s25, s30, 1')
    a('s_lshl_b32 s25, s25, 8')
    a('s_lshl_b32 s26, s3, 6')
    a('s_add_u32 s25, s25, s26')
    a('v_and_b32 v19, 15, v1')
    a('v_lshlrev_b32 v19, 2, v19')
    if M2:
        a('s_lshl_b32 s25, s3, 2')
        a('s_lshl_b32 s24, s32, 7')
        a('s_add_u32 s24, s24, s25')
        a(f's_add_u32 s24, s24, {hex(FL1)}')
        a('s_lshl_b32 s33, s30, 4')
        a('s_or_b32 s33, s33, s31')
        a('s_lshl_b32 s33, s33, 7')
        a('s_add_u32 s33, s33, s25')
        a(f's_add_u32 s33, s33, {hex(FL2)}')
        a('s_lshl_b32 s26, s30, 4')
        a('s_add_u32 s26, s26, s25')
        a('s_lshl_b32 s26, s26, 7')
        a(f's_add_u32 s97, s26, {hex(FL1)}')
        a('s_lshr_b32 s26, s32, 4')
        a('s_lshl_b32 s26, s26, 4')
        a('s_add_u32 s26, s26, s25')
        a('s_lshl_b32 s26, s26, 7')
        a(f's_add_u32 s25, s26, {hex(FL2)}')
        a('v_bfe_u32 v19, v1, 2, 2')
        a('v_and_b32 v22, 3, v1')
        a('v_lshlrev_b32 v22, 2, v22')
        a('v_lshl_add_u32 v19, v19, 7, v22')
    def flag(F):
        if not M2: return lstore([f'buffer_store_dword v20, v21, s[52:55], s33 offen offset:{F}'])
        if F == F3: a(f's_add_u32 s33, s33, {FL3-FL2}')
        return vm.issue(f'buffer_store_dword v20, v21, s[16:19], {"s24" if F == F1 else "s33"} offen sc1')
    def look(F):
        if not M2: return [f'buffer_load_dword v22, v{19 if F == F1 else 13}, s[52:55], s25 offen offset:{F} sc1']
        return [f'buffer_load_dword v22, v{19 if F == F1 else 13}, s[16:19], {"s97" if F == F1 else "s25"} offen sc1']
    a('s_waitcnt lgkmcnt(0)')
    lstore(['buffer_store_dwordx4 v[24:27], v17, s[16:19], s46 offen', 'buffer_store_dwordx4 v[28:31], v17, s[16:19], s47 offen'], P.get('h2s', M2))
    stamp('h2st')
    a('v_bfe_u32 v4, v1, 4, 1')
    a('v_lshrrev_b32 v5, 5, v1')
    a('v_bfe_u32 v22, v1, 2, 2')
    a('v_and_b32 v23, 3, v1')
    a('v_lshlrev_b32 v23, 3, v23')
    a('v_lshl_add_u32 v3, v5, 3, v22')
    a('v_bfe_u32 v13, v1, 3, 1')
    a('v_lshlrev_b32 v16, 7, v3')
    a('v_add_u32 v16, v16, v23')
    a('v_lshl_add_u32 v16, v13, 6, v16')
    a('v_lshl_add_u32 v16, v4, 5, v16')
    a(f'v_mul_u32_u24 v17, {SEG[0][2]-SEG[0][1]}, v4')
    a(f'v_add_u32 v17, {SEG[0][1]}, v17')
    a(f'v_mul_u32_u24 v18, {P1U}, v4')
    for ct in range(4):
        a(f'v_xor_b32 v14, {32*ct}, v16')
        a(f'v_add_u32 v{246+ct}, v14, v17')
        a(f'v_add_u32 v{120+ct}, v14, v18')
    a('v_mul_u32_u24 v3, 0x60, v3')
    a('v_add_u32 v3, v3, v23')
    a('v_add_u32 v18, v18, v3')
    a('v_lshl_add_u32 v3, v5, 2, v22')
    a('v_lshlrev_b32 v3, 7, v3')
    a('v_lshl_add_u32 v3, v13, 6, v3')
    a('v_lshl_add_u32 v3, v4, 5, v3')
    a('v_add_u32 v3, v3, v23')
    a('s_lshl_b32 s26, s3, 11')
    a('v_add_u32 v240, s26, v3')
    a('v_xor_b32 v241, 64, v240')
    for i in range(1, 3):
        a(f'v_add_u32 v{240+2*i}, {65536*i}, v240')
        a(f'v_add_u32 v{241+2*i}, {65536*i}, v241')
    a(f's_mov_b32 s44, {fh(GC2)}'); a(f's_mov_b32 s45, {fh(GC2)}')
    a(f'v_mov_b32 v2, {fh(GC1)}'); a(f'v_mov_b32 v3, {fh(GC1)}')
    a('s_lshl_b32 s27, s30, 2')
    a('s_add_u32 s27, s27, s3')
    a('s_lshl_b32 s28, s27, 15')
    a(f's_add_u32 s28, s28, {hex(H2)}')
    a('v_add_u32 v14, s28, v15')
    a('s_lshl_b32 s28, s98, 12')
    a('s_waitcnt vmcnt(0)'); vm.done = vm.issued
    stamp('h2dr')
    flag(F1)
    while early: early.popleft()()
    NS0 = P.get('ns0', 0) + NSY
    for k in range(NSY, NS0): p2dma(k)
    a('s_mul_i32 s29, s27, 112')
    AP = 1024 if M2 else YP
    if M2:
        a('s_lshl_b32 s47, s31, 2')
        a('s_add_u32 s47, s47, s29')
        a('s_lshl_b32 s47, s47, 10')
        a(f's_add_u32 s47, s47, {hex(ACT)}')
    else:
        a('s_lshl_b32 s47, s3, 4')
        a('s_add_u32 s47, s47, s31')
        a(f's_mul_i32 s47, s47, {4*YP}')
        a('s_lshl_b32 s4, s30, 10')
        a(f's_add_u32 s4, s4, {hex(YT)}')
        a('s_add_u32 s47, s47, s4')
    a('s_mul_i32 s46, s31, 3')
    a('s_add_u32 s46, s46, s29')
    a('s_lshl_b32 s46, s46, 10')
    a(f's_add_u32 s46, s46, {hex(ACT + 64*1024)}')
    a('s_lshr_b32 s39, s32, 3')
    a('s_and_b32 s35, s39, 1')
    a(f's_and_b32 s34, s39, {P.get("wrot", 0)}')
    a('s_and_b32 s24, s32, 7')
    a('s_lshl_b32 s24, s24, 7')
    a(f's_mul_i32 s37, s3, {192*1024}')
    a('s_add_u32 s37, s37, s24')
    a(f's_add_u32 s30, s37, {1024*1024 + 12*16384}')
    a(f's_mul_i32 s36, s34, {3*16384}')
    a('s_add_u32 s37, s37, s36')
    a(f's_add_u32 s37, s37, {1024*1024}')
    a('s_lshl_b32 s38, s3, 18')
    a('s_add_u32 s38, s38, s24')
    a(f's_add_u32 s31, s38, {16*16384}')
    a('s_lshl_b32 s36, s34, 16')
    a('s_add_u32 s38, s38, s36')
    if M2:
        a(f's_mul_i32 s4, s39, {224*1024}')
        a('s_lshl_b32 s6, s3, 14')
        a('s_add_u32 s6, s6, s4')
        a(f's_add_u32 s6, s6, {hex(ACT)}')
    else:
        a('s_lshl_b32 s6, s35, 3')
        a('s_add_u32 s6, s6, s3')
        a(f's_mul_i32 s6, s6, {16*YP}')
        a('s_add_u32 s6, s6, s4')
    a(f's_add_u32 s42, s6, {16*AP}')
    a(f's_mul_i32 s36, s34, {4*AP}')
    a('s_add_u32 s6, s6, s36')
    a(f's_mul_i32 s4, s39, {224*1024}')
    a(f's_mul_i32 s5, s3, {12*1024}')
    a('s_add_u32 s5, s5, s4')
    a(f's_add_u32 s5, s5, {hex(ACT + 64*1024)}')
    a(f's_add_u32 s41, s5, {12*1024}')
    a(f's_mul_i32 s36, s34, {3*1024}')
    a('s_add_u32 s5, s5, s36')
    a('s_lshl_b32 s39, s39, 16')
    a('s_add_u32 s39, s39, s24')
    a('v_bfe_u32 v4, v1, 1, 2')
    a('v_and_b32 v5, 1, v1')
    a('v_lshlrev_b32 v5, 2, v5')
    a(f'v_lshl_add_u32 v4, v4, {7 if M2 else 4}, v5')
    a('s_lshl_b32 s35, s35, 3')
    a('v_add_u32 v13, s35, v4')
    a(f'v_add_u32 v16, {112*1024}, v15')
    a(f'v_add_u32 v17, {112*1024 if M2 else 64*YP}, v15')
    a('v_lshlrev_b32 v73, 7, v1')
    a('s_lshl_b32 s34, s2, 2')
    a('s_add_u32 s34, s34, s3')
    a(f's_mul_i32 s34, s34, {14*128}')
    poll('f1', look(F1), [22])
    stamp('f1ok'); raw(3, 's51')
    htok = {}
    def h2load(ks):
        htok[ks] = vm.issue(f'buffer_load_dwordx4 a[{4*ks}:{4*ks+3}], v14, s[16:19], s28 offen offset:{1024*(ks&3)} sc1')
        if (ks & 3) == 3:
            a('s_add_u32 s28, s28, 0x1000'); a('s_and_b32 s28, s28, 0x7fff')
    NH0 = P.get('nh0', 8)
    for ks in range(NH0): h2load(ks)
    a('s_barrier')
    stamp('b0')
    hq, pq, wq = deque(), deque(), deque()
    wtok = {}; m0ok = [False]
    def wdslot(i):
        s = i % 20
        so, lim, n, i0 = ('s37', 's30', 12, 0) if i < 12 else ('s38', 's31', 16, 12)
        def f0():
            a(f's_add_u32 m0, s26, {8192*WBL[s]}')
            vm.issue(f'buffer_load_dwordx4 v8, s[8:11], {so} offen lds')
        def f1():
            if pq or len(ptok) < 32: a(f's_add_u32 m0, s26, {8192*WBL[s]}')
            elif not m0ok[0]: a(f's_add_u32 m0, s26, {8192*WBL[s]}'); m0ok[0] = True
            wtok[i] = vm.issue(f'buffer_load_dwordx4 v9, s[8:11], {so} offen offset:1024 lds')
            if (i - i0 + 1) % (n // 4): a(f's_add_u32 {so}, {so}, 0x4000')
            else: step(so, 0x4000, lim, n*0x4000)
        return [f0, f1]
    for ks in range(NH0, 32): hq.append(lambda ks=ks: h2load(ks))
    for k in range(NS0, 15): pq.append(lambda k=k: p2dma(k))
    valu = deque()
    AR, NA = 24, 6
    ACC1, ACC2 = 192, 128
    pipe = LdsPipe(a)
    steps = [(0, k, ct) for k in range(32) for ct in range(3)] + [(1, k, ct) for k in range(32) for ct in range(4)]
    tok = {}; nxt = [0]
    def rd(n):
        ps, k, ct = steps[n]; d = AR + 4*(n % NA)
        for jj in range(2):
            if ps == 0: b, off = 18, (16*k + 4*jj)*96 + 32*ct
            else:
                k0, gb, ub = seg_of(k)
                b, off = (246+ct, 2048*k + 512*jj) if k < 15 else (120+ct, gb + 2048*(k-k0) + 512*jj)
            tok[n] = pipe.issue(f'ds_read_b64_tr_b16 v[{d+2*jj}:{d+2*jj+1}], v{b} offset:{off}')
    for n in range(NA-1): rd(n)
    nxt[0] = NA-1
    VB = P.get('vb', 30); PE = P.get('pe', 4); WE = P.get('we', 2)
    stok = {}; nw = 0; credit = 0; nb = 0; fload = look(F2); tp = None
    for n, (ps, k, ct) in enumerate(steps):
        if ps == 0 and ct == 0:
            while k not in htok: hq.popleft()()
            vm.need(htok[k])
        pipe.need(tok[n])
        d = (ACC1, ACC2)[ps] + 16*ct; c = '0' if k == 0 else f'v[{d}:{d+15}]'
        sa = AR + 4*(n % NA)
        a(f'v_mfma_f32_32x32x16_bf16 v[{d}:{d+15}], v[{sa}:{sa+3}], a[{4*k}:{4*k+3}], {c}')
        if nxt[0] < len(steps): rd(nxt[0]); nxt[0] += 1
        if ct == (2, 3)[ps] and (ps, k) in BARS:
            land, free = BARS[(ps, k)]
            if land is not None:
                while land not in ptok: pq.popleft()()
                vm.need(ptok[land])
            a('s_barrier')
            nb += 1; stamp(f'b{nb}')
            if (ps, k) == (0, 15):
                for kk in range(15, 27): pq.append(lambda kk=kk: p2dma(kk))
            if (ps, k) == (0, 23):
                for kk in range(27, 32): pq.append(lambda kk=kk: p2dma(kk))
            while nw < min(free, 16):
                wq.extend(wdslot(nw)); nw += 1
        if n == P.get('wt', 60):
            a('s_mov_b64 exec, 0x3fff')
            vm.issue('buffer_load_dword v72, v73, s[8:11], s34 offen')
            a('s_mov_b64 exec, -1')
        if n == 95:
            stamp('p1end')
            for t in range(3):
                o = 64 + 4*(t & 1)
                valu.extend(gelu_ops(ACC1+16*t, 48 + 8*(t & 1), o))
                valu.append(('store', t, o))
        if hq: hq.popleft()()
        elif pq and n % PE == 0: pq.popleft()()
        elif wq and n % WE == (1 % WE): wq.popleft()()
        credit = min(credit + VB, 30)
        while n > 97 and valu and credit >= 10*(cost(valu[0]) if isinstance(valu[0], str) else 1):
            x = valu.popleft()
            if isinstance(x, tuple):
                stok[x[1]] = vm.issue(f'buffer_store_dwordx4 v[{x[2]}:{x[2]+3}], v15, s[16:19], s46 offen offset:{1024*x[1]} sc1')
                if x[1] == 2: flag_at = n + P.get('fdel', 20); print('pass-1 act stored at', n)
            else:
                a(x); credit -= 10*cost(x)
        if 2 in stok and 'f2' not in stok and n >= flag_at:
            vm.need(stok[2])
            stok['f2'] = flag(F2)
    while valu:
        x = valu.popleft()
        if isinstance(x, tuple):
            stok[x[1]] = vm.issue(f'buffer_store_dwordx4 v[{x[2]}:{x[2]+3}], v15, s[16:19], s46 offen offset:{1024*x[1]} sc1')
        else: a(x)
    if 'f2' not in stok:
        vm.need(stok[2])
        stok['f2'] = flag(F2)
    assert not pq and not hq
    tp = vm.issue(fload[0])
    a('s_mov_b32 s34, 1.0'); a('s_mov_b32 s35, 1.0')
    def geglu2(t):
        s = Asm(); geglu(s, ACC2+16*t, 48, 64 + 4*(t & 1))
        for l in s.lines: a(l.replace('s[46:47]', 's[34:35]'))
        if t: a(f's_add_u32 s47, s47, {AP}')
        return lstore([f'buffer_store_dwordx4 v[{64+4*(t&1)}:{67+4*(t&1)}], v15, s[16:19], s47 offen'], P.get('a2s', M2))
    atok = {}
    def abase(i): return 128 + 8*i if i < 12 else 8*(i-12)
    def actload(i):
        b = abase(i)
        so, v2, inc, lim, n, i0 = ('s5', 16, 1024, 's41', 12, 0) if i < 12 else ('s6', 17, AP, 's42', 16, 12)
        vm.issue(f'buffer_load_dwordx4 a[{b}:{b+3}], v15, s[16:19], {so} offen sc1')
        atok[i] = vm.issue(f'buffer_load_dwordx4 a[{b+4}:{b+7}], v{v2}, s[16:19], {so} offen sc1')
        if (i - i0 + 1) % (n // 4): a(f's_add_u32 {so}, {so}, {inc}')
        else: step(so, inc, lim, n*inc)
    FP = P.get('fp', 2)
    for t in range(FP): geglu2(t)
    stamp('g1')
    poll('f2', fload, [22], pre=tp)
    stamp('f2ok'); raw(4, 's51')
    NA1 = P.get('na1', 4)
    for i in range(16, 20): wq.extend(wdslot(i))
    for i in range(NA1): actload(i)
    for t in range(FP, 4):
        if t == P.get('wl', 4):
            while wq: wq.popleft()()
        ts3 = geglu2(t)
    stamp('g3')
    for i in range(NA1, 12): actload(i)
    a('v_and_b32 v4, 31, v1')
    a('v_lshrrev_b32 v5, 5, v1')
    a('v_lshlrev_b32 v10, 10, v4')
    a('v_lshl_add_u32 v10, v5, 4, v10')
    a('s_lshr_b32 s46, s3, 1')
    a('s_lshl_b32 s46, s46, 15')
    a('s_and_b32 s47, s3, 1')
    a('s_lshl_b32 s47, s47, 6')
    a('s_add_u32 s39, s39, s46')
    a('s_add_u32 s39, s39, s47')
    a(f's_add_u32 s46, s39, {hex(X1)}')
    vm.need(ts3)
    flag(F3)
    if M2: a(f's_add_u32 s25, s25, {FL3-FL2}')
    stamp('estart')
    pipe = LdsPipe(a); tok = {}
    def rd2(i):
        d = AR + 8*(i % 3); ad = 8192*WBL[i % 20]
        while i not in wtok: wq.popleft()()
        vm.need(wtok[i])
        for mt in range(2):
            for jj in range(2):
                tok[(i, mt)] = pipe.issue(f'ds_read_b64_tr_b16 v[{d+4*mt+2*jj}:{d+4*mt+2*jj+1}], v{240+2*(ad>>16)+mt} offset:{(ad & 0xffff)+1024*jj}')
    rd2(0); rd2(1)
    f3load = look(F3)
    F3P, F3C = P.get('f3p', 4), P.get('f3c', 6)
    aq = deque()
    for i in range(28):
        stamp(f'e{i}')
        if i == F3P: tp = vm.issue(f3load[0])
        if i == F3C:
            poll('f3', f3load, [22], pre=tp)
            stamp('f3ok'); raw(5, 's51')
            for ii in range(12, 28): aq.append(lambda ii=ii: actload(ii))
        if i == 20:
            vm.issue('buffer_load_dwordx4 v[72:75], v10, s[16:19], s46 offen sc1')
            tx = vm.issue('buffer_load_dwordx4 v[76:79], v10, s[16:19], s46 offen offset:32 sc1')
        d0 = AR + 8*(i % 3); b = abase(i)
        while i not in atok: aq.popleft()()
        vm.need(atok[i])
        for mt in range(2):
            pipe.need(tok[(i, mt)])
            if mt == 1 and i < 8: wq.extend(wdslot(20+i))
            for nt in range(2):
                d = ACC2 + 32*mt + 16*nt; c = '0' if i == 0 else f'v[{d}:{d+15}]'
                a(f'v_mfma_f32_32x32x16_bf16 v[{d}:{d+15}], v[{d0+4*mt}:{d0+4*mt+3}], a[{b+4*nt}:{b+4*nt+3}], {c}')
                if mt == 0 and nt == 0 and i+2 < 28: rd2(i+2)
                elif aq and (nt == 0 or not wq or len(atok) < i + 6): aq.popleft()()
                elif wq and not (F3P <= i < F3C): wq.popleft()()
    stamp('eend')
    PBL = [(WBL[8], WBL[9]), (WBL[10], WBL[11]), (WBL[12], WBL[13]), (WBL[14], WBL[15])]
    a('v_add_u32 v4, s26, v15')
    a('v_add_u32 v5, 0x10000, v4')
    a('v_add_u32 v18, 0x20000, v4')
    base(a, 12, 56, 0x200000)
    for o in range(4):
        a(f's_cmp_eq_u32 s3, {o}')
        a(f's_cbranch_scc1 L_own{o}')
        d = ACC2 + 32*(o & 1) + 16*(o >> 1)
        for g in range(4):
            ad = 8192*PBL[o][g >> 1] + 1024*(g & 1)
            a(f'ds_write_b128 v{(4, 5, 18)[ad >> 16]}, v[{d+4*g}:{d+4*g+3}] offset:{ad & 0xffff}')
        a(f's_branch L_nown{o}')
        a.label(f'L_own{o}')
        for g in range(16): a(f'v_mov_b32 v{24+g}, v{d+g}')
        a(f's_mov_b32 s4, {8192*PBL[o][0]}')
        a(f's_mov_b32 s5, {8192*PBL[o][1]}')
        a.label(f'L_nown{o}')
    for i in range(1, 4):
        a(f's_add_u32 s6, s26, {2048*i}')
        a('s_and_b32 s6, s6, 0x1fff')
        a('s_add_u32 s7, s6, s5')
        a('s_add_u32 s6, s6, s4')
        a(f'v_add_u32 v{88+2*i}, s6, v15')
        a(f'v_add_u32 v{89+2*i}, s7, v15')
    vm.need(tx)
    unpack8(a, 96, 124, 40); unpack8(a, 104, 116, 40); unpack8(a, 48, 72, 40); unpack8(a, 56, 76, 40)
    a('s_waitcnt lgkmcnt(0)')
    a('s_barrier')
    stamp('ebar')
    for i in range(1, 4):
        for g in range(4):
            a(f'ds_read_b128 v[{112+16*i+4*g}:{115+16*i+4*g}], v{88+2*i+(g >> 1)} offset:{1024*(g & 1)}')
    for i in range(1, 4):
        a(f's_waitcnt lgkmcnt({12-4*i})')
        for p in range(8): a(f'v_pk_add_f32 v[{24+2*p}:{25+2*p}], v[{24+2*p}:{25+2*p}], v[{112+16*i+2*p}:{113+16*i+2*p}]')
    for g in range(2):
        b = 24 + 8*g
        for r in range(4): a(f'v_permlane32_swap_b32 v{b+r}, v{b+4+r}')
        for p in range(4): a(f'v_pk_fma_f32 v[{b+2*p}:{b+2*p+1}], v[{b+2*p}:{b+2*p+1}], v[{96+8*g+2*p}:{97+8*g+2*p}], v[{48+8*g+2*p}:{49+8*g+2*p}]')
        for p in range(4): a(f'v_cvt_pk_bf16_f32 v{40+4*g+p}, v{b+2*p}, v{b+2*p+1}')
        a(f'buffer_store_dwordx4 v[{40+4*g}:{43+4*g}], v10, s[12:15], s39 offen offset:{32*g}' + ('', ' sc1', ' nt')[P.get('ost', 0)])
    a('s_or_b32 s4, s2, s3')
    a('s_cmp_lg_u32 s4, 0')
    a('s_cbranch_scc1 L_noep')
    a(f's_mov_b32 s4, {hex(EPOCH)}')
    a('buffer_store_dword v20, v21, s[16:19], s4 offen')
    a.label('L_noep')
    if P.get('probe') is not None:
        a('s_waitcnt vmcnt(0)')
        stamp('end')
        a('s_waitcnt lgkmcnt(0)')
        k = P['probe']
        if k >= 100:
            a(f's_mov_b32 s36, {hex(0x140A000)}')
            a('buffer_load_dwordx4 v[24:27], v15, s[16:19], s36 offen sc1')
            a('s_waitcnt vmcnt(0)')
            for r, op in ((28, 'min'), (29, 'max')):
                a(f'v_{op}_u32 v{r}, v24, v25')
                a(f'v_{op}3_u32 v{r}, v{r}, v26, v27')
                for ctl in ('row_ror:1', 'row_ror:2', 'row_ror:4', 'row_ror:8'):
                    a(f'v_{op}_u32_dpp v{r}, v{r}, v{r} {ctl} row_mask:0xf bank_mask:0xf')
                for i in range(4): a(f'v_readlane_b32 s{4+i}, v{r}, {16*i}')
                a(f's_{op}_u32 s4, s4, s5'); a(f's_{op}_u32 s6, s6, s7'); a(f's_{op}_u32 s{r+62}, s4, s6')
            if k == 100: a('s_add_u32 s92, s90, 6000')
            elif k == 101:
                a('s_sub_u32 s92, s91, s90'); a('s_lshl_b32 s92, s92, 2'); a('s_add_u32 s92, s92, s90'); a('s_add_u32 s92, s92, 4000')
            else:
                a(f's_sub_u32 s92, s{60+2*(k-110)}, s90'); a('s_lshl_b32 s92, s92, 2'); a('s_add_u32 s92, s92, s90'); a('s_add_u32 s92, s92, 4000')
        elif k == 0:
            a('s_add_u32 s92, s60, 6000')
        else:
            a(f's_sub_u32 s92, s{60+2*k}, s60')
            a('s_lshl_b32 s92, s92, 2')
            a('s_add_u32 s92, s92, s60')
            a('s_add_u32 s92, s92, 4000')
        a.label('L_probe')
        a('s_memrealtime s[94:95]')
        a('s_waitcnt lgkmcnt(0)')
        a('s_sub_u32 s94, s94, s92')
        a('s_cmp_lt_i32 s94, 0')
        a('s_cbranch_scc1 L_probe')
    elif P.get('stamps'):
        a('s_waitcnt vmcnt(0)')
        stamp('end')
        a('s_cmp_lg_u32 s3, 0')
        a('s_cbranch_scc1 L_end')
        a('s_lshl_b32 s94, s2, 7')
        a(f's_add_u32 s94, s94, {hex(TS)}')
        a('s_add_u32 s92, s58, s94')
        a('s_addc_u32 s93, s59, 0')
        a('v_lshlrev_b32 v250, 2, v1')
        a('s_lshl_b32 s94, s2, 8')
        a(f's_add_u32 s94, s94, {hex(TS + 0x80000)}')
        a('s_add_u32 s94, s58, s94')
        a('s_addc_u32 s95, s59, 0')
        a('global_store_dword v250, v254, s[94:95]')
        a('s_mov_b64 exec, 1')
        if P.get('dbg'):
            a('s_load_dwordx2 s[94:95], s[0:1], 104')
        a('s_waitcnt lgkmcnt(0)')
        if P.get('dbg'):
            a('s_not_b32 s60, s60')
            for m in sorted(marks):
                a(f'v_mov_b32 v250, s{60+2*m}')
                a(f'global_atomic_umax v21, v250, s[94:95] offset:{4*m}')
                a('s_nop 1')
            a('s_not_b32 s60, s60')
        for m in sorted(marks):
            a(f'v_mov_b32 v250, s{60+2*m}')
            a(f'v_mov_b32 v251, s{61+2*m}')
            a(f'global_store_dwordx2 v21, v[250:251], s[92:93] offset:{8*m}')
            a('s_nop 1')
    a.label('L_end')
    a.label('L_last')
    a('s_endpgm')
    return dict(grid=256, block=256, lds=163840, vgpr=512, accum=256)
```

```python
from collections import deque
from asmlib import *
from k123 import fh, lo, hi, unpack8, ln_stats, LdsPipe, A_OUT, A_WS
from k45 import VmPipe, GC1, GC2, geglu
from cde import zipl, gelu_ops, cost

UT, YT, X1, H2, ACT = 0, 0x400000, 0x900000, 0, 0xD00000
MODT, EPOCH, GRP, MP, TS = 0x1400000, 0x1408000, 0x1410000, 0x1480000, 0x1500000
YP = 16384 + 128
XID, UH, F1, F2, F3 = 0, 128, 1024, 1536, 2048
P1U = 49280
SEG = [(0, 98432, 129152), (15, 0, 49280), (27, 24576, 73856)]
CB, CHS, KB, U0, U1 = 98432, 12992, 512, 4608, 8768
PB = CB + 2*CHS
PRM = PB + 32768
MPART = PRM + 6144
XG = 129152 + 112*128
YS = 1040
XH = XG + 8*YS
PS = 272
SPIN = 1 << 15
WBL = [5, 11, 12, 13, 14, 16, 17, 18, 15, 19, 0, 6, 5, 11, 12, 13, 14, 16, 17, 18, 1, 2, 7, 8, 3, 4, 9, 10]
BARS = {(0, 15): (None, 0), (0, 23): (None, 0), (0, 29): (6, 0), (1, 4): (14, 2), (1, 12): (22, 8), (1, 20): (31, 12), (1, 27): (None, 24), (1, 31): (None, 28)}
assert MPART + 512 <= 163840 and XH + 8192 <= 163840
def seg_of(k): return SEG[0] if k < 15 else SEG[1] if k < 27 else SEG[2]

def base(a, d, p, n):
    a(f's_mov_b32 s{d}, s{p}'); a(f's_mov_b32 s{d+1}, s{p+1}'); a(f's_mov_b32 s{d+2}, {hex(n)}')

FL1, FL2, FL3 = 0x1420000, 0x1428000, 0x1430000
def ln1p(a, X, D, T, s0):
    a(f'v_pk_add_f32 v[{T}:{T+1}], v[{X}:{X+1}], v[{X+2}:{X+3}]')
    a(f'v_pk_mul_f32 v[{T+2}:{T+3}], v[{X}:{X+1}], v[{X}:{X+1}]')
    a(f'v_pk_add_f32 v[{D}:{D+1}], v[{X+4}:{X+5}], v[{X+6}:{X+7}]')
    for p in range(1, 4):
        a(f'v_pk_fma_f32 v[{T+2}:{T+3}], v[{X+2*p}:{X+2*p+1}], v[{X+2*p}:{X+2*p+1}], v[{T+2}:{T+3}]')
    a(f'v_pk_add_f32 v[{T}:{T+1}], v[{T}:{T+1}], v[{D}:{D+1}]')
    a(f'v_add_f32 v{T+2}, v{T+2}, v{T+3}')
    a(f'v_add_f32 v{T}, v{T}, v{T+1}')
    for ctl in ('row_shr:1', 'row_shr:2', 'row_shr:4', 'row_shr:8'):
        for r in (T+2, T): a(f'v_add_f32_dpp v{r}, v{r}, v{r} {ctl} row_mask:0xf bank_mask:0xf bound_ctrl:1')
    for ctl in ('row_bcast:15 row_mask:0xa', 'row_bcast:31 row_mask:0xc'):
        for r in (T+2, T): a(f'v_add_f32_dpp v{r}, v{r}, v{r} {ctl} bank_mask:0xf')
    a(f'v_readlane_b32 s{s0+1}, v{T+2}, 63')
    a(f'v_readlane_b32 s{s0}, v{T}, 63')
    a(f'v_mov_b32 v{T+1}, {fh(1.0/512)}')
    a(f'v_mov_b32 v{T+3}, {fh(1e-5)}')
    a(f'v_mul_f32 v{T}, s{s0}, v{T+1}')
    a(f'v_fmac_f32 v{T+3}, s{s0+1}, v{T+1}')
    a(f'v_fma_f32 v{T+2}, -v{T}, v{T}, v{T+3}')
    a(f'v_max_f32 v{T+2}, {fh(1e-5)}, v{T+2}')
    a(f'v_rsq_f32 v{T+2}, v{T+2}')
    for p in range(4):
        a(f'v_pk_add_f32 v[{D+2*p}:{D+2*p+1}], v[{X+2*p}:{X+2*p+1}], v[{T}:{T+1}] op_sel:[0,0] op_sel_hi:[1,0] neg_lo:[0,1] neg_hi:[0,1]')
    for p in range(4):
        a(f'v_pk_mul_f32 v[{D+2*p}:{D+2*p+1}], v[{D+2*p}:{D+2*p+1}], v[{T+2}:{T+3}] op_sel:[0,0] op_sel_hi:[1,0]')
def ln2p(s, X, D, T, s0):
    ln_stats(s, X, D, T, s0)
    for p in range(4):
        s(f'v_pk_mul_f32 v[{D+2*p}:{D+2*p+1}], v[{D+2*p}:{D+2*p+1}], v[{T}:{T+1}] op_sel:[0,0] op_sel_hi:[1,0]')

def mega(a, P):
    M2 = P.get('m2', 0)
    H2 = 0xB00000 if M2 else 0
    marks = set()
    SETS = {1: 'start kv0 utst utok bbar end bend ytst ytok h2dr b0 p1end b8 estart f3ok eend',
            2: 'start kv0 kvN abar utst end ut1st uhok utok bbar bend pbar ytst ytack ytok mdok',
            3: 'start ytst ln1 ytack ytok end ybar hbar h2st h2dr f1ok b0 b1 b2 b3 p1end',
            6: 'start b0 b1 b2 b3 end p1end b4 b5 b6 b7 b8 g1 f2ok g3 estart',
            7: 'start estart e2 e4 e6 end f3ok e8 e10 e12 e14 e16 e20 e24 eend ebar',
            8: 'start x1 x2 x3 x4 end',
            5: 'start karg x2 x3 x4 end x6 x7 x8 x9 x10 x11 x12 kv0 issued pre',
            4: 'start p1end b5 b6 b7 end b8 g1 f2ok g3 estart e12 f3ok e20 eend ebar'}
    names = SETS[P.get('stamps', 1)].split()
    def stamp(name):
        if P.get('stamps') and name in names:
            slot = names.index(name)
            a(f's_memrealtime s[{60+2*slot}:{61+2*slot}]'); marks.add(slot)
    def raw(i, sreg):
        if P.get('stamps'): a(f'v_writelane_b32 v254, {sreg}, {i}')
    vm = VmPipe(a)
    NT = ' nt' if P.get('nt', 1) else ''
    nst = [0]
    def lstore(lines, through=False):
        if through:
            for l in lines: t = vm.issue(l + ' sc1')
            return t
        return lstore2(lines)
    def lstore2(lines):
        n = nst[0]; nst[0] += 1
        a('s_cmp_eq_u32 s101, 0')
        a(f's_cbranch_scc1 L_ls{n}a')
        for l in lines: a(l + ' sc1')
        a(f's_branch L_ls{n}b')
        a.label(f'L_ls{n}a')
        for l in lines: t = vm.issue(l)
        a.label(f'L_ls{n}b')
        return t
    def poll(name, loads, tags, pre=None):
        a(f's_mov_b32 s51, {SPIN}')
        if pre is not None:
            vm.need(pre)
            stamp(name + '1st')
            a(f's_branch L_{name}_chk')
        a.label(f'L_{name}')
        for l in loads: a(l)
        a('s_waitcnt vmcnt(0)')
        a.label(f'L_{name}_chk')
        a(f'v_cmp_ne_u32 vcc, s50, v{tags[0]}')
        for i, t in enumerate(tags[1:]): a(f'v_cmp_ne_u32 s[{92+2*i}:{93+2*i}], s50, v{t}')
        a('s_sub_u32 s51, s51, 1')
        a(f's_cbranch_scc1 L_{name}_ok')
        for i in range(len(tags)-1): a(f's_or_b64 vcc, vcc, s[{92+2*i}:{93+2*i}]')
        a(f's_cbranch_vccnz L_{name}')
        a.label(f'L_{name}_ok')
        if pre is None: vm.done = vm.issued

    a('s_cmp_ge_u32 s2, 256')
    a('s_cbranch_scc1 L_end')
    stamp('start')
    if P.get('stamps'): a('v_mov_b32 v254, 0')
    a('s_load_dwordx16 s[64:79], s[0:1], 0')
    if P.get('cpf', 1):
        a('s_getpc_b64 s[4:5]')
        a.label('L_pc')
        a('v_lshlrev_b32 v3, 7, v0')
        a('v_mov_b32 v5, s5')
        a('v_add_co_u32 v4, vcc, s4, v3')
        a(f'v_cmp_gt_u32 s[6:7], {P.get("cpn", 16)}, v0')
        a('v_and_b32 v1, 63, v0')
        a('v_addc_co_u32 v5, vcc, 0, v5, vcc')
        a('s_and_b64 exec, exec, s[6:7]')
        a('s_cbranch_execz L_nopf')
        a('global_load_dword v169, v[4:5], off')
        a.label('L_nopf')
        a('s_mov_b64 exec, -1')
    else: a('v_and_b32 v1, 63, v0')
    a(f's_load_dwordx2 s[58:59], s[0:1], {A_WS}')
    a('s_load_dwordx8 s[80:87], s[0:1], 64')
    a(f's_load_dwordx2 s[56:57], s[0:1], {A_OUT}')
    a('v_lshrrev_b32 v2, 6, v0')
    a('v_readfirstlane_b32 s3, v2')
    a('s_mov_b32 s40, 0xffff0000')
    a('s_and_b32 s28, s2, 7')
    a('s_lshr_b32 s29, s2, 3')
    a('s_lshl_b32 s32, s28, 5')
    a('s_or_b32 s32, s32, s29')
    a('v_and_b32 v3, 31, v0')
    a('v_lshrrev_b32 v2, 5, v0')
    a('s_lshl_b32 s33, s29, 6')
    a('v_lshl_add_u32 v4, v2, 3, s33')
    a('s_lshl_b32 s33, s28, 7')
    a('v_lshl_add_u32 v5, v3, 2, s33')
    a('v_lshl_add_u32 v5, v4, 10, v5')
    a('v_subrev_u32 v4, 0xc00, v5')
    a('s_lshl_b32 s33, s28, 9')
    a('v_lshl_add_u32 v13, v3, 4, s33')
    a('s_movk_i32 s35, 0x1000')
    a('s_mov_b32 s15, 0x20000'); a('s_mov_b32 s27, 0x20000'); a('s_mov_b32 s19, 0x20000')
    a('s_mov_b32 s23, 0x20000'); a('s_mov_b32 s11, 0x20000'); a('s_mov_b32 s55, 0x20000')
    a('v_lshlrev_b32 v15, 4, v1')
    a('v_mov_b32 v21, 0')
    a('v_lshlrev_b32 v14, 4, v0')
    a('s_waitcnt lgkmcnt(0)')
    stamp('karg')
    base(a, 12, 70, 4096)
    base(a, 24, 68, 0x200000)
    tsh = vm.issue('buffer_load_dwordx4 v[48:51], v13, s[12:15], 0 offen' + NT)
    base(a, 12, 66, 0x200000)
    for i in range(3): vm.issue(f'buffer_load_dword v{24+i}, v4, s[12:15], 0 offen offset:{1024*i}' + NT)
    tk = {}
    for i in range(8):
        so = 's35' if i >= 4 else '0'
        vm.issue(f'buffer_load_dword v{27+i}, v5, s[12:15], {so} offen offset:{1024*(i&3)}' + NT)
        tk[i] = vm.issue(f'buffer_load_dword v{36+i}, v5, s[24:27], {so} offen offset:{1024*(i&3)}' + NT)
    stamp('issued')
    a(f's_add_u32 s4, s58, {hex(EPOCH)}')
    a('s_addc_u32 s5, s59, 0')
    a('s_load_dword s50, s[4:5], 0')
    if P.get('cpf', 1):
        a('s_getpc_b64 s[6:7]')
        a.label('L_pc2')
        a('s_lshl_b32 s36, s29, 2')
        a('s_add_u32 s36, s36, s3')
        a('v_and_b32 v4, 1, v0')
        a('v_lshl_add_u32 v4, s36, 1, v4')
        a('v_min_u32 v4, (L_last-L_pc2)/128, v4')
        a('v_lshlrev_b32 v4, 7, v4')
        a('v_mov_b32 v5, s7')
        a('v_add_co_u32 v4, vcc, s6, v4')
        a('v_addc_co_u32 v5, vcc, 0, v5, vcc')
        a('s_mov_b64 exec, 3')
        vm.issue('global_load_dword v168, v[4:5], off')
        a('s_mov_b64 exec, -1')
    if P.get('kvbar', 1): a('s_barrier')
    a('s_lshl_b32 s33, s32, 2')
    a('s_add_u32 s6, s74, s33')
    a('s_addc_u32 s7, s75, 0')
    a('s_load_dword s34, s[6:7], 0')
    a('s_lshl_b32 s33, s32, 13')
    SK = {}
    def skload():
        base(a, 12, 72, 0x200000)
        a('s_lshl_b32 s36, s32, 13')
        vm.issue('buffer_load_dwordx4 v[146:149], v14, s[12:15], s36 offen' + NT)
        a('s_add_u32 s36, s36, 0x1000')
        SK['t'] = vm.issue('buffer_load_dwordx4 v[150:153], v14, s[12:15], s36 offen' + NT)
    if P.get('skat', 0) == 0: skload()
    a('s_mul_i32 s30, s28, 6')
    a('s_lshr_b32 s31, s29, 2')
    a('s_add_u32 s30, s30, s31')
    a('s_and_b32 s31, s29, 3')
    a('s_lshl_b32 s46, s30, 2')
    a('s_or_b32 s46, s46, s31')
    a('s_lshl_b32 s47, s31, 2')
    a('s_or_b32 s47, s47, s3')
    a('v_and_b32 v16, 1, v0')
    a('v_lshrrev_b32 v17, 3, v1')
    a('v_and_b32 v6, 7, v1')
    a('v_mul_u32_u24 v242, 0x6000, v17')
    a('v_lshl_add_u32 v242, v6, 4, v242')
    a('v_lshlrev_b32 v243, 3, v17')
    a('s_lshl_b32 s36, s3, 11')
    a('s_add_u32 s33, s33, s36')
    WM = {}
    def wmload():
        base(a, 12, 84, 1024)
        a('s_lshl_b32 s36, s47, 6')
        tc = vm.issue('buffer_load_dwordx2 v[144:145], v243, s[12:15], s36 offen')
        base(a, 12, 86, 512*6144)
        a('s_cmp_lt_u32 s29, 24')
        a('s_cselect_b32 s14, s14, 0')
        a('s_lshr_b32 s36, s46, 2')
        a('s_lshl_b32 s36, s36, 7')
        a(f's_mul_i32 s37, s47, {32*6144}')
        a('s_add_u32 s36, s36, s37')
        twm = []
        for r in range(4):
            twm.append(vm.issue(f'buffer_load_dwordx4 v[{128+4*r}:{131+4*r}], v242, s[12:15], s36 offen' + NT))
            if r < 3: a('s_add_u32 s36, s36, 0x1800')
        WM.update(tc=tc, twm=twm)
    if P.get('wat', 1) == 0: wmload()
    if M2:
        a('s_and_b32 s30, s2, 1')
        a('s_lshl_b32 s30, s30, 3')
        a('s_and_b32 s98, s29, 7')
        a('s_or_b32 s30, s30, s98')
        a('s_bfe_u32 s31, s2, 0x20001')
        a('s_lshl_b32 s31, s31, 2')
        a('s_lshr_b32 s36, s2, 6')
        a('s_or_b32 s31, s31, s36')
        a('s_lshl_b32 s36, s36, 1')
        a('s_add_u32 s98, s98, s36')
    else:
        a('s_lshr_b32 s30, s32, 4')
        a('s_and_b32 s31, s32, 15')
        a(f's_and_b32 s98, s30, {P.get("prot", 0)}')
        a('s_lshl_b32 s98, s98, 2')
        if P.get('xrot', 1): a('s_add_u32 s98, s98, s28')
    a('s_and_b32 s98, s98, 7')
    a('s_lshr_b32 s38, s3, 1')
    a('s_and_b32 s39, s3, 1')
    a('s_cmp_eq_u32 s38, 0')
    a('s_cselect_b32 s20, s78, s80')
    a('s_cselect_b32 s21, s79, s81')
    a(f's_mov_b32 s22, {512*3584 if not P.get("now") else 0}')
    base(a, 8, 82, 1792*1024 if not P.get('now') else 0)
    base(a, 16, 58, TS)
    a('s_lshl_b32 s36, s28, 12')
    a(f's_add_u32 s36, s36, {hex(GRP)}')
    a('s_add_u32 s52, s58, s36')
    a('s_addc_u32 s53, s59, 0')
    a('s_movk_i32 s54, 0x1000')
    a('s_cmp_eq_u32 s3, 3')
    a('s_cselect_b32 s37, 0, 0x70000000')
    a('v_mov_b32 v22, s37')
    a('s_lshl_b32 s36, s29, 7')
    vm.issue('buffer_load_dword v158, v22, s[52:55], s36 offen')
    a('s_lshl_b32 s36, s46, 6')
    a(f's_add_u32 s36, s36, {hex(MODT)}')
    vm.issue('buffer_load_dword v159, v22, s[16:19], s36 offen')
    if M2 and P.get('ft', 1):
        a('s_lshl_b32 s36, s30, 4')
        a('s_lshr_b32 s37, s32, 4')
        a('s_lshl_b32 s37, s37, 4')
        a('s_sub_u32 s37, s37, s36')
        a('s_add_u32 s37, s37, 0x100')
        a('v_lshrrev_b32 v4, 2, v1')
        a('v_min_u32 v5, 1, v4')
        a('v_mul_lo_u32 v5, v5, s37')
        a('v_max_u32 v4, 1, v4')
        a('v_subrev_u32 v4, 1, v4')
        a('v_lshl_add_u32 v5, v4, 8, v5')
        a('v_and_b32 v4, 3, v1')
        a('v_add_u32 v5, v5, v4')
        a('s_lshl_b32 s37, s3, 2')
        a('s_add_u32 s36, s36, s37')
        a('v_add_lshl_u32 v5, v5, s36, 7')
        a(f's_mov_b32 s36, {hex(FL1)}')
        a('s_mov_b64 exec, 0xfff')
        vm.issue('buffer_load_dword v156, v5, s[16:19], s36 offen')
        a('s_mov_b64 exec, -1')
    a('s_lshl_b32 s36, s32, 13')
    a('s_lshl_b32 s37, s46, 11')
    a(f's_add_u32 s37, s37, {hex(MP)}')
    a('s_cmp_eq_u32 s3, 1')
    a(f's_cselect_b32 s37, s37, {hex(TS)}')
    a('s_cselect_b32 s44, 15, 63')
    a('s_cmp_eq_u32 s3, 2')
    a('s_cselect_b32 s37, s36, s37')
    a('v_and_b32 v4, s44, v1')
    a('v_lshlrev_b32 v4, 7, v4')
    if P.get('utt', 1): vm.issue('buffer_load_dword v157, v4, s[16:19], s37 offen' + (NT if P.get('ntu', 1) else ''))
    if P.get('tlb', 0) == 1:
        a('v_lshl_add_u32 v4, v1, 20, v22')
        for i, (p, n) in enumerate(((86, 512*6144), (84, 1024), (64, 0x200000), (78, 512*3584), (80, 512*3584), (82, 1792*1024), (56, 0x200000))):
            base(a, 12, p, n)
            vm.issue(f'buffer_load_dword v{160+i}, v4, s[12:15], 0 offen')
        vm.issue('buffer_load_dword v154, v4, s[16:19], 0 offen')
    for i in range(3):
        a(f'v_add_u32 v4, {64*i}, v1')
        a('v_mul_u32_u24 v5, 0x2aab, v4')
        a('v_lshrrev_b32 v5, 16, v5')
        a(f'v_mul_u32_u24 v5, {3584-96}, v5')
        a(f'v_lshl_add_u32 v{10+i}, v4, 4, v5')
        if i: a(f'v_subrev_u32 v{10+i}, {1024*i}, v{10+i}')
    a(f's_mul_i32 s41, s39, {32*3584}')
    a('s_mul_i32 s43, s31, 96')
    a('s_add_u32 s41, s41, s43')
    a('s_add_u32 s41, s41, 0x800')
    a('s_mul_i32 s43, s39, 3072')
    a(f's_mul_i32 s42, s38, {P1U}')
    a('s_add_u32 s42, s42, s43')
    a(f's_add_u32 s99, s41, {512*3584}')
    a(f's_mul_i32 s36, s98, {64*3584}')
    a('s_add_u32 s41, s41, s36')
    def step(reg, inc, lim, span):
        a(f's_add_u32 {reg}, {reg}, {inc}')
        a(f's_cmp_eq_u32 {reg}, {lim}')
        a(f's_cselect_b32 s36, {span}, 0')
        a(f's_sub_u32 {reg}, {reg}, s36')
    early = deque()
    def p1dma(m, i):
        if i == 0: a(f's_add_u32 m0, s42, {6144*m}')
        vm.issue(f'buffer_load_dwordx4 v{10+i}, s[20:23], s41 offen offset:{1024*i} lds')
        if i == 2 and m < 7: step('s41', 64*3584, 's99', 512*3584)
    for m in range(8):
        for i in range(3): early.append(lambda m=m, i=i: p1dma(m, i))
    for _ in range(P.get('e0', 0)): early.popleft()()
    a('v_lshrrev_b32 v4, 3, v1')
    a('v_bfe_u32 v5, v1, 4, 1')
    a('v_lshlrev_b32 v5, 2, v5')
    a('v_xor_b32 v5, v5, v6')
    a('v_lshlrev_b32 v5, 4, v5')
    a('v_lshl_add_u32 v8, v4, 10, v5')
    a(f'v_add_u32 v9, {8192-1024}, v8')
    a('s_lshl_b32 s43, s38, 5')
    a('v_xor_b32 v5, s43, v5')
    a('v_mul_u32_u24 v7, 0xe00, v4')
    a('v_add_u32 v7, v7, v5')
    a(f's_mul_i32 s48, s39, {8*3584}')
    a('s_lshl_b32 s43, s31, 7')
    a('s_add_u32 s48, s48, s43')
    a('s_lshl_b32 s43, s39, 10')
    a(f's_mul_i32 s49, s38, {SEG[0][2]-SEG[0][1]}')
    a('s_add_u32 s49, s49, s43')
    a(f's_mul_i32 s38, s38, {P1U}')
    a('s_add_u32 s43, s43, s38')
    a('v_sub_u32 v4, 7, v2')
    a('v_xor_b32 v4, v4, v6')
    a('v_lshl_add_u32 v4, v3, 4, v4')
    a(f'v_lshlrev_b32 v4, 4, v4')
    a(f'v_add_u32 v120, {PB}, v4')
    a('v_lshrrev_b32 v4, 4, v1')
    a('v_xor_b32 v5, v4, v1')
    a('s_lshl_b32 s36, s3, 11')
    a(f's_add_u32 s36, s36, {PB}')
    a('v_lshl_add_u32 v124, v5, 4, s36')
    a('v_xor_b32 v125, 64, v124')
    a('v_lshrrev_b32 v4, 3, v1')
    a('v_lshlrev_b32 v5, 4, v6')
    a('v_lshl_add_u32 v13, v4, 12, v5')
    a('s_lshl_b32 s36, s28, 2')
    a('s_add_u32 s36, s36, s3')
    a('s_lshl_b32 s36, s36, 16')
    a('s_sub_u32 s35, 31, s29')
    a('s_lshl_b32 s35, s35, 7')
    a('s_add_u32 s35, s35, s36')
    a('s_waitcnt lgkmcnt(0)')
    a('s_mul_i32 s50, s50, 1664525')
    a('s_add_u32 s50, s50, 1013904223')
    a('v_mov_b32 v20, s50')
    a('s_getreg_b32 s100, hwreg(HW_REG_XCC_ID, 0, 4)')
    if P.get('slow'): a('s_and_b32 s100, s29, 1')
    a('s_add_u32 s100, s100, s50')
    a('s_add_u32 s100, s100, 1')
    a('s_cmp_lg_u32 s3, 0')
    a('s_cbranch_scc1 L_noid')
    a('v_mov_b32 v22, s100')
    a('s_lshl_b32 s36, s29, 2')
    a(f'buffer_store_dword v22, v21, s[52:55], s36 offen offset:{XID} sc1')
    a.label('L_noid')
    if P.get('probe', 0) >= 100:
        a('v_mov_b32 v22, s60')
        a('s_lshl_b32 s36, s2, 2')
        a(f's_add_u32 s36, s36, {hex(0x140A000)}')
        vm.issue('buffer_store_dword v22, v21, s[16:19], s36 offen sc1')
    stamp('pre')
    vm.need(tsh)
    lo(a, 52, 48); hi(a, 54, 48, 40); lo(a, 56, 49); hi(a, 58, 49, 40)
    lo(a, 53, 50); hi(a, 55, 50, 40); lo(a, 57, 51); hi(a, 59, 51, 40)
    vm.need(tk[0])
    stamp('kv0')
    if P.get('skat', 0) == 1: skload()
    if P.get('wat', 1) == 1: wmload()
    def xload():
        vm.issue('buffer_load_dwordx4 v[232:235], v15, s[12:15], s33 offen' + NT)
        return vm.issue('buffer_load_dwordx4 v[236:239], v15, s[12:15], s33 offen offset:1024' + NT)
    for q in range(3):
        lo(a, 60+2*q, 24+q); hi(a, 61+2*q, 24+q, 40)
    for r in range(8):
        vm.need(tk[r])
        lo(a, 66+2*r, 27+r); hi(a, 67+2*r, 27+r, 40)
        lo(a, 84+2*r, 36+r); hi(a, 85+2*r, 36+r, 40)
        d = 102+2*r
        a(f'v_pk_mul_f32 v[{d}:{d+1}], v[{60+2*r}:{61+2*r}], v[58:59]')
        a(f'v_pk_fma_f32 v[{d}:{d+1}], v[{62+2*r}:{63+2*r}], v[56:57], v[{d}:{d+1}]')
        a(f'v_pk_fma_f32 v[{d}:{d+1}], v[{64+2*r}:{65+2*r}], v[54:55], v[{d}:{d+1}]')
        a(f'v_pk_fma_f32 v[{d}:{d+1}], v[{66+2*r}:{67+2*r}], v[52:53], v[{d}:{d+1}]')
        a(f'v_pk_mul_f32 v[{d}:{d+1}], v[{d}:{d+1}], v[{84+2*r}:{85+2*r}]')
    if P.get('skat', 0) == 2: skload()
    if P.get('wat', 1) == 2: wmload()
    tc, twm, tsk = WM['tc'], WM['twm'], SK['t']
    base(a, 12, 64, 0x200000)
    stamp('kvN')
    for c in range(2):
        for jj in range(4):
            a(f'v_cvt_pk_bf16_f32 v{24+4*c+jj}, v{102+2*(7-2*jj)+c}, v{102+2*(6-2*jj)+c}')
        a(f'ds_write_b128 v120, v[{24+4*c}:{27+4*c}] offset:{128*c}')
    a('s_waitcnt lgkmcnt(0)')
    a('s_barrier')
    stamp('abar')
    for j in range(2): a(f'ds_read_b128 v[{104+4*j}:{107+4*j}], v{124+j} offset:{1024*j}')
    a('s_mov_b32 s24, s35')
    a('s_add_u32 s25, s35, 0x8000')
    ustores = [f'buffer_store_dwordx4 v[{104+4*j}:{107+4*j}], v13, s[16:19], s{24+j} offen' for j in range(2)]
    for j in range(2):
        a(f's_waitcnt lgkmcnt({1-j})')
        tus = vm.issue(ustores[j] + (' sc1' if P.get('uts', 0) else ''))
    a('s_lshl_b32 s7, s3, 7')
    a('s_lshl_b32 s36, s29, 2')
    a('s_add_u32 s7, s7, s36')
    a('v_mov_b32 v123, s100')
    stamp('utst')
    for i in range(4): a(f'v_mov_b32 v{40+i}, 0')
    a(f'v_add_u32 v14, {CB}, v14')
    a('v_cmp_gt_u32 vcc, 32, v0')
    a('s_and_saveexec_b64 s[36:37], vcc')
    a('s_cbranch_execz L_nz')
    a('ds_write_b128 v14, v[40:43]')
    a(f'ds_write_b128 v14, v[40:43] offset:{CHS}')
    a('v_cmp_gt_u32 vcc, 2, v0')
    a('s_and_b64 exec, exec, vcc')
    for c in range(2):
        a(f'ds_write_b128 v14, v[40:43] offset:{c*CHS+U0+4096}')
        a(f'ds_write_b128 v14, v[40:43] offset:{c*CHS+U1+4096}')
    a.label('L_nz')
    a('s_mov_b64 exec, s[36:37]')
    a('v_cmp_eq_u32 s[36:37], 0, v0')
    a('s_lshl_b32 s4, s34, 16')
    a('s_and_b32 s5, s34, 0xffff0000')
    a('s_mov_b32 s6, 0xffff')
    vm.need(tsk)
    stamp('skok')
    for c in range(2):
        kx = 146+4*c
        lo(a, 44, kx)
        a(f'v_add_f32 v44, s{4+c}, v44')
        a('v_cvt_pk_bf16_f32 v44, v44, v44')
        a(f'v_bfi_b32 v44, s6, v44, v{kx}')
        a(f'v_cndmask_b32 v{kx}, v{kx}, v44, s[36:37]')
        a(f'ds_write_b128 v14, v[{kx}:{kx+3}] offset:{c*CHS+KB}')
    vm.need(tus)
    vm.issue(f'buffer_store_dword v123, v21, s[52:55], s7 offen offset:{UH}')
    a('v_and_b32 v120, 31, v1')
    a('v_lshlrev_b32 v120, 2, v120')
    a('s_lshr_b32 s5, s29, 3')
    a('s_lshl_b32 s5, s5, 7')
    hloads = [f'buffer_load_dword v121, v120, s[52:55], 0 offen offset:{XID} sc1', f'buffer_load_dword v124, v120, s[52:55], s5 offen offset:{UH} sc1']
    for l in hloads: tu = vm.issue(l)
    a('v_lshrrev_b32 v4, 1, v6')
    a('v_lshlrev_b32 v4, 11, v4')
    a('v_lshl_add_u32 v4, v16, 6, v4')
    a('v_lshrrev_b32 v5, 5, v1')
    a('v_lshl_add_u32 v4, v5, 5, v4')
    a('v_bfe_u32 v5, v1, 4, 1')
    a('v_lshl_add_u32 v244, v5, 4, v4')
    a('s_lshl_b32 s35, s32, 13')
    a('s_add_u32 s34, s35, 0x1000')
    a('v_lshlrev_b32 v125, 4, v0')
    vm.need(tc)
    lo(a, 44, 144); hi(a, 45, 144, 40); lo(a, 46, 145); hi(a, 47, 145, 40)
    for r in range(4): a(f'v_mul_f32 v{48+r}, {fh(-1.4426950408889634)}, v{44+r}')
    for r in range(4): a(f'v_exp_f32 v{48+r}, v{48+r}')
    for r in range(4): a(f'v_add_f32 v{48+r}, 1.0, v{48+r}')
    for r in range(4): a(f'v_rcp_f32 v{48+r}, v{48+r}')
    for r in range(4): a(f'v_mul_f32 v{44+r}, v{44+r}, v{48+r}')
    a('v_cvt_pk_bf16_f32 v48, v44, v45')
    a('v_cvt_pk_bf16_f32 v49, v46, v47')
    lo(a, 44, 48); hi(a, 45, 48, 40); lo(a, 46, 49); hi(a, 47, 49, 40)
    def stage1():
        for r in range(4):
            vm.need(twm[r])
            unpack8(a, 52, 128+4*r, 40)
            sel = 'op_sel:[0,0,0] op_sel_hi:[1,0,1]' if r % 2 == 0 else 'op_sel:[0,1,0] op_sel_hi:[1,1,1]'
            sp = 44 + (r & 2)
            for j in range(4):
                if r == 0:
                    a(f'v_pk_mul_f32 v[{60+2*j}:{61+2*j}], v[{52+2*j}:{53+2*j}], v[{sp}:{sp+1}] op_sel:[0,0] op_sel_hi:[1,0]')
                else:
                    a(f'v_pk_fma_f32 v[{60+2*j}:{61+2*j}], v[{52+2*j}:{53+2*j}], v[{sp}:{sp+1}], v[{60+2*j}:{61+2*j}] {sel}')
        for j in range(4): a(f'v_permlane32_swap_b32 v{60+j}, v{64+j}')
        for j in range(4): a(f'v_add_f32 v{60+j}, v{60+j}, v{64+j}')
        a('s_lshr_b32 s6, s46, 2')
        a('s_lshl_b32 s6, s6, 13')
        for j in range(2): a(f'v_permlane16_swap_b32 v{60+j}, v{62+j}')
        a('s_lshl_b32 s36, s47, 7')
        for j in range(2): a(f'v_add_f32 v{100+j}, v{60+j}, v{62+j}')
        a('v_mov_b32 v102, s50')
        a('v_mov_b32 v103, s50')
        for j in range(2): a(f'v_add_f32_dpp v{100+j}, v{100+j}, v{100+j} row_ror:8 row_mask:0xf bank_mask:0xf')
        a('s_add_u32 s6, s6, s36')
        a(f's_add_u32 s6, s6, {hex(MP)}')
        a('s_cmp_lt_u32 s29, 24')
        a(f's_cselect_b32 s6, s6, {hex(TS)}')
    if P.get('s1at', 1) == 0: stage1()
    a('s_lshr_b32 s36, s3, 1')
    a(f's_mul_i32 s36, s36, {CHS}')
    a('s_xor_b32 s38, s39, 1')
    a('s_lshl_b32 s38, s38, 6')
    a('s_add_u32 s36, s36, s38')
    a(f's_add_u32 s36, s36, {CB}')
    a('v_and_b32 v3, 15, v0')
    a('v_bfe_u32 v4, v0, 4, 2')
    a('v_lshlrev_b32 v5, 4, v4')
    a('v_lshl_add_u32 v22, v3, 5, v5')
    a(f's_add_u32 s38, s36, {KB-480}')
    a('v_add_u32 v22, s38, v22')
    a('v_and_b32 v23, 14, v3')
    a('v_lshlrev_b32 v23, 1, v23')
    a('v_sub_u32 v23, v5, v23')
    a(f'v_mul_u32_u24 v5, {U1-U0}, v16')
    a('v_sub_u32 v23, v23, v5')
    a(f's_add_u32 s38, s36, {U1+28}')
    a('v_add_u32 v16, s38, v23')
    for i in range(1, 4): a(f'v_add_u32 v{16+i}, {1024*i}, v16')
    a('v_bfe_u32 v5, v3, 1, 2')
    a('v_xor_b32 v5, v5, v4')
    a('v_lshl_add_u32 v5, v3, 2, v5')
    a('s_lshl_b32 s38, s3, 13')
    a(f's_add_u32 s38, s38, {PB}')
    a('v_lshl_add_u32 v23, v5, 4, s38')
    KP = P.get('kp', 1)
    if KP:
        a('s_waitcnt lgkmcnt(0)')
        a('s_barrier')
        for j in range(4, 32): a(f'ds_read_b128 v[{104+4*j}:{107+4*j}], v22 offset:{128*j}') if not 120 <= 104+4*j < 156 else None
    a(f's_mov_b32 s51, {SPIN}')
    a('s_mov_b32 s101, 0')
    vm.need(tu)
    stamp('ut1st')
    a('s_branch L_uh_chk')
    a.label('L_uh')
    for l in hloads: a(l)
    a('s_waitcnt vmcnt(0)')
    a.label('L_uh_chk')
    a('v_subrev_u32 v122, s50, v121')
    a('v_subrev_u32 v122, 1, v122')
    a('v_cmp_lt_u32 vcc, 15, v122')
    a('v_cmp_ne_u32 s[92:93], s100, v121')
    a('s_sub_u32 s51, s51, 1')
    a('s_cbranch_scc1 L_uh_ok')
    a('s_cbranch_vccnz L_uh')
    a('s_cmp_eq_u64 s[92:93], 0')
    a('s_cbranch_scc1 L_uh_same')
    a('s_cmp_lg_u32 s101, 0')
    a('s_cbranch_scc1 L_uh_same')
    a('s_mov_b32 s101, 1')
    for l in ustores: a(l + ' sc1')
    a('s_waitcnt vmcnt(0)')
    a(f'buffer_store_dword v20, v21, s[52:55], s7 offen offset:{UH} sc1')
    a.label('L_uh_same')
    a('v_cmp_ne_u32 vcc, s50, v124')
    a('v_cmp_ne_u32 s[92:93], s100, v124')
    a('s_nop 0')
    a('s_and_b64 vcc, vcc, s[92:93]')
    a('s_cbranch_vccnz L_uh')
    a.label('L_uh_ok')
    raw(6, 's51')
    stamp('uhok')
    tu = []
    for c in range(2):
        vm.issue(f'buffer_load_dwordx4 v[{72+4*c}:{75+4*c}], v125, s[16:19], s{35-c} offen sc1')
        tu.append(vm.issue(f'buffer_load_dword v{80+c}, v125, s[16:19], s{35-c} offen offset:16 sc1'))
    if P.get('s1at', 1) == 1: stage1()
    lstore(['buffer_store_dwordx4 v[100:103], v244, s[16:19], s6 offen'])
    if KP:
        for j in list(range(4)) + list(range(4, 13)): a(f'ds_read_b128 v[{104+4*j}:{107+4*j}], v22 offset:{128*j}')
    if P.get('xat', 1) == 1: tx = xload()
    a('s_movk_i32 s36, 0xff')
    a('v_cmp_ne_u32 vcc, s36, v0')
    for c in range(2):
        u = 72+4*c
        vm.need(tu[c])
        if c == 0: stamp('utok')
        a(f'v_cndmask_b32 v{80+c}, 0, v{80+c}, vcc')
        a(f'ds_write_b128 v14, v[{u}:{u+3}] offset:{c*CHS+U0}')
        for j in range(3): a(f'v_alignbit_b32 v{40+4*c+j}, v{u+j+1}, v{u+j}, 16')
        a(f'v_alignbit_b32 v{43+4*c}, v{80+c}, v{u+3}, 16')
        a(f'ds_write_b128 v14, v[{40+4*c}:{43+4*c}] offset:{c*CHS+U1}')
    for _ in range(P.get('e0b', 6)): early.popleft()()
    a('s_waitcnt lgkmcnt(0)')
    a('s_barrier')
    stamp('bbar')
    a('s_lshl_b32 s6, s46, 11')
    a(f's_add_u32 s6, s6, {hex(MP)}')
    a('s_cmp_lt_u32 s29, 24')
    a(f's_cselect_b32 s7, s3, 1')
    ploads = [f'buffer_load_dwordx4 v[{240+4*j}:{243+4*j}], v15, s[16:19], s6 offen offset:{1024*j} sc1' for j in range(2)]
    tmi = []
    def mod_issue():
        a('s_cmp_lg_u32 s7, 0')
        a('s_cbranch_scc1 L_nomi')
        for l in ploads: a(l)
        a.label('L_nomi')
        tmi.append(vm.issued)
    def mod_final():
        a('s_cmp_lg_u32 s7, 0')
        a('s_cbranch_scc1 L_nomod')
        done = vm.done
        a(f's_waitcnt vmcnt({vm.issued - tmi[0]})')
        poll('mp', ploads, [242, 246], pre=0)
        vm.done = done
        a('v_pk_add_f32 v[240:241], v[240:241], v[244:245]')
        a('s_lshr_b32 s36, s46, 5')
        a('s_cmp_eq_u32 s36, 1')
        for j in range(2): a(f'v_add_f32_dpp v{240+j}, v{240+j}, v{240+j} row_ror:8 row_mask:0xf bank_mask:0xf')
        a('s_cselect_b32 s38, 1.0, 0')
        a('s_cmp_eq_u32 s36, 4')
        for op in ('v_permlane16_swap_b32', 'v_permlane32_swap_b32'):
            for j in range(2): a(f'v_mov_b32 v{242+j}, v{240+j}')
            for j in range(2): a(f'{op} v{240+j}, v{242+j}')
            a('v_pk_add_f32 v[240:241], v[240:241], v[242:243]')
        a('s_cselect_b32 s38, 1.0, s38')
        a('s_lshl_b32 s36, s46, 6')
        a('v_cvt_pk_bf16_f32 v242, v240, v241')
        a(f's_add_u32 s36, s36, {hex(MODT)}')
        lo(a, 240, 242); hi(a, 241, 242, 40)
        for j in range(2): a(f'v_add_f32 v{240+j}, s38, v{240+j}')
        a('v_cvt_pk_bf16_f32 v244, v240, v241')
        a('v_mov_b32 v246, s50')
        a('v_mov_b32 v247, s50')
        a('v_mov_b32_dpp v245, v244 quad_perm:[1,1,3,3] row_mask:0xf bank_mask:0xf')
        a('v_lshlrev_b32 v240, 3, v1')
        a('s_mov_b64 exec, 0x55')
        a('buffer_store_dwordx4 v[244:247], v240, s[16:19], s36 offen sc1')
        a('s_mov_b64 exec, -1')
        a.label('L_nomod')
    ACC, AR, BR = 40, 72, 104
    pipe = LdsPipe(a)
    reads = []
    for i in range(32):
        o = 32*((31-i) & 7); b = 16 + ((31-i) >> 3); d = AR + 4*(i & 7)
        reads.append((('A', i, 0), f'ds_read2_b32 v[{d}:{d+1}], v{b} offset0:{o} offset1:{o+1}'))
        reads.append((('A', i, 1), f'ds_read2_b32 v[{d+2}:{d+3}], v{b} offset0:{o+2} offset1:{o+3}'))
        if i < 4 and not KP:
            for t in range(8):
                j = 4*t+3-i
                reads.append((('B', j), f'ds_read_b128 v[{BR+4*j}:{BR+4*j+3}], v22 offset:{128*j}'))
    tok = {('B', j): 0 for j in range(32)} if KP else {}; nxt = [0]
    def pump(cur_step, maxn):
        n = 0
        while n < maxn and nxt[0] < len(reads) and pipe.outstanding() < 13:
            key, line = reads[nxt[0]]
            if key[0] == 'A' and key[1] >= cur_step + 8: break
            tok[key] = pipe.issue(line); nxt[0] += 1; n += 1
    pump(0, 12)
    MAT = P.get('mat', 0)
    pending = []; nm = 0
    NB = P.get('e1', 9); EV = P.get('ev', 10)
    for i in range(32):
        for t in range(i >> 2, 8):
            j = 4*t+3-i
            while ('B', j) not in tok or ('A', i, 1) not in tok:
                pipe.need(pipe.done + 2); pump(i, 2)
            pipe.need(max(tok[('A', i, 1)], tok[('B', j)]))
            d = ACC+4*t; c = '0' if i == 0 else f'v[{d}:{d+3}]'
            s = AR+4*(i & 7)
            a(f'v_mfma_f32_16x16x32_bf16 v[{d}:{d+3}], v[{s}:{s+3}], v[{BR+4*j}:{BR+4*j+3}], {c}')
            pump(i, 2 if i < 4 else 1)
            nm += 1
            if nm >= P.get('e1s', 40) and nm % EV == 0 and NB > 0 and early:
                early.popleft()(); NB -= 1
        if pending and pipe.outstanding() < 14:
            t = pending.pop()
            pipe.issue(f'ds_write_b128 v23, v[{ACC+4*t}:{ACC+4*t+3}] offset:{1024*t}')
        if (i & 3) == 3: pending.append(i >> 2)
        if i == P.get('mpi', 2) and not MAT: mod_issue()
        if i == P.get('mfin', 7) and not MAT: mod_final(); raw(7, 's51')
    for t in pending:
        pipe.issue(f'ds_write_b128 v23, v[{ACC+4*t}:{ACC+4*t+3}] offset:{1024*t}')
    stamp('bend')
    a('v_lshlrev_b32 v4, 3, v0')
    a(f'v_add_u32 v4, {PRM}, v4')
    a('v_lshrrev_b32 v2, 1, v0')
    a('v_bfe_u32 v3, v0, 4, 2')
    a('v_xor_b32 v2, v2, v3')
    a('v_lshlrev_b32 v2, 4, v2')
    a('v_and_b32 v3, 1, v0')
    a('v_lshl_add_u32 v2, v3, 3, v2')
    a(f'v_add_u32 v2, {PB}, v2')
    a('v_lshlrev_b32 v3, 4, v0')
    a('v_and_b32 v5, 3, v0')
    a(f's_mul_i32 s38, s32, {YP}')
    a(f's_add_u32 s38, s38, {hex(YT)}')
    a(f'v_add_u32 v13, {PRM}, v15')
    a('s_and_b32 s36, s32, 7')
    a('s_lshl_b32 s36, s36, 1')
    a('s_and_b32 s37, s3, 1')
    a('s_or_b32 s36, s36, s37')
    a('s_lshl_b32 s36, s36, 6')
    a(f's_add_u32 s36, s36, {PRM+5120}')
    a('v_lshrrev_b32 v14, 5, v1')
    a('v_lshl_add_u32 v14, v14, 4, s36')
    a('s_waitcnt lgkmcnt(0)')
    a('s_barrier')
    stamp('pbar')
    for j in range(4):
        for w in range(4):
            a(f'ds_read_b64 v[{72+8*j+2*w}:{73+8*j+2*w}], v2 offset:{8192*w+2048*j}')
        if j == 2: a('s_waitcnt lgkmcnt(8)')
    if MAT: mod_issue()
    for j in range(4):
        b = 72+8*j; q = 24+4*j
        if j: a(f's_waitcnt lgkmcnt({12-4*j})')
        a(f'v_pk_add_f32 v[{b}:{b+1}], v[{b}:{b+1}], v[{b+2}:{b+3}]')
        a(f'v_pk_add_f32 v[{b+4}:{b+5}], v[{b+4}:{b+5}], v[{b+6}:{b+7}]')
        a(f'v_mov_b32 v{q+2}, s50')
        a(f'v_mov_b32 v{q+3}, s50')
        a(f'v_cvt_pk_bf16_f32 v{q}, v{b}, v{b+4}')
        a(f'v_cvt_pk_bf16_f32 v{q+1}, v{b+1}, v{b+5}')
        tys = vm.issue(f'buffer_store_dwordx4 v[{q}:{q+3}], v3, s[16:19], s38 offen sc1')
        if j < 3: a('s_add_u32 s38, s38, 0x1000')
    stamp('ytst')
    a('v_mov_b32 v22, v4')
    a('v_mov_b32 v23, v14')
    if MAT: mod_final(); raw(7, 's51')
    if MAT == 2: a('s_barrier')
    for _ in range(P.get('e2', 6)): early.popleft()()
    a('s_lshl_b32 s35, s3, 10')
    a(f's_add_u32 s35, s35, {hex(MODT)}')
    a('s_add_u32 s34, s35, 0x1000')
    a('s_add_u32 s4, s35, 0x2000')
    mloads = [f'buffer_load_dwordx4 v[{104+4*r}:{107+4*r}], v15, s[16:19], s{(35, 34, 4)[r]} offen sc1' for r in range(3)]
    a('v_lshrrev_b32 v4, 2, v0')
    a(f'v_mul_u32_u24 v3, {2*YS}, v5')
    a('v_lshl_add_u32 v3, v4, 2, v3')
    a(f'v_add_u32 v3, {XG}, v3')
    a(f's_mul_i32 s46, s3, {2*YS}')
    a(f's_add_u32 s46, s46, {XG}')
    a('v_add_u32 v4, s46, v15')
    a('s_lshl_b32 s46, s3, 1')
    a('v_xor_b32 v5, s46, v6')
    a('v_lshlrev_b32 v5, 4, v5')
    a('v_lshl_add_u32 v5, v1, 7, v5')
    a(f'v_add_u32 v5, {XH}, v5')
    a('v_xor_b32 v16, 16, v5')
    a('v_lshrrev_b32 v17, 3, v1')
    a('v_xor_b32 v18, v17, v6')
    a('v_lshlrev_b32 v18, 4, v18')
    a('v_lshl_add_u32 v18, v17, 7, v18')
    a('s_lshl_b32 s46, s3, 11')
    a(f's_add_u32 s46, s46, {XH}')
    a('v_add_u32 v18, s46, v18')
    a('v_lshlrev_b32 v17, 9, v17')
    a('v_lshl_add_u32 v17, v6, 4, v17')
    a('s_lshr_b32 s46, s32, 2')
    a('s_lshl_b32 s46, s46, 15')
    a('s_and_b32 s47, s32, 3')
    a('s_lshl_b32 s47, s47, 7')
    a('s_add_u32 s46, s46, s47')
    a('s_lshl_b32 s47, s3, 13')
    a('s_add_u32 s46, s46, s47')
    a(f's_add_u32 s46, s46, {hex(H2)}')
    a('s_add_u32 s47, s46, 0x1000')
    a(f's_add_u32 s37, s33, {hex(X1)}')
    a('v_lshrrev_b32 v14, 2, v0')
    a(f'v_mul_u32_u24 v14, {YP}, v14')
    a('v_and_b32 v19, 3, v0')
    a('v_lshl_add_u32 v14, v19, 4, v14')
    a('s_lshl_b32 s24, s32, 6')
    a(f's_add_u32 s26, s24, {hex(YT)}')
    a(f's_add_u32 s27, s26, {64*YP}')
    a(f's_add_u32 s5, s26, {128*YP}')
    a(f's_add_u32 s6, s26, {192*YP}')
    X = (64, 160)
    vm.need(tx)
    subs = []
    for t in range(2):
        s = Asm(); unpack8(s, X[t], 232+4*t, 40); ln2p(s, X[t], X[t]+8, X[t]+16, 24+t)
        subs.append(s)
    zipl(a, *subs)
    stamp('ln1')
    yloads = [f'buffer_load_dwordx4 v[{24+4*j}:{27+4*j}], v14, s[16:19], s{(26, 27, 5, 6)[j]} offen sc1' for j in range(4)]
    vm.need(tys)
    stamp('ytack')
    for l in yloads: ty = vm.issue(l)
    for l in mloads: tm = vm.issue(l)
    poll('yt', yloads, [26, 30, 34, 38], pre=ty)
    stamp('ytok'); raw(2, 's51')
    for j in range(4):
        a(f'ds_write_b32 v3, v{24+4*j} offset:{256*j}')
        a(f'ds_write_b32 v3, v{25+4*j} offset:{256*j+YS}')
    poll('md', mloads, [106, 110, 114], pre=tm)
    stamp('mdok'); raw(1, 's51')
    for r in range(3): a(f'ds_write_b64 v22, v[{104+4*r}:{105+4*r}] offset:{2048*r}')
    a('s_waitcnt lgkmcnt(0)')
    a('s_barrier')
    stamp('ybar')
    ptok = {}
    def p2dma(k):
        k0, gb, ub = seg_of(k)
        a(f's_add_u32 m0, {"s49" if k < 15 else "s43"}, {gb + 2048*(k-k0)}')
        if k and k % 4: a(f's_add_u32 s48, s48, {16*3584}')
        elif k: step('s48', 16*3584, 's100', 512*3584)
        ptok[k] = vm.issue('buffer_load_dwordx4 v7, s[20:23], s48 offen lds')
    a(f's_add_u32 s100, s48, {512*3584}')
    a(f's_mul_i32 s36, s98, {64*3584}')
    a('s_add_u32 s48, s48, s36')
    for _ in range(P.get('e3', 3)): early.popleft()()
    NSY = P.get('nsy', 0)
    for k in range(NSY): p2dma(k)
    for i, off in enumerate((1024, 0, 2048)):
        a(f'ds_read_b128 v[{40+4*i}:{43+4*i}], v13 offset:{off}')
    a('ds_read_b128 v[24:27], v4')
    a(f'ds_read_b128 v[28:31], v4 offset:{YS}')
    for i, off in enumerate((4096, 3072)):
        a(f'ds_read_b128 v[{52+4*i}:{55+4*i}], v13 offset:{off}')
    a('ds_read_b128 v[124:127], v23')
    a('ds_read_b128 v[116:119], v23 offset:32')
    a('s_waitcnt lgkmcnt(7)')
    unpack8(a, 128, 40, 40); unpack8(a, 136, 44, 40)
    for t in range(2):
        for p in range(4):
            d = X[t]+8+2*p
            a(f'v_pk_fma_f32 v[{d}:{d+1}], v[{d}:{d+1}], v[{128+2*p}:{129+2*p}], v[{136+2*p}:{137+2*p}]')
    a('s_waitcnt lgkmcnt(6)')
    unpack8(a, 144, 48, 40)
    for t in range(2):
        for p in range(4):
            d = X[t]+8+2*p
            a(f'v_pk_mul_f32 v[{d}:{d+1}], v[{d}:{d+1}], v[{144+2*p}:{145+2*p}]')
    a('s_waitcnt lgkmcnt(0)')
    unpack8(a, 128, 52, 40); unpack8(a, 136, 56, 40)
    subs = []
    for t in range(2):
        s = Asm(); x = X[t]
        unpack8(s, x+20, 24+4*t, 40)
        for p in range(4):
            s(f'v_pk_fma_f32 v[{x+2*p}:{x+2*p+1}], v[{x+8+2*p}:{x+9+2*p}], v[{x+20+2*p}:{x+21+2*p}], v[{x+2*p}:{x+2*p+1}]')
        for j in range(4): s(f'v_cvt_pk_bf16_f32 v{32+4*t+j}, v{x+2*j}, v{x+2*j+1}')
        s(f'buffer_store_dwordx4 v[{32+4*t}:{35+4*t}], v15, s[16:19], s37 offen offset:{1024*t} sc1')
        unpack8(s, x, 32+4*t, 40)
        (ln1p if P.get('l1', 1) else ln2p)(s, x, x+8, x+16, 24+2*t)
        for p in range(4):
            s(f'v_pk_fma_f32 v[{x+8+2*p}:{x+9+2*p}], v[{x+8+2*p}:{x+9+2*p}], v[{128+2*p}:{129+2*p}], v[{136+2*p}:{137+2*p}]')
        for j in range(4): s(f'v_cvt_pk_bf16_f32 v{40+4*t+j}, v{x+8+2*j}, v{x+9+2*j}')
        s(f'ds_write_b128 v{(5, 16)[t]}, v[{40+4*t}:{43+4*t}]')
        subs.append(s)
    zipl(a, *subs)
    vm.issued += 2
    a('s_waitcnt lgkmcnt(0)')
    a('s_barrier')
    stamp('hbar')
    a('ds_read_b128 v[24:27], v18')
    a('ds_read_b128 v[28:31], v18 offset:1024')
    a('s_and_b32 s24, s32, 31')
    a('s_lshl_b32 s24, s24, 4')
    a('s_lshl_b32 s25, s3, 2')
    a('s_add_u32 s33, s24, s25')
    a('s_and_b32 s25, s30, 1')
    a('s_lshl_b32 s25, s25, 8')
    a('s_lshl_b32 s26, s3, 6')
    a('s_add_u32 s25, s25, s26')
    a('v_and_b32 v19, 15, v1')
    a('v_lshlrev_b32 v19, 2, v19')
    if M2:
        a('s_lshl_b32 s25, s3, 2')
        a('s_lshl_b32 s24, s32, 7')
        a('s_add_u32 s24, s24, s25')
        a(f's_add_u32 s24, s24, {hex(FL1)}')
        a('s_lshl_b32 s33, s30, 4')
        a('s_or_b32 s33, s33, s31')
        a('s_lshl_b32 s33, s33, 7')
        a('s_add_u32 s33, s33, s25')
        a(f's_add_u32 s33, s33, {hex(FL2)}')
        a('s_lshl_b32 s26, s30, 4')
        a('s_add_u32 s26, s26, s25')
        a('s_lshl_b32 s26, s26, 7')
        a(f's_add_u32 s97, s26, {hex(FL1)}')
        a('s_lshr_b32 s26, s32, 4')
        a('s_lshl_b32 s26, s26, 4')
        a('s_add_u32 s26, s26, s25')
        a('s_lshl_b32 s26, s26, 7')
        a(f's_add_u32 s25, s26, {hex(FL2)}')
        a('v_bfe_u32 v19, v1, 2, 2')
        a('v_and_b32 v22, 3, v1')
        a('v_lshlrev_b32 v22, 2, v22')
        a('v_lshl_add_u32 v19, v19, 7, v22')
    def flag(F):
        if not M2: return lstore([f'buffer_store_dword v20, v21, s[52:55], s33 offen offset:{F}'])
        if F == F3: a(f's_add_u32 s33, s33, {FL3-FL2}')
        return vm.issue(f'buffer_store_dword v20, v21, s[16:19], {"s24" if F == F1 else "s33"} offen sc1')
    def look(F):
        if not M2: return [f'buffer_load_dword v22, v{19 if F == F1 else 13}, s[52:55], s25 offen offset:{F} sc1']
        return [f'buffer_load_dword v22, v{19 if F == F1 else 13}, s[16:19], {"s97" if F == F1 else "s25"} offen sc1']
    a('s_waitcnt lgkmcnt(0)')
    lstore(['buffer_store_dwordx4 v[24:27], v17, s[16:19], s46 offen', 'buffer_store_dwordx4 v[28:31], v17, s[16:19], s47 offen'], P.get('h2s', M2))
    stamp('h2st')
    a('v_bfe_u32 v4, v1, 4, 1')
    a('v_lshrrev_b32 v5, 5, v1')
    a('v_bfe_u32 v22, v1, 2, 2')
    a('v_and_b32 v23, 3, v1')
    a('v_lshlrev_b32 v23, 3, v23')
    a('v_lshl_add_u32 v3, v5, 3, v22')
    a('v_bfe_u32 v13, v1, 3, 1')
    a('v_lshlrev_b32 v16, 7, v3')
    a('v_add_u32 v16, v16, v23')
    a('v_lshl_add_u32 v16, v13, 6, v16')
    a('v_lshl_add_u32 v16, v4, 5, v16')
    a(f'v_mul_u32_u24 v17, {SEG[0][2]-SEG[0][1]}, v4')
    a(f'v_add_u32 v17, {SEG[0][1]}, v17')
    a(f'v_mul_u32_u24 v18, {P1U}, v4')
    for ct in range(4):
        a(f'v_xor_b32 v14, {32*ct}, v16')
        a(f'v_add_u32 v{246+ct}, v14, v17')
        a(f'v_add_u32 v{120+ct}, v14, v18')
    a('v_mul_u32_u24 v3, 0x60, v3')
    a('v_add_u32 v3, v3, v23')
    a('v_add_u32 v18, v18, v3')
    a('v_lshl_add_u32 v3, v5, 2, v22')
    a('v_lshlrev_b32 v3, 7, v3')
    a('v_lshl_add_u32 v3, v13, 6, v3')
    a('v_lshl_add_u32 v3, v4, 5, v3')
    a('v_add_u32 v3, v3, v23')
    a('s_lshl_b32 s26, s3, 11')
    a('s_and_b32 s27, s3, 1')
    a('s_lshl_b32 s27, s27, 6')
    a('v_xor_b32 v3, s27, v3')
    a('v_add_u32 v240, s26, v3')
    a('v_xor_b32 v241, 64, v240')
    for i in range(1, 3):
        a(f'v_add_u32 v{240+2*i}, {65536*i}, v240')
        a(f'v_add_u32 v{241+2*i}, {65536*i}, v241')
    a(f's_mov_b32 s44, {fh(GC2)}'); a(f's_mov_b32 s45, {fh(GC2)}')
    a(f'v_mov_b32 v2, {fh(GC1)}'); a(f'v_mov_b32 v3, {fh(GC1)}')
    a('s_lshl_b32 s27, s30, 2')
    a('s_add_u32 s27, s27, s3')
    a('s_lshl_b32 s28, s27, 15')
    a(f's_add_u32 s28, s28, {hex(H2)}')
    a('v_add_u32 v14, s28, v15')
    a('s_lshl_b32 s28, s98, 12')
    a('s_waitcnt vmcnt(0)'); vm.done = vm.issued
    stamp('h2dr')
    flag(F1)
    while early: early.popleft()()
    NS0 = P.get('ns0', 0) + NSY
    for k in range(NSY, NS0): p2dma(k)
    a('s_mul_i32 s29, s27, 112')
    AP = 1024 if M2 else YP
    if M2:
        a('s_lshl_b32 s47, s31, 2')
        a('s_add_u32 s47, s47, s29')
        a('s_lshl_b32 s47, s47, 10')
        a(f's_add_u32 s47, s47, {hex(ACT)}')
    else:
        a('s_lshl_b32 s47, s3, 4')
        a('s_add_u32 s47, s47, s31')
        a(f's_mul_i32 s47, s47, {4*YP}')
        a('s_lshl_b32 s4, s30, 10')
        a(f's_add_u32 s4, s4, {hex(YT)}')
        a('s_add_u32 s47, s47, s4')
    a('s_mul_i32 s46, s31, 3')
    a('s_add_u32 s46, s46, s29')
    a('s_lshl_b32 s46, s46, 10')
    a(f's_add_u32 s46, s46, {hex(ACT + 64*1024)}')
    a('s_lshr_b32 s39, s32, 3')
    a('s_and_b32 s35, s39, 1')
    a(f's_and_b32 s34, s39, {P.get("wrot", 0)}')
    a('s_and_b32 s24, s32, 7')
    a('s_lshl_b32 s24, s24, 7')
    a(f's_mul_i32 s37, s3, {192*1024}')
    a('s_add_u32 s37, s37, s24')
    a(f's_add_u32 s30, s37, {1024*1024 + 12*16384}')
    a(f's_mul_i32 s36, s34, {3*16384}')
    a('s_add_u32 s37, s37, s36')
    a(f's_add_u32 s37, s37, {1024*1024}')
    a('s_lshl_b32 s38, s3, 18')
    a('s_add_u32 s38, s38, s24')
    a(f's_add_u32 s31, s38, {16*16384}')
    a('s_lshl_b32 s36, s34, 16')
    a('s_add_u32 s38, s38, s36')
    if M2:
        a(f's_mul_i32 s4, s39, {224*1024}')
        a('s_lshl_b32 s6, s3, 14')
        a('s_add_u32 s6, s6, s4')
        a(f's_add_u32 s6, s6, {hex(ACT)}')
    else:
        a('s_lshl_b32 s6, s35, 3')
        a('s_add_u32 s6, s6, s3')
        a(f's_mul_i32 s6, s6, {16*YP}')
        a('s_add_u32 s6, s6, s4')
    a(f's_add_u32 s42, s6, {16*AP}')
    a(f's_mul_i32 s36, s34, {4*AP}')
    a('s_add_u32 s6, s6, s36')
    a(f's_mul_i32 s4, s39, {224*1024}')
    a(f's_mul_i32 s5, s3, {12*1024}')
    a('s_add_u32 s5, s5, s4')
    a(f's_add_u32 s5, s5, {hex(ACT + 64*1024)}')
    a(f's_add_u32 s41, s5, {12*1024}')
    a(f's_mul_i32 s36, s34, {3*1024}')
    a('s_add_u32 s5, s5, s36')
    a('s_lshl_b32 s39, s39, 16')
    a('s_add_u32 s39, s39, s24')
    a('v_bfe_u32 v4, v1, 1, 2')
    a('v_and_b32 v5, 1, v1')
    a('v_lshlrev_b32 v5, 2, v5')
    a(f'v_lshl_add_u32 v4, v4, {7 if M2 else 4}, v5')
    a('s_lshl_b32 s35, s35, 3')
    a('v_add_u32 v13, s35, v4')
    a('s_cmp_ge_u32 s3, 2')
    for r, (reg0, reg1, dist) in enumerate(((250, 16, 112*1024), (251, 17, 112*1024 if M2 else 64*YP))):
        a(f's_cselect_b32 s36, {dist}, 0')
        a(f'v_add_u32 v{reg0}, s36, v15')
        a(f's_cselect_b32 s36, 0, {dist}')
        a(f'v_add_u32 v{reg1}, s36, v15')
    a('v_lshlrev_b32 v73, 7, v1')
    a('s_lshl_b32 s34, s2, 2')
    a('s_add_u32 s34, s34, s3')
    a(f's_mul_i32 s34, s34, {14*128}')
    poll('f1', look(F1), [22])
    stamp('f1ok'); raw(3, 's51')
    htok = {}
    def h2load(ks):
        htok[ks] = vm.issue(f'buffer_load_dwordx4 a[{4*ks}:{4*ks+3}], v14, s[16:19], s28 offen offset:{1024*(ks&3)} sc1')
        if (ks & 3) == 3:
            a('s_add_u32 s28, s28, 0x1000'); a('s_and_b32 s28, s28, 0x7fff')
    NH0 = P.get('nh0', 8)
    for ks in range(NH0): h2load(ks)
    a('s_barrier')
    stamp('b0')
    hq, pq, wq = deque(), deque(), deque()
    wtok = {}
    def wdslot(i):
        so, lim, n, i0 = ('s37', 's30', 12, 0) if i < 12 else ('s38', 's31', 16, 12)
        a(f's_add_u32 m0, s26, {8192*WBL[i]}')
        if i != i0:
            if (i - i0) % (n // 4) or not P.get('wrot', 0): a(f's_add_u32 {so}, {so}, 0x4000')
            else: step(so, 0x4000, lim, n*0x4000)
        vm.issue(f'buffer_load_dwordx4 v8, s[8:11], {so} offen lds')
        wtok[i] = vm.issue(f'buffer_load_dwordx4 v9, s[8:11], {so} offen offset:1024 lds')
    def wreg(i): return ('v', 72 + 8*i) if i < 5 else ('a', 224 + 8*(i-5)) if i < 8 else ('v', AR + 8*(i % 3))
    def wread(i, mt, jj):
        kind, d = wreg(i); ad = 8192*WBL[i]
        return f'ds_read_b64_tr_b16 {kind}[{d+4*mt+2*jj}:{d+4*mt+2*jj+1}], v{240+2*(ad>>16)+mt} offset:{(ad & 0xffff)+1024*jj}'
    for ks in range(NH0, 32): hq.append(lambda ks=ks: h2load(ks))
    for k in range(NS0, 15): pq.append(lambda k=k: p2dma(k))
    valu = deque()
    AR, NA = 24, 6
    ACC1, ACC2 = 192, 128
    pipe = LdsPipe(a)
    steps = [(0, k, ct) for k in range(32) for ct in range(3)] + [(1, k, ct) for k in range(32) for ct in range(4)]
    tok = {}; nxt = [0]
    def rd(n):
        ps, k, ct = steps[n]; d = AR + 4*(n % NA)
        for jj in range(2):
            if ps == 0: b, off = 18, (16*k + 4*jj)*96 + 32*ct
            else:
                k0, gb, ub = seg_of(k)
                b, off = (246+ct, 2048*k + 512*jj) if k < 15 else (120+ct, gb + 2048*(k-k0) + 512*jj)
            tok[n] = pipe.issue(f'ds_read_b64_tr_b16 v[{d+2*jj}:{d+2*jj+1}], v{b} offset:{off}')
    for n in range(NA-1): rd(n)
    nxt[0] = NA-1
    HE = P.get('he', 2); VB = P.get('vb', 30); PE = P.get('pe', 4); WE = P.get('we', 4)
    stok = {}; nw = 0; wfree = 0; sg = 0; stg = {}; credit = 0; nb = 0; LW = P.get('lw', 2); fload = look(F2); tp = None
    for n, (ps, k, ct) in enumerate(steps):
        if ps == 0 and ct == 0:
            while k not in htok: hq.popleft()()
            vm.need(htok[k])
        if tok[n] > pipe.done: pipe.need(tok[min(n + LW - 1, len(steps) - 1)])
        d = (ACC1, ACC2)[ps] + 16*ct; c = '0' if k == 0 else f'v[{d}:{d+15}]'
        sa = AR + 4*(n % NA)
        a(f'v_mfma_f32_32x32x16_bf16 v[{d}:{d+15}], v[{sa}:{sa+3}], a[{4*k}:{4*k+3}], {c}')
        if nxt[0] < len(steps): rd(nxt[0]); nxt[0] += 1
        if ct == (2, 3)[ps] and (ps, k) in BARS:
            land, free = BARS[(ps, k)]
            if land is not None:
                while land not in ptok: pq.popleft()()
                vm.need(ptok[land])
            a('s_barrier')
            nb += 1; stamp(f'b{nb}')
            if (ps, k) == (0, 15):
                for kk in range(15, 27): pq.append(lambda kk=kk: p2dma(kk))
            if (ps, k) == (0, 23):
                for kk in range(27, 32): pq.append(lambda kk=kk: p2dma(kk))
            wfree = free
        if n == P.get('wt', 60):
            a('s_mov_b64 exec, 0x3fff')
            vm.issue('buffer_load_dword v72, v73, s[8:11], s34 offen')
            a('s_mov_b64 exec, -1')
        if n == 95:
            stamp('p1end')
            for t in range(3):
                o = 64 + 4*(t & 1)
                valu.extend(gelu_ops(ACC1+16*t, 48 + 8*(t & 1), o))
                valu.append(('store', t, o))
        if hq and n % HE == 0: hq.popleft()()
        elif pq and n >= P.get('ps', 24) and n % PE == (HE > 1): pq.popleft()()
        elif n % WE == (3 % WE) and nw < 24 and (nw < min(wfree, 12) or (12 <= nw < 20 and stg.get(nw - 12, 1 << 30) <= pipe.done) or 20 <= nw < wfree):
            wdslot(nw); nw += 1
        if n >= P.get('stg', 186) and sg < 32 and pipe.outstanding() <= 13:
            i, r = divmod(sg, 4)
            if i in wtok:
                vm.need(wtok[i])
                stg[i] = pipe.issue(wread(i, r >> 1, r & 1)) if r == 3 else (pipe.issue(wread(i, r >> 1, r & 1)), 1 << 30)[1]
                sg += 1
        if n == P.get('f2p', 216): tp = vm.issue(fload[0])
        credit = min(credit + VB, 30)
        while n > 97 and valu and credit >= 10*(cost(valu[0]) if isinstance(valu[0], str) else 1):
            x = valu.popleft()
            if isinstance(x, tuple):
                stok[x[1]] = vm.issue(f'buffer_store_dwordx4 v[{x[2]}:{x[2]+3}], v15, s[16:19], s46 offen offset:{1024*x[1]} sc1')
                if x[1] == 2: flag_at = n + P.get('fdel', 20); print('pass-1 act stored at', n)
            else:
                a(x); credit -= 10*cost(x)
        if 2 in stok and 'f2' not in stok and n >= flag_at:
            vm.need(stok[2])
            stok['f2'] = flag(F2)
    while valu:
        x = valu.popleft()
        if isinstance(x, tuple):
            stok[x[1]] = vm.issue(f'buffer_store_dwordx4 v[{x[2]}:{x[2]+3}], v15, s[16:19], s46 offen offset:{1024*x[1]} sc1')
        else: a(x)
    if 'f2' not in stok:
        vm.need(stok[2])
        stok['f2'] = flag(F2)
    assert not pq and not hq
    while sg < 32:
        i, r = divmod(sg, 4)
        while i not in wtok: wdslot(nw); nw += 1
        vm.need(wtok[i])
        stg[i] = pipe.issue(wread(i, r >> 1, r & 1)); sg += 1
    print('w_down steps issued in GEMM1:', nw)
    if tp is None or tp < stok['f2']: tp = vm.issue(fload[0])
    a('s_mov_b32 s34, 1.0'); a('s_mov_b32 s35, 1.0')
    lq = deque()
    def geglu2(t):
        s = Asm(); geglu(s, ACC2+16*t, 48, 64 + 4*(t & 1))
        for j, l in enumerate(s.lines):
            a(l.replace('s[46:47]', 's[34:35]'))
            if lq and j % P.get('ge', 20) == 3: lq.popleft()()
        if t: a(f's_add_u32 s47, s47, {AP}')
        return lstore([f'buffer_store_dwordx4 v[{64+4*(t&1)}:{67+4*(t&1)}], v15, s[16:19], s47 offen'], P.get('a2s', M2))
    atok = {}
    def abase(i): return 128 + 8*i if i < 12 else 8*(i-12)
    def actload(i):
        b = abase(i)
        so, v2, inc, lim, n, i0 = ('s5', 16, 1024, 's41', 12, 0) if i < 12 else ('s6', 17, AP, 's42', 16, 12)
        vm.issue(f'buffer_load_dwordx4 a[{b}:{b+3}], v{234+v2}, s[16:19], {so} offen sc1')
        atok[i] = vm.issue(f'buffer_load_dwordx4 a[{b+4}:{b+7}], v{v2}, s[16:19], {so} offen sc1')
        if (i - i0 + 1) % (n // 4): a(f's_add_u32 {so}, {so}, {inc}')
        else: step(so, inc, lim, n*inc)
    FP = P.get('fp', 2)
    pipe.need(pipe.issued)
    for i in range(nw, 28): wq.append(lambda i=i: wdslot(i))
    for _ in range(P.get('wl', 4)):
        if wq: lq.append(wq.popleft())
    for t in range(FP): geglu2(t)
    stamp('g1')
    poll('f2', fload, [22], pre=tp)
    stamp('f2ok'); raw(4, 's51')
    for i in range(12): lq.append(lambda i=i: actload(i))
    for t in range(FP, 4): ts3 = geglu2(t)
    stamp('g3')
    a('v_and_b32 v4, 31, v1')
    a('v_lshrrev_b32 v5, 5, v1')
    a('v_lshlrev_b32 v10, 10, v4')
    a('v_lshl_add_u32 v10, v5, 4, v10')
    a('s_lshr_b32 s46, s3, 1')
    a('s_lshl_b32 s46, s46, 15')
    a('s_and_b32 s47, s3, 1')
    a('s_lshl_b32 s47, s47, 6')
    a('s_add_u32 s39, s39, s46')
    a('s_add_u32 s39, s39, s47')
    a(f's_add_u32 s46, s39, {hex(X1)}')
    vm.need(ts3)
    flag(F3)
    if M2: a(f's_add_u32 s25, s25, {FL3-FL2}')
    stamp('estart')
    pipe = LdsPipe(a); tok = {}
    def rd2(i):
        if i < 8: return
        while i not in wtok: wq.popleft()()
        vm.need(wtok[i])
        for mt in range(2):
            for jj in range(2): tok[(i, mt)] = pipe.issue(wread(i, mt, jj))
    f3load = look(F3)
    aq = lq
    jobs = deque()
    while aq or wq:
        if aq: jobs.append(aq.popleft())
        if wq and (len(jobs) >= P.get('ea', 4) or not aq): jobs.append(wq.popleft())
    wq = jobs
    F3C = P.get('f3c', 8); JE = P.get('je', 3); tp = None; g = 0
    for i in range(28):
        stamp(f'e{i}')
        if i == F3C:
            while jobs: jobs.popleft()()
            if tp is None: tp = vm.issue(f3load[0])
            poll('f3', f3load, [22], pre=tp)
            stamp('f3ok'); raw(5, 's51')
            for ii in range(12, 28): jobs.append(lambda ii=ii: actload(ii))
            for _ in range(P.get('a2b', 2)): jobs.popleft()()
        if i == 22:
            vm.issue('buffer_load_dwordx4 v[72:75], v10, s[16:19], s46 offen sc1')
            tx = vm.issue('buffer_load_dwordx4 v[76:79], v10, s[16:19], s46 offen offset:32 sc1')
        kind, d0 = wreg(i); b = abase(i)
        while i not in atok: jobs.popleft()()
        vm.need(atok[i])
        for mt in range(2):
            if i >= 8: pipe.need(tok[(i, mt)])
            for nt in range(2):
                d = ACC2 + 32*mt + 16*nt; c = '0' if i == 0 else f'v[{d}:{d+15}]'
                a(f'v_mfma_f32_32x32x16_bf16 v[{d}:{d+15}], {kind}[{d0+4*mt}:{d0+4*mt+3}], a[{b+4*nt}:{b+4*nt+3}], {c}')
                g += 1
                if mt == 0 and nt == 0 and 8 <= i+2 < 28: rd2(i+2)
                if jobs and g % JE == 0: jobs.popleft()()
                elif not jobs and tp is None: tp = vm.issue(f3load[0])
    stamp('eend')
    PBL = [None, (WBL[8], WBL[9]), (WBL[10], WBL[11]), (WBL[12], WBL[13])]
    a('v_add_u32 v4, s26, v15')
    a('v_add_u32 v5, 0x10000, v4')
    a('v_add_u32 v18, 0x20000, v4')
    base(a, 12, 56, 0x200000)
    for t in range(1, 4):
        d = ACC2 + 32*(t & 1) + 16*(t >> 1)
        for g in range(4):
            ad = 8192*PBL[t][g >> 1] + 1024*(g & 1)
            a(f'ds_write_b128 v{(4, 5, 18)[ad >> 16]}, v[{d+4*g}:{d+4*g+3}] offset:{ad & 0xffff}')
        a(f's_xor_b32 s6, s26, {2048*t}')
        a(f's_add_u32 s7, s6, {8192*PBL[t][1]}')
        a(f's_add_u32 s6, s6, {8192*PBL[t][0]}')
        a(f'v_add_u32 v{88+2*t}, s6, v15')
        a(f'v_add_u32 v{89+2*t}, s7, v15')
    vm.need(tx)
    unpack8(a, 96, 124, 40); unpack8(a, 104, 116, 40); unpack8(a, 48, 72, 40); unpack8(a, 56, 76, 40)
    a('s_waitcnt lgkmcnt(0)')
    a('s_barrier')
    stamp('ebar')
    for i in range(1, 4):
        for g in range(4):
            a(f'ds_read_b128 v[{128+16*i+4*g}:{131+16*i+4*g}], v{88+2*i+(g >> 1)} offset:{1024*(g & 1)}')
    for i in range(1, 4):
        a(f's_waitcnt lgkmcnt({12-4*i})')
        for p in range(8): a(f'v_pk_add_f32 v[{128+2*p}:{129+2*p}], v[{128+2*p}:{129+2*p}], v[{128+16*i+2*p}:{129+16*i+2*p}]')
    for g in range(2):
        b = 128 + 8*g
        for r in range(4): a(f'v_permlane32_swap_b32 v{b+r}, v{b+4+r}')
        for p in range(4): a(f'v_pk_fma_f32 v[{b+2*p}:{b+2*p+1}], v[{b+2*p}:{b+2*p+1}], v[{96+8*g+2*p}:{97+8*g+2*p}], v[{48+8*g+2*p}:{49+8*g+2*p}]')
        for p in range(4): a(f'v_cvt_pk_bf16_f32 v{40+4*g+p}, v{b+2*p}, v{b+2*p+1}')
        a(f'buffer_store_dwordx4 v[{40+4*g}:{43+4*g}], v10, s[12:15], s39 offen offset:{32*g}' + ('', ' sc1', ' nt')[P.get('ost', 0)])
    a('s_or_b32 s4, s2, s3')
    a('s_cmp_lg_u32 s4, 0')
    a('s_cbranch_scc1 L_noep')
    a(f's_mov_b32 s4, {hex(EPOCH)}')
    a('buffer_store_dword v20, v21, s[16:19], s4 offen')
    a.label('L_noep')
    if P.get('probe') is not None:
        a('s_waitcnt vmcnt(0)')
        stamp('end')
        a('s_waitcnt lgkmcnt(0)')
        k = P['probe']
        if k >= 100:
            a(f's_mov_b32 s36, {hex(0x140A000)}')
            a('buffer_load_dwordx4 v[24:27], v15, s[16:19], s36 offen sc1')
            a('s_waitcnt vmcnt(0)')
            for r, op in ((28, 'min'), (29, 'max')):
                a(f'v_{op}_u32 v{r}, v24, v25')
                a(f'v_{op}3_u32 v{r}, v{r}, v26, v27')
                for ctl in ('row_ror:1', 'row_ror:2', 'row_ror:4', 'row_ror:8'):
                    a(f'v_{op}_u32_dpp v{r}, v{r}, v{r} {ctl} row_mask:0xf bank_mask:0xf')
                for i in range(4): a(f'v_readlane_b32 s{4+i}, v{r}, {16*i}')
                a(f's_{op}_u32 s4, s4, s5'); a(f's_{op}_u32 s6, s6, s7'); a(f's_{op}_u32 s{r+62}, s4, s6')
            if k == 100: a('s_add_u32 s92, s90, 6000')
            elif k == 101:
                a('s_sub_u32 s92, s91, s90'); a('s_lshl_b32 s92, s92, 2'); a('s_add_u32 s92, s92, s90'); a('s_add_u32 s92, s92, 4000')
            else:
                a(f's_sub_u32 s92, s{60+2*(k-110)}, s90'); a('s_lshl_b32 s92, s92, 2'); a('s_add_u32 s92, s92, s90'); a('s_add_u32 s92, s92, 4000')
        elif k == 0:
            a('s_add_u32 s92, s60, 6000')
        else:
            a(f's_sub_u32 s92, s{60+2*k}, s60')
            a('s_lshl_b32 s92, s92, 2')
            a('s_add_u32 s92, s92, s60')
            a('s_add_u32 s92, s92, 4000')
        a.label('L_probe')
        a('s_memrealtime s[94:95]')
        a('s_waitcnt lgkmcnt(0)')
        a('s_sub_u32 s94, s94, s92')
        a('s_cmp_lt_i32 s94, 0')
        a('s_cbranch_scc1 L_probe')
    elif P.get('stamps'):
        a('s_waitcnt vmcnt(0)')
        stamp('end')
        a('s_cmp_lg_u32 s3, 0')
        a('s_cbranch_scc1 L_end')
        a('s_lshl_b32 s94, s2, 7')
        a(f's_add_u32 s94, s94, {hex(TS)}')
        a('s_add_u32 s92, s58, s94')
        a('s_addc_u32 s93, s59, 0')
        a('v_lshlrev_b32 v250, 2, v1')
        a('s_lshl_b32 s94, s2, 8')
        a(f's_add_u32 s94, s94, {hex(TS + 0x80000)}')
        a('s_add_u32 s94, s58, s94')
        a('s_addc_u32 s95, s59, 0')
        a('global_store_dword v250, v254, s[94:95]')
        a('s_mov_b64 exec, 1')
        if P.get('dbg'):
            a('s_load_dwordx2 s[94:95], s[0:1], 104')
        a('s_waitcnt lgkmcnt(0)')
        if P.get('dbg'):
            a('s_not_b32 s60, s60')
            for m in sorted(marks):
                a(f'v_mov_b32 v250, s{60+2*m}')
                a(f'global_atomic_umax v21, v250, s[94:95] offset:{4*m}')
                a('s_nop 1')
            a('s_not_b32 s60, s60')
        for m in sorted(marks):
            a(f'v_mov_b32 v250, s{60+2*m}')
            a(f'v_mov_b32 v251, s{61+2*m}')
            a(f'global_store_dwordx2 v21, v[250:251], s[92:93] offset:{8*m}')
            a('s_nop 1')
    a.label('L_end')
    a.label('L_last')
    a('s_endpgm')
    return dict(grid=256, block=256, lds=163840, vgpr=512, accum=256)
```

```python
from collections import deque
from asmlib import *
from k123 import fh, lo, hi, unpack8, ln_stats, LdsPipe, A_OUT, A_WS
from k45 import VmPipe, GC1, GC2, geglu
from cde import zipl, gelu_ops, cost

UT, YT, X1, H2, ACT = 0, 0x400000, 0x900000, 0, 0xD00000
MODT, EPOCH, GRP, MP, TS = 0x1400000, 0x1408000, 0x1410000, 0x1480000, 0x1500000
YP = 16384 + 128
XID, UH, F1, F2, F3 = 0, 128, 1024, 1536, 2048
P1U = 49280
SEG = [(0, 98432, 129152), (15, 0, 49280), (27, 24576, 73856)]
CB, CHS, KB, U0, U1 = 98432, 12992, 512, 4608, 8768
PB = CB + 2*CHS
PRM = PB + 32768
MPART = PRM + 6144
XG = 129152 + 112*128
YS = 1040
XH = XG + 8*YS
PS = 272
SPIN = 1 << 15
WBL = list(range(12)) + list(range(8)) + [13, 17, 14, 18, 12, 15, 16, 19]
BARS = {89: (5, 15, 0), 111: (9, 19, 20), 127: (13, 23, 20), 143: (17, 27, 20), 159: (21, 31, 20), 175: (25, 32, 20),
        191: (29, 32, 22), 207: (31, 32, 24), 223: (None, 32, 28)}
assert MPART + 512 <= 163840 and XH + 8192 <= 163840
def seg_of(k): return SEG[0] if k < 15 else SEG[1] if k < 27 else SEG[2]

def base(a, d, p, n):
    a(f's_mov_b32 s{d}, s{p}'); a(f's_mov_b32 s{d+1}, s{p+1}'); a(f's_mov_b32 s{d+2}, {hex(n)}')

FL1, FL2, FL3 = 0x1420000, 0x1428000, 0x1430000
def ln1p(a, X, D, T, s0):
    a(f'v_pk_add_f32 v[{T}:{T+1}], v[{X}:{X+1}], v[{X+2}:{X+3}]')
    a(f'v_pk_mul_f32 v[{T+2}:{T+3}], v[{X}:{X+1}], v[{X}:{X+1}]')
    a(f'v_pk_add_f32 v[{D}:{D+1}], v[{X+4}:{X+5}], v[{X+6}:{X+7}]')
    for p in range(1, 4):
        a(f'v_pk_fma_f32 v[{T+2}:{T+3}], v[{X+2*p}:{X+2*p+1}], v[{X+2*p}:{X+2*p+1}], v[{T+2}:{T+3}]')
    a(f'v_pk_add_f32 v[{T}:{T+1}], v[{T}:{T+1}], v[{D}:{D+1}]')
    a(f'v_add_f32 v{T+2}, v{T+2}, v{T+3}')
    a(f'v_add_f32 v{T}, v{T}, v{T+1}')
    for ctl in ('row_shr:1', 'row_shr:2', 'row_shr:4', 'row_shr:8'):
        for r in (T+2, T): a(f'v_add_f32_dpp v{r}, v{r}, v{r} {ctl} row_mask:0xf bank_mask:0xf bound_ctrl:1')
    for ctl in ('row_bcast:15 row_mask:0xa', 'row_bcast:31 row_mask:0xc'):
        for r in (T+2, T): a(f'v_add_f32_dpp v{r}, v{r}, v{r} {ctl} bank_mask:0xf')
    a(f'v_readlane_b32 s{s0+1}, v{T+2}, 63')
    a(f'v_readlane_b32 s{s0}, v{T}, 63')
    a(f'v_mov_b32 v{T+1}, {fh(1.0/512)}')
    a(f'v_mov_b32 v{T+3}, {fh(1e-5)}')
    a(f'v_mul_f32 v{T}, s{s0}, v{T+1}')
    a(f'v_fmac_f32 v{T+3}, s{s0+1}, v{T+1}')
    a(f'v_fma_f32 v{T+2}, -v{T}, v{T}, v{T+3}')
    a(f'v_max_f32 v{T+2}, {fh(1e-5)}, v{T+2}')
    a(f'v_rsq_f32 v{T+2}, v{T+2}')
    for p in range(4):
        a(f'v_pk_add_f32 v[{D+2*p}:{D+2*p+1}], v[{X+2*p}:{X+2*p+1}], v[{T}:{T+1}] op_sel:[0,0] op_sel_hi:[1,0] neg_lo:[0,1] neg_hi:[0,1]')
    for p in range(4):
        a(f'v_pk_mul_f32 v[{D+2*p}:{D+2*p+1}], v[{D+2*p}:{D+2*p+1}], v[{T+2}:{T+3}] op_sel:[0,0] op_sel_hi:[1,0]')
def ln2p(s, X, D, T, s0):
    ln_stats(s, X, D, T, s0)
    for p in range(4):
        s(f'v_pk_mul_f32 v[{D+2*p}:{D+2*p+1}], v[{D+2*p}:{D+2*p+1}], v[{T}:{T+1}] op_sel:[0,0] op_sel_hi:[1,0]')

def mega(a, P):
    M2 = P.get('m2', 0)
    RL = P.get('rl', 1)
    WD2, WS_ = 0x200000, (2048 if RL else 0x4000)
    H2 = 0xB00000 if M2 else 0
    marks = set()
    SETS = {1: 'start kv0 utst utok bbar end bend ytst ytok h2dr b0 p1end b9 estart f3ok eend',
            2: 'start kv0 kvN abar utst end ut1st uhok utok bbar bend pbar ytst ytack ytok mdok',
            3: 'start ytst ln1 ytack ytok end ybar hbar h2st h2dr f1ok b0 b1 b2 b3 p1end',
            6: 'start b0 p1a p1end b2 end b3 b4 b5 b6 b7 b8 b9 f2ok g3 estart',
            7: 'start estart e2 e4 e6 end f3ok e8 e10 e12 e14 e16 e20 e24 eend ebar',
            8: 'start x1 x2 x3 x4 end',
            5: 'start karg x2 x3 x4 end x6 x7 x8 x9 x10 x11 x12 kv0 issued pre',
            4: 'start p1end b5 b6 b7 end b8 g1 f2ok g3 estart e12 f3ok e20 eend ebar'}
    names = SETS[P.get('stamps', 1)].split()
    def stamp(name):
        if P.get('stamps') and name in names:
            slot = names.index(name)
            a(f's_memrealtime s[{60+2*slot}:{61+2*slot}]'); marks.add(slot)
    def raw(i, sreg):
        if P.get('stamps'): a(f'v_writelane_b32 v254, {sreg}, {i}')
    vm = VmPipe(a)
    NT = ' nt' if P.get('nt', 0) else ''
    nst = [0]
    def lstore(lines, through=False):
        if through:
            for l in lines: t = vm.issue(l + ' sc1')
            return t
        return lstore2(lines)
    def lstore2(lines):
        n = nst[0]; nst[0] += 1
        a('s_cmp_eq_u32 s101, 0')
        a(f's_cbranch_scc1 L_ls{n}a')
        for l in lines: a(l + ' sc1')
        a(f's_branch L_ls{n}b')
        a.label(f'L_ls{n}a')
        for l in lines: t = vm.issue(l)
        a.label(f'L_ls{n}b')
        return t
    def poll(name, loads, tags, pre=None):
        a(f's_mov_b32 s51, {SPIN}')
        if pre is not None:
            vm.need(pre)
            stamp(name + '1st')
            a(f's_branch L_{name}_chk')
        a.label(f'L_{name}')
        for l in loads: a(l)
        a('s_waitcnt vmcnt(0)')
        a.label(f'L_{name}_chk')
        a(f'v_cmp_ne_u32 vcc, s50, v{tags[0]}')
        for i, t in enumerate(tags[1:]): a(f'v_cmp_ne_u32 s[{92+2*i}:{93+2*i}], s50, v{t}')
        a('s_sub_u32 s51, s51, 1')
        a(f's_cbranch_scc1 L_{name}_ok')
        for i in range(len(tags)-1): a(f's_or_b64 vcc, vcc, s[{92+2*i}:{93+2*i}]')
        a(f's_cbranch_vccnz L_{name}')
        a.label(f'L_{name}_ok')
        if pre is None: vm.done = vm.issued

    a('s_cmp_ge_u32 s2, 256')
    a('s_cbranch_scc1 L_end')
    stamp('start')
    if P.get('stamps'): a('v_mov_b32 v254, 0')
    a('s_load_dwordx16 s[64:79], s[0:1], 0')
    if P.get('cpf', 1):
        a('s_getpc_b64 s[4:5]')
        a.label('L_pc')
        a('v_lshlrev_b32 v3, 7, v0')
        a('v_mov_b32 v5, s5')
        a('v_add_co_u32 v4, vcc, s4, v3')
        a(f'v_cmp_gt_u32 s[6:7], {P.get("cpn", 16)}, v0')
        a('v_and_b32 v1, 63, v0')
        a('v_addc_co_u32 v5, vcc, 0, v5, vcc')
        a('s_and_b64 exec, exec, s[6:7]')
        a('s_cbranch_execz L_nopf')
        a('global_load_dword v169, v[4:5], off')
        a.label('L_nopf')
        a('s_mov_b64 exec, -1')
    else: a('v_and_b32 v1, 63, v0')
    a(f's_load_dwordx2 s[58:59], s[0:1], {A_WS}')
    a('s_load_dwordx8 s[80:87], s[0:1], 64')
    a(f's_load_dwordx2 s[56:57], s[0:1], {A_OUT}')
    a('v_lshrrev_b32 v2, 6, v0')
    a('v_readfirstlane_b32 s3, v2')
    a('s_mov_b32 s40, 0xffff0000')
    a('s_and_b32 s28, s2, 7')
    a('s_lshr_b32 s29, s2, 3')
    a('s_lshl_b32 s32, s28, 5')
    a('s_or_b32 s32, s32, s29')
    a('v_and_b32 v3, 31, v0')
    a('v_lshrrev_b32 v2, 5, v0')
    a('s_lshl_b32 s33, s29, 6')
    a('v_lshl_add_u32 v4, v2, 3, s33')
    a('s_lshl_b32 s33, s28, 7')
    a('v_lshl_add_u32 v5, v3, 2, s33')
    a('v_lshl_add_u32 v5, v4, 10, v5')
    a('v_subrev_u32 v4, 0xc00, v5')
    a('s_lshl_b32 s33, s28, 9')
    a('v_lshl_add_u32 v13, v3, 4, s33')
    a('s_movk_i32 s35, 0x1000')
    a('s_mov_b32 s15, 0x20000'); a('s_mov_b32 s27, 0x20000'); a('s_mov_b32 s19, 0x20000')
    a('s_mov_b32 s23, 0x20000'); a('s_mov_b32 s11, 0x20000'); a('s_mov_b32 s55, 0x20000')
    a('v_lshlrev_b32 v15, 4, v1')
    a('v_mov_b32 v21, 0')
    a('v_lshlrev_b32 v14, 4, v0')
    a('s_waitcnt lgkmcnt(0)')
    stamp('karg')
    base(a, 12, 70, 4096)
    base(a, 24, 68, 0x200000)
    tsh = vm.issue('buffer_load_dwordx4 v[48:51], v13, s[12:15], 0 offen' + NT)
    base(a, 12, 66, 0x200000)
    for i in range(3): vm.issue(f'buffer_load_dword v{24+i}, v4, s[12:15], 0 offen offset:{1024*i}' + NT)
    tk = {}
    for i in range(8):
        so = 's35' if i >= 4 else '0'
        vm.issue(f'buffer_load_dword v{27+i}, v5, s[12:15], {so} offen offset:{1024*(i&3)}' + NT)
        tk[i] = vm.issue(f'buffer_load_dword v{36+i}, v5, s[24:27], {so} offen offset:{1024*(i&3)}' + NT)
    stamp('issued')
    a(f's_add_u32 s4, s58, {hex(EPOCH)}')
    a('s_addc_u32 s5, s59, 0')
    a('s_load_dword s50, s[4:5], 0')
    if P.get('cpf', 1):
        a('s_getpc_b64 s[6:7]')
        a.label('L_pc2')
        a('s_lshl_b32 s36, s29, 2')
        a('s_add_u32 s36, s36, s3')
        a('v_and_b32 v4, 1, v0')
        a('v_lshl_add_u32 v4, s36, 1, v4')
        a('v_min_u32 v4, (L_last-L_pc2)/128, v4')
        a('v_lshlrev_b32 v4, 7, v4')
        a('v_mov_b32 v5, s7')
        a('v_add_co_u32 v4, vcc, s6, v4')
        a('v_addc_co_u32 v5, vcc, 0, v5, vcc')
        a('s_mov_b64 exec, 3')
        vm.issue('global_load_dword v168, v[4:5], off')
        a('s_mov_b64 exec, -1')
    if P.get('kvbar', 1): a('s_barrier')
    a('s_lshl_b32 s33, s32, 2')
    a('s_add_u32 s6, s74, s33')
    a('s_addc_u32 s7, s75, 0')
    a('s_load_dword s34, s[6:7], 0')
    a('s_lshl_b32 s33, s32, 13')
    SK = {}
    def skload():
        base(a, 12, 72, 0x200000)
        a('s_lshl_b32 s36, s32, 13')
        vm.issue('buffer_load_dwordx4 v[146:149], v14, s[12:15], s36 offen' + NT)
        a('s_add_u32 s36, s36, 0x1000')
        SK['t'] = vm.issue('buffer_load_dwordx4 v[150:153], v14, s[12:15], s36 offen' + NT)
    if P.get('skat', 0) == 0: skload()
    a('s_mul_i32 s30, s28, 6')
    a('s_lshr_b32 s31, s29, 2')
    a('s_add_u32 s30, s30, s31')
    a('s_and_b32 s31, s29, 3')
    a('s_lshl_b32 s46, s30, 2')
    a('s_or_b32 s46, s46, s31')
    a('s_lshl_b32 s47, s31, 2')
    a('s_or_b32 s47, s47, s3')
    a('v_and_b32 v16, 1, v0')
    a('v_lshrrev_b32 v17, 3, v1')
    a('v_and_b32 v6, 7, v1')
    a('v_mul_u32_u24 v242, 0x6000, v17')
    a('v_lshl_add_u32 v242, v6, 4, v242')
    a('v_lshlrev_b32 v243, 3, v17')
    a('s_lshl_b32 s36, s3, 11')
    a('s_add_u32 s33, s33, s36')
    WM = {}
    def wmload():
        base(a, 12, 84, 1024)
        a('s_lshl_b32 s36, s47, 6')
        tc = vm.issue('buffer_load_dwordx2 v[144:145], v243, s[12:15], s36 offen')
        base(a, 12, 86, 512*6144)
        a('s_cmp_lt_u32 s29, 24')
        a('s_cselect_b32 s14, s14, 0')
        a('s_lshr_b32 s36, s46, 2')
        a('s_lshl_b32 s36, s36, 7')
        a(f's_mul_i32 s37, s47, {32*6144}')
        a('s_add_u32 s36, s36, s37')
        twm = []
        for r in range(4):
            twm.append(vm.issue(f'buffer_load_dwordx4 v[{128+4*r}:{131+4*r}], v242, s[12:15], s36 offen' + NT))
            if r < 3: a('s_add_u32 s36, s36, 0x1800')
        WM.update(tc=tc, twm=twm)
    if P.get('wat', 2) == 0: wmload()
    if M2:
        a('s_and_b32 s30, s2, 1')
        a('s_lshl_b32 s30, s30, 3')
        a('s_and_b32 s98, s29, 7')
        a('s_or_b32 s30, s30, s98')
        a('s_bfe_u32 s31, s2, 0x20001')
        a('s_lshl_b32 s31, s31, 2')
        a('s_lshr_b32 s36, s2, 6')
        a('s_or_b32 s31, s31, s36')
        a('s_lshl_b32 s36, s36, 1')
        a('s_add_u32 s98, s98, s36')
    else:
        a('s_lshr_b32 s30, s32, 4')
        a('s_and_b32 s31, s32, 15')
        a(f's_and_b32 s98, s30, {P.get("prot", 0)}')
        a('s_lshl_b32 s98, s98, 2')
        if P.get('xrot', 1): a('s_add_u32 s98, s98, s28')
    a('s_and_b32 s98, s98, 7')
    a('s_lshr_b32 s38, s3, 1')
    a('s_and_b32 s39, s3, 1')
    a('s_cmp_eq_u32 s38, 0')
    a('s_cselect_b32 s20, s78, s80')
    a('s_cselect_b32 s21, s79, s81')
    a(f's_mov_b32 s22, {512*3584 if not P.get("now") else 0}')
    base(a, 8, 82, 1792*1024 if not P.get('now') else 0)
    base(a, 16, 58, TS)
    a('s_lshl_b32 s36, s28, 12')
    a(f's_add_u32 s36, s36, {hex(GRP)}')
    a('s_add_u32 s52, s58, s36')
    a('s_addc_u32 s53, s59, 0')
    a('s_movk_i32 s54, 0x1000')
    a('s_cmp_eq_u32 s3, 3')
    a('s_cselect_b32 s37, 0, 0x70000000')
    a('v_mov_b32 v22, s37')
    a('s_lshl_b32 s36, s29, 7')
    vm.issue('buffer_load_dword v158, v22, s[52:55], s36 offen')
    a('s_lshl_b32 s36, s46, 6')
    a(f's_add_u32 s36, s36, {hex(MODT)}')
    vm.issue('buffer_load_dword v159, v22, s[16:19], s36 offen')
    if M2 and P.get('ft', 1):
        a('s_lshl_b32 s36, s30, 4')
        a('s_lshr_b32 s37, s32, 4')
        a('s_lshl_b32 s37, s37, 4')
        a('s_sub_u32 s37, s37, s36')
        a('s_add_u32 s37, s37, 0x100')
        a('v_lshrrev_b32 v4, 2, v1')
        a('v_min_u32 v5, 1, v4')
        a('v_mul_lo_u32 v5, v5, s37')
        a('v_max_u32 v4, 1, v4')
        a('v_subrev_u32 v4, 1, v4')
        a('v_lshl_add_u32 v5, v4, 8, v5')
        a('v_and_b32 v4, 3, v1')
        a('v_add_u32 v5, v5, v4')
        a('s_lshl_b32 s37, s3, 2')
        a('s_add_u32 s36, s36, s37')
        a('v_add_lshl_u32 v5, v5, s36, 7')
        a(f's_mov_b32 s36, {hex(FL1)}')
        a('s_mov_b64 exec, 0xfff')
        vm.issue('buffer_load_dword v156, v5, s[16:19], s36 offen')
        a('s_mov_b64 exec, -1')
    a('s_lshl_b32 s36, s32, 13')
    a('s_lshl_b32 s37, s46, 11')
    a(f's_add_u32 s37, s37, {hex(MP)}')
    a('s_cmp_eq_u32 s3, 1')
    a(f's_cselect_b32 s37, s37, {hex(TS)}')
    a('s_cselect_b32 s44, 15, 63')
    a('s_cmp_eq_u32 s3, 2')
    a('s_cselect_b32 s37, s36, s37')
    a('v_and_b32 v4, s44, v1')
    a('v_lshlrev_b32 v4, 7, v4')
    if P.get('utt', 1): vm.issue('buffer_load_dword v157, v4, s[16:19], s37 offen' + (NT if P.get('ntu', 1) else ''))
    if P.get('tlb', 0) == 1:
        a('v_lshl_add_u32 v4, v1, 20, v22')
        for i, (p, n) in enumerate(((86, 512*6144), (84, 1024), (64, 0x200000), (78, 512*3584), (80, 512*3584), (82, 1792*1024), (56, 0x200000))):
            base(a, 12, p, n)
            vm.issue(f'buffer_load_dword v{160+i}, v4, s[12:15], 0 offen')
        vm.issue('buffer_load_dword v154, v4, s[16:19], 0 offen')
    for i in range(3):
        a(f'v_add_u32 v4, {64*i}, v1')
        a('v_mul_u32_u24 v5, 0x2aab, v4')
        a('v_lshrrev_b32 v5, 16, v5')
        a(f'v_mul_u32_u24 v5, {3584-96}, v5')
        a(f'v_lshl_add_u32 v{10+i}, v4, 4, v5')
        if i: a(f'v_subrev_u32 v{10+i}, {1024*i}, v{10+i}')
    a(f's_mul_i32 s41, s39, {32*3584}')
    a('s_mul_i32 s43, s31, 96')
    a('s_add_u32 s41, s41, s43')
    a('s_add_u32 s41, s41, 0x800')
    a('s_mul_i32 s43, s39, 3072')
    a(f's_mul_i32 s42, s38, {P1U}')
    a('s_add_u32 s42, s42, s43')
    a(f's_add_u32 s99, s41, {512*3584}')
    a(f's_mul_i32 s36, s98, {64*3584}')
    a('s_add_u32 s41, s41, s36')
    def step(reg, inc, lim, span):
        a(f's_add_u32 {reg}, {reg}, {inc}')
        a(f's_cmp_eq_u32 {reg}, {lim}')
        a(f's_cselect_b32 s36, {span}, 0')
        a(f's_sub_u32 {reg}, {reg}, s36')
    early = deque()
    def p1dma(m, i):
        if i == 0: a(f's_add_u32 m0, s42, {6144*m}')
        vm.issue(f'buffer_load_dwordx4 v{10+i}, s[20:23], s41 offen offset:{1024*i} lds')
        if i == 2 and m < 7: step('s41', 64*3584, 's99', 512*3584)
    for m in range(8):
        for i in range(3): early.append(lambda m=m, i=i: p1dma(m, i))
    for _ in range(P.get('e0', 0)): early.popleft()()
    a('v_lshrrev_b32 v4, 3, v1')
    a('v_bfe_u32 v5, v1, 4, 1')
    a('v_lshlrev_b32 v5, 2, v5')
    a('v_xor_b32 v5, v5, v6')
    a('v_lshlrev_b32 v5, 4, v5')
    a(f'v_lshl_add_u32 v8, v4, {7 if RL else 10}, v5')
    a(f'v_add_u32 v9, {0 if RL else 8192-1024}, v8')
    a('s_lshl_b32 s43, s38, 5')
    a('v_xor_b32 v5, s43, v5')
    a('v_mul_u32_u24 v7, 0xe00, v4')
    a('v_add_u32 v7, v7, v5')
    a(f's_mul_i32 s48, s39, {8*3584}')
    a('s_lshl_b32 s43, s31, 7')
    a('s_add_u32 s48, s48, s43')
    a('s_lshl_b32 s43, s39, 10')
    a(f's_mul_i32 s49, s38, {SEG[0][2]-SEG[0][1]}')
    a('s_add_u32 s49, s49, s43')
    a(f's_mul_i32 s38, s38, {P1U}')
    a('s_add_u32 s43, s43, s38')
    a('v_sub_u32 v4, 7, v2')
    a('v_xor_b32 v4, v4, v6')
    a('v_lshl_add_u32 v4, v3, 4, v4')
    a(f'v_lshlrev_b32 v4, 4, v4')
    a(f'v_add_u32 v120, {PB}, v4')
    a('v_lshrrev_b32 v4, 4, v1')
    a('v_xor_b32 v5, v4, v1')
    a('s_lshl_b32 s36, s3, 11')
    a(f's_add_u32 s36, s36, {PB}')
    a('v_lshl_add_u32 v124, v5, 4, s36')
    a('v_xor_b32 v125, 64, v124')
    a('v_lshrrev_b32 v4, 3, v1')
    a('v_lshlrev_b32 v5, 4, v6')
    a('v_lshl_add_u32 v13, v4, 12, v5')
    a('s_lshl_b32 s36, s28, 2')
    a('s_add_u32 s36, s36, s3')
    a('s_lshl_b32 s36, s36, 16')
    a('s_sub_u32 s35, 31, s29')
    a('s_lshl_b32 s35, s35, 7')
    a('s_add_u32 s35, s35, s36')
    a('s_waitcnt lgkmcnt(0)')
    a('s_mul_i32 s50, s50, 1664525')
    a('s_add_u32 s50, s50, 1013904223')
    a('v_mov_b32 v20, s50')
    a('s_getreg_b32 s100, hwreg(HW_REG_XCC_ID, 0, 4)')
    if P.get('slow'): a('s_and_b32 s100, s29, 1')
    a('s_add_u32 s100, s100, s50')
    a('s_add_u32 s100, s100, 1')
    a('s_cmp_lg_u32 s3, 0')
    a('s_cbranch_scc1 L_noid')
    a('v_mov_b32 v22, s100')
    a('s_lshl_b32 s36, s29, 2')
    a(f'buffer_store_dword v22, v21, s[52:55], s36 offen offset:{XID} sc1')
    a.label('L_noid')
    if P.get('probe', 0) >= 100:
        a('v_mov_b32 v22, s60')
        a('s_lshl_b32 s36, s2, 2')
        a(f's_add_u32 s36, s36, {hex(0x140A000)}')
        vm.issue('buffer_store_dword v22, v21, s[16:19], s36 offen sc1')
    def slow_gu():
        a('v_bfe_u32 v4, v1, 1, 3')
        a('v_and_b32 v5, 1, v4')
        a('v_lshlrev_b32 v5, 9, v5')
        a(f'v_mul_u32_u24 v4, 3584, v4')
        a('v_add_u32 v4, v4, v5')
        a('v_and_b32 v5, 1, v1')
        a('v_lshl_add_u32 v4, v5, 10, v4')
        a('v_bfe_u32 v5, v1, 4, 1')
        a('v_lshl_add_u32 v4, v5, 11, v4')
        a('s_lshl_b32 s36, s29, 1')
        a('s_and_b32 s37, s3, 1')
        a('s_add_u32 s36, s36, s37')
        a(f's_mul_i32 s36, s36, {8*3584}')
        a('s_mov_b32 exec_hi, 0')
        vm.issue('buffer_load_dword v252, v4, s[20:23], s36 offen offset:384')
        a('s_mov_b32 exec_hi, -1')
    def slow_d():
        a('v_lshlrev_b32 v4, 10, v1')
        a('s_and_b32 s36, s32, 31')
        a('s_lshl_b32 s36, s36, 2')
        a('s_add_u32 s36, s36, s3')
        a(f's_mul_i32 s36, s36, {14*1024}')
        a('s_mov_b64 exec, 0x3fff')
        vm.issue('buffer_load_dword v253, v4, s[8:11], s36 offen offset:384')
        a('s_mov_b64 exec, -1')
    def slow(at):
        if P.get('sg', 0) == at: slow_gu()
        if P.get('sd', 0) == at: slow_d()
    stamp('pre')
    vm.need(tsh)
    lo(a, 52, 48); hi(a, 54, 48, 40); lo(a, 56, 49); hi(a, 58, 49, 40)
    lo(a, 53, 50); hi(a, 55, 50, 40); lo(a, 57, 51); hi(a, 59, 51, 40)
    vm.need(tk[0])
    stamp('kv0')
    if P.get('skat', 0) == 1: skload()
    if P.get('wat', 2) == 1: wmload()
    def xload():
        vm.issue('buffer_load_dwordx4 v[232:235], v15, s[12:15], s33 offen' + NT)
        return vm.issue('buffer_load_dwordx4 v[236:239], v15, s[12:15], s33 offen offset:1024' + NT)
    for q in range(3):
        lo(a, 60+2*q, 24+q); hi(a, 61+2*q, 24+q, 40)
    for r in range(8):
        vm.need(tk[r])
        lo(a, 66+2*r, 27+r); hi(a, 67+2*r, 27+r, 40)
        lo(a, 84+2*r, 36+r); hi(a, 85+2*r, 36+r, 40)
        d = 102+2*r
        a(f'v_pk_mul_f32 v[{d}:{d+1}], v[{60+2*r}:{61+2*r}], v[58:59]')
        a(f'v_pk_fma_f32 v[{d}:{d+1}], v[{62+2*r}:{63+2*r}], v[56:57], v[{d}:{d+1}]')
        a(f'v_pk_fma_f32 v[{d}:{d+1}], v[{64+2*r}:{65+2*r}], v[54:55], v[{d}:{d+1}]')
        a(f'v_pk_fma_f32 v[{d}:{d+1}], v[{66+2*r}:{67+2*r}], v[52:53], v[{d}:{d+1}]')
        a(f'v_pk_mul_f32 v[{d}:{d+1}], v[{d}:{d+1}], v[{84+2*r}:{85+2*r}]')
    if P.get('skat', 0) == 2: skload()
    if P.get('wat', 2) == 2: wmload()
    tc, twm, tsk = WM['tc'], WM['twm'], SK['t']
    base(a, 12, 64, 0x200000)
    slow(1)
    stamp('kvN')
    for c in range(2):
        for jj in range(4):
            a(f'v_cvt_pk_bf16_f32 v{24+4*c+jj}, v{102+2*(7-2*jj)+c}, v{102+2*(6-2*jj)+c}')
        a(f'ds_write_b128 v120, v[{24+4*c}:{27+4*c}] offset:{128*c}')
    a('s_waitcnt lgkmcnt(0)')
    a('s_barrier')
    stamp('abar')
    for j in range(2): a(f'ds_read_b128 v[{104+4*j}:{107+4*j}], v{124+j} offset:{1024*j}')
    a('s_mov_b32 s24, s35')
    a('s_add_u32 s25, s35, 0x8000')
    ustores = [f'buffer_store_dwordx4 v[{104+4*j}:{107+4*j}], v13, s[16:19], s{24+j} offen' for j in range(2)]
    for j in range(2):
        a(f's_waitcnt lgkmcnt({1-j})')
        tus = vm.issue(ustores[j] + (' sc1' if P.get('uts', 0) else ''))
    a('s_lshl_b32 s7, s3, 7')
    a('s_lshl_b32 s36, s29, 2')
    a('s_add_u32 s7, s7, s36')
    a('v_mov_b32 v123, s100')
    stamp('utst')
    for i in range(4): a(f'v_mov_b32 v{40+i}, 0')
    a(f'v_add_u32 v14, {CB}, v14')
    a('v_cmp_gt_u32 vcc, 32, v0')
    a('s_and_saveexec_b64 s[36:37], vcc')
    a('s_cbranch_execz L_nz')
    a('ds_write_b128 v14, v[40:43]')
    a(f'ds_write_b128 v14, v[40:43] offset:{CHS}')
    a('v_cmp_gt_u32 vcc, 2, v0')
    a('s_and_b64 exec, exec, vcc')
    for c in range(2):
        a(f'ds_write_b128 v14, v[40:43] offset:{c*CHS+U0+4096}')
        a(f'ds_write_b128 v14, v[40:43] offset:{c*CHS+U1+4096}')
    a.label('L_nz')
    a('s_mov_b64 exec, s[36:37]')
    a('v_cmp_eq_u32 s[36:37], 0, v0')
    a('s_lshl_b32 s4, s34, 16')
    a('s_and_b32 s5, s34, 0xffff0000')
    a('s_mov_b32 s6, 0xffff')
    vm.need(tsk)
    stamp('skok')
    for c in range(2):
        kx = 146+4*c
        lo(a, 44, kx)
        a(f'v_add_f32 v44, s{4+c}, v44')
        a('v_cvt_pk_bf16_f32 v44, v44, v44')
        a(f'v_bfi_b32 v44, s6, v44, v{kx}')
        a(f'v_cndmask_b32 v{kx}, v{kx}, v44, s[36:37]')
        a(f'ds_write_b128 v14, v[{kx}:{kx+3}] offset:{c*CHS+KB}')
    vm.need(tus)
    vm.issue(f'buffer_store_dword v123, v21, s[52:55], s7 offen offset:{UH}')
    a('v_and_b32 v120, 31, v1')
    a('v_lshlrev_b32 v120, 2, v120')
    a('s_lshr_b32 s5, s29, 3')
    a('s_lshl_b32 s5, s5, 7')
    hloads = [f'buffer_load_dword v121, v120, s[52:55], 0 offen offset:{XID} sc1', f'buffer_load_dword v124, v120, s[52:55], s5 offen offset:{UH} sc1']
    for l in hloads: tu = vm.issue(l)
    a('v_lshrrev_b32 v4, 1, v6')
    a('v_lshlrev_b32 v4, 11, v4')
    a('v_lshl_add_u32 v4, v16, 6, v4')
    a('v_lshrrev_b32 v5, 5, v1')
    a('v_lshl_add_u32 v4, v5, 5, v4')
    a('v_bfe_u32 v5, v1, 4, 1')
    a('v_lshl_add_u32 v244, v5, 4, v4')
    a('s_lshl_b32 s35, s32, 13')
    a('s_add_u32 s34, s35, 0x1000')
    a('v_lshlrev_b32 v125, 4, v0')
    vm.need(tc)
    lo(a, 44, 144); hi(a, 45, 144, 40); lo(a, 46, 145); hi(a, 47, 145, 40)
    for r in range(4): a(f'v_mul_f32 v{48+r}, {fh(-1.4426950408889634)}, v{44+r}')
    for r in range(4): a(f'v_exp_f32 v{48+r}, v{48+r}')
    for r in range(4): a(f'v_add_f32 v{48+r}, 1.0, v{48+r}')
    for r in range(4): a(f'v_rcp_f32 v{48+r}, v{48+r}')
    for r in range(4): a(f'v_mul_f32 v{44+r}, v{44+r}, v{48+r}')
    a('v_cvt_pk_bf16_f32 v48, v44, v45')
    a('v_cvt_pk_bf16_f32 v49, v46, v47')
    lo(a, 44, 48); hi(a, 45, 48, 40); lo(a, 46, 49); hi(a, 47, 49, 40)
    def stage1():
        for r in range(4):
            vm.need(twm[r])
            unpack8(a, 52, 128+4*r, 40)
            sel = 'op_sel:[0,0,0] op_sel_hi:[1,0,1]' if r % 2 == 0 else 'op_sel:[0,1,0] op_sel_hi:[1,1,1]'
            sp = 44 + (r & 2)
            for j in range(4):
                if r == 0:
                    a(f'v_pk_mul_f32 v[{60+2*j}:{61+2*j}], v[{52+2*j}:{53+2*j}], v[{sp}:{sp+1}] op_sel:[0,0] op_sel_hi:[1,0]')
                else:
                    a(f'v_pk_fma_f32 v[{60+2*j}:{61+2*j}], v[{52+2*j}:{53+2*j}], v[{sp}:{sp+1}], v[{60+2*j}:{61+2*j}] {sel}')
        for j in range(4): a(f'v_permlane32_swap_b32 v{60+j}, v{64+j}')
        for j in range(4): a(f'v_add_f32 v{60+j}, v{60+j}, v{64+j}')
        a('s_lshr_b32 s6, s46, 2')
        a('s_lshl_b32 s6, s6, 13')
        for j in range(2): a(f'v_permlane16_swap_b32 v{60+j}, v{62+j}')
        a('s_lshl_b32 s36, s47, 7')
        for j in range(2): a(f'v_add_f32 v{100+j}, v{60+j}, v{62+j}')
        a('v_mov_b32 v102, s50')
        a('v_mov_b32 v103, s50')
        for j in range(2): a(f'v_add_f32_dpp v{100+j}, v{100+j}, v{100+j} row_ror:8 row_mask:0xf bank_mask:0xf')
        a('s_add_u32 s6, s6, s36')
        a(f's_add_u32 s6, s6, {hex(MP)}')
        a('s_cmp_lt_u32 s29, 24')
        a(f's_cselect_b32 s6, s6, {hex(TS)}')
    if P.get('s1at', 1) == 0: stage1()
    a('s_lshr_b32 s36, s3, 1')
    a(f's_mul_i32 s36, s36, {CHS}')
    a('s_xor_b32 s38, s39, 1')
    a('s_lshl_b32 s38, s38, 6')
    a('s_add_u32 s36, s36, s38')
    a(f's_add_u32 s36, s36, {CB}')
    a('v_and_b32 v3, 15, v0')
    a('v_bfe_u32 v4, v0, 4, 2')
    a('v_lshlrev_b32 v5, 4, v4')
    a('v_lshl_add_u32 v22, v3, 5, v5')
    a(f's_add_u32 s38, s36, {KB-480}')
    a('v_add_u32 v22, s38, v22')
    a('v_and_b32 v23, 14, v3')
    a('v_lshlrev_b32 v23, 1, v23')
    a('v_sub_u32 v23, v5, v23')
    a(f'v_mul_u32_u24 v5, {U1-U0}, v16')
    a('v_sub_u32 v23, v23, v5')
    a(f's_add_u32 s38, s36, {U1+28}')
    a('v_add_u32 v16, s38, v23')
    for i in range(1, 4): a(f'v_add_u32 v{16+i}, {1024*i}, v16')
    a('v_bfe_u32 v5, v3, 1, 2')
    a('v_xor_b32 v5, v5, v4')
    a('v_lshl_add_u32 v5, v3, 2, v5')
    a('s_lshl_b32 s38, s3, 13')
    a(f's_add_u32 s38, s38, {PB}')
    a('v_lshl_add_u32 v23, v5, 4, s38')
    KP = P.get('kp', 1)
    if KP:
        a('s_waitcnt lgkmcnt(0)')
        a('s_barrier')
        for j in range(4, 32): a(f'ds_read_b128 v[{104+4*j}:{107+4*j}], v22 offset:{128*j}') if not 120 <= 104+4*j < 156 else None
    a(f's_mov_b32 s51, {SPIN}')
    a('s_mov_b32 s101, 0')
    vm.need(tu)
    stamp('ut1st')
    a('s_branch L_uh_chk')
    a.label('L_uh')
    for l in hloads: a(l)
    a('s_waitcnt vmcnt(0)')
    a.label('L_uh_chk')
    a('v_subrev_u32 v122, s50, v121')
    a('v_subrev_u32 v122, 1, v122')
    a('v_cmp_lt_u32 vcc, 15, v122')
    a('v_cmp_ne_u32 s[92:93], s100, v121')
    a('s_sub_u32 s51, s51, 1')
    a('s_cbranch_scc1 L_uh_ok')
    a('s_cbranch_vccnz L_uh')
    a('s_cmp_eq_u64 s[92:93], 0')
    a('s_cbranch_scc1 L_uh_same')
    a('s_cmp_lg_u32 s101, 0')
    a('s_cbranch_scc1 L_uh_same')
    a('s_mov_b32 s101, 1')
    for l in ustores: a(l + ' sc1')
    a('s_waitcnt vmcnt(0)')
    a(f'buffer_store_dword v20, v21, s[52:55], s7 offen offset:{UH} sc1')
    a.label('L_uh_same')
    a('v_cmp_ne_u32 vcc, s50, v124')
    a('v_cmp_ne_u32 s[92:93], s100, v124')
    a('s_nop 0')
    a('s_and_b64 vcc, vcc, s[92:93]')
    a('s_cbranch_vccnz L_uh')
    a.label('L_uh_ok')
    raw(6, 's51')
    stamp('uhok')
    tu = []
    for c in range(2):
        vm.issue(f'buffer_load_dwordx4 v[{72+4*c}:{75+4*c}], v125, s[16:19], s{35-c} offen sc1')
        tu.append(vm.issue(f'buffer_load_dword v{80+c}, v125, s[16:19], s{35-c} offen offset:16 sc1'))
    if P.get('s1at', 1) == 1: stage1()
    lstore(['buffer_store_dwordx4 v[100:103], v244, s[16:19], s6 offen'])
    if KP:
        for j in list(range(4)) + list(range(4, 13)): a(f'ds_read_b128 v[{104+4*j}:{107+4*j}], v22 offset:{128*j}')
    if P.get('xat', 1) == 1: tx = xload()
    CP = {}
    if RL:
        a('s_mul_i32 s44, s2, 7')
        a('s_lshl_b32 s45, s3, 1')
        a('s_add_u32 s44, s44, s45')
        a('s_cmp_eq_u32 s3, 3')
        a('s_cselect_b32 s45, 0, 1')
        a('s_add_u32 s45, s45, s44')
        for r in range(2):
            a(f's_lshl_b32 s36, s{44+r}, 10')
            CP['l'] = vm.issue(f'buffer_load_dwordx4 v[{32+4*r}:{35+4*r}], v15, s[8:11], s36 offen' + NT)
    def wdcopy():
        a('v_lshrrev_b32 v4, 3, v1')
        a(f'v_mul_u32_u24 v4, {1792*128}, v4')
        a('v_lshl_add_u32 v4, v6, 4, v4')
        vm.need(CP['l'])
        for r in range(2):
            a(f's_lshl_b32 s36, s{44+r}, 7')
            a(f's_add_u32 s36, s36, {hex(WD2)}')
            CP['s'] = vm.issue(f'buffer_store_dwordx4 v[{32+4*r}:{35+4*r}], v4, s[16:19], s36 offen sc1')
    a('s_movk_i32 s36, 0xff')
    a('v_cmp_ne_u32 vcc, s36, v0')
    for c in range(2):
        u = 72+4*c
        vm.need(tu[c])
        if c == 0: stamp('utok')
        a(f'v_cndmask_b32 v{80+c}, 0, v{80+c}, vcc')
        a(f'ds_write_b128 v14, v[{u}:{u+3}] offset:{c*CHS+U0}')
        for j in range(3): a(f'v_alignbit_b32 v{40+4*c+j}, v{u+j+1}, v{u+j}, 16')
        a(f'v_alignbit_b32 v{43+4*c}, v{80+c}, v{u+3}, 16')
        a(f'ds_write_b128 v14, v[{40+4*c}:{43+4*c}] offset:{c*CHS+U1}')
    for _ in range(P.get('e0b', 6)): early.popleft()()
    a('s_waitcnt lgkmcnt(0)')
    a('s_barrier')
    stamp('bbar')
    a('s_lshl_b32 s6, s46, 11')
    a(f's_add_u32 s6, s6, {hex(MP)}')
    a('s_cmp_lt_u32 s29, 24')
    a(f's_cselect_b32 s7, s3, 1')
    ploads = [f'buffer_load_dwordx4 v[{240+4*j}:{243+4*j}], v15, s[16:19], s6 offen offset:{1024*j} sc1' for j in range(2)]
    tmi = []
    def mod_issue():
        a('s_cmp_lg_u32 s7, 0')
        a('s_cbranch_scc1 L_nomi')
        for l in ploads: a(l)
        a.label('L_nomi')
        tmi.append(vm.issued)
    def mod_final():
        a('s_cmp_lg_u32 s7, 0')
        a('s_cbranch_scc1 L_nomod')
        done = vm.done
        a(f's_waitcnt vmcnt({vm.issued - tmi[0]})')
        poll('mp', ploads, [242, 246], pre=0)
        vm.done = done
        a('v_pk_add_f32 v[240:241], v[240:241], v[244:245]')
        a('s_lshr_b32 s36, s46, 5')
        a('s_cmp_eq_u32 s36, 1')
        for j in range(2): a(f'v_add_f32_dpp v{240+j}, v{240+j}, v{240+j} row_ror:8 row_mask:0xf bank_mask:0xf')
        a('s_cselect_b32 s38, 1.0, 0')
        a('s_cmp_eq_u32 s36, 4')
        for op in ('v_permlane16_swap_b32', 'v_permlane32_swap_b32'):
            for j in range(2): a(f'v_mov_b32 v{242+j}, v{240+j}')
            for j in range(2): a(f'{op} v{240+j}, v{242+j}')
            a('v_pk_add_f32 v[240:241], v[240:241], v[242:243]')
        a('s_cselect_b32 s38, 1.0, s38')
        a('s_lshl_b32 s36, s46, 6')
        a('v_cvt_pk_bf16_f32 v242, v240, v241')
        a(f's_add_u32 s36, s36, {hex(MODT)}')
        lo(a, 240, 242); hi(a, 241, 242, 40)
        for j in range(2): a(f'v_add_f32 v{240+j}, s38, v{240+j}')
        a('v_cvt_pk_bf16_f32 v244, v240, v241')
        a('v_mov_b32 v246, s50')
        a('v_mov_b32 v247, s50')
        a('v_mov_b32_dpp v245, v244 quad_perm:[1,1,3,3] row_mask:0xf bank_mask:0xf')
        a('v_lshlrev_b32 v240, 3, v1')
        a('s_mov_b64 exec, 0x55')
        a('buffer_store_dwordx4 v[244:247], v240, s[16:19], s36 offen sc1')
        a('s_mov_b64 exec, -1')
        a.label('L_nomod')
    ACC, AR, BR = 40, 72, 104
    pipe = LdsPipe(a)
    reads = []
    for i in range(32):
        o = 32*((31-i) & 7); b = 16 + ((31-i) >> 3); d = AR + 4*(i & 7)
        reads.append((('A', i, 0), f'ds_read2_b32 v[{d}:{d+1}], v{b} offset0:{o} offset1:{o+1}'))
        reads.append((('A', i, 1), f'ds_read2_b32 v[{d+2}:{d+3}], v{b} offset0:{o+2} offset1:{o+3}'))
        if i < 4 and not KP:
            for t in range(8):
                j = 4*t+3-i
                reads.append((('B', j), f'ds_read_b128 v[{BR+4*j}:{BR+4*j+3}], v22 offset:{128*j}'))
    tok = {('B', j): 0 for j in range(32)} if KP else {}; nxt = [0]
    def pump(cur_step, maxn):
        n = 0
        while n < maxn and nxt[0] < len(reads) and pipe.outstanding() < 13:
            key, line = reads[nxt[0]]
            if key[0] == 'A' and key[1] >= cur_step + 8: break
            tok[key] = pipe.issue(line); nxt[0] += 1; n += 1
    pump(0, 12)
    slow(2)
    MAT = P.get('mat', 0)
    pending = []; nm = 0
    NB = P.get('e1', 9); EV = P.get('ev', 10)
    for i in range(32):
        for t in range(i >> 2, 8):
            j = 4*t+3-i
            while ('B', j) not in tok or ('A', i, 1) not in tok:
                pipe.need(pipe.done + 2); pump(i, 2)
            pipe.need(max(tok[('A', i, 1)], tok[('B', j)]))
            d = ACC+4*t; c = '0' if i == 0 else f'v[{d}:{d+3}]'
            s = AR+4*(i & 7)
            a(f'v_mfma_f32_16x16x32_bf16 v[{d}:{d+3}], v[{s}:{s+3}], v[{BR+4*j}:{BR+4*j+3}], {c}')
            pump(i, 2 if i < 4 else 1)
            nm += 1
            if nm >= P.get('e1s', 40) and nm % EV == 0 and NB > 0 and early:
                early.popleft()(); NB -= 1
        if pending and pipe.outstanding() < 14:
            t = pending.pop()
            pipe.issue(f'ds_write_b128 v23, v[{ACC+4*t}:{ACC+4*t+3}] offset:{1024*t}')
        if (i & 3) == 3: pending.append(i >> 2)
        if RL and i == P.get('cpa', 10): wdcopy()
        if i == P.get('mpi', 2) and not MAT: mod_issue()
        if i == P.get('mfin', 7) and not MAT: mod_final(); raw(7, 's51')
    for t in pending:
        pipe.issue(f'ds_write_b128 v23, v[{ACC+4*t}:{ACC+4*t+3}] offset:{1024*t}')
    stamp('bend')
    a('v_lshlrev_b32 v4, 3, v0')
    a(f'v_add_u32 v4, {PRM}, v4')
    a('v_lshrrev_b32 v2, 1, v0')
    a('v_bfe_u32 v3, v0, 4, 2')
    a('v_xor_b32 v2, v2, v3')
    a('v_lshlrev_b32 v2, 4, v2')
    a('v_and_b32 v3, 1, v0')
    a('v_lshl_add_u32 v2, v3, 3, v2')
    a(f'v_add_u32 v2, {PB}, v2')
    a('v_lshlrev_b32 v3, 4, v0')
    a('v_and_b32 v5, 3, v0')
    a(f's_mul_i32 s38, s32, {YP}')
    a(f's_add_u32 s38, s38, {hex(YT)}')
    a(f'v_add_u32 v13, {PRM}, v15')
    a('s_and_b32 s36, s32, 7')
    a('s_lshl_b32 s36, s36, 1')
    a('s_and_b32 s37, s3, 1')
    a('s_or_b32 s36, s36, s37')
    a('s_lshl_b32 s36, s36, 6')
    a(f's_add_u32 s36, s36, {PRM+5120}')
    a('v_lshrrev_b32 v14, 5, v1')
    a('v_lshl_add_u32 v14, v14, 4, s36')
    if RL: vm.need(CP['s'])
    a('s_waitcnt lgkmcnt(0)')
    a('s_barrier')
    stamp('pbar')
    for j in range(4):
        for w in range(4):
            a(f'ds_read_b64 v[{72+8*j+2*w}:{73+8*j+2*w}], v2 offset:{8192*w+2048*j}')
        if j == 2: a('s_waitcnt lgkmcnt(8)')
    if MAT: mod_issue()
    for j in range(4):
        b = 72+8*j; q = 24+4*j
        if j: a(f's_waitcnt lgkmcnt({12-4*j})')
        a(f'v_pk_add_f32 v[{b}:{b+1}], v[{b}:{b+1}], v[{b+2}:{b+3}]')
        a(f'v_pk_add_f32 v[{b+4}:{b+5}], v[{b+4}:{b+5}], v[{b+6}:{b+7}]')
        a(f'v_mov_b32 v{q+2}, s50')
        a(f'v_mov_b32 v{q+3}, s50')
        a(f'v_cvt_pk_bf16_f32 v{q}, v{b}, v{b+4}')
        a(f'v_cvt_pk_bf16_f32 v{q+1}, v{b+1}, v{b+5}')
        tys = vm.issue(f'buffer_store_dwordx4 v[{q}:{q+3}], v3, s[16:19], s38 offen sc1')
        if j < 3: a('s_add_u32 s38, s38, 0x1000')
    stamp('ytst')
    a('v_mov_b32 v22, v4')
    a('v_mov_b32 v23, v14')
    a('v_mov_b32 v60, v5')
    slow(3)
    a('v_mov_b32 v5, v60')
    if MAT: mod_final(); raw(7, 's51')
    if MAT == 2: a('s_barrier')
    for _ in range(P.get('e2', 6)): early.popleft()()
    a('s_lshl_b32 s35, s3, 10')
    a(f's_add_u32 s35, s35, {hex(MODT)}')
    a('s_add_u32 s34, s35, 0x1000')
    a('s_add_u32 s4, s35, 0x2000')
    mloads = [f'buffer_load_dwordx4 v[{104+4*r}:{107+4*r}], v15, s[16:19], s{(35, 34, 4)[r]} offen sc1' for r in range(3)]
    a('v_lshrrev_b32 v4, 2, v0')
    a(f'v_mul_u32_u24 v3, {2*YS}, v5')
    a('v_lshl_add_u32 v3, v4, 2, v3')
    a(f'v_add_u32 v3, {XG}, v3')
    a(f's_mul_i32 s46, s3, {2*YS}')
    a(f's_add_u32 s46, s46, {XG}')
    a('v_add_u32 v4, s46, v15')
    a('s_lshl_b32 s46, s3, 1')
    a('v_xor_b32 v5, s46, v6')
    a('v_lshlrev_b32 v5, 4, v5')
    a('v_lshl_add_u32 v5, v1, 7, v5')
    a(f'v_add_u32 v5, {XH}, v5')
    a('v_xor_b32 v16, 16, v5')
    a('v_lshrrev_b32 v17, 3, v1')
    a('v_xor_b32 v18, v17, v6')
    a('v_lshlrev_b32 v18, 4, v18')
    a('v_lshl_add_u32 v18, v17, 7, v18')
    a('s_lshl_b32 s46, s3, 11')
    a(f's_add_u32 s46, s46, {XH}')
    a('v_add_u32 v18, s46, v18')
    a('v_lshlrev_b32 v17, 9, v17')
    a('v_lshl_add_u32 v17, v6, 4, v17')
    a('s_lshr_b32 s46, s32, 2')
    a('s_lshl_b32 s46, s46, 15')
    a('s_and_b32 s47, s32, 3')
    a('s_lshl_b32 s47, s47, 7')
    a('s_add_u32 s46, s46, s47')
    a('s_lshl_b32 s47, s3, 13')
    a('s_add_u32 s46, s46, s47')
    a(f's_add_u32 s46, s46, {hex(H2)}')
    a('s_add_u32 s47, s46, 0x1000')
    a(f's_add_u32 s37, s33, {hex(X1)}')
    a('v_lshrrev_b32 v14, 2, v0')
    a(f'v_mul_u32_u24 v14, {YP}, v14')
    a('v_and_b32 v19, 3, v0')
    a('v_lshl_add_u32 v14, v19, 4, v14')
    a('s_lshl_b32 s24, s32, 6')
    a(f's_add_u32 s26, s24, {hex(YT)}')
    a(f's_add_u32 s27, s26, {64*YP}')
    a(f's_add_u32 s5, s26, {128*YP}')
    a(f's_add_u32 s6, s26, {192*YP}')
    X = (64, 160)
    vm.need(tx)
    subs = []
    for t in range(2):
        s = Asm(); unpack8(s, X[t], 232+4*t, 40); ln2p(s, X[t], X[t]+8, X[t]+16, 24+t)
        subs.append(s)
    zipl(a, *subs)
    stamp('ln1')
    yloads = [f'buffer_load_dwordx4 v[{24+4*j}:{27+4*j}], v14, s[16:19], s{(26, 27, 5, 6)[j]} offen sc1' for j in range(4)]
    vm.need(tys)
    stamp('ytack')
    for l in yloads: ty = vm.issue(l)
    for l in mloads: tm = vm.issue(l)
    poll('yt', yloads, [26, 30, 34, 38], pre=ty)
    stamp('ytok'); raw(2, 's51')
    for j in range(4):
        a(f'ds_write_b32 v3, v{24+4*j} offset:{256*j}')
        a(f'ds_write_b32 v3, v{25+4*j} offset:{256*j+YS}')
    poll('md', mloads, [106, 110, 114], pre=tm)
    stamp('mdok'); raw(1, 's51')
    for r in range(3): a(f'ds_write_b64 v22, v[{104+4*r}:{105+4*r}] offset:{2048*r}')
    a('s_waitcnt lgkmcnt(0)')
    a('s_barrier')
    stamp('ybar')
    ptok = {}
    def p2dma(k):
        a(f's_add_u32 m0, s49, {SEG[0][1] + 2048*(k % 15)}')
        if k and k % 4: a(f's_add_u32 s48, s48, {16*3584}')
        elif k: step('s48', 16*3584, 's100', 512*3584)
        ptok[k] = vm.issue('buffer_load_dwordx4 v7, s[20:23], s48 offen lds')
    a(f's_add_u32 s100, s48, {512*3584}')
    a(f's_mul_i32 s36, s98, {64*3584}')
    a('s_add_u32 s48, s48, s36')
    for _ in range(P.get('e3', 3)): early.popleft()()
    NSY = P.get('nsy', 0)
    for k in range(NSY): p2dma(k)
    for i, off in enumerate((1024, 0, 2048)):
        a(f'ds_read_b128 v[{40+4*i}:{43+4*i}], v13 offset:{off}')
    a('ds_read_b128 v[24:27], v4')
    a(f'ds_read_b128 v[28:31], v4 offset:{YS}')
    for i, off in enumerate((4096, 3072)):
        a(f'ds_read_b128 v[{52+4*i}:{55+4*i}], v13 offset:{off}')
    a('ds_read_b128 v[124:127], v23')
    a('ds_read_b128 v[116:119], v23 offset:32')
    a('s_waitcnt lgkmcnt(7)')
    unpack8(a, 128, 40, 40); unpack8(a, 136, 44, 40)
    for t in range(2):
        for p in range(4):
            d = X[t]+8+2*p
            a(f'v_pk_fma_f32 v[{d}:{d+1}], v[{d}:{d+1}], v[{128+2*p}:{129+2*p}], v[{136+2*p}:{137+2*p}]')
    a('s_waitcnt lgkmcnt(6)')
    unpack8(a, 144, 48, 40)
    for t in range(2):
        for p in range(4):
            d = X[t]+8+2*p
            a(f'v_pk_mul_f32 v[{d}:{d+1}], v[{d}:{d+1}], v[{144+2*p}:{145+2*p}]')
    a('s_waitcnt lgkmcnt(0)')
    unpack8(a, 128, 52, 40); unpack8(a, 136, 56, 40)
    subs = []
    for t in range(2):
        s = Asm(); x = X[t]
        unpack8(s, x+20, 24+4*t, 40)
        for p in range(4):
            s(f'v_pk_fma_f32 v[{x+2*p}:{x+2*p+1}], v[{x+8+2*p}:{x+9+2*p}], v[{x+20+2*p}:{x+21+2*p}], v[{x+2*p}:{x+2*p+1}]')
        for j in range(4): s(f'v_cvt_pk_bf16_f32 v{32+4*t+j}, v{x+2*j}, v{x+2*j+1}')
        s(f'buffer_store_dwordx4 v[{32+4*t}:{35+4*t}], v15, s[16:19], s37 offen offset:{1024*t} sc1')
        unpack8(s, x, 32+4*t, 40)
        (ln1p if P.get('l1', 1) else ln2p)(s, x, x+8, x+16, 24+2*t)
        for p in range(4):
            s(f'v_pk_fma_f32 v[{x+8+2*p}:{x+9+2*p}], v[{x+8+2*p}:{x+9+2*p}], v[{128+2*p}:{129+2*p}], v[{136+2*p}:{137+2*p}]')
        for j in range(4): s(f'v_cvt_pk_bf16_f32 v{40+4*t+j}, v{x+8+2*j}, v{x+9+2*j}')
        s(f'ds_write_b128 v{(5, 16)[t]}, v[{40+4*t}:{43+4*t}]')
        subs.append(s)
    zipl(a, *subs)
    vm.issued += 2
    a('s_waitcnt lgkmcnt(0)')
    a('s_barrier')
    stamp('hbar')
    a('ds_read_b128 v[24:27], v18')
    a('ds_read_b128 v[28:31], v18 offset:1024')
    a('s_and_b32 s24, s32, 31')
    a('s_lshl_b32 s24, s24, 4')
    a('s_lshl_b32 s25, s3, 2')
    a('s_add_u32 s33, s24, s25')
    a('s_and_b32 s25, s30, 1')
    a('s_lshl_b32 s25, s25, 8')
    a('s_lshl_b32 s26, s3, 6')
    a('s_add_u32 s25, s25, s26')
    a('v_and_b32 v19, 15, v1')
    a('v_lshlrev_b32 v19, 2, v19')
    if M2:
        a('s_lshl_b32 s25, s3, 2')
        a('s_lshl_b32 s24, s32, 7')
        a('s_add_u32 s24, s24, s25')
        a(f's_add_u32 s24, s24, {hex(FL1)}')
        a('s_lshl_b32 s33, s30, 4')
        a('s_or_b32 s33, s33, s31')
        a('s_lshl_b32 s33, s33, 7')
        a('s_add_u32 s33, s33, s25')
        a(f's_add_u32 s33, s33, {hex(FL2)}')
        a('s_lshl_b32 s26, s30, 4')
        a('s_add_u32 s26, s26, s25')
        a('s_lshl_b32 s26, s26, 7')
        a(f's_add_u32 s97, s26, {hex(FL1)}')
        a('s_lshr_b32 s26, s32, 4')
        a('s_lshl_b32 s26, s26, 4')
        a('s_add_u32 s26, s26, s25')
        a('s_lshl_b32 s26, s26, 7')
        a(f's_add_u32 s25, s26, {hex(FL2)}')
        a('v_bfe_u32 v19, v1, 2, 2')
        a('v_and_b32 v22, 3, v1')
        a('v_lshlrev_b32 v22, 2, v22')
        a('v_lshl_add_u32 v19, v19, 7, v22')
    def flag(F):
        if not M2: return lstore([f'buffer_store_dword v20, v21, s[52:55], s33 offen offset:{F}'])
        if F == F3: a(f's_add_u32 s33, s33, {FL3-FL2}')
        return vm.issue(f'buffer_store_dword v20, v21, s[16:19], {"s24" if F == F1 else "s33"} offen sc1')
    def look(F):
        if not M2: return [f'buffer_load_dword v22, v{19 if F == F1 else 13}, s[52:55], s25 offen offset:{F} sc1']
        return [f'buffer_load_dword v22, v{19 if F == F1 else 13}, s[16:19], {"s97" if F == F1 else "s25"} offen sc1']
    a('s_waitcnt lgkmcnt(0)')
    lstore(['buffer_store_dwordx4 v[24:27], v17, s[16:19], s46 offen', 'buffer_store_dwordx4 v[28:31], v17, s[16:19], s47 offen'], P.get('h2s', M2))
    stamp('h2st')
    a('v_bfe_u32 v4, v1, 4, 1')
    a('v_lshrrev_b32 v5, 5, v1')
    a('v_bfe_u32 v22, v1, 2, 2')
    a('v_and_b32 v23, 3, v1')
    a('v_lshlrev_b32 v23, 3, v23')
    a('v_lshl_add_u32 v3, v5, 3, v22')
    a('v_bfe_u32 v13, v1, 3, 1')
    a('v_lshlrev_b32 v16, 7, v3')
    a('v_add_u32 v16, v16, v23')
    a('v_lshl_add_u32 v16, v13, 6, v16')
    a('v_lshl_add_u32 v16, v4, 5, v16')
    a(f'v_mul_u32_u24 v17, {SEG[0][2]-SEG[0][1]}, v4')
    a(f'v_add_u32 v17, {SEG[0][1]}, v17')
    a(f'v_mul_u32_u24 v18, {P1U}, v4')
    for ct in range(4):
        a(f'v_xor_b32 v14, {32*ct}, v16')
        a(f'v_add_u32 v{246+ct}, v14, v17')
    a('v_mul_u32_u24 v3, 0x60, v3')
    a('v_add_u32 v3, v3, v23')
    a('v_add_u32 v18, v18, v3')
    a('v_lshl_add_u32 v3, v5, 2, v22')
    a('v_lshlrev_b32 v3, 7, v3')
    a('v_lshl_add_u32 v3, v13, 6, v3')
    a('v_lshl_add_u32 v3, v4, 5, v3')
    a('v_add_u32 v3, v3, v23')
    a('s_lshl_b32 s26, s3, 11')
    a('s_and_b32 s27, s3, 1')
    a('s_lshl_b32 s27, s27, 6')
    a('v_xor_b32 v3, s27, v3')
    a('v_add_u32 v240, s26, v3')
    a('v_xor_b32 v241, 64, v240')
    for i in range(1, 3):
        a(f'v_add_u32 v{240+2*i}, {65536*i}, v240')
        a(f'v_add_u32 v{241+2*i}, {65536*i}, v241')
    a(f's_mov_b32 s44, {fh(GC2)}'); a(f's_mov_b32 s45, {fh(GC2)}')
    a(f'v_mov_b32 v2, {fh(GC1)}'); a(f'v_mov_b32 v3, {fh(GC1)}')
    a('s_lshl_b32 s27, s30, 2')
    a('s_add_u32 s27, s27, s3')
    a('s_lshl_b32 s28, s27, 15')
    a(f's_add_u32 s28, s28, {hex(H2)}')
    a('v_add_u32 v14, s28, v15')
    a('s_lshl_b32 s28, s98, 12')
    a('s_waitcnt vmcnt(0)'); vm.done = vm.issued
    stamp('h2dr')
    flag(F1)
    while early: early.popleft()()
    NS0 = P.get('ns0', 0) + NSY
    for k in range(NSY, NS0): p2dma(k)
    a('s_mul_i32 s29, s27, 112')
    AP = 1024 if M2 else YP
    if M2:
        a('s_lshl_b32 s47, s31, 2')
        a('s_add_u32 s47, s47, s29')
        a('s_lshl_b32 s47, s47, 10')
        a(f's_add_u32 s47, s47, {hex(ACT)}')
    else:
        a('s_lshl_b32 s47, s3, 4')
        a('s_add_u32 s47, s47, s31')
        a(f's_mul_i32 s47, s47, {4*YP}')
        a('s_lshl_b32 s4, s30, 10')
        a(f's_add_u32 s4, s4, {hex(YT)}')
        a('s_add_u32 s47, s47, s4')
    a('s_mul_i32 s46, s31, 3')
    a('s_add_u32 s46, s46, s29')
    a('s_lshl_b32 s46, s46, 10')
    a(f's_add_u32 s46, s46, {hex(ACT + 64*1024)}')
    a('s_lshr_b32 s39, s32, 3')
    a('s_and_b32 s35, s39, 1')
    a(f's_and_b32 s34, s39, {P.get("wrot", 0)}')
    a('s_and_b32 s24, s32, 7')
    a('s_lshl_b32 s24, s24, 7')
    if RL:
        a(f's_add_u32 s8, s58, {hex(WD2)}')
        a('s_addc_u32 s9, s59, 0')
        a('s_mul_i32 s24, s24, 1792')
    a(f's_mul_i32 s37, s3, {12*WS_}')
    a('s_add_u32 s37, s37, s24')
    a(f's_add_u32 s30, s37, {76*WS_}')
    a(f's_mul_i32 s36, s34, {3*WS_}')
    a('s_add_u32 s37, s37, s36')
    a(f's_add_u32 s37, s37, {64*WS_}')
    a(f's_mul_i32 s38, s3, {16*WS_}')
    a('s_add_u32 s38, s38, s24')
    a(f's_add_u32 s31, s38, {16*WS_}')
    a(f's_mul_i32 s36, s34, {4*WS_}')
    a('s_add_u32 s38, s38, s36')
    if M2:
        a(f's_mul_i32 s4, s39, {224*1024}')
        a('s_lshl_b32 s6, s3, 14')
        a('s_add_u32 s6, s6, s4')
        a(f's_add_u32 s6, s6, {hex(ACT)}')
    else:
        a('s_lshl_b32 s6, s35, 3')
        a('s_add_u32 s6, s6, s3')
        a(f's_mul_i32 s6, s6, {16*YP}')
        a('s_add_u32 s6, s6, s4')
    a(f's_add_u32 s42, s6, {16*AP}')
    a(f's_mul_i32 s36, s34, {4*AP}')
    a('s_add_u32 s6, s6, s36')
    a(f's_mul_i32 s4, s39, {224*1024}')
    a(f's_mul_i32 s5, s3, {12*1024}')
    a('s_add_u32 s5, s5, s4')
    a(f's_add_u32 s5, s5, {hex(ACT + 64*1024)}')
    a(f's_add_u32 s41, s5, {12*1024}')
    a(f's_mul_i32 s36, s34, {3*1024}')
    a('s_add_u32 s5, s5, s36')
    a('s_lshl_b32 s39, s39, 16')
    a('s_and_b32 s24, s32, 7')
    a('s_lshl_b32 s24, s24, 7')
    a('s_add_u32 s39, s39, s24')
    a('v_bfe_u32 v4, v1, 1, 2')
    a('v_and_b32 v5, 1, v1')
    a('v_lshlrev_b32 v5, 2, v5')
    a(f'v_lshl_add_u32 v4, v4, {7 if M2 else 4}, v5')
    a('s_lshl_b32 s35, s35, 3')
    a('v_add_u32 v13, s35, v4')
    a('s_cmp_ge_u32 s3, 2')
    for r, (reg0, reg1, dist) in enumerate(((250, 16, 112*1024), (251, 17, 112*1024 if M2 else 64*YP))):
        a(f's_cselect_b32 s36, {dist}, 0')
        a(f'v_add_u32 v{reg0}, s36, v15')
        a(f's_cselect_b32 s36, 0, {dist}')
        a(f'v_add_u32 v{reg1}, s36, v15')
    a('v_lshlrev_b32 v73, 7, v1')
    a('s_lshl_b32 s34, s2, 2')
    a('s_add_u32 s34, s34, s3')
    a(f's_mul_i32 s34, s34, {14*128}')
    poll('f1', look(F1), [22])
    stamp('f1ok'); raw(3, 's51')
    htok = {}
    def h2load(ks):
        htok[ks] = vm.issue(f'buffer_load_dwordx4 a[{4*ks}:{4*ks+3}], v14, s[16:19], s28 offen offset:{1024*(ks&3)} sc1')
        if (ks & 3) == 3:
            a('s_add_u32 s28, s28, 0x1000'); a('s_and_b32 s28, s28, 0x7fff')
    NH0 = P.get('nh0', 8)
    for ks in range(NH0): h2load(ks)
    slow(4)
    a('s_barrier')
    stamp('b0')
    wtok, atok = {}, {}
    def wd0(i):
        so = 's37' if i < 12 else 's38'
        a(f's_add_u32 m0, s26, {8192*WBL[i]}')
        if i not in (0, 12): a(f's_add_u32 {so}, {so}, {WS_}')
        vm.issue(f'buffer_load_dwordx4 v8, s[8:11], {so} offen lds')
    def wd1(i):
        wtok[i] = vm.issue(f'buffer_load_dwordx4 v9, s[8:11], {"s37" if i < 12 else "s38"} offen offset:1024 lds')
    def wreg(i): return ('v', 72 + 8*i) if i < 5 else ('a', 224 + 8*(i-5)) if i < 8 else ('v', AR + 8*(i % 3))
    def wread(i, mt, jj):
        kind, d = wreg(i); ad = 8192*WBL[i]
        return f'ds_read_b64_tr_b16 {kind}[{d+4*mt+2*jj}:{d+4*mt+2*jj+1}], v{240+2*(ad>>16)+mt} offset:{(ad & 0xffff)+1024*jj}'
    def abase(i): return 128 + 8*i if i < 12 else 8*(i-12)
    def act0(i):
        b = abase(i)
        if i < 12:
            if i and i % 4 == 0: a('s_add_u32 s5, s5, 0x1000')
            vm.issue(f'buffer_load_dwordx4 a[{b}:{b+3}], v250, s[16:19], s5 offen offset:{1024*(i & 3)} sc1')
        else:
            if i > 12: a(f's_add_u32 s6, s6, {AP}')
            vm.issue(f'buffer_load_dwordx4 a[{b}:{b+3}], v251, s[16:19], s6 offen sc1')
    def act1(i):
        b = abase(i)
        if i < 12: atok[i] = vm.issue(f'buffer_load_dwordx4 a[{b+4}:{b+7}], v16, s[16:19], s5 offen offset:{1024*(i & 3)} sc1')
        else: atok[i] = vm.issue(f'buffer_load_dwordx4 a[{b+4}:{b+7}], v17, s[16:19], s6 offen sc1')
    valu = deque()
    AR, NA = 24, 6
    ACC1, ACC2 = 192, 128
    pipe = LdsPipe(a)
    steps = [(0, k, ct) for k in range(32) for ct in range(2)] + [(0, k, 2) for k in range(32)] + [(1, k, ct) for k in range(32) for ct in range(4)]
    tok = {}; nxt = [0]
    def rd(n):
        ps, k, ct = steps[n]; d = AR + 4*(n % NA)
        for jj in range(2):
            b, off = (18, (16*k + 4*jj)*96 + 32*ct) if ps == 0 else (246+ct, 2048*(k % 15) + 512*jj)
            tok[n] = pipe.issue(f'ds_read_b64_tr_b16 v[{d+2*jj}:{d+2*jj+1}], v{b} offset:{off}')
    for n in range(NA-1): rd(n)
    nxt[0] = NA-1
    J = dict(h=NH0, p=NS0, w=0, half=False, a=0, ahalf=False, pmax=15, wmax=0, f2=False, lastp=-99)
    stg = {}
    def wfree(i): return i < J['wmax'] and (not 12 <= i < 20 or stg.get(i - 12, 1 << 30) <= pipe.done)
    def job(n):
        if J['half']: J['half'] = False; wd1(J['w']); J['w'] += 1; return 1
        if J['h'] < 32: h2load(J['h']); J['h'] += 1; return 1
        if J['p'] < J['pmax'] and n - J['lastp'] >= PE: p2dma(J['p']); J['p'] += 1; J['lastp'] = n; return 3
        if J['ahalf']: J['ahalf'] = False; act1(J['a']); J['a'] += 1; return 1
        if J['f2'] and J['a'] < 12 and (J['a'] <= J['w'] - P.get('wa', 8) or not wfree(J['w']) or J['w'] >= 28):
            act0(J['a']); J['ahalf'] = True; return 1
        if J['w'] < 28 and wfree(J['w']) and n >= P.get('ws', 112): wd0(J['w']); J['half'] = True; return 3
        return 0
    VB = P.get('vb', 30); PE = P.get('pe', 4); TE = P.get('te', 20); LW = P.get('lw', 2)
    stok = {}; sg = 0; credit = 0; nb = 0; ta = 0; fload = look(F2); tp = None
    F2P, F2C = P.get('f2p', 196), P.get('f2c', 204)
    def gelu_step(x, n):
        if isinstance(x, tuple):
            stok[x[1]] = vm.issue(f'buffer_store_dwordx4 v[{x[2]}:{x[2]+3}], v15, s[16:19], s46 offen offset:{1024*x[1]} sc1')
            stok['at'] = n
        else: a(x)
    for n, (ps, k, ct) in enumerate(steps):
        if n < 64 and ct == 0:
            while k not in htok: job(n)
            vm.need(htok[k])
        if tok[n] > pipe.done: pipe.need(tok[min(n + LW - 1, len(steps) - 1)])
        d = (ACC1, ACC2)[ps] + 16*ct; c = '0' if k == 0 else f'v[{d}:{d+15}]'
        sa = AR + 4*(n % NA)
        a(f'v_mfma_f32_32x32x16_bf16 v[{d}:{d+15}], v[{sa}:{sa+3}], a[{4*k}:{4*k+3}], {c}')
        if nxt[0] < len(steps): rd(nxt[0]); nxt[0] += 1
        credit = min(credit + VB, P.get('cap', 40))
        if n in BARS:
            land, J['pmax'], J['wmax'] = BARS[n][0], J['pmax'], J['wmax']
            if land is not None:
                while land not in ptok:
                    if J['half']: job(n)
                    p2dma(J['p']); J['p'] += 1
                vm.need(ptok[land])
            a('s_barrier')
            J['pmax'], J['wmax'] = BARS[n][1:]
            nb += 1; stamp(f'b{nb}'); credit -= 10
        if n == P.get('wt', 999 if RL else 60):
            a('s_mov_b64 exec, 0x3fff')
            vm.issue('buffer_load_dword v72, v73, s[8:11], s34 offen')
            a('s_mov_b64 exec, -1')
        if n in (65, 97):
            if n == 65: stamp('p1a')
            else: stamp('p1end')
            for t in ((0, 1) if n == 65 else (2,)):
                o = 64 + 4*(t & 1)
                valu.extend(gelu_ops(ACC1+16*t, 48 + 8*(t & 1), o))
                valu.append(('store', t, o))
        ta += 10
        if n == F2P and 'f2' in stok: tp = vm.issue(fload[0]); ta = 0
        elif n == F2C and tp is not None:
            poll('f2', fload, [22], pre=tp); J['f2'] = True
            stamp('f2ok'); raw(4, 's51')
        elif ta >= TE:
            cst = job(n)
            if cst: ta -= TE; credit -= 10*cst
            else: ta = TE
        if n >= P.get('stg', 160) and sg < 32 and pipe.outstanding() <= 13 and credit >= 10 and (not valu or n % 2):
            i, r = divmod(sg, 4)
            if i in wtok and (wtok[i] <= vm.done or vm.issued - wtok[i] >= P.get('sl', 8)):
                vm.need(wtok[i])
                t = pipe.issue(wread(i, r >> 1, r & 1)); sg += 1; credit -= 10
                if r == 3: stg[i] = t
        while valu and credit >= 10*(cost(valu[0]) if isinstance(valu[0], str) else 1):
            x = valu.popleft(); gelu_step(x, n)
            if isinstance(x, str): credit -= 10*cost(x)
        if 2 in stok and 'f2' not in stok and n >= stok['at'] + P.get('fdel', 24):
            vm.need(stok[2])
            stok['f2'] = flag(F2); print('F2 at', n, end='; ')
    while valu: gelu_step(valu.popleft(), 224)
    if 'f2' not in stok:
        vm.need(stok[2])
        stok['f2'] = flag(F2)
    assert J['p'] == 32 and J['h'] == 32
    print('w_down steps', J['w'], 'staged', sg, 'act steps', J['a'])
    while sg < 32:
        i, r = divmod(sg, 4)
        while i not in wtok: job(999)
        vm.need(wtok[i])
        stg[i] = pipe.issue(wread(i, r >> 1, r & 1)); sg += 1
    pipe.need(pipe.issued)
    if tp is None and P.get('fp', 1) < 4: tp = vm.issue(fload[0])
    a('s_mov_b32 s34, 1.0'); a('s_mov_b32 s35, 1.0')
    def geglu2(t):
        s = Asm(); geglu(s, ACC2+16*t, 48, 64 + 4*(t & 1))
        for j, l in enumerate(s.lines):
            a(l.replace('s[46:47]', 's[34:35]'))
            if j % P.get('ge', 11) == 3 and t < P.get('gt', 4): job(999)
        if t: a(f's_add_u32 s47, s47, {AP}')
        return lstore([f'buffer_store_dwordx4 v[{64+4*(t&1)}:{67+4*(t&1)}], v15, s[16:19], s47 offen'], P.get('a2s', M2))
    for t in range(4):
        if t == P.get('fp', 1) and not J['f2']:
            stamp('g1')
            poll('f2', fload, [22], pre=tp); J['f2'] = True
            stamp('f2ok'); raw(4, 's51')
        if t == 3 and tp is None: tp = vm.issue(fload[0])
        ts3 = geglu2(t)
    stamp('g3')
    a('v_and_b32 v4, 31, v1')
    a('v_lshrrev_b32 v5, 5, v1')
    a('v_lshlrev_b32 v10, 10, v4')
    a('v_lshl_add_u32 v10, v5, 4, v10')
    a('s_lshr_b32 s46, s3, 1')
    a('s_lshl_b32 s46, s46, 15')
    a('s_and_b32 s47, s3, 1')
    a('s_lshl_b32 s47, s47, 6')
    a('s_add_u32 s39, s39, s46')
    a('s_add_u32 s39, s39, s47')
    a(f's_add_u32 s46, s39, {hex(X1)}')
    vm.need(ts3)
    flag(F3)
    if not J['f2']:
        poll('f2', fload, [22], pre=tp); J['f2'] = True
        stamp('f2ok'); raw(4, 's51')
        while J['a'] < P.get('a1b', 3): job(999)
    if M2: a(f's_add_u32 s25, s25, {FL3-FL2}')
    stamp('estart')
    pipe = LdsPipe(a); tok = {}
    def rd2(i):
        while i not in wtok: job(999)
        vm.need(wtok[i])
        for mt in range(2):
            for jj in range(2): tok[(i, mt)] = pipe.issue(wread(i, mt, jj))
    f3load = look(F3)
    for i in range(8): stg[i] = 0
    F3C = P.get('f3c', 8); JE = P.get('je', 2); tp = None; g = 0; aq = deque()
    for i in range(28):
        stamp(f'e{i}')
        if i == F3C:
            while J['a'] < 12 or J['half']: job(999)
            if tp is None: tp = vm.issue(f3load[0])
            poll('f3', f3load, [22], pre=tp)
            stamp('f3ok'); raw(5, 's51')
            for ii in range(12, 28): aq.extend([lambda ii=ii: act0(ii), lambda ii=ii: act1(ii)])
            for _ in range(P.get('a2b', 4)): aq.popleft()()
        if i == 22:
            vm.issue('buffer_load_dwordx4 v[72:75], v10, s[16:19], s46 offen sc1')
            tx = vm.issue('buffer_load_dwordx4 v[76:79], v10, s[16:19], s46 offen offset:32 sc1')
        kind, d0 = wreg(i); b = abase(i)
        while i not in atok: (aq.popleft()() if i >= 12 else job(999))
        vm.need(atok[i])
        for mt in range(2):
            if i >= 8: pipe.need(tok[(i, mt)])
            for nt in range(2):
                d = ACC2 + 32*mt + 16*nt; c = '0' if i == 0 else f'v[{d}:{d+15}]'
                a(f'v_mfma_f32_32x32x16_bf16 v[{d}:{d+15}], {kind}[{d0+4*mt}:{d0+4*mt+3}], a[{b+4*nt}:{b+4*nt+3}], {c}')
                g += 1
                if mt == 0 and nt == 0 and 8 <= i+2 < 28: rd2(i+2)
                if g % JE == 0:
                    if aq and not J['half'] and (J['w'] >= 28 or J['w'] > i + P.get('wb', 6)): aq.popleft()()
                    elif tp is None and not J['half'] and J['a'] == 12 and (J['w'] >= 28 or i == F3C - 1): tp = vm.issue(f3load[0])
                    elif not job(999) and aq: aq.popleft()()
    stamp('eend')
    PBL = [None, (WBL[8], WBL[9]), (WBL[10], WBL[11]), (WBL[12], WBL[13])]
    a('v_add_u32 v4, s26, v15')
    a('v_add_u32 v5, 0x10000, v4')
    a('v_add_u32 v18, 0x20000, v4')
    base(a, 12, 56, 0x200000)
    for t in range(1, 4):
        d = ACC2 + 32*(t & 1) + 16*(t >> 1)
        for g in range(4):
            ad = 8192*PBL[t][g >> 1] + 1024*(g & 1)
            a(f'ds_write_b128 v{(4, 5, 18)[ad >> 16]}, v[{d+4*g}:{d+4*g+3}] offset:{ad & 0xffff}')
        a(f's_xor_b32 s6, s26, {2048*t}')
        a(f's_add_u32 s7, s6, {8192*PBL[t][1]}')
        a(f's_add_u32 s6, s6, {8192*PBL[t][0]}')
        a(f'v_add_u32 v{88+2*t}, s6, v15')
        a(f'v_add_u32 v{89+2*t}, s7, v15')
    vm.need(tx)
    unpack8(a, 96, 124, 40); unpack8(a, 104, 116, 40); unpack8(a, 48, 72, 40); unpack8(a, 56, 76, 40)
    a('s_waitcnt lgkmcnt(0)')
    a('s_barrier')
    stamp('ebar')
    for i in range(1, 4):
        for g in range(4):
            a(f'ds_read_b128 v[{128+16*i+4*g}:{131+16*i+4*g}], v{88+2*i+(g >> 1)} offset:{1024*(g & 1)}')
    for i in range(1, 4):
        a(f's_waitcnt lgkmcnt({12-4*i})')
        for p in range(8): a(f'v_pk_add_f32 v[{128+2*p}:{129+2*p}], v[{128+2*p}:{129+2*p}], v[{128+16*i+2*p}:{129+16*i+2*p}]')
    for g in range(2):
        b = 128 + 8*g
        for r in range(4): a(f'v_permlane32_swap_b32 v{b+r}, v{b+4+r}')
        for p in range(4): a(f'v_pk_fma_f32 v[{b+2*p}:{b+2*p+1}], v[{b+2*p}:{b+2*p+1}], v[{96+8*g+2*p}:{97+8*g+2*p}], v[{48+8*g+2*p}:{49+8*g+2*p}]')
        for p in range(4): a(f'v_cvt_pk_bf16_f32 v{40+4*g+p}, v{b+2*p}, v{b+2*p+1}')
        a(f'buffer_store_dwordx4 v[{40+4*g}:{43+4*g}], v10, s[12:15], s39 offen offset:{32*g}' + ('', ' sc1', ' nt')[P.get('ost', 0)])
    a('s_or_b32 s4, s2, s3')
    a('s_cmp_lg_u32 s4, 0')
    a('s_cbranch_scc1 L_noep')
    a(f's_mov_b32 s4, {hex(EPOCH)}')
    a('buffer_store_dword v20, v21, s[16:19], s4 offen')
    a.label('L_noep')
    if P.get('probe') is not None:
        a('s_waitcnt vmcnt(0)')
        stamp('end')
        a('s_waitcnt lgkmcnt(0)')
        k = P['probe']
        if k >= 100:
            a(f's_mov_b32 s36, {hex(0x140A000)}')
            a('buffer_load_dwordx4 v[24:27], v15, s[16:19], s36 offen sc1')
            a('s_waitcnt vmcnt(0)')
            for r, op in ((28, 'min'), (29, 'max')):
                a(f'v_{op}_u32 v{r}, v24, v25')
                a(f'v_{op}3_u32 v{r}, v{r}, v26, v27')
                for ctl in ('row_ror:1', 'row_ror:2', 'row_ror:4', 'row_ror:8'):
                    a(f'v_{op}_u32_dpp v{r}, v{r}, v{r} {ctl} row_mask:0xf bank_mask:0xf')
                for i in range(4): a(f'v_readlane_b32 s{4+i}, v{r}, {16*i}')
                a(f's_{op}_u32 s4, s4, s5'); a(f's_{op}_u32 s6, s6, s7'); a(f's_{op}_u32 s{r+62}, s4, s6')
            if k == 100: a('s_add_u32 s92, s90, 6000')
            elif k == 101:
                a('s_sub_u32 s92, s91, s90'); a('s_lshl_b32 s92, s92, 2'); a('s_add_u32 s92, s92, s90'); a('s_add_u32 s92, s92, 4000')
            else:
                a(f's_sub_u32 s92, s{60+2*(k-110)}, s90'); a('s_lshl_b32 s92, s92, 2'); a('s_add_u32 s92, s92, s90'); a('s_add_u32 s92, s92, 4000')
        elif k == 0:
            a('s_add_u32 s92, s60, 6000')
        else:
            a(f's_sub_u32 s92, s{60+2*k}, s60')
            a('s_lshl_b32 s92, s92, 2')
            a('s_add_u32 s92, s92, s60')
            a('s_add_u32 s92, s92, 4000')
        a.label('L_probe')
        a('s_memrealtime s[94:95]')
        a('s_waitcnt lgkmcnt(0)')
        a('s_sub_u32 s94, s94, s92')
        a('s_cmp_lt_i32 s94, 0')
        a('s_cbranch_scc1 L_probe')
    elif P.get('stamps'):
        a('s_waitcnt vmcnt(0)')
        stamp('end')
        a('s_cmp_lg_u32 s3, 0')
        a('s_cbranch_scc1 L_end')
        a('s_lshl_b32 s94, s2, 7')
        a(f's_add_u32 s94, s94, {hex(TS)}')
        a('s_add_u32 s92, s58, s94')
        a('s_addc_u32 s93, s59, 0')
        a('v_lshlrev_b32 v250, 2, v1')
        a('s_lshl_b32 s94, s2, 8')
        a(f's_add_u32 s94, s94, {hex(TS + 0x80000)}')
        a('s_add_u32 s94, s58, s94')
        a('s_addc_u32 s95, s59, 0')
        a('global_store_dword v250, v254, s[94:95]')
        a('s_mov_b64 exec, 1')
        if P.get('dbg'):
            a('s_load_dwordx2 s[94:95], s[0:1], 104')
        a('s_waitcnt lgkmcnt(0)')
        if P.get('dbg'):
            a('s_not_b32 s60, s60')
            for m in sorted(marks):
                a(f'v_mov_b32 v250, s{60+2*m}')
                a(f'global_atomic_umax v21, v250, s[94:95] offset:{4*m}')
                a('s_nop 1')
            a('s_not_b32 s60, s60')
        for m in sorted(marks):
            a(f'v_mov_b32 v250, s{60+2*m}')
            a(f'v_mov_b32 v251, s{61+2*m}')
            a(f'global_store_dwordx2 v21, v[250:251], s[92:93] offset:{8*m}')
            a('s_nop 1')
    a.label('L_end')
    a.label('L_last')
    a('s_endpgm')
    return dict(grid=256, block=256, lds=163840, vgpr=512, accum=256)
```

```python
from collections import deque
from asmlib import *
from k123 import fh, lo, hi, unpack8, ln_stats, LdsPipe, A_OUT, A_WS
from k45 import VmPipe, GC1, GC2, geglu
from cde import zipl, gelu_ops, cost

UT, YT, X1, H2, ACT = 0, 0x400000, 0x900000, 0, 0xD00000
MODT, EPOCH, GRP, MP, TS = 0x1400000, 0x1408000, 0x1410000, 0x1480000, 0x1500000
YP = 16384 + 128
XID, UH, F1, F2, F3 = 0, 128, 1024, 1536, 2048
P1U = 49280
SEG = [(0, 98432, 129152), (15, 0, 49280), (27, 24576, 73856)]
CB, CHS, KB, U0, U1 = 98432, 12992, 512, 4608, 8768
PB = CB + 2*CHS
PRM = PB + 32768
MPART = PRM + 6144
XG = 129152 + 112*128
YS = 1040
XH = XG + 8*YS
PS = 272
SPIN = 1 << 15
WBL = list(range(12)) + list(range(8)) + [13, 17, 14, 18, 12, 15, 16, 19]
BARS = {89: (5, 15, 0), 111: (9, 19, 20), 127: (13, 23, 20), 143: (17, 27, 20), 159: (21, 31, 20), 175: (25, 32, 20),
        191: (29, 32, 22), 207: (31, 32, 24), 223: (None, 32, 28)}
assert MPART + 512 <= 163840 and XH + 8192 <= 163840
def seg_of(k): return SEG[0] if k < 15 else SEG[1] if k < 27 else SEG[2]

def base(a, d, p, n):
    a(f's_mov_b32 s{d}, s{p}'); a(f's_mov_b32 s{d+1}, s{p+1}'); a(f's_mov_b32 s{d+2}, {hex(n)}')

FL1, FL2, FL3 = 0x1420000, 0x1428000, 0x1430000
def ln1p(a, X, D, T, s0):
    a(f'v_pk_add_f32 v[{T}:{T+1}], v[{X}:{X+1}], v[{X+2}:{X+3}]')
    a(f'v_pk_mul_f32 v[{T+2}:{T+3}], v[{X}:{X+1}], v[{X}:{X+1}]')
    a(f'v_pk_add_f32 v[{D}:{D+1}], v[{X+4}:{X+5}], v[{X+6}:{X+7}]')
    for p in range(1, 4):
        a(f'v_pk_fma_f32 v[{T+2}:{T+3}], v[{X+2*p}:{X+2*p+1}], v[{X+2*p}:{X+2*p+1}], v[{T+2}:{T+3}]')
    a(f'v_pk_add_f32 v[{T}:{T+1}], v[{T}:{T+1}], v[{D}:{D+1}]')
    a(f'v_add_f32 v{T+2}, v{T+2}, v{T+3}')
    a(f'v_add_f32 v{T}, v{T}, v{T+1}')
    for ctl in ('row_shr:1', 'row_shr:2', 'row_shr:4', 'row_shr:8'):
        for r in (T+2, T): a(f'v_add_f32_dpp v{r}, v{r}, v{r} {ctl} row_mask:0xf bank_mask:0xf bound_ctrl:1')
    for ctl in ('row_bcast:15 row_mask:0xa', 'row_bcast:31 row_mask:0xc'):
        for r in (T+2, T): a(f'v_add_f32_dpp v{r}, v{r}, v{r} {ctl} bank_mask:0xf')
    a(f'v_readlane_b32 s{s0+1}, v{T+2}, 63')
    a(f'v_readlane_b32 s{s0}, v{T}, 63')
    a(f'v_mov_b32 v{T+1}, {fh(1.0/512)}')
    a(f'v_mov_b32 v{T+3}, {fh(1e-5)}')
    a(f'v_mul_f32 v{T}, s{s0}, v{T+1}')
    a(f'v_fmac_f32 v{T+3}, s{s0+1}, v{T+1}')
    a(f'v_fma_f32 v{T+2}, -v{T}, v{T}, v{T+3}')
    a(f'v_max_f32 v{T+2}, {fh(1e-5)}, v{T+2}')
    a(f'v_rsq_f32 v{T+2}, v{T+2}')
    for p in range(4):
        a(f'v_pk_add_f32 v[{D+2*p}:{D+2*p+1}], v[{X+2*p}:{X+2*p+1}], v[{T}:{T+1}] op_sel:[0,0] op_sel_hi:[1,0] neg_lo:[0,1] neg_hi:[0,1]')
    for p in range(4):
        a(f'v_pk_mul_f32 v[{D+2*p}:{D+2*p+1}], v[{D+2*p}:{D+2*p+1}], v[{T+2}:{T+3}] op_sel:[0,0] op_sel_hi:[1,0]')
def ln2p(s, X, D, T, s0):
    ln_stats(s, X, D, T, s0)
    for p in range(4):
        s(f'v_pk_mul_f32 v[{D+2*p}:{D+2*p+1}], v[{D+2*p}:{D+2*p+1}], v[{T}:{T+1}] op_sel:[0,0] op_sel_hi:[1,0]')

def mega(a, P):
    M2 = P.get('m2', 0)
    RL = P.get('rl', 1)
    WD2, WS_ = 0x200000, (2048 if RL else 0x4000)
    H2 = 0xB00000 if M2 else 0
    marks = set()
    SETS = {1: 'start kv0 utst utok bbar end bend ytst ytok h2dr b0 p1end b9 estart f3ok eend',
            2: 'start kv0 kvN abar utst end ut1st uhok utok bbar bend pbar ytst ytack ytok mdok',
            3: 'start ytst ln1 ytack ytok end ybar hbar h2st h2dr f1ok b0 b1 b2 b3 p1end',
            6: 'start b0 p1a p1end b2 end b3 b4 b5 b6 b7 b8 b9 f2ok g3 estart',
            7: 'start estart e2 e4 e6 end f3ok e8 e10 e12 e14 e16 e20 e24 eend ebar',
            8: 'start x1 x2 x3 x4 end',
            5: 'start karg x2 x3 x4 end x6 x7 x8 x9 x10 x11 x12 kv0 issued pre',
            4: 'start p1end b5 b6 b7 end b8 g1 f2ok g3 estart e12 f3ok e20 eend ebar'}
    names = SETS[P.get('stamps', 1)].split()
    def stamp(name):
        if P.get('stamps') and name in names:
            slot = names.index(name)
            a(f's_memrealtime s[{60+2*slot}:{61+2*slot}]'); marks.add(slot)
    def raw(i, sreg):
        if P.get('stamps'): a(f'v_writelane_b32 v254, {sreg}, {i}')
    vm = VmPipe(a)
    NT = ' nt' if P.get('nt', 0) else ''
    nst = [0]
    def lstore(lines, through=False):
        if through:
            for l in lines: t = vm.issue(l + ' sc1')
            return t
        return lstore2(lines)
    def lstore2(lines):
        n = nst[0]; nst[0] += 1
        a('s_cmp_eq_u32 s101, 0')
        a(f's_cbranch_scc1 L_ls{n}a')
        for l in lines: a(l + ' sc1')
        a(f's_branch L_ls{n}b')
        a.label(f'L_ls{n}a')
        for l in lines: t = vm.issue(l)
        a.label(f'L_ls{n}b')
        return t
    def poll(name, loads, tags, pre=None):
        a(f's_mov_b32 s51, {SPIN}')
        if pre is not None:
            vm.need(pre)
            stamp(name + '1st')
            a(f's_branch L_{name}_chk')
        a.label(f'L_{name}')
        for l in loads: a(l)
        a('s_waitcnt vmcnt(0)')
        a.label(f'L_{name}_chk')
        a(f'v_cmp_ne_u32 vcc, s50, v{tags[0]}')
        for i, t in enumerate(tags[1:]): a(f'v_cmp_ne_u32 s[{92+2*i}:{93+2*i}], s50, v{t}')
        a('s_sub_u32 s51, s51, 1')
        a(f's_cbranch_scc1 L_{name}_ok')
        for i in range(len(tags)-1): a(f's_or_b64 vcc, vcc, s[{92+2*i}:{93+2*i}]')
        a(f's_cbranch_vccnz L_{name}')
        a.label(f'L_{name}_ok')
        if pre is None: vm.done = vm.issued

    a('s_cmp_ge_u32 s2, 256')
    a('s_cbranch_scc1 L_end')
    stamp('start')
    if P.get('stamps'): a('v_mov_b32 v254, 0')
    a('s_load_dwordx16 s[64:79], s[0:1], 0')
    if P.get('cpf', 1):
        a('s_getpc_b64 s[4:5]')
        a.label('L_pc')
        a('v_lshlrev_b32 v3, 7, v0')
        a('v_mov_b32 v5, s5')
        a('v_add_co_u32 v4, vcc, s4, v3')
        a(f'v_cmp_gt_u32 s[6:7], {P.get("cpn", 16)}, v0')
        a('v_and_b32 v1, 63, v0')
        a('v_addc_co_u32 v5, vcc, 0, v5, vcc')
        a('s_and_b64 exec, exec, s[6:7]')
        a('s_cbranch_execz L_nopf')
        a('global_load_dword v169, v[4:5], off')
        a.label('L_nopf')
        a('s_mov_b64 exec, -1')
    else: a('v_and_b32 v1, 63, v0')
    a(f's_load_dwordx2 s[58:59], s[0:1], {A_WS}')
    a('s_load_dwordx8 s[80:87], s[0:1], 64')
    a(f's_load_dwordx2 s[56:57], s[0:1], {A_OUT}')
    a('v_lshrrev_b32 v2, 6, v0')
    a('v_readfirstlane_b32 s3, v2')
    a('s_mov_b32 s40, 0xffff0000')
    a('s_and_b32 s28, s2, 7')
    a('s_lshr_b32 s29, s2, 3')
    a('s_lshl_b32 s32, s28, 5')
    a('s_or_b32 s32, s32, s29')
    a('v_and_b32 v3, 31, v0')
    a('v_lshrrev_b32 v2, 5, v0')
    a('s_lshl_b32 s33, s29, 6')
    a('v_lshl_add_u32 v4, v2, 3, s33')
    a('s_lshl_b32 s33, s28, 7')
    a('v_lshl_add_u32 v5, v3, 2, s33')
    a('v_lshl_add_u32 v5, v4, 10, v5')
    a('v_subrev_u32 v4, 0xc00, v5')
    a('s_lshl_b32 s33, s28, 9')
    a('v_lshl_add_u32 v13, v3, 4, s33')
    a('s_movk_i32 s35, 0x1000')
    a('s_mov_b32 s15, 0x20000'); a('s_mov_b32 s27, 0x20000'); a('s_mov_b32 s19, 0x20000')
    a('s_mov_b32 s23, 0x20000'); a('s_mov_b32 s11, 0x20000'); a('s_mov_b32 s55, 0x20000')
    a('v_lshlrev_b32 v15, 4, v1')
    a('v_mov_b32 v21, 0')
    a('v_lshlrev_b32 v14, 4, v0')
    a('s_waitcnt lgkmcnt(0)')
    stamp('karg')
    base(a, 12, 70, 4096)
    base(a, 24, 68, 0x200000)
    tsh = vm.issue('buffer_load_dwordx4 v[48:51], v13, s[12:15], 0 offen' + NT)
    base(a, 12, 66, 0x200000)
    for i in range(3): vm.issue(f'buffer_load_dword v{24+i}, v4, s[12:15], 0 offen offset:{1024*i}' + NT)
    tk = {}
    for i in range(8):
        so = 's35' if i >= 4 else '0'
        vm.issue(f'buffer_load_dword v{27+i}, v5, s[12:15], {so} offen offset:{1024*(i&3)}' + NT)
        tk[i] = vm.issue(f'buffer_load_dword v{36+i}, v5, s[24:27], {so} offen offset:{1024*(i&3)}' + NT)
    stamp('issued')
    a(f's_add_u32 s4, s58, {hex(EPOCH)}')
    a('s_addc_u32 s5, s59, 0')
    a('s_load_dword s50, s[4:5], 0')
    if P.get('cpf', 1):
        a('s_getpc_b64 s[6:7]')
        a.label('L_pc2')
        a('s_lshl_b32 s36, s29, 2')
        a('s_add_u32 s36, s36, s3')
        a('v_and_b32 v4, 1, v0')
        a('v_lshl_add_u32 v4, s36, 1, v4')
        a('v_min_u32 v4, (L_last-L_pc2)/128, v4')
        a('v_lshlrev_b32 v4, 7, v4')
        a('v_mov_b32 v5, s7')
        a('v_add_co_u32 v4, vcc, s6, v4')
        a('v_addc_co_u32 v5, vcc, 0, v5, vcc')
        a('s_mov_b64 exec, 3')
        vm.issue('global_load_dword v168, v[4:5], off')
        a('s_mov_b64 exec, -1')
    if P.get('kvbar', 1): a('s_barrier')
    a('s_lshl_b32 s33, s32, 2')
    a('s_add_u32 s6, s74, s33')
    a('s_addc_u32 s7, s75, 0')
    a('s_load_dword s34, s[6:7], 0')
    a('s_lshl_b32 s33, s32, 13')
    SK = {}
    def skload():
        base(a, 12, 72, 0x200000)
        a('s_lshl_b32 s36, s32, 13')
        vm.issue('buffer_load_dwordx4 v[146:149], v14, s[12:15], s36 offen' + NT)
        a('s_add_u32 s36, s36, 0x1000')
        SK['t'] = vm.issue('buffer_load_dwordx4 v[150:153], v14, s[12:15], s36 offen' + NT)
    if P.get('skat', 0) == 0: skload()
    a('s_mul_i32 s30, s28, 6')
    a('s_lshr_b32 s31, s29, 2')
    a('s_add_u32 s30, s30, s31')
    a('s_and_b32 s31, s29, 3')
    a('s_lshl_b32 s46, s30, 2')
    a('s_or_b32 s46, s46, s31')
    a('s_lshl_b32 s47, s31, 2')
    a('s_or_b32 s47, s47, s3')
    a('v_and_b32 v16, 1, v0')
    a('v_lshrrev_b32 v17, 3, v1')
    a('v_and_b32 v6, 7, v1')
    a('v_mul_u32_u24 v242, 0x6000, v17')
    a('v_lshl_add_u32 v242, v6, 4, v242')
    a('v_lshlrev_b32 v243, 3, v17')
    a('s_lshl_b32 s36, s3, 11')
    a('s_add_u32 s33, s33, s36')
    WM = {}
    def wmload():
        base(a, 12, 84, 1024)
        a('s_lshl_b32 s36, s47, 6')
        tc = vm.issue('buffer_load_dwordx2 v[144:145], v243, s[12:15], s36 offen')
        base(a, 12, 86, 512*6144)
        a('s_cmp_lt_u32 s29, 24')
        a('s_cselect_b32 s14, s14, 0')
        a('s_lshr_b32 s36, s46, 2')
        a('s_lshl_b32 s36, s36, 7')
        a(f's_mul_i32 s37, s47, {32*6144}')
        a('s_add_u32 s36, s36, s37')
        twm = []
        for r in range(4):
            twm.append(vm.issue(f'buffer_load_dwordx4 v[{128+4*r}:{131+4*r}], v242, s[12:15], s36 offen' + NT))
            if r < 3: a('s_add_u32 s36, s36, 0x1800')
        WM.update(tc=tc, twm=twm)
    if P.get('wat', 2) == 0: wmload()
    if M2:
        a('s_and_b32 s30, s2, 1')
        a('s_lshl_b32 s30, s30, 3')
        a('s_and_b32 s98, s29, 7')
        a('s_or_b32 s30, s30, s98')
        a('s_bfe_u32 s31, s2, 0x20001')
        a('s_lshl_b32 s31, s31, 2')
        a('s_lshr_b32 s36, s2, 6')
        a('s_or_b32 s31, s31, s36')
        a('s_lshl_b32 s36, s36, 1')
        a('s_add_u32 s98, s98, s36')
    else:
        a('s_lshr_b32 s30, s32, 4')
        a('s_and_b32 s31, s32, 15')
        a(f's_and_b32 s98, s30, {P.get("prot", 0)}')
        a('s_lshl_b32 s98, s98, 2')
        if P.get('xrot', 1): a('s_add_u32 s98, s98, s28')
    a('s_and_b32 s98, s98, 7')
    a('s_lshr_b32 s38, s3, 1')
    a('s_and_b32 s39, s3, 1')
    a('s_cmp_eq_u32 s38, 0')
    a('s_cselect_b32 s20, s78, s80')
    a('s_cselect_b32 s21, s79, s81')
    a(f's_mov_b32 s22, {512*3584 if not P.get("now") else 0}')
    base(a, 8, 82, 1792*1024 if not P.get('now') else 0)
    base(a, 16, 58, TS)
    a('s_lshl_b32 s36, s28, 12')
    a(f's_add_u32 s36, s36, {hex(GRP)}')
    a('s_add_u32 s52, s58, s36')
    a('s_addc_u32 s53, s59, 0')
    a('s_movk_i32 s54, 0x1000')
    a('s_cmp_eq_u32 s3, 3')
    a('s_cselect_b32 s37, 0, 0x70000000')
    a('v_mov_b32 v22, s37')
    a('s_lshl_b32 s36, s29, 7')
    vm.issue('buffer_load_dword v158, v22, s[52:55], s36 offen')
    a('s_lshl_b32 s36, s46, 6')
    a(f's_add_u32 s36, s36, {hex(MODT)}')
    vm.issue('buffer_load_dword v159, v22, s[16:19], s36 offen')
    if M2 and P.get('ft', 1):
        a('s_lshl_b32 s36, s30, 4')
        a('s_lshr_b32 s37, s32, 4')
        a('s_lshl_b32 s37, s37, 4')
        a('s_sub_u32 s37, s37, s36')
        a('s_add_u32 s37, s37, 0x100')
        a('v_lshrrev_b32 v4, 2, v1')
        a('v_min_u32 v5, 1, v4')
        a('v_mul_lo_u32 v5, v5, s37')
        a('v_max_u32 v4, 1, v4')
        a('v_subrev_u32 v4, 1, v4')
        a('v_lshl_add_u32 v5, v4, 8, v5')
        a('v_and_b32 v4, 3, v1')
        a('v_add_u32 v5, v5, v4')
        a('s_lshl_b32 s37, s3, 2')
        a('s_add_u32 s36, s36, s37')
        a('v_add_lshl_u32 v5, v5, s36, 7')
        a(f's_mov_b32 s36, {hex(FL1)}')
        a('s_mov_b64 exec, 0xfff')
        vm.issue('buffer_load_dword v156, v5, s[16:19], s36 offen')
        a('s_mov_b64 exec, -1')
    a('s_lshl_b32 s36, s32, 13')
    a('s_lshl_b32 s37, s46, 11')
    a(f's_add_u32 s37, s37, {hex(MP)}')
    a('s_cmp_eq_u32 s3, 1')
    a(f's_cselect_b32 s37, s37, {hex(TS)}')
    a('s_cselect_b32 s44, 15, 63')
    a('s_cmp_eq_u32 s3, 2')
    a('s_cselect_b32 s37, s36, s37')
    a('v_and_b32 v4, s44, v1')
    a('v_lshlrev_b32 v4, 7, v4')
    if P.get('utt', 1): vm.issue('buffer_load_dword v157, v4, s[16:19], s37 offen' + (NT if P.get('ntu', 1) else ''))
    if P.get('tlb', 0) == 1:
        a('v_lshl_add_u32 v4, v1, 20, v22')
        for i, (p, n) in enumerate(((86, 512*6144), (84, 1024), (64, 0x200000), (78, 512*3584), (80, 512*3584), (82, 1792*1024), (56, 0x200000))):
            base(a, 12, p, n)
            vm.issue(f'buffer_load_dword v{160+i}, v4, s[12:15], 0 offen')
        vm.issue('buffer_load_dword v154, v4, s[16:19], 0 offen')
    for i in range(3):
        a(f'v_add_u32 v4, {64*i}, v1')
        a('v_mul_u32_u24 v5, 0x2aab, v4')
        a('v_lshrrev_b32 v5, 16, v5')
        a(f'v_mul_u32_u24 v5, {3584-96}, v5')
        a(f'v_lshl_add_u32 v{10+i}, v4, 4, v5')
        if i: a(f'v_subrev_u32 v{10+i}, {1024*i}, v{10+i}')
    a(f's_mul_i32 s41, s39, {32*3584}')
    a('s_mul_i32 s43, s31, 96')
    a('s_add_u32 s41, s41, s43')
    a('s_add_u32 s41, s41, 0x800')
    a('s_mul_i32 s43, s39, 3072')
    a(f's_mul_i32 s42, s38, {P1U}')
    a('s_add_u32 s42, s42, s43')
    a(f's_add_u32 s99, s41, {512*3584}')
    a(f's_mul_i32 s36, s98, {64*3584}')
    a('s_add_u32 s41, s41, s36')
    def step(reg, inc, lim, span):
        a(f's_add_u32 {reg}, {reg}, {inc}')
        a(f's_cmp_eq_u32 {reg}, {lim}')
        a(f's_cselect_b32 s36, {span}, 0')
        a(f's_sub_u32 {reg}, {reg}, s36')
    early = deque()
    def p1dma(m, i):
        if i == 0: a(f's_add_u32 m0, s42, {6144*m}')
        vm.issue(f'buffer_load_dwordx4 v{10+i}, s[20:23], s41 offen offset:{1024*i} lds')
        if i == 2 and m < 7: step('s41', 64*3584, 's99', 512*3584)
    for m in range(8):
        for i in range(3): early.append(lambda m=m, i=i: p1dma(m, i))
    for _ in range(P.get('e0', 0)): early.popleft()()
    a('v_lshrrev_b32 v4, 3, v1')
    a('v_bfe_u32 v5, v1, 4, 1')
    a('v_lshlrev_b32 v5, 2, v5')
    a('v_xor_b32 v5, v5, v6')
    a('v_lshlrev_b32 v5, 4, v5')
    a(f'v_lshl_add_u32 v8, v4, {7 if RL else 10}, v5')
    a(f'v_add_u32 v9, {0 if RL else 8192-1024}, v8')
    a('s_lshl_b32 s43, s38, 5')
    a('v_xor_b32 v5, s43, v5')
    a('v_mul_u32_u24 v7, 0xe00, v4')
    a('v_add_u32 v7, v7, v5')
    a(f's_mul_i32 s48, s39, {8*3584}')
    a('s_lshl_b32 s43, s31, 7')
    a('s_add_u32 s48, s48, s43')
    a('s_lshl_b32 s43, s39, 10')
    a(f's_mul_i32 s49, s38, {SEG[0][2]-SEG[0][1]}')
    a('s_add_u32 s49, s49, s43')
    a(f's_mul_i32 s38, s38, {P1U}')
    a('s_add_u32 s43, s43, s38')
    a('v_sub_u32 v4, 7, v2')
    a('v_xor_b32 v4, v4, v6')
    a('v_lshl_add_u32 v4, v3, 4, v4')
    a(f'v_lshlrev_b32 v4, 4, v4')
    a(f'v_add_u32 v120, {PB}, v4')
    a('v_lshrrev_b32 v4, 4, v1')
    a('v_xor_b32 v5, v4, v1')
    a('s_lshl_b32 s36, s3, 11')
    a(f's_add_u32 s36, s36, {PB}')
    a('v_lshl_add_u32 v124, v5, 4, s36')
    a('v_xor_b32 v125, 64, v124')
    a('v_lshrrev_b32 v4, 3, v1')
    a('v_lshlrev_b32 v5, 4, v6')
    a('v_lshl_add_u32 v13, v4, 12, v5')
    a('s_lshl_b32 s36, s28, 2')
    a('s_add_u32 s36, s36, s3')
    a('s_lshl_b32 s36, s36, 16')
    a('s_sub_u32 s35, 31, s29')
    a('s_lshl_b32 s35, s35, 7')
    a('s_add_u32 s35, s35, s36')
    a('s_waitcnt lgkmcnt(0)')
    a('s_mul_i32 s50, s50, 1664525')
    a('s_add_u32 s50, s50, 1013904223')
    a('v_mov_b32 v20, s50')
    a('s_getreg_b32 s100, hwreg(HW_REG_XCC_ID, 0, 4)')
    if P.get('slow'): a('s_and_b32 s100, s29, 1')
    a('s_add_u32 s100, s100, s50')
    a('s_add_u32 s100, s100, 1')
    a('s_cmp_lg_u32 s3, 0')
    a('s_cbranch_scc1 L_noid')
    a('v_mov_b32 v22, s100')
    a('s_lshl_b32 s36, s29, 2')
    a(f'buffer_store_dword v22, v21, s[52:55], s36 offen offset:{XID} sc1')
    a.label('L_noid')
    if P.get('probe', 0) >= 100:
        a('v_mov_b32 v22, s60')
        a('s_lshl_b32 s36, s2, 2')
        a(f's_add_u32 s36, s36, {hex(0x140A000)}')
        vm.issue('buffer_store_dword v22, v21, s[16:19], s36 offen sc1')
    def slow_gu():
        a('v_bfe_u32 v4, v1, 1, 3')
        a('v_and_b32 v5, 1, v4')
        a('v_lshlrev_b32 v5, 9, v5')
        a(f'v_mul_u32_u24 v4, 3584, v4')
        a('v_add_u32 v4, v4, v5')
        a('v_and_b32 v5, 1, v1')
        a('v_lshl_add_u32 v4, v5, 10, v4')
        a('v_bfe_u32 v5, v1, 4, 1')
        a('v_lshl_add_u32 v4, v5, 11, v4')
        a('s_lshl_b32 s36, s29, 1')
        a('s_and_b32 s37, s3, 1')
        a('s_add_u32 s36, s36, s37')
        a(f's_mul_i32 s36, s36, {8*3584}')
        a('s_mov_b32 exec_hi, 0')
        vm.issue('buffer_load_dword v252, v4, s[20:23], s36 offen offset:384')
        a('s_mov_b32 exec_hi, -1')
    def slow_d():
        a('v_lshlrev_b32 v4, 10, v1')
        a('s_and_b32 s36, s32, 31')
        a('s_lshl_b32 s36, s36, 2')
        a('s_add_u32 s36, s36, s3')
        a(f's_mul_i32 s36, s36, {14*1024}')
        a('s_mov_b64 exec, 0x3fff')
        vm.issue('buffer_load_dword v253, v4, s[8:11], s36 offen offset:384')
        a('s_mov_b64 exec, -1')
    def slow(at):
        if P.get('sg', 0) == at: slow_gu()
        if P.get('sd', 0) == at: slow_d()
    stamp('pre')
    vm.need(tsh)
    lo(a, 52, 48); hi(a, 54, 48, 40); lo(a, 56, 49); hi(a, 58, 49, 40)
    lo(a, 53, 50); hi(a, 55, 50, 40); lo(a, 57, 51); hi(a, 59, 51, 40)
    vm.need(tk[0])
    stamp('kv0')
    if P.get('skat', 0) == 1: skload()
    if P.get('wat', 2) == 1: wmload()
    def xload():
        vm.issue('buffer_load_dwordx4 v[232:235], v15, s[12:15], s33 offen' + NT)
        return vm.issue('buffer_load_dwordx4 v[236:239], v15, s[12:15], s33 offen offset:1024' + NT)
    for q in range(3):
        lo(a, 60+2*q, 24+q); hi(a, 61+2*q, 24+q, 40)
    for r in range(8):
        vm.need(tk[r])
        lo(a, 66+2*r, 27+r); hi(a, 67+2*r, 27+r, 40)
        lo(a, 84+2*r, 36+r); hi(a, 85+2*r, 36+r, 40)
        d = 102+2*r
        a(f'v_pk_mul_f32 v[{d}:{d+1}], v[{60+2*r}:{61+2*r}], v[58:59]')
        a(f'v_pk_fma_f32 v[{d}:{d+1}], v[{62+2*r}:{63+2*r}], v[56:57], v[{d}:{d+1}]')
        a(f'v_pk_fma_f32 v[{d}:{d+1}], v[{64+2*r}:{65+2*r}], v[54:55], v[{d}:{d+1}]')
        a(f'v_pk_fma_f32 v[{d}:{d+1}], v[{66+2*r}:{67+2*r}], v[52:53], v[{d}:{d+1}]')
        a(f'v_pk_mul_f32 v[{d}:{d+1}], v[{d}:{d+1}], v[{84+2*r}:{85+2*r}]')
    if P.get('skat', 0) == 2: skload()
    if P.get('wat', 2) == 2: wmload()
    tc, twm, tsk = WM['tc'], WM['twm'], SK['t']
    base(a, 12, 64, 0x200000)
    slow(1)
    stamp('kvN')
    for c in range(2):
        for jj in range(4):
            a(f'v_cvt_pk_bf16_f32 v{24+4*c+jj}, v{102+2*(7-2*jj)+c}, v{102+2*(6-2*jj)+c}')
        a(f'ds_write_b128 v120, v[{24+4*c}:{27+4*c}] offset:{128*c}')
    a('s_waitcnt lgkmcnt(0)')
    a('s_barrier')
    stamp('abar')
    for j in range(2): a(f'ds_read_b128 v[{104+4*j}:{107+4*j}], v{124+j} offset:{1024*j}')
    a('s_mov_b32 s24, s35')
    a('s_add_u32 s25, s35, 0x8000')
    ustores = [f'buffer_store_dwordx4 v[{104+4*j}:{107+4*j}], v13, s[16:19], s{24+j} offen' for j in range(2)]
    for j in range(2):
        a(f's_waitcnt lgkmcnt({1-j})')
        tus = vm.issue(ustores[j] + (' sc1' if P.get('uts', 0) else ''))
    a('s_lshl_b32 s7, s3, 7')
    a('s_lshl_b32 s36, s29, 2')
    a('s_add_u32 s7, s7, s36')
    a('v_mov_b32 v123, s100')
    stamp('utst')
    for i in range(4): a(f'v_mov_b32 v{40+i}, 0')
    a(f'v_add_u32 v14, {CB}, v14')
    a('v_cmp_gt_u32 vcc, 32, v0')
    a('s_and_saveexec_b64 s[36:37], vcc')
    a('s_cbranch_execz L_nz')
    a('ds_write_b128 v14, v[40:43]')
    a(f'ds_write_b128 v14, v[40:43] offset:{CHS}')
    a('v_cmp_gt_u32 vcc, 2, v0')
    a('s_and_b64 exec, exec, vcc')
    for c in range(2):
        a(f'ds_write_b128 v14, v[40:43] offset:{c*CHS+U0+4096}')
        a(f'ds_write_b128 v14, v[40:43] offset:{c*CHS+U1+4096}')
    a.label('L_nz')
    a('s_mov_b64 exec, s[36:37]')
    a('v_cmp_eq_u32 s[36:37], 0, v0')
    a('s_lshl_b32 s4, s34, 16')
    a('s_and_b32 s5, s34, 0xffff0000')
    a('s_mov_b32 s6, 0xffff')
    vm.need(tsk)
    stamp('skok')
    for c in range(2):
        kx = 146+4*c
        lo(a, 44, kx)
        a(f'v_add_f32 v44, s{4+c}, v44')
        a('v_cvt_pk_bf16_f32 v44, v44, v44')
        a(f'v_bfi_b32 v44, s6, v44, v{kx}')
        a(f'v_cndmask_b32 v{kx}, v{kx}, v44, s[36:37]')
        a(f'ds_write_b128 v14, v[{kx}:{kx+3}] offset:{c*CHS+KB}')
    vm.need(tus)
    vm.issue(f'buffer_store_dword v123, v21, s[52:55], s7 offen offset:{UH}')
    a('v_and_b32 v120, 31, v1')
    a('v_lshlrev_b32 v120, 2, v120')
    a('s_lshr_b32 s5, s29, 3')
    a('s_lshl_b32 s5, s5, 7')
    hloads = [f'buffer_load_dword v121, v120, s[52:55], 0 offen offset:{XID} sc1', f'buffer_load_dword v124, v120, s[52:55], s5 offen offset:{UH} sc1']
    for l in hloads: tu = vm.issue(l)
    a('v_lshrrev_b32 v4, 1, v6')
    a('v_lshlrev_b32 v4, 11, v4')
    a('v_lshl_add_u32 v4, v16, 6, v4')
    a('v_lshrrev_b32 v5, 5, v1')
    a('v_lshl_add_u32 v4, v5, 5, v4')
    a('v_bfe_u32 v5, v1, 4, 1')
    a('v_lshl_add_u32 v244, v5, 4, v4')
    a('s_lshl_b32 s35, s32, 13')
    a('s_add_u32 s34, s35, 0x1000')
    a('v_lshlrev_b32 v125, 4, v0')
    vm.need(tc)
    lo(a, 44, 144); hi(a, 45, 144, 40); lo(a, 46, 145); hi(a, 47, 145, 40)
    for r in range(4): a(f'v_mul_f32 v{48+r}, {fh(-1.4426950408889634)}, v{44+r}')
    for r in range(4): a(f'v_exp_f32 v{48+r}, v{48+r}')
    for r in range(4): a(f'v_add_f32 v{48+r}, 1.0, v{48+r}')
    for r in range(4): a(f'v_rcp_f32 v{48+r}, v{48+r}')
    for r in range(4): a(f'v_mul_f32 v{44+r}, v{44+r}, v{48+r}')
    a('v_cvt_pk_bf16_f32 v48, v44, v45')
    a('v_cvt_pk_bf16_f32 v49, v46, v47')
    lo(a, 44, 48); hi(a, 45, 48, 40); lo(a, 46, 49); hi(a, 47, 49, 40)
    def stage1():
        for r in range(4):
            vm.need(twm[r])
            unpack8(a, 52, 128+4*r, 40)
            sel = 'op_sel:[0,0,0] op_sel_hi:[1,0,1]' if r % 2 == 0 else 'op_sel:[0,1,0] op_sel_hi:[1,1,1]'
            sp = 44 + (r & 2)
            for j in range(4):
                if r == 0:
                    a(f'v_pk_mul_f32 v[{60+2*j}:{61+2*j}], v[{52+2*j}:{53+2*j}], v[{sp}:{sp+1}] op_sel:[0,0] op_sel_hi:[1,0]')
                else:
                    a(f'v_pk_fma_f32 v[{60+2*j}:{61+2*j}], v[{52+2*j}:{53+2*j}], v[{sp}:{sp+1}], v[{60+2*j}:{61+2*j}] {sel}')
        for j in range(4): a(f'v_permlane32_swap_b32 v{60+j}, v{64+j}')
        for j in range(4): a(f'v_add_f32 v{60+j}, v{60+j}, v{64+j}')
        a('s_lshr_b32 s6, s46, 2')
        a('s_lshl_b32 s6, s6, 13')
        for j in range(2): a(f'v_permlane16_swap_b32 v{60+j}, v{62+j}')
        a('s_lshl_b32 s36, s47, 7')
        for j in range(2): a(f'v_add_f32 v{100+j}, v{60+j}, v{62+j}')
        a('v_mov_b32 v102, s50')
        a('v_mov_b32 v103, s50')
        for j in range(2): a(f'v_add_f32_dpp v{100+j}, v{100+j}, v{100+j} row_ror:8 row_mask:0xf bank_mask:0xf')
        a('s_add_u32 s6, s6, s36')
        a(f's_add_u32 s6, s6, {hex(MP)}')
        a('s_cmp_lt_u32 s29, 24')
        a(f's_cselect_b32 s6, s6, {hex(TS)}')
    if P.get('s1at', 1) == 0: stage1()
    a('s_lshr_b32 s36, s3, 1')
    a(f's_mul_i32 s36, s36, {CHS}')
    a('s_xor_b32 s38, s39, 1')
    a('s_lshl_b32 s38, s38, 6')
    a('s_add_u32 s36, s36, s38')
    a(f's_add_u32 s36, s36, {CB}')
    a('v_and_b32 v3, 15, v0')
    a('v_bfe_u32 v4, v0, 4, 2')
    a('v_lshlrev_b32 v5, 4, v4')
    a('v_lshl_add_u32 v22, v3, 5, v5')
    a(f's_add_u32 s38, s36, {KB-480}')
    a('v_add_u32 v22, s38, v22')
    a('v_and_b32 v23, 14, v3')
    a('v_lshlrev_b32 v23, 1, v23')
    a('v_sub_u32 v23, v5, v23')
    a(f'v_mul_u32_u24 v5, {U1-U0}, v16')
    a('v_sub_u32 v23, v23, v5')
    a(f's_add_u32 s38, s36, {U1+28}')
    a('v_add_u32 v16, s38, v23')
    for i in range(1, 4): a(f'v_add_u32 v{16+i}, {1024*i}, v16')
    a('v_bfe_u32 v5, v3, 1, 2')
    a('v_xor_b32 v5, v5, v4')
    a('v_lshl_add_u32 v5, v3, 2, v5')
    a('s_lshl_b32 s38, s3, 13')
    a(f's_add_u32 s38, s38, {PB}')
    a('v_lshl_add_u32 v23, v5, 4, s38')
    KP = P.get('kp', 1)
    if KP:
        a('s_waitcnt lgkmcnt(0)')
        a('s_barrier')
        for j in range(4, 32): a(f'ds_read_b128 v[{104+4*j}:{107+4*j}], v22 offset:{128*j}') if not 120 <= 104+4*j < 156 else None
    a(f's_mov_b32 s51, {SPIN}')
    a('s_mov_b32 s101, 0')
    vm.need(tu)
    stamp('ut1st')
    a('s_branch L_uh_chk')
    a.label('L_uh')
    for l in hloads: a(l)
    a('s_waitcnt vmcnt(0)')
    a.label('L_uh_chk')
    a('v_subrev_u32 v122, s50, v121')
    a('v_subrev_u32 v122, 1, v122')
    a('v_cmp_lt_u32 vcc, 15, v122')
    a('v_cmp_ne_u32 s[92:93], s100, v121')
    a('s_sub_u32 s51, s51, 1')
    a('s_cbranch_scc1 L_uh_ok')
    a('s_cbranch_vccnz L_uh')
    a('s_cmp_eq_u64 s[92:93], 0')
    a('s_cbranch_scc1 L_uh_same')
    a('s_cmp_lg_u32 s101, 0')
    a('s_cbranch_scc1 L_uh_same')
    a('s_mov_b32 s101, 1')
    for l in ustores: a(l + ' sc1')
    a('s_waitcnt vmcnt(0)')
    a(f'buffer_store_dword v20, v21, s[52:55], s7 offen offset:{UH} sc1')
    a.label('L_uh_same')
    a('v_cmp_ne_u32 vcc, s50, v124')
    a('v_cmp_ne_u32 s[92:93], s100, v124')
    a('s_nop 0')
    a('s_and_b64 vcc, vcc, s[92:93]')
    a('s_cbranch_vccnz L_uh')
    a.label('L_uh_ok')
    raw(6, 's51')
    stamp('uhok')
    tu = []
    for c in range(2):
        vm.issue(f'buffer_load_dwordx4 v[{72+4*c}:{75+4*c}], v125, s[16:19], s{35-c} offen sc1')
        tu.append(vm.issue(f'buffer_load_dword v{80+c}, v125, s[16:19], s{35-c} offen offset:16 sc1'))
    if P.get('s1at', 1) == 1: stage1()
    lstore(['buffer_store_dwordx4 v[100:103], v244, s[16:19], s6 offen'])
    if KP:
        for j in list(range(4)) + list(range(4, 13)): a(f'ds_read_b128 v[{104+4*j}:{107+4*j}], v22 offset:{128*j}')
    if P.get('xat', 1) == 1: tx = xload()
    CP = {}
    if RL:
        a('s_mul_i32 s44, s2, 7')
        a('s_lshl_b32 s45, s3, 1')
        a('s_add_u32 s44, s44, s45')
        a('s_cmp_eq_u32 s3, 3')
        a('s_cselect_b32 s45, 0, 1')
        a('s_add_u32 s45, s45, s44')
        for r in range(2):
            a(f's_lshl_b32 s36, s{44+r}, 10')
            CP['l'] = vm.issue(f'buffer_load_dwordx4 v[{32+4*r}:{35+4*r}], v15, s[8:11], s36 offen' + NT)
    def wdcopy():
        a('v_lshrrev_b32 v4, 3, v1')
        a(f'v_mul_u32_u24 v4, {1792*128}, v4')
        a('v_lshl_add_u32 v4, v6, 4, v4')
        vm.need(CP['l'])
        for r in range(2):
            a(f's_lshl_b32 s36, s{44+r}, 7')
            a(f's_add_u32 s36, s36, {hex(WD2)}')
            CP['s'] = vm.issue(f'buffer_store_dwordx4 v[{32+4*r}:{35+4*r}], v4, s[16:19], s36 offen sc1')
    a('s_movk_i32 s36, 0xff')
    a('v_cmp_ne_u32 vcc, s36, v0')
    for c in range(2):
        u = 72+4*c
        vm.need(tu[c])
        if c == 0: stamp('utok')
        a(f'v_cndmask_b32 v{80+c}, 0, v{80+c}, vcc')
        a(f'ds_write_b128 v14, v[{u}:{u+3}] offset:{c*CHS+U0}')
        for j in range(3): a(f'v_alignbit_b32 v{40+4*c+j}, v{u+j+1}, v{u+j}, 16')
        a(f'v_alignbit_b32 v{43+4*c}, v{80+c}, v{u+3}, 16')
        a(f'ds_write_b128 v14, v[{40+4*c}:{43+4*c}] offset:{c*CHS+U1}')
    for _ in range(P.get('e0b', 6)): early.popleft()()
    a('s_waitcnt lgkmcnt(0)')
    a('s_barrier')
    stamp('bbar')
    a('s_lshl_b32 s6, s46, 11')
    a(f's_add_u32 s6, s6, {hex(MP)}')
    a('s_cmp_lt_u32 s29, 24')
    a(f's_cselect_b32 s7, s3, 1')
    ploads = [f'buffer_load_dwordx4 v[{240+4*j}:{243+4*j}], v15, s[16:19], s6 offen offset:{1024*j} sc1' for j in range(2)]
    tmi = []
    def mod_issue():
        a('s_cmp_lg_u32 s7, 0')
        a('s_cbranch_scc1 L_nomi')
        for l in ploads: a(l)
        a.label('L_nomi')
        tmi.append(vm.issued)
    def mod_final():
        a('s_cmp_lg_u32 s7, 0')
        a('s_cbranch_scc1 L_nomod')
        done = vm.done
        a(f's_waitcnt vmcnt({vm.issued - tmi[0]})')
        poll('mp', ploads, [242, 246], pre=0)
        vm.done = done
        a('v_pk_add_f32 v[240:241], v[240:241], v[244:245]')
        a('s_lshr_b32 s36, s46, 5')
        a('s_cmp_eq_u32 s36, 1')
        for j in range(2): a(f'v_add_f32_dpp v{240+j}, v{240+j}, v{240+j} row_ror:8 row_mask:0xf bank_mask:0xf')
        a('s_cselect_b32 s38, 1.0, 0')
        a('s_cmp_eq_u32 s36, 4')
        for op in ('v_permlane16_swap_b32', 'v_permlane32_swap_b32'):
            for j in range(2): a(f'v_mov_b32 v{242+j}, v{240+j}')
            for j in range(2): a(f'{op} v{240+j}, v{242+j}')
            a('v_pk_add_f32 v[240:241], v[240:241], v[242:243]')
        a('s_cselect_b32 s38, 1.0, s38')
        a('s_lshl_b32 s36, s46, 6')
        a('v_cvt_pk_bf16_f32 v242, v240, v241')
        a(f's_add_u32 s36, s36, {hex(MODT)}')
        lo(a, 240, 242); hi(a, 241, 242, 40)
        for j in range(2): a(f'v_add_f32 v{240+j}, s38, v{240+j}')
        a('v_cvt_pk_bf16_f32 v244, v240, v241')
        a('v_mov_b32 v246, s50')
        a('v_mov_b32 v247, s50')
        a('v_mov_b32_dpp v245, v244 quad_perm:[1,1,3,3] row_mask:0xf bank_mask:0xf')
        a('v_lshlrev_b32 v240, 3, v1')
        a('s_mov_b64 exec, 0x55')
        a('buffer_store_dwordx4 v[244:247], v240, s[16:19], s36 offen sc1')
        a('s_mov_b64 exec, -1')
        a.label('L_nomod')
    ACC, AR, BR = 40, 72, 104
    pipe = LdsPipe(a)
    reads = []
    for i in range(32):
        o = 32*((31-i) & 7); b = 16 + ((31-i) >> 3); d = AR + 4*(i & 7)
        reads.append((('A', i, 0), f'ds_read2_b32 v[{d}:{d+1}], v{b} offset0:{o} offset1:{o+1}'))
        reads.append((('A', i, 1), f'ds_read2_b32 v[{d+2}:{d+3}], v{b} offset0:{o+2} offset1:{o+3}'))
        if i < 4 and not KP:
            for t in range(8):
                j = 4*t+3-i
                reads.append((('B', j), f'ds_read_b128 v[{BR+4*j}:{BR+4*j+3}], v22 offset:{128*j}'))
    tok = {('B', j): 0 for j in range(32)} if KP else {}; nxt = [0]
    def pump(cur_step, maxn):
        n = 0
        while n < maxn and nxt[0] < len(reads) and pipe.outstanding() < 13:
            key, line = reads[nxt[0]]
            if key[0] == 'A' and key[1] >= cur_step + 8: break
            tok[key] = pipe.issue(line); nxt[0] += 1; n += 1
    pump(0, 12)
    slow(2)
    MAT = P.get('mat', 0)
    pending = []; nm = 0
    NB = P.get('e1', 9); EV = P.get('ev', 10)
    for i in range(32):
        for t in range(i >> 2, 8):
            j = 4*t+3-i
            while ('B', j) not in tok or ('A', i, 1) not in tok:
                pipe.need(pipe.done + 2); pump(i, 2)
            pipe.need(max(tok[('A', i, 1)], tok[('B', j)]))
            d = ACC+4*t; c = '0' if i == 0 else f'v[{d}:{d+3}]'
            s = AR+4*(i & 7)
            a(f'v_mfma_f32_16x16x32_bf16 v[{d}:{d+3}], v[{s}:{s+3}], v[{BR+4*j}:{BR+4*j+3}], {c}')
            pump(i, 2 if i < 4 else 1)
            nm += 1
            if nm >= P.get('e1s', 40) and nm % EV == 0 and NB > 0 and early:
                early.popleft()(); NB -= 1
        if pending and pipe.outstanding() < 14:
            t = pending.pop()
            pipe.issue(f'ds_write_b128 v23, v[{ACC+4*t}:{ACC+4*t+3}] offset:{1024*t}')
        if (i & 3) == 3: pending.append(i >> 2)
        if RL and i == P.get('cpa', 10): wdcopy()
        if i == P.get('mpi', 2) and not MAT: mod_issue()
        if i == P.get('mfin', 7) and not MAT: mod_final(); raw(7, 's51')
    for t in pending:
        pipe.issue(f'ds_write_b128 v23, v[{ACC+4*t}:{ACC+4*t+3}] offset:{1024*t}')
    stamp('bend')
    a('v_lshlrev_b32 v4, 3, v0')
    a(f'v_add_u32 v4, {PRM}, v4')
    a('v_lshrrev_b32 v2, 1, v0')
    a('v_bfe_u32 v3, v0, 4, 2')
    a('v_xor_b32 v2, v2, v3')
    a('v_lshlrev_b32 v2, 4, v2')
    a('v_and_b32 v3, 1, v0')
    a('v_lshl_add_u32 v2, v3, 3, v2')
    a(f'v_add_u32 v2, {PB}, v2')
    a('v_lshlrev_b32 v3, 4, v0')
    a('v_and_b32 v5, 3, v0')
    a(f's_mul_i32 s38, s32, {YP}')
    a(f's_add_u32 s38, s38, {hex(YT)}')
    a(f'v_add_u32 v13, {PRM}, v15')
    a('s_and_b32 s36, s32, 7')
    a('s_lshl_b32 s36, s36, 1')
    a('s_and_b32 s37, s3, 1')
    a('s_or_b32 s36, s36, s37')
    a('s_lshl_b32 s36, s36, 6')
    a(f's_add_u32 s36, s36, {PRM+5120}')
    a('v_lshrrev_b32 v14, 5, v1')
    a('v_lshl_add_u32 v14, v14, 4, s36')
    if RL: vm.need(CP['s'])
    a('s_waitcnt lgkmcnt(0)')
    a('s_barrier')
    stamp('pbar')
    for j in range(4):
        for w in range(4):
            a(f'ds_read_b64 v[{72+8*j+2*w}:{73+8*j+2*w}], v2 offset:{8192*w+2048*j}')
        if j == 2: a('s_waitcnt lgkmcnt(8)')
    if MAT: mod_issue()
    for j in range(4):
        b = 72+8*j; q = 24+4*j
        if j: a(f's_waitcnt lgkmcnt({12-4*j})')
        a(f'v_pk_add_f32 v[{b}:{b+1}], v[{b}:{b+1}], v[{b+2}:{b+3}]')
        a(f'v_pk_add_f32 v[{b+4}:{b+5}], v[{b+4}:{b+5}], v[{b+6}:{b+7}]')
        a(f'v_mov_b32 v{q+2}, s50')
        a(f'v_mov_b32 v{q+3}, s50')
        a(f'v_cvt_pk_bf16_f32 v{q}, v{b}, v{b+4}')
        a(f'v_cvt_pk_bf16_f32 v{q+1}, v{b+1}, v{b+5}')
        tys = vm.issue(f'buffer_store_dwordx4 v[{q}:{q+3}], v3, s[16:19], s38 offen sc1')
        if j < 3: a('s_add_u32 s38, s38, 0x1000')
    stamp('ytst')
    a('v_mov_b32 v22, v4')
    a('v_mov_b32 v23, v14')
    a('v_mov_b32 v60, v5')
    slow(3)
    a('v_mov_b32 v5, v60')
    if MAT: mod_final(); raw(7, 's51')
    if MAT == 2: a('s_barrier')
    for _ in range(P.get('e2', 6)): early.popleft()()
    a('s_lshl_b32 s35, s3, 10')
    a(f's_add_u32 s35, s35, {hex(MODT)}')
    a('s_add_u32 s34, s35, 0x1000')
    a('s_add_u32 s4, s35, 0x2000')
    mloads = [f'buffer_load_dwordx4 v[{104+4*r}:{107+4*r}], v15, s[16:19], s{(35, 34, 4)[r]} offen sc1' for r in range(3)]
    a('v_lshrrev_b32 v4, 2, v0')
    a(f'v_mul_u32_u24 v3, {2*YS}, v5')
    a('v_lshl_add_u32 v3, v4, 2, v3')
    a(f'v_add_u32 v3, {XG}, v3')
    a(f's_mul_i32 s46, s3, {2*YS}')
    a(f's_add_u32 s46, s46, {XG}')
    a('v_add_u32 v4, s46, v15')
    a('s_lshl_b32 s46, s3, 1')
    a('v_xor_b32 v5, s46, v6')
    a('v_lshlrev_b32 v5, 4, v5')
    a('v_lshl_add_u32 v5, v1, 7, v5')
    a(f'v_add_u32 v5, {XH}, v5')
    a('v_xor_b32 v16, 16, v5')
    a('v_lshrrev_b32 v17, 3, v1')
    a('v_xor_b32 v18, v17, v6')
    a('v_lshlrev_b32 v18, 4, v18')
    a('v_lshl_add_u32 v18, v17, 7, v18')
    a('s_lshl_b32 s46, s3, 11')
    a(f's_add_u32 s46, s46, {XH}')
    a('v_add_u32 v18, s46, v18')
    a('v_lshlrev_b32 v17, 9, v17')
    a('v_lshl_add_u32 v17, v6, 4, v17')
    a('s_lshr_b32 s46, s32, 2')
    a('s_lshl_b32 s46, s46, 15')
    a('s_and_b32 s47, s32, 3')
    a('s_lshl_b32 s47, s47, 7')
    a('s_add_u32 s46, s46, s47')
    a('s_lshl_b32 s47, s3, 13')
    a('s_add_u32 s46, s46, s47')
    a(f's_add_u32 s46, s46, {hex(H2)}')
    a('s_add_u32 s47, s46, 0x1000')
    a(f's_add_u32 s37, s33, {hex(X1)}')
    a('v_lshrrev_b32 v14, 2, v0')
    a(f'v_mul_u32_u24 v14, {YP}, v14')
    a('v_and_b32 v19, 3, v0')
    a('v_lshl_add_u32 v14, v19, 4, v14')
    a('s_lshl_b32 s24, s32, 6')
    a(f's_add_u32 s26, s24, {hex(YT)}')
    a(f's_add_u32 s27, s26, {64*YP}')
    a(f's_add_u32 s5, s26, {128*YP}')
    a(f's_add_u32 s6, s26, {192*YP}')
    X = (64, 160)
    vm.need(tx)
    subs = []
    for t in range(2):
        s = Asm(); unpack8(s, X[t], 232+4*t, 40); ln2p(s, X[t], X[t]+8, X[t]+16, 24+t)
        subs.append(s)
    zipl(a, *subs)
    stamp('ln1')
    yloads = [f'buffer_load_dwordx4 v[{24+4*j}:{27+4*j}], v14, s[16:19], s{(26, 27, 5, 6)[j]} offen sc1' for j in range(4)]
    vm.need(tys)
    stamp('ytack')
    for l in yloads: ty = vm.issue(l)
    for l in mloads: tm = vm.issue(l)
    poll('yt', yloads, [26, 30, 34, 38], pre=ty)
    stamp('ytok'); raw(2, 's51')
    for j in range(4):
        a(f'ds_write_b32 v3, v{24+4*j} offset:{256*j}')
        a(f'ds_write_b32 v3, v{25+4*j} offset:{256*j+YS}')
    poll('md', mloads, [106, 110, 114], pre=tm)
    stamp('mdok'); raw(1, 's51')
    for r in range(3): a(f'ds_write_b64 v22, v[{104+4*r}:{105+4*r}] offset:{2048*r}')
    a('s_waitcnt lgkmcnt(0)')
    a('s_barrier')
    stamp('ybar')
    ptok = {}
    def p2dma(k):
        a(f's_add_u32 m0, s49, {SEG[0][1] + 2048*(k % 15)}')
        if k and k % 4: a(f's_add_u32 s48, s48, {16*3584}')
        elif k: step('s48', 16*3584, 's100', 512*3584)
        ptok[k] = vm.issue('buffer_load_dwordx4 v7, s[20:23], s48 offen lds')
    a(f's_add_u32 s100, s48, {512*3584}')
    a(f's_mul_i32 s36, s98, {64*3584}')
    a('s_add_u32 s48, s48, s36')
    for _ in range(P.get('e3', 3)): early.popleft()()
    NSY = P.get('nsy', 0)
    for k in range(NSY): p2dma(k)
    for i, off in enumerate((1024, 0, 2048)):
        a(f'ds_read_b128 v[{40+4*i}:{43+4*i}], v13 offset:{off}')
    a('ds_read_b128 v[24:27], v4')
    a(f'ds_read_b128 v[28:31], v4 offset:{YS}')
    for i, off in enumerate((4096, 3072)):
        a(f'ds_read_b128 v[{52+4*i}:{55+4*i}], v13 offset:{off}')
    a('ds_read_b128 v[124:127], v23')
    a('ds_read_b128 v[116:119], v23 offset:32')
    a('s_waitcnt lgkmcnt(7)')
    unpack8(a, 128, 40, 40); unpack8(a, 136, 44, 40)
    for t in range(2):
        for p in range(4):
            d = X[t]+8+2*p
            a(f'v_pk_fma_f32 v[{d}:{d+1}], v[{d}:{d+1}], v[{128+2*p}:{129+2*p}], v[{136+2*p}:{137+2*p}]')
    a('s_waitcnt lgkmcnt(6)')
    unpack8(a, 144, 48, 40)
    for t in range(2):
        for p in range(4):
            d = X[t]+8+2*p
            a(f'v_pk_mul_f32 v[{d}:{d+1}], v[{d}:{d+1}], v[{144+2*p}:{145+2*p}]')
    a('s_waitcnt lgkmcnt(0)')
    unpack8(a, 128, 52, 40); unpack8(a, 136, 56, 40)
    subs = []
    for t in range(2):
        s = Asm(); x = X[t]
        unpack8(s, x+20, 24+4*t, 40)
        for p in range(4):
            s(f'v_pk_fma_f32 v[{x+2*p}:{x+2*p+1}], v[{x+8+2*p}:{x+9+2*p}], v[{x+20+2*p}:{x+21+2*p}], v[{x+2*p}:{x+2*p+1}]')
        for j in range(4): s(f'v_cvt_pk_bf16_f32 v{32+4*t+j}, v{x+2*j}, v{x+2*j+1}')
        s(f'buffer_store_dwordx4 v[{32+4*t}:{35+4*t}], v15, s[16:19], s37 offen offset:{1024*t} sc1')
        unpack8(s, x, 32+4*t, 40)
        (ln1p if P.get('l1', 1) else ln2p)(s, x, x+8, x+16, 24+2*t)
        for p in range(4):
            s(f'v_pk_fma_f32 v[{x+8+2*p}:{x+9+2*p}], v[{x+8+2*p}:{x+9+2*p}], v[{128+2*p}:{129+2*p}], v[{136+2*p}:{137+2*p}]')
        for j in range(4): s(f'v_cvt_pk_bf16_f32 v{40+4*t+j}, v{x+8+2*j}, v{x+9+2*j}')
        s(f'ds_write_b128 v{(5, 16)[t]}, v[{40+4*t}:{43+4*t}]')
        subs.append(s)
    zipl(a, *subs)
    vm.issued += 2
    a('s_waitcnt lgkmcnt(0)')
    a('s_barrier')
    stamp('hbar')
    a('ds_read_b128 v[24:27], v18')
    a('ds_read_b128 v[28:31], v18 offset:1024')
    a('s_and_b32 s24, s32, 31')
    a('s_lshl_b32 s24, s24, 4')
    a('s_lshl_b32 s25, s3, 2')
    a('s_add_u32 s33, s24, s25')
    a('s_and_b32 s25, s30, 1')
    a('s_lshl_b32 s25, s25, 8')
    a('s_lshl_b32 s26, s3, 6')
    a('s_add_u32 s25, s25, s26')
    a('v_and_b32 v19, 15, v1')
    a('v_lshlrev_b32 v19, 2, v19')
    if M2:
        a('s_lshl_b32 s25, s3, 2')
        a('s_lshl_b32 s24, s32, 7')
        a('s_add_u32 s24, s24, s25')
        a(f's_add_u32 s24, s24, {hex(FL1)}')
        a('s_lshl_b32 s33, s30, 4')
        a('s_or_b32 s33, s33, s31')
        a('s_lshl_b32 s33, s33, 7')
        a('s_add_u32 s33, s33, s25')
        a(f's_add_u32 s33, s33, {hex(FL2)}')
        a('s_lshl_b32 s26, s30, 4')
        a('s_add_u32 s26, s26, s25')
        a('s_lshl_b32 s26, s26, 7')
        a(f's_add_u32 s97, s26, {hex(FL1)}')
        a('s_lshr_b32 s26, s32, 4')
        a('s_lshl_b32 s26, s26, 4')
        a('s_add_u32 s26, s26, s25')
        a('s_lshl_b32 s26, s26, 7')
        a(f's_add_u32 s25, s26, {hex(FL2)}')
        a('v_bfe_u32 v19, v1, 2, 2')
        a('v_and_b32 v22, 3, v1')
        a('v_lshlrev_b32 v22, 2, v22')
        a('v_lshl_add_u32 v19, v19, 7, v22')
    def flag(F):
        if not M2: return lstore([f'buffer_store_dword v20, v21, s[52:55], s33 offen offset:{F}'])
        if F == F3: a(f's_add_u32 s33, s33, {FL3-FL2}')
        return vm.issue(f'buffer_store_dword v20, v21, s[16:19], {"s24" if F == F1 else "s33"} offen sc1')
    def look(F):
        if not M2: return [f'buffer_load_dword v22, v{19 if F == F1 else 13}, s[52:55], s25 offen offset:{F} sc1']
        return [f'buffer_load_dword v22, v{19 if F == F1 else 13}, s[16:19], {"s97" if F == F1 else "s25"} offen sc1']
    a('s_waitcnt lgkmcnt(0)')
    lstore(['buffer_store_dwordx4 v[24:27], v17, s[16:19], s46 offen', 'buffer_store_dwordx4 v[28:31], v17, s[16:19], s47 offen'], P.get('h2s', M2))
    stamp('h2st')
    a('v_bfe_u32 v4, v1, 4, 1')
    a('v_lshrrev_b32 v5, 5, v1')
    a('v_bfe_u32 v22, v1, 2, 2')
    a('v_and_b32 v23, 3, v1')
    a('v_lshlrev_b32 v23, 3, v23')
    a('v_lshl_add_u32 v3, v5, 3, v22')
    a('v_bfe_u32 v13, v1, 3, 1')
    a('v_lshlrev_b32 v16, 7, v3')
    a('v_add_u32 v16, v16, v23')
    a('v_lshl_add_u32 v16, v13, 6, v16')
    a('v_lshl_add_u32 v16, v4, 5, v16')
    a(f'v_mul_u32_u24 v17, {SEG[0][2]-SEG[0][1]}, v4')
    a(f'v_add_u32 v17, {SEG[0][1]}, v17')
    a(f'v_mul_u32_u24 v18, {P1U}, v4')
    for ct in range(4):
        a(f'v_xor_b32 v14, {32*ct}, v16')
        a(f'v_add_u32 v{246+ct}, v14, v17')
    a('v_mul_u32_u24 v3, 0x60, v3')
    a('v_add_u32 v3, v3, v23')
    a('v_add_u32 v18, v18, v3')
    a('v_lshl_add_u32 v3, v5, 2, v22')
    a('v_lshlrev_b32 v3, 7, v3')
    a('v_lshl_add_u32 v3, v13, 6, v3')
    a('v_lshl_add_u32 v3, v4, 5, v3')
    a('v_add_u32 v3, v3, v23')
    a('s_lshl_b32 s26, s3, 11')
    a('s_and_b32 s27, s3, 1')
    a('s_lshl_b32 s27, s27, 6')
    a('v_xor_b32 v3, s27, v3')
    a('v_add_u32 v240, s26, v3')
    a('v_xor_b32 v241, 64, v240')
    for i in range(1, 3):
        a(f'v_add_u32 v{240+2*i}, {65536*i}, v240')
        a(f'v_add_u32 v{241+2*i}, {65536*i}, v241')
    a(f's_mov_b32 s44, {fh(GC2)}'); a(f's_mov_b32 s45, {fh(GC2)}')
    a(f'v_mov_b32 v2, {fh(GC1)}'); a(f'v_mov_b32 v3, {fh(GC1)}')
    a('s_lshl_b32 s27, s30, 2')
    a('s_add_u32 s27, s27, s3')
    a('s_lshl_b32 s28, s27, 15')
    a(f's_add_u32 s28, s28, {hex(H2)}')
    a('v_add_u32 v14, s28, v15')
    a('s_lshl_b32 s28, s98, 12')
    a('s_waitcnt vmcnt(0)'); vm.done = vm.issued
    stamp('h2dr')
    flag(F1)
    while early: early.popleft()()
    NS0 = P.get('ns0', 0) + NSY
    for k in range(NSY, NS0): p2dma(k)
    a('s_mul_i32 s29, s27, 112')
    AP = 1024 if M2 else YP
    if M2:
        a('s_lshl_b32 s47, s31, 2')
        a('s_add_u32 s47, s47, s29')
        a('s_lshl_b32 s47, s47, 10')
        a(f's_add_u32 s47, s47, {hex(ACT)}')
    else:
        a('s_lshl_b32 s47, s3, 4')
        a('s_add_u32 s47, s47, s31')
        a(f's_mul_i32 s47, s47, {4*YP}')
        a('s_lshl_b32 s4, s30, 10')
        a(f's_add_u32 s4, s4, {hex(YT)}')
        a('s_add_u32 s47, s47, s4')
    a('s_mul_i32 s46, s31, 3')
    a('s_add_u32 s46, s46, s29')
    a('s_lshl_b32 s46, s46, 10')
    a(f's_add_u32 s46, s46, {hex(ACT + 64*1024)}')
    a('s_lshr_b32 s39, s32, 3')
    a('s_and_b32 s35, s39, 1')
    a(f's_and_b32 s34, s39, {P.get("wrot", 0)}')
    a('s_and_b32 s24, s32, 7')
    a('s_lshl_b32 s24, s24, 7')
    if RL:
        a(f's_add_u32 s8, s58, {hex(WD2)}')
        a('s_addc_u32 s9, s59, 0')
        a('s_mul_i32 s24, s24, 1792')
    a(f's_mul_i32 s37, s3, {12*WS_}')
    a('s_add_u32 s37, s37, s24')
    a(f's_add_u32 s30, s37, {76*WS_}')
    a(f's_mul_i32 s36, s34, {3*WS_}')
    a('s_add_u32 s37, s37, s36')
    a(f's_add_u32 s37, s37, {64*WS_}')
    a(f's_mul_i32 s38, s3, {16*WS_}')
    a('s_add_u32 s38, s38, s24')
    a(f's_add_u32 s31, s38, {16*WS_}')
    a(f's_mul_i32 s36, s34, {4*WS_}')
    a('s_add_u32 s38, s38, s36')
    if M2:
        a(f's_mul_i32 s4, s39, {224*1024}')
        a('s_lshl_b32 s6, s3, 14')
        a('s_add_u32 s6, s6, s4')
        a(f's_add_u32 s6, s6, {hex(ACT)}')
    else:
        a('s_lshl_b32 s6, s35, 3')
        a('s_add_u32 s6, s6, s3')
        a(f's_mul_i32 s6, s6, {16*YP}')
        a('s_add_u32 s6, s6, s4')
    a(f's_add_u32 s42, s6, {16*AP}')
    a(f's_mul_i32 s36, s34, {4*AP}')
    a('s_add_u32 s6, s6, s36')
    a(f's_mul_i32 s4, s39, {224*1024}')
    a(f's_mul_i32 s5, s3, {12*1024}')
    a('s_add_u32 s5, s5, s4')
    a(f's_add_u32 s5, s5, {hex(ACT + 64*1024)}')
    a(f's_add_u32 s41, s5, {12*1024}')
    a(f's_mul_i32 s36, s34, {3*1024}')
    a('s_add_u32 s5, s5, s36')
    a('s_lshl_b32 s39, s39, 16')
    a('s_and_b32 s24, s32, 7')
    a('s_lshl_b32 s24, s24, 7')
    a('s_add_u32 s39, s39, s24')
    a('v_bfe_u32 v4, v1, 1, 2')
    a('v_and_b32 v5, 1, v1')
    a('v_lshlrev_b32 v5, 2, v5')
    a(f'v_lshl_add_u32 v4, v4, {7 if M2 else 4}, v5')
    a('s_lshl_b32 s35, s35, 3')
    a('v_add_u32 v13, s35, v4')
    a('s_cmp_ge_u32 s3, 2')
    for r, (reg0, reg1, dist) in enumerate(((250, 16, 112*1024), (251, 17, 112*1024 if M2 else 64*YP))):
        a(f's_cselect_b32 s36, {dist}, 0')
        a(f'v_add_u32 v{reg0}, s36, v15')
        a(f's_cselect_b32 s36, 0, {dist}')
        a(f'v_add_u32 v{reg1}, s36, v15')
    a('v_lshlrev_b32 v73, 7, v1')
    a('s_lshl_b32 s34, s2, 2')
    a('s_add_u32 s34, s34, s3')
    a(f's_mul_i32 s34, s34, {14*128}')
    poll('f1', look(F1), [22])
    stamp('f1ok'); raw(3, 's51')
    htok = {}
    def h2load(ks):
        htok[ks] = vm.issue(f'buffer_load_dwordx4 a[{4*ks}:{4*ks+3}], v14, s[16:19], s28 offen offset:{1024*(ks&3)} sc1')
        if (ks & 3) == 3:
            a('s_add_u32 s28, s28, 0x1000'); a('s_and_b32 s28, s28, 0x7fff')
    NH0 = P.get('nh0', 8)
    for ks in range(NH0): h2load(ks)
    slow(4)
    a('s_barrier')
    stamp('b0')
    wtok, atok = {}, {}
    def wd0(i):
        so = 's37' if i < 12 else 's38'
        a(f's_add_u32 m0, s26, {8192*WBL[i]}')
        if i not in (0, 12): a(f's_add_u32 {so}, {so}, {WS_}')
        vm.issue(f'buffer_load_dwordx4 v8, s[8:11], {so} offen lds')
    def wd1(i):
        wtok[i] = vm.issue(f'buffer_load_dwordx4 v9, s[8:11], {"s37" if i < 12 else "s38"} offen offset:1024 lds')
    def wreg(i): return ('v', 72 + 8*i) if i < 5 else ('a', 224 + 8*(i-5)) if i < 8 else ('v', AR + 8*(i % 3))
    def wread(i, mt, jj):
        kind, d = wreg(i); ad = 8192*WBL[i]
        return f'ds_read_b64_tr_b16 {kind}[{d+4*mt+2*jj}:{d+4*mt+2*jj+1}], v{240+2*(ad>>16)+mt} offset:{(ad & 0xffff)+1024*jj}'
    def abase(i): return 128 + 8*i if i < 12 else 8*(i-12)
    def act0(i):
        b = abase(i)
        if i < 12:
            if i and i % 4 == 0: a('s_add_u32 s5, s5, 0x1000')
            vm.issue(f'buffer_load_dwordx4 a[{b}:{b+3}], v250, s[16:19], s5 offen offset:{1024*(i & 3)} sc1')
        else:
            if i > 12: a(f's_add_u32 s6, s6, {AP}')
            vm.issue(f'buffer_load_dwordx4 a[{b}:{b+3}], v251, s[16:19], s6 offen sc1')
    def act1(i):
        b = abase(i)
        if i < 12: atok[i] = vm.issue(f'buffer_load_dwordx4 a[{b+4}:{b+7}], v16, s[16:19], s5 offen offset:{1024*(i & 3)} sc1')
        else: atok[i] = vm.issue(f'buffer_load_dwordx4 a[{b+4}:{b+7}], v17, s[16:19], s6 offen sc1')
    valu = deque()
    AR, NA = 24, 6
    ACC1, ACC2 = 192, 128
    pipe = LdsPipe(a)
    steps = [(0, k, ct) for k in range(32) for ct in range(2)] + [(0, k, 2) for k in range(32)] + [(1, k, ct) for k in range(32) for ct in range(4)]
    tok = {}; nxt = [0]
    def rd(n):
        ps, k, ct = steps[n]; d = AR + 4*(n % NA)
        for jj in range(2):
            b, off = (18, (16*k + 4*jj)*96 + 32*ct) if ps == 0 else (246+ct, 2048*(k % 15) + 512*jj)
            tok[n] = pipe.issue(f'ds_read_b64_tr_b16 v[{d+2*jj}:{d+2*jj+1}], v{b} offset:{off}')
    for n in range(NA-1): rd(n)
    nxt[0] = NA-1
    J = dict(h=NH0, p=NS0, w=0, half=False, a=0, ahalf=False, pmax=15, wmax=0, f2=False, lastp=-99)
    stg = {}
    def wfree(i): return i < J['wmax'] and (not 12 <= i < 20 or stg.get(i - 12, 1 << 30) <= pipe.done)
    def job(n):
        if J['half']: J['half'] = False; wd1(J['w']); J['w'] += 1; return 1
        if J['h'] < 32: h2load(J['h']); J['h'] += 1; return 1
        if J['p'] < J['pmax'] and n - J['lastp'] >= PE: p2dma(J['p']); J['p'] += 1; J['lastp'] = n; return 3
        if J['ahalf']: J['ahalf'] = False; act1(J['a']); J['a'] += 1; return 1
        if J['f2'] and J['a'] < 12 and (J['a'] <= J['w'] - P.get('wa', 8) or not wfree(J['w']) or J['w'] >= 28):
            act0(J['a']); J['ahalf'] = True; return 1
        if J['w'] < 28 and wfree(J['w']) and n >= P.get('ws', 112): wd0(J['w']); J['half'] = True; return 3
        return 0
    VB = P.get('vb', 35); PE = P.get('pe', 3); TE = P.get('te', 15); LW = P.get('lw', 2)
    stok = {}; sg = 0; credit = 0; nb = 0; ta = 0; fload = look(F2); tp = None
    F2P, F2C = P.get('f2p', 999), P.get('f2c', 204)
    def gelu_step(x, n):
        if isinstance(x, tuple):
            stok[x[1]] = vm.issue(f'buffer_store_dwordx4 v[{x[2]}:{x[2]+3}], v15, s[16:19], s46 offen offset:{1024*x[1]} sc1')
            stok['at'] = n
        else: a(x)
    for n, (ps, k, ct) in enumerate(steps):
        if n < 64 and ct == 0:
            while k not in htok: job(n)
            vm.need(htok[k])
        if tok[n] > pipe.done: pipe.need(tok[min(n + LW - 1, len(steps) - 1)])
        d = (ACC1, ACC2)[ps] + 16*ct; c = '0' if k == 0 else f'v[{d}:{d+15}]'
        sa = AR + 4*(n % NA)
        a(f'v_mfma_f32_32x32x16_bf16 v[{d}:{d+15}], v[{sa}:{sa+3}], a[{4*k}:{4*k+3}], {c}')
        if nxt[0] < len(steps): rd(nxt[0]); nxt[0] += 1
        credit = min(credit + VB, P.get('cap', 40))
        if n in BARS:
            land, J['pmax'], J['wmax'] = BARS[n][0], J['pmax'], J['wmax']
            if land is not None:
                while land not in ptok:
                    if J['half']: job(n)
                    p2dma(J['p']); J['p'] += 1
                vm.need(ptok[land])
            a('s_barrier')
            J['pmax'], J['wmax'] = BARS[n][1:]
            nb += 1; stamp(f'b{nb}'); credit -= 10
        if n == P.get('wt', 999 if RL else 60):
            a('s_mov_b64 exec, 0x3fff')
            vm.issue('buffer_load_dword v72, v73, s[8:11], s34 offen')
            a('s_mov_b64 exec, -1')
        if n in (65, 97):
            if n == 65: stamp('p1a')
            else: stamp('p1end')
            for t in ((0, 1) if n == 65 else (2,)):
                o = 64 + 4*(t & 1)
                valu.extend(gelu_ops(ACC1+16*t, 48 + 8*(t & 1), o))
                valu.append(('store', t, o))
        ta += 10
        if n == F2P and 'f2' in stok: tp = vm.issue(fload[0]); ta = 0
        elif n == F2C and tp is not None:
            poll('f2', fload, [22], pre=tp); J['f2'] = True
            stamp('f2ok'); raw(4, 's51')
        elif ta >= TE:
            cst = job(n)
            if cst: ta -= TE; credit -= 10*cst
            else: ta = TE
        if n >= P.get('stg', 160) and sg < 32 and pipe.outstanding() <= 13 and credit >= 10 and (not valu or n % 2):
            i, r = divmod(sg, 4)
            if i in wtok and (wtok[i] <= vm.done or vm.issued - wtok[i] >= P.get('sl', 8)):
                vm.need(wtok[i])
                t = pipe.issue(wread(i, r >> 1, r & 1)); sg += 1; credit -= 10
                if r == 3: stg[i] = t
        while valu and credit >= 10*(cost(valu[0]) if isinstance(valu[0], str) else 1):
            x = valu.popleft(); gelu_step(x, n)
            if isinstance(x, str): credit -= 10*cost(x)
        if 2 in stok and 'f2' not in stok and n >= stok['at'] + P.get('fdel', 24):
            vm.need(stok[2])
            stok['f2'] = flag(F2); print('F2 at', n, end='; ')
    while valu: gelu_step(valu.popleft(), 224)
    if 'f2' not in stok:
        vm.need(stok[2])
        stok['f2'] = flag(F2)
    assert J['p'] == 32 and J['h'] == 32
    print('w_down steps', J['w'], 'staged', sg, 'act steps', J['a'])
    while sg < 32:
        i, r = divmod(sg, 4)
        while i not in wtok: job(999)
        vm.need(wtok[i])
        stg[i] = pipe.issue(wread(i, r >> 1, r & 1)); sg += 1
    pipe.need(pipe.issued)
    if tp is None and P.get('fp', 2) < 4: tp = vm.issue(fload[0])
    a('s_mov_b32 s34, 1.0'); a('s_mov_b32 s35, 1.0')
    def geglu2(t):
        s = Asm(); geglu(s, ACC2+16*t, 48, 64 + 4*(t & 1))
        for j, l in enumerate(s.lines):
            a(l.replace('s[46:47]', 's[34:35]'))
            if j % P.get('ge', 8) == 3 and t < P.get('gt', 4): job(999)
        if t: a(f's_add_u32 s47, s47, {AP}')
        return lstore([f'buffer_store_dwordx4 v[{64+4*(t&1)}:{67+4*(t&1)}], v15, s[16:19], s47 offen'], P.get('a2s', M2))
    for t in range(4):
        if t == P.get('fp', 2) and not J['f2']:
            stamp('g1')
            poll('f2', fload, [22], pre=tp); J['f2'] = True
            stamp('f2ok'); raw(4, 's51')
        if t == 3 and tp is None: tp = vm.issue(fload[0])
        ts3 = geglu2(t)
    stamp('g3')
    a('v_and_b32 v4, 31, v1')
    a('v_lshrrev_b32 v5, 5, v1')
    a('v_lshlrev_b32 v10, 10, v4')
    a('v_lshl_add_u32 v10, v5, 4, v10')
    a('s_lshr_b32 s46, s3, 1')
    a('s_lshl_b32 s46, s46, 15')
    a('s_and_b32 s47, s3, 1')
    a('s_lshl_b32 s47, s47, 6')
    a('s_add_u32 s39, s39, s46')
    a('s_add_u32 s39, s39, s47')
    a(f's_add_u32 s46, s39, {hex(X1)}')
    vm.need(ts3)
    flag(F3)
    if not J['f2']:
        poll('f2', fload, [22], pre=tp); J['f2'] = True
        stamp('f2ok'); raw(4, 's51')
        while J['a'] < P.get('a1b', 3): job(999)
    if M2: a(f's_add_u32 s25, s25, {FL3-FL2}')
    stamp('estart')
    pipe = LdsPipe(a); tok = {}
    def rd2(i):
        while i not in wtok: job(999)
        vm.need(wtok[i])
        for mt in range(2):
            for jj in range(2): tok[(i, mt)] = pipe.issue(wread(i, mt, jj))
    f3load = look(F3)
    for i in range(8): stg[i] = 0
    F3C = P.get('f3c', 8); JE = P.get('je', 2); tp = None; g = 0; aq = deque()
    for i in range(28):
        stamp(f'e{i}')
        if i == F3C:
            while J['a'] < 12 or J['half']: job(999)
            if tp is None: tp = vm.issue(f3load[0])
            poll('f3', f3load, [22], pre=tp)
            stamp('f3ok'); raw(5, 's51')
            for ii in range(12, 28): aq.extend([lambda ii=ii: act0(ii), lambda ii=ii: act1(ii)])
            for _ in range(P.get('a2b', 4)): aq.popleft()()
        if i == 22:
            vm.issue('buffer_load_dwordx4 v[72:75], v10, s[16:19], s46 offen sc1')
            tx = vm.issue('buffer_load_dwordx4 v[76:79], v10, s[16:19], s46 offen offset:32 sc1')
        kind, d0 = wreg(i); b = abase(i)
        while i not in atok: (aq.popleft()() if i >= 12 else job(999))
        vm.need(atok[i])
        for mt in range(2):
            if i >= 8: pipe.need(tok[(i, mt)])
            for nt in range(2):
                d = ACC2 + 32*mt + 16*nt; c = '0' if i == 0 else f'v[{d}:{d+15}]'
                a(f'v_mfma_f32_32x32x16_bf16 v[{d}:{d+15}], {kind}[{d0+4*mt}:{d0+4*mt+3}], a[{b+4*nt}:{b+4*nt+3}], {c}')
                g += 1
                if mt == 0 and nt == 0 and 8 <= i+2 < 28: rd2(i+2)
                if g % JE == 0:
                    if aq and not J['half'] and (J['w'] >= 28 or J['w'] > i + P.get('wb', 28)): aq.popleft()()
                    elif tp is None and not J['half'] and J['a'] == 12 and (J['w'] >= 28 or i == F3C - 1): tp = vm.issue(f3load[0])
                    elif not job(999) and aq: aq.popleft()()
    stamp('eend')
    PBL = [None, (WBL[8], WBL[9]), (WBL[10], WBL[11]), (WBL[12], WBL[13])]
    a('v_add_u32 v4, s26, v15')
    a('v_add_u32 v5, 0x10000, v4')
    a('v_add_u32 v18, 0x20000, v4')
    base(a, 12, 56, 0x200000)
    for t in range(1, 4):
        d = ACC2 + 32*(t & 1) + 16*(t >> 1)
        for g in range(4):
            ad = 8192*PBL[t][g >> 1] + 1024*(g & 1)
            a(f'ds_write_b128 v{(4, 5, 18)[ad >> 16]}, v[{d+4*g}:{d+4*g+3}] offset:{ad & 0xffff}')
        a(f's_xor_b32 s6, s26, {2048*t}')
        a(f's_add_u32 s7, s6, {8192*PBL[t][1]}')
        a(f's_add_u32 s6, s6, {8192*PBL[t][0]}')
        a(f'v_add_u32 v{88+2*t}, s6, v15')
        a(f'v_add_u32 v{89+2*t}, s7, v15')
    vm.need(tx)
    unpack8(a, 96, 124, 40); unpack8(a, 104, 116, 40); unpack8(a, 48, 72, 40); unpack8(a, 56, 76, 40)
    a('s_waitcnt lgkmcnt(0)')
    a('s_barrier')
    stamp('ebar')
    for i in range(1, 4):
        for g in range(4):
            a(f'ds_read_b128 v[{128+16*i+4*g}:{131+16*i+4*g}], v{88+2*i+(g >> 1)} offset:{1024*(g & 1)}')
    for i in range(1, 4):
        a(f's_waitcnt lgkmcnt({12-4*i})')
        for p in range(8): a(f'v_pk_add_f32 v[{128+2*p}:{129+2*p}], v[{128+2*p}:{129+2*p}], v[{128+16*i+2*p}:{129+16*i+2*p}]')
    for g in range(2):
        b = 128 + 8*g
        for r in range(4): a(f'v_permlane32_swap_b32 v{b+r}, v{b+4+r}')
        for p in range(4): a(f'v_pk_fma_f32 v[{b+2*p}:{b+2*p+1}], v[{b+2*p}:{b+2*p+1}], v[{96+8*g+2*p}:{97+8*g+2*p}], v[{48+8*g+2*p}:{49+8*g+2*p}]')
        for p in range(4): a(f'v_cvt_pk_bf16_f32 v{40+4*g+p}, v{b+2*p}, v{b+2*p+1}')
        a(f'buffer_store_dwordx4 v[{40+4*g}:{43+4*g}], v10, s[12:15], s39 offen offset:{32*g}' + ('', ' sc1', ' nt')[P.get('ost', 0)])
    a('s_or_b32 s4, s2, s3')
    a('s_cmp_lg_u32 s4, 0')
    a('s_cbranch_scc1 L_noep')
    a(f's_mov_b32 s4, {hex(EPOCH)}')
    a('buffer_store_dword v20, v21, s[16:19], s4 offen')
    a.label('L_noep')
    if P.get('probe') is not None:
        a('s_waitcnt vmcnt(0)')
        stamp('end')
        a('s_waitcnt lgkmcnt(0)')
        k = P['probe']
        if k >= 100:
            a(f's_mov_b32 s36, {hex(0x140A000)}')
            a('buffer_load_dwordx4 v[24:27], v15, s[16:19], s36 offen sc1')
            a('s_waitcnt vmcnt(0)')
            for r, op in ((28, 'min'), (29, 'max')):
                a(f'v_{op}_u32 v{r}, v24, v25')
                a(f'v_{op}3_u32 v{r}, v{r}, v26, v27')
                for ctl in ('row_ror:1', 'row_ror:2', 'row_ror:4', 'row_ror:8'):
                    a(f'v_{op}_u32_dpp v{r}, v{r}, v{r} {ctl} row_mask:0xf bank_mask:0xf')
                for i in range(4): a(f'v_readlane_b32 s{4+i}, v{r}, {16*i}')
                a(f's_{op}_u32 s4, s4, s5'); a(f's_{op}_u32 s6, s6, s7'); a(f's_{op}_u32 s{r+62}, s4, s6')
            if k == 100: a('s_add_u32 s92, s90, 6000')
            elif k == 101:
                a('s_sub_u32 s92, s91, s90'); a('s_lshl_b32 s92, s92, 2'); a('s_add_u32 s92, s92, s90'); a('s_add_u32 s92, s92, 4000')
            else:
                a(f's_sub_u32 s92, s{60+2*(k-110)}, s90'); a('s_lshl_b32 s92, s92, 2'); a('s_add_u32 s92, s92, s90'); a('s_add_u32 s92, s92, 4000')
        elif k == 0:
            a('s_add_u32 s92, s60, 6000')
        else:
            a(f's_sub_u32 s92, s{60+2*k}, s60')
            a('s_lshl_b32 s92, s92, 2')
            a('s_add_u32 s92, s92, s60')
            a('s_add_u32 s92, s92, 4000')
        a.label('L_probe')
        a('s_memrealtime s[94:95]')
        a('s_waitcnt lgkmcnt(0)')
        a('s_sub_u32 s94, s94, s92')
        a('s_cmp_lt_i32 s94, 0')
        a('s_cbranch_scc1 L_probe')
    elif P.get('stamps'):
        a('s_waitcnt vmcnt(0)')
        stamp('end')
        a('s_cmp_lg_u32 s3, 0')
        a('s_cbranch_scc1 L_end')
        a('s_lshl_b32 s94, s2, 7')
        a(f's_add_u32 s94, s94, {hex(TS)}')
        a('s_add_u32 s92, s58, s94')
        a('s_addc_u32 s93, s59, 0')
        a('v_lshlrev_b32 v250, 2, v1')
        a('s_lshl_b32 s94, s2, 8')
        a(f's_add_u32 s94, s94, {hex(TS + 0x80000)}')
        a('s_add_u32 s94, s58, s94')
        a('s_addc_u32 s95, s59, 0')
        a('global_store_dword v250, v254, s[94:95]')
        a('s_mov_b64 exec, 1')
        if P.get('dbg'):
            a('s_load_dwordx2 s[94:95], s[0:1], 104')
        a('s_waitcnt lgkmcnt(0)')
        if P.get('dbg'):
            a('s_not_b32 s60, s60')
            for m in sorted(marks):
                a(f'v_mov_b32 v250, s{60+2*m}')
                a(f'global_atomic_umax v21, v250, s[94:95] offset:{4*m}')
                a('s_nop 1')
            a('s_not_b32 s60, s60')
        for m in sorted(marks):
            a(f'v_mov_b32 v250, s{60+2*m}')
            a(f'v_mov_b32 v251, s{61+2*m}')
            a(f'global_store_dwordx2 v21, v[250:251], s[92:93] offset:{8*m}')
            a('s_nop 1')
    a.label('L_end')
    a.label('L_last')
    a('s_endpgm')
    return dict(grid=256, block=256, lds=163840, vgpr=512, accum=256)
```

```python
from collections import deque
from asmlib import *
from k123 import fh, lo, hi, unpack8, ln_stats, LdsPipe, A_OUT, A_WS
from k45 import VmPipe, GC1, GC2, geglu
from cde import zipl, gelu_ops, cost

UT, YT, X1, H2, ACT = 0, 0x400000, 0x900000, 0, 0xD00000
MODT, EPOCH, GRP, MP, TS = 0x1400000, 0x1408000, 0x1410000, 0x1480000, 0x1500000
YP = 16384 + 128
XID, UH, F1, F2, F3 = 0, 128, 1024, 1536, 2048
P1U = 49280
SEG = [(0, 98432, 129152), (15, 0, 49280), (27, 24576, 73856)]
CB, CHS, KB, U0, U1 = 98432, 12992, 512, 4608, 8768
PB = CB + 2*CHS
PRM = PB + 32768
MPART = PRM + 6144
XG = 129152 + 112*128
YS = 1040
XH = XG + 8*YS
PS = 272
SPIN = 1 << 15
WBL = list(range(12)) + list(range(8)) + [13, 17, 14, 18, 12, 15, 16, 19]
BARS = {89: (5, 15, 0), 111: (9, 19, 20), 127: (13, 23, 20), 143: (17, 27, 20), 159: (21, 31, 20), 175: (25, 32, 20),
        191: (29, 32, 22), 207: (31, 32, 24), 223: (None, 32, 28)}
assert MPART + 512 <= 163840 and XH + 8192 <= 163840
def seg_of(k): return SEG[0] if k < 15 else SEG[1] if k < 27 else SEG[2]

def base(a, d, p, n):
    a(f's_mov_b32 s{d}, s{p}'); a(f's_mov_b32 s{d+1}, s{p+1}'); a(f's_mov_b32 s{d+2}, {hex(n)}')

FL1, FL2, FL3 = 0x1420000, 0x1428000, 0x1430000
def ln1p(a, X, D, T, s0):
    a(f'v_pk_add_f32 v[{T}:{T+1}], v[{X}:{X+1}], v[{X+2}:{X+3}]')
    a(f'v_pk_mul_f32 v[{T+2}:{T+3}], v[{X}:{X+1}], v[{X}:{X+1}]')
    a(f'v_pk_add_f32 v[{D}:{D+1}], v[{X+4}:{X+5}], v[{X+6}:{X+7}]')
    for p in range(1, 4):
        a(f'v_pk_fma_f32 v[{T+2}:{T+3}], v[{X+2*p}:{X+2*p+1}], v[{X+2*p}:{X+2*p+1}], v[{T+2}:{T+3}]')
    a(f'v_pk_add_f32 v[{T}:{T+1}], v[{T}:{T+1}], v[{D}:{D+1}]')
    a(f'v_add_f32 v{T+2}, v{T+2}, v{T+3}')
    a(f'v_add_f32 v{T}, v{T}, v{T+1}')
    for ctl in ('row_shr:1', 'row_shr:2', 'row_shr:4', 'row_shr:8'):
        for r in (T+2, T): a(f'v_add_f32_dpp v{r}, v{r}, v{r} {ctl} row_mask:0xf bank_mask:0xf bound_ctrl:1')
    for ctl in ('row_bcast:15 row_mask:0xa', 'row_bcast:31 row_mask:0xc'):
        for r in (T+2, T): a(f'v_add_f32_dpp v{r}, v{r}, v{r} {ctl} bank_mask:0xf')
    a(f'v_readlane_b32 s{s0+1}, v{T+2}, 63')
    a(f'v_readlane_b32 s{s0}, v{T}, 63')
    a(f'v_mov_b32 v{T+1}, {fh(1.0/512)}')
    a(f'v_mov_b32 v{T+3}, {fh(1e-5)}')
    a(f'v_mul_f32 v{T}, s{s0}, v{T+1}')
    a(f'v_fmac_f32 v{T+3}, s{s0+1}, v{T+1}')
    a(f'v_fma_f32 v{T+2}, -v{T}, v{T}, v{T+3}')
    a(f'v_max_f32 v{T+2}, {fh(1e-5)}, v{T+2}')
    a(f'v_rsq_f32 v{T+2}, v{T+2}')
    for p in range(4):
        a(f'v_pk_add_f32 v[{D+2*p}:{D+2*p+1}], v[{X+2*p}:{X+2*p+1}], v[{T}:{T+1}] op_sel:[0,0] op_sel_hi:[1,0] neg_lo:[0,1] neg_hi:[0,1]')
    for p in range(4):
        a(f'v_pk_mul_f32 v[{D+2*p}:{D+2*p+1}], v[{D+2*p}:{D+2*p+1}], v[{T+2}:{T+3}] op_sel:[0,0] op_sel_hi:[1,0]')
def ln2p(s, X, D, T, s0):
    ln_stats(s, X, D, T, s0)
    for p in range(4):
        s(f'v_pk_mul_f32 v[{D+2*p}:{D+2*p+1}], v[{D+2*p}:{D+2*p+1}], v[{T}:{T+1}] op_sel:[0,0] op_sel_hi:[1,0]')

def mega(a, P):
    M2 = P.get('m2', 0)
    RL = P.get('rl', 1)
    WD2, WS_ = 0x200000, (2048 if RL else 0x4000)
    H2 = 0xB00000 if M2 else 0
    marks = set()
    SETS = {1: 'start kv0 utst utok bbar end bend ytst ytok h2dr b0 p1end b9 estart f3ok eend',
            2: 'start kv0 kvN abar utst end ut1st uhok utok bbar bend pbar ytst ytack ytok mdok',
            3: 'start ytst ln1 ytack ytok end ybar hbar h2st h2dr f1ok b0 b1 b2 b3 p1end',
            6: 'start b0 p1a p1end b2 end b3 b4 b5 b6 b7 b8 b9 f2ok g3 estart',
            7: 'start estart e2 e4 e6 end f3ok e8 e10 e12 e14 e16 e20 e24 eend ebar',
            8: 'start x1 x2 x3 x4 end',
            5: 'start karg x2 x3 x4 end x6 x7 x8 x9 x10 x11 x12 kv0 issued pre',
            4: 'start p1end b5 b6 b7 end b8 g1 f2ok g3 estart e12 f3ok e20 eend ebar'}
    names = SETS[P.get('stamps', 1)].split()
    def stamp(name):
        if P.get('stamps') and name in names:
            slot = names.index(name)
            a(f's_memrealtime s[{60+2*slot}:{61+2*slot}]'); marks.add(slot)
    def raw(i, sreg):
        if P.get('stamps'): a(f'v_writelane_b32 v254, {sreg}, {i}')
    vm = VmPipe(a)
    NT = ' nt' if P.get('nt', 0) else ''
    nst = [0]
    def lstore(lines, through=False):
        if through:
            for l in lines: t = vm.issue(l + ' sc1')
            return t
        return lstore2(lines)
    def lstore2(lines):
        n = nst[0]; nst[0] += 1
        a('s_cmp_eq_u32 s101, 0')
        a(f's_cbranch_scc1 L_ls{n}a')
        for l in lines: a(l + ' sc1')
        a(f's_branch L_ls{n}b')
        a.label(f'L_ls{n}a')
        for l in lines: t = vm.issue(l)
        a.label(f'L_ls{n}b')
        return t
    def poll(name, loads, tags, pre=None):
        a(f's_mov_b32 s51, {SPIN}')
        if pre is not None:
            vm.need(pre)
            stamp(name + '1st')
            a(f's_branch L_{name}_chk')
        a.label(f'L_{name}')
        for l in loads: a(l)
        a('s_waitcnt vmcnt(0)')
        a.label(f'L_{name}_chk')
        a(f'v_cmp_ne_u32 vcc, s50, v{tags[0]}')
        for i, t in enumerate(tags[1:]): a(f'v_cmp_ne_u32 s[{92+2*i}:{93+2*i}], s50, v{t}')
        a('s_sub_u32 s51, s51, 1')
        a(f's_cbranch_scc1 L_{name}_ok')
        for i in range(len(tags)-1): a(f's_or_b64 vcc, vcc, s[{92+2*i}:{93+2*i}]')
        a(f's_cbranch_vccnz L_{name}')
        a.label(f'L_{name}_ok')
        if pre is None: vm.done = vm.issued

    a('s_cmp_ge_u32 s2, 256')
    a('s_cbranch_scc1 L_end')
    stamp('start')
    if P.get('stamps'): a('v_mov_b32 v254, 0')
    a('s_load_dwordx16 s[64:79], s[0:1], 0')
    if P.get('cpf', 1):
        a('s_getpc_b64 s[4:5]')
        a.label('L_pc')
        a('v_lshlrev_b32 v3, 7, v0')
        a('v_mov_b32 v5, s5')
        a('v_add_co_u32 v4, vcc, s4, v3')
        a(f'v_cmp_gt_u32 s[6:7], {P.get("cpn", 16)}, v0')
        a('v_and_b32 v1, 63, v0')
        a('v_addc_co_u32 v5, vcc, 0, v5, vcc')
        a('s_and_b64 exec, exec, s[6:7]')
        a('s_cbranch_execz L_nopf')
        a('global_load_dword v169, v[4:5], off')
        a.label('L_nopf')
        a('s_mov_b64 exec, -1')
    else: a('v_and_b32 v1, 63, v0')
    a(f's_load_dwordx2 s[58:59], s[0:1], {A_WS}')
    a('s_load_dwordx8 s[80:87], s[0:1], 64')
    a(f's_load_dwordx2 s[56:57], s[0:1], {A_OUT}')
    a('v_lshrrev_b32 v2, 6, v0')
    a('v_readfirstlane_b32 s3, v2')
    a('s_mov_b32 s40, 0xffff0000')
    a('s_and_b32 s28, s2, 7')
    a('s_lshr_b32 s29, s2, 3')
    a('s_lshl_b32 s32, s28, 5')
    a('s_or_b32 s32, s32, s29')
    a('v_and_b32 v3, 31, v0')
    a('v_lshrrev_b32 v2, 5, v0')
    a('s_lshl_b32 s33, s29, 6')
    a('v_lshl_add_u32 v4, v2, 3, s33')
    a('s_lshl_b32 s33, s28, 7')
    a('v_lshl_add_u32 v5, v3, 2, s33')
    a('v_lshl_add_u32 v5, v4, 10, v5')
    a('v_subrev_u32 v4, 0xc00, v5')
    a('s_lshl_b32 s33, s28, 9')
    a('v_lshl_add_u32 v13, v3, 4, s33')
    a('s_movk_i32 s35, 0x1000')
    a('s_mov_b32 s15, 0x20000'); a('s_mov_b32 s27, 0x20000'); a('s_mov_b32 s19, 0x20000')
    a('s_mov_b32 s23, 0x20000'); a('s_mov_b32 s11, 0x20000'); a('s_mov_b32 s55, 0x20000')
    a('v_lshlrev_b32 v15, 4, v1')
    a('v_mov_b32 v21, 0')
    a('v_lshlrev_b32 v14, 4, v0')
    a('s_waitcnt lgkmcnt(0)')
    stamp('karg')
    if P.get('wso'):
        a(f's_add_u32 s58, s58, {hex(P["wso"] << 20)}')
        a('s_addc_u32 s59, s59, 0')
    base(a, 12, 70, 4096)
    base(a, 24, 68, 0x200000)
    tsh = vm.issue('buffer_load_dwordx4 v[48:51], v13, s[12:15], 0 offen' + NT)
    base(a, 12, 66, 0x200000)
    for i in range(3): vm.issue(f'buffer_load_dword v{24+i}, v4, s[12:15], 0 offen offset:{1024*i}' + NT)
    tk = {}
    for i in range(8):
        so = 's35' if i >= 4 else '0'
        vm.issue(f'buffer_load_dword v{27+i}, v5, s[12:15], {so} offen offset:{1024*(i&3)}' + NT)
        tk[i] = vm.issue(f'buffer_load_dword v{36+i}, v5, s[24:27], {so} offen offset:{1024*(i&3)}' + NT)
    stamp('issued')
    a(f's_add_u32 s4, s58, {hex(EPOCH)}')
    a('s_addc_u32 s5, s59, 0')
    a('s_load_dword s50, s[4:5], 0')
    if P.get('cpf', 1):
        a('s_getpc_b64 s[6:7]')
        a.label('L_pc2')
        a('s_lshl_b32 s36, s29, 2')
        a('s_add_u32 s36, s36, s3')
        a('v_and_b32 v4, 1, v0')
        a('v_lshl_add_u32 v4, s36, 1, v4')
        a('v_min_u32 v4, (L_last-L_pc2)/128, v4')
        a('v_lshlrev_b32 v4, 7, v4')
        a('v_mov_b32 v5, s7')
        a('v_add_co_u32 v4, vcc, s6, v4')
        a('v_addc_co_u32 v5, vcc, 0, v5, vcc')
        a('s_mov_b64 exec, 3')
        vm.issue('global_load_dword v168, v[4:5], off')
        a('s_mov_b64 exec, -1')
    if P.get('kvbar', 1): a('s_barrier')
    a('s_lshl_b32 s33, s32, 2')
    a('s_add_u32 s6, s74, s33')
    a('s_addc_u32 s7, s75, 0')
    a('s_load_dword s34, s[6:7], 0')
    a('s_lshl_b32 s33, s32, 13')
    SK = {}
    def skload():
        base(a, 12, 72, 0x200000)
        a('s_lshl_b32 s36, s32, 13')
        vm.issue('buffer_load_dwordx4 v[146:149], v14, s[12:15], s36 offen' + NT)
        a('s_add_u32 s36, s36, 0x1000')
        SK['t'] = vm.issue('buffer_load_dwordx4 v[150:153], v14, s[12:15], s36 offen' + NT)
    if P.get('skat', 0) == 0: skload()
    a('s_mul_i32 s30, s28, 6')
    a('s_lshr_b32 s31, s29, 2')
    a('s_add_u32 s30, s30, s31')
    a('s_and_b32 s31, s29, 3')
    a('s_lshl_b32 s46, s30, 2')
    a('s_or_b32 s46, s46, s31')
    a('s_lshl_b32 s47, s31, 2')
    a('s_or_b32 s47, s47, s3')
    a('v_and_b32 v16, 1, v0')
    a('v_lshrrev_b32 v17, 3, v1')
    a('v_and_b32 v6, 7, v1')
    a('v_mul_u32_u24 v242, 0x6000, v17')
    a('v_lshl_add_u32 v242, v6, 4, v242')
    a('v_lshlrev_b32 v243, 3, v17')
    a('s_lshl_b32 s36, s3, 11')
    a('s_add_u32 s33, s33, s36')
    WM = {}
    def wmload():
        base(a, 12, 84, 1024)
        a('s_lshl_b32 s36, s47, 6')
        tc = vm.issue('buffer_load_dwordx2 v[144:145], v243, s[12:15], s36 offen')
        base(a, 12, 86, 512*6144)
        a('s_cmp_lt_u32 s29, 24')
        a('s_cselect_b32 s14, s14, 0')
        a('s_lshr_b32 s36, s46, 2')
        a('s_lshl_b32 s36, s36, 7')
        a(f's_mul_i32 s37, s47, {32*6144}')
        a('s_add_u32 s36, s36, s37')
        twm = []
        for r in range(4):
            twm.append(vm.issue(f'buffer_load_dwordx4 v[{128+4*r}:{131+4*r}], v242, s[12:15], s36 offen' + NT))
            if r < 3: a('s_add_u32 s36, s36, 0x1800')
        WM.update(tc=tc, twm=twm)
    if P.get('wat', 2) == 0: wmload()
    if M2:
        a('s_and_b32 s30, s2, 1')
        a('s_lshl_b32 s30, s30, 3')
        a('s_and_b32 s98, s29, 7')
        a('s_or_b32 s30, s30, s98')
        a('s_bfe_u32 s31, s2, 0x20001')
        a('s_lshl_b32 s31, s31, 2')
        a('s_lshr_b32 s36, s2, 6')
        a('s_or_b32 s31, s31, s36')
        a('s_lshl_b32 s36, s36, 1')
        a('s_add_u32 s98, s98, s36')
    else:
        a('s_lshr_b32 s30, s32, 4')
        a('s_and_b32 s31, s32, 15')
        a(f's_and_b32 s98, s30, {P.get("prot", 0)}')
        a('s_lshl_b32 s98, s98, 2')
        if P.get('xrot', 1): a('s_add_u32 s98, s98, s28')
    a('s_and_b32 s98, s98, 7')
    a('s_lshr_b32 s38, s3, 1')
    a('s_and_b32 s39, s3, 1')
    a('s_cmp_eq_u32 s38, 0')
    a('s_cselect_b32 s20, s78, s80')
    a('s_cselect_b32 s21, s79, s81')
    a(f's_mov_b32 s22, {512*3584 if not P.get("now") else 0}')
    base(a, 8, 82, 1792*1024 if not P.get('now') else 0)
    base(a, 16, 58, TS)
    a('s_lshl_b32 s36, s28, 12')
    a(f's_add_u32 s36, s36, {hex(GRP)}')
    a('s_add_u32 s52, s58, s36')
    a('s_addc_u32 s53, s59, 0')
    a('s_movk_i32 s54, 0x1000')
    a('s_cmp_eq_u32 s3, 3')
    a('s_cselect_b32 s37, 0, 0x70000000')
    a('v_mov_b32 v22, s37')
    a('s_lshl_b32 s36, s29, 7')
    vm.issue('buffer_load_dword v158, v22, s[52:55], s36 offen')
    a('s_lshl_b32 s36, s46, 6')
    a(f's_add_u32 s36, s36, {hex(MODT)}')
    vm.issue('buffer_load_dword v159, v22, s[16:19], s36 offen')
    if M2 and P.get('ft', 1):
        a('s_lshl_b32 s36, s30, 4')
        a('s_lshr_b32 s37, s32, 4')
        a('s_lshl_b32 s37, s37, 4')
        a('s_sub_u32 s37, s37, s36')
        a('s_add_u32 s37, s37, 0x100')
        a('v_lshrrev_b32 v4, 2, v1')
        a('v_min_u32 v5, 1, v4')
        a('v_mul_lo_u32 v5, v5, s37')
        a('v_max_u32 v4, 1, v4')
        a('v_subrev_u32 v4, 1, v4')
        a('v_lshl_add_u32 v5, v4, 8, v5')
        a('v_and_b32 v4, 3, v1')
        a('v_add_u32 v5, v5, v4')
        a('s_lshl_b32 s37, s3, 2')
        a('s_add_u32 s36, s36, s37')
        a('v_add_lshl_u32 v5, v5, s36, 7')
        a(f's_mov_b32 s36, {hex(FL1)}')
        a('s_mov_b64 exec, 0xfff')
        vm.issue('buffer_load_dword v156, v5, s[16:19], s36 offen')
        a('s_mov_b64 exec, -1')
    a('s_lshl_b32 s36, s32, 13')
    a('s_lshl_b32 s37, s46, 11')
    a(f's_add_u32 s37, s37, {hex(MP)}')
    a('s_cmp_eq_u32 s3, 1')
    a(f's_cselect_b32 s37, s37, {hex(TS)}')
    a('s_cselect_b32 s44, 15, 63')
    a('s_cmp_eq_u32 s3, 2')
    a('s_cselect_b32 s37, s36, s37')
    a('v_and_b32 v4, s44, v1')
    a('v_lshlrev_b32 v4, 7, v4')
    if P.get('utt', 1): vm.issue('buffer_load_dword v157, v4, s[16:19], s37 offen' + (' nt' if P.get('ntu', 0) else ''))
    if P.get('tlb', 0) == 1:
        a('v_lshl_add_u32 v4, v1, 20, v22')
        for i, (p, n) in enumerate(((86, 512*6144), (84, 1024), (64, 0x200000), (78, 512*3584), (80, 512*3584), (82, 1792*1024), (56, 0x200000))):
            base(a, 12, p, n)
            vm.issue(f'buffer_load_dword v{160+i}, v4, s[12:15], 0 offen')
        vm.issue('buffer_load_dword v154, v4, s[16:19], 0 offen')
    for i in range(3):
        a(f'v_add_u32 v4, {64*i}, v1')
        a('v_mul_u32_u24 v5, 0x2aab, v4')
        a('v_lshrrev_b32 v5, 16, v5')
        a(f'v_mul_u32_u24 v5, {3584-96}, v5')
        a(f'v_lshl_add_u32 v{10+i}, v4, 4, v5')
        if i: a(f'v_subrev_u32 v{10+i}, {1024*i}, v{10+i}')
    a(f's_mul_i32 s41, s39, {32*3584}')
    a('s_mul_i32 s43, s31, 96')
    a('s_add_u32 s41, s41, s43')
    a('s_add_u32 s41, s41, 0x800')
    a('s_mul_i32 s43, s39, 3072')
    a(f's_mul_i32 s42, s38, {P1U}')
    a('s_add_u32 s42, s42, s43')
    a(f's_add_u32 s99, s41, {512*3584}')
    a(f's_mul_i32 s36, s98, {64*3584}')
    a('s_add_u32 s41, s41, s36')
    def step(reg, inc, lim, span):
        a(f's_add_u32 {reg}, {reg}, {inc}')
        a(f's_cmp_eq_u32 {reg}, {lim}')
        a(f's_cselect_b32 s36, {span}, 0')
        a(f's_sub_u32 {reg}, {reg}, s36')
    early = deque()
    def p1dma(m, i):
        if i == 0: a(f's_add_u32 m0, s42, {6144*m}')
        vm.issue(f'buffer_load_dwordx4 v{10+i}, s[20:23], s41 offen offset:{1024*i} lds')
        if i == 2 and m < 7: step('s41', 64*3584, 's99', 512*3584)
    for m in range(8):
        for i in range(3): early.append(lambda m=m, i=i: p1dma(m, i))
    for _ in range(P.get('e0', 0)): early.popleft()()
    a('v_lshrrev_b32 v4, 3, v1')
    a('v_bfe_u32 v5, v1, 4, 1')
    a('v_lshlrev_b32 v5, 2, v5')
    a('v_xor_b32 v5, v5, v6')
    a('v_lshlrev_b32 v5, 4, v5')
    a(f'v_lshl_add_u32 v8, v4, {7 if RL else 10}, v5')
    a(f'v_add_u32 v9, {0 if RL else 8192-1024}, v8')
    a('s_lshl_b32 s43, s38, 5')
    a('v_xor_b32 v5, s43, v5')
    a('v_mul_u32_u24 v7, 0xe00, v4')
    a('v_add_u32 v7, v7, v5')
    a(f's_mul_i32 s48, s39, {8*3584}')
    a('s_lshl_b32 s43, s31, 7')
    a('s_add_u32 s48, s48, s43')
    a('s_lshl_b32 s43, s39, 10')
    a(f's_mul_i32 s49, s38, {SEG[0][2]-SEG[0][1]}')
    a('s_add_u32 s49, s49, s43')
    a(f's_mul_i32 s38, s38, {P1U}')
    a('s_add_u32 s43, s43, s38')
    a('v_sub_u32 v4, 7, v2')
    a('v_xor_b32 v4, v4, v6')
    a('v_lshl_add_u32 v4, v3, 4, v4')
    a(f'v_lshlrev_b32 v4, 4, v4')
    a(f'v_add_u32 v120, {PB}, v4')
    a('v_lshrrev_b32 v4, 4, v1')
    a('v_xor_b32 v5, v4, v1')
    a('s_lshl_b32 s36, s3, 11')
    a(f's_add_u32 s36, s36, {PB}')
    a('v_lshl_add_u32 v124, v5, 4, s36')
    a('v_xor_b32 v125, 64, v124')
    a('v_lshrrev_b32 v4, 3, v1')
    a('v_lshlrev_b32 v5, 4, v6')
    a('v_lshl_add_u32 v13, v4, 12, v5')
    a('s_lshl_b32 s36, s28, 2')
    a('s_add_u32 s36, s36, s3')
    a('s_lshl_b32 s36, s36, 16')
    a('s_sub_u32 s35, 31, s29')
    a('s_lshl_b32 s35, s35, 7')
    a('s_add_u32 s35, s35, s36')
    a('s_waitcnt lgkmcnt(0)')
    a('s_mul_i32 s50, s50, 1664525')
    a('s_add_u32 s50, s50, 1013904223')
    a('v_mov_b32 v20, s50')
    a('s_getreg_b32 s100, hwreg(HW_REG_XCC_ID, 0, 4)')
    if P.get('slow'): a('s_and_b32 s100, s29, 1')
    a('s_add_u32 s100, s100, s50')
    a('s_add_u32 s100, s100, 1')
    a('s_cmp_lg_u32 s3, 0')
    a('s_cbranch_scc1 L_noid')
    a('v_mov_b32 v22, s100')
    a('s_lshl_b32 s36, s29, 2')
    a(f'buffer_store_dword v22, v21, s[52:55], s36 offen offset:{XID} sc1')
    a.label('L_noid')
    if P.get('probe', 0) >= 100:
        a('v_mov_b32 v22, s60')
        a('s_lshl_b32 s36, s2, 2')
        a(f's_add_u32 s36, s36, {hex(0x140A000)}')
        vm.issue('buffer_store_dword v22, v21, s[16:19], s36 offen sc1')
    def slow_gu():
        a('v_bfe_u32 v4, v1, 1, 3')
        a('v_and_b32 v5, 1, v4')
        a('v_lshlrev_b32 v5, 9, v5')
        a(f'v_mul_u32_u24 v4, 3584, v4')
        a('v_add_u32 v4, v4, v5')
        a('v_and_b32 v5, 1, v1')
        a('v_lshl_add_u32 v4, v5, 10, v4')
        a('v_bfe_u32 v5, v1, 4, 1')
        a('v_lshl_add_u32 v4, v5, 11, v4')
        a('s_lshl_b32 s36, s29, 1')
        a('s_and_b32 s37, s3, 1')
        a('s_add_u32 s36, s36, s37')
        a(f's_mul_i32 s36, s36, {8*3584}')
        a('s_mov_b32 exec_hi, 0')
        vm.issue('buffer_load_dword v252, v4, s[20:23], s36 offen offset:384')
        a('s_mov_b32 exec_hi, -1')
    def slow_d():
        a('v_lshlrev_b32 v4, 10, v1')
        a('s_and_b32 s36, s32, 31')
        a('s_lshl_b32 s36, s36, 2')
        a('s_add_u32 s36, s36, s3')
        a(f's_mul_i32 s36, s36, {14*1024}')
        a('s_mov_b64 exec, 0x3fff')
        vm.issue('buffer_load_dword v253, v4, s[8:11], s36 offen offset:384')
        a('s_mov_b64 exec, -1')
    def slow(at):
        if P.get('sg', 0) == at: slow_gu()
        if P.get('sd', 0) == at: slow_d()
    stamp('pre')
    vm.need(tsh)
    lo(a, 52, 48); hi(a, 54, 48, 40); lo(a, 56, 49); hi(a, 58, 49, 40)
    lo(a, 53, 50); hi(a, 55, 50, 40); lo(a, 57, 51); hi(a, 59, 51, 40)
    vm.need(tk[0])
    stamp('kv0')
    if P.get('skat', 0) == 1: skload()
    if P.get('wat', 2) == 1: wmload()
    def xload():
        vm.issue('buffer_load_dwordx4 v[232:235], v15, s[12:15], s33 offen' + NT)
        return vm.issue('buffer_load_dwordx4 v[236:239], v15, s[12:15], s33 offen offset:1024' + NT)
    for q in range(3):
        lo(a, 60+2*q, 24+q); hi(a, 61+2*q, 24+q, 40)
    for r in range(8):
        vm.need(tk[r])
        lo(a, 66+2*r, 27+r); hi(a, 67+2*r, 27+r, 40)
        lo(a, 84+2*r, 36+r); hi(a, 85+2*r, 36+r, 40)
        d = 102+2*r
        a(f'v_pk_mul_f32 v[{d}:{d+1}], v[{60+2*r}:{61+2*r}], v[58:59]')
        a(f'v_pk_fma_f32 v[{d}:{d+1}], v[{62+2*r}:{63+2*r}], v[56:57], v[{d}:{d+1}]')
        a(f'v_pk_fma_f32 v[{d}:{d+1}], v[{64+2*r}:{65+2*r}], v[54:55], v[{d}:{d+1}]')
        a(f'v_pk_fma_f32 v[{d}:{d+1}], v[{66+2*r}:{67+2*r}], v[52:53], v[{d}:{d+1}]')
        a(f'v_pk_mul_f32 v[{d}:{d+1}], v[{d}:{d+1}], v[{84+2*r}:{85+2*r}]')
    if P.get('skat', 0) == 2: skload()
    if P.get('wat', 2) == 2: wmload()
    tc, twm, tsk = WM['tc'], WM['twm'], SK['t']
    base(a, 12, 64, 0x200000)
    slow(1)
    stamp('kvN')
    for c in range(2):
        for jj in range(4):
            a(f'v_cvt_pk_bf16_f32 v{24+4*c+jj}, v{102+2*(7-2*jj)+c}, v{102+2*(6-2*jj)+c}')
        a(f'ds_write_b128 v120, v[{24+4*c}:{27+4*c}] offset:{128*c}')
    a('s_waitcnt lgkmcnt(0)')
    a('s_barrier')
    stamp('abar')
    for j in range(2): a(f'ds_read_b128 v[{104+4*j}:{107+4*j}], v{124+j} offset:{1024*j}')
    a('s_mov_b32 s24, s35')
    a('s_add_u32 s25, s35, 0x8000')
    ustores = [f'buffer_store_dwordx4 v[{104+4*j}:{107+4*j}], v13, s[16:19], s{24+j} offen' for j in range(2)]
    for j in range(2):
        a(f's_waitcnt lgkmcnt({1-j})')
        tus = vm.issue(ustores[j] + (' sc1' if P.get('uts', 0) else ''))
    a('s_lshl_b32 s7, s3, 7')
    a('s_lshl_b32 s36, s29, 2')
    a('s_add_u32 s7, s7, s36')
    a('v_mov_b32 v123, s100')
    stamp('utst')
    for i in range(4): a(f'v_mov_b32 v{40+i}, 0')
    a(f'v_add_u32 v14, {CB}, v14')
    a('v_cmp_gt_u32 vcc, 32, v0')
    a('s_and_saveexec_b64 s[36:37], vcc')
    a('s_cbranch_execz L_nz')
    a('ds_write_b128 v14, v[40:43]')
    a(f'ds_write_b128 v14, v[40:43] offset:{CHS}')
    a('v_cmp_gt_u32 vcc, 2, v0')
    a('s_and_b64 exec, exec, vcc')
    for c in range(2):
        a(f'ds_write_b128 v14, v[40:43] offset:{c*CHS+U0+4096}')
        a(f'ds_write_b128 v14, v[40:43] offset:{c*CHS+U1+4096}')
    a.label('L_nz')
    a('s_mov_b64 exec, s[36:37]')
    a('v_cmp_eq_u32 s[36:37], 0, v0')
    a('s_lshl_b32 s4, s34, 16')
    a('s_and_b32 s5, s34, 0xffff0000')
    a('s_mov_b32 s6, 0xffff')
    vm.need(tsk)
    stamp('skok')
    for c in range(2):
        kx = 146+4*c
        lo(a, 44, kx)
        a(f'v_add_f32 v44, s{4+c}, v44')
        a('v_cvt_pk_bf16_f32 v44, v44, v44')
        a(f'v_bfi_b32 v44, s6, v44, v{kx}')
        a(f'v_cndmask_b32 v{kx}, v{kx}, v44, s[36:37]')
        a(f'ds_write_b128 v14, v[{kx}:{kx+3}] offset:{c*CHS+KB}')
    vm.need(tus)
    vm.issue(f'buffer_store_dword v123, v21, s[52:55], s7 offen offset:{UH}')
    a('v_and_b32 v120, 31, v1')
    a('v_lshlrev_b32 v120, 2, v120')
    a('s_lshr_b32 s5, s29, 3')
    a('s_lshl_b32 s5, s5, 7')
    hloads = [f'buffer_load_dword v121, v120, s[52:55], 0 offen offset:{XID} sc1', f'buffer_load_dword v124, v120, s[52:55], s5 offen offset:{UH} sc1']
    for l in hloads: tu = vm.issue(l)
    a('v_lshrrev_b32 v4, 1, v6')
    a('v_lshlrev_b32 v4, 11, v4')
    a('v_lshl_add_u32 v4, v16, 6, v4')
    a('v_lshrrev_b32 v5, 5, v1')
    a('v_lshl_add_u32 v4, v5, 5, v4')
    a('v_bfe_u32 v5, v1, 4, 1')
    a('v_lshl_add_u32 v244, v5, 4, v4')
    a('s_lshl_b32 s35, s32, 13')
    a('s_add_u32 s34, s35, 0x1000')
    a('v_lshlrev_b32 v125, 4, v0')
    vm.need(tc)
    lo(a, 44, 144); hi(a, 45, 144, 40); lo(a, 46, 145); hi(a, 47, 145, 40)
    for r in range(4): a(f'v_mul_f32 v{48+r}, {fh(-1.4426950408889634)}, v{44+r}')
    for r in range(4): a(f'v_exp_f32 v{48+r}, v{48+r}')
    for r in range(4): a(f'v_add_f32 v{48+r}, 1.0, v{48+r}')
    for r in range(4): a(f'v_rcp_f32 v{48+r}, v{48+r}')
    for r in range(4): a(f'v_mul_f32 v{44+r}, v{44+r}, v{48+r}')
    a('v_cvt_pk_bf16_f32 v48, v44, v45')
    a('v_cvt_pk_bf16_f32 v49, v46, v47')
    lo(a, 44, 48); hi(a, 45, 48, 40); lo(a, 46, 49); hi(a, 47, 49, 40)
    def stage1():
        for r in range(4):
            vm.need(twm[r])
            unpack8(a, 52, 128+4*r, 40)
            sel = 'op_sel:[0,0,0] op_sel_hi:[1,0,1]' if r % 2 == 0 else 'op_sel:[0,1,0] op_sel_hi:[1,1,1]'
            sp = 44 + (r & 2)
            for j in range(4):
                if r == 0:
                    a(f'v_pk_mul_f32 v[{60+2*j}:{61+2*j}], v[{52+2*j}:{53+2*j}], v[{sp}:{sp+1}] op_sel:[0,0] op_sel_hi:[1,0]')
                else:
                    a(f'v_pk_fma_f32 v[{60+2*j}:{61+2*j}], v[{52+2*j}:{53+2*j}], v[{sp}:{sp+1}], v[{60+2*j}:{61+2*j}] {sel}')
        for j in range(4): a(f'v_permlane32_swap_b32 v{60+j}, v{64+j}')
        for j in range(4): a(f'v_add_f32 v{60+j}, v{60+j}, v{64+j}')
        a('s_lshr_b32 s6, s46, 2')
        a('s_lshl_b32 s6, s6, 13')
        for j in range(2): a(f'v_permlane16_swap_b32 v{60+j}, v{62+j}')
        a('s_lshl_b32 s36, s47, 7')
        for j in range(2): a(f'v_add_f32 v{100+j}, v{60+j}, v{62+j}')
        a('v_mov_b32 v102, s50')
        a('v_mov_b32 v103, s50')
        for j in range(2): a(f'v_add_f32_dpp v{100+j}, v{100+j}, v{100+j} row_ror:8 row_mask:0xf bank_mask:0xf')
        a('s_add_u32 s6, s6, s36')
        a(f's_add_u32 s6, s6, {hex(MP)}')
        a('s_cmp_lt_u32 s29, 24')
        a(f's_cselect_b32 s6, s6, {hex(TS)}')
    if P.get('s1at', 1) == 0: stage1()
    a('s_lshr_b32 s36, s3, 1')
    a(f's_mul_i32 s36, s36, {CHS}')
    a('s_xor_b32 s38, s39, 1')
    a('s_lshl_b32 s38, s38, 6')
    a('s_add_u32 s36, s36, s38')
    a(f's_add_u32 s36, s36, {CB}')
    a('v_and_b32 v3, 15, v0')
    a('v_bfe_u32 v4, v0, 4, 2')
    a('v_lshlrev_b32 v5, 4, v4')
    a('v_lshl_add_u32 v22, v3, 5, v5')
    a(f's_add_u32 s38, s36, {KB-480}')
    a('v_add_u32 v22, s38, v22')
    a('v_and_b32 v23, 14, v3')
    a('v_lshlrev_b32 v23, 1, v23')
    a('v_sub_u32 v23, v5, v23')
    a(f'v_mul_u32_u24 v5, {U1-U0}, v16')
    a('v_sub_u32 v23, v23, v5')
    a(f's_add_u32 s38, s36, {U1+28}')
    a('v_add_u32 v16, s38, v23')
    for i in range(1, 4): a(f'v_add_u32 v{16+i}, {1024*i}, v16')
    a('v_bfe_u32 v5, v3, 1, 2')
    a('v_xor_b32 v5, v5, v4')
    a('v_lshl_add_u32 v5, v3, 2, v5')
    a('s_lshl_b32 s38, s3, 13')
    a(f's_add_u32 s38, s38, {PB}')
    a('v_lshl_add_u32 v23, v5, 4, s38')
    KP = P.get('kp', 1)
    if KP:
        a('s_waitcnt lgkmcnt(0)')
        a('s_barrier')
        for j in range(4, 32): a(f'ds_read_b128 v[{104+4*j}:{107+4*j}], v22 offset:{128*j}') if not 120 <= 104+4*j < 156 else None
    a(f's_mov_b32 s51, {SPIN}')
    a('s_mov_b32 s101, 0')
    vm.need(tu)
    stamp('ut1st')
    a('s_branch L_uh_chk')
    a.label('L_uh')
    for l in hloads: a(l)
    a('s_waitcnt vmcnt(0)')
    a.label('L_uh_chk')
    a('v_subrev_u32 v122, s50, v121')
    a('v_subrev_u32 v122, 1, v122')
    a('v_cmp_lt_u32 vcc, 15, v122')
    a('v_cmp_ne_u32 s[92:93], s100, v121')
    a('s_sub_u32 s51, s51, 1')
    a('s_cbranch_scc1 L_uh_ok')
    a('s_cbranch_vccnz L_uh')
    a('s_cmp_eq_u64 s[92:93], 0')
    a('s_cbranch_scc1 L_uh_same')
    a('s_cmp_lg_u32 s101, 0')
    a('s_cbranch_scc1 L_uh_same')
    a('s_mov_b32 s101, 1')
    for l in ustores: a(l + ' sc1')
    a('s_waitcnt vmcnt(0)')
    a(f'buffer_store_dword v20, v21, s[52:55], s7 offen offset:{UH} sc1')
    a.label('L_uh_same')
    a('v_cmp_ne_u32 vcc, s50, v124')
    a('v_cmp_ne_u32 s[92:93], s100, v124')
    a('s_nop 0')
    a('s_and_b64 vcc, vcc, s[92:93]')
    a('s_cbranch_vccnz L_uh')
    a.label('L_uh_ok')
    raw(6, 's51')
    stamp('uhok')
    tu = []
    for c in range(2):
        vm.issue(f'buffer_load_dwordx4 v[{72+4*c}:{75+4*c}], v125, s[16:19], s{35-c} offen sc1')
        tu.append(vm.issue(f'buffer_load_dword v{80+c}, v125, s[16:19], s{35-c} offen offset:16 sc1'))
    if P.get('s1at', 1) == 1: stage1()
    lstore(['buffer_store_dwordx4 v[100:103], v244, s[16:19], s6 offen'])
    if KP:
        for j in list(range(4)) + list(range(4, 13)): a(f'ds_read_b128 v[{104+4*j}:{107+4*j}], v22 offset:{128*j}')
    if P.get('xat', 1) == 1: tx = xload()
    CP = {}
    if RL:
        a('s_mul_i32 s44, s2, 7')
        a('s_lshl_b32 s45, s3, 1')
        a('s_add_u32 s44, s44, s45')
        a('s_cmp_eq_u32 s3, 3')
        a('s_cselect_b32 s45, 0, 1')
        a('s_add_u32 s45, s45, s44')
        for r in range(2):
            a(f's_lshl_b32 s36, s{44+r}, 10')
            CP['l'] = vm.issue(f'buffer_load_dwordx4 v[{32+4*r}:{35+4*r}], v15, s[8:11], s36 offen' + NT)
    def wdcopy():
        a('v_lshrrev_b32 v4, 3, v1')
        a(f'v_mul_u32_u24 v4, {1792*128}, v4')
        a('v_lshl_add_u32 v4, v6, 4, v4')
        vm.need(CP['l'])
        for r in range(2):
            a(f's_lshl_b32 s36, s{44+r}, 7')
            a(f's_add_u32 s36, s36, {hex(WD2)}')
            CP['s'] = vm.issue(f'buffer_store_dwordx4 v[{32+4*r}:{35+4*r}], v4, s[16:19], s36 offen sc1')
    a('s_movk_i32 s36, 0xff')
    a('v_cmp_ne_u32 vcc, s36, v0')
    for c in range(2):
        u = 72+4*c
        vm.need(tu[c])
        if c == 0: stamp('utok')
        a(f'v_cndmask_b32 v{80+c}, 0, v{80+c}, vcc')
        a(f'ds_write_b128 v14, v[{u}:{u+3}] offset:{c*CHS+U0}')
        for j in range(3): a(f'v_alignbit_b32 v{40+4*c+j}, v{u+j+1}, v{u+j}, 16')
        a(f'v_alignbit_b32 v{43+4*c}, v{80+c}, v{u+3}, 16')
        a(f'ds_write_b128 v14, v[{40+4*c}:{43+4*c}] offset:{c*CHS+U1}')
    for _ in range(P.get('e0b', 6)): early.popleft()()
    a('s_waitcnt lgkmcnt(0)')
    a('s_barrier')
    stamp('bbar')
    a('s_lshl_b32 s6, s46, 11')
    a(f's_add_u32 s6, s6, {hex(MP)}')
    a('s_cmp_lt_u32 s29, 24')
    a(f's_cselect_b32 s7, s3, 1')
    ploads = [f'buffer_load_dwordx4 v[{240+4*j}:{243+4*j}], v15, s[16:19], s6 offen offset:{1024*j} sc1' for j in range(2)]
    tmi = []
    def mod_issue():
        a('s_cmp_lg_u32 s7, 0')
        a('s_cbranch_scc1 L_nomi')
        for l in ploads: a(l)
        a.label('L_nomi')
        tmi.append(vm.issued)
    def mod_final():
        a('s_cmp_lg_u32 s7, 0')
        a('s_cbranch_scc1 L_nomod')
        done = vm.done
        a(f's_waitcnt vmcnt({vm.issued - tmi[0]})')
        poll('mp', ploads, [242, 246], pre=0)
        vm.done = done
        a('v_pk_add_f32 v[240:241], v[240:241], v[244:245]')
        a('s_lshr_b32 s36, s46, 5')
        a('s_cmp_eq_u32 s36, 1')
        for j in range(2): a(f'v_add_f32_dpp v{240+j}, v{240+j}, v{240+j} row_ror:8 row_mask:0xf bank_mask:0xf')
        a('s_cselect_b32 s38, 1.0, 0')
        a('s_cmp_eq_u32 s36, 4')
        for op in ('v_permlane16_swap_b32', 'v_permlane32_swap_b32'):
            for j in range(2): a(f'v_mov_b32 v{242+j}, v{240+j}')
            for j in range(2): a(f'{op} v{240+j}, v{242+j}')
            a('v_pk_add_f32 v[240:241], v[240:241], v[242:243]')
        a('s_cselect_b32 s38, 1.0, s38')
        a('s_lshl_b32 s36, s46, 6')
        a('v_cvt_pk_bf16_f32 v242, v240, v241')
        a(f's_add_u32 s36, s36, {hex(MODT)}')
        lo(a, 240, 242); hi(a, 241, 242, 40)
        for j in range(2): a(f'v_add_f32 v{240+j}, s38, v{240+j}')
        a('v_cvt_pk_bf16_f32 v244, v240, v241')
        a('v_mov_b32 v246, s50')
        a('v_mov_b32 v247, s50')
        a('v_mov_b32_dpp v245, v244 quad_perm:[1,1,3,3] row_mask:0xf bank_mask:0xf')
        a('v_lshlrev_b32 v240, 3, v1')
        a('s_mov_b64 exec, 0x55')
        a('buffer_store_dwordx4 v[244:247], v240, s[16:19], s36 offen sc1')
        a('s_mov_b64 exec, -1')
        a.label('L_nomod')
    ACC, AR, BR = 40, 72, 104
    pipe = LdsPipe(a)
    reads = []
    for i in range(32):
        o = 32*((31-i) & 7); b = 16 + ((31-i) >> 3); d = AR + 4*(i & 7)
        reads.append((('A', i, 0), f'ds_read2_b32 v[{d}:{d+1}], v{b} offset0:{o} offset1:{o+1}'))
        reads.append((('A', i, 1), f'ds_read2_b32 v[{d+2}:{d+3}], v{b} offset0:{o+2} offset1:{o+3}'))
        if i < 4 and not KP:
            for t in range(8):
                j = 4*t+3-i
                reads.append((('B', j), f'ds_read_b128 v[{BR+4*j}:{BR+4*j+3}], v22 offset:{128*j}'))
    tok = {('B', j): 0 for j in range(32)} if KP else {}; nxt = [0]
    def pump(cur_step, maxn):
        n = 0
        while n < maxn and nxt[0] < len(reads) and pipe.outstanding() < 13:
            key, line = reads[nxt[0]]
            if key[0] == 'A' and key[1] >= cur_step + 8: break
            tok[key] = pipe.issue(line); nxt[0] += 1; n += 1
    pump(0, 12)
    slow(2)
    MAT = P.get('mat', 0)
    pending = []; nm = 0
    NB = P.get('e1', 9); EV = P.get('ev', 10)
    for i in range(32):
        for t in range(i >> 2, 8):
            j = 4*t+3-i
            while ('B', j) not in tok or ('A', i, 1) not in tok:
                pipe.need(pipe.done + 2); pump(i, 2)
            pipe.need(max(tok[('A', i, 1)], tok[('B', j)]))
            d = ACC+4*t; c = '0' if i == 0 else f'v[{d}:{d+3}]'
            s = AR+4*(i & 7)
            a(f'v_mfma_f32_16x16x32_bf16 v[{d}:{d+3}], v[{s}:{s+3}], v[{BR+4*j}:{BR+4*j+3}], {c}')
            pump(i, 2 if i < 4 else 1)
            nm += 1
            if nm >= P.get('e1s', 40) and nm % EV == 0 and NB > 0 and early:
                early.popleft()(); NB -= 1
        if pending and pipe.outstanding() < 14:
            t = pending.pop()
            pipe.issue(f'ds_write_b128 v23, v[{ACC+4*t}:{ACC+4*t+3}] offset:{1024*t}')
        if (i & 3) == 3: pending.append(i >> 2)
        if RL and i == P.get('cpa', 10): wdcopy()
        if i == P.get('mpi', 2) and not MAT: mod_issue()
        if i == P.get('mfin', 7) and not MAT: mod_final(); raw(7, 's51')
    for t in pending:
        pipe.issue(f'ds_write_b128 v23, v[{ACC+4*t}:{ACC+4*t+3}] offset:{1024*t}')
    stamp('bend')
    a('v_lshlrev_b32 v4, 3, v0')
    a(f'v_add_u32 v4, {PRM}, v4')
    a('v_lshrrev_b32 v2, 1, v0')
    a('v_bfe_u32 v3, v0, 4, 2')
    a('v_xor_b32 v2, v2, v3')
    a('v_lshlrev_b32 v2, 4, v2')
    a('v_and_b32 v3, 1, v0')
    a('v_lshl_add_u32 v2, v3, 3, v2')
    a(f'v_add_u32 v2, {PB}, v2')
    a('v_lshlrev_b32 v3, 4, v0')
    a('v_and_b32 v5, 3, v0')
    a(f's_mul_i32 s38, s32, {YP}')
    a(f's_add_u32 s38, s38, {hex(YT)}')
    a(f'v_add_u32 v13, {PRM}, v15')
    a('s_and_b32 s36, s32, 7')
    a('s_lshl_b32 s36, s36, 1')
    a('s_and_b32 s37, s3, 1')
    a('s_or_b32 s36, s36, s37')
    a('s_lshl_b32 s36, s36, 6')
    a(f's_add_u32 s36, s36, {PRM+5120}')
    a('v_lshrrev_b32 v14, 5, v1')
    a('v_lshl_add_u32 v14, v14, 4, s36')
    if RL: vm.need(CP['s'])
    a('s_waitcnt lgkmcnt(0)')
    a('s_barrier')
    stamp('pbar')
    for j in range(4):
        for w in range(4):
            a(f'ds_read_b64 v[{72+8*j+2*w}:{73+8*j+2*w}], v2 offset:{8192*w+2048*j}')
        if j == 2: a('s_waitcnt lgkmcnt(8)')
    if MAT: mod_issue()
    for j in range(4):
        b = 72+8*j; q = 24+4*j
        if j: a(f's_waitcnt lgkmcnt({12-4*j})')
        a(f'v_pk_add_f32 v[{b}:{b+1}], v[{b}:{b+1}], v[{b+2}:{b+3}]')
        a(f'v_pk_add_f32 v[{b+4}:{b+5}], v[{b+4}:{b+5}], v[{b+6}:{b+7}]')
        a(f'v_mov_b32 v{q+2}, s50')
        a(f'v_mov_b32 v{q+3}, s50')
        a(f'v_cvt_pk_bf16_f32 v{q}, v{b}, v{b+4}')
        a(f'v_cvt_pk_bf16_f32 v{q+1}, v{b+1}, v{b+5}')
        tys = vm.issue(f'buffer_store_dwordx4 v[{q}:{q+3}], v3, s[16:19], s38 offen sc1')
        if j < 3: a('s_add_u32 s38, s38, 0x1000')
    stamp('ytst')
    a('v_mov_b32 v22, v4')
    a('v_mov_b32 v23, v14')
    a('v_mov_b32 v60, v5')
    slow(3)
    a('v_mov_b32 v5, v60')
    if MAT: mod_final(); raw(7, 's51')
    if MAT == 2: a('s_barrier')
    for _ in range(P.get('e2', 6)): early.popleft()()
    a('s_lshl_b32 s35, s3, 10')
    a(f's_add_u32 s35, s35, {hex(MODT)}')
    a('s_add_u32 s34, s35, 0x1000')
    a('s_add_u32 s4, s35, 0x2000')
    mloads = [f'buffer_load_dwordx4 v[{104+4*r}:{107+4*r}], v15, s[16:19], s{(35, 34, 4)[r]} offen sc1' for r in range(3)]
    a('v_lshrrev_b32 v4, 2, v0')
    a(f'v_mul_u32_u24 v3, {2*YS}, v5')
    a('v_lshl_add_u32 v3, v4, 2, v3')
    a(f'v_add_u32 v3, {XG}, v3')
    a(f's_mul_i32 s46, s3, {2*YS}')
    a(f's_add_u32 s46, s46, {XG}')
    a('v_add_u32 v4, s46, v15')
    a('s_lshl_b32 s46, s3, 1')
    a('v_xor_b32 v5, s46, v6')
    a('v_lshlrev_b32 v5, 4, v5')
    a('v_lshl_add_u32 v5, v1, 7, v5')
    a(f'v_add_u32 v5, {XH}, v5')
    a('v_xor_b32 v16, 16, v5')
    a('v_lshrrev_b32 v17, 3, v1')
    a('v_xor_b32 v18, v17, v6')
    a('v_lshlrev_b32 v18, 4, v18')
    a('v_lshl_add_u32 v18, v17, 7, v18')
    a('s_lshl_b32 s46, s3, 11')
    a(f's_add_u32 s46, s46, {XH}')
    a('v_add_u32 v18, s46, v18')
    a('v_lshlrev_b32 v17, 9, v17')
    a('v_lshl_add_u32 v17, v6, 4, v17')
    a('s_lshr_b32 s46, s32, 2')
    a('s_lshl_b32 s46, s46, 15')
    a('s_and_b32 s47, s32, 3')
    a('s_lshl_b32 s47, s47, 7')
    a('s_add_u32 s46, s46, s47')
    a('s_lshl_b32 s47, s3, 13')
    a('s_add_u32 s46, s46, s47')
    a(f's_add_u32 s46, s46, {hex(H2)}')
    a('s_add_u32 s47, s46, 0x1000')
    a(f's_add_u32 s37, s33, {hex(X1)}')
    a('v_lshrrev_b32 v14, 2, v0')
    a(f'v_mul_u32_u24 v14, {YP}, v14')
    a('v_and_b32 v19, 3, v0')
    a('v_lshl_add_u32 v14, v19, 4, v14')
    a('s_lshl_b32 s24, s32, 6')
    a(f's_add_u32 s26, s24, {hex(YT)}')
    a(f's_add_u32 s27, s26, {64*YP}')
    a(f's_add_u32 s5, s26, {128*YP}')
    a(f's_add_u32 s6, s26, {192*YP}')
    X = (64, 160)
    vm.need(tx)
    subs = []
    for t in range(2):
        s = Asm(); unpack8(s, X[t], 232+4*t, 40); ln2p(s, X[t], X[t]+8, X[t]+16, 24+t)
        subs.append(s)
    zipl(a, *subs)
    stamp('ln1')
    yloads = [f'buffer_load_dwordx4 v[{24+4*j}:{27+4*j}], v14, s[16:19], s{(26, 27, 5, 6)[j]} offen sc1' for j in range(4)]
    vm.need(tys)
    stamp('ytack')
    for l in yloads: ty = vm.issue(l)
    for l in mloads: tm = vm.issue(l)
    poll('yt', yloads, [26, 30, 34, 38], pre=ty)
    stamp('ytok'); raw(2, 's51')
    for j in range(4):
        a(f'ds_write_b32 v3, v{24+4*j} offset:{256*j}')
        a(f'ds_write_b32 v3, v{25+4*j} offset:{256*j+YS}')
    poll('md', mloads, [106, 110, 114], pre=tm)
    stamp('mdok'); raw(1, 's51')
    for r in range(3): a(f'ds_write_b64 v22, v[{104+4*r}:{105+4*r}] offset:{2048*r}')
    a('s_waitcnt lgkmcnt(0)')
    a('s_barrier')
    stamp('ybar')
    ptok = {}
    def p2dma(k):
        a(f's_add_u32 m0, s49, {SEG[0][1] + 2048*(k % 15)}')
        if k and k % 4: a(f's_add_u32 s48, s48, {16*3584}')
        elif k: step('s48', 16*3584, 's100', 512*3584)
        ptok[k] = vm.issue('buffer_load_dwordx4 v7, s[20:23], s48 offen lds')
    a(f's_add_u32 s100, s48, {512*3584}')
    a(f's_mul_i32 s36, s98, {64*3584}')
    a('s_add_u32 s48, s48, s36')
    for _ in range(P.get('e3', 3)): early.popleft()()
    NSY = P.get('nsy', 0)
    for k in range(NSY): p2dma(k)
    for i, off in enumerate((1024, 0, 2048)):
        a(f'ds_read_b128 v[{40+4*i}:{43+4*i}], v13 offset:{off}')
    a('ds_read_b128 v[24:27], v4')
    a(f'ds_read_b128 v[28:31], v4 offset:{YS}')
    for i, off in enumerate((4096, 3072)):
        a(f'ds_read_b128 v[{52+4*i}:{55+4*i}], v13 offset:{off}')
    a('ds_read_b128 v[124:127], v23')
    a('ds_read_b128 v[116:119], v23 offset:32')
    a('s_waitcnt lgkmcnt(7)')
    unpack8(a, 128, 40, 40); unpack8(a, 136, 44, 40)
    for t in range(2):
        for p in range(4):
            d = X[t]+8+2*p
            a(f'v_pk_fma_f32 v[{d}:{d+1}], v[{d}:{d+1}], v[{128+2*p}:{129+2*p}], v[{136+2*p}:{137+2*p}]')
    a('s_waitcnt lgkmcnt(6)')
    unpack8(a, 144, 48, 40)
    for t in range(2):
        for p in range(4):
            d = X[t]+8+2*p
            a(f'v_pk_mul_f32 v[{d}:{d+1}], v[{d}:{d+1}], v[{144+2*p}:{145+2*p}]')
    a('s_waitcnt lgkmcnt(0)')
    unpack8(a, 128, 52, 40); unpack8(a, 136, 56, 40)
    subs = []
    for t in range(2):
        s = Asm(); x = X[t]
        unpack8(s, x+20, 24+4*t, 40)
        for p in range(4):
            s(f'v_pk_fma_f32 v[{x+2*p}:{x+2*p+1}], v[{x+8+2*p}:{x+9+2*p}], v[{x+20+2*p}:{x+21+2*p}], v[{x+2*p}:{x+2*p+1}]')
        for j in range(4): s(f'v_cvt_pk_bf16_f32 v{32+4*t+j}, v{x+2*j}, v{x+2*j+1}')
        s(f'buffer_store_dwordx4 v[{32+4*t}:{35+4*t}], v15, s[16:19], s37 offen offset:{1024*t} sc1')
        unpack8(s, x, 32+4*t, 40)
        (ln1p if P.get('l1', 1) else ln2p)(s, x, x+8, x+16, 24+2*t)
        for p in range(4):
            s(f'v_pk_fma_f32 v[{x+8+2*p}:{x+9+2*p}], v[{x+8+2*p}:{x+9+2*p}], v[{128+2*p}:{129+2*p}], v[{136+2*p}:{137+2*p}]')
        for j in range(4): s(f'v_cvt_pk_bf16_f32 v{40+4*t+j}, v{x+8+2*j}, v{x+9+2*j}')
        s(f'ds_write_b128 v{(5, 16)[t]}, v[{40+4*t}:{43+4*t}]')
        subs.append(s)
    zipl(a, *subs)
    vm.issued += 2
    a('s_waitcnt lgkmcnt(0)')
    a('s_barrier')
    stamp('hbar')
    a('ds_read_b128 v[24:27], v18')
    a('ds_read_b128 v[28:31], v18 offset:1024')
    a('s_and_b32 s24, s32, 31')
    a('s_lshl_b32 s24, s24, 4')
    a('s_lshl_b32 s25, s3, 2')
    a('s_add_u32 s33, s24, s25')
    a('s_and_b32 s25, s30, 1')
    a('s_lshl_b32 s25, s25, 8')
    a('s_lshl_b32 s26, s3, 6')
    a('s_add_u32 s25, s25, s26')
    a('v_and_b32 v19, 15, v1')
    a('v_lshlrev_b32 v19, 2, v19')
    if M2:
        a('s_lshl_b32 s25, s3, 2')
        a('s_lshl_b32 s24, s32, 7')
        a('s_add_u32 s24, s24, s25')
        a(f's_add_u32 s24, s24, {hex(FL1)}')
        a('s_lshl_b32 s33, s30, 4')
        a('s_or_b32 s33, s33, s31')
        a('s_lshl_b32 s33, s33, 7')
        a('s_add_u32 s33, s33, s25')
        a(f's_add_u32 s33, s33, {hex(FL2)}')
        a('s_lshl_b32 s26, s30, 4')
        a('s_add_u32 s26, s26, s25')
        a('s_lshl_b32 s26, s26, 7')
        a(f's_add_u32 s97, s26, {hex(FL1)}')
        a('s_lshr_b32 s26, s32, 4')
        a('s_lshl_b32 s26, s26, 4')
        a('s_add_u32 s26, s26, s25')
        a('s_lshl_b32 s26, s26, 7')
        a(f's_add_u32 s25, s26, {hex(FL2)}')
        a('v_bfe_u32 v19, v1, 2, 2')
        a('v_and_b32 v22, 3, v1')
        a('v_lshlrev_b32 v22, 2, v22')
        a('v_lshl_add_u32 v19, v19, 7, v22')
    def flag(F):
        if not M2: return lstore([f'buffer_store_dword v20, v21, s[52:55], s33 offen offset:{F}'])
        if F == F3: a(f's_add_u32 s33, s33, {FL3-FL2}')
        return vm.issue(f'buffer_store_dword v20, v21, s[16:19], {"s24" if F == F1 else "s33"} offen sc1')
    def look(F):
        if not M2: return [f'buffer_load_dword v22, v{19 if F == F1 else 13}, s[52:55], s25 offen offset:{F} sc1']
        return [f'buffer_load_dword v22, v{19 if F == F1 else 13}, s[16:19], {"s97" if F == F1 else "s25"} offen sc1']
    a('s_waitcnt lgkmcnt(0)')
    lstore(['buffer_store_dwordx4 v[24:27], v17, s[16:19], s46 offen', 'buffer_store_dwordx4 v[28:31], v17, s[16:19], s47 offen'], P.get('h2s', M2))
    stamp('h2st')
    a('v_bfe_u32 v4, v1, 4, 1')
    a('v_lshrrev_b32 v5, 5, v1')
    a('v_bfe_u32 v22, v1, 2, 2')
    a('v_and_b32 v23, 3, v1')
    a('v_lshlrev_b32 v23, 3, v23')
    a('v_lshl_add_u32 v3, v5, 3, v22')
    a('v_bfe_u32 v13, v1, 3, 1')
    a('v_lshlrev_b32 v16, 7, v3')
    a('v_add_u32 v16, v16, v23')
    a('v_lshl_add_u32 v16, v13, 6, v16')
    a('v_lshl_add_u32 v16, v4, 5, v16')
    a(f'v_mul_u32_u24 v17, {SEG[0][2]-SEG[0][1]}, v4')
    a(f'v_add_u32 v17, {SEG[0][1]}, v17')
    a(f'v_mul_u32_u24 v18, {P1U}, v4')
    for ct in range(4):
        a(f'v_xor_b32 v14, {32*ct}, v16')
        a(f'v_add_u32 v{246+ct}, v14, v17')
    a('v_mul_u32_u24 v3, 0x60, v3')
    a('v_add_u32 v3, v3, v23')
    a('v_add_u32 v18, v18, v3')
    a('v_lshl_add_u32 v3, v5, 2, v22')
    a('v_lshlrev_b32 v3, 7, v3')
    a('v_lshl_add_u32 v3, v13, 6, v3')
    a('v_lshl_add_u32 v3, v4, 5, v3')
    a('v_add_u32 v3, v3, v23')
    a('s_lshl_b32 s26, s3, 11')
    a('s_and_b32 s27, s3, 1')
    a('s_lshl_b32 s27, s27, 6')
    a('v_xor_b32 v3, s27, v3')
    a('v_add_u32 v240, s26, v3')
    a('v_xor_b32 v241, 64, v240')
    for i in range(1, 3):
        a(f'v_add_u32 v{240+2*i}, {65536*i}, v240')
        a(f'v_add_u32 v{241+2*i}, {65536*i}, v241')
    a(f's_mov_b32 s44, {fh(GC2)}'); a(f's_mov_b32 s45, {fh(GC2)}')
    a(f'v_mov_b32 v2, {fh(GC1)}'); a(f'v_mov_b32 v3, {fh(GC1)}')
    a('s_lshl_b32 s27, s30, 2')
    a('s_add_u32 s27, s27, s3')
    a('s_lshl_b32 s28, s27, 15')
    a(f's_add_u32 s28, s28, {hex(H2)}')
    a('v_add_u32 v14, s28, v15')
    a('s_lshl_b32 s28, s98, 12')
    a('s_waitcnt vmcnt(0)'); vm.done = vm.issued
    stamp('h2dr')
    flag(F1)
    while early: early.popleft()()
    NS0 = P.get('ns0', 0) + NSY
    for k in range(NSY, NS0): p2dma(k)
    a('s_mul_i32 s29, s27, 112')
    AP = 1024 if M2 else YP
    if M2:
        a('s_lshl_b32 s47, s31, 2')
        a('s_add_u32 s47, s47, s29')
        a('s_lshl_b32 s47, s47, 10')
        a(f's_add_u32 s47, s47, {hex(ACT)}')
    else:
        a('s_lshl_b32 s47, s3, 4')
        a('s_add_u32 s47, s47, s31')
        a(f's_mul_i32 s47, s47, {4*YP}')
        a('s_lshl_b32 s4, s30, 10')
        a(f's_add_u32 s4, s4, {hex(YT)}')
        a('s_add_u32 s47, s47, s4')
    a('s_mul_i32 s46, s31, 3')
    a('s_add_u32 s46, s46, s29')
    a('s_lshl_b32 s46, s46, 10')
    a(f's_add_u32 s46, s46, {hex(ACT + 64*1024)}')
    a('s_lshr_b32 s39, s32, 3')
    a('s_and_b32 s35, s39, 1')
    a(f's_and_b32 s34, s39, {P.get("wrot", 0)}')
    a('s_and_b32 s24, s32, 7')
    a('s_lshl_b32 s24, s24, 7')
    if RL:
        a(f's_add_u32 s8, s58, {hex(WD2)}')
        a('s_addc_u32 s9, s59, 0')
        a('s_mul_i32 s24, s24, 1792')
    a(f's_mul_i32 s37, s3, {12*WS_}')
    a('s_add_u32 s37, s37, s24')
    a(f's_add_u32 s30, s37, {76*WS_}')
    a(f's_mul_i32 s36, s34, {3*WS_}')
    a('s_add_u32 s37, s37, s36')
    a(f's_add_u32 s37, s37, {64*WS_}')
    a(f's_mul_i32 s38, s3, {16*WS_}')
    a('s_add_u32 s38, s38, s24')
    a(f's_add_u32 s31, s38, {16*WS_}')
    a(f's_mul_i32 s36, s34, {4*WS_}')
    a('s_add_u32 s38, s38, s36')
    if M2:
        a(f's_mul_i32 s4, s39, {224*1024}')
        a('s_lshl_b32 s6, s3, 14')
        a('s_add_u32 s6, s6, s4')
        a(f's_add_u32 s6, s6, {hex(ACT)}')
    else:
        a('s_lshl_b32 s6, s35, 3')
        a('s_add_u32 s6, s6, s3')
        a(f's_mul_i32 s6, s6, {16*YP}')
        a('s_add_u32 s6, s6, s4')
    a(f's_add_u32 s42, s6, {16*AP}')
    a(f's_mul_i32 s36, s34, {4*AP}')
    a('s_add_u32 s6, s6, s36')
    a(f's_mul_i32 s4, s39, {224*1024}')
    a(f's_mul_i32 s5, s3, {12*1024}')
    a('s_add_u32 s5, s5, s4')
    a(f's_add_u32 s5, s5, {hex(ACT + 64*1024)}')
    a(f's_add_u32 s41, s5, {12*1024}')
    a(f's_mul_i32 s36, s34, {3*1024}')
    a('s_add_u32 s5, s5, s36')
    a('s_lshl_b32 s39, s39, 16')
    a('s_and_b32 s24, s32, 7')
    a('s_lshl_b32 s24, s24, 7')
    a('s_add_u32 s39, s39, s24')
    a('v_bfe_u32 v4, v1, 1, 2')
    a('v_and_b32 v5, 1, v1')
    a('v_lshlrev_b32 v5, 2, v5')
    a(f'v_lshl_add_u32 v4, v4, {7 if M2 else 4}, v5')
    a('s_lshl_b32 s35, s35, 3')
    a('v_add_u32 v13, s35, v4')
    a('s_cmp_ge_u32 s3, 2')
    for r, (reg0, reg1, dist) in enumerate(((250, 16, 112*1024), (251, 17, 112*1024 if M2 else 64*YP))):
        a(f's_cselect_b32 s36, {dist}, 0')
        a(f'v_add_u32 v{reg0}, s36, v15')
        a(f's_cselect_b32 s36, 0, {dist}')
        a(f'v_add_u32 v{reg1}, s36, v15')
    a('v_lshlrev_b32 v73, 7, v1')
    a('s_lshl_b32 s34, s2, 2')
    a('s_add_u32 s34, s34, s3')
    a(f's_mul_i32 s34, s34, {14*128}')
    poll('f1', look(F1), [22])
    stamp('f1ok'); raw(3, 's51')
    htok = {}
    def h2load(ks):
        htok[ks] = vm.issue(f'buffer_load_dwordx4 a[{4*ks}:{4*ks+3}], v14, s[16:19], s28 offen offset:{1024*(ks&3)} sc1')
        if (ks & 3) == 3:
            a('s_add_u32 s28, s28, 0x1000'); a('s_and_b32 s28, s28, 0x7fff')
    NH0 = P.get('nh0', 8)
    for ks in range(NH0): h2load(ks)
    slow(4)
    a('s_barrier')
    stamp('b0')
    wtok, atok = {}, {}
    def wd0(i):
        so = 's37' if i < 12 else 's38'
        a(f's_add_u32 m0, s26, {8192*WBL[i]}')
        if i not in (0, 12): a(f's_add_u32 {so}, {so}, {WS_}')
        vm.issue(f'buffer_load_dwordx4 v8, s[8:11], {so} offen lds')
    def wd1(i):
        wtok[i] = vm.issue(f'buffer_load_dwordx4 v9, s[8:11], {"s37" if i < 12 else "s38"} offen offset:1024 lds')
    def wreg(i): return ('v', 72 + 8*i) if i < 5 else ('a', 224 + 8*(i-5)) if i < 8 else ('v', AR + 8*(i % 3))
    def wread(i, mt, jj):
        kind, d = wreg(i); ad = 8192*WBL[i]
        return f'ds_read_b64_tr_b16 {kind}[{d+4*mt+2*jj}:{d+4*mt+2*jj+1}], v{240+2*(ad>>16)+mt} offset:{(ad & 0xffff)+1024*jj}'
    def abase(i): return 128 + 8*i if i < 12 else 8*(i-12)
    def act0(i):
        b = abase(i)
        if i < 12:
            if i and i % 4 == 0: a('s_add_u32 s5, s5, 0x1000')
            vm.issue(f'buffer_load_dwordx4 a[{b}:{b+3}], v250, s[16:19], s5 offen offset:{1024*(i & 3)} sc1')
        else:
            if i > 12: a(f's_add_u32 s6, s6, {AP}')
            vm.issue(f'buffer_load_dwordx4 a[{b}:{b+3}], v251, s[16:19], s6 offen sc1')
    def act1(i):
        b = abase(i)
        if i < 12: atok[i] = vm.issue(f'buffer_load_dwordx4 a[{b+4}:{b+7}], v16, s[16:19], s5 offen offset:{1024*(i & 3)} sc1')
        else: atok[i] = vm.issue(f'buffer_load_dwordx4 a[{b+4}:{b+7}], v17, s[16:19], s6 offen sc1')
    valu = deque()
    AR, NA = 24, 6
    ACC1, ACC2 = 192, 128
    pipe = LdsPipe(a)
    steps = [(0, k, ct) for k in range(32) for ct in range(2)] + [(0, k, 2) for k in range(32)] + [(1, k, ct) for k in range(32) for ct in range(4)]
    tok = {}; nxt = [0]
    def rd(n):
        ps, k, ct = steps[n]; d = AR + 4*(n % NA)
        for jj in range(2):
            b, off = (18, (16*k + 4*jj)*96 + 32*ct) if ps == 0 else (246+ct, 2048*(k % 15) + 512*jj)
            tok[n] = pipe.issue(f'ds_read_b64_tr_b16 v[{d+2*jj}:{d+2*jj+1}], v{b} offset:{off}')
    for n in range(NA-1): rd(n)
    nxt[0] = NA-1
    J = dict(h=NH0, p=NS0, w=0, half=False, a=0, ahalf=False, pmax=15, wmax=0, f2=False, lastp=-99)
    stg = {}
    def wfree(i): return i < J['wmax'] and (not 12 <= i < 20 or stg.get(i - 12, 1 << 30) <= pipe.done)
    def job(n):
        if J['half']: J['half'] = False; wd1(J['w']); J['w'] += 1; return 1
        if J['h'] < 32: h2load(J['h']); J['h'] += 1; return 1
        if J['p'] < J['pmax'] and n - J['lastp'] >= PE: p2dma(J['p']); J['p'] += 1; J['lastp'] = n; return 3
        if J['ahalf']: J['ahalf'] = False; act1(J['a']); J['a'] += 1; return 1
        if J['f2'] and J['a'] < 12 and (J['a'] <= J['w'] - P.get('wa', 8) or not wfree(J['w']) or J['w'] >= 28):
            act0(J['a']); J['ahalf'] = True; return 1
        if J['w'] < 28 and wfree(J['w']) and n >= P.get('ws', 112): wd0(J['w']); J['half'] = True; return 3
        return 0
    VB = P.get('vb', 35); PE = P.get('pe', 3); TE = P.get('te', 15); LW = P.get('lw', 2)
    stok = {}; sg = 0; credit = 0; nb = 0; ta = 0; fload = look(F2); tp = None
    F2P, F2C = P.get('f2p', 999), P.get('f2c', 204)
    def gelu_step(x, n):
        if isinstance(x, tuple):
            stok[x[1]] = vm.issue(f'buffer_store_dwordx4 v[{x[2]}:{x[2]+3}], v15, s[16:19], s46 offen offset:{1024*x[1]} sc1')
            stok['at'] = n
        else: a(x)
    for n, (ps, k, ct) in enumerate(steps):
        if n < 64 and ct == 0:
            while k not in htok: job(n)
            vm.need(htok[k])
        if tok[n] > pipe.done: pipe.need(tok[min(n + LW - 1, len(steps) - 1)])
        d = (ACC1, ACC2)[ps] + 16*ct; c = '0' if k == 0 else f'v[{d}:{d+15}]'
        sa = AR + 4*(n % NA)
        a(f'v_mfma_f32_32x32x16_bf16 v[{d}:{d+15}], v[{sa}:{sa+3}], a[{4*k}:{4*k+3}], {c}')
        if nxt[0] < len(steps): rd(nxt[0]); nxt[0] += 1
        credit = min(credit + VB, P.get('cap', 40))
        if n in BARS:
            land, J['pmax'], J['wmax'] = BARS[n][0], J['pmax'], J['wmax']
            if land is not None:
                while land not in ptok:
                    if J['half']: job(n)
                    p2dma(J['p']); J['p'] += 1
                vm.need(ptok[land])
            a('s_barrier')
            J['pmax'], J['wmax'] = BARS[n][1:]
            nb += 1; stamp(f'b{nb}'); credit -= 10
        if n == P.get('wt', 999 if RL else 60):
            a('s_mov_b64 exec, 0x3fff')
            vm.issue('buffer_load_dword v72, v73, s[8:11], s34 offen')
            a('s_mov_b64 exec, -1')
        if n in (65, 97):
            if n == 65: stamp('p1a')
            else: stamp('p1end')
            for t in ((0, 1) if n == 65 else (2,)):
                o = 64 + 4*(t & 1)
                valu.extend(gelu_ops(ACC1+16*t, 48 + 8*(t & 1), o))
                valu.append(('store', t, o))
        ta += 10
        if n == F2P and 'f2' in stok: tp = vm.issue(fload[0]); ta = 0
        elif n == F2C and tp is not None:
            poll('f2', fload, [22], pre=tp); J['f2'] = True
            stamp('f2ok'); raw(4, 's51')
        elif ta >= TE:
            cst = job(n)
            if cst: ta -= TE; credit -= 10*cst
            else: ta = TE
        if n >= P.get('stg', 160) and sg < 32 and pipe.outstanding() <= 13 and credit >= 10 and (not valu or n % 2):
            i, r = divmod(sg, 4)
            if i in wtok and (wtok[i] <= vm.done or vm.issued - wtok[i] >= P.get('sl', 8)):
                vm.need(wtok[i])
                t = pipe.issue(wread(i, r >> 1, r & 1)); sg += 1; credit -= 10
                if r == 3: stg[i] = t
        while valu and credit >= 10*(cost(valu[0]) if isinstance(valu[0], str) else 1):
            x = valu.popleft(); gelu_step(x, n)
            if isinstance(x, str): credit -= 10*cost(x)
        if 2 in stok and 'f2' not in stok and n >= stok['at'] + P.get('fdel', 24):
            vm.need(stok[2])
            stok['f2'] = flag(F2); print('F2 at', n, end='; ')
    while valu: gelu_step(valu.popleft(), 224)
    if 'f2' not in stok:
        vm.need(stok[2])
        stok['f2'] = flag(F2)
    assert J['p'] == 32 and J['h'] == 32
    print('w_down steps', J['w'], 'staged', sg, 'act steps', J['a'])
    while sg < 32:
        i, r = divmod(sg, 4)
        while i not in wtok: job(999)
        vm.need(wtok[i])
        stg[i] = pipe.issue(wread(i, r >> 1, r & 1)); sg += 1
    pipe.need(pipe.issued)
    if tp is None and P.get('fp', 2) < 4: tp = vm.issue(fload[0])
    a('s_mov_b32 s34, 1.0'); a('s_mov_b32 s35, 1.0')
    def geglu2(t):
        s = Asm(); geglu(s, ACC2+16*t, 48, 64 + 4*(t & 1))
        for j, l in enumerate(s.lines):
            a(l.replace('s[46:47]', 's[34:35]'))
            if j % P.get('ge', 8) == 3 and t < P.get('gt', 4): job(999)
        if t: a(f's_add_u32 s47, s47, {AP}')
        return lstore([f'buffer_store_dwordx4 v[{64+4*(t&1)}:{67+4*(t&1)}], v15, s[16:19], s47 offen'], P.get('a2s', M2))
    for t in range(4):
        if t == P.get('fp', 2) and not J['f2']:
            stamp('g1')
            poll('f2', fload, [22], pre=tp); J['f2'] = True
            stamp('f2ok'); raw(4, 's51')
        if t == 3 and tp is None: tp = vm.issue(fload[0])
        ts3 = geglu2(t)
    stamp('g3')
    a('v_and_b32 v4, 31, v1')
    a('v_lshrrev_b32 v5, 5, v1')
    a('v_lshlrev_b32 v10, 10, v4')
    a('v_lshl_add_u32 v10, v5, 4, v10')
    a('s_lshr_b32 s46, s3, 1')
    a('s_lshl_b32 s46, s46, 15')
    a('s_and_b32 s47, s3, 1')
    a('s_lshl_b32 s47, s47, 6')
    a('s_add_u32 s39, s39, s46')
    a('s_add_u32 s39, s39, s47')
    a(f's_add_u32 s46, s39, {hex(X1)}')
    vm.need(ts3)
    flag(F3)
    if not J['f2']:
        poll('f2', fload, [22], pre=tp); J['f2'] = True
        stamp('f2ok'); raw(4, 's51')
        while J['a'] < P.get('a1b', 3): job(999)
    if M2: a(f's_add_u32 s25, s25, {FL3-FL2}')
    stamp('estart')
    pipe = LdsPipe(a); tok = {}
    def rd2(i):
        while i not in wtok: job(999)
        vm.need(wtok[i])
        for mt in range(2):
            for jj in range(2): tok[(i, mt)] = pipe.issue(wread(i, mt, jj))
    f3load = look(F3)
    for i in range(8): stg[i] = 0
    F3C = P.get('f3c', 8); JE = P.get('je', 2); tp = None; g = 0; aq = deque()
    for i in range(28):
        stamp(f'e{i}')
        if i == F3C:
            while J['a'] < 12 or J['half']: job(999)
            if tp is None: tp = vm.issue(f3load[0])
            poll('f3', f3load, [22], pre=tp)
            stamp('f3ok'); raw(5, 's51')
            for ii in range(12, 28): aq.extend([lambda ii=ii: act0(ii), lambda ii=ii: act1(ii)])
            for _ in range(P.get('a2b', 4)): aq.popleft()()
        if i == 22:
            vm.issue('buffer_load_dwordx4 v[72:75], v10, s[16:19], s46 offen sc1')
            tx = vm.issue('buffer_load_dwordx4 v[76:79], v10, s[16:19], s46 offen offset:32 sc1')
        kind, d0 = wreg(i); b = abase(i)
        while i not in atok: (aq.popleft()() if i >= 12 else job(999))
        vm.need(atok[i])
        for mt in range(2):
            if i >= 8: pipe.need(tok[(i, mt)])
            for nt in range(2):
                d = ACC2 + 32*mt + 16*nt; c = '0' if i == 0 else f'v[{d}:{d+15}]'
                a(f'v_mfma_f32_32x32x16_bf16 v[{d}:{d+15}], {kind}[{d0+4*mt}:{d0+4*mt+3}], a[{b+4*nt}:{b+4*nt+3}], {c}')
                g += 1
                if mt == 0 and nt == 0 and 8 <= i+2 < 28: rd2(i+2)
                if g % JE == 0:
                    if aq and not J['half'] and (J['w'] >= 28 or J['w'] > i + P.get('wb', 28)): aq.popleft()()
                    elif tp is None and not J['half'] and J['a'] == 12 and (J['w'] >= 28 or i == F3C - 1): tp = vm.issue(f3load[0])
                    elif not job(999) and aq: aq.popleft()()
    stamp('eend')
    PBL = [None, (WBL[8], WBL[9]), (WBL[10], WBL[11]), (WBL[12], WBL[13])]
    a('v_add_u32 v4, s26, v15')
    a('v_add_u32 v5, 0x10000, v4')
    a('v_add_u32 v18, 0x20000, v4')
    base(a, 12, 56, 0x200000)
    for t in range(1, 4):
        d = ACC2 + 32*(t & 1) + 16*(t >> 1)
        for g in range(4):
            ad = 8192*PBL[t][g >> 1] + 1024*(g & 1)
            a(f'ds_write_b128 v{(4, 5, 18)[ad >> 16]}, v[{d+4*g}:{d+4*g+3}] offset:{ad & 0xffff}')
        a(f's_xor_b32 s6, s26, {2048*t}')
        a(f's_add_u32 s7, s6, {8192*PBL[t][1]}')
        a(f's_add_u32 s6, s6, {8192*PBL[t][0]}')
        a(f'v_add_u32 v{88+2*t}, s6, v15')
        a(f'v_add_u32 v{89+2*t}, s7, v15')
    vm.need(tx)
    unpack8(a, 96, 124, 40); unpack8(a, 104, 116, 40); unpack8(a, 48, 72, 40); unpack8(a, 56, 76, 40)
    a('s_waitcnt lgkmcnt(0)')
    a('s_barrier')
    stamp('ebar')
    for i in range(1, 4):
        for g in range(4):
            a(f'ds_read_b128 v[{128+16*i+4*g}:{131+16*i+4*g}], v{88+2*i+(g >> 1)} offset:{1024*(g & 1)}')
    for i in range(1, 4):
        a(f's_waitcnt lgkmcnt({12-4*i})')
        for p in range(8): a(f'v_pk_add_f32 v[{128+2*p}:{129+2*p}], v[{128+2*p}:{129+2*p}], v[{128+16*i+2*p}:{129+16*i+2*p}]')
    for g in range(2):
        b = 128 + 8*g
        for r in range(4): a(f'v_permlane32_swap_b32 v{b+r}, v{b+4+r}')
        for p in range(4): a(f'v_pk_fma_f32 v[{b+2*p}:{b+2*p+1}], v[{b+2*p}:{b+2*p+1}], v[{96+8*g+2*p}:{97+8*g+2*p}], v[{48+8*g+2*p}:{49+8*g+2*p}]')
        for p in range(4): a(f'v_cvt_pk_bf16_f32 v{40+4*g+p}, v{b+2*p}, v{b+2*p+1}')
        a(f'buffer_store_dwordx4 v[{40+4*g}:{43+4*g}], v10, s[12:15], s39 offen offset:{32*g}' + ('', ' sc1', ' nt')[P.get('ost', 0)])
    a('s_or_b32 s4, s2, s3')
    a('s_cmp_lg_u32 s4, 0')
    a('s_cbranch_scc1 L_noep')
    a(f's_mov_b32 s4, {hex(EPOCH)}')
    a('buffer_store_dword v20, v21, s[16:19], s4 offen')
    a.label('L_noep')
    if P.get('probe') is not None:
        a('s_waitcnt vmcnt(0)')
        stamp('end')
        a('s_waitcnt lgkmcnt(0)')
        k = P['probe']
        if k >= 100:
            a(f's_mov_b32 s36, {hex(0x140A000)}')
            a('buffer_load_dwordx4 v[24:27], v15, s[16:19], s36 offen sc1')
            a('s_waitcnt vmcnt(0)')
            for r, op in ((28, 'min'), (29, 'max')):
                a(f'v_{op}_u32 v{r}, v24, v25')
                a(f'v_{op}3_u32 v{r}, v{r}, v26, v27')
                for ctl in ('row_ror:1', 'row_ror:2', 'row_ror:4', 'row_ror:8'):
                    a(f'v_{op}_u32_dpp v{r}, v{r}, v{r} {ctl} row_mask:0xf bank_mask:0xf')
                for i in range(4): a(f'v_readlane_b32 s{4+i}, v{r}, {16*i}')
                a(f's_{op}_u32 s4, s4, s5'); a(f's_{op}_u32 s6, s6, s7'); a(f's_{op}_u32 s{r+62}, s4, s6')
            if k == 100: a('s_add_u32 s92, s90, 6000')
            elif k == 101:
                a('s_sub_u32 s92, s91, s90'); a('s_lshl_b32 s92, s92, 2'); a('s_add_u32 s92, s92, s90'); a('s_add_u32 s92, s92, 4000')
            else:
                a(f's_sub_u32 s92, s{60+2*(k-110)}, s90'); a('s_lshl_b32 s92, s92, 2'); a('s_add_u32 s92, s92, s90'); a('s_add_u32 s92, s92, 4000')
        elif k == 0:
            a('s_add_u32 s92, s60, 6000')
        else:
            a(f's_sub_u32 s92, s{60+2*k}, s60')
            a('s_lshl_b32 s92, s92, 2')
            a('s_add_u32 s92, s92, s60')
            a('s_add_u32 s92, s92, 4000')
        a.label('L_probe')
        a('s_memrealtime s[94:95]')
        a('s_waitcnt lgkmcnt(0)')
        a('s_sub_u32 s94, s94, s92')
        a('s_cmp_lt_i32 s94, 0')
        a('s_cbranch_scc1 L_probe')
    elif P.get('stamps'):
        a('s_waitcnt vmcnt(0)')
        stamp('end')
        a('s_cmp_lg_u32 s3, 0')
        a('s_cbranch_scc1 L_end')
        a('s_lshl_b32 s94, s2, 7')
        a(f's_add_u32 s94, s94, {hex(TS)}')
        a('s_add_u32 s92, s58, s94')
        a('s_addc_u32 s93, s59, 0')
        a('v_lshlrev_b32 v250, 2, v1')
        a('s_lshl_b32 s94, s2, 8')
        a(f's_add_u32 s94, s94, {hex(TS + 0x80000)}')
        a('s_add_u32 s94, s58, s94')
        a('s_addc_u32 s95, s59, 0')
        a('global_store_dword v250, v254, s[94:95]')
        a('s_mov_b64 exec, 1')
        if P.get('dbg'):
            a('s_load_dwordx2 s[94:95], s[0:1], 104')
        a('s_waitcnt lgkmcnt(0)')
        if P.get('dbg'):
            a('s_not_b32 s60, s60')
            for m in sorted(marks):
                a(f'v_mov_b32 v250, s{60+2*m}')
                a(f'global_atomic_umax v21, v250, s[94:95] offset:{4*m}')
                a('s_nop 1')
            a('s_not_b32 s60, s60')
        for m in sorted(marks):
            a(f'v_mov_b32 v250, s{60+2*m}')
            a(f'v_mov_b32 v251, s{61+2*m}')
            a(f'global_store_dwordx2 v21, v[250:251], s[92:93] offset:{8*m}')
            a('s_nop 1')
    a.label('L_end')
    a.label('L_last')
    a('s_endpgm')
    return dict(grid=256, block=256, lds=163840, vgpr=512, accum=256)
```

```python
from collections import deque
from asmlib import *
from k123 import fh, lo, hi, unpack8, ln_stats, LdsPipe, A_OUT, A_WS
from k45 import VmPipe, GC1, GC2, geglu
from cde import zipl, gelu_ops, cost

UT, YT, X1, H2, ACT = 0, 0x400000, 0x900000, 0, 0xD00000
MODT, EPOCH, GRP, MP, TS = 0x1400000, 0x1408000, 0x1410000, 0x1480000, 0x1500000
YP = 16384 + 128
XID, UH, F1, F2, F3 = 0, 128, 1024, 1536, 2048
P1U = 49280
SEG = [(0, 98432, 129152), (15, 0, 49280), (27, 24576, 73856)]
CB, CHS, KB, U0, U1 = 98432, 12992, 512, 4608, 8768
PB = CB + 2*CHS
PRM = PB + 32768
MPART = PRM + 6144
XG = 129152 + 112*128
YS = 1040
XH = XG + 8*YS
PS = 272
SPIN = 1 << 15
WBL = list(range(12)) + list(range(8)) + [13, 17, 14, 18, 12, 15, 16, 19]
BARS = {89: (5, 15, 0), 111: (9, 19, 20), 127: (13, 23, 20), 143: (17, 27, 20), 159: (21, 31, 20), 175: (25, 32, 20),
        191: (29, 32, 22), 207: (31, 32, 24), 223: (None, 32, 28)}
assert MPART + 512 <= 163840 and XH + 8192 <= 163840
def seg_of(k): return SEG[0] if k < 15 else SEG[1] if k < 27 else SEG[2]

def base(a, d, p, n):
    a(f's_mov_b32 s{d}, s{p}'); a(f's_mov_b32 s{d+1}, s{p+1}'); a(f's_mov_b32 s{d+2}, {hex(n)}')

FL1, FL2, FL3 = 0x1420000, 0x1428000, 0x1430000
def ln1p(a, X, D, T, s0):
    a(f'v_pk_add_f32 v[{T}:{T+1}], v[{X}:{X+1}], v[{X+2}:{X+3}]')
    a(f'v_pk_mul_f32 v[{T+2}:{T+3}], v[{X}:{X+1}], v[{X}:{X+1}]')
    a(f'v_pk_add_f32 v[{D}:{D+1}], v[{X+4}:{X+5}], v[{X+6}:{X+7}]')
    for p in range(1, 4):
        a(f'v_pk_fma_f32 v[{T+2}:{T+3}], v[{X+2*p}:{X+2*p+1}], v[{X+2*p}:{X+2*p+1}], v[{T+2}:{T+3}]')
    a(f'v_pk_add_f32 v[{T}:{T+1}], v[{T}:{T+1}], v[{D}:{D+1}]')
    a(f'v_add_f32 v{T+2}, v{T+2}, v{T+3}')
    a(f'v_add_f32 v{T}, v{T}, v{T+1}')
    for ctl in ('row_shr:1', 'row_shr:2', 'row_shr:4', 'row_shr:8'):
        for r in (T+2, T): a(f'v_add_f32_dpp v{r}, v{r}, v{r} {ctl} row_mask:0xf bank_mask:0xf bound_ctrl:1')
    for ctl in ('row_bcast:15 row_mask:0xa', 'row_bcast:31 row_mask:0xc'):
        for r in (T+2, T): a(f'v_add_f32_dpp v{r}, v{r}, v{r} {ctl} bank_mask:0xf')
    a(f'v_readlane_b32 s{s0+1}, v{T+2}, 63')
    a(f'v_readlane_b32 s{s0}, v{T}, 63')
    a(f'v_mov_b32 v{T+1}, {fh(1.0/512)}')
    a(f'v_mov_b32 v{T+3}, {fh(1e-5)}')
    a(f'v_mul_f32 v{T}, s{s0}, v{T+1}')
    a(f'v_fmac_f32 v{T+3}, s{s0+1}, v{T+1}')
    a(f'v_fma_f32 v{T+2}, -v{T}, v{T}, v{T+3}')
    a(f'v_max_f32 v{T+2}, {fh(1e-5)}, v{T+2}')
    a(f'v_rsq_f32 v{T+2}, v{T+2}')
    for p in range(4):
        a(f'v_pk_add_f32 v[{D+2*p}:{D+2*p+1}], v[{X+2*p}:{X+2*p+1}], v[{T}:{T+1}] op_sel:[0,0] op_sel_hi:[1,0] neg_lo:[0,1] neg_hi:[0,1]')
    for p in range(4):
        a(f'v_pk_mul_f32 v[{D+2*p}:{D+2*p+1}], v[{D+2*p}:{D+2*p+1}], v[{T+2}:{T+3}] op_sel:[0,0] op_sel_hi:[1,0]')
def ln2p(s, X, D, T, s0):
    ln_stats(s, X, D, T, s0)
    for p in range(4):
        s(f'v_pk_mul_f32 v[{D+2*p}:{D+2*p+1}], v[{D+2*p}:{D+2*p+1}], v[{T}:{T+1}] op_sel:[0,0] op_sel_hi:[1,0]')

def mega(a, P):
    M2 = P.get('m2', 0)
    RL = P.get('rl', 1)
    WD2, WS_ = 0x200000, (2048 if RL else 0x4000)
    H2 = 0xB00000 if M2 else 0
    marks = set()
    SETS = {1: 'start kv0 utst utok bbar end bend ytst ytok h2dr b0 p1end b9 estart f3ok eend',
            2: 'start kv0 kvN abar utst end ut1st uhok utok bbar bend pbar ytst ytack ytok mdok',
            3: 'start ytst ln1 ytack ytok end ybar hbar h2st h2dr f1ok b0 b1 b2 b3 p1end',
            6: 'start b0 p1a p1end b2 end b3 b4 b5 b6 b7 b8 b9 f2ok g3 estart',
            7: 'start estart e2 e4 e6 end f3ok e8 e10 e12 e14 e16 e20 e24 eend ebar',
            8: 'start x1 x2 x3 x4 end',
            5: 'start karg x2 x3 x4 end x6 x7 x8 x9 x10 x11 x12 kv0 issued pre',
            4: 'start p1end b5 b6 b7 end b8 g1 f2ok g3 estart e12 f3ok e20 eend ebar'}
    names = SETS[P.get('stamps', 1)].split()
    def stamp(name):
        if P.get('stamps') and name in names:
            slot = names.index(name)
            a(f's_memrealtime s[{60+2*slot}:{61+2*slot}]'); marks.add(slot)
    def raw(i, sreg):
        if P.get('stamps'): a(f'v_writelane_b32 v254, {sreg}, {i}')
    vm = VmPipe(a)
    NT = ' nt' if P.get('nt', 1) else ''
    nst = [0]
    def lstore(lines, through=False):
        if through:
            for l in lines: t = vm.issue(l + ' sc1')
            return t
        return lstore2(lines)
    def lstore2(lines):
        n = nst[0]; nst[0] += 1
        a('s_cmp_eq_u32 s101, 0')
        a(f's_cbranch_scc1 L_ls{n}a')
        for l in lines: a(l + ' sc1')
        a(f's_branch L_ls{n}b')
        a.label(f'L_ls{n}a')
        for l in lines: t = vm.issue(l)
        a.label(f'L_ls{n}b')
        return t
    def poll(name, loads, tags, pre=None):
        a(f's_mov_b32 s51, {SPIN}')
        if pre is not None:
            vm.need(pre)
            stamp(name + '1st')
            a(f's_branch L_{name}_chk')
        a.label(f'L_{name}')
        for l in loads: a(l)
        a('s_waitcnt vmcnt(0)')
        a.label(f'L_{name}_chk')
        a(f'v_cmp_ne_u32 vcc, s50, v{tags[0]}')
        for i, t in enumerate(tags[1:]): a(f'v_cmp_ne_u32 s[{92+2*i}:{93+2*i}], s50, v{t}')
        a('s_sub_u32 s51, s51, 1')
        a(f's_cbranch_scc1 L_{name}_ok')
        for i in range(len(tags)-1): a(f's_or_b64 vcc, vcc, s[{92+2*i}:{93+2*i}]')
        a(f's_cbranch_vccnz L_{name}')
        a.label(f'L_{name}_ok')
        if pre is None: vm.done = vm.issued

    a('s_cmp_ge_u32 s2, 256')
    a('s_cbranch_scc1 L_end')
    stamp('start')
    if P.get('stamps'): a('v_mov_b32 v254, 0')
    a('s_load_dwordx16 s[64:79], s[0:1], 0')
    if P.get('cpf', 1):
        a('s_getpc_b64 s[4:5]')
        a.label('L_pc')
        a('v_lshlrev_b32 v3, 7, v0')
        a('v_mov_b32 v5, s5')
        a('v_add_co_u32 v4, vcc, s4, v3')
        a(f'v_cmp_gt_u32 s[6:7], {P.get("cpn", 16)}, v0')
        a('v_and_b32 v1, 63, v0')
        a('v_addc_co_u32 v5, vcc, 0, v5, vcc')
        a('s_and_b64 exec, exec, s[6:7]')
        a('s_cbranch_execz L_nopf')
        a('global_load_dword v169, v[4:5], off')
        a.label('L_nopf')
        a('s_mov_b64 exec, -1')
    else: a('v_and_b32 v1, 63, v0')
    a(f's_load_dwordx2 s[58:59], s[0:1], {A_WS}')
    a('s_load_dwordx8 s[80:87], s[0:1], 64')
    a(f's_load_dwordx2 s[56:57], s[0:1], {A_OUT}')
    a('v_lshrrev_b32 v2, 6, v0')
    a('v_readfirstlane_b32 s3, v2')
    a('s_mov_b32 s40, 0xffff0000')
    a('s_and_b32 s28, s2, 7')
    a('s_lshr_b32 s29, s2, 3')
    a('s_lshl_b32 s32, s28, 5')
    a('s_or_b32 s32, s32, s29')
    a('v_and_b32 v3, 31, v0')
    a('v_lshrrev_b32 v2, 5, v0')
    a('s_lshl_b32 s33, s29, 6')
    a('v_lshl_add_u32 v4, v2, 3, s33')
    a('s_lshl_b32 s33, s28, 7')
    a('v_lshl_add_u32 v5, v3, 2, s33')
    a('v_lshl_add_u32 v5, v4, 10, v5')
    a('v_subrev_u32 v4, 0xc00, v5')
    a('s_lshl_b32 s33, s28, 9')
    a('v_lshl_add_u32 v13, v3, 4, s33')
    a('s_movk_i32 s35, 0x1000')
    a('s_mov_b32 s15, 0x20000'); a('s_mov_b32 s27, 0x20000'); a('s_mov_b32 s19, 0x20000')
    a('s_mov_b32 s23, 0x20000'); a('s_mov_b32 s11, 0x20000'); a('s_mov_b32 s55, 0x20000')
    a('v_lshlrev_b32 v15, 4, v1')
    a('v_mov_b32 v21, 0')
    a('v_lshlrev_b32 v14, 4, v0')
    a('s_waitcnt lgkmcnt(0)')
    stamp('karg')
    if P.get('wso'):
        a(f's_add_u32 s58, s58, {hex(P["wso"] << 20)}')
        a('s_addc_u32 s59, s59, 0')
    base(a, 12, 70, 4096)
    base(a, 24, 68, 0x200000)
    tsh = vm.issue('buffer_load_dwordx4 v[48:51], v13, s[12:15], 0 offen' + NT)
    base(a, 12, 66, 0x200000)
    for i in range(3): vm.issue(f'buffer_load_dword v{24+i}, v4, s[12:15], 0 offen offset:{1024*i}' + NT)
    tk = {}
    for i in range(8):
        so = 's35' if i >= 4 else '0'
        vm.issue(f'buffer_load_dword v{27+i}, v5, s[12:15], {so} offen offset:{1024*(i&3)}' + NT)
        tk[i] = vm.issue(f'buffer_load_dword v{36+i}, v5, s[24:27], {so} offen offset:{1024*(i&3)}' + NT)
    stamp('issued')
    a(f's_add_u32 s4, s58, {hex(EPOCH)}')
    a('s_addc_u32 s5, s59, 0')
    a('s_load_dword s50, s[4:5], 0')
    if P.get('cpf', 1):
        a('s_getpc_b64 s[6:7]')
        a.label('L_pc2')
        a('s_lshl_b32 s36, s29, 2')
        a('s_add_u32 s36, s36, s3')
        a('v_and_b32 v4, 1, v0')
        a('v_lshl_add_u32 v4, s36, 1, v4')
        a('v_min_u32 v4, (L_last-L_pc2)/128, v4')
        a('v_lshlrev_b32 v4, 7, v4')
        a('v_mov_b32 v5, s7')
        a('v_add_co_u32 v4, vcc, s6, v4')
        a('v_addc_co_u32 v5, vcc, 0, v5, vcc')
        a('s_mov_b64 exec, 3')
        vm.issue('global_load_dword v168, v[4:5], off')
        a('s_mov_b64 exec, -1')
    if P.get('kvbar', 1): a('s_barrier')
    a('s_lshl_b32 s33, s32, 2')
    a('s_add_u32 s6, s74, s33')
    a('s_addc_u32 s7, s75, 0')
    a('s_load_dword s34, s[6:7], 0')
    a('s_lshl_b32 s33, s32, 13')
    SK = {}
    def skload():
        base(a, 12, 72, 0x200000)
        a('s_lshl_b32 s36, s32, 13')
        vm.issue('buffer_load_dwordx4 v[146:149], v14, s[12:15], s36 offen' + NT)
        a('s_add_u32 s36, s36, 0x1000')
        SK['t'] = vm.issue('buffer_load_dwordx4 v[150:153], v14, s[12:15], s36 offen' + NT)
    if P.get('skat', 0) == 0: skload()
    a('s_mul_i32 s30, s28, 6')
    a('s_lshr_b32 s31, s29, 2')
    a('s_add_u32 s30, s30, s31')
    a('s_and_b32 s31, s29, 3')
    a('s_lshl_b32 s46, s30, 2')
    a('s_or_b32 s46, s46, s31')
    a('s_lshl_b32 s47, s31, 2')
    a('s_or_b32 s47, s47, s3')
    a('v_and_b32 v16, 1, v0')
    a('v_lshrrev_b32 v17, 3, v1')
    a('v_and_b32 v6, 7, v1')
    a('v_mul_u32_u24 v242, 0x6000, v17')
    a('v_lshl_add_u32 v242, v6, 4, v242')
    a('v_lshlrev_b32 v243, 3, v17')
    a('s_lshl_b32 s36, s3, 11')
    a('s_add_u32 s33, s33, s36')
    WM = {}
    def wmload():
        base(a, 12, 84, 1024)
        a('s_lshl_b32 s36, s47, 6')
        tc = vm.issue('buffer_load_dwordx2 v[144:145], v243, s[12:15], s36 offen')
        base(a, 12, 86, 512*6144)
        a('s_cmp_lt_u32 s29, 24')
        a('s_cselect_b32 s14, s14, 0')
        a('s_lshr_b32 s36, s46, 2')
        a('s_lshl_b32 s36, s36, 7')
        a(f's_mul_i32 s37, s47, {32*6144}')
        a('s_add_u32 s36, s36, s37')
        twm = []
        for r in range(4):
            twm.append(vm.issue(f'buffer_load_dwordx4 v[{128+4*r}:{131+4*r}], v242, s[12:15], s36 offen' + NT))
            if r < 3: a('s_add_u32 s36, s36, 0x1800')
        WM.update(tc=tc, twm=twm)
    if P.get('wat', 2) == 0: wmload()
    if M2:
        a('s_and_b32 s30, s2, 1')
        a('s_lshl_b32 s30, s30, 3')
        a('s_and_b32 s98, s29, 7')
        a('s_or_b32 s30, s30, s98')
        a('s_bfe_u32 s31, s2, 0x20001')
        a('s_lshl_b32 s31, s31, 2')
        a('s_lshr_b32 s36, s2, 6')
        a('s_or_b32 s31, s31, s36')
        a('s_lshl_b32 s36, s36, 1')
        a('s_add_u32 s98, s98, s36')
    else:
        a('s_lshr_b32 s30, s32, 4')
        a('s_and_b32 s31, s32, 15')
        a(f's_and_b32 s98, s30, {P.get("prot", 0)}')
        a('s_lshl_b32 s98, s98, 2')
        if P.get('xrot', 1): a('s_add_u32 s98, s98, s28')
    a('s_and_b32 s98, s98, 7')
    a('s_lshr_b32 s38, s3, 1')
    a('s_and_b32 s39, s3, 1')
    a('s_cmp_eq_u32 s38, 0')
    a('s_cselect_b32 s20, s78, s80')
    a('s_cselect_b32 s21, s79, s81')
    a(f's_mov_b32 s22, {512*3584 if not P.get("now") else 0}')
    base(a, 8, 82, 1792*1024 if not P.get('now') else 0)
    base(a, 16, 58, TS)
    a('s_lshl_b32 s36, s28, 12')
    a(f's_add_u32 s36, s36, {hex(GRP)}')
    a('s_add_u32 s52, s58, s36')
    a('s_addc_u32 s53, s59, 0')
    a('s_movk_i32 s54, 0x1000')
    a('s_cmp_eq_u32 s3, 3')
    a('s_cselect_b32 s37, 0, 0x70000000')
    a('v_mov_b32 v22, s37')
    a('s_lshl_b32 s36, s29, 7')
    vm.issue('buffer_load_dword v158, v22, s[52:55], s36 offen')
    a('s_lshl_b32 s36, s46, 6')
    a(f's_add_u32 s36, s36, {hex(MODT)}')
    vm.issue('buffer_load_dword v159, v22, s[16:19], s36 offen')
    if M2 and P.get('ft', 1):
        a('s_lshl_b32 s36, s30, 4')
        a('s_lshr_b32 s37, s32, 4')
        a('s_lshl_b32 s37, s37, 4')
        a('s_sub_u32 s37, s37, s36')
        a('s_add_u32 s37, s37, 0x100')
        a('v_lshrrev_b32 v4, 2, v1')
        a('v_min_u32 v5, 1, v4')
        a('v_mul_lo_u32 v5, v5, s37')
        a('v_max_u32 v4, 1, v4')
        a('v_subrev_u32 v4, 1, v4')
        a('v_lshl_add_u32 v5, v4, 8, v5')
        a('v_and_b32 v4, 3, v1')
        a('v_add_u32 v5, v5, v4')
        a('s_lshl_b32 s37, s3, 2')
        a('s_add_u32 s36, s36, s37')
        a('v_add_lshl_u32 v5, v5, s36, 7')
        a(f's_mov_b32 s36, {hex(FL1)}')
        a('s_mov_b64 exec, 0xfff')
        vm.issue('buffer_load_dword v156, v5, s[16:19], s36 offen')
        a('s_mov_b64 exec, -1')
    a('s_lshl_b32 s36, s32, 13')
    a('s_lshl_b32 s37, s46, 11')
    a(f's_add_u32 s37, s37, {hex(MP)}')
    a('s_cmp_eq_u32 s3, 1')
    a(f's_cselect_b32 s37, s37, {hex(TS)}')
    a('s_cselect_b32 s44, 15, 63')
    a('s_cmp_eq_u32 s3, 2')
    a('s_cselect_b32 s37, s36, s37')
    a('v_and_b32 v4, s44, v1')
    a('v_lshlrev_b32 v4, 7, v4')
    if P.get('utt', 1): vm.issue('buffer_load_dword v157, v4, s[16:19], s37 offen' + (' nt' if P.get('ntu', 0) else ''))
    if P.get('tlb', 0) == 1:
        a('v_lshl_add_u32 v4, v1, 20, v22')
        for i, (p, n) in enumerate(((86, 512*6144), (84, 1024), (64, 0x200000), (78, 512*3584), (80, 512*3584), (82, 1792*1024), (56, 0x200000))):
            base(a, 12, p, n)
            vm.issue(f'buffer_load_dword v{160+i}, v4, s[12:15], 0 offen')
        vm.issue('buffer_load_dword v154, v4, s[16:19], 0 offen')
    for i in range(3):
        a(f'v_add_u32 v4, {64*i}, v1')
        a('v_mul_u32_u24 v5, 0x2aab, v4')
        a('v_lshrrev_b32 v5, 16, v5')
        a(f'v_mul_u32_u24 v5, {3584-96}, v5')
        a(f'v_lshl_add_u32 v{10+i}, v4, 4, v5')
        if i: a(f'v_subrev_u32 v{10+i}, {1024*i}, v{10+i}')
    a(f's_mul_i32 s41, s39, {32*3584}')
    a('s_mul_i32 s43, s31, 96')
    a('s_add_u32 s41, s41, s43')
    a('s_add_u32 s41, s41, 0x800')
    a('s_mul_i32 s43, s39, 3072')
    a(f's_mul_i32 s42, s38, {P1U}')
    a('s_add_u32 s42, s42, s43')
    a(f's_add_u32 s99, s41, {512*3584}')
    a(f's_mul_i32 s36, s98, {64*3584}')
    a('s_add_u32 s41, s41, s36')
    def step(reg, inc, lim, span):
        a(f's_add_u32 {reg}, {reg}, {inc}')
        a(f's_cmp_eq_u32 {reg}, {lim}')
        a(f's_cselect_b32 s36, {span}, 0')
        a(f's_sub_u32 {reg}, {reg}, s36')
    early = deque()
    def p1dma(m, i):
        if i == 0: a(f's_add_u32 m0, s42, {6144*m}')
        vm.issue(f'buffer_load_dwordx4 v{10+i}, s[20:23], s41 offen offset:{1024*i} lds')
        if i == 2 and m < 7: step('s41', 64*3584, 's99', 512*3584)
    for m in range(8):
        for i in range(3): early.append(lambda m=m, i=i: p1dma(m, i))
    for _ in range(P.get('e0', 0)): early.popleft()()
    a('v_lshrrev_b32 v4, 3, v1')
    a('v_bfe_u32 v5, v1, 4, 1')
    a('v_lshlrev_b32 v5, 2, v5')
    a('v_xor_b32 v5, v5, v6')
    a('v_lshlrev_b32 v5, 4, v5')
    a(f'v_lshl_add_u32 v8, v4, {7 if RL else 10}, v5')
    a(f'v_add_u32 v9, {0 if RL else 8192-1024}, v8')
    a('s_lshl_b32 s43, s38, 5')
    a('v_xor_b32 v5, s43, v5')
    a('v_mul_u32_u24 v7, 0xe00, v4')
    a('v_add_u32 v7, v7, v5')
    a(f's_mul_i32 s48, s39, {8*3584}')
    a('s_lshl_b32 s43, s31, 7')
    a('s_add_u32 s48, s48, s43')
    a('s_lshl_b32 s43, s39, 10')
    a(f's_mul_i32 s49, s38, {SEG[0][2]-SEG[0][1]}')
    a('s_add_u32 s49, s49, s43')
    a(f's_mul_i32 s38, s38, {P1U}')
    a('s_add_u32 s43, s43, s38')
    a('v_sub_u32 v4, 7, v2')
    a('v_xor_b32 v4, v4, v6')
    a('v_lshl_add_u32 v4, v3, 4, v4')
    a(f'v_lshlrev_b32 v4, 4, v4')
    a(f'v_add_u32 v120, {PB}, v4')
    a('v_lshrrev_b32 v4, 4, v1')
    a('v_xor_b32 v5, v4, v1')
    a('s_lshl_b32 s36, s3, 11')
    a(f's_add_u32 s36, s36, {PB}')
    a('v_lshl_add_u32 v124, v5, 4, s36')
    a('v_xor_b32 v125, 64, v124')
    a('v_lshrrev_b32 v4, 3, v1')
    a('v_lshlrev_b32 v5, 4, v6')
    a('v_lshl_add_u32 v13, v4, 12, v5')
    a('s_lshl_b32 s36, s28, 2')
    a('s_add_u32 s36, s36, s3')
    a('s_lshl_b32 s36, s36, 16')
    a('s_sub_u32 s35, 31, s29')
    a('s_lshl_b32 s35, s35, 7')
    a('s_add_u32 s35, s35, s36')
    a('s_waitcnt lgkmcnt(0)')
    a('s_mul_i32 s50, s50, 1664525')
    a('s_add_u32 s50, s50, 1013904223')
    a('v_mov_b32 v20, s50')
    a('s_getreg_b32 s100, hwreg(HW_REG_XCC_ID, 0, 4)')
    if P.get('slow'): a('s_and_b32 s100, s29, 1')
    a('s_add_u32 s100, s100, s50')
    a('s_add_u32 s100, s100, 1')
    a('s_cmp_lg_u32 s3, 0')
    a('s_cbranch_scc1 L_noid')
    a('v_mov_b32 v22, s100')
    a('s_lshl_b32 s36, s29, 2')
    a(f'buffer_store_dword v22, v21, s[52:55], s36 offen offset:{XID} sc1')
    a.label('L_noid')
    if 200 > P.get('probe', 0) >= 100:
        a('v_mov_b32 v22, s60')
        a('s_lshl_b32 s36, s2, 2')
        a(f's_add_u32 s36, s36, {hex(0x140A000)}')
        vm.issue('buffer_store_dword v22, v21, s[16:19], s36 offen sc1')
    def slow_gu():
        a('v_bfe_u32 v4, v1, 1, 3')
        a('v_and_b32 v5, 1, v4')
        a('v_lshlrev_b32 v5, 9, v5')
        a(f'v_mul_u32_u24 v4, 3584, v4')
        a('v_add_u32 v4, v4, v5')
        a('v_and_b32 v5, 1, v1')
        a('v_lshl_add_u32 v4, v5, 10, v4')
        a('v_bfe_u32 v5, v1, 4, 1')
        a('v_lshl_add_u32 v4, v5, 11, v4')
        a('s_lshl_b32 s36, s29, 1')
        a('s_and_b32 s37, s3, 1')
        a('s_add_u32 s36, s36, s37')
        a(f's_mul_i32 s36, s36, {8*3584}')
        a('s_mov_b32 exec_hi, 0')
        vm.issue('buffer_load_dword v252, v4, s[20:23], s36 offen offset:384')
        a('s_mov_b32 exec_hi, -1')
    def slow_d():
        a('v_lshlrev_b32 v4, 10, v1')
        a('s_and_b32 s36, s32, 31')
        a('s_lshl_b32 s36, s36, 2')
        a('s_add_u32 s36, s36, s3')
        a(f's_mul_i32 s36, s36, {14*1024}')
        a('s_mov_b64 exec, 0x3fff')
        vm.issue('buffer_load_dword v253, v4, s[8:11], s36 offen offset:384')
        a('s_mov_b64 exec, -1')
    def slow(at):
        if P.get('sg', 0) == at: slow_gu()
        if P.get('sd', 0) == at: slow_d()
    stamp('pre')
    vm.need(tsh)
    lo(a, 52, 48); hi(a, 54, 48, 40); lo(a, 56, 49); hi(a, 58, 49, 40)
    lo(a, 53, 50); hi(a, 55, 50, 40); lo(a, 57, 51); hi(a, 59, 51, 40)
    vm.need(tk[0])
    stamp('kv0')
    if P.get('skat', 0) == 1: skload()
    if P.get('wat', 2) == 1: wmload()
    def xload():
        vm.issue('buffer_load_dwordx4 v[232:235], v15, s[12:15], s33 offen' + NT)
        return vm.issue('buffer_load_dwordx4 v[236:239], v15, s[12:15], s33 offen offset:1024' + NT)
    for q in range(3):
        lo(a, 60+2*q, 24+q); hi(a, 61+2*q, 24+q, 40)
    for r in range(8):
        vm.need(tk[r])
        lo(a, 66+2*r, 27+r); hi(a, 67+2*r, 27+r, 40)
        lo(a, 84+2*r, 36+r); hi(a, 85+2*r, 36+r, 40)
        d = 102+2*r
        a(f'v_pk_mul_f32 v[{d}:{d+1}], v[{60+2*r}:{61+2*r}], v[58:59]')
        a(f'v_pk_fma_f32 v[{d}:{d+1}], v[{62+2*r}:{63+2*r}], v[56:57], v[{d}:{d+1}]')
        a(f'v_pk_fma_f32 v[{d}:{d+1}], v[{64+2*r}:{65+2*r}], v[54:55], v[{d}:{d+1}]')
        a(f'v_pk_fma_f32 v[{d}:{d+1}], v[{66+2*r}:{67+2*r}], v[52:53], v[{d}:{d+1}]')
        a(f'v_pk_mul_f32 v[{d}:{d+1}], v[{d}:{d+1}], v[{84+2*r}:{85+2*r}]')
    if P.get('skat', 0) == 2: skload()
    if P.get('wat', 2) == 2: wmload()
    tc, twm, tsk = WM['tc'], WM['twm'], SK['t']
    base(a, 12, 64, 0x200000)
    slow(1)
    stamp('kvN')
    for c in range(2):
        for jj in range(4):
            a(f'v_cvt_pk_bf16_f32 v{24+4*c+jj}, v{102+2*(7-2*jj)+c}, v{102+2*(6-2*jj)+c}')
        a(f'ds_write_b128 v120, v[{24+4*c}:{27+4*c}] offset:{128*c}')
    a('s_waitcnt lgkmcnt(0)')
    a('s_barrier')
    stamp('abar')
    for j in range(2): a(f'ds_read_b128 v[{104+4*j}:{107+4*j}], v{124+j} offset:{1024*j}')
    a('s_mov_b32 s24, s35')
    a('s_add_u32 s25, s35, 0x8000')
    ustores = [f'buffer_store_dwordx4 v[{104+4*j}:{107+4*j}], v13, s[16:19], s{24+j} offen' for j in range(2)]
    for j in range(2):
        a(f's_waitcnt lgkmcnt({1-j})')
        tus = vm.issue(ustores[j] + (' sc1' if P.get('uts', 0) else ''))
    a('s_lshl_b32 s7, s3, 7')
    a('s_lshl_b32 s36, s29, 2')
    a('s_add_u32 s7, s7, s36')
    a('v_mov_b32 v123, s100')
    stamp('utst')
    for i in range(4): a(f'v_mov_b32 v{40+i}, 0')
    a(f'v_add_u32 v14, {CB}, v14')
    a('v_cmp_gt_u32 vcc, 32, v0')
    a('s_and_saveexec_b64 s[36:37], vcc')
    a('s_cbranch_execz L_nz')
    a('ds_write_b128 v14, v[40:43]')
    a(f'ds_write_b128 v14, v[40:43] offset:{CHS}')
    a('v_cmp_gt_u32 vcc, 2, v0')
    a('s_and_b64 exec, exec, vcc')
    for c in range(2):
        a(f'ds_write_b128 v14, v[40:43] offset:{c*CHS+U0+4096}')
        a(f'ds_write_b128 v14, v[40:43] offset:{c*CHS+U1+4096}')
    a.label('L_nz')
    a('s_mov_b64 exec, s[36:37]')
    a('v_cmp_eq_u32 s[36:37], 0, v0')
    a('s_lshl_b32 s4, s34, 16')
    a('s_and_b32 s5, s34, 0xffff0000')
    a('s_mov_b32 s6, 0xffff')
    vm.need(tsk)
    stamp('skok')
    for c in range(2):
        kx = 146+4*c
        lo(a, 44, kx)
        a(f'v_add_f32 v44, s{4+c}, v44')
        a('v_cvt_pk_bf16_f32 v44, v44, v44')
        a(f'v_bfi_b32 v44, s6, v44, v{kx}')
        a(f'v_cndmask_b32 v{kx}, v{kx}, v44, s[36:37]')
        a(f'ds_write_b128 v14, v[{kx}:{kx+3}] offset:{c*CHS+KB}')
    vm.need(tus)
    vm.issue(f'buffer_store_dword v123, v21, s[52:55], s7 offen offset:{UH}')
    a('v_and_b32 v120, 31, v1')
    a('v_lshlrev_b32 v120, 2, v120')
    a('s_lshr_b32 s5, s29, 3')
    a('s_lshl_b32 s5, s5, 7')
    hloads = [f'buffer_load_dword v121, v120, s[52:55], 0 offen offset:{XID} sc1', f'buffer_load_dword v124, v120, s[52:55], s5 offen offset:{UH} sc1']
    for l in hloads: tu = vm.issue(l)
    a('v_lshrrev_b32 v4, 1, v6')
    a('v_lshlrev_b32 v4, 11, v4')
    a('v_lshl_add_u32 v4, v16, 6, v4')
    a('v_lshrrev_b32 v5, 5, v1')
    a('v_lshl_add_u32 v4, v5, 5, v4')
    a('v_bfe_u32 v5, v1, 4, 1')
    a('v_lshl_add_u32 v244, v5, 4, v4')
    a('s_lshl_b32 s35, s32, 13')
    a('s_add_u32 s34, s35, 0x1000')
    a('v_lshlrev_b32 v125, 4, v0')
    vm.need(tc)
    lo(a, 44, 144); hi(a, 45, 144, 40); lo(a, 46, 145); hi(a, 47, 145, 40)
    for r in range(4): a(f'v_mul_f32 v{48+r}, {fh(-1.4426950408889634)}, v{44+r}')
    for r in range(4): a(f'v_exp_f32 v{48+r}, v{48+r}')
    for r in range(4): a(f'v_add_f32 v{48+r}, 1.0, v{48+r}')
    for r in range(4): a(f'v_rcp_f32 v{48+r}, v{48+r}')
    for r in range(4): a(f'v_mul_f32 v{44+r}, v{44+r}, v{48+r}')
    a('v_cvt_pk_bf16_f32 v48, v44, v45')
    a('v_cvt_pk_bf16_f32 v49, v46, v47')
    lo(a, 44, 48); hi(a, 45, 48, 40); lo(a, 46, 49); hi(a, 47, 49, 40)
    def stage1():
        for r in range(4):
            vm.need(twm[r])
            unpack8(a, 52, 128+4*r, 40)
            sel = 'op_sel:[0,0,0] op_sel_hi:[1,0,1]' if r % 2 == 0 else 'op_sel:[0,1,0] op_sel_hi:[1,1,1]'
            sp = 44 + (r & 2)
            for j in range(4):
                if r == 0:
                    a(f'v_pk_mul_f32 v[{60+2*j}:{61+2*j}], v[{52+2*j}:{53+2*j}], v[{sp}:{sp+1}] op_sel:[0,0] op_sel_hi:[1,0]')
                else:
                    a(f'v_pk_fma_f32 v[{60+2*j}:{61+2*j}], v[{52+2*j}:{53+2*j}], v[{sp}:{sp+1}], v[{60+2*j}:{61+2*j}] {sel}')
        for j in range(4): a(f'v_permlane32_swap_b32 v{60+j}, v{64+j}')
        for j in range(4): a(f'v_add_f32 v{60+j}, v{60+j}, v{64+j}')
        a('s_lshr_b32 s6, s46, 2')
        a('s_lshl_b32 s6, s6, 13')
        for j in range(2): a(f'v_permlane16_swap_b32 v{60+j}, v{62+j}')
        a('s_lshl_b32 s36, s47, 7')
        for j in range(2): a(f'v_add_f32 v{100+j}, v{60+j}, v{62+j}')
        a('v_mov_b32 v102, s50')
        a('v_mov_b32 v103, s50')
        for j in range(2): a(f'v_add_f32_dpp v{100+j}, v{100+j}, v{100+j} row_ror:8 row_mask:0xf bank_mask:0xf')
        a('s_add_u32 s6, s6, s36')
        a(f's_add_u32 s6, s6, {hex(MP)}')
        a('s_cmp_lt_u32 s29, 24')
        a(f's_cselect_b32 s6, s6, {hex(TS)}')
    if P.get('s1at', 1) == 0: stage1()
    a('s_lshr_b32 s36, s3, 1')
    a(f's_mul_i32 s36, s36, {CHS}')
    a('s_xor_b32 s38, s39, 1')
    a('s_lshl_b32 s38, s38, 6')
    a('s_add_u32 s36, s36, s38')
    a(f's_add_u32 s36, s36, {CB}')
    a('v_and_b32 v3, 15, v0')
    a('v_bfe_u32 v4, v0, 4, 2')
    a('v_lshlrev_b32 v5, 4, v4')
    a('v_lshl_add_u32 v22, v3, 5, v5')
    a(f's_add_u32 s38, s36, {KB-480}')
    a('v_add_u32 v22, s38, v22')
    a('v_and_b32 v23, 14, v3')
    a('v_lshlrev_b32 v23, 1, v23')
    a('v_sub_u32 v23, v5, v23')
    a(f'v_mul_u32_u24 v5, {U1-U0}, v16')
    a('v_sub_u32 v23, v23, v5')
    a(f's_add_u32 s38, s36, {U1+28}')
    a('v_add_u32 v16, s38, v23')
    for i in range(1, 4): a(f'v_add_u32 v{16+i}, {1024*i}, v16')
    a('v_bfe_u32 v5, v3, 1, 2')
    a('v_xor_b32 v5, v5, v4')
    a('v_lshl_add_u32 v5, v3, 2, v5')
    a('s_lshl_b32 s38, s3, 13')
    a(f's_add_u32 s38, s38, {PB}')
    a('v_lshl_add_u32 v23, v5, 4, s38')
    KP = P.get('kp', 1)
    if KP:
        a('s_waitcnt lgkmcnt(0)')
        a('s_barrier')
        for j in range(4, 32): a(f'ds_read_b128 v[{104+4*j}:{107+4*j}], v22 offset:{128*j}') if not 120 <= 104+4*j < 156 else None
    a(f's_mov_b32 s51, {SPIN}')
    a('s_mov_b32 s101, 0')
    vm.need(tu)
    stamp('ut1st')
    a('s_branch L_uh_chk')
    a.label('L_uh')
    for l in hloads: a(l)
    a('s_waitcnt vmcnt(0)')
    a.label('L_uh_chk')
    a('v_subrev_u32 v122, s50, v121')
    a('v_subrev_u32 v122, 1, v122')
    a('v_cmp_lt_u32 vcc, 15, v122')
    a('v_cmp_ne_u32 s[92:93], s100, v121')
    a('s_sub_u32 s51, s51, 1')
    a('s_cbranch_scc1 L_uh_ok')
    a('s_cbranch_vccnz L_uh')
    a('s_cmp_eq_u64 s[92:93], 0')
    a('s_cbranch_scc1 L_uh_same')
    a('s_cmp_lg_u32 s101, 0')
    a('s_cbranch_scc1 L_uh_same')
    a('s_mov_b32 s101, 1')
    for l in ustores: a(l + ' sc1')
    a('s_waitcnt vmcnt(0)')
    a(f'buffer_store_dword v20, v21, s[52:55], s7 offen offset:{UH} sc1')
    a.label('L_uh_same')
    a('v_cmp_ne_u32 vcc, s50, v124')
    a('v_cmp_ne_u32 s[92:93], s100, v124')
    a('s_nop 0')
    a('s_and_b64 vcc, vcc, s[92:93]')
    a('s_cbranch_vccnz L_uh')
    a.label('L_uh_ok')
    raw(6, 's51')
    stamp('uhok')
    tu = []
    for c in range(2):
        vm.issue(f'buffer_load_dwordx4 v[{72+4*c}:{75+4*c}], v125, s[16:19], s{35-c} offen sc1')
        tu.append(vm.issue(f'buffer_load_dword v{80+c}, v125, s[16:19], s{35-c} offen offset:16 sc1'))
    if P.get('s1at', 1) == 1: stage1()
    lstore(['buffer_store_dwordx4 v[100:103], v244, s[16:19], s6 offen'])
    if KP:
        for j in list(range(4)) + list(range(4, 13)): a(f'ds_read_b128 v[{104+4*j}:{107+4*j}], v22 offset:{128*j}')
    if P.get('xat', 1) == 1: tx = xload()
    CP = {}
    if RL:
        a('s_mul_i32 s44, s2, 7')
        a('s_lshl_b32 s45, s3, 1')
        a('s_add_u32 s44, s44, s45')
        a('s_cmp_eq_u32 s3, 3')
        a('s_cselect_b32 s45, 0, 1')
        a('s_add_u32 s45, s45, s44')
        for r in range(2):
            a(f's_lshl_b32 s36, s{44+r}, 10')
            CP['l'] = vm.issue(f'buffer_load_dwordx4 v[{32+4*r}:{35+4*r}], v15, s[8:11], s36 offen' + NT)
    def wdcopy():
        a('v_lshrrev_b32 v4, 3, v1')
        a(f'v_mul_u32_u24 v4, {1792*128}, v4')
        a('v_lshl_add_u32 v4, v6, 4, v4')
        vm.need(CP['l'])
        for r in range(2):
            a(f's_lshl_b32 s36, s{44+r}, 7')
            a(f's_add_u32 s36, s36, {hex(WD2)}')
            CP['s'] = vm.issue(f'buffer_store_dwordx4 v[{32+4*r}:{35+4*r}], v4, s[16:19], s36 offen sc1')
    a('s_movk_i32 s36, 0xff')
    a('v_cmp_ne_u32 vcc, s36, v0')
    for c in range(2):
        u = 72+4*c
        vm.need(tu[c])
        if c == 0: stamp('utok')
        a(f'v_cndmask_b32 v{80+c}, 0, v{80+c}, vcc')
        a(f'ds_write_b128 v14, v[{u}:{u+3}] offset:{c*CHS+U0}')
        for j in range(3): a(f'v_alignbit_b32 v{40+4*c+j}, v{u+j+1}, v{u+j}, 16')
        a(f'v_alignbit_b32 v{43+4*c}, v{80+c}, v{u+3}, 16')
        a(f'ds_write_b128 v14, v[{40+4*c}:{43+4*c}] offset:{c*CHS+U1}')
    for _ in range(P.get('e0b', 6)): early.popleft()()
    a('s_waitcnt lgkmcnt(0)')
    a('s_barrier')
    stamp('bbar')
    a('s_lshl_b32 s6, s46, 11')
    a(f's_add_u32 s6, s6, {hex(MP)}')
    a('s_cmp_lt_u32 s29, 24')
    a(f's_cselect_b32 s7, s3, 1')
    ploads = [f'buffer_load_dwordx4 v[{240+4*j}:{243+4*j}], v15, s[16:19], s6 offen offset:{1024*j} sc1' for j in range(2)]
    tmi = []
    def mod_issue():
        a('s_cmp_lg_u32 s7, 0')
        a('s_cbranch_scc1 L_nomi')
        for l in ploads: a(l)
        a.label('L_nomi')
        tmi.append(vm.issued)
    def mod_final():
        a('s_cmp_lg_u32 s7, 0')
        a('s_cbranch_scc1 L_nomod')
        done = vm.done
        a(f's_waitcnt vmcnt({vm.issued - tmi[0]})')
        poll('mp', ploads, [242, 246], pre=0)
        vm.done = done
        a('v_pk_add_f32 v[240:241], v[240:241], v[244:245]')
        a('s_lshr_b32 s36, s46, 5')
        a('s_cmp_eq_u32 s36, 1')
        for j in range(2): a(f'v_add_f32_dpp v{240+j}, v{240+j}, v{240+j} row_ror:8 row_mask:0xf bank_mask:0xf')
        a('s_cselect_b32 s38, 1.0, 0')
        a('s_cmp_eq_u32 s36, 4')
        for op in ('v_permlane16_swap_b32', 'v_permlane32_swap_b32'):
            for j in range(2): a(f'v_mov_b32 v{242+j}, v{240+j}')
            for j in range(2): a(f'{op} v{240+j}, v{242+j}')
            a('v_pk_add_f32 v[240:241], v[240:241], v[242:243]')
        a('s_cselect_b32 s38, 1.0, s38')
        a('s_lshl_b32 s36, s46, 6')
        a('v_cvt_pk_bf16_f32 v242, v240, v241')
        a(f's_add_u32 s36, s36, {hex(MODT)}')
        lo(a, 240, 242); hi(a, 241, 242, 40)
        for j in range(2): a(f'v_add_f32 v{240+j}, s38, v{240+j}')
        a('v_cvt_pk_bf16_f32 v244, v240, v241')
        a('v_mov_b32 v246, s50')
        a('v_mov_b32 v247, s50')
        a('v_mov_b32_dpp v245, v244 quad_perm:[1,1,3,3] row_mask:0xf bank_mask:0xf')
        a('v_lshlrev_b32 v240, 3, v1')
        a('s_mov_b64 exec, 0x55')
        a('buffer_store_dwordx4 v[244:247], v240, s[16:19], s36 offen sc1')
        a('s_mov_b64 exec, -1')
        a.label('L_nomod')
    ACC, AR, BR = 40, 72, 104
    pipe = LdsPipe(a)
    reads = []
    for i in range(32):
        o = 32*((31-i) & 7); b = 16 + ((31-i) >> 3); d = AR + 4*(i & 7)
        reads.append((('A', i, 0), f'ds_read2_b32 v[{d}:{d+1}], v{b} offset0:{o} offset1:{o+1}'))
        reads.append((('A', i, 1), f'ds_read2_b32 v[{d+2}:{d+3}], v{b} offset0:{o+2} offset1:{o+3}'))
        if i < 4 and not KP:
            for t in range(8):
                j = 4*t+3-i
                reads.append((('B', j), f'ds_read_b128 v[{BR+4*j}:{BR+4*j+3}], v22 offset:{128*j}'))
    tok = {('B', j): 0 for j in range(32)} if KP else {}; nxt = [0]
    def pump(cur_step, maxn):
        n = 0
        while n < maxn and nxt[0] < len(reads) and pipe.outstanding() < 13:
            key, line = reads[nxt[0]]
            if key[0] == 'A' and key[1] >= cur_step + 8: break
            tok[key] = pipe.issue(line); nxt[0] += 1; n += 1
    pump(0, 12)
    slow(2)
    MAT = P.get('mat', 0)
    pending = []; nm = 0
    NB = P.get('e1', 9); EV = P.get('ev', 10)
    for i in range(32):
        for t in range(i >> 2, 8):
            j = 4*t+3-i
            while ('B', j) not in tok or ('A', i, 1) not in tok:
                pipe.need(pipe.done + 2); pump(i, 2)
            pipe.need(max(tok[('A', i, 1)], tok[('B', j)]))
            d = ACC+4*t; c = '0' if i == 0 else f'v[{d}:{d+3}]'
            s = AR+4*(i & 7)
            a(f'v_mfma_f32_16x16x32_bf16 v[{d}:{d+3}], v[{s}:{s+3}], v[{BR+4*j}:{BR+4*j+3}], {c}')
            pump(i, 2 if i < 4 else 1)
            nm += 1
            if nm >= P.get('e1s', 40) and nm % EV == 0 and NB > 0 and early:
                early.popleft()(); NB -= 1
        if pending and pipe.outstanding() < 14:
            t = pending.pop()
            pipe.issue(f'ds_write_b128 v23, v[{ACC+4*t}:{ACC+4*t+3}] offset:{1024*t}')
        if (i & 3) == 3: pending.append(i >> 2)
        if RL and i == P.get('cpa', 10): wdcopy()
        if i == P.get('mpi', 2) and not MAT: mod_issue()
        if i == P.get('mfin', 7) and not MAT: mod_final(); raw(7, 's51')
    for t in pending:
        pipe.issue(f'ds_write_b128 v23, v[{ACC+4*t}:{ACC+4*t+3}] offset:{1024*t}')
    stamp('bend')
    a('v_lshlrev_b32 v4, 3, v0')
    a(f'v_add_u32 v4, {PRM}, v4')
    a('v_lshrrev_b32 v2, 1, v0')
    a('v_bfe_u32 v3, v0, 4, 2')
    a('v_xor_b32 v2, v2, v3')
    a('v_lshlrev_b32 v2, 4, v2')
    a('v_and_b32 v3, 1, v0')
    a('v_lshl_add_u32 v2, v3, 3, v2')
    a(f'v_add_u32 v2, {PB}, v2')
    a('v_lshlrev_b32 v3, 4, v0')
    a('v_and_b32 v5, 3, v0')
    a(f's_mul_i32 s38, s32, {YP}')
    a(f's_add_u32 s38, s38, {hex(YT)}')
    a(f'v_add_u32 v13, {PRM}, v15')
    a('s_and_b32 s36, s32, 7')
    a('s_lshl_b32 s36, s36, 1')
    a('s_and_b32 s37, s3, 1')
    a('s_or_b32 s36, s36, s37')
    a('s_lshl_b32 s36, s36, 6')
    a(f's_add_u32 s36, s36, {PRM+5120}')
    a('v_lshrrev_b32 v14, 5, v1')
    a('v_lshl_add_u32 v14, v14, 4, s36')
    if RL: vm.need(CP['s'])
    a('s_waitcnt lgkmcnt(0)')
    a('s_barrier')
    stamp('pbar')
    for j in range(4):
        for w in range(4):
            a(f'ds_read_b64 v[{72+8*j+2*w}:{73+8*j+2*w}], v2 offset:{8192*w+2048*j}')
        if j == 2: a('s_waitcnt lgkmcnt(8)')
    if MAT: mod_issue()
    for j in range(4):
        b = 72+8*j; q = 24+4*j
        if j: a(f's_waitcnt lgkmcnt({12-4*j})')
        a(f'v_pk_add_f32 v[{b}:{b+1}], v[{b}:{b+1}], v[{b+2}:{b+3}]')
        a(f'v_pk_add_f32 v[{b+4}:{b+5}], v[{b+4}:{b+5}], v[{b+6}:{b+7}]')
        a(f'v_mov_b32 v{q+2}, s50')
        a(f'v_mov_b32 v{q+3}, s50')
        a(f'v_cvt_pk_bf16_f32 v{q}, v{b}, v{b+4}')
        a(f'v_cvt_pk_bf16_f32 v{q+1}, v{b+1}, v{b+5}')
        tys = vm.issue(f'buffer_store_dwordx4 v[{q}:{q+3}], v3, s[16:19], s38 offen sc1')
        if j < 3: a('s_add_u32 s38, s38, 0x1000')
    stamp('ytst')
    a('v_mov_b32 v22, v4')
    a('v_mov_b32 v23, v14')
    a('v_mov_b32 v60, v5')
    slow(3)
    a('v_mov_b32 v5, v60')
    if MAT: mod_final(); raw(7, 's51')
    if MAT == 2: a('s_barrier')
    for _ in range(P.get('e2', 6)): early.popleft()()
    a('s_lshl_b32 s35, s3, 10')
    a(f's_add_u32 s35, s35, {hex(MODT)}')
    a('s_add_u32 s34, s35, 0x1000')
    a('s_add_u32 s4, s35, 0x2000')
    mloads = [f'buffer_load_dwordx4 v[{104+4*r}:{107+4*r}], v15, s[16:19], s{(35, 34, 4)[r]} offen sc1' for r in range(3)]
    a('v_lshrrev_b32 v4, 2, v0')
    a(f'v_mul_u32_u24 v3, {2*YS}, v5')
    a('v_lshl_add_u32 v3, v4, 2, v3')
    a(f'v_add_u32 v3, {XG}, v3')
    a(f's_mul_i32 s46, s3, {2*YS}')
    a(f's_add_u32 s46, s46, {XG}')
    a('v_add_u32 v4, s46, v15')
    a('s_lshl_b32 s46, s3, 1')
    a('v_xor_b32 v5, s46, v6')
    a('v_lshlrev_b32 v5, 4, v5')
    a('v_lshl_add_u32 v5, v1, 7, v5')
    a(f'v_add_u32 v5, {XH}, v5')
    a('v_xor_b32 v16, 16, v5')
    a('v_lshrrev_b32 v17, 3, v1')
    a('v_xor_b32 v18, v17, v6')
    a('v_lshlrev_b32 v18, 4, v18')
    a('v_lshl_add_u32 v18, v17, 7, v18')
    a('s_lshl_b32 s46, s3, 11')
    a(f's_add_u32 s46, s46, {XH}')
    a('v_add_u32 v18, s46, v18')
    a('v_lshlrev_b32 v17, 9, v17')
    a('v_lshl_add_u32 v17, v6, 4, v17')
    a('s_lshr_b32 s46, s32, 2')
    a('s_lshl_b32 s46, s46, 15')
    a('s_and_b32 s47, s32, 3')
    a('s_lshl_b32 s47, s47, 7')
    a('s_add_u32 s46, s46, s47')
    a('s_lshl_b32 s47, s3, 13')
    a('s_add_u32 s46, s46, s47')
    a(f's_add_u32 s46, s46, {hex(H2)}')
    a('s_add_u32 s47, s46, 0x1000')
    a(f's_add_u32 s37, s33, {hex(X1)}')
    a('v_lshrrev_b32 v14, 2, v0')
    a(f'v_mul_u32_u24 v14, {YP}, v14')
    a('v_and_b32 v19, 3, v0')
    a('v_lshl_add_u32 v14, v19, 4, v14')
    a('s_lshl_b32 s24, s32, 6')
    a(f's_add_u32 s26, s24, {hex(YT)}')
    a(f's_add_u32 s27, s26, {64*YP}')
    a(f's_add_u32 s5, s26, {128*YP}')
    a(f's_add_u32 s6, s26, {192*YP}')
    X = (64, 160)
    vm.need(tx)
    subs = []
    for t in range(2):
        s = Asm(); unpack8(s, X[t], 232+4*t, 40); ln2p(s, X[t], X[t]+8, X[t]+16, 24+t)
        subs.append(s)
    zipl(a, *subs)
    stamp('ln1')
    yloads = [f'buffer_load_dwordx4 v[{24+4*j}:{27+4*j}], v14, s[16:19], s{(26, 27, 5, 6)[j]} offen sc1' for j in range(4)]
    vm.need(tys)
    stamp('ytack')
    for l in yloads: ty = vm.issue(l)
    for l in mloads: tm = vm.issue(l)
    poll('yt', yloads, [26, 30, 34, 38], pre=ty)
    stamp('ytok'); raw(2, 's51')
    for j in range(4):
        a(f'ds_write_b32 v3, v{24+4*j} offset:{256*j}')
        a(f'ds_write_b32 v3, v{25+4*j} offset:{256*j+YS}')
    poll('md', mloads, [106, 110, 114], pre=tm)
    stamp('mdok'); raw(1, 's51')
    for r in range(3): a(f'ds_write_b64 v22, v[{104+4*r}:{105+4*r}] offset:{2048*r}')
    a('s_waitcnt lgkmcnt(0)')
    a('s_barrier')
    stamp('ybar')
    ptok = {}
    def p2dma(k):
        a(f's_add_u32 m0, s49, {SEG[0][1] + 2048*(k % 15)}')
        if k and k % 4: a(f's_add_u32 s48, s48, {16*3584}')
        elif k: step('s48', 16*3584, 's100', 512*3584)
        ptok[k] = vm.issue('buffer_load_dwordx4 v7, s[20:23], s48 offen lds')
    a(f's_add_u32 s100, s48, {512*3584}')
    a(f's_mul_i32 s36, s98, {64*3584}')
    a('s_add_u32 s48, s48, s36')
    for _ in range(P.get('e3', 3)): early.popleft()()
    NSY = P.get('nsy', 0)
    for k in range(NSY): p2dma(k)
    for i, off in enumerate((1024, 0, 2048)):
        a(f'ds_read_b128 v[{40+4*i}:{43+4*i}], v13 offset:{off}')
    a('ds_read_b128 v[24:27], v4')
    a(f'ds_read_b128 v[28:31], v4 offset:{YS}')
    for i, off in enumerate((4096, 3072)):
        a(f'ds_read_b128 v[{52+4*i}:{55+4*i}], v13 offset:{off}')
    a('ds_read_b128 v[124:127], v23')
    a('ds_read_b128 v[116:119], v23 offset:32')
    a('s_waitcnt lgkmcnt(7)')
    unpack8(a, 128, 40, 40); unpack8(a, 136, 44, 40)
    for t in range(2):
        for p in range(4):
            d = X[t]+8+2*p
            a(f'v_pk_fma_f32 v[{d}:{d+1}], v[{d}:{d+1}], v[{128+2*p}:{129+2*p}], v[{136+2*p}:{137+2*p}]')
    a('s_waitcnt lgkmcnt(6)')
    unpack8(a, 144, 48, 40)
    for t in range(2):
        for p in range(4):
            d = X[t]+8+2*p
            a(f'v_pk_mul_f32 v[{d}:{d+1}], v[{d}:{d+1}], v[{144+2*p}:{145+2*p}]')
    a('s_waitcnt lgkmcnt(0)')
    unpack8(a, 128, 52, 40); unpack8(a, 136, 56, 40)
    subs = []
    for t in range(2):
        s = Asm(); x = X[t]
        unpack8(s, x+20, 24+4*t, 40)
        for p in range(4):
            s(f'v_pk_fma_f32 v[{x+2*p}:{x+2*p+1}], v[{x+8+2*p}:{x+9+2*p}], v[{x+20+2*p}:{x+21+2*p}], v[{x+2*p}:{x+2*p+1}]')
        for j in range(4): s(f'v_cvt_pk_bf16_f32 v{32+4*t+j}, v{x+2*j}, v{x+2*j+1}')
        s(f'buffer_store_dwordx4 v[{32+4*t}:{35+4*t}], v15, s[16:19], s37 offen offset:{1024*t} sc1')
        unpack8(s, x, 32+4*t, 40)
        (ln1p if P.get('l1', 1) else ln2p)(s, x, x+8, x+16, 24+2*t)
        for p in range(4):
            s(f'v_pk_fma_f32 v[{x+8+2*p}:{x+9+2*p}], v[{x+8+2*p}:{x+9+2*p}], v[{128+2*p}:{129+2*p}], v[{136+2*p}:{137+2*p}]')
        for j in range(4): s(f'v_cvt_pk_bf16_f32 v{40+4*t+j}, v{x+8+2*j}, v{x+9+2*j}')
        s(f'ds_write_b128 v{(5, 16)[t]}, v[{40+4*t}:{43+4*t}]')
        subs.append(s)
    zipl(a, *subs)
    vm.issued += 2
    a('s_waitcnt lgkmcnt(0)')
    a('s_barrier')
    stamp('hbar')
    a('ds_read_b128 v[24:27], v18')
    a('ds_read_b128 v[28:31], v18 offset:1024')
    a('s_and_b32 s24, s32, 31')
    a('s_lshl_b32 s24, s24, 4')
    a('s_lshl_b32 s25, s3, 2')
    a('s_add_u32 s33, s24, s25')
    a('s_and_b32 s25, s30, 1')
    a('s_lshl_b32 s25, s25, 8')
    a('s_lshl_b32 s26, s3, 6')
    a('s_add_u32 s25, s25, s26')
    a('v_and_b32 v19, 15, v1')
    a('v_lshlrev_b32 v19, 2, v19')
    if M2:
        a('s_lshl_b32 s25, s3, 2')
        a('s_lshl_b32 s24, s32, 7')
        a('s_add_u32 s24, s24, s25')
        a(f's_add_u32 s24, s24, {hex(FL1)}')
        a('s_lshl_b32 s33, s30, 4')
        a('s_or_b32 s33, s33, s31')
        a('s_lshl_b32 s33, s33, 7')
        a('s_add_u32 s33, s33, s25')
        a(f's_add_u32 s33, s33, {hex(FL2)}')
        a('s_lshl_b32 s26, s30, 4')
        a('s_add_u32 s26, s26, s25')
        a('s_lshl_b32 s26, s26, 7')
        a(f's_add_u32 s97, s26, {hex(FL1)}')
        a('s_lshr_b32 s26, s32, 4')
        a('s_lshl_b32 s26, s26, 4')
        a('s_add_u32 s26, s26, s25')
        a('s_lshl_b32 s26, s26, 7')
        a(f's_add_u32 s25, s26, {hex(FL2)}')
        a('v_bfe_u32 v19, v1, 2, 2')
        a('v_and_b32 v22, 3, v1')
        a('v_lshlrev_b32 v22, 2, v22')
        a('v_lshl_add_u32 v19, v19, 7, v22')
    def flag(F):
        if not M2: return lstore([f'buffer_store_dword v20, v21, s[52:55], s33 offen offset:{F}'])
        if F == F3: a(f's_add_u32 s33, s33, {FL3-FL2}')
        return vm.issue(f'buffer_store_dword v20, v21, s[16:19], {"s24" if F == F1 else "s33"} offen sc1')
    def look(F):
        if not M2: return [f'buffer_load_dword v22, v{19 if F == F1 else 13}, s[52:55], s25 offen offset:{F} sc1']
        return [f'buffer_load_dword v22, v{19 if F == F1 else 13}, s[16:19], {"s97" if F == F1 else "s25"} offen sc1']
    a('s_waitcnt lgkmcnt(0)')
    lstore(['buffer_store_dwordx4 v[24:27], v17, s[16:19], s46 offen', 'buffer_store_dwordx4 v[28:31], v17, s[16:19], s47 offen'], P.get('h2s', M2))
    stamp('h2st')
    a('v_bfe_u32 v4, v1, 4, 1')
    a('v_lshrrev_b32 v5, 5, v1')
    a('v_bfe_u32 v22, v1, 2, 2')
    a('v_and_b32 v23, 3, v1')
    a('v_lshlrev_b32 v23, 3, v23')
    a('v_lshl_add_u32 v3, v5, 3, v22')
    a('v_bfe_u32 v13, v1, 3, 1')
    a('v_lshlrev_b32 v16, 7, v3')
    a('v_add_u32 v16, v16, v23')
    a('v_lshl_add_u32 v16, v13, 6, v16')
    a('v_lshl_add_u32 v16, v4, 5, v16')
    a(f'v_mul_u32_u24 v17, {SEG[0][2]-SEG[0][1]}, v4')
    a(f'v_add_u32 v17, {SEG[0][1]}, v17')
    a(f'v_mul_u32_u24 v18, {P1U}, v4')
    for ct in range(4):
        a(f'v_xor_b32 v14, {32*ct}, v16')
        a(f'v_add_u32 v{246+ct}, v14, v17')
    a('v_mul_u32_u24 v3, 0x60, v3')
    a('v_add_u32 v3, v3, v23')
    a('v_add_u32 v18, v18, v3')
    a('v_lshl_add_u32 v3, v5, 2, v22')
    a('v_lshlrev_b32 v3, 7, v3')
    a('v_lshl_add_u32 v3, v13, 6, v3')
    a('v_lshl_add_u32 v3, v4, 5, v3')
    a('v_add_u32 v3, v3, v23')
    a('s_lshl_b32 s26, s3, 11')
    a('s_and_b32 s27, s3, 1')
    a('s_lshl_b32 s27, s27, 6')
    a('v_xor_b32 v3, s27, v3')
    a('v_add_u32 v240, s26, v3')
    a('v_xor_b32 v241, 64, v240')
    for i in range(1, 3):
        a(f'v_add_u32 v{240+2*i}, {65536*i}, v240')
        a(f'v_add_u32 v{241+2*i}, {65536*i}, v241')
    a(f's_mov_b32 s44, {fh(GC2)}'); a(f's_mov_b32 s45, {fh(GC2)}')
    a(f'v_mov_b32 v2, {fh(GC1)}'); a(f'v_mov_b32 v3, {fh(GC1)}')
    a('s_lshl_b32 s27, s30, 2')
    a('s_add_u32 s27, s27, s3')
    a('s_lshl_b32 s28, s27, 15')
    a(f's_add_u32 s28, s28, {hex(H2)}')
    a('v_add_u32 v14, s28, v15')
    a('s_lshl_b32 s28, s98, 12')
    a('s_waitcnt vmcnt(0)'); vm.done = vm.issued
    stamp('h2dr')
    flag(F1)
    while early: early.popleft()()
    NS0 = P.get('ns0', 0) + NSY
    for k in range(NSY, NS0): p2dma(k)
    a('s_mul_i32 s29, s27, 112')
    AP = 1024 if M2 else YP
    if M2:
        a('s_lshl_b32 s47, s31, 2')
        a('s_add_u32 s47, s47, s29')
        a('s_lshl_b32 s47, s47, 10')
        a(f's_add_u32 s47, s47, {hex(ACT)}')
    else:
        a('s_lshl_b32 s47, s3, 4')
        a('s_add_u32 s47, s47, s31')
        a(f's_mul_i32 s47, s47, {4*YP}')
        a('s_lshl_b32 s4, s30, 10')
        a(f's_add_u32 s4, s4, {hex(YT)}')
        a('s_add_u32 s47, s47, s4')
    a('s_mul_i32 s46, s31, 3')
    a('s_add_u32 s46, s46, s29')
    a('s_lshl_b32 s46, s46, 10')
    a(f's_add_u32 s46, s46, {hex(ACT + 64*1024)}')
    a('s_lshr_b32 s39, s32, 3')
    a('s_and_b32 s35, s39, 1')
    a(f's_and_b32 s34, s39, {P.get("wrot", 0)}')
    a('s_and_b32 s24, s32, 7')
    a('s_lshl_b32 s24, s24, 7')
    if RL:
        a(f's_add_u32 s8, s58, {hex(WD2)}')
        a('s_addc_u32 s9, s59, 0')
        a('s_mul_i32 s24, s24, 1792')
    a(f's_mul_i32 s37, s3, {12*WS_}')
    a('s_add_u32 s37, s37, s24')
    a(f's_add_u32 s30, s37, {76*WS_}')
    a(f's_mul_i32 s36, s34, {3*WS_}')
    a('s_add_u32 s37, s37, s36')
    a(f's_add_u32 s37, s37, {64*WS_}')
    a(f's_mul_i32 s38, s3, {16*WS_}')
    a('s_add_u32 s38, s38, s24')
    a(f's_add_u32 s31, s38, {16*WS_}')
    a(f's_mul_i32 s36, s34, {4*WS_}')
    a('s_add_u32 s38, s38, s36')
    if M2:
        a(f's_mul_i32 s4, s39, {224*1024}')
        a('s_lshl_b32 s6, s3, 14')
        a('s_add_u32 s6, s6, s4')
        a(f's_add_u32 s6, s6, {hex(ACT)}')
    else:
        a('s_lshl_b32 s6, s35, 3')
        a('s_add_u32 s6, s6, s3')
        a(f's_mul_i32 s6, s6, {16*YP}')
        a('s_add_u32 s6, s6, s4')
    a(f's_add_u32 s42, s6, {16*AP}')
    a(f's_mul_i32 s36, s34, {4*AP}')
    a('s_add_u32 s6, s6, s36')
    a(f's_mul_i32 s4, s39, {224*1024}')
    a(f's_mul_i32 s5, s3, {12*1024}')
    a('s_add_u32 s5, s5, s4')
    a(f's_add_u32 s5, s5, {hex(ACT + 64*1024)}')
    a(f's_add_u32 s41, s5, {12*1024}')
    a(f's_mul_i32 s36, s34, {3*1024}')
    a('s_add_u32 s5, s5, s36')
    a('s_lshl_b32 s39, s39, 16')
    a('s_and_b32 s24, s32, 7')
    a('s_lshl_b32 s24, s24, 7')
    a('s_add_u32 s39, s39, s24')
    a('v_bfe_u32 v4, v1, 1, 2')
    a('v_and_b32 v5, 1, v1')
    a('v_lshlrev_b32 v5, 2, v5')
    a(f'v_lshl_add_u32 v4, v4, {7 if M2 else 4}, v5')
    a('s_lshl_b32 s35, s35, 3')
    a('v_add_u32 v13, s35, v4')
    a('s_cmp_ge_u32 s3, 2')
    for r, (reg0, reg1, dist) in enumerate(((250, 16, 112*1024), (251, 17, 112*1024 if M2 else 64*YP))):
        a(f's_cselect_b32 s36, {dist}, 0')
        a(f'v_add_u32 v{reg0}, s36, v15')
        a(f's_cselect_b32 s36, 0, {dist}')
        a(f'v_add_u32 v{reg1}, s36, v15')
    a('v_lshlrev_b32 v73, 7, v1')
    a('s_lshl_b32 s34, s2, 2')
    a('s_add_u32 s34, s34, s3')
    a(f's_mul_i32 s34, s34, {14*128}')
    poll('f1', look(F1), [22])
    stamp('f1ok'); raw(3, 's51')
    htok = {}
    def h2load(ks):
        htok[ks] = vm.issue(f'buffer_load_dwordx4 a[{4*ks}:{4*ks+3}], v14, s[16:19], s28 offen offset:{1024*(ks&3)} sc1')
        if (ks & 3) == 3:
            a('s_add_u32 s28, s28, 0x1000'); a('s_and_b32 s28, s28, 0x7fff')
    NH0 = P.get('nh0', 8)
    for ks in range(NH0): h2load(ks)
    slow(4)
    a('s_barrier')
    stamp('b0')
    wtok, atok = {}, {}
    def wd0(i):
        so = 's37' if i < 12 else 's38'
        a(f's_add_u32 m0, s26, {8192*WBL[i]}')
        if i not in (0, 12): a(f's_add_u32 {so}, {so}, {WS_}')
        vm.issue(f'buffer_load_dwordx4 v8, s[8:11], {so} offen lds')
    def wd1(i):
        wtok[i] = vm.issue(f'buffer_load_dwordx4 v9, s[8:11], {"s37" if i < 12 else "s38"} offen offset:1024 lds')
    def wreg(i): return ('v', 72 + 8*i) if i < 5 else ('a', 224 + 8*(i-5)) if i < 8 else ('v', AR + 8*(i % 3))
    def wread(i, mt, jj):
        kind, d = wreg(i); ad = 8192*WBL[i]
        return f'ds_read_b64_tr_b16 {kind}[{d+4*mt+2*jj}:{d+4*mt+2*jj+1}], v{240+2*(ad>>16)+mt} offset:{(ad & 0xffff)+1024*jj}'
    def abase(i): return 128 + 8*i if i < 12 else 8*(i-12)
    def act0(i):
        b = abase(i)
        if i < 12:
            if i and i % 4 == 0: a('s_add_u32 s5, s5, 0x1000')
            vm.issue(f'buffer_load_dwordx4 a[{b}:{b+3}], v250, s[16:19], s5 offen offset:{1024*(i & 3)} sc1')
        else:
            if i > 12: a(f's_add_u32 s6, s6, {AP}')
            vm.issue(f'buffer_load_dwordx4 a[{b}:{b+3}], v251, s[16:19], s6 offen sc1')
    def act1(i):
        b = abase(i)
        if i < 12: atok[i] = vm.issue(f'buffer_load_dwordx4 a[{b+4}:{b+7}], v16, s[16:19], s5 offen offset:{1024*(i & 3)} sc1')
        else: atok[i] = vm.issue(f'buffer_load_dwordx4 a[{b+4}:{b+7}], v17, s[16:19], s6 offen sc1')
    valu = deque()
    AR, NA = 24, 6
    ACC1, ACC2 = 192, 128
    pipe = LdsPipe(a)
    steps = [(0, k, ct) for k in range(32) for ct in range(2)] + [(0, k, 2) for k in range(32)] + [(1, k, ct) for k in range(32) for ct in range(4)]
    tok = {}; nxt = [0]
    def rd(n):
        ps, k, ct = steps[n]; d = AR + 4*(n % NA)
        for jj in range(2):
            b, off = (18, (16*k + 4*jj)*96 + 32*ct) if ps == 0 else (246+ct, 2048*(k % 15) + 512*jj)
            tok[n] = pipe.issue(f'ds_read_b64_tr_b16 v[{d+2*jj}:{d+2*jj+1}], v{b} offset:{off}')
    for n in range(NA-1): rd(n)
    nxt[0] = NA-1
    J = dict(h=NH0, p=NS0, w=0, half=False, a=0, ahalf=False, pmax=15, wmax=0, f2=False, lastp=-99)
    stg = {}
    def wfree(i): return i < J['wmax'] and (not 12 <= i < 20 or stg.get(i - 12, 1 << 30) <= pipe.done)
    def job(n):
        if J['half']: J['half'] = False; wd1(J['w']); J['w'] += 1; return 1
        if J['h'] < 32: h2load(J['h']); J['h'] += 1; return 1
        if J['p'] < J['pmax'] and n - J['lastp'] >= PE: p2dma(J['p']); J['p'] += 1; J['lastp'] = n; return 3
        if J['ahalf']: J['ahalf'] = False; act1(J['a']); J['a'] += 1; return 1
        if J['f2'] and J['a'] < 12 and (J['a'] <= J['w'] - P.get('wa', 8) or not wfree(J['w']) or J['w'] >= 28):
            act0(J['a']); J['ahalf'] = True; return 1
        if J['w'] < 28 and wfree(J['w']) and n >= P.get('ws', 112): wd0(J['w']); J['half'] = True; return 3
        return 0
    VB = P.get('vb', 35); PE = P.get('pe', 3); TE = P.get('te', 15); LW = P.get('lw', 2)
    stok = {}; sg = 0; credit = 0; nb = 0; ta = 0; fload = look(F2); tp = None
    F2P, F2C = P.get('f2p', 999), P.get('f2c', 204)
    def gelu_step(x, n):
        if isinstance(x, tuple):
            stok[x[1]] = vm.issue(f'buffer_store_dwordx4 v[{x[2]}:{x[2]+3}], v15, s[16:19], s46 offen offset:{1024*x[1]} sc1')
            stok['at'] = n
        else: a(x)
    for n, (ps, k, ct) in enumerate(steps):
        if n < 64 and ct == 0:
            while k not in htok: job(n)
            vm.need(htok[k])
        if tok[n] > pipe.done: pipe.need(tok[min(n + LW - 1, len(steps) - 1)])
        d = (ACC1, ACC2)[ps] + 16*ct; c = '0' if k == 0 else f'v[{d}:{d+15}]'
        sa = AR + 4*(n % NA)
        a(f'v_mfma_f32_32x32x16_bf16 v[{d}:{d+15}], v[{sa}:{sa+3}], a[{4*k}:{4*k+3}], {c}')
        if nxt[0] < len(steps): rd(nxt[0]); nxt[0] += 1
        credit = min(credit + VB, P.get('cap', 40))
        if n in BARS:
            land, J['pmax'], J['wmax'] = BARS[n][0], J['pmax'], J['wmax']
            if land is not None:
                while land not in ptok:
                    if J['half']: job(n)
                    p2dma(J['p']); J['p'] += 1
                vm.need(ptok[land])
            a('s_barrier')
            J['pmax'], J['wmax'] = BARS[n][1:]
            nb += 1; stamp(f'b{nb}'); credit -= 10
        if n == P.get('wt', 999 if RL else 60):
            a('s_mov_b64 exec, 0x3fff')
            vm.issue('buffer_load_dword v72, v73, s[8:11], s34 offen')
            a('s_mov_b64 exec, -1')
        if n in (65, 97):
            if n == 65: stamp('p1a')
            else: stamp('p1end')
            for t in ((0, 1) if n == 65 else (2,)):
                o = 64 + 4*(t & 1)
                valu.extend(gelu_ops(ACC1+16*t, 48 + 8*(t & 1), o))
                valu.append(('store', t, o))
        ta += 10
        if n == F2P and 'f2' in stok: tp = vm.issue(fload[0]); ta = 0
        elif n == F2C and tp is not None:
            poll('f2', fload, [22], pre=tp); J['f2'] = True
            stamp('f2ok'); raw(4, 's51')
        elif ta >= TE:
            cst = job(n)
            if cst: ta -= TE; credit -= 10*cst
            else: ta = TE
        if n >= P.get('stg', 160) and sg < 32 and pipe.outstanding() <= 13 and credit >= 10 and (not valu or n % 2):
            i, r = divmod(sg, 4)
            if i in wtok and (wtok[i] <= vm.done or vm.issued - wtok[i] >= P.get('sl', 8)):
                vm.need(wtok[i])
                t = pipe.issue(wread(i, r >> 1, r & 1)); sg += 1; credit -= 10
                if r == 3: stg[i] = t
        while valu and credit >= 10*(cost(valu[0]) if isinstance(valu[0], str) else 1):
            x = valu.popleft(); gelu_step(x, n)
            if isinstance(x, str): credit -= 10*cost(x)
        if 2 in stok and 'f2' not in stok and n >= stok['at'] + P.get('fdel', 24):
            vm.need(stok[2])
            stok['f2'] = flag(F2); print('F2 at', n, end='; ')
    while valu: gelu_step(valu.popleft(), 224)
    if 'f2' not in stok:
        vm.need(stok[2])
        stok['f2'] = flag(F2)
    assert J['p'] == 32 and J['h'] == 32
    print('w_down steps', J['w'], 'staged', sg, 'act steps', J['a'])
    while sg < 32:
        i, r = divmod(sg, 4)
        while i not in wtok: job(999)
        vm.need(wtok[i])
        stg[i] = pipe.issue(wread(i, r >> 1, r & 1)); sg += 1
    pipe.need(pipe.issued)
    if tp is None and P.get('fp', 2) < 4: tp = vm.issue(fload[0])
    a('s_mov_b32 s34, 1.0'); a('s_mov_b32 s35, 1.0')
    def geglu2(t):
        s = Asm(); geglu(s, ACC2+16*t, 48, 64 + 4*(t & 1))
        for j, l in enumerate(s.lines):
            a(l.replace('s[46:47]', 's[34:35]'))
            if j % P.get('ge', 8) == 3 and t < P.get('gt', 4): job(999)
        if t: a(f's_add_u32 s47, s47, {AP}')
        return lstore([f'buffer_store_dwordx4 v[{64+4*(t&1)}:{67+4*(t&1)}], v15, s[16:19], s47 offen'], P.get('a2s', M2))
    for t in range(4):
        if t == P.get('fp', 2) and not J['f2']:
            stamp('g1')
            poll('f2', fload, [22], pre=tp); J['f2'] = True
            stamp('f2ok'); raw(4, 's51')
        if t == 3 and tp is None: tp = vm.issue(fload[0])
        ts3 = geglu2(t)
    stamp('g3')
    a('v_and_b32 v4, 31, v1')
    a('v_lshrrev_b32 v5, 5, v1')
    a('v_lshlrev_b32 v10, 10, v4')
    a('v_lshl_add_u32 v10, v5, 4, v10')
    a('s_lshr_b32 s46, s3, 1')
    a('s_lshl_b32 s46, s46, 15')
    a('s_and_b32 s47, s3, 1')
    a('s_lshl_b32 s47, s47, 6')
    a('s_add_u32 s39, s39, s46')
    a('s_add_u32 s39, s39, s47')
    a(f's_add_u32 s46, s39, {hex(X1)}')
    vm.need(ts3)
    flag(F3)
    if not J['f2']:
        poll('f2', fload, [22], pre=tp); J['f2'] = True
        stamp('f2ok'); raw(4, 's51')
        while J['a'] < P.get('a1b', 3): job(999)
    if M2: a(f's_add_u32 s25, s25, {FL3-FL2}')
    stamp('estart')
    pipe = LdsPipe(a); tok = {}
    def rd2(i):
        while i not in wtok: job(999)
        vm.need(wtok[i])
        for mt in range(2):
            for jj in range(2): tok[(i, mt)] = pipe.issue(wread(i, mt, jj))
    f3load = look(F3)
    for i in range(8): stg[i] = 0
    F3C = P.get('f3c', 8); JE = P.get('je', 2); tp = None; g = 0; aq = deque()
    for i in range(28):
        stamp(f'e{i}')
        if i == F3C:
            while J['a'] < 12 or J['half']: job(999)
            if tp is None: tp = vm.issue(f3load[0])
            poll('f3', f3load, [22], pre=tp)
            stamp('f3ok'); raw(5, 's51')
            for ii in range(12, 28): aq.extend([lambda ii=ii: act0(ii), lambda ii=ii: act1(ii)])
            for _ in range(P.get('a2b', 4)): aq.popleft()()
        if i == 22:
            vm.issue('buffer_load_dwordx4 v[72:75], v10, s[16:19], s46 offen sc1')
            tx = vm.issue('buffer_load_dwordx4 v[76:79], v10, s[16:19], s46 offen offset:32 sc1')
        kind, d0 = wreg(i); b = abase(i)
        while i not in atok: (aq.popleft()() if i >= 12 else job(999))
        vm.need(atok[i])
        for mt in range(2):
            if i >= 8: pipe.need(tok[(i, mt)])
            for nt in range(2):
                d = ACC2 + 32*mt + 16*nt; c = '0' if i == 0 else f'v[{d}:{d+15}]'
                a(f'v_mfma_f32_32x32x16_bf16 v[{d}:{d+15}], {kind}[{d0+4*mt}:{d0+4*mt+3}], a[{b+4*nt}:{b+4*nt+3}], {c}')
                g += 1
                if mt == 0 and nt == 0 and 8 <= i+2 < 28: rd2(i+2)
                if g % JE == 0:
                    if aq and not J['half'] and (J['w'] >= 28 or J['w'] > i + P.get('wb', 28)): aq.popleft()()
                    elif tp is None and not J['half'] and J['a'] == 12 and (J['w'] >= 28 or i == F3C - 1): tp = vm.issue(f3load[0])
                    elif not job(999) and aq: aq.popleft()()
    stamp('eend')
    PBL = [None, (WBL[8], WBL[9]), (WBL[10], WBL[11]), (WBL[12], WBL[13])]
    a('v_add_u32 v4, s26, v15')
    a('v_add_u32 v5, 0x10000, v4')
    a('v_add_u32 v18, 0x20000, v4')
    base(a, 12, 56, 0x200000)
    for t in range(1, 4):
        d = ACC2 + 32*(t & 1) + 16*(t >> 1)
        for g in range(4):
            ad = 8192*PBL[t][g >> 1] + 1024*(g & 1)
            a(f'ds_write_b128 v{(4, 5, 18)[ad >> 16]}, v[{d+4*g}:{d+4*g+3}] offset:{ad & 0xffff}')
        a(f's_xor_b32 s6, s26, {2048*t}')
        a(f's_add_u32 s7, s6, {8192*PBL[t][1]}')
        a(f's_add_u32 s6, s6, {8192*PBL[t][0]}')
        a(f'v_add_u32 v{88+2*t}, s6, v15')
        a(f'v_add_u32 v{89+2*t}, s7, v15')
    vm.need(tx)
    unpack8(a, 96, 124, 40); unpack8(a, 104, 116, 40); unpack8(a, 48, 72, 40); unpack8(a, 56, 76, 40)
    a('s_waitcnt lgkmcnt(0)')
    a('s_barrier')
    stamp('ebar')
    for i in range(1, 4):
        for g in range(4):
            a(f'ds_read_b128 v[{128+16*i+4*g}:{131+16*i+4*g}], v{88+2*i+(g >> 1)} offset:{1024*(g & 1)}')
    for i in range(1, 4):
        a(f's_waitcnt lgkmcnt({12-4*i})')
        for p in range(8): a(f'v_pk_add_f32 v[{128+2*p}:{129+2*p}], v[{128+2*p}:{129+2*p}], v[{128+16*i+2*p}:{129+16*i+2*p}]')
    for g in range(2):
        b = 128 + 8*g
        for r in range(4): a(f'v_permlane32_swap_b32 v{b+r}, v{b+4+r}')
        for p in range(4): a(f'v_pk_fma_f32 v[{b+2*p}:{b+2*p+1}], v[{b+2*p}:{b+2*p+1}], v[{96+8*g+2*p}:{97+8*g+2*p}], v[{48+8*g+2*p}:{49+8*g+2*p}]')
        for p in range(4): a(f'v_cvt_pk_bf16_f32 v{40+4*g+p}, v{b+2*p}, v{b+2*p+1}')
        a(f'buffer_store_dwordx4 v[{40+4*g}:{43+4*g}], v10, s[12:15], s39 offen offset:{32*g}' + ('', ' sc1', ' nt')[P.get('ost', 0)])
    a('s_or_b32 s4, s2, s3')
    a('s_cmp_lg_u32 s4, 0')
    a('s_cbranch_scc1 L_noep')
    a(f's_mov_b32 s4, {hex(EPOCH)}')
    a('buffer_store_dword v20, v21, s[16:19], s4 offen')
    a.label('L_noep')
    if P.get('probe') is not None:
        a('s_waitcnt vmcnt(0)')
        stamp('end')
        a('s_waitcnt lgkmcnt(0)')
        k = P['probe']
        if k >= 200:
            a(f's_add_u32 s4, s58, {hex(EPOCH + 0x100)}')
            a('s_addc_u32 s5, s59, 0')
            a('s_load_dwordx4 s[92:95], s[4:5], 0')
            a('s_waitcnt lgkmcnt(0)')
            a('s_cmp_eq_u64 s[92:93], s[94:95]')
            a('s_cselect_b32 s92, 10000, 0' if k == 200 else 's_cselect_b32 s92, 0, 10000')
            a('s_add_u32 s92, s92, s70')
        elif k >= 100:
            a(f's_mov_b32 s36, {hex(0x140A000)}')
            a('buffer_load_dwordx4 v[24:27], v15, s[16:19], s36 offen sc1')
            a('s_waitcnt vmcnt(0)')
            for r, op in ((28, 'min'), (29, 'max')):
                a(f'v_{op}_u32 v{r}, v24, v25')
                a(f'v_{op}3_u32 v{r}, v{r}, v26, v27')
                for ctl in ('row_ror:1', 'row_ror:2', 'row_ror:4', 'row_ror:8'):
                    a(f'v_{op}_u32_dpp v{r}, v{r}, v{r} {ctl} row_mask:0xf bank_mask:0xf')
                for i in range(4): a(f'v_readlane_b32 s{4+i}, v{r}, {16*i}')
                a(f's_{op}_u32 s4, s4, s5'); a(f's_{op}_u32 s6, s6, s7'); a(f's_{op}_u32 s{r+62}, s4, s6')
            if k == 100: a('s_add_u32 s92, s90, 6000')
            elif k == 101:
                a('s_sub_u32 s92, s91, s90'); a('s_lshl_b32 s92, s92, 2'); a('s_add_u32 s92, s92, s90'); a('s_add_u32 s92, s92, 4000')
            else:
                a(f's_sub_u32 s92, s{60+2*(k-110)}, s90'); a('s_lshl_b32 s92, s92, 2'); a('s_add_u32 s92, s92, s90'); a('s_add_u32 s92, s92, 4000')
        elif k == 0:
            a('s_add_u32 s92, s60, 6000')
        else:
            a(f's_sub_u32 s92, s{60+2*k}, s60')
            a('s_lshl_b32 s92, s92, 2')
            a('s_add_u32 s92, s92, s60')
            a('s_add_u32 s92, s92, 4000')
        a.label('L_probe')
        a('s_memrealtime s[94:95]')
        a('s_waitcnt lgkmcnt(0)')
        a('s_sub_u32 s94, s94, s92')
        a('s_cmp_lt_i32 s94, 0')
        a('s_cbranch_scc1 L_probe')
    elif P.get('stamps'):
        a('s_waitcnt vmcnt(0)')
        stamp('end')
        a('s_cmp_lg_u32 s3, 0')
        a('s_cbranch_scc1 L_end')
        a('s_lshl_b32 s94, s2, 7')
        a(f's_add_u32 s94, s94, {hex(TS)}')
        a('s_add_u32 s92, s58, s94')
        a('s_addc_u32 s93, s59, 0')
        a('v_lshlrev_b32 v250, 2, v1')
        a('s_lshl_b32 s94, s2, 8')
        a(f's_add_u32 s94, s94, {hex(TS + 0x80000)}')
        a('s_add_u32 s94, s58, s94')
        a('s_addc_u32 s95, s59, 0')
        a('global_store_dword v250, v254, s[94:95]')
        a('s_mov_b64 exec, 1')
        if P.get('dbg'):
            a('s_load_dwordx2 s[94:95], s[0:1], 104')
        a('s_waitcnt lgkmcnt(0)')
        if P.get('dbg'):
            a('s_not_b32 s60, s60')
            for m in sorted(marks):
                a(f'v_mov_b32 v250, s{60+2*m}')
                a(f'global_atomic_umax v21, v250, s[94:95] offset:{4*m}')
                a('s_nop 1')
            a('s_not_b32 s60, s60')
        for m in sorted(marks):
            a(f'v_mov_b32 v250, s{60+2*m}')
            a(f'v_mov_b32 v251, s{61+2*m}')
            a(f'global_store_dwordx2 v21, v[250:251], s[92:93] offset:{8*m}')
            a('s_nop 1')
    a.label('L_end')
    a.label('L_last')
    a('s_endpgm')
    return dict(grid=256, block=256, lds=163840, vgpr=512, accum=256)
```

```python
from collections import deque
from asmlib import *
from k123 import fh, lo, hi, unpack8, ln_stats, LdsPipe, A_OUT, A_WS
from k45 import VmPipe, GC1, GC2, geglu
from cde import zipl, gelu_ops, cost

UT, YT, X1, H2, ACT = 0, 0x400000, 0x900000, 0, 0xD00000
MODT, EPOCH, GRP, MP, TS = 0x1400000, 0x1408000, 0x1410000, 0x1480000, 0x1500000
YP = 16384 + 128
XID, UH, F1, F2, F3 = 0, 128, 1024, 1536, 2048
P1U = 49280
SEG = [(0, 98432, 129152), (15, 0, 49280), (27, 24576, 73856)]
CB, CHS, KB, U0, U1 = 98432, 12992, 512, 4608, 8768
PB = CB + 2*CHS
PRM = PB + 32768
MPART = PRM + 6144
XG = 129152 + 112*128
YS = 1040
XH = XG + 8*YS
PS = 272
SPIN = 1 << 15
WBL = list(range(12)) + list(range(8)) + [13, 17, 14, 18, 12, 15, 16, 19]
BARS = {89: (5, 15, 0), 111: (9, 19, 20), 127: (13, 23, 20), 143: (17, 27, 20), 159: (21, 31, 20), 175: (25, 32, 20),
        191: (29, 32, 22), 207: (31, 32, 24), 223: (None, 32, 28)}
assert MPART + 512 <= 163840 and XH + 8192 <= 163840
def seg_of(k): return SEG[0] if k < 15 else SEG[1] if k < 27 else SEG[2]

def base(a, d, p, n):
    a(f's_mov_b32 s{d}, s{p}'); a(f's_mov_b32 s{d+1}, s{p+1}'); a(f's_mov_b32 s{d+2}, {hex(n)}')

FL1, FL2, FL3 = 0x1420000, 0x1428000, 0x1430000
def ln1p(a, X, D, T, s0):
    a(f'v_pk_add_f32 v[{T}:{T+1}], v[{X}:{X+1}], v[{X+2}:{X+3}]')
    a(f'v_pk_mul_f32 v[{T+2}:{T+3}], v[{X}:{X+1}], v[{X}:{X+1}]')
    a(f'v_pk_add_f32 v[{D}:{D+1}], v[{X+4}:{X+5}], v[{X+6}:{X+7}]')
    for p in range(1, 4):
        a(f'v_pk_fma_f32 v[{T+2}:{T+3}], v[{X+2*p}:{X+2*p+1}], v[{X+2*p}:{X+2*p+1}], v[{T+2}:{T+3}]')
    a(f'v_pk_add_f32 v[{T}:{T+1}], v[{T}:{T+1}], v[{D}:{D+1}]')
    a(f'v_add_f32 v{T+2}, v{T+2}, v{T+3}')
    a(f'v_add_f32 v{T}, v{T}, v{T+1}')
    for ctl in ('row_shr:1', 'row_shr:2', 'row_shr:4', 'row_shr:8'):
        for r in (T+2, T): a(f'v_add_f32_dpp v{r}, v{r}, v{r} {ctl} row_mask:0xf bank_mask:0xf bound_ctrl:1')
    for ctl in ('row_bcast:15 row_mask:0xa', 'row_bcast:31 row_mask:0xc'):
        for r in (T+2, T): a(f'v_add_f32_dpp v{r}, v{r}, v{r} {ctl} bank_mask:0xf')
    a(f'v_readlane_b32 s{s0+1}, v{T+2}, 63')
    a(f'v_readlane_b32 s{s0}, v{T}, 63')
    a(f'v_mov_b32 v{T+1}, {fh(1.0/512)}')
    a(f'v_mov_b32 v{T+3}, {fh(1e-5)}')
    a(f'v_mul_f32 v{T}, s{s0}, v{T+1}')
    a(f'v_fmac_f32 v{T+3}, s{s0+1}, v{T+1}')
    a(f'v_fma_f32 v{T+2}, -v{T}, v{T}, v{T+3}')
    a(f'v_max_f32 v{T+2}, {fh(1e-5)}, v{T+2}')
    a(f'v_rsq_f32 v{T+2}, v{T+2}')
    for p in range(4):
        a(f'v_pk_add_f32 v[{D+2*p}:{D+2*p+1}], v[{X+2*p}:{X+2*p+1}], v[{T}:{T+1}] op_sel:[0,0] op_sel_hi:[1,0] neg_lo:[0,1] neg_hi:[0,1]')
    for p in range(4):
        a(f'v_pk_mul_f32 v[{D+2*p}:{D+2*p+1}], v[{D+2*p}:{D+2*p+1}], v[{T+2}:{T+3}] op_sel:[0,0] op_sel_hi:[1,0]')
def ln2p(s, X, D, T, s0):
    ln_stats(s, X, D, T, s0)
    for p in range(4):
        s(f'v_pk_mul_f32 v[{D+2*p}:{D+2*p+1}], v[{D+2*p}:{D+2*p+1}], v[{T}:{T+1}] op_sel:[0,0] op_sel_hi:[1,0]')

def mega(a, P):
    M2 = P.get('m2', 0)
    RL = P.get('rl', 1)
    WD2, WS_ = 0x200000, (2048 if RL else 0x4000)
    H2 = 0xB00000 if M2 else 0
    marks = set()
    SETS = {1: 'start kv0 utst utok bbar end bend ytst ytok h2dr b0 p1end b9 estart f3ok eend',
            2: 'start kv0 kvN abar utst end ut1st uhok utok bbar bend pbar ytst ytack ytok mdok',
            3: 'start ytst ln1 ytack ytok end ybar hbar h2st h2dr f1ok b0 b1 b2 b3 p1end',
            6: 'start b0 p1a p1end b2 end b3 b4 b5 b6 b7 b8 b9 f2ok g3 estart',
            7: 'start estart e2 e4 e6 end f3ok e8 e10 e12 e14 e16 e20 e24 eend ebar',
            8: 'start x1 x2 x3 x4 end',
            5: 'start karg x2 x3 x4 end x6 x7 x8 x9 x10 x11 x12 kv0 issued pre',
            4: 'start p1end b5 b6 b7 end b8 g1 f2ok g3 estart e12 f3ok e20 eend ebar'}
    names = SETS[P.get('stamps', 1)].split()
    def stamp(name):
        if P.get('stamps') and name in names:
            slot = names.index(name)
            a(f's_memrealtime s[{60+2*slot}:{61+2*slot}]'); marks.add(slot)
    def raw(i, sreg):
        if P.get('stamps'): a(f'v_writelane_b32 v254, {sreg}, {i}')
    vm = VmPipe(a)
    NT = ' nt' if P.get('nt', 1) else ''
    nst = [0]
    def lstore(lines, through=False):
        if through:
            for l in lines: t = vm.issue(l + ' sc1')
            return t
        return lstore2(lines)
    def lstore2(lines):
        n = nst[0]; nst[0] += 1
        a('s_cmp_eq_u32 s101, 0')
        a(f's_cbranch_scc1 L_ls{n}a')
        for l in lines: a(l + ' sc1')
        a(f's_branch L_ls{n}b')
        a.label(f'L_ls{n}a')
        for l in lines: t = vm.issue(l)
        a.label(f'L_ls{n}b')
        return t
    SL = P.get('sleep', 2); PM = P.get('pm', 1)
    def masked(lines, mask):
        if mask and PM: a(f's_mov_b64 exec, {hex(mask)}')
        for l in lines: t = vm.issue(l)
        if mask and PM: a('s_mov_b64 exec, -1')
        return t
    def poll(name, loads, tags, pre=None, mask=None):
        a(f's_mov_b32 s51, {SPIN}')
        if pre is not None:
            vm.need(pre)
            stamp(name + '1st')
        if mask and PM: a(f's_mov_b64 exec, {hex(mask)}')
        a(f's_branch L_{name}_chk' if pre is not None else f's_branch L_{name}_go')
        a.label(f'L_{name}')
        if SL: a(f's_sleep {SL}')
        a.label(f'L_{name}_go')
        for l in loads: a(l)
        a('s_waitcnt vmcnt(0)')
        a.label(f'L_{name}_chk')
        a(f'v_cmp_ne_u32 vcc, s50, v{tags[0]}')
        for i, t in enumerate(tags[1:]): a(f'v_cmp_ne_u32 s[{92+2*i}:{93+2*i}], s50, v{t}')
        a('s_sub_u32 s51, s51, 1')
        a(f's_cbranch_scc1 L_{name}_ok')
        for i in range(len(tags)-1): a(f's_or_b64 vcc, vcc, s[{92+2*i}:{93+2*i}]')
        a(f's_cbranch_vccnz L_{name}')
        a.label(f'L_{name}_ok')
        if mask and PM: a('s_mov_b64 exec, -1')
        if pre is None: vm.done = vm.issued

    a('s_cmp_ge_u32 s2, 256')
    a('s_cbranch_scc1 L_end')
    stamp('start')
    if P.get('stamps'): a('v_mov_b32 v254, 0')
    a('s_load_dwordx16 s[64:79], s[0:1], 0')
    if P.get('cpf', 1):
        a('s_getpc_b64 s[4:5]')
        a.label('L_pc')
        a('v_lshlrev_b32 v3, 7, v0')
        a('v_mov_b32 v5, s5')
        a('v_add_co_u32 v4, vcc, s4, v3')
        a(f'v_cmp_gt_u32 s[6:7], {P.get("cpn", 16)}, v0')
        a('v_and_b32 v1, 63, v0')
        a('v_addc_co_u32 v5, vcc, 0, v5, vcc')
        a('s_and_b64 exec, exec, s[6:7]')
        a('s_cbranch_execz L_nopf')
        a('global_load_dword v169, v[4:5], off')
        a.label('L_nopf')
        a('s_mov_b64 exec, -1')
    else: a('v_and_b32 v1, 63, v0')
    a(f's_load_dwordx2 s[58:59], s[0:1], {A_WS}')
    a('s_load_dwordx8 s[80:87], s[0:1], 64')
    a(f's_load_dwordx2 s[56:57], s[0:1], {A_OUT}')
    a('v_lshrrev_b32 v2, 6, v0')
    a('v_readfirstlane_b32 s3, v2')
    a('s_mov_b32 s40, 0xffff0000')
    a('s_and_b32 s28, s2, 7')
    a('s_lshr_b32 s29, s2, 3')
    a('s_lshl_b32 s32, s28, 5')
    a('s_or_b32 s32, s32, s29')
    a('v_and_b32 v3, 31, v0')
    a('v_lshrrev_b32 v2, 5, v0')
    a('s_lshl_b32 s33, s29, 6')
    a('v_lshl_add_u32 v4, v2, 3, s33')
    a('s_lshl_b32 s33, s28, 7')
    a('v_lshl_add_u32 v5, v3, 2, s33')
    a('v_lshl_add_u32 v5, v4, 10, v5')
    a('v_subrev_u32 v4, 0xc00, v5')
    a('s_lshl_b32 s33, s28, 9')
    a('v_lshl_add_u32 v13, v3, 4, s33')
    a('s_movk_i32 s35, 0x1000')
    a('s_mov_b32 s15, 0x20000'); a('s_mov_b32 s27, 0x20000'); a('s_mov_b32 s19, 0x20000')
    a('s_mov_b32 s23, 0x20000'); a('s_mov_b32 s11, 0x20000'); a('s_mov_b32 s55, 0x20000')
    a('v_lshlrev_b32 v15, 4, v1')
    a('v_mov_b32 v21, 0')
    a('v_lshlrev_b32 v14, 4, v0')
    a('s_waitcnt lgkmcnt(0)')
    stamp('karg')
    if P.get('wso'):
        a(f's_add_u32 s58, s58, {hex(P["wso"] << 20)}')
        a('s_addc_u32 s59, s59, 0')
    base(a, 12, 70, 4096)
    base(a, 24, 68, 0x200000)
    tsh = vm.issue('buffer_load_dwordx4 v[48:51], v13, s[12:15], 0 offen' + NT)
    base(a, 12, 66, 0x200000)
    for i in range(3): vm.issue(f'buffer_load_dword v{24+i}, v4, s[12:15], 0 offen offset:{1024*i}' + NT)
    tk = {}
    for i in range(8):
        so = 's35' if i >= 4 else '0'
        vm.issue(f'buffer_load_dword v{27+i}, v5, s[12:15], {so} offen offset:{1024*(i&3)}' + NT)
        tk[i] = vm.issue(f'buffer_load_dword v{36+i}, v5, s[24:27], {so} offen offset:{1024*(i&3)}' + NT)
    stamp('issued')
    a(f's_add_u32 s4, s58, {hex(EPOCH)}')
    a('s_addc_u32 s5, s59, 0')
    a('s_load_dword s50, s[4:5], 0')
    if P.get('cpf', 1):
        a('s_getpc_b64 s[6:7]')
        a.label('L_pc2')
        a('s_lshl_b32 s36, s29, 2')
        a('s_add_u32 s36, s36, s3')
        a('v_and_b32 v4, 1, v0')
        a('v_lshl_add_u32 v4, s36, 1, v4')
        a('v_min_u32 v4, (L_last-L_pc2)/128, v4')
        a('v_lshlrev_b32 v4, 7, v4')
        a('v_mov_b32 v5, s7')
        a('v_add_co_u32 v4, vcc, s6, v4')
        a('v_addc_co_u32 v5, vcc, 0, v5, vcc')
        a('s_mov_b64 exec, 3')
        vm.issue('global_load_dword v168, v[4:5], off')
        a('s_mov_b64 exec, -1')
    if P.get('kvbar', 1): a('s_barrier')
    a('s_lshl_b32 s33, s32, 2')
    a('s_add_u32 s6, s74, s33')
    a('s_addc_u32 s7, s75, 0')
    a('s_load_dword s34, s[6:7], 0')
    a('s_lshl_b32 s33, s32, 13')
    SK = {}
    def skload():
        base(a, 12, 72, 0x200000)
        a('s_lshl_b32 s36, s32, 13')
        vm.issue('buffer_load_dwordx4 v[146:149], v14, s[12:15], s36 offen' + NT)
        a('s_add_u32 s36, s36, 0x1000')
        SK['t'] = vm.issue('buffer_load_dwordx4 v[150:153], v14, s[12:15], s36 offen' + NT)
    if P.get('skat', 0) == 0: skload()
    a('s_mul_i32 s30, s28, 6')
    a('s_lshr_b32 s31, s29, 2')
    a('s_add_u32 s30, s30, s31')
    a('s_and_b32 s31, s29, 3')
    a('s_lshl_b32 s46, s30, 2')
    a('s_or_b32 s46, s46, s31')
    a('s_lshl_b32 s47, s31, 2')
    a('s_or_b32 s47, s47, s3')
    a('v_and_b32 v16, 1, v0')
    a('v_lshrrev_b32 v17, 3, v1')
    a('v_and_b32 v6, 7, v1')
    a('v_mul_u32_u24 v242, 0x6000, v17')
    a('v_lshl_add_u32 v242, v6, 4, v242')
    a('v_lshlrev_b32 v243, 3, v17')
    a('s_lshl_b32 s36, s3, 11')
    a('s_add_u32 s33, s33, s36')
    WM = {}
    def wmload():
        base(a, 12, 84, 1024)
        a('s_lshl_b32 s36, s47, 6')
        tc = vm.issue('buffer_load_dwordx2 v[144:145], v243, s[12:15], s36 offen')
        base(a, 12, 86, 512*6144)
        a('s_cmp_lt_u32 s29, 24')
        a('s_cselect_b32 s14, s14, 0')
        a('s_lshr_b32 s36, s46, 2')
        a('s_lshl_b32 s36, s36, 7')
        a(f's_mul_i32 s37, s47, {32*6144}')
        a('s_add_u32 s36, s36, s37')
        twm = []
        for r in range(4):
            twm.append(vm.issue(f'buffer_load_dwordx4 v[{128+4*r}:{131+4*r}], v242, s[12:15], s36 offen' + NT))
            if r < 3: a('s_add_u32 s36, s36, 0x1800')
        WM.update(tc=tc, twm=twm)
    if P.get('wat', 2) == 0: wmload()
    if M2:
        a('s_and_b32 s30, s2, 1')
        a('s_lshl_b32 s30, s30, 3')
        a('s_and_b32 s98, s29, 7')
        a('s_or_b32 s30, s30, s98')
        a('s_bfe_u32 s31, s2, 0x20001')
        a('s_lshl_b32 s31, s31, 2')
        a('s_lshr_b32 s36, s2, 6')
        a('s_or_b32 s31, s31, s36')
        a('s_lshl_b32 s36, s36, 1')
        a('s_add_u32 s98, s98, s36')
    else:
        a('s_lshr_b32 s30, s32, 4')
        a('s_and_b32 s31, s32, 15')
        a(f's_and_b32 s98, s30, {P.get("prot", 0)}')
        a('s_lshl_b32 s98, s98, 2')
        if P.get('xrot', 1): a('s_add_u32 s98, s98, s28')
    a('s_and_b32 s98, s98, 7')
    a('s_lshr_b32 s38, s3, 1')
    a('s_and_b32 s39, s3, 1')
    a('s_cmp_eq_u32 s38, 0')
    a('s_cselect_b32 s20, s78, s80')
    a('s_cselect_b32 s21, s79, s81')
    a(f's_mov_b32 s22, {512*3584 if not P.get("now") else 0}')
    base(a, 8, 82, 1792*1024 if not P.get('now') else 0)
    base(a, 16, 58, TS)
    a('s_lshl_b32 s36, s28, 12')
    a(f's_add_u32 s36, s36, {hex(GRP)}')
    a('s_add_u32 s52, s58, s36')
    a('s_addc_u32 s53, s59, 0')
    a('s_movk_i32 s54, 0x1000')
    a('s_cmp_eq_u32 s3, 3')
    a('s_cselect_b32 s37, 0, 0x70000000')
    a('v_mov_b32 v22, s37')
    a('s_lshl_b32 s36, s29, 7')
    vm.issue('buffer_load_dword v158, v22, s[52:55], s36 offen')
    a('s_lshl_b32 s36, s46, 6')
    a(f's_add_u32 s36, s36, {hex(MODT)}')
    vm.issue('buffer_load_dword v159, v22, s[16:19], s36 offen')
    if M2 and P.get('ft', 1):
        a('s_lshl_b32 s36, s30, 4')
        a('s_lshr_b32 s37, s32, 4')
        a('s_lshl_b32 s37, s37, 4')
        a('s_sub_u32 s37, s37, s36')
        a('s_add_u32 s37, s37, 0x100')
        a('v_lshrrev_b32 v4, 2, v1')
        a('v_min_u32 v5, 1, v4')
        a('v_mul_lo_u32 v5, v5, s37')
        a('v_max_u32 v4, 1, v4')
        a('v_subrev_u32 v4, 1, v4')
        a('v_lshl_add_u32 v5, v4, 8, v5')
        a('v_and_b32 v4, 3, v1')
        a('v_add_u32 v5, v5, v4')
        a('s_lshl_b32 s37, s3, 2')
        a('s_add_u32 s36, s36, s37')
        a('v_add_lshl_u32 v5, v5, s36, 7')
        a(f's_mov_b32 s36, {hex(FL1)}')
        a('s_mov_b64 exec, 0xfff')
        vm.issue('buffer_load_dword v156, v5, s[16:19], s36 offen')
        a('s_mov_b64 exec, -1')
    a('s_lshl_b32 s36, s32, 13')
    a('s_lshl_b32 s37, s46, 11')
    a(f's_add_u32 s37, s37, {hex(MP)}')
    a('s_cmp_eq_u32 s3, 1')
    a(f's_cselect_b32 s37, s37, {hex(TS)}')
    a('s_cselect_b32 s44, 15, 63')
    a('s_cmp_eq_u32 s3, 2')
    a('s_cselect_b32 s37, s36, s37')
    a('v_and_b32 v4, s44, v1')
    a('v_lshlrev_b32 v4, 7, v4')
    if P.get('utt', 1): vm.issue('buffer_load_dword v157, v4, s[16:19], s37 offen' + (' nt' if P.get('ntu', 0) else ''))
    if P.get('tlb', 0) == 1:
        a('v_lshl_add_u32 v4, v1, 20, v22')
        for i, (p, n) in enumerate(((86, 512*6144), (84, 1024), (64, 0x200000), (78, 512*3584), (80, 512*3584), (82, 1792*1024), (56, 0x200000))):
            base(a, 12, p, n)
            vm.issue(f'buffer_load_dword v{160+i}, v4, s[12:15], 0 offen')
        vm.issue('buffer_load_dword v154, v4, s[16:19], 0 offen')
    for i in range(3):
        a(f'v_add_u32 v4, {64*i}, v1')
        a('v_mul_u32_u24 v5, 0x2aab, v4')
        a('v_lshrrev_b32 v5, 16, v5')
        a(f'v_mul_u32_u24 v5, {3584-96}, v5')
        a(f'v_lshl_add_u32 v{10+i}, v4, 4, v5')
        if i: a(f'v_subrev_u32 v{10+i}, {1024*i}, v{10+i}')
    a(f's_mul_i32 s41, s39, {32*3584}')
    a('s_mul_i32 s43, s31, 96')
    a('s_add_u32 s41, s41, s43')
    a('s_add_u32 s41, s41, 0x800')
    a('s_mul_i32 s43, s39, 3072')
    a(f's_mul_i32 s42, s38, {P1U}')
    a('s_add_u32 s42, s42, s43')
    a(f's_add_u32 s99, s41, {512*3584}')
    a(f's_mul_i32 s36, s98, {64*3584}')
    a('s_add_u32 s41, s41, s36')
    def step(reg, inc, lim, span):
        a(f's_add_u32 {reg}, {reg}, {inc}')
        a(f's_cmp_eq_u32 {reg}, {lim}')
        a(f's_cselect_b32 s36, {span}, 0')
        a(f's_sub_u32 {reg}, {reg}, s36')
    early = deque()
    def p1dma(m, i):
        if i == 0: a(f's_add_u32 m0, s42, {6144*m}')
        vm.issue(f'buffer_load_dwordx4 v{10+i}, s[20:23], s41 offen offset:{1024*i} lds')
        if i == 2 and m < 7: step('s41', 64*3584, 's99', 512*3584)
    for m in range(8):
        for i in range(3): early.append(lambda m=m, i=i: p1dma(m, i))
    for _ in range(P.get('e0', 0)): early.popleft()()
    a('v_lshrrev_b32 v4, 3, v1')
    a('v_bfe_u32 v5, v1, 4, 1')
    a('v_lshlrev_b32 v5, 2, v5')
    a('v_xor_b32 v5, v5, v6')
    a('v_lshlrev_b32 v5, 4, v5')
    a(f'v_lshl_add_u32 v8, v4, {7 if RL else 10}, v5')
    a(f'v_add_u32 v9, {0 if RL else 8192-1024}, v8')
    a('s_lshl_b32 s43, s38, 5')
    a('v_xor_b32 v5, s43, v5')
    a('v_mul_u32_u24 v7, 0xe00, v4')
    a('v_add_u32 v7, v7, v5')
    a(f's_mul_i32 s48, s39, {8*3584}')
    a('s_lshl_b32 s43, s31, 7')
    a('s_add_u32 s48, s48, s43')
    a('s_lshl_b32 s43, s39, 10')
    a(f's_mul_i32 s49, s38, {SEG[0][2]-SEG[0][1]}')
    a('s_add_u32 s49, s49, s43')
    a(f's_mul_i32 s38, s38, {P1U}')
    a('s_add_u32 s43, s43, s38')
    a('v_sub_u32 v4, 7, v2')
    a('v_xor_b32 v4, v4, v6')
    a('v_lshl_add_u32 v4, v3, 4, v4')
    a(f'v_lshlrev_b32 v4, 4, v4')
    a(f'v_add_u32 v120, {PB}, v4')
    a('v_lshrrev_b32 v4, 4, v1')
    a('v_xor_b32 v5, v4, v1')
    a('s_lshl_b32 s36, s3, 11')
    a(f's_add_u32 s36, s36, {PB}')
    a('v_lshl_add_u32 v124, v5, 4, s36')
    a('v_xor_b32 v125, 64, v124')
    a('v_lshrrev_b32 v4, 3, v1')
    a('v_lshlrev_b32 v5, 4, v6')
    a('v_lshl_add_u32 v13, v4, 12, v5')
    a('s_lshl_b32 s36, s28, 2')
    a('s_add_u32 s36, s36, s3')
    a('s_lshl_b32 s36, s36, 16')
    a('s_sub_u32 s35, 31, s29')
    a('s_lshl_b32 s35, s35, 7')
    a('s_add_u32 s35, s35, s36')
    a('s_waitcnt lgkmcnt(0)')
    a('s_mul_i32 s50, s50, 1664525')
    a('s_add_u32 s50, s50, 1013904223')
    a('v_mov_b32 v20, s50')
    a('s_getreg_b32 s100, hwreg(HW_REG_XCC_ID, 0, 4)')
    if P.get('slow'): a('s_and_b32 s100, s29, 1')
    a('s_add_u32 s100, s100, s50')
    a('s_add_u32 s100, s100, 1')
    a('s_cmp_lg_u32 s3, 0')
    a('s_cbranch_scc1 L_noid')
    a('v_mov_b32 v22, s100')
    a('s_lshl_b32 s36, s29, 2')
    if PM: a('s_mov_b64 exec, 1')
    a(f'buffer_store_dword v22, v21, s[52:55], s36 offen offset:{XID} sc1')
    if PM: a('s_mov_b64 exec, -1')
    a.label('L_noid')
    if 200 > P.get('probe', 0) >= 100:
        a('v_mov_b32 v22, s60')
        a('s_lshl_b32 s36, s2, 2')
        a(f's_add_u32 s36, s36, {hex(0x140A000)}')
        vm.issue('buffer_store_dword v22, v21, s[16:19], s36 offen sc1')
    def slow_gu():
        a('v_bfe_u32 v4, v1, 1, 3')
        a('v_and_b32 v5, 1, v4')
        a('v_lshlrev_b32 v5, 9, v5')
        a(f'v_mul_u32_u24 v4, 3584, v4')
        a('v_add_u32 v4, v4, v5')
        a('v_and_b32 v5, 1, v1')
        a('v_lshl_add_u32 v4, v5, 10, v4')
        a('v_bfe_u32 v5, v1, 4, 1')
        a('v_lshl_add_u32 v4, v5, 11, v4')
        a('s_lshl_b32 s36, s29, 1')
        a('s_and_b32 s37, s3, 1')
        a('s_add_u32 s36, s36, s37')
        a(f's_mul_i32 s36, s36, {8*3584}')
        a('s_mov_b32 exec_hi, 0')
        vm.issue('buffer_load_dword v252, v4, s[20:23], s36 offen offset:384')
        a('s_mov_b32 exec_hi, -1')
    def slow_d():
        a('v_lshlrev_b32 v4, 10, v1')
        a('s_and_b32 s36, s32, 31')
        a('s_lshl_b32 s36, s36, 2')
        a('s_add_u32 s36, s36, s3')
        a(f's_mul_i32 s36, s36, {14*1024}')
        a('s_mov_b64 exec, 0x3fff')
        vm.issue('buffer_load_dword v253, v4, s[8:11], s36 offen offset:384')
        a('s_mov_b64 exec, -1')
    def slow(at):
        if P.get('sg', 0) == at: slow_gu()
        if P.get('sd', 0) == at: slow_d()
    stamp('pre')
    vm.need(tsh)
    lo(a, 52, 48); hi(a, 54, 48, 40); lo(a, 56, 49); hi(a, 58, 49, 40)
    lo(a, 53, 50); hi(a, 55, 50, 40); lo(a, 57, 51); hi(a, 59, 51, 40)
    vm.need(tk[0])
    stamp('kv0')
    if P.get('skat', 0) == 1: skload()
    if P.get('wat', 2) == 1: wmload()
    def xload():
        vm.issue('buffer_load_dwordx4 v[232:235], v15, s[12:15], s33 offen' + NT)
        return vm.issue('buffer_load_dwordx4 v[236:239], v15, s[12:15], s33 offen offset:1024' + NT)
    for q in range(3):
        lo(a, 60+2*q, 24+q); hi(a, 61+2*q, 24+q, 40)
    for r in range(8):
        vm.need(tk[r])
        lo(a, 66+2*r, 27+r); hi(a, 67+2*r, 27+r, 40)
        lo(a, 84+2*r, 36+r); hi(a, 85+2*r, 36+r, 40)
        d = 102+2*r
        a(f'v_pk_mul_f32 v[{d}:{d+1}], v[{60+2*r}:{61+2*r}], v[58:59]')
        a(f'v_pk_fma_f32 v[{d}:{d+1}], v[{62+2*r}:{63+2*r}], v[56:57], v[{d}:{d+1}]')
        a(f'v_pk_fma_f32 v[{d}:{d+1}], v[{64+2*r}:{65+2*r}], v[54:55], v[{d}:{d+1}]')
        a(f'v_pk_fma_f32 v[{d}:{d+1}], v[{66+2*r}:{67+2*r}], v[52:53], v[{d}:{d+1}]')
        a(f'v_pk_mul_f32 v[{d}:{d+1}], v[{d}:{d+1}], v[{84+2*r}:{85+2*r}]')
    if P.get('skat', 0) == 2: skload()
    if P.get('wat', 2) == 2: wmload()
    tc, twm, tsk = WM['tc'], WM['twm'], SK['t']
    base(a, 12, 64, 0x200000)
    slow(1)
    stamp('kvN')
    for c in range(2):
        for jj in range(4):
            a(f'v_cvt_pk_bf16_f32 v{24+4*c+jj}, v{102+2*(7-2*jj)+c}, v{102+2*(6-2*jj)+c}')
        a(f'ds_write_b128 v120, v[{24+4*c}:{27+4*c}] offset:{128*c}')
    a('s_waitcnt lgkmcnt(0)')
    a('s_barrier')
    stamp('abar')
    for j in range(2): a(f'ds_read_b128 v[{104+4*j}:{107+4*j}], v{124+j} offset:{1024*j}')
    a('s_mov_b32 s24, s35')
    a('s_add_u32 s25, s35, 0x8000')
    ustores = [f'buffer_store_dwordx4 v[{104+4*j}:{107+4*j}], v13, s[16:19], s{24+j} offen' for j in range(2)]
    for j in range(2):
        a(f's_waitcnt lgkmcnt({1-j})')
        tus = vm.issue(ustores[j] + (' sc1' if P.get('uts', 0) else ''))
    a('s_lshl_b32 s7, s3, 7')
    a('s_lshl_b32 s36, s29, 2')
    a('s_add_u32 s7, s7, s36')
    a('v_mov_b32 v123, s100')
    stamp('utst')
    for i in range(4): a(f'v_mov_b32 v{40+i}, 0')
    a(f'v_add_u32 v14, {CB}, v14')
    a('v_cmp_gt_u32 vcc, 32, v0')
    a('s_and_saveexec_b64 s[36:37], vcc')
    a('s_cbranch_execz L_nz')
    a('ds_write_b128 v14, v[40:43]')
    a(f'ds_write_b128 v14, v[40:43] offset:{CHS}')
    a('v_cmp_gt_u32 vcc, 2, v0')
    a('s_and_b64 exec, exec, vcc')
    for c in range(2):
        a(f'ds_write_b128 v14, v[40:43] offset:{c*CHS+U0+4096}')
        a(f'ds_write_b128 v14, v[40:43] offset:{c*CHS+U1+4096}')
    a.label('L_nz')
    a('s_mov_b64 exec, s[36:37]')
    a('v_cmp_eq_u32 s[36:37], 0, v0')
    a('s_lshl_b32 s4, s34, 16')
    a('s_and_b32 s5, s34, 0xffff0000')
    a('s_mov_b32 s6, 0xffff')
    vm.need(tsk)
    stamp('skok')
    for c in range(2):
        kx = 146+4*c
        lo(a, 44, kx)
        a(f'v_add_f32 v44, s{4+c}, v44')
        a('v_cvt_pk_bf16_f32 v44, v44, v44')
        a(f'v_bfi_b32 v44, s6, v44, v{kx}')
        a(f'v_cndmask_b32 v{kx}, v{kx}, v44, s[36:37]')
        a(f'ds_write_b128 v14, v[{kx}:{kx+3}] offset:{c*CHS+KB}')
    vm.need(tus)
    masked([f'buffer_store_dword v123, v21, s[52:55], s7 offen offset:{UH}'], 1)
    a('v_and_b32 v120, 31, v1')
    a('v_lshlrev_b32 v120, 2, v120')
    a('s_lshr_b32 s5, s29, 3')
    a('s_lshl_b32 s5, s5, 7')
    hloads = [f'buffer_load_dword v121, v120, s[52:55], 0 offen offset:{XID} sc1', f'buffer_load_dword v124, v120, s[52:55], s5 offen offset:{UH} sc1']
    tu = masked(hloads, 0xffffffff)
    a('v_lshrrev_b32 v4, 1, v6')
    a('v_lshlrev_b32 v4, 11, v4')
    a('v_lshl_add_u32 v4, v16, 6, v4')
    a('v_lshrrev_b32 v5, 5, v1')
    a('v_lshl_add_u32 v4, v5, 5, v4')
    a('v_bfe_u32 v5, v1, 4, 1')
    a('v_lshl_add_u32 v244, v5, 4, v4')
    a('s_lshl_b32 s35, s32, 13')
    a('s_add_u32 s34, s35, 0x1000')
    a('v_lshlrev_b32 v125, 4, v0')
    vm.need(tc)
    lo(a, 44, 144); hi(a, 45, 144, 40); lo(a, 46, 145); hi(a, 47, 145, 40)
    for r in range(4): a(f'v_mul_f32 v{48+r}, {fh(-1.4426950408889634)}, v{44+r}')
    for r in range(4): a(f'v_exp_f32 v{48+r}, v{48+r}')
    for r in range(4): a(f'v_add_f32 v{48+r}, 1.0, v{48+r}')
    for r in range(4): a(f'v_rcp_f32 v{48+r}, v{48+r}')
    for r in range(4): a(f'v_mul_f32 v{44+r}, v{44+r}, v{48+r}')
    a('v_cvt_pk_bf16_f32 v48, v44, v45')
    a('v_cvt_pk_bf16_f32 v49, v46, v47')
    lo(a, 44, 48); hi(a, 45, 48, 40); lo(a, 46, 49); hi(a, 47, 49, 40)
    def stage1():
        for r in range(4):
            vm.need(twm[r])
            unpack8(a, 52, 128+4*r, 40)
            sel = 'op_sel:[0,0,0] op_sel_hi:[1,0,1]' if r % 2 == 0 else 'op_sel:[0,1,0] op_sel_hi:[1,1,1]'
            sp = 44 + (r & 2)
            for j in range(4):
                if r == 0:
                    a(f'v_pk_mul_f32 v[{60+2*j}:{61+2*j}], v[{52+2*j}:{53+2*j}], v[{sp}:{sp+1}] op_sel:[0,0] op_sel_hi:[1,0]')
                else:
                    a(f'v_pk_fma_f32 v[{60+2*j}:{61+2*j}], v[{52+2*j}:{53+2*j}], v[{sp}:{sp+1}], v[{60+2*j}:{61+2*j}] {sel}')
        for j in range(4): a(f'v_permlane32_swap_b32 v{60+j}, v{64+j}')
        for j in range(4): a(f'v_add_f32 v{60+j}, v{60+j}, v{64+j}')
        a('s_lshr_b32 s6, s46, 2')
        a('s_lshl_b32 s6, s6, 13')
        for j in range(2): a(f'v_permlane16_swap_b32 v{60+j}, v{62+j}')
        a('s_lshl_b32 s36, s47, 7')
        for j in range(2): a(f'v_add_f32 v{100+j}, v{60+j}, v{62+j}')
        a('v_mov_b32 v102, s50')
        a('v_mov_b32 v103, s50')
        for j in range(2): a(f'v_add_f32_dpp v{100+j}, v{100+j}, v{100+j} row_ror:8 row_mask:0xf bank_mask:0xf')
        a('s_add_u32 s6, s6, s36')
        a(f's_add_u32 s6, s6, {hex(MP)}')
        a('s_cmp_lt_u32 s29, 24')
        a(f's_cselect_b32 s6, s6, {hex(TS)}')
    if P.get('s1at', 1) == 0: stage1()
    a('s_lshr_b32 s36, s3, 1')
    a(f's_mul_i32 s36, s36, {CHS}')
    a('s_xor_b32 s38, s39, 1')
    a('s_lshl_b32 s38, s38, 6')
    a('s_add_u32 s36, s36, s38')
    a(f's_add_u32 s36, s36, {CB}')
    a('v_and_b32 v3, 15, v0')
    a('v_bfe_u32 v4, v0, 4, 2')
    a('v_lshlrev_b32 v5, 4, v4')
    a('v_lshl_add_u32 v22, v3, 5, v5')
    a(f's_add_u32 s38, s36, {KB-480}')
    a('v_add_u32 v22, s38, v22')
    a('v_and_b32 v23, 14, v3')
    a('v_lshlrev_b32 v23, 1, v23')
    a('v_sub_u32 v23, v5, v23')
    a(f'v_mul_u32_u24 v5, {U1-U0}, v16')
    a('v_sub_u32 v23, v23, v5')
    a(f's_add_u32 s38, s36, {U1+28}')
    a('v_add_u32 v16, s38, v23')
    for i in range(1, 4): a(f'v_add_u32 v{16+i}, {1024*i}, v16')
    a('v_bfe_u32 v5, v3, 1, 2')
    a('v_xor_b32 v5, v5, v4')
    a('v_lshl_add_u32 v5, v3, 2, v5')
    a('s_lshl_b32 s38, s3, 13')
    a(f's_add_u32 s38, s38, {PB}')
    a('v_lshl_add_u32 v23, v5, 4, s38')
    KP = P.get('kp', 1)
    if KP:
        a('s_waitcnt lgkmcnt(0)')
        a('s_barrier')
        for j in range(4, 32): a(f'ds_read_b128 v[{104+4*j}:{107+4*j}], v22 offset:{128*j}') if not 120 <= 104+4*j < 156 else None
    a(f's_mov_b32 s51, {SPIN}')
    a('s_mov_b32 s101, 0')
    vm.need(tu)
    stamp('ut1st')
    if PM: a('s_mov_b32 exec_hi, 0')
    a('s_branch L_uh_chk')
    a.label('L_uh')
    if SL: a(f's_sleep {SL}')
    for l in hloads: a(l)
    a('s_waitcnt vmcnt(0)')
    a.label('L_uh_chk')
    a('v_subrev_u32 v122, s50, v121')
    a('v_subrev_u32 v122, 1, v122')
    a('v_cmp_lt_u32 vcc, 15, v122')
    a('v_cmp_ne_u32 s[92:93], s100, v121')
    a('s_sub_u32 s51, s51, 1')
    a('s_cbranch_scc1 L_uh_ok')
    a('s_cbranch_vccnz L_uh')
    a('s_cmp_eq_u64 s[92:93], 0')
    a('s_cbranch_scc1 L_uh_same')
    a('s_cmp_lg_u32 s101, 0')
    a('s_cbranch_scc1 L_uh_same')
    a('s_mov_b32 s101, 1')
    a('s_mov_b64 exec, -1')
    for l in ustores: a(l + ' sc1')
    a('s_waitcnt vmcnt(0)')
    a(f'buffer_store_dword v20, v21, s[52:55], s7 offen offset:{UH} sc1')
    if PM: a('s_mov_b32 exec_hi, 0')
    a.label('L_uh_same')
    a('v_cmp_ne_u32 vcc, s50, v124')
    a('v_cmp_ne_u32 s[92:93], s100, v124')
    a('s_nop 0')
    a('s_and_b64 vcc, vcc, s[92:93]')
    a('s_cbranch_vccnz L_uh')
    a.label('L_uh_ok')
    a('s_mov_b64 exec, -1')
    raw(6, 's51')
    stamp('uhok')
    tu = []
    for c in range(2):
        vm.issue(f'buffer_load_dwordx4 v[{72+4*c}:{75+4*c}], v125, s[16:19], s{35-c} offen sc1')
        tu.append(vm.issue(f'buffer_load_dword v{80+c}, v125, s[16:19], s{35-c} offen offset:16 sc1'))
    if P.get('s1at', 1) == 1: stage1()
    lstore(['buffer_store_dwordx4 v[100:103], v244, s[16:19], s6 offen'])
    if KP:
        for j in list(range(4)) + list(range(4, 13)): a(f'ds_read_b128 v[{104+4*j}:{107+4*j}], v22 offset:{128*j}')
    if P.get('xat', 1) == 1: tx = xload()
    CP = {}
    if RL:
        a('s_mul_i32 s44, s2, 7')
        a('s_lshl_b32 s45, s3, 1')
        a('s_add_u32 s44, s44, s45')
        a('s_cmp_eq_u32 s3, 3')
        a('s_cselect_b32 s45, 0, 1')
        a('s_add_u32 s45, s45, s44')
        for r in range(2):
            a(f's_lshl_b32 s36, s{44+r}, 10')
            CP['l'] = vm.issue(f'buffer_load_dwordx4 v[{32+4*r}:{35+4*r}], v15, s[8:11], s36 offen' + NT)
    def wdcopy():
        a('v_lshrrev_b32 v4, 3, v1')
        a(f'v_mul_u32_u24 v4, {1792*128}, v4')
        a('v_lshl_add_u32 v4, v6, 4, v4')
        vm.need(CP['l'])
        for r in range(2):
            a(f's_lshl_b32 s36, s{44+r}, 7')
            a(f's_add_u32 s36, s36, {hex(WD2)}')
            CP['s'] = vm.issue(f'buffer_store_dwordx4 v[{32+4*r}:{35+4*r}], v4, s[16:19], s36 offen sc1')
    a('s_movk_i32 s36, 0xff')
    a('v_cmp_ne_u32 vcc, s36, v0')
    for c in range(2):
        u = 72+4*c
        vm.need(tu[c])
        if c == 0: stamp('utok')
        a(f'v_cndmask_b32 v{80+c}, 0, v{80+c}, vcc')
        a(f'ds_write_b128 v14, v[{u}:{u+3}] offset:{c*CHS+U0}')
        for j in range(3): a(f'v_alignbit_b32 v{40+4*c+j}, v{u+j+1}, v{u+j}, 16')
        a(f'v_alignbit_b32 v{43+4*c}, v{80+c}, v{u+3}, 16')
        a(f'ds_write_b128 v14, v[{40+4*c}:{43+4*c}] offset:{c*CHS+U1}')
    for _ in range(P.get('e0b', 6)): early.popleft()()
    a('s_waitcnt lgkmcnt(0)')
    a('s_barrier')
    stamp('bbar')
    a('s_lshl_b32 s6, s46, 11')
    a(f's_add_u32 s6, s6, {hex(MP)}')
    a('s_cmp_lt_u32 s29, 24')
    a(f's_cselect_b32 s7, s3, 1')
    ploads = [f'buffer_load_dwordx4 v[{240+4*j}:{243+4*j}], v15, s[16:19], s6 offen offset:{1024*j} sc1' for j in range(2)]
    tmi = []
    def mod_issue():
        a('s_cmp_lg_u32 s7, 0')
        a('s_cbranch_scc1 L_nomi')
        for l in ploads: a(l)
        a.label('L_nomi')
        tmi.append(vm.issued)
    def mod_final():
        a('s_cmp_lg_u32 s7, 0')
        a('s_cbranch_scc1 L_nomod')
        done = vm.done
        a(f's_waitcnt vmcnt({vm.issued - tmi[0]})')
        poll('mp', ploads, [242, 246], pre=0)
        vm.done = done
        a('v_pk_add_f32 v[240:241], v[240:241], v[244:245]')
        a('s_lshr_b32 s36, s46, 5')
        a('s_cmp_eq_u32 s36, 1')
        for j in range(2): a(f'v_add_f32_dpp v{240+j}, v{240+j}, v{240+j} row_ror:8 row_mask:0xf bank_mask:0xf')
        a('s_cselect_b32 s38, 1.0, 0')
        a('s_cmp_eq_u32 s36, 4')
        for op in ('v_permlane16_swap_b32', 'v_permlane32_swap_b32'):
            for j in range(2): a(f'v_mov_b32 v{242+j}, v{240+j}')
            for j in range(2): a(f'{op} v{240+j}, v{242+j}')
            a('v_pk_add_f32 v[240:241], v[240:241], v[242:243]')
        a('s_cselect_b32 s38, 1.0, s38')
        a('s_lshl_b32 s36, s46, 6')
        a('v_cvt_pk_bf16_f32 v242, v240, v241')
        a(f's_add_u32 s36, s36, {hex(MODT)}')
        lo(a, 240, 242); hi(a, 241, 242, 40)
        for j in range(2): a(f'v_add_f32 v{240+j}, s38, v{240+j}')
        a('v_cvt_pk_bf16_f32 v244, v240, v241')
        a('v_mov_b32 v246, s50')
        a('v_mov_b32 v247, s50')
        a('v_mov_b32_dpp v245, v244 quad_perm:[1,1,3,3] row_mask:0xf bank_mask:0xf')
        a('v_lshlrev_b32 v240, 3, v1')
        a('s_mov_b64 exec, 0x55')
        a('buffer_store_dwordx4 v[244:247], v240, s[16:19], s36 offen sc1')
        a('s_mov_b64 exec, -1')
        a.label('L_nomod')
    ACC, AR, BR = 40, 72, 104
    pipe = LdsPipe(a)
    reads = []
    for i in range(32):
        o = 32*((31-i) & 7); b = 16 + ((31-i) >> 3); d = AR + 4*(i & 7)
        reads.append((('A', i, 0), f'ds_read2_b32 v[{d}:{d+1}], v{b} offset0:{o} offset1:{o+1}'))
        reads.append((('A', i, 1), f'ds_read2_b32 v[{d+2}:{d+3}], v{b} offset0:{o+2} offset1:{o+3}'))
        if i < 4 and not KP:
            for t in range(8):
                j = 4*t+3-i
                reads.append((('B', j), f'ds_read_b128 v[{BR+4*j}:{BR+4*j+3}], v22 offset:{128*j}'))
    tok = {('B', j): 0 for j in range(32)} if KP else {}; nxt = [0]
    def pump(cur_step, maxn):
        n = 0
        while n < maxn and nxt[0] < len(reads) and pipe.outstanding() < 13:
            key, line = reads[nxt[0]]
            if key[0] == 'A' and key[1] >= cur_step + 8: break
            tok[key] = pipe.issue(line); nxt[0] += 1; n += 1
    pump(0, 12)
    slow(2)
    MAT = P.get('mat', 0)
    pending = []; nm = 0
    NB = P.get('e1', 9); EV = P.get('ev', 10)
    for i in range(32):
        for t in range(i >> 2, 8):
            j = 4*t+3-i
            while ('B', j) not in tok or ('A', i, 1) not in tok:
                pipe.need(pipe.done + 2); pump(i, 2)
            pipe.need(max(tok[('A', i, 1)], tok[('B', j)]))
            d = ACC+4*t; c = '0' if i == 0 else f'v[{d}:{d+3}]'
            s = AR+4*(i & 7)
            a(f'v_mfma_f32_16x16x32_bf16 v[{d}:{d+3}], v[{s}:{s+3}], v[{BR+4*j}:{BR+4*j+3}], {c}')
            pump(i, 2 if i < 4 else 1)
            nm += 1
            if nm >= P.get('e1s', 40) and nm % EV == 0 and NB > 0 and early:
                early.popleft()(); NB -= 1
        if pending and pipe.outstanding() < 14:
            t = pending.pop()
            pipe.issue(f'ds_write_b128 v23, v[{ACC+4*t}:{ACC+4*t+3}] offset:{1024*t}')
        if (i & 3) == 3: pending.append(i >> 2)
        if RL and i == P.get('cpa', 10): wdcopy()
        if i == P.get('mpi', 2) and not MAT: mod_issue()
        if i == P.get('mfin', 7) and not MAT: mod_final(); raw(7, 's51')
    for t in pending:
        pipe.issue(f'ds_write_b128 v23, v[{ACC+4*t}:{ACC+4*t+3}] offset:{1024*t}')
    stamp('bend')
    a('v_lshlrev_b32 v4, 3, v0')
    a(f'v_add_u32 v4, {PRM}, v4')
    a('v_lshrrev_b32 v2, 1, v0')
    a('v_bfe_u32 v3, v0, 4, 2')
    a('v_xor_b32 v2, v2, v3')
    a('v_lshlrev_b32 v2, 4, v2')
    a('v_and_b32 v3, 1, v0')
    a('v_lshl_add_u32 v2, v3, 3, v2')
    a(f'v_add_u32 v2, {PB}, v2')
    a('v_lshlrev_b32 v3, 4, v0')
    a('v_and_b32 v5, 3, v0')
    a(f's_mul_i32 s38, s32, {YP}')
    a(f's_add_u32 s38, s38, {hex(YT)}')
    a(f'v_add_u32 v13, {PRM}, v15')
    a('s_and_b32 s36, s32, 7')
    a('s_lshl_b32 s36, s36, 1')
    a('s_and_b32 s37, s3, 1')
    a('s_or_b32 s36, s36, s37')
    a('s_lshl_b32 s36, s36, 6')
    a(f's_add_u32 s36, s36, {PRM+5120}')
    a('v_lshrrev_b32 v14, 5, v1')
    a('v_lshl_add_u32 v14, v14, 4, s36')
    if RL: vm.need(CP['s'])
    a('s_waitcnt lgkmcnt(0)')
    a('s_barrier')
    stamp('pbar')
    for j in range(4):
        for w in range(4):
            a(f'ds_read_b64 v[{72+8*j+2*w}:{73+8*j+2*w}], v2 offset:{8192*w+2048*j}')
        if j == 2: a('s_waitcnt lgkmcnt(8)')
    if MAT: mod_issue()
    for j in range(4):
        b = 72+8*j; q = 24+4*j
        if j: a(f's_waitcnt lgkmcnt({12-4*j})')
        a(f'v_pk_add_f32 v[{b}:{b+1}], v[{b}:{b+1}], v[{b+2}:{b+3}]')
        a(f'v_pk_add_f32 v[{b+4}:{b+5}], v[{b+4}:{b+5}], v[{b+6}:{b+7}]')
        a(f'v_mov_b32 v{q+2}, s50')
        a(f'v_mov_b32 v{q+3}, s50')
        a(f'v_cvt_pk_bf16_f32 v{q}, v{b}, v{b+4}')
        a(f'v_cvt_pk_bf16_f32 v{q+1}, v{b+1}, v{b+5}')
        tys = vm.issue(f'buffer_store_dwordx4 v[{q}:{q+3}], v3, s[16:19], s38 offen sc1')
        if j < 3: a('s_add_u32 s38, s38, 0x1000')
    stamp('ytst')
    a('v_mov_b32 v22, v4')
    a('v_mov_b32 v23, v14')
    a('v_mov_b32 v60, v5')
    slow(3)
    a('v_mov_b32 v5, v60')
    if MAT: mod_final(); raw(7, 's51')
    if MAT == 2: a('s_barrier')
    for _ in range(P.get('e2', 6)): early.popleft()()
    a('s_lshl_b32 s35, s3, 10')
    a(f's_add_u32 s35, s35, {hex(MODT)}')
    a('s_add_u32 s34, s35, 0x1000')
    a('s_add_u32 s4, s35, 0x2000')
    mloads = [f'buffer_load_dwordx4 v[{104+4*r}:{107+4*r}], v15, s[16:19], s{(35, 34, 4)[r]} offen sc1' for r in range(3)]
    a('v_lshrrev_b32 v4, 2, v0')
    a(f'v_mul_u32_u24 v3, {2*YS}, v5')
    a('v_lshl_add_u32 v3, v4, 2, v3')
    a(f'v_add_u32 v3, {XG}, v3')
    a(f's_mul_i32 s46, s3, {2*YS}')
    a(f's_add_u32 s46, s46, {XG}')
    a('v_add_u32 v4, s46, v15')
    a('s_lshl_b32 s46, s3, 1')
    a('v_xor_b32 v5, s46, v6')
    a('v_lshlrev_b32 v5, 4, v5')
    a('v_lshl_add_u32 v5, v1, 7, v5')
    a(f'v_add_u32 v5, {XH}, v5')
    a('v_xor_b32 v16, 16, v5')
    a('v_lshrrev_b32 v17, 3, v1')
    a('v_xor_b32 v18, v17, v6')
    a('v_lshlrev_b32 v18, 4, v18')
    a('v_lshl_add_u32 v18, v17, 7, v18')
    a('s_lshl_b32 s46, s3, 11')
    a(f's_add_u32 s46, s46, {XH}')
    a('v_add_u32 v18, s46, v18')
    a('v_lshlrev_b32 v17, 9, v17')
    a('v_lshl_add_u32 v17, v6, 4, v17')
    a('s_lshr_b32 s46, s32, 2')
    a('s_lshl_b32 s46, s46, 15')
    a('s_and_b32 s47, s32, 3')
    a('s_lshl_b32 s47, s47, 7')
    a('s_add_u32 s46, s46, s47')
    a('s_lshl_b32 s47, s3, 13')
    a('s_add_u32 s46, s46, s47')
    a(f's_add_u32 s46, s46, {hex(H2)}')
    a('s_add_u32 s47, s46, 0x1000')
    a(f's_add_u32 s37, s33, {hex(X1)}')
    a('v_lshrrev_b32 v14, 2, v0')
    a(f'v_mul_u32_u24 v14, {YP}, v14')
    a('v_and_b32 v19, 3, v0')
    a('v_lshl_add_u32 v14, v19, 4, v14')
    a('s_lshl_b32 s24, s32, 6')
    a(f's_add_u32 s26, s24, {hex(YT)}')
    a(f's_add_u32 s27, s26, {64*YP}')
    a(f's_add_u32 s5, s26, {128*YP}')
    a(f's_add_u32 s6, s26, {192*YP}')
    X = (64, 160)
    vm.need(tx)
    subs = []
    for t in range(2):
        s = Asm(); unpack8(s, X[t], 232+4*t, 40); ln2p(s, X[t], X[t]+8, X[t]+16, 24+t)
        subs.append(s)
    zipl(a, *subs)
    stamp('ln1')
    yloads = [f'buffer_load_dwordx4 v[{24+4*j}:{27+4*j}], v14, s[16:19], s{(26, 27, 5, 6)[j]} offen sc1' for j in range(4)]
    vm.need(tys)
    stamp('ytack')
    for l in yloads: ty = vm.issue(l)
    for l in mloads: tm = vm.issue(l)
    poll('yt', yloads, [26, 30, 34, 38], pre=ty)
    stamp('ytok'); raw(2, 's51')
    for j in range(4):
        a(f'ds_write_b32 v3, v{24+4*j} offset:{256*j}')
        a(f'ds_write_b32 v3, v{25+4*j} offset:{256*j+YS}')
    poll('md', mloads, [106, 110, 114], pre=tm)
    stamp('mdok'); raw(1, 's51')
    for r in range(3): a(f'ds_write_b64 v22, v[{104+4*r}:{105+4*r}] offset:{2048*r}')
    a('s_waitcnt lgkmcnt(0)')
    a('s_barrier')
    stamp('ybar')
    ptok = {}
    def p2dma(k):
        a(f's_add_u32 m0, s49, {SEG[0][1] + 2048*(k % 15)}')
        if k and k % 4: a(f's_add_u32 s48, s48, {16*3584}')
        elif k: step('s48', 16*3584, 's100', 512*3584)
        ptok[k] = vm.issue('buffer_load_dwordx4 v7, s[20:23], s48 offen lds')
    a(f's_add_u32 s100, s48, {512*3584}')
    a(f's_mul_i32 s36, s98, {64*3584}')
    a('s_add_u32 s48, s48, s36')
    for _ in range(P.get('e3', 3)): early.popleft()()
    NSY = P.get('nsy', 0)
    for k in range(NSY): p2dma(k)
    for i, off in enumerate((1024, 0, 2048)):
        a(f'ds_read_b128 v[{40+4*i}:{43+4*i}], v13 offset:{off}')
    a('ds_read_b128 v[24:27], v4')
    a(f'ds_read_b128 v[28:31], v4 offset:{YS}')
    for i, off in enumerate((4096, 3072)):
        a(f'ds_read_b128 v[{52+4*i}:{55+4*i}], v13 offset:{off}')
    a('ds_read_b128 v[124:127], v23')
    a('ds_read_b128 v[116:119], v23 offset:32')
    a('s_waitcnt lgkmcnt(7)')
    unpack8(a, 128, 40, 40); unpack8(a, 136, 44, 40)
    for t in range(2):
        for p in range(4):
            d = X[t]+8+2*p
            a(f'v_pk_fma_f32 v[{d}:{d+1}], v[{d}:{d+1}], v[{128+2*p}:{129+2*p}], v[{136+2*p}:{137+2*p}]')
    a('s_waitcnt lgkmcnt(6)')
    unpack8(a, 144, 48, 40)
    for t in range(2):
        for p in range(4):
            d = X[t]+8+2*p
            a(f'v_pk_mul_f32 v[{d}:{d+1}], v[{d}:{d+1}], v[{144+2*p}:{145+2*p}]')
    a('s_waitcnt lgkmcnt(0)')
    unpack8(a, 128, 52, 40); unpack8(a, 136, 56, 40)
    subs = []
    for t in range(2):
        s = Asm(); x = X[t]
        unpack8(s, x+20, 24+4*t, 40)
        for p in range(4):
            s(f'v_pk_fma_f32 v[{x+2*p}:{x+2*p+1}], v[{x+8+2*p}:{x+9+2*p}], v[{x+20+2*p}:{x+21+2*p}], v[{x+2*p}:{x+2*p+1}]')
        for j in range(4): s(f'v_cvt_pk_bf16_f32 v{32+4*t+j}, v{x+2*j}, v{x+2*j+1}')
        s(f'buffer_store_dwordx4 v[{32+4*t}:{35+4*t}], v15, s[16:19], s37 offen offset:{1024*t} sc1')
        unpack8(s, x, 32+4*t, 40)
        (ln1p if P.get('l1', 1) else ln2p)(s, x, x+8, x+16, 24+2*t)
        for p in range(4):
            s(f'v_pk_fma_f32 v[{x+8+2*p}:{x+9+2*p}], v[{x+8+2*p}:{x+9+2*p}], v[{128+2*p}:{129+2*p}], v[{136+2*p}:{137+2*p}]')
        for j in range(4): s(f'v_cvt_pk_bf16_f32 v{40+4*t+j}, v{x+8+2*j}, v{x+9+2*j}')
        s(f'ds_write_b128 v{(5, 16)[t]}, v[{40+4*t}:{43+4*t}]')
        subs.append(s)
    zipl(a, *subs)
    vm.issued += 2
    a('s_waitcnt lgkmcnt(0)')
    a('s_barrier')
    stamp('hbar')
    a('ds_read_b128 v[24:27], v18')
    a('ds_read_b128 v[28:31], v18 offset:1024')
    a('s_and_b32 s24, s32, 31')
    a('s_lshl_b32 s24, s24, 4')
    a('s_lshl_b32 s25, s3, 2')
    a('s_add_u32 s33, s24, s25')
    a('s_and_b32 s25, s30, 1')
    a('s_lshl_b32 s25, s25, 8')
    a('s_lshl_b32 s26, s3, 6')
    a('s_add_u32 s25, s25, s26')
    a('v_and_b32 v19, 15, v1')
    a('v_lshlrev_b32 v19, 2, v19')
    if M2:
        a('s_lshl_b32 s25, s3, 2')
        a('s_lshl_b32 s24, s32, 7')
        a('s_add_u32 s24, s24, s25')
        a(f's_add_u32 s24, s24, {hex(FL1)}')
        a('s_lshl_b32 s33, s30, 4')
        a('s_or_b32 s33, s33, s31')
        a('s_lshl_b32 s33, s33, 7')
        a('s_add_u32 s33, s33, s25')
        a(f's_add_u32 s33, s33, {hex(FL2)}')
        a('s_lshl_b32 s26, s30, 4')
        a('s_add_u32 s26, s26, s25')
        a('s_lshl_b32 s26, s26, 7')
        a(f's_add_u32 s97, s26, {hex(FL1)}')
        a('s_lshr_b32 s26, s32, 4')
        a('s_lshl_b32 s26, s26, 4')
        a('s_add_u32 s26, s26, s25')
        a('s_lshl_b32 s26, s26, 7')
        a(f's_add_u32 s25, s26, {hex(FL2)}')
        a('v_bfe_u32 v19, v1, 2, 2')
        a('v_and_b32 v22, 3, v1')
        a('v_lshlrev_b32 v22, 2, v22')
        a('v_lshl_add_u32 v19, v19, 7, v22')
    def flag(F):
        if not M2:
            if PM: a('s_mov_b64 exec, 1')
            t = lstore([f'buffer_store_dword v20, v21, s[52:55], s33 offen offset:{F}'])
            if PM: a('s_mov_b64 exec, -1')
            return t
        if F == F3: a(f's_add_u32 s33, s33, {FL3-FL2}')
        return vm.issue(f'buffer_store_dword v20, v21, s[16:19], {"s24" if F == F1 else "s33"} offen sc1')
    def look(F):
        if not M2: return [f'buffer_load_dword v22, v{19 if F == F1 else 13}, s[52:55], s25 offen offset:{F} sc1']
        return [f'buffer_load_dword v22, v{19 if F == F1 else 13}, s[16:19], {"s97" if F == F1 else "s25"} offen sc1']
    a('s_waitcnt lgkmcnt(0)')
    lstore(['buffer_store_dwordx4 v[24:27], v17, s[16:19], s46 offen', 'buffer_store_dwordx4 v[28:31], v17, s[16:19], s47 offen'], P.get('h2s', M2))
    stamp('h2st')
    a('v_bfe_u32 v4, v1, 4, 1')
    a('v_lshrrev_b32 v5, 5, v1')
    a('v_bfe_u32 v22, v1, 2, 2')
    a('v_and_b32 v23, 3, v1')
    a('v_lshlrev_b32 v23, 3, v23')
    a('v_lshl_add_u32 v3, v5, 3, v22')
    a('v_bfe_u32 v13, v1, 3, 1')
    a('v_lshlrev_b32 v16, 7, v3')
    a('v_add_u32 v16, v16, v23')
    a('v_lshl_add_u32 v16, v13, 6, v16')
    a('v_lshl_add_u32 v16, v4, 5, v16')
    a(f'v_mul_u32_u24 v17, {SEG[0][2]-SEG[0][1]}, v4')
    a(f'v_add_u32 v17, {SEG[0][1]}, v17')
    a(f'v_mul_u32_u24 v18, {P1U}, v4')
    for ct in range(4):
        a(f'v_xor_b32 v14, {32*ct}, v16')
        a(f'v_add_u32 v{246+ct}, v14, v17')
    a('v_mul_u32_u24 v3, 0x60, v3')
    a('v_add_u32 v3, v3, v23')
    a('v_add_u32 v18, v18, v3')
    a('v_lshl_add_u32 v3, v5, 2, v22')
    a('v_lshlrev_b32 v3, 7, v3')
    a('v_lshl_add_u32 v3, v13, 6, v3')
    a('v_lshl_add_u32 v3, v4, 5, v3')
    a('v_add_u32 v3, v3, v23')
    a('s_lshl_b32 s26, s3, 11')
    a('s_and_b32 s27, s3, 1')
    a('s_lshl_b32 s27, s27, 6')
    a('v_xor_b32 v3, s27, v3')
    a('v_add_u32 v240, s26, v3')
    a('v_xor_b32 v241, 64, v240')
    for i in range(1, 3):
        a(f'v_add_u32 v{240+2*i}, {65536*i}, v240')
        a(f'v_add_u32 v{241+2*i}, {65536*i}, v241')
    a(f's_mov_b32 s44, {fh(GC2)}'); a(f's_mov_b32 s45, {fh(GC2)}')
    a(f'v_mov_b32 v2, {fh(GC1)}'); a(f'v_mov_b32 v3, {fh(GC1)}')
    a('s_lshl_b32 s27, s30, 2')
    a('s_add_u32 s27, s27, s3')
    a('s_lshl_b32 s28, s27, 15')
    a(f's_add_u32 s28, s28, {hex(H2)}')
    a('v_add_u32 v14, s28, v15')
    a('s_lshl_b32 s28, s98, 12')
    a('s_waitcnt vmcnt(0)'); vm.done = vm.issued
    stamp('h2dr')
    flag(F1)
    while early: early.popleft()()
    NS0 = P.get('ns0', 0) + NSY
    for k in range(NSY, NS0): p2dma(k)
    a('s_mul_i32 s29, s27, 112')
    AP = 1024 if M2 else YP
    if M2:
        a('s_lshl_b32 s47, s31, 2')
        a('s_add_u32 s47, s47, s29')
        a('s_lshl_b32 s47, s47, 10')
        a(f's_add_u32 s47, s47, {hex(ACT)}')
    else:
        a('s_lshl_b32 s47, s3, 4')
        a('s_add_u32 s47, s47, s31')
        a(f's_mul_i32 s47, s47, {4*YP}')
        a('s_lshl_b32 s4, s30, 10')
        a(f's_add_u32 s4, s4, {hex(YT)}')
        a('s_add_u32 s47, s47, s4')
    a('s_mul_i32 s46, s31, 3')
    a('s_add_u32 s46, s46, s29')
    a('s_lshl_b32 s46, s46, 10')
    a(f's_add_u32 s46, s46, {hex(ACT + 64*1024)}')
    a('s_lshr_b32 s39, s32, 3')
    a('s_and_b32 s35, s39, 1')
    a(f's_and_b32 s34, s39, {P.get("wrot", 0)}')
    a('s_and_b32 s24, s32, 7')
    a('s_lshl_b32 s24, s24, 7')
    if RL:
        a(f's_add_u32 s8, s58, {hex(WD2)}')
        a('s_addc_u32 s9, s59, 0')
        a('s_mul_i32 s24, s24, 1792')
    a(f's_mul_i32 s37, s3, {12*WS_}')
    a('s_add_u32 s37, s37, s24')
    a(f's_add_u32 s30, s37, {76*WS_}')
    a(f's_mul_i32 s36, s34, {3*WS_}')
    a('s_add_u32 s37, s37, s36')
    a(f's_add_u32 s37, s37, {64*WS_}')
    a(f's_mul_i32 s38, s3, {16*WS_}')
    a('s_add_u32 s38, s38, s24')
    a(f's_add_u32 s31, s38, {16*WS_}')
    a(f's_mul_i32 s36, s34, {4*WS_}')
    a('s_add_u32 s38, s38, s36')
    if M2:
        a(f's_mul_i32 s4, s39, {224*1024}')
        a('s_lshl_b32 s6, s3, 14')
        a('s_add_u32 s6, s6, s4')
        a(f's_add_u32 s6, s6, {hex(ACT)}')
    else:
        a('s_lshl_b32 s6, s35, 3')
        a('s_add_u32 s6, s6, s3')
        a(f's_mul_i32 s6, s6, {16*YP}')
        a('s_add_u32 s6, s6, s4')
    a(f's_add_u32 s42, s6, {16*AP}')
    a(f's_mul_i32 s36, s34, {4*AP}')
    a('s_add_u32 s6, s6, s36')
    a(f's_mul_i32 s4, s39, {224*1024}')
    a(f's_mul_i32 s5, s3, {12*1024}')
    a('s_add_u32 s5, s5, s4')
    a(f's_add_u32 s5, s5, {hex(ACT + 64*1024)}')
    a(f's_add_u32 s41, s5, {12*1024}')
    a(f's_mul_i32 s36, s34, {3*1024}')
    a('s_add_u32 s5, s5, s36')
    a('s_lshl_b32 s39, s39, 16')
    a('s_and_b32 s24, s32, 7')
    a('s_lshl_b32 s24, s24, 7')
    a('s_add_u32 s39, s39, s24')
    a('v_bfe_u32 v4, v1, 1, 2')
    a('v_and_b32 v5, 1, v1')
    a('v_lshlrev_b32 v5, 2, v5')
    a(f'v_lshl_add_u32 v4, v4, {7 if M2 else 4}, v5')
    a('s_lshl_b32 s35, s35, 3')
    a('v_add_u32 v13, s35, v4')
    a('s_cmp_ge_u32 s3, 2')
    for r, (reg0, reg1, dist) in enumerate(((250, 16, 112*1024), (251, 17, 112*1024 if M2 else 64*YP))):
        a(f's_cselect_b32 s36, {dist}, 0')
        a(f'v_add_u32 v{reg0}, s36, v15')
        a(f's_cselect_b32 s36, 0, {dist}')
        a(f'v_add_u32 v{reg1}, s36, v15')
    a('v_lshlrev_b32 v73, 7, v1')
    a('s_lshl_b32 s34, s2, 2')
    a('s_add_u32 s34, s34, s3')
    a(f's_mul_i32 s34, s34, {14*128}')
    poll('f1', look(F1), [22], mask=0xffff)
    stamp('f1ok'); raw(3, 's51')
    htok = {}
    def h2load(ks):
        htok[ks] = vm.issue(f'buffer_load_dwordx4 a[{4*ks}:{4*ks+3}], v14, s[16:19], s28 offen offset:{1024*(ks&3)} sc1')
        if (ks & 3) == 3:
            a('s_add_u32 s28, s28, 0x1000'); a('s_and_b32 s28, s28, 0x7fff')
    NH0 = P.get('nh0', 8)
    for ks in range(NH0): h2load(ks)
    slow(4)
    a('s_barrier')
    stamp('b0')
    wtok, atok = {}, {}
    def wd0(i):
        so = 's37' if i < 12 else 's38'
        a(f's_add_u32 m0, s26, {8192*WBL[i]}')
        if i not in (0, 12): a(f's_add_u32 {so}, {so}, {WS_}')
        vm.issue(f'buffer_load_dwordx4 v8, s[8:11], {so} offen lds')
    def wd1(i):
        wtok[i] = vm.issue(f'buffer_load_dwordx4 v9, s[8:11], {"s37" if i < 12 else "s38"} offen offset:1024 lds')
    def wreg(i): return ('v', 72 + 8*i) if i < 5 else ('a', 224 + 8*(i-5)) if i < 8 else ('v', AR + 8*(i % 3))
    def wread(i, mt, jj):
        kind, d = wreg(i); ad = 8192*WBL[i]
        return f'ds_read_b64_tr_b16 {kind}[{d+4*mt+2*jj}:{d+4*mt+2*jj+1}], v{240+2*(ad>>16)+mt} offset:{(ad & 0xffff)+1024*jj}'
    def abase(i): return 128 + 8*i if i < 12 else 8*(i-12)
    def act0(i):
        b = abase(i)
        if i < 12:
            if i and i % 4 == 0: a('s_add_u32 s5, s5, 0x1000')
            vm.issue(f'buffer_load_dwordx4 a[{b}:{b+3}], v250, s[16:19], s5 offen offset:{1024*(i & 3)} sc1')
        else:
            if i > 12: a(f's_add_u32 s6, s6, {AP}')
            vm.issue(f'buffer_load_dwordx4 a[{b}:{b+3}], v251, s[16:19], s6 offen sc1')
    def act1(i):
        b = abase(i)
        if i < 12: atok[i] = vm.issue(f'buffer_load_dwordx4 a[{b+4}:{b+7}], v16, s[16:19], s5 offen offset:{1024*(i & 3)} sc1')
        else: atok[i] = vm.issue(f'buffer_load_dwordx4 a[{b+4}:{b+7}], v17, s[16:19], s6 offen sc1')
    valu = deque()
    AR, NA = 24, 6
    ACC1, ACC2 = 192, 128
    pipe = LdsPipe(a)
    steps = [(0, k, ct) for k in range(32) for ct in range(2)] + [(0, k, 2) for k in range(32)] + [(1, k, ct) for k in range(32) for ct in range(4)]
    tok = {}; nxt = [0]
    def rd(n):
        ps, k, ct = steps[n]; d = AR + 4*(n % NA)
        for jj in range(2):
            b, off = (18, (16*k + 4*jj)*96 + 32*ct) if ps == 0 else (246+ct, 2048*(k % 15) + 512*jj)
            tok[n] = pipe.issue(f'ds_read_b64_tr_b16 v[{d+2*jj}:{d+2*jj+1}], v{b} offset:{off}')
    for n in range(NA-1): rd(n)
    nxt[0] = NA-1
    J = dict(h=NH0, p=NS0, w=0, half=False, a=0, ahalf=False, pmax=15, wmax=0, f2=False, lastp=-99)
    stg = {}
    def wfree(i): return i < J['wmax'] and (not 12 <= i < 20 or stg.get(i - 12, 1 << 30) <= pipe.done)
    def job(n):
        if J['half']: J['half'] = False; wd1(J['w']); J['w'] += 1; return 1
        if J['h'] < 32: h2load(J['h']); J['h'] += 1; return 1
        if J['p'] < J['pmax'] and n - J['lastp'] >= PE: p2dma(J['p']); J['p'] += 1; J['lastp'] = n; return 3
        if J['ahalf']: J['ahalf'] = False; act1(J['a']); J['a'] += 1; return 1
        if J['f2'] and J['a'] < 12 and (J['a'] <= J['w'] - P.get('wa', 8) or not wfree(J['w']) or J['w'] >= 28):
            act0(J['a']); J['ahalf'] = True; return 1
        if J['w'] < 28 and wfree(J['w']) and n >= P.get('ws', 112): wd0(J['w']); J['half'] = True; return 3
        return 0
    VB = P.get('vb', 35); PE = P.get('pe', 3); TE = P.get('te', 15); LW = P.get('lw', 2)
    stok = {}; sg = 0; credit = 0; nb = 0; ta = 0; fload = look(F2); tp = None
    F2P, F2C = P.get('f2p', 999), P.get('f2c', 204)
    def gelu_step(x, n):
        if isinstance(x, tuple):
            stok[x[1]] = vm.issue(f'buffer_store_dwordx4 v[{x[2]}:{x[2]+3}], v15, s[16:19], s46 offen offset:{1024*x[1]} sc1')
            stok['at'] = n
        else: a(x)
    for n, (ps, k, ct) in enumerate(steps):
        if n < 64 and ct == 0:
            while k not in htok: job(n)
            vm.need(htok[k])
        if tok[n] > pipe.done: pipe.need(tok[min(n + LW - 1, len(steps) - 1)])
        d = (ACC1, ACC2)[ps] + 16*ct; c = '0' if k == 0 else f'v[{d}:{d+15}]'
        sa = AR + 4*(n % NA)
        a(f'v_mfma_f32_32x32x16_bf16 v[{d}:{d+15}], v[{sa}:{sa+3}], a[{4*k}:{4*k+3}], {c}')
        if nxt[0] < len(steps): rd(nxt[0]); nxt[0] += 1
        credit = min(credit + VB, P.get('cap', 40))
        if n in BARS:
            land, J['pmax'], J['wmax'] = BARS[n][0], J['pmax'], J['wmax']
            if land is not None:
                while land not in ptok:
                    if J['half']: job(n)
                    p2dma(J['p']); J['p'] += 1
                vm.need(ptok[land])
            a('s_barrier')
            J['pmax'], J['wmax'] = BARS[n][1:]
            nb += 1; stamp(f'b{nb}'); credit -= 10
        if n == P.get('wt', 999 if RL else 60):
            a('s_mov_b64 exec, 0x3fff')
            vm.issue('buffer_load_dword v72, v73, s[8:11], s34 offen')
            a('s_mov_b64 exec, -1')
        if n in (65, 97):
            if n == 65: stamp('p1a')
            else: stamp('p1end')
            for t in ((0, 1) if n == 65 else (2,)):
                o = 64 + 4*(t & 1)
                valu.extend(gelu_ops(ACC1+16*t, 48 + 8*(t & 1), o))
                valu.append(('store', t, o))
        ta += 10
        if n == F2P and 'f2' in stok: tp = masked(fload, 0xff); ta = 0
        elif n == F2C and tp is not None:
            poll('f2', fload, [22], pre=tp, mask=0xff); J['f2'] = True
            stamp('f2ok'); raw(4, 's51')
        elif ta >= TE:
            cst = job(n)
            if cst: ta -= TE; credit -= 10*cst
            else: ta = TE
        if n >= P.get('stg', 160) and sg < 32 and pipe.outstanding() <= 13 and credit >= 10 and (not valu or n % 2):
            i, r = divmod(sg, 4)
            if i in wtok and (wtok[i] <= vm.done or vm.issued - wtok[i] >= P.get('sl', 8)):
                vm.need(wtok[i])
                t = pipe.issue(wread(i, r >> 1, r & 1)); sg += 1; credit -= 10
                if r == 3: stg[i] = t
        while valu and credit >= 10*(cost(valu[0]) if isinstance(valu[0], str) else 1):
            x = valu.popleft(); gelu_step(x, n)
            if isinstance(x, str): credit -= 10*cost(x)
        if 2 in stok and 'f2' not in stok and n >= stok['at'] + P.get('fdel', 24):
            vm.need(stok[2])
            stok['f2'] = flag(F2); print('F2 at', n, end='; ')
    while valu: gelu_step(valu.popleft(), 224)
    if 'f2' not in stok:
        vm.need(stok[2])
        stok['f2'] = flag(F2)
    assert J['p'] == 32 and J['h'] == 32
    print('w_down steps', J['w'], 'staged', sg, 'act steps', J['a'])
    while sg < 32:
        i, r = divmod(sg, 4)
        while i not in wtok: job(999)
        vm.need(wtok[i])
        stg[i] = pipe.issue(wread(i, r >> 1, r & 1)); sg += 1
    pipe.need(pipe.issued)
    if tp is None and P.get('fp', 2) < 4: tp = masked(fload, 0xff)
    a('s_mov_b32 s34, 1.0'); a('s_mov_b32 s35, 1.0')
    def geglu2(t):
        s = Asm(); geglu(s, ACC2+16*t, 48, 64 + 4*(t & 1))
        for j, l in enumerate(s.lines):
            a(l.replace('s[46:47]', 's[34:35]'))
            if j % P.get('ge', 8) == 3 and t < P.get('gt', 4): job(999)
        if t: a(f's_add_u32 s47, s47, {AP}')
        return lstore([f'buffer_store_dwordx4 v[{64+4*(t&1)}:{67+4*(t&1)}], v15, s[16:19], s47 offen'], P.get('a2s', M2))
    for t in range(4):
        if t == P.get('fp', 2) and not J['f2']:
            stamp('g1')
            poll('f2', fload, [22], pre=tp, mask=0xff); J['f2'] = True
            stamp('f2ok'); raw(4, 's51')
        if t == 3 and tp is None: tp = masked(fload, 0xff)
        ts3 = geglu2(t)
    stamp('g3')
    a('v_and_b32 v4, 31, v1')
    a('v_lshrrev_b32 v5, 5, v1')
    a('v_lshlrev_b32 v10, 10, v4')
    a('v_lshl_add_u32 v10, v5, 4, v10')
    a('s_lshr_b32 s46, s3, 1')
    a('s_lshl_b32 s46, s46, 15')
    a('s_and_b32 s47, s3, 1')
    a('s_lshl_b32 s47, s47, 6')
    a('s_add_u32 s39, s39, s46')
    a('s_add_u32 s39, s39, s47')
    a(f's_add_u32 s46, s39, {hex(X1)}')
    vm.need(ts3)
    flag(F3)
    if not J['f2']:
        poll('f2', fload, [22], pre=tp, mask=0xff); J['f2'] = True
        stamp('f2ok'); raw(4, 's51')
        while J['a'] < P.get('a1b', 3): job(999)
    if M2: a(f's_add_u32 s25, s25, {FL3-FL2}')
    stamp('estart')
    pipe = LdsPipe(a); tok = {}
    def rd2(i):
        while i not in wtok: job(999)
        vm.need(wtok[i])
        for mt in range(2):
            for jj in range(2): tok[(i, mt)] = pipe.issue(wread(i, mt, jj))
    f3load = look(F3)
    for i in range(8): stg[i] = 0
    F3C = P.get('f3c', 8); JE = P.get('je', 2); tp = None; g = 0; aq = deque()
    for i in range(28):
        stamp(f'e{i}')
        if i == F3C:
            while J['a'] < 12 or J['half']: job(999)
            if tp is None: tp = masked(f3load, 0xff)
            poll('f3', f3load, [22], pre=tp, mask=0xff)
            stamp('f3ok'); raw(5, 's51')
            for ii in range(12, 28): aq.extend([lambda ii=ii: act0(ii), lambda ii=ii: act1(ii)])
            for _ in range(P.get('a2b', 4)): aq.popleft()()
        if i == 22:
            vm.issue('buffer_load_dwordx4 v[72:75], v10, s[16:19], s46 offen sc1')
            tx = vm.issue('buffer_load_dwordx4 v[76:79], v10, s[16:19], s46 offen offset:32 sc1')
        kind, d0 = wreg(i); b = abase(i)
        while i not in atok: (aq.popleft()() if i >= 12 else job(999))
        vm.need(atok[i])
        for mt in range(2):
            if i >= 8: pipe.need(tok[(i, mt)])
            for nt in range(2):
                d = ACC2 + 32*mt + 16*nt; c = '0' if i == 0 else f'v[{d}:{d+15}]'
                a(f'v_mfma_f32_32x32x16_bf16 v[{d}:{d+15}], {kind}[{d0+4*mt}:{d0+4*mt+3}], a[{b+4*nt}:{b+4*nt+3}], {c}')
                g += 1
                if mt == 0 and nt == 0 and 8 <= i+2 < 28: rd2(i+2)
                if g % JE == 0:
                    if aq and not J['half'] and (J['w'] >= 28 or J['w'] > i + P.get('wb', 28)): aq.popleft()()
                    elif tp is None and not J['half'] and J['a'] == 12 and (J['w'] >= 28 or i == F3C - 1): tp = masked(f3load, 0xff)
                    elif not job(999) and aq: aq.popleft()()
    stamp('eend')
    PBL = [None, (WBL[8], WBL[9]), (WBL[10], WBL[11]), (WBL[12], WBL[13])]
    a('v_add_u32 v4, s26, v15')
    a('v_add_u32 v5, 0x10000, v4')
    a('v_add_u32 v18, 0x20000, v4')
    base(a, 12, 56, 0x200000)
    for t in range(1, 4):
        d = ACC2 + 32*(t & 1) + 16*(t >> 1)
        for g in range(4):
            ad = 8192*PBL[t][g >> 1] + 1024*(g & 1)
            a(f'ds_write_b128 v{(4, 5, 18)[ad >> 16]}, v[{d+4*g}:{d+4*g+3}] offset:{ad & 0xffff}')
        a(f's_xor_b32 s6, s26, {2048*t}')
        a(f's_add_u32 s7, s6, {8192*PBL[t][1]}')
        a(f's_add_u32 s6, s6, {8192*PBL[t][0]}')
        a(f'v_add_u32 v{88+2*t}, s6, v15')
        a(f'v_add_u32 v{89+2*t}, s7, v15')
    vm.need(tx)
    unpack8(a, 96, 124, 40); unpack8(a, 104, 116, 40); unpack8(a, 48, 72, 40); unpack8(a, 56, 76, 40)
    a('s_waitcnt lgkmcnt(0)')
    a('s_barrier')
    stamp('ebar')
    for i in range(1, 4):
        for g in range(4):
            a(f'ds_read_b128 v[{128+16*i+4*g}:{131+16*i+4*g}], v{88+2*i+(g >> 1)} offset:{1024*(g & 1)}')
    for i in range(1, 4):
        a(f's_waitcnt lgkmcnt({12-4*i})')
        for p in range(8): a(f'v_pk_add_f32 v[{128+2*p}:{129+2*p}], v[{128+2*p}:{129+2*p}], v[{128+16*i+2*p}:{129+16*i+2*p}]')
    for g in range(2):
        b = 128 + 8*g
        for r in range(4): a(f'v_permlane32_swap_b32 v{b+r}, v{b+4+r}')
        for p in range(4): a(f'v_pk_fma_f32 v[{b+2*p}:{b+2*p+1}], v[{b+2*p}:{b+2*p+1}], v[{96+8*g+2*p}:{97+8*g+2*p}], v[{48+8*g+2*p}:{49+8*g+2*p}]')
        for p in range(4): a(f'v_cvt_pk_bf16_f32 v{40+4*g+p}, v{b+2*p}, v{b+2*p+1}')
        a(f'buffer_store_dwordx4 v[{40+4*g}:{43+4*g}], v10, s[12:15], s39 offen offset:{32*g}' + ('', ' sc1', ' nt')[P.get('ost', 0)])
    a('s_or_b32 s4, s2, s3')
    a('s_cmp_lg_u32 s4, 0')
    a('s_cbranch_scc1 L_noep')
    a(f's_mov_b32 s4, {hex(EPOCH)}')
    a('buffer_store_dword v20, v21, s[16:19], s4 offen')
    a.label('L_noep')
    if P.get('probe') is not None:
        a('s_waitcnt vmcnt(0)')
        stamp('end')
        a('s_waitcnt lgkmcnt(0)')
        k = P['probe']
        if k >= 200:
            a(f's_add_u32 s4, s58, {hex(EPOCH + 0x100)}')
            a('s_addc_u32 s5, s59, 0')
            a('s_load_dwordx4 s[92:95], s[4:5], 0')
            a('s_waitcnt lgkmcnt(0)')
            a('s_cmp_eq_u64 s[92:93], s[94:95]')
            a('s_cselect_b32 s92, 10000, 0' if k == 200 else 's_cselect_b32 s92, 0, 10000')
            a('s_add_u32 s92, s92, s70')
        elif k >= 100:
            a(f's_mov_b32 s36, {hex(0x140A000)}')
            a('buffer_load_dwordx4 v[24:27], v15, s[16:19], s36 offen sc1')
            a('s_waitcnt vmcnt(0)')
            for r, op in ((28, 'min'), (29, 'max')):
                a(f'v_{op}_u32 v{r}, v24, v25')
                a(f'v_{op}3_u32 v{r}, v{r}, v26, v27')
                for ctl in ('row_ror:1', 'row_ror:2', 'row_ror:4', 'row_ror:8'):
                    a(f'v_{op}_u32_dpp v{r}, v{r}, v{r} {ctl} row_mask:0xf bank_mask:0xf')
                for i in range(4): a(f'v_readlane_b32 s{4+i}, v{r}, {16*i}')
                a(f's_{op}_u32 s4, s4, s5'); a(f's_{op}_u32 s6, s6, s7'); a(f's_{op}_u32 s{r+62}, s4, s6')
            if k == 100: a('s_add_u32 s92, s90, 6000')
            elif k == 101:
                a('s_sub_u32 s92, s91, s90'); a('s_lshl_b32 s92, s92, 2'); a('s_add_u32 s92, s92, s90'); a('s_add_u32 s92, s92, 4000')
            else:
                a(f's_sub_u32 s92, s{60+2*(k-110)}, s90'); a('s_lshl_b32 s92, s92, 2'); a('s_add_u32 s92, s92, s90'); a('s_add_u32 s92, s92, 4000')
        elif k == 0:
            a('s_add_u32 s92, s60, 6000')
        else:
            a(f's_sub_u32 s92, s{60+2*k}, s60')
            a('s_lshl_b32 s92, s92, 2')
            a('s_add_u32 s92, s92, s60')
            a('s_add_u32 s92, s92, 4000')
        a.label('L_probe')
        a('s_memrealtime s[94:95]')
        a('s_waitcnt lgkmcnt(0)')
        a('s_sub_u32 s94, s94, s92')
        a('s_cmp_lt_i32 s94, 0')
        a('s_cbranch_scc1 L_probe')
    elif P.get('stamps'):
        a('s_waitcnt vmcnt(0)')
        stamp('end')
        a('s_cmp_lg_u32 s3, 0')
        a('s_cbranch_scc1 L_end')
        a('s_lshl_b32 s94, s2, 7')
        a(f's_add_u32 s94, s94, {hex(TS)}')
        a('s_add_u32 s92, s58, s94')
        a('s_addc_u32 s93, s59, 0')
        a('v_lshlrev_b32 v250, 2, v1')
        a('s_lshl_b32 s94, s2, 8')
        a(f's_add_u32 s94, s94, {hex(TS + 0x80000)}')
        a('s_add_u32 s94, s58, s94')
        a('s_addc_u32 s95, s59, 0')
        a('global_store_dword v250, v254, s[94:95]')
        a('s_mov_b64 exec, 1')
        if P.get('dbg'):
            a('s_load_dwordx2 s[94:95], s[0:1], 104')
        a('s_waitcnt lgkmcnt(0)')
        if P.get('dbg'):
            a('s_not_b32 s60, s60')
            for m in sorted(marks):
                a(f'v_mov_b32 v250, s{60+2*m}')
                a(f'global_atomic_umax v21, v250, s[94:95] offset:{4*m}')
                a('s_nop 1')
            a('s_not_b32 s60, s60')
        for m in sorted(marks):
            a(f'v_mov_b32 v250, s{60+2*m}')
            a(f'v_mov_b32 v251, s{61+2*m}')
            a(f'global_store_dwordx2 v21, v[250:251], s[92:93] offset:{8*m}')
            a('s_nop 1')
    a.label('L_end')
    a.label('L_last')
    a('s_endpgm')
    return dict(grid=256, block=256, lds=163840, vgpr=512, accum=256)
```

```python
from collections import deque
from asmlib import *
from k123 import fh, lo, hi, unpack8, ln_stats, LdsPipe, A_OUT, A_WS
from k45 import VmPipe, GC1, GC2, geglu
from cde import zipl, gelu_ops, cost

UT, YT, X1, H2, ACT = 0, 0x400000, 0x900000, 0, 0xD00000
MODT, EPOCH, GRP, MP, TS = 0x1400000, 0x1408000, 0x1410000, 0x1480000, 0x1500000
YP = 16384 + 128
XID, UH, F1, F2, F3 = 0, 128, 1024, 1536, 2048
P1U = 49280
SEG = [(0, 98432, 129152), (15, 0, 49280), (27, 24576, 73856)]
CB, CHS, KB, U0, U1 = 98432, 12992, 512, 4608, 8768
PB = CB + 2*CHS
PRM = PB + 32768
MPART = PRM + 6144
XG = 129152 + 112*128
YS = 1040
XH = XG + 8*YS
PS = 272
SPIN = 1 << 15
WBL = list(range(12)) + list(range(8)) + [13, 17, 14, 18, 12, 15, 16, 19]
BARS = {89: (5, 15, 0), 111: (9, 19, 20), 127: (13, 23, 20), 143: (17, 27, 20), 159: (21, 31, 20), 175: (25, 32, 20),
        191: (29, 32, 22), 207: (31, 32, 24), 223: (None, 32, 28)}
assert MPART + 512 <= 163840 and XH + 8192 <= 163840
def seg_of(k): return SEG[0] if k < 15 else SEG[1] if k < 27 else SEG[2]

def base(a, d, p, n):
    a(f's_mov_b32 s{d}, s{p}'); a(f's_mov_b32 s{d+1}, s{p+1}'); a(f's_mov_b32 s{d+2}, {hex(n)}')

FL1, FL2, FL3 = 0x1420000, 0x1428000, 0x1430000
def ln1p(a, X, D, T, s0):
    a(f'v_pk_add_f32 v[{T}:{T+1}], v[{X}:{X+1}], v[{X+2}:{X+3}]')
    a(f'v_pk_mul_f32 v[{T+2}:{T+3}], v[{X}:{X+1}], v[{X}:{X+1}]')
    a(f'v_pk_add_f32 v[{D}:{D+1}], v[{X+4}:{X+5}], v[{X+6}:{X+7}]')
    for p in range(1, 4):
        a(f'v_pk_fma_f32 v[{T+2}:{T+3}], v[{X+2*p}:{X+2*p+1}], v[{X+2*p}:{X+2*p+1}], v[{T+2}:{T+3}]')
    a(f'v_pk_add_f32 v[{T}:{T+1}], v[{T}:{T+1}], v[{D}:{D+1}]')
    a(f'v_add_f32 v{T+2}, v{T+2}, v{T+3}')
    a(f'v_add_f32 v{T}, v{T}, v{T+1}')
    for ctl in ('row_shr:1', 'row_shr:2', 'row_shr:4', 'row_shr:8'):
        for r in (T+2, T): a(f'v_add_f32_dpp v{r}, v{r}, v{r} {ctl} row_mask:0xf bank_mask:0xf bound_ctrl:1')
    for ctl in ('row_bcast:15 row_mask:0xa', 'row_bcast:31 row_mask:0xc'):
        for r in (T+2, T): a(f'v_add_f32_dpp v{r}, v{r}, v{r} {ctl} bank_mask:0xf')
    a(f'v_readlane_b32 s{s0+1}, v{T+2}, 63')
    a(f'v_readlane_b32 s{s0}, v{T}, 63')
    a(f'v_mov_b32 v{T+1}, {fh(1.0/512)}')
    a(f'v_mov_b32 v{T+3}, {fh(1e-5)}')
    a(f'v_mul_f32 v{T}, s{s0}, v{T+1}')
    a(f'v_fmac_f32 v{T+3}, s{s0+1}, v{T+1}')
    a(f'v_fma_f32 v{T+2}, -v{T}, v{T}, v{T+3}')
    a(f'v_max_f32 v{T+2}, {fh(1e-5)}, v{T+2}')
    a(f'v_rsq_f32 v{T+2}, v{T+2}')
    for p in range(4):
        a(f'v_pk_add_f32 v[{D+2*p}:{D+2*p+1}], v[{X+2*p}:{X+2*p+1}], v[{T}:{T+1}] op_sel:[0,0] op_sel_hi:[1,0] neg_lo:[0,1] neg_hi:[0,1]')
    for p in range(4):
        a(f'v_pk_mul_f32 v[{D+2*p}:{D+2*p+1}], v[{D+2*p}:{D+2*p+1}], v[{T+2}:{T+3}] op_sel:[0,0] op_sel_hi:[1,0]')
def ln2p(s, X, D, T, s0):
    ln_stats(s, X, D, T, s0)
    for p in range(4):
        s(f'v_pk_mul_f32 v[{D+2*p}:{D+2*p+1}], v[{D+2*p}:{D+2*p+1}], v[{T}:{T+1}] op_sel:[0,0] op_sel_hi:[1,0]')

def mega(a, P):
    M2 = P.get('m2', 0)
    RL = P.get('rl', 1)
    WD2, WS_ = 0x200000, (2048 if RL else 0x4000)
    H2 = 0xB00000 if M2 else 0
    marks = set()
    SETS = {1: 'start kv0 utst utok bbar end bend ytst ytok h2dr b0 p1end b9 estart f3ok eend',
            2: 'start kv0 kvN abar utst end ut1st uhok utok bbar bend pbar ytst ytack ytok mdok',
            3: 'start ytst ln1 ytack ytok end ybar hbar h2st h2dr f1ok b0 b1 b2 b3 p1end',
            6: 'start b0 p1a p1end b2 end b3 b4 b5 b6 b7 b8 b9 f2ok g3 estart',
            7: 'start estart e2 e4 e6 end f3ok e8 e10 e12 e14 e16 e20 e24 eend ebar',
            8: 'start x1 x2 x3 x4 end',
            5: 'start karg x2 x3 x4 end x6 x7 x8 x9 x10 x11 x12 kv0 issued pre',
            4: 'start p1end b5 b6 b7 end b8 g1 f2ok g3 estart e12 f3ok e20 eend ebar'}
    names = SETS[P.get('stamps', 1)].split()
    def stamp(name):
        if P.get('stamps') and name in names:
            slot = names.index(name)
            a(f's_memrealtime s[{60+2*slot}:{61+2*slot}]'); marks.add(slot)
    def raw(i, sreg):
        if P.get('stamps'): a(f'v_writelane_b32 v254, {sreg}, {i}')
    vm = VmPipe(a)
    NT = ' nt' if P.get('nt', 1) else ''
    nst = [0]
    def lstore(lines, through=False):
        if through:
            for l in lines: t = vm.issue(l + ' sc1')
            return t
        return lstore2(lines)
    def lstore2(lines):
        n = nst[0]; nst[0] += 1
        a('s_cmp_eq_u32 s101, 0')
        a(f's_cbranch_scc1 L_ls{n}a')
        for l in lines: a(l + ' sc1')
        a(f's_branch L_ls{n}b')
        a.label(f'L_ls{n}a')
        for l in lines: t = vm.issue(l)
        a.label(f'L_ls{n}b')
        return t
    SL = P.get('sleep', 1); PM = P.get('pm', 1)
    def masked(lines, mask):
        if mask and PM: a(f's_mov_b64 exec, {hex(mask)}')
        for l in lines: t = vm.issue(l)
        if mask and PM: a('s_mov_b64 exec, -1')
        return t
    def poll(name, loads, tags, pre=None, mask=None):
        a(f's_mov_b32 s51, {SPIN}')
        if pre is not None:
            vm.need(pre)
            stamp(name + '1st')
        if mask and PM: a(f's_mov_b64 exec, {hex(mask)}')
        a(f's_branch L_{name}_chk' if pre is not None else f's_branch L_{name}_go')
        a.label(f'L_{name}')
        if SL: a(f's_sleep {SL}')
        a.label(f'L_{name}_go')
        for l in loads: a(l)
        a('s_waitcnt vmcnt(0)')
        a.label(f'L_{name}_chk')
        a(f'v_cmp_ne_u32 vcc, s50, v{tags[0]}')
        for i, t in enumerate(tags[1:]): a(f'v_cmp_ne_u32 s[{92+2*i}:{93+2*i}], s50, v{t}')
        a('s_sub_u32 s51, s51, 1')
        a(f's_cbranch_scc1 L_{name}_ok')
        for i in range(len(tags)-1): a(f's_or_b64 vcc, vcc, s[{92+2*i}:{93+2*i}]')
        a(f's_cbranch_vccnz L_{name}')
        a.label(f'L_{name}_ok')
        if mask and PM: a('s_mov_b64 exec, -1')
        if pre is None: vm.done = vm.issued

    a('s_cmp_ge_u32 s2, 256')
    a('s_cbranch_scc1 L_end')
    stamp('start')
    if P.get('stamps'): a('v_mov_b32 v254, 0')
    a('s_load_dwordx16 s[64:79], s[0:1], 0')
    if P.get('cpf', 1):
        a('s_getpc_b64 s[4:5]')
        a.label('L_pc')
        a('v_lshlrev_b32 v3, 7, v0')
        a('v_mov_b32 v5, s5')
        a('v_add_co_u32 v4, vcc, s4, v3')
        a(f'v_cmp_gt_u32 s[6:7], {P.get("cpn", 16)}, v0')
        a('v_and_b32 v1, 63, v0')
        a('v_addc_co_u32 v5, vcc, 0, v5, vcc')
        a('s_and_b64 exec, exec, s[6:7]')
        a('s_cbranch_execz L_nopf')
        a('global_load_dword v169, v[4:5], off')
        a.label('L_nopf')
        a('s_mov_b64 exec, -1')
    else: a('v_and_b32 v1, 63, v0')
    a(f's_load_dwordx2 s[58:59], s[0:1], {A_WS}')
    a('s_load_dwordx8 s[80:87], s[0:1], 64')
    a(f's_load_dwordx2 s[56:57], s[0:1], {A_OUT}')
    a('v_lshrrev_b32 v2, 6, v0')
    a('v_readfirstlane_b32 s3, v2')
    a('s_mov_b32 s40, 0xffff0000')
    a('s_and_b32 s28, s2, 7')
    a('s_lshr_b32 s29, s2, 3')
    a('s_lshl_b32 s32, s28, 5')
    a('s_or_b32 s32, s32, s29')
    a('v_and_b32 v3, 31, v0')
    a('v_lshrrev_b32 v2, 5, v0')
    a('s_lshl_b32 s33, s29, 6')
    a('v_lshl_add_u32 v4, v2, 3, s33')
    a('s_lshl_b32 s33, s28, 7')
    a('v_lshl_add_u32 v5, v3, 2, s33')
    a('v_lshl_add_u32 v5, v4, 10, v5')
    a('v_subrev_u32 v4, 0xc00, v5')
    a('s_lshl_b32 s33, s28, 9')
    a('v_lshl_add_u32 v13, v3, 4, s33')
    a('s_movk_i32 s35, 0x1000')
    a('s_mov_b32 s15, 0x20000'); a('s_mov_b32 s27, 0x20000'); a('s_mov_b32 s19, 0x20000')
    a('s_mov_b32 s23, 0x20000'); a('s_mov_b32 s11, 0x20000'); a('s_mov_b32 s55, 0x20000')
    a('v_lshlrev_b32 v15, 4, v1')
    a('v_mov_b32 v21, 0')
    a('v_lshlrev_b32 v14, 4, v0')
    a('s_waitcnt lgkmcnt(0)')
    stamp('karg')
    if P.get('wso'):
        a(f's_add_u32 s58, s58, {hex(P["wso"] << 20)}')
        a('s_addc_u32 s59, s59, 0')
    base(a, 12, 70, 4096)
    base(a, 24, 68, 0x200000)
    tsh = vm.issue('buffer_load_dwordx4 v[48:51], v13, s[12:15], 0 offen' + NT)
    base(a, 12, 66, 0x200000)
    for i in range(3): vm.issue(f'buffer_load_dword v{24+i}, v4, s[12:15], 0 offen offset:{1024*i}' + NT)
    tk = {}
    for i in range(8):
        so = 's35' if i >= 4 else '0'
        vm.issue(f'buffer_load_dword v{27+i}, v5, s[12:15], {so} offen offset:{1024*(i&3)}' + NT)
        tk[i] = vm.issue(f'buffer_load_dword v{36+i}, v5, s[24:27], {so} offen offset:{1024*(i&3)}' + NT)
    stamp('issued')
    a(f's_add_u32 s4, s58, {hex(EPOCH)}')
    a('s_addc_u32 s5, s59, 0')
    a('s_load_dword s50, s[4:5], 0')
    if P.get('cpf', 1):
        a('s_getpc_b64 s[6:7]')
        a.label('L_pc2')
        a('s_lshl_b32 s36, s29, 2')
        a('s_add_u32 s36, s36, s3')
        a('v_and_b32 v4, 1, v0')
        a('v_lshl_add_u32 v4, s36, 1, v4')
        a('v_min_u32 v4, (L_last-L_pc2)/128, v4')
        a('v_lshlrev_b32 v4, 7, v4')
        a('v_mov_b32 v5, s7')
        a('v_add_co_u32 v4, vcc, s6, v4')
        a('v_addc_co_u32 v5, vcc, 0, v5, vcc')
        a('s_mov_b64 exec, 3')
        vm.issue('global_load_dword v168, v[4:5], off')
        a('s_mov_b64 exec, -1')
    if P.get('kvbar', 1): a('s_barrier')
    a('s_lshl_b32 s33, s32, 2')
    a('s_add_u32 s6, s74, s33')
    a('s_addc_u32 s7, s75, 0')
    a('s_load_dword s34, s[6:7], 0')
    a('s_lshl_b32 s33, s32, 13')
    SK = {}
    def skload():
        base(a, 12, 72, 0x200000)
        a('s_lshl_b32 s36, s32, 13')
        vm.issue('buffer_load_dwordx4 v[146:149], v14, s[12:15], s36 offen' + NT)
        a('s_add_u32 s36, s36, 0x1000')
        SK['t'] = vm.issue('buffer_load_dwordx4 v[150:153], v14, s[12:15], s36 offen' + NT)
    if P.get('skat', 0) == 0: skload()
    a('s_mul_i32 s30, s28, 6')
    a('s_lshr_b32 s31, s29, 2')
    a('s_add_u32 s30, s30, s31')
    a('s_and_b32 s31, s29, 3')
    a('s_lshl_b32 s46, s30, 2')
    a('s_or_b32 s46, s46, s31')
    a('s_lshl_b32 s47, s31, 2')
    a('s_or_b32 s47, s47, s3')
    a('v_and_b32 v16, 1, v0')
    a('v_lshrrev_b32 v17, 3, v1')
    a('v_and_b32 v6, 7, v1')
    a('v_mul_u32_u24 v242, 0x6000, v17')
    a('v_lshl_add_u32 v242, v6, 4, v242')
    a('v_lshlrev_b32 v243, 3, v17')
    a('s_lshl_b32 s36, s3, 11')
    a('s_add_u32 s33, s33, s36')
    WM = {}
    def wmload():
        base(a, 12, 84, 1024)
        a('s_lshl_b32 s36, s47, 6')
        tc = vm.issue('buffer_load_dwordx2 v[144:145], v243, s[12:15], s36 offen')
        base(a, 12, 86, 512*6144)
        a('s_cmp_lt_u32 s29, 24')
        a('s_cselect_b32 s14, s14, 0')
        a('s_lshr_b32 s36, s46, 2')
        a('s_lshl_b32 s36, s36, 7')
        a(f's_mul_i32 s37, s47, {32*6144}')
        a('s_add_u32 s36, s36, s37')
        twm = []
        for r in range(4):
            twm.append(vm.issue(f'buffer_load_dwordx4 v[{128+4*r}:{131+4*r}], v242, s[12:15], s36 offen' + NT))
            if r < 3: a('s_add_u32 s36, s36, 0x1800')
        WM.update(tc=tc, twm=twm)
    if P.get('wat', 2) == 0: wmload()
    if M2:
        a('s_and_b32 s30, s2, 1')
        a('s_lshl_b32 s30, s30, 3')
        a('s_and_b32 s98, s29, 7')
        a('s_or_b32 s30, s30, s98')
        a('s_bfe_u32 s31, s2, 0x20001')
        a('s_lshl_b32 s31, s31, 2')
        a('s_lshr_b32 s36, s2, 6')
        a('s_or_b32 s31, s31, s36')
        a('s_lshl_b32 s36, s36, 1')
        a('s_add_u32 s98, s98, s36')
    else:
        a('s_lshr_b32 s30, s32, 4')
        a('s_and_b32 s31, s32, 15')
        a(f's_and_b32 s98, s30, {P.get("prot", 0)}')
        a('s_lshl_b32 s98, s98, 2')
        if P.get('xrot', 1): a('s_add_u32 s98, s98, s28')
    a('s_and_b32 s98, s98, 7')
    a('s_lshr_b32 s38, s3, 1')
    a('s_and_b32 s39, s3, 1')
    a('s_cmp_eq_u32 s38, 0')
    a('s_cselect_b32 s20, s78, s80')
    a('s_cselect_b32 s21, s79, s81')
    a(f's_mov_b32 s22, {512*3584 if not P.get("now") else 0}')
    base(a, 8, 82, 1792*1024 if not P.get('now') else 0)
    base(a, 16, 58, TS)
    a('s_lshl_b32 s36, s28, 12')
    a(f's_add_u32 s36, s36, {hex(GRP)}')
    a('s_add_u32 s52, s58, s36')
    a('s_addc_u32 s53, s59, 0')
    a('s_movk_i32 s54, 0x1000')
    a('s_cmp_eq_u32 s3, 3')
    a('s_cselect_b32 s37, 0, 0x70000000')
    a('v_mov_b32 v22, s37')
    a('s_lshl_b32 s36, s29, 7')
    vm.issue('buffer_load_dword v158, v22, s[52:55], s36 offen')
    a('s_lshl_b32 s36, s46, 6')
    a(f's_add_u32 s36, s36, {hex(MODT)}')
    vm.issue('buffer_load_dword v159, v22, s[16:19], s36 offen')
    if M2 and P.get('ft', 1):
        a('s_lshl_b32 s36, s30, 4')
        a('s_lshr_b32 s37, s32, 4')
        a('s_lshl_b32 s37, s37, 4')
        a('s_sub_u32 s37, s37, s36')
        a('s_add_u32 s37, s37, 0x100')
        a('v_lshrrev_b32 v4, 2, v1')
        a('v_min_u32 v5, 1, v4')
        a('v_mul_lo_u32 v5, v5, s37')
        a('v_max_u32 v4, 1, v4')
        a('v_subrev_u32 v4, 1, v4')
        a('v_lshl_add_u32 v5, v4, 8, v5')
        a('v_and_b32 v4, 3, v1')
        a('v_add_u32 v5, v5, v4')
        a('s_lshl_b32 s37, s3, 2')
        a('s_add_u32 s36, s36, s37')
        a('v_add_lshl_u32 v5, v5, s36, 7')
        a(f's_mov_b32 s36, {hex(FL1)}')
        a('s_mov_b64 exec, 0xfff')
        vm.issue('buffer_load_dword v156, v5, s[16:19], s36 offen')
        a('s_mov_b64 exec, -1')
    a('s_lshl_b32 s36, s32, 13')
    a('s_lshl_b32 s37, s46, 11')
    a(f's_add_u32 s37, s37, {hex(MP)}')
    a('s_cmp_eq_u32 s3, 1')
    a(f's_cselect_b32 s37, s37, {hex(TS)}')
    a('s_cselect_b32 s44, 15, 63')
    a('s_cmp_eq_u32 s3, 2')
    a('s_cselect_b32 s37, s36, s37')
    a('v_and_b32 v4, s44, v1')
    a('v_lshlrev_b32 v4, 7, v4')
    if P.get('utt', 1): vm.issue('buffer_load_dword v157, v4, s[16:19], s37 offen' + (' nt' if P.get('ntu', 0) else ''))
    if P.get('tlb', 0) == 1:
        a('v_lshl_add_u32 v4, v1, 20, v22')
        for i, (p, n) in enumerate(((86, 512*6144), (84, 1024), (64, 0x200000), (78, 512*3584), (80, 512*3584), (82, 1792*1024), (56, 0x200000))):
            base(a, 12, p, n)
            vm.issue(f'buffer_load_dword v{160+i}, v4, s[12:15], 0 offen')
        vm.issue('buffer_load_dword v154, v4, s[16:19], 0 offen')
    for i in range(3):
        a(f'v_add_u32 v4, {64*i}, v1')
        a('v_mul_u32_u24 v5, 0x2aab, v4')
        a('v_lshrrev_b32 v5, 16, v5')
        a(f'v_mul_u32_u24 v5, {3584-96}, v5')
        a(f'v_lshl_add_u32 v{10+i}, v4, 4, v5')
        if i: a(f'v_subrev_u32 v{10+i}, {1024*i}, v{10+i}')
    a(f's_mul_i32 s41, s39, {32*3584}')
    a('s_mul_i32 s43, s31, 96')
    a('s_add_u32 s41, s41, s43')
    a('s_add_u32 s41, s41, 0x800')
    a('s_mul_i32 s43, s39, 3072')
    a(f's_mul_i32 s42, s38, {P1U}')
    a('s_add_u32 s42, s42, s43')
    a(f's_add_u32 s99, s41, {512*3584}')
    a(f's_mul_i32 s36, s98, {64*3584}')
    a('s_add_u32 s41, s41, s36')
    def step(reg, inc, lim, span):
        a(f's_add_u32 {reg}, {reg}, {inc}')
        a(f's_cmp_eq_u32 {reg}, {lim}')
        a(f's_cselect_b32 s36, {span}, 0')
        a(f's_sub_u32 {reg}, {reg}, s36')
    early = deque()
    def p1dma(m, i):
        if i == 0: a(f's_add_u32 m0, s42, {6144*m}')
        vm.issue(f'buffer_load_dwordx4 v{10+i}, s[20:23], s41 offen offset:{1024*i} lds')
        if i == 2 and m < 7: step('s41', 64*3584, 's99', 512*3584)
    for m in range(8):
        for i in range(3): early.append(lambda m=m, i=i: p1dma(m, i))
    for _ in range(P.get('e0', 0)): early.popleft()()
    a('v_lshrrev_b32 v4, 3, v1')
    a('v_bfe_u32 v5, v1, 4, 1')
    a('v_lshlrev_b32 v5, 2, v5')
    a('v_xor_b32 v5, v5, v6')
    a('v_lshlrev_b32 v5, 4, v5')
    a(f'v_lshl_add_u32 v8, v4, {7 if RL else 10}, v5')
    a(f'v_add_u32 v9, {0 if RL else 8192-1024}, v8')
    a('s_lshl_b32 s43, s38, 5')
    a('v_xor_b32 v5, s43, v5')
    a('v_mul_u32_u24 v7, 0xe00, v4')
    a('v_add_u32 v7, v7, v5')
    a(f's_mul_i32 s48, s39, {8*3584}')
    a('s_lshl_b32 s43, s31, 7')
    a('s_add_u32 s48, s48, s43')
    a('s_lshl_b32 s43, s39, 10')
    a(f's_mul_i32 s49, s38, {SEG[0][2]-SEG[0][1]}')
    a('s_add_u32 s49, s49, s43')
    a(f's_mul_i32 s38, s38, {P1U}')
    a('s_add_u32 s43, s43, s38')
    a('v_sub_u32 v4, 7, v2')
    a('v_xor_b32 v4, v4, v6')
    a('v_lshl_add_u32 v4, v3, 4, v4')
    a(f'v_lshlrev_b32 v4, 4, v4')
    a(f'v_add_u32 v120, {PB}, v4')
    a('v_lshrrev_b32 v4, 4, v1')
    a('v_xor_b32 v5, v4, v1')
    a('s_lshl_b32 s36, s3, 11')
    a(f's_add_u32 s36, s36, {PB}')
    a('v_lshl_add_u32 v124, v5, 4, s36')
    a('v_xor_b32 v125, 64, v124')
    a('v_lshrrev_b32 v4, 3, v1')
    a('v_lshlrev_b32 v5, 4, v6')
    a('v_lshl_add_u32 v13, v4, 12, v5')
    a('s_lshl_b32 s36, s28, 2')
    a('s_add_u32 s36, s36, s3')
    a('s_lshl_b32 s36, s36, 16')
    a('s_sub_u32 s35, 31, s29')
    a('s_lshl_b32 s35, s35, 7')
    a('s_add_u32 s35, s35, s36')
    if 200 > P.get('probe', 0) >= 100:
        a('v_mov_b32 v22, s60')
        a('s_lshl_b32 s36, s2, 2')
        a(f's_add_u32 s36, s36, {hex(0x140A000)}')
        vm.issue('buffer_store_dword v22, v21, s[16:19], s36 offen sc1')
    def slow_gu():
        a('v_bfe_u32 v4, v1, 1, 3')
        a('v_and_b32 v5, 1, v4')
        a('v_lshlrev_b32 v5, 9, v5')
        a(f'v_mul_u32_u24 v4, 3584, v4')
        a('v_add_u32 v4, v4, v5')
        a('v_and_b32 v5, 1, v1')
        a('v_lshl_add_u32 v4, v5, 10, v4')
        a('v_bfe_u32 v5, v1, 4, 1')
        a('v_lshl_add_u32 v4, v5, 11, v4')
        a('s_lshl_b32 s36, s29, 1')
        a('s_and_b32 s37, s3, 1')
        a('s_add_u32 s36, s36, s37')
        a(f's_mul_i32 s36, s36, {8*3584}')
        a('s_mov_b32 exec_hi, 0')
        vm.issue('buffer_load_dword v252, v4, s[20:23], s36 offen offset:384')
        a('s_mov_b32 exec_hi, -1')
    def slow_d():
        a('v_lshlrev_b32 v4, 10, v1')
        a('s_and_b32 s36, s32, 31')
        a('s_lshl_b32 s36, s36, 2')
        a('s_add_u32 s36, s36, s3')
        a(f's_mul_i32 s36, s36, {14*1024}')
        a('s_mov_b64 exec, 0x3fff')
        vm.issue('buffer_load_dword v253, v4, s[8:11], s36 offen offset:384')
        a('s_mov_b64 exec, -1')
    def slow(at):
        if P.get('sg', 0) == at: slow_gu()
        if P.get('sd', 0) == at: slow_d()
    stamp('pre')
    vm.need(tsh)
    lo(a, 52, 48); hi(a, 54, 48, 40); lo(a, 56, 49); hi(a, 58, 49, 40)
    lo(a, 53, 50); hi(a, 55, 50, 40); lo(a, 57, 51); hi(a, 59, 51, 40)
    vm.need(tk[0])
    stamp('kv0')
    if P.get('skat', 0) == 1: skload()
    if P.get('wat', 2) == 1: wmload()
    def xload():
        vm.issue('buffer_load_dwordx4 v[232:235], v15, s[12:15], s33 offen' + NT)
        return vm.issue('buffer_load_dwordx4 v[236:239], v15, s[12:15], s33 offen offset:1024' + NT)
    for q in range(3):
        lo(a, 60+2*q, 24+q); hi(a, 61+2*q, 24+q, 40)
    for r in range(8):
        vm.need(tk[r])
        lo(a, 66+2*r, 27+r); hi(a, 67+2*r, 27+r, 40)
        lo(a, 84+2*r, 36+r); hi(a, 85+2*r, 36+r, 40)
        d = 102+2*r
        a(f'v_pk_mul_f32 v[{d}:{d+1}], v[{60+2*r}:{61+2*r}], v[58:59]')
        a(f'v_pk_fma_f32 v[{d}:{d+1}], v[{62+2*r}:{63+2*r}], v[56:57], v[{d}:{d+1}]')
        a(f'v_pk_fma_f32 v[{d}:{d+1}], v[{64+2*r}:{65+2*r}], v[54:55], v[{d}:{d+1}]')
        a(f'v_pk_fma_f32 v[{d}:{d+1}], v[{66+2*r}:{67+2*r}], v[52:53], v[{d}:{d+1}]')
        a(f'v_pk_mul_f32 v[{d}:{d+1}], v[{d}:{d+1}], v[{84+2*r}:{85+2*r}]')
    if P.get('skat', 0) == 2: skload()
    if P.get('wat', 2) == 2: wmload()
    tc, twm, tsk = WM['tc'], WM['twm'], SK['t']
    base(a, 12, 64, 0x200000)
    slow(1)
    stamp('kvN')
    for c in range(2):
        for jj in range(4):
            a(f'v_cvt_pk_bf16_f32 v{24+4*c+jj}, v{102+2*(7-2*jj)+c}, v{102+2*(6-2*jj)+c}')
        a(f'ds_write_b128 v120, v[{24+4*c}:{27+4*c}] offset:{128*c}')
    a('s_waitcnt lgkmcnt(0)')
    a('s_barrier')
    stamp('abar')
    for j in range(2): a(f'ds_read_b128 v[{104+4*j}:{107+4*j}], v{124+j} offset:{1024*j}')
    a('s_mul_i32 s50, s50, 1664525')
    a('s_add_u32 s50, s50, 1013904223')
    a('v_mov_b32 v20, s50')
    a('s_getreg_b32 s100, hwreg(HW_REG_XCC_ID, 0, 4)')
    if P.get('slow'): a('s_and_b32 s100, s29, 1')
    a('s_add_u32 s100, s100, s50')
    a('s_add_u32 s100, s100, 1')
    a('s_mov_b32 s24, s35')
    a('s_add_u32 s25, s35, 0x8000')
    ustores = [f'buffer_store_dwordx4 v[{104+4*j}:{107+4*j}], v13, s[16:19], s{24+j} offen' for j in range(2)]
    for j in range(2):
        a(f's_waitcnt lgkmcnt({1-j})')
        tus = vm.issue(ustores[j] + (' sc1' if P.get('uts', 0) else ''))
    a('s_lshl_b32 s7, s3, 7')
    a('s_lshl_b32 s36, s29, 2')
    a('s_add_u32 s7, s7, s36')
    a('v_mov_b32 v123, s100')
    stamp('utst')
    for i in range(4): a(f'v_mov_b32 v{40+i}, 0')
    a(f'v_add_u32 v14, {CB}, v14')
    a('v_cmp_gt_u32 vcc, 32, v0')
    a('s_and_saveexec_b64 s[36:37], vcc')
    a('s_cbranch_execz L_nz')
    a('ds_write_b128 v14, v[40:43]')
    a(f'ds_write_b128 v14, v[40:43] offset:{CHS}')
    a('v_cmp_gt_u32 vcc, 2, v0')
    a('s_and_b64 exec, exec, vcc')
    for c in range(2):
        a(f'ds_write_b128 v14, v[40:43] offset:{c*CHS+U0+4096}')
        a(f'ds_write_b128 v14, v[40:43] offset:{c*CHS+U1+4096}')
    a.label('L_nz')
    a('s_mov_b64 exec, s[36:37]')
    a('v_cmp_eq_u32 s[36:37], 0, v0')
    a('s_lshl_b32 s4, s34, 16')
    a('s_and_b32 s5, s34, 0xffff0000')
    a('s_mov_b32 s6, 0xffff')
    vm.need(tsk)
    stamp('skok')
    for c in range(2):
        kx = 146+4*c
        lo(a, 44, kx)
        a(f'v_add_f32 v44, s{4+c}, v44')
        a('v_cvt_pk_bf16_f32 v44, v44, v44')
        a(f'v_bfi_b32 v44, s6, v44, v{kx}')
        a(f'v_cndmask_b32 v{kx}, v{kx}, v44, s[36:37]')
        a(f'ds_write_b128 v14, v[{kx}:{kx+3}] offset:{c*CHS+KB}')
    vm.need(tus)
    masked([f'buffer_store_dword v123, v21, s[52:55], s7 offen offset:{UH}'], 1)
    a('v_and_b32 v120, 31, v1')
    a('v_lshlrev_b32 v120, 2, v120')
    a('s_lshr_b32 s5, s29, 3')
    a('s_lshl_b32 s5, s5, 7')
    hloads = [f'buffer_load_dword v121, v120, s[52:55], 0 offen offset:{XID} sc1', f'buffer_load_dword v124, v120, s[52:55], s5 offen offset:{UH} sc1']
    a('v_mov_b32 v121, s50')
    tu = masked(hloads[1:], 0xffffffff)
    a('v_lshrrev_b32 v4, 1, v6')
    a('v_lshlrev_b32 v4, 11, v4')
    a('v_lshl_add_u32 v4, v16, 6, v4')
    a('v_lshrrev_b32 v5, 5, v1')
    a('v_lshl_add_u32 v4, v5, 5, v4')
    a('v_bfe_u32 v5, v1, 4, 1')
    a('v_lshl_add_u32 v244, v5, 4, v4')
    a('s_lshl_b32 s35, s32, 13')
    a('s_add_u32 s34, s35, 0x1000')
    a('v_lshlrev_b32 v125, 4, v0')
    vm.need(tc)
    lo(a, 44, 144); hi(a, 45, 144, 40); lo(a, 46, 145); hi(a, 47, 145, 40)
    for r in range(4): a(f'v_mul_f32 v{48+r}, {fh(-1.4426950408889634)}, v{44+r}')
    for r in range(4): a(f'v_exp_f32 v{48+r}, v{48+r}')
    for r in range(4): a(f'v_add_f32 v{48+r}, 1.0, v{48+r}')
    for r in range(4): a(f'v_rcp_f32 v{48+r}, v{48+r}')
    for r in range(4): a(f'v_mul_f32 v{44+r}, v{44+r}, v{48+r}')
    a('v_cvt_pk_bf16_f32 v48, v44, v45')
    a('v_cvt_pk_bf16_f32 v49, v46, v47')
    lo(a, 44, 48); hi(a, 45, 48, 40); lo(a, 46, 49); hi(a, 47, 49, 40)
    def stage1():
        for r in range(4):
            vm.need(twm[r])
            unpack8(a, 52, 128+4*r, 40)
            sel = 'op_sel:[0,0,0] op_sel_hi:[1,0,1]' if r % 2 == 0 else 'op_sel:[0,1,0] op_sel_hi:[1,1,1]'
            sp = 44 + (r & 2)
            for j in range(4):
                if r == 0:
                    a(f'v_pk_mul_f32 v[{60+2*j}:{61+2*j}], v[{52+2*j}:{53+2*j}], v[{sp}:{sp+1}] op_sel:[0,0] op_sel_hi:[1,0]')
                else:
                    a(f'v_pk_fma_f32 v[{60+2*j}:{61+2*j}], v[{52+2*j}:{53+2*j}], v[{sp}:{sp+1}], v[{60+2*j}:{61+2*j}] {sel}')
        for j in range(4): a(f'v_permlane32_swap_b32 v{60+j}, v{64+j}')
        for j in range(4): a(f'v_add_f32 v{60+j}, v{60+j}, v{64+j}')
        a('s_lshr_b32 s6, s46, 2')
        a('s_lshl_b32 s6, s6, 13')
        for j in range(2): a(f'v_permlane16_swap_b32 v{60+j}, v{62+j}')
        a('s_lshl_b32 s36, s47, 7')
        for j in range(2): a(f'v_add_f32 v{100+j}, v{60+j}, v{62+j}')
        a('v_mov_b32 v102, s50')
        a('v_mov_b32 v103, s50')
        for j in range(2): a(f'v_add_f32_dpp v{100+j}, v{100+j}, v{100+j} row_ror:8 row_mask:0xf bank_mask:0xf')
        a('s_add_u32 s6, s6, s36')
        a(f's_add_u32 s6, s6, {hex(MP)}')
        a('s_cmp_lt_u32 s29, 24')
        a(f's_cselect_b32 s6, s6, {hex(TS)}')
    if P.get('s1at', 1) == 0: stage1()
    a('s_lshr_b32 s36, s3, 1')
    a(f's_mul_i32 s36, s36, {CHS}')
    a('s_xor_b32 s38, s39, 1')
    a('s_lshl_b32 s38, s38, 6')
    a('s_add_u32 s36, s36, s38')
    a(f's_add_u32 s36, s36, {CB}')
    a('v_and_b32 v3, 15, v0')
    a('v_bfe_u32 v4, v0, 4, 2')
    a('v_lshlrev_b32 v5, 4, v4')
    a('v_lshl_add_u32 v22, v3, 5, v5')
    a(f's_add_u32 s38, s36, {KB-480}')
    a('v_add_u32 v22, s38, v22')
    a('v_and_b32 v23, 14, v3')
    a('v_lshlrev_b32 v23, 1, v23')
    a('v_sub_u32 v23, v5, v23')
    a(f'v_mul_u32_u24 v5, {U1-U0}, v16')
    a('v_sub_u32 v23, v23, v5')
    a(f's_add_u32 s38, s36, {U1+28}')
    a('v_add_u32 v16, s38, v23')
    for i in range(1, 4): a(f'v_add_u32 v{16+i}, {1024*i}, v16')
    a('v_bfe_u32 v5, v3, 1, 2')
    a('v_xor_b32 v5, v5, v4')
    a('v_lshl_add_u32 v5, v3, 2, v5')
    a('s_lshl_b32 s38, s3, 13')
    a(f's_add_u32 s38, s38, {PB}')
    a('v_lshl_add_u32 v23, v5, 4, s38')
    KP = P.get('kp', 1)
    if KP:
        a('s_waitcnt lgkmcnt(0)')
        a('s_barrier')
        for j in range(4, 32): a(f'ds_read_b128 v[{104+4*j}:{107+4*j}], v22 offset:{128*j}') if not 120 <= 104+4*j < 156 else None
    a(f's_mov_b32 s51, {SPIN}')
    a('s_mov_b32 s101, 0')
    vm.need(tu)
    stamp('ut1st')
    if PM: a('s_mov_b32 exec_hi, 0')
    a('s_branch L_uh_chk')
    a.label('L_uh')
    if SL: a(f's_sleep {SL}')
    a(f's_cmp_lg_u32 s51, {SPIN - P.get("idl", 4)}')
    a('s_cbranch_scc1 L_noid')
    a('s_cmp_lg_u32 s3, 0')
    a('s_cbranch_scc1 L_noid')
    a('s_lshl_b32 s36, s29, 2')
    a('s_mov_b64 exec, 1')
    a(f'buffer_store_dword v123, v21, s[52:55], s36 offen offset:{XID} sc1')
    a('s_mov_b64 exec, 0xffffffff' if PM else 's_mov_b64 exec, -1')
    a.label('L_noid')
    for l in hloads: a(l)
    a('s_waitcnt vmcnt(0)')
    a.label('L_uh_chk')
    a('v_cmp_ne_u32 vcc, s100, v124')
    a('v_subrev_u32 v122, s50, v121')
    a('v_subrev_u32 v122, 1, v122')
    a('s_cbranch_vccz L_uh_ok')
    a('v_cmp_lt_u32 vcc, 15, v122')
    a('v_cmp_ne_u32 s[92:93], s100, v121')
    a('s_sub_u32 s51, s51, 1')
    a('s_cbranch_scc1 L_uh_ok')
    a('s_cbranch_vccnz L_uh')
    a('s_cmp_eq_u64 s[92:93], 0')
    a('s_cbranch_scc1 L_uh_same')
    a('s_cmp_lg_u32 s101, 0')
    a('s_cbranch_scc1 L_uh_same')
    a('s_mov_b32 s101, 1')
    a('s_mov_b64 exec, -1')
    for l in ustores: a(l + ' sc1')
    a('s_waitcnt vmcnt(0)')
    a(f'buffer_store_dword v20, v21, s[52:55], s7 offen offset:{UH} sc1')
    if PM: a('s_mov_b32 exec_hi, 0')
    a.label('L_uh_same')
    a('v_cmp_ne_u32 vcc, s50, v124')
    a('v_cmp_ne_u32 s[92:93], s100, v124')
    a('s_nop 0')
    a('s_and_b64 vcc, vcc, s[92:93]')
    a('s_cbranch_vccnz L_uh')
    a.label('L_uh_ok')
    a('s_mov_b64 exec, -1')
    raw(6, 's51')
    stamp('uhok')
    tu = []
    for c in range(2):
        vm.issue(f'buffer_load_dwordx4 v[{72+4*c}:{75+4*c}], v125, s[16:19], s{35-c} offen sc1')
        tu.append(vm.issue(f'buffer_load_dword v{80+c}, v125, s[16:19], s{35-c} offen offset:16 sc1'))
    if P.get('s1at', 1) == 1: stage1()
    lstore(['buffer_store_dwordx4 v[100:103], v244, s[16:19], s6 offen'])
    if KP:
        for j in list(range(4)) + list(range(4, 13)): a(f'ds_read_b128 v[{104+4*j}:{107+4*j}], v22 offset:{128*j}')
    if P.get('xat', 1) == 1: tx = xload()
    CP = {}
    if RL:
        a('s_mul_i32 s44, s2, 7')
        a('s_lshl_b32 s45, s3, 1')
        a('s_add_u32 s44, s44, s45')
        a('s_cmp_eq_u32 s3, 3')
        a('s_cselect_b32 s45, 0, 1')
        a('s_add_u32 s45, s45, s44')
        for r in range(2):
            a(f's_lshl_b32 s36, s{44+r}, 10')
            CP['l'] = vm.issue(f'buffer_load_dwordx4 v[{32+4*r}:{35+4*r}], v15, s[8:11], s36 offen' + NT)
    def wdcopy():
        a('v_lshrrev_b32 v4, 3, v1')
        a(f'v_mul_u32_u24 v4, {1792*128}, v4')
        a('v_lshl_add_u32 v4, v6, 4, v4')
        vm.need(CP['l'])
        for r in range(2):
            a(f's_lshl_b32 s36, s{44+r}, 7')
            a(f's_add_u32 s36, s36, {hex(WD2)}')
            CP['s'] = vm.issue(f'buffer_store_dwordx4 v[{32+4*r}:{35+4*r}], v4, s[16:19], s36 offen sc1')
    a('s_movk_i32 s36, 0xff')
    a('v_cmp_ne_u32 vcc, s36, v0')
    for c in range(2):
        u = 72+4*c
        vm.need(tu[c])
        if c == 0: stamp('utok')
        a(f'v_cndmask_b32 v{80+c}, 0, v{80+c}, vcc')
        a(f'ds_write_b128 v14, v[{u}:{u+3}] offset:{c*CHS+U0}')
        for j in range(3): a(f'v_alignbit_b32 v{40+4*c+j}, v{u+j+1}, v{u+j}, 16')
        a(f'v_alignbit_b32 v{43+4*c}, v{80+c}, v{u+3}, 16')
        a(f'ds_write_b128 v14, v[{40+4*c}:{43+4*c}] offset:{c*CHS+U1}')
    for _ in range(P.get('e0b', 6)): early.popleft()()
    a('s_waitcnt lgkmcnt(0)')
    a('s_barrier')
    stamp('bbar')
    a('s_lshl_b32 s6, s46, 11')
    a(f's_add_u32 s6, s6, {hex(MP)}')
    a('s_cmp_lt_u32 s29, 24')
    a(f's_cselect_b32 s7, s3, 1')
    ploads = [f'buffer_load_dwordx4 v[{240+4*j}:{243+4*j}], v15, s[16:19], s6 offen offset:{1024*j} sc1' for j in range(2)]
    tmi = []
    def mod_issue():
        a('s_cmp_lg_u32 s7, 0')
        a('s_cbranch_scc1 L_nomi')
        for l in ploads: a(l)
        a.label('L_nomi')
        tmi.append(vm.issued)
    def mod_final():
        a('s_cmp_lg_u32 s7, 0')
        a('s_cbranch_scc1 L_nomod')
        done = vm.done
        a(f's_waitcnt vmcnt({vm.issued - tmi[0]})')
        poll('mp', ploads, [242, 246], pre=0)
        vm.done = done
        a('v_pk_add_f32 v[240:241], v[240:241], v[244:245]')
        a('s_lshr_b32 s36, s46, 5')
        a('s_cmp_eq_u32 s36, 1')
        for j in range(2): a(f'v_add_f32_dpp v{240+j}, v{240+j}, v{240+j} row_ror:8 row_mask:0xf bank_mask:0xf')
        a('s_cselect_b32 s38, 1.0, 0')
        a('s_cmp_eq_u32 s36, 4')
        for op in ('v_permlane16_swap_b32', 'v_permlane32_swap_b32'):
            for j in range(2): a(f'v_mov_b32 v{242+j}, v{240+j}')
            for j in range(2): a(f'{op} v{240+j}, v{242+j}')
            a('v_pk_add_f32 v[240:241], v[240:241], v[242:243]')
        a('s_cselect_b32 s38, 1.0, s38')
        a('s_lshl_b32 s36, s46, 6')
        a('v_cvt_pk_bf16_f32 v242, v240, v241')
        a(f's_add_u32 s36, s36, {hex(MODT)}')
        lo(a, 240, 242); hi(a, 241, 242, 40)
        for j in range(2): a(f'v_add_f32 v{240+j}, s38, v{240+j}')
        a('v_cvt_pk_bf16_f32 v244, v240, v241')
        a('v_mov_b32 v246, s50')
        a('v_mov_b32 v247, s50')
        a('v_mov_b32_dpp v245, v244 quad_perm:[1,1,3,3] row_mask:0xf bank_mask:0xf')
        a('v_lshlrev_b32 v240, 3, v1')
        a('s_mov_b64 exec, 0x55')
        a('buffer_store_dwordx4 v[244:247], v240, s[16:19], s36 offen sc1')
        a('s_mov_b64 exec, -1')
        a.label('L_nomod')
    ACC, AR, BR = 40, 72, 104
    pipe = LdsPipe(a)
    reads = []
    for i in range(32):
        o = 32*((31-i) & 7); b = 16 + ((31-i) >> 3); d = AR + 4*(i & 7)
        reads.append((('A', i, 0), f'ds_read2_b32 v[{d}:{d+1}], v{b} offset0:{o} offset1:{o+1}'))
        reads.append((('A', i, 1), f'ds_read2_b32 v[{d+2}:{d+3}], v{b} offset0:{o+2} offset1:{o+3}'))
        if i < 4 and not KP:
            for t in range(8):
                j = 4*t+3-i
                reads.append((('B', j), f'ds_read_b128 v[{BR+4*j}:{BR+4*j+3}], v22 offset:{128*j}'))
    tok = {('B', j): 0 for j in range(32)} if KP else {}; nxt = [0]
    def pump(cur_step, maxn):
        n = 0
        while n < maxn and nxt[0] < len(reads) and pipe.outstanding() < 13:
            key, line = reads[nxt[0]]
            if key[0] == 'A' and key[1] >= cur_step + 8: break
            tok[key] = pipe.issue(line); nxt[0] += 1; n += 1
    pump(0, 12)
    slow(2)
    MAT = P.get('mat', 0)
    pending = []; nm = 0
    NB = P.get('e1', 9); EV = P.get('ev', 10)
    for i in range(32):
        for t in range(i >> 2, 8):
            j = 4*t+3-i
            while ('B', j) not in tok or ('A', i, 1) not in tok:
                pipe.need(pipe.done + 2); pump(i, 2)
            pipe.need(max(tok[('A', i, 1)], tok[('B', j)]))
            d = ACC+4*t; c = '0' if i == 0 else f'v[{d}:{d+3}]'
            s = AR+4*(i & 7)
            a(f'v_mfma_f32_16x16x32_bf16 v[{d}:{d+3}], v[{s}:{s+3}], v[{BR+4*j}:{BR+4*j+3}], {c}')
            pump(i, 2 if i < 4 else 1)
            nm += 1
            if nm >= P.get('e1s', 40) and nm % EV == 0 and NB > 0 and early:
                early.popleft()(); NB -= 1
        if pending and pipe.outstanding() < 14:
            t = pending.pop()
            pipe.issue(f'ds_write_b128 v23, v[{ACC+4*t}:{ACC+4*t+3}] offset:{1024*t}')
        if (i & 3) == 3: pending.append(i >> 2)
        if RL and i == P.get('cpa', 10): wdcopy()
        if i == P.get('mpi', 2) and not MAT: mod_issue()
        if i == P.get('mfin', 7) and not MAT: mod_final(); raw(7, 's51')
    for t in pending:
        pipe.issue(f'ds_write_b128 v23, v[{ACC+4*t}:{ACC+4*t+3}] offset:{1024*t}')
    stamp('bend')
    a('v_lshlrev_b32 v4, 3, v0')
    a(f'v_add_u32 v4, {PRM}, v4')
    a('v_lshrrev_b32 v2, 1, v0')
    a('v_bfe_u32 v3, v0, 4, 2')
    a('v_xor_b32 v2, v2, v3')
    a('v_lshlrev_b32 v2, 4, v2')
    a('v_and_b32 v3, 1, v0')
    a('v_lshl_add_u32 v2, v3, 3, v2')
    a(f'v_add_u32 v2, {PB}, v2')
    a('v_lshlrev_b32 v3, 4, v0')
    a('v_and_b32 v5, 3, v0')
    a(f's_mul_i32 s38, s32, {YP}')
    a(f's_add_u32 s38, s38, {hex(YT)}')
    a(f'v_add_u32 v13, {PRM}, v15')
    a('s_and_b32 s36, s32, 7')
    a('s_lshl_b32 s36, s36, 1')
    a('s_and_b32 s37, s3, 1')
    a('s_or_b32 s36, s36, s37')
    a('s_lshl_b32 s36, s36, 6')
    a(f's_add_u32 s36, s36, {PRM+5120}')
    a('v_lshrrev_b32 v14, 5, v1')
    a('v_lshl_add_u32 v14, v14, 4, s36')
    if RL: vm.need(CP['s'])
    a('s_waitcnt lgkmcnt(0)')
    a('s_barrier')
    stamp('pbar')
    for j in range(4):
        for w in range(4):
            a(f'ds_read_b64 v[{72+8*j+2*w}:{73+8*j+2*w}], v2 offset:{8192*w+2048*j}')
        if j == 2: a('s_waitcnt lgkmcnt(8)')
    if MAT: mod_issue()
    for j in range(4):
        b = 72+8*j; q = 24+4*j
        if j: a(f's_waitcnt lgkmcnt({12-4*j})')
        a(f'v_pk_add_f32 v[{b}:{b+1}], v[{b}:{b+1}], v[{b+2}:{b+3}]')
        a(f'v_pk_add_f32 v[{b+4}:{b+5}], v[{b+4}:{b+5}], v[{b+6}:{b+7}]')
        a(f'v_mov_b32 v{q+2}, s50')
        a(f'v_mov_b32 v{q+3}, s50')
        a(f'v_cvt_pk_bf16_f32 v{q}, v{b}, v{b+4}')
        a(f'v_cvt_pk_bf16_f32 v{q+1}, v{b+1}, v{b+5}')
        tys = vm.issue(f'buffer_store_dwordx4 v[{q}:{q+3}], v3, s[16:19], s38 offen sc1')
        if j < 3: a('s_add_u32 s38, s38, 0x1000')
    stamp('ytst')
    a('v_mov_b32 v22, v4')
    a('v_mov_b32 v23, v14')
    a('v_mov_b32 v60, v5')
    slow(3)
    a('v_mov_b32 v5, v60')
    if MAT: mod_final(); raw(7, 's51')
    if MAT == 2: a('s_barrier')
    for _ in range(P.get('e2', 6)): early.popleft()()
    a('s_lshl_b32 s35, s3, 10')
    a(f's_add_u32 s35, s35, {hex(MODT)}')
    a('s_add_u32 s34, s35, 0x1000')
    a('s_add_u32 s4, s35, 0x2000')
    mloads = [f'buffer_load_dwordx4 v[{104+4*r}:{107+4*r}], v15, s[16:19], s{(35, 34, 4)[r]} offen sc1' for r in range(3)]
    a('v_lshrrev_b32 v4, 2, v0')
    a(f'v_mul_u32_u24 v3, {2*YS}, v5')
    a('v_lshl_add_u32 v3, v4, 2, v3')
    a(f'v_add_u32 v3, {XG}, v3')
    a(f's_mul_i32 s46, s3, {2*YS}')
    a(f's_add_u32 s46, s46, {XG}')
    a('v_add_u32 v4, s46, v15')
    a('s_lshl_b32 s46, s3, 1')
    a('v_xor_b32 v5, s46, v6')
    a('v_lshlrev_b32 v5, 4, v5')
    a('v_lshl_add_u32 v5, v1, 7, v5')
    a(f'v_add_u32 v5, {XH}, v5')
    a('v_xor_b32 v16, 16, v5')
    a('v_lshrrev_b32 v17, 3, v1')
    a('v_xor_b32 v18, v17, v6')
    a('v_lshlrev_b32 v18, 4, v18')
    a('v_lshl_add_u32 v18, v17, 7, v18')
    a('s_lshl_b32 s46, s3, 11')
    a(f's_add_u32 s46, s46, {XH}')
    a('v_add_u32 v18, s46, v18')
    a('v_lshlrev_b32 v17, 9, v17')
    a('v_lshl_add_u32 v17, v6, 4, v17')
    a('s_lshr_b32 s46, s32, 2')
    a('s_lshl_b32 s46, s46, 15')
    a('s_and_b32 s47, s32, 3')
    a('s_lshl_b32 s47, s47, 7')
    a('s_add_u32 s46, s46, s47')
    a('s_lshl_b32 s47, s3, 13')
    a('s_add_u32 s46, s46, s47')
    a(f's_add_u32 s46, s46, {hex(H2)}')
    a('s_add_u32 s47, s46, 0x1000')
    a(f's_add_u32 s37, s33, {hex(X1)}')
    a('v_lshrrev_b32 v14, 2, v0')
    a(f'v_mul_u32_u24 v14, {YP}, v14')
    a('v_and_b32 v19, 3, v0')
    a('v_lshl_add_u32 v14, v19, 4, v14')
    a('s_lshl_b32 s24, s32, 6')
    a(f's_add_u32 s26, s24, {hex(YT)}')
    a(f's_add_u32 s27, s26, {64*YP}')
    a(f's_add_u32 s5, s26, {128*YP}')
    a(f's_add_u32 s6, s26, {192*YP}')
    X = (64, 160)
    vm.need(tx)
    subs = []
    for t in range(2):
        s = Asm(); unpack8(s, X[t], 232+4*t, 40); ln2p(s, X[t], X[t]+8, X[t]+16, 24+t)
        subs.append(s)
    zipl(a, *subs)
    stamp('ln1')
    yloads = [f'buffer_load_dwordx4 v[{24+4*j}:{27+4*j}], v14, s[16:19], s{(26, 27, 5, 6)[j]} offen sc1' for j in range(4)]
    vm.need(tys)
    stamp('ytack')
    for l in yloads: ty = vm.issue(l)
    for l in mloads: tm = vm.issue(l)
    poll('yt', yloads, [26, 30, 34, 38], pre=ty)
    stamp('ytok'); raw(2, 's51')
    for j in range(4):
        a(f'ds_write_b32 v3, v{24+4*j} offset:{256*j}')
        a(f'ds_write_b32 v3, v{25+4*j} offset:{256*j+YS}')
    poll('md', mloads, [106, 110, 114], pre=tm)
    stamp('mdok'); raw(1, 's51')
    for r in range(3): a(f'ds_write_b64 v22, v[{104+4*r}:{105+4*r}] offset:{2048*r}')
    a('s_waitcnt lgkmcnt(0)')
    a('s_barrier')
    stamp('ybar')
    ptok = {}
    def p2dma(k):
        a(f's_add_u32 m0, s49, {SEG[0][1] + 2048*(k % 15)}')
        if k and k % 4: a(f's_add_u32 s48, s48, {16*3584}')
        elif k: step('s48', 16*3584, 's100', 512*3584)
        ptok[k] = vm.issue('buffer_load_dwordx4 v7, s[20:23], s48 offen lds')
    a(f's_add_u32 s100, s48, {512*3584}')
    a(f's_mul_i32 s36, s98, {64*3584}')
    a('s_add_u32 s48, s48, s36')
    for _ in range(P.get('e3', 3)): early.popleft()()
    NSY = P.get('nsy', 0)
    for k in range(NSY): p2dma(k)
    for i, off in enumerate((1024, 0, 2048)):
        a(f'ds_read_b128 v[{40+4*i}:{43+4*i}], v13 offset:{off}')
    a('ds_read_b128 v[24:27], v4')
    a(f'ds_read_b128 v[28:31], v4 offset:{YS}')
    for i, off in enumerate((4096, 3072)):
        a(f'ds_read_b128 v[{52+4*i}:{55+4*i}], v13 offset:{off}')
    a('ds_read_b128 v[124:127], v23')
    a('ds_read_b128 v[116:119], v23 offset:32')
    a('s_waitcnt lgkmcnt(7)')
    unpack8(a, 128, 40, 40); unpack8(a, 136, 44, 40)
    for t in range(2):
        for p in range(4):
            d = X[t]+8+2*p
            a(f'v_pk_fma_f32 v[{d}:{d+1}], v[{d}:{d+1}], v[{128+2*p}:{129+2*p}], v[{136+2*p}:{137+2*p}]')
    a('s_waitcnt lgkmcnt(6)')
    unpack8(a, 144, 48, 40)
    for t in range(2):
        for p in range(4):
            d = X[t]+8+2*p
            a(f'v_pk_mul_f32 v[{d}:{d+1}], v[{d}:{d+1}], v[{144+2*p}:{145+2*p}]')
    a('s_waitcnt lgkmcnt(0)')
    unpack8(a, 128, 52, 40); unpack8(a, 136, 56, 40)
    subs = []
    for t in range(2):
        s = Asm(); x = X[t]
        unpack8(s, x+20, 24+4*t, 40)
        for p in range(4):
            s(f'v_pk_fma_f32 v[{x+2*p}:{x+2*p+1}], v[{x+8+2*p}:{x+9+2*p}], v[{x+20+2*p}:{x+21+2*p}], v[{x+2*p}:{x+2*p+1}]')
        for j in range(4): s(f'v_cvt_pk_bf16_f32 v{32+4*t+j}, v{x+2*j}, v{x+2*j+1}')
        s(f'buffer_store_dwordx4 v[{32+4*t}:{35+4*t}], v15, s[16:19], s37 offen offset:{1024*t} sc1')
        unpack8(s, x, 32+4*t, 40)
        (ln1p if P.get('l1', 1) else ln2p)(s, x, x+8, x+16, 24+2*t)
        for p in range(4):
            s(f'v_pk_fma_f32 v[{x+8+2*p}:{x+9+2*p}], v[{x+8+2*p}:{x+9+2*p}], v[{128+2*p}:{129+2*p}], v[{136+2*p}:{137+2*p}]')
        for j in range(4): s(f'v_cvt_pk_bf16_f32 v{40+4*t+j}, v{x+8+2*j}, v{x+9+2*j}')
        s(f'ds_write_b128 v{(5, 16)[t]}, v[{40+4*t}:{43+4*t}]')
        subs.append(s)
    zipl(a, *subs)
    vm.issued += 2
    a('s_waitcnt lgkmcnt(0)')
    a('s_barrier')
    stamp('hbar')
    a('ds_read_b128 v[24:27], v18')
    a('ds_read_b128 v[28:31], v18 offset:1024')
    a('s_and_b32 s24, s32, 31')
    a('s_lshl_b32 s24, s24, 4')
    a('s_lshl_b32 s25, s3, 2')
    a('s_add_u32 s33, s24, s25')
    a('s_and_b32 s25, s30, 1')
    a('s_lshl_b32 s25, s25, 8')
    a('s_lshl_b32 s26, s3, 6')
    a('s_add_u32 s25, s25, s26')
    a('v_and_b32 v19, 15, v1')
    a('v_lshlrev_b32 v19, 2, v19')
    if M2:
        a('s_lshl_b32 s25, s3, 2')
        a('s_lshl_b32 s24, s32, 7')
        a('s_add_u32 s24, s24, s25')
        a(f's_add_u32 s24, s24, {hex(FL1)}')
        a('s_lshl_b32 s33, s30, 4')
        a('s_or_b32 s33, s33, s31')
        a('s_lshl_b32 s33, s33, 7')
        a('s_add_u32 s33, s33, s25')
        a(f's_add_u32 s33, s33, {hex(FL2)}')
        a('s_lshl_b32 s26, s30, 4')
        a('s_add_u32 s26, s26, s25')
        a('s_lshl_b32 s26, s26, 7')
        a(f's_add_u32 s97, s26, {hex(FL1)}')
        a('s_lshr_b32 s26, s32, 4')
        a('s_lshl_b32 s26, s26, 4')
        a('s_add_u32 s26, s26, s25')
        a('s_lshl_b32 s26, s26, 7')
        a(f's_add_u32 s25, s26, {hex(FL2)}')
        a('v_bfe_u32 v19, v1, 2, 2')
        a('v_and_b32 v22, 3, v1')
        a('v_lshlrev_b32 v22, 2, v22')
        a('v_lshl_add_u32 v19, v19, 7, v22')
    def flag(F):
        if not M2:
            if PM: a('s_mov_b64 exec, 1')
            t = lstore([f'buffer_store_dword v20, v21, s[52:55], s33 offen offset:{F}'])
            if PM: a('s_mov_b64 exec, -1')
            return t
        if F == F3: a(f's_add_u32 s33, s33, {FL3-FL2}')
        return vm.issue(f'buffer_store_dword v20, v21, s[16:19], {"s24" if F == F1 else "s33"} offen sc1')
    def look(F):
        if not M2: return [f'buffer_load_dword v22, v{19 if F == F1 else 13}, s[52:55], s25 offen offset:{F} sc1']
        return [f'buffer_load_dword v22, v{19 if F == F1 else 13}, s[16:19], {"s97" if F == F1 else "s25"} offen sc1']
    a('s_waitcnt lgkmcnt(0)')
    lstore(['buffer_store_dwordx4 v[24:27], v17, s[16:19], s46 offen', 'buffer_store_dwordx4 v[28:31], v17, s[16:19], s47 offen'], P.get('h2s', M2))
    stamp('h2st')
    a('v_bfe_u32 v4, v1, 4, 1')
    a('v_lshrrev_b32 v5, 5, v1')
    a('v_bfe_u32 v22, v1, 2, 2')
    a('v_and_b32 v23, 3, v1')
    a('v_lshlrev_b32 v23, 3, v23')
    a('v_lshl_add_u32 v3, v5, 3, v22')
    a('v_bfe_u32 v13, v1, 3, 1')
    a('v_lshlrev_b32 v16, 7, v3')
    a('v_add_u32 v16, v16, v23')
    a('v_lshl_add_u32 v16, v13, 6, v16')
    a('v_lshl_add_u32 v16, v4, 5, v16')
    a(f'v_mul_u32_u24 v17, {SEG[0][2]-SEG[0][1]}, v4')
    a(f'v_add_u32 v17, {SEG[0][1]}, v17')
    a(f'v_mul_u32_u24 v18, {P1U}, v4')
    for ct in range(4):
        a(f'v_xor_b32 v14, {32*ct}, v16')
        a(f'v_add_u32 v{246+ct}, v14, v17')
    a('v_mul_u32_u24 v3, 0x60, v3')
    a('v_add_u32 v3, v3, v23')
    a('v_add_u32 v18, v18, v3')
    a('v_lshl_add_u32 v3, v5, 2, v22')
    a('v_lshlrev_b32 v3, 7, v3')
    a('v_lshl_add_u32 v3, v13, 6, v3')
    a('v_lshl_add_u32 v3, v4, 5, v3')
    a('v_add_u32 v3, v3, v23')
    a('s_lshl_b32 s26, s3, 11')
    a('s_and_b32 s27, s3, 1')
    a('s_lshl_b32 s27, s27, 6')
    a('v_xor_b32 v3, s27, v3')
    a('v_add_u32 v240, s26, v3')
    a('v_xor_b32 v241, 64, v240')
    for i in range(1, 3):
        a(f'v_add_u32 v{240+2*i}, {65536*i}, v240')
        a(f'v_add_u32 v{241+2*i}, {65536*i}, v241')
    a(f's_mov_b32 s44, {fh(GC2)}'); a(f's_mov_b32 s45, {fh(GC2)}')
    a(f'v_mov_b32 v2, {fh(GC1)}'); a(f'v_mov_b32 v3, {fh(GC1)}')
    a('s_lshl_b32 s27, s30, 2')
    a('s_add_u32 s27, s27, s3')
    a('s_lshl_b32 s28, s27, 15')
    a(f's_add_u32 s28, s28, {hex(H2)}')
    a('v_add_u32 v14, s28, v15')
    a('s_lshl_b32 s28, s98, 12')
    a('s_waitcnt vmcnt(0)'); vm.done = vm.issued
    stamp('h2dr')
    flag(F1)
    while early: early.popleft()()
    NS0 = P.get('ns0', 0) + NSY
    for k in range(NSY, NS0): p2dma(k)
    a('s_mul_i32 s29, s27, 112')
    AP = 1024 if M2 else YP
    if M2:
        a('s_lshl_b32 s47, s31, 2')
        a('s_add_u32 s47, s47, s29')
        a('s_lshl_b32 s47, s47, 10')
        a(f's_add_u32 s47, s47, {hex(ACT)}')
    else:
        a('s_lshl_b32 s47, s3, 4')
        a('s_add_u32 s47, s47, s31')
        a(f's_mul_i32 s47, s47, {4*YP}')
        a('s_lshl_b32 s4, s30, 10')
        a(f's_add_u32 s4, s4, {hex(YT)}')
        a('s_add_u32 s47, s47, s4')
    a('s_mul_i32 s46, s31, 3')
    a('s_add_u32 s46, s46, s29')
    a('s_lshl_b32 s46, s46, 10')
    a(f's_add_u32 s46, s46, {hex(ACT + 64*1024)}')
    a('s_lshr_b32 s39, s32, 3')
    a('s_and_b32 s35, s39, 1')
    a(f's_and_b32 s34, s39, {P.get("wrot", 0)}')
    a('s_and_b32 s24, s32, 7')
    a('s_lshl_b32 s24, s24, 7')
    if RL:
        a(f's_add_u32 s8, s58, {hex(WD2)}')
        a('s_addc_u32 s9, s59, 0')
        a('s_mul_i32 s24, s24, 1792')
    a(f's_mul_i32 s37, s3, {12*WS_}')
    a('s_add_u32 s37, s37, s24')
    a(f's_add_u32 s30, s37, {76*WS_}')
    a(f's_mul_i32 s36, s34, {3*WS_}')
    a('s_add_u32 s37, s37, s36')
    a(f's_add_u32 s37, s37, {64*WS_}')
    a(f's_mul_i32 s38, s3, {16*WS_}')
    a('s_add_u32 s38, s38, s24')
    a(f's_add_u32 s31, s38, {16*WS_}')
    a(f's_mul_i32 s36, s34, {4*WS_}')
    a('s_add_u32 s38, s38, s36')
    if M2:
        a(f's_mul_i32 s4, s39, {224*1024}')
        a('s_lshl_b32 s6, s3, 14')
        a('s_add_u32 s6, s6, s4')
        a(f's_add_u32 s6, s6, {hex(ACT)}')
    else:
        a('s_lshl_b32 s6, s35, 3')
        a('s_add_u32 s6, s6, s3')
        a(f's_mul_i32 s6, s6, {16*YP}')
        a('s_add_u32 s6, s6, s4')
    a(f's_add_u32 s42, s6, {16*AP}')
    a(f's_mul_i32 s36, s34, {4*AP}')
    a('s_add_u32 s6, s6, s36')
    a(f's_mul_i32 s4, s39, {224*1024}')
    a(f's_mul_i32 s5, s3, {12*1024}')
    a('s_add_u32 s5, s5, s4')
    a(f's_add_u32 s5, s5, {hex(ACT + 64*1024)}')
    a(f's_add_u32 s41, s5, {12*1024}')
    a(f's_mul_i32 s36, s34, {3*1024}')
    a('s_add_u32 s5, s5, s36')
    a('s_lshl_b32 s39, s39, 16')
    a('s_and_b32 s24, s32, 7')
    a('s_lshl_b32 s24, s24, 7')
    a('s_add_u32 s39, s39, s24')
    a('v_bfe_u32 v4, v1, 1, 2')
    a('v_and_b32 v5, 1, v1')
    a('v_lshlrev_b32 v5, 2, v5')
    a(f'v_lshl_add_u32 v4, v4, {7 if M2 else 4}, v5')
    a('s_lshl_b32 s35, s35, 3')
    a('v_add_u32 v13, s35, v4')
    a('s_cmp_ge_u32 s3, 2')
    for r, (reg0, reg1, dist) in enumerate(((250, 16, 112*1024), (251, 17, 112*1024 if M2 else 64*YP))):
        a(f's_cselect_b32 s36, {dist}, 0')
        a(f'v_add_u32 v{reg0}, s36, v15')
        a(f's_cselect_b32 s36, 0, {dist}')
        a(f'v_add_u32 v{reg1}, s36, v15')
    a('v_lshlrev_b32 v73, 7, v1')
    a('s_lshl_b32 s34, s2, 2')
    a('s_add_u32 s34, s34, s3')
    a(f's_mul_i32 s34, s34, {14*128}')
    poll('f1', look(F1), [22], mask=0xffff)
    stamp('f1ok'); raw(3, 's51')
    htok = {}
    def h2load(ks):
        htok[ks] = vm.issue(f'buffer_load_dwordx4 a[{4*ks}:{4*ks+3}], v14, s[16:19], s28 offen offset:{1024*(ks&3)} sc1')
        if (ks & 3) == 3:
            a('s_add_u32 s28, s28, 0x1000'); a('s_and_b32 s28, s28, 0x7fff')
    NH0 = P.get('nh0', 8)
    for ks in range(NH0): h2load(ks)
    slow(4)
    a('s_barrier')
    stamp('b0')
    wtok, atok = {}, {}
    def wd0(i):
        so = 's37' if i < 12 else 's38'
        a(f's_add_u32 m0, s26, {8192*WBL[i]}')
        if i not in (0, 12): a(f's_add_u32 {so}, {so}, {WS_}')
        vm.issue(f'buffer_load_dwordx4 v8, s[8:11], {so} offen lds')
    def wd1(i):
        wtok[i] = vm.issue(f'buffer_load_dwordx4 v9, s[8:11], {"s37" if i < 12 else "s38"} offen offset:1024 lds')
    def wreg(i): return ('v', 72 + 8*i) if i < 5 else ('a', 224 + 8*(i-5)) if i < 8 else ('v', AR + 8*(i % 3))
    def wread(i, mt, jj):
        kind, d = wreg(i); ad = 8192*WBL[i]
        return f'ds_read_b64_tr_b16 {kind}[{d+4*mt+2*jj}:{d+4*mt+2*jj+1}], v{240+2*(ad>>16)+mt} offset:{(ad & 0xffff)+1024*jj}'
    def abase(i): return 128 + 8*i if i < 12 else 8*(i-12)
    def act0(i):
        b = abase(i)
        if i < 12:
            if i and i % 4 == 0: a('s_add_u32 s5, s5, 0x1000')
            vm.issue(f'buffer_load_dwordx4 a[{b}:{b+3}], v250, s[16:19], s5 offen offset:{1024*(i & 3)} sc1')
        else:
            if i > 12: a(f's_add_u32 s6, s6, {AP}')
            vm.issue(f'buffer_load_dwordx4 a[{b}:{b+3}], v251, s[16:19], s6 offen sc1')
    def act1(i):
        b = abase(i)
        if i < 12: atok[i] = vm.issue(f'buffer_load_dwordx4 a[{b+4}:{b+7}], v16, s[16:19], s5 offen offset:{1024*(i & 3)} sc1')
        else: atok[i] = vm.issue(f'buffer_load_dwordx4 a[{b+4}:{b+7}], v17, s[16:19], s6 offen sc1')
    valu = deque()
    AR, NA = 24, 6
    ACC1, ACC2 = 192, 128
    pipe = LdsPipe(a)
    steps = [(0, k, ct) for k in range(32) for ct in range(2)] + [(0, k, 2) for k in range(32)] + [(1, k, ct) for k in range(32) for ct in range(4)]
    tok = {}; nxt = [0]
    def rd(n):
        ps, k, ct = steps[n]; d = AR + 4*(n % NA)
        for jj in range(2):
            b, off = (18, (16*k + 4*jj)*96 + 32*ct) if ps == 0 else (246+ct, 2048*(k % 15) + 512*jj)
            tok[n] = pipe.issue(f'ds_read_b64_tr_b16 v[{d+2*jj}:{d+2*jj+1}], v{b} offset:{off}')
    for n in range(NA-1): rd(n)
    nxt[0] = NA-1
    J = dict(h=NH0, p=NS0, w=0, half=False, a=0, ahalf=False, pmax=15, wmax=0, f2=False, lastp=-99)
    stg = {}
    def wfree(i): return i < J['wmax'] and (not 12 <= i < 20 or stg.get(i - 12, 1 << 30) <= pipe.done)
    def job(n):
        if J['half']: J['half'] = False; wd1(J['w']); J['w'] += 1; return 1
        if J['h'] < 32: h2load(J['h']); J['h'] += 1; return 1
        if J['p'] < J['pmax'] and n - J['lastp'] >= PE: p2dma(J['p']); J['p'] += 1; J['lastp'] = n; return 3
        if J['ahalf']: J['ahalf'] = False; act1(J['a']); J['a'] += 1; return 1
        if J['f2'] and J['a'] < 12 and (J['a'] <= J['w'] - P.get('wa', 8) or not wfree(J['w']) or J['w'] >= 28):
            act0(J['a']); J['ahalf'] = True; return 1
        if J['w'] < 28 and wfree(J['w']) and n >= P.get('ws', 112): wd0(J['w']); J['half'] = True; return 3
        return 0
    VB = P.get('vb', 35); PE = P.get('pe', 3); TE = P.get('te', 15); LW = P.get('lw', 2)
    stok = {}; sg = 0; credit = 0; nb = 0; ta = 0; fload = look(F2); tp = None
    F2P, F2C = P.get('f2p', 999), P.get('f2c', 204)
    def gelu_step(x, n):
        if isinstance(x, tuple):
            stok[x[1]] = vm.issue(f'buffer_store_dwordx4 v[{x[2]}:{x[2]+3}], v15, s[16:19], s46 offen offset:{1024*x[1]} sc1')
            stok['at'] = n
        else: a(x)
    for n, (ps, k, ct) in enumerate(steps):
        if n < 64 and ct == 0:
            while k not in htok: job(n)
            vm.need(htok[k])
        if tok[n] > pipe.done: pipe.need(tok[min(n + LW - 1, len(steps) - 1)])
        d = (ACC1, ACC2)[ps] + 16*ct; c = '0' if k == 0 else f'v[{d}:{d+15}]'
        sa = AR + 4*(n % NA)
        a(f'v_mfma_f32_32x32x16_bf16 v[{d}:{d+15}], v[{sa}:{sa+3}], a[{4*k}:{4*k+3}], {c}')
        if nxt[0] < len(steps): rd(nxt[0]); nxt[0] += 1
        credit = min(credit + VB, P.get('cap', 40))
        if n in BARS:
            land, J['pmax'], J['wmax'] = BARS[n][0], J['pmax'], J['wmax']
            if land is not None:
                while land not in ptok:
                    if J['half']: job(n)
                    p2dma(J['p']); J['p'] += 1
                vm.need(ptok[land])
            a('s_barrier')
            J['pmax'], J['wmax'] = BARS[n][1:]
            nb += 1; stamp(f'b{nb}'); credit -= 10
        if n == P.get('wt', 999 if RL else 60):
            a('s_mov_b64 exec, 0x3fff')
            vm.issue('buffer_load_dword v72, v73, s[8:11], s34 offen')
            a('s_mov_b64 exec, -1')
        if n in (65, 97):
            if n == 65: stamp('p1a')
            else: stamp('p1end')
            for t in ((0, 1) if n == 65 else (2,)):
                o = 64 + 4*(t & 1)
                valu.extend(gelu_ops(ACC1+16*t, 48 + 8*(t & 1), o))
                valu.append(('store', t, o))
        ta += 10
        if n == F2P and 'f2' in stok: tp = masked(fload, 0xff); ta = 0
        elif n == F2C and tp is not None:
            poll('f2', fload, [22], pre=tp, mask=0xff); J['f2'] = True
            stamp('f2ok'); raw(4, 's51')
        elif ta >= TE:
            cst = job(n)
            if cst: ta -= TE; credit -= 10*cst
            else: ta = TE
        if n >= P.get('stg', 160) and sg < 32 and pipe.outstanding() <= 13 and credit >= 10 and (not valu or n % 2):
            i, r = divmod(sg, 4)
            if i in wtok and (wtok[i] <= vm.done or vm.issued - wtok[i] >= P.get('sl', 8)):
                vm.need(wtok[i])
                t = pipe.issue(wread(i, r >> 1, r & 1)); sg += 1; credit -= 10
                if r == 3: stg[i] = t
        while valu and credit >= 10*(cost(valu[0]) if isinstance(valu[0], str) else 1):
            x = valu.popleft(); gelu_step(x, n)
            if isinstance(x, str): credit -= 10*cost(x)
        if 2 in stok and 'f2' not in stok and n >= stok['at'] + P.get('fdel', 24):
            vm.need(stok[2])
            stok['f2'] = flag(F2); print('F2 at', n, end='; ')
    while valu: gelu_step(valu.popleft(), 224)
    if 'f2' not in stok:
        vm.need(stok[2])
        stok['f2'] = flag(F2)
    assert J['p'] == 32 and J['h'] == 32
    print('w_down steps', J['w'], 'staged', sg, 'act steps', J['a'])
    while sg < 32:
        i, r = divmod(sg, 4)
        while i not in wtok: job(999)
        vm.need(wtok[i])
        stg[i] = pipe.issue(wread(i, r >> 1, r & 1)); sg += 1
    pipe.need(pipe.issued)
    if tp is None and P.get('fp', 2) < 4: tp = masked(fload, 0xff)
    a('s_mov_b32 s34, 1.0'); a('s_mov_b32 s35, 1.0')
    def geglu2(t):
        s = Asm(); geglu(s, ACC2+16*t, 48, 64 + 4*(t & 1))
        for j, l in enumerate(s.lines):
            a(l.replace('s[46:47]', 's[34:35]'))
            if j % P.get('ge', 8) == 3 and t < P.get('gt', 4): job(999)
        if t: a(f's_add_u32 s47, s47, {AP}')
        return lstore([f'buffer_store_dwordx4 v[{64+4*(t&1)}:{67+4*(t&1)}], v15, s[16:19], s47 offen'], P.get('a2s', 1))
    for t in range(4):
        if t == P.get('fp', 2) and not J['f2']:
            stamp('g1')
            poll('f2', fload, [22], pre=tp, mask=0xff); J['f2'] = True
            stamp('f2ok'); raw(4, 's51')
        if t == 3 and tp is None: tp = masked(fload, 0xff)
        ts3 = geglu2(t)
    stamp('g3')
    a('v_and_b32 v4, 31, v1')
    a('v_lshrrev_b32 v5, 5, v1')
    a('v_lshlrev_b32 v10, 10, v4')
    a('v_lshl_add_u32 v10, v5, 4, v10')
    a('s_lshr_b32 s46, s3, 1')
    a('s_lshl_b32 s46, s46, 15')
    a('s_and_b32 s47, s3, 1')
    a('s_lshl_b32 s47, s47, 6')
    a('s_add_u32 s39, s39, s46')
    a('s_add_u32 s39, s39, s47')
    a(f's_add_u32 s46, s39, {hex(X1)}')
    vm.need(ts3)
    flag(F3)
    if not J['f2']:
        poll('f2', fload, [22], pre=tp, mask=0xff); J['f2'] = True
        stamp('f2ok'); raw(4, 's51')
        while J['a'] < P.get('a1b', 3): job(999)
    if M2: a(f's_add_u32 s25, s25, {FL3-FL2}')
    stamp('estart')
    pipe = LdsPipe(a); tok = {}
    def rd2(i):
        while i not in wtok: job(999)
        vm.need(wtok[i])
        for mt in range(2):
            for jj in range(2): tok[(i, mt)] = pipe.issue(wread(i, mt, jj))
    f3load = look(F3)
    for i in range(8): stg[i] = 0
    F3C = P.get('f3c', 8); JE = P.get('je', 2); tp = None; g = 0; aq = deque()
    for i in range(28):
        stamp(f'e{i}')
        if i == F3C:
            while J['a'] < 12 or J['half']: job(999)
            if tp is None: tp = masked(f3load, 0xff)
            poll('f3', f3load, [22], pre=tp, mask=0xff)
            stamp('f3ok'); raw(5, 's51')
            for ii in range(12, 28): aq.extend([lambda ii=ii: act0(ii), lambda ii=ii: act1(ii)])
            for _ in range(P.get('a2b', 4)): aq.popleft()()
        if i == 22:
            vm.issue('buffer_load_dwordx4 v[72:75], v10, s[16:19], s46 offen sc1')
            tx = vm.issue('buffer_load_dwordx4 v[76:79], v10, s[16:19], s46 offen offset:32 sc1')
        kind, d0 = wreg(i); b = abase(i)
        while i not in atok: (aq.popleft()() if i >= 12 else job(999))
        vm.need(atok[i])
        for mt in range(2):
            if i >= 8: pipe.need(tok[(i, mt)])
            for nt in range(2):
                d = ACC2 + 32*mt + 16*nt; c = '0' if i == 0 else f'v[{d}:{d+15}]'
                a(f'v_mfma_f32_32x32x16_bf16 v[{d}:{d+15}], {kind}[{d0+4*mt}:{d0+4*mt+3}], a[{b+4*nt}:{b+4*nt+3}], {c}')
                g += 1
                if mt == 0 and nt == 0 and 8 <= i+2 < 28: rd2(i+2)
                if g % JE == 0:
                    if aq and not J['half'] and (J['w'] >= 28 or J['w'] > i + P.get('wb', 28)): aq.popleft()()
                    elif tp is None and not J['half'] and J['a'] == 12 and (J['w'] >= 28 or i == F3C - 1): tp = masked(f3load, 0xff)
                    elif not job(999) and aq: aq.popleft()()
    stamp('eend')
    PBL = [None, (WBL[8], WBL[9]), (WBL[10], WBL[11]), (WBL[12], WBL[13])]
    a('v_add_u32 v4, s26, v15')
    a('v_add_u32 v5, 0x10000, v4')
    a('v_add_u32 v18, 0x20000, v4')
    base(a, 12, 56, 0x200000)
    for t in range(1, 4):
        d = ACC2 + 32*(t & 1) + 16*(t >> 1)
        for g in range(4):
            ad = 8192*PBL[t][g >> 1] + 1024*(g & 1)
            a(f'ds_write_b128 v{(4, 5, 18)[ad >> 16]}, v[{d+4*g}:{d+4*g+3}] offset:{ad & 0xffff}')
        a(f's_xor_b32 s6, s26, {2048*t}')
        a(f's_add_u32 s7, s6, {8192*PBL[t][1]}')
        a(f's_add_u32 s6, s6, {8192*PBL[t][0]}')
        a(f'v_add_u32 v{88+2*t}, s6, v15')
        a(f'v_add_u32 v{89+2*t}, s7, v15')
    vm.need(tx)
    unpack8(a, 96, 124, 40); unpack8(a, 104, 116, 40); unpack8(a, 48, 72, 40); unpack8(a, 56, 76, 40)
    a('s_waitcnt lgkmcnt(0)')
    a('s_barrier')
    stamp('ebar')
    for i in range(1, 4):
        for g in range(4):
            a(f'ds_read_b128 v[{128+16*i+4*g}:{131+16*i+4*g}], v{88+2*i+(g >> 1)} offset:{1024*(g & 1)}')
    for i in range(1, 4):
        a(f's_waitcnt lgkmcnt({12-4*i})')
        for p in range(8): a(f'v_pk_add_f32 v[{128+2*p}:{129+2*p}], v[{128+2*p}:{129+2*p}], v[{128+16*i+2*p}:{129+16*i+2*p}]')
    for g in range(2):
        b = 128 + 8*g
        for r in range(4): a(f'v_permlane32_swap_b32 v{b+r}, v{b+4+r}')
        for p in range(4): a(f'v_pk_fma_f32 v[{b+2*p}:{b+2*p+1}], v[{b+2*p}:{b+2*p+1}], v[{96+8*g+2*p}:{97+8*g+2*p}], v[{48+8*g+2*p}:{49+8*g+2*p}]')
        for p in range(4): a(f'v_cvt_pk_bf16_f32 v{40+4*g+p}, v{b+2*p}, v{b+2*p+1}')
        a(f'buffer_store_dwordx4 v[{40+4*g}:{43+4*g}], v10, s[12:15], s39 offen offset:{32*g}' + ('', ' sc1', ' nt')[P.get('ost', 0)])
    a('s_or_b32 s4, s2, s3')
    a('s_cmp_lg_u32 s4, 0')
    a('s_cbranch_scc1 L_noep')
    a(f's_mov_b32 s4, {hex(EPOCH)}')
    a('buffer_store_dword v20, v21, s[16:19], s4 offen')
    a.label('L_noep')
    if P.get('probe') is not None:
        a('s_waitcnt vmcnt(0)')
        stamp('end')
        a('s_waitcnt lgkmcnt(0)')
        k = P['probe']
        if k >= 200:
            a(f's_add_u32 s4, s58, {hex(EPOCH + 0x100)}')
            a('s_addc_u32 s5, s59, 0')
            a('s_load_dwordx4 s[92:95], s[4:5], 0')
            a('s_waitcnt lgkmcnt(0)')
            a('s_cmp_eq_u64 s[92:93], s[94:95]')
            a('s_cselect_b32 s92, 10000, 0' if k == 200 else 's_cselect_b32 s92, 0, 10000')
            a('s_add_u32 s92, s92, s70')
        elif k >= 100:
            a(f's_mov_b32 s36, {hex(0x140A000)}')
            a('buffer_load_dwordx4 v[24:27], v15, s[16:19], s36 offen sc1')
            a('s_waitcnt vmcnt(0)')
            for r, op in ((28, 'min'), (29, 'max')):
                a(f'v_{op}_u32 v{r}, v24, v25')
                a(f'v_{op}3_u32 v{r}, v{r}, v26, v27')
                for ctl in ('row_ror:1', 'row_ror:2', 'row_ror:4', 'row_ror:8'):
                    a(f'v_{op}_u32_dpp v{r}, v{r}, v{r} {ctl} row_mask:0xf bank_mask:0xf')
                for i in range(4): a(f'v_readlane_b32 s{4+i}, v{r}, {16*i}')
                a(f's_{op}_u32 s4, s4, s5'); a(f's_{op}_u32 s6, s6, s7'); a(f's_{op}_u32 s{r+62}, s4, s6')
            if k == 100: a('s_add_u32 s92, s90, 6000')
            elif k == 101:
                a('s_sub_u32 s92, s91, s90'); a('s_lshl_b32 s92, s92, 2'); a('s_add_u32 s92, s92, s90'); a('s_add_u32 s92, s92, 4000')
            else:
                a(f's_sub_u32 s92, s{60+2*(k-110)}, s90'); a('s_lshl_b32 s92, s92, 2'); a('s_add_u32 s92, s92, s90'); a('s_add_u32 s92, s92, 4000')
        elif k == 0:
            a('s_add_u32 s92, s60, 6000')
        else:
            a(f's_sub_u32 s92, s{60+2*k}, s60')
            a('s_lshl_b32 s92, s92, 2')
            a('s_add_u32 s92, s92, s60')
            a('s_add_u32 s92, s92, 4000')
        a.label('L_probe')
        a('s_memrealtime s[94:95]')
        a('s_waitcnt lgkmcnt(0)')
        a('s_sub_u32 s94, s94, s92')
        a('s_cmp_lt_i32 s94, 0')
        a('s_cbranch_scc1 L_probe')
    elif P.get('stamps'):
        a('s_waitcnt vmcnt(0)')
        stamp('end')
        a('s_cmp_lg_u32 s3, 0')
        a('s_cbranch_scc1 L_end')
        a('s_lshl_b32 s94, s2, 7')
        a(f's_add_u32 s94, s94, {hex(TS)}')
        a('s_add_u32 s92, s58, s94')
        a('s_addc_u32 s93, s59, 0')
        a('v_lshlrev_b32 v250, 2, v1')
        a('s_lshl_b32 s94, s2, 8')
        a(f's_add_u32 s94, s94, {hex(TS + 0x80000)}')
        a('s_add_u32 s94, s58, s94')
        a('s_addc_u32 s95, s59, 0')
        a('global_store_dword v250, v254, s[94:95]')
        a('s_mov_b64 exec, 1')
        if P.get('dbg'):
            a('s_load_dwordx2 s[94:95], s[0:1], 104')
        a('s_waitcnt lgkmcnt(0)')
        if P.get('dbg'):
            a('s_not_b32 s60, s60')
            for m in sorted(marks):
                a(f'v_mov_b32 v250, s{60+2*m}')
                a(f'global_atomic_umax v21, v250, s[94:95] offset:{4*m}')
                a('s_nop 1')
            a('s_not_b32 s60, s60')
        for m in sorted(marks):
            a(f'v_mov_b32 v250, s{60+2*m}')
            a(f'v_mov_b32 v251, s{61+2*m}')
            a(f'global_store_dwordx2 v21, v[250:251], s[92:93] offset:{8*m}')
            a('s_nop 1')
    a.label('L_end')
    a.label('L_last')
    a('s_endpgm')
    return dict(grid=256, block=256, lds=163840, vgpr=512, accum=256)
```

```python
from collections import deque
from asmlib import *
from k123 import fh, lo, hi, unpack8, ln_stats, LdsPipe, A_OUT, A_WS
from k45 import VmPipe, GC1, GC2, geglu
from cde import zipl, gelu_ops, cost

UT, YT, X1, H2, ACT = 0, 0x400000, 0x900000, 0, 0xD00000
MODT, EPOCH, GRP, MP, TS = 0x1400000, 0x1408000, 0x1410000, 0x1480000, 0x1500000
YP = 16384 + 128
XID, UH, F1, F2, F3 = 0, 128, 1024, 1536, 2048
P1U = 49280
SEG = [(0, 98432, 129152), (15, 0, 49280), (27, 24576, 73856)]
CB, CHS, KB, U0, U1 = 98432, 12992, 512, 4608, 8768
PB = CB + 2*CHS
PRM = PB + 32768
MPART = PRM + 6144
XG = 129152 + 112*128
YS = 1040
XH = XG + 8*YS
PS = 272
SPIN = 1 << 15
WBL = list(range(12)) + list(range(8)) + [13, 17, 14, 18, 12, 15, 16, 19]
BARS = {89: (5, 15, 0), 111: (9, 19, 20), 127: (13, 23, 20), 143: (17, 27, 20), 159: (21, 31, 20), 175: (25, 32, 20),
        191: (29, 32, 22), 207: (31, 32, 24), 223: (None, 32, 28)}
assert MPART + 512 <= 163840 and XH + 8192 <= 163840
def seg_of(k): return SEG[0] if k < 15 else SEG[1] if k < 27 else SEG[2]

def base(a, d, p, n):
    a(f's_mov_b32 s{d}, s{p}'); a(f's_mov_b32 s{d+1}, s{p+1}'); a(f's_mov_b32 s{d+2}, {hex(n)}')

FL1, FL2, FL3 = 0x1420000, 0x1428000, 0x1430000
def ln1p(a, X, D, T, s0):
    a(f'v_pk_add_f32 v[{T}:{T+1}], v[{X}:{X+1}], v[{X+2}:{X+3}]')
    a(f'v_pk_mul_f32 v[{T+2}:{T+3}], v[{X}:{X+1}], v[{X}:{X+1}]')
    a(f'v_pk_add_f32 v[{D}:{D+1}], v[{X+4}:{X+5}], v[{X+6}:{X+7}]')
    for p in range(1, 4):
        a(f'v_pk_fma_f32 v[{T+2}:{T+3}], v[{X+2*p}:{X+2*p+1}], v[{X+2*p}:{X+2*p+1}], v[{T+2}:{T+3}]')
    a(f'v_pk_add_f32 v[{T}:{T+1}], v[{T}:{T+1}], v[{D}:{D+1}]')
    a(f'v_add_f32 v{T+2}, v{T+2}, v{T+3}')
    a(f'v_add_f32 v{T}, v{T}, v{T+1}')
    for ctl in ('row_shr:1', 'row_shr:2', 'row_shr:4', 'row_shr:8'):
        for r in (T+2, T): a(f'v_add_f32_dpp v{r}, v{r}, v{r} {ctl} row_mask:0xf bank_mask:0xf bound_ctrl:1')
    for ctl in ('row_bcast:15 row_mask:0xa', 'row_bcast:31 row_mask:0xc'):
        for r in (T+2, T): a(f'v_add_f32_dpp v{r}, v{r}, v{r} {ctl} bank_mask:0xf')
    a(f'v_readlane_b32 s{s0+1}, v{T+2}, 63')
    a(f'v_readlane_b32 s{s0}, v{T}, 63')
    a(f'v_mov_b32 v{T+1}, {fh(1.0/512)}')
    a(f'v_mov_b32 v{T+3}, {fh(1e-5)}')
    a(f'v_mul_f32 v{T}, s{s0}, v{T+1}')
    a(f'v_fmac_f32 v{T+3}, s{s0+1}, v{T+1}')
    a(f'v_fma_f32 v{T+2}, -v{T}, v{T}, v{T+3}')
    a(f'v_max_f32 v{T+2}, {fh(1e-5)}, v{T+2}')
    a(f'v_rsq_f32 v{T+2}, v{T+2}')
    for p in range(4):
        a(f'v_pk_add_f32 v[{D+2*p}:{D+2*p+1}], v[{X+2*p}:{X+2*p+1}], v[{T}:{T+1}] op_sel:[0,0] op_sel_hi:[1,0] neg_lo:[0,1] neg_hi:[0,1]')
    for p in range(4):
        a(f'v_pk_mul_f32 v[{D+2*p}:{D+2*p+1}], v[{D+2*p}:{D+2*p+1}], v[{T+2}:{T+3}] op_sel:[0,0] op_sel_hi:[1,0]')
def ln2p(s, X, D, T, s0):
    ln_stats(s, X, D, T, s0)
    for p in range(4):
        s(f'v_pk_mul_f32 v[{D+2*p}:{D+2*p+1}], v[{D+2*p}:{D+2*p+1}], v[{T}:{T+1}] op_sel:[0,0] op_sel_hi:[1,0]')

def mega(a, P):
    M2 = P.get('m2', 0)
    RL = P.get('rl', 1)
    RP = P.get('rp', 0)
    W2, PR = 0xB00000, (128 if RP else 3584)
    WD2, WS_ = 0x200000, (2048 if RL else 0x4000)
    H2 = 0xB00000 if M2 else 0
    marks = set()
    SETS = {1: 'start kv0 utst utok bbar end bend ytst ytok h2dr b0 p1end b9 estart f3ok eend',
            2: 'start kv0 kvN abar utst end ut1st uhok utok bbar bend pbar ytst ytack ytok mdok',
            3: 'start ytst ln1 ytack ytok end ybar hbar h2st h2dr f1ok b0 b1 b2 b3 p1end',
            6: 'start b0 p1a p1end b2 end b3 b4 b5 b6 b7 b8 b9 f2ok g3 estart',
            7: 'start estart e2 e4 e6 end f3ok e8 e10 e12 e14 e16 e20 e24 eend ebar',
            8: 'start x1 x2 x3 x4 end',
            5: 'start karg x2 x3 x4 end x6 x7 x8 x9 x10 x11 x12 kv0 issued pre',
            4: 'start p1end b5 b6 b7 end b8 g1 f2ok g3 estart e12 f3ok e20 eend ebar'}
    names = SETS[P.get('stamps', 1)].split()
    def stamp(name):
        if P.get('stamps') and name in names:
            slot = names.index(name)
            a(f's_memrealtime s[{60+2*slot}:{61+2*slot}]'); marks.add(slot)
    def raw(i, sreg):
        if P.get('stamps'): a(f'v_writelane_b32 v254, {sreg}, {i}')
    vm = VmPipe(a)
    NT = ' nt' if P.get('nt', 1) else ''
    nst = [0]
    def lstore(lines, through=False):
        if through:
            for l in lines: t = vm.issue(l + ' sc1')
            return t
        return lstore2(lines)
    def lstore2(lines):
        n = nst[0]; nst[0] += 1
        a('s_cmp_eq_u32 s101, 0')
        a(f's_cbranch_scc1 L_ls{n}a')
        for l in lines: a(l + ' sc1')
        a(f's_branch L_ls{n}b')
        a.label(f'L_ls{n}a')
        for l in lines: t = vm.issue(l)
        a.label(f'L_ls{n}b')
        return t
    SL = P.get('sleep', 1); PM = P.get('pm', 1)
    def masked(lines, mask):
        if mask and PM: a(f's_mov_b64 exec, {hex(mask)}')
        for l in lines: t = vm.issue(l)
        if mask and PM: a('s_mov_b64 exec, -1')
        return t
    def poll(name, loads, tags, pre=None, mask=None):
        a(f's_mov_b32 s51, {SPIN}')
        if pre is not None:
            vm.need(pre)
            stamp(name + '1st')
        if mask and PM: a(f's_mov_b64 exec, {hex(mask)}')
        a(f's_branch L_{name}_chk' if pre is not None else f's_branch L_{name}_go')
        a.label(f'L_{name}')
        if SL: a(f's_sleep {SL}')
        a.label(f'L_{name}_go')
        for l in loads: a(l)
        a('s_waitcnt vmcnt(0)')
        a.label(f'L_{name}_chk')
        a(f'v_cmp_ne_u32 vcc, s50, v{tags[0]}')
        for i, t in enumerate(tags[1:]): a(f'v_cmp_ne_u32 s[{92+2*i}:{93+2*i}], s50, v{t}')
        a('s_sub_u32 s51, s51, 1')
        a(f's_cbranch_scc1 L_{name}_ok')
        for i in range(len(tags)-1): a(f's_or_b64 vcc, vcc, s[{92+2*i}:{93+2*i}]')
        a(f's_cbranch_vccnz L_{name}')
        a.label(f'L_{name}_ok')
        if mask and PM: a('s_mov_b64 exec, -1')
        if pre is None: vm.done = vm.issued

    a('s_cmp_ge_u32 s2, 256')
    a('s_cbranch_scc1 L_end')
    stamp('start')
    if P.get('stamps'): a('v_mov_b32 v254, 0')
    a('s_load_dwordx16 s[64:79], s[0:1], 0')
    if P.get('cpf', 1):
        a('s_getpc_b64 s[4:5]')
        a.label('L_pc')
        a('v_lshlrev_b32 v3, 7, v0')
        a('v_mov_b32 v5, s5')
        a('v_add_co_u32 v4, vcc, s4, v3')
        a(f'v_cmp_gt_u32 s[6:7], {P.get("cpn", 16)}, v0')
        a('v_and_b32 v1, 63, v0')
        a('v_addc_co_u32 v5, vcc, 0, v5, vcc')
        a('s_and_b64 exec, exec, s[6:7]')
        a('s_cbranch_execz L_nopf')
        a('global_load_dword v169, v[4:5], off')
        a.label('L_nopf')
        a('s_mov_b64 exec, -1')
    else: a('v_and_b32 v1, 63, v0')
    a(f's_load_dwordx2 s[58:59], s[0:1], {A_WS}')
    a('s_load_dwordx8 s[80:87], s[0:1], 64')
    a(f's_load_dwordx2 s[56:57], s[0:1], {A_OUT}')
    a('v_lshrrev_b32 v2, 6, v0')
    a('v_readfirstlane_b32 s3, v2')
    a('s_mov_b32 s40, 0xffff0000')
    a('s_and_b32 s28, s2, 7')
    a('s_lshr_b32 s29, s2, 3')
    a('s_lshl_b32 s32, s28, 5')
    a('s_or_b32 s32, s32, s29')
    a('v_and_b32 v3, 31, v0')
    a('v_lshrrev_b32 v2, 5, v0')
    a('s_lshl_b32 s33, s29, 6')
    a('v_lshl_add_u32 v4, v2, 3, s33')
    a('s_lshl_b32 s33, s28, 7')
    a('v_lshl_add_u32 v5, v3, 2, s33')
    a('v_lshl_add_u32 v5, v4, 10, v5')
    a('v_subrev_u32 v4, 0xc00, v5')
    a('s_lshl_b32 s33, s28, 9')
    a('v_lshl_add_u32 v13, v3, 4, s33')
    a('s_movk_i32 s35, 0x1000')
    a('s_mov_b32 s15, 0x20000'); a('s_mov_b32 s27, 0x20000'); a('s_mov_b32 s19, 0x20000')
    a('s_mov_b32 s23, 0x20000'); a('s_mov_b32 s11, 0x20000'); a('s_mov_b32 s55, 0x20000')
    a('v_lshlrev_b32 v15, 4, v1')
    a('v_mov_b32 v21, 0')
    a('v_lshlrev_b32 v14, 4, v0')
    a('s_waitcnt lgkmcnt(0)')
    stamp('karg')
    if P.get('wso'):
        a(f's_add_u32 s58, s58, {hex(P["wso"] << 20)}')
        a('s_addc_u32 s59, s59, 0')
    base(a, 12, 70, 4096)
    base(a, 24, 68, 0x200000)
    tsh = vm.issue('buffer_load_dwordx4 v[48:51], v13, s[12:15], 0 offen' + NT)
    base(a, 12, 66, 0x200000)
    for i in range(3): vm.issue(f'buffer_load_dword v{24+i}, v4, s[12:15], 0 offen offset:{1024*i}' + NT)
    tk = {}
    for i in range(8):
        so = 's35' if i >= 4 else '0'
        vm.issue(f'buffer_load_dword v{27+i}, v5, s[12:15], {so} offen offset:{1024*(i&3)}' + NT)
        tk[i] = vm.issue(f'buffer_load_dword v{36+i}, v5, s[24:27], {so} offen offset:{1024*(i&3)}' + NT)
    stamp('issued')
    a(f's_add_u32 s4, s58, {hex(EPOCH)}')
    a('s_addc_u32 s5, s59, 0')
    a('s_load_dword s50, s[4:5], 0')
    if P.get('cpf', 1):
        a('s_getpc_b64 s[6:7]')
        a.label('L_pc2')
        a('s_lshl_b32 s36, s29, 2')
        a('s_add_u32 s36, s36, s3')
        a('v_and_b32 v4, 1, v0')
        a('v_lshl_add_u32 v4, s36, 1, v4')
        a('v_min_u32 v4, (L_last-L_pc2)/128, v4')
        a('v_lshlrev_b32 v4, 7, v4')
        a('v_mov_b32 v5, s7')
        a('v_add_co_u32 v4, vcc, s6, v4')
        a('v_addc_co_u32 v5, vcc, 0, v5, vcc')
        a('s_mov_b64 exec, 3')
        vm.issue('global_load_dword v168, v[4:5], off')
        a('s_mov_b64 exec, -1')
    if P.get('kvbar', 1): a('s_barrier')
    a('s_lshl_b32 s33, s32, 2')
    a('s_add_u32 s6, s74, s33')
    a('s_addc_u32 s7, s75, 0')
    a('s_load_dword s34, s[6:7], 0')
    a('s_lshl_b32 s33, s32, 13')
    SK = {}
    def skload():
        base(a, 12, 72, 0x200000)
        a('s_lshl_b32 s36, s32, 13')
        vm.issue('buffer_load_dwordx4 v[146:149], v14, s[12:15], s36 offen' + NT)
        a('s_add_u32 s36, s36, 0x1000')
        SK['t'] = vm.issue('buffer_load_dwordx4 v[150:153], v14, s[12:15], s36 offen' + NT)
    if P.get('skat', 0) == 0: skload()
    a('s_mul_i32 s30, s28, 6')
    a('s_lshr_b32 s31, s29, 2')
    a('s_add_u32 s30, s30, s31')
    a('s_and_b32 s31, s29, 3')
    a('s_lshl_b32 s46, s30, 2')
    a('s_or_b32 s46, s46, s31')
    a('s_lshl_b32 s47, s31, 2')
    a('s_or_b32 s47, s47, s3')
    a('v_and_b32 v16, 1, v0')
    a('v_lshrrev_b32 v17, 3, v1')
    a('v_and_b32 v6, 7, v1')
    a('v_mul_u32_u24 v242, 0x6000, v17')
    a('v_lshl_add_u32 v242, v6, 4, v242')
    a('v_lshlrev_b32 v243, 3, v17')
    a('s_lshl_b32 s36, s3, 11')
    a('s_add_u32 s33, s33, s36')
    WM = {}
    def wmload():
        base(a, 12, 84, 1024)
        a('s_lshl_b32 s36, s47, 6')
        tc = vm.issue('buffer_load_dwordx2 v[144:145], v243, s[12:15], s36 offen')
        base(a, 12, 86, 512*6144)
        a('s_cmp_lt_u32 s29, 24')
        a('s_cselect_b32 s14, s14, 0')
        a('s_lshr_b32 s36, s46, 2')
        a('s_lshl_b32 s36, s36, 7')
        a(f's_mul_i32 s37, s47, {32*6144}')
        a('s_add_u32 s36, s36, s37')
        twm = []
        for r in range(4):
            twm.append(vm.issue(f'buffer_load_dwordx4 v[{128+4*r}:{131+4*r}], v242, s[12:15], s36 offen' + NT))
            if r < 3: a('s_add_u32 s36, s36, 0x1800')
        WM.update(tc=tc, twm=twm)
    if P.get('wat', 2) == 0: wmload()
    if M2:
        a('s_and_b32 s30, s2, 1')
        a('s_lshl_b32 s30, s30, 3')
        a('s_and_b32 s98, s29, 7')
        a('s_or_b32 s30, s30, s98')
        a('s_bfe_u32 s31, s2, 0x20001')
        a('s_lshl_b32 s31, s31, 2')
        a('s_lshr_b32 s36, s2, 6')
        a('s_or_b32 s31, s31, s36')
        a('s_lshl_b32 s36, s36, 1')
        a('s_add_u32 s98, s98, s36')
    else:
        a('s_lshr_b32 s30, s32, 4')
        a('s_and_b32 s31, s32, 15')
        a(f's_and_b32 s98, s30, {P.get("prot", 0)}')
        a('s_lshl_b32 s98, s98, 2')
        if P.get('xrot', 1): a('s_add_u32 s98, s98, s28')
    a('s_and_b32 s98, s98, 7')
    a('s_lshr_b32 s38, s3, 1')
    a('s_and_b32 s39, s3, 1')
    a('s_cmp_eq_u32 s38, 0')
    a('s_cselect_b32 s20, s78, s80')
    a('s_cselect_b32 s21, s79, s81')
    a(f's_mov_b32 s22, {512*3584 if not P.get("now") else 0}')
    base(a, 8, 82, 1792*1024 if not P.get('now') else 0)
    base(a, 16, 58, TS)
    a('s_lshl_b32 s36, s28, 12')
    a(f's_add_u32 s36, s36, {hex(GRP)}')
    a('s_add_u32 s52, s58, s36')
    a('s_addc_u32 s53, s59, 0')
    a('s_movk_i32 s54, 0x1000')
    a('s_cmp_eq_u32 s3, 3')
    a('s_cselect_b32 s37, 0, 0x70000000')
    a('v_mov_b32 v22, s37')
    a('s_lshl_b32 s36, s29, 7')
    vm.issue('buffer_load_dword v158, v22, s[52:55], s36 offen')
    a('s_lshl_b32 s36, s46, 6')
    a(f's_add_u32 s36, s36, {hex(MODT)}')
    vm.issue('buffer_load_dword v159, v22, s[16:19], s36 offen')
    if M2 and P.get('ft', 1):
        a('s_lshl_b32 s36, s30, 4')
        a('s_lshr_b32 s37, s32, 4')
        a('s_lshl_b32 s37, s37, 4')
        a('s_sub_u32 s37, s37, s36')
        a('s_add_u32 s37, s37, 0x100')
        a('v_lshrrev_b32 v4, 2, v1')
        a('v_min_u32 v5, 1, v4')
        a('v_mul_lo_u32 v5, v5, s37')
        a('v_max_u32 v4, 1, v4')
        a('v_subrev_u32 v4, 1, v4')
        a('v_lshl_add_u32 v5, v4, 8, v5')
        a('v_and_b32 v4, 3, v1')
        a('v_add_u32 v5, v5, v4')
        a('s_lshl_b32 s37, s3, 2')
        a('s_add_u32 s36, s36, s37')
        a('v_add_lshl_u32 v5, v5, s36, 7')
        a(f's_mov_b32 s36, {hex(FL1)}')
        a('s_mov_b64 exec, 0xfff')
        vm.issue('buffer_load_dword v156, v5, s[16:19], s36 offen')
        a('s_mov_b64 exec, -1')
    a('s_lshl_b32 s36, s32, 13')
    a('s_lshl_b32 s37, s46, 11')
    a(f's_add_u32 s37, s37, {hex(MP)}')
    a('s_cmp_eq_u32 s3, 1')
    a(f's_cselect_b32 s37, s37, {hex(TS)}')
    a('s_cselect_b32 s44, 15, 63')
    a('s_cmp_eq_u32 s3, 2')
    a('s_cselect_b32 s37, s36, s37')
    a('v_and_b32 v4, s44, v1')
    a('v_lshlrev_b32 v4, 7, v4')
    if P.get('utt', 1): vm.issue('buffer_load_dword v157, v4, s[16:19], s37 offen' + (' nt' if P.get('ntu', 0) else ''))
    if P.get('tlb', 0) == 1:
        a('v_lshl_add_u32 v4, v1, 20, v22')
        for i, (p, n) in enumerate(((86, 512*6144), (84, 1024), (64, 0x200000), (78, 512*3584), (80, 512*3584), (82, 1792*1024), (56, 0x200000))):
            base(a, 12, p, n)
            vm.issue(f'buffer_load_dword v{160+i}, v4, s[12:15], 0 offen')
        vm.issue('buffer_load_dword v154, v4, s[16:19], 0 offen')
    for i in range(3):
        a(f'v_add_u32 v4, {64*i}, v1')
        a('v_mul_u32_u24 v5, 0x2aab, v4')
        a('v_lshrrev_b32 v5, 16, v5')
        a(f'v_mul_u32_u24 v5, {3584-96}, v5')
        a(f'v_lshl_add_u32 v{10+i}, v4, 4, v5')
        if i: a(f'v_subrev_u32 v{10+i}, {1024*i}, v{10+i}')
    a(f's_mul_i32 s41, s39, {32*3584}')
    a('s_mul_i32 s43, s31, 96')
    a('s_add_u32 s41, s41, s43')
    a('s_add_u32 s41, s41, 0x800')
    a('s_mul_i32 s43, s39, 3072')
    a(f's_mul_i32 s42, s38, {P1U}')
    a('s_add_u32 s42, s42, s43')
    a(f's_add_u32 s99, s41, {512*3584}')
    a(f's_mul_i32 s36, s98, {64*3584}')
    a('s_add_u32 s41, s41, s36')
    def step(reg, inc, lim, span):
        a(f's_add_u32 {reg}, {reg}, {inc}')
        a(f's_cmp_eq_u32 {reg}, {lim}')
        a(f's_cselect_b32 s36, {span}, 0')
        a(f's_sub_u32 {reg}, {reg}, s36')
    early = deque()
    def p1dma(m, i):
        if i == 0: a(f's_add_u32 m0, s42, {6144*m}')
        vm.issue(f'buffer_load_dwordx4 v{10+i}, s[20:23], s41 offen offset:{1024*i} lds')
        if i == 2 and m < 7: step('s41', 64*3584, 's99', 512*3584)
    for m in range(8):
        for i in range(3): early.append(lambda m=m, i=i: p1dma(m, i))
    for _ in range(P.get('e0', 0)): early.popleft()()
    a('v_lshrrev_b32 v4, 3, v1')
    a('v_bfe_u32 v5, v1, 4, 1')
    a('v_lshlrev_b32 v5, 2, v5')
    a('v_xor_b32 v5, v5, v6')
    a('v_lshlrev_b32 v5, 4, v5')
    a(f'v_lshl_add_u32 v8, v4, {7 if RL else 10}, v5')
    a(f'v_add_u32 v9, {0 if RL else 8192-1024}, v8')
    a('s_lshl_b32 s43, s38, 5')
    a('v_xor_b32 v5, s43, v5')
    a(f'v_mul_u32_u24 v7, {PR}, v4')
    a('v_add_u32 v7, v7, v5')
    a(f's_mul_i32 s48, s39, {8*PR}')
    a(f's_lshl_b32 s43, s31, {16 if RP else 7}')
    a('s_add_u32 s48, s48, s43')
    if RP:
        a('s_lshl_b32 s43, s38, 20')
        a('s_add_u32 s48, s48, s43')
        a(f's_add_u32 s48, s48, {hex(W2)}')
    a('s_lshl_b32 s43, s39, 10')
    a(f's_mul_i32 s49, s38, {SEG[0][2]-SEG[0][1]}')
    a('s_add_u32 s49, s49, s43')
    a(f's_mul_i32 s38, s38, {P1U}')
    a('s_add_u32 s43, s43, s38')
    a('v_sub_u32 v4, 7, v2')
    a('v_xor_b32 v4, v4, v6')
    a('v_lshl_add_u32 v4, v3, 4, v4')
    a(f'v_lshlrev_b32 v4, 4, v4')
    a(f'v_add_u32 v120, {PB}, v4')
    a('v_lshrrev_b32 v4, 4, v1')
    a('v_xor_b32 v5, v4, v1')
    a('s_lshl_b32 s36, s3, 11')
    a(f's_add_u32 s36, s36, {PB}')
    a('v_lshl_add_u32 v124, v5, 4, s36')
    a('v_xor_b32 v125, 64, v124')
    a('v_lshrrev_b32 v4, 3, v1')
    a('v_lshlrev_b32 v5, 4, v6')
    a('v_lshl_add_u32 v13, v4, 12, v5')
    a('s_lshl_b32 s36, s28, 2')
    a('s_add_u32 s36, s36, s3')
    a('s_lshl_b32 s36, s36, 16')
    a('s_sub_u32 s35, 31, s29')
    a('s_lshl_b32 s35, s35, 7')
    a('s_add_u32 s35, s35, s36')
    if 200 > P.get('probe', 0) >= 100:
        a('v_mov_b32 v22, s60')
        a('s_lshl_b32 s36, s2, 2')
        a(f's_add_u32 s36, s36, {hex(0x140A000)}')
        vm.issue('buffer_store_dword v22, v21, s[16:19], s36 offen sc1')
    def slow_gu():
        a('v_bfe_u32 v4, v1, 1, 3')
        a('v_and_b32 v5, 1, v4')
        a('v_lshlrev_b32 v5, 9, v5')
        a(f'v_mul_u32_u24 v4, 3584, v4')
        a('v_add_u32 v4, v4, v5')
        a('v_and_b32 v5, 1, v1')
        a('v_lshl_add_u32 v4, v5, 10, v4')
        a('v_bfe_u32 v5, v1, 4, 1')
        a('v_lshl_add_u32 v4, v5, 11, v4')
        a('s_lshl_b32 s36, s29, 1')
        a('s_and_b32 s37, s3, 1')
        a('s_add_u32 s36, s36, s37')
        a(f's_mul_i32 s36, s36, {8*3584}')
        a('s_mov_b32 exec_hi, 0')
        vm.issue('buffer_load_dword v252, v4, s[20:23], s36 offen offset:384')
        a('s_mov_b32 exec_hi, -1')
    def slow_d():
        a('v_lshlrev_b32 v4, 10, v1')
        a('s_and_b32 s36, s32, 31')
        a('s_lshl_b32 s36, s36, 2')
        a('s_add_u32 s36, s36, s3')
        a(f's_mul_i32 s36, s36, {14*1024}')
        a('s_mov_b64 exec, 0x3fff')
        vm.issue('buffer_load_dword v253, v4, s[8:11], s36 offen offset:384')
        a('s_mov_b64 exec, -1')
    def slow(at):
        if P.get('sg', 0) == at: slow_gu()
        if P.get('sd', 0) == at: slow_d()
    stamp('pre')
    vm.need(tsh)
    lo(a, 52, 48); hi(a, 54, 48, 40); lo(a, 56, 49); hi(a, 58, 49, 40)
    lo(a, 53, 50); hi(a, 55, 50, 40); lo(a, 57, 51); hi(a, 59, 51, 40)
    vm.need(tk[0])
    stamp('kv0')
    if P.get('skat', 0) == 1: skload()
    if P.get('wat', 2) == 1: wmload()
    def xload():
        vm.issue('buffer_load_dwordx4 v[232:235], v15, s[12:15], s33 offen' + NT)
        return vm.issue('buffer_load_dwordx4 v[236:239], v15, s[12:15], s33 offen offset:1024' + NT)
    for q in range(3):
        lo(a, 60+2*q, 24+q); hi(a, 61+2*q, 24+q, 40)
    for r in range(8):
        vm.need(tk[r])
        lo(a, 66+2*r, 27+r); hi(a, 67+2*r, 27+r, 40)
        lo(a, 84+2*r, 36+r); hi(a, 85+2*r, 36+r, 40)
        d = 102+2*r
        a(f'v_pk_mul_f32 v[{d}:{d+1}], v[{60+2*r}:{61+2*r}], v[58:59]')
        a(f'v_pk_fma_f32 v[{d}:{d+1}], v[{62+2*r}:{63+2*r}], v[56:57], v[{d}:{d+1}]')
        a(f'v_pk_fma_f32 v[{d}:{d+1}], v[{64+2*r}:{65+2*r}], v[54:55], v[{d}:{d+1}]')
        a(f'v_pk_fma_f32 v[{d}:{d+1}], v[{66+2*r}:{67+2*r}], v[52:53], v[{d}:{d+1}]')
        a(f'v_pk_mul_f32 v[{d}:{d+1}], v[{d}:{d+1}], v[{84+2*r}:{85+2*r}]')
    if P.get('skat', 0) == 2: skload()
    if P.get('wat', 2) == 2: wmload()
    tc, twm, tsk = WM['tc'], WM['twm'], SK['t']
    base(a, 12, 64, 0x200000)
    slow(1)
    stamp('kvN')
    for c in range(2):
        for jj in range(4):
            a(f'v_cvt_pk_bf16_f32 v{24+4*c+jj}, v{102+2*(7-2*jj)+c}, v{102+2*(6-2*jj)+c}')
        a(f'ds_write_b128 v120, v[{24+4*c}:{27+4*c}] offset:{128*c}')
    a('s_waitcnt lgkmcnt(0)')
    a('s_barrier')
    stamp('abar')
    for j in range(2): a(f'ds_read_b128 v[{104+4*j}:{107+4*j}], v{124+j} offset:{1024*j}')
    a('s_mul_i32 s50, s50, 1664525')
    a('s_add_u32 s50, s50, 1013904223')
    a('v_mov_b32 v20, s50')
    a('s_getreg_b32 s100, hwreg(HW_REG_XCC_ID, 0, 4)')
    if P.get('slow'): a('s_and_b32 s100, s29, 1')
    a('s_add_u32 s100, s100, s50')
    a('s_add_u32 s100, s100, 1')
    a('s_mov_b32 s24, s35')
    a('s_add_u32 s25, s35, 0x8000')
    ustores = [f'buffer_store_dwordx4 v[{104+4*j}:{107+4*j}], v13, s[16:19], s{24+j} offen' for j in range(2)]
    for j in range(2):
        a(f's_waitcnt lgkmcnt({1-j})')
        tus = vm.issue(ustores[j] + (' sc1' if P.get('uts', 0) else ''))
    a('s_lshl_b32 s7, s3, 7')
    a('s_lshl_b32 s36, s29, 2')
    a('s_add_u32 s7, s7, s36')
    a('v_mov_b32 v123, s100')
    stamp('utst')
    for i in range(4): a(f'v_mov_b32 v{40+i}, 0')
    a(f'v_add_u32 v14, {CB}, v14')
    a('v_cmp_gt_u32 vcc, 32, v0')
    a('s_and_saveexec_b64 s[36:37], vcc')
    a('s_cbranch_execz L_nz')
    a('ds_write_b128 v14, v[40:43]')
    a(f'ds_write_b128 v14, v[40:43] offset:{CHS}')
    a('v_cmp_gt_u32 vcc, 2, v0')
    a('s_and_b64 exec, exec, vcc')
    for c in range(2):
        a(f'ds_write_b128 v14, v[40:43] offset:{c*CHS+U0+4096}')
        a(f'ds_write_b128 v14, v[40:43] offset:{c*CHS+U1+4096}')
    a.label('L_nz')
    a('s_mov_b64 exec, s[36:37]')
    a('v_cmp_eq_u32 s[36:37], 0, v0')
    a('s_lshl_b32 s4, s34, 16')
    a('s_and_b32 s5, s34, 0xffff0000')
    a('s_mov_b32 s6, 0xffff')
    vm.need(tsk)
    stamp('skok')
    for c in range(2):
        kx = 146+4*c
        lo(a, 44, kx)
        a(f'v_add_f32 v44, s{4+c}, v44')
        a('v_cvt_pk_bf16_f32 v44, v44, v44')
        a(f'v_bfi_b32 v44, s6, v44, v{kx}')
        a(f'v_cndmask_b32 v{kx}, v{kx}, v44, s[36:37]')
        a(f'ds_write_b128 v14, v[{kx}:{kx+3}] offset:{c*CHS+KB}')
    vm.need(tus)
    masked([f'buffer_store_dword v123, v21, s[52:55], s7 offen offset:{UH}'], 1)
    a('v_and_b32 v120, 31, v1')
    a('v_lshlrev_b32 v120, 2, v120')
    a('s_lshr_b32 s5, s29, 3')
    a('s_lshl_b32 s5, s5, 7')
    hloads = [f'buffer_load_dword v121, v120, s[52:55], 0 offen offset:{XID} sc1', f'buffer_load_dword v124, v120, s[52:55], s5 offen offset:{UH} sc1']
    a('v_mov_b32 v121, s50')
    tu = masked(hloads[1:], 0xffffffff)
    a('v_lshrrev_b32 v4, 1, v6')
    a('v_lshlrev_b32 v4, 11, v4')
    a('v_lshl_add_u32 v4, v16, 6, v4')
    a('v_lshrrev_b32 v5, 5, v1')
    a('v_lshl_add_u32 v4, v5, 5, v4')
    a('v_bfe_u32 v5, v1, 4, 1')
    a('v_lshl_add_u32 v244, v5, 4, v4')
    a('s_lshl_b32 s35, s32, 13')
    a('s_add_u32 s34, s35, 0x1000')
    a('v_lshlrev_b32 v125, 4, v0')
    vm.need(tc)
    lo(a, 44, 144); hi(a, 45, 144, 40); lo(a, 46, 145); hi(a, 47, 145, 40)
    for r in range(4): a(f'v_mul_f32 v{48+r}, {fh(-1.4426950408889634)}, v{44+r}')
    for r in range(4): a(f'v_exp_f32 v{48+r}, v{48+r}')
    for r in range(4): a(f'v_add_f32 v{48+r}, 1.0, v{48+r}')
    for r in range(4): a(f'v_rcp_f32 v{48+r}, v{48+r}')
    for r in range(4): a(f'v_mul_f32 v{44+r}, v{44+r}, v{48+r}')
    a('v_cvt_pk_bf16_f32 v48, v44, v45')
    a('v_cvt_pk_bf16_f32 v49, v46, v47')
    lo(a, 44, 48); hi(a, 45, 48, 40); lo(a, 46, 49); hi(a, 47, 49, 40)
    def stage1():
        for r in range(4):
            vm.need(twm[r])
            unpack8(a, 52, 128+4*r, 40)
            sel = 'op_sel:[0,0,0] op_sel_hi:[1,0,1]' if r % 2 == 0 else 'op_sel:[0,1,0] op_sel_hi:[1,1,1]'
            sp = 44 + (r & 2)
            for j in range(4):
                if r == 0:
                    a(f'v_pk_mul_f32 v[{60+2*j}:{61+2*j}], v[{52+2*j}:{53+2*j}], v[{sp}:{sp+1}] op_sel:[0,0] op_sel_hi:[1,0]')
                else:
                    a(f'v_pk_fma_f32 v[{60+2*j}:{61+2*j}], v[{52+2*j}:{53+2*j}], v[{sp}:{sp+1}], v[{60+2*j}:{61+2*j}] {sel}')
        for j in range(4): a(f'v_permlane32_swap_b32 v{60+j}, v{64+j}')
        for j in range(4): a(f'v_add_f32 v{60+j}, v{60+j}, v{64+j}')
        a('s_lshr_b32 s6, s46, 2')
        a('s_lshl_b32 s6, s6, 13')
        for j in range(2): a(f'v_permlane16_swap_b32 v{60+j}, v{62+j}')
        a('s_lshl_b32 s36, s47, 7')
        for j in range(2): a(f'v_add_f32 v{100+j}, v{60+j}, v{62+j}')
        a('v_mov_b32 v102, s50')
        a('v_mov_b32 v103, s50')
        for j in range(2): a(f'v_add_f32_dpp v{100+j}, v{100+j}, v{100+j} row_ror:8 row_mask:0xf bank_mask:0xf')
        a('s_add_u32 s6, s6, s36')
        a(f's_add_u32 s6, s6, {hex(MP)}')
        a('s_cmp_lt_u32 s29, 24')
        a(f's_cselect_b32 s6, s6, {hex(TS)}')
    if P.get('s1at', 1) == 0: stage1()
    a('s_lshr_b32 s36, s3, 1')
    a(f's_mul_i32 s36, s36, {CHS}')
    a('s_xor_b32 s38, s39, 1')
    a('s_lshl_b32 s38, s38, 6')
    a('s_add_u32 s36, s36, s38')
    a(f's_add_u32 s36, s36, {CB}')
    a('v_and_b32 v3, 15, v0')
    a('v_bfe_u32 v4, v0, 4, 2')
    a('v_lshlrev_b32 v5, 4, v4')
    a('v_lshl_add_u32 v22, v3, 5, v5')
    a(f's_add_u32 s38, s36, {KB-480}')
    a('v_add_u32 v22, s38, v22')
    a('v_and_b32 v23, 14, v3')
    a('v_lshlrev_b32 v23, 1, v23')
    a('v_sub_u32 v23, v5, v23')
    a(f'v_mul_u32_u24 v5, {U1-U0}, v16')
    a('v_sub_u32 v23, v23, v5')
    a(f's_add_u32 s38, s36, {U1+28}')
    a('v_add_u32 v16, s38, v23')
    for i in range(1, 4): a(f'v_add_u32 v{16+i}, {1024*i}, v16')
    a('v_bfe_u32 v5, v3, 1, 2')
    a('v_xor_b32 v5, v5, v4')
    a('v_lshl_add_u32 v5, v3, 2, v5')
    a('s_lshl_b32 s38, s3, 13')
    a(f's_add_u32 s38, s38, {PB}')
    a('v_lshl_add_u32 v23, v5, 4, s38')
    KP = P.get('kp', 1)
    if KP:
        a('s_waitcnt lgkmcnt(0)')
        a('s_barrier')
        for j in range(4, 32): a(f'ds_read_b128 v[{104+4*j}:{107+4*j}], v22 offset:{128*j}') if not 120 <= 104+4*j < 156 else None
    a(f's_mov_b32 s51, {SPIN}')
    a('s_mov_b32 s101, 0')
    vm.need(tu)
    stamp('ut1st')
    if PM: a('s_mov_b32 exec_hi, 0')
    a('s_branch L_uh_chk')
    a.label('L_uh')
    if SL: a(f's_sleep {SL}')
    a(f's_cmp_lg_u32 s51, {SPIN - P.get("idl", 4)}')
    a('s_cbranch_scc1 L_noid')
    a('s_cmp_lg_u32 s3, 0')
    a('s_cbranch_scc1 L_noid')
    a('s_lshl_b32 s36, s29, 2')
    a('s_mov_b64 exec, 1')
    a(f'buffer_store_dword v123, v21, s[52:55], s36 offen offset:{XID} sc1')
    a('s_mov_b64 exec, 0xffffffff' if PM else 's_mov_b64 exec, -1')
    a.label('L_noid')
    for l in hloads: a(l)
    a('s_waitcnt vmcnt(0)')
    a.label('L_uh_chk')
    a('v_cmp_ne_u32 vcc, s100, v124')
    a('v_subrev_u32 v122, s50, v121')
    a('v_subrev_u32 v122, 1, v122')
    a('s_cbranch_vccz L_uh_ok')
    a('v_cmp_lt_u32 vcc, 15, v122')
    a('v_cmp_ne_u32 s[92:93], s100, v121')
    a('s_sub_u32 s51, s51, 1')
    a('s_cbranch_scc1 L_uh_ok')
    a('s_cbranch_vccnz L_uh')
    a('s_cmp_eq_u64 s[92:93], 0')
    a('s_cbranch_scc1 L_uh_same')
    a('s_cmp_lg_u32 s101, 0')
    a('s_cbranch_scc1 L_uh_same')
    a('s_mov_b32 s101, 1')
    a('s_mov_b64 exec, -1')
    for l in ustores: a(l + ' sc1')
    a('s_waitcnt vmcnt(0)')
    a(f'buffer_store_dword v20, v21, s[52:55], s7 offen offset:{UH} sc1')
    if PM: a('s_mov_b32 exec_hi, 0')
    a.label('L_uh_same')
    a('v_cmp_ne_u32 vcc, s50, v124')
    a('v_cmp_ne_u32 s[92:93], s100, v124')
    a('s_nop 0')
    a('s_and_b64 vcc, vcc, s[92:93]')
    a('s_cbranch_vccnz L_uh')
    a.label('L_uh_ok')
    a('s_mov_b64 exec, -1')
    raw(6, 's51')
    stamp('uhok')
    tu = []
    for c in range(2):
        vm.issue(f'buffer_load_dwordx4 v[{72+4*c}:{75+4*c}], v125, s[16:19], s{35-c} offen sc1')
        tu.append(vm.issue(f'buffer_load_dword v{80+c}, v125, s[16:19], s{35-c} offen offset:16 sc1'))
    if P.get('s1at', 1) == 1: stage1()
    lstore(['buffer_store_dwordx4 v[100:103], v244, s[16:19], s6 offen'])
    if KP:
        for j in list(range(4)) + list(range(4, 13)): a(f'ds_read_b128 v[{104+4*j}:{107+4*j}], v22 offset:{128*j}')
    if P.get('xat', 1) == 1: tx = xload()
    CP = {}
    if RL:
        a('s_mul_i32 s44, s2, 7')
        a('s_lshl_b32 s45, s3, 1')
        a('s_add_u32 s44, s44, s45')
        a('s_cmp_eq_u32 s3, 3')
        a('s_cselect_b32 s45, 0, 1')
        a('s_add_u32 s45, s45, s44')
        for r in range(2):
            a(f's_lshl_b32 s36, s{44+r}, 10')
            CP['l'] = vm.issue(f'buffer_load_dwordx4 v[{32+4*r}:{35+4*r}], v15, s[8:11], s36 offen' + NT)
    if RP:
        a('s_lshl_b32 s43, s2, 1')
        a('s_add_u32 s43, s43, s39')
        a('s_mul_i32 s36, s43, 3584')
        for r in range(2): CP['pl'] = vm.issue(f'buffer_load_dwordx4 v[{24+4*r}:{27+4*r}], v15, s[20:23], s36 offen offset:{1024*r}' + NT)
    def p2copy():
        a('v_lshrrev_b32 v4, 3, v1')
        a('v_lshlrev_b32 v4, 16, v4')
        a('v_lshl_add_u32 v4, v6, 4, v4')
        a('s_lshr_b32 s36, s3, 1')
        a('s_lshl_b32 s36, s36, 20')
        a('s_lshl_b32 s43, s43, 7')
        a('s_add_u32 s36, s36, s43')
        a(f's_add_u32 s36, s36, {hex(W2)}')
        vm.need(CP['pl'])
        vm.issue('buffer_store_dwordx4 v[24:27], v4, s[16:19], s36 offen sc1')
        a('s_add_u32 s36, s36, 0x80000')
        CP['s'] = vm.issue('buffer_store_dwordx4 v[28:31], v4, s[16:19], s36 offen sc1')
    def wdcopy():
        a('v_lshrrev_b32 v4, 3, v1')
        a(f'v_mul_u32_u24 v4, {1792*128}, v4')
        a('v_lshl_add_u32 v4, v6, 4, v4')
        vm.need(CP['l'])
        for r in range(2):
            a(f's_lshl_b32 s36, s{44+r}, 7')
            a(f's_add_u32 s36, s36, {hex(WD2)}')
            CP['s'] = vm.issue(f'buffer_store_dwordx4 v[{32+4*r}:{35+4*r}], v4, s[16:19], s36 offen sc1')
    a('s_movk_i32 s36, 0xff')
    a('v_cmp_ne_u32 vcc, s36, v0')
    for c in range(2):
        u = 72+4*c
        vm.need(tu[c])
        if c == 0: stamp('utok')
        a(f'v_cndmask_b32 v{80+c}, 0, v{80+c}, vcc')
        a(f'ds_write_b128 v14, v[{u}:{u+3}] offset:{c*CHS+U0}')
        for j in range(3): a(f'v_alignbit_b32 v{40+4*c+j}, v{u+j+1}, v{u+j}, 16')
        a(f'v_alignbit_b32 v{43+4*c}, v{80+c}, v{u+3}, 16')
        a(f'ds_write_b128 v14, v[{40+4*c}:{43+4*c}] offset:{c*CHS+U1}')
    for _ in range(P.get('e0b', 6)): early.popleft()()
    a('s_waitcnt lgkmcnt(0)')
    a('s_barrier')
    stamp('bbar')
    a('s_lshl_b32 s6, s46, 11')
    a(f's_add_u32 s6, s6, {hex(MP)}')
    a('s_cmp_lt_u32 s29, 24')
    a(f's_cselect_b32 s7, s3, 1')
    ploads = [f'buffer_load_dwordx4 v[{240+4*j}:{243+4*j}], v15, s[16:19], s6 offen offset:{1024*j} sc1' for j in range(2)]
    tmi = []
    def mod_issue():
        a('s_cmp_lg_u32 s7, 0')
        a('s_cbranch_scc1 L_nomi')
        for l in ploads: a(l)
        a.label('L_nomi')
        tmi.append(vm.issued)
    def mod_final():
        a('s_cmp_lg_u32 s7, 0')
        a('s_cbranch_scc1 L_nomod')
        done = vm.done
        a(f's_waitcnt vmcnt({vm.issued - tmi[0]})')
        poll('mp', ploads, [242, 246], pre=0)
        vm.done = done
        a('v_pk_add_f32 v[240:241], v[240:241], v[244:245]')
        a('s_lshr_b32 s36, s46, 5')
        a('s_cmp_eq_u32 s36, 1')
        for j in range(2): a(f'v_add_f32_dpp v{240+j}, v{240+j}, v{240+j} row_ror:8 row_mask:0xf bank_mask:0xf')
        a('s_cselect_b32 s38, 1.0, 0')
        a('s_cmp_eq_u32 s36, 4')
        for op in ('v_permlane16_swap_b32', 'v_permlane32_swap_b32'):
            for j in range(2): a(f'v_mov_b32 v{242+j}, v{240+j}')
            for j in range(2): a(f'{op} v{240+j}, v{242+j}')
            a('v_pk_add_f32 v[240:241], v[240:241], v[242:243]')
        a('s_cselect_b32 s38, 1.0, s38')
        a('s_lshl_b32 s36, s46, 6')
        a('v_cvt_pk_bf16_f32 v242, v240, v241')
        a(f's_add_u32 s36, s36, {hex(MODT)}')
        lo(a, 240, 242); hi(a, 241, 242, 40)
        for j in range(2): a(f'v_add_f32 v{240+j}, s38, v{240+j}')
        a('v_cvt_pk_bf16_f32 v244, v240, v241')
        a('v_mov_b32 v246, s50')
        a('v_mov_b32 v247, s50')
        a('v_mov_b32_dpp v245, v244 quad_perm:[1,1,3,3] row_mask:0xf bank_mask:0xf')
        a('v_lshlrev_b32 v240, 3, v1')
        a('s_mov_b64 exec, 0x55')
        a('buffer_store_dwordx4 v[244:247], v240, s[16:19], s36 offen sc1')
        a('s_mov_b64 exec, -1')
        a.label('L_nomod')
    ACC, AR, BR = 40, 72, 104
    pipe = LdsPipe(a)
    reads = []
    for i in range(32):
        o = 32*((31-i) & 7); b = 16 + ((31-i) >> 3); d = AR + 4*(i & 7)
        reads.append((('A', i, 0), f'ds_read2_b32 v[{d}:{d+1}], v{b} offset0:{o} offset1:{o+1}'))
        reads.append((('A', i, 1), f'ds_read2_b32 v[{d+2}:{d+3}], v{b} offset0:{o+2} offset1:{o+3}'))
        if i < 4 and not KP:
            for t in range(8):
                j = 4*t+3-i
                reads.append((('B', j), f'ds_read_b128 v[{BR+4*j}:{BR+4*j+3}], v22 offset:{128*j}'))
    tok = {('B', j): 0 for j in range(32)} if KP else {}; nxt = [0]
    def pump(cur_step, maxn):
        n = 0
        while n < maxn and nxt[0] < len(reads) and pipe.outstanding() < 13:
            key, line = reads[nxt[0]]
            if key[0] == 'A' and key[1] >= cur_step + 8: break
            tok[key] = pipe.issue(line); nxt[0] += 1; n += 1
    pump(0, 12)
    slow(2)
    MAT = P.get('mat', 0)
    pending = []; nm = 0
    NB = P.get('e1', 9); EV = P.get('ev', 10)
    for i in range(32):
        for t in range(i >> 2, 8):
            j = 4*t+3-i
            while ('B', j) not in tok or ('A', i, 1) not in tok:
                pipe.need(pipe.done + 2); pump(i, 2)
            pipe.need(max(tok[('A', i, 1)], tok[('B', j)]))
            d = ACC+4*t; c = '0' if i == 0 else f'v[{d}:{d+3}]'
            s = AR+4*(i & 7)
            a(f'v_mfma_f32_16x16x32_bf16 v[{d}:{d+3}], v[{s}:{s+3}], v[{BR+4*j}:{BR+4*j+3}], {c}')
            pump(i, 2 if i < 4 else 1)
            nm += 1
            if nm >= P.get('e1s', 40) and nm % EV == 0 and NB > 0 and early:
                early.popleft()(); NB -= 1
        if pending and pipe.outstanding() < 14:
            t = pending.pop()
            pipe.issue(f'ds_write_b128 v23, v[{ACC+4*t}:{ACC+4*t+3}] offset:{1024*t}')
        if (i & 3) == 3: pending.append(i >> 2)
        if RL and i == P.get('cpa', 10): wdcopy()
        if RP and i == P.get('cpa', 10) + 1: p2copy()
        if i == P.get('mpi', 2) and not MAT: mod_issue()
        if i == P.get('mfin', 7) and not MAT: mod_final(); raw(7, 's51')
    for t in pending:
        pipe.issue(f'ds_write_b128 v23, v[{ACC+4*t}:{ACC+4*t+3}] offset:{1024*t}')
    stamp('bend')
    a('v_lshlrev_b32 v4, 3, v0')
    a(f'v_add_u32 v4, {PRM}, v4')
    a('v_lshrrev_b32 v2, 1, v0')
    a('v_bfe_u32 v3, v0, 4, 2')
    a('v_xor_b32 v2, v2, v3')
    a('v_lshlrev_b32 v2, 4, v2')
    a('v_and_b32 v3, 1, v0')
    a('v_lshl_add_u32 v2, v3, 3, v2')
    a(f'v_add_u32 v2, {PB}, v2')
    a('v_lshlrev_b32 v3, 4, v0')
    a('v_and_b32 v5, 3, v0')
    a(f's_mul_i32 s38, s32, {YP}')
    a(f's_add_u32 s38, s38, {hex(YT)}')
    a(f'v_add_u32 v13, {PRM}, v15')
    a('s_and_b32 s36, s32, 7')
    a('s_lshl_b32 s36, s36, 1')
    a('s_and_b32 s37, s3, 1')
    a('s_or_b32 s36, s36, s37')
    a('s_lshl_b32 s36, s36, 6')
    a(f's_add_u32 s36, s36, {PRM+5120}')
    a('v_lshrrev_b32 v14, 5, v1')
    a('v_lshl_add_u32 v14, v14, 4, s36')
    if RL or RP: vm.need(CP['s'])
    a('s_waitcnt lgkmcnt(0)')
    a('s_barrier')
    stamp('pbar')
    for j in range(4):
        for w in range(4):
            a(f'ds_read_b64 v[{72+8*j+2*w}:{73+8*j+2*w}], v2 offset:{8192*w+2048*j}')
        if j == 2: a('s_waitcnt lgkmcnt(8)')
    if MAT: mod_issue()
    for j in range(4):
        b = 72+8*j; q = 24+4*j
        if j: a(f's_waitcnt lgkmcnt({12-4*j})')
        a(f'v_pk_add_f32 v[{b}:{b+1}], v[{b}:{b+1}], v[{b+2}:{b+3}]')
        a(f'v_pk_add_f32 v[{b+4}:{b+5}], v[{b+4}:{b+5}], v[{b+6}:{b+7}]')
        a(f'v_mov_b32 v{q+2}, s50')
        a(f'v_mov_b32 v{q+3}, s50')
        a(f'v_cvt_pk_bf16_f32 v{q}, v{b}, v{b+4}')
        a(f'v_cvt_pk_bf16_f32 v{q+1}, v{b+1}, v{b+5}')
        tys = vm.issue(f'buffer_store_dwordx4 v[{q}:{q+3}], v3, s[16:19], s38 offen sc1')
        if j < 3: a('s_add_u32 s38, s38, 0x1000')
    stamp('ytst')
    a('v_mov_b32 v22, v4')
    a('v_mov_b32 v23, v14')
    a('v_mov_b32 v60, v5')
    slow(3)
    a('v_mov_b32 v5, v60')
    if MAT: mod_final(); raw(7, 's51')
    if MAT == 2: a('s_barrier')
    for _ in range(P.get('e2', 6)): early.popleft()()
    a('s_lshl_b32 s35, s3, 10')
    a(f's_add_u32 s35, s35, {hex(MODT)}')
    a('s_add_u32 s34, s35, 0x1000')
    a('s_add_u32 s4, s35, 0x2000')
    mloads = [f'buffer_load_dwordx4 v[{104+4*r}:{107+4*r}], v15, s[16:19], s{(35, 34, 4)[r]} offen sc1' for r in range(3)]
    a('v_lshrrev_b32 v4, 2, v0')
    a(f'v_mul_u32_u24 v3, {2*YS}, v5')
    a('v_lshl_add_u32 v3, v4, 2, v3')
    a(f'v_add_u32 v3, {XG}, v3')
    a(f's_mul_i32 s46, s3, {2*YS}')
    a(f's_add_u32 s46, s46, {XG}')
    a('v_add_u32 v4, s46, v15')
    a('s_lshl_b32 s46, s3, 1')
    a('v_xor_b32 v5, s46, v6')
    a('v_lshlrev_b32 v5, 4, v5')
    a('v_lshl_add_u32 v5, v1, 7, v5')
    a(f'v_add_u32 v5, {XH}, v5')
    a('v_xor_b32 v16, 16, v5')
    a('v_lshrrev_b32 v17, 3, v1')
    a('v_xor_b32 v18, v17, v6')
    a('v_lshlrev_b32 v18, 4, v18')
    a('v_lshl_add_u32 v18, v17, 7, v18')
    a('s_lshl_b32 s46, s3, 11')
    a(f's_add_u32 s46, s46, {XH}')
    a('v_add_u32 v18, s46, v18')
    a('v_lshlrev_b32 v17, 9, v17')
    a('v_lshl_add_u32 v17, v6, 4, v17')
    a('s_lshr_b32 s46, s32, 2')
    a('s_lshl_b32 s46, s46, 15')
    a('s_and_b32 s47, s32, 3')
    a('s_lshl_b32 s47, s47, 7')
    a('s_add_u32 s46, s46, s47')
    a('s_lshl_b32 s47, s3, 13')
    a('s_add_u32 s46, s46, s47')
    a(f's_add_u32 s46, s46, {hex(H2)}')
    a('s_add_u32 s47, s46, 0x1000')
    a(f's_add_u32 s37, s33, {hex(X1)}')
    a('v_lshrrev_b32 v14, 2, v0')
    a(f'v_mul_u32_u24 v14, {YP}, v14')
    a('v_and_b32 v19, 3, v0')
    a('v_lshl_add_u32 v14, v19, 4, v14')
    a('s_lshl_b32 s24, s32, 6')
    a(f's_add_u32 s26, s24, {hex(YT)}')
    a(f's_add_u32 s27, s26, {64*YP}')
    a(f's_add_u32 s5, s26, {128*YP}')
    a(f's_add_u32 s6, s26, {192*YP}')
    X = (64, 160)
    vm.need(tx)
    subs = []
    for t in range(2):
        s = Asm(); unpack8(s, X[t], 232+4*t, 40); ln2p(s, X[t], X[t]+8, X[t]+16, 24+t)
        subs.append(s)
    zipl(a, *subs)
    stamp('ln1')
    yloads = [f'buffer_load_dwordx4 v[{24+4*j}:{27+4*j}], v14, s[16:19], s{(26, 27, 5, 6)[j]} offen sc1' for j in range(4)]
    vm.need(tys)
    stamp('ytack')
    for l in yloads: ty = vm.issue(l)
    for l in mloads: tm = vm.issue(l)
    poll('yt', yloads, [26, 30, 34, 38], pre=ty)
    stamp('ytok'); raw(2, 's51')
    for j in range(4):
        a(f'ds_write_b32 v3, v{24+4*j} offset:{256*j}')
        a(f'ds_write_b32 v3, v{25+4*j} offset:{256*j+YS}')
    poll('md', mloads, [106, 110, 114], pre=tm)
    stamp('mdok'); raw(1, 's51')
    for r in range(3): a(f'ds_write_b64 v22, v[{104+4*r}:{105+4*r}] offset:{2048*r}')
    a('s_waitcnt lgkmcnt(0)')
    a('s_barrier')
    stamp('ybar')
    ptok = {}
    def p2dma(k):
        a(f's_add_u32 m0, s49, {SEG[0][1] + 2048*(k % 15)}')
        if k and k % 4: a(f's_add_u32 s48, s48, {16*PR}')
        elif k: step('s48', 16*PR, 's100', 512*PR)
        ptok[k] = vm.issue('buffer_load_dwordx4 v7, s[16:19], s48 offen sc1 lds' if RP else 'buffer_load_dwordx4 v7, s[20:23], s48 offen lds')
    a(f's_add_u32 s100, s48, {512*PR}')
    a(f's_mul_i32 s36, s98, {64*PR}')
    a('s_add_u32 s48, s48, s36')
    for _ in range(P.get('e3', 3)): early.popleft()()
    NSY = P.get('nsy', 0)
    for k in range(NSY): p2dma(k)
    for i, off in enumerate((1024, 0, 2048)):
        a(f'ds_read_b128 v[{40+4*i}:{43+4*i}], v13 offset:{off}')
    a('ds_read_b128 v[24:27], v4')
    a(f'ds_read_b128 v[28:31], v4 offset:{YS}')
    for i, off in enumerate((4096, 3072)):
        a(f'ds_read_b128 v[{52+4*i}:{55+4*i}], v13 offset:{off}')
    a('ds_read_b128 v[124:127], v23')
    a('ds_read_b128 v[116:119], v23 offset:32')
    a('s_waitcnt lgkmcnt(7)')
    unpack8(a, 128, 40, 40); unpack8(a, 136, 44, 40)
    for t in range(2):
        for p in range(4):
            d = X[t]+8+2*p
            a(f'v_pk_fma_f32 v[{d}:{d+1}], v[{d}:{d+1}], v[{128+2*p}:{129+2*p}], v[{136+2*p}:{137+2*p}]')
    a('s_waitcnt lgkmcnt(6)')
    unpack8(a, 144, 48, 40)
    for t in range(2):
        for p in range(4):
            d = X[t]+8+2*p
            a(f'v_pk_mul_f32 v[{d}:{d+1}], v[{d}:{d+1}], v[{144+2*p}:{145+2*p}]')
    a('s_waitcnt lgkmcnt(0)')
    unpack8(a, 128, 52, 40); unpack8(a, 136, 56, 40)
    subs = []
    for t in range(2):
        s = Asm(); x = X[t]
        unpack8(s, x+20, 24+4*t, 40)
        for p in range(4):
            s(f'v_pk_fma_f32 v[{x+2*p}:{x+2*p+1}], v[{x+8+2*p}:{x+9+2*p}], v[{x+20+2*p}:{x+21+2*p}], v[{x+2*p}:{x+2*p+1}]')
        for j in range(4): s(f'v_cvt_pk_bf16_f32 v{32+4*t+j}, v{x+2*j}, v{x+2*j+1}')
        s(f'buffer_store_dwordx4 v[{32+4*t}:{35+4*t}], v15, s[16:19], s37 offen offset:{1024*t} sc1')
        unpack8(s, x, 32+4*t, 40)
        (ln1p if P.get('l1', 1) else ln2p)(s, x, x+8, x+16, 24+2*t)
        for p in range(4):
            s(f'v_pk_fma_f32 v[{x+8+2*p}:{x+9+2*p}], v[{x+8+2*p}:{x+9+2*p}], v[{128+2*p}:{129+2*p}], v[{136+2*p}:{137+2*p}]')
        for j in range(4): s(f'v_cvt_pk_bf16_f32 v{40+4*t+j}, v{x+8+2*j}, v{x+9+2*j}')
        s(f'ds_write_b128 v{(5, 16)[t]}, v[{40+4*t}:{43+4*t}]')
        subs.append(s)
    zipl(a, *subs)
    vm.issued += 2
    a('s_waitcnt lgkmcnt(0)')
    a('s_barrier')
    stamp('hbar')
    a('ds_read_b128 v[24:27], v18')
    a('ds_read_b128 v[28:31], v18 offset:1024')
    a('s_and_b32 s24, s32, 31')
    a('s_lshl_b32 s24, s24, 4')
    a('s_lshl_b32 s25, s3, 2')
    a('s_add_u32 s33, s24, s25')
    a('s_and_b32 s25, s30, 1')
    a('s_lshl_b32 s25, s25, 8')
    a('s_lshl_b32 s26, s3, 6')
    a('s_add_u32 s25, s25, s26')
    a('v_and_b32 v19, 15, v1')
    a('v_lshlrev_b32 v19, 2, v19')
    if M2:
        a('s_lshl_b32 s25, s3, 2')
        a('s_lshl_b32 s24, s32, 7')
        a('s_add_u32 s24, s24, s25')
        a(f's_add_u32 s24, s24, {hex(FL1)}')
        a('s_lshl_b32 s33, s30, 4')
        a('s_or_b32 s33, s33, s31')
        a('s_lshl_b32 s33, s33, 7')
        a('s_add_u32 s33, s33, s25')
        a(f's_add_u32 s33, s33, {hex(FL2)}')
        a('s_lshl_b32 s26, s30, 4')
        a('s_add_u32 s26, s26, s25')
        a('s_lshl_b32 s26, s26, 7')
        a(f's_add_u32 s97, s26, {hex(FL1)}')
        a('s_lshr_b32 s26, s32, 4')
        a('s_lshl_b32 s26, s26, 4')
        a('s_add_u32 s26, s26, s25')
        a('s_lshl_b32 s26, s26, 7')
        a(f's_add_u32 s25, s26, {hex(FL2)}')
        a('v_bfe_u32 v19, v1, 2, 2')
        a('v_and_b32 v22, 3, v1')
        a('v_lshlrev_b32 v22, 2, v22')
        a('v_lshl_add_u32 v19, v19, 7, v22')
    def flag(F):
        if not M2:
            if PM: a('s_mov_b64 exec, 1')
            t = lstore([f'buffer_store_dword v20, v21, s[52:55], s33 offen offset:{F}'])
            if PM: a('s_mov_b64 exec, -1')
            return t
        if F == F3: a(f's_add_u32 s33, s33, {FL3-FL2}')
        return vm.issue(f'buffer_store_dword v20, v21, s[16:19], {"s24" if F == F1 else "s33"} offen sc1')
    def look(F):
        if not M2: return [f'buffer_load_dword v22, v{19 if F == F1 else 13}, s[52:55], s25 offen offset:{F} sc1']
        return [f'buffer_load_dword v22, v{19 if F == F1 else 13}, s[16:19], {"s97" if F == F1 else "s25"} offen sc1']
    a('s_waitcnt lgkmcnt(0)')
    lstore(['buffer_store_dwordx4 v[24:27], v17, s[16:19], s46 offen', 'buffer_store_dwordx4 v[28:31], v17, s[16:19], s47 offen'], P.get('h2s', M2))
    if P.get('h2c'):
        for j in range(8): a(f'v_mov_b32 v{108+j}, v{24+j}')
        a('v_mov_b32 v107, v17')
        a('s_mov_b32 s96, s46')
    stamp('h2st')
    a('v_bfe_u32 v4, v1, 4, 1')
    a('v_lshrrev_b32 v5, 5, v1')
    a('v_bfe_u32 v22, v1, 2, 2')
    a('v_and_b32 v23, 3, v1')
    a('v_lshlrev_b32 v23, 3, v23')
    a('v_lshl_add_u32 v3, v5, 3, v22')
    a('v_bfe_u32 v13, v1, 3, 1')
    a('v_lshlrev_b32 v16, 7, v3')
    a('v_add_u32 v16, v16, v23')
    a('v_lshl_add_u32 v16, v13, 6, v16')
    a('v_lshl_add_u32 v16, v4, 5, v16')
    a(f'v_mul_u32_u24 v17, {SEG[0][2]-SEG[0][1]}, v4')
    a(f'v_add_u32 v17, {SEG[0][1]}, v17')
    a(f'v_mul_u32_u24 v18, {P1U}, v4')
    for ct in range(4):
        a(f'v_xor_b32 v14, {32*ct}, v16')
        a(f'v_add_u32 v{246+ct}, v14, v17')
    a('v_mul_u32_u24 v3, 0x60, v3')
    a('v_add_u32 v3, v3, v23')
    a('v_add_u32 v18, v18, v3')
    a('v_lshl_add_u32 v3, v5, 2, v22')
    a('v_lshlrev_b32 v3, 7, v3')
    a('v_lshl_add_u32 v3, v13, 6, v3')
    a('v_lshl_add_u32 v3, v4, 5, v3')
    a('v_add_u32 v3, v3, v23')
    a('s_lshl_b32 s26, s3, 11')
    a('s_and_b32 s27, s3, 1')
    a('s_lshl_b32 s27, s27, 6')
    a('v_xor_b32 v3, s27, v3')
    a('v_add_u32 v240, s26, v3')
    a('v_xor_b32 v241, 64, v240')
    for i in range(1, 3):
        a(f'v_add_u32 v{240+2*i}, {65536*i}, v240')
        a(f'v_add_u32 v{241+2*i}, {65536*i}, v241')
    a(f's_mov_b32 s44, {fh(GC2)}'); a(f's_mov_b32 s45, {fh(GC2)}')
    a(f'v_mov_b32 v2, {fh(GC1)}'); a(f'v_mov_b32 v3, {fh(GC1)}')
    a('s_lshl_b32 s27, s30, 2')
    a('s_add_u32 s27, s27, s3')
    a('s_lshl_b32 s28, s27, 15')
    a(f's_add_u32 s28, s28, {hex(H2)}')
    a('v_add_u32 v14, s28, v15')
    a('s_lshl_b32 s28, s98, 12')
    a('s_waitcnt vmcnt(0)'); vm.done = vm.issued
    stamp('h2dr')
    flag(F1)
    while early: early.popleft()()
    NS0 = P.get('ns0', 0) + NSY
    for k in range(NSY, NS0): p2dma(k)
    a('s_mul_i32 s29, s27, 112')
    AP = 1024 if M2 else YP
    if M2:
        a('s_lshl_b32 s47, s31, 2')
        a('s_add_u32 s47, s47, s29')
        a('s_lshl_b32 s47, s47, 10')
        a(f's_add_u32 s47, s47, {hex(ACT)}')
    else:
        a('s_lshl_b32 s47, s3, 4')
        a('s_add_u32 s47, s47, s31')
        a(f's_mul_i32 s47, s47, {4*YP}')
        a('s_lshl_b32 s4, s30, 10')
        a(f's_add_u32 s4, s4, {hex(YT)}')
        a('s_add_u32 s47, s47, s4')
    a('s_mul_i32 s46, s31, 3')
    a('s_add_u32 s46, s46, s29')
    a('s_lshl_b32 s46, s46, 10')
    a(f's_add_u32 s46, s46, {hex(ACT + 64*1024)}')
    a('s_lshr_b32 s39, s32, 3')
    a('s_and_b32 s35, s39, 1')
    a(f's_and_b32 s34, s39, {P.get("wrot", 0)}')
    a('s_and_b32 s24, s32, 7')
    a('s_lshl_b32 s24, s24, 7')
    if RL:
        a(f's_add_u32 s8, s58, {hex(WD2)}')
        a('s_addc_u32 s9, s59, 0')
        a('s_mul_i32 s24, s24, 1792')
    a(f's_mul_i32 s37, s3, {12*WS_}')
    a('s_add_u32 s37, s37, s24')
    a(f's_add_u32 s30, s37, {76*WS_}')
    a(f's_mul_i32 s36, s34, {3*WS_}')
    a('s_add_u32 s37, s37, s36')
    a(f's_add_u32 s37, s37, {64*WS_}')
    a(f's_mul_i32 s38, s3, {16*WS_}')
    a('s_add_u32 s38, s38, s24')
    a(f's_add_u32 s31, s38, {16*WS_}')
    a(f's_mul_i32 s36, s34, {4*WS_}')
    a('s_add_u32 s38, s38, s36')
    if M2:
        a(f's_mul_i32 s4, s39, {224*1024}')
        a('s_lshl_b32 s6, s3, 14')
        a('s_add_u32 s6, s6, s4')
        a(f's_add_u32 s6, s6, {hex(ACT)}')
    else:
        a('s_lshl_b32 s6, s35, 3')
        a('s_add_u32 s6, s6, s3')
        a(f's_mul_i32 s6, s6, {16*YP}')
        a('s_add_u32 s6, s6, s4')
    a(f's_add_u32 s42, s6, {16*AP}')
    a(f's_mul_i32 s36, s34, {4*AP}')
    a('s_add_u32 s6, s6, s36')
    a(f's_mul_i32 s4, s39, {224*1024}')
    a(f's_mul_i32 s5, s3, {12*1024}')
    a('s_add_u32 s5, s5, s4')
    a(f's_add_u32 s5, s5, {hex(ACT + 64*1024)}')
    a(f's_add_u32 s41, s5, {12*1024}')
    a(f's_mul_i32 s36, s34, {3*1024}')
    a('s_add_u32 s5, s5, s36')
    a('s_lshl_b32 s39, s39, 16')
    a('s_and_b32 s24, s32, 7')
    a('s_lshl_b32 s24, s24, 7')
    a('s_add_u32 s39, s39, s24')
    a('v_bfe_u32 v4, v1, 1, 2')
    a('v_and_b32 v5, 1, v1')
    a('v_lshlrev_b32 v5, 2, v5')
    a(f'v_lshl_add_u32 v4, v4, {7 if M2 else 4}, v5')
    a('s_lshl_b32 s35, s35, 3')
    a('v_add_u32 v13, s35, v4')
    a('s_cmp_ge_u32 s3, 2')
    for r, (reg0, reg1, dist) in enumerate(((250, 16, 112*1024), (251, 17, 112*1024 if M2 else 64*YP))):
        a(f's_cselect_b32 s36, {dist}, 0')
        a(f'v_add_u32 v{reg0}, s36, v15')
        a(f's_cselect_b32 s36, 0, {dist}')
        a(f'v_add_u32 v{reg1}, s36, v15')
    a('v_lshlrev_b32 v73, 7, v1')
    a('s_lshl_b32 s34, s2, 2')
    a('s_add_u32 s34, s34, s3')
    a(f's_mul_i32 s34, s34, {14*128}')
    poll('f1', look(F1), [22], mask=0xffff)
    stamp('f1ok'); raw(3, 's51')
    htok = {}
    def h2load(ks):
        htok[ks] = vm.issue(f'buffer_load_dwordx4 a[{4*ks}:{4*ks+3}], v14, s[16:19], s28 offen offset:{1024*(ks&3)} sc1')
        if (ks & 3) == 3:
            a('s_add_u32 s28, s28, 0x1000'); a('s_and_b32 s28, s28, 0x7fff')
    NH0 = P.get('nh0', 8)
    for ks in range(NH0): h2load(ks)
    slow(4)
    a('s_barrier')
    stamp('b0')
    wtok, atok = {}, {}
    def wd0(i):
        so = 's37' if i < 12 else 's38'
        a(f's_add_u32 m0, s26, {8192*WBL[i]}')
        if i not in (0, 12): a(f's_add_u32 {so}, {so}, {WS_}')
        vm.issue(f'buffer_load_dwordx4 v8, s[8:11], {so} offen lds')
    def wd1(i):
        wtok[i] = vm.issue(f'buffer_load_dwordx4 v9, s[8:11], {"s37" if i < 12 else "s38"} offen offset:1024 lds')
    def wreg(i): return ('v', 72 + 8*i) if i < 5 else ('a', 224 + 8*(i-5)) if i < 8 else ('v', AR + 8*(i % 3))
    def wread(i, mt, jj):
        kind, d = wreg(i); ad = 8192*WBL[i]
        return f'ds_read_b64_tr_b16 {kind}[{d+4*mt+2*jj}:{d+4*mt+2*jj+1}], v{240+2*(ad>>16)+mt} offset:{(ad & 0xffff)+1024*jj}'
    def abase(i): return 128 + 8*i if i < 12 else 8*(i-12)
    def act0(i):
        b = abase(i)
        if i < 12:
            if i and i % 4 == 0: a('s_add_u32 s5, s5, 0x1000')
            vm.issue(f'buffer_load_dwordx4 a[{b}:{b+3}], v250, s[16:19], s5 offen offset:{1024*(i & 3)} sc1')
        else:
            if i > 12: a(f's_add_u32 s6, s6, {AP}')
            vm.issue(f'buffer_load_dwordx4 a[{b}:{b+3}], v251, s[16:19], s6 offen sc1')
    def act1(i):
        b = abase(i)
        if i < 12: atok[i] = vm.issue(f'buffer_load_dwordx4 a[{b+4}:{b+7}], v16, s[16:19], s5 offen offset:{1024*(i & 3)} sc1')
        else: atok[i] = vm.issue(f'buffer_load_dwordx4 a[{b+4}:{b+7}], v17, s[16:19], s6 offen sc1')
    valu = deque()
    AR, NA = 24, 6
    ACC1, ACC2 = 192, 128
    pipe = LdsPipe(a)
    steps = [(0, k, ct) for k in range(32) for ct in range(2)] + [(0, k, 2) for k in range(32)] + [(1, k, ct) for k in range(32) for ct in range(4)]
    tok = {}; nxt = [0]
    def rd(n):
        ps, k, ct = steps[n]; d = AR + 4*(n % NA)
        for jj in range(2):
            b, off = (18, (16*k + 4*jj)*96 + 32*ct) if ps == 0 else (246+ct, 2048*(k % 15) + 512*jj)
            tok[n] = pipe.issue(f'ds_read_b64_tr_b16 v[{d+2*jj}:{d+2*jj+1}], v{b} offset:{off}')
    for n in range(NA-1): rd(n)
    nxt[0] = NA-1
    J = dict(h=NH0, p=NS0, w=0, half=False, a=0, ahalf=False, pmax=15, wmax=0, f2=False, lastp=-99)
    stg = {}
    def wfree(i): return i < J['wmax'] and (not 12 <= i < 20 or stg.get(i - 12, 1 << 30) <= pipe.done)
    def job(n):
        if J['half']: J['half'] = False; wd1(J['w']); J['w'] += 1; return 1
        if J['h'] < 32: h2load(J['h']); J['h'] += 1; return 1
        if J['p'] < J['pmax'] and n - J['lastp'] >= PE: p2dma(J['p']); J['p'] += 1; J['lastp'] = n; return 3
        if J['ahalf']: J['ahalf'] = False; act1(J['a']); J['a'] += 1; return 1
        if J['f2'] and J['a'] < 12 and (J['a'] <= J['w'] - P.get('wa', 8) or not wfree(J['w']) or J['w'] >= 28):
            act0(J['a']); J['ahalf'] = True; return 1
        if J['w'] < 28 and wfree(J['w']) and n >= P.get('ws', 112): wd0(J['w']); J['half'] = True; return 3
        return 0
    VB = P.get('vb', 35); PE = P.get('pe', 3); TE = P.get('te', 15); LW = P.get('lw', 2)
    stok = {}; sg = 0; credit = 0; nb = 0; ta = 0; fload = look(F2); tp = None
    F2P, F2C = P.get('f2p', 999), P.get('f2c', 204)
    def gelu_step(x, n):
        if isinstance(x, tuple):
            stok[x[1]] = vm.issue(f'buffer_store_dwordx4 v[{x[2]}:{x[2]+3}], v15, s[16:19], s46 offen offset:{1024*x[1]} sc1')
            stok['at'] = n
        else: a(x)
    for n, (ps, k, ct) in enumerate(steps):
        if n < 64 and ct == 0:
            while k not in htok: job(n)
            vm.need(htok[k])
        if tok[n] > pipe.done: pipe.need(tok[min(n + LW - 1, len(steps) - 1)])
        d = (ACC1, ACC2)[ps] + 16*ct; c = '0' if k == 0 else f'v[{d}:{d+15}]'
        sa = AR + 4*(n % NA)
        a(f'v_mfma_f32_32x32x16_bf16 v[{d}:{d+15}], v[{sa}:{sa+3}], a[{4*k}:{4*k+3}], {c}')
        if nxt[0] < len(steps): rd(nxt[0]); nxt[0] += 1
        credit = min(credit + VB, P.get('cap', 40))
        if n in BARS:
            land, J['pmax'], J['wmax'] = BARS[n][0], J['pmax'], J['wmax']
            if land is not None:
                while land not in ptok:
                    if J['half']: job(n)
                    p2dma(J['p']); J['p'] += 1
                vm.need(ptok[land])
            a('s_barrier')
            J['pmax'], J['wmax'] = BARS[n][1:]
            nb += 1; stamp(f'b{nb}'); credit -= 10
        if n == P.get('wt', 999 if RL else 60):
            a('s_mov_b64 exec, 0x3fff')
            vm.issue('buffer_load_dword v72, v73, s[8:11], s34 offen')
            a('s_mov_b64 exec, -1')
        if n in (65, 97):
            if n == 65: stamp('p1a')
            else: stamp('p1end')
            for t in ((0, 1) if n == 65 else (2,)):
                o = 64 + 4*(t & 1)
                valu.extend(gelu_ops(ACC1+16*t, 48 + 8*(t & 1), o))
                valu.append(('store', t, o))
        if n == P.get('h2c', -1):
            vm.issue('buffer_store_dwordx4 v[108:111], v107, s[16:19], s96 offen sc1')
            a('s_add_u32 s96, s96, 0x1000')
            vm.issue('buffer_store_dwordx4 v[112:115], v107, s[16:19], s96 offen sc1')
        ta += 10
        if n == F2P and 'f2' in stok: tp = masked(fload, 0xff); ta = 0
        elif n == F2C and tp is not None:
            poll('f2', fload, [22], pre=tp, mask=0xff); J['f2'] = True
            stamp('f2ok'); raw(4, 's51')
        elif ta >= TE:
            cst = job(n)
            if cst: ta -= TE; credit -= 10*cst
            else: ta = TE
        if n >= P.get('stg', 160) and sg < 32 and pipe.outstanding() <= 13 and credit >= 10 and (not valu or n % 2):
            i, r = divmod(sg, 4)
            if i in wtok and (wtok[i] <= vm.done or vm.issued - wtok[i] >= P.get('sl', 8)):
                vm.need(wtok[i])
                t = pipe.issue(wread(i, r >> 1, r & 1)); sg += 1; credit -= 10
                if r == 3: stg[i] = t
        while valu and credit >= 10*(cost(valu[0]) if isinstance(valu[0], str) else 1):
            x = valu.popleft(); gelu_step(x, n)
            if isinstance(x, str): credit -= 10*cost(x)
        if 2 in stok and 'f2' not in stok and n >= stok['at'] + P.get('fdel', 24):
            vm.need(stok[2])
            stok['f2'] = flag(F2); print('F2 at', n, end='; ')
    while valu: gelu_step(valu.popleft(), 224)
    if 'f2' not in stok:
        vm.need(stok[2])
        stok['f2'] = flag(F2)
    assert J['p'] == 32 and J['h'] == 32
    print('w_down steps', J['w'], 'staged', sg, 'act steps', J['a'])
    while sg < 32:
        i, r = divmod(sg, 4)
        while i not in wtok: job(999)
        vm.need(wtok[i])
        stg[i] = pipe.issue(wread(i, r >> 1, r & 1)); sg += 1
    pipe.need(pipe.issued)
    if tp is None and P.get('fp', 2) < 4: tp = masked(fload, 0xff)
    a('s_mov_b32 s34, 1.0'); a('s_mov_b32 s35, 1.0')
    def geglu2(t):
        s = Asm(); geglu(s, ACC2+16*t, 48, 64 + 4*(t & 1))
        for j, l in enumerate(s.lines):
            a(l.replace('s[46:47]', 's[34:35]'))
            if j % P.get('ge', 8) == 3 and t < P.get('gt', 4): job(999)
        if t: a(f's_add_u32 s47, s47, {AP}')
        return lstore([f'buffer_store_dwordx4 v[{64+4*(t&1)}:{67+4*(t&1)}], v15, s[16:19], s47 offen'], P.get('a2s', 1))
    for t in range(4):
        if t == P.get('fp', 2) and not J['f2']:
            stamp('g1')
            poll('f2', fload, [22], pre=tp, mask=0xff); J['f2'] = True
            stamp('f2ok'); raw(4, 's51')
        if t == 3 and tp is None: tp = masked(fload, 0xff)
        ts3 = geglu2(t)
    stamp('g3')
    a('v_and_b32 v4, 31, v1')
    a('v_lshrrev_b32 v5, 5, v1')
    a('v_lshlrev_b32 v10, 10, v4')
    a('v_lshl_add_u32 v10, v5, 4, v10')
    a('s_lshr_b32 s46, s3, 1')
    a('s_lshl_b32 s46, s46, 15')
    a('s_and_b32 s47, s3, 1')
    a('s_lshl_b32 s47, s47, 6')
    a('s_add_u32 s39, s39, s46')
    a('s_add_u32 s39, s39, s47')
    a(f's_add_u32 s46, s39, {hex(X1)}')
    vm.need(ts3)
    flag(F3)
    if not J['f2']:
        poll('f2', fload, [22], pre=tp, mask=0xff); J['f2'] = True
        stamp('f2ok'); raw(4, 's51')
        while J['a'] < P.get('a1b', 3): job(999)
    if M2: a(f's_add_u32 s25, s25, {FL3-FL2}')
    stamp('estart')
    pipe = LdsPipe(a); tok = {}
    def rd2(i):
        while i not in wtok: job(999)
        vm.need(wtok[i])
        for mt in range(2):
            for jj in range(2): tok[(i, mt)] = pipe.issue(wread(i, mt, jj))
    f3load = look(F3)
    for i in range(8): stg[i] = 0
    F3C = P.get('f3c', 8); JE = P.get('je', 2); tp = None; g = 0; aq = deque()
    for i in range(28):
        stamp(f'e{i}')
        if i == F3C:
            while J['a'] < 12 or J['half']: job(999)
            if tp is None: tp = masked(f3load, 0xff)
            poll('f3', f3load, [22], pre=tp, mask=0xff)
            stamp('f3ok'); raw(5, 's51')
            for ii in range(12, 28): aq.extend([lambda ii=ii: act0(ii), lambda ii=ii: act1(ii)])
            for _ in range(P.get('a2b', 4)): aq.popleft()()
        if i == 22:
            vm.issue('buffer_load_dwordx4 v[72:75], v10, s[16:19], s46 offen sc1')
            tx = vm.issue('buffer_load_dwordx4 v[76:79], v10, s[16:19], s46 offen offset:32 sc1')
        kind, d0 = wreg(i); b = abase(i)
        while i not in atok: (aq.popleft()() if i >= 12 else job(999))
        vm.need(atok[i])
        for mt in range(2):
            if i >= 8: pipe.need(tok[(i, mt)])
            for nt in range(2):
                d = ACC2 + 32*mt + 16*nt; c = '0' if i == 0 else f'v[{d}:{d+15}]'
                a(f'v_mfma_f32_32x32x16_bf16 v[{d}:{d+15}], {kind}[{d0+4*mt}:{d0+4*mt+3}], a[{b+4*nt}:{b+4*nt+3}], {c}')
                g += 1
                if mt == 0 and nt == 0 and 8 <= i+2 < 28: rd2(i+2)
                if g % JE == 0:
                    if aq and not J['half'] and (J['w'] >= 28 or J['w'] > i + P.get('wb', 28)): aq.popleft()()
                    elif tp is None and not J['half'] and J['a'] == 12 and (J['w'] >= 28 or i == F3C - 1): tp = masked(f3load, 0xff)
                    elif not job(999) and aq: aq.popleft()()
    stamp('eend')
    PBL = [None, (WBL[8], WBL[9]), (WBL[10], WBL[11]), (WBL[12], WBL[13])]
    a('v_add_u32 v4, s26, v15')
    a('v_add_u32 v5, 0x10000, v4')
    a('v_add_u32 v18, 0x20000, v4')
    base(a, 12, 56, 0x200000)
    for t in range(1, 4):
        d = ACC2 + 32*(t & 1) + 16*(t >> 1)
        for g in range(4):
            ad = 8192*PBL[t][g >> 1] + 1024*(g & 1)
            a(f'ds_write_b128 v{(4, 5, 18)[ad >> 16]}, v[{d+4*g}:{d+4*g+3}] offset:{ad & 0xffff}')
        a(f's_xor_b32 s6, s26, {2048*t}')
        a(f's_add_u32 s7, s6, {8192*PBL[t][1]}')
        a(f's_add_u32 s6, s6, {8192*PBL[t][0]}')
        a(f'v_add_u32 v{88+2*t}, s6, v15')
        a(f'v_add_u32 v{89+2*t}, s7, v15')
    vm.need(tx)
    unpack8(a, 96, 124, 40); unpack8(a, 104, 116, 40); unpack8(a, 48, 72, 40); unpack8(a, 56, 76, 40)
    a('s_waitcnt lgkmcnt(0)')
    a('s_barrier')
    stamp('ebar')
    for i in range(1, 4):
        for g in range(4):
            a(f'ds_read_b128 v[{128+16*i+4*g}:{131+16*i+4*g}], v{88+2*i+(g >> 1)} offset:{1024*(g & 1)}')
    for i in range(1, 4):
        a(f's_waitcnt lgkmcnt({12-4*i})')
        for p in range(8): a(f'v_pk_add_f32 v[{128+2*p}:{129+2*p}], v[{128+2*p}:{129+2*p}], v[{128+16*i+2*p}:{129+16*i+2*p}]')
    for g in range(2):
        b = 128 + 8*g
        for r in range(4): a(f'v_permlane32_swap_b32 v{b+r}, v{b+4+r}')
        for p in range(4): a(f'v_pk_fma_f32 v[{b+2*p}:{b+2*p+1}], v[{b+2*p}:{b+2*p+1}], v[{96+8*g+2*p}:{97+8*g+2*p}], v[{48+8*g+2*p}:{49+8*g+2*p}]')
        for p in range(4): a(f'v_cvt_pk_bf16_f32 v{40+4*g+p}, v{b+2*p}, v{b+2*p+1}')
        a(f'buffer_store_dwordx4 v[{40+4*g}:{43+4*g}], v10, s[12:15], s39 offen offset:{32*g}' + ('', ' sc1', ' nt')[P.get('ost', 0)])
    a('s_or_b32 s4, s2, s3')
    a('s_cmp_lg_u32 s4, 0')
    a('s_cbranch_scc1 L_noep')
    a(f's_mov_b32 s4, {hex(EPOCH)}')
    a('buffer_store_dword v20, v21, s[16:19], s4 offen')
    a.label('L_noep')
    if P.get('probe') is not None:
        a('s_waitcnt vmcnt(0)')
        stamp('end')
        a('s_waitcnt lgkmcnt(0)')
        k = P['probe']
        if k == 300:
            a('v_mov_b32 v22, s60')
            a(f's_mov_b32 s36, {hex(0x140B000)}')
            a('s_cmp_lg_u32 s2, 0')
            a('s_cbranch_scc1 L_end')
            a('buffer_store_dword v22, v21, s[16:19], s36 offen')
            a('s_branch L_end')
        elif k == 301:
            a(f's_add_u32 s4, s58, {hex(0x140B000)}')
            a('s_addc_u32 s5, s59, 0')
            a('s_load_dword s92, s[4:5], 0')
            a('s_waitcnt lgkmcnt(0)')
            a('s_add_u32 s92, s92, 6000')
        elif k >= 200:
            a(f's_add_u32 s4, s58, {hex(EPOCH + 0x100)}')
            a('s_addc_u32 s5, s59, 0')
            a('s_load_dwordx4 s[92:95], s[4:5], 0')
            a('s_waitcnt lgkmcnt(0)')
            a('s_cmp_eq_u64 s[92:93], s[94:95]')
            a('s_cselect_b32 s92, 10000, 0' if k == 200 else 's_cselect_b32 s92, 0, 10000')
            a('s_add_u32 s92, s92, s70')
        elif k >= 100:
            a(f's_mov_b32 s36, {hex(0x140A000)}')
            a('buffer_load_dwordx4 v[24:27], v15, s[16:19], s36 offen sc1')
            a('s_waitcnt vmcnt(0)')
            for r, op in ((28, 'min'), (29, 'max')):
                a(f'v_{op}_u32 v{r}, v24, v25')
                a(f'v_{op}3_u32 v{r}, v{r}, v26, v27')
                for ctl in ('row_ror:1', 'row_ror:2', 'row_ror:4', 'row_ror:8'):
                    a(f'v_{op}_u32_dpp v{r}, v{r}, v{r} {ctl} row_mask:0xf bank_mask:0xf')
                for i in range(4): a(f'v_readlane_b32 s{4+i}, v{r}, {16*i}')
                a(f's_{op}_u32 s4, s4, s5'); a(f's_{op}_u32 s6, s6, s7'); a(f's_{op}_u32 s{r+62}, s4, s6')
            if k == 100: a('s_add_u32 s92, s90, 6000')
            elif k == 101:
                a('s_sub_u32 s92, s91, s90'); a('s_lshl_b32 s92, s92, 2'); a('s_add_u32 s92, s92, s90'); a('s_add_u32 s92, s92, 4000')
            else:
                a(f's_sub_u32 s92, s{60+2*(k-110)}, s90'); a('s_lshl_b32 s92, s92, 2'); a('s_add_u32 s92, s92, s90'); a('s_add_u32 s92, s92, 4000')
        elif k == 0:
            a('s_add_u32 s92, s60, 6000')
        else:
            a(f's_sub_u32 s92, s{60+2*k}, s60')
            a('s_lshl_b32 s92, s92, 2')
            a('s_add_u32 s92, s92, s60')
            a('s_add_u32 s92, s92, 4000')
        a.label('L_probe')
        a('s_memrealtime s[94:95]')
        a('s_waitcnt lgkmcnt(0)')
        a('s_sub_u32 s94, s94, s92')
        a('s_cmp_lt_i32 s94, 0')
        a('s_cbranch_scc1 L_probe')
    elif P.get('stamps'):
        a('s_waitcnt vmcnt(0)')
        stamp('end')
        a('s_cmp_lg_u32 s3, 0')
        a('s_cbranch_scc1 L_end')
        a('s_lshl_b32 s94, s2, 7')
        a(f's_add_u32 s94, s94, {hex(TS)}')
        a('s_add_u32 s92, s58, s94')
        a('s_addc_u32 s93, s59, 0')
        a('v_lshlrev_b32 v250, 2, v1')
        a('s_lshl_b32 s94, s2, 8')
        a(f's_add_u32 s94, s94, {hex(TS + 0x80000)}')
        a('s_add_u32 s94, s58, s94')
        a('s_addc_u32 s95, s59, 0')
        a('global_store_dword v250, v254, s[94:95]')
        a('s_mov_b64 exec, 1')
        if P.get('dbg'):
            a('s_load_dwordx2 s[94:95], s[0:1], 104')
        a('s_waitcnt lgkmcnt(0)')
        if P.get('dbg'):
            a('s_not_b32 s60, s60')
            for m in sorted(marks):
                a(f'v_mov_b32 v250, s{60+2*m}')
                a(f'global_atomic_umax v21, v250, s[94:95] offset:{4*m}')
                a('s_nop 1')
            a('s_not_b32 s60, s60')
        for m in sorted(marks):
            a(f'v_mov_b32 v250, s{60+2*m}')
            a(f'v_mov_b32 v251, s{61+2*m}')
            a(f'global_store_dwordx2 v21, v[250:251], s[92:93] offset:{8*m}')
            a('s_nop 1')
    a.label('L_end')
    a.label('L_last')
    a('s_endpgm')
    return dict(grid=256, block=256, lds=163840, vgpr=512, accum=256)

def tinyk(a, P, head):
    a('s_cmp_ge_u32 s2, 1')
    a('s_cbranch_scc1 L_tiny_end')
    a('s_memrealtime s[8:9]')
    a(f's_load_dwordx2 s[4:5], s[0:1], {A_WS}')
    a('s_waitcnt lgkmcnt(0)')
    a(f's_add_u32 s4, s4, {hex(0x140B000)}')
    a('s_addc_u32 s5, s5, 0')
    if head:
        a('v_mov_b32 v1, s8')
        a('v_mov_b32 v2, 0')
        a('global_store_dword v2, v1, s[4:5]')
    else:
        a('s_load_dword s6, s[4:5], 0')
        a('s_waitcnt lgkmcnt(0)')
        a('s_add_u32 s6, s6, 6000')
        a('s_mov_b32 s10, 100000')
        a.label('L_tiny')
        a('s_memrealtime s[8:9]')
        a('s_waitcnt lgkmcnt(0)')
        a('s_sub_u32 s10, s10, 1')
        a('s_cbranch_scc1 L_tiny_end')
        a('s_sub_u32 s8, s8, s6')
        a('s_cmp_lt_i32 s8, 0')
        a('s_cbranch_scc1 L_tiny')
    a.label('L_tiny_end')
    a('s_endpgm')
    return dict(grid=1, block=64, lds=0, vgpr=8, accum=8)
```

```python
from collections import deque
from asmlib import *
from k123 import fh, lo, hi, unpack8, ln_stats, LdsPipe, A_OUT, A_WS
from k45 import VmPipe, GC1, GC2, geglu
from cde import zipl, gelu_ops, cost

UT, YT, X1, H2, ACT = 0, 0x400000, 0x900000, 0, 0xD00000
MODT, EPOCH, GRP, MP, TS = 0x1400000, 0x1408000, 0x1410000, 0x1480000, 0x1500000
YP = 16384 + 128
XID, UH, F1, F2, F3 = 0, 128, 1024, 1536, 2048
P1U = 49280
SEG = [(0, 98432, 129152), (15, 0, 49280), (27, 24576, 73856)]
CB, CHS, KB, U0, U1 = 98432, 12992, 512, 4608, 8768
PB = CB + 2*CHS
PRM = PB + 32768
MPART = PRM + 6144
XG = 129152 + 112*128
YS = 1040
XH = XG + 8*YS
PS = 272
SPIN = 1 << 15
WBL = list(range(12)) + list(range(8)) + [13, 17, 14, 18, 12, 15, 16, 19]
BARS = {89: (5, 15, 0), 111: (9, 19, 20), 127: (13, 23, 20), 143: (17, 27, 20), 159: (21, 31, 20), 175: (25, 32, 20),
        191: (29, 32, 22), 207: (31, 32, 24), 223: (None, 32, 28)}
assert MPART + 512 <= 163840 and XH + 8192 <= 163840
def seg_of(k): return SEG[0] if k < 15 else SEG[1] if k < 27 else SEG[2]

def base(a, d, p, n):
    a(f's_mov_b32 s{d}, s{p}'); a(f's_mov_b32 s{d+1}, s{p+1}'); a(f's_mov_b32 s{d+2}, {hex(n)}')

FL1, FL2, FL3 = 0x1420000, 0x1428000, 0x1430000
def ln1p(a, X, D, T, s0):
    a(f'v_pk_add_f32 v[{T}:{T+1}], v[{X}:{X+1}], v[{X+2}:{X+3}]')
    a(f'v_pk_mul_f32 v[{T+2}:{T+3}], v[{X}:{X+1}], v[{X}:{X+1}]')
    a(f'v_pk_add_f32 v[{D}:{D+1}], v[{X+4}:{X+5}], v[{X+6}:{X+7}]')
    for p in range(1, 4):
        a(f'v_pk_fma_f32 v[{T+2}:{T+3}], v[{X+2*p}:{X+2*p+1}], v[{X+2*p}:{X+2*p+1}], v[{T+2}:{T+3}]')
    a(f'v_pk_add_f32 v[{T}:{T+1}], v[{T}:{T+1}], v[{D}:{D+1}]')
    a(f'v_add_f32 v{T+2}, v{T+2}, v{T+3}')
    a(f'v_add_f32 v{T}, v{T}, v{T+1}')
    for ctl in ('row_shr:1', 'row_shr:2', 'row_shr:4', 'row_shr:8'):
        for r in (T+2, T): a(f'v_add_f32_dpp v{r}, v{r}, v{r} {ctl} row_mask:0xf bank_mask:0xf bound_ctrl:1')
    for ctl in ('row_bcast:15 row_mask:0xa', 'row_bcast:31 row_mask:0xc'):
        for r in (T+2, T): a(f'v_add_f32_dpp v{r}, v{r}, v{r} {ctl} bank_mask:0xf')
    a(f'v_readlane_b32 s{s0+1}, v{T+2}, 63')
    a(f'v_readlane_b32 s{s0}, v{T}, 63')
    a(f'v_mov_b32 v{T+1}, {fh(1.0/512)}')
    a(f'v_mov_b32 v{T+3}, {fh(1e-5)}')
    a(f'v_mul_f32 v{T}, s{s0}, v{T+1}')
    a(f'v_fmac_f32 v{T+3}, s{s0+1}, v{T+1}')
    a(f'v_fma_f32 v{T+2}, -v{T}, v{T}, v{T+3}')
    a(f'v_max_f32 v{T+2}, {fh(1e-5)}, v{T+2}')
    a(f'v_rsq_f32 v{T+2}, v{T+2}')
    for p in range(4):
        a(f'v_pk_add_f32 v[{D+2*p}:{D+2*p+1}], v[{X+2*p}:{X+2*p+1}], v[{T}:{T+1}] op_sel:[0,0] op_sel_hi:[1,0] neg_lo:[0,1] neg_hi:[0,1]')
    for p in range(4):
        a(f'v_pk_mul_f32 v[{D+2*p}:{D+2*p+1}], v[{D+2*p}:{D+2*p+1}], v[{T+2}:{T+3}] op_sel:[0,0] op_sel_hi:[1,0]')
def ln2p(s, X, D, T, s0):
    ln_stats(s, X, D, T, s0)
    for p in range(4):
        s(f'v_pk_mul_f32 v[{D+2*p}:{D+2*p+1}], v[{D+2*p}:{D+2*p+1}], v[{T}:{T+1}] op_sel:[0,0] op_sel_hi:[1,0]')

def mega(a, P):
    M2 = P.get('m2', 0)
    RL = P.get('rl', 1)
    RP = P.get('rp', 0)
    W2, PR = 0xB00000, (128 if RP else 3584)
    WD2, WS_ = 0x200000, (2048 if RL else 0x4000)
    H2 = 0xB00000 if M2 else 0
    marks = set()
    SETS = {1: 'start kv0 utst utok bbar end bend ytst ytok h2dr b0 p1end b9 estart f3ok eend',
            2: 'start kv0 kvN abar utst end ut1st uhok utok bbar bend pbar ytst ytack ytok mdok',
            3: 'start ytst ln1 ytack ytok end ybar hbar h2st h2dr f1ok b0 b1 b2 b3 p1end',
            6: 'start b0 p1a p1end b2 end b3 b4 b5 b6 b7 b8 b9 f2ok g3 estart',
            7: 'start estart e2 e4 e6 end f3ok e8 e10 e12 e14 e16 e20 e24 eend ebar',
            9: 'start b0 p1a p1end b5 end b9 estart eend cb0 cp1a cp1end cb5 cb9 cestart ceend',
            10: 'start bbar bend ybar hbar end g3 ebar x8 cbbar cbend cybar chbar x13 cg3 cebar',
            8: 'start x1 x2 x3 x4 end',
            5: 'start karg x2 x3 x4 end x6 x7 x8 x9 x10 x11 x12 kv0 issued pre',
            4: 'start p1end b5 b6 b7 end b8 g1 f2ok g3 estart e12 f3ok e20 eend ebar'}
    names = SETS[P.get('stamps', 1)].split()
    def stamp(name):
        if P.get('stamps') and name in names:
            slot = names.index(name)
            a(f's_memrealtime s[{60+2*slot}:{61+2*slot}]'); marks.add(slot)
        if P.get('stamps') and 'c' + name in names:
            slot = names.index('c' + name)
            a(f's_memtime s[{60+2*slot}:{61+2*slot}]'); marks.add(slot)
    def raw(i, sreg):
        if P.get('stamps'): a(f'v_writelane_b32 v254, {sreg}, {i}')
    vm = VmPipe(a)
    NT = ' nt' if P.get('nt', 1) else ''
    nst = [0]
    def lstore(lines, through=False):
        if through:
            for l in lines: t = vm.issue(l + ' sc1')
            return t
        return lstore2(lines)
    def lstore2(lines):
        n = nst[0]; nst[0] += 1
        a('s_cmp_eq_u32 s101, 0')
        a(f's_cbranch_scc1 L_ls{n}a')
        for l in lines: a(l + ' sc1')
        a(f's_branch L_ls{n}b')
        a.label(f'L_ls{n}a')
        for l in lines: t = vm.issue(l)
        a.label(f'L_ls{n}b')
        return t
    SL = P.get('sleep', 1); PM = 1
    def masked(lines, mask):
        if mask and PM: a(f's_mov_b64 exec, {hex(mask)}')
        for l in lines: t = vm.issue(l)
        if mask and PM: a('s_mov_b64 exec, -1')
        return t
    def poll(name, loads, tags, pre=None, mask=None):
        a(f's_mov_b32 s51, {SPIN}')
        if pre is not None:
            vm.need(pre)
            stamp(name + '1st')
        if mask and PM: a(f's_mov_b64 exec, {hex(mask)}')
        a(f's_branch L_{name}_chk' if pre is not None else f's_branch L_{name}_go')
        a.label(f'L_{name}')
        sl = P.get('ysl', SL) if name in ('yt', 'md') else SL
        if sl: a(f's_sleep {sl}')
        a.label(f'L_{name}_go')
        for l in loads: a(l)
        a('s_waitcnt vmcnt(0)')
        a.label(f'L_{name}_chk')
        a(f'v_cmp_ne_u32 vcc, s50, v{tags[0]}')
        for i, t in enumerate(tags[1:]): a(f'v_cmp_ne_u32 s[{92+2*i}:{93+2*i}], s50, v{t}')
        a('s_sub_u32 s51, s51, 1')
        a(f's_cbranch_scc1 L_{name}_ok')
        for i in range(len(tags)-1): a(f's_or_b64 vcc, vcc, s[{92+2*i}:{93+2*i}]')
        a(f's_cbranch_vccnz L_{name}')
        a.label(f'L_{name}_ok')
        if mask and PM: a('s_mov_b64 exec, -1')
        if pre is None: vm.done = vm.issued

    a('s_cmp_ge_u32 s2, 256')
    a('s_cbranch_scc1 L_end')
    stamp('start')
    if P.get('stamps'): a('v_mov_b32 v254, 0')
    a('s_load_dwordx16 s[64:79], s[0:1], 0')
    if P.get('cpf', 1):
        a('s_getpc_b64 s[4:5]')
        a.label('L_pc')
        a('v_lshlrev_b32 v3, 7, v0')
        a('v_mov_b32 v5, s5')
        a('v_add_co_u32 v4, vcc, s4, v3')
        a(f'v_cmp_gt_u32 s[6:7], {P.get("cpn", 16)}, v0')
        a('v_and_b32 v1, 63, v0')
        a('v_addc_co_u32 v5, vcc, 0, v5, vcc')
        a('s_and_b64 exec, exec, s[6:7]')
        a('s_cbranch_execz L_nopf')
        a('global_load_dword v169, v[4:5], off')
        a.label('L_nopf')
        a('s_mov_b64 exec, -1')
    else: a('v_and_b32 v1, 63, v0')
    a(f's_load_dwordx2 s[58:59], s[0:1], {A_WS}')
    a('s_load_dwordx8 s[80:87], s[0:1], 64')
    a(f's_load_dwordx2 s[56:57], s[0:1], {A_OUT}')
    a('v_lshrrev_b32 v2, 6, v0')
    a('v_readfirstlane_b32 s3, v2')
    a('s_mov_b32 s40, 0xffff0000')
    a('s_and_b32 s28, s2, 7')
    a('s_lshr_b32 s29, s2, 3')
    a('s_lshl_b32 s32, s28, 5')
    a('s_or_b32 s32, s32, s29')
    a('v_and_b32 v3, 31, v0')
    a('v_lshrrev_b32 v2, 5, v0')
    a('s_lshl_b32 s33, s29, 6')
    a('v_lshl_add_u32 v4, v2, 3, s33')
    a('s_lshl_b32 s33, s28, 7')
    a('v_lshl_add_u32 v5, v3, 2, s33')
    a('v_lshl_add_u32 v5, v4, 10, v5')
    a('v_subrev_u32 v4, 0xc00, v5')
    a('s_lshl_b32 s33, s28, 9')
    a('v_lshl_add_u32 v13, v3, 4, s33')
    a('s_movk_i32 s35, 0x1000')
    a('s_mov_b32 s15, 0x20000'); a('s_mov_b32 s27, 0x20000'); a('s_mov_b32 s19, 0x20000')
    a('s_mov_b32 s23, 0x20000'); a('s_mov_b32 s11, 0x20000'); a('s_mov_b32 s55, 0x20000')
    a('v_lshlrev_b32 v15, 4, v1')
    a('v_mov_b32 v21, 0')
    a('v_lshlrev_b32 v14, 4, v0')
    a('s_waitcnt lgkmcnt(0)')
    stamp('karg')
    if P.get('wso'):
        a(f's_add_u32 s58, s58, {hex(P["wso"] << 20)}')
        a('s_addc_u32 s59, s59, 0')
    base(a, 12, 70, 4096)
    base(a, 24, 68, 0x200000)
    tsh = vm.issue('buffer_load_dwordx4 v[48:51], v13, s[12:15], 0 offen' + NT)
    base(a, 12, 66, 0x200000)
    for i in range(3): vm.issue(f'buffer_load_dword v{24+i}, v4, s[12:15], 0 offen offset:{1024*i}' + NT)
    tk = {}
    for i in range(8):
        so = 's35' if i >= 4 else '0'
        vm.issue(f'buffer_load_dword v{27+i}, v5, s[12:15], {so} offen offset:{1024*(i&3)}' + NT)
        tk[i] = vm.issue(f'buffer_load_dword v{36+i}, v5, s[24:27], {so} offen offset:{1024*(i&3)}' + NT)
    stamp('issued')
    a(f's_add_u32 s4, s58, {hex(EPOCH)}')
    a('s_addc_u32 s5, s59, 0')
    a('s_load_dword s50, s[4:5], 0')
    if P.get('cpf', 1):
        a('s_getpc_b64 s[6:7]')
        a.label('L_pc2')
        a('s_lshl_b32 s36, s29, 2')
        a('s_add_u32 s36, s36, s3')
        a('v_and_b32 v4, 1, v0')
        a('v_lshl_add_u32 v4, s36, 1, v4')
        a('v_min_u32 v4, (L_last-L_pc2)/128, v4')
        a('v_lshlrev_b32 v4, 7, v4')
        a('v_mov_b32 v5, s7')
        a('v_add_co_u32 v4, vcc, s6, v4')
        a('v_addc_co_u32 v5, vcc, 0, v5, vcc')
        a('s_mov_b64 exec, 3')
        vm.issue('global_load_dword v168, v[4:5], off')
        a('s_mov_b64 exec, -1')
    if P.get('kvbar', 1): a('s_barrier')
    a('s_lshl_b32 s33, s32, 2')
    a('s_add_u32 s6, s74, s33')
    a('s_addc_u32 s7, s75, 0')
    a('s_load_dword s34, s[6:7], 0')
    a('s_lshl_b32 s33, s32, 13')
    SK = {}
    def skload():
        base(a, 12, 72, 0x200000)
        a('s_lshl_b32 s36, s32, 13')
        vm.issue('buffer_load_dwordx4 v[146:149], v14, s[12:15], s36 offen' + NT)
        a('s_add_u32 s36, s36, 0x1000')
        SK['t'] = vm.issue('buffer_load_dwordx4 v[150:153], v14, s[12:15], s36 offen' + NT)
    if P.get('skat', 0) == 0: skload()
    a('s_mul_i32 s30, s28, 6')
    a('s_lshr_b32 s31, s29, 2')
    a('s_add_u32 s30, s30, s31')
    a('s_and_b32 s31, s29, 3')
    a('s_lshl_b32 s46, s30, 2')
    a('s_or_b32 s46, s46, s31')
    a('s_lshl_b32 s47, s31, 2')
    a('s_or_b32 s47, s47, s3')
    a('v_and_b32 v16, 1, v0')
    a('v_lshrrev_b32 v17, 3, v1')
    a('v_and_b32 v6, 7, v1')
    a('v_mul_u32_u24 v242, 0x6000, v17')
    a('v_lshl_add_u32 v242, v6, 4, v242')
    a('v_lshlrev_b32 v243, 3, v17')
    a('s_lshl_b32 s36, s3, 11')
    a('s_add_u32 s33, s33, s36')
    WM = {}
    def wmload():
        base(a, 12, 84, 1024)
        a('s_lshl_b32 s36, s47, 6')
        tc = vm.issue('buffer_load_dwordx2 v[144:145], v243, s[12:15], s36 offen')
        base(a, 12, 86, 512*6144)
        a('s_cmp_lt_u32 s29, 24')
        a('s_cselect_b32 s14, s14, 0')
        a('s_lshr_b32 s36, s46, 2')
        a('s_lshl_b32 s36, s36, 7')
        a(f's_mul_i32 s37, s47, {32*6144}')
        a('s_add_u32 s36, s36, s37')
        twm = []
        for r in range(4):
            twm.append(vm.issue(f'buffer_load_dwordx4 v[{128+4*r}:{131+4*r}], v242, s[12:15], s36 offen' + NT))
            if r < 3: a('s_add_u32 s36, s36, 0x1800')
        WM.update(tc=tc, twm=twm)
    if P.get('wat', 2) == 0: wmload()
    if M2:
        a('s_and_b32 s30, s2, 1')
        a('s_lshl_b32 s30, s30, 3')
        a('s_and_b32 s98, s29, 7')
        a('s_or_b32 s30, s30, s98')
        a('s_bfe_u32 s31, s2, 0x20001')
        a('s_lshl_b32 s31, s31, 2')
        a('s_lshr_b32 s36, s2, 6')
        a('s_or_b32 s31, s31, s36')
        a('s_lshl_b32 s36, s36, 1')
        a('s_add_u32 s98, s98, s36')
    else:
        a('s_lshr_b32 s30, s32, 4')
        a('s_and_b32 s31, s32, 15')
        a(f's_and_b32 s98, s30, {P.get("prot", 0)}')
        a('s_lshl_b32 s98, s98, 2')
        if P.get('xrot', 1): a('s_add_u32 s98, s98, s28')
    a('s_and_b32 s98, s98, 7')
    a('s_lshr_b32 s38, s3, 1')
    a('s_and_b32 s39, s3, 1')
    a('s_cmp_eq_u32 s38, 0')
    a('s_cselect_b32 s20, s78, s80')
    a('s_cselect_b32 s21, s79, s81')
    a(f's_mov_b32 s22, {512*3584 if not P.get("now") else 0}')
    base(a, 8, 82, 1792*1024 if not P.get('now') else 0)
    base(a, 16, 58, TS)
    a('s_lshl_b32 s36, s28, 12')
    a(f's_add_u32 s36, s36, {hex(GRP)}')
    a('s_add_u32 s52, s58, s36')
    a('s_addc_u32 s53, s59, 0')
    a('s_movk_i32 s54, 0x1000')
    a('s_cmp_eq_u32 s3, 3')
    a('s_cselect_b32 s37, 0, 0x70000000')
    a('v_mov_b32 v22, s37')
    a('s_lshl_b32 s36, s29, 7')
    vm.issue('buffer_load_dword v158, v22, s[52:55], s36 offen')
    a('s_lshl_b32 s36, s46, 6')
    a(f's_add_u32 s36, s36, {hex(MODT)}')
    if P.get('mdt', 1): vm.issue('buffer_load_dword v159, v22, s[16:19], s36 offen')
    if M2 and P.get('ft', 1):
        a('s_lshl_b32 s36, s30, 4')
        a('s_lshr_b32 s37, s32, 4')
        a('s_lshl_b32 s37, s37, 4')
        a('s_sub_u32 s37, s37, s36')
        a('s_add_u32 s37, s37, 0x100')
        a('v_lshrrev_b32 v4, 2, v1')
        a('v_min_u32 v5, 1, v4')
        a('v_mul_lo_u32 v5, v5, s37')
        a('v_max_u32 v4, 1, v4')
        a('v_subrev_u32 v4, 1, v4')
        a('v_lshl_add_u32 v5, v4, 8, v5')
        a('v_and_b32 v4, 3, v1')
        a('v_add_u32 v5, v5, v4')
        a('s_lshl_b32 s37, s3, 2')
        a('s_add_u32 s36, s36, s37')
        a('v_add_lshl_u32 v5, v5, s36, 7')
        a(f's_mov_b32 s36, {hex(FL1)}')
        a('s_mov_b64 exec, 0xfff')
        vm.issue('buffer_load_dword v156, v5, s[16:19], s36 offen')
        a('s_mov_b64 exec, -1')
    a('s_lshl_b32 s36, s32, 13')
    a('s_lshl_b32 s37, s46, 11')
    a(f's_add_u32 s37, s37, {hex(MP)}')
    a('s_cmp_eq_u32 s3, 1')
    a(f's_cselect_b32 s37, s37, {hex(TS)}')
    a('s_cselect_b32 s44, 15, 63')
    a('s_cmp_eq_u32 s3, 2')
    a('s_cselect_b32 s37, s36, s37')
    a('v_and_b32 v4, s44, v1')
    a('v_lshlrev_b32 v4, 7, v4')
    if P.get('utt', 1): vm.issue('buffer_load_dword v157, v4, s[16:19], s37 offen' + (' nt' if P.get('ntu', 0) else ''))
    if P.get('tlb', 0) == 1:
        a('v_lshl_add_u32 v4, v1, 20, v22')
        for i, (p, n) in enumerate(((86, 512*6144), (84, 1024), (64, 0x200000), (78, 512*3584), (80, 512*3584), (82, 1792*1024), (56, 0x200000))):
            base(a, 12, p, n)
            vm.issue(f'buffer_load_dword v{160+i}, v4, s[12:15], 0 offen')
        vm.issue('buffer_load_dword v154, v4, s[16:19], 0 offen')
    for i in range(3):
        a(f'v_add_u32 v4, {64*i}, v1')
        a('v_mul_u32_u24 v5, 0x2aab, v4')
        a('v_lshrrev_b32 v5, 16, v5')
        a(f'v_mul_u32_u24 v5, {3584-96}, v5')
        a(f'v_lshl_add_u32 v{10+i}, v4, 4, v5')
        if i: a(f'v_subrev_u32 v{10+i}, {1024*i}, v{10+i}')
    a(f's_mul_i32 s41, s39, {32*3584}')
    a('s_mul_i32 s43, s31, 96')
    a('s_add_u32 s41, s41, s43')
    a('s_add_u32 s41, s41, 0x800')
    a('s_mul_i32 s43, s39, 3072')
    a(f's_mul_i32 s42, s38, {P1U}')
    a('s_add_u32 s42, s42, s43')
    a(f's_add_u32 s99, s41, {512*3584}')
    a(f's_mul_i32 s36, s98, {64*3584}')
    a('s_add_u32 s41, s41, s36')
    def step(reg, inc, lim, span):
        a(f's_add_u32 {reg}, {reg}, {inc}')
        a(f's_cmp_eq_u32 {reg}, {lim}')
        a(f's_cselect_b32 s36, {span}, 0')
        a(f's_sub_u32 {reg}, {reg}, s36')
    early = deque()
    def p1dma(m, i):
        if i == 0: a(f's_add_u32 m0, s42, {6144*m}')
        vm.issue(f'buffer_load_dwordx4 v{10+i}, s[20:23], s41 offen offset:{1024*i} lds')
        if i == 2 and m < 7: step('s41', 64*3584, 's99', 512*3584)
    for m in range(8):
        for i in range(3): early.append(lambda m=m, i=i: p1dma(m, i))
    for _ in range(P.get('e0', 0)): early.popleft()()
    a('v_lshrrev_b32 v4, 3, v1')
    a('v_bfe_u32 v5, v1, 4, 1')
    a('v_lshlrev_b32 v5, 2, v5')
    a('v_xor_b32 v5, v5, v6')
    a('v_lshlrev_b32 v5, 4, v5')
    a(f'v_lshl_add_u32 v8, v4, {7 if RL else 10}, v5')
    a(f'v_add_u32 v9, {0 if RL else 8192-1024}, v8')
    a('s_lshl_b32 s43, s38, 5')
    a('v_xor_b32 v5, s43, v5')
    a(f'v_mul_u32_u24 v7, {PR}, v4')
    a('v_add_u32 v7, v7, v5')
    a(f's_mul_i32 s48, s39, {8*PR}')
    a(f's_lshl_b32 s43, s31, {16 if RP else 7}')
    a('s_add_u32 s48, s48, s43')
    if RP:
        a('s_lshl_b32 s43, s38, 20')
        a('s_add_u32 s48, s48, s43')
        a(f's_add_u32 s48, s48, {hex(W2)}')
    a('s_lshl_b32 s43, s39, 10')
    a(f's_mul_i32 s49, s38, {SEG[0][2]-SEG[0][1]}')
    a('s_add_u32 s49, s49, s43')
    a(f's_mul_i32 s38, s38, {P1U}')
    a('s_add_u32 s43, s43, s38')
    a('v_sub_u32 v4, 7, v2')
    a('v_xor_b32 v4, v4, v6')
    a('v_lshl_add_u32 v4, v3, 4, v4')
    a(f'v_lshlrev_b32 v4, 4, v4')
    a(f'v_add_u32 v120, {PB}, v4')
    a('v_lshrrev_b32 v4, 4, v1')
    a('v_xor_b32 v5, v4, v1')
    a('s_lshl_b32 s36, s3, 11')
    a(f's_add_u32 s36, s36, {PB}')
    a('v_lshl_add_u32 v124, v5, 4, s36')
    a('v_xor_b32 v125, 64, v124')
    a('v_lshrrev_b32 v4, 3, v1')
    a('v_lshlrev_b32 v5, 4, v6')
    a('v_lshl_add_u32 v13, v4, 12, v5')
    a('s_lshl_b32 s36, s28, 2')
    a('s_add_u32 s36, s36, s3')
    a('s_lshl_b32 s36, s36, 16')
    a('s_sub_u32 s35, 31, s29')
    a('s_lshl_b32 s35, s35, 7')
    a('s_add_u32 s35, s35, s36')
    if 200 > P.get('probe', 0) >= 100:
        a('v_mov_b32 v22, s60')
        a('s_lshl_b32 s36, s2, 2')
        a(f's_add_u32 s36, s36, {hex(0x140A000)}')
        vm.issue('buffer_store_dword v22, v21, s[16:19], s36 offen sc1')
    def slow_gu():
        a('v_bfe_u32 v4, v1, 1, 3')
        a('v_and_b32 v5, 1, v4')
        a('v_lshlrev_b32 v5, 9, v5')
        a(f'v_mul_u32_u24 v4, 3584, v4')
        a('v_add_u32 v4, v4, v5')
        a('v_and_b32 v5, 1, v1')
        a('v_lshl_add_u32 v4, v5, 10, v4')
        a('v_bfe_u32 v5, v1, 4, 1')
        a('v_lshl_add_u32 v4, v5, 11, v4')
        a('s_lshl_b32 s36, s29, 1')
        a('s_and_b32 s37, s3, 1')
        a('s_add_u32 s36, s36, s37')
        a(f's_mul_i32 s36, s36, {8*3584}')
        a('s_mov_b32 exec_hi, 0')
        vm.issue('buffer_load_dword v252, v4, s[20:23], s36 offen offset:384')
        a('s_mov_b32 exec_hi, -1')
    def slow_d():
        a('v_lshlrev_b32 v4, 10, v1')
        a('s_and_b32 s36, s32, 31')
        a('s_lshl_b32 s36, s36, 2')
        a('s_add_u32 s36, s36, s3')
        a(f's_mul_i32 s36, s36, {14*1024}')
        a('s_mov_b64 exec, 0x3fff')
        vm.issue('buffer_load_dword v253, v4, s[8:11], s36 offen offset:384')
        a('s_mov_b64 exec, -1')
    def slow(at):
        if P.get('sg', 0) == at: slow_gu()
        if P.get('sd', 0) == at: slow_d()
    CR = 32 if P.get('cla', 1) == 1 else 244
    CP = {}
    def cpload():
        if not RL: return
        a('s_mul_i32 s44, s2, 7')
        a('s_lshl_b32 s45, s3, 1')
        a('s_add_u32 s44, s44, s45')
        a('s_cmp_eq_u32 s3, 3')
        a('s_cselect_b32 s45, 0, 1')
        a('s_add_u32 s45, s45, s44')
        for r in range(2):
            a(f's_lshl_b32 s36, s{44+r}, 10')
            CP['l'] = vm.issue(f'buffer_load_dwordx4 v[{CR+4*r}:{CR+3+4*r}], v15, s[8:11], s36 offen' + NT)
    stamp('pre')
    vm.need(tsh)
    lo(a, 52, 48); hi(a, 54, 48, 40); lo(a, 56, 49); hi(a, 58, 49, 40)
    lo(a, 53, 50); hi(a, 55, 50, 40); lo(a, 57, 51); hi(a, 59, 51, 40)
    vm.need(tk[0])
    stamp('kv0')
    if P.get('skat', 0) == 1: skload()
    if P.get('wat', 2) == 1: wmload()
    def xload():
        vm.issue('buffer_load_dwordx4 v[232:235], v15, s[12:15], s33 offen' + NT)
        return vm.issue('buffer_load_dwordx4 v[236:239], v15, s[12:15], s33 offen offset:1024' + NT)
    for q in range(3):
        lo(a, 60+2*q, 24+q); hi(a, 61+2*q, 24+q, 40)
    for r in range(8):
        vm.need(tk[r])
        lo(a, 66+2*r, 27+r); hi(a, 67+2*r, 27+r, 40)
        lo(a, 84+2*r, 36+r); hi(a, 85+2*r, 36+r, 40)
        d = 102+2*r
        a(f'v_pk_mul_f32 v[{d}:{d+1}], v[{60+2*r}:{61+2*r}], v[58:59]')
        a(f'v_pk_fma_f32 v[{d}:{d+1}], v[{62+2*r}:{63+2*r}], v[56:57], v[{d}:{d+1}]')
        a(f'v_pk_fma_f32 v[{d}:{d+1}], v[{64+2*r}:{65+2*r}], v[54:55], v[{d}:{d+1}]')
        a(f'v_pk_fma_f32 v[{d}:{d+1}], v[{66+2*r}:{67+2*r}], v[52:53], v[{d}:{d+1}]')
        a(f'v_pk_mul_f32 v[{d}:{d+1}], v[{d}:{d+1}], v[{84+2*r}:{85+2*r}]')
    if P.get('skat', 0) == 2: skload()
    if P.get('wat', 2) == 2: wmload()
    if P.get('cla', 1) == 0: cpload()
    tc, twm, tsk = WM['tc'], WM['twm'], SK['t']
    base(a, 12, 64, 0x200000)
    slow(1)
    stamp('kvN')
    for c in range(2):
        for jj in range(4):
            a(f'v_cvt_pk_bf16_f32 v{24+4*c+jj}, v{102+2*(7-2*jj)+c}, v{102+2*(6-2*jj)+c}')
        a(f'ds_write_b128 v120, v[{24+4*c}:{27+4*c}] offset:{128*c}')
    a('s_waitcnt lgkmcnt(0)')
    a('s_barrier')
    stamp('abar')
    for j in range(2): a(f'ds_read_b128 v[{104+4*j}:{107+4*j}], v{124+j} offset:{1024*j}')
    a('s_mul_i32 s50, s50, 1664525')
    a('s_add_u32 s50, s50, 1013904223')
    a('v_mov_b32 v20, s50')
    a('s_getreg_b32 s100, hwreg(HW_REG_XCC_ID, 0, 4)')
    if P.get('slow'): a('s_and_b32 s100, s29, 1')
    a('s_add_u32 s100, s100, s50')
    a('s_add_u32 s100, s100, 1')
    a('s_mov_b32 s24, s35')
    a('s_add_u32 s25, s35, 0x8000')
    ustores = [f'buffer_store_dwordx4 v[{104+4*j}:{107+4*j}], v13, s[16:19], s{24+j} offen' for j in range(2)]
    for j in range(2):
        a(f's_waitcnt lgkmcnt({1-j})')
        tus = vm.issue(ustores[j] + (' sc1' if P.get('uts', 0) else ''))
    a('s_lshl_b32 s7, s3, 7')
    a('s_lshl_b32 s36, s29, 2')
    a('s_add_u32 s7, s7, s36')
    a('v_mov_b32 v123, s100')
    stamp('utst')
    for i in range(4): a(f'v_mov_b32 v{40+i}, 0')
    a(f'v_add_u32 v14, {CB}, v14')
    a('v_cmp_gt_u32 vcc, 32, v0')
    a('s_and_saveexec_b64 s[36:37], vcc')
    a('s_cbranch_execz L_nz')
    a('ds_write_b128 v14, v[40:43]')
    a(f'ds_write_b128 v14, v[40:43] offset:{CHS}')
    a('v_cmp_gt_u32 vcc, 2, v0')
    a('s_and_b64 exec, exec, vcc')
    for c in range(2):
        a(f'ds_write_b128 v14, v[40:43] offset:{c*CHS+U0+4096}')
        a(f'ds_write_b128 v14, v[40:43] offset:{c*CHS+U1+4096}')
    a.label('L_nz')
    a('s_mov_b64 exec, s[36:37]')
    a('v_cmp_eq_u32 s[36:37], 0, v0')
    a('s_lshl_b32 s4, s34, 16')
    a('s_and_b32 s5, s34, 0xffff0000')
    a('s_mov_b32 s6, 0xffff')
    vm.need(tsk)
    stamp('skok')
    for c in range(2):
        kx = 146+4*c
        lo(a, 44, kx)
        a(f'v_add_f32 v44, s{4+c}, v44')
        a('v_cvt_pk_bf16_f32 v44, v44, v44')
        a(f'v_bfi_b32 v44, s6, v44, v{kx}')
        a(f'v_cndmask_b32 v{kx}, v{kx}, v44, s[36:37]')
        a(f'ds_write_b128 v14, v[{kx}:{kx+3}] offset:{c*CHS+KB}')
    vm.need(tus)
    masked([f'buffer_store_dword v123, v21, s[52:55], s7 offen offset:{UH}'], 1)
    a('v_and_b32 v120, 31, v1')
    a('v_lshlrev_b32 v120, 2, v120')
    a('s_lshr_b32 s5, s29, 3')
    a('s_lshl_b32 s5, s5, 7')
    hloads = [f'buffer_load_dword v121, v120, s[52:55], 0 offen offset:{XID} sc1', f'buffer_load_dword v124, v120, s[52:55], s5 offen offset:{UH} sc1']
    a('v_mov_b32 v121, s50')
    tu = masked(hloads[1:], 0xffffffff)
    a('v_lshrrev_b32 v4, 1, v6')
    a('v_lshlrev_b32 v4, 11, v4')
    a('v_lshl_add_u32 v4, v16, 6, v4')
    a('v_lshrrev_b32 v5, 5, v1')
    a('v_lshl_add_u32 v4, v5, 5, v4')
    a('v_bfe_u32 v5, v1, 4, 1')
    a('v_lshl_add_u32 v126, v5, 4, v4')
    a('s_lshl_b32 s35, s32, 13')
    a('s_add_u32 s34, s35, 0x1000')
    a('v_lshlrev_b32 v125, 4, v0')
    vm.need(tc)
    lo(a, 44, 144); hi(a, 45, 144, 40); lo(a, 46, 145); hi(a, 47, 145, 40)
    for r in range(4): a(f'v_mul_f32 v{48+r}, {fh(-1.4426950408889634)}, v{44+r}')
    for r in range(4): a(f'v_exp_f32 v{48+r}, v{48+r}')
    for r in range(4): a(f'v_add_f32 v{48+r}, 1.0, v{48+r}')
    for r in range(4): a(f'v_rcp_f32 v{48+r}, v{48+r}')
    for r in range(4): a(f'v_mul_f32 v{44+r}, v{44+r}, v{48+r}')
    a('v_cvt_pk_bf16_f32 v48, v44, v45')
    a('v_cvt_pk_bf16_f32 v49, v46, v47')
    lo(a, 44, 48); hi(a, 45, 48, 40); lo(a, 46, 49); hi(a, 47, 49, 40)
    def stage1():
        for r in range(4):
            vm.need(twm[r])
            unpack8(a, 52, 128+4*r, 40)
            sel = 'op_sel:[0,0,0] op_sel_hi:[1,0,1]' if r % 2 == 0 else 'op_sel:[0,1,0] op_sel_hi:[1,1,1]'
            sp = 44 + (r & 2)
            for j in range(4):
                if r == 0:
                    a(f'v_pk_mul_f32 v[{60+2*j}:{61+2*j}], v[{52+2*j}:{53+2*j}], v[{sp}:{sp+1}] op_sel:[0,0] op_sel_hi:[1,0]')
                else:
                    a(f'v_pk_fma_f32 v[{60+2*j}:{61+2*j}], v[{52+2*j}:{53+2*j}], v[{sp}:{sp+1}], v[{60+2*j}:{61+2*j}] {sel}')
        for j in range(4): a(f'v_permlane32_swap_b32 v{60+j}, v{64+j}')
        for j in range(4): a(f'v_add_f32 v{60+j}, v{60+j}, v{64+j}')
        a('s_lshr_b32 s6, s46, 2')
        a('s_lshl_b32 s6, s6, 13')
        for j in range(2): a(f'v_permlane16_swap_b32 v{60+j}, v{62+j}')
        a('s_lshl_b32 s36, s47, 7')
        for j in range(2): a(f'v_add_f32 v{100+j}, v{60+j}, v{62+j}')
        a('v_mov_b32 v102, s50')
        a('v_mov_b32 v103, s50')
        for j in range(2): a(f'v_add_f32_dpp v{100+j}, v{100+j}, v{100+j} row_ror:8 row_mask:0xf bank_mask:0xf')
        a('s_add_u32 s6, s6, s36')
        a(f's_add_u32 s6, s6, {hex(MP)}')
        a('s_cmp_lt_u32 s29, 24')
        a(f's_cselect_b32 s6, s6, {hex(TS)}')
    if P.get('s1at', 1) == 0: stage1()
    a('s_lshr_b32 s36, s3, 1')
    a(f's_mul_i32 s36, s36, {CHS}')
    a('s_xor_b32 s38, s39, 1')
    a('s_lshl_b32 s38, s38, 6')
    a('s_add_u32 s36, s36, s38')
    a(f's_add_u32 s36, s36, {CB}')
    a('v_and_b32 v3, 15, v0')
    a('v_bfe_u32 v4, v0, 4, 2')
    a('v_lshlrev_b32 v5, 4, v4')
    a('v_lshl_add_u32 v22, v3, 5, v5')
    a(f's_add_u32 s38, s36, {KB-480}')
    a('v_add_u32 v22, s38, v22')
    a('v_and_b32 v23, 14, v3')
    a('v_lshlrev_b32 v23, 1, v23')
    a('v_sub_u32 v23, v5, v23')
    a(f'v_mul_u32_u24 v5, {U1-U0}, v16')
    a('v_sub_u32 v23, v23, v5')
    a(f's_add_u32 s38, s36, {U1+28}')
    a('v_add_u32 v16, s38, v23')
    for i in range(1, 4): a(f'v_add_u32 v{16+i}, {1024*i}, v16')
    a('v_bfe_u32 v5, v3, 1, 2')
    a('v_xor_b32 v5, v5, v4')
    a('v_lshl_add_u32 v5, v3, 2, v5')
    a('s_lshl_b32 s38, s3, 13')
    a(f's_add_u32 s38, s38, {PB}')
    a('v_lshl_add_u32 v23, v5, 4, s38')
    KP = P.get('kp', 1)
    if KP:
        a('s_waitcnt lgkmcnt(0)')
        a('s_barrier')
        for j in range(4, 32): a(f'ds_read_b128 v[{104+4*j}:{107+4*j}], v22 offset:{128*j}') if not 120 <= 104+4*j < 156 else None
    a(f's_mov_b32 s51, {SPIN}')
    a('s_mov_b32 s101, 0')
    vm.need(tu)
    stamp('ut1st')
    if PM: a('s_mov_b32 exec_hi, 0')
    a('s_branch L_uh_chk')
    a.label('L_uh')
    if SL: a(f's_sleep {SL}')
    a(f's_cmp_lg_u32 s51, {SPIN - P.get("idl", 4)}')
    a('s_cbranch_scc1 L_noid')
    a('s_cmp_lg_u32 s3, 0')
    a('s_cbranch_scc1 L_noid')
    a('s_lshl_b32 s36, s29, 2')
    a('s_mov_b64 exec, 1')
    a(f'buffer_store_dword v123, v21, s[52:55], s36 offen offset:{XID} sc1')
    a('s_mov_b64 exec, 0xffffffff' if PM else 's_mov_b64 exec, -1')
    a.label('L_noid')
    for l in hloads: a(l)
    a('s_waitcnt vmcnt(0)')
    a.label('L_uh_chk')
    a('v_cmp_ne_u32 vcc, s100, v124')
    a('v_subrev_u32 v122, s50, v121')
    a('v_subrev_u32 v122, 1, v122')
    a('s_cbranch_vccz L_uh_ok')
    a('v_cmp_lt_u32 vcc, 15, v122')
    a('v_cmp_ne_u32 s[92:93], s100, v121')
    a('s_sub_u32 s51, s51, 1')
    a('s_cbranch_scc1 L_uh_ok')
    a('s_cbranch_vccnz L_uh')
    a('s_cmp_eq_u64 s[92:93], 0')
    a('s_cbranch_scc1 L_uh_same')
    a('s_cmp_lg_u32 s101, 0')
    a('s_cbranch_scc1 L_uh_same')
    a('s_mov_b32 s101, 1')
    a('s_mov_b64 exec, -1')
    for l in ustores: a(l + ' sc1')
    a('s_waitcnt vmcnt(0)')
    a(f'buffer_store_dword v20, v21, s[52:55], s7 offen offset:{UH} sc1')
    if PM: a('s_mov_b32 exec_hi, 0')
    a.label('L_uh_same')
    a('v_cmp_ne_u32 vcc, s50, v124')
    a('v_cmp_ne_u32 s[92:93], s100, v124')
    a('s_nop 0')
    a('s_and_b64 vcc, vcc, s[92:93]')
    a('s_cbranch_vccnz L_uh')
    a.label('L_uh_ok')
    a('s_mov_b64 exec, -1')
    raw(6, 's51')
    stamp('uhok')
    tu = []
    for c in range(2):
        vm.issue(f'buffer_load_dwordx4 v[{72+4*c}:{75+4*c}], v125, s[16:19], s{35-c} offen sc1')
        tu.append(vm.issue(f'buffer_load_dword v{80+c}, v125, s[16:19], s{35-c} offen offset:16 sc1'))
    if P.get('s1at', 1) == 1: stage1()
    lstore(['buffer_store_dwordx4 v[100:103], v126, s[16:19], s6 offen'])
    if KP:
        for j in list(range(4)) + list(range(4, 13)): a(f'ds_read_b128 v[{104+4*j}:{107+4*j}], v22 offset:{128*j}')
    if P.get('xat', 1) == 1: tx = xload()
    if P.get('cla', 1) == 1: cpload()
    if RP:
        a('s_lshl_b32 s43, s2, 1')
        a('s_add_u32 s43, s43, s39')
        a('s_mul_i32 s36, s43, 3584')
        for r in range(2): CP['pl'] = vm.issue(f'buffer_load_dwordx4 v[{24+4*r}:{27+4*r}], v15, s[20:23], s36 offen offset:{1024*r}' + NT)
    def p2copy():
        a('v_lshrrev_b32 v4, 3, v1')
        a('v_lshlrev_b32 v4, 16, v4')
        a('v_lshl_add_u32 v4, v6, 4, v4')
        a('s_lshr_b32 s36, s3, 1')
        a('s_lshl_b32 s36, s36, 20')
        a('s_lshl_b32 s43, s43, 7')
        a('s_add_u32 s36, s36, s43')
        a(f's_add_u32 s36, s36, {hex(W2)}')
        vm.need(CP['pl'])
        vm.issue('buffer_store_dwordx4 v[24:27], v4, s[16:19], s36 offen sc1')
        a('s_add_u32 s36, s36, 0x80000')
        CP['s'] = vm.issue('buffer_store_dwordx4 v[28:31], v4, s[16:19], s36 offen sc1')
    def wdcopy():
        a('v_lshrrev_b32 v4, 3, v1')
        a(f'v_mul_u32_u24 v4, {1792*128}, v4')
        a('v_lshl_add_u32 v4, v6, 4, v4')
        vm.need(CP['l'])
        for r in range(2):
            a(f's_lshl_b32 s36, s{44+r}, 7')
            a(f's_add_u32 s36, s36, {hex(WD2)}')
            CP['s'] = vm.issue(f'buffer_store_dwordx4 v[{CR+4*r}:{CR+3+4*r}], v4, s[16:19], s36 offen sc1')
    a('s_movk_i32 s36, 0xff')
    a('v_cmp_ne_u32 vcc, s36, v0')
    for c in range(2):
        u = 72+4*c
        vm.need(tu[c])
        if c == 0: stamp('utok')
        a(f'v_cndmask_b32 v{80+c}, 0, v{80+c}, vcc')
        a(f'ds_write_b128 v14, v[{u}:{u+3}] offset:{c*CHS+U0}')
        for j in range(3): a(f'v_alignbit_b32 v{40+4*c+j}, v{u+j+1}, v{u+j}, 16')
        a(f'v_alignbit_b32 v{43+4*c}, v{80+c}, v{u+3}, 16')
        a(f'ds_write_b128 v14, v[{40+4*c}:{43+4*c}] offset:{c*CHS+U1}')
    for _ in range(P.get('e0b', 3)): early.popleft()()
    a('s_waitcnt lgkmcnt(0)')
    a('s_barrier')
    stamp('bbar')
    if RL and P.get('cpa', 10) < 0: wdcopy()
    a('s_lshl_b32 s6, s46, 11')
    a(f's_add_u32 s6, s6, {hex(MP)}')
    a('s_lshl_b32 s5, s46, 6')
    a(f's_add_u32 s5, s5, {hex(MODT)}')
    a('s_cmp_lt_u32 s29, 24')
    a(f's_cselect_b32 s7, s3, 1')
    a('s_cmp_eq_u32 s7, 0')
    a(f's_cselect_b32 s6, s6, {hex(TS)}')
    a(f's_cselect_b32 s5, s5, {hex(TS)}')
    a('s_lshr_b32 s36, s46, 5')
    a('s_cmp_eq_u32 s36, 1')
    a('s_cselect_b32 s4, 1.0, 0')
    a('s_cmp_eq_u32 s36, 4')
    a('s_cselect_b32 s4, 1.0, s4')
    ploads = [f'buffer_load_dwordx4 v[{240+4*j}:{243+4*j}], v15, s[16:19], s6 offen offset:{1024*j} sc1' for j in range(2)]
    tmi = []
    def mod_issue():
        for l in ploads: t = vm.issue(l)
        tmi.append(t)
    def mod_check():
        vm.need(tmi[0])
        a('s_cmp_lg_u32 s7, 0')
        a('s_cbranch_scc1 L_nomod')
        done = vm.done
        poll('mp', ploads, [242, 246], pre=0)
        vm.done = done
        a.label('L_nomod')
    st2 = deque(['v_add_f32 v240, v240, v244', 'v_add_f32 v241, v241, v245', 'v_mov_b32 v246, s50', 'v_mov_b32 v247, s50'])
    st2.extend(f'v_add_f32_dpp v{240+j}, v{240+j}, v{240+j} row_ror:8 row_mask:0xf bank_mask:0xf' for j in range(2))
    for op in ('v_permlane16_swap_b32', 'v_permlane32_swap_b32'):
        st2.extend(f'v_mov_b32 v{242+j}, v{240+j}' for j in range(2))
        st2.extend(f'{op} v{240+j}, v{242+j}' for j in range(2))
        st2.extend(f'v_add_f32 v{240+j}, v{240+j}, v{242+j}' for j in range(2))
    st2.extend(['v_cvt_pk_bf16_f32 v242, v240, v241', 'v_lshlrev_b32 v243, 3, v1', 'v_lshlrev_b32 v240, 16, v242', 'v_and_b32 v241, s40, v242',
                'v_add_f32 v240, s4, v240', 'v_add_f32 v241, s4, v241', 'v_cvt_pk_bf16_f32 v244, v240, v241', None,
                'v_mov_b32_dpp v245, v244 quad_perm:[1,1,3,3] row_mask:0xf bank_mask:0xf', None, 'store'])
    def st2_step():
        for _ in range(2):
            if not st2: return
            x = st2.popleft()
            if x is None: return
            if x == 'store': masked(['buffer_store_dwordx4 v[244:247], v243, s[16:19], s5 offen sc1'], 0x55)
            else: a(x)
    ACC, AR, BR = 40, 72, 104
    pipe = LdsPipe(a)
    reads = []
    for i in range(32):
        o = 32*((31-i) & 7); b = 16 + ((31-i) >> 3); d = AR + 4*(i & 7)
        reads.append((('A', i, 0), f'ds_read2_b32 v[{d}:{d+1}], v{b} offset0:{o} offset1:{o+1}'))
        reads.append((('A', i, 1), f'ds_read2_b32 v[{d+2}:{d+3}], v{b} offset0:{o+2} offset1:{o+3}'))
        if i < 4 and not KP:
            for t in range(8):
                j = 4*t+3-i
                reads.append((('B', j), f'ds_read_b128 v[{BR+4*j}:{BR+4*j+3}], v22 offset:{128*j}'))
    tok = {('B', j): 0 for j in range(32)} if KP else {}; nxt = [0]
    def pump(cur_step, maxn):
        n = 0
        while n < maxn and nxt[0] < len(reads) and pipe.outstanding() < 13:
            key, line = reads[nxt[0]]
            if key[0] == 'A' and key[1] >= cur_step + 8: break
            tok[key] = pipe.issue(line); nxt[0] += 1; n += 1
    pump(0, 12)
    slow(2)
    pending = []; nm = 0
    NB = P.get('e1', 12); EV = P.get('ev', 9)
    for i in range(32):
        for t in range(i >> 2, 8):
            j = 4*t+3-i
            while ('B', j) not in tok or ('A', i, 1) not in tok:
                pipe.need(pipe.done + 2); pump(i, 2)
            pipe.need(max(tok[('A', i, 1)], tok[('B', j)]))
            d = ACC+4*t; c = '0' if i == 0 else f'v[{d}:{d+3}]'
            s = AR+4*(i & 7)
            a(f'v_mfma_f32_16x16x32_bf16 v[{d}:{d+3}], v[{s}:{s+3}], v[{BR+4*j}:{BR+4*j+3}], {c}')
            pump(i, 2 if i < 4 else 1)
            nm += 1
            if i > P.get('mfin', 7): st2_step()
            if nm >= P.get('e1s', 10) and nm % EV == 0 and NB > 0 and early:
                early.popleft()(); NB -= 1
        if pending and pipe.outstanding() < 14:
            t = pending.pop()
            pipe.issue(f'ds_write_b128 v23, v[{ACC+4*t}:{ACC+4*t+3}] offset:{1024*t}')
        if (i & 3) == 3: pending.append(i >> 2)
        if RL and i == P.get('cpa', 10): wdcopy()
        if RP and i == P.get('cpa', 10) + 1: p2copy()
        if i == P.get('mpi', 2): mod_issue()
        if i == P.get('mfin', 7): mod_check(); raw(7, 's51')
    for t in pending:
        pipe.issue(f'ds_write_b128 v23, v[{ACC+4*t}:{ACC+4*t+3}] offset:{1024*t}')
    assert not st2
    stamp('bend')
    a('v_lshlrev_b32 v4, 3, v0')
    a(f'v_add_u32 v4, {PRM}, v4')
    a('v_lshrrev_b32 v2, 1, v0')
    a('v_bfe_u32 v3, v0, 4, 2')
    a('v_xor_b32 v2, v2, v3')
    a('v_lshlrev_b32 v2, 4, v2')
    a('v_and_b32 v3, 1, v0')
    a('v_lshl_add_u32 v2, v3, 3, v2')
    a(f'v_add_u32 v2, {PB}, v2')
    a('v_lshlrev_b32 v3, 4, v0')
    a('v_and_b32 v5, 3, v0')
    a(f's_mul_i32 s38, s32, {YP}')
    a(f's_add_u32 s38, s38, {hex(YT)}')
    a(f'v_add_u32 v13, {PRM}, v15')
    a('s_and_b32 s36, s32, 7')
    a('s_lshl_b32 s36, s36, 1')
    a('s_and_b32 s37, s3, 1')
    a('s_or_b32 s36, s36, s37')
    a('s_lshl_b32 s36, s36, 6')
    a(f's_add_u32 s36, s36, {PRM+5120}')
    a('v_lshrrev_b32 v14, 5, v1')
    a('v_lshl_add_u32 v14, v14, 4, s36')
    if RL or RP: vm.need(CP['s'])
    a('s_waitcnt lgkmcnt(0)')
    a('s_barrier')
    stamp('pbar')
    for j in range(4):
        for w in range(4):
            a(f'ds_read_b64 v[{72+8*j+2*w}:{73+8*j+2*w}], v2 offset:{8192*w+2048*j}')
        if j == 2: a('s_waitcnt lgkmcnt(8)')
    a('s_lshl_b32 s35, s3, 10')
    a(f's_add_u32 s35, s35, {hex(MODT)}')
    a('s_add_u32 s34, s35, 0x1000')
    a('s_add_u32 s4, s35, 0x2000')
    mloads = [f'buffer_load_dwordx4 v[{104+4*r}:{107+4*r}], v15, s[16:19], s{(35, 34, 4)[r]} offen sc1' for r in range(3)]
    TM = [None]
    if P.get('mde', 1) == 1:
        for l in mloads: TM[0] = vm.issue(l)
    for j in range(4):
        b = 72+8*j; q = 24+4*j
        if j: a(f's_waitcnt lgkmcnt({12-4*j})')
        a(f'v_pk_add_f32 v[{b}:{b+1}], v[{b}:{b+1}], v[{b+2}:{b+3}]')
        a(f'v_pk_add_f32 v[{b+4}:{b+5}], v[{b+4}:{b+5}], v[{b+6}:{b+7}]')
        a(f'v_mov_b32 v{q+2}, s50')
        a(f'v_mov_b32 v{q+3}, s50')
        a(f'v_cvt_pk_bf16_f32 v{q}, v{b}, v{b+4}')
        a(f'v_cvt_pk_bf16_f32 v{q+1}, v{b+1}, v{b+5}')
        tys = vm.issue(f'buffer_store_dwordx4 v[{q}:{q+3}], v3, s[16:19], s38 offen sc1')
        if j < 3: a('s_add_u32 s38, s38, 0x1000')
    stamp('ytst')
    a('v_mov_b32 v22, v4')
    a('v_mov_b32 v23, v14')
    a('v_mov_b32 v60, v5')
    slow(3)
    a('v_mov_b32 v5, v60')
    if P.get('mde', 1) == 2:
        for l in mloads: TM[0] = vm.issue(l)
    for _ in range(P.get('e2', 6)): early.popleft()()
    a('v_lshrrev_b32 v4, 2, v0')
    a(f'v_mul_u32_u24 v3, {2*YS}, v5')
    a('v_lshl_add_u32 v3, v4, 2, v3')
    a(f'v_add_u32 v3, {XG}, v3')
    a(f's_mul_i32 s46, s3, {2*YS}')
    a(f's_add_u32 s46, s46, {XG}')
    a('v_add_u32 v4, s46, v15')
    a('s_lshl_b32 s46, s3, 1')
    a('v_xor_b32 v5, s46, v6')
    a('v_lshlrev_b32 v5, 4, v5')
    a('v_lshl_add_u32 v5, v1, 7, v5')
    a(f'v_add_u32 v5, {XH}, v5')
    a('v_xor_b32 v16, 16, v5')
    a('v_lshrrev_b32 v17, 3, v1')
    a('v_xor_b32 v18, v17, v6')
    a('v_lshlrev_b32 v18, 4, v18')
    a('v_lshl_add_u32 v18, v17, 7, v18')
    a('s_lshl_b32 s46, s3, 11')
    a(f's_add_u32 s46, s46, {XH}')
    a('v_add_u32 v18, s46, v18')
    a('v_lshlrev_b32 v17, 9, v17')
    a('v_lshl_add_u32 v17, v6, 4, v17')
    a('s_lshr_b32 s46, s32, 2')
    a('s_lshl_b32 s46, s46, 15')
    a('s_and_b32 s47, s32, 3')
    a('s_lshl_b32 s47, s47, 7')
    a('s_add_u32 s46, s46, s47')
    a('s_lshl_b32 s47, s3, 13')
    a('s_add_u32 s46, s46, s47')
    a(f's_add_u32 s46, s46, {hex(H2)}')
    a('s_add_u32 s47, s46, 0x1000')
    XO = P.get('xo', 1)
    XS = 's[12:15]' if XO else 's[16:19]'
    base(a, 12, 56, 0x200000)
    a(f's_add_u32 s37, s33, {0 if XO else hex(X1)}')
    a('v_lshrrev_b32 v14, 2, v0')
    a(f'v_mul_u32_u24 v14, {YP}, v14')
    a('v_and_b32 v19, 3, v0')
    a('v_lshl_add_u32 v14, v19, 4, v14')
    a('s_lshl_b32 s24, s32, 6')
    a(f's_add_u32 s26, s24, {hex(YT)}')
    a(f's_add_u32 s27, s26, {64*YP}')
    a(f's_add_u32 s5, s26, {128*YP}')
    a(f's_add_u32 s6, s26, {192*YP}')
    X = (64, 160)
    vm.need(tx)
    subs = []
    for t in range(2):
        s = Asm(); unpack8(s, X[t], 232+4*t, 40); ln2p(s, X[t], X[t]+8, X[t]+16, 24+t)
        subs.append(s)
    zipl(a, *subs)
    stamp('ln1')
    yloads = [f'buffer_load_dwordx4 v[{24+4*j}:{27+4*j}], v14, s[16:19], s{(26, 27, 5, 6)[j]} offen sc1' for j in range(4)]
    MDE = P.get('mde', 1)
    def md_in():
        poll('md', mloads, [106, 110, 114], pre=TM[0])
        stamp('mdok'); raw(1, 's51')
        for r in range(3): a(f'ds_write_b64 v22, v[{104+4*r}:{105+4*r}] offset:{2048*r}')
    def md_use(extra):
        for i, off in enumerate((1024, 0, 2048)):
            a(f'ds_read_b128 v[{40+4*i}:{43+4*i}], v13 offset:{off}')
        for l in extra: a(l)
        for i, off in enumerate((4096, 3072)):
            a(f'ds_read_b128 v[{52+4*i}:{55+4*i}], v13 offset:{off}')
        a('ds_read_b128 v[124:127], v23')
        a('ds_read_b128 v[116:119], v23 offset:32')
        a(f's_waitcnt lgkmcnt({5+len(extra)})')
        unpack8(a, 128, 40, 40); unpack8(a, 136, 44, 40)
        for t in range(2):
            for p in range(4):
                d = X[t]+8+2*p
                a(f'v_pk_fma_f32 v[{d}:{d+1}], v[{d}:{d+1}], v[{128+2*p}:{129+2*p}], v[{136+2*p}:{137+2*p}]')
        a(f's_waitcnt lgkmcnt({4+len(extra)})')
        unpack8(a, 144, 48, 40)
        for t in range(2):
            for p in range(4):
                d = X[t]+8+2*p
                a(f'v_pk_mul_f32 v[{d}:{d+1}], v[{d}:{d+1}], v[{144+2*p}:{145+2*p}]')
        a('s_waitcnt lgkmcnt(0)')
        unpack8(a, 128, 52, 40); unpack8(a, 136, 56, 40)
    if MDE:
        md_in()
        a('s_waitcnt lgkmcnt(0)')
        a('s_barrier')
        md_use([])
    vm.need(tys)
    if P.get('yd'): a(f's_sleep {P["yd"]}')
    stamp('ytack')
    for l in yloads: ty = vm.issue(l)
    if not MDE:
        for l in mloads: TM[0] = vm.issue(l)
    poll('yt', yloads, [26, 30, 34, 38], pre=ty)
    stamp('ytok'); raw(2, 's51')
    for j in range(4):
        a(f'ds_write_b32 v3, v{24+4*j} offset:{256*j}')
        a(f'ds_write_b32 v3, v{25+4*j} offset:{256*j+YS}')
    if not MDE: md_in()
    a('s_waitcnt lgkmcnt(0)')
    a('s_barrier')
    stamp('ybar')
    yreads = ['ds_read_b128 v[24:27], v4', f'ds_read_b128 v[28:31], v4 offset:{YS}']
    if MDE:
        for l in yreads: a(l)
    ptok = {}
    def p2dma(k):
        a(f's_add_u32 m0, s49, {SEG[0][1] + 2048*(k % 15)}')
        if k and k % 4: a(f's_add_u32 s48, s48, {16*PR}')
        elif k: step('s48', 16*PR, 's100', 512*PR)
        ptok[k] = vm.issue('buffer_load_dwordx4 v7, s[16:19], s48 offen sc1 lds' if RP else 'buffer_load_dwordx4 v7, s[20:23], s48 offen lds')
    a(f's_add_u32 s100, s48, {512*PR}')
    a(f's_mul_i32 s36, s98, {64*PR}')
    a('s_add_u32 s48, s48, s36')
    for _ in range(P.get('e3', 3)): early.popleft()()
    NSY = P.get('nsy', 0)
    for k in range(NSY): p2dma(k)
    if MDE: a('s_waitcnt lgkmcnt(0)')
    else: md_use(yreads)
    subs = []
    for t in range(2):
        s = Asm(); x = X[t]
        unpack8(s, x+20, 24+4*t, 40)
        for p in range(4):
            s(f'v_pk_fma_f32 v[{x+2*p}:{x+2*p+1}], v[{x+8+2*p}:{x+9+2*p}], v[{x+20+2*p}:{x+21+2*p}], v[{x+2*p}:{x+2*p+1}]')
        for j in range(4): s(f'v_cvt_pk_bf16_f32 v{32+4*t+j}, v{x+2*j}, v{x+2*j+1}')
        s(f'buffer_store_dwordx4 v[{32+4*t}:{35+4*t}], v15, {XS}, s37 offen offset:{1024*t} sc1')
        unpack8(s, x, 32+4*t, 40)
        (ln1p if P.get('l1', 1) else ln2p)(s, x, x+8, x+16, 24+2*t)
        for p in range(4):
            s(f'v_pk_fma_f32 v[{x+8+2*p}:{x+9+2*p}], v[{x+8+2*p}:{x+9+2*p}], v[{128+2*p}:{129+2*p}], v[{136+2*p}:{137+2*p}]')
        for j in range(4): s(f'v_cvt_pk_bf16_f32 v{40+4*t+j}, v{x+8+2*j}, v{x+9+2*j}')
        s(f'ds_write_b128 v{(5, 16)[t]}, v[{40+4*t}:{43+4*t}]')
        subs.append(s)
    zipl(a, *subs)
    vm.issued += 2
    a('s_waitcnt lgkmcnt(0)')
    a('s_barrier')
    stamp('hbar')
    a('ds_read_b128 v[24:27], v18')
    a('ds_read_b128 v[28:31], v18 offset:1024')
    a('s_and_b32 s24, s32, 31')
    a('s_lshl_b32 s24, s24, 4')
    a('s_lshl_b32 s25, s3, 2')
    a('s_add_u32 s33, s24, s25')
    a('s_and_b32 s25, s30, 1')
    a('s_lshl_b32 s25, s25, 8')
    a('s_lshl_b32 s26, s3, 6')
    a('s_add_u32 s25, s25, s26')
    a('v_and_b32 v19, 15, v1')
    a('v_lshlrev_b32 v19, 2, v19')
    if M2:
        a('s_lshl_b32 s25, s3, 2')
        a('s_lshl_b32 s24, s32, 7')
        a('s_add_u32 s24, s24, s25')
        a(f's_add_u32 s24, s24, {hex(FL1)}')
        a('s_lshl_b32 s33, s30, 4')
        a('s_or_b32 s33, s33, s31')
        a('s_lshl_b32 s33, s33, 7')
        a('s_add_u32 s33, s33, s25')
        a(f's_add_u32 s33, s33, {hex(FL2)}')
        a('s_lshl_b32 s26, s30, 4')
        a('s_add_u32 s26, s26, s25')
        a('s_lshl_b32 s26, s26, 7')
        a(f's_add_u32 s97, s26, {hex(FL1)}')
        a('s_lshr_b32 s26, s32, 4')
        a('s_lshl_b32 s26, s26, 4')
        a('s_add_u32 s26, s26, s25')
        a('s_lshl_b32 s26, s26, 7')
        a(f's_add_u32 s25, s26, {hex(FL2)}')
        a('v_bfe_u32 v19, v1, 2, 2')
        a('v_and_b32 v22, 3, v1')
        a('v_lshlrev_b32 v22, 2, v22')
        a('v_lshl_add_u32 v19, v19, 7, v22')
    def flag(F):
        if not M2:
            if PM: a('s_mov_b64 exec, 1')
            t = lstore([f'buffer_store_dword v20, v21, s[52:55], s33 offen offset:{F}'])
            if PM: a('s_mov_b64 exec, -1')
            return t
        if F == F3: a(f's_add_u32 s33, s33, {FL3-FL2}')
        return masked([f'buffer_store_dword v20, v21, s[16:19], {"s24" if F == F1 else "s33"} offen sc1'], 1)
    def look(F):
        if not M2: return [f'buffer_load_dword v22, v{19 if F == F1 else 13}, s[52:55], s25 offen offset:{F} sc1']
        return [f'buffer_load_dword v22, v{19 if F == F1 else 13}, s[16:19], {"s97" if F == F1 else "s25"} offen sc1']
    a('s_waitcnt lgkmcnt(0)')
    lstore(['buffer_store_dwordx4 v[24:27], v17, s[16:19], s46 offen', 'buffer_store_dwordx4 v[28:31], v17, s[16:19], s47 offen'], P.get('h2s', M2))
    if P.get('h2c'):
        for j in range(8): a(f'v_mov_b32 v{108+j}, v{24+j}')
        a('v_mov_b32 v107, v17')
        a('s_mov_b32 s96, s46')
    stamp('h2st')
    a('v_bfe_u32 v4, v1, 4, 1')
    a('v_lshrrev_b32 v5, 5, v1')
    a('v_bfe_u32 v22, v1, 2, 2')
    a('v_and_b32 v23, 3, v1')
    a('v_lshlrev_b32 v23, 3, v23')
    a('v_lshl_add_u32 v3, v5, 3, v22')
    a('v_bfe_u32 v13, v1, 3, 1')
    a('v_lshlrev_b32 v16, 7, v3')
    a('v_add_u32 v16, v16, v23')
    a('v_lshl_add_u32 v16, v13, 6, v16')
    a('v_lshl_add_u32 v16, v4, 5, v16')
    a(f'v_mul_u32_u24 v17, {SEG[0][2]-SEG[0][1]}, v4')
    a(f'v_add_u32 v17, {SEG[0][1]}, v17')
    a(f'v_mul_u32_u24 v18, {P1U}, v4')
    for ct in range(4):
        a(f'v_xor_b32 v14, {32*ct}, v16')
        a(f'v_add_u32 v{246+ct}, v14, v17')
    a('v_mul_u32_u24 v3, 0x60, v3')
    a('v_add_u32 v3, v3, v23')
    a('v_add_u32 v18, v18, v3')
    a('v_lshl_add_u32 v3, v5, 2, v22')
    a('v_lshlrev_b32 v3, 7, v3')
    a('v_lshl_add_u32 v3, v13, 6, v3')
    a('v_lshl_add_u32 v3, v4, 5, v3')
    a('v_add_u32 v3, v3, v23')
    a('s_lshl_b32 s26, s3, 11')
    a('s_and_b32 s27, s3, 1')
    a('s_lshl_b32 s27, s27, 6')
    a('v_xor_b32 v3, s27, v3')
    a('v_add_u32 v240, s26, v3')
    a('v_xor_b32 v241, 64, v240')
    for i in range(1, 3):
        a(f'v_add_u32 v{240+2*i}, {65536*i}, v240')
        a(f'v_add_u32 v{241+2*i}, {65536*i}, v241')
    a(f's_mov_b32 s44, {fh(GC2)}'); a(f's_mov_b32 s45, {fh(GC2)}')
    a(f'v_mov_b32 v2, {fh(GC1)}'); a(f'v_mov_b32 v3, {fh(GC1)}')
    a('s_lshl_b32 s27, s30, 2')
    a('s_add_u32 s27, s27, s3')
    a('s_lshl_b32 s28, s27, 15')
    a(f's_add_u32 s28, s28, {hex(H2)}')
    a('v_add_u32 v14, s28, v15')
    a('s_lshl_b32 s28, s98, 12')
    a('s_waitcnt vmcnt(0)'); vm.done = vm.issued
    stamp('h2dr')
    flag(F1)
    while early: early.popleft()()
    NS0 = min(7, P.get('ns0', 0) + NSY)
    for k in range(NSY, NS0): p2dma(k)
    a('s_mul_i32 s29, s27, 112')
    AN = M2 or P.get('an', 1)
    AP = 1024 if AN else YP
    if AN:
        a('s_lshl_b32 s47, s31, 2')
        a('s_add_u32 s47, s47, s29')
        a('s_lshl_b32 s47, s47, 10')
        a(f's_add_u32 s47, s47, {hex(ACT)}')
    else:
        a('s_lshl_b32 s47, s3, 4')
        a('s_add_u32 s47, s47, s31')
        a(f's_mul_i32 s47, s47, {4*YP}')
        a('s_lshl_b32 s4, s30, 10')
        a(f's_add_u32 s4, s4, {hex(YT)}')
        a('s_add_u32 s47, s47, s4')
    a('s_mul_i32 s46, s31, 3')
    a('s_add_u32 s46, s46, s29')
    a('s_lshl_b32 s46, s46, 10')
    a(f's_add_u32 s46, s46, {hex(ACT + 64*1024)}')
    a('s_lshr_b32 s39, s32, 3')
    a('s_and_b32 s35, s39, 1')
    a(f's_and_b32 s34, s39, {P.get("wrot", 0)}')
    a('s_and_b32 s24, s32, 7')
    a('s_lshl_b32 s24, s24, 7')
    if RL:
        a(f's_add_u32 s8, s58, {hex(WD2)}')
        a('s_addc_u32 s9, s59, 0')
        a('s_mul_i32 s24, s24, 1792')
    a(f's_mul_i32 s37, s3, {12*WS_}')
    a('s_add_u32 s37, s37, s24')
    a(f's_add_u32 s30, s37, {76*WS_}')
    a(f's_mul_i32 s36, s34, {3*WS_}')
    a('s_add_u32 s37, s37, s36')
    a(f's_add_u32 s37, s37, {64*WS_}')
    a(f's_mul_i32 s38, s3, {16*WS_}')
    a('s_add_u32 s38, s38, s24')
    a(f's_add_u32 s31, s38, {16*WS_}')
    a(f's_mul_i32 s36, s34, {4*WS_}')
    a('s_add_u32 s38, s38, s36')
    if AN:
        a(f's_mul_i32 s4, s39, {224*1024}')
        a('s_lshl_b32 s6, s3, 14')
        a('s_add_u32 s6, s6, s4')
        a(f's_add_u32 s6, s6, {hex(ACT)}')
    else:
        a('s_lshl_b32 s6, s35, 3')
        a('s_add_u32 s6, s6, s3')
        a(f's_mul_i32 s6, s6, {16*YP}')
        a('s_add_u32 s6, s6, s4')
    a(f's_add_u32 s42, s6, {16*AP}')
    a(f's_mul_i32 s36, s34, {4*AP}')
    a('s_add_u32 s6, s6, s36')
    a(f's_mul_i32 s4, s39, {224*1024}')
    a(f's_mul_i32 s5, s3, {12*1024}')
    a('s_add_u32 s5, s5, s4')
    a(f's_add_u32 s5, s5, {hex(ACT + 64*1024)}')
    a(f's_add_u32 s41, s5, {12*1024}')
    a(f's_mul_i32 s36, s34, {3*1024}')
    a('s_add_u32 s5, s5, s36')
    a('s_lshl_b32 s39, s39, 16')
    a('s_and_b32 s24, s32, 7')
    a('s_lshl_b32 s24, s24, 7')
    a('s_add_u32 s39, s39, s24')
    a('v_bfe_u32 v4, v1, 1, 2')
    a('v_and_b32 v5, 1, v1')
    a('v_lshlrev_b32 v5, 2, v5')
    a(f'v_lshl_add_u32 v4, v4, {7 if M2 else 4}, v5')
    a('s_lshl_b32 s35, s35, 3')
    a('v_add_u32 v13, s35, v4')
    a('s_cmp_ge_u32 s3, 2')
    for r, (reg0, reg1, dist) in enumerate(((250, 16, 112*1024), (251, 17, 112*1024 if AN else 64*YP))):
        a(f's_cselect_b32 s36, {dist}, 0')
        a(f'v_add_u32 v{reg0}, s36, v15')
        a(f's_cselect_b32 s36, 0, {dist}')
        a(f'v_add_u32 v{reg1}, s36, v15')
    a('v_lshlrev_b32 v73, 7, v1')
    a('s_lshl_b32 s34, s2, 2')
    a('s_add_u32 s34, s34, s3')
    a(f's_mul_i32 s34, s34, {14*128}')
    poll('f1', look(F1), [22], mask=0xffff)
    stamp('f1ok'); raw(3, 's51')
    htok = {}
    def h2load(ks):
        htok[ks] = vm.issue(f'buffer_load_dwordx4 a[{4*ks}:{4*ks+3}], v14, s[16:19], s28 offen offset:{1024*(ks&3)} sc1')
        if (ks & 3) == 3:
            a('s_add_u32 s28, s28, 0x1000'); a('s_and_b32 s28, s28, 0x7fff')
    NH0 = P.get('nh0', 8)
    for ks in range(NH0): h2load(ks)
    slow(4)
    a('s_barrier')
    stamp('b0')
    wtok, atok = {}, {}
    def wd0(i):
        so = 's37' if i < 12 else 's38'
        a(f's_add_u32 m0, s26, {8192*WBL[i]}')
        if i not in (0, 12): a(f's_add_u32 {so}, {so}, {WS_}')
        vm.issue(f'buffer_load_dwordx4 v8, s[8:11], {so} offen lds')
    def wd1(i):
        wtok[i] = vm.issue(f'buffer_load_dwordx4 v9, s[8:11], {"s37" if i < 12 else "s38"} offen offset:1024 lds')
    def wreg(i): return ('v', 72 + 8*i) if i < 5 else ('a', 224 + 8*(i-5)) if i < 8 else ('v', AR + 8*(i % 3))
    def wread(i, mt, jj):
        kind, d = wreg(i); ad = 8192*WBL[i]
        return f'ds_read_b64_tr_b16 {kind}[{d+4*mt+2*jj}:{d+4*mt+2*jj+1}], v{240+2*(ad>>16)+mt} offset:{(ad & 0xffff)+1024*jj}'
    def abase(i): return 128 + 8*i if i < 12 else 8*(i-12)
    def act0(i):
        b = abase(i)
        if i < 12:
            if i and i % 4 == 0: a('s_add_u32 s5, s5, 0x1000')
            vm.issue(f'buffer_load_dwordx4 a[{b}:{b+3}], v250, s[16:19], s5 offen offset:{1024*(i & 3)} sc1')
        else:
            if i > 12: a(f's_add_u32 s6, s6, {AP}')
            vm.issue(f'buffer_load_dwordx4 a[{b}:{b+3}], v251, s[16:19], s6 offen sc1')
    def act1(i):
        b = abase(i)
        if i < 12: atok[i] = vm.issue(f'buffer_load_dwordx4 a[{b+4}:{b+7}], v16, s[16:19], s5 offen offset:{1024*(i & 3)} sc1')
        else: atok[i] = vm.issue(f'buffer_load_dwordx4 a[{b+4}:{b+7}], v17, s[16:19], s6 offen sc1')
    valu = deque()
    AR, NA = 24, 6
    ACC1, ACC2 = 192, 128
    pipe = LdsPipe(a)
    steps = [(0, k, ct) for k in range(32) for ct in range(2)] + [(0, k, 2) for k in range(32)] + [(1, k, ct) for k in range(32) for ct in range(4)]
    tok = {}; nxt = [0]
    def rd(n):
        ps, k, ct = steps[n]; d = AR + 4*(n % NA)
        for jj in range(2):
            b, off = (18, (16*k + 4*jj)*96 + 32*ct) if ps == 0 else (246+ct, 2048*(k % 15) + 512*jj)
            tok[n] = pipe.issue(f'ds_read_b64_tr_b16 v[{d+2*jj}:{d+2*jj+1}], v{b} offset:{off}')
    for n in range(NA-1): rd(n)
    nxt[0] = NA-1
    J = dict(h=NH0, p=NS0, w=0, half=False, a=0, ahalf=False, pmax=15, wmax=0, f2=False, lastp=-99)
    stg = {}
    def wfree(i): return i < J['wmax'] and (not 12 <= i < 20 or stg.get(i - 12, 1 << 30) <= pipe.done)
    def job(n):
        if J['half']: J['half'] = False; wd1(J['w']); J['w'] += 1; return 1
        if J['h'] < 32: h2load(J['h']); J['h'] += 1; return 1
        if J['p'] < J['pmax'] and n - J['lastp'] >= PE: p2dma(J['p']); J['p'] += 1; J['lastp'] = n; return 3
        if J['ahalf']: J['ahalf'] = False; act1(J['a']); J['a'] += 1; return 1
        if J['f2'] and J['a'] < 12 and (J['a'] <= J['w'] - P.get('wa', 8) or not wfree(J['w']) or J['w'] >= 28):
            act0(J['a']); J['ahalf'] = True; return 1
        if J['w'] < 28 and wfree(J['w']) and n >= P.get('ws', 112): wd0(J['w']); J['half'] = True; return 3
        return 0
    VB = P.get('vb', 40); PE = P.get('pe', 3); TE = P.get('te', 15); LW = P.get('lw', 2)
    stok = {}; sg = 0; credit = 0; nb = 0; ta = 0; fload = look(F2); tp = None
    F2P, F2C = P.get('f2p', 999), P.get('f2c', 204)
    def gelu_step(x, n):
        if isinstance(x, tuple):
            stok[x[1]] = vm.issue(f'buffer_store_dwordx4 v[{x[2]}:{x[2]+3}], v15, s[16:19], s46 offen offset:{1024*x[1]} sc1')
            stok['at'] = n
        else: a(x)
    for n, (ps, k, ct) in enumerate(steps):
        if n < 64 and ct == 0:
            while k not in htok: job(n)
            vm.need(htok[k])
        if tok[n] > pipe.done: pipe.need(tok[min(n + LW - 1, len(steps) - 1)])
        d = (ACC1, ACC2)[ps] + 16*ct; c = '0' if k == 0 else f'v[{d}:{d+15}]'
        sa = AR + 4*(n % NA)
        a(f'v_mfma_f32_32x32x16_bf16 v[{d}:{d+15}], v[{sa}:{sa+3}], a[{4*k}:{4*k+3}], {c}')
        if nxt[0] < len(steps): rd(nxt[0]); nxt[0] += 1
        if P.get('hard'):
            credit = min(credit, 0) + 10*(P['hard'] - 2 - (n + 1 < len(steps) and tok[n+1] > pipe.done))
        else: credit = min(credit + VB, P.get('cap', 40))
        if n in BARS:
            land, J['pmax'], J['wmax'] = BARS[n][0], J['pmax'], J['wmax']
            if land is not None:
                while land not in ptok:
                    if J['half']: job(n)
                    p2dma(J['p']); J['p'] += 1
                vm.need(ptok[land])
            a('s_barrier')
            J['pmax'], J['wmax'] = BARS[n][1:]
            nb += 1; stamp(f'b{nb}'); credit -= 10
        if n == P.get('wt', 999 if RL else 60):
            a('s_mov_b64 exec, 0x3fff')
            vm.issue('buffer_load_dword v72, v73, s[8:11], s34 offen')
            a('s_mov_b64 exec, -1')
        if n in (65, 97):
            if n == 65: stamp('p1a')
            else: stamp('p1end')
            for t in ((0, 1) if n == 65 else (2,)):
                o = 64 + 4*(t & 1)
                valu.extend(gelu_ops(ACC1+16*t, 48 + 8*(t & 1), o))
                valu.append(('store', t, o))
        if n == P.get('h2c', -1):
            vm.issue('buffer_store_dwordx4 v[108:111], v107, s[16:19], s96 offen sc1')
            a('s_add_u32 s96, s96, 0x1000')
            vm.issue('buffer_store_dwordx4 v[112:115], v107, s[16:19], s96 offen sc1')
        ta += 10
        if n == F2P and 'f2' in stok: tp = masked(fload, 0xff); ta = 0
        elif n == F2C and tp is not None:
            poll('f2', fload, [22], pre=tp, mask=0xff); J['f2'] = True
            stamp('f2ok'); raw(4, 's51')
        elif ta >= TE:
            cst = job(n)
            if cst: ta -= TE; credit -= 10*cst
            else: ta = TE
        if n >= P.get('stg', 160) and sg < 32 and pipe.outstanding() <= 13 and credit >= 10 and (not valu or n % 2):
            i, r = divmod(sg, 4)
            if i in wtok and (wtok[i] <= vm.done or vm.issued - wtok[i] >= P.get('sl', 8)):
                vm.need(wtok[i])
                t = pipe.issue(wread(i, r >> 1, r & 1)); sg += 1; credit -= 10
                if r == 3: stg[i] = t
        while valu and credit >= 10*(cost(valu[0]) if isinstance(valu[0], str) else 1):
            x = valu.popleft(); gelu_step(x, n)
            if isinstance(x, str): credit -= 10*cost(x)
        if 2 in stok and 'f2' not in stok and n >= stok['at'] + P.get('fdel', 24):
            vm.need(stok[2])
            stok['f2'] = flag(F2); print('F2 at', n, end='; ')
    while valu: gelu_step(valu.popleft(), 224)
    if 'f2' not in stok:
        vm.need(stok[2])
        stok['f2'] = flag(F2)
    assert J['p'] == 32 and J['h'] == 32
    print('w_down steps', J['w'], 'staged', sg, 'act steps', J['a'])
    while sg < 32:
        i, r = divmod(sg, 4)
        while i not in wtok: job(999)
        vm.need(wtok[i])
        stg[i] = pipe.issue(wread(i, r >> 1, r & 1)); sg += 1
    pipe.need(pipe.issued)
    if tp is None and P.get('fp', 2) < 4: tp = masked(fload, 0xff)
    a('s_mov_b32 s34, 1.0'); a('s_mov_b32 s35, 1.0')
    def geglu2(t):
        s = Asm(); geglu(s, ACC2+16*t, 48, 64 + 4*(t & 1))
        for j, l in enumerate(s.lines):
            a(l.replace('s[46:47]', 's[34:35]'))
            if j % P.get('ge', 8) == 3 and t < P.get('gt', 4): job(999)
        if t: a(f's_add_u32 s47, s47, {AP}')
        return lstore([f'buffer_store_dwordx4 v[{64+4*(t&1)}:{67+4*(t&1)}], v15, s[16:19], s47 offen'], P.get('a2s', 1))
    for t in range(4):
        if t == P.get('fp', 2) and not J['f2']:
            stamp('g1')
            poll('f2', fload, [22], pre=tp, mask=0xff); J['f2'] = True
            stamp('f2ok'); raw(4, 's51')
        if t == 3 and tp is None: tp = masked(fload, 0xff)
        ts3 = geglu2(t)
    stamp('g3')
    a('v_and_b32 v4, 31, v1')
    a('v_lshrrev_b32 v5, 5, v1')
    a('v_lshlrev_b32 v10, 10, v4')
    a('v_lshl_add_u32 v10, v5, 4, v10')
    a('s_lshr_b32 s46, s3, 1')
    a('s_lshl_b32 s46, s46, 15')
    a('s_and_b32 s47, s3, 1')
    a('s_lshl_b32 s47, s47, 6')
    a('s_add_u32 s39, s39, s46')
    a('s_add_u32 s39, s39, s47')
    a(f's_add_u32 s46, s39, {0 if XO else hex(X1)}')
    F3S = P.get('f3s', 4)
    if F3S < 0:
        vm.need(ts3)
        flag(F3)
    if not J['f2']:
        poll('f2', fload, [22], pre=tp, mask=0xff); J['f2'] = True
        stamp('f2ok'); raw(4, 's51')
        while J['a'] < P.get('a1b', 3): job(999)
    if M2: a(f's_add_u32 s25, s25, {FL3-FL2}')
    stamp('estart')
    pipe = LdsPipe(a); tok = {}
    def rd2(i):
        while i not in wtok: job(999)
        vm.need(wtok[i])
        for mt in range(2):
            for jj in range(2): tok[(i, mt)] = pipe.issue(wread(i, mt, jj))
    f3load = look(F3)
    for i in range(8): stg[i] = 0
    TL = P.get('tl', 2)
    F3C = P.get('f3c', 8); JE = P.get('je', 2); tp = None; g = 0; aq = deque()
    for i in range(28):
        stamp(f'e{i}')
        if F3S >= 0 and 's' not in stok and (i == F3S or atok.get(i, 1 << 30) > ts3):
            vm.need(ts3)
            stok['s'] = flag(F3); print('F3 at step', i)
        if i == F3C:
            while J['a'] < 12 or J['half']: job(999)
            if tp is None: tp = masked(f3load, 0xff)
            poll('f3', f3load, [22], pre=tp, mask=0xff)
            stamp('f3ok'); raw(5, 's51')
            for ii in range(12, 28): aq.extend([lambda ii=ii: act0(ii), lambda ii=ii: act1(ii)])
            for _ in range(P.get('a2b', 4)): aq.popleft()()
        if i == 22:
            vm.issue(f'buffer_load_dwordx4 v[72:75], v10, {XS}, s46 offen sc1')
            tx = vm.issue(f'buffer_load_dwordx4 v[76:79], v10, {XS}, s46 offen offset:32 sc1')
        if i >= 28 - TL: continue
        kind, d0 = wreg(i); b = abase(i)
        while i not in atok: (aq.popleft()() if i >= 12 else job(999))
        vm.need(atok[i])
        for mt in range(2):
            if i >= 8: pipe.need(tok[(i, mt)])
            for nt in range(2):
                d = ACC2 + 32*mt + 16*nt; c = '0' if i == 0 else f'v[{d}:{d+15}]'
                a(f'v_mfma_f32_32x32x16_bf16 v[{d}:{d+15}], {kind}[{d0+4*mt}:{d0+4*mt+3}], a[{b+4*nt}:{b+4*nt+3}], {c}')
                g += 1
                if mt == 0 and nt == 0 and 8 <= i+2 < 28: rd2(i+2)
                if g % JE == 0:
                    if aq and not J['half'] and (J['w'] >= 28 or J['w'] > i + P.get('wb', 28)): aq.popleft()()
                    elif tp is None and not J['half'] and J['a'] == 12 and (J['w'] >= 28 or i == F3C - 1): tp = masked(f3load, 0xff)
                    elif not job(999) and aq: aq.popleft()()
    PBL = [None, (WBL[8], WBL[9]), (WBL[10], WBL[11]), (WBL[12], WBL[13])]
    a('v_add_u32 v4, s26, v15')
    a('v_add_u32 v5, 0x10000, v4')
    def mm(i, t):
        kind, d0 = wreg(i); b = abase(i); mt, nt = t & 1, t >> 1; d = ACC2 + 32*mt + 16*nt
        while i not in atok: aq.popleft()()
        vm.need(atok[i]); pipe.need(tok[(i, mt)])
        a(f'v_mfma_f32_32x32x16_bf16 v[{d}:{d+15}], {kind}[{d0+4*mt}:{d0+4*mt+3}], a[{b+4*nt}:{b+4*nt+3}], v[{d}:{d+15}]')
    def park(t):
        d = ACC2 + 32*(t & 1) + 16*(t >> 1)
        return [f'ds_write_b128 v{(4, 5)[ad >> 16]}, v[{d+4*g}:{d+4*g+3}] offset:{ad & 0xffff}' for g in range(4) for ad in [8192*PBL[t][g >> 1] + 1024*(g & 1)]]
    wr = deque()
    for t in (1, 3, 2, 0):
        for i in range(28 - TL, 28):
            mm(i, t)
            if t != 3:
                for _ in range(4 // TL if TL else 0):
                    if wr: a(wr.popleft())
        if t: wr.extend(park(t))
    stamp('eend')
    while wr: a(wr.popleft())
    for t in range(1, 4):
        a(f's_xor_b32 s6, s26, {2048*t}')
        a(f's_add_u32 s7, s6, {8192*PBL[t][1]}')
        a(f's_add_u32 s6, s6, {8192*PBL[t][0]}')
        a(f'v_add_u32 v{88+2*t}, s6, v15')
        a(f'v_add_u32 v{89+2*t}, s7, v15')
    vm.need(tx)
    unpack8(a, 96, 124, 40); unpack8(a, 104, 116, 40); unpack8(a, 48, 72, 40); unpack8(a, 56, 76, 40)
    a('s_waitcnt lgkmcnt(0)')
    a('s_barrier')
    stamp('ebar')
    for i in range(1, 4):
        for g in range(4):
            a(f'ds_read_b128 v[{128+16*i+4*g}:{131+16*i+4*g}], v{88+2*i+(g >> 1)} offset:{1024*(g & 1)}')
    for i in range(1, 4):
        a(f's_waitcnt lgkmcnt({12-4*i})')
        for p in range(8): a(f'v_pk_add_f32 v[{128+2*p}:{129+2*p}], v[{128+2*p}:{129+2*p}], v[{128+16*i+2*p}:{129+16*i+2*p}]')
    for g in range(2):
        b = 128 + 8*g
        for r in range(4): a(f'v_permlane32_swap_b32 v{b+r}, v{b+4+r}')
        for p in range(4): a(f'v_pk_fma_f32 v[{b+2*p}:{b+2*p+1}], v[{b+2*p}:{b+2*p+1}], v[{96+8*g+2*p}:{97+8*g+2*p}], v[{48+8*g+2*p}:{49+8*g+2*p}]')
        for p in range(4): a(f'v_cvt_pk_bf16_f32 v{40+4*g+p}, v{b+2*p}, v{b+2*p+1}')
        a(f'buffer_store_dwordx4 v[{40+4*g}:{43+4*g}], v10, s[12:15], s39 offen offset:{32*g}' + ('', ' sc1', ' nt')[P.get('ost', 0)])
    a('s_or_b32 s4, s2, s3')
    a('s_cmp_lg_u32 s4, 0')
    a('s_cbranch_scc1 L_noep')
    a(f's_mov_b32 s4, {hex(EPOCH)}')
    masked(['buffer_store_dword v20, v21, s[16:19], s4 offen sc1'], 1)
    a.label('L_noep')
    if P.get('probe') is not None:
        a('s_waitcnt vmcnt(0)')
        stamp('end')
        a('s_waitcnt lgkmcnt(0)')
        k = P['probe']
        if k == 300:
            a('v_mov_b32 v22, s60')
            a(f's_mov_b32 s36, {hex(0x140B000)}')
            a('s_cmp_lg_u32 s2, 0')
            a('s_cbranch_scc1 L_end')
            a('buffer_store_dword v22, v21, s[16:19], s36 offen')
            a('s_branch L_end')
        elif k == 301:
            a(f's_add_u32 s4, s58, {hex(0x140B000)}')
            a('s_addc_u32 s5, s59, 0')
            a('s_load_dword s92, s[4:5], 0')
            a('s_waitcnt lgkmcnt(0)')
            a('s_add_u32 s92, s92, 6000')
        elif k >= 200:
            a(f's_add_u32 s4, s58, {hex(EPOCH + 0x100)}')
            a('s_addc_u32 s5, s59, 0')
            a('s_load_dwordx4 s[92:95], s[4:5], 0')
            a('s_waitcnt lgkmcnt(0)')
            a('s_cmp_eq_u64 s[92:93], s[94:95]')
            a('s_cselect_b32 s92, 10000, 0' if k == 200 else 's_cselect_b32 s92, 0, 10000')
            a('s_add_u32 s92, s92, s70')
        elif k >= 100:
            a(f's_mov_b32 s36, {hex(0x140A000)}')
            a('buffer_load_dwordx4 v[24:27], v15, s[16:19], s36 offen sc1')
            a('s_waitcnt vmcnt(0)')
            for r, op in ((28, 'min'), (29, 'max')):
                a(f'v_{op}_u32 v{r}, v24, v25')
                a(f'v_{op}3_u32 v{r}, v{r}, v26, v27')
                for ctl in ('row_ror:1', 'row_ror:2', 'row_ror:4', 'row_ror:8'):
                    a(f'v_{op}_u32_dpp v{r}, v{r}, v{r} {ctl} row_mask:0xf bank_mask:0xf')
                for i in range(4): a(f'v_readlane_b32 s{4+i}, v{r}, {16*i}')
                a(f's_{op}_u32 s4, s4, s5'); a(f's_{op}_u32 s6, s6, s7'); a(f's_{op}_u32 s{r+62}, s4, s6')
            if k == 100: a('s_add_u32 s92, s90, 6000')
            elif k == 101:
                a('s_sub_u32 s92, s91, s90'); a('s_lshl_b32 s92, s92, 2'); a('s_add_u32 s92, s92, s90'); a('s_add_u32 s92, s92, 4000')
            else:
                a(f's_sub_u32 s92, s{60+2*(k-110)}, s90'); a('s_lshl_b32 s92, s92, 2'); a('s_add_u32 s92, s92, s90'); a('s_add_u32 s92, s92, 4000')
        elif k == 0:
            a('s_add_u32 s92, s60, 6000')
        else:
            a(f's_sub_u32 s92, s{60+2*k}, s60')
            a('s_lshl_b32 s92, s92, 2')
            a('s_add_u32 s92, s92, s60')
            a('s_add_u32 s92, s92, 4000')
        a.label('L_probe')
        a('s_memrealtime s[94:95]')
        a('s_waitcnt lgkmcnt(0)')
        a('s_sub_u32 s94, s94, s92')
        a('s_cmp_lt_i32 s94, 0')
        a('s_cbranch_scc1 L_probe')
    elif P.get('stamps'):
        a('s_waitcnt vmcnt(0)')
        stamp('end')
        a('s_cmp_lg_u32 s3, 0')
        a('s_cbranch_scc1 L_end')
        a('s_lshl_b32 s94, s2, 7')
        a(f's_add_u32 s94, s94, {hex(TS)}')
        a('s_add_u32 s92, s58, s94')
        a('s_addc_u32 s93, s59, 0')
        a('v_lshlrev_b32 v250, 2, v1')
        a('s_lshl_b32 s94, s2, 8')
        a(f's_add_u32 s94, s94, {hex(TS + 0x80000)}')
        a('s_add_u32 s94, s58, s94')
        a('s_addc_u32 s95, s59, 0')
        a('global_store_dword v250, v254, s[94:95]')
        a('s_mov_b64 exec, 1')
        if P.get('dbg'):
            a('s_load_dwordx2 s[94:95], s[0:1], 104')
        a('s_waitcnt lgkmcnt(0)')
        if P.get('dbg'):
            a('s_not_b32 s60, s60')
            for m in sorted(marks):
                a(f'v_mov_b32 v250, s{60+2*m}')
                a(f'global_atomic_umax v21, v250, s[94:95] offset:{4*m}')
                a('s_nop 1')
            a('s_not_b32 s60, s60')
        for m in sorted(marks):
            a(f'v_mov_b32 v250, s{60+2*m}')
            a(f'v_mov_b32 v251, s{61+2*m}')
            a(f'global_store_dwordx2 v21, v[250:251], s[92:93] offset:{8*m}')
            a('s_nop 1')
    a.label('L_end')
    a.label('L_last')
    a('s_endpgm')
    return dict(grid=256, block=256, lds=163840, vgpr=512, accum=256)

def tinyk(a, P, head):
    a('s_cmp_ge_u32 s2, 1')
    a('s_cbranch_scc1 L_tiny_end')
    a('s_memrealtime s[8:9]')
    a(f's_load_dwordx2 s[4:5], s[0:1], {A_WS}')
    a('s_waitcnt lgkmcnt(0)')
    a(f's_add_u32 s4, s4, {hex(0x140B000)}')
    a('s_addc_u32 s5, s5, 0')
    if head:
        a('v_mov_b32 v1, s8')
        a('v_mov_b32 v2, 0')
        a('global_store_dword v2, v1, s[4:5]')
    else:
        a('s_load_dword s6, s[4:5], 0')
        a('s_waitcnt lgkmcnt(0)')
        a('s_add_u32 s6, s6, 6000')
        a('s_mov_b32 s10, 100000')
        a.label('L_tiny')
        a('s_memrealtime s[8:9]')
        a('s_waitcnt lgkmcnt(0)')
        a('s_sub_u32 s10, s10, 1')
        a('s_cbranch_scc1 L_tiny_end')
        a('s_sub_u32 s8, s8, s6')
        a('s_cmp_lt_i32 s8, 0')
        a('s_cbranch_scc1 L_tiny')
    a.label('L_tiny_end')
    a('s_endpgm')
    return dict(grid=1, block=64, lds=0, vgpr=8, accum=8)
```

```python
from collections import deque
from asmlib import *
from k123 import fh, lo, hi, unpack8, ln_stats, LdsPipe, A_OUT, A_WS
from k45 import VmPipe, GC1, GC2, geglu
from cde import zipl, gelu_ops, cost

UT, YT, X1, H2, ACT = 0, 0x400000, 0x900000, 0, 0xD00000
MODT, EPOCH, GRP, MP, TS = 0x1400000, 0x1408000, 0x1410000, 0x1480000, 0x1500000
YP = 16384 + 128
XID, UH, F1, F2, F3 = 0, 128, 1024, 1536, 2048
P1U = 49280
SEG = [(0, 98432, 129152), (15, 0, 49280), (27, 24576, 73856)]
CB, CHS, KB, U0, U1 = 98432, 12992, 512, 4608, 8768
PB = CB + 2*CHS
PRM = PB + 32768
MPART = PRM + 6144
XG = 129152 + 112*128
YS = 1040
XH = XG + 8*YS
PS = 272
SPIN = 1 << 15
WBL = list(range(12)) + list(range(8)) + [13, 17, 14, 18, 12, 15, 16, 19]
BARS = {89: (5, 15, 0), 111: (9, 19, 20), 127: (13, 23, 20), 143: (17, 27, 20), 159: (21, 31, 20), 175: (25, 32, 20),
        191: (29, 32, 22), 207: (31, 32, 24), 223: (None, 32, 28)}
assert MPART + 512 <= 163840 and XH + 8192 <= 163840
def seg_of(k): return SEG[0] if k < 15 else SEG[1] if k < 27 else SEG[2]

def base(a, d, p, n):
    a(f's_mov_b32 s{d}, s{p}'); a(f's_mov_b32 s{d+1}, s{p+1}'); a(f's_mov_b32 s{d+2}, {hex(n)}')

FL1, FL2, FL3 = 0x1420000, 0x1428000, 0x1430000
def ln1p(a, X, D, T, s0):
    a(f'v_pk_add_f32 v[{T}:{T+1}], v[{X}:{X+1}], v[{X+2}:{X+3}]')
    a(f'v_pk_mul_f32 v[{T+2}:{T+3}], v[{X}:{X+1}], v[{X}:{X+1}]')
    a(f'v_pk_add_f32 v[{D}:{D+1}], v[{X+4}:{X+5}], v[{X+6}:{X+7}]')
    for p in range(1, 4):
        a(f'v_pk_fma_f32 v[{T+2}:{T+3}], v[{X+2*p}:{X+2*p+1}], v[{X+2*p}:{X+2*p+1}], v[{T+2}:{T+3}]')
    a(f'v_pk_add_f32 v[{T}:{T+1}], v[{T}:{T+1}], v[{D}:{D+1}]')
    a(f'v_add_f32 v{T+2}, v{T+2}, v{T+3}')
    a(f'v_add_f32 v{T}, v{T}, v{T+1}')
    for ctl in ('row_shr:1', 'row_shr:2', 'row_shr:4', 'row_shr:8'):
        for r in (T+2, T): a(f'v_add_f32_dpp v{r}, v{r}, v{r} {ctl} row_mask:0xf bank_mask:0xf bound_ctrl:1')
    for ctl in ('row_bcast:15 row_mask:0xa', 'row_bcast:31 row_mask:0xc'):
        for r in (T+2, T): a(f'v_add_f32_dpp v{r}, v{r}, v{r} {ctl} bank_mask:0xf')
    a(f'v_readlane_b32 s{s0+1}, v{T+2}, 63')
    a(f'v_readlane_b32 s{s0}, v{T}, 63')
    a(f'v_mov_b32 v{T+1}, {fh(1.0/512)}')
    a(f'v_mov_b32 v{T+3}, {fh(1e-5)}')
    a(f'v_mul_f32 v{T}, s{s0}, v{T+1}')
    a(f'v_fmac_f32 v{T+3}, s{s0+1}, v{T+1}')
    a(f'v_fma_f32 v{T+2}, -v{T}, v{T}, v{T+3}')
    a(f'v_max_f32 v{T+2}, {fh(1e-5)}, v{T+2}')
    a(f'v_rsq_f32 v{T+2}, v{T+2}')
    for p in range(4):
        a(f'v_pk_add_f32 v[{D+2*p}:{D+2*p+1}], v[{X+2*p}:{X+2*p+1}], v[{T}:{T+1}] op_sel:[0,0] op_sel_hi:[1,0] neg_lo:[0,1] neg_hi:[0,1]')
    for p in range(4):
        a(f'v_pk_mul_f32 v[{D+2*p}:{D+2*p+1}], v[{D+2*p}:{D+2*p+1}], v[{T+2}:{T+3}] op_sel:[0,0] op_sel_hi:[1,0]')
def ln2p(s, X, D, T, s0):
    ln_stats(s, X, D, T, s0)
    for p in range(4):
        s(f'v_pk_mul_f32 v[{D+2*p}:{D+2*p+1}], v[{D+2*p}:{D+2*p+1}], v[{T}:{T+1}] op_sel:[0,0] op_sel_hi:[1,0]')

def mega(a, P):
    M2 = P.get('m2', 0)
    RL = P.get('rl', 1)
    RP = P.get('rp', 0)
    W2, PR = 0xB00000, (128 if RP else 3584)
    WD2, WS_ = 0x200000, (2048 if RL else 0x4000)
    H2 = 0xB00000 if M2 else 0
    marks = set()
    SETS = {1: 'start kv0 utst utok bbar end bend ytst ytok h2dr b0 p1end b9 estart f3ok eend',
            2: 'start kv0 kvN abar utst end ut1st uhok utok bbar bend pbar ytst ytack ytok mdok',
            3: 'start ytst ln1 ytack ytok end ybar hbar h2st h2dr f1ok b0 b1 b2 b3 p1end',
            6: 'start b0 p1a p1end b2 end b3 b4 b5 b6 b7 b8 b9 f2ok g3 estart',
            7: 'start estart e2 e4 e6 end f3ok e8 e10 e12 e14 e16 e20 e24 eend ebar',
            9: 'start b0 p1a p1end b5 end b9 estart eend cb0 cp1a cp1end cb5 cb9 cestart ceend',
            10: 'start bbar bend ybar hbar end g3 ebar x8 cbbar cbend cybar chbar x13 cg3 cebar',
            8: 'start x1 x2 x3 x4 end',
            5: 'start karg x2 x3 x4 end x6 x7 x8 x9 x10 x11 x12 kv0 issued pre',
            4: 'start p1end b5 b6 b7 end b8 g1 f2ok g3 estart e12 f3ok e20 eend ebar'}
    names = SETS[P.get('stamps', 1)].split()
    def stamp(name):
        if P.get('stamps') and name in names:
            slot = names.index(name)
            a(f's_memrealtime s[{60+2*slot}:{61+2*slot}]'); marks.add(slot)
        if P.get('stamps') and 'c' + name in names:
            slot = names.index('c' + name)
            a(f's_memtime s[{60+2*slot}:{61+2*slot}]'); marks.add(slot)
    def raw(i, sreg):
        if P.get('stamps'): a(f'v_writelane_b32 v254, {sreg}, {i}')
    vm = VmPipe(a)
    NT = ' nt' if P.get('nt', 1) else ''
    nst = [0]
    def lstore(lines, through=False):
        if through:
            for l in lines: t = vm.issue(l + ' sc1')
            return t
        return lstore2(lines)
    def lstore2(lines):
        n = nst[0]; nst[0] += 1
        a('s_cmp_eq_u32 s101, 0')
        a(f's_cbranch_scc1 L_ls{n}a')
        for l in lines: a(l + ' sc1')
        a(f's_branch L_ls{n}b')
        a.label(f'L_ls{n}a')
        for l in lines: t = vm.issue(l)
        a.label(f'L_ls{n}b')
        return t
    SL = P.get('sleep', 1); PM = 1
    def masked(lines, mask):
        if mask and PM: a(f's_mov_b64 exec, {hex(mask)}')
        for l in lines: t = vm.issue(l)
        if mask and PM: a('s_mov_b64 exec, -1')
        return t
    def poll(name, loads, tags, pre=None, mask=None):
        a(f's_mov_b32 s51, {SPIN}')
        if pre is not None:
            vm.need(pre)
            stamp(name + '1st')
        if mask and PM: a(f's_mov_b64 exec, {hex(mask)}')
        a(f's_branch L_{name}_chk' if pre is not None else f's_branch L_{name}_go')
        a.label(f'L_{name}')
        sl = P.get('ysl', SL) if name in ('yt', 'md') else SL
        if sl: a(f's_sleep {sl}')
        a.label(f'L_{name}_go')
        for l in loads: a(l)
        a('s_waitcnt vmcnt(0)')
        a.label(f'L_{name}_chk')
        a(f'v_cmp_ne_u32 vcc, s50, v{tags[0]}')
        for i, t in enumerate(tags[1:]): a(f'v_cmp_ne_u32 s[{92+2*i}:{93+2*i}], s50, v{t}')
        a('s_sub_u32 s51, s51, 1')
        a(f's_cbranch_scc1 L_{name}_ok')
        for i in range(len(tags)-1): a(f's_or_b64 vcc, vcc, s[{92+2*i}:{93+2*i}]')
        a(f's_cbranch_vccnz L_{name}')
        a.label(f'L_{name}_ok')
        if mask and PM: a('s_mov_b64 exec, -1')
        if pre is None: vm.done = vm.issued

    a('s_cmp_ge_u32 s2, 256')
    a('s_cbranch_scc1 L_end')
    stamp('start')
    if P.get('stamps'): a('v_mov_b32 v254, 0')
    a('s_load_dwordx16 s[64:79], s[0:1], 0')
    if P.get('cpf', 1):
        a('s_getpc_b64 s[4:5]')
        a.label('L_pc')
        a('v_lshlrev_b32 v3, 7, v0')
        a('v_mov_b32 v5, s5')
        a('v_add_co_u32 v4, vcc, s4, v3')
        a(f'v_cmp_gt_u32 s[6:7], {P.get("cpn", 16)}, v0')
        a('v_and_b32 v1, 63, v0')
        a('v_addc_co_u32 v5, vcc, 0, v5, vcc')
        a('s_and_b64 exec, exec, s[6:7]')
        a('s_cbranch_execz L_nopf')
        a('global_load_dword v169, v[4:5], off')
        a.label('L_nopf')
        a('s_mov_b64 exec, -1')
    else: a('v_and_b32 v1, 63, v0')
    a(f's_load_dwordx2 s[58:59], s[0:1], {A_WS}')
    a('s_load_dwordx8 s[80:87], s[0:1], 64')
    a(f's_load_dwordx2 s[56:57], s[0:1], {A_OUT}')
    a('v_lshrrev_b32 v2, 6, v0')
    a('v_readfirstlane_b32 s3, v2')
    a('s_mov_b32 s40, 0xffff0000')
    a('s_and_b32 s28, s2, 7')
    a('s_lshr_b32 s29, s2, 3')
    a('s_lshl_b32 s32, s28, 5')
    a('s_or_b32 s32, s32, s29')
    a('v_and_b32 v3, 31, v0')
    a('v_lshrrev_b32 v2, 5, v0')
    a('s_lshl_b32 s33, s29, 6')
    a('v_lshl_add_u32 v4, v2, 3, s33')
    a('s_lshl_b32 s33, s28, 7')
    a('v_lshl_add_u32 v5, v3, 2, s33')
    a('v_lshl_add_u32 v5, v4, 10, v5')
    a('v_subrev_u32 v4, 0xc00, v5')
    a('s_lshl_b32 s33, s28, 9')
    a('v_lshl_add_u32 v13, v3, 4, s33')
    a('s_movk_i32 s35, 0x1000')
    a('s_mov_b32 s15, 0x20000'); a('s_mov_b32 s27, 0x20000'); a('s_mov_b32 s19, 0x20000')
    a('s_mov_b32 s23, 0x20000'); a('s_mov_b32 s11, 0x20000'); a('s_mov_b32 s55, 0x20000')
    a('v_lshlrev_b32 v15, 4, v1')
    a('v_mov_b32 v21, 0')
    a('v_lshlrev_b32 v14, 4, v0')
    a('s_waitcnt lgkmcnt(0)')
    stamp('karg')
    if P.get('wso'):
        a(f's_add_u32 s58, s58, {hex(P["wso"] << 20)}')
        a('s_addc_u32 s59, s59, 0')
    base(a, 12, 70, 4096)
    base(a, 24, 68, 0x200000)
    tsh = vm.issue('buffer_load_dwordx4 v[48:51], v13, s[12:15], 0 offen' + NT)
    base(a, 12, 66, 0x200000)
    for i in range(3): vm.issue(f'buffer_load_dword v{24+i}, v4, s[12:15], 0 offen offset:{1024*i}' + NT)
    tk = {}
    for i in range(8):
        so = 's35' if i >= 4 else '0'
        vm.issue(f'buffer_load_dword v{27+i}, v5, s[12:15], {so} offen offset:{1024*(i&3)}' + NT)
        tk[i] = vm.issue(f'buffer_load_dword v{36+i}, v5, s[24:27], {so} offen offset:{1024*(i&3)}' + NT)
    stamp('issued')
    a(f's_add_u32 s4, s58, {hex(EPOCH)}')
    a('s_addc_u32 s5, s59, 0')
    a('s_load_dword s50, s[4:5], 0')
    if P.get('cpf', 1):
        a('s_getpc_b64 s[6:7]')
        a.label('L_pc2')
        a('s_lshl_b32 s36, s29, 2')
        a('s_add_u32 s36, s36, s3')
        a('v_and_b32 v4, 1, v0')
        a('v_lshl_add_u32 v4, s36, 1, v4')
        a('v_min_u32 v4, (L_last-L_pc2)/128, v4')
        a('v_lshlrev_b32 v4, 7, v4')
        a('v_mov_b32 v5, s7')
        a('v_add_co_u32 v4, vcc, s6, v4')
        a('v_addc_co_u32 v5, vcc, 0, v5, vcc')
        a('s_mov_b64 exec, 3')
        vm.issue('global_load_dword v168, v[4:5], off')
        a('s_mov_b64 exec, -1')
    if P.get('kvbar', 1): a('s_barrier')
    a('s_lshl_b32 s33, s32, 2')
    a('s_add_u32 s6, s74, s33')
    a('s_addc_u32 s7, s75, 0')
    a('s_load_dword s34, s[6:7], 0')
    a('s_lshl_b32 s33, s32, 13')
    SK = {}
    def skload():
        base(a, 12, 72, 0x200000)
        a('s_lshl_b32 s36, s32, 13')
        vm.issue('buffer_load_dwordx4 v[146:149], v14, s[12:15], s36 offen' + NT)
        a('s_add_u32 s36, s36, 0x1000')
        SK['t'] = vm.issue('buffer_load_dwordx4 v[150:153], v14, s[12:15], s36 offen' + NT)
    if P.get('skat', 0) == 0: skload()
    a('s_mul_i32 s30, s28, 6')
    a('s_lshr_b32 s31, s29, 2')
    a('s_add_u32 s30, s30, s31')
    a('s_and_b32 s31, s29, 3')
    a('s_lshl_b32 s46, s30, 2')
    a('s_or_b32 s46, s46, s31')
    a('s_lshl_b32 s47, s31, 2')
    a('s_or_b32 s47, s47, s3')
    a('v_and_b32 v16, 1, v0')
    a('v_lshrrev_b32 v17, 3, v1')
    a('v_and_b32 v6, 7, v1')
    a('v_mul_u32_u24 v242, 0x6000, v17')
    a('v_lshl_add_u32 v242, v6, 4, v242')
    a('v_lshlrev_b32 v243, 3, v17')
    a('s_lshl_b32 s36, s3, 11')
    a('s_add_u32 s33, s33, s36')
    WM = {}
    def wmload():
        base(a, 12, 84, 1024)
        a('s_lshl_b32 s36, s47, 6')
        tc = vm.issue('buffer_load_dwordx2 v[144:145], v243, s[12:15], s36 offen')
        base(a, 12, 86, 512*6144)
        a('s_cmp_lt_u32 s29, 24')
        a('s_cselect_b32 s14, s14, 0')
        a('s_lshr_b32 s36, s46, 2')
        a('s_lshl_b32 s36, s36, 7')
        a(f's_mul_i32 s37, s47, {32*6144}')
        a('s_add_u32 s36, s36, s37')
        twm = []
        for r in range(4):
            twm.append(vm.issue(f'buffer_load_dwordx4 v[{128+4*r}:{131+4*r}], v242, s[12:15], s36 offen' + NT))
            if r < 3: a('s_add_u32 s36, s36, 0x1800')
        WM.update(tc=tc, twm=twm)
    if P.get('wat', 3) == 0: wmload()
    if M2:
        a('s_and_b32 s30, s2, 1')
        a('s_lshl_b32 s30, s30, 3')
        a('s_and_b32 s98, s29, 7')
        a('s_or_b32 s30, s30, s98')
        a('s_bfe_u32 s31, s2, 0x20001')
        a('s_lshl_b32 s31, s31, 2')
        a('s_lshr_b32 s36, s2, 6')
        a('s_or_b32 s31, s31, s36')
        a('s_lshl_b32 s36, s36, 1')
        a('s_add_u32 s98, s98, s36')
    else:
        a('s_lshr_b32 s30, s32, 4')
        a('s_and_b32 s31, s32, 15')
        a(f's_and_b32 s98, s30, {P.get("prot", 0)}')
        a('s_lshl_b32 s98, s98, 2')
        if P.get('xrot', 1): a('s_add_u32 s98, s98, s28')
    a('s_and_b32 s98, s98, 7')
    a('s_lshr_b32 s38, s3, 1')
    a('s_and_b32 s39, s3, 1')
    a('s_cmp_eq_u32 s38, 0')
    a('s_cselect_b32 s20, s78, s80')
    a('s_cselect_b32 s21, s79, s81')
    a(f's_mov_b32 s22, {512*3584 if not P.get("now") else 0}')
    base(a, 8, 82, 1792*1024 if not P.get('now') else 0)
    base(a, 16, 58, TS)
    a('s_lshl_b32 s36, s28, 12')
    a(f's_add_u32 s36, s36, {hex(GRP)}')
    a('s_add_u32 s52, s58, s36')
    a('s_addc_u32 s53, s59, 0')
    a('s_movk_i32 s54, 0x1000')
    a('s_cmp_eq_u32 s3, 3')
    a('s_cselect_b32 s37, 0, 0x70000000')
    a('v_mov_b32 v22, s37')
    a('s_lshl_b32 s36, s29, 7')
    vm.issue('buffer_load_dword v158, v22, s[52:55], s36 offen')
    a('s_lshl_b32 s36, s46, 6')
    a(f's_add_u32 s36, s36, {hex(MODT)}')
    if P.get('mdt', 1): vm.issue('buffer_load_dword v159, v22, s[16:19], s36 offen')
    if M2 and P.get('ft', 1):
        a('s_lshl_b32 s36, s30, 4')
        a('s_lshr_b32 s37, s32, 4')
        a('s_lshl_b32 s37, s37, 4')
        a('s_sub_u32 s37, s37, s36')
        a('s_add_u32 s37, s37, 0x100')
        a('v_lshrrev_b32 v4, 2, v1')
        a('v_min_u32 v5, 1, v4')
        a('v_mul_lo_u32 v5, v5, s37')
        a('v_max_u32 v4, 1, v4')
        a('v_subrev_u32 v4, 1, v4')
        a('v_lshl_add_u32 v5, v4, 8, v5')
        a('v_and_b32 v4, 3, v1')
        a('v_add_u32 v5, v5, v4')
        a('s_lshl_b32 s37, s3, 2')
        a('s_add_u32 s36, s36, s37')
        a('v_add_lshl_u32 v5, v5, s36, 7')
        a(f's_mov_b32 s36, {hex(FL1)}')
        a('s_mov_b64 exec, 0xfff')
        vm.issue('buffer_load_dword v156, v5, s[16:19], s36 offen')
        a('s_mov_b64 exec, -1')
    a('s_lshl_b32 s36, s32, 13')
    a('s_lshl_b32 s37, s46, 11')
    a(f's_add_u32 s37, s37, {hex(MP)}')
    a('s_cmp_eq_u32 s3, 1')
    a(f's_cselect_b32 s37, s37, {hex(TS)}')
    a('s_cselect_b32 s44, 15, 63')
    a('s_cmp_eq_u32 s3, 2')
    a('s_cselect_b32 s37, s36, s37')
    a('v_and_b32 v4, s44, v1')
    a('v_lshlrev_b32 v4, 7, v4')
    if P.get('utt', 1): vm.issue('buffer_load_dword v157, v4, s[16:19], s37 offen' + (' nt' if P.get('ntu', 0) else ''))
    if P.get('tlb', 0) == 1:
        a('v_lshl_add_u32 v4, v1, 20, v22')
        for i, (p, n) in enumerate(((86, 512*6144), (84, 1024), (64, 0x200000), (78, 512*3584), (80, 512*3584), (82, 1792*1024), (56, 0x200000))):
            base(a, 12, p, n)
            vm.issue(f'buffer_load_dword v{160+i}, v4, s[12:15], 0 offen')
        vm.issue('buffer_load_dword v154, v4, s[16:19], 0 offen')
    for i in range(3):
        a(f'v_add_u32 v4, {64*i}, v1')
        a('v_mul_u32_u24 v5, 0x2aab, v4')
        a('v_lshrrev_b32 v5, 16, v5')
        a(f'v_mul_u32_u24 v5, {3584-96}, v5')
        a(f'v_lshl_add_u32 v{10+i}, v4, 4, v5')
        if i: a(f'v_subrev_u32 v{10+i}, {1024*i}, v{10+i}')
    a(f's_mul_i32 s41, s39, {32*3584}')
    a('s_mul_i32 s43, s31, 96')
    a('s_add_u32 s41, s41, s43')
    a('s_add_u32 s41, s41, 0x800')
    a('s_mul_i32 s43, s39, 3072')
    a(f's_mul_i32 s42, s38, {P1U}')
    a('s_add_u32 s42, s42, s43')
    a(f's_add_u32 s99, s41, {512*3584}')
    a(f's_mul_i32 s36, s98, {64*3584}')
    a('s_add_u32 s41, s41, s36')
    def step(reg, inc, lim, span):
        a(f's_add_u32 {reg}, {reg}, {inc}')
        a(f's_cmp_eq_u32 {reg}, {lim}')
        a(f's_cselect_b32 s36, {span}, 0')
        a(f's_sub_u32 {reg}, {reg}, s36')
    early = deque()
    def p1dma(m, i):
        if i == 0: a(f's_add_u32 m0, s42, {6144*m}')
        vm.issue(f'buffer_load_dwordx4 v{10+i}, s[20:23], s41 offen offset:{1024*i} lds')
        if i == 2 and m < 7: step('s41', 64*3584, 's99', 512*3584)
    for m in range(8):
        for i in range(3): early.append(lambda m=m, i=i: p1dma(m, i))
    for _ in range(P.get('e0', 0)): early.popleft()()
    a('v_lshrrev_b32 v4, 3, v1')
    a('v_bfe_u32 v5, v1, 4, 1')
    a('v_lshlrev_b32 v5, 2, v5')
    a('v_xor_b32 v5, v5, v6')
    a('v_lshlrev_b32 v5, 4, v5')
    a(f'v_lshl_add_u32 v8, v4, {7 if RL else 10}, v5')
    a(f'v_add_u32 v9, {0 if RL else 8192-1024}, v8')
    a('s_lshl_b32 s43, s38, 5')
    a('v_xor_b32 v5, s43, v5')
    a(f'v_mul_u32_u24 v7, {PR}, v4')
    a('v_add_u32 v7, v7, v5')
    a(f's_mul_i32 s48, s39, {8*PR}')
    a(f's_lshl_b32 s43, s31, {16 if RP else 7}')
    a('s_add_u32 s48, s48, s43')
    if RP:
        a('s_lshl_b32 s43, s38, 20')
        a('s_add_u32 s48, s48, s43')
        a(f's_add_u32 s48, s48, {hex(W2)}')
    a('s_lshl_b32 s43, s39, 10')
    a(f's_mul_i32 s49, s38, {SEG[0][2]-SEG[0][1]}')
    a('s_add_u32 s49, s49, s43')
    a(f's_mul_i32 s38, s38, {P1U}')
    a('s_add_u32 s43, s43, s38')
    a('v_sub_u32 v4, 7, v2')
    a('v_xor_b32 v4, v4, v6')
    a('v_lshl_add_u32 v4, v3, 4, v4')
    a(f'v_lshlrev_b32 v4, 4, v4')
    a(f'v_add_u32 v120, {PB}, v4')
    a('v_lshrrev_b32 v4, 4, v1')
    a('v_xor_b32 v5, v4, v1')
    a('s_lshl_b32 s36, s3, 11')
    a(f's_add_u32 s36, s36, {PB}')
    a('v_lshl_add_u32 v124, v5, 4, s36')
    a('v_xor_b32 v125, 64, v124')
    a('v_lshrrev_b32 v4, 3, v1')
    a('v_lshlrev_b32 v5, 4, v6')
    a('v_lshl_add_u32 v13, v4, 12, v5')
    a('s_lshl_b32 s36, s28, 2')
    a('s_add_u32 s36, s36, s3')
    a('s_lshl_b32 s36, s36, 16')
    a('s_sub_u32 s35, 31, s29')
    a('s_lshl_b32 s35, s35, 7')
    a('s_add_u32 s35, s35, s36')
    if 200 > P.get('probe', 0) >= 100:
        a('v_mov_b32 v22, s60')
        a('s_lshl_b32 s36, s2, 2')
        a(f's_add_u32 s36, s36, {hex(0x140A000)}')
        vm.issue('buffer_store_dword v22, v21, s[16:19], s36 offen sc1')
    def slow_gu():
        a('v_bfe_u32 v4, v1, 1, 3')
        a('v_and_b32 v5, 1, v4')
        a('v_lshlrev_b32 v5, 9, v5')
        a(f'v_mul_u32_u24 v4, 3584, v4')
        a('v_add_u32 v4, v4, v5')
        a('v_and_b32 v5, 1, v1')
        a('v_lshl_add_u32 v4, v5, 10, v4')
        a('v_bfe_u32 v5, v1, 4, 1')
        a('v_lshl_add_u32 v4, v5, 11, v4')
        a('s_lshl_b32 s36, s29, 1')
        a('s_and_b32 s37, s3, 1')
        a('s_add_u32 s36, s36, s37')
        a(f's_mul_i32 s36, s36, {8*3584}')
        a('s_mov_b32 exec_hi, 0')
        vm.issue('buffer_load_dword v252, v4, s[20:23], s36 offen offset:384')
        a('s_mov_b32 exec_hi, -1')
    def slow_d():
        a('v_lshlrev_b32 v4, 10, v1')
        a('s_and_b32 s36, s32, 31')
        a('s_lshl_b32 s36, s36, 2')
        a('s_add_u32 s36, s36, s3')
        a(f's_mul_i32 s36, s36, {14*1024}')
        a('s_mov_b64 exec, 0x3fff')
        vm.issue('buffer_load_dword v253, v4, s[8:11], s36 offen offset:384')
        a('s_mov_b64 exec, -1')
    def slow(at):
        if P.get('sg', 0) == at: slow_gu()
        if P.get('sd', 0) == at: slow_d()
    CR = 32 if P.get('cla', 1) == 1 else 244
    CP = {}
    def cpload():
        if not RL: return
        a('s_mul_i32 s44, s2, 7')
        a('s_lshl_b32 s45, s3, 1')
        a('s_add_u32 s44, s44, s45')
        a('s_cmp_eq_u32 s3, 3')
        a('s_cselect_b32 s45, 0, 1')
        a('s_add_u32 s45, s45, s44')
        for r in range(2):
            a(f's_lshl_b32 s36, s{44+r}, 10')
            CP['l'] = vm.issue(f'buffer_load_dwordx4 v[{CR+4*r}:{CR+3+4*r}], v15, s[8:11], s36 offen' + NT)
    stamp('pre')
    vm.need(tsh)
    lo(a, 52, 48); hi(a, 54, 48, 40); lo(a, 56, 49); hi(a, 58, 49, 40)
    lo(a, 53, 50); hi(a, 55, 50, 40); lo(a, 57, 51); hi(a, 59, 51, 40)
    vm.need(tk[0])
    stamp('kv0')
    if P.get('skat', 0) == 1: skload()
    if P.get('wat', 3) == 1: wmload()
    def xload():
        vm.issue('buffer_load_dwordx4 v[232:235], v15, s[12:15], s33 offen' + NT)
        return vm.issue('buffer_load_dwordx4 v[236:239], v15, s[12:15], s33 offen offset:1024' + NT)
    for q in range(3):
        lo(a, 60+2*q, 24+q); hi(a, 61+2*q, 24+q, 40)
    for r in range(8):
        vm.need(tk[r])
        lo(a, 66+2*r, 27+r); hi(a, 67+2*r, 27+r, 40)
        lo(a, 84+2*r, 36+r); hi(a, 85+2*r, 36+r, 40)
        d = 102+2*r
        a(f'v_pk_mul_f32 v[{d}:{d+1}], v[{60+2*r}:{61+2*r}], v[58:59]')
        a(f'v_pk_fma_f32 v[{d}:{d+1}], v[{62+2*r}:{63+2*r}], v[56:57], v[{d}:{d+1}]')
        a(f'v_pk_fma_f32 v[{d}:{d+1}], v[{64+2*r}:{65+2*r}], v[54:55], v[{d}:{d+1}]')
        a(f'v_pk_fma_f32 v[{d}:{d+1}], v[{66+2*r}:{67+2*r}], v[52:53], v[{d}:{d+1}]')
        a(f'v_pk_mul_f32 v[{d}:{d+1}], v[{d}:{d+1}], v[{84+2*r}:{85+2*r}]')
    if P.get('skat', 0) == 2: skload()
    if P.get('wat', 3) == 2: wmload()
    if P.get('cla', 1) == 0: cpload()
    a('s_mov_b64 s[96:97], s[64:65]')
    slow(1)
    stamp('kvN')
    for c in range(2):
        for jj in range(4):
            a(f'v_cvt_pk_bf16_f32 v{24+4*c+jj}, v{102+2*(7-2*jj)+c}, v{102+2*(6-2*jj)+c}')
        a(f'ds_write_b128 v120, v[{24+4*c}:{27+4*c}] offset:{128*c}')
    a('s_waitcnt lgkmcnt(0)')
    a('s_barrier')
    stamp('abar')
    for j in range(2): a(f'ds_read_b128 v[{104+4*j}:{107+4*j}], v{124+j} offset:{1024*j}')
    a('s_mul_i32 s50, s50, 1664525')
    a('s_add_u32 s50, s50, 1013904223')
    a('v_mov_b32 v20, s50')
    a('s_getreg_b32 s100, hwreg(HW_REG_XCC_ID, 0, 4)')
    if P.get('slow'): a('s_and_b32 s100, s29, 1')
    a('s_add_u32 s100, s100, s50')
    a('s_add_u32 s100, s100, 1')
    a('s_mov_b32 s24, s35')
    a('s_add_u32 s25, s35, 0x8000')
    ustores = [f'buffer_store_dwordx4 v[{104+4*j}:{107+4*j}], v13, s[16:19], s{24+j} offen' for j in range(2)]
    for j in range(2):
        a(f's_waitcnt lgkmcnt({1-j})')
        tus = vm.issue(ustores[j] + (' sc1' if P.get('uts', 0) else ''))
    a('s_lshl_b32 s7, s3, 7')
    a('s_lshl_b32 s36, s29, 2')
    a('s_add_u32 s7, s7, s36')
    a('v_mov_b32 v123, s100')
    if P.get('skat', 0) == 3: skload()
    if P.get('wat', 3) == 3: wmload()
    tsk = SK['t']
    stamp('utst')
    def rowflag():
        vm.need(tus)
        masked([f'buffer_store_dword v123, v21, s[52:55], s7 offen offset:{UH}'], 1)
    if P.get('ff', 0): rowflag()
    for i in range(4): a(f'v_mov_b32 v{40+i}, 0')
    a(f'v_add_u32 v14, {CB}, v14')
    a('v_cmp_gt_u32 vcc, 32, v0')
    a('s_and_saveexec_b64 s[36:37], vcc')
    a('s_cbranch_execz L_nz')
    a('ds_write_b128 v14, v[40:43]')
    a(f'ds_write_b128 v14, v[40:43] offset:{CHS}')
    a('v_cmp_gt_u32 vcc, 2, v0')
    a('s_and_b64 exec, exec, vcc')
    for c in range(2):
        a(f'ds_write_b128 v14, v[40:43] offset:{c*CHS+U0+4096}')
        a(f'ds_write_b128 v14, v[40:43] offset:{c*CHS+U1+4096}')
    a.label('L_nz')
    a('s_mov_b64 exec, s[36:37]')
    a('v_cmp_eq_u32 s[36:37], 0, v0')
    a('s_lshl_b32 s4, s34, 16')
    a('s_and_b32 s5, s34, 0xffff0000')
    a('s_mov_b32 s6, 0xffff')
    vm.need(tsk)
    stamp('skok')
    for c in range(2):
        kx = 146+4*c
        lo(a, 44, kx)
        a(f'v_add_f32 v44, s{4+c}, v44')
        a('v_cvt_pk_bf16_f32 v44, v44, v44')
        a(f'v_bfi_b32 v44, s6, v44, v{kx}')
        a(f'v_cndmask_b32 v{kx}, v{kx}, v44, s[36:37]')
        a(f'ds_write_b128 v14, v[{kx}:{kx+3}] offset:{c*CHS+KB}')
    if not P.get('ff', 0): rowflag()
    a('v_and_b32 v120, 31, v1')
    a('v_lshlrev_b32 v120, 2, v120')
    a('s_lshr_b32 s5, s29, 3')
    a('s_lshl_b32 s5, s5, 7')
    hloads = [f'buffer_load_dword v121, v120, s[52:55], 0 offen offset:{XID} sc1', f'buffer_load_dword v124, v120, s[52:55], s5 offen offset:{UH} sc1']
    a('v_mov_b32 v121, s50')
    tu = masked(hloads[1:], 0xffffffff)
    if P.get('wat', 3) == 4: wmload()
    tc, twm = WM['tc'], WM['twm']
    base(a, 12, 96, 0x200000)
    a('v_lshrrev_b32 v4, 1, v6')
    a('v_lshlrev_b32 v4, 11, v4')
    a('v_lshl_add_u32 v4, v16, 6, v4')
    a('v_lshrrev_b32 v5, 5, v1')
    a('v_lshl_add_u32 v4, v5, 5, v4')
    a('v_bfe_u32 v5, v1, 4, 1')
    a('v_lshl_add_u32 v126, v5, 4, v4')
    a('s_lshl_b32 s35, s32, 13')
    a('s_add_u32 s34, s35, 0x1000')
    a('v_lshlrev_b32 v125, 4, v0')
    vm.need(tc)
    lo(a, 44, 144); hi(a, 45, 144, 40); lo(a, 46, 145); hi(a, 47, 145, 40)
    for r in range(4): a(f'v_mul_f32 v{48+r}, {fh(-1.4426950408889634)}, v{44+r}')
    for r in range(4): a(f'v_exp_f32 v{48+r}, v{48+r}')
    for r in range(4): a(f'v_add_f32 v{48+r}, 1.0, v{48+r}')
    for r in range(4): a(f'v_rcp_f32 v{48+r}, v{48+r}')
    for r in range(4): a(f'v_mul_f32 v{44+r}, v{44+r}, v{48+r}')
    a('v_cvt_pk_bf16_f32 v48, v44, v45')
    a('v_cvt_pk_bf16_f32 v49, v46, v47')
    lo(a, 44, 48); hi(a, 45, 48, 40); lo(a, 46, 49); hi(a, 47, 49, 40)
    def stage1():
        for r in range(4):
            vm.need(twm[r])
            unpack8(a, 52, 128+4*r, 40)
            sel = 'op_sel:[0,0,0] op_sel_hi:[1,0,1]' if r % 2 == 0 else 'op_sel:[0,1,0] op_sel_hi:[1,1,1]'
            sp = 44 + (r & 2)
            for j in range(4):
                if r == 0:
                    a(f'v_pk_mul_f32 v[{60+2*j}:{61+2*j}], v[{52+2*j}:{53+2*j}], v[{sp}:{sp+1}] op_sel:[0,0] op_sel_hi:[1,0]')
                else:
                    a(f'v_pk_fma_f32 v[{60+2*j}:{61+2*j}], v[{52+2*j}:{53+2*j}], v[{sp}:{sp+1}], v[{60+2*j}:{61+2*j}] {sel}')
        for j in range(4): a(f'v_permlane32_swap_b32 v{60+j}, v{64+j}')
        for j in range(4): a(f'v_add_f32 v{60+j}, v{60+j}, v{64+j}')
        a('s_lshr_b32 s6, s46, 2')
        a('s_lshl_b32 s6, s6, 13')
        for j in range(2): a(f'v_permlane16_swap_b32 v{60+j}, v{62+j}')
        a('s_lshl_b32 s36, s47, 7')
        for j in range(2): a(f'v_add_f32 v{100+j}, v{60+j}, v{62+j}')
        a('v_mov_b32 v102, s50')
        a('v_mov_b32 v103, s50')
        for j in range(2): a(f'v_add_f32_dpp v{100+j}, v{100+j}, v{100+j} row_ror:8 row_mask:0xf bank_mask:0xf')
        a('s_add_u32 s6, s6, s36')
        a(f's_add_u32 s6, s6, {hex(MP)}')
        a('s_cmp_lt_u32 s29, 24')
        a(f's_cselect_b32 s6, s6, {hex(TS)}')
    if P.get('s1at', 1) == 0: stage1()
    a('s_lshr_b32 s36, s3, 1')
    a(f's_mul_i32 s36, s36, {CHS}')
    a('s_xor_b32 s38, s39, 1')
    a('s_lshl_b32 s38, s38, 6')
    a('s_add_u32 s36, s36, s38')
    a(f's_add_u32 s36, s36, {CB}')
    a('v_and_b32 v3, 15, v0')
    a('v_bfe_u32 v4, v0, 4, 2')
    a('v_lshlrev_b32 v5, 4, v4')
    a('v_lshl_add_u32 v22, v3, 5, v5')
    a(f's_add_u32 s38, s36, {KB-480}')
    a('v_add_u32 v22, s38, v22')
    a('v_and_b32 v23, 14, v3')
    a('v_lshlrev_b32 v23, 1, v23')
    a('v_sub_u32 v23, v5, v23')
    a(f'v_mul_u32_u24 v5, {U1-U0}, v16')
    a('v_sub_u32 v23, v23, v5')
    a(f's_add_u32 s38, s36, {U1+28}')
    a('v_add_u32 v16, s38, v23')
    for i in range(1, 4): a(f'v_add_u32 v{16+i}, {1024*i}, v16')
    a('v_bfe_u32 v5, v3, 1, 2')
    a('v_xor_b32 v5, v5, v4')
    a('v_lshl_add_u32 v5, v3, 2, v5')
    a('s_lshl_b32 s38, s3, 13')
    a(f's_add_u32 s38, s38, {PB}')
    a('v_lshl_add_u32 v23, v5, 4, s38')
    KP = P.get('kp', 1)
    if KP:
        a('s_waitcnt lgkmcnt(0)')
        a('s_barrier')
        for j in range(4, 32): a(f'ds_read_b128 v[{104+4*j}:{107+4*j}], v22 offset:{128*j}') if not 120 <= 104+4*j < 156 else None
    a(f's_mov_b32 s51, {SPIN}')
    a('s_mov_b32 s101, 0')
    vm.need(tu)
    stamp('ut1st')
    if PM: a('s_mov_b32 exec_hi, 0')
    a('s_branch L_uh_chk')
    a.label('L_uh')
    if SL: a(f's_sleep {SL}')
    a(f's_cmp_lg_u32 s51, {SPIN - P.get("idl", 48)}')
    a('s_cbranch_scc1 L_noid')
    a('s_cmp_lg_u32 s3, 0')
    a('s_cbranch_scc1 L_noid')
    a('s_lshl_b32 s36, s29, 2')
    a('s_mov_b64 exec, 1')
    a(f'buffer_store_dword v123, v21, s[52:55], s36 offen offset:{XID} sc1')
    a('s_mov_b64 exec, 0xffffffff' if PM else 's_mov_b64 exec, -1')
    a.label('L_noid')
    for l in hloads: a(l)
    a('s_waitcnt vmcnt(0)')
    a.label('L_uh_chk')
    a('v_cmp_ne_u32 vcc, s100, v124')
    a('v_subrev_u32 v122, s50, v121')
    a('v_subrev_u32 v122, 1, v122')
    a('s_cbranch_vccz L_uh_ok')
    a('v_cmp_lt_u32 vcc, 15, v122')
    a('v_cmp_ne_u32 s[92:93], s100, v121')
    a('s_sub_u32 s51, s51, 1')
    a('s_cbranch_scc1 L_uh_ok')
    a('s_cbranch_vccnz L_uh')
    a('s_cmp_eq_u64 s[92:93], 0')
    a('s_cbranch_scc1 L_uh_same')
    a('s_cmp_lg_u32 s101, 0')
    a('s_cbranch_scc1 L_uh_same')
    a('s_mov_b32 s101, 1')
    a('s_mov_b64 exec, -1')
    for l in ustores: a(l + ' sc1')
    a('s_waitcnt vmcnt(0)')
    a(f'buffer_store_dword v20, v21, s[52:55], s7 offen offset:{UH} sc1')
    if PM: a('s_mov_b32 exec_hi, 0')
    a.label('L_uh_same')
    a('v_cmp_ne_u32 vcc, s50, v124')
    a('v_cmp_ne_u32 s[92:93], s100, v124')
    a('s_nop 0')
    a('s_and_b64 vcc, vcc, s[92:93]')
    a('s_cbranch_vccnz L_uh')
    a.label('L_uh_ok')
    a('s_mov_b64 exec, -1')
    raw(6, 's51'); raw(0, 's101')
    stamp('uhok')
    tu = []
    for c in range(2):
        vm.issue(f'buffer_load_dwordx4 v[{72+4*c}:{75+4*c}], v125, s[16:19], s{35-c} offen sc1')
        tu.append(vm.issue(f'buffer_load_dword v{80+c}, v125, s[16:19], s{35-c} offen offset:16 sc1'))
    if P.get('s1at', 1) == 1: stage1()
    lstore(['buffer_store_dwordx4 v[100:103], v126, s[16:19], s6 offen'])
    if KP:
        for j in list(range(4)) + list(range(4, 13)): a(f'ds_read_b128 v[{104+4*j}:{107+4*j}], v22 offset:{128*j}')
    if P.get('xat', 1) == 1: tx = xload()
    if P.get('cla', 1) == 1: cpload()
    if RP:
        a('s_lshl_b32 s43, s2, 1')
        a('s_add_u32 s43, s43, s39')
        a('s_mul_i32 s36, s43, 3584')
        for r in range(2): CP['pl'] = vm.issue(f'buffer_load_dwordx4 v[{24+4*r}:{27+4*r}], v15, s[20:23], s36 offen offset:{1024*r}' + NT)
    def p2copy():
        a('v_lshrrev_b32 v4, 3, v1')
        a('v_lshlrev_b32 v4, 16, v4')
        a('v_lshl_add_u32 v4, v6, 4, v4')
        a('s_lshr_b32 s36, s3, 1')
        a('s_lshl_b32 s36, s36, 20')
        a('s_lshl_b32 s43, s43, 7')
        a('s_add_u32 s36, s36, s43')
        a(f's_add_u32 s36, s36, {hex(W2)}')
        vm.need(CP['pl'])
        vm.issue('buffer_store_dwordx4 v[24:27], v4, s[16:19], s36 offen sc1')
        a('s_add_u32 s36, s36, 0x80000')
        CP['s'] = vm.issue('buffer_store_dwordx4 v[28:31], v4, s[16:19], s36 offen sc1')
    def wdcopy():
        a('v_lshrrev_b32 v4, 3, v1')
        a(f'v_mul_u32_u24 v4, {1792*128}, v4')
        a('v_lshl_add_u32 v4, v6, 4, v4')
        vm.need(CP['l'])
        for r in range(2):
            a(f's_lshl_b32 s36, s{44+r}, 7')
            a(f's_add_u32 s36, s36, {hex(WD2)}')
            CP['s'] = vm.issue(f'buffer_store_dwordx4 v[{CR+4*r}:{CR+3+4*r}], v4, s[16:19], s36 offen sc1')
    a('s_movk_i32 s36, 0xff')
    a('v_cmp_ne_u32 vcc, s36, v0')
    for c in range(2):
        u = 72+4*c
        vm.need(tu[c])
        if c == 0: stamp('utok')
        a(f'v_cndmask_b32 v{80+c}, 0, v{80+c}, vcc')
        a(f'ds_write_b128 v14, v[{u}:{u+3}] offset:{c*CHS+U0}')
        for j in range(3): a(f'v_alignbit_b32 v{40+4*c+j}, v{u+j+1}, v{u+j}, 16')
        a(f'v_alignbit_b32 v{43+4*c}, v{80+c}, v{u+3}, 16')
        a(f'ds_write_b128 v14, v[{40+4*c}:{43+4*c}] offset:{c*CHS+U1}')
    for _ in range(P.get('e0b', 3)): early.popleft()()
    a('s_waitcnt lgkmcnt(0)')
    a('s_barrier')
    stamp('bbar')
    if RL and P.get('cpa', 10) < 0: wdcopy()
    a('s_lshl_b32 s6, s46, 11')
    a(f's_add_u32 s6, s6, {hex(MP)}')
    a('s_lshl_b32 s5, s46, 6')
    a(f's_add_u32 s5, s5, {hex(MODT)}')
    a('s_cmp_lt_u32 s29, 24')
    a(f's_cselect_b32 s7, s3, 1')
    a('s_cmp_eq_u32 s7, 0')
    a(f's_cselect_b32 s6, s6, {hex(TS)}')
    a(f's_cselect_b32 s5, s5, {hex(TS)}')
    a('s_lshr_b32 s36, s46, 5')
    a('s_cmp_eq_u32 s36, 1')
    a('s_cselect_b32 s4, 1.0, 0')
    a('s_cmp_eq_u32 s36, 4')
    a('s_cselect_b32 s4, 1.0, s4')
    ploads = [f'buffer_load_dwordx4 v[{240+4*j}:{243+4*j}], v15, s[16:19], s6 offen offset:{1024*j} sc1' for j in range(2)]
    tmi = []
    def mod_issue():
        for l in ploads: t = vm.issue(l)
        tmi.append(t)
    def mod_check():
        vm.need(tmi[0])
        a('s_cmp_lg_u32 s7, 0')
        a('s_cbranch_scc1 L_nomod')
        done = vm.done
        poll('mp', ploads, [242, 246], pre=0)
        vm.done = done
        a.label('L_nomod')
    st2 = deque(['v_add_f32 v240, v240, v244', 'v_add_f32 v241, v241, v245', 'v_mov_b32 v246, s50', 'v_mov_b32 v247, s50'])
    st2.extend(f'v_add_f32_dpp v{240+j}, v{240+j}, v{240+j} row_ror:8 row_mask:0xf bank_mask:0xf' for j in range(2))
    for op in ('v_permlane16_swap_b32', 'v_permlane32_swap_b32'):
        st2.extend(f'v_mov_b32 v{242+j}, v{240+j}' for j in range(2))
        st2.extend(f'{op} v{240+j}, v{242+j}' for j in range(2))
        st2.extend(f'v_add_f32 v{240+j}, v{240+j}, v{242+j}' for j in range(2))
    st2.extend(['v_cvt_pk_bf16_f32 v242, v240, v241', 'v_lshlrev_b32 v243, 3, v1', 'v_lshlrev_b32 v240, 16, v242', 'v_and_b32 v241, s40, v242',
                'v_add_f32 v240, s4, v240', 'v_add_f32 v241, s4, v241', 'v_cvt_pk_bf16_f32 v244, v240, v241', None,
                'v_mov_b32_dpp v245, v244 quad_perm:[1,1,3,3] row_mask:0xf bank_mask:0xf', None, 'store'])
    def st2_step():
        for _ in range(2):
            if not st2: return
            x = st2.popleft()
            if x is None: return
            if x == 'store': masked(['buffer_store_dwordx4 v[244:247], v243, s[16:19], s5 offen sc1'], 0x55)
            else: a(x)
    ACC, AR, BR = 40, 72, 104
    pipe = LdsPipe(a)
    reads = []
    for i in range(32):
        o = 32*((31-i) & 7); b = 16 + ((31-i) >> 3); d = AR + 4*(i & 7)
        reads.append((('A', i, 0), f'ds_read2_b32 v[{d}:{d+1}], v{b} offset0:{o} offset1:{o+1}'))
        reads.append((('A', i, 1), f'ds_read2_b32 v[{d+2}:{d+3}], v{b} offset0:{o+2} offset1:{o+3}'))
        if i < 4 and not KP:
            for t in range(8):
                j = 4*t+3-i
                reads.append((('B', j), f'ds_read_b128 v[{BR+4*j}:{BR+4*j+3}], v22 offset:{128*j}'))
    tok = {('B', j): 0 for j in range(32)} if KP else {}; nxt = [0]
    def pump(cur_step, maxn):
        n = 0
        while n < maxn and nxt[0] < len(reads) and pipe.outstanding() < 13:
            key, line = reads[nxt[0]]
            if key[0] == 'A' and key[1] >= cur_step + 8: break
            tok[key] = pipe.issue(line); nxt[0] += 1; n += 1
    pump(0, 12)
    if P.get('p2m', 0):
        a('v_lshlrev_b32 v4, 7, v1')
        a('s_lshl_b32 s36, s2, 1')
        a('s_add_u32 s36, s36, s39')
        a('s_mul_i32 s36, s36, 3584')
        masked(['buffer_load_dword v248, v4, s[20:23], s36 offen'], 0xffff)
    slow(2)
    pending = []; nm = 0
    NB = P.get('e1', 12); EV = P.get('ev', 9)
    for i in range(32):
        for t in range(i >> 2, 8):
            j = 4*t+3-i
            while ('B', j) not in tok or ('A', i, 1) not in tok:
                pipe.need(pipe.done + 2); pump(i, 2)
            pipe.need(max(tok[('A', i, 1)], tok[('B', j)]))
            d = ACC+4*t; c = '0' if i == 0 else f'v[{d}:{d+3}]'
            s = AR+4*(i & 7)
            a(f'v_mfma_f32_16x16x32_bf16 v[{d}:{d+3}], v[{s}:{s+3}], v[{BR+4*j}:{BR+4*j+3}], {c}')
            pump(i, 2 if i < 4 else 1)
            nm += 1
            if i > P.get('mfin', 7): st2_step()
            if nm >= P.get('e1s', 10) and nm % EV == 0 and NB > 0 and early:
                early.popleft()(); NB -= 1
        if pending and pipe.outstanding() < 14:
            t = pending.pop()
            pipe.issue(f'ds_write_b128 v23, v[{ACC+4*t}:{ACC+4*t+3}] offset:{1024*t}')
        if (i & 3) == 3: pending.append(i >> 2)
        if RL and i == P.get('cpa', 10): wdcopy()
        if RP and i == P.get('cpa', 10) + 1: p2copy()
        if i == P.get('mpi', 2): mod_issue()
        if i == P.get('mfin', 7): mod_check(); raw(7, 's51')
    for t in pending:
        pipe.issue(f'ds_write_b128 v23, v[{ACC+4*t}:{ACC+4*t+3}] offset:{1024*t}')
    assert not st2
    stamp('bend')
    a('v_lshlrev_b32 v4, 3, v0')
    a(f'v_add_u32 v4, {PRM}, v4')
    a('v_lshrrev_b32 v2, 1, v0')
    a('v_bfe_u32 v3, v0, 4, 2')
    a('v_xor_b32 v2, v2, v3')
    a('v_lshlrev_b32 v2, 4, v2')
    a('v_and_b32 v3, 1, v0')
    a('v_lshl_add_u32 v2, v3, 3, v2')
    a(f'v_add_u32 v2, {PB}, v2')
    a('v_lshlrev_b32 v3, 4, v0')
    a('v_and_b32 v5, 3, v0')
    a(f's_mul_i32 s38, s32, {YP}')
    a(f's_add_u32 s38, s38, {hex(YT)}')
    a(f'v_add_u32 v13, {PRM}, v15')
    a('s_and_b32 s36, s32, 7')
    a('s_lshl_b32 s36, s36, 1')
    a('s_and_b32 s37, s3, 1')
    a('s_or_b32 s36, s36, s37')
    a('s_lshl_b32 s36, s36, 6')
    a(f's_add_u32 s36, s36, {PRM+5120}')
    a('v_lshrrev_b32 v14, 5, v1')
    a('v_lshl_add_u32 v14, v14, 4, s36')
    if RL or RP: vm.need(CP['s'])
    if RL and P.get('wr2', 0):
        a('v_and_b32 v252, 7, v1')
        a(f'v_mul_u32_u24 v252, {1792*128}, v252')
        a('v_bfe_u32 v253, v1, 3, 1')
        a('v_lshl_add_u32 v252, v253, 7, v252')
        a('s_lshl_b32 s36, s44, 7')
        a(f's_add_u32 s36, s36, {hex(WD2)}')
        masked(['buffer_load_dword v253, v252, s[16:19], s36 offen sc1'], 0xffff)
    a('s_waitcnt lgkmcnt(0)')
    a('s_barrier')
    stamp('pbar')
    for j in range(4):
        for w in range(4):
            a(f'ds_read_b64 v[{72+8*j+2*w}:{73+8*j+2*w}], v2 offset:{8192*w+2048*j}')
        if j == 2: a('s_waitcnt lgkmcnt(8)')
    a('s_lshl_b32 s35, s3, 10')
    a(f's_add_u32 s35, s35, {hex(MODT)}')
    a('s_add_u32 s34, s35, 0x1000')
    a('s_add_u32 s4, s35, 0x2000')
    mloads = [f'buffer_load_dwordx4 v[{104+4*r}:{107+4*r}], v15, s[16:19], s{(35, 34, 4)[r]} offen sc1' for r in range(3)]
    TM = [None]
    if P.get('mde', 1) == 1:
        for l in mloads: TM[0] = vm.issue(l)
    for j in range(4):
        b = 72+8*j; q = 24+4*j
        if j: a(f's_waitcnt lgkmcnt({12-4*j})')
        a(f'v_pk_add_f32 v[{b}:{b+1}], v[{b}:{b+1}], v[{b+2}:{b+3}]')
        a(f'v_pk_add_f32 v[{b+4}:{b+5}], v[{b+4}:{b+5}], v[{b+6}:{b+7}]')
        a(f'v_mov_b32 v{q+2}, s50')
        a(f'v_mov_b32 v{q+3}, s50')
        a(f'v_cvt_pk_bf16_f32 v{q}, v{b}, v{b+4}')
        a(f'v_cvt_pk_bf16_f32 v{q+1}, v{b+1}, v{b+5}')
        tys = vm.issue(f'buffer_store_dwordx4 v[{q}:{q+3}], v3, s[16:19], s38 offen sc1')
        if j < 3: a('s_add_u32 s38, s38, 0x1000')
    stamp('ytst')
    a('v_mov_b32 v22, v4')
    a('v_mov_b32 v23, v14')
    a('v_mov_b32 v60, v5')
    slow(3)
    a('v_mov_b32 v5, v60')
    if P.get('mde', 1) == 2:
        for l in mloads: TM[0] = vm.issue(l)
    for _ in range(P.get('e2', 6)): early.popleft()()
    a('v_lshrrev_b32 v4, 2, v0')
    a(f'v_mul_u32_u24 v3, {2*YS}, v5')
    a('v_lshl_add_u32 v3, v4, 2, v3')
    a(f'v_add_u32 v3, {XG}, v3')
    a(f's_mul_i32 s46, s3, {2*YS}')
    a(f's_add_u32 s46, s46, {XG}')
    a('v_add_u32 v4, s46, v15')
    a('s_lshl_b32 s46, s3, 1')
    a('v_xor_b32 v5, s46, v6')
    a('v_lshlrev_b32 v5, 4, v5')
    a('v_lshl_add_u32 v5, v1, 7, v5')
    a(f'v_add_u32 v5, {XH}, v5')
    a('v_xor_b32 v16, 16, v5')
    a('v_lshrrev_b32 v17, 3, v1')
    a('v_xor_b32 v18, v17, v6')
    a('v_lshlrev_b32 v18, 4, v18')
    a('v_lshl_add_u32 v18, v17, 7, v18')
    a('s_lshl_b32 s46, s3, 11')
    a(f's_add_u32 s46, s46, {XH}')
    a('v_add_u32 v18, s46, v18')
    a('v_lshlrev_b32 v17, 9, v17')
    a('v_lshl_add_u32 v17, v6, 4, v17')
    a('s_lshr_b32 s46, s32, 2')
    a('s_lshl_b32 s46, s46, 15')
    a('s_and_b32 s47, s32, 3')
    a('s_lshl_b32 s47, s47, 7')
    a('s_add_u32 s46, s46, s47')
    a('s_lshl_b32 s47, s3, 13')
    a('s_add_u32 s46, s46, s47')
    a(f's_add_u32 s46, s46, {hex(H2)}')
    a('s_add_u32 s47, s46, 0x1000')
    XO = P.get('xo', 1)
    XS = 's[12:15]' if XO else 's[16:19]'
    base(a, 12, 56, 0x200000)
    a(f's_add_u32 s37, s33, {0 if XO else hex(X1)}')
    a('v_lshrrev_b32 v14, 2, v0')
    a(f'v_mul_u32_u24 v14, {YP}, v14')
    a('v_and_b32 v19, 3, v0')
    a('v_lshl_add_u32 v14, v19, 4, v14')
    a('s_lshl_b32 s24, s32, 6')
    a(f's_add_u32 s26, s24, {hex(YT)}')
    a(f's_add_u32 s27, s26, {64*YP}')
    a(f's_add_u32 s5, s26, {128*YP}')
    a(f's_add_u32 s6, s26, {192*YP}')
    X = (64, 160)
    vm.need(tx)
    subs = []
    for t in range(2):
        s = Asm(); unpack8(s, X[t], 232+4*t, 40); ln2p(s, X[t], X[t]+8, X[t]+16, 24+t)
        subs.append(s)
    zipl(a, *subs)
    stamp('ln1')
    yloads = [f'buffer_load_dwordx4 v[{24+4*j}:{27+4*j}], v14, s[16:19], s{(26, 27, 5, 6)[j]} offen sc1' for j in range(4)]
    MDE = P.get('mde', 1)
    def md_in():
        poll('md', mloads, [106, 110, 114], pre=TM[0])
        stamp('mdok'); raw(1, 's51')
        for r in range(3): a(f'ds_write_b64 v22, v[{104+4*r}:{105+4*r}] offset:{2048*r}')
    def md_use(extra):
        for i, off in enumerate((1024, 0, 2048)):
            a(f'ds_read_b128 v[{40+4*i}:{43+4*i}], v13 offset:{off}')
        for l in extra: a(l)
        for i, off in enumerate((4096, 3072)):
            a(f'ds_read_b128 v[{52+4*i}:{55+4*i}], v13 offset:{off}')
        a('ds_read_b128 v[124:127], v23')
        a('ds_read_b128 v[116:119], v23 offset:32')
        a(f's_waitcnt lgkmcnt({5+len(extra)})')
        unpack8(a, 128, 40, 40); unpack8(a, 136, 44, 40)
        for t in range(2):
            for p in range(4):
                d = X[t]+8+2*p
                a(f'v_pk_fma_f32 v[{d}:{d+1}], v[{d}:{d+1}], v[{128+2*p}:{129+2*p}], v[{136+2*p}:{137+2*p}]')
        a(f's_waitcnt lgkmcnt({4+len(extra)})')
        unpack8(a, 144, 48, 40)
        for t in range(2):
            for p in range(4):
                d = X[t]+8+2*p
                a(f'v_pk_mul_f32 v[{d}:{d+1}], v[{d}:{d+1}], v[{144+2*p}:{145+2*p}]')
        a('s_waitcnt lgkmcnt(0)')
        unpack8(a, 128, 52, 40); unpack8(a, 136, 56, 40)
    if MDE:
        md_in()
        a('s_waitcnt lgkmcnt(0)')
        a('s_barrier')
        md_use([])
    vm.need(tys)
    if P.get('yd'): a(f's_sleep {P["yd"]}')
    stamp('ytack')
    for l in yloads: ty = vm.issue(l)
    if not MDE:
        for l in mloads: TM[0] = vm.issue(l)
    poll('yt', yloads, [26, 30, 34, 38], pre=ty)
    stamp('ytok'); raw(2, 's51')
    for j in range(4):
        a(f'ds_write_b32 v3, v{24+4*j} offset:{256*j}')
        a(f'ds_write_b32 v3, v{25+4*j} offset:{256*j+YS}')
    if not MDE: md_in()
    a('s_waitcnt lgkmcnt(0)')
    a('s_barrier')
    stamp('ybar')
    yreads = ['ds_read_b128 v[24:27], v4', f'ds_read_b128 v[28:31], v4 offset:{YS}']
    if MDE:
        for l in yreads: a(l)
    ptok = {}
    def p2dma(k):
        a(f's_add_u32 m0, s49, {SEG[0][1] + 2048*(k % 15)}')
        if k and k % 4: a(f's_add_u32 s48, s48, {16*PR}')
        elif k: step('s48', 16*PR, 's100', 512*PR)
        ptok[k] = vm.issue('buffer_load_dwordx4 v7, s[16:19], s48 offen sc1 lds' if RP else 'buffer_load_dwordx4 v7, s[20:23], s48 offen lds')
    a(f's_add_u32 s100, s48, {512*PR}')
    a(f's_mul_i32 s36, s98, {64*PR}')
    a('s_add_u32 s48, s48, s36')
    for _ in range(P.get('e3', 3)): early.popleft()()
    NSY = P.get('nsy', 0)
    for k in range(NSY): p2dma(k)
    if MDE: a('s_waitcnt lgkmcnt(0)')
    else: md_use(yreads)
    subs = []
    for t in range(2):
        s = Asm(); x = X[t]
        unpack8(s, x+20, 24+4*t, 40)
        for p in range(4):
            s(f'v_pk_fma_f32 v[{x+2*p}:{x+2*p+1}], v[{x+8+2*p}:{x+9+2*p}], v[{x+20+2*p}:{x+21+2*p}], v[{x+2*p}:{x+2*p+1}]')
        for j in range(4): s(f'v_cvt_pk_bf16_f32 v{32+4*t+j}, v{x+2*j}, v{x+2*j+1}')
        s(f'buffer_store_dwordx4 v[{32+4*t}:{35+4*t}], v15, {XS}, s37 offen offset:{1024*t} sc1')
        unpack8(s, x, 32+4*t, 40)
        (ln1p if P.get('l1', 1) else ln2p)(s, x, x+8, x+16, 24+2*t)
        for p in range(4):
            s(f'v_pk_fma_f32 v[{x+8+2*p}:{x+9+2*p}], v[{x+8+2*p}:{x+9+2*p}], v[{128+2*p}:{129+2*p}], v[{136+2*p}:{137+2*p}]')
        for j in range(4): s(f'v_cvt_pk_bf16_f32 v{40+4*t+j}, v{x+8+2*j}, v{x+9+2*j}')
        s(f'ds_write_b128 v{(5, 16)[t]}, v[{40+4*t}:{43+4*t}]')
        subs.append(s)
    zipl(a, *subs)
    vm.issued += 2
    a('s_waitcnt lgkmcnt(0)')
    a('s_barrier')
    stamp('hbar')
    a('ds_read_b128 v[24:27], v18')
    a('ds_read_b128 v[28:31], v18 offset:1024')
    a('s_and_b32 s24, s32, 31')
    a('s_lshl_b32 s24, s24, 4')
    a('s_lshl_b32 s25, s3, 2')
    a('s_add_u32 s33, s24, s25')
    a('s_and_b32 s25, s30, 1')
    a('s_lshl_b32 s25, s25, 8')
    a('s_lshl_b32 s26, s3, 6')
    a('s_add_u32 s25, s25, s26')
    a('v_and_b32 v19, 15, v1')
    a('v_lshlrev_b32 v19, 2, v19')
    if M2:
        a('s_lshl_b32 s25, s3, 2')
        a('s_lshl_b32 s24, s32, 7')
        a('s_add_u32 s24, s24, s25')
        a(f's_add_u32 s24, s24, {hex(FL1)}')
        a('s_lshl_b32 s33, s30, 4')
        a('s_or_b32 s33, s33, s31')
        a('s_lshl_b32 s33, s33, 7')
        a('s_add_u32 s33, s33, s25')
        a(f's_add_u32 s33, s33, {hex(FL2)}')
        a('s_lshl_b32 s26, s30, 4')
        a('s_add_u32 s26, s26, s25')
        a('s_lshl_b32 s26, s26, 7')
        a(f's_add_u32 s97, s26, {hex(FL1)}')
        a('s_lshr_b32 s26, s32, 4')
        a('s_lshl_b32 s26, s26, 4')
        a('s_add_u32 s26, s26, s25')
        a('s_lshl_b32 s26, s26, 7')
        a(f's_add_u32 s25, s26, {hex(FL2)}')
        a('v_bfe_u32 v19, v1, 2, 2')
        a('v_and_b32 v22, 3, v1')
        a('v_lshlrev_b32 v22, 2, v22')
        a('v_lshl_add_u32 v19, v19, 7, v22')
    def flag(F):
        if not M2:
            if PM: a('s_mov_b64 exec, 1')
            t = lstore([f'buffer_store_dword v20, v21, s[52:55], s33 offen offset:{F}'])
            if PM: a('s_mov_b64 exec, -1')
            return t
        if F == F3: a(f's_add_u32 s33, s33, {FL3-FL2}')
        return masked([f'buffer_store_dword v20, v21, s[16:19], {"s24" if F == F1 else "s33"} offen sc1'], 1)
    def look(F):
        if not M2: return [f'buffer_load_dword v22, v{19 if F == F1 else 13}, s[52:55], s25 offen offset:{F} sc1']
        return [f'buffer_load_dword v22, v{19 if F == F1 else 13}, s[16:19], {"s97" if F == F1 else "s25"} offen sc1']
    a('s_waitcnt lgkmcnt(0)')
    lstore(['buffer_store_dwordx4 v[24:27], v17, s[16:19], s46 offen', 'buffer_store_dwordx4 v[28:31], v17, s[16:19], s47 offen'], P.get('h2s', M2))
    if P.get('h2c'):
        for j in range(8): a(f'v_mov_b32 v{108+j}, v{24+j}')
        a('v_mov_b32 v107, v17')
        a('s_mov_b32 s96, s46')
    stamp('h2st')
    a('v_bfe_u32 v4, v1, 4, 1')
    a('v_lshrrev_b32 v5, 5, v1')
    a('v_bfe_u32 v22, v1, 2, 2')
    a('v_and_b32 v23, 3, v1')
    a('v_lshlrev_b32 v23, 3, v23')
    a('v_lshl_add_u32 v3, v5, 3, v22')
    a('v_bfe_u32 v13, v1, 3, 1')
    a('v_lshlrev_b32 v16, 7, v3')
    a('v_add_u32 v16, v16, v23')
    a('v_lshl_add_u32 v16, v13, 6, v16')
    a('v_lshl_add_u32 v16, v4, 5, v16')
    a(f'v_mul_u32_u24 v17, {SEG[0][2]-SEG[0][1]}, v4')
    a(f'v_add_u32 v17, {SEG[0][1]}, v17')
    a(f'v_mul_u32_u24 v18, {P1U}, v4')
    for ct in range(4):
        a(f'v_xor_b32 v14, {32*ct}, v16')
        a(f'v_add_u32 v{246+ct}, v14, v17')
    a('v_mul_u32_u24 v3, 0x60, v3')
    a('v_add_u32 v3, v3, v23')
    a('v_add_u32 v18, v18, v3')
    a('v_lshl_add_u32 v3, v5, 2, v22')
    a('v_lshlrev_b32 v3, 7, v3')
    a('v_lshl_add_u32 v3, v13, 6, v3')
    a('v_lshl_add_u32 v3, v4, 5, v3')
    a('v_add_u32 v3, v3, v23')
    a('s_lshl_b32 s26, s3, 11')
    a('s_and_b32 s27, s3, 1')
    a('s_lshl_b32 s27, s27, 6')
    a('v_xor_b32 v3, s27, v3')
    a('v_add_u32 v240, s26, v3')
    a('v_xor_b32 v241, 64, v240')
    for i in range(1, 3):
        a(f'v_add_u32 v{240+2*i}, {65536*i}, v240')
        a(f'v_add_u32 v{241+2*i}, {65536*i}, v241')
    a(f's_mov_b32 s44, {fh(GC2)}'); a(f's_mov_b32 s45, {fh(GC2)}')
    a(f'v_mov_b32 v2, {fh(GC1)}'); a(f'v_mov_b32 v3, {fh(GC1)}')
    a('s_lshl_b32 s27, s30, 2')
    a('s_add_u32 s27, s27, s3')
    a('s_lshl_b32 s28, s27, 15')
    a(f's_add_u32 s28, s28, {hex(H2)}')
    a('v_add_u32 v14, s28, v15')
    a('s_lshl_b32 s28, s98, 12')
    a('s_waitcnt vmcnt(0)'); vm.done = vm.issued
    stamp('h2dr')
    flag(F1)
    while early: early.popleft()()
    NS0 = min(7, P.get('ns0', 0) + NSY)
    for k in range(NSY, NS0): p2dma(k)
    a('s_mul_i32 s29, s27, 112')
    AN = M2 or P.get('an', 1)
    AP = 1024 if AN else YP
    if AN:
        a('s_lshl_b32 s47, s31, 2')
        a('s_add_u32 s47, s47, s29')
        a('s_lshl_b32 s47, s47, 10')
        a(f's_add_u32 s47, s47, {hex(ACT)}')
    else:
        a('s_lshl_b32 s47, s3, 4')
        a('s_add_u32 s47, s47, s31')
        a(f's_mul_i32 s47, s47, {4*YP}')
        a('s_lshl_b32 s4, s30, 10')
        a(f's_add_u32 s4, s4, {hex(YT)}')
        a('s_add_u32 s47, s47, s4')
    a('s_mul_i32 s46, s31, 3')
    a('s_add_u32 s46, s46, s29')
    a('s_lshl_b32 s46, s46, 10')
    a(f's_add_u32 s46, s46, {hex(ACT + 64*1024)}')
    a('s_lshr_b32 s39, s32, 3')
    a('s_and_b32 s35, s39, 1')
    a(f's_and_b32 s34, s39, {P.get("wrot", 0)}')
    a('s_and_b32 s24, s32, 7')
    a('s_lshl_b32 s24, s24, 7')
    if RL:
        a(f's_add_u32 s8, s58, {hex(WD2)}')
        a('s_addc_u32 s9, s59, 0')
        a('s_mul_i32 s24, s24, 1792')
    a(f's_mul_i32 s37, s3, {12*WS_}')
    a('s_add_u32 s37, s37, s24')
    a(f's_add_u32 s30, s37, {76*WS_}')
    a(f's_mul_i32 s36, s34, {3*WS_}')
    a('s_add_u32 s37, s37, s36')
    a(f's_add_u32 s37, s37, {64*WS_}')
    a(f's_mul_i32 s38, s3, {16*WS_}')
    a('s_add_u32 s38, s38, s24')
    a(f's_add_u32 s31, s38, {16*WS_}')
    a(f's_mul_i32 s36, s34, {4*WS_}')
    a('s_add_u32 s38, s38, s36')
    if AN:
        a(f's_mul_i32 s4, s39, {224*1024}')
        a('s_lshl_b32 s6, s3, 14')
        a('s_add_u32 s6, s6, s4')
        a(f's_add_u32 s6, s6, {hex(ACT)}')
    else:
        a('s_lshl_b32 s6, s35, 3')
        a('s_add_u32 s6, s6, s3')
        a(f's_mul_i32 s6, s6, {16*YP}')
        a('s_add_u32 s6, s6, s4')
    a(f's_add_u32 s42, s6, {16*AP}')
    a(f's_mul_i32 s36, s34, {4*AP}')
    a('s_add_u32 s6, s6, s36')
    a(f's_mul_i32 s4, s39, {224*1024}')
    a(f's_mul_i32 s5, s3, {12*1024}')
    a('s_add_u32 s5, s5, s4')
    a(f's_add_u32 s5, s5, {hex(ACT + 64*1024)}')
    a(f's_add_u32 s41, s5, {12*1024}')
    a(f's_mul_i32 s36, s34, {3*1024}')
    a('s_add_u32 s5, s5, s36')
    a('s_lshl_b32 s39, s39, 16')
    a('s_and_b32 s24, s32, 7')
    a('s_lshl_b32 s24, s24, 7')
    a('s_add_u32 s39, s39, s24')
    a('v_bfe_u32 v4, v1, 1, 2')
    a('v_and_b32 v5, 1, v1')
    a('v_lshlrev_b32 v5, 2, v5')
    a(f'v_lshl_add_u32 v4, v4, {7 if M2 else 4}, v5')
    a('s_lshl_b32 s35, s35, 3')
    a('v_add_u32 v13, s35, v4')
    a('s_cmp_ge_u32 s3, 2')
    for r, (reg0, reg1, dist) in enumerate(((250, 16, 112*1024), (251, 17, 112*1024 if AN else 64*YP))):
        a(f's_cselect_b32 s36, {dist}, 0')
        a(f'v_add_u32 v{reg0}, s36, v15')
        a(f's_cselect_b32 s36, 0, {dist}')
        a(f'v_add_u32 v{reg1}, s36, v15')
    a('v_lshlrev_b32 v73, 7, v1')
    a('s_lshl_b32 s34, s2, 2')
    a('s_add_u32 s34, s34, s3')
    a(f's_mul_i32 s34, s34, {14*128}')
    poll('f1', look(F1), [22], mask=0xffff)
    stamp('f1ok'); raw(3, 's51')
    htok = {}
    def h2load(ks):
        htok[ks] = vm.issue(f'buffer_load_dwordx4 a[{4*ks}:{4*ks+3}], v14, s[16:19], s28 offen offset:{1024*(ks&3)} sc1')
        if (ks & 3) == 3:
            a('s_add_u32 s28, s28, 0x1000'); a('s_and_b32 s28, s28, 0x7fff')
    NH0 = P.get('nh0', 8)
    for ks in range(NH0): h2load(ks)
    slow(4)
    a('s_barrier')
    stamp('b0')
    wtok, atok = {}, {}
    def wd0(i):
        so = 's37' if i < 12 else 's38'
        a(f's_add_u32 m0, s26, {8192*WBL[i]}')
        if i not in (0, 12): a(f's_add_u32 {so}, {so}, {WS_}')
        vm.issue(f'buffer_load_dwordx4 v8, s[8:11], {so} offen lds')
    def wd1(i):
        wtok[i] = vm.issue(f'buffer_load_dwordx4 v9, s[8:11], {"s37" if i < 12 else "s38"} offen offset:1024 lds')
    def wreg(i): return ('v', 72 + 8*i) if i < 5 else ('a', 224 + 8*(i-5)) if i < 8 else ('v', AR + 8*(i % 3))
    def wread(i, mt, jj):
        kind, d = wreg(i); ad = 8192*WBL[i]
        return f'ds_read_b64_tr_b16 {kind}[{d+4*mt+2*jj}:{d+4*mt+2*jj+1}], v{240+2*(ad>>16)+mt} offset:{(ad & 0xffff)+1024*jj}'
    def abase(i): return 128 + 8*i if i < 12 else 8*(i-12)
    def act0(i):
        b = abase(i)
        if i < 12:
            if i and i % 4 == 0: a('s_add_u32 s5, s5, 0x1000')
            vm.issue(f'buffer_load_dwordx4 a[{b}:{b+3}], v250, s[16:19], s5 offen offset:{1024*(i & 3)} sc1')
        else:
            if i > 12: a(f's_add_u32 s6, s6, {AP}')
            vm.issue(f'buffer_load_dwordx4 a[{b}:{b+3}], v251, s[16:19], s6 offen sc1')
    def act1(i):
        b = abase(i)
        if i < 12: atok[i] = vm.issue(f'buffer_load_dwordx4 a[{b+4}:{b+7}], v16, s[16:19], s5 offen offset:{1024*(i & 3)} sc1')
        else: atok[i] = vm.issue(f'buffer_load_dwordx4 a[{b+4}:{b+7}], v17, s[16:19], s6 offen sc1')
    valu = deque()
    AR, NA = 24, 6
    ACC1, ACC2 = 192, 128
    pipe = LdsPipe(a)
    steps = [(0, k, ct) for k in range(32) for ct in range(2)] + [(0, k, 2) for k in range(32)] + [(1, k, ct) for k in range(32) for ct in range(4)]
    tok = {}; nxt = [0]
    def rd(n):
        ps, k, ct = steps[n]; d = AR + 4*(n % NA)
        for jj in range(2):
            b, off = (18, (16*k + 4*jj)*96 + 32*ct) if ps == 0 else (246+ct, 2048*(k % 15) + 512*jj)
            tok[n] = pipe.issue(f'ds_read_b64_tr_b16 v[{d+2*jj}:{d+2*jj+1}], v{b} offset:{off}')
    for n in range(NA-1): rd(n)
    nxt[0] = NA-1
    J = dict(h=NH0, p=NS0, w=0, half=False, a=0, ahalf=False, pmax=15, wmax=0, f2=False, lastp=-99)
    stg = {}
    def wfree(i): return i < J['wmax'] and (not 12 <= i < 20 or stg.get(i - 12, 1 << 30) <= pipe.done)
    def job(n):
        if J['half']: J['half'] = False; wd1(J['w']); J['w'] += 1; return 1
        if J['h'] < 32: h2load(J['h']); J['h'] += 1; return 1
        if J['p'] < J['pmax'] and n - J['lastp'] >= PE: p2dma(J['p']); J['p'] += 1; J['lastp'] = n; return 3
        if J['ahalf']: J['ahalf'] = False; act1(J['a']); J['a'] += 1; return 1
        if J['f2'] and J['a'] < 12 and (J['a'] <= J['w'] - P.get('wa', 8) or not wfree(J['w']) or J['w'] >= 28):
            act0(J['a']); J['ahalf'] = True; return 1
        if J['w'] < 28 and wfree(J['w']) and n >= P.get('ws', 112): wd0(J['w']); J['half'] = True; return 3
        return 0
    VB = P.get('vb', 40); PE = P.get('pe', 3); TE = P.get('te', 15); LW = P.get('lw', 2)
    stok = {}; sg = 0; credit = 0; nb = 0; ta = 0; fload = look(F2); tp = None
    F2P, F2C = P.get('f2p', 999), P.get('f2c', 204)
    def gelu_step(x, n):
        if isinstance(x, tuple):
            stok[x[1]] = vm.issue(f'buffer_store_dwordx4 v[{x[2]}:{x[2]+3}], v15, s[16:19], s46 offen offset:{1024*x[1]} sc1')
            stok['at'] = n
        else: a(x)
    for n, (ps, k, ct) in enumerate(steps):
        if n < 64 and ct == 0:
            while k not in htok: job(n)
            vm.need(htok[k])
        if tok[n] > pipe.done: pipe.need(tok[min(n + LW - 1, len(steps) - 1)])
        d = (ACC1, ACC2)[ps] + 16*ct; c = '0' if k == 0 else f'v[{d}:{d+15}]'
        sa = AR + 4*(n % NA)
        a(f'v_mfma_f32_32x32x16_bf16 v[{d}:{d+15}], v[{sa}:{sa+3}], a[{4*k}:{4*k+3}], {c}')
        if nxt[0] < len(steps): rd(nxt[0]); nxt[0] += 1
        if P.get('hard'):
            credit = min(credit, 0) + 10*(P['hard'] - 2 - (n + 1 < len(steps) and tok[n+1] > pipe.done))
        else: credit = min(credit + VB, P.get('cap', 40))
        if n in BARS:
            land, J['pmax'], J['wmax'] = BARS[n][0], J['pmax'], J['wmax']
            if land is not None:
                while land not in ptok:
                    if J['half']: job(n)
                    p2dma(J['p']); J['p'] += 1
                vm.need(ptok[land])
            a('s_barrier')
            J['pmax'], J['wmax'] = BARS[n][1:]
            nb += 1; stamp(f'b{nb}'); credit -= 10
        if n == P.get('wt', 999 if RL else 60):
            a('s_mov_b64 exec, 0x3fff')
            vm.issue('buffer_load_dword v72, v73, s[8:11], s34 offen')
            a('s_mov_b64 exec, -1')
        if n in (65, 97):
            if n == 65: stamp('p1a')
            else: stamp('p1end')
            for t in ((0, 1) if n == 65 else (2,)):
                o = 64 + 4*(t & 1)
                valu.extend(gelu_ops(ACC1+16*t, 48 + 8*(t & 1), o))
                valu.append(('store', t, o))
        if n == P.get('h2c', -1):
            vm.issue('buffer_store_dwordx4 v[108:111], v107, s[16:19], s96 offen sc1')
            a('s_add_u32 s96, s96, 0x1000')
            vm.issue('buffer_store_dwordx4 v[112:115], v107, s[16:19], s96 offen sc1')
        ta += 10
        if n == F2P and 'f2' in stok: tp = masked(fload, 0xff); ta = 0
        elif n == F2C and tp is not None:
            poll('f2', fload, [22], pre=tp, mask=0xff); J['f2'] = True
            stamp('f2ok'); raw(4, 's51')
        elif ta >= TE:
            cst = job(n)
            if cst: ta -= TE; credit -= 10*cst
            else: ta = TE
        if n >= P.get('stg', 160) and sg < 32 and pipe.outstanding() <= 13 and credit >= 10 and (not valu or n % 2):
            i, r = divmod(sg, 4)
            if i in wtok and (wtok[i] <= vm.done or vm.issued - wtok[i] >= P.get('sl', 8)):
                vm.need(wtok[i])
                t = pipe.issue(wread(i, r >> 1, r & 1)); sg += 1; credit -= 10
                if r == 3: stg[i] = t
        while valu and credit >= 10*(cost(valu[0]) if isinstance(valu[0], str) else 1):
            x = valu.popleft(); gelu_step(x, n)
            if isinstance(x, str): credit -= 10*cost(x)
        if 2 in stok and 'f2' not in stok and n >= stok['at'] + P.get('fdel', 24):
            vm.need(stok[2])
            stok['f2'] = flag(F2); print('F2 at', n, end='; ')
    while valu: gelu_step(valu.popleft(), 224)
    if 'f2' not in stok:
        vm.need(stok[2])
        stok['f2'] = flag(F2)
    assert J['p'] == 32 and J['h'] == 32
    print('w_down steps', J['w'], 'staged', sg, 'act steps', J['a'])
    while sg < 32:
        i, r = divmod(sg, 4)
        while i not in wtok: job(999)
        vm.need(wtok[i])
        stg[i] = pipe.issue(wread(i, r >> 1, r & 1)); sg += 1
    pipe.need(pipe.issued)
    if tp is None and P.get('fp', 2) < 4: tp = masked(fload, 0xff)
    a('s_mov_b32 s34, 1.0'); a('s_mov_b32 s35, 1.0')
    def geglu2(t):
        s = Asm(); geglu(s, ACC2+16*t, 48, 64 + 4*(t & 1))
        for j, l in enumerate(s.lines):
            a(l.replace('s[46:47]', 's[34:35]'))
            if j % P.get('ge', 8) == 3 and t < P.get('gt', 4): job(999)
        if t: a(f's_add_u32 s47, s47, {AP}')
        return lstore([f'buffer_store_dwordx4 v[{64+4*(t&1)}:{67+4*(t&1)}], v15, s[16:19], s47 offen'], P.get('a2s', 1))
    for t in range(4):
        if t == P.get('fp', 2) and not J['f2']:
            stamp('g1')
            poll('f2', fload, [22], pre=tp, mask=0xff); J['f2'] = True
            stamp('f2ok'); raw(4, 's51')
        if t == 3 and tp is None: tp = masked(fload, 0xff)
        ts3 = geglu2(t)
    stamp('g3')
    a('v_and_b32 v4, 31, v1')
    a('v_lshrrev_b32 v5, 5, v1')
    a('v_lshlrev_b32 v10, 10, v4')
    a('v_lshl_add_u32 v10, v5, 4, v10')
    a('s_lshr_b32 s46, s3, 1')
    a('s_lshl_b32 s46, s46, 15')
    a('s_and_b32 s47, s3, 1')
    a('s_lshl_b32 s47, s47, 6')
    a('s_add_u32 s39, s39, s46')
    a('s_add_u32 s39, s39, s47')
    a(f's_add_u32 s46, s39, {0 if XO else hex(X1)}')
    F3S = P.get('f3s', 4)
    if F3S < 0:
        vm.need(ts3)
        flag(F3)
    if not J['f2']:
        poll('f2', fload, [22], pre=tp, mask=0xff); J['f2'] = True
        stamp('f2ok'); raw(4, 's51')
        while J['a'] < P.get('a1b', 3): job(999)
    if M2: a(f's_add_u32 s25, s25, {FL3-FL2}')
    stamp('estart')
    pipe = LdsPipe(a); tok = {}
    def rd2(i):
        while i not in wtok: job(999)
        vm.need(wtok[i])
        for mt in range(2):
            for jj in range(2): tok[(i, mt)] = pipe.issue(wread(i, mt, jj))
    f3load = look(F3)
    for i in range(8): stg[i] = 0
    TL = P.get('tl', 2)
    F3C = P.get('f3c', 8); JE = P.get('je', 2); tp = None; g = 0; aq = deque()
    for i in range(28):
        stamp(f'e{i}')
        if F3S >= 0 and 's' not in stok and (i == F3S or atok.get(i, 1 << 30) > ts3):
            vm.need(ts3)
            stok['s'] = flag(F3); print('F3 at step', i)
        if i == F3C:
            while J['a'] < 12 or J['half']: job(999)
            if tp is None: tp = masked(f3load, 0xff)
            poll('f3', f3load, [22], pre=tp, mask=0xff)
            stamp('f3ok'); raw(5, 's51')
            for ii in range(12, 28): aq.extend([lambda ii=ii: act0(ii), lambda ii=ii: act1(ii)])
            for _ in range(P.get('a2b', 4)): aq.popleft()()
        if i == 22:
            vm.issue(f'buffer_load_dwordx4 v[72:75], v10, {XS}, s46 offen sc1')
            tx = vm.issue(f'buffer_load_dwordx4 v[76:79], v10, {XS}, s46 offen offset:32 sc1')
        if i >= 28 - TL: continue
        kind, d0 = wreg(i); b = abase(i)
        while i not in atok: (aq.popleft()() if i >= 12 else job(999))
        vm.need(atok[i])
        for mt in range(2):
            if i >= 8: pipe.need(tok[(i, mt)])
            for nt in range(2):
                d = ACC2 + 32*mt + 16*nt; c = '0' if i == 0 else f'v[{d}:{d+15}]'
                a(f'v_mfma_f32_32x32x16_bf16 v[{d}:{d+15}], {kind}[{d0+4*mt}:{d0+4*mt+3}], a[{b+4*nt}:{b+4*nt+3}], {c}')
                g += 1
                if mt == 0 and nt == 0 and 8 <= i+2 < 28: rd2(i+2)
                if g % JE == 0:
                    if aq and not J['half'] and (J['w'] >= 28 or J['w'] > i + P.get('wb', 28)): aq.popleft()()
                    elif tp is None and not J['half'] and J['a'] == 12 and (J['w'] >= 28 or i == F3C - 1): tp = masked(f3load, 0xff)
                    elif not job(999) and aq: aq.popleft()()
    PBL = [None, (WBL[8], WBL[9]), (WBL[10], WBL[11]), (WBL[12], WBL[13])]
    a('v_add_u32 v4, s26, v15')
    a('v_add_u32 v5, 0x10000, v4')
    def mm(i, t):
        kind, d0 = wreg(i); b = abase(i); mt, nt = t & 1, t >> 1; d = ACC2 + 32*mt + 16*nt
        while i not in atok: aq.popleft()()
        vm.need(atok[i]); pipe.need(tok[(i, mt)])
        a(f'v_mfma_f32_32x32x16_bf16 v[{d}:{d+15}], {kind}[{d0+4*mt}:{d0+4*mt+3}], a[{b+4*nt}:{b+4*nt+3}], v[{d}:{d+15}]')
    def park(t):
        d = ACC2 + 32*(t & 1) + 16*(t >> 1)
        return [f'ds_write_b128 v{(4, 5)[ad >> 16]}, v[{d+4*g}:{d+4*g+3}] offset:{ad & 0xffff}' for g in range(4) for ad in [8192*PBL[t][g >> 1] + 1024*(g & 1)]]
    wr = deque()
    for t in (1, 3, 2, 0):
        for i in range(28 - TL, 28):
            mm(i, t)
            if t != 3:
                for _ in range(4 // TL if TL else 0):
                    if wr: a(wr.popleft())
        if t: wr.extend(park(t))
    stamp('eend')
    while wr: a(wr.popleft())
    for t in range(1, 4):
        a(f's_xor_b32 s6, s26, {2048*t}')
        a(f's_add_u32 s7, s6, {8192*PBL[t][1]}')
        a(f's_add_u32 s6, s6, {8192*PBL[t][0]}')
        a(f'v_add_u32 v{88+2*t}, s6, v15')
        a(f'v_add_u32 v{89+2*t}, s7, v15')
    vm.need(tx)
    unpack8(a, 96, 124, 40); unpack8(a, 104, 116, 40); unpack8(a, 48, 72, 40); unpack8(a, 56, 76, 40)
    a('s_waitcnt lgkmcnt(0)')
    a('s_barrier')
    stamp('ebar')
    for i in range(1, 4):
        for g in range(4):
            a(f'ds_read_b128 v[{128+16*i+4*g}:{131+16*i+4*g}], v{88+2*i+(g >> 1)} offset:{1024*(g & 1)}')
    for i in range(1, 4):
        a(f's_waitcnt lgkmcnt({12-4*i})')
        for p in range(8): a(f'v_pk_add_f32 v[{128+2*p}:{129+2*p}], v[{128+2*p}:{129+2*p}], v[{128+16*i+2*p}:{129+16*i+2*p}]')
    for g in range(2):
        b = 128 + 8*g
        for r in range(4): a(f'v_permlane32_swap_b32 v{b+r}, v{b+4+r}')
        for p in range(4): a(f'v_pk_fma_f32 v[{b+2*p}:{b+2*p+1}], v[{b+2*p}:{b+2*p+1}], v[{96+8*g+2*p}:{97+8*g+2*p}], v[{48+8*g+2*p}:{49+8*g+2*p}]')
        for p in range(4): a(f'v_cvt_pk_bf16_f32 v{40+4*g+p}, v{b+2*p}, v{b+2*p+1}')
        a(f'buffer_store_dwordx4 v[{40+4*g}:{43+4*g}], v10, s[12:15], s39 offen offset:{32*g}' + ('', ' sc1', ' nt')[P.get('ost', 0)])
    a('s_or_b32 s4, s2, s3')
    a('s_cmp_lg_u32 s4, 0')
    a('s_cbranch_scc1 L_noep')
    a(f's_mov_b32 s4, {hex(EPOCH)}')
    masked(['buffer_store_dword v20, v21, s[16:19], s4 offen'], 1)
    a.label('L_noep')
    if P.get('probe') is not None:
        a('s_waitcnt vmcnt(0)')
        stamp('end')
        a('s_waitcnt lgkmcnt(0)')
        k = P['probe']
        if k == 300:
            a('v_mov_b32 v22, s60')
            a(f's_mov_b32 s36, {hex(0x140B000)}')
            a('s_cmp_lg_u32 s2, 0')
            a('s_cbranch_scc1 L_end')
            a('buffer_store_dword v22, v21, s[16:19], s36 offen')
            a('s_branch L_end')
        elif k == 301:
            a(f's_add_u32 s4, s58, {hex(0x140B000)}')
            a('s_addc_u32 s5, s59, 0')
            a('s_load_dword s92, s[4:5], 0')
            a('s_waitcnt lgkmcnt(0)')
            a('s_add_u32 s92, s92, 6000')
        elif k >= 200:
            a(f's_add_u32 s4, s58, {hex(EPOCH + 0x100)}')
            a('s_addc_u32 s5, s59, 0')
            a('s_load_dwordx4 s[92:95], s[4:5], 0')
            a('s_waitcnt lgkmcnt(0)')
            a('s_cmp_eq_u64 s[92:93], s[94:95]')
            a('s_cselect_b32 s92, 10000, 0' if k == 200 else 's_cselect_b32 s92, 0, 10000')
            a('s_add_u32 s92, s92, s70')
        elif k >= 100:
            a(f's_mov_b32 s36, {hex(0x140A000)}')
            a('buffer_load_dwordx4 v[24:27], v15, s[16:19], s36 offen sc1')
            a('s_waitcnt vmcnt(0)')
            for r, op in ((28, 'min'), (29, 'max')):
                a(f'v_{op}_u32 v{r}, v24, v25')
                a(f'v_{op}3_u32 v{r}, v{r}, v26, v27')
                for ctl in ('row_ror:1', 'row_ror:2', 'row_ror:4', 'row_ror:8'):
                    a(f'v_{op}_u32_dpp v{r}, v{r}, v{r} {ctl} row_mask:0xf bank_mask:0xf')
                for i in range(4): a(f'v_readlane_b32 s{4+i}, v{r}, {16*i}')
                a(f's_{op}_u32 s4, s4, s5'); a(f's_{op}_u32 s6, s6, s7'); a(f's_{op}_u32 s{r+62}, s4, s6')
            if k == 100: a('s_add_u32 s92, s90, 6000')
            elif k == 101:
                a('s_sub_u32 s92, s91, s90'); a('s_lshl_b32 s92, s92, 2'); a('s_add_u32 s92, s92, s90'); a('s_add_u32 s92, s92, 4000')
            else:
                a(f's_sub_u32 s92, s{60+2*(k-110)}, s90'); a('s_lshl_b32 s92, s92, 2'); a('s_add_u32 s92, s92, s90'); a('s_add_u32 s92, s92, 4000')
        elif k == 0:
            a('s_add_u32 s92, s60, 6000')
        else:
            a(f's_sub_u32 s92, s{60+2*k}, s60')
            a('s_lshl_b32 s92, s92, 2')
            a('s_add_u32 s92, s92, s60')
            a('s_add_u32 s92, s92, 4000')
        a.label('L_probe')
        a('s_memrealtime s[94:95]')
        a('s_waitcnt lgkmcnt(0)')
        a('s_sub_u32 s94, s94, s92')
        a('s_cmp_lt_i32 s94, 0')
        a('s_cbranch_scc1 L_probe')
    elif P.get('stamps'):
        a('s_waitcnt vmcnt(0)')
        stamp('end')
        a('s_cmp_lg_u32 s3, 0')
        a('s_cbranch_scc1 L_end')
        a('s_lshl_b32 s94, s2, 7')
        a(f's_add_u32 s94, s94, {hex(TS)}')
        a('s_add_u32 s92, s58, s94')
        a('s_addc_u32 s93, s59, 0')
        a('v_lshlrev_b32 v250, 2, v1')
        a('s_lshl_b32 s94, s2, 8')
        a(f's_add_u32 s94, s94, {hex(TS + 0x80000)}')
        a('s_add_u32 s94, s58, s94')
        a('s_addc_u32 s95, s59, 0')
        a('global_store_dword v250, v254, s[94:95]')
        a('s_mov_b64 exec, 1')
        if P.get('dbg'):
            a('s_load_dwordx2 s[94:95], s[0:1], 104')
        a('s_waitcnt lgkmcnt(0)')
        if P.get('dbg'):
            a('s_not_b32 s60, s60')
            for m in sorted(marks):
                a(f'v_mov_b32 v250, s{60+2*m}')
                a(f'global_atomic_umax v21, v250, s[94:95] offset:{4*m}')
                a('s_nop 1')
            a('s_not_b32 s60, s60')
        for m in sorted(marks):
            a(f'v_mov_b32 v250, s{60+2*m}')
            a(f'v_mov_b32 v251, s{61+2*m}')
            a(f'global_store_dwordx2 v21, v[250:251], s[92:93] offset:{8*m}')
            a('s_nop 1')
    a.label('L_end')
    a.label('L_last')
    a('s_endpgm')
    return dict(grid=256, block=256, lds=163840, vgpr=512, accum=256)

def tinyk(a, P, head):
    a('s_cmp_ge_u32 s2, 1')
    a('s_cbranch_scc1 L_tiny_end')
    a('s_memrealtime s[8:9]')
    a(f's_load_dwordx2 s[4:5], s[0:1], {A_WS}')
    a('s_waitcnt lgkmcnt(0)')
    a(f's_add_u32 s4, s4, {hex(0x140B000)}')
    a('s_addc_u32 s5, s5, 0')
    if head:
        a('v_mov_b32 v1, s8')
        a('v_mov_b32 v2, 0')
        a('global_store_dword v2, v1, s[4:5]')
    else:
        a('s_load_dword s6, s[4:5], 0')
        a('s_waitcnt lgkmcnt(0)')
        a('s_add_u32 s6, s6, 6000')
        a('s_mov_b32 s10, 100000')
        a.label('L_tiny')
        a('s_memrealtime s[8:9]')
        a('s_waitcnt lgkmcnt(0)')
        a('s_sub_u32 s10, s10, 1')
        a('s_cbranch_scc1 L_tiny_end')
        a('s_sub_u32 s8, s8, s6')
        a('s_cmp_lt_i32 s8, 0')
        a('s_cbranch_scc1 L_tiny')
    a.label('L_tiny_end')
    a('s_endpgm')
    return dict(grid=1, block=64, lds=0, vgpr=8, accum=8)
```

```python
from collections import deque
from asmlib import *
from k123 import fh, lo, hi, unpack8, ln_stats, LdsPipe, A_OUT, A_WS
from k45 import VmPipe, GC1, GC2, geglu
from cde import zipl, gelu_ops, cost

UT, YT, X1, H2, ACT = 0, 0x400000, 0x900000, 0, 0xD00000
MODT, EPOCH, GRP, MP, TS = 0x1400000, 0x1408000, 0x1410000, 0x1480000, 0x1500000
YP = 16384 + 128
XID, UH, F1, F2, F3 = 0, 128, 1024, 1536, 2048
P1U = 49280
SEG = [(0, 98432, 129152), (15, 0, 49280), (27, 24576, 73856)]
CB, CHS, KB, U0, U1 = 98432, 12992, 512, 4608, 8768
PB = CB + 2*CHS
PRM = PB + 32768
MPART = PRM + 6144
XG = 129152 + 112*128
YS = 1040
XH = XG + 8*YS
PS = 272
SPIN = 1 << 15
WBL = list(range(12)) + list(range(8)) + [13, 17, 14, 18, 12, 15, 16, 19]
BARS = {89: (5, 15, 0), 111: (9, 19, 20), 127: (13, 23, 20), 143: (17, 27, 20), 159: (21, 31, 20), 175: (25, 32, 20),
        191: (29, 32, 22), 207: (31, 32, 24), 223: (None, 32, 28)}
assert MPART + 512 <= 163840 and XH + 8192 <= 163840
def seg_of(k): return SEG[0] if k < 15 else SEG[1] if k < 27 else SEG[2]

def base(a, d, p, n):
    a(f's_mov_b32 s{d}, s{p}'); a(f's_mov_b32 s{d+1}, s{p+1}'); a(f's_mov_b32 s{d+2}, {hex(n)}')

FL1, FL2, FL3 = 0x1420000, 0x1428000, 0x1430000
def ln1p(a, X, D, T, s0):
    a(f'v_pk_add_f32 v[{T}:{T+1}], v[{X}:{X+1}], v[{X+2}:{X+3}]')
    a(f'v_pk_mul_f32 v[{T+2}:{T+3}], v[{X}:{X+1}], v[{X}:{X+1}]')
    a(f'v_pk_add_f32 v[{D}:{D+1}], v[{X+4}:{X+5}], v[{X+6}:{X+7}]')
    for p in range(1, 4):
        a(f'v_pk_fma_f32 v[{T+2}:{T+3}], v[{X+2*p}:{X+2*p+1}], v[{X+2*p}:{X+2*p+1}], v[{T+2}:{T+3}]')
    a(f'v_pk_add_f32 v[{T}:{T+1}], v[{T}:{T+1}], v[{D}:{D+1}]')
    a(f'v_add_f32 v{T+2}, v{T+2}, v{T+3}')
    a(f'v_add_f32 v{T}, v{T}, v{T+1}')
    for ctl in ('row_shr:1', 'row_shr:2', 'row_shr:4', 'row_shr:8'):
        for r in (T+2, T): a(f'v_add_f32_dpp v{r}, v{r}, v{r} {ctl} row_mask:0xf bank_mask:0xf bound_ctrl:1')
    for ctl in ('row_bcast:15 row_mask:0xa', 'row_bcast:31 row_mask:0xc'):
        for r in (T+2, T): a(f'v_add_f32_dpp v{r}, v{r}, v{r} {ctl} bank_mask:0xf')
    a(f'v_readlane_b32 s{s0+1}, v{T+2}, 63')
    a(f'v_readlane_b32 s{s0}, v{T}, 63')
    a(f'v_mov_b32 v{T+1}, {fh(1.0/512)}')
    a(f'v_mov_b32 v{T+3}, {fh(1e-5)}')
    a(f'v_mul_f32 v{T}, s{s0}, v{T+1}')
    a(f'v_fmac_f32 v{T+3}, s{s0+1}, v{T+1}')
    a(f'v_fma_f32 v{T+2}, -v{T}, v{T}, v{T+3}')
    a(f'v_max_f32 v{T+2}, {fh(1e-5)}, v{T+2}')
    a(f'v_rsq_f32 v{T+2}, v{T+2}')
    for p in range(4):
        a(f'v_pk_add_f32 v[{D+2*p}:{D+2*p+1}], v[{X+2*p}:{X+2*p+1}], v[{T}:{T+1}] op_sel:[0,0] op_sel_hi:[1,0] neg_lo:[0,1] neg_hi:[0,1]')
    for p in range(4):
        a(f'v_pk_mul_f32 v[{D+2*p}:{D+2*p+1}], v[{D+2*p}:{D+2*p+1}], v[{T+2}:{T+3}] op_sel:[0,0] op_sel_hi:[1,0]')
def ln2p(s, X, D, T, s0):
    ln_stats(s, X, D, T, s0)
    for p in range(4):
        s(f'v_pk_mul_f32 v[{D+2*p}:{D+2*p+1}], v[{D+2*p}:{D+2*p+1}], v[{T}:{T+1}] op_sel:[0,0] op_sel_hi:[1,0]')

def mega(a, P):
    M2 = P.get('m2', 0)
    DX = P.get('dx', 3)
    RL = P.get('rl', 0)
    RP = P.get('rp', 0)
    W2, PR = 0xB00000, (128 if RP else 3584)
    WD2, WS_ = 0x200000, (2048 if RL else 0x4000)
    H2 = 0xB00000 if M2 else 0
    marks = set()
    SETS = {1: 'start kv0 utst utok bbar end bend ytst ytok h2dr b0 p1end b9 estart f3ok eend',
            2: 'start kv0 kvN abar utst end ut1st uhok utok bbar bend pbar ytst ytack ytok mdok',
            3: 'start ytst ln1 ytack ytok end ybar hbar h2st h2dr f1ok b0 b1 b2 b3 p1end',
            6: 'start b0 p1a p1end b2 end b3 b4 b5 b6 b7 b8 b9 f2ok g3 estart',
            7: 'start estart e2 e4 e6 end f3ok e8 e10 e12 e14 e16 e20 e24 eend ebar',
            9: 'start b0 p1a p1end b5 end b9 estart eend cb0 cp1a cp1end cb5 cb9 cestart ceend',
            10: 'start bbar bend ybar hbar end g3 ebar x8 cbbar cbend cybar chbar x13 cg3 cebar',
            8: 'start x1 x2 x3 x4 end',
            5: 'start karg x2 x3 x4 end x6 x7 x8 x9 x10 x11 x12 kv0 issued pre',
            4: 'start p1end b5 b6 b7 end b8 g1 f2ok g3 estart e12 f3ok e20 eend ebar'}
    names = SETS[P.get('stamps', 1)].split()
    def stamp(name):
        if P.get('stamps') and name in names:
            slot = names.index(name)
            a(f's_memrealtime s[{60+2*slot}:{61+2*slot}]'); marks.add(slot)
        if P.get('stamps') and 'c' + name in names:
            slot = names.index('c' + name)
            a(f's_memtime s[{60+2*slot}:{61+2*slot}]'); marks.add(slot)
    def raw(i, sreg):
        if P.get('stamps'): a(f'v_writelane_b32 v254, {sreg}, {i}')
    vm = VmPipe(a)
    NT = ' nt' if P.get('nt', 1) else ''
    nst = [0]
    def lstore(lines, through=False):
        if through:
            for l in lines: t = vm.issue(l + ' sc1')
            return t
        return lstore2(lines)
    def lstore2(lines):
        n = nst[0]; nst[0] += 1
        a('s_cmp_eq_u32 s101, 0')
        a(f's_cbranch_scc1 L_ls{n}a')
        for l in lines: a(l + ' sc1')
        a(f's_branch L_ls{n}b')
        a.label(f'L_ls{n}a')
        for l in lines: t = vm.issue(l)
        a.label(f'L_ls{n}b')
        return t
    SL = P.get('sleep', 1); PM = 1
    def masked(lines, mask):
        if mask and PM: a(f's_mov_b64 exec, {hex(mask)}')
        for l in lines: t = vm.issue(l)
        if mask and PM: a('s_mov_b64 exec, -1')
        return t
    def poll(name, loads, tags, pre=None, mask=None):
        a(f's_mov_b32 s51, {SPIN}')
        if pre is not None:
            vm.need(pre)
            stamp(name + '1st')
        if mask and PM: a(f's_mov_b64 exec, {hex(mask)}')
        a(f's_branch L_{name}_chk' if pre is not None else f's_branch L_{name}_go')
        a.label(f'L_{name}')
        sl = P.get('ysl', SL) if name in ('yt', 'md') else SL
        if sl: a(f's_sleep {sl}')
        a.label(f'L_{name}_go')
        for l in loads: a(l)
        a('s_waitcnt vmcnt(0)')
        a.label(f'L_{name}_chk')
        a(f'v_cmp_ne_u32 vcc, s50, v{tags[0]}')
        for i, t in enumerate(tags[1:]): a(f'v_cmp_ne_u32 s[{92+2*i}:{93+2*i}], s50, v{t}')
        a('s_sub_u32 s51, s51, 1')
        a(f's_cbranch_scc1 L_{name}_ok')
        for i in range(len(tags)-1): a(f's_or_b64 vcc, vcc, s[{92+2*i}:{93+2*i}]')
        a(f's_cbranch_vccnz L_{name}')
        a.label(f'L_{name}_ok')
        if mask and PM: a('s_mov_b64 exec, -1')
        if pre is None: vm.done = vm.issued

    a('s_cmp_ge_u32 s2, 256')
    a('s_cbranch_scc1 L_end')
    stamp('start')
    if P.get('stamps'): a('v_mov_b32 v254, 0')
    a('s_load_dwordx16 s[64:79], s[0:1], 0')
    if P.get('cpf', 1):
        a('s_getpc_b64 s[4:5]')
        a.label('L_pc')
        a('v_lshlrev_b32 v3, 7, v0')
        a('v_mov_b32 v5, s5')
        a('v_add_co_u32 v4, vcc, s4, v3')
        a(f'v_cmp_gt_u32 s[6:7], {P.get("cpn", 16)}, v0')
        a('v_and_b32 v1, 63, v0')
        a('v_addc_co_u32 v5, vcc, 0, v5, vcc')
        a('s_and_b64 exec, exec, s[6:7]')
        a('s_cbranch_execz L_nopf')
        a('global_load_dword v169, v[4:5], off')
        a.label('L_nopf')
        a('s_mov_b64 exec, -1')
    else: a('v_and_b32 v1, 63, v0')
    a(f's_load_dwordx2 s[58:59], s[0:1], {A_WS}')
    a('s_load_dwordx8 s[80:87], s[0:1], 64')
    a(f's_load_dwordx2 s[56:57], s[0:1], {A_OUT}')
    a('v_lshrrev_b32 v2, 6, v0')
    a('v_readfirstlane_b32 s3, v2')
    a('s_mov_b32 s40, 0xffff0000')
    a('s_and_b32 s28, s2, 7')
    a('s_lshr_b32 s29, s2, 3')
    a('s_lshl_b32 s32, s28, 5')
    a('s_or_b32 s32, s32, s29')
    a('v_and_b32 v3, 31, v0')
    a('v_lshrrev_b32 v2, 5, v0')
    a('s_lshl_b32 s33, s29, 6')
    a('v_lshl_add_u32 v4, v2, 3, s33')
    a('s_lshl_b32 s33, s28, 7')
    a('v_lshl_add_u32 v5, v3, 2, s33')
    a('v_lshl_add_u32 v5, v4, 10, v5')
    a('v_subrev_u32 v4, 0xc00, v5')
    a('s_lshl_b32 s33, s28, 9')
    a('v_lshl_add_u32 v13, v3, 4, s33')
    a('s_movk_i32 s35, 0x1000')
    a('s_mov_b32 s15, 0x20000'); a('s_mov_b32 s27, 0x20000'); a('s_mov_b32 s19, 0x20000')
    a('s_mov_b32 s23, 0x20000'); a('s_mov_b32 s11, 0x20000'); a('s_mov_b32 s55, 0x20000')
    a('v_lshlrev_b32 v15, 4, v1')
    a('v_mov_b32 v21, 0')
    a('v_lshlrev_b32 v14, 4, v0')
    a('s_waitcnt lgkmcnt(0)')
    stamp('karg')
    if P.get('wso'):
        a(f's_add_u32 s58, s58, {hex(P["wso"] << 20)}')
        a('s_addc_u32 s59, s59, 0')
    base(a, 12, 70, 4096)
    base(a, 24, 68, 0x200000)
    tsh = vm.issue('buffer_load_dwordx4 v[48:51], v13, s[12:15], 0 offen' + NT)
    base(a, 12, 66, 0x200000)
    for i in range(3): vm.issue(f'buffer_load_dword v{24+i}, v4, s[12:15], 0 offen offset:{1024*i}' + NT)
    tk = {}
    for i in range(8):
        so = 's35' if i >= 4 else '0'
        vm.issue(f'buffer_load_dword v{27+i}, v5, s[12:15], {so} offen offset:{1024*(i&3)}' + NT)
        tk[i] = vm.issue(f'buffer_load_dword v{36+i}, v5, s[24:27], {so} offen offset:{1024*(i&3)}' + NT)
    stamp('issued')
    a(f's_add_u32 s4, s58, {hex(EPOCH)}')
    a('s_addc_u32 s5, s59, 0')
    a('s_load_dword s50, s[4:5], 0')
    if P.get('cpf', 1):
        a('s_getpc_b64 s[6:7]')
        a.label('L_pc2')
        a('s_lshl_b32 s36, s29, 2')
        a('s_add_u32 s36, s36, s3')
        a('v_and_b32 v4, 1, v0')
        a('v_lshl_add_u32 v4, s36, 1, v4')
        a('v_min_u32 v4, (L_last-L_pc2)/128, v4')
        a('v_lshlrev_b32 v4, 7, v4')
        a('v_mov_b32 v5, s7')
        a('v_add_co_u32 v4, vcc, s6, v4')
        a('v_addc_co_u32 v5, vcc, 0, v5, vcc')
        a('s_mov_b64 exec, 3')
        vm.issue('global_load_dword v168, v[4:5], off')
        a('s_mov_b64 exec, -1')
    if P.get('kvbar', 1): a('s_barrier')
    a('s_lshl_b32 s33, s32, 2')
    a('s_add_u32 s6, s74, s33')
    a('s_addc_u32 s7, s75, 0')
    a('s_load_dword s34, s[6:7], 0')
    a('s_lshl_b32 s33, s32, 13')
    SK = {}
    def skload():
        base(a, 12, 72, 0x200000)
        a('s_lshl_b32 s36, s32, 13')
        vm.issue('buffer_load_dwordx4 v[146:149], v14, s[12:15], s36 offen' + NT)
        a('s_add_u32 s36, s36, 0x1000')
        SK['t'] = vm.issue('buffer_load_dwordx4 v[150:153], v14, s[12:15], s36 offen' + NT)
    if P.get('skat', 0) == 0: skload()
    a('s_mul_i32 s30, s28, 6')
    a('s_lshr_b32 s31, s29, 2')
    a('s_add_u32 s30, s30, s31')
    a('s_and_b32 s31, s29, 3')
    a('s_lshl_b32 s46, s30, 2')
    a('s_or_b32 s46, s46, s31')
    a('s_lshl_b32 s47, s31, 2')
    a('s_or_b32 s47, s47, s3')
    a('v_and_b32 v16, 1, v0')
    a('v_lshrrev_b32 v17, 3, v1')
    a('v_and_b32 v6, 7, v1')
    a('v_mul_u32_u24 v242, 0x6000, v17')
    a('v_lshl_add_u32 v242, v6, 4, v242')
    a('v_lshlrev_b32 v243, 3, v17')
    a('s_lshl_b32 s36, s3, 11')
    a('s_add_u32 s33, s33, s36')
    WM = {}
    def wmload():
        base(a, 12, 84, 1024)
        a('s_lshl_b32 s36, s47, 6')
        tc = vm.issue('buffer_load_dwordx2 v[144:145], v243, s[12:15], s36 offen')
        base(a, 12, 86, 512*6144)
        a('s_cmp_lt_u32 s29, 24')
        a('s_cselect_b32 s14, s14, 0')
        a('s_lshr_b32 s36, s46, 2')
        a('s_lshl_b32 s36, s36, 7')
        a(f's_mul_i32 s37, s47, {32*6144}')
        a('s_add_u32 s36, s36, s37')
        twm = []
        for r in range(4):
            twm.append(vm.issue(f'buffer_load_dwordx4 v[{128+4*r}:{131+4*r}], v242, s[12:15], s36 offen' + NT))
            if r < 3: a('s_add_u32 s36, s36, 0x1800')
        WM.update(tc=tc, twm=twm)
    if P.get('wat', 3) == 0: wmload()
    if M2:
        a('s_and_b32 s30, s2, 1')
        a('s_lshl_b32 s30, s30, 3')
        a('s_and_b32 s98, s29, 7')
        a('s_or_b32 s30, s30, s98')
        a('s_bfe_u32 s31, s2, 0x20001')
        a('s_lshl_b32 s31, s31, 2')
        a('s_lshr_b32 s36, s2, 6')
        a('s_or_b32 s31, s31, s36')
        a('s_lshl_b32 s36, s36, 1')
        a('s_add_u32 s98, s98, s36')
    else:
        a('s_lshr_b32 s30, s32, 4')
        a('s_and_b32 s31, s32, 15')
        a(f's_and_b32 s98, s30, {P.get("prot", 0)}')
        a('s_lshl_b32 s98, s98, 2')
        if P.get('xrot', 1): a('s_add_u32 s98, s98, s28')
    a('s_and_b32 s98, s98, 7')
    a('s_lshr_b32 s38, s3, 1')
    a('s_and_b32 s39, s3, 1')
    a('s_cmp_eq_u32 s38, 0')
    a('s_cselect_b32 s20, s78, s80')
    a('s_cselect_b32 s21, s79, s81')
    a(f's_mov_b32 s22, {512*3584 if not P.get("now") else 0}')
    base(a, 8, 82, 1792*1024 if not P.get('now') else 0)
    base(a, 16, 58, TS)
    a('s_lshl_b32 s36, s28, 12')
    a(f's_add_u32 s36, s36, {hex(GRP)}')
    a('s_add_u32 s52, s58, s36')
    a('s_addc_u32 s53, s59, 0')
    a('s_movk_i32 s54, 0x1000')
    a('s_cmp_eq_u32 s3, 3')
    a('s_cselect_b32 s37, 0, 0x70000000')
    a('v_mov_b32 v22, s37')
    a('s_lshl_b32 s36, s29, 7')
    vm.issue('buffer_load_dword v158, v22, s[52:55], s36 offen')
    a('s_lshl_b32 s36, s46, 6')
    a(f's_add_u32 s36, s36, {hex(MODT)}')
    if P.get('mdt', 1): vm.issue('buffer_load_dword v159, v22, s[16:19], s36 offen')
    if M2 and P.get('ft', 1):
        a('s_lshl_b32 s36, s30, 4')
        a('s_lshr_b32 s37, s32, 4')
        a('s_lshl_b32 s37, s37, 4')
        a('s_sub_u32 s37, s37, s36')
        a('s_add_u32 s37, s37, 0x100')
        a('v_lshrrev_b32 v4, 2, v1')
        a('v_min_u32 v5, 1, v4')
        a('v_mul_lo_u32 v5, v5, s37')
        a('v_max_u32 v4, 1, v4')
        a('v_subrev_u32 v4, 1, v4')
        a('v_lshl_add_u32 v5, v4, 8, v5')
        a('v_and_b32 v4, 3, v1')
        a('v_add_u32 v5, v5, v4')
        a('s_lshl_b32 s37, s3, 2')
        a('s_add_u32 s36, s36, s37')
        a('v_add_lshl_u32 v5, v5, s36, 7')
        a(f's_mov_b32 s36, {hex(FL1)}')
        a('s_mov_b64 exec, 0xfff')
        vm.issue('buffer_load_dword v156, v5, s[16:19], s36 offen')
        a('s_mov_b64 exec, -1')
    a('s_lshl_b32 s36, s32, 13')
    a('s_lshl_b32 s37, s46, 11')
    a(f's_add_u32 s37, s37, {hex(MP)}')
    a('s_cmp_eq_u32 s3, 1')
    a(f's_cselect_b32 s37, s37, {hex(TS)}')
    a('s_cselect_b32 s44, 15, 63')
    a('s_cmp_eq_u32 s3, 2')
    a('s_cselect_b32 s37, s36, s37')
    a('v_and_b32 v4, s44, v1')
    a('v_lshlrev_b32 v4, 7, v4')
    if P.get('utt', 1): vm.issue('buffer_load_dword v157, v4, s[16:19], s37 offen' + (' nt' if P.get('ntu', 0) else ''))
    if P.get('tlb', 0) == 1:
        a('v_lshl_add_u32 v4, v1, 20, v22')
        for i, (p, n) in enumerate(((86, 512*6144), (84, 1024), (64, 0x200000), (78, 512*3584), (80, 512*3584), (82, 1792*1024), (56, 0x200000))):
            base(a, 12, p, n)
            vm.issue(f'buffer_load_dword v{160+i}, v4, s[12:15], 0 offen')
        vm.issue('buffer_load_dword v154, v4, s[16:19], 0 offen')
    for i in range(3):
        a(f'v_add_u32 v4, {64*i}, v1')
        a('v_mul_u32_u24 v5, 0x2aab, v4')
        a('v_lshrrev_b32 v5, 16, v5')
        a(f'v_mul_u32_u24 v5, {3584-96}, v5')
        a(f'v_lshl_add_u32 v{10+i}, v4, 4, v5')
        if i: a(f'v_subrev_u32 v{10+i}, {1024*i}, v{10+i}')
    a(f's_mul_i32 s41, s39, {32*3584}')
    a('s_mul_i32 s43, s31, 96')
    a('s_add_u32 s41, s41, s43')
    a('s_add_u32 s41, s41, 0x800')
    a('s_mul_i32 s43, s39, 3072')
    a(f's_mul_i32 s42, s38, {P1U}')
    a('s_add_u32 s42, s42, s43')
    a(f's_add_u32 s99, s41, {512*3584}')
    a(f's_mul_i32 s36, s98, {64*3584}')
    a('s_add_u32 s41, s41, s36')
    def step(reg, inc, lim, span):
        a(f's_add_u32 {reg}, {reg}, {inc}')
        a(f's_cmp_eq_u32 {reg}, {lim}')
        a(f's_cselect_b32 s36, {span}, 0')
        a(f's_sub_u32 {reg}, {reg}, s36')
    early = deque()
    def p1dma(m, i):
        if i == 0: a(f's_add_u32 m0, s42, {6144*m}')
        vm.issue(f'buffer_load_dwordx4 v{10+i}, s[20:23], s41 offen offset:{1024*i} lds')
        if i == 2 and m < 7: step('s41', 64*3584, 's99', 512*3584)
    for m in range(8):
        for i in range(3): early.append(lambda m=m, i=i: p1dma(m, i))
    for _ in range(P.get('e0', 0)): early.popleft()()
    a('v_lshrrev_b32 v4, 3, v1')
    a('v_bfe_u32 v5, v1, 4, 1')
    a('v_lshlrev_b32 v5, 2, v5')
    a('v_xor_b32 v5, v5, v6')
    a('v_lshlrev_b32 v5, 4, v5')
    a(f'v_lshl_add_u32 v8, v4, {7 if RL else 10}, v5')
    a(f'v_add_u32 v9, {0 if RL else 8192-1024}, v8')
    a('s_lshl_b32 s43, s38, 5')
    a('v_xor_b32 v5, s43, v5')
    a(f'v_mul_u32_u24 v7, {PR}, v4')
    a('v_add_u32 v7, v7, v5')
    a(f's_mul_i32 s48, s39, {8*PR}')
    a(f's_lshl_b32 s43, s31, {16 if RP else 7}')
    a('s_add_u32 s48, s48, s43')
    if RP:
        a('s_lshl_b32 s43, s38, 20')
        a('s_add_u32 s48, s48, s43')
        a(f's_add_u32 s48, s48, {hex(W2)}')
    a('s_lshl_b32 s43, s39, 10')
    a(f's_mul_i32 s49, s38, {SEG[0][2]-SEG[0][1]}')
    a('s_add_u32 s49, s49, s43')
    a(f's_mul_i32 s38, s38, {P1U}')
    a('s_add_u32 s43, s43, s38')
    a('v_sub_u32 v4, 7, v2')
    a('v_xor_b32 v4, v4, v6')
    a('v_lshl_add_u32 v4, v3, 4, v4')
    a(f'v_lshlrev_b32 v4, 4, v4')
    a(f'v_add_u32 v120, {PB}, v4')
    a('v_lshrrev_b32 v4, 4, v1')
    a('v_xor_b32 v5, v4, v1')
    a('s_lshl_b32 s36, s3, 11')
    a(f's_add_u32 s36, s36, {PB}')
    a('v_lshl_add_u32 v124, v5, 4, s36')
    a('v_xor_b32 v125, 64, v124')
    a('v_lshrrev_b32 v4, 3, v1')
    a('v_lshlrev_b32 v5, 4, v6')
    a('v_lshl_add_u32 v13, v4, 12, v5')
    a('s_lshl_b32 s36, s28, 2')
    a('s_add_u32 s36, s36, s3')
    a('s_lshl_b32 s36, s36, 16')
    a('s_sub_u32 s35, 31, s29')
    a('s_lshl_b32 s35, s35, 7')
    a('s_add_u32 s35, s35, s36')
    if 200 > P.get('probe', 0) >= 100:
        a('v_mov_b32 v22, s60')
        a('s_lshl_b32 s36, s2, 2')
        a(f's_add_u32 s36, s36, {hex(0x140A000)}')
        vm.issue('buffer_store_dword v22, v21, s[16:19], s36 offen sc1')
    def slow_gu():
        a('v_bfe_u32 v4, v1, 1, 3')
        a('v_and_b32 v5, 1, v4')
        a('v_lshlrev_b32 v5, 9, v5')
        a(f'v_mul_u32_u24 v4, 3584, v4')
        a('v_add_u32 v4, v4, v5')
        a('v_and_b32 v5, 1, v1')
        a('v_lshl_add_u32 v4, v5, 10, v4')
        a('v_bfe_u32 v5, v1, 4, 1')
        a('v_lshl_add_u32 v4, v5, 11, v4')
        a('s_lshl_b32 s36, s29, 1')
        a('s_and_b32 s37, s3, 1')
        a('s_add_u32 s36, s36, s37')
        a(f's_mul_i32 s36, s36, {8*3584}')
        a('s_mov_b32 exec_hi, 0')
        vm.issue('buffer_load_dword v252, v4, s[20:23], s36 offen offset:384')
        a('s_mov_b32 exec_hi, -1')
    def slow_d():
        a('v_lshlrev_b32 v4, 10, v1')
        a('s_and_b32 s36, s32, 31')
        a('s_lshl_b32 s36, s36, 2')
        a('s_add_u32 s36, s36, s3')
        a(f's_mul_i32 s36, s36, {14*1024}')
        a('s_mov_b64 exec, 0x3fff')
        vm.issue('buffer_load_dword v253, v4, s[8:11], s36 offen offset:384')
        a('s_mov_b64 exec, -1')
    def slow(at):
        if P.get('sg', 0) == at: slow_gu()
        if P.get('sd', 0) == at: slow_d()
    CR = 32 if P.get('cla', 1) == 1 else 244
    CP = {}
    def cpload():
        if not RL: return
        a('s_mul_i32 s44, s2, 7')
        a('s_lshl_b32 s45, s3, 1')
        a('s_add_u32 s44, s44, s45')
        a('s_cmp_eq_u32 s3, 3')
        a('s_cselect_b32 s45, 0, 1')
        a('s_add_u32 s45, s45, s44')
        for r in range(2):
            a(f's_lshl_b32 s36, s{44+r}, 10')
            CP['l'] = vm.issue(f'buffer_load_dwordx4 v[{CR+4*r}:{CR+3+4*r}], v15, s[8:11], s36 offen' + NT)
    stamp('pre')
    vm.need(tsh)
    lo(a, 52, 48); hi(a, 54, 48, 40); lo(a, 56, 49); hi(a, 58, 49, 40)
    lo(a, 53, 50); hi(a, 55, 50, 40); lo(a, 57, 51); hi(a, 59, 51, 40)
    vm.need(tk[0])
    stamp('kv0')
    if P.get('skat', 0) == 1: skload()
    if P.get('wat', 3) == 1: wmload()
    def xload():
        vm.issue('buffer_load_dwordx4 v[232:235], v15, s[12:15], s33 offen' + NT)
        return vm.issue('buffer_load_dwordx4 v[236:239], v15, s[12:15], s33 offen offset:1024' + NT)
    for q in range(3):
        lo(a, 60+2*q, 24+q); hi(a, 61+2*q, 24+q, 40)
    for r in range(8):
        vm.need(tk[r])
        lo(a, 66+2*r, 27+r); hi(a, 67+2*r, 27+r, 40)
        lo(a, 84+2*r, 36+r); hi(a, 85+2*r, 36+r, 40)
        d = 102+2*r
        a(f'v_pk_mul_f32 v[{d}:{d+1}], v[{60+2*r}:{61+2*r}], v[58:59]')
        a(f'v_pk_fma_f32 v[{d}:{d+1}], v[{62+2*r}:{63+2*r}], v[56:57], v[{d}:{d+1}]')
        a(f'v_pk_fma_f32 v[{d}:{d+1}], v[{64+2*r}:{65+2*r}], v[54:55], v[{d}:{d+1}]')
        a(f'v_pk_fma_f32 v[{d}:{d+1}], v[{66+2*r}:{67+2*r}], v[52:53], v[{d}:{d+1}]')
        a(f'v_pk_mul_f32 v[{d}:{d+1}], v[{d}:{d+1}], v[{84+2*r}:{85+2*r}]')
    if P.get('skat', 0) == 2: skload()
    if P.get('wat', 3) == 2: wmload()
    if P.get('cla', 1) == 0: cpload()
    a('s_mov_b64 s[96:97], s[64:65]')
    slow(1)
    stamp('kvN')
    for c in range(2):
        for jj in range(4):
            a(f'v_cvt_pk_bf16_f32 v{24+4*c+jj}, v{102+2*(7-2*jj)+c}, v{102+2*(6-2*jj)+c}')
        a(f'ds_write_b128 v120, v[{24+4*c}:{27+4*c}] offset:{128*c}')
    a('s_waitcnt lgkmcnt(0)')
    a('s_barrier')
    stamp('abar')
    for j in range(2): a(f'ds_read_b128 v[{104+4*j}:{107+4*j}], v{124+j} offset:{1024*j}')
    a('s_mul_i32 s50, s50, 1664525')
    a('s_add_u32 s50, s50, 1013904223')
    a('v_mov_b32 v20, s50')
    a('s_getreg_b32 s100, hwreg(HW_REG_XCC_ID, 0, 4)')
    if P.get('slow'): a('s_and_b32 s100, s29, 1')
    a('s_add_u32 s100, s100, s50')
    a('s_add_u32 s100, s100, 1')
    a('s_mov_b32 s24, s35')
    a('s_add_u32 s25, s35, 0x8000')
    ustores = [f'buffer_store_dwordx4 v[{104+4*j}:{107+4*j}], v13, s[16:19], s{24+j} offen' for j in range(2)]
    for j in range(2):
        a(f's_waitcnt lgkmcnt({1-j})')
        tus = vm.issue(ustores[j] + (' sc1' if P.get('uts', 0) else ''))
    a('s_lshl_b32 s7, s3, 7')
    a('s_lshl_b32 s36, s29, 2')
    a('s_add_u32 s7, s7, s36')
    a('v_mov_b32 v123, s100')
    if P.get('skat', 0) == 3: skload()
    if P.get('wat', 3) == 3: wmload()
    tsk = SK['t']
    stamp('utst')
    def rowflag():
        vm.need(tus)
        masked([f'buffer_store_dword v123, v21, s[52:55], s7 offen offset:{UH}'], 1)
    if P.get('ff', 0): rowflag()
    for i in range(4): a(f'v_mov_b32 v{40+i}, 0')
    a(f'v_add_u32 v14, {CB}, v14')
    a('v_cmp_gt_u32 vcc, 32, v0')
    a('s_and_saveexec_b64 s[36:37], vcc')
    a('s_cbranch_execz L_nz')
    a('ds_write_b128 v14, v[40:43]')
    a(f'ds_write_b128 v14, v[40:43] offset:{CHS}')
    a('v_cmp_gt_u32 vcc, 2, v0')
    a('s_and_b64 exec, exec, vcc')
    for c in range(2):
        a(f'ds_write_b128 v14, v[40:43] offset:{c*CHS+U0+4096}')
        a(f'ds_write_b128 v14, v[40:43] offset:{c*CHS+U1+4096}')
    a.label('L_nz')
    a('s_mov_b64 exec, s[36:37]')
    a('v_cmp_eq_u32 s[36:37], 0, v0')
    a('s_lshl_b32 s4, s34, 16')
    a('s_and_b32 s5, s34, 0xffff0000')
    a('s_mov_b32 s6, 0xffff')
    vm.need(tsk)
    stamp('skok')
    for c in range(2):
        kx = 146+4*c
        lo(a, 44, kx)
        a(f'v_add_f32 v44, s{4+c}, v44')
        a('v_cvt_pk_bf16_f32 v44, v44, v44')
        a(f'v_bfi_b32 v44, s6, v44, v{kx}')
        a(f'v_cndmask_b32 v{kx}, v{kx}, v44, s[36:37]')
        a(f'ds_write_b128 v14, v[{kx}:{kx+3}] offset:{c*CHS+KB}')
    if not P.get('ff', 0): rowflag()
    a('v_and_b32 v120, 31, v1')
    a('v_lshlrev_b32 v120, 2, v120')
    a('s_lshr_b32 s5, s29, 3')
    a('s_lshl_b32 s5, s5, 7')
    hloads = [f'buffer_load_dword v121, v120, s[52:55], 0 offen offset:{XID} sc1', f'buffer_load_dword v124, v120, s[52:55], s5 offen offset:{UH} sc1']
    a('v_mov_b32 v121, s50')
    tu = masked(hloads[1:], 0xffffffff)
    if P.get('wat', 3) == 4: wmload()
    tc, twm = WM['tc'], WM['twm']
    base(a, 12, 96, 0x200000)
    a('v_lshrrev_b32 v4, 1, v6')
    a('v_lshlrev_b32 v4, 11, v4')
    a('v_lshl_add_u32 v4, v16, 6, v4')
    a('v_lshrrev_b32 v5, 5, v1')
    a('v_lshl_add_u32 v4, v5, 5, v4')
    a('v_bfe_u32 v5, v1, 4, 1')
    a('v_lshl_add_u32 v126, v5, 4, v4')
    a('s_lshl_b32 s35, s32, 13')
    a('s_add_u32 s34, s35, 0x1000')
    a('v_lshlrev_b32 v125, 4, v0')
    vm.need(tc)
    lo(a, 44, 144); hi(a, 45, 144, 40); lo(a, 46, 145); hi(a, 47, 145, 40)
    for r in range(4): a(f'v_mul_f32 v{48+r}, {fh(-1.4426950408889634)}, v{44+r}')
    for r in range(4): a(f'v_exp_f32 v{48+r}, v{48+r}')
    for r in range(4): a(f'v_add_f32 v{48+r}, 1.0, v{48+r}')
    for r in range(4): a(f'v_rcp_f32 v{48+r}, v{48+r}')
    for r in range(4): a(f'v_mul_f32 v{44+r}, v{44+r}, v{48+r}')
    a('v_cvt_pk_bf16_f32 v48, v44, v45')
    a('v_cvt_pk_bf16_f32 v49, v46, v47')
    lo(a, 44, 48); hi(a, 45, 48, 40); lo(a, 46, 49); hi(a, 47, 49, 40)
    def stage1():
        for r in range(4):
            vm.need(twm[r])
            unpack8(a, 52, 128+4*r, 40)
            sel = 'op_sel:[0,0,0] op_sel_hi:[1,0,1]' if r % 2 == 0 else 'op_sel:[0,1,0] op_sel_hi:[1,1,1]'
            sp = 44 + (r & 2)
            for j in range(4):
                if r == 0:
                    a(f'v_pk_mul_f32 v[{60+2*j}:{61+2*j}], v[{52+2*j}:{53+2*j}], v[{sp}:{sp+1}] op_sel:[0,0] op_sel_hi:[1,0]')
                else:
                    a(f'v_pk_fma_f32 v[{60+2*j}:{61+2*j}], v[{52+2*j}:{53+2*j}], v[{sp}:{sp+1}], v[{60+2*j}:{61+2*j}] {sel}')
        for j in range(4): a(f'v_permlane32_swap_b32 v{60+j}, v{64+j}')
        for j in range(4): a(f'v_add_f32 v{60+j}, v{60+j}, v{64+j}')
        a('s_lshr_b32 s6, s46, 2')
        a('s_lshl_b32 s6, s6, 13')
        for j in range(2): a(f'v_permlane16_swap_b32 v{60+j}, v{62+j}')
        a('s_lshl_b32 s36, s47, 7')
        for j in range(2): a(f'v_add_f32 v{100+j}, v{60+j}, v{62+j}')
        a('v_mov_b32 v102, s50')
        a('v_mov_b32 v103, s50')
        for j in range(2): a(f'v_add_f32_dpp v{100+j}, v{100+j}, v{100+j} row_ror:8 row_mask:0xf bank_mask:0xf')
        a('s_add_u32 s6, s6, s36')
        a(f's_add_u32 s6, s6, {hex(MP)}')
        a('s_cmp_lt_u32 s29, 24')
        a(f's_cselect_b32 s6, s6, {hex(TS)}')
    if P.get('s1at', 1) == 0: stage1()
    a('s_lshr_b32 s36, s3, 1')
    a(f's_mul_i32 s36, s36, {CHS}')
    a('s_xor_b32 s38, s39, 1')
    a('s_lshl_b32 s38, s38, 6')
    a('s_add_u32 s36, s36, s38')
    a(f's_add_u32 s36, s36, {CB}')
    a('v_and_b32 v3, 15, v0')
    a('v_bfe_u32 v4, v0, 4, 2')
    a('v_lshlrev_b32 v5, 4, v4')
    a('v_lshl_add_u32 v22, v3, 5, v5')
    a(f's_add_u32 s38, s36, {KB-480}')
    a('v_add_u32 v22, s38, v22')
    a('v_and_b32 v23, 14, v3')
    a('v_lshlrev_b32 v23, 1, v23')
    a('v_sub_u32 v23, v5, v23')
    a(f'v_mul_u32_u24 v5, {U1-U0}, v16')
    a('v_sub_u32 v23, v23, v5')
    a(f's_add_u32 s38, s36, {U1+28}')
    a('v_add_u32 v16, s38, v23')
    for i in range(1, 4): a(f'v_add_u32 v{16+i}, {1024*i}, v16')
    a('v_bfe_u32 v5, v3, 1, 2')
    a('v_xor_b32 v5, v5, v4')
    a('v_lshl_add_u32 v5, v3, 2, v5')
    a('s_lshl_b32 s38, s3, 13')
    a(f's_add_u32 s38, s38, {PB}')
    a('v_lshl_add_u32 v23, v5, 4, s38')
    KP = P.get('kp', 1)
    if KP:
        a('s_waitcnt lgkmcnt(0)')
        a('s_barrier')
        for j in range(4, 32): a(f'ds_read_b128 v[{104+4*j}:{107+4*j}], v22 offset:{128*j}') if not 120 <= 104+4*j < 156 else None
    a(f's_mov_b32 s51, {SPIN}')
    a('s_mov_b32 s101, 0')
    vm.need(tu)
    stamp('ut1st')
    if PM: a('s_mov_b32 exec_hi, 0')
    a('s_branch L_uh_chk')
    a.label('L_uh')
    if SL: a(f's_sleep {SL}')
    a(f's_cmp_lg_u32 s51, {SPIN - P.get("idl", 48)}')
    a('s_cbranch_scc1 L_noid')
    a('s_cmp_lg_u32 s3, 0')
    a('s_cbranch_scc1 L_noid')
    a('s_lshl_b32 s36, s29, 2')
    a('s_mov_b64 exec, 1')
    a(f'buffer_store_dword v123, v21, s[52:55], s36 offen offset:{XID} sc1')
    a('s_mov_b64 exec, 0xffffffff' if PM else 's_mov_b64 exec, -1')
    a.label('L_noid')
    for l in hloads: a(l)
    a('s_waitcnt vmcnt(0)')
    a.label('L_uh_chk')
    a('v_cmp_ne_u32 vcc, s100, v124')
    a('v_subrev_u32 v122, s50, v121')
    a('v_subrev_u32 v122, 1, v122')
    a('s_cbranch_vccz L_uh_ok')
    a('v_cmp_lt_u32 vcc, 15, v122')
    a('v_cmp_ne_u32 s[92:93], s100, v121')
    a('s_sub_u32 s51, s51, 1')
    a('s_cbranch_scc1 L_uh_ok')
    a('s_cbranch_vccnz L_uh')
    a('s_cmp_eq_u64 s[92:93], 0')
    a('s_cbranch_scc1 L_uh_same')
    a('s_cmp_lg_u32 s101, 0')
    a('s_cbranch_scc1 L_uh_same')
    a('s_mov_b32 s101, 1')
    a('s_mov_b64 exec, -1')
    for l in ustores: a(l + ' sc1')
    a('s_waitcnt vmcnt(0)')
    a(f'buffer_store_dword v20, v21, s[52:55], s7 offen offset:{UH} sc1')
    if PM: a('s_mov_b32 exec_hi, 0')
    a.label('L_uh_same')
    a('v_cmp_ne_u32 vcc, s50, v124')
    a('v_cmp_ne_u32 s[92:93], s100, v124')
    a('s_nop 0')
    a('s_and_b64 vcc, vcc, s[92:93]')
    a('s_cbranch_vccnz L_uh')
    a.label('L_uh_ok')
    a('s_mov_b64 exec, -1')
    raw(6, 's51'); raw(0, 's101')
    stamp('uhok')
    tu = []
    for c in range(2):
        vm.issue(f'buffer_load_dwordx4 v[{72+4*c}:{75+4*c}], v125, s[16:19], s{35-c} offen sc1')
        tu.append(vm.issue(f'buffer_load_dword v{80+c}, v125, s[16:19], s{35-c} offen offset:16 sc1'))
    if P.get('s1at', 1) == 1: stage1()
    lstore(['buffer_store_dwordx4 v[100:103], v126, s[16:19], s6 offen'])
    if KP:
        for j in list(range(4)) + list(range(4, 13)): a(f'ds_read_b128 v[{104+4*j}:{107+4*j}], v22 offset:{128*j}')
    if P.get('xat', 1) == 1: tx = xload()
    if P.get('cla', 1) == 1: cpload()
    if RP:
        a('s_lshl_b32 s43, s2, 1')
        a('s_add_u32 s43, s43, s39')
        a('s_mul_i32 s36, s43, 3584')
        for r in range(2): CP['pl'] = vm.issue(f'buffer_load_dwordx4 v[{24+4*r}:{27+4*r}], v15, s[20:23], s36 offen offset:{1024*r}' + NT)
    def p2copy():
        a('v_lshrrev_b32 v4, 3, v1')
        a('v_lshlrev_b32 v4, 16, v4')
        a('v_lshl_add_u32 v4, v6, 4, v4')
        a('s_lshr_b32 s36, s3, 1')
        a('s_lshl_b32 s36, s36, 20')
        a('s_lshl_b32 s43, s43, 7')
        a('s_add_u32 s36, s36, s43')
        a(f's_add_u32 s36, s36, {hex(W2)}')
        vm.need(CP['pl'])
        vm.issue('buffer_store_dwordx4 v[24:27], v4, s[16:19], s36 offen sc1')
        a('s_add_u32 s36, s36, 0x80000')
        CP['s'] = vm.issue('buffer_store_dwordx4 v[28:31], v4, s[16:19], s36 offen sc1')
    def wdcopy():
        a('v_lshrrev_b32 v4, 3, v1')
        a(f'v_mul_u32_u24 v4, {1792*128}, v4')
        a('v_lshl_add_u32 v4, v6, 4, v4')
        vm.need(CP['l'])
        for r in range(2):
            a(f's_lshl_b32 s36, s{44+r}, 7')
            a(f's_add_u32 s36, s36, {hex(WD2)}')
            CP['s'] = vm.issue(f'buffer_store_dwordx4 v[{CR+4*r}:{CR+3+4*r}], v4, s[16:19], s36 offen sc1')
    a('s_movk_i32 s36, 0xff')
    a('v_cmp_ne_u32 vcc, s36, v0')
    for c in range(2):
        u = 72+4*c
        vm.need(tu[c])
        if c == 0: stamp('utok')
        a(f'v_cndmask_b32 v{80+c}, 0, v{80+c}, vcc')
        a(f'ds_write_b128 v14, v[{u}:{u+3}] offset:{c*CHS+U0}')
        for j in range(3): a(f'v_alignbit_b32 v{40+4*c+j}, v{u+j+1}, v{u+j}, 16')
        a(f'v_alignbit_b32 v{43+4*c}, v{80+c}, v{u+3}, 16')
        a(f'ds_write_b128 v14, v[{40+4*c}:{43+4*c}] offset:{c*CHS+U1}')
    for _ in range(P.get('e0b', 3)): early.popleft()()
    a('s_waitcnt lgkmcnt(0)')
    a('s_barrier')
    stamp('bbar')
    if RL and P.get('cpa', 10) < 0: wdcopy()
    a('s_lshl_b32 s6, s46, 11')
    a(f's_add_u32 s6, s6, {hex(MP)}')
    a('s_lshl_b32 s5, s46, 6')
    a(f's_add_u32 s5, s5, {hex(MODT)}')
    a('s_cmp_lt_u32 s29, 24')
    a(f's_cselect_b32 s7, s3, 1')
    a('s_cmp_eq_u32 s7, 0')
    a(f's_cselect_b32 s6, s6, {hex(TS)}')
    a(f's_cselect_b32 s5, s5, {hex(TS)}')
    a('s_lshr_b32 s36, s46, 5')
    a('s_cmp_eq_u32 s36, 1')
    a('s_cselect_b32 s4, 1.0, 0')
    a('s_cmp_eq_u32 s36, 4')
    a('s_cselect_b32 s4, 1.0, s4')
    ploads = [f'buffer_load_dwordx4 v[{240+4*j}:{243+4*j}], v15, s[16:19], s6 offen offset:{1024*j} sc1' for j in range(2)]
    tmi = []
    def mod_issue():
        for l in ploads: t = vm.issue(l)
        tmi.append(t)
    def mod_check():
        vm.need(tmi[0])
        a('s_cmp_lg_u32 s7, 0')
        a('s_cbranch_scc1 L_nomod')
        done = vm.done
        poll('mp', ploads, [242, 246], pre=0)
        vm.done = done
        a.label('L_nomod')
    st2 = deque(['v_add_f32 v240, v240, v244', 'v_add_f32 v241, v241, v245', 'v_mov_b32 v246, s50', 'v_mov_b32 v247, s50'])
    st2.extend(f'v_add_f32_dpp v{240+j}, v{240+j}, v{240+j} row_ror:8 row_mask:0xf bank_mask:0xf' for j in range(2))
    for op in ('v_permlane16_swap_b32', 'v_permlane32_swap_b32'):
        st2.extend(f'v_mov_b32 v{242+j}, v{240+j}' for j in range(2))
        st2.extend(f'{op} v{240+j}, v{242+j}' for j in range(2))
        st2.extend(f'v_add_f32 v{240+j}, v{240+j}, v{242+j}' for j in range(2))
    st2.extend(['v_cvt_pk_bf16_f32 v242, v240, v241', 'v_lshlrev_b32 v243, 3, v1', 'v_lshlrev_b32 v240, 16, v242', 'v_and_b32 v241, s40, v242',
                'v_add_f32 v240, s4, v240', 'v_add_f32 v241, s4, v241', 'v_cvt_pk_bf16_f32 v244, v240, v241', None,
                'v_mov_b32_dpp v245, v244 quad_perm:[1,1,3,3] row_mask:0xf bank_mask:0xf', None, 'store'])
    def st2_step():
        for _ in range(2):
            if not st2: return
            x = st2.popleft()
            if x is None: return
            if x == 'store': masked(['buffer_store_dwordx4 v[244:247], v243, s[16:19], s5 offen sc1'], 0x55)
            else: a(x)
    ACC, AR, BR = 40, 72, 104
    pipe = LdsPipe(a)
    reads = []
    for i in range(32):
        o = 32*((31-i) & 7); b = 16 + ((31-i) >> 3); d = AR + 4*(i & 7)
        reads.append((('A', i, 0), f'ds_read2_b32 v[{d}:{d+1}], v{b} offset0:{o} offset1:{o+1}'))
        reads.append((('A', i, 1), f'ds_read2_b32 v[{d+2}:{d+3}], v{b} offset0:{o+2} offset1:{o+3}'))
        if i < 4 and not KP:
            for t in range(8):
                j = 4*t+3-i
                reads.append((('B', j), f'ds_read_b128 v[{BR+4*j}:{BR+4*j+3}], v22 offset:{128*j}'))
    tok = {('B', j): 0 for j in range(32)} if KP else {}; nxt = [0]
    def pump(cur_step, maxn):
        n = 0
        while n < maxn and nxt[0] < len(reads) and pipe.outstanding() < 13:
            key, line = reads[nxt[0]]
            if key[0] == 'A' and key[1] >= cur_step + 8: break
            tok[key] = pipe.issue(line); nxt[0] += 1; n += 1
    pump(0, 12)
    if P.get('p2m', 0):
        a('v_lshlrev_b32 v4, 7, v1')
        a('s_lshl_b32 s36, s2, 1')
        a('s_add_u32 s36, s36, s39')
        a('s_mul_i32 s36, s36, 3584')
        masked(['buffer_load_dword v248, v4, s[20:23], s36 offen'], 0xffff)
    slow(2)
    pending = []; nm = 0
    NB = P.get('e1', 12); EV = P.get('ev', 9)
    for i in range(32):
        for t in range(i >> 2, 8):
            j = 4*t+3-i
            while ('B', j) not in tok or ('A', i, 1) not in tok:
                pipe.need(pipe.done + 2); pump(i, 2)
            pipe.need(max(tok[('A', i, 1)], tok[('B', j)]))
            d = ACC+4*t; c = '0' if i == 0 else f'v[{d}:{d+3}]'
            s = AR+4*(i & 7)
            a(f'v_mfma_f32_16x16x32_bf16 v[{d}:{d+3}], v[{s}:{s+3}], v[{BR+4*j}:{BR+4*j+3}], {c}')
            pump(i, 2 if i < 4 else 1)
            nm += 1
            if i > P.get('mfin', 8): st2_step()
            if nm >= P.get('e1s', 10) and nm % EV == 0 and NB > 0 and early:
                early.popleft()(); NB -= 1
        if pending and pipe.outstanding() < 14:
            t = pending.pop()
            pipe.issue(f'ds_write_b128 v23, v[{ACC+4*t}:{ACC+4*t+3}] offset:{1024*t}')
        if (i & 3) == 3: pending.append(i >> 2)
        if RL and i == P.get('cpa', 10): wdcopy()
        if RP and i == P.get('cpa', 10) + 1: p2copy()
        if i == P.get('mpi', 3): mod_issue()
        if i == P.get('mfin', 8): mod_check(); raw(7, 's51')
    for t in pending:
        pipe.issue(f'ds_write_b128 v23, v[{ACC+4*t}:{ACC+4*t+3}] offset:{1024*t}')
    assert not st2
    stamp('bend')
    a('v_lshlrev_b32 v4, 3, v0')
    a(f'v_add_u32 v4, {PRM}, v4')
    a('v_lshrrev_b32 v2, 1, v0')
    a('v_bfe_u32 v3, v0, 4, 2')
    a('v_xor_b32 v2, v2, v3')
    a('v_lshlrev_b32 v2, 4, v2')
    a('v_and_b32 v3, 1, v0')
    a('v_lshl_add_u32 v2, v3, 3, v2')
    a(f'v_add_u32 v2, {PB}, v2')
    a('v_lshlrev_b32 v3, 4, v0')
    a('v_and_b32 v5, 3, v0')
    a(f's_mul_i32 s38, s32, {YP}')
    a(f's_add_u32 s38, s38, {hex(YT)}')
    a(f'v_add_u32 v13, {PRM}, v15')
    a('s_and_b32 s36, s32, 7')
    if DX: a(f's_xor_b32 s36, s36, {DX}')
    a('s_lshl_b32 s36, s36, 1')
    a('s_and_b32 s37, s3, 1')
    a('s_or_b32 s36, s36, s37')
    a('s_lshl_b32 s36, s36, 6')
    a(f's_add_u32 s36, s36, {PRM+5120}')
    a('v_lshrrev_b32 v14, 5, v1')
    a('v_lshl_add_u32 v14, v14, 4, s36')
    if RL or RP: vm.need(CP['s'])
    if RL and P.get('wr2', 0):
        a('v_and_b32 v252, 7, v1')
        a(f'v_mul_u32_u24 v252, {1792*128}, v252')
        a('v_bfe_u32 v253, v1, 3, 1')
        a('v_lshl_add_u32 v252, v253, 7, v252')
        a('s_lshl_b32 s36, s44, 7')
        a(f's_add_u32 s36, s36, {hex(WD2)}')
        masked(['buffer_load_dword v253, v252, s[16:19], s36 offen sc1'], 0xffff)
    a('s_waitcnt lgkmcnt(0)')
    a('s_barrier')
    stamp('pbar')
    for j in range(4):
        for w in range(4):
            a(f'ds_read_b64 v[{72+8*j+2*w}:{73+8*j+2*w}], v2 offset:{8192*w+2048*j}')
        if j == 2: a('s_waitcnt lgkmcnt(8)')
    a('s_lshl_b32 s35, s3, 10')
    a(f's_add_u32 s35, s35, {hex(MODT)}')
    a('s_add_u32 s34, s35, 0x1000')
    a('s_add_u32 s4, s35, 0x2000')
    mloads = [f'buffer_load_dwordx4 v[{104+4*r}:{107+4*r}], v15, s[16:19], s{(35, 34, 4)[r]} offen sc1' for r in range(3)]
    TM = [None]
    if P.get('mde', 2) == 1:
        for l in mloads: TM[0] = vm.issue(l)
    for j in range(4):
        b = 72+8*j; q = 24+4*j
        if j: a(f's_waitcnt lgkmcnt({12-4*j})')
        a(f'v_pk_add_f32 v[{b}:{b+1}], v[{b}:{b+1}], v[{b+2}:{b+3}]')
        a(f'v_pk_add_f32 v[{b+4}:{b+5}], v[{b+4}:{b+5}], v[{b+6}:{b+7}]')
        a(f'v_mov_b32 v{q+2}, s50')
        a(f'v_mov_b32 v{q+3}, s50')
        a(f'v_cvt_pk_bf16_f32 v{q}, v{b}, v{b+4}')
        a(f'v_cvt_pk_bf16_f32 v{q+1}, v{b+1}, v{b+5}')
        tys = vm.issue(f'buffer_store_dwordx4 v[{q}:{q+3}], v3, s[16:19], s38 offen sc1')
        if j < 3: a('s_add_u32 s38, s38, 0x1000')
    stamp('ytst')
    a('v_mov_b32 v22, v4')
    a('v_mov_b32 v23, v14')
    a('v_mov_b32 v60, v5')
    slow(3)
    a('v_mov_b32 v5, v60')
    if P.get('mde', 2) == 2:
        for l in mloads: TM[0] = vm.issue(l)
    for _ in range(P.get('e2', 6)): early.popleft()()
    a('v_lshrrev_b32 v4, 2, v0')
    a(f'v_mul_u32_u24 v3, {2*YS}, v5')
    a('v_lshl_add_u32 v3, v4, 2, v3')
    a(f'v_add_u32 v3, {XG}, v3')
    a(f's_mul_i32 s46, s3, {2*YS}')
    a(f's_add_u32 s46, s46, {XG}')
    a('v_add_u32 v4, s46, v15')
    a('s_lshl_b32 s46, s3, 1')
    a('v_xor_b32 v5, s46, v6')
    a('v_lshlrev_b32 v5, 4, v5')
    a('v_lshl_add_u32 v5, v1, 7, v5')
    a(f'v_add_u32 v5, {XH}, v5')
    a('v_xor_b32 v16, 16, v5')
    a('v_lshrrev_b32 v17, 3, v1')
    a('v_xor_b32 v18, v17, v6')
    a('v_lshlrev_b32 v18, 4, v18')
    a('v_lshl_add_u32 v18, v17, 7, v18')
    a('s_lshl_b32 s46, s3, 11')
    a(f's_add_u32 s46, s46, {XH}')
    a('v_add_u32 v18, s46, v18')
    a('v_lshlrev_b32 v17, 9, v17')
    a('v_lshl_add_u32 v17, v6, 4, v17')
    a('s_lshr_b32 s46, s32, 2')
    a('s_lshl_b32 s46, s46, 15')
    a('s_and_b32 s47, s32, 3')
    a('s_lshl_b32 s47, s47, 7')
    a('s_add_u32 s46, s46, s47')
    a('s_lshl_b32 s47, s3, 13')
    a('s_add_u32 s46, s46, s47')
    a(f's_add_u32 s46, s46, {hex(H2)}')
    a('s_add_u32 s47, s46, 0x1000')
    XO = P.get('xo', 1)
    XS = 's[12:15]' if XO else 's[16:19]'
    base(a, 12, 56, 0x200000)
    a(f's_add_u32 s37, s33, {0 if XO else hex(X1)}')
    a('v_lshrrev_b32 v14, 2, v0')
    a(f'v_mul_u32_u24 v14, {YP}, v14')
    a('v_and_b32 v19, 3, v0')
    a('v_lshl_add_u32 v14, v19, 4, v14')
    a('s_lshl_b32 s24, s32, 6')
    a(f's_add_u32 s26, s24, {hex(YT)}')
    a(f's_add_u32 s27, s26, {64*YP}')
    a(f's_add_u32 s5, s26, {128*YP}')
    a(f's_add_u32 s6, s26, {192*YP}')
    X = (64, 160)
    vm.need(tx)
    subs = []
    for t in range(2):
        s = Asm(); unpack8(s, X[t], 232+4*t, 40); ln2p(s, X[t], X[t]+8, X[t]+16, 24+t)
        subs.append(s)
    zipl(a, *subs)
    stamp('ln1')
    yloads = [f'buffer_load_dwordx4 v[{24+4*j}:{27+4*j}], v14, s[16:19], s{(26, 27, 5, 6)[j]} offen sc1' for j in range(4)]
    MDE = P.get('mde', 2)
    def md_in():
        poll('md', mloads, [106, 110, 114], pre=TM[0])
        stamp('mdok'); raw(1, 's51')
        for r in range(3): a(f'ds_write_b64 v22, v[{104+4*r}:{105+4*r}] offset:{2048*r}')
    def md_use(extra):
        for i, off in enumerate((1024, 0, 2048)):
            a(f'ds_read_b128 v[{40+4*i}:{43+4*i}], v13 offset:{off}')
        for l in extra: a(l)
        for i, off in enumerate((4096, 3072)):
            a(f'ds_read_b128 v[{52+4*i}:{55+4*i}], v13 offset:{off}')
        a('ds_read_b128 v[124:127], v23')
        a('ds_read_b128 v[116:119], v23 offset:32')
        a(f's_waitcnt lgkmcnt({5+len(extra)})')
        unpack8(a, 128, 40, 40); unpack8(a, 136, 44, 40)
        for t in range(2):
            for p in range(4):
                d = X[t]+8+2*p
                a(f'v_pk_fma_f32 v[{d}:{d+1}], v[{d}:{d+1}], v[{128+2*p}:{129+2*p}], v[{136+2*p}:{137+2*p}]')
        a(f's_waitcnt lgkmcnt({4+len(extra)})')
        unpack8(a, 144, 48, 40)
        for t in range(2):
            for p in range(4):
                d = X[t]+8+2*p
                a(f'v_pk_mul_f32 v[{d}:{d+1}], v[{d}:{d+1}], v[{144+2*p}:{145+2*p}]')
        a('s_waitcnt lgkmcnt(0)')
        unpack8(a, 128, 52, 40); unpack8(a, 136, 56, 40)
    if MDE:
        md_in()
        a('s_waitcnt lgkmcnt(0)')
        a('s_barrier')
        md_use([])
    vm.need(tys)
    if P.get('yd'): a(f's_sleep {P["yd"]}')
    stamp('ytack')
    for l in yloads: ty = vm.issue(l)
    if not MDE:
        for l in mloads: TM[0] = vm.issue(l)
    poll('yt', yloads, [26, 30, 34, 38], pre=ty)
    stamp('ytok'); raw(2, 's51')
    for j in range(4):
        a(f'ds_write_b32 v3, v{24+4*j} offset:{256*j}')
        a(f'ds_write_b32 v3, v{25+4*j} offset:{256*j+YS}')
    if not MDE: md_in()
    a('s_waitcnt lgkmcnt(0)')
    a('s_barrier')
    stamp('ybar')
    yreads = ['ds_read_b128 v[24:27], v4', f'ds_read_b128 v[28:31], v4 offset:{YS}']
    if MDE:
        for l in yreads: a(l)
    ptok = {}
    def p2dma(k):
        a(f's_add_u32 m0, s49, {SEG[0][1] + 2048*(k % 15)}')
        if k and k % 4: a(f's_add_u32 s48, s48, {16*PR}')
        elif k: step('s48', 16*PR, 's100', 512*PR)
        ptok[k] = vm.issue('buffer_load_dwordx4 v7, s[16:19], s48 offen sc1 lds' if RP else 'buffer_load_dwordx4 v7, s[20:23], s48 offen lds')
    a(f's_add_u32 s100, s48, {512*PR}')
    a(f's_mul_i32 s36, s98, {64*PR}')
    a('s_add_u32 s48, s48, s36')
    for _ in range(P.get('e3', 3)): early.popleft()()
    NSY = P.get('nsy', 0)
    for k in range(NSY): p2dma(k)
    if MDE: a('s_waitcnt lgkmcnt(0)')
    else: md_use(yreads)
    subs = []
    for t in range(2):
        s = Asm(); x = X[t]
        unpack8(s, x+20, 24+4*t, 40)
        for p in range(4):
            s(f'v_pk_fma_f32 v[{x+2*p}:{x+2*p+1}], v[{x+8+2*p}:{x+9+2*p}], v[{x+20+2*p}:{x+21+2*p}], v[{x+2*p}:{x+2*p+1}]')
        for j in range(4): s(f'v_cvt_pk_bf16_f32 v{32+4*t+j}, v{x+2*j}, v{x+2*j+1}')
        s(f'buffer_store_dwordx4 v[{32+4*t}:{35+4*t}], v15, {XS}, s37 offen offset:{1024*t} sc1')
        unpack8(s, x, 32+4*t, 40)
        (ln1p if P.get('l1', 1) else ln2p)(s, x, x+8, x+16, 24+2*t)
        for p in range(4):
            s(f'v_pk_fma_f32 v[{x+8+2*p}:{x+9+2*p}], v[{x+8+2*p}:{x+9+2*p}], v[{128+2*p}:{129+2*p}], v[{136+2*p}:{137+2*p}]')
        for j in range(4): s(f'v_cvt_pk_bf16_f32 v{40+4*t+j}, v{x+8+2*j}, v{x+9+2*j}')
        s(f'ds_write_b128 v{(5, 16)[t]}, v[{40+4*t}:{43+4*t}]')
        subs.append(s)
    zipl(a, *subs)
    vm.issued += 2
    a('s_waitcnt lgkmcnt(0)')
    a('s_barrier')
    stamp('hbar')
    a('ds_read_b128 v[24:27], v18')
    a('ds_read_b128 v[28:31], v18 offset:1024')
    a('s_and_b32 s24, s32, 31')
    a('s_lshl_b32 s24, s24, 4')
    a('s_lshl_b32 s25, s3, 2')
    a('s_add_u32 s33, s24, s25')
    a('s_and_b32 s25, s30, 1')
    a('s_lshl_b32 s25, s25, 8')
    a('s_lshl_b32 s26, s3, 6')
    a('s_add_u32 s25, s25, s26')
    a('v_and_b32 v19, 15, v1')
    a('v_lshlrev_b32 v19, 2, v19')
    if M2:
        a('s_lshl_b32 s25, s3, 2')
        a('s_lshl_b32 s24, s32, 7')
        a('s_add_u32 s24, s24, s25')
        a(f's_add_u32 s24, s24, {hex(FL1)}')
        a('s_lshl_b32 s33, s30, 4')
        a('s_or_b32 s33, s33, s31')
        a('s_lshl_b32 s33, s33, 7')
        a('s_add_u32 s33, s33, s25')
        a(f's_add_u32 s33, s33, {hex(FL2)}')
        a('s_lshl_b32 s26, s30, 4')
        a('s_add_u32 s26, s26, s25')
        a('s_lshl_b32 s26, s26, 7')
        a(f's_add_u32 s97, s26, {hex(FL1)}')
        a('s_lshr_b32 s26, s32, 4')
        a('s_lshl_b32 s26, s26, 4')
        a('s_add_u32 s26, s26, s25')
        a('s_lshl_b32 s26, s26, 7')
        a(f's_add_u32 s25, s26, {hex(FL2)}')
        a('v_bfe_u32 v19, v1, 2, 2')
        a('v_and_b32 v22, 3, v1')
        a('v_lshlrev_b32 v22, 2, v22')
        a('v_lshl_add_u32 v19, v19, 7, v22')
    def flag(F):
        if not M2:
            if PM: a('s_mov_b64 exec, 1')
            t = lstore([f'buffer_store_dword v20, v21, s[52:55], s33 offen offset:{F}'])
            if PM: a('s_mov_b64 exec, -1')
            return t
        if F == F3: a(f's_add_u32 s33, s33, {FL3-FL2}')
        return masked([f'buffer_store_dword v20, v21, s[16:19], {"s24" if F == F1 else "s33"} offen sc1'], 1)
    def look(F):
        if not M2: return [f'buffer_load_dword v22, v{19 if F == F1 else 13}, s[52:55], s25 offen offset:{F} sc1']
        return [f'buffer_load_dword v22, v{19 if F == F1 else 13}, s[16:19], {"s97" if F == F1 else "s25"} offen sc1']
    a('s_waitcnt lgkmcnt(0)')
    lstore(['buffer_store_dwordx4 v[24:27], v17, s[16:19], s46 offen', 'buffer_store_dwordx4 v[28:31], v17, s[16:19], s47 offen'], P.get('h2s', M2))
    if P.get('h2c'):
        for j in range(8): a(f'v_mov_b32 v{108+j}, v{24+j}')
        a('v_mov_b32 v107, v17')
        a('s_mov_b32 s96, s46')
    stamp('h2st')
    a('v_bfe_u32 v4, v1, 4, 1')
    a('v_lshrrev_b32 v5, 5, v1')
    a('v_bfe_u32 v22, v1, 2, 2')
    a('v_and_b32 v23, 3, v1')
    a('v_lshlrev_b32 v23, 3, v23')
    a('v_lshl_add_u32 v3, v5, 3, v22')
    a('v_bfe_u32 v13, v1, 3, 1')
    a('v_lshlrev_b32 v16, 7, v3')
    a('v_add_u32 v16, v16, v23')
    a('v_lshl_add_u32 v16, v13, 6, v16')
    a('v_lshl_add_u32 v16, v4, 5, v16')
    a(f'v_mul_u32_u24 v17, {SEG[0][2]-SEG[0][1]}, v4')
    a(f'v_add_u32 v17, {SEG[0][1]}, v17')
    a(f'v_mul_u32_u24 v18, {P1U}, v4')
    for ct in range(4):
        a(f'v_xor_b32 v14, {32*ct}, v16')
        a(f'v_add_u32 v{246+ct}, v14, v17')
    a('v_mul_u32_u24 v3, 0x60, v3')
    a('v_add_u32 v3, v3, v23')
    a('v_add_u32 v18, v18, v3')
    a('v_lshl_add_u32 v3, v5, 2, v22')
    a('v_lshlrev_b32 v3, 7, v3')
    a('v_lshl_add_u32 v3, v13, 6, v3')
    a('v_lshl_add_u32 v3, v4, 5, v3')
    a('v_add_u32 v3, v3, v23')
    a('s_lshl_b32 s26, s3, 11')
    a('s_and_b32 s27, s3, 1')
    a('s_lshl_b32 s27, s27, 6')
    a('v_xor_b32 v3, s27, v3')
    a('v_add_u32 v240, s26, v3')
    a('v_xor_b32 v241, 64, v240')
    for i in range(1, 3):
        a(f'v_add_u32 v{240+2*i}, {65536*i}, v240')
        a(f'v_add_u32 v{241+2*i}, {65536*i}, v241')
    a(f's_mov_b32 s44, {fh(GC2)}'); a(f's_mov_b32 s45, {fh(GC2)}')
    a(f'v_mov_b32 v2, {fh(GC1)}'); a(f'v_mov_b32 v3, {fh(GC1)}')
    a('s_lshl_b32 s27, s30, 2')
    a('s_add_u32 s27, s27, s3')
    a('s_lshl_b32 s28, s27, 15')
    a(f's_add_u32 s28, s28, {hex(H2)}')
    a('v_add_u32 v14, s28, v15')
    a('s_lshl_b32 s28, s98, 12')
    a('s_waitcnt vmcnt(0)'); vm.done = vm.issued
    stamp('h2dr')
    flag(F1)
    while early: early.popleft()()
    NS0 = min(7, P.get('ns0', 0) + NSY)
    for k in range(NSY, NS0): p2dma(k)
    a('s_mul_i32 s29, s27, 112')
    AN = M2 or P.get('an', 1)
    AP = 1024 if AN else YP
    if AN:
        a('s_lshl_b32 s47, s31, 2')
        a('s_add_u32 s47, s47, s29')
        a('s_lshl_b32 s47, s47, 10')
        a(f's_add_u32 s47, s47, {hex(ACT)}')
    else:
        a('s_lshl_b32 s47, s3, 4')
        a('s_add_u32 s47, s47, s31')
        a(f's_mul_i32 s47, s47, {4*YP}')
        a('s_lshl_b32 s4, s30, 10')
        a(f's_add_u32 s4, s4, {hex(YT)}')
        a('s_add_u32 s47, s47, s4')
    a('s_mul_i32 s46, s31, 3')
    a('s_add_u32 s46, s46, s29')
    a('s_lshl_b32 s46, s46, 10')
    a(f's_add_u32 s46, s46, {hex(ACT + 64*1024)}')
    a('s_lshr_b32 s39, s32, 3')
    a('s_and_b32 s35, s39, 1')
    a(f's_and_b32 s34, s39, {P.get("wrot", 0)}')
    a('s_and_b32 s24, s32, 7')
    if DX: a(f's_xor_b32 s24, s24, {DX}')
    a('s_lshl_b32 s24, s24, 7')
    if RL:
        a(f's_add_u32 s8, s58, {hex(WD2)}')
        a('s_addc_u32 s9, s59, 0')
        a('s_mul_i32 s24, s24, 1792')
    a(f's_mul_i32 s37, s3, {12*WS_}')
    a('s_add_u32 s37, s37, s24')
    a(f's_add_u32 s30, s37, {76*WS_}')
    a(f's_mul_i32 s36, s34, {3*WS_}')
    a('s_add_u32 s37, s37, s36')
    a(f's_add_u32 s37, s37, {64*WS_}')
    a(f's_mul_i32 s38, s3, {16*WS_}')
    a('s_add_u32 s38, s38, s24')
    a(f's_add_u32 s31, s38, {16*WS_}')
    a(f's_mul_i32 s36, s34, {4*WS_}')
    a('s_add_u32 s38, s38, s36')
    if AN:
        a(f's_mul_i32 s4, s39, {224*1024}')
        a('s_lshl_b32 s6, s3, 14')
        a('s_add_u32 s6, s6, s4')
        a(f's_add_u32 s6, s6, {hex(ACT)}')
    else:
        a('s_lshl_b32 s6, s35, 3')
        a('s_add_u32 s6, s6, s3')
        a(f's_mul_i32 s6, s6, {16*YP}')
        a('s_add_u32 s6, s6, s4')
    a(f's_add_u32 s42, s6, {16*AP}')
    a(f's_mul_i32 s36, s34, {4*AP}')
    a('s_add_u32 s6, s6, s36')
    a(f's_mul_i32 s4, s39, {224*1024}')
    a(f's_mul_i32 s5, s3, {12*1024}')
    a('s_add_u32 s5, s5, s4')
    a(f's_add_u32 s5, s5, {hex(ACT + 64*1024)}')
    a(f's_add_u32 s41, s5, {12*1024}')
    a(f's_mul_i32 s36, s34, {3*1024}')
    a('s_add_u32 s5, s5, s36')
    a('s_lshl_b32 s39, s39, 16')
    a('s_and_b32 s24, s32, 7')
    if DX: a(f's_xor_b32 s24, s24, {DX}')
    a('s_lshl_b32 s24, s24, 7')
    a('s_add_u32 s39, s39, s24')
    a('v_bfe_u32 v4, v1, 1, 2')
    a('v_and_b32 v5, 1, v1')
    a('v_lshlrev_b32 v5, 2, v5')
    a(f'v_lshl_add_u32 v4, v4, {7 if M2 else 4}, v5')
    a('s_lshl_b32 s35, s35, 3')
    a('v_add_u32 v13, s35, v4')
    a('s_cmp_ge_u32 s3, 2')
    for r, (reg0, reg1, dist) in enumerate(((250, 16, 112*1024), (251, 17, 112*1024 if AN else 64*YP))):
        a(f's_cselect_b32 s36, {dist}, 0')
        a(f'v_add_u32 v{reg0}, s36, v15')
        a(f's_cselect_b32 s36, 0, {dist}')
        a(f'v_add_u32 v{reg1}, s36, v15')
    a('v_lshlrev_b32 v73, 7, v1')
    a('s_lshl_b32 s34, s2, 2')
    a('s_add_u32 s34, s34, s3')
    a(f's_mul_i32 s34, s34, {14*128}')
    poll('f1', look(F1), [22], mask=0xffff)
    stamp('f1ok'); raw(3, 's51')
    htok = {}
    def h2load(ks):
        htok[ks] = vm.issue(f'buffer_load_dwordx4 a[{4*ks}:{4*ks+3}], v14, s[16:19], s28 offen offset:{1024*(ks&3)} sc1')
        if (ks & 3) == 3:
            a('s_add_u32 s28, s28, 0x1000'); a('s_and_b32 s28, s28, 0x7fff')
    NH0 = P.get('nh0', 6)
    for ks in range(NH0): h2load(ks)
    slow(4)
    a('s_barrier')
    stamp('b0')
    wtok, atok = {}, {}
    def wd0(i):
        so = 's37' if i < 12 else 's38'
        a(f's_add_u32 m0, s26, {8192*WBL[i]}')
        if i not in (0, 12): a(f's_add_u32 {so}, {so}, {WS_}')
        vm.issue(f'buffer_load_dwordx4 v8, s[8:11], {so} offen lds')
    def wd1(i):
        wtok[i] = vm.issue(f'buffer_load_dwordx4 v9, s[8:11], {"s37" if i < 12 else "s38"} offen offset:1024 lds')
    def wreg(i): return ('v', 72 + 8*i) if i < 5 else ('a', 224 + 8*(i-5)) if i < 8 else ('v', AR + 8*(i % 3))
    def wread(i, mt, jj):
        kind, d = wreg(i); ad = 8192*WBL[i]
        return f'ds_read_b64_tr_b16 {kind}[{d+4*mt+2*jj}:{d+4*mt+2*jj+1}], v{240+2*(ad>>16)+mt} offset:{(ad & 0xffff)+1024*jj}'
    def abase(i): return 128 + 8*i if i < 12 else 8*(i-12)
    def act0(i):
        b = abase(i)
        if i < 12:
            if i and i % 4 == 0: a('s_add_u32 s5, s5, 0x1000')
            vm.issue(f'buffer_load_dwordx4 a[{b}:{b+3}], v250, s[16:19], s5 offen offset:{1024*(i & 3)} sc1')
        else:
            if i > 12: a(f's_add_u32 s6, s6, {AP}')
            vm.issue(f'buffer_load_dwordx4 a[{b}:{b+3}], v251, s[16:19], s6 offen sc1')
    def act1(i):
        b = abase(i)
        if i < 12: atok[i] = vm.issue(f'buffer_load_dwordx4 a[{b+4}:{b+7}], v16, s[16:19], s5 offen offset:{1024*(i & 3)} sc1')
        else: atok[i] = vm.issue(f'buffer_load_dwordx4 a[{b+4}:{b+7}], v17, s[16:19], s6 offen sc1')
    valu = deque()
    AR, NA = 24, 6
    ACC1, ACC2 = 192, 128
    pipe = LdsPipe(a)
    steps = [(0, k, ct) for k in range(32) for ct in range(2)] + [(0, k, 2) for k in range(32)] + [(1, k, ct) for k in range(32) for ct in range(4)]
    tok = {}; nxt = [0]
    def rd(n):
        ps, k, ct = steps[n]; d = AR + 4*(n % NA)
        for jj in range(2):
            b, off = (18, (16*k + 4*jj)*96 + 32*ct) if ps == 0 else (246+ct, 2048*(k % 15) + 512*jj)
            tok[n] = pipe.issue(f'ds_read_b64_tr_b16 v[{d+2*jj}:{d+2*jj+1}], v{b} offset:{off}')
    for n in range(NA-1): rd(n)
    nxt[0] = NA-1
    J = dict(h=NH0, p=NS0, w=0, half=False, a=0, ahalf=False, pmax=15, wmax=0, f2=False, lastp=-99)
    stg = {}
    def wfree(i): return i < J['wmax'] and (not 12 <= i < 20 or stg.get(i - 12, 1 << 30) <= pipe.done)
    def job(n):
        if J['half']: J['half'] = False; wd1(J['w']); J['w'] += 1; return 1
        if J['h'] < 32: h2load(J['h']); J['h'] += 1; return 1
        if J['p'] < J['pmax'] and n - J['lastp'] >= PE: p2dma(J['p']); J['p'] += 1; J['lastp'] = n; return 3
        if J['ahalf']: J['ahalf'] = False; act1(J['a']); J['a'] += 1; return 1
        if J['f2'] and J['a'] < 12 and (J['a'] <= J['w'] - P.get('wa', 12) or not wfree(J['w']) or J['w'] >= 28):
            act0(J['a']); J['ahalf'] = True; return 1
        if J['w'] < 28 and wfree(J['w']) and n >= P.get('ws', 112): wd0(J['w']); J['half'] = True; return 3
        return 0
    VB = P.get('vb', 35); PE = P.get('pe', 3); TE = P.get('te', 15); LW = P.get('lw', 2)
    stok = {}; sg = 0; credit = 0; nb = 0; ta = 0; fload = look(F2); tp = None
    F2P, F2C = P.get('f2p', 999), P.get('f2c', 204)
    def gelu_step(x, n):
        if isinstance(x, tuple):
            stok[x[1]] = vm.issue(f'buffer_store_dwordx4 v[{x[2]}:{x[2]+3}], v15, s[16:19], s46 offen offset:{1024*x[1]} sc1')
            stok['at'] = n
        else: a(x)
    for n, (ps, k, ct) in enumerate(steps):
        if n < 64 and ct == 0:
            while k not in htok: job(n)
            vm.need(htok[k])
        if tok[n] > pipe.done: pipe.need(tok[min(n + LW - 1, len(steps) - 1)])
        d = (ACC1, ACC2)[ps] + 16*ct; c = '0' if k == 0 else f'v[{d}:{d+15}]'
        sa = AR + 4*(n % NA)
        a(f'v_mfma_f32_32x32x16_bf16 v[{d}:{d+15}], v[{sa}:{sa+3}], a[{4*k}:{4*k+3}], {c}')
        if nxt[0] < len(steps): rd(nxt[0]); nxt[0] += 1
        if P.get('hard'):
            credit = min(credit, 0) + 10*(P['hard'] - 2 - (n + 1 < len(steps) and tok[n+1] > pipe.done))
        else: credit = min(credit + VB, P.get('cap', 40))
        if n in BARS:
            land, J['pmax'], J['wmax'] = BARS[n][0], J['pmax'], J['wmax']
            if land is not None:
                while land not in ptok:
                    if J['half']: job(n)
                    p2dma(J['p']); J['p'] += 1
                vm.need(ptok[land])
            a('s_barrier')
            J['pmax'], J['wmax'] = BARS[n][1:]
            nb += 1; stamp(f'b{nb}'); credit -= 10
        if n == P.get('wt', 999 if RL else 60):
            a('s_mov_b64 exec, 0x3fff')
            vm.issue('buffer_load_dword v72, v73, s[8:11], s34 offen')
            a('s_mov_b64 exec, -1')
        if n in (65, 97):
            if n == 65: stamp('p1a')
            else: stamp('p1end')
            for t in ((0, 1) if n == 65 else (2,)):
                o = 64 + 4*(t & 1)
                valu.extend(gelu_ops(ACC1+16*t, 48 + 8*(t & 1), o))
                valu.append(('store', t, o))
        if n == P.get('h2c', -1):
            vm.issue('buffer_store_dwordx4 v[108:111], v107, s[16:19], s96 offen sc1')
            a('s_add_u32 s96, s96, 0x1000')
            vm.issue('buffer_store_dwordx4 v[112:115], v107, s[16:19], s96 offen sc1')
        ta += 10
        if n == F2P and 'f2' in stok: tp = masked(fload, 0xff); ta = 0
        elif n == F2C and tp is not None:
            poll('f2', fload, [22], pre=tp, mask=0xff); J['f2'] = True
            stamp('f2ok'); raw(4, 's51')
        elif ta >= TE:
            cst = job(n)
            if cst: ta -= TE; credit -= 10*cst
            else: ta = TE
        if n >= P.get('stg', 160) and sg < 32 and pipe.outstanding() <= 13 and credit >= 10 and (not valu or n % 2):
            i, r = divmod(sg, 4)
            if i in wtok and (wtok[i] <= vm.done or vm.issued - wtok[i] >= P.get('sl', 8)):
                vm.need(wtok[i])
                t = pipe.issue(wread(i, r >> 1, r & 1)); sg += 1; credit -= 10
                if r == 3: stg[i] = t
        while valu and credit >= 10*(cost(valu[0]) if isinstance(valu[0], str) else 1):
            x = valu.popleft(); gelu_step(x, n)
            if isinstance(x, str): credit -= 10*cost(x)
        if 2 in stok and 'f2' not in stok and n >= stok['at'] + P.get('fdel', 24):
            vm.need(stok[2])
            stok['f2'] = flag(F2); print('F2 at', n, end='; ')
    while valu: gelu_step(valu.popleft(), 224)
    if 'f2' not in stok:
        vm.need(stok[2])
        stok['f2'] = flag(F2)
    assert J['p'] == 32 and J['h'] == 32
    print('w_down steps', J['w'], 'staged', sg, 'act steps', J['a'])
    while sg < 32:
        i, r = divmod(sg, 4)
        while i not in wtok: job(999)
        vm.need(wtok[i])
        stg[i] = pipe.issue(wread(i, r >> 1, r & 1)); sg += 1
    pipe.need(pipe.issued)
    if tp is None and P.get('fp', 3) < 4: tp = masked(fload, 0xff)
    a('s_mov_b32 s34, 1.0'); a('s_mov_b32 s35, 1.0')
    def geglu2(t):
        s = Asm(); geglu(s, ACC2+16*t, 48, 64 + 4*(t & 1))
        for j, l in enumerate(s.lines):
            a(l.replace('s[46:47]', 's[34:35]'))
            if j % P.get('ge', 8) == 3 and t < P.get('gt', 4): job(999)
        if t: a(f's_add_u32 s47, s47, {AP}')
        return lstore([f'buffer_store_dwordx4 v[{64+4*(t&1)}:{67+4*(t&1)}], v15, s[16:19], s47 offen'], P.get('a2s', 1))
    for t in range(4):
        if t == P.get('fp', 3) and not J['f2']:
            stamp('g1')
            poll('f2', fload, [22], pre=tp, mask=0xff); J['f2'] = True
            stamp('f2ok'); raw(4, 's51')
        if t == 3 and tp is None: tp = masked(fload, 0xff)
        ts3 = geglu2(t)
    stamp('g3')
    a('v_and_b32 v4, 31, v1')
    a('v_lshrrev_b32 v5, 5, v1')
    a('v_lshlrev_b32 v10, 10, v4')
    a('v_lshl_add_u32 v10, v5, 4, v10')
    a('s_lshr_b32 s46, s3, 1')
    a('s_lshl_b32 s46, s46, 15')
    a('s_and_b32 s47, s3, 1')
    a('s_lshl_b32 s47, s47, 6')
    a('s_add_u32 s39, s39, s46')
    a('s_add_u32 s39, s39, s47')
    a(f's_add_u32 s46, s39, {0 if XO else hex(X1)}')
    F3S = P.get('f3s', 4)
    if F3S < 0:
        vm.need(ts3)
        flag(F3)
    if not J['f2']:
        poll('f2', fload, [22], pre=tp, mask=0xff); J['f2'] = True
        stamp('f2ok'); raw(4, 's51')
        while J['a'] < P.get('a1b', 3): job(999)
    if M2: a(f's_add_u32 s25, s25, {FL3-FL2}')
    stamp('estart')
    pipe = LdsPipe(a); tok = {}
    def rd2(i):
        while i not in wtok: job(999)
        vm.need(wtok[i])
        for mt in range(2):
            for jj in range(2): tok[(i, mt)] = pipe.issue(wread(i, mt, jj))
    f3load = look(F3)
    for i in range(8): stg[i] = 0
    TL = P.get('tl', 2)
    F3C = P.get('f3c', 8); JE = P.get('je', 2); tp = None; g = 0; aq = deque()
    for i in range(28):
        stamp(f'e{i}')
        if F3S >= 0 and 's' not in stok and (i == F3S or atok.get(i, 1 << 30) > ts3):
            vm.need(ts3)
            stok['s'] = flag(F3); print('F3 at step', i)
        if i == F3C:
            while J['a'] < 12 or J['half']: job(999)
            if tp is None: tp = masked(f3load, 0xff)
            poll('f3', f3load, [22], pre=tp, mask=0xff)
            stamp('f3ok'); raw(5, 's51')
            for ii in range(12, 28): aq.extend([lambda ii=ii: act0(ii), lambda ii=ii: act1(ii)])
            for _ in range(P.get('a2b', 4)): aq.popleft()()
        if i == 22:
            vm.issue(f'buffer_load_dwordx4 v[72:75], v10, {XS}, s46 offen sc1')
            tx = vm.issue(f'buffer_load_dwordx4 v[76:79], v10, {XS}, s46 offen offset:32 sc1')
        if i >= 28 - TL: continue
        kind, d0 = wreg(i); b = abase(i)
        while i not in atok: (aq.popleft()() if i >= 12 else job(999))
        vm.need(atok[i])
        for mt in range(2):
            if i >= 8: pipe.need(tok[(i, mt)])
            for nt in range(2):
                d = ACC2 + 32*mt + 16*nt; c = '0' if i == 0 else f'v[{d}:{d+15}]'
                a(f'v_mfma_f32_32x32x16_bf16 v[{d}:{d+15}], {kind}[{d0+4*mt}:{d0+4*mt+3}], a[{b+4*nt}:{b+4*nt+3}], {c}')
                g += 1
                if mt == 0 and nt == 0 and 8 <= i+2 < 28: rd2(i+2)
                if g % JE == 0:
                    if aq and not J['half'] and (J['w'] >= 28 or J['w'] > i + P.get('wb', 28)): aq.popleft()()
                    elif tp is None and not J['half'] and J['a'] == 12 and (J['w'] >= 28 or i == F3C - 1): tp = masked(f3load, 0xff)
                    elif not job(999) and aq: aq.popleft()()
    PBL = [None, (WBL[8], WBL[9]), (WBL[10], WBL[11]), (WBL[12], WBL[13])]
    a('v_add_u32 v4, s26, v15')
    a('v_add_u32 v5, 0x10000, v4')
    def mm(i, t):
        kind, d0 = wreg(i); b = abase(i); mt, nt = t & 1, t >> 1; d = ACC2 + 32*mt + 16*nt
        while i not in atok: aq.popleft()()
        vm.need(atok[i]); pipe.need(tok[(i, mt)])
        a(f'v_mfma_f32_32x32x16_bf16 v[{d}:{d+15}], {kind}[{d0+4*mt}:{d0+4*mt+3}], a[{b+4*nt}:{b+4*nt+3}], v[{d}:{d+15}]')
    def park(t):
        d = ACC2 + 32*(t & 1) + 16*(t >> 1)
        return [f'ds_write_b128 v{(4, 5)[ad >> 16]}, v[{d+4*g}:{d+4*g+3}] offset:{ad & 0xffff}' for g in range(4) for ad in [8192*PBL[t][g >> 1] + 1024*(g & 1)]]
    wr = deque()
    for t in (1, 3, 2, 0):
        for i in range(28 - TL, 28):
            mm(i, t)
            if t != 3:
                for _ in range(4 // TL if TL else 0):
                    if wr: a(wr.popleft())
        if t: wr.extend(park(t))
    stamp('eend')
    while wr: a(wr.popleft())
    for t in range(1, 4):
        a(f's_xor_b32 s6, s26, {2048*t}')
        a(f's_add_u32 s7, s6, {8192*PBL[t][1]}')
        a(f's_add_u32 s6, s6, {8192*PBL[t][0]}')
        a(f'v_add_u32 v{88+2*t}, s6, v15')
        a(f'v_add_u32 v{89+2*t}, s7, v15')
    vm.need(tx)
    unpack8(a, 96, 124, 40); unpack8(a, 104, 116, 40); unpack8(a, 48, 72, 40); unpack8(a, 56, 76, 40)
    a('s_waitcnt lgkmcnt(0)')
    a('s_barrier')
    stamp('ebar')
    for i in range(1, 4):
        for g in range(4):
            a(f'ds_read_b128 v[{128+16*i+4*g}:{131+16*i+4*g}], v{88+2*i+(g >> 1)} offset:{1024*(g & 1)}')
    for i in range(1, 4):
        a(f's_waitcnt lgkmcnt({12-4*i})')
        for p in range(8): a(f'v_pk_add_f32 v[{128+2*p}:{129+2*p}], v[{128+2*p}:{129+2*p}], v[{128+16*i+2*p}:{129+16*i+2*p}]')
    for g in range(2):
        b = 128 + 8*g
        for r in range(4): a(f'v_permlane32_swap_b32 v{b+r}, v{b+4+r}')
        for p in range(4): a(f'v_pk_fma_f32 v[{b+2*p}:{b+2*p+1}], v[{b+2*p}:{b+2*p+1}], v[{96+8*g+2*p}:{97+8*g+2*p}], v[{48+8*g+2*p}:{49+8*g+2*p}]')
        for p in range(4): a(f'v_cvt_pk_bf16_f32 v{40+4*g+p}, v{b+2*p}, v{b+2*p+1}')
        a(f'buffer_store_dwordx4 v[{40+4*g}:{43+4*g}], v10, s[12:15], s39 offen offset:{32*g}' + ('', ' sc1', ' nt')[P.get('ost', 0)])
    a('s_or_b32 s4, s2, s3')
    a('s_cmp_lg_u32 s4, 0')
    a('s_cbranch_scc1 L_noep')
    a(f's_mov_b32 s4, {hex(EPOCH)}')
    masked(['buffer_store_dword v20, v21, s[16:19], s4 offen'], 1)
    a.label('L_noep')
    if P.get('probe') is not None:
        a('s_waitcnt vmcnt(0)')
        stamp('end')
        a('s_waitcnt lgkmcnt(0)')
        k = P['probe']
        if k == 300:
            a('v_mov_b32 v22, s60')
            a(f's_mov_b32 s36, {hex(0x140B000)}')
            a('s_cmp_lg_u32 s2, 0')
            a('s_cbranch_scc1 L_end')
            a('buffer_store_dword v22, v21, s[16:19], s36 offen')
            a('s_branch L_end')
        elif k == 301:
            a(f's_add_u32 s4, s58, {hex(0x140B000)}')
            a('s_addc_u32 s5, s59, 0')
            a('s_load_dword s92, s[4:5], 0')
            a('s_waitcnt lgkmcnt(0)')
            a('s_add_u32 s92, s92, 6000')
        elif k >= 200:
            a(f's_add_u32 s4, s58, {hex(EPOCH + 0x100)}')
            a('s_addc_u32 s5, s59, 0')
            a('s_load_dwordx4 s[92:95], s[4:5], 0')
            a('s_waitcnt lgkmcnt(0)')
            a('s_cmp_eq_u64 s[92:93], s[94:95]')
            a('s_cselect_b32 s92, 10000, 0' if k == 200 else 's_cselect_b32 s92, 0, 10000')
            a('s_add_u32 s92, s92, s70')
        elif k >= 100:
            a(f's_mov_b32 s36, {hex(0x140A000)}')
            a('buffer_load_dwordx4 v[24:27], v15, s[16:19], s36 offen sc1')
            a('s_waitcnt vmcnt(0)')
            for r, op in ((28, 'min'), (29, 'max')):
                a(f'v_{op}_u32 v{r}, v24, v25')
                a(f'v_{op}3_u32 v{r}, v{r}, v26, v27')
                for ctl in ('row_ror:1', 'row_ror:2', 'row_ror:4', 'row_ror:8'):
                    a(f'v_{op}_u32_dpp v{r}, v{r}, v{r} {ctl} row_mask:0xf bank_mask:0xf')
                for i in range(4): a(f'v_readlane_b32 s{4+i}, v{r}, {16*i}')
                a(f's_{op}_u32 s4, s4, s5'); a(f's_{op}_u32 s6, s6, s7'); a(f's_{op}_u32 s{r+62}, s4, s6')
            if k == 100: a('s_add_u32 s92, s90, 6000')
            elif k == 101:
                a('s_sub_u32 s92, s91, s90'); a('s_lshl_b32 s92, s92, 2'); a('s_add_u32 s92, s92, s90'); a('s_add_u32 s92, s92, 4000')
            else:
                a(f's_sub_u32 s92, s{60+2*(k-110)}, s90'); a('s_lshl_b32 s92, s92, 2'); a('s_add_u32 s92, s92, s90'); a('s_add_u32 s92, s92, 4000')
        elif k == 0:
            a('s_add_u32 s92, s60, 6000')
        else:
            a(f's_sub_u32 s92, s{60+2*k}, s60')
            a('s_lshl_b32 s92, s92, 2')
            a('s_add_u32 s92, s92, s60')
            a('s_add_u32 s92, s92, 4000')
        a.label('L_probe')
        a('s_memrealtime s[94:95]')
        a('s_waitcnt lgkmcnt(0)')
        a('s_sub_u32 s94, s94, s92')
        a('s_cmp_lt_i32 s94, 0')
        a('s_cbranch_scc1 L_probe')
    elif P.get('stamps'):
        a('s_waitcnt vmcnt(0)')
        stamp('end')
        a('s_cmp_lg_u32 s3, 0')
        a('s_cbranch_scc1 L_end')
        a('s_lshl_b32 s94, s2, 7')
        a(f's_add_u32 s94, s94, {hex(TS)}')
        a('s_add_u32 s92, s58, s94')
        a('s_addc_u32 s93, s59, 0')
        a('v_lshlrev_b32 v250, 2, v1')
        a('s_lshl_b32 s94, s2, 8')
        a(f's_add_u32 s94, s94, {hex(TS + 0x80000)}')
        a('s_add_u32 s94, s58, s94')
        a('s_addc_u32 s95, s59, 0')
        a('global_store_dword v250, v254, s[94:95]')
        a('s_mov_b64 exec, 1')
        if P.get('dbg'):
            a('s_load_dwordx2 s[94:95], s[0:1], 104')
        a('s_waitcnt lgkmcnt(0)')
        if P.get('dbg'):
            a('s_not_b32 s60, s60')
            for m in sorted(marks):
                a(f'v_mov_b32 v250, s{60+2*m}')
                a(f'global_atomic_umax v21, v250, s[94:95] offset:{4*m}')
                a('s_nop 1')
            a('s_not_b32 s60, s60')
        for m in sorted(marks):
            a(f'v_mov_b32 v250, s{60+2*m}')
            a(f'v_mov_b32 v251, s{61+2*m}')
            a(f'global_store_dwordx2 v21, v[250:251], s[92:93] offset:{8*m}')
            a('s_nop 1')
    a.label('L_end')
    a.label('L_last')
    a('s_endpgm')
    return dict(grid=256, block=256, lds=163840, vgpr=512, accum=256)

def tinyk(a, P, head):
    a('s_cmp_ge_u32 s2, 1')
    a('s_cbranch_scc1 L_tiny_end')
    a('s_memrealtime s[8:9]')
    a(f's_load_dwordx2 s[4:5], s[0:1], {A_WS}')
    a('s_waitcnt lgkmcnt(0)')
    a(f's_add_u32 s4, s4, {hex(0x140B000)}')
    a('s_addc_u32 s5, s5, 0')
    if head:
        a('v_mov_b32 v1, s8')
        a('v_mov_b32 v2, 0')
        a('global_store_dword v2, v1, s[4:5]')
    else:
        a('s_load_dword s6, s[4:5], 0')
        a('s_waitcnt lgkmcnt(0)')
        a('s_add_u32 s6, s6, 6000')
        a('s_mov_b32 s10, 100000')
        a.label('L_tiny')
        a('s_memrealtime s[8:9]')
        a('s_waitcnt lgkmcnt(0)')
        a('s_sub_u32 s10, s10, 1')
        a('s_cbranch_scc1 L_tiny_end')
        a('s_sub_u32 s8, s8, s6')
        a('s_cmp_lt_i32 s8, 0')
        a('s_cbranch_scc1 L_tiny')
    a.label('L_tiny_end')
    a('s_endpgm')
    return dict(grid=1, block=64, lds=0, vgpr=8, accum=8)
```

```python
from collections import deque
from asmlib import *
from k123 import fh, lo, hi, unpack8, ln_stats, LdsPipe, A_OUT, A_WS
from k45 import VmPipe, GC1, GC2, geglu
from cde import zipl, gelu_ops, cost

UT, YT, X1, H2, ACT = 0, 0x400000, 0x900000, 0, 0xD00000
MODT, EPOCH, GRP, MP, TS = 0x1400000, 0x1408000, 0x1410000, 0x1480000, 0x1500000
YP = 16384 + 128
XID, UH, F1, F2, F3 = 0, 128, 1024, 1536, 2048
P1U = 49280
SEG = [(0, 98432, 129152), (15, 0, 49280), (27, 24576, 73856)]
CB, CHS, KB, U0, U1 = 98432, 12992, 512, 4608, 8768
PB = CB + 2*CHS
PRM = PB + 32768
MPART = PRM + 6144
XG = 129152 + 112*128
YS = 1040
XH = XG + 8*YS
PS = 272
SPIN = 1 << 15
WBL = list(range(12)) + list(range(8)) + [13, 17, 14, 18, 12, 15, 16, 19]
BARS = {89: (5, 15, 0), 111: (9, 19, 20), 127: (13, 23, 20), 143: (17, 27, 20), 159: (21, 31, 20), 175: (25, 32, 20),
        191: (29, 32, 22), 207: (31, 32, 24), 223: (None, 32, 28)}
assert MPART + 512 <= 163840 and XH + 8192 <= 163840
def seg_of(k): return SEG[0] if k < 15 else SEG[1] if k < 27 else SEG[2]

def base(a, d, p, n):
    a(f's_mov_b32 s{d}, s{p}'); a(f's_mov_b32 s{d+1}, s{p+1}'); a(f's_mov_b32 s{d+2}, {hex(n)}')

FL1, FL2, FL3 = 0x1420000, 0x1428000, 0x1430000
def ln1p(a, X, D, T, s0):
    a(f'v_pk_add_f32 v[{T}:{T+1}], v[{X}:{X+1}], v[{X+2}:{X+3}]')
    a(f'v_pk_mul_f32 v[{T+2}:{T+3}], v[{X}:{X+1}], v[{X}:{X+1}]')
    a(f'v_pk_add_f32 v[{D}:{D+1}], v[{X+4}:{X+5}], v[{X+6}:{X+7}]')
    for p in range(1, 4):
        a(f'v_pk_fma_f32 v[{T+2}:{T+3}], v[{X+2*p}:{X+2*p+1}], v[{X+2*p}:{X+2*p+1}], v[{T+2}:{T+3}]')
    a(f'v_pk_add_f32 v[{T}:{T+1}], v[{T}:{T+1}], v[{D}:{D+1}]')
    a(f'v_add_f32 v{T+2}, v{T+2}, v{T+3}')
    a(f'v_add_f32 v{T}, v{T}, v{T+1}')
    for ctl in ('row_shr:1', 'row_shr:2', 'row_shr:4', 'row_shr:8'):
        for r in (T+2, T): a(f'v_add_f32_dpp v{r}, v{r}, v{r} {ctl} row_mask:0xf bank_mask:0xf bound_ctrl:1')
    for ctl in ('row_bcast:15 row_mask:0xa', 'row_bcast:31 row_mask:0xc'):
        for r in (T+2, T): a(f'v_add_f32_dpp v{r}, v{r}, v{r} {ctl} bank_mask:0xf')
    a(f'v_readlane_b32 s{s0+1}, v{T+2}, 63')
    a(f'v_readlane_b32 s{s0}, v{T}, 63')
    a(f'v_mov_b32 v{T+1}, {fh(1.0/512)}')
    a(f'v_mov_b32 v{T+3}, {fh(1e-5)}')
    a(f'v_mul_f32 v{T}, s{s0}, v{T+1}')
    a(f'v_fmac_f32 v{T+3}, s{s0+1}, v{T+1}')
    a(f'v_fma_f32 v{T+2}, -v{T}, v{T}, v{T+3}')
    a(f'v_max_f32 v{T+2}, {fh(1e-5)}, v{T+2}')
    a(f'v_rsq_f32 v{T+2}, v{T+2}')
    a(f'v_mul_f32 v{T+3}, v{T}, v{T+2}')
    for p in range(4):
        a(f'v_pk_fma_f32 v[{D+2*p}:{D+2*p+1}], v[{X+2*p}:{X+2*p+1}], v[{T+2}:{T+3}], v[{T+2}:{T+3}] op_sel:[0,0,1] op_sel_hi:[1,0,1] neg_lo:[0,0,1] neg_hi:[0,0,1]')
def ln2p(s, X, D, T, s0):
    ln_stats(s, X, D, T, s0)
    for p in range(4):
        s(f'v_pk_mul_f32 v[{D+2*p}:{D+2*p+1}], v[{D+2*p}:{D+2*p+1}], v[{T}:{T+1}] op_sel:[0,0] op_sel_hi:[1,0]')

def mega(a, P):
    M2 = P.get('m2', 0)
    DX = P.get('dx', 3)
    RL = P.get('rl', 1)
    RP = P.get('rp', 0)
    W2, PR = 0xB00000, (128 if RP else 3584)
    WD2, WS_ = 0x200000, (2048 if RL else 0x4000)
    H2 = 0xB00000 if M2 else 0
    marks = set()
    SETS = {1: 'start kv0 utst utok bbar end bend ytst ytok h2dr b0 p1end b9 estart f3ok eend',
            2: 'start kv0 kvN abar utst end ut1st uhok utok bbar bend pbar ytst ytack ytok mdok',
            3: 'start ytst ln1 ytack ytok end ybar hbar h2st h2dr f1ok b0 b1 b2 b3 p1end',
            6: 'start b0 p1a p1end b2 end b3 b4 b5 b6 b7 b8 b9 f2ok g3 estart',
            7: 'start estart e2 e4 e6 end f3ok e8 e10 e12 e14 e16 e20 e24 eend ebar',
            9: 'start b0 p1a p1end b5 end b9 estart eend cb0 cp1a cp1end cb5 cb9 cestart ceend',
            10: 'start bbar bend ybar hbar end g3 ebar x8 cbbar cbend cybar chbar x13 cg3 cebar',
            8: 'start x1 x2 x3 x4 end',
            5: 'start karg x2 x3 x4 end x6 x7 x8 x9 x10 x11 x12 kv0 issued pre',
            4: 'start p1end b5 b6 b7 end b8 g1 f2ok g3 estart e12 f3ok e20 eend ebar'}
    names = SETS[P.get('stamps', 1)].split()
    def stamp(name):
        if P.get('stamps') and name in names:
            slot = names.index(name)
            a(f's_memrealtime s[{60+2*slot}:{61+2*slot}]'); marks.add(slot)
        if P.get('stamps') and 'c' + name in names:
            slot = names.index('c' + name)
            a(f's_memtime s[{60+2*slot}:{61+2*slot}]'); marks.add(slot)
    def raw(i, sreg):
        if P.get('stamps'): a(f'v_writelane_b32 v254, {sreg}, {i}')
    vm = VmPipe(a)
    NTM = P.get('nt', 63)
    NK, NV, NS, NW, NX, NC = [' nt' if NTM >> i & 1 else '' for i in range(6)]
    nst = [0]
    def lstore(lines, through=False):
        if through:
            for l in lines: t = vm.issue(l + ' sc1')
            return t
        return lstore2(lines)
    def lstore2(lines):
        n = nst[0]; nst[0] += 1
        a('s_cmp_eq_u32 s101, 0')
        a(f's_cbranch_scc1 L_ls{n}a')
        for l in lines: a(l + ' sc1')
        a(f's_branch L_ls{n}b')
        a.label(f'L_ls{n}a')
        for l in lines: t = vm.issue(l)
        a.label(f'L_ls{n}b')
        return t
    SL = P.get('sleep', 1); PM = 1
    def masked(lines, mask):
        if mask and PM: a(f's_mov_b64 exec, {hex(mask)}')
        for l in lines: t = vm.issue(l)
        if mask and PM: a('s_mov_b64 exec, -1')
        return t
    def poll(name, loads, tags, pre=None, mask=None):
        a(f's_mov_b32 s51, {SPIN}')
        if pre is not None:
            vm.need(pre)
            stamp(name + '1st')
        if mask and PM: a(f's_mov_b64 exec, {hex(mask)}')
        a(f's_branch L_{name}_chk' if pre is not None else f's_branch L_{name}_go')
        a.label(f'L_{name}')
        sl = P.get('ysl', SL) if name in ('yt', 'md') else SL
        if sl: a(f's_sleep {sl}')
        a.label(f'L_{name}_go')
        for l in loads: a(l)
        a('s_waitcnt vmcnt(0)')
        a.label(f'L_{name}_chk')
        a(f'v_cmp_ne_u32 vcc, s50, v{tags[0]}')
        for i, t in enumerate(tags[1:]): a(f'v_cmp_ne_u32 s[{92+2*i}:{93+2*i}], s50, v{t}')
        a('s_sub_u32 s51, s51, 1')
        a(f's_cbranch_scc1 L_{name}_ok')
        for i in range(len(tags)-1): a(f's_or_b64 vcc, vcc, s[{92+2*i}:{93+2*i}]')
        a(f's_cbranch_vccnz L_{name}')
        a.label(f'L_{name}_ok')
        if mask and PM: a('s_mov_b64 exec, -1')
        if pre is None: vm.done = vm.issued

    a('s_cmp_ge_u32 s2, 256')
    a('s_cbranch_scc1 L_end')
    stamp('start')
    if P.get('stamps'): a('v_mov_b32 v254, 0')
    a('s_load_dwordx16 s[64:79], s[0:1], 0')
    if P.get('cpf', 1):
        a('s_getpc_b64 s[4:5]')
        a.label('L_pc')
        a('v_lshlrev_b32 v3, 7, v0')
        a('v_mov_b32 v5, s5')
        a('v_add_co_u32 v4, vcc, s4, v3')
        a(f'v_cmp_gt_u32 s[6:7], {P.get("cpn", 16)}, v0')
        a('v_and_b32 v1, 63, v0')
        a('v_addc_co_u32 v5, vcc, 0, v5, vcc')
        a('s_and_b64 exec, exec, s[6:7]')
        a('s_cbranch_execz L_nopf')
        a('global_load_dword v169, v[4:5], off')
        a.label('L_nopf')
        a('s_mov_b64 exec, -1')
    else: a('v_and_b32 v1, 63, v0')
    a(f's_load_dwordx2 s[58:59], s[0:1], {A_WS}')
    a('s_load_dwordx8 s[80:87], s[0:1], 64')
    a(f's_load_dwordx2 s[56:57], s[0:1], {A_OUT}')
    a('v_lshrrev_b32 v2, 6, v0')
    a('v_readfirstlane_b32 s3, v2')
    a('s_mov_b32 s40, 0xffff0000')
    a('s_and_b32 s28, s2, 7')
    a('s_lshr_b32 s29, s2, 3')
    a('s_lshl_b32 s32, s28, 5')
    a('s_or_b32 s32, s32, s29')
    a('v_and_b32 v3, 31, v0')
    a('v_lshrrev_b32 v2, 5, v0')
    a('s_lshl_b32 s33, s29, 6')
    a('v_lshl_add_u32 v4, v2, 3, s33')
    a('s_lshl_b32 s33, s28, 7')
    a('v_lshl_add_u32 v5, v3, 2, s33')
    a('v_lshl_add_u32 v5, v4, 10, v5')
    a('v_subrev_u32 v4, 0xc00, v5')
    a('s_lshl_b32 s33, s28, 9')
    a('v_lshl_add_u32 v13, v3, 4, s33')
    a('s_movk_i32 s35, 0x1000')
    a('s_mov_b32 s15, 0x20000'); a('s_mov_b32 s27, 0x20000'); a('s_mov_b32 s19, 0x20000')
    a('s_mov_b32 s23, 0x20000'); a('s_mov_b32 s11, 0x20000'); a('s_mov_b32 s55, 0x20000')
    a('v_lshlrev_b32 v15, 4, v1')
    a('v_mov_b32 v21, 0')
    a('v_lshlrev_b32 v14, 4, v0')
    a('s_waitcnt lgkmcnt(0)')
    stamp('karg')
    if P.get('wso'):
        a(f's_add_u32 s58, s58, {hex(P["wso"] << 20)}')
        a('s_addc_u32 s59, s59, 0')
    base(a, 12, 70, 4096)
    base(a, 24, 68, 0x200000)
    tsh = vm.issue('buffer_load_dwordx4 v[48:51], v13, s[12:15], 0 offen')
    base(a, 12, 66, 0x200000)
    for i in range(3): vm.issue(f'buffer_load_dword v{24+i}, v4, s[12:15], 0 offen offset:{1024*i}' + NK)
    tk = {}
    for i in range(8):
        so = 's35' if i >= 4 else '0'
        vm.issue(f'buffer_load_dword v{27+i}, v5, s[12:15], {so} offen offset:{1024*(i&3)}' + NK)
        tk[i] = vm.issue(f'buffer_load_dword v{36+i}, v5, s[24:27], {so} offen offset:{1024*(i&3)}' + NV)
    stamp('issued')
    a(f's_add_u32 s4, s58, {hex(EPOCH)}')
    a('s_addc_u32 s5, s59, 0')
    a('s_load_dword s50, s[4:5], 0')
    if P.get('cpf', 1):
        a('s_getpc_b64 s[6:7]')
        a.label('L_pc2')
        a('s_lshl_b32 s36, s29, 2')
        a('s_add_u32 s36, s36, s3')
        a('v_and_b32 v4, 1, v0')
        a('v_lshl_add_u32 v4, s36, 1, v4')
        a('v_min_u32 v4, (L_last-L_pc2)/128, v4')
        a('v_lshlrev_b32 v4, 7, v4')
        a('v_mov_b32 v5, s7')
        a('v_add_co_u32 v4, vcc, s6, v4')
        a('v_addc_co_u32 v5, vcc, 0, v5, vcc')
        a('s_mov_b64 exec, 3')
        vm.issue('global_load_dword v168, v[4:5], off')
        a('s_mov_b64 exec, -1')
    if P.get('kvbar', 1): a('s_barrier')
    a('s_lshl_b32 s33, s32, 2')
    a('s_add_u32 s6, s74, s33')
    a('s_addc_u32 s7, s75, 0')
    a('s_load_dword s34, s[6:7], 0')
    a('s_lshl_b32 s33, s32, 13')
    SK = {}
    def skload():
        base(a, 12, 72, 0x200000)
        a('s_lshl_b32 s36, s32, 13')
        vm.issue('buffer_load_dwordx4 v[146:149], v14, s[12:15], s36 offen' + NS)
        a('s_add_u32 s36, s36, 0x1000')
        SK['t'] = vm.issue('buffer_load_dwordx4 v[150:153], v14, s[12:15], s36 offen' + NS)
    if P.get('skat', 1) == 0: skload()
    a('s_mul_i32 s30, s28, 6')
    a('s_lshr_b32 s31, s29, 2')
    a('s_add_u32 s30, s30, s31')
    a('s_and_b32 s31, s29, 3')
    a('s_lshl_b32 s46, s30, 2')
    a('s_or_b32 s46, s46, s31')
    a('s_lshl_b32 s47, s31, 2')
    a('s_or_b32 s47, s47, s3')
    a('v_and_b32 v16, 1, v0')
    a('v_lshrrev_b32 v17, 3, v1')
    a('v_and_b32 v6, 7, v1')
    a('v_mul_u32_u24 v242, 0x6000, v17')
    a('v_lshl_add_u32 v242, v6, 4, v242')
    a('v_lshlrev_b32 v243, 3, v17')
    a('s_lshl_b32 s36, s3, 11')
    a('s_add_u32 s33, s33, s36')
    WM = {}
    def wmload():
        base(a, 12, 84, 1024)
        a('s_lshl_b32 s36, s47, 6')
        tc = vm.issue('buffer_load_dwordx2 v[144:145], v243, s[12:15], s36 offen')
        base(a, 12, 86, 512*6144)
        a('s_cmp_lt_u32 s29, 24')
        a('s_cselect_b32 s14, s14, 0')
        a('s_lshr_b32 s36, s46, 2')
        a('s_lshl_b32 s36, s36, 7')
        a(f's_mul_i32 s37, s47, {32*6144}')
        a('s_add_u32 s36, s36, s37')
        twm = []
        for r in range(4):
            twm.append(vm.issue(f'buffer_load_dwordx4 v[{128+4*r}:{131+4*r}], v242, s[12:15], s36 offen' + NW))
            if r < 3: a('s_add_u32 s36, s36, 0x1800')
        WM.update(tc=tc, twm=twm)
    if P.get('wat', 3) == 0: wmload()
    if M2:
        a('s_and_b32 s30, s2, 1')
        a('s_lshl_b32 s30, s30, 3')
        a('s_and_b32 s98, s29, 7')
        a('s_or_b32 s30, s30, s98')
        a('s_bfe_u32 s31, s2, 0x20001')
        a('s_lshl_b32 s31, s31, 2')
        a('s_lshr_b32 s36, s2, 6')
        a('s_or_b32 s31, s31, s36')
        a('s_lshl_b32 s36, s36, 1')
        a('s_add_u32 s98, s98, s36')
    else:
        a('s_lshr_b32 s30, s32, 4')
        a('s_and_b32 s31, s32, 15')
        a(f's_and_b32 s98, s30, {P.get("prot", 0)}')
        a('s_lshl_b32 s98, s98, 2')
        if P.get('xrot', 1): a('s_add_u32 s98, s98, s28')
    a('s_and_b32 s98, s98, 7')
    a('s_lshr_b32 s38, s3, 1')
    a('s_and_b32 s39, s3, 1')
    a('s_cmp_eq_u32 s38, 0')
    a('s_cselect_b32 s20, s78, s80')
    a('s_cselect_b32 s21, s79, s81')
    a(f's_mov_b32 s22, {512*3584 if not P.get("now") else 0}')
    base(a, 8, 82, 1792*1024 if not P.get('now') else 0)
    base(a, 16, 58, TS)
    a('s_lshl_b32 s36, s28, 12')
    a(f's_add_u32 s36, s36, {hex(GRP)}')
    a('s_add_u32 s52, s58, s36')
    a('s_addc_u32 s53, s59, 0')
    a('s_movk_i32 s54, 0x1000')
    a('s_cmp_eq_u32 s3, 3')
    a('s_cselect_b32 s37, 0, 0x70000000')
    a('v_mov_b32 v22, s37')
    a('s_lshl_b32 s36, s29, 7')
    vm.issue('buffer_load_dword v158, v22, s[52:55], s36 offen')
    a('s_lshl_b32 s36, s46, 6')
    a(f's_add_u32 s36, s36, {hex(MODT)}')
    if P.get('mdt', 1): vm.issue('buffer_load_dword v159, v22, s[16:19], s36 offen')
    if M2 and P.get('ft', 1):
        a('s_lshl_b32 s36, s30, 4')
        a('s_lshr_b32 s37, s32, 4')
        a('s_lshl_b32 s37, s37, 4')
        a('s_sub_u32 s37, s37, s36')
        a('s_add_u32 s37, s37, 0x100')
        a('v_lshrrev_b32 v4, 2, v1')
        a('v_min_u32 v5, 1, v4')
        a('v_mul_lo_u32 v5, v5, s37')
        a('v_max_u32 v4, 1, v4')
        a('v_subrev_u32 v4, 1, v4')
        a('v_lshl_add_u32 v5, v4, 8, v5')
        a('v_and_b32 v4, 3, v1')
        a('v_add_u32 v5, v5, v4')
        a('s_lshl_b32 s37, s3, 2')
        a('s_add_u32 s36, s36, s37')
        a('v_add_lshl_u32 v5, v5, s36, 7')
        a(f's_mov_b32 s36, {hex(FL1)}')
        a('s_mov_b64 exec, 0xfff')
        vm.issue('buffer_load_dword v156, v5, s[16:19], s36 offen')
        a('s_mov_b64 exec, -1')
    a('s_lshl_b32 s36, s32, 13')
    a('s_lshl_b32 s37, s46, 11')
    a(f's_add_u32 s37, s37, {hex(MP)}')
    a('s_cmp_eq_u32 s3, 1')
    a(f's_cselect_b32 s37, s37, {hex(TS)}')
    a('s_cselect_b32 s44, 15, 63')
    a('s_cmp_eq_u32 s3, 2')
    a('s_cselect_b32 s37, s36, s37')
    a('v_and_b32 v4, s44, v1')
    a('v_lshlrev_b32 v4, 7, v4')
    if P.get('utt', 1): vm.issue('buffer_load_dword v157, v4, s[16:19], s37 offen' + (' nt' if P.get('ntu', 0) else ''))
    if P.get('tlb', 0) == 1:
        a('v_lshl_add_u32 v4, v1, 20, v22')
        for i, (p, n) in enumerate(((86, 512*6144), (84, 1024), (64, 0x200000), (78, 512*3584), (80, 512*3584), (82, 1792*1024), (56, 0x200000))):
            base(a, 12, p, n)
            vm.issue(f'buffer_load_dword v{160+i}, v4, s[12:15], 0 offen')
        vm.issue('buffer_load_dword v154, v4, s[16:19], 0 offen')
    for i in range(3):
        a(f'v_add_u32 v4, {64*i}, v1')
        a('v_mul_u32_u24 v5, 0x2aab, v4')
        a('v_lshrrev_b32 v5, 16, v5')
        a(f'v_mul_u32_u24 v5, {3584-96}, v5')
        a(f'v_lshl_add_u32 v{10+i}, v4, 4, v5')
        if i: a(f'v_subrev_u32 v{10+i}, {1024*i}, v{10+i}')
    a(f's_mul_i32 s41, s39, {32*3584}')
    a('s_mul_i32 s43, s31, 96')
    a('s_add_u32 s41, s41, s43')
    a('s_add_u32 s41, s41, 0x800')
    a('s_mul_i32 s43, s39, 3072')
    a(f's_mul_i32 s42, s38, {P1U}')
    a('s_add_u32 s42, s42, s43')
    a(f's_add_u32 s99, s41, {512*3584}')
    a(f's_mul_i32 s36, s98, {64*3584}')
    a('s_add_u32 s41, s41, s36')
    def step(reg, inc, lim, span):
        a(f's_add_u32 {reg}, {reg}, {inc}')
        a(f's_cmp_eq_u32 {reg}, {lim}')
        a(f's_cselect_b32 s36, {span}, 0')
        a(f's_sub_u32 {reg}, {reg}, s36')
    early = deque()
    def p1dma(m, i):
        if i == 0: a(f's_add_u32 m0, s42, {6144*m}')
        vm.issue(f'buffer_load_dwordx4 v{10+i}, s[20:23], s41 offen offset:{1024*i} lds')
        if i == 2 and m < 7: step('s41', 64*3584, 's99', 512*3584)
    for m in range(8):
        for i in range(3): early.append(lambda m=m, i=i: p1dma(m, i))
    for _ in range(P.get('e0', 0)): early.popleft()()
    a('v_lshrrev_b32 v4, 3, v1')
    a('v_bfe_u32 v5, v1, 4, 1')
    a('v_lshlrev_b32 v5, 2, v5')
    a('v_xor_b32 v5, v5, v6')
    a('v_lshlrev_b32 v5, 4, v5')
    a(f'v_lshl_add_u32 v8, v4, {7 if RL else 10}, v5')
    a(f'v_add_u32 v9, {0 if RL else 8192-1024}, v8')
    a('s_lshl_b32 s43, s38, 5')
    a('v_xor_b32 v5, s43, v5')
    a(f'v_mul_u32_u24 v7, {PR}, v4')
    a('v_add_u32 v7, v7, v5')
    a(f's_mul_i32 s48, s39, {8*PR}')
    a(f's_lshl_b32 s43, s31, {16 if RP else 7}')
    a('s_add_u32 s48, s48, s43')
    if RP:
        a('s_lshl_b32 s43, s38, 20')
        a('s_add_u32 s48, s48, s43')
        a(f's_add_u32 s48, s48, {hex(W2)}')
    a('s_lshl_b32 s43, s39, 10')
    a(f's_mul_i32 s49, s38, {SEG[0][2]-SEG[0][1]}')
    a('s_add_u32 s49, s49, s43')
    a(f's_mul_i32 s38, s38, {P1U}')
    a('s_add_u32 s43, s43, s38')
    a('v_sub_u32 v4, 7, v2')
    a('v_xor_b32 v4, v4, v6')
    a('v_lshl_add_u32 v4, v3, 4, v4')
    a(f'v_lshlrev_b32 v4, 4, v4')
    a(f'v_add_u32 v120, {PB}, v4')
    a('v_lshrrev_b32 v4, 4, v1')
    a('v_xor_b32 v5, v4, v1')
    a('s_lshl_b32 s36, s3, 11')
    a(f's_add_u32 s36, s36, {PB}')
    a('v_lshl_add_u32 v124, v5, 4, s36')
    a('v_xor_b32 v125, 64, v124')
    a('v_lshrrev_b32 v4, 3, v1')
    a('v_lshlrev_b32 v5, 4, v6')
    a('v_lshl_add_u32 v13, v4, 12, v5')
    a('s_lshl_b32 s36, s28, 2')
    a('s_add_u32 s36, s36, s3')
    a('s_lshl_b32 s36, s36, 16')
    a('s_sub_u32 s35, 31, s29')
    a('s_lshl_b32 s35, s35, 7')
    a('s_add_u32 s35, s35, s36')
    if 200 > P.get('probe', 0) >= 100:
        a('v_mov_b32 v22, s60')
        a('s_lshl_b32 s36, s2, 2')
        a(f's_add_u32 s36, s36, {hex(0x140A000)}')
        vm.issue('buffer_store_dword v22, v21, s[16:19], s36 offen sc1')
    def slow_gu():
        a('v_bfe_u32 v4, v1, 1, 3')
        a('v_and_b32 v5, 1, v4')
        a('v_lshlrev_b32 v5, 9, v5')
        a(f'v_mul_u32_u24 v4, 3584, v4')
        a('v_add_u32 v4, v4, v5')
        a('v_and_b32 v5, 1, v1')
        a('v_lshl_add_u32 v4, v5, 10, v4')
        a('v_bfe_u32 v5, v1, 4, 1')
        a('v_lshl_add_u32 v4, v5, 11, v4')
        a('s_lshl_b32 s36, s29, 1')
        a('s_and_b32 s37, s3, 1')
        a('s_add_u32 s36, s36, s37')
        a(f's_mul_i32 s36, s36, {8*3584}')
        a('s_mov_b32 exec_hi, 0')
        vm.issue('buffer_load_dword v252, v4, s[20:23], s36 offen offset:384')
        a('s_mov_b32 exec_hi, -1')
    def slow_d():
        a('v_lshlrev_b32 v4, 10, v1')
        a('s_and_b32 s36, s32, 31')
        a('s_lshl_b32 s36, s36, 2')
        a('s_add_u32 s36, s36, s3')
        a(f's_mul_i32 s36, s36, {14*1024}')
        a('s_mov_b64 exec, 0x3fff')
        vm.issue('buffer_load_dword v253, v4, s[8:11], s36 offen offset:384')
        a('s_mov_b64 exec, -1')
    def slow(at):
        if P.get('sg', 0) == at: slow_gu()
        if P.get('sd', 0) == at: slow_d()
    CR = 32 if P.get('cla', 1) == 1 else 244
    CP = {}
    def cpload():
        if not RL: return
        a('s_mul_i32 s44, s2, 7')
        a('s_lshl_b32 s45, s3, 1')
        a('s_add_u32 s44, s44, s45')
        a('s_cmp_eq_u32 s3, 3')
        a('s_cselect_b32 s45, 0, 1')
        a('s_add_u32 s45, s45, s44')
        for r in range(2):
            a(f's_lshl_b32 s36, s{44+r}, 10')
            CP['l'] = vm.issue(f'buffer_load_dwordx4 v[{CR+4*r}:{CR+3+4*r}], v15, s[8:11], s36 offen' + NC)
    stamp('pre')
    vm.need(tsh)
    lo(a, 52, 48); hi(a, 54, 48, 40); lo(a, 56, 49); hi(a, 58, 49, 40)
    lo(a, 53, 50); hi(a, 55, 50, 40); lo(a, 57, 51); hi(a, 59, 51, 40)
    vm.need(tk[0])
    stamp('kv0')
    if P.get('skat', 1) == 1: skload()
    if P.get('wat', 3) == 1: wmload()
    def xload():
        vm.issue('buffer_load_dwordx4 v[232:235], v15, s[12:15], s33 offen' + NX)
        return vm.issue('buffer_load_dwordx4 v[236:239], v15, s[12:15], s33 offen offset:1024' + NX)
    for q in range(3):
        lo(a, 60+2*q, 24+q); hi(a, 61+2*q, 24+q, 40)
    for r in range(8):
        vm.need(tk[r])
        lo(a, 66+2*r, 27+r); hi(a, 67+2*r, 27+r, 40)
        lo(a, 84+2*r, 36+r); hi(a, 85+2*r, 36+r, 40)
        d = 102+2*r
        a(f'v_pk_mul_f32 v[{d}:{d+1}], v[{60+2*r}:{61+2*r}], v[58:59]')
        a(f'v_pk_fma_f32 v[{d}:{d+1}], v[{62+2*r}:{63+2*r}], v[56:57], v[{d}:{d+1}]')
        a(f'v_pk_fma_f32 v[{d}:{d+1}], v[{64+2*r}:{65+2*r}], v[54:55], v[{d}:{d+1}]')
        a(f'v_pk_fma_f32 v[{d}:{d+1}], v[{66+2*r}:{67+2*r}], v[52:53], v[{d}:{d+1}]')
        a(f'v_pk_mul_f32 v[{d}:{d+1}], v[{d}:{d+1}], v[{84+2*r}:{85+2*r}]')
    if P.get('skat', 1) == 2: skload()
    if P.get('wat', 3) == 2: wmload()
    if P.get('cla', 1) == 0: cpload()
    a('s_mov_b64 s[96:97], s[64:65]')
    slow(1)
    stamp('kvN')
    for c in range(2):
        for jj in range(4):
            a(f'v_cvt_pk_bf16_f32 v{24+4*c+jj}, v{102+2*(7-2*jj)+c}, v{102+2*(6-2*jj)+c}')
        a(f'ds_write_b128 v120, v[{24+4*c}:{27+4*c}] offset:{128*c}')
    a('s_waitcnt lgkmcnt(0)')
    a('s_barrier')
    stamp('abar')
    for j in range(2): a(f'ds_read_b128 v[{104+4*j}:{107+4*j}], v{124+j} offset:{1024*j}')
    a('s_mul_i32 s50, s50, 1664525')
    a('s_add_u32 s50, s50, 1013904223')
    a('v_mov_b32 v20, s50')
    a('s_getreg_b32 s100, hwreg(HW_REG_XCC_ID, 0, 4)')
    if P.get('slow'): a('s_and_b32 s100, s29, 1')
    a('s_add_u32 s100, s100, s50')
    a('s_add_u32 s100, s100, 1')
    a('s_mov_b32 s24, s35')
    a('s_add_u32 s25, s35, 0x8000')
    ustores = [f'buffer_store_dwordx4 v[{104+4*j}:{107+4*j}], v13, s[16:19], s{24+j} offen' for j in range(2)]
    for j in range(2):
        a(f's_waitcnt lgkmcnt({1-j})')
        tus = vm.issue(ustores[j] + (' sc1' if P.get('uts', 0) else ''))
    a('s_lshl_b32 s7, s3, 7')
    a('s_lshl_b32 s36, s29, 2')
    a('s_add_u32 s7, s7, s36')
    a('v_mov_b32 v123, s100')
    if P.get('skat', 1) == 3: skload()
    if P.get('wat', 3) == 3: wmload()
    tsk = SK['t']
    stamp('utst')
    def rowflag():
        vm.need(tus)
        masked([f'buffer_store_dword v123, v21, s[52:55], s7 offen offset:{UH}'], 1)
    if P.get('ff', 0): rowflag()
    for i in range(4): a(f'v_mov_b32 v{40+i}, 0')
    a(f'v_add_u32 v14, {CB}, v14')
    a('v_cmp_gt_u32 vcc, 32, v0')
    a('s_and_saveexec_b64 s[36:37], vcc')
    a('s_cbranch_execz L_nz')
    a('ds_write_b128 v14, v[40:43]')
    a(f'ds_write_b128 v14, v[40:43] offset:{CHS}')
    a('v_cmp_gt_u32 vcc, 2, v0')
    a('s_and_b64 exec, exec, vcc')
    for c in range(2):
        a(f'ds_write_b128 v14, v[40:43] offset:{c*CHS+U0+4096}')
        a(f'ds_write_b128 v14, v[40:43] offset:{c*CHS+U1+4096}')
    a.label('L_nz')
    a('s_mov_b64 exec, s[36:37]')
    a('v_cmp_eq_u32 s[36:37], 0, v0')
    a('s_lshl_b32 s4, s34, 16')
    a('s_and_b32 s5, s34, 0xffff0000')
    a('s_mov_b32 s6, 0xffff')
    vm.need(tsk)
    stamp('skok')
    for c in range(2):
        kx = 146+4*c
        lo(a, 44, kx)
        a(f'v_add_f32 v44, s{4+c}, v44')
        a('v_cvt_pk_bf16_f32 v44, v44, v44')
        a(f'v_bfi_b32 v44, s6, v44, v{kx}')
        a(f'v_cndmask_b32 v{kx}, v{kx}, v44, s[36:37]')
        a(f'ds_write_b128 v14, v[{kx}:{kx+3}] offset:{c*CHS+KB}')
    if not P.get('ff', 0): rowflag()
    a('v_and_b32 v120, 31, v1')
    a('v_lshlrev_b32 v120, 2, v120')
    a('s_lshr_b32 s5, s29, 3')
    a('s_lshl_b32 s5, s5, 7')
    hloads = [f'buffer_load_dword v121, v120, s[52:55], 0 offen offset:{XID} sc1', f'buffer_load_dword v124, v120, s[52:55], s5 offen offset:{UH} sc1']
    a('v_mov_b32 v121, s50')
    tu = masked(hloads[1:], 0xffffffff)
    if P.get('wat', 3) == 4: wmload()
    tc, twm = WM['tc'], WM['twm']
    base(a, 12, 96, 0x200000)
    a('v_lshrrev_b32 v4, 1, v6')
    a('v_lshlrev_b32 v4, 11, v4')
    a('v_lshl_add_u32 v4, v16, 6, v4')
    a('v_lshrrev_b32 v5, 5, v1')
    a('v_lshl_add_u32 v4, v5, 5, v4')
    a('v_bfe_u32 v5, v1, 4, 1')
    a('v_lshl_add_u32 v126, v5, 4, v4')
    a('s_lshl_b32 s35, s32, 13')
    a('s_add_u32 s34, s35, 0x1000')
    a('v_lshlrev_b32 v125, 4, v0')
    vm.need(tc)
    lo(a, 44, 144); hi(a, 45, 144, 40); lo(a, 46, 145); hi(a, 47, 145, 40)
    for r in range(4): a(f'v_mul_f32 v{48+r}, {fh(-1.4426950408889634)}, v{44+r}')
    for r in range(4): a(f'v_exp_f32 v{48+r}, v{48+r}')
    for r in range(4): a(f'v_add_f32 v{48+r}, 1.0, v{48+r}')
    for r in range(4): a(f'v_rcp_f32 v{48+r}, v{48+r}')
    for r in range(4): a(f'v_mul_f32 v{44+r}, v{44+r}, v{48+r}')
    a('v_cvt_pk_bf16_f32 v48, v44, v45')
    a('v_cvt_pk_bf16_f32 v49, v46, v47')
    lo(a, 44, 48); hi(a, 45, 48, 40); lo(a, 46, 49); hi(a, 47, 49, 40)
    def stage1():
        for r in range(4):
            vm.need(twm[r])
            unpack8(a, 52, 128+4*r, 40)
            sel = 'op_sel:[0,0,0] op_sel_hi:[1,0,1]' if r % 2 == 0 else 'op_sel:[0,1,0] op_sel_hi:[1,1,1]'
            sp = 44 + (r & 2)
            for j in range(4):
                if r == 0:
                    a(f'v_pk_mul_f32 v[{60+2*j}:{61+2*j}], v[{52+2*j}:{53+2*j}], v[{sp}:{sp+1}] op_sel:[0,0] op_sel_hi:[1,0]')
                else:
                    a(f'v_pk_fma_f32 v[{60+2*j}:{61+2*j}], v[{52+2*j}:{53+2*j}], v[{sp}:{sp+1}], v[{60+2*j}:{61+2*j}] {sel}')
        for j in range(4): a(f'v_permlane32_swap_b32 v{60+j}, v{64+j}')
        for j in range(4): a(f'v_add_f32 v{60+j}, v{60+j}, v{64+j}')
        a('s_lshr_b32 s6, s46, 2')
        a('s_lshl_b32 s6, s6, 13')
        for j in range(2): a(f'v_permlane16_swap_b32 v{60+j}, v{62+j}')
        a('s_lshl_b32 s36, s47, 7')
        for j in range(2): a(f'v_add_f32 v{100+j}, v{60+j}, v{62+j}')
        a('v_mov_b32 v102, s50')
        a('v_mov_b32 v103, s50')
        for j in range(2): a(f'v_add_f32_dpp v{100+j}, v{100+j}, v{100+j} row_ror:8 row_mask:0xf bank_mask:0xf')
        a('s_add_u32 s6, s6, s36')
        a(f's_add_u32 s6, s6, {hex(MP)}')
        a('s_cmp_lt_u32 s29, 24')
        a(f's_cselect_b32 s6, s6, {hex(TS)}')
    if P.get('s1at', 1) == 0: stage1()
    a('s_lshr_b32 s36, s3, 1')
    a(f's_mul_i32 s36, s36, {CHS}')
    a('s_xor_b32 s38, s39, 1')
    a('s_lshl_b32 s38, s38, 6')
    a('s_add_u32 s36, s36, s38')
    a(f's_add_u32 s36, s36, {CB}')
    a('v_and_b32 v3, 15, v0')
    a('v_bfe_u32 v4, v0, 4, 2')
    a('v_lshlrev_b32 v5, 4, v4')
    a('v_lshl_add_u32 v22, v3, 5, v5')
    a(f's_add_u32 s38, s36, {KB-480}')
    a('v_add_u32 v22, s38, v22')
    a('v_and_b32 v23, 14, v3')
    a('v_lshlrev_b32 v23, 1, v23')
    a('v_sub_u32 v23, v5, v23')
    a(f'v_mul_u32_u24 v5, {U1-U0}, v16')
    a('v_sub_u32 v23, v23, v5')
    a(f's_add_u32 s38, s36, {U1+28}')
    a('v_add_u32 v16, s38, v23')
    for i in range(1, 4): a(f'v_add_u32 v{16+i}, {1024*i}, v16')
    a('v_bfe_u32 v5, v3, 1, 2')
    a('v_xor_b32 v5, v5, v4')
    a('v_lshl_add_u32 v5, v3, 2, v5')
    a('s_lshl_b32 s38, s3, 13')
    a(f's_add_u32 s38, s38, {PB}')
    a('v_lshl_add_u32 v23, v5, 4, s38')
    KP = P.get('kp', 1)
    if KP:
        a('s_waitcnt lgkmcnt(0)')
        a('s_barrier')
        for j in range(4, 32): a(f'ds_read_b128 v[{104+4*j}:{107+4*j}], v22 offset:{128*j}') if not 120 <= 104+4*j < 156 else None
    a(f's_mov_b32 s51, {SPIN}')
    a('s_mov_b32 s101, 0')
    vm.need(tu)
    stamp('ut1st')
    if PM: a('s_mov_b32 exec_hi, 0')
    a('s_branch L_uh_chk')
    a.label('L_uh')
    if SL: a(f's_sleep {SL}')
    a(f's_cmp_lg_u32 s51, {SPIN - P.get("idl", 48)}')
    a('s_cbranch_scc1 L_noid')
    a('s_cmp_lg_u32 s3, 0')
    a('s_cbranch_scc1 L_noid')
    a('s_lshl_b32 s36, s29, 2')
    a('s_mov_b64 exec, 1')
    a(f'buffer_store_dword v123, v21, s[52:55], s36 offen offset:{XID} sc1')
    a('s_mov_b64 exec, 0xffffffff' if PM else 's_mov_b64 exec, -1')
    a.label('L_noid')
    for l in hloads: a(l)
    a('s_waitcnt vmcnt(0)')
    a.label('L_uh_chk')
    a('v_cmp_ne_u32 vcc, s100, v124')
    a('v_subrev_u32 v122, s50, v121')
    a('v_subrev_u32 v122, 1, v122')
    a('s_cbranch_vccz L_uh_ok')
    a('v_cmp_lt_u32 vcc, 15, v122')
    a('v_cmp_ne_u32 s[92:93], s100, v121')
    a('s_sub_u32 s51, s51, 1')
    a('s_cbranch_scc1 L_uh_ok')
    a('s_cbranch_vccnz L_uh')
    a('s_cmp_eq_u64 s[92:93], 0')
    a('s_cbranch_scc1 L_uh_same')
    a('s_cmp_lg_u32 s101, 0')
    a('s_cbranch_scc1 L_uh_same')
    a('s_mov_b32 s101, 1')
    a('s_mov_b64 exec, -1')
    for l in ustores: a(l + ' sc1')
    a('s_waitcnt vmcnt(0)')
    a(f'buffer_store_dword v20, v21, s[52:55], s7 offen offset:{UH} sc1')
    if PM: a('s_mov_b32 exec_hi, 0')
    a.label('L_uh_same')
    a('v_cmp_ne_u32 vcc, s50, v124')
    a('v_cmp_ne_u32 s[92:93], s100, v124')
    a('s_nop 0')
    a('s_and_b64 vcc, vcc, s[92:93]')
    a('s_cbranch_vccnz L_uh')
    a.label('L_uh_ok')
    a('s_mov_b64 exec, -1')
    raw(6, 's51'); raw(0, 's101')
    stamp('uhok')
    tu = []
    for c in range(2):
        vm.issue(f'buffer_load_dwordx4 v[{72+4*c}:{75+4*c}], v125, s[16:19], s{35-c} offen sc1')
        tu.append(vm.issue(f'buffer_load_dword v{80+c}, v125, s[16:19], s{35-c} offen offset:16 sc1'))
    if P.get('s1at', 1) == 1: stage1()
    lstore(['buffer_store_dwordx4 v[100:103], v126, s[16:19], s6 offen'])
    if KP:
        for j in list(range(4)) + list(range(4, 13)): a(f'ds_read_b128 v[{104+4*j}:{107+4*j}], v22 offset:{128*j}')
    if P.get('xat', 1) == 1: tx = xload()
    if P.get('cla', 1) == 1: cpload()
    if RP:
        a('s_lshl_b32 s43, s2, 1')
        a('s_add_u32 s43, s43, s39')
        a('s_mul_i32 s36, s43, 3584')
        for r in range(2): CP['pl'] = vm.issue(f'buffer_load_dwordx4 v[{24+4*r}:{27+4*r}], v15, s[20:23], s36 offen offset:{1024*r}' + NC)
    def p2copy():
        a('v_lshrrev_b32 v4, 3, v1')
        a('v_lshlrev_b32 v4, 16, v4')
        a('v_lshl_add_u32 v4, v6, 4, v4')
        a('s_lshr_b32 s36, s3, 1')
        a('s_lshl_b32 s36, s36, 20')
        a('s_lshl_b32 s43, s43, 7')
        a('s_add_u32 s36, s36, s43')
        a(f's_add_u32 s36, s36, {hex(W2)}')
        vm.need(CP['pl'])
        vm.issue('buffer_store_dwordx4 v[24:27], v4, s[16:19], s36 offen sc1')
        a('s_add_u32 s36, s36, 0x80000')
        CP['s'] = vm.issue('buffer_store_dwordx4 v[28:31], v4, s[16:19], s36 offen sc1')
    def wdcopy():
        a('v_lshrrev_b32 v4, 3, v1')
        a(f'v_mul_u32_u24 v4, {1792*128}, v4')
        a('v_lshl_add_u32 v4, v6, 4, v4')
        vm.need(CP['l'])
        for r in range(2):
            a(f's_lshl_b32 s36, s{44+r}, 7')
            a(f's_add_u32 s36, s36, {hex(WD2)}')
            CP['s'] = vm.issue(f'buffer_store_dwordx4 v[{CR+4*r}:{CR+3+4*r}], v4, s[16:19], s36 offen sc1')
    a('s_movk_i32 s36, 0xff')
    a('v_cmp_ne_u32 vcc, s36, v0')
    for c in range(2):
        u = 72+4*c
        vm.need(tu[c])
        if c == 0: stamp('utok')
        a(f'v_cndmask_b32 v{80+c}, 0, v{80+c}, vcc')
        a(f'ds_write_b128 v14, v[{u}:{u+3}] offset:{c*CHS+U0}')
        for j in range(3): a(f'v_alignbit_b32 v{40+4*c+j}, v{u+j+1}, v{u+j}, 16')
        a(f'v_alignbit_b32 v{43+4*c}, v{80+c}, v{u+3}, 16')
        a(f'ds_write_b128 v14, v[{40+4*c}:{43+4*c}] offset:{c*CHS+U1}')
    for _ in range(P.get('e0b', 3)): early.popleft()()
    a('s_waitcnt lgkmcnt(0)')
    a('s_barrier')
    stamp('bbar')
    if RL and P.get('cpa', 10) < 0: wdcopy()
    a('s_lshl_b32 s6, s46, 11')
    a(f's_add_u32 s6, s6, {hex(MP)}')
    a('s_lshl_b32 s5, s46, 6')
    a(f's_add_u32 s5, s5, {hex(MODT)}')
    a('s_cmp_lt_u32 s29, 24')
    a(f's_cselect_b32 s7, s3, 1')
    a('s_cmp_eq_u32 s7, 0')
    a(f's_cselect_b32 s6, s6, {hex(TS)}')
    a(f's_cselect_b32 s5, s5, {hex(TS)}')
    a('s_lshr_b32 s36, s46, 5')
    a('s_cmp_eq_u32 s36, 1')
    a('s_cselect_b32 s4, 1.0, 0')
    a('s_cmp_eq_u32 s36, 4')
    a('s_cselect_b32 s4, 1.0, s4')
    ploads = [f'buffer_load_dwordx4 v[{240+4*j}:{243+4*j}], v15, s[16:19], s6 offen offset:{1024*j} sc1' for j in range(2)]
    tmi = []
    def mod_issue():
        for l in ploads: t = vm.issue(l)
        tmi.append(t)
    def mod_check():
        vm.need(tmi[0])
        a('s_cmp_lg_u32 s7, 0')
        a('s_cbranch_scc1 L_nomod')
        done = vm.done
        poll('mp', ploads, [242, 246], pre=0)
        vm.done = done
        a.label('L_nomod')
    st2 = deque(['v_add_f32 v240, v240, v244', 'v_add_f32 v241, v241, v245', 'v_mov_b32 v246, s50', 'v_mov_b32 v247, s50'])
    st2.extend(f'v_add_f32_dpp v{240+j}, v{240+j}, v{240+j} row_ror:8 row_mask:0xf bank_mask:0xf' for j in range(2))
    for op in ('v_permlane16_swap_b32', 'v_permlane32_swap_b32'):
        st2.extend(f'v_mov_b32 v{242+j}, v{240+j}' for j in range(2))
        st2.extend(f'{op} v{240+j}, v{242+j}' for j in range(2))
        st2.extend(f'v_add_f32 v{240+j}, v{240+j}, v{242+j}' for j in range(2))
    st2.extend(['v_cvt_pk_bf16_f32 v242, v240, v241', 'v_lshlrev_b32 v243, 3, v1', 'v_lshlrev_b32 v240, 16, v242', 'v_and_b32 v241, s40, v242',
                'v_add_f32 v240, s4, v240', 'v_add_f32 v241, s4, v241', 'v_cvt_pk_bf16_f32 v244, v240, v241', None,
                'v_mov_b32_dpp v245, v244 quad_perm:[1,1,3,3] row_mask:0xf bank_mask:0xf', None, 'store'])
    def st2_step():
        for _ in range(2):
            if not st2: return
            x = st2.popleft()
            if x is None: return
            if x == 'store': masked(['buffer_store_dwordx4 v[244:247], v243, s[16:19], s5 offen sc1'], 0x55)
            else: a(x)
    ACC, AR, BR = 40, 72, 104
    pipe = LdsPipe(a)
    reads = []
    for i in range(32):
        o = 32*((31-i) & 7); b = 16 + ((31-i) >> 3); d = AR + 4*(i & 7)
        reads.append((('A', i, 0), f'ds_read2_b32 v[{d}:{d+1}], v{b} offset0:{o} offset1:{o+1}'))
        reads.append((('A', i, 1), f'ds_read2_b32 v[{d+2}:{d+3}], v{b} offset0:{o+2} offset1:{o+3}'))
        if i < 4 and not KP:
            for t in range(8):
                j = 4*t+3-i
                reads.append((('B', j), f'ds_read_b128 v[{BR+4*j}:{BR+4*j+3}], v22 offset:{128*j}'))
    tok = {('B', j): 0 for j in range(32)} if KP else {}; nxt = [0]
    def pump(cur_step, maxn):
        n = 0
        while n < maxn and nxt[0] < len(reads) and pipe.outstanding() < 13:
            key, line = reads[nxt[0]]
            if key[0] == 'A' and key[1] >= cur_step + 8: break
            tok[key] = pipe.issue(line); nxt[0] += 1; n += 1
    pump(0, 12)
    if P.get('p2m', 0):
        a('v_lshlrev_b32 v4, 7, v1')
        a('s_lshl_b32 s36, s2, 1')
        a('s_add_u32 s36, s36, s39')
        a('s_mul_i32 s36, s36, 3584')
        masked(['buffer_load_dword v248, v4, s[20:23], s36 offen'], 0xffff)
    slow(2)
    a('v_lshrrev_b32 v2, 1, v0')
    a('v_bfe_u32 v3, v0, 4, 2')
    a('v_xor_b32 v2, v2, v3')
    a('v_lshlrev_b32 v2, 4, v2')
    a('v_and_b32 v3, 1, v0')
    a('v_lshl_add_u32 v2, v3, 3, v2')
    a(f'v_add_u32 v2, {PB}, v2')
    a('v_lshlrev_b32 v3, 4, v0')
    a(f's_mul_i32 s38, s32, {YP}')
    a(f's_add_u32 s38, s38, {hex(YT)}')
    YE = P.get('ye', 20)
    ye = deque(); ptk = {}; YS_ = {}
    def ystore(j):
        q = 24+4*j if not (YE and j < 2) else 200+4*j
        YS_['t'] = vm.issue(f'buffer_store_dwordx4 v[{q}:{q+3}], v3, s[16:19], s38 offen sc1')
        if j < 3: a('s_add_u32 s38, s38, 0x1000')
    def yearly():
        if RL or RP: vm.need(CP['s'])
        pipe.need(ptk[3])
        a('s_barrier')
        for j in range(2):
            b = 208+8*j; q = 200+4*j
            for w in range(4): ye.append(('rd', f'ds_read_b64 v[{b+2*w}:{b+2*w+1}], v2 offset:{8192*w+2048*j}'))
        for j in range(2):
            b = 208+8*j; q = 200+4*j
            ye.extend([f'v_mov_b32 v{q+2}, s50', f'v_mov_b32 v{q+3}, s50', ('need', 4*j+3)])
            ye.extend(f'v_add_f32 v{b+r}, v{b+r}, v{b+r+2}' for r in (0, 4, 1, 5))
            ye.extend([f'v_cvt_pk_bf16_f32 v{q}, v{b}, v{b+4}', f'v_cvt_pk_bf16_f32 v{q+1}, v{b+1}, v{b+5}', ('st', j)])
    yt_ = []
    def ye_step(n):
        while ye and n > 0:
            x = ye[0]
            if isinstance(x, str): a(x); n -= 1
            elif x[0] == 'rd':
                if pipe.outstanding() >= 14: return
                yt_.append(pipe.issue(x[1])); n -= 1
            elif x[0] == 'need': pipe.need(yt_[x[1]])
            else: ystore(x[1]); n -= 1
            ye.popleft()
    pending = []; nm = 0
    NB = P.get('e1', 12); EV = P.get('ev', 9)
    for i in range(32):
        for t in range(i >> 2, 8):
            j = 4*t+3-i
            while ('B', j) not in tok or ('A', i, 1) not in tok:
                pipe.need(pipe.done + 2); pump(i, 2)
            pipe.need(max(tok[('A', i, 1)], tok[('B', j)]))
            d = ACC+4*t; c = '0' if i == 0 else f'v[{d}:{d+3}]'
            s = AR+4*(i & 7)
            a(f'v_mfma_f32_16x16x32_bf16 v[{d}:{d+3}], v[{s}:{s+3}], v[{BR+4*j}:{BR+4*j+3}], {c}')
            pump(i, 2 if i < 4 else 1)
            nm += 1
            if i > P.get('mfin', 8): st2_step()
            ye_step(2)
            if nm >= P.get('e1s', 10) and nm % EV == 0 and NB > 0 and early:
                early.popleft()(); NB -= 1
        if pending and pipe.outstanding() < 14:
            t = pending.pop()
            ptk[t] = pipe.issue(f'ds_write_b128 v23, v[{ACC+4*t}:{ACC+4*t+3}] offset:{1024*t}')
        if YE and i == YE: yearly()
        if (i & 3) == 3: pending.append(i >> 2)
        if RL and i == P.get('cpa', 10): wdcopy()
        if RP and i == P.get('cpa', 10) + 1: p2copy()
        if i == P.get('mpi', 3): mod_issue()
        if i == P.get('mfin', 8): mod_check(); raw(7, 's51')
    for t in pending:
        pipe.issue(f'ds_write_b128 v23, v[{ACC+4*t}:{ACC+4*t+3}] offset:{1024*t}')
    assert not st2
    while ye: pipe.need(pipe.issued); ye_step(100)
    stamp('bend')
    a('v_lshlrev_b32 v4, 3, v0')
    a(f'v_add_u32 v4, {PRM}, v4')
    a('v_and_b32 v5, 3, v0')
    a(f'v_add_u32 v13, {PRM}, v15')
    a('s_and_b32 s36, s32, 7')
    if DX: a(f's_xor_b32 s36, s36, {DX}')
    a('s_lshl_b32 s36, s36, 1')
    a('s_and_b32 s37, s3, 1')
    a('s_or_b32 s36, s36, s37')
    a('s_lshl_b32 s36, s36, 6')
    a(f's_add_u32 s36, s36, {PRM+5120}')
    a('v_lshrrev_b32 v14, 5, v1')
    a('v_lshl_add_u32 v14, v14, 4, s36')
    if RL or RP: vm.need(CP['s'])
    if RL and P.get('wr2', 0):
        a('v_and_b32 v252, 7, v1')
        a(f'v_mul_u32_u24 v252, {1792*128}, v252')
        a('v_bfe_u32 v253, v1, 3, 1')
        a('v_lshl_add_u32 v252, v253, 7, v252')
        a('s_lshl_b32 s36, s44, 7')
        a(f's_add_u32 s36, s36, {hex(WD2)}')
        masked(['buffer_load_dword v253, v252, s[16:19], s36 offen sc1'], 0xffff)
    a('s_waitcnt lgkmcnt(0)')
    a('s_barrier')
    stamp('pbar')
    J0 = 2 if YE else 0
    for j in range(J0, 4):
        for w in range(4):
            a(f'ds_read_b64 v[{72+8*j+2*w}:{73+8*j+2*w}], v2 offset:{8192*w+2048*j}')
        if j == 2 and not YE: a('s_waitcnt lgkmcnt(8)')
    a('s_lshl_b32 s35, s3, 10')
    a(f's_add_u32 s35, s35, {hex(MODT)}')
    a('s_add_u32 s34, s35, 0x1000')
    a('s_add_u32 s4, s35, 0x2000')
    mloads = [f'buffer_load_dwordx4 v[{104+4*r}:{107+4*r}], v15, s[16:19], s{(35, 34, 4)[r]} offen sc1' for r in range(3)]
    TM = [None]
    if P.get('mde', 2) == 1:
        for l in mloads: TM[0] = vm.issue(l)
    for j in range(J0, 4):
        b = 72+8*j; q = 24+4*j
        a(f'v_mov_b32 v{q+2}, s50')
        a(f'v_mov_b32 v{q+3}, s50')
        if j: a(f's_waitcnt lgkmcnt({12-4*j})')
        a(f'v_pk_add_f32 v[{b}:{b+1}], v[{b}:{b+1}], v[{b+2}:{b+3}]')
        a(f'v_pk_add_f32 v[{b+4}:{b+5}], v[{b+4}:{b+5}], v[{b+6}:{b+7}]')
        a(f'v_cvt_pk_bf16_f32 v{q}, v{b}, v{b+4}')
        a(f'v_cvt_pk_bf16_f32 v{q+1}, v{b+1}, v{b+5}')
        ystore(j)
    tys = YS_['t']
    stamp('ytst')
    a('v_mov_b32 v22, v4')
    a('v_mov_b32 v23, v14')
    a('v_mov_b32 v60, v5')
    slow(3)
    a('v_mov_b32 v5, v60')
    if P.get('mde', 2) == 2:
        for l in mloads: TM[0] = vm.issue(l)
    for _ in range(P.get('e2', 6)): early.popleft()()
    a('v_lshrrev_b32 v4, 2, v0')
    a(f'v_mul_u32_u24 v3, {2*YS}, v5')
    a('v_lshl_add_u32 v3, v4, 2, v3')
    a(f'v_add_u32 v3, {XG}, v3')
    a(f's_mul_i32 s46, s3, {2*YS}')
    a(f's_add_u32 s46, s46, {XG}')
    a('v_add_u32 v4, s46, v15')
    a('s_lshl_b32 s46, s3, 1')
    a('v_xor_b32 v5, s46, v6')
    a('v_lshlrev_b32 v5, 4, v5')
    a('v_lshl_add_u32 v5, v1, 7, v5')
    a(f'v_add_u32 v5, {XH}, v5')
    a('v_xor_b32 v16, 16, v5')
    a('v_lshrrev_b32 v17, 3, v1')
    a('v_xor_b32 v18, v17, v6')
    a('v_lshlrev_b32 v18, 4, v18')
    a('v_lshl_add_u32 v18, v17, 7, v18')
    a('s_lshl_b32 s46, s3, 11')
    a(f's_add_u32 s46, s46, {XH}')
    a('v_add_u32 v18, s46, v18')
    a('v_lshlrev_b32 v17, 9, v17')
    a('v_lshl_add_u32 v17, v6, 4, v17')
    a('s_lshr_b32 s46, s32, 2')
    a('s_lshl_b32 s46, s46, 15')
    a('s_and_b32 s47, s32, 3')
    a('s_lshl_b32 s47, s47, 7')
    a('s_add_u32 s46, s46, s47')
    a('s_lshl_b32 s47, s3, 13')
    a('s_add_u32 s46, s46, s47')
    a(f's_add_u32 s46, s46, {hex(H2)}')
    a('s_add_u32 s47, s46, 0x1000')
    XO = P.get('xo', 1)
    XS = 's[12:15]' if XO else 's[16:19]'
    base(a, 12, 56, 0x200000)
    a(f's_add_u32 s37, s33, {0 if XO else hex(X1)}')
    a('v_lshrrev_b32 v14, 2, v0')
    a(f'v_mul_u32_u24 v14, {YP}, v14')
    a('v_and_b32 v19, 3, v0')
    a('v_lshl_add_u32 v14, v19, 4, v14')
    a('s_lshl_b32 s24, s32, 6')
    a(f's_add_u32 s26, s24, {hex(YT)}')
    a(f's_add_u32 s27, s26, {64*YP}')
    a(f's_add_u32 s5, s26, {128*YP}')
    a(f's_add_u32 s6, s26, {192*YP}')
    X = (64, 160)
    vm.need(tx)
    subs = []
    for t in range(2):
        s = Asm(); unpack8(s, X[t], 232+4*t, 40); ln2p(s, X[t], X[t]+8, X[t]+16, 24+t)
        subs.append(s)
    zipl(a, *subs)
    stamp('ln1')
    yloads = [f'buffer_load_dwordx4 v[{24+4*j}:{27+4*j}], v14, s[16:19], s{(26, 27, 5, 6)[j]} offen sc1' for j in range(4)]
    MDE = P.get('mde', 2)
    def md_in():
        poll('md', mloads, [106, 110, 114], pre=TM[0])
        stamp('mdok'); raw(1, 's51')
        for r in range(3): a(f'ds_write_b64 v22, v[{104+4*r}:{105+4*r}] offset:{2048*r}')
    def md_use(extra):
        for i, off in enumerate((1024, 0, 2048)):
            a(f'ds_read_b128 v[{40+4*i}:{43+4*i}], v13 offset:{off}')
        for l in extra: a(l)
        for i, off in enumerate((4096, 3072)):
            a(f'ds_read_b128 v[{52+4*i}:{55+4*i}], v13 offset:{off}')
        a('ds_read_b128 v[124:127], v23')
        a('ds_read_b128 v[116:119], v23 offset:32')
        a(f's_waitcnt lgkmcnt({5+len(extra)})')
        unpack8(a, 128, 40, 40); unpack8(a, 136, 44, 40)
        for t in range(2):
            for p in range(4):
                d = X[t]+8+2*p
                a(f'v_pk_fma_f32 v[{d}:{d+1}], v[{d}:{d+1}], v[{128+2*p}:{129+2*p}], v[{136+2*p}:{137+2*p}]')
        a(f's_waitcnt lgkmcnt({4+len(extra)})')
        unpack8(a, 144, 48, 40)
        for t in range(2):
            for p in range(4):
                d = X[t]+8+2*p
                a(f'v_pk_mul_f32 v[{d}:{d+1}], v[{d}:{d+1}], v[{144+2*p}:{145+2*p}]')
        a('s_waitcnt lgkmcnt(0)')
        unpack8(a, 128, 52, 40); unpack8(a, 136, 56, 40)
    if MDE:
        md_in()
        a('s_waitcnt lgkmcnt(0)')
        a('s_barrier')
        md_use([])
    vm.need(tys)
    if P.get('yd'): a(f's_sleep {P["yd"]}')
    stamp('ytack')
    for l in yloads: ty = vm.issue(l)
    if not MDE:
        for l in mloads: TM[0] = vm.issue(l)
    poll('yt', yloads, [26, 30, 34, 38], pre=ty)
    stamp('ytok'); raw(2, 's51')
    for j in range(4):
        a(f'ds_write_b32 v3, v{24+4*j} offset:{256*j}')
        a(f'ds_write_b32 v3, v{25+4*j} offset:{256*j+YS}')
    if not MDE: md_in()
    a('s_waitcnt lgkmcnt(0)')
    a('s_barrier')
    stamp('ybar')
    yreads = ['ds_read_b128 v[24:27], v4', f'ds_read_b128 v[28:31], v4 offset:{YS}']
    if MDE:
        for l in yreads: a(l)
    ptok = {}
    def p2dma(k):
        a(f's_add_u32 m0, s49, {SEG[0][1] + 2048*(k % 15)}')
        if k and k % 4: a(f's_add_u32 s48, s48, {16*PR}')
        elif k: step('s48', 16*PR, 's100', 512*PR)
        ptok[k] = vm.issue('buffer_load_dwordx4 v7, s[16:19], s48 offen sc1 lds' if RP else 'buffer_load_dwordx4 v7, s[20:23], s48 offen lds')
    a(f's_add_u32 s100, s48, {512*PR}')
    a(f's_mul_i32 s36, s98, {64*PR}')
    a('s_add_u32 s48, s48, s36')
    for _ in range(P.get('e3', 3)): early.popleft()()
    NSY = P.get('nsy', 0)
    for k in range(NSY): p2dma(k)
    if MDE: a('s_waitcnt lgkmcnt(0)')
    else: md_use(yreads)
    subs = []
    for t in range(2):
        s = Asm(); x = X[t]
        unpack8(s, x+20, 24+4*t, 40)
        for p in range(4):
            s(f'v_pk_fma_f32 v[{x+2*p}:{x+2*p+1}], v[{x+8+2*p}:{x+9+2*p}], v[{x+20+2*p}:{x+21+2*p}], v[{x+2*p}:{x+2*p+1}]')
        for j in range(4): s(f'v_cvt_pk_bf16_f32 v{32+4*t+j}, v{x+2*j}, v{x+2*j+1}')
        s(f'buffer_store_dwordx4 v[{32+4*t}:{35+4*t}], v15, {XS}, s37 offen offset:{1024*t} sc1')
        unpack8(s, x, 32+4*t, 40)
        (ln1p if P.get('l1', 1) else ln2p)(s, x, x+8, x+16, 24+2*t)
        for p in range(4):
            s(f'v_pk_fma_f32 v[{x+8+2*p}:{x+9+2*p}], v[{x+8+2*p}:{x+9+2*p}], v[{128+2*p}:{129+2*p}], v[{136+2*p}:{137+2*p}]')
        for j in range(4): s(f'v_cvt_pk_bf16_f32 v{40+4*t+j}, v{x+8+2*j}, v{x+9+2*j}')
        s(f'ds_write_b128 v{(5, 16)[t]}, v[{40+4*t}:{43+4*t}]')
        subs.append(s)
    zipl(a, *subs)
    vm.issued += 2
    a('s_waitcnt lgkmcnt(0)')
    a('s_barrier')
    stamp('hbar')
    a('ds_read_b128 v[24:27], v18')
    a('ds_read_b128 v[28:31], v18 offset:1024')
    a('s_and_b32 s24, s32, 31')
    a('s_lshl_b32 s24, s24, 4')
    a('s_lshl_b32 s25, s3, 2')
    a('s_add_u32 s33, s24, s25')
    a('s_and_b32 s25, s30, 1')
    a('s_lshl_b32 s25, s25, 8')
    a('s_lshl_b32 s26, s3, 6')
    a('s_add_u32 s25, s25, s26')
    a('v_and_b32 v19, 15, v1')
    a('v_lshlrev_b32 v19, 2, v19')
    if M2:
        a('s_lshl_b32 s25, s3, 2')
        a('s_lshl_b32 s24, s32, 7')
        a('s_add_u32 s24, s24, s25')
        a(f's_add_u32 s24, s24, {hex(FL1)}')
        a('s_lshl_b32 s33, s30, 4')
        a('s_or_b32 s33, s33, s31')
        a('s_lshl_b32 s33, s33, 7')
        a('s_add_u32 s33, s33, s25')
        a(f's_add_u32 s33, s33, {hex(FL2)}')
        a('s_lshl_b32 s26, s30, 4')
        a('s_add_u32 s26, s26, s25')
        a('s_lshl_b32 s26, s26, 7')
        a(f's_add_u32 s97, s26, {hex(FL1)}')
        a('s_lshr_b32 s26, s32, 4')
        a('s_lshl_b32 s26, s26, 4')
        a('s_add_u32 s26, s26, s25')
        a('s_lshl_b32 s26, s26, 7')
        a(f's_add_u32 s25, s26, {hex(FL2)}')
        a('v_bfe_u32 v19, v1, 2, 2')
        a('v_and_b32 v22, 3, v1')
        a('v_lshlrev_b32 v22, 2, v22')
        a('v_lshl_add_u32 v19, v19, 7, v22')
    def flag(F):
        if not M2:
            if PM: a('s_mov_b64 exec, 1')
            t = lstore([f'buffer_store_dword v20, v21, s[52:55], s33 offen offset:{F}'])
            if PM: a('s_mov_b64 exec, -1')
            return t
        if F == F3: a(f's_add_u32 s33, s33, {FL3-FL2}')
        return masked([f'buffer_store_dword v20, v21, s[16:19], {"s24" if F == F1 else "s33"} offen sc1'], 1)
    def look(F):
        if not M2: return [f'buffer_load_dword v22, v{19 if F == F1 else 13}, s[52:55], s25 offen offset:{F} sc1']
        return [f'buffer_load_dword v22, v{19 if F == F1 else 13}, s[16:19], {"s97" if F == F1 else "s25"} offen sc1']
    a('s_waitcnt lgkmcnt(0)')
    lstore(['buffer_store_dwordx4 v[24:27], v17, s[16:19], s46 offen', 'buffer_store_dwordx4 v[28:31], v17, s[16:19], s47 offen'], P.get('h2s', M2))
    if P.get('h2c'):
        for j in range(8): a(f'v_mov_b32 v{108+j}, v{24+j}')
        a('v_mov_b32 v107, v17')
        a('s_mov_b32 s96, s46')
    stamp('h2st')
    a('v_bfe_u32 v4, v1, 4, 1')
    a('v_lshrrev_b32 v5, 5, v1')
    a('v_bfe_u32 v22, v1, 2, 2')
    a('v_and_b32 v23, 3, v1')
    a('v_lshlrev_b32 v23, 3, v23')
    a('v_lshl_add_u32 v3, v5, 3, v22')
    a('v_bfe_u32 v13, v1, 3, 1')
    a('v_lshlrev_b32 v16, 7, v3')
    a('v_add_u32 v16, v16, v23')
    a('v_lshl_add_u32 v16, v13, 6, v16')
    a('v_lshl_add_u32 v16, v4, 5, v16')
    a(f'v_mul_u32_u24 v17, {SEG[0][2]-SEG[0][1]}, v4')
    a(f'v_add_u32 v17, {SEG[0][1]}, v17')
    a(f'v_mul_u32_u24 v18, {P1U}, v4')
    for ct in range(4):
        a(f'v_xor_b32 v14, {32*ct}, v16')
        a(f'v_add_u32 v{246+ct}, v14, v17')
    a('v_mul_u32_u24 v3, 0x60, v3')
    a('v_add_u32 v3, v3, v23')
    a('v_add_u32 v18, v18, v3')
    a('v_lshl_add_u32 v3, v5, 2, v22')
    a('v_lshlrev_b32 v3, 7, v3')
    a('v_lshl_add_u32 v3, v13, 6, v3')
    a('v_lshl_add_u32 v3, v4, 5, v3')
    a('v_add_u32 v3, v3, v23')
    a('s_lshl_b32 s26, s3, 11')
    a('s_and_b32 s27, s3, 1')
    a('s_lshl_b32 s27, s27, 6')
    a('v_xor_b32 v3, s27, v3')
    a('v_add_u32 v240, s26, v3')
    a('v_xor_b32 v241, 64, v240')
    for i in range(1, 3):
        a(f'v_add_u32 v{240+2*i}, {65536*i}, v240')
        a(f'v_add_u32 v{241+2*i}, {65536*i}, v241')
    a(f's_mov_b32 s44, {fh(GC2)}'); a(f's_mov_b32 s45, {fh(GC2)}')
    a(f'v_mov_b32 v2, {fh(GC1)}'); a(f'v_mov_b32 v3, {fh(GC1)}')
    a('s_lshl_b32 s27, s30, 2')
    a('s_add_u32 s27, s27, s3')
    a('s_lshl_b32 s28, s27, 15')
    a(f's_add_u32 s28, s28, {hex(H2)}')
    a('v_add_u32 v14, s28, v15')
    a('s_lshl_b32 s28, s98, 12')
    a('s_waitcnt vmcnt(0)'); vm.done = vm.issued
    stamp('h2dr')
    flag(F1)
    while early: early.popleft()()
    NS0 = min(7, P.get('ns0', 0) + NSY)
    for k in range(NSY, NS0): p2dma(k)
    a('s_mul_i32 s29, s27, 112')
    AN = M2 or P.get('an', 1)
    AP = 1024 if AN else YP
    if AN:
        a('s_lshl_b32 s47, s31, 2')
        a('s_add_u32 s47, s47, s29')
        a('s_lshl_b32 s47, s47, 10')
        a(f's_add_u32 s47, s47, {hex(ACT)}')
    else:
        a('s_lshl_b32 s47, s3, 4')
        a('s_add_u32 s47, s47, s31')
        a(f's_mul_i32 s47, s47, {4*YP}')
        a('s_lshl_b32 s4, s30, 10')
        a(f's_add_u32 s4, s4, {hex(YT)}')
        a('s_add_u32 s47, s47, s4')
    a('s_mul_i32 s46, s31, 3')
    a('s_add_u32 s46, s46, s29')
    a('s_lshl_b32 s46, s46, 10')
    a(f's_add_u32 s46, s46, {hex(ACT + 64*1024)}')
    a('s_lshr_b32 s39, s32, 3')
    a('s_and_b32 s35, s39, 1')
    a(f's_and_b32 s34, s39, {P.get("wrot", 0)}')
    a('s_and_b32 s24, s32, 7')
    if DX: a(f's_xor_b32 s24, s24, {DX}')
    a('s_lshl_b32 s24, s24, 7')
    if RL:
        a(f's_add_u32 s8, s58, {hex(WD2)}')
        a('s_addc_u32 s9, s59, 0')
        a('s_mul_i32 s24, s24, 1792')
    a(f's_mul_i32 s37, s3, {12*WS_}')
    a('s_add_u32 s37, s37, s24')
    a(f's_add_u32 s30, s37, {76*WS_}')
    a(f's_mul_i32 s36, s34, {3*WS_}')
    a('s_add_u32 s37, s37, s36')
    a(f's_add_u32 s37, s37, {64*WS_}')
    a(f's_mul_i32 s38, s3, {16*WS_}')
    a('s_add_u32 s38, s38, s24')
    a(f's_add_u32 s31, s38, {16*WS_}')
    a(f's_mul_i32 s36, s34, {4*WS_}')
    a('s_add_u32 s38, s38, s36')
    if AN:
        a(f's_mul_i32 s4, s39, {224*1024}')
        a('s_lshl_b32 s6, s3, 14')
        a('s_add_u32 s6, s6, s4')
        a(f's_add_u32 s6, s6, {hex(ACT)}')
    else:
        a('s_lshl_b32 s6, s35, 3')
        a('s_add_u32 s6, s6, s3')
        a(f's_mul_i32 s6, s6, {16*YP}')
        a('s_add_u32 s6, s6, s4')
    a(f's_add_u32 s42, s6, {16*AP}')
    a(f's_mul_i32 s36, s34, {4*AP}')
    a('s_add_u32 s6, s6, s36')
    a(f's_mul_i32 s4, s39, {224*1024}')
    a(f's_mul_i32 s5, s3, {12*1024}')
    a('s_add_u32 s5, s5, s4')
    a(f's_add_u32 s5, s5, {hex(ACT + 64*1024)}')
    a(f's_add_u32 s41, s5, {12*1024}')
    a(f's_mul_i32 s36, s34, {3*1024}')
    a('s_add_u32 s5, s5, s36')
    a('s_lshl_b32 s39, s39, 16')
    a('s_and_b32 s24, s32, 7')
    if DX: a(f's_xor_b32 s24, s24, {DX}')
    a('s_lshl_b32 s24, s24, 7')
    a('s_add_u32 s39, s39, s24')
    a('v_bfe_u32 v4, v1, 1, 2')
    a('v_and_b32 v5, 1, v1')
    a('v_lshlrev_b32 v5, 2, v5')
    a(f'v_lshl_add_u32 v4, v4, {7 if M2 else 4}, v5')
    a('s_lshl_b32 s35, s35, 3')
    a('v_add_u32 v13, s35, v4')
    a('s_cmp_ge_u32 s3, 2')
    for r, (reg0, reg1, dist) in enumerate(((250, 16, 112*1024), (251, 17, 112*1024 if AN else 64*YP))):
        a(f's_cselect_b32 s36, {dist}, 0')
        a(f'v_add_u32 v{reg0}, s36, v15')
        a(f's_cselect_b32 s36, 0, {dist}')
        a(f'v_add_u32 v{reg1}, s36, v15')
    a('v_lshlrev_b32 v73, 7, v1')
    a('s_lshl_b32 s34, s2, 2')
    a('s_add_u32 s34, s34, s3')
    a(f's_mul_i32 s34, s34, {14*128}')
    poll('f1', look(F1), [22], mask=0xffff)
    stamp('f1ok'); raw(3, 's51')
    htok = {}
    def h2load(ks):
        htok[ks] = vm.issue(f'buffer_load_dwordx4 a[{4*ks}:{4*ks+3}], v14, s[16:19], s28 offen offset:{1024*(ks&3)} sc1')
        if (ks & 3) == 3:
            a('s_add_u32 s28, s28, 0x1000'); a('s_and_b32 s28, s28, 0x7fff')
    NH0 = P.get('nh0', 6)
    for ks in range(NH0): h2load(ks)
    slow(4)
    a('s_barrier')
    stamp('b0')
    wtok, atok = {}, {}
    def wd0(i):
        so = 's37' if i < 12 else 's38'
        a(f's_add_u32 m0, s26, {8192*WBL[i]}')
        if i not in (0, 12): a(f's_add_u32 {so}, {so}, {WS_}')
        vm.issue(f'buffer_load_dwordx4 v8, s[8:11], {so} offen lds')
    def wd1(i):
        wtok[i] = vm.issue(f'buffer_load_dwordx4 v9, s[8:11], {"s37" if i < 12 else "s38"} offen offset:1024 lds')
    def wreg(i): return ('v', 72 + 8*i) if i < 5 else ('a', 224 + 8*(i-5)) if i < 8 else ('v', AR + 8*(i % 3))
    def wread(i, mt, jj):
        kind, d = wreg(i); ad = 8192*WBL[i]
        return f'ds_read_b64_tr_b16 {kind}[{d+4*mt+2*jj}:{d+4*mt+2*jj+1}], v{240+2*(ad>>16)+mt} offset:{(ad & 0xffff)+1024*jj}'
    def abase(i): return 128 + 8*i if i < 12 else 8*(i-12)
    def act0(i):
        b = abase(i)
        if i < 12:
            if i and i % 4 == 0: a('s_add_u32 s5, s5, 0x1000')
            vm.issue(f'buffer_load_dwordx4 a[{b}:{b+3}], v250, s[16:19], s5 offen offset:{1024*(i & 3)} sc1')
        else:
            if i > 12: a(f's_add_u32 s6, s6, {AP}')
            vm.issue(f'buffer_load_dwordx4 a[{b}:{b+3}], v251, s[16:19], s6 offen sc1')
    def act1(i):
        b = abase(i)
        if i < 12: atok[i] = vm.issue(f'buffer_load_dwordx4 a[{b+4}:{b+7}], v16, s[16:19], s5 offen offset:{1024*(i & 3)} sc1')
        else: atok[i] = vm.issue(f'buffer_load_dwordx4 a[{b+4}:{b+7}], v17, s[16:19], s6 offen sc1')
    valu = deque()
    AR, NA = 24, 6
    ACC1, ACC2 = 192, 128
    pipe = LdsPipe(a)
    steps = [(0, k, ct) for k in range(32) for ct in range(2)] + [(0, k, 2) for k in range(32)] + [(1, k, ct) for k in range(32) for ct in range(4)]
    tok = {}; nxt = [0]
    def rd(n):
        ps, k, ct = steps[n]; d = AR + 4*(n % NA)
        for jj in range(2):
            b, off = (18, (16*k + 4*jj)*96 + 32*ct) if ps == 0 else (246+ct, 2048*(k % 15) + 512*jj)
            tok[n] = pipe.issue(f'ds_read_b64_tr_b16 v[{d+2*jj}:{d+2*jj+1}], v{b} offset:{off}')
    for n in range(NA-1): rd(n)
    nxt[0] = NA-1
    J = dict(h=NH0, p=NS0, w=0, half=False, a=0, ahalf=False, pmax=15, wmax=0, f2=False, lastp=-99)
    stg = {}
    def wfree(i): return i < J['wmax'] and (not 12 <= i < 20 or stg.get(i - 12, 1 << 30) <= pipe.done)
    def job(n):
        if J['half']: J['half'] = False; wd1(J['w']); J['w'] += 1; return 1
        if J['h'] < 32: h2load(J['h']); J['h'] += 1; return 1
        if J['p'] < J['pmax'] and n - J['lastp'] >= PE: p2dma(J['p']); J['p'] += 1; J['lastp'] = n; return 3
        if J['ahalf']: J['ahalf'] = False; act1(J['a']); J['a'] += 1; return 1
        if J['f2'] and J['a'] < 12 and (J['a'] <= J['w'] - P.get('wa', 12) or not wfree(J['w']) or J['w'] >= 28):
            act0(J['a']); J['ahalf'] = True; return 1
        if J['w'] < 28 and wfree(J['w']) and n >= P.get('ws', 112): wd0(J['w']); J['half'] = True; return 3
        return 0
    VB = P.get('vb', 35); PE = P.get('pe', 3); TE = P.get('te', 15); LW = P.get('lw', 2)
    stok = {}; sg = 0; credit = 0; nb = 0; ta = 0; fload = look(F2); tp = None
    F2P, F2C = P.get('f2p', 999), P.get('f2c', 204)
    def gelu_step(x, n):
        if isinstance(x, tuple):
            stok[x[1]] = vm.issue(f'buffer_store_dwordx4 v[{x[2]}:{x[2]+3}], v15, s[16:19], s46 offen offset:{1024*x[1]} sc1')
            stok['at'] = n
        else: a(x)
    for n, (ps, k, ct) in enumerate(steps):
        if n < 64 and ct == 0:
            while k not in htok: job(n)
            vm.need(htok[k])
        if tok[n] > pipe.done: pipe.need(tok[min(n + LW - 1, len(steps) - 1)])
        d = (ACC1, ACC2)[ps] + 16*ct; c = '0' if k == 0 else f'v[{d}:{d+15}]'
        sa = AR + 4*(n % NA)
        a(f'v_mfma_f32_32x32x16_bf16 v[{d}:{d+15}], v[{sa}:{sa+3}], a[{4*k}:{4*k+3}], {c}')
        if nxt[0] < len(steps): rd(nxt[0]); nxt[0] += 1
        if P.get('hard'):
            credit = min(credit, 0) + 10*(P['hard'] - 2 - (n + 1 < len(steps) and tok[n+1] > pipe.done))
        else: credit = min(credit + VB, P.get('cap', 40))
        if n in BARS:
            land, J['pmax'], J['wmax'] = BARS[n][0], J['pmax'], J['wmax']
            if land is not None:
                while land not in ptok:
                    if J['half']: job(n)
                    p2dma(J['p']); J['p'] += 1
                vm.need(ptok[land])
            a('s_barrier')
            J['pmax'], J['wmax'] = BARS[n][1:]
            nb += 1; stamp(f'b{nb}'); credit -= 10
        if n == P.get('wt', 999 if RL else 60):
            a('s_mov_b64 exec, 0x3fff')
            vm.issue('buffer_load_dword v72, v73, s[8:11], s34 offen')
            a('s_mov_b64 exec, -1')
        if n in (65, 97):
            if n == 65: stamp('p1a')
            else: stamp('p1end')
            for t in ((0, 1) if n == 65 else (2,)):
                o = 64 + 4*(t & 1)
                valu.extend(gelu_ops(ACC1+16*t, 48 + 8*(t & 1), o))
                valu.append(('store', t, o))
        if n == P.get('h2c', -1):
            vm.issue('buffer_store_dwordx4 v[108:111], v107, s[16:19], s96 offen sc1')
            a('s_add_u32 s96, s96, 0x1000')
            vm.issue('buffer_store_dwordx4 v[112:115], v107, s[16:19], s96 offen sc1')
        ta += 10
        if n == F2P and 'f2' in stok: tp = masked(fload, 0xff); ta = 0
        elif n == F2C and tp is not None:
            poll('f2', fload, [22], pre=tp, mask=0xff); J['f2'] = True
            stamp('f2ok'); raw(4, 's51')
        elif ta >= TE:
            cst = job(n)
            if cst: ta -= TE; credit -= 10*cst
            else: ta = TE
        if n >= P.get('stg', 160) and sg < 32 and pipe.outstanding() <= 13 and credit >= 10 and (not valu or n % 2):
            i, r = divmod(sg, 4)
            if i in wtok and (wtok[i] <= vm.done or vm.issued - wtok[i] >= P.get('sl', 8)):
                vm.need(wtok[i])
                t = pipe.issue(wread(i, r >> 1, r & 1)); sg += 1; credit -= 10
                if r == 3: stg[i] = t
        while valu and credit >= 10*(cost(valu[0]) if isinstance(valu[0], str) else 1):
            x = valu.popleft(); gelu_step(x, n)
            if isinstance(x, str): credit -= 10*cost(x)
        if 2 in stok and 'f2' not in stok and n >= stok['at'] + P.get('fdel', 32):
            vm.need(stok[2])
            stok['f2'] = flag(F2); print('F2 at', n, end='; ')
    while valu: gelu_step(valu.popleft(), 224)
    if 'f2' not in stok:
        vm.need(stok[2])
        stok['f2'] = flag(F2)
    assert J['p'] == 32 and J['h'] == 32
    print('w_down steps', J['w'], 'staged', sg, 'act steps', J['a'])
    while sg < 32:
        i, r = divmod(sg, 4)
        while i not in wtok: job(999)
        vm.need(wtok[i])
        stg[i] = pipe.issue(wread(i, r >> 1, r & 1)); sg += 1
    pipe.need(pipe.issued)
    if tp is None and P.get('fp', 3) < 4: tp = masked(fload, 0xff)
    a('s_mov_b32 s34, 1.0'); a('s_mov_b32 s35, 1.0')
    def geglu2(t):
        s = Asm(); geglu(s, ACC2+16*t, 48, 64 + 4*(t & 1))
        for j, l in enumerate(s.lines):
            a(l.replace('s[46:47]', 's[34:35]'))
            if j % P.get('ge', 8) == 3 and t < P.get('gt', 4): job(999)
        if t: a(f's_add_u32 s47, s47, {AP}')
        return lstore([f'buffer_store_dwordx4 v[{64+4*(t&1)}:{67+4*(t&1)}], v15, s[16:19], s47 offen'], P.get('a2s', 1))
    for t in range(4):
        if t == P.get('fp', 3) and not J['f2']:
            stamp('g1')
            poll('f2', fload, [22], pre=tp, mask=0xff); J['f2'] = True
            stamp('f2ok'); raw(4, 's51')
        if t == 3 and tp is None: tp = masked(fload, 0xff)
        ts3 = geglu2(t)
    stamp('g3')
    a('v_and_b32 v4, 31, v1')
    a('v_lshrrev_b32 v5, 5, v1')
    a('v_lshlrev_b32 v10, 10, v4')
    a('v_lshl_add_u32 v10, v5, 4, v10')
    a('s_lshr_b32 s46, s3, 1')
    a('s_lshl_b32 s46, s46, 15')
    a('s_and_b32 s47, s3, 1')
    a('s_lshl_b32 s47, s47, 6')
    a('s_add_u32 s39, s39, s46')
    a('s_add_u32 s39, s39, s47')
    a(f's_add_u32 s46, s39, {0 if XO else hex(X1)}')
    F3S = P.get('f3s', 4)
    if F3S < 0:
        vm.need(ts3)
        flag(F3)
    if not J['f2']:
        poll('f2', fload, [22], pre=tp, mask=0xff); J['f2'] = True
        stamp('f2ok'); raw(4, 's51')
        while J['a'] < P.get('a1b', 3): job(999)
    if M2: a(f's_add_u32 s25, s25, {FL3-FL2}')
    stamp('estart')
    pipe = LdsPipe(a); tok = {}
    def rd2(i):
        while i not in wtok: job(999)
        vm.need(wtok[i])
        for mt in range(2):
            for jj in range(2): tok[(i, mt)] = pipe.issue(wread(i, mt, jj))
    f3load = look(F3)
    for i in range(8): stg[i] = 0
    TL = P.get('tl', 2)
    F3C = P.get('f3c', 6); JE = P.get('je', 2); tp = None; g = 0; aq = deque()
    for i in range(28):
        stamp(f'e{i}')
        if F3S >= 0 and 's' not in stok and (i == F3S or atok.get(i, 1 << 30) > ts3):
            vm.need(ts3)
            stok['s'] = flag(F3); print('F3 at step', i)
        if i == F3C:
            while J['a'] < 12 or J['half']: job(999)
            if tp is None: tp = masked(f3load, 0xff)
            poll('f3', f3load, [22], pre=tp, mask=0xff)
            stamp('f3ok'); raw(5, 's51')
            for ii in range(12, 28): aq.extend([lambda ii=ii: act0(ii), lambda ii=ii: act1(ii)])
            for _ in range(P.get('a2b', 4)): aq.popleft()()
        if i == 22:
            vm.issue(f'buffer_load_dwordx4 v[72:75], v10, {XS}, s46 offen sc1')
            tx = vm.issue(f'buffer_load_dwordx4 v[76:79], v10, {XS}, s46 offen offset:32 sc1')
        if i >= 28 - TL: continue
        kind, d0 = wreg(i); b = abase(i)
        while i not in atok: (aq.popleft()() if i >= 12 else job(999))
        vm.need(atok[i])
        for mt in range(2):
            if i >= 8: pipe.need(tok[(i, mt)])
            for nt in range(2):
                d = ACC2 + 32*mt + 16*nt; c = '0' if i == 0 else f'v[{d}:{d+15}]'
                a(f'v_mfma_f32_32x32x16_bf16 v[{d}:{d+15}], {kind}[{d0+4*mt}:{d0+4*mt+3}], a[{b+4*nt}:{b+4*nt+3}], {c}')
                g += 1
                if mt == 0 and nt == 0 and 8 <= i+2 < 28: rd2(i+2)
                if g % JE == 0:
                    if aq and not J['half'] and (J['w'] >= 28 or J['w'] > i + P.get('wb', 28)): aq.popleft()()
                    elif tp is None and not J['half'] and J['a'] == 12 and (J['w'] >= 28 or i == F3C - 1): tp = masked(f3load, 0xff)
                    elif not job(999) and aq: aq.popleft()()
    PBL = [None, (WBL[8], WBL[9]), (WBL[10], WBL[11]), (WBL[12], WBL[13])]
    a('v_add_u32 v4, s26, v15')
    a('v_add_u32 v5, 0x10000, v4')
    def mm(i, t):
        kind, d0 = wreg(i); b = abase(i); mt, nt = t & 1, t >> 1; d = ACC2 + 32*mt + 16*nt
        while i not in atok: aq.popleft()()
        vm.need(atok[i]); pipe.need(tok[(i, mt)])
        a(f'v_mfma_f32_32x32x16_bf16 v[{d}:{d+15}], {kind}[{d0+4*mt}:{d0+4*mt+3}], a[{b+4*nt}:{b+4*nt+3}], v[{d}:{d+15}]')
    def park(t):
        d = ACC2 + 32*(t & 1) + 16*(t >> 1)
        return [f'ds_write_b128 v{(4, 5)[ad >> 16]}, v[{d+4*g}:{d+4*g+3}] offset:{ad & 0xffff}' for g in range(4) for ad in [8192*PBL[t][g >> 1] + 1024*(g & 1)]]
    wr = deque()
    for t in (1, 3, 2, 0):
        for i in range(28 - TL, 28):
            mm(i, t)
            if t != 3:
                for _ in range(4 // TL if TL else 0):
                    if wr: a(wr.popleft())
        if t: wr.extend(park(t))
    stamp('eend')
    while wr: a(wr.popleft())
    for t in range(1, 4):
        a(f's_xor_b32 s6, s26, {2048*t}')
        a(f's_add_u32 s7, s6, {8192*PBL[t][1]}')
        a(f's_add_u32 s6, s6, {8192*PBL[t][0]}')
        a(f'v_add_u32 v{88+2*t}, s6, v15')
        a(f'v_add_u32 v{89+2*t}, s7, v15')
    vm.need(tx)
    unpack8(a, 96, 124, 40); unpack8(a, 104, 116, 40); unpack8(a, 48, 72, 40); unpack8(a, 56, 76, 40)
    a('s_waitcnt lgkmcnt(0)')
    a('s_barrier')
    stamp('ebar')
    for i in range(1, 4):
        for g in range(4):
            a(f'ds_read_b128 v[{128+16*i+4*g}:{131+16*i+4*g}], v{88+2*i+(g >> 1)} offset:{1024*(g & 1)}')
    for i in range(1, 4):
        a(f's_waitcnt lgkmcnt({12-4*i})')
        for p in range(8): a(f'v_pk_add_f32 v[{128+2*p}:{129+2*p}], v[{128+2*p}:{129+2*p}], v[{128+16*i+2*p}:{129+16*i+2*p}]')
    for g in range(2):
        b = 128 + 8*g
        for r in range(4): a(f'v_permlane32_swap_b32 v{b+r}, v{b+4+r}')
        for p in range(4): a(f'v_pk_fma_f32 v[{b+2*p}:{b+2*p+1}], v[{b+2*p}:{b+2*p+1}], v[{96+8*g+2*p}:{97+8*g+2*p}], v[{48+8*g+2*p}:{49+8*g+2*p}]')
        for p in range(4): a(f'v_cvt_pk_bf16_f32 v{40+4*g+p}, v{b+2*p}, v{b+2*p+1}')
        a(f'buffer_store_dwordx4 v[{40+4*g}:{43+4*g}], v10, s[12:15], s39 offen offset:{32*g}' + ('', ' sc1', ' nt')[P.get('ost', 0)])
    a('s_or_b32 s4, s2, s3')
    a('s_cmp_lg_u32 s4, 0')
    a('s_cbranch_scc1 L_noep')
    a(f's_mov_b32 s4, {hex(EPOCH)}')
    masked(['buffer_store_dword v20, v21, s[16:19], s4 offen'], 1)
    a.label('L_noep')
    if P.get('probe') is not None:
        a('s_waitcnt vmcnt(0)')
        stamp('end')
        a('s_waitcnt lgkmcnt(0)')
        k = P['probe']
        if k == 300:
            a('v_mov_b32 v22, s60')
            a(f's_mov_b32 s36, {hex(0x140B000)}')
            a('s_cmp_lg_u32 s2, 0')
            a('s_cbranch_scc1 L_end')
            a('buffer_store_dword v22, v21, s[16:19], s36 offen')
            a('s_branch L_end')
        elif k == 301:
            a(f's_add_u32 s4, s58, {hex(0x140B000)}')
            a('s_addc_u32 s5, s59, 0')
            a('s_load_dword s92, s[4:5], 0')
            a('s_waitcnt lgkmcnt(0)')
            a('s_add_u32 s92, s92, 6000')
        elif k >= 200:
            a(f's_add_u32 s4, s58, {hex(EPOCH + 0x100)}')
            a('s_addc_u32 s5, s59, 0')
            a('s_load_dwordx4 s[92:95], s[4:5], 0')
            a('s_waitcnt lgkmcnt(0)')
            a('s_cmp_eq_u64 s[92:93], s[94:95]')
            a('s_cselect_b32 s92, 10000, 0' if k == 200 else 's_cselect_b32 s92, 0, 10000')
            a('s_add_u32 s92, s92, s70')
        elif k >= 100:
            a(f's_mov_b32 s36, {hex(0x140A000)}')
            a('buffer_load_dwordx4 v[24:27], v15, s[16:19], s36 offen sc1')
            a('s_waitcnt vmcnt(0)')
            for r, op in ((28, 'min'), (29, 'max')):
                a(f'v_{op}_u32 v{r}, v24, v25')
                a(f'v_{op}3_u32 v{r}, v{r}, v26, v27')
                for ctl in ('row_ror:1', 'row_ror:2', 'row_ror:4', 'row_ror:8'):
                    a(f'v_{op}_u32_dpp v{r}, v{r}, v{r} {ctl} row_mask:0xf bank_mask:0xf')
                for i in range(4): a(f'v_readlane_b32 s{4+i}, v{r}, {16*i}')
                a(f's_{op}_u32 s4, s4, s5'); a(f's_{op}_u32 s6, s6, s7'); a(f's_{op}_u32 s{r+62}, s4, s6')
            if k == 100: a('s_add_u32 s92, s90, 6000')
            elif k == 101:
                a('s_sub_u32 s92, s91, s90'); a('s_lshl_b32 s92, s92, 2'); a('s_add_u32 s92, s92, s90'); a('s_add_u32 s92, s92, 4000')
            else:
                a(f's_sub_u32 s92, s{60+2*(k-110)}, s90'); a('s_lshl_b32 s92, s92, 2'); a('s_add_u32 s92, s92, s90'); a('s_add_u32 s92, s92, 4000')
        elif k == 0:
            a('s_add_u32 s92, s60, 6000')
        else:
            a(f's_sub_u32 s92, s{60+2*k}, s60')
            a('s_lshl_b32 s92, s92, 2')
            a('s_add_u32 s92, s92, s60')
            a('s_add_u32 s92, s92, 4000')
        a.label('L_probe')
        a('s_memrealtime s[94:95]')
        a('s_waitcnt lgkmcnt(0)')
        a('s_sub_u32 s94, s94, s92')
        a('s_cmp_lt_i32 s94, 0')
        a('s_cbranch_scc1 L_probe')
    elif P.get('stamps'):
        a('s_waitcnt vmcnt(0)')
        stamp('end')
        a('s_cmp_lg_u32 s3, 0')
        a('s_cbranch_scc1 L_end')
        a('s_lshl_b32 s94, s2, 7')
        a(f's_add_u32 s94, s94, {hex(TS)}')
        a('s_add_u32 s92, s58, s94')
        a('s_addc_u32 s93, s59, 0')
        a('v_lshlrev_b32 v250, 2, v1')
        a('s_lshl_b32 s94, s2, 8')
        a(f's_add_u32 s94, s94, {hex(TS + 0x80000)}')
        a('s_add_u32 s94, s58, s94')
        a('s_addc_u32 s95, s59, 0')
        a('global_store_dword v250, v254, s[94:95]')
        a('s_mov_b64 exec, 1')
        if P.get('dbg'):
            a('s_load_dwordx2 s[94:95], s[0:1], 104')
        a('s_waitcnt lgkmcnt(0)')
        if P.get('dbg'):
            a('s_not_b32 s60, s60')
            for m in sorted(marks):
                a(f'v_mov_b32 v250, s{60+2*m}')
                a(f'global_atomic_umax v21, v250, s[94:95] offset:{4*m}')
                a('s_nop 1')
            a('s_not_b32 s60, s60')
        for m in sorted(marks):
            a(f'v_mov_b32 v250, s{60+2*m}')
            a(f'v_mov_b32 v251, s{61+2*m}')
            a(f'global_store_dwordx2 v21, v[250:251], s[92:93] offset:{8*m}')
            a('s_nop 1')
    a.label('L_end')
    a.label('L_last')
    a('s_endpgm')
    return dict(grid=256, block=256, lds=163840, vgpr=512, accum=256)

def tinyk(a, P, head):
    a('s_cmp_ge_u32 s2, 1')
    a('s_cbranch_scc1 L_tiny_end')
    a('s_memrealtime s[8:9]')
    a(f's_load_dwordx2 s[4:5], s[0:1], {A_WS}')
    a('s_waitcnt lgkmcnt(0)')
    a(f's_add_u32 s4, s4, {hex(0x140B000)}')
    a('s_addc_u32 s5, s5, 0')
    if head:
        a('v_mov_b32 v1, s8')
        a('v_mov_b32 v2, 0')
        a('global_store_dword v2, v1, s[4:5]')
    else:
        a('s_load_dword s6, s[4:5], 0')
        a('s_waitcnt lgkmcnt(0)')
        a('s_add_u32 s6, s6, 6000')
        a('s_mov_b32 s10, 100000')
        a.label('L_tiny')
        a('s_memrealtime s[8:9]')
        a('s_waitcnt lgkmcnt(0)')
        a('s_sub_u32 s10, s10, 1')
        a('s_cbranch_scc1 L_tiny_end')
        a('s_sub_u32 s8, s8, s6')
        a('s_cmp_lt_i32 s8, 0')
        a('s_cbranch_scc1 L_tiny')
    a.label('L_tiny_end')
    a('s_endpgm')
    return dict(grid=1, block=64, lds=0, vgpr=8, accum=8)
```

```python
from collections import deque
from asmlib import *
from k123 import fh, lo, hi, unpack8, ln_stats, LdsPipe, A_OUT, A_WS
from k45 import VmPipe, GC1, GC2, geglu
from cde import zipl, gelu_ops, cost

UT, YT, X1, H2, ACT = 0, 0x400000, 0x900000, 0, 0xD00000
MODT, EPOCH, GRP, MP, TS = 0x1400000, 0x1408000, 0x1410000, 0x1480000, 0x1500000
YP = 16384 + 128
XID, UH, F1, F2, F3 = 0, 128, 1024, 1536, 2048
P1U = 49280
SEG = [(0, 98432, 129152), (15, 0, 49280), (27, 24576, 73856)]
CB, CHS, KB, U0, U1 = 98432, 12992, 512, 4608, 8768
PB = CB + 2*CHS
PRM = PB + 32768
MPART = PRM + 6144
XG = 129152 + 112*128
YS = 1040
XH = XG + 8*YS
PS = 272
SPIN = 1 << 15
WBL1 = list(range(12)) + list(range(8)) + [13, 17, 14, 18, 12, 15, 16, 19]
BARS1 = {89: (5, 15, 0), 111: (9, 19, 20), 127: (13, 23, 20), 143: (17, 27, 20), 159: (21, 31, 20), 175: (25, 32, 20),
        191: (29, 32, 22), 207: (31, 32, 24), 223: (None, 32, 28)}
WBL2 = [5, 11, 12, 13, 14, 16, 17, 18, 15, 19, 0, 6, 5, 11, 12, 13, 14, 16, 17, 18, 1, 2, 7, 8, 3, 4, 9, 10]
BARS2 = {79: (None, 27, 0), 89: (6, 32, 0), 115: (14, 32, 2), 147: (22, 32, 8), 179: (31, 32, 20), 207: (None, 32, 24), 223: (None, 32, 28)}
assert MPART + 512 <= 163840 and XH + 8192 <= 163840
def seg_of(k): return SEG[0] if k < 15 else SEG[1] if k < 27 else SEG[2]

def base(a, d, p, n):
    a(f's_mov_b32 s{d}, s{p}'); a(f's_mov_b32 s{d+1}, s{p+1}'); a(f's_mov_b32 s{d+2}, {hex(n)}')

FL1, FL2, FL3 = 0x1420000, 0x1428000, 0x1430000
def ln1p(a, X, D, T, s0):
    a(f'v_pk_add_f32 v[{T}:{T+1}], v[{X}:{X+1}], v[{X+2}:{X+3}]')
    a(f'v_pk_mul_f32 v[{T+2}:{T+3}], v[{X}:{X+1}], v[{X}:{X+1}]')
    a(f'v_pk_add_f32 v[{D}:{D+1}], v[{X+4}:{X+5}], v[{X+6}:{X+7}]')
    for p in range(1, 4):
        a(f'v_pk_fma_f32 v[{T+2}:{T+3}], v[{X+2*p}:{X+2*p+1}], v[{X+2*p}:{X+2*p+1}], v[{T+2}:{T+3}]')
    a(f'v_pk_add_f32 v[{T}:{T+1}], v[{T}:{T+1}], v[{D}:{D+1}]')
    a(f'v_add_f32 v{T+2}, v{T+2}, v{T+3}')
    a(f'v_add_f32 v{T}, v{T}, v{T+1}')
    for ctl in ('row_shr:1', 'row_shr:2', 'row_shr:4', 'row_shr:8'):
        for r in (T+2, T): a(f'v_add_f32_dpp v{r}, v{r}, v{r} {ctl} row_mask:0xf bank_mask:0xf bound_ctrl:1')
    for ctl in ('row_bcast:15 row_mask:0xa', 'row_bcast:31 row_mask:0xc'):
        for r in (T+2, T): a(f'v_add_f32_dpp v{r}, v{r}, v{r} {ctl} bank_mask:0xf')
    a(f'v_readlane_b32 s{s0+1}, v{T+2}, 63')
    a(f'v_readlane_b32 s{s0}, v{T}, 63')
    a(f'v_mov_b32 v{T+1}, {fh(1.0/512)}')
    a(f'v_mov_b32 v{T+3}, {fh(1e-5)}')
    a(f'v_mul_f32 v{T}, s{s0}, v{T+1}')
    a(f'v_fmac_f32 v{T+3}, s{s0+1}, v{T+1}')
    a(f'v_fma_f32 v{T+2}, -v{T}, v{T}, v{T+3}')
    a(f'v_max_f32 v{T+2}, {fh(1e-5)}, v{T+2}')
    a(f'v_rsq_f32 v{T+2}, v{T+2}')
    a(f'v_mul_f32 v{T+3}, v{T}, v{T+2}')
    for p in range(4):
        a(f'v_pk_fma_f32 v[{D+2*p}:{D+2*p+1}], v[{X+2*p}:{X+2*p+1}], v[{T+2}:{T+3}], v[{T+2}:{T+3}] op_sel:[0,0,1] op_sel_hi:[1,0,1] neg_lo:[0,0,1] neg_hi:[0,0,1]')
def ln2p(s, X, D, T, s0):
    ln_stats(s, X, D, T, s0)
    for p in range(4):
        s(f'v_pk_mul_f32 v[{D+2*p}:{D+2*p+1}], v[{D+2*p}:{D+2*p+1}], v[{T}:{T+1}] op_sel:[0,0] op_sel_hi:[1,0]')

def mega(a, P):
    M2 = P.get('m2', 0)
    LAY = P.get('lay', 2)
    WBL, BARS = (WBL1, BARS1) if LAY == 1 else (WBL2, BARS2)
    DX = P.get('dx', 3)
    RL = P.get('rl', 1)
    RP = P.get('rp', 0)
    W2, PR = 0xB00000, (128 if RP else 3584)
    WD2, WS_ = 0x200000, (2048 if RL else 0x4000)
    H2 = 0xB00000 if M2 else 0
    marks = set()
    SETS = {1: 'start kv0 utst utok bbar end bend ytst ytok h2dr b0 p1end b9 estart f3ok eend',
            2: 'start kv0 kvN abar utst end ut1st uhok utok bbar bend pbar ytst ytack ytok mdok',
            3: 'start ytst ln1 ytack ytok end ybar hbar h2st h2dr f1ok b0 b1 b2 b3 p1end',
            6: 'start b0 p1a p1end b2 end b3 b4 b5 b6 b7 b8 b9 f2ok g3 estart',
            7: 'start estart e2 e4 e6 end f3ok e8 e10 e12 e14 e16 e20 e24 eend ebar',
            9: 'start b0 p1a p1end b5 end b9 estart eend cb0 cp1a cp1end cb5 cb9 cestart ceend',
            10: 'start bbar bend ybar hbar end g3 ebar x8 cbbar cbend cybar chbar x13 cg3 cebar',
            8: 'start x1 x2 x3 x4 end',
            5: 'start karg x2 x3 x4 end x6 x7 x8 x9 x10 x11 x12 kv0 issued pre',
            4: 'start p1end b5 b6 b7 end b8 g1 f2ok g3 estart e12 f3ok e20 eend ebar'}
    names = SETS[P.get('stamps', 1)].split()
    def stamp(name):
        if P.get('stamps') and name in names:
            slot = names.index(name)
            a(f's_memrealtime s[{60+2*slot}:{61+2*slot}]'); marks.add(slot)
        if P.get('stamps') and 'c' + name in names:
            slot = names.index('c' + name)
            a(f's_memtime s[{60+2*slot}:{61+2*slot}]'); marks.add(slot)
    def raw(i, sreg):
        if P.get('stamps'): a(f'v_writelane_b32 v254, {sreg}, {i}')
    vm = VmPipe(a)
    NTM = P.get('nt', 0)
    NK, NV, NS, NW, NX, NC = [' nt' if NTM >> i & 1 else '' for i in range(6)]
    nst = [0]
    def lstore(lines, through=False):
        if through:
            for l in lines: t = vm.issue(l + ' sc1')
            return t
        return lstore2(lines)
    def lstore2(lines):
        n = nst[0]; nst[0] += 1
        a('s_cmp_eq_u32 s101, 0')
        a(f's_cbranch_scc1 L_ls{n}a')
        for l in lines: a(l + ' sc1')
        a(f's_branch L_ls{n}b')
        a.label(f'L_ls{n}a')
        for l in lines: t = vm.issue(l)
        a.label(f'L_ls{n}b')
        return t
    SL = P.get('sleep', 1); PM = 1
    def masked(lines, mask):
        if mask and PM: a(f's_mov_b64 exec, {hex(mask)}')
        for l in lines: t = vm.issue(l)
        if mask and PM: a('s_mov_b64 exec, -1')
        return t
    def poll(name, loads, tags, pre=None, mask=None):
        a(f's_mov_b32 s51, {SPIN}')
        if pre is not None:
            vm.need(pre)
            stamp(name + '1st')
        if mask and PM: a(f's_mov_b64 exec, {hex(mask)}')
        a(f's_branch L_{name}_chk' if pre is not None else f's_branch L_{name}_go')
        a.label(f'L_{name}')
        sl = P.get('ysl', SL) if name in ('yt', 'md') else SL
        if sl: a(f's_sleep {sl}')
        a.label(f'L_{name}_go')
        for l in loads: a(l)
        a('s_waitcnt vmcnt(0)')
        a.label(f'L_{name}_chk')
        a(f'v_cmp_ne_u32 vcc, s50, v{tags[0]}')
        for i, t in enumerate(tags[1:]): a(f'v_cmp_ne_u32 s[{92+2*i}:{93+2*i}], s50, v{t}')
        a('s_sub_u32 s51, s51, 1')
        a(f's_cbranch_scc1 L_{name}_ok')
        for i in range(len(tags)-1): a(f's_or_b64 vcc, vcc, s[{92+2*i}:{93+2*i}]')
        a(f's_cbranch_vccnz L_{name}')
        a.label(f'L_{name}_ok')
        if mask and PM: a('s_mov_b64 exec, -1')
        if pre is None: vm.done = vm.issued

    a('s_cmp_ge_u32 s2, 256')
    a('s_cbranch_scc1 L_end')
    stamp('start')
    if P.get('stamps'): a('v_mov_b32 v254, 0')
    a('s_load_dwordx16 s[64:79], s[0:1], 0')
    if P.get('cpf', 1):
        a('s_getpc_b64 s[4:5]')
        a.label('L_pc')
        a('v_lshlrev_b32 v3, 7, v0')
        a('v_mov_b32 v5, s5')
        a('v_add_co_u32 v4, vcc, s4, v3')
        a(f'v_cmp_gt_u32 s[6:7], {P.get("cpn", 16)}, v0')
        a('v_and_b32 v1, 63, v0')
        a('v_addc_co_u32 v5, vcc, 0, v5, vcc')
        a('s_and_b64 exec, exec, s[6:7]')
        a('s_cbranch_execz L_nopf')
        a('global_load_dword v169, v[4:5], off')
        a.label('L_nopf')
        a('s_mov_b64 exec, -1')
    else: a('v_and_b32 v1, 63, v0')
    a(f's_load_dwordx2 s[58:59], s[0:1], {A_WS}')
    a('s_load_dwordx8 s[80:87], s[0:1], 64')
    a(f's_load_dwordx2 s[56:57], s[0:1], {A_OUT}')
    a('v_lshrrev_b32 v2, 6, v0')
    a('v_readfirstlane_b32 s3, v2')
    a('s_mov_b32 s40, 0xffff0000')
    a('s_and_b32 s28, s2, 7')
    a('s_lshr_b32 s29, s2, 3')
    a('s_lshl_b32 s32, s28, 5')
    a('s_or_b32 s32, s32, s29')
    a('v_and_b32 v3, 31, v0')
    a('v_lshrrev_b32 v2, 5, v0')
    a('s_lshl_b32 s33, s29, 6')
    a('v_lshl_add_u32 v4, v2, 3, s33')
    a('s_lshl_b32 s33, s28, 7')
    a('v_lshl_add_u32 v5, v3, 2, s33')
    a('v_lshl_add_u32 v5, v4, 10, v5')
    a('v_subrev_u32 v4, 0xc00, v5')
    a('s_lshl_b32 s33, s28, 9')
    a('v_lshl_add_u32 v13, v3, 4, s33')
    a('s_movk_i32 s35, 0x1000')
    a('s_mov_b32 s15, 0x20000'); a('s_mov_b32 s27, 0x20000'); a('s_mov_b32 s19, 0x20000')
    a('s_mov_b32 s23, 0x20000'); a('s_mov_b32 s11, 0x20000'); a('s_mov_b32 s55, 0x20000')
    a('v_lshlrev_b32 v15, 4, v1')
    a('v_mov_b32 v21, 0')
    a('v_lshlrev_b32 v14, 4, v0')
    a('s_waitcnt lgkmcnt(0)')
    stamp('karg')
    if P.get('wso'):
        a(f's_add_u32 s58, s58, {hex(P["wso"] << 20)}')
        a('s_addc_u32 s59, s59, 0')
    base(a, 12, 70, 4096)
    base(a, 24, 68, 0x200000)
    tsh = vm.issue('buffer_load_dwordx4 v[48:51], v13, s[12:15], 0 offen')
    base(a, 12, 66, 0x200000)
    for i in range(3): vm.issue(f'buffer_load_dword v{24+i}, v4, s[12:15], 0 offen offset:{1024*i}' + NK)
    tk = {}
    for i in range(8):
        so = 's35' if i >= 4 else '0'
        vm.issue(f'buffer_load_dword v{27+i}, v5, s[12:15], {so} offen offset:{1024*(i&3)}' + NK)
        tk[i] = vm.issue(f'buffer_load_dword v{36+i}, v5, s[24:27], {so} offen offset:{1024*(i&3)}' + NV)
    stamp('issued')
    a(f's_add_u32 s4, s58, {hex(EPOCH)}')
    a('s_addc_u32 s5, s59, 0')
    a('s_load_dword s50, s[4:5], 0')
    if P.get('cpf', 1):
        a('s_getpc_b64 s[6:7]')
        a.label('L_pc2')
        a('s_lshl_b32 s36, s29, 2')
        a('s_add_u32 s36, s36, s3')
        a('v_and_b32 v4, 1, v0')
        a('v_lshl_add_u32 v4, s36, 1, v4')
        a('v_min_u32 v4, (L_last-L_pc2)/128, v4')
        a('v_lshlrev_b32 v4, 7, v4')
        a('v_mov_b32 v5, s7')
        a('v_add_co_u32 v4, vcc, s6, v4')
        a('v_addc_co_u32 v5, vcc, 0, v5, vcc')
        a('s_mov_b64 exec, 3')
        vm.issue('global_load_dword v168, v[4:5], off')
        a('s_mov_b64 exec, -1')
    if P.get('kvbar', 1): a('s_barrier')
    a('s_lshl_b32 s33, s32, 2')
    a('s_add_u32 s6, s74, s33')
    a('s_addc_u32 s7, s75, 0')
    a('s_load_dword s34, s[6:7], 0')
    a('s_lshl_b32 s33, s32, 13')
    SK = {}
    def skload():
        base(a, 12, 72, 0x200000)
        a('s_lshl_b32 s36, s32, 13')
        vm.issue('buffer_load_dwordx4 v[146:149], v14, s[12:15], s36 offen' + NS)
        a('s_add_u32 s36, s36, 0x1000')
        SK['t'] = vm.issue('buffer_load_dwordx4 v[150:153], v14, s[12:15], s36 offen' + NS)
    if P.get('skat', 1) == 0: skload()
    a('s_mul_i32 s30, s28, 6')
    a('s_lshr_b32 s31, s29, 2')
    a('s_add_u32 s30, s30, s31')
    a('s_and_b32 s31, s29, 3')
    a('s_lshl_b32 s46, s30, 2')
    a('s_or_b32 s46, s46, s31')
    a('s_lshl_b32 s47, s31, 2')
    a('s_or_b32 s47, s47, s3')
    a('v_and_b32 v16, 1, v0')
    a('v_lshrrev_b32 v17, 3, v1')
    a('v_and_b32 v6, 7, v1')
    a('v_mul_u32_u24 v242, 0x6000, v17')
    a('v_lshl_add_u32 v242, v6, 4, v242')
    a('v_lshlrev_b32 v243, 3, v17')
    a('s_lshl_b32 s36, s3, 11')
    a('s_add_u32 s33, s33, s36')
    WM = {}
    def wmload():
        base(a, 12, 84, 1024)
        a('s_lshl_b32 s36, s47, 6')
        tc = vm.issue('buffer_load_dwordx2 v[144:145], v243, s[12:15], s36 offen')
        base(a, 12, 86, 512*6144)
        a('s_cmp_lt_u32 s29, 24')
        a('s_cselect_b32 s14, s14, 0')
        a('s_lshr_b32 s36, s46, 2')
        a('s_lshl_b32 s36, s36, 7')
        a(f's_mul_i32 s37, s47, {32*6144}')
        a('s_add_u32 s36, s36, s37')
        twm = []
        for r in range(4):
            twm.append(vm.issue(f'buffer_load_dwordx4 v[{128+4*r}:{131+4*r}], v242, s[12:15], s36 offen' + NW))
            if r < 3: a('s_add_u32 s36, s36, 0x1800')
        WM.update(tc=tc, twm=twm)
    if P.get('wat', 3) == 0: wmload()
    if M2:
        a('s_and_b32 s30, s2, 1')
        a('s_lshl_b32 s30, s30, 3')
        a('s_and_b32 s98, s29, 7')
        a('s_or_b32 s30, s30, s98')
        a('s_bfe_u32 s31, s2, 0x20001')
        a('s_lshl_b32 s31, s31, 2')
        a('s_lshr_b32 s36, s2, 6')
        a('s_or_b32 s31, s31, s36')
        a('s_lshl_b32 s36, s36, 1')
        a('s_add_u32 s98, s98, s36')
    else:
        a('s_lshr_b32 s30, s32, 4')
        a('s_and_b32 s31, s32, 15')
        a(f's_and_b32 s98, s30, {P.get("prot", 0)}')
        a('s_lshl_b32 s98, s98, 2')
        if P.get('xrot', 1): a('s_add_u32 s98, s98, s28')
    a('s_and_b32 s98, s98, 7')
    a('s_lshr_b32 s38, s3, 1')
    a('s_and_b32 s39, s3, 1')
    a('s_cmp_eq_u32 s38, 0')
    a('s_cselect_b32 s20, s78, s80')
    a('s_cselect_b32 s21, s79, s81')
    a(f's_mov_b32 s22, {512*3584 if not P.get("now") else 0}')
    base(a, 8, 82, 1792*1024 if not P.get('now') else 0)
    base(a, 16, 58, TS)
    a('s_lshl_b32 s36, s28, 12')
    a(f's_add_u32 s36, s36, {hex(GRP)}')
    a('s_add_u32 s52, s58, s36')
    a('s_addc_u32 s53, s59, 0')
    a('s_movk_i32 s54, 0x1000')
    a('s_cmp_eq_u32 s3, 3')
    a('s_cselect_b32 s37, 0, 0x70000000')
    a('v_mov_b32 v22, s37')
    a('s_lshl_b32 s36, s29, 7')
    vm.issue('buffer_load_dword v158, v22, s[52:55], s36 offen')
    a('s_lshl_b32 s36, s46, 6')
    a(f's_add_u32 s36, s36, {hex(MODT)}')
    if P.get('mdt', 1): vm.issue('buffer_load_dword v159, v22, s[16:19], s36 offen')
    if M2 and P.get('ft', 1):
        a('s_lshl_b32 s36, s30, 4')
        a('s_lshr_b32 s37, s32, 4')
        a('s_lshl_b32 s37, s37, 4')
        a('s_sub_u32 s37, s37, s36')
        a('s_add_u32 s37, s37, 0x100')
        a('v_lshrrev_b32 v4, 2, v1')
        a('v_min_u32 v5, 1, v4')
        a('v_mul_lo_u32 v5, v5, s37')
        a('v_max_u32 v4, 1, v4')
        a('v_subrev_u32 v4, 1, v4')
        a('v_lshl_add_u32 v5, v4, 8, v5')
        a('v_and_b32 v4, 3, v1')
        a('v_add_u32 v5, v5, v4')
        a('s_lshl_b32 s37, s3, 2')
        a('s_add_u32 s36, s36, s37')
        a('v_add_lshl_u32 v5, v5, s36, 7')
        a(f's_mov_b32 s36, {hex(FL1)}')
        a('s_mov_b64 exec, 0xfff')
        vm.issue('buffer_load_dword v156, v5, s[16:19], s36 offen')
        a('s_mov_b64 exec, -1')
    a('s_lshl_b32 s36, s32, 13')
    a('s_lshl_b32 s37, s46, 11')
    a(f's_add_u32 s37, s37, {hex(MP)}')
    a('s_cmp_eq_u32 s3, 1')
    a(f's_cselect_b32 s37, s37, {hex(TS)}')
    a('s_cselect_b32 s44, 15, 63')
    a('s_cmp_eq_u32 s3, 2')
    a('s_cselect_b32 s37, s36, s37')
    a('v_and_b32 v4, s44, v1')
    a('v_lshlrev_b32 v4, 7, v4')
    if P.get('utt', 1): vm.issue('buffer_load_dword v157, v4, s[16:19], s37 offen' + (' nt' if P.get('ntu', 0) else ''))
    if P.get('tlb', 0) == 1:
        a('v_lshl_add_u32 v4, v1, 20, v22')
        for i, (p, n) in enumerate(((86, 512*6144), (84, 1024), (64, 0x200000), (78, 512*3584), (80, 512*3584), (82, 1792*1024), (56, 0x200000))):
            base(a, 12, p, n)
            vm.issue(f'buffer_load_dword v{160+i}, v4, s[12:15], 0 offen')
        vm.issue('buffer_load_dword v154, v4, s[16:19], 0 offen')
    for i in range(3):
        a(f'v_add_u32 v4, {64*i}, v1')
        a('v_mul_u32_u24 v5, 0x2aab, v4')
        a('v_lshrrev_b32 v5, 16, v5')
        a(f'v_mul_u32_u24 v5, {3584-96}, v5')
        a(f'v_lshl_add_u32 v{10+i}, v4, 4, v5')
        if i: a(f'v_subrev_u32 v{10+i}, {1024*i}, v{10+i}')
    a(f's_mul_i32 s41, s39, {32*3584}')
    a('s_mul_i32 s43, s31, 96')
    a('s_add_u32 s41, s41, s43')
    a('s_add_u32 s41, s41, 0x800')
    a('s_mul_i32 s43, s39, 3072')
    a(f's_mul_i32 s42, s38, {P1U}')
    a('s_add_u32 s42, s42, s43')
    a(f's_add_u32 s99, s41, {512*3584}')
    a(f's_mul_i32 s36, s98, {64*3584}')
    a('s_add_u32 s41, s41, s36')
    def step(reg, inc, lim, span):
        a(f's_add_u32 {reg}, {reg}, {inc}')
        a(f's_cmp_eq_u32 {reg}, {lim}')
        a(f's_cselect_b32 s36, {span}, 0')
        a(f's_sub_u32 {reg}, {reg}, s36')
    early = deque()
    def p1dma(m, i):
        if i == 0: a(f's_add_u32 m0, s42, {6144*m}')
        vm.issue(f'buffer_load_dwordx4 v{10+i}, s[20:23], s41 offen offset:{1024*i} lds')
        if i == 2 and m < 7: step('s41', 64*3584, 's99', 512*3584)
    for m in range(8):
        for i in range(3): early.append(lambda m=m, i=i: p1dma(m, i))
    for _ in range(P.get('e0', 0)): early.popleft()()
    a('v_lshrrev_b32 v4, 3, v1')
    a('v_bfe_u32 v5, v1, 4, 1')
    a('v_lshlrev_b32 v5, 2, v5')
    a('v_xor_b32 v5, v5, v6')
    a('v_lshlrev_b32 v5, 4, v5')
    a(f'v_lshl_add_u32 v8, v4, {7 if RL else 10}, v5')
    a(f'v_add_u32 v9, {0 if RL else 8192-1024}, v8')
    a('s_lshl_b32 s43, s38, 5')
    a('v_xor_b32 v5, s43, v5')
    a(f'v_mul_u32_u24 v7, {PR}, v4')
    a('v_add_u32 v7, v7, v5')
    a(f's_mul_i32 s48, s39, {8*PR}')
    a(f's_lshl_b32 s43, s31, {16 if RP else 7}')
    a('s_add_u32 s48, s48, s43')
    if RP:
        a('s_lshl_b32 s43, s38, 20')
        a('s_add_u32 s48, s48, s43')
        a(f's_add_u32 s48, s48, {hex(W2)}')
    a('s_lshl_b32 s43, s39, 10')
    a(f's_mul_i32 s49, s38, {SEG[0][2]-SEG[0][1]}')
    a('s_add_u32 s49, s49, s43')
    a(f's_mul_i32 s38, s38, {P1U}')
    a('s_add_u32 s43, s43, s38')
    a('v_sub_u32 v4, 7, v2')
    a('v_xor_b32 v4, v4, v6')
    a('v_lshl_add_u32 v4, v3, 4, v4')
    a(f'v_lshlrev_b32 v4, 4, v4')
    a(f'v_add_u32 v120, {PB}, v4')
    a('v_lshrrev_b32 v4, 4, v1')
    a('v_xor_b32 v5, v4, v1')
    a('s_lshl_b32 s36, s3, 11')
    a(f's_add_u32 s36, s36, {PB}')
    a('v_lshl_add_u32 v124, v5, 4, s36')
    a('v_xor_b32 v125, 64, v124')
    a('v_lshrrev_b32 v4, 3, v1')
    a('v_lshlrev_b32 v5, 4, v6')
    a('v_lshl_add_u32 v13, v4, 12, v5')
    a('s_lshl_b32 s36, s28, 2')
    a('s_add_u32 s36, s36, s3')
    a('s_lshl_b32 s36, s36, 16')
    a('s_sub_u32 s35, 31, s29')
    a('s_lshl_b32 s35, s35, 7')
    a('s_add_u32 s35, s35, s36')
    if 200 > P.get('probe', 0) >= 100:
        a('v_mov_b32 v22, s60')
        a('s_lshl_b32 s36, s2, 2')
        a(f's_add_u32 s36, s36, {hex(0x140A000)}')
        vm.issue('buffer_store_dword v22, v21, s[16:19], s36 offen sc1')
    def slow_gu():
        a('v_bfe_u32 v4, v1, 1, 3')
        a('v_and_b32 v5, 1, v4')
        a('v_lshlrev_b32 v5, 9, v5')
        a(f'v_mul_u32_u24 v4, 3584, v4')
        a('v_add_u32 v4, v4, v5')
        a('v_and_b32 v5, 1, v1')
        a('v_lshl_add_u32 v4, v5, 10, v4')
        a('v_bfe_u32 v5, v1, 4, 1')
        a('v_lshl_add_u32 v4, v5, 11, v4')
        a('s_lshl_b32 s36, s29, 1')
        a('s_and_b32 s37, s3, 1')
        a('s_add_u32 s36, s36, s37')
        a(f's_mul_i32 s36, s36, {8*3584}')
        a('s_mov_b32 exec_hi, 0')
        vm.issue('buffer_load_dword v252, v4, s[20:23], s36 offen offset:384')
        a('s_mov_b32 exec_hi, -1')
    def slow_d():
        a('v_lshlrev_b32 v4, 10, v1')
        a('s_and_b32 s36, s32, 31')
        a('s_lshl_b32 s36, s36, 2')
        a('s_add_u32 s36, s36, s3')
        a(f's_mul_i32 s36, s36, {14*1024}')
        a('s_mov_b64 exec, 0x3fff')
        vm.issue('buffer_load_dword v253, v4, s[8:11], s36 offen offset:384')
        a('s_mov_b64 exec, -1')
    def slow(at):
        if P.get('sg', 0) == at: slow_gu()
        if P.get('sd', 0) == at: slow_d()
    CR = 32 if P.get('cla', 1) == 1 else 244
    CP = {}
    def cpload():
        if not RL: return
        a('s_mul_i32 s44, s2, 7')
        a('s_lshl_b32 s45, s3, 1')
        a('s_add_u32 s44, s44, s45')
        a('s_cmp_eq_u32 s3, 3')
        a('s_cselect_b32 s45, 0, 1')
        a('s_add_u32 s45, s45, s44')
        for r in range(2):
            a(f's_lshl_b32 s36, s{44+r}, 10')
            CP['l'] = vm.issue(f'buffer_load_dwordx4 v[{CR+4*r}:{CR+3+4*r}], v15, s[8:11], s36 offen' + NC)
    stamp('pre')
    vm.need(tsh)
    lo(a, 52, 48); hi(a, 54, 48, 40); lo(a, 56, 49); hi(a, 58, 49, 40)
    lo(a, 53, 50); hi(a, 55, 50, 40); lo(a, 57, 51); hi(a, 59, 51, 40)
    vm.need(tk[0])
    stamp('kv0')
    if P.get('skat', 1) == 1: skload()
    if P.get('wat', 3) == 1: wmload()
    def xload():
        vm.issue('buffer_load_dwordx4 v[232:235], v15, s[12:15], s33 offen' + NX)
        return vm.issue('buffer_load_dwordx4 v[236:239], v15, s[12:15], s33 offen offset:1024' + NX)
    for q in range(3):
        lo(a, 60+2*q, 24+q); hi(a, 61+2*q, 24+q, 40)
    for r in range(8):
        vm.need(tk[r])
        lo(a, 66+2*r, 27+r); hi(a, 67+2*r, 27+r, 40)
        lo(a, 84+2*r, 36+r); hi(a, 85+2*r, 36+r, 40)
        d = 102+2*r
        a(f'v_pk_mul_f32 v[{d}:{d+1}], v[{60+2*r}:{61+2*r}], v[58:59]')
        a(f'v_pk_fma_f32 v[{d}:{d+1}], v[{62+2*r}:{63+2*r}], v[56:57], v[{d}:{d+1}]')
        a(f'v_pk_fma_f32 v[{d}:{d+1}], v[{64+2*r}:{65+2*r}], v[54:55], v[{d}:{d+1}]')
        a(f'v_pk_fma_f32 v[{d}:{d+1}], v[{66+2*r}:{67+2*r}], v[52:53], v[{d}:{d+1}]')
        a(f'v_pk_mul_f32 v[{d}:{d+1}], v[{d}:{d+1}], v[{84+2*r}:{85+2*r}]')
    if P.get('skat', 1) == 2: skload()
    if P.get('wat', 3) == 2: wmload()
    if P.get('cla', 1) == 0: cpload()
    a('s_mov_b64 s[96:97], s[64:65]')
    slow(1)
    stamp('kvN')
    for c in range(2):
        for jj in range(4):
            a(f'v_cvt_pk_bf16_f32 v{24+4*c+jj}, v{102+2*(7-2*jj)+c}, v{102+2*(6-2*jj)+c}')
        a(f'ds_write_b128 v120, v[{24+4*c}:{27+4*c}] offset:{128*c}')
    a('s_waitcnt lgkmcnt(0)')
    a('s_barrier')
    stamp('abar')
    for j in range(2): a(f'ds_read_b128 v[{104+4*j}:{107+4*j}], v{124+j} offset:{1024*j}')
    a('s_mul_i32 s50, s50, 1664525')
    a('s_add_u32 s50, s50, 1013904223')
    a('v_mov_b32 v20, s50')
    a('s_getreg_b32 s100, hwreg(HW_REG_XCC_ID, 0, 4)')
    if P.get('slow'): a('s_and_b32 s100, s29, 1')
    a('s_add_u32 s100, s100, s50')
    a('s_add_u32 s100, s100, 1')
    a('s_mov_b32 s24, s35')
    a('s_add_u32 s25, s35, 0x8000')
    ustores = [f'buffer_store_dwordx4 v[{104+4*j}:{107+4*j}], v13, s[16:19], s{24+j} offen' for j in range(2)]
    for j in range(2):
        a(f's_waitcnt lgkmcnt({1-j})')
        tus = vm.issue(ustores[j] + (' sc1' if P.get('uts', 0) else ''))
    a('s_lshl_b32 s7, s3, 7')
    a('s_lshl_b32 s36, s29, 2')
    a('s_add_u32 s7, s7, s36')
    a('v_mov_b32 v123, s100')
    if P.get('skat', 1) == 3: skload()
    if P.get('wat', 3) == 3: wmload()
    tsk = SK['t']
    stamp('utst')
    def rowflag():
        vm.need(tus)
        masked([f'buffer_store_dword v123, v21, s[52:55], s7 offen offset:{UH}'], 1)
    if P.get('ff', 0): rowflag()
    for i in range(4): a(f'v_mov_b32 v{40+i}, 0')
    a(f'v_add_u32 v14, {CB}, v14')
    a('v_cmp_gt_u32 vcc, 32, v0')
    a('s_and_saveexec_b64 s[36:37], vcc')
    a('s_cbranch_execz L_nz')
    a('ds_write_b128 v14, v[40:43]')
    a(f'ds_write_b128 v14, v[40:43] offset:{CHS}')
    a('v_cmp_gt_u32 vcc, 2, v0')
    a('s_and_b64 exec, exec, vcc')
    for c in range(2):
        a(f'ds_write_b128 v14, v[40:43] offset:{c*CHS+U0+4096}')
        a(f'ds_write_b128 v14, v[40:43] offset:{c*CHS+U1+4096}')
    a.label('L_nz')
    a('s_mov_b64 exec, s[36:37]')
    a('v_cmp_eq_u32 s[36:37], 0, v0')
    a('s_lshl_b32 s4, s34, 16')
    a('s_and_b32 s5, s34, 0xffff0000')
    a('s_mov_b32 s6, 0xffff')
    vm.need(tsk)
    stamp('skok')
    for c in range(2):
        kx = 146+4*c
        lo(a, 44, kx)
        a(f'v_add_f32 v44, s{4+c}, v44')
        a('v_cvt_pk_bf16_f32 v44, v44, v44')
        a(f'v_bfi_b32 v44, s6, v44, v{kx}')
        a(f'v_cndmask_b32 v{kx}, v{kx}, v44, s[36:37]')
        a(f'ds_write_b128 v14, v[{kx}:{kx+3}] offset:{c*CHS+KB}')
    if not P.get('ff', 0): rowflag()
    a('v_and_b32 v120, 31, v1')
    a('v_lshlrev_b32 v120, 2, v120')
    a('s_lshr_b32 s5, s29, 3')
    a('s_lshl_b32 s5, s5, 7')
    hloads = [f'buffer_load_dword v121, v120, s[52:55], 0 offen offset:{XID} sc1', f'buffer_load_dword v124, v120, s[52:55], s5 offen offset:{UH} sc1']
    a('v_mov_b32 v121, s50')
    tu = masked(hloads[1:], 0xffffffff)
    if P.get('wat', 3) == 4: wmload()
    tc, twm = WM['tc'], WM['twm']
    base(a, 12, 96, 0x200000)
    a('v_lshrrev_b32 v4, 1, v6')
    a('v_lshlrev_b32 v4, 11, v4')
    a('v_lshl_add_u32 v4, v16, 6, v4')
    a('v_lshrrev_b32 v5, 5, v1')
    a('v_lshl_add_u32 v4, v5, 5, v4')
    a('v_bfe_u32 v5, v1, 4, 1')
    a('v_lshl_add_u32 v126, v5, 4, v4')
    a('s_lshl_b32 s35, s32, 13')
    a('s_add_u32 s34, s35, 0x1000')
    a('v_lshlrev_b32 v125, 4, v0')
    vm.need(tc)
    lo(a, 44, 144); hi(a, 45, 144, 40); lo(a, 46, 145); hi(a, 47, 145, 40)
    for r in range(4): a(f'v_mul_f32 v{48+r}, {fh(-1.4426950408889634)}, v{44+r}')
    for r in range(4): a(f'v_exp_f32 v{48+r}, v{48+r}')
    for r in range(4): a(f'v_add_f32 v{48+r}, 1.0, v{48+r}')
    for r in range(4): a(f'v_rcp_f32 v{48+r}, v{48+r}')
    for r in range(4): a(f'v_mul_f32 v{44+r}, v{44+r}, v{48+r}')
    a('v_cvt_pk_bf16_f32 v48, v44, v45')
    a('v_cvt_pk_bf16_f32 v49, v46, v47')
    lo(a, 44, 48); hi(a, 45, 48, 40); lo(a, 46, 49); hi(a, 47, 49, 40)
    def stage1():
        for r in range(4):
            vm.need(twm[r])
            unpack8(a, 52, 128+4*r, 40)
            sel = 'op_sel:[0,0,0] op_sel_hi:[1,0,1]' if r % 2 == 0 else 'op_sel:[0,1,0] op_sel_hi:[1,1,1]'
            sp = 44 + (r & 2)
            for j in range(4):
                if r == 0:
                    a(f'v_pk_mul_f32 v[{60+2*j}:{61+2*j}], v[{52+2*j}:{53+2*j}], v[{sp}:{sp+1}] op_sel:[0,0] op_sel_hi:[1,0]')
                else:
                    a(f'v_pk_fma_f32 v[{60+2*j}:{61+2*j}], v[{52+2*j}:{53+2*j}], v[{sp}:{sp+1}], v[{60+2*j}:{61+2*j}] {sel}')
        for j in range(4): a(f'v_permlane32_swap_b32 v{60+j}, v{64+j}')
        for j in range(4): a(f'v_add_f32 v{60+j}, v{60+j}, v{64+j}')
        a('s_lshr_b32 s6, s46, 2')
        a('s_lshl_b32 s6, s6, 13')
        for j in range(2): a(f'v_permlane16_swap_b32 v{60+j}, v{62+j}')
        a('s_lshl_b32 s36, s47, 7')
        for j in range(2): a(f'v_add_f32 v{100+j}, v{60+j}, v{62+j}')
        a('v_mov_b32 v102, s50')
        a('v_mov_b32 v103, s50')
        for j in range(2): a(f'v_add_f32_dpp v{100+j}, v{100+j}, v{100+j} row_ror:8 row_mask:0xf bank_mask:0xf')
        a('s_add_u32 s6, s6, s36')
        a(f's_add_u32 s6, s6, {hex(MP)}')
        a('s_cmp_lt_u32 s29, 24')
        a(f's_cselect_b32 s6, s6, {hex(TS)}')
    if P.get('s1at', 1) == 0: stage1()
    a('s_lshr_b32 s36, s3, 1')
    a(f's_mul_i32 s36, s36, {CHS}')
    a('s_xor_b32 s38, s39, 1')
    a('s_lshl_b32 s38, s38, 6')
    a('s_add_u32 s36, s36, s38')
    a(f's_add_u32 s36, s36, {CB}')
    a('v_and_b32 v3, 15, v0')
    a('v_bfe_u32 v4, v0, 4, 2')
    a('v_lshlrev_b32 v5, 4, v4')
    a('v_lshl_add_u32 v22, v3, 5, v5')
    a(f's_add_u32 s38, s36, {KB-480}')
    a('v_add_u32 v22, s38, v22')
    a('v_and_b32 v23, 14, v3')
    a('v_lshlrev_b32 v23, 1, v23')
    a('v_sub_u32 v23, v5, v23')
    a(f'v_mul_u32_u24 v5, {U1-U0}, v16')
    a('v_sub_u32 v23, v23, v5')
    a(f's_add_u32 s38, s36, {U1+28}')
    a('v_add_u32 v16, s38, v23')
    for i in range(1, 4): a(f'v_add_u32 v{16+i}, {1024*i}, v16')
    a('v_bfe_u32 v5, v3, 1, 2')
    a('v_xor_b32 v5, v5, v4')
    a('v_lshl_add_u32 v5, v3, 2, v5')
    a('s_lshl_b32 s38, s3, 13')
    a(f's_add_u32 s38, s38, {PB}')
    a('v_lshl_add_u32 v23, v5, 4, s38')
    KP = P.get('kp', 1)
    if KP:
        a('s_waitcnt lgkmcnt(0)')
        a('s_barrier')
        for j in range(4, 32): a(f'ds_read_b128 v[{104+4*j}:{107+4*j}], v22 offset:{128*j}') if not 120 <= 104+4*j < 156 else None
    a(f's_mov_b32 s51, {SPIN}')
    a('s_mov_b32 s101, 0')
    vm.need(tu)
    stamp('ut1st')
    if PM: a('s_mov_b32 exec_hi, 0')
    a('s_branch L_uh_chk')
    a.label('L_uh')
    if SL: a(f's_sleep {SL}')
    a(f's_cmp_lg_u32 s51, {SPIN - P.get("idl", 48)}')
    a('s_cbranch_scc1 L_noid')
    a('s_cmp_lg_u32 s3, 0')
    a('s_cbranch_scc1 L_noid')
    a('s_lshl_b32 s36, s29, 2')
    a('s_mov_b64 exec, 1')
    a(f'buffer_store_dword v123, v21, s[52:55], s36 offen offset:{XID} sc1')
    a('s_mov_b64 exec, 0xffffffff' if PM else 's_mov_b64 exec, -1')
    a.label('L_noid')
    for l in hloads: a(l)
    a('s_waitcnt vmcnt(0)')
    a.label('L_uh_chk')
    a('v_cmp_ne_u32 vcc, s100, v124')
    a('v_subrev_u32 v122, s50, v121')
    a('v_subrev_u32 v122, 1, v122')
    a('s_cbranch_vccz L_uh_ok')
    a('v_cmp_lt_u32 vcc, 15, v122')
    a('v_cmp_ne_u32 s[92:93], s100, v121')
    a('s_sub_u32 s51, s51, 1')
    a('s_cbranch_scc1 L_uh_ok')
    a('s_cbranch_vccnz L_uh')
    a('s_cmp_eq_u64 s[92:93], 0')
    a('s_cbranch_scc1 L_uh_same')
    a('s_cmp_lg_u32 s101, 0')
    a('s_cbranch_scc1 L_uh_same')
    a('s_mov_b32 s101, 1')
    a('s_mov_b64 exec, -1')
    for l in ustores: a(l + ' sc1')
    a('s_waitcnt vmcnt(0)')
    a(f'buffer_store_dword v20, v21, s[52:55], s7 offen offset:{UH} sc1')
    if PM: a('s_mov_b32 exec_hi, 0')
    a.label('L_uh_same')
    a('v_cmp_ne_u32 vcc, s50, v124')
    a('v_cmp_ne_u32 s[92:93], s100, v124')
    a('s_nop 0')
    a('s_and_b64 vcc, vcc, s[92:93]')
    a('s_cbranch_vccnz L_uh')
    a.label('L_uh_ok')
    a('s_mov_b64 exec, -1')
    raw(6, 's51'); raw(0, 's101')
    stamp('uhok')
    tu = []
    for c in range(2):
        vm.issue(f'buffer_load_dwordx4 v[{72+4*c}:{75+4*c}], v125, s[16:19], s{35-c} offen sc1')
        tu.append(vm.issue(f'buffer_load_dword v{80+c}, v125, s[16:19], s{35-c} offen offset:16 sc1'))
    if P.get('s1at', 1) == 1: stage1()
    lstore(['buffer_store_dwordx4 v[100:103], v126, s[16:19], s6 offen'])
    if KP:
        for j in list(range(4)) + list(range(4, 13)): a(f'ds_read_b128 v[{104+4*j}:{107+4*j}], v22 offset:{128*j}')
    if P.get('xat', 1) == 1: tx = xload()
    if P.get('cla', 1) == 1: cpload()
    if RP:
        a('s_lshl_b32 s43, s2, 1')
        a('s_add_u32 s43, s43, s39')
        a('s_mul_i32 s36, s43, 3584')
        for r in range(2): CP['pl'] = vm.issue(f'buffer_load_dwordx4 v[{24+4*r}:{27+4*r}], v15, s[20:23], s36 offen offset:{1024*r}' + NC)
    def p2copy():
        a('v_lshrrev_b32 v4, 3, v1')
        a('v_lshlrev_b32 v4, 16, v4')
        a('v_lshl_add_u32 v4, v6, 4, v4')
        a('s_lshr_b32 s36, s3, 1')
        a('s_lshl_b32 s36, s36, 20')
        a('s_lshl_b32 s43, s43, 7')
        a('s_add_u32 s36, s36, s43')
        a(f's_add_u32 s36, s36, {hex(W2)}')
        vm.need(CP['pl'])
        vm.issue('buffer_store_dwordx4 v[24:27], v4, s[16:19], s36 offen sc1')
        a('s_add_u32 s36, s36, 0x80000')
        CP['s'] = vm.issue('buffer_store_dwordx4 v[28:31], v4, s[16:19], s36 offen sc1')
    def wdcopy():
        a('v_lshrrev_b32 v4, 3, v1')
        a(f'v_mul_u32_u24 v4, {1792*128}, v4')
        a('v_lshl_add_u32 v4, v6, 4, v4')
        vm.need(CP['l'])
        for r in range(2):
            a(f's_lshl_b32 s36, s{44+r}, 7')
            a(f's_add_u32 s36, s36, {hex(WD2)}')
            CP['s'] = vm.issue(f'buffer_store_dwordx4 v[{CR+4*r}:{CR+3+4*r}], v4, s[16:19], s36 offen sc1')
    a('s_movk_i32 s36, 0xff')
    a('v_cmp_ne_u32 vcc, s36, v0')
    for c in range(2):
        u = 72+4*c
        vm.need(tu[c])
        if c == 0: stamp('utok')
        a(f'v_cndmask_b32 v{80+c}, 0, v{80+c}, vcc')
        a(f'ds_write_b128 v14, v[{u}:{u+3}] offset:{c*CHS+U0}')
        for j in range(3): a(f'v_alignbit_b32 v{40+4*c+j}, v{u+j+1}, v{u+j}, 16')
        a(f'v_alignbit_b32 v{43+4*c}, v{80+c}, v{u+3}, 16')
        a(f'ds_write_b128 v14, v[{40+4*c}:{43+4*c}] offset:{c*CHS+U1}')
    for _ in range(P.get('e0b', 3)): early.popleft()()
    a('s_waitcnt lgkmcnt(0)')
    a('s_barrier')
    stamp('bbar')
    if RL and P.get('cpa', 10) < 0: wdcopy()
    a('s_lshl_b32 s6, s46, 11')
    a(f's_add_u32 s6, s6, {hex(MP)}')
    a('s_lshl_b32 s5, s46, 6')
    a(f's_add_u32 s5, s5, {hex(MODT)}')
    a('s_cmp_lt_u32 s29, 24')
    a(f's_cselect_b32 s7, s3, 1')
    a('s_cmp_eq_u32 s7, 0')
    a(f's_cselect_b32 s6, s6, {hex(TS)}')
    a(f's_cselect_b32 s5, s5, {hex(TS)}')
    a('s_lshr_b32 s36, s46, 5')
    a('s_cmp_eq_u32 s36, 1')
    a('s_cselect_b32 s4, 1.0, 0')
    a('s_cmp_eq_u32 s36, 4')
    a('s_cselect_b32 s4, 1.0, s4')
    ploads = [f'buffer_load_dwordx4 v[{240+4*j}:{243+4*j}], v15, s[16:19], s6 offen offset:{1024*j} sc1' for j in range(2)]
    tmi = []
    def mod_issue():
        for l in ploads: t = vm.issue(l)
        tmi.append(t)
    def mod_check():
        vm.need(tmi[0])
        a('s_cmp_lg_u32 s7, 0')
        a('s_cbranch_scc1 L_nomod')
        done = vm.done
        poll('mp', ploads, [242, 246], pre=0)
        vm.done = done
        a.label('L_nomod')
    st2 = deque(['v_add_f32 v240, v240, v244', 'v_add_f32 v241, v241, v245', 'v_mov_b32 v246, s50', 'v_mov_b32 v247, s50'])
    st2.extend(f'v_add_f32_dpp v{240+j}, v{240+j}, v{240+j} row_ror:8 row_mask:0xf bank_mask:0xf' for j in range(2))
    for op in ('v_permlane16_swap_b32', 'v_permlane32_swap_b32'):
        st2.extend(f'v_mov_b32 v{242+j}, v{240+j}' for j in range(2))
        st2.extend(f'{op} v{240+j}, v{242+j}' for j in range(2))
        st2.extend(f'v_add_f32 v{240+j}, v{240+j}, v{242+j}' for j in range(2))
    st2.extend(['v_cvt_pk_bf16_f32 v242, v240, v241', 'v_lshlrev_b32 v243, 3, v1', 'v_lshlrev_b32 v240, 16, v242', 'v_and_b32 v241, s40, v242',
                'v_add_f32 v240, s4, v240', 'v_add_f32 v241, s4, v241', 'v_cvt_pk_bf16_f32 v244, v240, v241', None,
                'v_mov_b32_dpp v245, v244 quad_perm:[1,1,3,3] row_mask:0xf bank_mask:0xf', None, 'store'])
    def st2_step():
        for _ in range(2):
            if not st2: return
            x = st2.popleft()
            if x is None: return
            if x == 'store': masked(['buffer_store_dwordx4 v[244:247], v243, s[16:19], s5 offen sc1'], 0x55)
            else: a(x)
    ACC, AR, BR = 40, 72, 104
    pipe = LdsPipe(a)
    reads = []
    for i in range(32):
        o = 32*((31-i) & 7); b = 16 + ((31-i) >> 3); d = AR + 4*(i & 7)
        reads.append((('A', i, 0), f'ds_read2_b32 v[{d}:{d+1}], v{b} offset0:{o} offset1:{o+1}'))
        reads.append((('A', i, 1), f'ds_read2_b32 v[{d+2}:{d+3}], v{b} offset0:{o+2} offset1:{o+3}'))
        if i < 4 and not KP:
            for t in range(8):
                j = 4*t+3-i
                reads.append((('B', j), f'ds_read_b128 v[{BR+4*j}:{BR+4*j+3}], v22 offset:{128*j}'))
    tok = {('B', j): 0 for j in range(32)} if KP else {}; nxt = [0]
    def pump(cur_step, maxn):
        n = 0
        while n < maxn and nxt[0] < len(reads) and pipe.outstanding() < 13:
            key, line = reads[nxt[0]]
            if key[0] == 'A' and key[1] >= cur_step + 8: break
            tok[key] = pipe.issue(line); nxt[0] += 1; n += 1
    pump(0, 12)
    if P.get('p2m', 0):
        a('v_lshlrev_b32 v4, 7, v1')
        a('s_lshl_b32 s36, s2, 1')
        a('s_add_u32 s36, s36, s39')
        a('s_mul_i32 s36, s36, 3584')
        masked(['buffer_load_dword v248, v4, s[20:23], s36 offen'], 0xffff)
    slow(2)
    a('v_lshrrev_b32 v2, 1, v0')
    a('v_bfe_u32 v3, v0, 4, 2')
    a('v_xor_b32 v2, v2, v3')
    a('v_lshlrev_b32 v2, 4, v2')
    a('v_and_b32 v3, 1, v0')
    a('v_lshl_add_u32 v2, v3, 3, v2')
    a(f'v_add_u32 v2, {PB}, v2')
    a('v_lshlrev_b32 v3, 4, v0')
    a(f's_mul_i32 s38, s32, {YP}')
    a(f's_add_u32 s38, s38, {hex(YT)}')
    YE = P.get('ye', 20)
    ye = deque(); ptk = {}; YS_ = {}
    def ystore(j):
        q = 24+4*j if not (YE and j < 2) else 200+4*j
        YS_['t'] = vm.issue(f'buffer_store_dwordx4 v[{q}:{q+3}], v3, s[16:19], s38 offen sc1')
        if j < 3: a('s_add_u32 s38, s38, 0x1000')
    def yearly():
        if RL or RP: vm.need(CP['s'])
        pipe.need(ptk[3])
        a('s_barrier')
        for j in range(2):
            b = 208+8*j; q = 200+4*j
            for w in range(4): ye.append(('rd', f'ds_read_b64 v[{b+2*w}:{b+2*w+1}], v2 offset:{8192*w+2048*j}'))
        for j in range(2):
            b = 208+8*j; q = 200+4*j
            ye.extend([f'v_mov_b32 v{q+2}, s50', f'v_mov_b32 v{q+3}, s50', ('need', 4*j+3)])
            ye.extend(f'v_add_f32 v{b+r}, v{b+r}, v{b+r+2}' for r in (0, 4, 1, 5))
            ye.extend([f'v_cvt_pk_bf16_f32 v{q}, v{b}, v{b+4}', f'v_cvt_pk_bf16_f32 v{q+1}, v{b+1}, v{b+5}', ('st', j)])
    yt_ = []
    def ye_step(n):
        while ye and n > 0:
            x = ye[0]
            if isinstance(x, str): a(x); n -= 1
            elif x[0] == 'rd':
                if pipe.outstanding() >= 14: return
                yt_.append(pipe.issue(x[1])); n -= 1
            elif x[0] == 'need': pipe.need(yt_[x[1]])
            else: ystore(x[1]); n -= 1
            ye.popleft()
    pending = []; nm = 0
    NB = P.get('e1', 12); EV = P.get('ev', 9)
    for i in range(32):
        for t in range(i >> 2, 8):
            j = 4*t+3-i
            while ('B', j) not in tok or ('A', i, 1) not in tok:
                pipe.need(pipe.done + 2); pump(i, 2)
            pipe.need(max(tok[('A', i, 1)], tok[('B', j)]))
            d = ACC+4*t; c = '0' if i == 0 else f'v[{d}:{d+3}]'
            s = AR+4*(i & 7)
            a(f'v_mfma_f32_16x16x32_bf16 v[{d}:{d+3}], v[{s}:{s+3}], v[{BR+4*j}:{BR+4*j+3}], {c}')
            pump(i, 2 if i < 4 else 1)
            nm += 1
            if i > P.get('mfin', 8): st2_step()
            ye_step(2)
            if nm >= P.get('e1s', 10) and nm % EV == 0 and NB > 0 and early:
                early.popleft()(); NB -= 1
        if pending and pipe.outstanding() < 14:
            t = pending.pop()
            ptk[t] = pipe.issue(f'ds_write_b128 v23, v[{ACC+4*t}:{ACC+4*t+3}] offset:{1024*t}')
        if YE and i == YE: yearly()
        if (i & 3) == 3: pending.append(i >> 2)
        if RL and i == P.get('cpa', 10): wdcopy()
        if RP and i == P.get('cpa', 10) + 1: p2copy()
        if i == P.get('mpi', 3): mod_issue()
        if i == P.get('mfin', 8): mod_check(); raw(7, 's51')
    for t in pending:
        pipe.issue(f'ds_write_b128 v23, v[{ACC+4*t}:{ACC+4*t+3}] offset:{1024*t}')
    assert not st2
    while ye: pipe.need(pipe.issued); ye_step(100)
    stamp('bend')
    a('v_lshlrev_b32 v4, 3, v0')
    a(f'v_add_u32 v4, {PRM}, v4')
    a('v_and_b32 v5, 3, v0')
    a(f'v_add_u32 v13, {PRM}, v15')
    a('s_and_b32 s36, s32, 7')
    if DX: a(f's_xor_b32 s36, s36, {DX}')
    a('s_lshl_b32 s36, s36, 1')
    a('s_and_b32 s37, s3, 1')
    a('s_or_b32 s36, s36, s37')
    a('s_lshl_b32 s36, s36, 6')
    a(f's_add_u32 s36, s36, {PRM+5120}')
    a('v_lshrrev_b32 v14, 5, v1')
    a('v_lshl_add_u32 v14, v14, 4, s36')
    if RL or RP: vm.need(CP['s'])
    if RL and P.get('wr2', 0):
        a('v_and_b32 v252, 7, v1')
        a(f'v_mul_u32_u24 v252, {1792*128}, v252')
        a('v_bfe_u32 v253, v1, 3, 1')
        a('v_lshl_add_u32 v252, v253, 7, v252')
        a('s_lshl_b32 s36, s44, 7')
        a(f's_add_u32 s36, s36, {hex(WD2)}')
        masked(['buffer_load_dword v253, v252, s[16:19], s36 offen sc1'], 0xffff)
    a('s_waitcnt lgkmcnt(0)')
    a('s_barrier')
    stamp('pbar')
    J0 = 2 if YE else 0
    for j in range(J0, 4):
        for w in range(4):
            a(f'ds_read_b64 v[{72+8*j+2*w}:{73+8*j+2*w}], v2 offset:{8192*w+2048*j}')
        if j == 2 and not YE: a('s_waitcnt lgkmcnt(8)')
    a('s_lshl_b32 s35, s3, 10')
    a(f's_add_u32 s35, s35, {hex(MODT)}')
    a('s_add_u32 s34, s35, 0x1000')
    a('s_add_u32 s4, s35, 0x2000')
    mloads = [f'buffer_load_dwordx4 v[{104+4*r}:{107+4*r}], v15, s[16:19], s{(35, 34, 4)[r]} offen sc1' for r in range(3)]
    TM = [None]
    if P.get('mde', 2) == 1:
        for l in mloads: TM[0] = vm.issue(l)
    for j in range(J0, 4):
        b = 72+8*j; q = 24+4*j
        a(f'v_mov_b32 v{q+2}, s50')
        a(f'v_mov_b32 v{q+3}, s50')
        if j: a(f's_waitcnt lgkmcnt({12-4*j})')
        a(f'v_pk_add_f32 v[{b}:{b+1}], v[{b}:{b+1}], v[{b+2}:{b+3}]')
        a(f'v_pk_add_f32 v[{b+4}:{b+5}], v[{b+4}:{b+5}], v[{b+6}:{b+7}]')
        a(f'v_cvt_pk_bf16_f32 v{q}, v{b}, v{b+4}')
        a(f'v_cvt_pk_bf16_f32 v{q+1}, v{b+1}, v{b+5}')
        ystore(j)
    tys = YS_['t']
    stamp('ytst')
    a('v_mov_b32 v22, v4')
    a('v_mov_b32 v23, v14')
    a('v_mov_b32 v60, v5')
    slow(3)
    a('v_mov_b32 v5, v60')
    if P.get('mde', 2) == 2:
        for l in mloads: TM[0] = vm.issue(l)
    for _ in range(P.get('e2', 6)): early.popleft()()
    a('v_lshrrev_b32 v4, 2, v0')
    a(f'v_mul_u32_u24 v3, {2*YS}, v5')
    a('v_lshl_add_u32 v3, v4, 2, v3')
    a(f'v_add_u32 v3, {XG}, v3')
    a(f's_mul_i32 s46, s3, {2*YS}')
    a(f's_add_u32 s46, s46, {XG}')
    a('v_add_u32 v4, s46, v15')
    a('s_lshl_b32 s46, s3, 1')
    a('v_xor_b32 v5, s46, v6')
    a('v_lshlrev_b32 v5, 4, v5')
    a('v_lshl_add_u32 v5, v1, 7, v5')
    a(f'v_add_u32 v5, {XH}, v5')
    a('v_xor_b32 v16, 16, v5')
    a('v_lshrrev_b32 v17, 3, v1')
    a('v_xor_b32 v18, v17, v6')
    a('v_lshlrev_b32 v18, 4, v18')
    a('v_lshl_add_u32 v18, v17, 7, v18')
    a('s_lshl_b32 s46, s3, 11')
    a(f's_add_u32 s46, s46, {XH}')
    a('v_add_u32 v18, s46, v18')
    a('v_lshlrev_b32 v17, 9, v17')
    a('v_lshl_add_u32 v17, v6, 4, v17')
    a('s_lshr_b32 s46, s32, 2')
    a('s_lshl_b32 s46, s46, 15')
    a('s_and_b32 s47, s32, 3')
    a('s_lshl_b32 s47, s47, 7')
    a('s_add_u32 s46, s46, s47')
    a('s_lshl_b32 s47, s3, 13')
    a('s_add_u32 s46, s46, s47')
    a(f's_add_u32 s46, s46, {hex(H2)}')
    a('s_add_u32 s47, s46, 0x1000')
    XO = P.get('xo', 1)
    XS = 's[12:15]' if XO else 's[16:19]'
    base(a, 12, 56, 0x200000)
    a(f's_add_u32 s37, s33, {0 if XO else hex(X1)}')
    a('v_lshrrev_b32 v14, 2, v0')
    a(f'v_mul_u32_u24 v14, {YP}, v14')
    a('v_and_b32 v19, 3, v0')
    a('v_lshl_add_u32 v14, v19, 4, v14')
    a('s_lshl_b32 s24, s32, 6')
    a(f's_add_u32 s26, s24, {hex(YT)}')
    a(f's_add_u32 s27, s26, {64*YP}')
    a(f's_add_u32 s5, s26, {128*YP}')
    a(f's_add_u32 s6, s26, {192*YP}')
    X = (64, 160)
    vm.need(tx)
    subs = []
    for t in range(2):
        s = Asm(); unpack8(s, X[t], 232+4*t, 40); ln2p(s, X[t], X[t]+8, X[t]+16, 24+t)
        subs.append(s)
    zipl(a, *subs)
    stamp('ln1')
    yloads = [f'buffer_load_dwordx4 v[{24+4*j}:{27+4*j}], v14, s[16:19], s{(26, 27, 5, 6)[j]} offen sc1' for j in range(4)]
    MDE = P.get('mde', 2)
    def md_in():
        poll('md', mloads, [106, 110, 114], pre=TM[0])
        stamp('mdok'); raw(1, 's51')
        for r in range(3): a(f'ds_write_b64 v22, v[{104+4*r}:{105+4*r}] offset:{2048*r}')
    def md_use(extra):
        for i, off in enumerate((1024, 0, 2048)):
            a(f'ds_read_b128 v[{40+4*i}:{43+4*i}], v13 offset:{off}')
        for l in extra: a(l)
        for i, off in enumerate((4096, 3072)):
            a(f'ds_read_b128 v[{52+4*i}:{55+4*i}], v13 offset:{off}')
        a('ds_read_b128 v[124:127], v23')
        a('ds_read_b128 v[116:119], v23 offset:32')
        a(f's_waitcnt lgkmcnt({5+len(extra)})')
        unpack8(a, 128, 40, 40); unpack8(a, 136, 44, 40)
        for t in range(2):
            for p in range(4):
                d = X[t]+8+2*p
                a(f'v_pk_fma_f32 v[{d}:{d+1}], v[{d}:{d+1}], v[{128+2*p}:{129+2*p}], v[{136+2*p}:{137+2*p}]')
        a(f's_waitcnt lgkmcnt({4+len(extra)})')
        unpack8(a, 144, 48, 40)
        for t in range(2):
            for p in range(4):
                d = X[t]+8+2*p
                a(f'v_pk_mul_f32 v[{d}:{d+1}], v[{d}:{d+1}], v[{144+2*p}:{145+2*p}]')
        a('s_waitcnt lgkmcnt(0)')
        unpack8(a, 128, 52, 40); unpack8(a, 136, 56, 40)
    if MDE:
        md_in()
        a('s_waitcnt lgkmcnt(0)')
        a('s_barrier')
        md_use([])
    vm.need(tys)
    if P.get('yd'): a(f's_sleep {P["yd"]}')
    stamp('ytack')
    for l in yloads: ty = vm.issue(l)
    if not MDE:
        for l in mloads: TM[0] = vm.issue(l)
    poll('yt', yloads, [26, 30, 34, 38], pre=ty)
    stamp('ytok'); raw(2, 's51')
    for j in range(4):
        a(f'ds_write_b32 v3, v{24+4*j} offset:{256*j}')
        a(f'ds_write_b32 v3, v{25+4*j} offset:{256*j+YS}')
    if not MDE: md_in()
    a('s_waitcnt lgkmcnt(0)')
    a('s_barrier')
    stamp('ybar')
    yreads = ['ds_read_b128 v[24:27], v4', f'ds_read_b128 v[28:31], v4 offset:{YS}']
    if MDE:
        for l in yreads: a(l)
    ptok = {}
    def p2dma(k):
        if LAY == 1 or k < 15: a(f's_add_u32 m0, s49, {SEG[0][1] + 2048*(k % 15)}')
        else: a(f's_add_u32 m0, s43, {seg_of(k)[1] + 2048*(k - seg_of(k)[0])}')
        if k and k % 4: a(f's_add_u32 s48, s48, {16*PR}')
        elif k: step('s48', 16*PR, 's100', 512*PR)
        ptok[k] = vm.issue('buffer_load_dwordx4 v7, s[16:19], s48 offen sc1 lds' if RP else 'buffer_load_dwordx4 v7, s[20:23], s48 offen lds')
    a(f's_add_u32 s100, s48, {512*PR}')
    a(f's_mul_i32 s36, s98, {64*PR}')
    a('s_add_u32 s48, s48, s36')
    for _ in range(P.get('e3', 3)): early.popleft()()
    NSY = P.get('nsy', 0)
    for k in range(NSY): p2dma(k)
    if MDE: a('s_waitcnt lgkmcnt(0)')
    else: md_use(yreads)
    subs = []
    for t in range(2):
        s = Asm(); x = X[t]
        unpack8(s, x+20, 24+4*t, 40)
        for p in range(4):
            s(f'v_pk_fma_f32 v[{x+2*p}:{x+2*p+1}], v[{x+8+2*p}:{x+9+2*p}], v[{x+20+2*p}:{x+21+2*p}], v[{x+2*p}:{x+2*p+1}]')
        for j in range(4): s(f'v_cvt_pk_bf16_f32 v{32+4*t+j}, v{x+2*j}, v{x+2*j+1}')
        s(f'buffer_store_dwordx4 v[{32+4*t}:{35+4*t}], v15, {XS}, s37 offen offset:{1024*t} sc1')
        unpack8(s, x, 32+4*t, 40)
        (ln1p if P.get('l1', 1) else ln2p)(s, x, x+8, x+16, 24+2*t)
        for p in range(4):
            s(f'v_pk_fma_f32 v[{x+8+2*p}:{x+9+2*p}], v[{x+8+2*p}:{x+9+2*p}], v[{128+2*p}:{129+2*p}], v[{136+2*p}:{137+2*p}]')
        for j in range(4): s(f'v_cvt_pk_bf16_f32 v{40+4*t+j}, v{x+8+2*j}, v{x+9+2*j}')
        s(f'ds_write_b128 v{(5, 16)[t]}, v[{40+4*t}:{43+4*t}]')
        subs.append(s)
    zipl(a, *subs)
    vm.issued += 2
    a('s_waitcnt lgkmcnt(0)')
    a('s_barrier')
    stamp('hbar')
    a('ds_read_b128 v[24:27], v18')
    a('ds_read_b128 v[28:31], v18 offset:1024')
    a('s_and_b32 s24, s32, 31')
    a('s_lshl_b32 s24, s24, 4')
    a('s_lshl_b32 s25, s3, 2')
    a('s_add_u32 s33, s24, s25')
    a('s_and_b32 s25, s30, 1')
    a('s_lshl_b32 s25, s25, 8')
    a('s_lshl_b32 s26, s3, 6')
    a('s_add_u32 s25, s25, s26')
    a('v_and_b32 v19, 15, v1')
    a('v_lshlrev_b32 v19, 2, v19')
    if M2:
        a('s_lshl_b32 s25, s3, 2')
        a('s_lshl_b32 s24, s32, 7')
        a('s_add_u32 s24, s24, s25')
        a(f's_add_u32 s24, s24, {hex(FL1)}')
        a('s_lshl_b32 s33, s30, 4')
        a('s_or_b32 s33, s33, s31')
        a('s_lshl_b32 s33, s33, 7')
        a('s_add_u32 s33, s33, s25')
        a(f's_add_u32 s33, s33, {hex(FL2)}')
        a('s_lshl_b32 s26, s30, 4')
        a('s_add_u32 s26, s26, s25')
        a('s_lshl_b32 s26, s26, 7')
        a(f's_add_u32 s97, s26, {hex(FL1)}')
        a('s_lshr_b32 s26, s32, 4')
        a('s_lshl_b32 s26, s26, 4')
        a('s_add_u32 s26, s26, s25')
        a('s_lshl_b32 s26, s26, 7')
        a(f's_add_u32 s25, s26, {hex(FL2)}')
        a('v_bfe_u32 v19, v1, 2, 2')
        a('v_and_b32 v22, 3, v1')
        a('v_lshlrev_b32 v22, 2, v22')
        a('v_lshl_add_u32 v19, v19, 7, v22')
    def flag(F):
        if not M2:
            if PM: a('s_mov_b64 exec, 1')
            t = lstore([f'buffer_store_dword v20, v21, s[52:55], s33 offen offset:{F}'])
            if PM: a('s_mov_b64 exec, -1')
            return t
        if F == F3: a(f's_add_u32 s33, s33, {FL3-FL2}')
        return masked([f'buffer_store_dword v20, v21, s[16:19], {"s24" if F == F1 else "s33"} offen sc1'], 1)
    def look(F):
        if not M2: return [f'buffer_load_dword v22, v{19 if F == F1 else 13}, s[52:55], s25 offen offset:{F} sc1']
        return [f'buffer_load_dword v22, v{19 if F == F1 else 13}, s[16:19], {"s97" if F == F1 else "s25"} offen sc1']
    a('s_waitcnt lgkmcnt(0)')
    lstore(['buffer_store_dwordx4 v[24:27], v17, s[16:19], s46 offen', 'buffer_store_dwordx4 v[28:31], v17, s[16:19], s47 offen'], P.get('h2s', M2))
    if P.get('h2c'):
        for j in range(8): a(f'v_mov_b32 v{108+j}, v{24+j}')
        a('v_mov_b32 v107, v17')
        a('s_mov_b32 s96, s46')
    stamp('h2st')
    a('v_bfe_u32 v4, v1, 4, 1')
    a('v_lshrrev_b32 v5, 5, v1')
    a('v_bfe_u32 v22, v1, 2, 2')
    a('v_and_b32 v23, 3, v1')
    a('v_lshlrev_b32 v23, 3, v23')
    a('v_lshl_add_u32 v3, v5, 3, v22')
    a('v_bfe_u32 v13, v1, 3, 1')
    a('v_lshlrev_b32 v16, 7, v3')
    a('v_add_u32 v16, v16, v23')
    a('v_lshl_add_u32 v16, v13, 6, v16')
    a('v_lshl_add_u32 v16, v4, 5, v16')
    a(f'v_mul_u32_u24 v17, {SEG[0][2]-SEG[0][1]}, v4')
    a(f'v_add_u32 v17, {SEG[0][1]}, v17')
    a(f'v_mul_u32_u24 v18, {P1U}, v4')
    for ct in range(4):
        a(f'v_xor_b32 v14, {32*ct}, v16')
        a(f'v_add_u32 v{246+ct}, v14, v17')
        if LAY == 2: a(f'v_add_u32 v{120+ct}, v14, v18')
    a('v_mul_u32_u24 v3, 0x60, v3')
    a('v_add_u32 v3, v3, v23')
    a('v_add_u32 v18, v18, v3')
    a('v_lshl_add_u32 v3, v5, 2, v22')
    a('v_lshlrev_b32 v3, 7, v3')
    a('v_lshl_add_u32 v3, v13, 6, v3')
    a('v_lshl_add_u32 v3, v4, 5, v3')
    a('v_add_u32 v3, v3, v23')
    a('s_lshl_b32 s26, s3, 11')
    a('s_and_b32 s27, s3, 1')
    a('s_lshl_b32 s27, s27, 6')
    a('v_xor_b32 v3, s27, v3')
    a('v_add_u32 v240, s26, v3')
    a('v_xor_b32 v241, 64, v240')
    for i in range(1, 3):
        a(f'v_add_u32 v{240+2*i}, {65536*i}, v240')
        a(f'v_add_u32 v{241+2*i}, {65536*i}, v241')
    a(f's_mov_b32 s44, {fh(GC2)}'); a(f's_mov_b32 s45, {fh(GC2)}')
    a(f'v_mov_b32 v2, {fh(GC1)}'); a(f'v_mov_b32 v3, {fh(GC1)}')
    a('s_lshl_b32 s27, s30, 2')
    a('s_add_u32 s27, s27, s3')
    a('s_lshl_b32 s28, s27, 15')
    a(f's_add_u32 s28, s28, {hex(H2)}')
    a('v_add_u32 v14, s28, v15')
    a('s_lshl_b32 s28, s98, 12')
    a('s_waitcnt vmcnt(0)'); vm.done = vm.issued
    stamp('h2dr')
    flag(F1)
    while early: early.popleft()()
    NS0 = min(7, P.get('ns0', 0) + NSY)
    for k in range(NSY, NS0): p2dma(k)
    a('s_mul_i32 s29, s27, 112')
    AN = M2 or P.get('an', 1)
    AP = 1024 if AN else YP
    if AN:
        a('s_lshl_b32 s47, s31, 2')
        a('s_add_u32 s47, s47, s29')
        a('s_lshl_b32 s47, s47, 10')
        a(f's_add_u32 s47, s47, {hex(ACT)}')
    else:
        a('s_lshl_b32 s47, s3, 4')
        a('s_add_u32 s47, s47, s31')
        a(f's_mul_i32 s47, s47, {4*YP}')
        a('s_lshl_b32 s4, s30, 10')
        a(f's_add_u32 s4, s4, {hex(YT)}')
        a('s_add_u32 s47, s47, s4')
    a('s_mul_i32 s46, s31, 3')
    a('s_add_u32 s46, s46, s29')
    a('s_lshl_b32 s46, s46, 10')
    a(f's_add_u32 s46, s46, {hex(ACT + 64*1024)}')
    a('s_lshr_b32 s39, s32, 3')
    a('s_and_b32 s35, s39, 1')
    a(f's_and_b32 s34, s39, {P.get("wrot", 0)}')
    a('s_and_b32 s24, s32, 7')
    if DX: a(f's_xor_b32 s24, s24, {DX}')
    a('s_lshl_b32 s24, s24, 7')
    if RL:
        a(f's_add_u32 s8, s58, {hex(WD2)}')
        a('s_addc_u32 s9, s59, 0')
        a('s_mul_i32 s24, s24, 1792')
    a(f's_mul_i32 s37, s3, {12*WS_}')
    a('s_add_u32 s37, s37, s24')
    a(f's_add_u32 s30, s37, {76*WS_}')
    a(f's_mul_i32 s36, s34, {3*WS_}')
    a('s_add_u32 s37, s37, s36')
    a(f's_add_u32 s37, s37, {64*WS_}')
    a(f's_mul_i32 s38, s3, {16*WS_}')
    a('s_add_u32 s38, s38, s24')
    a(f's_add_u32 s31, s38, {16*WS_}')
    a(f's_mul_i32 s36, s34, {4*WS_}')
    a('s_add_u32 s38, s38, s36')
    if AN:
        a(f's_mul_i32 s4, s39, {224*1024}')
        a('s_lshl_b32 s6, s3, 14')
        a('s_add_u32 s6, s6, s4')
        a(f's_add_u32 s6, s6, {hex(ACT)}')
    else:
        a('s_lshl_b32 s6, s35, 3')
        a('s_add_u32 s6, s6, s3')
        a(f's_mul_i32 s6, s6, {16*YP}')
        a('s_add_u32 s6, s6, s4')
    a(f's_add_u32 s42, s6, {16*AP}')
    a(f's_mul_i32 s36, s34, {4*AP}')
    a('s_add_u32 s6, s6, s36')
    a(f's_mul_i32 s4, s39, {224*1024}')
    a(f's_mul_i32 s5, s3, {12*1024}')
    a('s_add_u32 s5, s5, s4')
    a(f's_add_u32 s5, s5, {hex(ACT + 64*1024)}')
    a(f's_add_u32 s41, s5, {12*1024}')
    a(f's_mul_i32 s36, s34, {3*1024}')
    a('s_add_u32 s5, s5, s36')
    a('s_lshl_b32 s39, s39, 16')
    a('s_and_b32 s24, s32, 7')
    if DX: a(f's_xor_b32 s24, s24, {DX}')
    a('s_lshl_b32 s24, s24, 7')
    a('s_add_u32 s39, s39, s24')
    a('v_bfe_u32 v4, v1, 1, 2')
    a('v_and_b32 v5, 1, v1')
    a('v_lshlrev_b32 v5, 2, v5')
    a(f'v_lshl_add_u32 v4, v4, {7 if M2 else 4}, v5')
    a('s_lshl_b32 s35, s35, 3')
    a('v_add_u32 v13, s35, v4')
    a('s_cmp_ge_u32 s3, 2')
    for r, (reg0, reg1, dist) in enumerate(((250, 16, 112*1024), (251, 17, 112*1024 if AN else 64*YP))):
        a(f's_cselect_b32 s36, {dist}, 0')
        a(f'v_add_u32 v{reg0}, s36, v15')
        a(f's_cselect_b32 s36, 0, {dist}')
        a(f'v_add_u32 v{reg1}, s36, v15')
    a('v_lshlrev_b32 v73, 7, v1')
    a('s_lshl_b32 s34, s2, 2')
    a('s_add_u32 s34, s34, s3')
    a(f's_mul_i32 s34, s34, {14*128}')
    poll('f1', look(F1), [22], mask=0xffff)
    stamp('f1ok'); raw(3, 's51')
    htok = {}
    def h2load(ks):
        htok[ks] = vm.issue(f'buffer_load_dwordx4 a[{4*ks}:{4*ks+3}], v14, s[16:19], s28 offen offset:{1024*(ks&3)} sc1')
        if (ks & 3) == 3:
            a('s_add_u32 s28, s28, 0x1000'); a('s_and_b32 s28, s28, 0x7fff')
    NH0 = P.get('nh0', 6)
    for ks in range(NH0): h2load(ks)
    slow(4)
    a('s_barrier')
    stamp('b0')
    wtok, atok = {}, {}
    def wd0(i):
        so = 's37' if i < 12 else 's38'
        a(f's_add_u32 m0, s26, {8192*WBL[i]}')
        if i not in (0, 12): a(f's_add_u32 {so}, {so}, {WS_}')
        vm.issue(f'buffer_load_dwordx4 v8, s[8:11], {so} offen lds')
    def wd1(i):
        wtok[i] = vm.issue(f'buffer_load_dwordx4 v9, s[8:11], {"s37" if i < 12 else "s38"} offen offset:1024 lds')
    def wreg(i): return ('v', 72 + 8*i) if i < 5 else ('a', 224 + 8*(i-5)) if i < 8 else ('v', AR + 8*(i % 3))
    def wread(i, mt, jj):
        kind, d = wreg(i); ad = 8192*WBL[i]
        return f'ds_read_b64_tr_b16 {kind}[{d+4*mt+2*jj}:{d+4*mt+2*jj+1}], v{240+2*(ad>>16)+mt} offset:{(ad & 0xffff)+1024*jj}'
    def abase(i): return 128 + 8*i if i < 12 else 8*(i-12)
    def act0(i):
        b = abase(i)
        if i < 12:
            if i and i % 4 == 0: a('s_add_u32 s5, s5, 0x1000')
            vm.issue(f'buffer_load_dwordx4 a[{b}:{b+3}], v250, s[16:19], s5 offen offset:{1024*(i & 3)} sc1')
        else:
            if i > 12: a(f's_add_u32 s6, s6, {AP}')
            vm.issue(f'buffer_load_dwordx4 a[{b}:{b+3}], v251, s[16:19], s6 offen sc1')
    def act1(i):
        b = abase(i)
        if i < 12: atok[i] = vm.issue(f'buffer_load_dwordx4 a[{b+4}:{b+7}], v16, s[16:19], s5 offen offset:{1024*(i & 3)} sc1')
        else: atok[i] = vm.issue(f'buffer_load_dwordx4 a[{b+4}:{b+7}], v17, s[16:19], s6 offen sc1')
    valu = deque()
    AR, NA = 24, 6
    ACC1, ACC2 = 192, 128
    pipe = LdsPipe(a)
    steps = [(0, k, ct) for k in range(32) for ct in range(2)] + [(0, k, 2) for k in range(32)] + [(1, k, ct) for k in range(32) for ct in range(4)]
    tok = {}; nxt = [0]
    def rd(n):
        ps, k, ct = steps[n]; d = AR + 4*(n % NA)
        for jj in range(2):
            b, off = (18, (16*k + 4*jj)*96 + 32*ct) if ps == 0 else (246+ct, 2048*(k % 15) + 512*jj)
            if ps == 1 and LAY == 2 and k >= 15: b, off = 120+ct, seg_of(k)[1] + 2048*(k - seg_of(k)[0]) + 512*jj
            tok[n] = pipe.issue(f'ds_read_b64_tr_b16 v[{d+2*jj}:{d+2*jj+1}], v{b} offset:{off}')
    for n in range(NA-1): rd(n)
    nxt[0] = NA-1
    J = dict(h=NH0, p=NS0, w=0, half=False, a=0, ahalf=False, pmax=15, wmax=0, f2=False, lastp=-99)
    stg = {}
    def wfree(i): return i < J['wmax'] and (not 12 <= i < 20 or stg.get(i - 12, 1 << 30) <= pipe.done)
    def job(n):
        if J['half']: J['half'] = False; wd1(J['w']); J['w'] += 1; return 1
        if J['h'] < 32: h2load(J['h']); J['h'] += 1; return 1
        if J['p'] < J['pmax'] and n - J['lastp'] >= PE: p2dma(J['p']); J['p'] += 1; J['lastp'] = n; return 3
        if J['ahalf']: J['ahalf'] = False; act1(J['a']); J['a'] += 1; return 1
        if J['f2'] and J['a'] < 12 and (J['a'] <= J['w'] - P.get('wa', 12) or not wfree(J['w']) or J['w'] >= 28):
            act0(J['a']); J['ahalf'] = True; return 1
        if J['w'] < 28 and wfree(J['w']) and n >= P.get('ws', 112): wd0(J['w']); J['half'] = True; return 3
        return 0
    VB = P.get('vb', 35); PE = P.get('pe', 3); TE = P.get('te', 15); LW = P.get('lw', 2)
    held = deque(); stok = {}; sg = 0; credit = 0; nb = 0; ta = 0; fload = look(F2); tp = None
    F2P, F2C = P.get('f2p', 999), P.get('f2c', 204)
    def gelu_step(x, n):
        if isinstance(x, tuple):
            stok[x[1]] = vm.issue(f'buffer_store_dwordx4 v[{x[2]}:{x[2]+3}], v15, s[16:19], s46 offen offset:{1024*x[1]} sc1')
            stok['at'] = n
        else: a(x)
    for n, (ps, k, ct) in enumerate(steps):
        if n < 64 and ct == 0:
            while k not in htok: job(n)
            vm.need(htok[k])
        if tok[n] > pipe.done: pipe.need(tok[min(n + LW - 1, len(steps) - 1)])
        d = (ACC1, ACC2)[ps] + 16*ct; c = '0' if k == 0 else f'v[{d}:{d+15}]'
        sa = AR + 4*(n % NA)
        a(f'v_mfma_f32_32x32x16_bf16 v[{d}:{d+15}], v[{sa}:{sa+3}], a[{4*k}:{4*k+3}], {c}')
        if nxt[0] < len(steps): rd(nxt[0]); nxt[0] += 1
        if P.get('hard'):
            credit = min(credit, 0) + 10*(P['hard'] - 2 - (n + 1 < len(steps) and tok[n+1] > pipe.done))
        else: credit = min(credit + VB, P.get('cap', 40))
        if n in BARS:
            land, J['pmax'], J['wmax'] = BARS[n][0], J['pmax'], J['wmax']
            if land is not None:
                while land not in ptok:
                    if J['half']: job(n)
                    p2dma(J['p']); J['p'] += 1
                vm.need(ptok[land])
            a('s_barrier')
            J['pmax'], J['wmax'] = BARS[n][1:]
            nb += 1; stamp(f'b{nb}' if n < 223 else 'b9'); credit -= 10
        if n == P.get('wt', 999 if RL else 60):
            a('s_mov_b64 exec, 0x3fff')
            vm.issue('buffer_load_dword v72, v73, s[8:11], s34 offen')
            a('s_mov_b64 exec, -1')
        if n in (65, 97):
            if n == 65: stamp('p1a')
            else: stamp('p1end')
            for t in ((0, 1) if n == 65 else (2,)):
                o = (64, 68, 112)[t]
                valu.extend(gelu_ops(ACC1+16*t, 48 + 8*(t & 1), o))
                valu.append(('store', t, o))
        if held and n >= P.get('sdl', 0): gelu_step(held.popleft(), n)
        if n == P.get('h2c', -1):
            vm.issue('buffer_store_dwordx4 v[108:111], v107, s[16:19], s96 offen sc1')
            a('s_add_u32 s96, s96, 0x1000')
            vm.issue('buffer_store_dwordx4 v[112:115], v107, s[16:19], s96 offen sc1')
        ta += 10
        if n == F2P and 'f2' in stok: tp = masked(fload, 0xff); ta = 0
        elif n == F2C and tp is not None:
            poll('f2', fload, [22], pre=tp, mask=0xff); J['f2'] = True
            stamp('f2ok'); raw(4, 's51')
        elif ta >= TE:
            cst = job(n)
            if cst: ta -= TE; credit -= 10*cst
            else: ta = TE
        if n >= P.get('stg', 160) and sg < 32 and pipe.outstanding() <= 13 and credit >= 10 and (not valu or n % 2):
            i, r = divmod(sg, 4)
            if i in wtok and (wtok[i] <= vm.done or vm.issued - wtok[i] >= P.get('sl', 8)):
                vm.need(wtok[i])
                t = pipe.issue(wread(i, r >> 1, r & 1)); sg += 1; credit -= 10
                if r == 3: stg[i] = t
        while valu and credit >= 10*(cost(valu[0]) if isinstance(valu[0], str) else 1):
            x = valu.popleft()
            if isinstance(x, str): a(x); credit -= 10*cost(x)
            elif n < P.get('sdl', 0) or held: held.append(x)
            else: gelu_step(x, n)
        if 2 in stok and 'f2' not in stok and n >= stok['at'] + P.get('fdel', 32):
            vm.need(stok[2])
            stok['f2'] = flag(F2); print('F2 at', n, end='; ')
    while held: gelu_step(held.popleft(), 224)
    while valu: gelu_step(valu.popleft(), 224)
    if 'f2' not in stok:
        vm.need(stok[2])
        stok['f2'] = flag(F2)
    assert J['p'] == 32 and J['h'] == 32
    print('w_down steps', J['w'], 'staged', sg, 'act steps', J['a'])
    while sg < 32:
        i, r = divmod(sg, 4)
        while i not in wtok: job(999)
        vm.need(wtok[i])
        stg[i] = pipe.issue(wread(i, r >> 1, r & 1)); sg += 1
    pipe.need(pipe.issued)
    if tp is None and P.get('fp', 3) < 4: tp = masked(fload, 0xff)
    a('s_mov_b32 s34, 1.0'); a('s_mov_b32 s35, 1.0')
    def geglu2(t):
        s = Asm(); geglu(s, ACC2+16*t, 48, 64 + 4*(t & 1))
        for j, l in enumerate(s.lines):
            a(l.replace('s[46:47]', 's[34:35]'))
            if j % P.get('ge', 8) == 3 and t < P.get('gt', 4): job(999)
        if t: a(f's_add_u32 s47, s47, {AP}')
        return lstore([f'buffer_store_dwordx4 v[{64+4*(t&1)}:{67+4*(t&1)}], v15, s[16:19], s47 offen'], P.get('a2s', 1))
    for t in range(4):
        if t == P.get('fp', 3) and not J['f2']:
            stamp('g1')
            poll('f2', fload, [22], pre=tp, mask=0xff); J['f2'] = True
            stamp('f2ok'); raw(4, 's51')
        if t == 3 and tp is None: tp = masked(fload, 0xff)
        ts3 = geglu2(t)
    stamp('g3')
    a('v_and_b32 v4, 31, v1')
    a('v_lshrrev_b32 v5, 5, v1')
    a('v_lshlrev_b32 v10, 10, v4')
    a('v_lshl_add_u32 v10, v5, 4, v10')
    a('s_lshr_b32 s46, s3, 1')
    a('s_lshl_b32 s46, s46, 15')
    a('s_and_b32 s47, s3, 1')
    a('s_lshl_b32 s47, s47, 6')
    a('s_add_u32 s39, s39, s46')
    a('s_add_u32 s39, s39, s47')
    a(f's_add_u32 s46, s39, {0 if XO else hex(X1)}')
    F3S = P.get('f3s', 4)
    if F3S < 0:
        vm.need(ts3)
        flag(F3)
    if not J['f2']:
        poll('f2', fload, [22], pre=tp, mask=0xff); J['f2'] = True
        stamp('f2ok'); raw(4, 's51')
        while J['a'] < P.get('a1b', 3): job(999)
    if M2: a(f's_add_u32 s25, s25, {FL3-FL2}')
    stamp('estart')
    pipe = LdsPipe(a); tok = {}
    def rd2(i):
        while i not in wtok: job(999)
        vm.need(wtok[i])
        for mt in range(2):
            for jj in range(2): tok[(i, mt)] = pipe.issue(wread(i, mt, jj))
    f3load = look(F3)
    for i in range(8): stg[i] = 0
    TL = P.get('tl', 2)
    F3C = P.get('f3c', 6); JE = P.get('je', 2); tp = None; g = 0; aq = deque()
    for i in range(28):
        stamp(f'e{i}')
        if F3S >= 0 and 's' not in stok and (i == F3S or atok.get(i, 1 << 30) > ts3):
            vm.need(ts3)
            stok['s'] = flag(F3); print('F3 at step', i)
        if i == F3C:
            while J['a'] < 12 or J['half']: job(999)
            if tp is None: tp = masked(f3load, 0xff)
            poll('f3', f3load, [22], pre=tp, mask=0xff)
            stamp('f3ok'); raw(5, 's51')
            for ii in range(12, 28): aq.extend([lambda ii=ii: act0(ii), lambda ii=ii: act1(ii)])
            for _ in range(P.get('a2b', 4)): aq.popleft()()
        if i == 22:
            vm.issue(f'buffer_load_dwordx4 v[72:75], v10, {XS}, s46 offen sc1')
            tx = vm.issue(f'buffer_load_dwordx4 v[76:79], v10, {XS}, s46 offen offset:32 sc1')
        if i >= 28 - TL: continue
        kind, d0 = wreg(i); b = abase(i)
        while i not in atok: (aq.popleft()() if i >= 12 else job(999))
        vm.need(atok[i])
        for mt in range(2):
            if i >= 8: pipe.need(tok[(i, mt)])
            for nt in range(2):
                d = ACC2 + 32*mt + 16*nt; c = '0' if i == 0 else f'v[{d}:{d+15}]'
                a(f'v_mfma_f32_32x32x16_bf16 v[{d}:{d+15}], {kind}[{d0+4*mt}:{d0+4*mt+3}], a[{b+4*nt}:{b+4*nt+3}], {c}')
                g += 1
                if mt == 0 and nt == 0 and 8 <= i+2 < 28: rd2(i+2)
                if g % JE == 0:
                    if aq and not J['half'] and (J['w'] >= 28 or J['w'] > i + P.get('wb', 28)): aq.popleft()()
                    elif tp is None and not J['half'] and J['a'] == 12 and (J['w'] >= 28 or i == F3C - 1): tp = masked(f3load, 0xff)
                    elif not job(999) and aq: aq.popleft()()
    PBL = [None, (WBL[8], WBL[9]), (WBL[10], WBL[11]), (WBL[12], WBL[13])]
    a('v_add_u32 v4, s26, v15')
    a('v_add_u32 v5, 0x10000, v4')
    a('v_add_u32 v18, 0x20000, v4')
    def mm(i, t):
        kind, d0 = wreg(i); b = abase(i); mt, nt = t & 1, t >> 1; d = ACC2 + 32*mt + 16*nt
        while i not in atok: aq.popleft()()
        vm.need(atok[i]); pipe.need(tok[(i, mt)])
        a(f'v_mfma_f32_32x32x16_bf16 v[{d}:{d+15}], {kind}[{d0+4*mt}:{d0+4*mt+3}], a[{b+4*nt}:{b+4*nt+3}], v[{d}:{d+15}]')
    def park(t):
        d = ACC2 + 32*(t & 1) + 16*(t >> 1)
        return [f'ds_write_b128 v{(4, 5, 18)[ad >> 16]}, v[{d+4*g}:{d+4*g+3}] offset:{ad & 0xffff}' for g in range(4) for ad in [8192*PBL[t][g >> 1] + 1024*(g & 1)]]
    wr = deque()
    for t in (1, 3, 2, 0):
        for i in range(28 - TL, 28):
            mm(i, t)
            if t != 3:
                for _ in range(4 // TL if TL else 0):
                    if wr: a(wr.popleft())
        if t: wr.extend(park(t))
    stamp('eend')
    while wr: a(wr.popleft())
    for t in range(1, 4):
        a(f's_xor_b32 s6, s26, {2048*t}')
        a(f's_add_u32 s7, s6, {8192*PBL[t][1]}')
        a(f's_add_u32 s6, s6, {8192*PBL[t][0]}')
        a(f'v_add_u32 v{88+2*t}, s6, v15')
        a(f'v_add_u32 v{89+2*t}, s7, v15')
    vm.need(tx)
    unpack8(a, 96, 124, 40); unpack8(a, 104, 116, 40); unpack8(a, 48, 72, 40); unpack8(a, 56, 76, 40)
    a('s_waitcnt lgkmcnt(0)')
    a('s_barrier')
    stamp('ebar')
    for i in range(1, 4):
        for g in range(4):
            a(f'ds_read_b128 v[{128+16*i+4*g}:{131+16*i+4*g}], v{88+2*i+(g >> 1)} offset:{1024*(g & 1)}')
    for i in range(1, 4):
        a(f's_waitcnt lgkmcnt({12-4*i})')
        for p in range(8): a(f'v_pk_add_f32 v[{128+2*p}:{129+2*p}], v[{128+2*p}:{129+2*p}], v[{128+16*i+2*p}:{129+16*i+2*p}]')
    for g in range(2):
        b = 128 + 8*g
        for r in range(4): a(f'v_permlane32_swap_b32 v{b+r}, v{b+4+r}')
        for p in range(4): a(f'v_pk_fma_f32 v[{b+2*p}:{b+2*p+1}], v[{b+2*p}:{b+2*p+1}], v[{96+8*g+2*p}:{97+8*g+2*p}], v[{48+8*g+2*p}:{49+8*g+2*p}]')
        for p in range(4): a(f'v_cvt_pk_bf16_f32 v{40+4*g+p}, v{b+2*p}, v{b+2*p+1}')
        a(f'buffer_store_dwordx4 v[{40+4*g}:{43+4*g}], v10, s[12:15], s39 offen offset:{32*g}' + ('', ' sc1', ' nt')[P.get('ost', 0)])
    a('s_or_b32 s4, s2, s3')
    a('s_cmp_lg_u32 s4, 0')
    a('s_cbranch_scc1 L_noep')
    a(f's_mov_b32 s4, {hex(EPOCH)}')
    masked(['buffer_store_dword v20, v21, s[16:19], s4 offen'], 1)
    a.label('L_noep')
    if P.get('probe') is not None:
        a('s_waitcnt vmcnt(0)')
        stamp('end')
        a('s_waitcnt lgkmcnt(0)')
        k = P['probe']
        if k == 300:
            a('v_mov_b32 v22, s60')
            a(f's_mov_b32 s36, {hex(0x140B000)}')
            a('s_cmp_lg_u32 s2, 0')
            a('s_cbranch_scc1 L_end')
            a('buffer_store_dword v22, v21, s[16:19], s36 offen')
            a('s_branch L_end')
        elif k == 301:
            a(f's_add_u32 s4, s58, {hex(0x140B000)}')
            a('s_addc_u32 s5, s59, 0')
            a('s_load_dword s92, s[4:5], 0')
            a('s_waitcnt lgkmcnt(0)')
            a('s_add_u32 s92, s92, 6000')
        elif k >= 200:
            a(f's_add_u32 s4, s58, {hex(EPOCH + 0x100)}')
            a('s_addc_u32 s5, s59, 0')
            a('s_load_dwordx4 s[92:95], s[4:5], 0')
            a('s_waitcnt lgkmcnt(0)')
            a('s_cmp_eq_u64 s[92:93], s[94:95]')
            a('s_cselect_b32 s92, 10000, 0' if k == 200 else 's_cselect_b32 s92, 0, 10000')
            a('s_add_u32 s92, s92, s70')
        elif k >= 100:
            a(f's_mov_b32 s36, {hex(0x140A000)}')
            a('buffer_load_dwordx4 v[24:27], v15, s[16:19], s36 offen sc1')
            a('s_waitcnt vmcnt(0)')
            for r, op in ((28, 'min'), (29, 'max')):
                a(f'v_{op}_u32 v{r}, v24, v25')
                a(f'v_{op}3_u32 v{r}, v{r}, v26, v27')
                for ctl in ('row_ror:1', 'row_ror:2', 'row_ror:4', 'row_ror:8'):
                    a(f'v_{op}_u32_dpp v{r}, v{r}, v{r} {ctl} row_mask:0xf bank_mask:0xf')
                for i in range(4): a(f'v_readlane_b32 s{4+i}, v{r}, {16*i}')
                a(f's_{op}_u32 s4, s4, s5'); a(f's_{op}_u32 s6, s6, s7'); a(f's_{op}_u32 s{r+62}, s4, s6')
            if k == 100: a('s_add_u32 s92, s90, 6000')
            elif k == 101:
                a('s_sub_u32 s92, s91, s90'); a('s_lshl_b32 s92, s92, 2'); a('s_add_u32 s92, s92, s90'); a('s_add_u32 s92, s92, 4000')
            else:
                a(f's_sub_u32 s92, s{60+2*(k-110)}, s90'); a('s_lshl_b32 s92, s92, 2'); a('s_add_u32 s92, s92, s90'); a('s_add_u32 s92, s92, 4000')
        elif k == 0:
            a('s_add_u32 s92, s60, 6000')
        else:
            a(f's_sub_u32 s92, s{60+2*k}, s60')
            a('s_lshl_b32 s92, s92, 2')
            a('s_add_u32 s92, s92, s60')
            a('s_add_u32 s92, s92, 4000')
        a.label('L_probe')
        a('s_memrealtime s[94:95]')
        a('s_waitcnt lgkmcnt(0)')
        a('s_sub_u32 s94, s94, s92')
        a('s_cmp_lt_i32 s94, 0')
        a('s_cbranch_scc1 L_probe')
    elif P.get('stamps'):
        a('s_waitcnt vmcnt(0)')
        stamp('end')
        a('s_cmp_lg_u32 s3, 0')
        a('s_cbranch_scc1 L_end')
        a('s_lshl_b32 s94, s2, 7')
        a(f's_add_u32 s94, s94, {hex(TS)}')
        a('s_add_u32 s92, s58, s94')
        a('s_addc_u32 s93, s59, 0')
        a('v_lshlrev_b32 v250, 2, v1')
        a('s_lshl_b32 s94, s2, 8')
        a(f's_add_u32 s94, s94, {hex(TS + 0x80000)}')
        a('s_add_u32 s94, s58, s94')
        a('s_addc_u32 s95, s59, 0')
        a('global_store_dword v250, v254, s[94:95]')
        a('s_mov_b64 exec, 1')
        if P.get('dbg'):
            a('s_load_dwordx2 s[94:95], s[0:1], 104')
        a('s_waitcnt lgkmcnt(0)')
        if P.get('dbg'):
            a('s_not_b32 s60, s60')
            for m in sorted(marks):
                a(f'v_mov_b32 v250, s{60+2*m}')
                a(f'global_atomic_umax v21, v250, s[94:95] offset:{4*m}')
                a('s_nop 1')
            a('s_not_b32 s60, s60')
        for m in sorted(marks):
            a(f'v_mov_b32 v250, s{60+2*m}')
            a(f'v_mov_b32 v251, s{61+2*m}')
            a(f'global_store_dwordx2 v21, v[250:251], s[92:93] offset:{8*m}')
            a('s_nop 1')
    a.label('L_end')
    a.label('L_last')
    a('s_endpgm')
    return dict(grid=256, block=256, lds=163840, vgpr=512, accum=256)

def tinyk(a, P, head):
    a('s_cmp_ge_u32 s2, 1')
    a('s_cbranch_scc1 L_tiny_end')
    a('s_memrealtime s[8:9]')
    a(f's_load_dwordx2 s[4:5], s[0:1], {A_WS}')
    a('s_waitcnt lgkmcnt(0)')
    a(f's_add_u32 s4, s4, {hex(0x140B000)}')
    a('s_addc_u32 s5, s5, 0')
    if head:
        a('v_mov_b32 v1, s8')
        a('v_mov_b32 v2, 0')
        a('global_store_dword v2, v1, s[4:5]')
    else:
        a('s_load_dword s6, s[4:5], 0')
        a('s_waitcnt lgkmcnt(0)')
        a('s_add_u32 s6, s6, 6000')
        a('s_mov_b32 s10, 100000')
        a.label('L_tiny')
        a('s_memrealtime s[8:9]')
        a('s_waitcnt lgkmcnt(0)')
        a('s_sub_u32 s10, s10, 1')
        a('s_cbranch_scc1 L_tiny_end')
        a('s_sub_u32 s8, s8, s6')
        a('s_cmp_lt_i32 s8, 0')
        a('s_cbranch_scc1 L_tiny')
    a.label('L_tiny_end')
    a('s_endpgm')
    return dict(grid=1, block=64, lds=0, vgpr=8, accum=8)
```

```python
from collections import deque
from asmlib import *
from k123 import fh, lo, hi, unpack8, ln_stats, LdsPipe, A_OUT, A_WS
from k45 import VmPipe, GC1, GC2, geglu
from cde import zipl, gelu_ops, cost

UT, YT, X1, H2, ACT = 0, 0x400000, 0x900000, 0, 0xD00000
MODT, EPOCH, GRP, MP, TS = 0x1400000, 0x1408000, 0x1410000, 0x1480000, 0x1500000
YP = 16384 + 128
XID, UH, F1, F2, F3, F4 = 0, 128, 1024, 1536, 2048, 2560
P1U = 49280
SEG = [(0, 98432, 129152), (15, 0, 49280), (27, 24576, 73856)]
CB, CHS, KB, U0, U1 = 98432, 12992, 512, 4608, 8768
PB = CB + 2*CHS
PRM = PB + 32768
MPART = PRM + 6144
XG = 129152 + 112*128
YS = 1040
XH = XG + 8*YS
PS = 272
SPIN = 1 << 15
WBL1 = list(range(12)) + list(range(8)) + [13, 17, 14, 18, 12, 15, 16, 19]
BARS1 = {89: (5, 15, 0), 111: (9, 19, 20), 127: (13, 23, 20), 143: (17, 27, 20), 159: (21, 31, 20), 175: (25, 32, 20),
        191: (29, 32, 22), 207: (31, 32, 24), 223: (None, 32, 28)}
WBL2 = [5, 11, 12, 13, 14, 16, 17, 18, 15, 19, 0, 6, 5, 11, 12, 13, 14, 16, 17, 18, 1, 2, 7, 8, 3, 4, 9, 10]
BARS2 = {79: (None, 27, 0), 89: (6, 32, 0), 115: (14, 32, 2), 147: (22, 32, 8), 179: (31, 32, 20), 207: (None, 32, 24), 223: (None, 32, 28)}
assert MPART + 512 <= 163840 and XH + 8192 <= 163840
def seg_of(k): return SEG[0] if k < 15 else SEG[1] if k < 27 else SEG[2]

def base(a, d, p, n):
    a(f's_mov_b32 s{d}, s{p}'); a(f's_mov_b32 s{d+1}, s{p+1}'); a(f's_mov_b32 s{d+2}, {hex(n)}')

FL1, FL2, FL3 = 0x1420000, 0x1428000, 0x1430000
def ln1p(a, X, D, T, s0):
    a(f'v_pk_add_f32 v[{T}:{T+1}], v[{X}:{X+1}], v[{X+2}:{X+3}]')
    a(f'v_pk_mul_f32 v[{T+2}:{T+3}], v[{X}:{X+1}], v[{X}:{X+1}]')
    a(f'v_pk_add_f32 v[{D}:{D+1}], v[{X+4}:{X+5}], v[{X+6}:{X+7}]')
    for p in range(1, 4):
        a(f'v_pk_fma_f32 v[{T+2}:{T+3}], v[{X+2*p}:{X+2*p+1}], v[{X+2*p}:{X+2*p+1}], v[{T+2}:{T+3}]')
    a(f'v_pk_add_f32 v[{T}:{T+1}], v[{T}:{T+1}], v[{D}:{D+1}]')
    a(f'v_add_f32 v{T+2}, v{T+2}, v{T+3}')
    a(f'v_add_f32 v{T}, v{T}, v{T+1}')
    for ctl in ('row_shr:1', 'row_shr:2', 'row_shr:4', 'row_shr:8'):
        for r in (T+2, T): a(f'v_add_f32_dpp v{r}, v{r}, v{r} {ctl} row_mask:0xf bank_mask:0xf bound_ctrl:1')
    for ctl in ('row_bcast:15 row_mask:0xa', 'row_bcast:31 row_mask:0xc'):
        for r in (T+2, T): a(f'v_add_f32_dpp v{r}, v{r}, v{r} {ctl} bank_mask:0xf')
    a(f'v_readlane_b32 s{s0+1}, v{T+2}, 63')
    a(f'v_readlane_b32 s{s0}, v{T}, 63')
    a(f'v_mov_b32 v{T+1}, {fh(1.0/512)}')
    a(f'v_mov_b32 v{T+3}, {fh(1e-5)}')
    a(f'v_mul_f32 v{T}, s{s0}, v{T+1}')
    a(f'v_fmac_f32 v{T+3}, s{s0+1}, v{T+1}')
    a(f'v_fma_f32 v{T+2}, -v{T}, v{T}, v{T+3}')
    a(f'v_max_f32 v{T+2}, {fh(1e-5)}, v{T+2}')
    a(f'v_rsq_f32 v{T+2}, v{T+2}')
    a(f'v_mul_f32 v{T+3}, v{T}, v{T+2}')
    for p in range(4):
        a(f'v_pk_fma_f32 v[{D+2*p}:{D+2*p+1}], v[{X+2*p}:{X+2*p+1}], v[{T+2}:{T+3}], v[{T+2}:{T+3}] op_sel:[0,0,1] op_sel_hi:[1,0,1] neg_lo:[0,0,1] neg_hi:[0,0,1]')
def ln2p(s, X, D, T, s0):
    ln_stats(s, X, D, T, s0)
    for p in range(4):
        s(f'v_pk_mul_f32 v[{D+2*p}:{D+2*p+1}], v[{D+2*p}:{D+2*p+1}], v[{T}:{T+1}] op_sel:[0,0] op_sel_hi:[1,0]')

def mega(a, P):
    M2 = P.get('m2', 0)
    MF = P.get('mf', 0)
    LAY = P.get('lay', 2)
    WBL, BARS = (WBL1, BARS1) if LAY == 1 else (WBL2, BARS2)
    DX = P.get('dx', 3)
    RL = P.get('rl', 1)
    RP = P.get('rp', 0)
    W2, PR = 0xB00000, (128 if RP else 3584)
    WD2, WS_ = 0x200000, (2048 if RL else 0x4000)
    H2 = 0xB00000 if M2 else 0
    marks = set()
    SETS = {1: 'start kv0 utst utok bbar end bend ytst ytok h2dr b0 p1end b9 estart f3ok eend',
            2: 'start kv0 kvN abar utst end ut1st uhok utok bbar bend pbar ytst ytack ytok mdok',
            3: 'start ytst ln1 ytack ytok end ybar hbar h2st h2dr f1ok b0 b1 b2 b3 p1end',
            6: 'start b0 p1a p1end b2 end b3 b4 b5 b6 b7 b8 b9 f2ok g3 estart',
            7: 'start estart e2 e4 e6 end f3ok e8 e10 e12 e14 e16 e20 e24 eend ebar',
            9: 'start b0 p1a p1end b5 end b9 estart eend cb0 cp1a cp1end cb5 cb9 cestart ceend',
            10: 'start bbar bend ybar hbar end g3 ebar x8 cbbar cbend cybar chbar x13 cg3 cebar',
            8: 'start x1 x2 x3 x4 end',
            5: 'start karg x2 x3 x4 end x6 x7 x8 x9 x10 x11 x12 kv0 issued pre',
            4: 'start p1end b5 b6 b7 end b8 g1 f2ok g3 estart e12 f3ok e20 eend ebar'}
    names = SETS[P.get('stamps', 1)].split()
    nj = [0]
    def stamp(name):
        if P.get('jit') and name not in ('start', 'karg', 'issued', 'pre'):
            nj[0] += 1
            a('s_memtime s[90:91]')
            a('s_waitcnt lgkmcnt(0)')
            a(f's_mul_i32 s91, s3, {37 + 2*nj[0]}')
            a('s_add_u32 s90, s90, s91')
            a(f's_bfe_u32 s90, s90, {0x30000 + 3}')
            a('s_cmp_lg_u32 s90, 0')
            a(f's_cbranch_scc1 L_jit{nj[0]}')
            a(f's_sleep {P["jit"]}')
            a.label(f'L_jit{nj[0]}')
        if P.get('stamps') and name in names:
            slot = names.index(name)
            a(f's_memrealtime s[{60+2*slot}:{61+2*slot}]'); marks.add(slot)
        if P.get('stamps') and 'c' + name in names:
            slot = names.index('c' + name)
            a(f's_memtime s[{60+2*slot}:{61+2*slot}]'); marks.add(slot)
    def raw(i, sreg):
        if P.get('stamps'): a(f'v_writelane_b32 v254, {sreg}, {i}')
    vm = VmPipe(a)
    NTM = P.get('nt', 0)
    NK, NV, NS, NW, NX, NC = [' nt' if NTM >> i & 1 else '' for i in range(6)]
    nst = [0]
    def lstore(lines, through=False):
        if through:
            for l in lines: t = vm.issue(l + ' sc1')
            return t
        return lstore2(lines)
    def lstore2(lines):
        n = nst[0]; nst[0] += 1
        a('s_cmp_eq_u32 s101, 0')
        a(f's_cbranch_scc1 L_ls{n}a')
        for l in lines: a(l + ' sc1')
        a(f's_branch L_ls{n}b')
        a.label(f'L_ls{n}a')
        for l in lines: t = vm.issue(l)
        a.label(f'L_ls{n}b')
        return t
    SL = P.get('sleep', 1); PM = 1
    def masked(lines, mask):
        if mask and PM: a(f's_mov_b64 exec, {hex(mask)}')
        for l in lines: t = vm.issue(l)
        if mask and PM: a('s_mov_b64 exec, -1')
        return t
    def poll(name, loads, tags, pre=None, mask=None):
        a(f's_mov_b32 s51, {SPIN}')
        if pre is not None:
            vm.need(pre)
            stamp(name + '1st')
        if mask and PM: a(f's_mov_b64 exec, {hex(mask)}')
        a(f's_branch L_{name}_chk' if pre is not None else f's_branch L_{name}_go')
        a.label(f'L_{name}')
        sl = P.get('ysl', SL) if name in ('yt', 'md') else SL
        if sl: a(f's_sleep {sl}')
        a.label(f'L_{name}_go')
        for l in loads: a(l)
        a('s_waitcnt vmcnt(0)')
        a.label(f'L_{name}_chk')
        a(f'v_cmp_ne_u32 vcc, s50, v{tags[0]}')
        for i, t in enumerate(tags[1:]): a(f'v_cmp_ne_u32 s[{92+2*i}:{93+2*i}], s50, v{t}')
        a('s_sub_u32 s51, s51, 1')
        a(f's_cbranch_scc1 L_{name}_ok')
        for i in range(len(tags)-1): a(f's_or_b64 vcc, vcc, s[{92+2*i}:{93+2*i}]')
        a(f's_cbranch_vccnz L_{name}')
        a.label(f'L_{name}_ok')
        if mask and PM: a('s_mov_b64 exec, -1')
        if pre is None: vm.done = vm.issued

    a('s_cmp_ge_u32 s2, 256')
    a('s_cbranch_scc1 L_end')
    stamp('start')
    if P.get('stamps'): a('v_mov_b32 v254, 0')
    a('s_load_dwordx16 s[64:79], s[0:1], 0')
    if P.get('cpf', 1):
        a('s_getpc_b64 s[4:5]')
        a.label('L_pc')
        a('v_lshlrev_b32 v3, 7, v0')
        a('v_mov_b32 v5, s5')
        a('v_add_co_u32 v4, vcc, s4, v3')
        a(f'v_cmp_gt_u32 s[6:7], {P.get("cpn", 16)}, v0')
        a('v_and_b32 v1, 63, v0')
        a('v_addc_co_u32 v5, vcc, 0, v5, vcc')
        a('s_and_b64 exec, exec, s[6:7]')
        a('s_cbranch_execz L_nopf')
        a('global_load_dword v169, v[4:5], off')
        a.label('L_nopf')
        a('s_mov_b64 exec, -1')
    else: a('v_and_b32 v1, 63, v0')
    a(f's_load_dwordx2 s[58:59], s[0:1], {A_WS}')
    a('s_load_dwordx8 s[80:87], s[0:1], 64')
    a(f's_load_dwordx2 s[56:57], s[0:1], {A_OUT}')
    a('v_lshrrev_b32 v2, 6, v0')
    a('v_readfirstlane_b32 s3, v2')
    a('s_mov_b32 s40, 0xffff0000')
    a('s_and_b32 s28, s2, 7')
    a('s_lshr_b32 s29, s2, 3')
    a('s_lshl_b32 s32, s28, 5')
    a('s_or_b32 s32, s32, s29')
    a('v_and_b32 v3, 31, v0')
    a('v_lshrrev_b32 v2, 5, v0')
    a('s_lshl_b32 s33, s29, 6')
    a('v_lshl_add_u32 v4, v2, 3, s33')
    a('s_lshl_b32 s33, s28, 7')
    a('v_lshl_add_u32 v5, v3, 2, s33')
    a('v_lshl_add_u32 v5, v4, 10, v5')
    a('v_subrev_u32 v4, 0xc00, v5')
    a('s_lshl_b32 s33, s28, 9')
    a('v_lshl_add_u32 v13, v3, 4, s33')
    a('s_movk_i32 s35, 0x1000')
    a('s_mov_b32 s15, 0x20000'); a('s_mov_b32 s27, 0x20000'); a('s_mov_b32 s19, 0x20000')
    a('s_mov_b32 s23, 0x20000'); a('s_mov_b32 s11, 0x20000'); a('s_mov_b32 s55, 0x20000')
    a('v_lshlrev_b32 v15, 4, v1')
    a('v_mov_b32 v21, 0')
    a('v_lshlrev_b32 v14, 4, v0')
    a('s_waitcnt lgkmcnt(0)')
    stamp('karg')
    if P.get('wso'):
        a(f's_add_u32 s58, s58, {hex(P["wso"] << 20)}')
        a('s_addc_u32 s59, s59, 0')
    base(a, 12, 70, 4096)
    base(a, 24, 68, 0x200000)
    tsh = vm.issue('buffer_load_dwordx4 v[48:51], v13, s[12:15], 0 offen')
    base(a, 12, 66, 0x200000)
    for i in range(3): vm.issue(f'buffer_load_dword v{24+i}, v4, s[12:15], 0 offen offset:{1024*i}' + NK)
    tk = {}
    for i in range(8):
        so = 's35' if i >= 4 else '0'
        vm.issue(f'buffer_load_dword v{27+i}, v5, s[12:15], {so} offen offset:{1024*(i&3)}' + NK)
        tk[i] = vm.issue(f'buffer_load_dword v{36+i}, v5, s[24:27], {so} offen offset:{1024*(i&3)}' + NV)
    stamp('issued')
    a(f's_add_u32 s4, s58, {hex(EPOCH)}')
    a('s_addc_u32 s5, s59, 0')
    a('s_load_dword s50, s[4:5], 0')
    if P.get('cpf', 1):
        a('s_getpc_b64 s[6:7]')
        a.label('L_pc2')
        a('s_lshl_b32 s36, s29, 2')
        a('s_add_u32 s36, s36, s3')
        a('v_and_b32 v4, 1, v0')
        a('v_lshl_add_u32 v4, s36, 1, v4')
        a('v_min_u32 v4, (L_last-L_pc2)/128, v4')
        a('v_lshlrev_b32 v4, 7, v4')
        a('v_mov_b32 v5, s7')
        a('v_add_co_u32 v4, vcc, s6, v4')
        a('v_addc_co_u32 v5, vcc, 0, v5, vcc')
        a('s_mov_b64 exec, 3')
        vm.issue('global_load_dword v168, v[4:5], off')
        a('s_mov_b64 exec, -1')
    if P.get('kvbar', 1): a('s_barrier')
    a('s_lshl_b32 s33, s32, 2')
    a('s_add_u32 s6, s74, s33')
    a('s_addc_u32 s7, s75, 0')
    a('s_load_dword s34, s[6:7], 0')
    a('s_lshl_b32 s33, s32, 13')
    SK = {}
    def skload():
        base(a, 12, 72, 0x200000)
        a('s_lshl_b32 s36, s32, 13')
        vm.issue('buffer_load_dwordx4 v[146:149], v14, s[12:15], s36 offen' + NS)
        a('s_add_u32 s36, s36, 0x1000')
        SK['t'] = vm.issue('buffer_load_dwordx4 v[150:153], v14, s[12:15], s36 offen' + NS)
    if P.get('skat', 1) == 0: skload()
    a('s_mul_i32 s30, s28, 6')
    a('s_lshr_b32 s31, s29, 2')
    a('s_add_u32 s30, s30, s31')
    a('s_and_b32 s31, s29, 3')
    a('s_lshl_b32 s46, s30, 2')
    a('s_or_b32 s46, s46, s31')
    a('s_lshl_b32 s47, s31, 2')
    a('s_or_b32 s47, s47, s3')
    a('v_and_b32 v16, 1, v0')
    a('v_lshrrev_b32 v17, 3, v1')
    a('v_and_b32 v6, 7, v1')
    a('v_mul_u32_u24 v242, 0x6000, v17')
    a('v_lshl_add_u32 v242, v6, 4, v242')
    a('v_lshlrev_b32 v243, 3, v17')
    a('s_lshl_b32 s36, s3, 11')
    a('s_add_u32 s33, s33, s36')
    WM = {}
    def wmload():
        base(a, 12, 84, 1024)
        a('s_lshl_b32 s36, s47, 6')
        tc = vm.issue('buffer_load_dwordx2 v[144:145], v243, s[12:15], s36 offen')
        base(a, 12, 86, 512*6144)
        a('s_cmp_lt_u32 s29, 24')
        a('s_cselect_b32 s14, s14, 0')
        a('s_lshr_b32 s36, s46, 2')
        a('s_lshl_b32 s36, s36, 7')
        a(f's_mul_i32 s37, s47, {32*6144}')
        a('s_add_u32 s36, s36, s37')
        twm = []
        for r in range(4):
            twm.append(vm.issue(f'buffer_load_dwordx4 v[{128+4*r}:{131+4*r}], v242, s[12:15], s36 offen' + NW))
            if r < 3: a('s_add_u32 s36, s36, 0x1800')
        WM.update(tc=tc, twm=twm)
    if P.get('wat', 3) == 0: wmload()
    if M2:
        a('s_and_b32 s30, s2, 1')
        a('s_lshl_b32 s30, s30, 3')
        a('s_and_b32 s98, s29, 7')
        a('s_or_b32 s30, s30, s98')
        a('s_bfe_u32 s31, s2, 0x20001')
        a('s_lshl_b32 s31, s31, 2')
        a('s_lshr_b32 s36, s2, 6')
        a('s_or_b32 s31, s31, s36')
        a('s_lshl_b32 s36, s36, 1')
        a('s_add_u32 s98, s98, s36')
    else:
        a('s_lshr_b32 s30, s32, 4')
        a('s_and_b32 s31, s32, 15')
        a(f's_and_b32 s98, s30, {P.get("prot", 0)}')
        a('s_lshl_b32 s98, s98, 2')
        if P.get('xrot', 1): a('s_add_u32 s98, s98, s28')
    a('s_and_b32 s98, s98, 7')
    a('s_lshr_b32 s38, s3, 1')
    a('s_and_b32 s39, s3, 1')
    a('s_cmp_eq_u32 s38, 0')
    a('s_cselect_b32 s20, s78, s80')
    a('s_cselect_b32 s21, s79, s81')
    a(f's_mov_b32 s22, {512*3584 if not P.get("now") else 0}')
    base(a, 8, 82, 1792*1024 if not P.get('now') else 0)
    base(a, 16, 58, TS)
    a('s_lshl_b32 s36, s28, 12')
    a(f's_add_u32 s36, s36, {hex(GRP)}')
    a('s_add_u32 s52, s58, s36')
    a('s_addc_u32 s53, s59, 0')
    a('s_movk_i32 s54, 0x1000')
    a('s_cmp_eq_u32 s3, 3')
    a('s_cselect_b32 s37, 0, 0x70000000')
    a('v_mov_b32 v22, s37')
    a('s_lshl_b32 s36, s29, 7')
    vm.issue('buffer_load_dword v158, v22, s[52:55], s36 offen')
    a('s_lshl_b32 s36, s46, 6')
    a(f's_add_u32 s36, s36, {hex(MODT)}')
    if P.get('mdt', 1 - MF): vm.issue('buffer_load_dword v159, v22, s[16:19], s36 offen')
    if M2 and P.get('ft', 1):
        a('s_lshl_b32 s36, s30, 4')
        a('s_lshr_b32 s37, s32, 4')
        a('s_lshl_b32 s37, s37, 4')
        a('s_sub_u32 s37, s37, s36')
        a('s_add_u32 s37, s37, 0x100')
        a('v_lshrrev_b32 v4, 2, v1')
        a('v_min_u32 v5, 1, v4')
        a('v_mul_lo_u32 v5, v5, s37')
        a('v_max_u32 v4, 1, v4')
        a('v_subrev_u32 v4, 1, v4')
        a('v_lshl_add_u32 v5, v4, 8, v5')
        a('v_and_b32 v4, 3, v1')
        a('v_add_u32 v5, v5, v4')
        a('s_lshl_b32 s37, s3, 2')
        a('s_add_u32 s36, s36, s37')
        a('v_add_lshl_u32 v5, v5, s36, 7')
        a(f's_mov_b32 s36, {hex(FL1)}')
        a('s_mov_b64 exec, 0xfff')
        vm.issue('buffer_load_dword v156, v5, s[16:19], s36 offen')
        a('s_mov_b64 exec, -1')
    a('s_lshl_b32 s36, s32, 13')
    a('s_lshl_b32 s37, s46, 11')
    a(f's_add_u32 s37, s37, {hex(MP)}')
    a('s_cmp_eq_u32 s3, 1')
    a(f's_cselect_b32 s37, s37, {hex(TS)}')
    a('s_cselect_b32 s44, 15, 63')
    a('s_cmp_eq_u32 s3, 2')
    a('s_cselect_b32 s37, s36, s37')
    a('v_and_b32 v4, s44, v1')
    a('v_lshlrev_b32 v4, 7, v4')
    if P.get('utt', 1): vm.issue('buffer_load_dword v157, v4, s[16:19], s37 offen' + (' nt' if P.get('ntu', 0) else ''))
    if P.get('tlb', 0) == 1:
        a('v_lshl_add_u32 v4, v1, 20, v22')
        for i, (p, n) in enumerate(((86, 512*6144), (84, 1024), (64, 0x200000), (78, 512*3584), (80, 512*3584), (82, 1792*1024), (56, 0x200000))):
            base(a, 12, p, n)
            vm.issue(f'buffer_load_dword v{160+i}, v4, s[12:15], 0 offen')
        vm.issue('buffer_load_dword v154, v4, s[16:19], 0 offen')
    for i in range(3):
        a(f'v_add_u32 v4, {64*i}, v1')
        a('v_mul_u32_u24 v5, 0x2aab, v4')
        a('v_lshrrev_b32 v5, 16, v5')
        a(f'v_mul_u32_u24 v5, {3584-96}, v5')
        a(f'v_lshl_add_u32 v{10+i}, v4, 4, v5')
        if i: a(f'v_subrev_u32 v{10+i}, {1024*i}, v{10+i}')
    a(f's_mul_i32 s41, s39, {32*3584}')
    a('s_mul_i32 s43, s31, 96')
    a('s_add_u32 s41, s41, s43')
    a('s_add_u32 s41, s41, 0x800')
    a('s_mul_i32 s43, s39, 3072')
    a(f's_mul_i32 s42, s38, {P1U}')
    a('s_add_u32 s42, s42, s43')
    a(f's_add_u32 s99, s41, {512*3584}')
    a(f's_mul_i32 s36, s98, {64*3584}')
    a('s_add_u32 s41, s41, s36')
    def step(reg, inc, lim, span):
        a(f's_add_u32 {reg}, {reg}, {inc}')
        a(f's_cmp_eq_u32 {reg}, {lim}')
        a(f's_cselect_b32 s36, {span}, 0')
        a(f's_sub_u32 {reg}, {reg}, s36')
    early = deque()
    def p1dma(m, i):
        if i == 0: a(f's_add_u32 m0, s42, {6144*m}')
        vm.issue(f'buffer_load_dwordx4 v{10+i}, s[20:23], s41 offen offset:{1024*i} lds')
        if i == 2 and m < 7: step('s41', 64*3584, 's99', 512*3584)
    for m in range(8):
        for i in range(3): early.append(lambda m=m, i=i: p1dma(m, i))
    for _ in range(P.get('e0', 0)): early.popleft()()
    a('v_lshrrev_b32 v4, 3, v1')
    a('v_bfe_u32 v5, v1, 4, 1')
    a('v_lshlrev_b32 v5, 2, v5')
    a('v_xor_b32 v5, v5, v6')
    a('v_lshlrev_b32 v5, 4, v5')
    a(f'v_lshl_add_u32 v8, v4, {7 if RL else 10}, v5')
    a(f'v_add_u32 v9, {0 if RL else 8192-1024}, v8')
    a('s_lshl_b32 s43, s38, 5')
    a('v_xor_b32 v5, s43, v5')
    a(f'v_mul_u32_u24 v7, {PR}, v4')
    a('v_add_u32 v7, v7, v5')
    a(f's_mul_i32 s48, s39, {8*PR}')
    a(f's_lshl_b32 s43, s31, {16 if RP else 7}')
    a('s_add_u32 s48, s48, s43')
    if RP:
        a('s_lshl_b32 s43, s38, 20')
        a('s_add_u32 s48, s48, s43')
        a(f's_add_u32 s48, s48, {hex(W2)}')
    a('s_lshl_b32 s43, s39, 10')
    a(f's_mul_i32 s49, s38, {SEG[0][2]-SEG[0][1]}')
    a('s_add_u32 s49, s49, s43')
    a(f's_mul_i32 s38, s38, {P1U}')
    a('s_add_u32 s43, s43, s38')
    a('v_sub_u32 v4, 7, v2')
    a('v_xor_b32 v4, v4, v6')
    a('v_lshl_add_u32 v4, v3, 4, v4')
    a(f'v_lshlrev_b32 v4, 4, v4')
    a(f'v_add_u32 v120, {PB}, v4')
    a('v_lshrrev_b32 v4, 4, v1')
    a('v_xor_b32 v5, v4, v1')
    a('s_lshl_b32 s36, s3, 11')
    a(f's_add_u32 s36, s36, {PB}')
    a('v_lshl_add_u32 v124, v5, 4, s36')
    a('v_xor_b32 v125, 64, v124')
    a('v_lshrrev_b32 v4, 3, v1')
    a('v_lshlrev_b32 v5, 4, v6')
    a('v_lshl_add_u32 v13, v4, 12, v5')
    a('s_lshl_b32 s36, s28, 2')
    a('s_add_u32 s36, s36, s3')
    a('s_lshl_b32 s36, s36, 16')
    a('s_sub_u32 s35, 31, s29')
    a('s_lshl_b32 s35, s35, 7')
    a('s_add_u32 s35, s35, s36')
    if 200 > P.get('probe', 0) >= 100:
        a('v_mov_b32 v22, s60')
        a('s_lshl_b32 s36, s2, 2')
        a(f's_add_u32 s36, s36, {hex(0x140A000)}')
        vm.issue('buffer_store_dword v22, v21, s[16:19], s36 offen sc1')
    def slow_gu():
        a('v_bfe_u32 v4, v1, 1, 3')
        a('v_and_b32 v5, 1, v4')
        a('v_lshlrev_b32 v5, 9, v5')
        a(f'v_mul_u32_u24 v4, 3584, v4')
        a('v_add_u32 v4, v4, v5')
        a('v_and_b32 v5, 1, v1')
        a('v_lshl_add_u32 v4, v5, 10, v4')
        a('v_bfe_u32 v5, v1, 4, 1')
        a('v_lshl_add_u32 v4, v5, 11, v4')
        a('s_lshl_b32 s36, s29, 1')
        a('s_and_b32 s37, s3, 1')
        a('s_add_u32 s36, s36, s37')
        a(f's_mul_i32 s36, s36, {8*3584}')
        a('s_mov_b32 exec_hi, 0')
        vm.issue('buffer_load_dword v252, v4, s[20:23], s36 offen offset:384')
        a('s_mov_b32 exec_hi, -1')
    def slow_d():
        a('v_lshlrev_b32 v4, 10, v1')
        a('s_and_b32 s36, s32, 31')
        a('s_lshl_b32 s36, s36, 2')
        a('s_add_u32 s36, s36, s3')
        a(f's_mul_i32 s36, s36, {14*1024}')
        a('s_mov_b64 exec, 0x3fff')
        vm.issue('buffer_load_dword v253, v4, s[8:11], s36 offen offset:384')
        a('s_mov_b64 exec, -1')
    def slow(at):
        if P.get('sg', 0) == at: slow_gu()
        if P.get('sd', 0) == at: slow_d()
    CR = 32 if P.get('cla', 1) == 1 else 244
    CP = {}
    def cpload():
        if not RL: return
        a('s_mul_i32 s44, s2, 7')
        a('s_lshl_b32 s45, s3, 1')
        a('s_add_u32 s44, s44, s45')
        a('s_cmp_eq_u32 s3, 3')
        a('s_cselect_b32 s45, 0, 1')
        a('s_add_u32 s45, s45, s44')
        for r in range(2):
            a(f's_lshl_b32 s36, s{44+r}, 10')
            CP['l'] = vm.issue(f'buffer_load_dwordx4 v[{CR+4*r}:{CR+3+4*r}], v15, s[8:11], s36 offen' + NC)
    stamp('pre')
    vm.need(tsh)
    lo(a, 52, 48); hi(a, 54, 48, 40); lo(a, 56, 49); hi(a, 58, 49, 40)
    lo(a, 53, 50); hi(a, 55, 50, 40); lo(a, 57, 51); hi(a, 59, 51, 40)
    vm.need(tk[0])
    stamp('kv0')
    if P.get('skat', 1) == 1: skload()
    if P.get('wat', 3) == 1: wmload()
    def xload():
        vm.issue('buffer_load_dwordx4 v[232:235], v15, s[12:15], s33 offen' + NX)
        return vm.issue('buffer_load_dwordx4 v[236:239], v15, s[12:15], s33 offen offset:1024' + NX)
    for q in range(3):
        lo(a, 60+2*q, 24+q); hi(a, 61+2*q, 24+q, 40)
    for r in range(8):
        vm.need(tk[r])
        lo(a, 66+2*r, 27+r); hi(a, 67+2*r, 27+r, 40)
        lo(a, 84+2*r, 36+r); hi(a, 85+2*r, 36+r, 40)
        d = 102+2*r
        a(f'v_pk_mul_f32 v[{d}:{d+1}], v[{60+2*r}:{61+2*r}], v[58:59]')
        a(f'v_pk_fma_f32 v[{d}:{d+1}], v[{62+2*r}:{63+2*r}], v[56:57], v[{d}:{d+1}]')
        a(f'v_pk_fma_f32 v[{d}:{d+1}], v[{64+2*r}:{65+2*r}], v[54:55], v[{d}:{d+1}]')
        a(f'v_pk_fma_f32 v[{d}:{d+1}], v[{66+2*r}:{67+2*r}], v[52:53], v[{d}:{d+1}]')
        a(f'v_pk_mul_f32 v[{d}:{d+1}], v[{d}:{d+1}], v[{84+2*r}:{85+2*r}]')
    if P.get('skat', 1) == 2: skload()
    if P.get('wat', 3) == 2: wmload()
    if P.get('cla', 1) == 0: cpload()
    a('s_mov_b64 s[96:97], s[64:65]')
    slow(1)
    stamp('kvN')
    for c in range(2):
        for jj in range(4):
            a(f'v_cvt_pk_bf16_f32 v{24+4*c+jj}, v{102+2*(7-2*jj)+c}, v{102+2*(6-2*jj)+c}')
        a(f'ds_write_b128 v120, v[{24+4*c}:{27+4*c}] offset:{128*c}')
    a('s_waitcnt lgkmcnt(0)')
    a('s_barrier')
    stamp('abar')
    for j in range(2): a(f'ds_read_b128 v[{104+4*j}:{107+4*j}], v{124+j} offset:{1024*j}')
    a('s_mul_i32 s50, s50, 1664525')
    a('s_add_u32 s50, s50, 1013904223')
    a('v_mov_b32 v20, s50')
    a('s_getreg_b32 s100, hwreg(HW_REG_XCC_ID, 0, 4)')
    if P.get('slow'): a('s_and_b32 s100, s29, 1')
    a('s_add_u32 s100, s100, s50')
    a('s_add_u32 s100, s100, 1')
    a('s_mov_b32 s24, s35')
    a('s_add_u32 s25, s35, 0x8000')
    ustores = [f'buffer_store_dwordx4 v[{104+4*j}:{107+4*j}], v13, s[16:19], s{24+j} offen' for j in range(2)]
    for j in range(2):
        a(f's_waitcnt lgkmcnt({1-j})')
        tus = vm.issue(ustores[j] + (' sc1' if P.get('uts', 0) else ''))
    a('s_lshl_b32 s7, s3, 7')
    a('s_lshl_b32 s36, s29, 2')
    a('s_add_u32 s7, s7, s36')
    a('v_mov_b32 v123, s100')
    if P.get('skat', 1) == 3: skload()
    if P.get('wat', 3) == 3: wmload()
    tsk = SK['t']
    stamp('utst')
    def rowflag():
        vm.need(tus)
        masked([f'buffer_store_dword v123, v21, s[52:55], s7 offen offset:{UH}'], 1)
    if P.get('ff', 0): rowflag()
    for i in range(4): a(f'v_mov_b32 v{40+i}, 0')
    a(f'v_add_u32 v14, {CB}, v14')
    a('v_cmp_gt_u32 vcc, 32, v0')
    a('s_and_saveexec_b64 s[36:37], vcc')
    a('s_cbranch_execz L_nz')
    a('ds_write_b128 v14, v[40:43]')
    a(f'ds_write_b128 v14, v[40:43] offset:{CHS}')
    a('v_cmp_gt_u32 vcc, 2, v0')
    a('s_and_b64 exec, exec, vcc')
    for c in range(2):
        a(f'ds_write_b128 v14, v[40:43] offset:{c*CHS+U0+4096}')
        a(f'ds_write_b128 v14, v[40:43] offset:{c*CHS+U1+4096}')
    a.label('L_nz')
    a('s_mov_b64 exec, s[36:37]')
    a('v_cmp_eq_u32 s[36:37], 0, v0')
    a('s_lshl_b32 s4, s34, 16')
    a('s_and_b32 s5, s34, 0xffff0000')
    a('s_mov_b32 s6, 0xffff')
    vm.need(tsk)
    stamp('skok')
    for c in range(2):
        kx = 146+4*c
        lo(a, 44, kx)
        a(f'v_add_f32 v44, s{4+c}, v44')
        a('v_cvt_pk_bf16_f32 v44, v44, v44')
        a(f'v_bfi_b32 v44, s6, v44, v{kx}')
        a(f'v_cndmask_b32 v{kx}, v{kx}, v44, s[36:37]')
        a(f'ds_write_b128 v14, v[{kx}:{kx+3}] offset:{c*CHS+KB}')
    if not P.get('ff', 0): rowflag()
    a('v_and_b32 v120, 31, v1')
    a('v_lshlrev_b32 v120, 2, v120')
    a('s_lshr_b32 s5, s29, 3')
    a('s_lshl_b32 s5, s5, 7')
    hloads = [f'buffer_load_dword v121, v120, s[52:55], 0 offen offset:{XID} sc1', f'buffer_load_dword v124, v120, s[52:55], s5 offen offset:{UH} sc1']
    a('v_mov_b32 v121, s50')
    tu = masked(hloads[1:], 0xffffffff)
    if P.get('wat', 3) == 4: wmload()
    tc, twm = WM['tc'], WM['twm']
    base(a, 12, 96, 0x200000)
    a('v_lshrrev_b32 v4, 1, v6')
    a('v_lshlrev_b32 v4, 11, v4')
    a('v_lshl_add_u32 v4, v16, 6, v4')
    a('v_lshrrev_b32 v5, 5, v1')
    a('v_lshl_add_u32 v4, v5, 5, v4')
    a('v_bfe_u32 v5, v1, 4, 1')
    a('v_lshl_add_u32 v126, v5, 4, v4')
    a('s_lshl_b32 s35, s32, 13')
    a('s_add_u32 s34, s35, 0x1000')
    a('v_lshlrev_b32 v125, 4, v0')
    vm.need(tc)
    lo(a, 44, 144); hi(a, 45, 144, 40); lo(a, 46, 145); hi(a, 47, 145, 40)
    for r in range(4): a(f'v_mul_f32 v{48+r}, {fh(-1.4426950408889634)}, v{44+r}')
    for r in range(4): a(f'v_exp_f32 v{48+r}, v{48+r}')
    for r in range(4): a(f'v_add_f32 v{48+r}, 1.0, v{48+r}')
    for r in range(4): a(f'v_rcp_f32 v{48+r}, v{48+r}')
    for r in range(4): a(f'v_mul_f32 v{44+r}, v{44+r}, v{48+r}')
    a('v_cvt_pk_bf16_f32 v48, v44, v45')
    a('v_cvt_pk_bf16_f32 v49, v46, v47')
    lo(a, 44, 48); hi(a, 45, 48, 40); lo(a, 46, 49); hi(a, 47, 49, 40)
    def stage1():
        for r in range(4):
            vm.need(twm[r])
            unpack8(a, 52, 128+4*r, 40)
            sel = 'op_sel:[0,0,0] op_sel_hi:[1,0,1]' if r % 2 == 0 else 'op_sel:[0,1,0] op_sel_hi:[1,1,1]'
            sp = 44 + (r & 2)
            for j in range(4):
                if r == 0:
                    a(f'v_pk_mul_f32 v[{60+2*j}:{61+2*j}], v[{52+2*j}:{53+2*j}], v[{sp}:{sp+1}] op_sel:[0,0] op_sel_hi:[1,0]')
                else:
                    a(f'v_pk_fma_f32 v[{60+2*j}:{61+2*j}], v[{52+2*j}:{53+2*j}], v[{sp}:{sp+1}], v[{60+2*j}:{61+2*j}] {sel}')
        for j in range(4): a(f'v_permlane32_swap_b32 v{60+j}, v{64+j}')
        for j in range(4): a(f'v_add_f32 v{60+j}, v{60+j}, v{64+j}')
        a('s_lshr_b32 s6, s46, 2')
        a('s_lshl_b32 s6, s6, 13')
        for j in range(2): a(f'v_permlane16_swap_b32 v{60+j}, v{62+j}')
        a('s_lshl_b32 s36, s47, 7')
        for j in range(2): a(f'v_add_f32 v{100+j}, v{60+j}, v{62+j}')
        a('v_mov_b32 v102, s50')
        a('v_mov_b32 v103, s50')
        for j in range(2): a(f'v_add_f32_dpp v{100+j}, v{100+j}, v{100+j} row_ror:8 row_mask:0xf bank_mask:0xf')
        a('s_add_u32 s6, s6, s36')
        a(f's_add_u32 s6, s6, {hex(MP)}')
        a('s_cmp_lt_u32 s29, 24')
        a(f's_cselect_b32 s6, s6, {hex(TS)}')
    if P.get('s1at', 1) == 0: stage1()
    a('s_lshr_b32 s36, s3, 1')
    a(f's_mul_i32 s36, s36, {CHS}')
    a('s_xor_b32 s38, s39, 1')
    a('s_lshl_b32 s38, s38, 6')
    a('s_add_u32 s36, s36, s38')
    a(f's_add_u32 s36, s36, {CB}')
    a('v_and_b32 v3, 15, v0')
    a('v_bfe_u32 v4, v0, 4, 2')
    a('v_lshlrev_b32 v5, 4, v4')
    a('v_lshl_add_u32 v22, v3, 5, v5')
    a(f's_add_u32 s38, s36, {KB-480}')
    a('v_add_u32 v22, s38, v22')
    a('v_and_b32 v23, 14, v3')
    a('v_lshlrev_b32 v23, 1, v23')
    a('v_sub_u32 v23, v5, v23')
    a(f'v_mul_u32_u24 v5, {U1-U0}, v16')
    a('v_sub_u32 v23, v23, v5')
    a(f's_add_u32 s38, s36, {U1+28}')
    a('v_add_u32 v16, s38, v23')
    for i in range(1, 4): a(f'v_add_u32 v{16+i}, {1024*i}, v16')
    a('v_bfe_u32 v5, v3, 1, 2')
    a('v_xor_b32 v5, v5, v4')
    a('v_lshl_add_u32 v5, v3, 2, v5')
    a('s_lshl_b32 s38, s3, 13')
    a(f's_add_u32 s38, s38, {PB}')
    a('v_lshl_add_u32 v23, v5, 4, s38')
    KP = P.get('kp', 1)
    if KP:
        a('s_waitcnt lgkmcnt(0)')
        a('s_barrier')
        for j in range(4, 32): a(f'ds_read_b128 v[{104+4*j}:{107+4*j}], v22 offset:{128*j}') if not 120 <= 104+4*j < 156 else None
    a(f's_mov_b32 s51, {SPIN}')
    a('s_mov_b32 s101, 0')
    vm.need(tu)
    stamp('ut1st')
    if PM: a('s_mov_b32 exec_hi, 0')
    a('s_branch L_uh_chk')
    a.label('L_uh')
    if SL: a(f's_sleep {SL}')
    a(f's_cmp_lg_u32 s51, {SPIN - P.get("idl", 48)}')
    a('s_cbranch_scc1 L_noid')
    a('s_cmp_lg_u32 s3, 0')
    a('s_cbranch_scc1 L_noid')
    a('s_lshl_b32 s36, s29, 2')
    a('s_mov_b64 exec, 1')
    a(f'buffer_store_dword v123, v21, s[52:55], s36 offen offset:{XID} sc1')
    a('s_mov_b64 exec, 0xffffffff' if PM else 's_mov_b64 exec, -1')
    a.label('L_noid')
    for l in hloads: a(l)
    a('s_waitcnt vmcnt(0)')
    a.label('L_uh_chk')
    a('v_cmp_ne_u32 vcc, s100, v124')
    a('v_subrev_u32 v122, s50, v121')
    a('v_subrev_u32 v122, 1, v122')
    a('s_cbranch_vccz L_uh_ok')
    a('v_cmp_lt_u32 vcc, 15, v122')
    a('v_cmp_ne_u32 s[92:93], s100, v121')
    a('s_sub_u32 s51, s51, 1')
    a('s_cbranch_scc1 L_uh_ok')
    a('s_cbranch_vccnz L_uh')
    a('s_cmp_eq_u64 s[92:93], 0')
    a('s_cbranch_scc1 L_uh_same')
    a('s_cmp_lg_u32 s101, 0')
    a('s_cbranch_scc1 L_uh_same')
    a('s_mov_b32 s101, 1')
    a('s_mov_b64 exec, -1')
    for l in ustores: a(l + ' sc1')
    a('s_waitcnt vmcnt(0)')
    a(f'buffer_store_dword v20, v21, s[52:55], s7 offen offset:{UH} sc1')
    if PM: a('s_mov_b32 exec_hi, 0')
    a.label('L_uh_same')
    a('v_cmp_ne_u32 vcc, s50, v124')
    a('v_cmp_ne_u32 s[92:93], s100, v124')
    a('s_nop 0')
    a('s_and_b64 vcc, vcc, s[92:93]')
    a('s_cbranch_vccnz L_uh')
    a.label('L_uh_ok')
    a('s_mov_b64 exec, -1')
    raw(6, 's51'); raw(0, 's101')
    stamp('uhok')
    tu = []
    for c in range(2):
        vm.issue(f'buffer_load_dwordx4 v[{72+4*c}:{75+4*c}], v125, s[16:19], s{35-c} offen sc1')
        tu.append(vm.issue(f'buffer_load_dword v{80+c}, v125, s[16:19], s{35-c} offen offset:16 sc1'))
    if P.get('s1at', 1) == 1: stage1()
    lstore(['buffer_store_dwordx4 v[100:103], v126, s[16:19], s6 offen'])
    if KP:
        for j in list(range(4)) + list(range(4, 13)): a(f'ds_read_b128 v[{104+4*j}:{107+4*j}], v22 offset:{128*j}')
    if P.get('xat', 1) == 1: tx = xload()
    if P.get('cla', 1) == 1: cpload()
    if RP:
        a('s_lshl_b32 s43, s2, 1')
        a('s_add_u32 s43, s43, s39')
        a('s_mul_i32 s36, s43, 3584')
        for r in range(2): CP['pl'] = vm.issue(f'buffer_load_dwordx4 v[{24+4*r}:{27+4*r}], v15, s[20:23], s36 offen offset:{1024*r}' + NC)
    def p2copy():
        a('v_lshrrev_b32 v4, 3, v1')
        a('v_lshlrev_b32 v4, 16, v4')
        a('v_lshl_add_u32 v4, v6, 4, v4')
        a('s_lshr_b32 s36, s3, 1')
        a('s_lshl_b32 s36, s36, 20')
        a('s_lshl_b32 s43, s43, 7')
        a('s_add_u32 s36, s36, s43')
        a(f's_add_u32 s36, s36, {hex(W2)}')
        vm.need(CP['pl'])
        vm.issue('buffer_store_dwordx4 v[24:27], v4, s[16:19], s36 offen sc1')
        a('s_add_u32 s36, s36, 0x80000')
        CP['s'] = vm.issue('buffer_store_dwordx4 v[28:31], v4, s[16:19], s36 offen sc1')
    def wdcopy():
        a('v_lshrrev_b32 v4, 3, v1')
        a(f'v_mul_u32_u24 v4, {1792*128}, v4')
        a('v_lshl_add_u32 v4, v6, 4, v4')
        vm.need(CP['l'])
        for r in range(2):
            a(f's_lshl_b32 s36, s{44+r}, 7')
            a(f's_add_u32 s36, s36, {hex(WD2)}')
            CP['s'] = vm.issue(f'buffer_store_dwordx4 v[{CR+4*r}:{CR+3+4*r}], v4, s[16:19], s36 offen sc1')
    a('s_movk_i32 s36, 0xff')
    a('v_cmp_ne_u32 vcc, s36, v0')
    for c in range(2):
        u = 72+4*c
        vm.need(tu[c])
        if c == 0: stamp('utok')
        a(f'v_cndmask_b32 v{80+c}, 0, v{80+c}, vcc')
        a(f'ds_write_b128 v14, v[{u}:{u+3}] offset:{c*CHS+U0}')
        for j in range(3): a(f'v_alignbit_b32 v{40+4*c+j}, v{u+j+1}, v{u+j}, 16')
        a(f'v_alignbit_b32 v{43+4*c}, v{80+c}, v{u+3}, 16')
        a(f'ds_write_b128 v14, v[{40+4*c}:{43+4*c}] offset:{c*CHS+U1}')
    for _ in range(P.get('e0b', 3)): early.popleft()()
    a('s_waitcnt lgkmcnt(0)')
    a('s_barrier')
    stamp('bbar')
    if RL and P.get('cpa', 10) < 0: wdcopy()
    a('s_lshl_b32 s6, s46, 11')
    a(f's_add_u32 s6, s6, {hex(MP)}')
    a(f's_lshl_b32 s5, s46, {6 + MF}')
    a(f's_add_u32 s5, s5, {hex(MODT)}')
    a('s_cmp_lt_u32 s29, 24')
    a(f's_cselect_b32 s7, s3, 1')
    a('s_cmp_eq_u32 s7, 0')
    a(f's_cselect_b32 s6, s6, {hex(TS)}')
    a(f's_cselect_b32 s5, s5, {hex(TS)}')
    a('s_lshr_b32 s36, s46, 5')
    a('s_cmp_eq_u32 s36, 1')
    a('s_cselect_b32 s4, 1.0, 0')
    a('s_cmp_eq_u32 s36, 4')
    a('s_cselect_b32 s4, 1.0, s4')
    ploads = [f'buffer_load_dwordx4 v[{240+4*j}:{243+4*j}], v15, s[16:19], s6 offen offset:{1024*j} sc1' for j in range(2)]
    tmi = []
    def mod_issue():
        for l in ploads: t = vm.issue(l)
        tmi.append(t)
    def mod_check():
        vm.need(tmi[0])
        a('s_cmp_lg_u32 s7, 0')
        a('s_cbranch_scc1 L_nomod')
        done = vm.done
        poll('mp', ploads, [242, 246], pre=0)
        vm.done = done
        a.label('L_nomod')
    st2 = deque(['v_add_f32 v240, v240, v244', 'v_add_f32 v241, v241, v245', 'v_mov_b32 v246, s50', 'v_mov_b32 v247, s50'])
    st2.extend(f'v_add_f32_dpp v{240+j}, v{240+j}, v{240+j} row_ror:8 row_mask:0xf bank_mask:0xf' for j in range(2))
    for op in ('v_permlane16_swap_b32', 'v_permlane32_swap_b32'):
        st2.extend(f'v_mov_b32 v{242+j}, v{240+j}' for j in range(2))
        st2.extend(f'{op} v{240+j}, v{242+j}' for j in range(2))
        st2.extend(f'v_add_f32 v{240+j}, v{240+j}, v{242+j}' for j in range(2))
    st2.extend(['v_cvt_pk_bf16_f32 v242, v240, v241', 'v_lshlrev_b32 v243, 3, v1', 'v_lshlrev_b32 v240, 16, v242', 'v_and_b32 v241, s40, v242',
                'v_add_f32 v240, s4, v240', 'v_add_f32 v241, s4, v241', 'v_cvt_pk_bf16_f32 v244, v240, v241', None,
                'v_mov_b32_dpp v245, v244 quad_perm:[1,1,3,3] row_mask:0xf bank_mask:0xf', None, 'store'])
    def st2_step():
        for _ in range(2):
            if not st2: return
            x = st2.popleft()
            if x is None: return
            if x == 'store': masked(['buffer_store_dwordx4 v[244:247], v243, s[16:19], s5 offen sc1'], 0x5555 if MF else 0x55)
            else: a(x)
    ACC, AR, BR = 40, 72, 104
    pipe = LdsPipe(a)
    reads = []
    for i in range(32):
        o = 32*((31-i) & 7); b = 16 + ((31-i) >> 3); d = AR + 4*(i & 7)
        reads.append((('A', i, 0), f'ds_read2_b32 v[{d}:{d+1}], v{b} offset0:{o} offset1:{o+1}'))
        reads.append((('A', i, 1), f'ds_read2_b32 v[{d+2}:{d+3}], v{b} offset0:{o+2} offset1:{o+3}'))
        if i < 4 and not KP:
            for t in range(8):
                j = 4*t+3-i
                reads.append((('B', j), f'ds_read_b128 v[{BR+4*j}:{BR+4*j+3}], v22 offset:{128*j}'))
    tok = {('B', j): 0 for j in range(32)} if KP else {}; nxt = [0]
    def pump(cur_step, maxn):
        n = 0
        while n < maxn and nxt[0] < len(reads) and pipe.outstanding() < 13:
            key, line = reads[nxt[0]]
            if key[0] == 'A' and key[1] >= cur_step + 8: break
            tok[key] = pipe.issue(line); nxt[0] += 1; n += 1
    pump(0, 12)
    if P.get('p2m', 0):
        a('v_lshlrev_b32 v4, 7, v1')
        a('s_lshl_b32 s36, s2, 1')
        a('s_add_u32 s36, s36, s39')
        a('s_mul_i32 s36, s36, 3584')
        masked(['buffer_load_dword v248, v4, s[20:23], s36 offen'], 0xffff)
    slow(2)
    a('v_lshrrev_b32 v2, 1, v0')
    a('v_bfe_u32 v3, v0, 4, 2')
    a('v_xor_b32 v2, v2, v3')
    a('v_lshlrev_b32 v2, 4, v2')
    a('v_and_b32 v3, 1, v0')
    a('v_lshl_add_u32 v2, v3, 3, v2')
    a(f'v_add_u32 v2, {PB}, v2')
    a('v_lshlrev_b32 v3, 4, v0')
    a(f's_mul_i32 s38, s32, {YP}')
    a(f's_add_u32 s38, s38, {hex(YT)}')
    YE = P.get('ye', 20)
    ye = deque(); ptk = {}; YS_ = {}
    def ystore(j):
        q = 24+4*j if not (YE and j < 2) else 200+4*j
        YS_['t'] = vm.issue(f'buffer_store_dwordx4 v[{q}:{q+3}], v3, s[16:19], s38 offen sc1')
        if j < 3: a('s_add_u32 s38, s38, 0x1000')
    def yearly():
        if RL or RP: vm.need(CP['s'])
        pipe.need(ptk[3])
        a('s_barrier')
        for j in range(2):
            b = 208+8*j; q = 200+4*j
            for w in range(4): ye.append(('rd', f'ds_read_b64 v[{b+2*w}:{b+2*w+1}], v2 offset:{8192*w+2048*j}'))
        for j in range(2):
            b = 208+8*j; q = 200+4*j
            ye.extend([f'v_mov_b32 v{q+2}, s50', f'v_mov_b32 v{q+3}, s50', ('need', 4*j+3)])
            ye.extend(f'v_add_f32 v{b+r}, v{b+r}, v{b+r+2}' for r in (0, 4, 1, 5))
            ye.extend([f'v_cvt_pk_bf16_f32 v{q}, v{b}, v{b+4}', f'v_cvt_pk_bf16_f32 v{q+1}, v{b+1}, v{b+5}', ('st', j)])
    yt_ = []
    def ye_step(n):
        while ye and n > 0:
            x = ye[0]
            if isinstance(x, str): a(x); n -= 1
            elif x[0] == 'rd':
                if pipe.outstanding() >= 14: return
                yt_.append(pipe.issue(x[1])); n -= 1
            elif x[0] == 'need': pipe.need(yt_[x[1]])
            else: ystore(x[1]); n -= 1
            ye.popleft()
    pending = []; nm = 0
    NB = P.get('e1', 12); EV = P.get('ev', 9)
    for i in range(32):
        for t in range(i >> 2, 8):
            j = 4*t+3-i
            while ('B', j) not in tok or ('A', i, 1) not in tok:
                pipe.need(pipe.done + 2); pump(i, 2)
            pipe.need(max(tok[('A', i, 1)], tok[('B', j)]))
            d = ACC+4*t; c = '0' if i == 0 else f'v[{d}:{d+3}]'
            s = AR+4*(i & 7)
            a(f'v_mfma_f32_16x16x32_bf16 v[{d}:{d+3}], v[{s}:{s+3}], v[{BR+4*j}:{BR+4*j+3}], {c}')
            pump(i, 2 if i < 4 else 1)
            nm += 1
            if i > P.get('mfin', 8): st2_step()
            ye_step(2)
            if nm >= P.get('e1s', 10) and nm % EV == 0 and NB > 0 and early:
                early.popleft()(); NB -= 1
        if pending and pipe.outstanding() < 14:
            t = pending.pop()
            ptk[t] = pipe.issue(f'ds_write_b128 v23, v[{ACC+4*t}:{ACC+4*t+3}] offset:{1024*t}')
        if YE and i == YE: yearly()
        if (i & 3) == 3: pending.append(i >> 2)
        if RL and i == P.get('cpa', 10): wdcopy()
        if RP and i == P.get('cpa', 10) + 1: p2copy()
        if i == P.get('mpi', 3): mod_issue()
        if i == P.get('mfin', 8): mod_check(); raw(7, 's51')
    for t in pending:
        pipe.issue(f'ds_write_b128 v23, v[{ACC+4*t}:{ACC+4*t+3}] offset:{1024*t}')
    assert not st2
    while ye: pipe.need(pipe.issued); ye_step(100)
    stamp('bend')
    a('v_lshlrev_b32 v4, 3, v0')
    a(f'v_add_u32 v4, {PRM}, v4')
    a('v_and_b32 v5, 3, v0')
    a(f'v_add_u32 v13, {PRM}, v15')
    a('s_and_b32 s36, s32, 7')
    if DX: a(f's_xor_b32 s36, s36, {DX}')
    a('s_lshl_b32 s36, s36, 1')
    a('s_and_b32 s37, s3, 1')
    a('s_or_b32 s36, s36, s37')
    a('s_lshl_b32 s36, s36, 6')
    a(f's_add_u32 s36, s36, {PRM+5120}')
    a('v_lshrrev_b32 v14, 5, v1')
    a('v_lshl_add_u32 v14, v14, 4, s36')
    if RL or RP: vm.need(CP['s'])
    if RL and P.get('wr2', 0):
        a('v_and_b32 v252, 7, v1')
        a(f'v_mul_u32_u24 v252, {1792*128}, v252')
        a('v_bfe_u32 v253, v1, 3, 1')
        a('v_lshl_add_u32 v252, v253, 7, v252')
        a('s_lshl_b32 s36, s44, 7')
        a(f's_add_u32 s36, s36, {hex(WD2)}')
        masked(['buffer_load_dword v253, v252, s[16:19], s36 offen sc1'], 0xffff)
    a('s_waitcnt lgkmcnt(0)')
    a('s_barrier')
    stamp('pbar')
    J0 = 2 if YE else 0
    for j in range(J0, 4):
        for w in range(4):
            a(f'ds_read_b64 v[{72+8*j+2*w}:{73+8*j+2*w}], v2 offset:{8192*w+2048*j}')
        if j == 2 and not YE: a('s_waitcnt lgkmcnt(8)')
    a(f's_lshl_b32 s35, s3, {10 + MF}')
    a(f's_add_u32 s35, s35, {hex(MODT)}')
    a(f's_add_u32 s34, s35, {0x1000 << MF}')
    a(f's_add_u32 s4, s35, {0x2000 << MF}')
    if MF:
        a('v_and_b32 v61, 0xfc0, v15')
        a('v_add_u32 v61, v61, v15')
    mloads = [f'buffer_load_dwordx4 v[{104+4*r}:{107+4*r}], v{61 if MF else 15}, s[16:19], s{(35, 34, 4)[r]} offen sc1' for r in range(3)]
    TM = [None]
    if P.get('mde', 2) == 1:
        for l in mloads: TM[0] = vm.issue(l)
    for j in range(J0, 4):
        b = 72+8*j; q = 24+4*j
        a(f'v_mov_b32 v{q+2}, s50')
        a(f'v_mov_b32 v{q+3}, s50')
        if j: a(f's_waitcnt lgkmcnt({12-4*j})')
        a(f'v_pk_add_f32 v[{b}:{b+1}], v[{b}:{b+1}], v[{b+2}:{b+3}]')
        a(f'v_pk_add_f32 v[{b+4}:{b+5}], v[{b+4}:{b+5}], v[{b+6}:{b+7}]')
        a(f'v_cvt_pk_bf16_f32 v{q}, v{b}, v{b+4}')
        a(f'v_cvt_pk_bf16_f32 v{q+1}, v{b+1}, v{b+5}')
        ystore(j)
    tys = YS_['t']
    stamp('ytst')
    a('v_mov_b32 v22, v4')
    a('v_mov_b32 v23, v14')
    a('v_mov_b32 v60, v5')
    slow(3)
    a('v_mov_b32 v5, v60')
    if P.get('mde', 2) == 2:
        for l in mloads: TM[0] = vm.issue(l)
    for _ in range(P.get('e2', 6)): early.popleft()()
    a('v_lshrrev_b32 v4, 2, v0')
    a(f'v_mul_u32_u24 v3, {2*YS}, v5')
    a('v_lshl_add_u32 v3, v4, 2, v3')
    a(f'v_add_u32 v3, {XG}, v3')
    a(f's_mul_i32 s46, s3, {2*YS}')
    a(f's_add_u32 s46, s46, {XG}')
    a('v_add_u32 v4, s46, v15')
    a('s_lshl_b32 s46, s3, 1')
    a('v_xor_b32 v5, s46, v6')
    a('v_lshlrev_b32 v5, 4, v5')
    a('v_lshl_add_u32 v5, v1, 7, v5')
    a(f'v_add_u32 v5, {XH}, v5')
    a('v_xor_b32 v16, 16, v5')
    a('v_lshrrev_b32 v17, 3, v1')
    a('v_xor_b32 v18, v17, v6')
    a('v_lshlrev_b32 v18, 4, v18')
    a('v_lshl_add_u32 v18, v17, 7, v18')
    a('s_lshl_b32 s46, s3, 11')
    a(f's_add_u32 s46, s46, {XH}')
    a('v_add_u32 v18, s46, v18')
    a('v_lshlrev_b32 v17, 9, v17')
    a('v_lshl_add_u32 v17, v6, 4, v17')
    a('s_lshr_b32 s46, s32, 2')
    a('s_lshl_b32 s46, s46, 15')
    a('s_and_b32 s47, s32, 3')
    a('s_lshl_b32 s47, s47, 7')
    a('s_add_u32 s46, s46, s47')
    a('s_lshl_b32 s47, s3, 13')
    a('s_add_u32 s46, s46, s47')
    a(f's_add_u32 s46, s46, {hex(H2)}')
    a('s_add_u32 s47, s46, 0x1000')
    XO = P.get('xo', 1)
    XS = 's[12:15]' if XO else 's[16:19]'
    base(a, 12, 56, 0x200000)
    a(f's_add_u32 s37, s33, {0 if XO else hex(X1)}')
    a('v_lshrrev_b32 v14, 2, v0')
    a(f'v_mul_u32_u24 v14, {YP}, v14')
    a('v_and_b32 v19, 3, v0')
    a('v_lshl_add_u32 v14, v19, 4, v14')
    a('s_lshl_b32 s24, s32, 6')
    a(f's_add_u32 s26, s24, {hex(YT)}')
    a(f's_add_u32 s27, s26, {64*YP}')
    a(f's_add_u32 s5, s26, {128*YP}')
    a(f's_add_u32 s6, s26, {192*YP}')
    X = (64, 160)
    vm.need(tx)
    subs = []
    for t in range(2):
        s = Asm(); unpack8(s, X[t], 232+4*t, 40); ln2p(s, X[t], X[t]+8, X[t]+16, 24+t)
        subs.append(s)
    zipl(a, *subs)
    stamp('ln1')
    yloads = [f'buffer_load_dwordx4 v[{24+4*j}:{27+4*j}], v14, s[16:19], s{(26, 27, 5, 6)[j]} offen sc1' for j in range(4)]
    MDE = P.get('mde', 2)
    def md_in():
        poll('md', mloads, [106, 110, 114], pre=TM[0])
        stamp('mdok'); raw(1, 's51')
        for r in range(3): a(f'ds_write_b64 v22, v[{104+4*r}:{105+4*r}] offset:{2048*r}')
    def md_use(extra):
        for i, off in enumerate((1024, 0, 2048)):
            a(f'ds_read_b128 v[{40+4*i}:{43+4*i}], v13 offset:{off}')
        for l in extra: a(l)
        for i, off in enumerate((4096, 3072)):
            a(f'ds_read_b128 v[{52+4*i}:{55+4*i}], v13 offset:{off}')
        a('ds_read_b128 v[124:127], v23')
        a('ds_read_b128 v[116:119], v23 offset:32')
        a(f's_waitcnt lgkmcnt({5+len(extra)})')
        unpack8(a, 128, 40, 40); unpack8(a, 136, 44, 40)
        for t in range(2):
            for p in range(4):
                d = X[t]+8+2*p
                a(f'v_pk_fma_f32 v[{d}:{d+1}], v[{d}:{d+1}], v[{128+2*p}:{129+2*p}], v[{136+2*p}:{137+2*p}]')
        a(f's_waitcnt lgkmcnt({4+len(extra)})')
        unpack8(a, 144, 48, 40)
        for t in range(2):
            for p in range(4):
                d = X[t]+8+2*p
                a(f'v_pk_mul_f32 v[{d}:{d+1}], v[{d}:{d+1}], v[{144+2*p}:{145+2*p}]')
        a('s_waitcnt lgkmcnt(0)')
        unpack8(a, 128, 52, 40); unpack8(a, 136, 56, 40)
    if MDE:
        md_in()
        a('s_waitcnt lgkmcnt(0)')
        a('s_barrier')
        md_use([])
    vm.need(tys)
    if P.get('yd'): a(f's_sleep {P["yd"]}')
    stamp('ytack')
    for l in yloads: ty = vm.issue(l)
    if not MDE:
        for l in mloads: TM[0] = vm.issue(l)
    poll('yt', yloads, [26, 30, 34, 38], pre=ty)
    stamp('ytok'); raw(2, 's51')
    for j in range(4):
        a(f'ds_write_b32 v3, v{24+4*j} offset:{256*j}')
        a(f'ds_write_b32 v3, v{25+4*j} offset:{256*j+YS}')
    if not MDE: md_in()
    a('s_waitcnt lgkmcnt(0)')
    a('s_barrier')
    stamp('ybar')
    yreads = ['ds_read_b128 v[24:27], v4', f'ds_read_b128 v[28:31], v4 offset:{YS}']
    if MDE:
        for l in yreads: a(l)
    ptok = {}
    def p2dma(k):
        if LAY == 1 or k < 15: a(f's_add_u32 m0, s49, {SEG[0][1] + 2048*(k % 15)}')
        else: a(f's_add_u32 m0, s43, {seg_of(k)[1] + 2048*(k - seg_of(k)[0])}')
        if k and k % 4: a(f's_add_u32 s48, s48, {16*PR}')
        elif k: step('s48', 16*PR, 's100', 512*PR)
        ptok[k] = vm.issue('buffer_load_dwordx4 v7, s[16:19], s48 offen sc1 lds' if RP else 'buffer_load_dwordx4 v7, s[20:23], s48 offen lds')
    a(f's_add_u32 s100, s48, {512*PR}')
    a(f's_mul_i32 s36, s98, {64*PR}')
    a('s_add_u32 s48, s48, s36')
    for _ in range(P.get('e3', 3)): early.popleft()()
    NSY = P.get('nsy', 0)
    for k in range(NSY): p2dma(k)
    if MDE: a('s_waitcnt lgkmcnt(0)')
    else: md_use(yreads)
    subs = []
    for t in range(2):
        s = Asm(); x = X[t]
        unpack8(s, x+20, 24+4*t, 40)
        for p in range(4):
            s(f'v_pk_fma_f32 v[{x+2*p}:{x+2*p+1}], v[{x+8+2*p}:{x+9+2*p}], v[{x+20+2*p}:{x+21+2*p}], v[{x+2*p}:{x+2*p+1}]')
        for j in range(4): s(f'v_cvt_pk_bf16_f32 v{32+4*t+j}, v{x+2*j}, v{x+2*j+1}')
        s(f'buffer_store_dwordx4 v[{32+4*t}:{35+4*t}], v15, {XS}, s37 offen offset:{1024*t} sc1')
        unpack8(s, x, 32+4*t, 40)
        (ln1p if P.get('l1', 1) else ln2p)(s, x, x+8, x+16, 24+2*t)
        for p in range(4):
            s(f'v_pk_fma_f32 v[{x+8+2*p}:{x+9+2*p}], v[{x+8+2*p}:{x+9+2*p}], v[{128+2*p}:{129+2*p}], v[{136+2*p}:{137+2*p}]')
        for j in range(4): s(f'v_cvt_pk_bf16_f32 v{40+4*t+j}, v{x+8+2*j}, v{x+9+2*j}')
        s(f'ds_write_b128 v{(5, 16)[t]}, v[{40+4*t}:{43+4*t}]')
        subs.append(s)
    zipl(a, *subs)
    vm.issued += 2
    a('s_waitcnt lgkmcnt(0)')
    a('s_barrier')
    stamp('hbar')
    a('ds_read_b128 v[24:27], v18')
    a('ds_read_b128 v[28:31], v18 offset:1024')
    a('s_and_b32 s24, s32, 31')
    a('s_lshl_b32 s24, s24, 4')
    a('s_lshl_b32 s25, s3, 2')
    a('s_add_u32 s33, s24, s25')
    a('s_and_b32 s25, s30, 1')
    a('s_lshl_b32 s25, s25, 8')
    a('s_lshl_b32 s26, s3, 6')
    a('s_add_u32 s25, s25, s26')
    a('v_and_b32 v19, 15, v1')
    a('v_lshlrev_b32 v19, 2, v19')
    if M2:
        a('s_lshl_b32 s25, s3, 2')
        a('s_lshl_b32 s24, s32, 7')
        a('s_add_u32 s24, s24, s25')
        a(f's_add_u32 s24, s24, {hex(FL1)}')
        a('s_lshl_b32 s33, s30, 4')
        a('s_or_b32 s33, s33, s31')
        a('s_lshl_b32 s33, s33, 7')
        a('s_add_u32 s33, s33, s25')
        a(f's_add_u32 s33, s33, {hex(FL2)}')
        a('s_lshl_b32 s26, s30, 4')
        a('s_add_u32 s26, s26, s25')
        a('s_lshl_b32 s26, s26, 7')
        a(f's_add_u32 s97, s26, {hex(FL1)}')
        a('s_lshr_b32 s26, s32, 4')
        a('s_lshl_b32 s26, s26, 4')
        a('s_add_u32 s26, s26, s25')
        a('s_lshl_b32 s26, s26, 7')
        a(f's_add_u32 s25, s26, {hex(FL2)}')
        a('v_bfe_u32 v19, v1, 2, 2')
        a('v_and_b32 v22, 3, v1')
        a('v_lshlrev_b32 v22, 2, v22')
        a('v_lshl_add_u32 v19, v19, 7, v22')
    def flag(F):
        if not M2:
            if PM: a('s_mov_b64 exec, 1')
            t = lstore([f'buffer_store_dword v20, v21, s[52:55], s33 offen offset:{F}'])
            if PM: a('s_mov_b64 exec, -1')
            return t
        if F == F3: a(f's_add_u32 s33, s33, {FL3-FL2}')
        return masked([f'buffer_store_dword v20, v21, s[16:19], {"s24" if F == F1 else "s33"} offen sc1'], 1)
    def look(F):
        if not M2: return [f'buffer_load_dword v{23 if F == F4 else 22}, v{19 if F == F1 else 13}, s[52:55], s25 offen offset:{F} sc1']
        return [f'buffer_load_dword v22, v{19 if F == F1 else 13}, s[16:19], {"s97" if F == F1 else "s25"} offen sc1']
    a('s_waitcnt lgkmcnt(0)')
    lstore(['buffer_store_dwordx4 v[24:27], v17, s[16:19], s46 offen', 'buffer_store_dwordx4 v[28:31], v17, s[16:19], s47 offen'], P.get('h2s', M2))
    if P.get('h2c'):
        for j in range(8): a(f'v_mov_b32 v{108+j}, v{24+j}')
        a('v_mov_b32 v107, v17')
        a('s_mov_b32 s96, s46')
    stamp('h2st')
    a('v_bfe_u32 v4, v1, 4, 1')
    a('v_lshrrev_b32 v5, 5, v1')
    a('v_bfe_u32 v22, v1, 2, 2')
    a('v_and_b32 v23, 3, v1')
    a('v_lshlrev_b32 v23, 3, v23')
    a('v_lshl_add_u32 v3, v5, 3, v22')
    a('v_bfe_u32 v13, v1, 3, 1')
    a('v_lshlrev_b32 v16, 7, v3')
    a('v_add_u32 v16, v16, v23')
    a('v_lshl_add_u32 v16, v13, 6, v16')
    a('v_lshl_add_u32 v16, v4, 5, v16')
    a(f'v_mul_u32_u24 v17, {SEG[0][2]-SEG[0][1]}, v4')
    a(f'v_add_u32 v17, {SEG[0][1]}, v17')
    a(f'v_mul_u32_u24 v18, {P1U}, v4')
    for ct in range(4):
        a(f'v_xor_b32 v14, {32*ct}, v16')
        a(f'v_add_u32 v{246+ct}, v14, v17')
        if LAY == 2: a(f'v_add_u32 v{120+ct}, v14, v18')
    a('v_mul_u32_u24 v3, 0x60, v3')
    a('v_add_u32 v3, v3, v23')
    a('v_add_u32 v18, v18, v3')
    a('v_lshl_add_u32 v3, v5, 2, v22')
    a('v_lshlrev_b32 v3, 7, v3')
    a('v_lshl_add_u32 v3, v13, 6, v3')
    a('v_lshl_add_u32 v3, v4, 5, v3')
    a('v_add_u32 v3, v3, v23')
    a('s_lshl_b32 s26, s3, 11')
    a('s_and_b32 s27, s3, 1')
    a('s_lshl_b32 s27, s27, 6')
    a('v_xor_b32 v3, s27, v3')
    a('v_add_u32 v240, s26, v3')
    a('v_xor_b32 v241, 64, v240')
    for i in range(1, 3):
        a(f'v_add_u32 v{240+2*i}, {65536*i}, v240')
        a(f'v_add_u32 v{241+2*i}, {65536*i}, v241')
    a(f's_mov_b32 s44, {fh(GC2)}'); a(f's_mov_b32 s45, {fh(GC2)}')
    a(f'v_mov_b32 v2, {fh(GC1)}'); a(f'v_mov_b32 v3, {fh(GC1)}')
    a('s_lshl_b32 s27, s30, 2')
    a('s_add_u32 s27, s27, s3')
    a('s_lshl_b32 s28, s27, 15')
    a(f's_add_u32 s28, s28, {hex(H2)}')
    a('v_add_u32 v14, s28, v15')
    a('s_lshl_b32 s28, s98, 12')
    a('s_waitcnt vmcnt(0)'); vm.done = vm.issued
    stamp('h2dr')
    flag(F1)
    while early: early.popleft()()
    NS0 = min(7, P.get('ns0', 0) + NSY)
    for k in range(NSY, NS0): p2dma(k)
    a('s_mul_i32 s29, s27, 112')
    AN = M2 or P.get('an', 1)
    AP = 1024 if AN else YP
    if AN:
        a('s_lshl_b32 s47, s31, 2')
        a('s_add_u32 s47, s47, s29')
        a('s_lshl_b32 s47, s47, 10')
        a(f's_add_u32 s47, s47, {hex(ACT)}')
    else:
        a('s_lshl_b32 s47, s3, 4')
        a('s_add_u32 s47, s47, s31')
        a(f's_mul_i32 s47, s47, {4*YP}')
        a('s_lshl_b32 s4, s30, 10')
        a(f's_add_u32 s4, s4, {hex(YT)}')
        a('s_add_u32 s47, s47, s4')
    a('s_mul_i32 s46, s31, 3')
    a('s_add_u32 s46, s46, s29')
    a('s_lshl_b32 s46, s46, 10')
    a(f's_add_u32 s46, s46, {hex(ACT + 64*1024)}')
    a('s_lshr_b32 s39, s32, 3')
    a('s_and_b32 s35, s39, 1')
    a(f's_and_b32 s34, s39, {P.get("wrot", 0)}')
    a('s_and_b32 s24, s32, 7')
    if DX: a(f's_xor_b32 s24, s24, {DX}')
    a('s_lshl_b32 s24, s24, 7')
    if RL:
        a(f's_add_u32 s8, s58, {hex(WD2)}')
        a('s_addc_u32 s9, s59, 0')
        a('s_mul_i32 s24, s24, 1792')
    a(f's_mul_i32 s37, s3, {12*WS_}')
    a('s_add_u32 s37, s37, s24')
    a(f's_add_u32 s30, s37, {76*WS_}')
    a(f's_mul_i32 s36, s34, {3*WS_}')
    a('s_add_u32 s37, s37, s36')
    a(f's_add_u32 s37, s37, {64*WS_}')
    a(f's_mul_i32 s38, s3, {16*WS_}')
    a('s_add_u32 s38, s38, s24')
    a(f's_add_u32 s31, s38, {16*WS_}')
    a(f's_mul_i32 s36, s34, {4*WS_}')
    a('s_add_u32 s38, s38, s36')
    if AN:
        a(f's_mul_i32 s4, s39, {224*1024}')
        a('s_lshl_b32 s6, s3, 14')
        a('s_add_u32 s6, s6, s4')
        a(f's_add_u32 s6, s6, {hex(ACT)}')
    else:
        a('s_lshl_b32 s6, s35, 3')
        a('s_add_u32 s6, s6, s3')
        a(f's_mul_i32 s6, s6, {16*YP}')
        a('s_add_u32 s6, s6, s4')
    a(f's_add_u32 s42, s6, {16*AP}')
    a(f's_mul_i32 s36, s34, {4*AP}')
    a('s_add_u32 s6, s6, s36')
    a(f's_mul_i32 s4, s39, {224*1024}')
    a(f's_mul_i32 s5, s3, {12*1024}')
    a('s_add_u32 s5, s5, s4')
    a(f's_add_u32 s5, s5, {hex(ACT + 64*1024)}')
    a(f's_add_u32 s41, s5, {12*1024}')
    a(f's_mul_i32 s36, s34, {3*1024}')
    a('s_add_u32 s5, s5, s36')
    a('s_lshl_b32 s39, s39, 16')
    a('s_and_b32 s24, s32, 7')
    if DX: a(f's_xor_b32 s24, s24, {DX}')
    a('s_lshl_b32 s24, s24, 7')
    a('s_add_u32 s39, s39, s24')
    a('v_bfe_u32 v4, v1, 1, 2')
    a('v_and_b32 v5, 1, v1')
    a('v_lshlrev_b32 v5, 2, v5')
    a(f'v_lshl_add_u32 v4, v4, {7 if M2 else 4}, v5')
    a('s_lshl_b32 s35, s35, 3')
    a('v_add_u32 v13, s35, v4')
    a('s_cmp_ge_u32 s3, 2')
    for r, (reg0, reg1, dist) in enumerate(((250, 16, 112*1024), (251, 17, 112*1024 if AN else 64*YP))):
        a(f's_cselect_b32 s36, {dist}, 0')
        a(f'v_add_u32 v{reg0}, s36, v15')
        a(f's_cselect_b32 s36, 0, {dist}')
        a(f'v_add_u32 v{reg1}, s36, v15')
    a('v_lshlrev_b32 v73, 7, v1')
    a('s_lshl_b32 s34, s2, 2')
    a('s_add_u32 s34, s34, s3')
    a(f's_mul_i32 s34, s34, {14*128}')
    poll('f1', look(F1), [22], mask=0xffff)
    stamp('f1ok'); raw(3, 's51')
    htok = {}
    def h2load(ks):
        htok[ks] = vm.issue(f'buffer_load_dwordx4 a[{4*ks}:{4*ks+3}], v14, s[16:19], s28 offen offset:{1024*(ks&3)} sc1')
        if (ks & 3) == 3:
            a('s_add_u32 s28, s28, 0x1000'); a('s_and_b32 s28, s28, 0x7fff')
    NH0 = P.get('nh0', 6)
    for ks in range(NH0): h2load(ks)
    slow(4)
    if P.get('xa'): a(f's_mov_b32 s46, {hex(TS)}')
    if P.get('xw'): a('s_mov_b32 s10, 0')
    if P.get('xp'): a('s_mov_b32 s22, 0')
    a('s_barrier')
    stamp('b0')
    wtok, atok = {}, {}
    SP = P.get('sp', 0)
    def pos(i): return i - 12 if not SP else (4*((i-12) % 8 // 2) + (i-12) % 2 + 2*((i-12) // 8))
    def adv(reg, i, unit):
        d = (pos(i) - pos(i-1))*unit
        a(f's_add_u32 {reg}, {reg}, {d}' if d > 0 else f's_sub_u32 {reg}, {reg}, {-d}')
    def wd0(i):
        so = 's37' if i < 12 else 's38'
        a(f's_add_u32 m0, s26, {8192*WBL[i]}')
        if i > 12: adv(so, i, WS_)
        elif i not in (0, 12): a(f's_add_u32 {so}, {so}, {WS_}')
        vm.issue(f'buffer_load_dwordx4 v8, s[8:11], {so} offen lds')
    def wd1(i):
        wtok[i] = vm.issue(f'buffer_load_dwordx4 v9, s[8:11], {"s37" if i < 12 else "s38"} offen offset:1024 lds')
    def wreg(i): return ('v', 72 + 8*i) if i < 5 else ('a', 224 + 8*(i-5)) if i < 8 else ('v', AR + 8*(i % 3))
    def wread(i, mt, jj):
        kind, d = wreg(i); ad = 8192*WBL[i]
        return f'ds_read_b64_tr_b16 {kind}[{d+4*mt+2*jj}:{d+4*mt+2*jj+1}], v{240+2*(ad>>16)+mt} offset:{(ad & 0xffff)+1024*jj}'
    def abase(i): return 128 + 8*i if i < 12 else 8*(i-12)
    def act0(i):
        b = abase(i)
        if i < 12:
            if i and i % 4 == 0: a('s_add_u32 s5, s5, 0x1000')
            vm.issue(f'buffer_load_dwordx4 a[{b}:{b+3}], v250, s[16:19], s5 offen offset:{1024*(i & 3)} sc1')
        else:
            if i > 12: adv('s6', i, AP)
            vm.issue(f'buffer_load_dwordx4 a[{b}:{b+3}], v251, s[16:19], s6 offen sc1')
    def act1(i):
        b = abase(i)
        if i < 12: atok[i] = vm.issue(f'buffer_load_dwordx4 a[{b+4}:{b+7}], v16, s[16:19], s5 offen offset:{1024*(i & 3)} sc1')
        else: atok[i] = vm.issue(f'buffer_load_dwordx4 a[{b+4}:{b+7}], v17, s[16:19], s6 offen sc1')
    valu = deque()
    AR, NA = 24, 6
    ACC1, ACC2 = 192, 128
    pipe = LdsPipe(a)
    steps = [(0, k, ct) for k in range(32) for ct in range(2)] + [(0, k, 2) for k in range(32)] + [(1, k, ct) for k in range(32) for ct in range(4)]
    tok = {}; nxt = [0]
    def rd(n):
        ps, k, ct = steps[n]; d = AR + 4*(n % NA)
        for jj in range(2):
            b, off = (18, (16*k + 4*jj)*96 + 32*ct) if ps == 0 else (246+ct, 2048*(k % 15) + 512*jj)
            if ps == 1 and LAY == 2 and k >= 15: b, off = 120+ct, seg_of(k)[1] + 2048*(k - seg_of(k)[0]) + 512*jj
            tok[n] = pipe.issue(f'ds_read_b64_tr_b16 v[{d+2*jj}:{d+2*jj+1}], v{b} offset:{off}')
    for n in range(NA-1): rd(n)
    nxt[0] = NA-1
    J = dict(h=NH0, p=NS0, w=0, half=False, a=0, ahalf=False, pmax=15, wmax=0, f2=False, lastp=-99)
    stg = {}
    def wfree(i): return i < J['wmax'] and (not 12 <= i < 20 or stg.get(i - 12, 1 << 30) <= pipe.done)
    def job(n):
        if J['half']: J['half'] = False; wd1(J['w']); J['w'] += 1; return 1
        if J['h'] < 32: h2load(J['h']); J['h'] += 1; return 1
        if J['p'] < J['pmax'] and n - J['lastp'] >= PE: p2dma(J['p']); J['p'] += 1; J['lastp'] = n; return 3
        if J['ahalf']: J['ahalf'] = False; act1(J['a']); J['a'] += 1; return 1
        if J['f2'] and J['a'] < 12 and (J['a'] <= J['w'] - P.get('wa', 12) or not wfree(J['w']) or J['w'] >= 28):
            act0(J['a']); J['ahalf'] = True; return 1
        if J['w'] < 28 and wfree(J['w']) and n >= P.get('ws', 112): wd0(J['w']); J['half'] = True; return 3
        return 0
    VB = P.get('vb', 35); PE = P.get('pe', 3); TE = P.get('te', 15); LW = P.get('lw', 2)
    held = deque(); stok = {}; sg = 0; credit = 0; nb = 0; ta = 0; fload = look(F2); tp = None
    F2P, F2C = P.get('f2p', 999), P.get('f2c', 204)
    def gelu_step(x, n):
        if isinstance(x, tuple):
            stok[x[1]] = vm.issue(f'buffer_store_dwordx4 v[{x[2]}:{x[2]+3}], v15, s[16:19], s46 offen offset:{1024*x[1]} sc1')
            stok['at'] = n
        else: a(x)
    for n, (ps, k, ct) in enumerate(steps):
        if n < 64 and ct == 0:
            while k not in htok: job(n)
            vm.need(htok[k])
        if tok[n] > pipe.done: pipe.need(tok[min(n + LW - 1, len(steps) - 1)])
        d = (ACC1, ACC2)[ps] + 16*ct; c = '0' if k == 0 else f'v[{d}:{d+15}]'
        sa = AR + 4*(n % NA)
        a(f'v_mfma_f32_32x32x16_bf16 v[{d}:{d+15}], v[{sa}:{sa+3}], a[{4*k}:{4*k+3}], {c}')
        if nxt[0] < len(steps): rd(nxt[0]); nxt[0] += 1
        if P.get('hard'):
            credit = min(credit, 0) + 10*(P['hard'] - 2 - (n + 1 < len(steps) and tok[n+1] > pipe.done))
        else: credit = min(credit + VB, P.get('cap', 40))
        if n in BARS:
            land, J['pmax'], J['wmax'] = BARS[n][0], J['pmax'], J['wmax']
            if land is not None:
                while land not in ptok:
                    if J['half']: job(n)
                    p2dma(J['p']); J['p'] += 1
                vm.need(ptok[land])
            a('s_barrier')
            J['pmax'], J['wmax'] = BARS[n][1:]
            nb += 1; stamp(f'b{nb}' if n < 223 else 'b9'); credit -= 10
        if n == P.get('wt', 999 if RL else 60):
            a('s_mov_b64 exec, 0x3fff')
            vm.issue('buffer_load_dword v72, v73, s[8:11], s34 offen')
            a('s_mov_b64 exec, -1')
        if n in (65, 97):
            if n == 65: stamp('p1a')
            else: stamp('p1end')
            for t in ((0, 1) if n == 65 else (2,)):
                o = (64, 68, 112)[t]
                valu.extend(gelu_ops(ACC1+16*t, 48 + 8*(t & 1), o))
                valu.append(('store', t, o))
        if held and n >= P.get('sdl', 0): gelu_step(held.popleft(), n)
        if n == P.get('h2c', -1):
            vm.issue('buffer_store_dwordx4 v[108:111], v107, s[16:19], s96 offen sc1')
            a('s_add_u32 s96, s96, 0x1000')
            vm.issue('buffer_store_dwordx4 v[112:115], v107, s[16:19], s96 offen sc1')
        ta += 10
        if n == F2P and 'f2' in stok: tp = masked(fload, 0xff); ta = 0
        elif n == F2C and tp is not None:
            poll('f2', fload, [22], pre=tp, mask=0xff); J['f2'] = True
            stamp('f2ok'); raw(4, 's51')
        elif ta >= TE:
            cst = job(n)
            if cst: ta -= TE; credit -= 10*cst
            else: ta = TE
        if n >= P.get('stg', 160) and sg < 32 and pipe.outstanding() <= 13 and credit >= 10 and (not valu or n % 2):
            i, r = divmod(sg, 4)
            if i in wtok and (wtok[i] <= vm.done or vm.issued - wtok[i] >= P.get('sl', 8)):
                vm.need(wtok[i])
                t = pipe.issue(wread(i, r >> 1, r & 1)); sg += 1; credit -= 10
                if r == 3: stg[i] = t
        while valu and credit >= 10*(cost(valu[0]) if isinstance(valu[0], str) else 1):
            x = valu.popleft()
            if isinstance(x, str): a(x); credit -= 10*cost(x)
            elif n < P.get('sdl', 0) or held: held.append(x)
            else: gelu_step(x, n)
        if 2 in stok and 'f2' not in stok and n >= stok['at'] + P.get('fdel', 32):
            vm.need(stok[2])
            stok['f2'] = flag(F2); print('F2 at', n, end='; ')
    while held: gelu_step(held.popleft(), 224)
    while valu: gelu_step(valu.popleft(), 224)
    if 'f2' not in stok:
        vm.need(stok[2])
        stok['f2'] = flag(F2)
    assert J['p'] == 32 and J['h'] == 32
    print('w_down steps', J['w'], 'staged', sg, 'act steps', J['a'])
    while sg < 32:
        i, r = divmod(sg, 4)
        while i not in wtok: job(999)
        vm.need(wtok[i])
        stg[i] = pipe.issue(wread(i, r >> 1, r & 1)); sg += 1
    pipe.need(pipe.issued)
    if tp is None and P.get('fp', 3) < 4: tp = masked(fload, 0xff)
    a('s_mov_b32 s34, 1.0'); a('s_mov_b32 s35, 1.0')
    def geglu2(t):
        s = Asm(); geglu(s, ACC2+16*t, 48, 64 + 4*(t & 1))
        for j, l in enumerate(s.lines):
            a(l.replace('s[46:47]', 's[34:35]'))
            if j % P.get('ge', 8) == 3 and t < P.get('gt', 4): job(999)
        if t: a(f's_add_u32 s47, s47, {AP}')
        return lstore([f'buffer_store_dwordx4 v[{64+4*(t&1)}:{67+4*(t&1)}], v15, s[16:19], s47 offen'], P.get('a2s', 1))
    for t in range(4):
        if t == P.get('fp', 3) and not J['f2']:
            stamp('g1')
            poll('f2', fload, [22], pre=tp, mask=0xff); J['f2'] = True
            stamp('f2ok'); raw(4, 's51')
        if t == 3 and tp is None: tp = masked(fload, 0xff)
        ts3 = geglu2(t)
        if t == 1: ts1 = ts3
    stamp('g3')
    a('v_and_b32 v4, 31, v1')
    a('v_lshrrev_b32 v5, 5, v1')
    a('v_lshlrev_b32 v10, 10, v4')
    a('v_lshl_add_u32 v10, v5, 4, v10')
    a('s_lshr_b32 s46, s3, 1')
    a('s_lshl_b32 s46, s46, 15')
    a('s_and_b32 s47, s3, 1')
    a('s_lshl_b32 s47, s47, 6')
    a('s_add_u32 s39, s39, s46')
    a('s_add_u32 s39, s39, s47')
    a(f's_add_u32 s46, s39, {0 if XO else hex(X1)}')
    F3S = P.get('f3s', 4)
    if F3S < 0:
        vm.need(ts3)
        flag(F3)
    if not J['f2']:
        poll('f2', fload, [22], pre=tp, mask=0xff); J['f2'] = True
        stamp('f2ok'); raw(4, 's51')
        while J['a'] < P.get('a1b', 3): job(999)
    if M2: a(f's_add_u32 s25, s25, {FL3-FL2}')
    stamp('estart')
    pipe = LdsPipe(a); tok = {}
    def rd2(i):
        while i not in wtok: job(999)
        vm.need(wtok[i])
        for mt in range(2):
            for jj in range(2): tok[(i, mt)] = pipe.issue(wread(i, mt, jj))
    f3load = look(F3)
    for i in range(8): stg[i] = 0
    TL = P.get('tl', 2)
    F3C = P.get('f3c', 6); JE = P.get('je', 2); tp = None; g = 0; aq = deque()
    F4C = P.get('f4c', 4); f4load = look(F4); tq = None
    if SP:
        vm.need(ts1); flag(F4)
    for i in range(28):
        stamp(f'e{i}')
        if F3S >= 0 and 's' not in stok and (i == F3S or atok.get(i, 1 << 30) > ts3):
            vm.need(ts3)
            stok['s'] = flag(F3); print('F3 at step', i)
        if SP and i == F4C:
            while J['a'] < 12 or J['half']: job(999)
            if tq is None: tq = masked(f4load, 0xff)
            poll('f4', f4load, [23], pre=tq, mask=0xff)
            stamp('f4ok')
            for ii in range(12, 20): aq.extend([lambda ii=ii: act0(ii), lambda ii=ii: act1(ii)])
        if i == F3C:
            while J['a'] < 12 or J['half']: job(999)
            while SP and aq: aq.popleft()()
            if tp is None: tp = masked(f3load, 0xff)
            poll('f3', f3load, [22], pre=tp, mask=0xff)
            stamp('f3ok'); raw(5, 's51')
            for ii in range(20 if SP else 12, 28): aq.extend([lambda ii=ii: act0(ii), lambda ii=ii: act1(ii)])
            for _ in range(P.get('a2b', 4)): aq.popleft()()
        if i == 22:
            vm.issue(f'buffer_load_dwordx4 v[72:75], v10, {XS}, s46 offen sc1')
            tx = vm.issue(f'buffer_load_dwordx4 v[76:79], v10, {XS}, s46 offen offset:32 sc1')
        if i >= 28 - TL: continue
        kind, d0 = wreg(i); b = abase(i)
        while i not in atok: (aq.popleft()() if i >= 12 else job(999))
        vm.need(atok[i])
        for mt in range(2):
            if i >= 8: pipe.need(tok[(i, mt)])
            for nt in range(2):
                d = ACC2 + 32*mt + 16*nt; c = '0' if i == 0 else f'v[{d}:{d+15}]'
                a(f'v_mfma_f32_32x32x16_bf16 v[{d}:{d+15}], {kind}[{d0+4*mt}:{d0+4*mt+3}], a[{b+4*nt}:{b+4*nt+3}], {c}')
                g += 1
                if mt == 0 and nt == 0 and 8 <= i+2 < 28: rd2(i+2)
                if g % JE == 0:
                    if aq and not J['half'] and (J['w'] >= 28 or J['w'] > i + P.get('wb', 28)): aq.popleft()()
                    elif SP and tq is None and not J['half'] and J['a'] == 12 and (J['w'] >= 28 or i == F4C - 1): tq = masked(f4load, 0xff)
                    elif tp is None and not J['half'] and J['a'] == 12 and (J['w'] >= 28 or i == F3C - 1) and (not SP or (i >= F4C and not aq)): tp = masked(f3load, 0xff)
                    elif not job(999) and aq: aq.popleft()()
    PBL = [None, (WBL[8], WBL[9]), (WBL[10], WBL[11]), (WBL[12], WBL[13])]
    a('v_add_u32 v4, s26, v15')
    a('v_add_u32 v5, 0x10000, v4')
    a('v_add_u32 v18, 0x20000, v4')
    def mm(i, t):
        kind, d0 = wreg(i); b = abase(i); mt, nt = t & 1, t >> 1; d = ACC2 + 32*mt + 16*nt
        while i not in atok: aq.popleft()()
        vm.need(atok[i]); pipe.need(tok[(i, mt)])
        a(f'v_mfma_f32_32x32x16_bf16 v[{d}:{d+15}], {kind}[{d0+4*mt}:{d0+4*mt+3}], a[{b+4*nt}:{b+4*nt+3}], v[{d}:{d+15}]')
    def park(t):
        d = ACC2 + 32*(t & 1) + 16*(t >> 1)
        return [f'ds_write_b128 v{(4, 5, 18)[ad >> 16]}, v[{d+4*g}:{d+4*g+3}] offset:{ad & 0xffff}' for g in range(4) for ad in [8192*PBL[t][g >> 1] + 1024*(g & 1)]]
    wr = deque()
    for t in (1, 3, 2, 0):
        for i in range(28 - TL, 28):
            mm(i, t)
            if t != 3:
                for _ in range(4 // TL if TL else 0):
                    if wr: a(wr.popleft())
        if t: wr.extend(park(t))
    stamp('eend')
    while wr: a(wr.popleft())
    for t in range(1, 4):
        a(f's_xor_b32 s6, s26, {2048*t}')
        a(f's_add_u32 s7, s6, {8192*PBL[t][1]}')
        a(f's_add_u32 s6, s6, {8192*PBL[t][0]}')
        a(f'v_add_u32 v{88+2*t}, s6, v15')
        a(f'v_add_u32 v{89+2*t}, s7, v15')
    vm.need(tx)
    unpack8(a, 96, 124, 40); unpack8(a, 104, 116, 40); unpack8(a, 48, 72, 40); unpack8(a, 56, 76, 40)
    a('s_waitcnt lgkmcnt(0)')
    a('s_barrier')
    stamp('ebar')
    for i in range(1, 4):
        for g in range(4):
            a(f'ds_read_b128 v[{128+16*i+4*g}:{131+16*i+4*g}], v{88+2*i+(g >> 1)} offset:{1024*(g & 1)}')
    for i in range(1, 4):
        a(f's_waitcnt lgkmcnt({12-4*i})')
        for p in range(8): a(f'v_pk_add_f32 v[{128+2*p}:{129+2*p}], v[{128+2*p}:{129+2*p}], v[{128+16*i+2*p}:{129+16*i+2*p}]')
    for g in range(2):
        b = 128 + 8*g
        for r in range(4): a(f'v_permlane32_swap_b32 v{b+r}, v{b+4+r}')
        for p in range(4): a(f'v_pk_fma_f32 v[{b+2*p}:{b+2*p+1}], v[{b+2*p}:{b+2*p+1}], v[{96+8*g+2*p}:{97+8*g+2*p}], v[{48+8*g+2*p}:{49+8*g+2*p}]')
        for p in range(4): a(f'v_cvt_pk_bf16_f32 v{40+4*g+p}, v{b+2*p}, v{b+2*p+1}')
        a(f'buffer_store_dwordx4 v[{40+4*g}:{43+4*g}], v10, s[12:15], s39 offen offset:{32*g}' + ('', ' sc1', ' nt')[P.get('ost', 0)])
    a('s_or_b32 s4, s2, s3')
    a('s_cmp_lg_u32 s4, 0')
    a('s_cbranch_scc1 L_noep')
    a(f's_mov_b32 s4, {hex(EPOCH)}')
    masked(['buffer_store_dword v20, v21, s[16:19], s4 offen'], 1)
    a.label('L_noep')
    if P.get('probe') is not None:
        a('s_waitcnt vmcnt(0)')
        stamp('end')
        a('s_waitcnt lgkmcnt(0)')
        k = P['probe']
        if k == 300:
            a('v_mov_b32 v22, s60')
            a(f's_mov_b32 s36, {hex(0x140B000)}')
            a('s_cmp_lg_u32 s2, 0')
            a('s_cbranch_scc1 L_end')
            a('buffer_store_dword v22, v21, s[16:19], s36 offen')
            a('s_branch L_end')
        elif k == 301:
            a(f's_add_u32 s4, s58, {hex(0x140B000)}')
            a('s_addc_u32 s5, s59, 0')
            a('s_load_dword s92, s[4:5], 0')
            a('s_waitcnt lgkmcnt(0)')
            a('s_add_u32 s92, s92, 6000')
        elif k >= 200:
            a(f's_add_u32 s4, s58, {hex(EPOCH + 0x100)}')
            a('s_addc_u32 s5, s59, 0')
            a('s_load_dwordx4 s[92:95], s[4:5], 0')
            a('s_waitcnt lgkmcnt(0)')
            a('s_cmp_eq_u64 s[92:93], s[94:95]')
            a('s_cselect_b32 s92, 10000, 0' if k == 200 else 's_cselect_b32 s92, 0, 10000')
            a('s_add_u32 s92, s92, s70')
        elif k >= 100:
            a(f's_mov_b32 s36, {hex(0x140A000)}')
            a('buffer_load_dwordx4 v[24:27], v15, s[16:19], s36 offen sc1')
            a('s_waitcnt vmcnt(0)')
            for r, op in ((28, 'min'), (29, 'max')):
                a(f'v_{op}_u32 v{r}, v24, v25')
                a(f'v_{op}3_u32 v{r}, v{r}, v26, v27')
                for ctl in ('row_ror:1', 'row_ror:2', 'row_ror:4', 'row_ror:8'):
                    a(f'v_{op}_u32_dpp v{r}, v{r}, v{r} {ctl} row_mask:0xf bank_mask:0xf')
                for i in range(4): a(f'v_readlane_b32 s{4+i}, v{r}, {16*i}')
                a(f's_{op}_u32 s4, s4, s5'); a(f's_{op}_u32 s6, s6, s7'); a(f's_{op}_u32 s{r+62}, s4, s6')
            if k == 100: a('s_add_u32 s92, s90, 6000')
            elif k == 101:
                a('s_sub_u32 s92, s91, s90'); a('s_lshl_b32 s92, s92, 2'); a('s_add_u32 s92, s92, s90'); a('s_add_u32 s92, s92, 4000')
            else:
                a(f's_sub_u32 s92, s{60+2*(k-110)}, s90'); a('s_lshl_b32 s92, s92, 2'); a('s_add_u32 s92, s92, s90'); a('s_add_u32 s92, s92, 4000')
        elif k == 0:
            a('s_add_u32 s92, s60, 6000')
        else:
            a(f's_sub_u32 s92, s{60+2*k}, s60')
            a('s_lshl_b32 s92, s92, 2')
            a('s_add_u32 s92, s92, s60')
            a('s_add_u32 s92, s92, 4000')
        a.label('L_probe')
        a('s_memrealtime s[94:95]')
        a('s_waitcnt lgkmcnt(0)')
        a('s_sub_u32 s94, s94, s92')
        a('s_cmp_lt_i32 s94, 0')
        a('s_cbranch_scc1 L_probe')
    elif P.get('stamps'):
        a('s_waitcnt vmcnt(0)')
        stamp('end')
        a('s_cmp_lg_u32 s3, 0')
        a('s_cbranch_scc1 L_end')
        a('s_lshl_b32 s94, s2, 7')
        a(f's_add_u32 s94, s94, {hex(TS)}')
        a('s_add_u32 s92, s58, s94')
        a('s_addc_u32 s93, s59, 0')
        a('v_lshlrev_b32 v250, 2, v1')
        a('s_lshl_b32 s94, s2, 8')
        a(f's_add_u32 s94, s94, {hex(TS + 0x80000)}')
        a('s_add_u32 s94, s58, s94')
        a('s_addc_u32 s95, s59, 0')
        a('global_store_dword v250, v254, s[94:95]')
        a('s_mov_b64 exec, 1')
        if P.get('dbg'):
            a('s_load_dwordx2 s[94:95], s[0:1], 104')
        a('s_waitcnt lgkmcnt(0)')
        if P.get('dbg'):
            a('s_not_b32 s60, s60')
            for m in sorted(marks):
                a(f'v_mov_b32 v250, s{60+2*m}')
                a(f'global_atomic_umax v21, v250, s[94:95] offset:{4*m}')
                a('s_nop 1')
            a('s_not_b32 s60, s60')
        for m in sorted(marks):
            a(f'v_mov_b32 v250, s{60+2*m}')
            a(f'v_mov_b32 v251, s{61+2*m}')
            a(f'global_store_dwordx2 v21, v[250:251], s[92:93] offset:{8*m}')
            a('s_nop 1')
    a.label('L_end')
    a.label('L_last')
    a('s_endpgm')
    return dict(grid=256, block=256, lds=163840, vgpr=512, accum=256)

def tinyk(a, P, head):
    a('s_cmp_ge_u32 s2, 1')
    a('s_cbranch_scc1 L_tiny_end')
    a('s_memrealtime s[8:9]')
    a(f's_load_dwordx2 s[4:5], s[0:1], {A_WS}')
    a('s_waitcnt lgkmcnt(0)')
    a(f's_add_u32 s4, s4, {hex(0x140B000)}')
    a('s_addc_u32 s5, s5, 0')
    if head:
        a('v_mov_b32 v1, s8')
        a('v_mov_b32 v2, 0')
        a('global_store_dword v2, v1, s[4:5]')
    else:
        a('s_load_dword s6, s[4:5], 0')
        a('s_waitcnt lgkmcnt(0)')
        a('s_add_u32 s6, s6, 6000')
        a('s_mov_b32 s10, 100000')
        a.label('L_tiny')
        a('s_memrealtime s[8:9]')
        a('s_waitcnt lgkmcnt(0)')
        a('s_sub_u32 s10, s10, 1')
        a('s_cbranch_scc1 L_tiny_end')
        a('s_sub_u32 s8, s8, s6')
        a('s_cmp_lt_i32 s8, 0')
        a('s_cbranch_scc1 L_tiny')
    a.label('L_tiny_end')
    a('s_endpgm')
    return dict(grid=1, block=64, lds=0, vgpr=8, accum=8)
```
